```python
import torch

def _softmax(x, axis=-1):
    return torch.softmax(x, dim=axis)
def _gelu(x):
    return torch.nn.functional.gelu(x, approximate="tanh")
def _silu(x):
    return torch.nn.functional.silu(x)
def _sigmoid(x):
    return torch.sigmoid(x)
def _layernorm(x, axis=-1, eps=1e-5):
    m = x.mean(dim=axis, keepdim=True)
    v = x.var(dim=axis, keepdim=True, unbiased=False)
    return (x - m) / torch.sqrt(v + eps)
def _scatter_add(tgt, idx, src, axis=0):
    return tgt.clone().index_add_(axis, idx, src)
def _segment_sum(src, seg, n):
    out = torch.zeros((n,) + src.shape[1:], dtype=src.dtype)
    return out.index_add_(0, seg, src)
def _pad(x, pw):
    flat = tuple(v for pair in reversed(pw) for v in pair)
    return torch.nn.functional.pad(x, flat)

kernel_name = 'concat_heads__grouped_kv_mqa__grouped_kv_mqa__prompt'

def setup_inputs():

    _w = (lambda a: (lambda t: t.to(torch.bfloat16) if t.is_floating_point() else t)(torch.as_tensor(a)))
    def _A_setup():
        B, S, D, H = 1, 2048, 576, 32
        Dh = D // H
        return {
            "x": _w((lambda *s: torch.randn(*s, dtype=torch.bfloat16) * 0.05)(B, S, D)),
            "wq": _w((lambda *s: torch.randn(*s, dtype=torch.bfloat16) * 0.8)(D, H * Dh)),
            "wk": _w((lambda *s: torch.randn(*s, dtype=torch.bfloat16) * 0.8)(D, Dh)),
            "wv": _w((lambda *s: torch.randn(*s, dtype=torch.bfloat16) * 0.05)(D, Dh)),
            "wo": _w((lambda *s: torch.randn(*s, dtype=torch.bfloat16) * 0.05)(H * Dh, D)),
        }
    _A_in = _A_setup()

    def _B_setup():
        B, S, D, H = 1, 2048, 576, 32
        Dh = D // H
        return {
            "x": _w((lambda *s: torch.randn(*s, dtype=torch.bfloat16) * 0.05)(B, S, D)),
            "wq": _w((lambda *s: torch.randn(*s, dtype=torch.bfloat16) * 0.8)(D, H * Dh)),
            "wk": _w((lambda *s: torch.randn(*s, dtype=torch.bfloat16) * 0.8)(D, Dh)),
            "wv": _w((lambda *s: torch.randn(*s, dtype=torch.bfloat16) * 0.05)(D, Dh)),
            "wo": _w((lambda *s: torch.randn(*s, dtype=torch.bfloat16) * 0.05)(H * Dh, D)),
        }
    _B_in = _B_setup()

    return {
        "A_x": _A_in["x"],
        "A_wq": _A_in["wq"],
        "A_wk": _A_in["wk"],
        "A_wv": _A_in["wv"],
        "A_wo": _A_in["wo"],
        "B_x": _B_in["x"],
        "B_wq": _B_in["wq"],
        "B_wk": _B_in["wk"],
        "B_wv": _B_in["wv"],
        "B_wo": _B_in["wo"],
    }

def reference(A_x, A_wq, A_wk, A_wv, A_wo, B_x, B_wq, B_wk, B_wv, B_wo):
    def _A_ref(x, wq, wk, wv, wo):
        B, S, D = x.shape
        H = 32
        Dh = D // H
        q = (lambda x, *d: x.permute(*d))((x @ wq).reshape(B, S, H, Dh), 0, 2, 1, 3)
        k = x @ wk
        v = x @ wv
        scores = torch.einsum("bhqd,bkd->bhqk", q, k) * (Dh ** -0.5)
        p = _softmax(scores, axis=-1)
        o = torch.einsum("bhqk,bkd->bhqd", p, v)
        return (lambda x, *d: x.permute(*d))(o, 0, 2, 1, 3).reshape(B, S, H * Dh) @ wo

    def _B_ref(x, wq, wk, wv, wo):
        B, S, D = x.shape
        H = 32
        Dh = D // H
        q = (lambda x, *d: x.permute(*d))((x @ wq).reshape(B, S, H, Dh), 0, 2, 1, 3)
        k = x @ wk
        v = x @ wv
        scores = torch.einsum("bhqd,bkd->bhqk", q, k) * (Dh ** -0.5)
        p = _softmax(scores, axis=-1)
        o = torch.einsum("bhqk,bkd->bhqd", p, v)
        return (lambda x, *d: x.permute(*d))(o, 0, 2, 1, 3).reshape(B, S, H * Dh) @ wo

    a = _A_ref(A_x, A_wq, A_wk, A_wv, A_wo)
    b = _B_ref(B_x, B_wq, B_wk, B_wv, B_wo)
    return torch.concatenate([a, b], axis=-1)
```

```python
import sys, math, struct
import numpy as np

NAME = "concat_heads__grouped_kv_mqa__grouped_kv_mqa__prompt_kernel"

VG = 608
PB = 2048 + 256 + 4 * VG
KVB = 32 * PB
L_KV = 12288
L_HAND = 0
L_KMAX = 10240
L_FLAG = 10256
L_W = 67072
L_WR = L_W + 18432
L_X = 90112
SLOT = 4608
L_LAST = 62464
LDS_BYTES = 163840
WS_KV = 0
WS_KN = KVB
WS_WOT = 0x28000
WS_OEX = 0xD0000
WS_BR = 0x400000
WS_STAMP = 0x1000000
OEX_G = 73728
OEX_S = 36864
CSCALE = math.log2(math.e) / math.sqrt(18.0)
TSAFE = 40.0
SPIN = 200000


def f2u(x):
    return struct.unpack("<I", struct.pack("<f", x))[0]


def slot_addr(ks):
    if ks < 14:
        return ks * SLOT
    if ks < 35:
        return L_W + (ks - 14) * SLOT
    return L_LAST


G0 = [0, 1, 2, 3, 12, 13, 14, 15, 20]
G1 = [4, 5, 6, 7, 8, 9, 10, 11, 16]
POS_ONES, POS_ZERO = 22, 23


def vpos(h, row):
    if row in G0:
        return [list(range(0, 9)), [18, 19, 20, 21, 24, 25, 26, 27, 28]][h][G0.index(row)]
    if row in G1:
        return [list(range(9, 18)), list(range(29, 38))][h][G1.index(row)]
    if row in (17, 21):
        return POS_ONES
    return POS_ZERO


def table():
    t = np.zeros((64, 4), dtype=np.uint32)
    for l in range(64):
        t[l, 0] = L_KV + 2304 + vpos(l >> 5, l & 31) * 16
        n, g = l & 15, l >> 4
        t[l, 1] = vpos(g >> 1, n) * 16 + (g & 1) * 8
        p = {0: vpos(g >> 1, 16), 1: vpos(g >> 1, 20), 2: POS_ONES, 3: POS_ZERO}.get(n, POS_ZERO)
        t[l, 2] = p * 16 + (g & 1) * 8
    return t


def vr(a, n=1):
    return f"v[{a}:{a+n-1}]" if n > 1 else f"v{a}"


def sr(a, n=1):
    return f"s[{a}:{a+n-1}]" if n > 1 else f"s{a}"


S_WAVE = 3
R_X, R_WQ, R_W, R_WO, R_WS, R_OUT, R_DBG = 44, 48, 52, 56, 60, 64, 68
S_B, S_HG, S_GI, S_PG, S_I = 4, 5, 6, 7, 8
S_T0, S_T1, S_T2, S_T3, S_T4, S_T5 = 9, 10, 11, 12, 13, 14
S_CNT = 15
S_M0A, S_M0R, S_ROW = 72, 73, 74
S_BAR = 75
S_PBI, S_HQ = 76, 77
S_EX = 78
S_KVS = 80
S_OEX = 81
S_STG = 82
S_ST = 84

V_IDX, V_AK, V_AR, V_AV = 2, 3, 4, 5
QM = [8, 12]
QR = 16
KR = [18, 20]
O = [24, 40]
KM = [56, 60]
VV = [[64, 68], [72, 76]]
S = [80, 112]


class A:
    def __init__(self):
        self.L = []

    def __call__(self, *xs):
        for x in xs:
            if isinstance(x, (list, tuple)):
                self(*x)
            else:
                self.L.append(x)

    def label(self, n):
        self.L.append(n + ":")


def K16(d, a, b, c=None):
    return f"v_mfma_f32_32x32x16_bf16 {vr(d,16)}, {vr(a,4)}, {vr(b,4)}, {c if c else vr(d,16)}"


def M16(d, a, b, c=None):
    return f"v_mfma_f32_16x16x32_bf16 {vr(d,4)}, {vr(a,4)}, {vr(b,4)}, {c if c else vr(d,4)}"


def B2(d, a, b, abid):
    return f"v_mfma_f32_32x32x4_2b_bf16 {vr(d,32)}, {vr(a,2)}, {vr(b,2)}, 0 cbsz:1 abid:{abid}"


def SM(d, a, b):
    return f"v_smfmac_f32_32x32x32_bf16 {vr(d,16)}, {vr(a,4)}, {vr(b,8)}, v{V_IDX}"


def EX(r, n):
    return [f"v_exp_f32 v{r+i}, v{r+i}" for i in range(n)]


def srd(a, dst, lo, hi, size):
    a(f"s_mov_b32 s{dst}, {lo}", f"s_mov_b32 s{dst+1}, {hi}", f"s_mov_b32 s{dst+2}, {size}", f"s_mov_b32 s{dst+3}, 0x20000")


class Gen:
    def __init__(self, opt):
        self.o = dict(unp=4, barit=1, stamps=False, force_fb=False, prefetch=True, prio=True)
        self.o.update(opt)
        self.a = A()
        self.nst = 0

    def stamp(self, i):
        if self.o['stamps']:
            self.a(f"s_memrealtime s[{S_ST+2*i}:{S_ST+2*i+1}]")

    def dump_stamps(self):
        if not self.o['stamps']:
            return
        a = self.a
        a("s_waitcnt lgkmcnt(0)", f"s_lshl_b32 s{S_T0}, s2, 3", f"s_add_u32 s{S_T0}, s{S_T0}, s{S_WAVE}", f"s_lshl_b32 s{S_T0}, s{S_T0}, 6",
          f"s_mul_i32 s{S_T1}, s{S_B}, {WS_BR}", f"s_sub_u32 s{S_T0}, s{S_T0}, s{S_T1}", f"s_add_u32 s{S_T0}, s{S_T0}, {WS_STAMP}",
          f"s_mov_b32 s{R_WS+2}, 0x2000000", "v_mov_b32 v8, 0")
        for i in range(4):
            for k in range(4):
                a(f"v_mov_b32 v{12+k}, s{S_ST+4*i+k}")
            a(f"buffer_store_dwordx4 v[12:15], v8, s[{R_WS}:{R_WS+3}], s{S_T0} offen offset:{16*i}", "s_nop 1")

    def wq_dma(self, d, parts=(0, 1, 2)):
        a = self.a
        s0, s1 = slot_addr(2 * d), slot_addr(2 * d + 1)
        assert d == 17 or s1 == s0 + SLOT
        if 0 in parts:
            a(f"s_add_u32 m0, s{S_M0A}, {s0}", "s_nop 0",
              f"buffer_load_dwordx4 v10, s[{R_WQ}:{R_WQ+3}], s{S_ROW} offen lds")
        if 1 in parts:
            a(f"s_add_u32 m0, s{S_M0A}, {s1}", "s_nop 0",
              f"buffer_load_dwordx4 v11, s[{R_WQ}:{R_WQ+3}], s{S_ROW} offen lds")
        if 2 in parts:
            if d == 17:
                a(f"s_cmp_ge_u32 s{S_I}, 2", f"s_mov_b32 s{S_T0}, {s0}", f"s_cselect_b32 s{S_T0}, {s1 - SLOT}, s{S_T0}", f"s_add_u32 m0, s{S_M0R}, s{S_T0}")
            else:
                a(f"s_add_u32 m0, s{S_M0R}, {s0}")
            a("s_nop 0", f"buffer_load_dword v12, s[{R_WQ}:{R_WQ+3}], s{S_ROW} offen lds")
            a(f"s_add_u32 s{S_ROW}, s{S_ROW}, {32*1152}", f"s_cmp_ge_u32 s{S_ROW}, {576*1152}",
              f"s_cselect_b32 s{S_T0}, {576*1152}, 0", f"s_sub_u32 s{S_ROW}, s{S_ROW}, s{S_T0}")

    def kv_dma(self, p0, n):
        a = self.a
        for k in range(n):
            a(f"s_add_u32 m0, s{S_M0A}, {L_KV + (p0 + 4*k)*1024}", f"s_add_u32 s{S_T0}, s{S_KVS}, 4096",
              f"buffer_load_dwordx4 v1, s[{R_WS}:{R_WS+3}], s{S_KVS} offen sc1 lds",
              f"s_cmp_ge_u32 s{S_T0}, {KVB}", f"s_cselect_b32 s{S_T1}, {KVB}, 0", f"s_sub_u32 s{S_KVS}, s{S_T0}, s{S_T1}")

    def row_max16(self, v):
        a = self.a
        for k in (8, 4, 2, 1):
            a("s_nop 1", f"v_max_f32_dpp v{v}, v{v}, v{v} row_ror:{k} row_mask:0xf bank_mask:0xf")

    def start(self):
        a, o = self.a, self.o
        a("s_cmp_ge_u32 s2, 256", "s_cbranch_scc1 L_end")
        a("s_load_dwordx16 s[16:31], s[0:1], 0", "s_load_dwordx8 s[32:39], s[0:1], 64", "s_load_dwordx2 s[40:41], s[0:1], 96")
        self.stamp(0)
        a("s_getpc_b64 s[42:43]", "L_pc:")
        a("v_lshrrev_b32 v1, 6, v0", "v_and_b32 v0, 63, v0", f"v_readfirstlane_b32 s{S_WAVE}, v1", "v_lshlrev_b32 v1, 4, v0")
        a(f"s_add_u32 s{S_T0}, s42, L_table-L_pc", f"s_addc_u32 s{S_T1}, s43, 0",
          f"v_mov_b32 v7, s{S_T1}", f"v_add_co_u32 v6, vcc, s{S_T0}, v1", f"s_and_b32 s{S_B}, s2, 1", f"s_lshr_b32 s{S_T2}, s2, 3",
          "v_addc_co_u32 v7, vcc, 0, v7, vcc", f"s_and_b32 s{S_HG}, s{S_T2}, 3", f"s_lshr_b32 s{S_GI}, s2, 5",
          "global_load_dwordx4 v[20:23], v[6:7], off")
        if o['prefetch']:
            a(f"s_cmp_lg_u32 s{S_WAVE}, 7", "s_cbranch_scc1 L_nopf", f"s_cmp_ge_u32 s{S_T2}, (L_codeend-{NAME})/1024", "s_cbranch_scc1 L_nopf",
              f"s_lshl_b32 s{S_T2}, s{S_T2}, 10", f"s_sub_u32 s{S_T0}, s42, L_pc-{NAME}", f"s_subb_u32 s{S_T1}, s43, 0",
              f"s_add_u32 s{S_T0}, s{S_T0}, s{S_T2}", f"s_addc_u32 s{S_T1}, s{S_T1}, 0",
              f"v_mov_b32 v7, s{S_T1}", f"v_add_co_u32 v6, vcc, s{S_T0}, v1", "s_nop 1", "v_addc_co_u32 v7, vcc, 0, v7, vcc", "s_nop 0",
              "global_load_dwordx4 v[24:27], v[6:7], off", "L_nopf:")
        a(f"s_bfe_u32 s{S_PG}, s2, 0x20001", f"s_lshl_b32 s{S_PG}, s{S_PG}, 3", f"s_add_u32 s{S_PG}, s{S_PG}, s{S_GI}",
          f"s_and_b32 s{S_I}, s{S_WAVE}, 3", f"s_and_b32 s{S_PBI}, s{S_WAVE}, 1", f"s_lshr_b32 s{S_HQ}, s{S_I}, 1")
        a("v_lshrrev_b32 v8, 3, v0", "v_lshrrev_b32 v9, 4, v0", f"s_lshl_b32 s{S_T0}, s{S_PBI}, 2", f"v_or_b32 v9, s{S_T0}, v9",
          "v_and_b32 v10, 7, v0", "v_xor_b32 v9, v9, v10", "v_lshlrev_b32 v9, 4, v9", "v_mov_b32 v10, 0x480", "v_mad_u32_u24 v8, v8, v10, v9")
        a(f"s_lshl_b32 s{S_T0}, s{S_PG}, 3", f"s_add_u32 s{S_T0}, s{S_T0}, s{S_WAVE}", f"s_mul_i32 s{S_T0}, s{S_T0}, {8*1152}",
          f"s_lshl_b32 s{S_T1}, s{S_GI}, 7", f"s_mul_i32 s{S_T2}, s{S_WAVE}, 9216", f"s_add_u32 s{S_T2}, s{S_T2}, {L_X}")
        a("s_waitcnt lgkmcnt(0)", f"s_cmp_eq_u32 s{S_B}, 0", f"s_cselect_b64 s[{R_X}:{R_X+1}], s[16:17], s[26:27]",
          f"s_mov_b32 s{R_X+2}, 2359296", f"s_mov_b32 s{R_X+3}, 0x20000")
        for i in range(9):
            a(f"s_add_u32 m0, s{S_T2}, {i*1024}", f"s_add_u32 s{S_T3}, s{S_T0}, s{S_T1}",
              f"buffer_load_dwordx4 v8, s[{R_X}:{R_X+3}], s{S_T3} offen lds")
            if i < 8:
                a(f"s_add_u32 s{S_T1}, s{S_T1}, 128", f"s_cmp_eq_u32 s{S_T1}, 1152", f"s_cselect_b32 s{S_T1}, 0, s{S_T1}")
        a(f"s_cmp_eq_u32 s{S_B}, 0",
          f"s_cselect_b64 s[{R_WQ}:{R_WQ+1}], s[18:19], s[28:29]", f"s_cselect_b64 s[20:21], s[20:21], s[30:31]",
          f"s_cselect_b64 s[22:23], s[22:23], s[32:33]", f"s_cselect_b64 s[{R_WO}:{R_WO+1}], s[24:25], s[34:35]",
          f"s_bitcmp0_b32 s{S_HG}, 0", f"s_cselect_b64 s[{R_W}:{R_W+1}], s[20:21], s[22:23]",
          f"s_mov_b32 s{R_WQ+2}, 663552", f"s_mov_b32 s{R_WQ+3}, 0x20000", f"s_mov_b32 s{R_W+2}, 20736", f"s_mov_b32 s{R_W+3}, 0x20000",
          f"s_mov_b32 s{R_WO+2}, 663552", f"s_mov_b32 s{R_WO+3}, 0x20000",
          f"s_mul_i32 s{S_T0}, s{S_B}, {WS_BR}", f"s_add_u32 s{R_WS}, s40, s{S_T0}", f"s_addc_u32 s{R_WS+1}, s41, 0",
          f"s_mov_b32 s{R_WS+2}, {WS_OEX + 32*OEX_G}", f"s_mov_b32 s{R_WS+3}, 0x20000")
        srd(a, R_OUT, "s36", "s37", 4718592)
        srd(a, R_DBG, "s38", "s39", 256)
        a(f"s_cmp_ge_u32 s{S_WAVE}, 4", "s_cbranch_scc1 L_late")

    def early_front(self):
        a, o = self.a, self.o
        a("v_lshrrev_b32 v9, 1, v0", "v_mul_u32_u24 v9, 36, v9", f"s_mul_i32 s{S_T0}, s{S_GI}, {64*36}", f"s_mul_i32 s{S_T1}, s{S_PBI}, {32*36}",
          f"v_add_u32 v9, s{S_T1}, v9", f"s_cmp_ge_u32 s{S_WAVE}, 2", "s_cbranch_scc1 L_wrem")
        a("v_and_b32 v10, 1, v0", "v_lshl_add_u32 v9, v10, 4, v9", f"s_lshl_b32 s{S_T2}, s{S_PBI}, 10")
        for n in range(9):
            a(f"s_add_u32 m0, s{S_T2}, {L_W + n*2048}", f"s_add_u32 s{S_T1}, s{S_T0}, {64*36}",
              f"buffer_load_dwordx4 v9, s[{R_W}:{R_W+3}], s{S_T0} offen lds", f"s_cmp_eq_u32 s{S_T1}, 20736", f"s_cselect_b32 s{S_T0}, 0, s{S_T1}")
        a("s_branch L_wdone", "L_wrem:", "v_add_u32 v9, 32, v9", f"s_lshl_b32 s{S_T2}, s{S_PBI}, 8")
        for n in range(9):
            a(f"s_add_u32 m0, s{S_T2}, {L_WR + n*512}", f"s_add_u32 s{S_T1}, s{S_T0}, {64*36}",
              f"buffer_load_dword v9, s[{R_W}:{R_W+3}], s{S_T0} offen lds", f"s_cmp_eq_u32 s{S_T1}, 20736", f"s_cselect_b32 s{S_T0}, 0, s{S_T1}")
        a("L_wdone:")
        a("v_and_b32 v12, 31, v0", "v_lshrrev_b32 v13, 5, v0", "v_bfe_u32 v14, v0, 1, 3", "v_xor_b32 v13, v13, v14", "v_lshlrev_b32 v13, 4, v13",
          "v_and_b32 v14, 7, v0", "v_lshl_add_u32 v13, v14, 7, v13", "v_lshrrev_b32 v12, 3, v12", "v_mul_u32_u24 v12, 0x2400, v12",
          f"s_mul_i32 s{S_T0}, s{S_PBI}, {4*9216}", f"s_add_u32 s{S_T0}, s{S_T0}, {L_X}", f"v_add3_u32 v8, v12, v13, s{S_T0}",
          "v_xor_b32 v9, 32, v8", "v_xor_b32 v10, 64, v8", "v_xor_b32 v11, 0x60, v8")
        a("v_bfe_u32 v12, v0, 2, 2",
          "v_and_b32 v13, 3, v0",
          "v_bfe_u32 v14, v0, 4, 1",
          "v_lshrrev_b32 v15, 5, v0",
          "v_lshl_add_u32 v15, v15, 3, v12",
          f"s_lshl_b32 s{S_T0}, s{S_HQ}, 3",
          "v_lshrrev_b32 v16, 1, v13", "v_lshl_add_u32 v16, v14, 1, v16", f"v_or_b32 v16, s{S_T0}, v16",
          "v_lshlrev_b32 v17, 2, v12", "v_xor_b32 v16, v16, v17", "v_lshlrev_b32 v16, 4, v16",
          "v_and_b32 v13, 1, v13", "v_lshl_add_u32 v16, v13, 3, v16", "v_lshl_add_u32 v6, v15, 8, v16", "v_xor_b32 v7, 64, v6",
          f"s_lshl_b32 s{S_T0}, s{S_HQ}, 4", f"s_add_u32 s{S_T0}, s{S_T0}, 4096", "v_lshlrev_b32 v13, 3, v13", "v_lshl_add_u32 v13, v15, 5, v13",
          f"v_add_u32 v18, s{S_T0}, v13")
        a("s_waitcnt vmcnt(0)", f"v_mov_b32 v{V_AV}, v20", "v_mov_b32 v22, v18")
        self.stamp(1)
        a("s_barrier")
        XF = 112
        for i in range(36):
            a(f"ds_read_b128 {vr(XF+4*i,4)}, v{8+(i&3)} offset:{(i>>2)*1024}")
        a("s_waitcnt lgkmcnt(0)", "s_barrier")
        a("v_mov_b32 v100, 1", "v_mov_b32 v101, 0", f"s_lshl_b32 s{S_T0}, s{S_B}, 7", f"s_cmp_lg_u32 s{S_WAVE}, 3")
        a("s_barrier")
        a("s_cbranch_scc1 L_nosig", "s_mov_b64 exec, 1",
          f"buffer_atomic_add v100, v101, s[{R_DBG}:{R_DBG+3}], s{S_T0} offen sc1", "s_mov_b64 exec, -1", "L_nosig:")
        self.stamp(2)
        T0, T1, TR = 24, 40, 56
        FB = [72, 84]

        def rd(ks, base):
            off = slot_addr(ks) - base
            f = FB[ks & 1]
            return [f"ds_read_b64_tr_b16 {vr(f,2)}, v6 offset:{off}", f"ds_read_b64_tr_b16 {vr(f+2,2)}, v6 offset:{off+1024}",
                    f"ds_read_b64_tr_b16 {vr(f+4,2)}, v7 offset:{off}", f"ds_read_b64_tr_b16 {vr(f+6,2)}, v7 offset:{off+1024}",
                    f"ds_read_b64_tr_b16 {vr(f+8,2)}, v22 offset:{off}", f"ds_read_b64_tr_b16 {vr(f+10,2)}, v22 offset:{off+128}"]

        def mm(ks):
            f = FB[ks & 1]
            c = "0" if ks == 0 else None
            return [K16(T0, f, XF + 4 * ks, c), K16(T1, f + 4, XF + 4 * ks, c), K16(TR, f + 8, XF + 4 * ks, c)]
        base = 0
        for (k0, k1) in ((0, 14), (14, 24), (24, 36)):
            nb = min(slot_addr(k) for k in range(k0, k1))
            if k0 == 24:
                nb = slot_addr(24)
            if nb != base:
                a([f"v_add_u32 v{r}, {nb-base}, v{r}" for r in (6, 7, 22)])
                base = nb
            a(rd(k0, base))
            for ks in range(k0, k1):
                m = mm(ks)
                if ks + 1 < k1:
                    if ks + 1 == 35:
                        a([f"v_subrev_u32 v{r}, {base-L_LAST}, v{r}" for r in (6, 7, 22)])
                        base = L_LAST
                    n = rd(ks + 1, base)
                    a(n[0:2], "s_waitcnt lgkmcnt(6)", m[0], n[2:4], "s_waitcnt lgkmcnt(6)", m[1], n[4:6], "s_waitcnt lgkmcnt(6)", m[2])
                else:
                    a("s_waitcnt lgkmcnt(4)", m[0], "s_waitcnt lgkmcnt(2)", m[1], "s_waitcnt lgkmcnt(0)", m[2])
            if k1 < 36:
                a("s_barrier")
        self.stamp(3)
        H = 72
        a(f"s_mul_i32 s{S_T0}, s{S_WAVE}, 2560", f"v_add_u32 v96, s{S_T0}, v1", "v_lshlrev_b32 v97, 3, v0", f"v_add_u32 v97, s{S_T0}, v97")
        a(f"v_mov_b32 v{V_IDX}, 0xdddddddd", f"v_add_u32 v{V_AK}, {L_KV}, v1", f"v_lshlrev_b32 v{V_AR}, 2, v0", f"v_add_u32 v{V_AR}, {L_KV+2048}, v{V_AR}")
        a("s_nop 1")
        for j in range(8):
            a(f"v_cvt_pk_bf16_f32 v{H+j}, v{T1+2*j}, v{T1+2*j+1}")
        a(f"v_cvt_pk_bf16_f32 v{H+8}, v{TR+2}, v{TR+3}")
        a(f"ds_write_b128 v96, {vr(H,4)}", f"ds_write_b128 v96, {vr(H+4,4)} offset:1024")
        a(f"v_cvt_pk_bf16_f32 v{QR}, v{TR}, v{TR+1}")
        for j in range(8):
            a(f"v_cvt_pk_bf16_f32 v{QM[0]+j}, v{T0+2*j}, v{T0+2*j+1}")
        self.norm(H, H + 8, H + 9, 85)
        a(f"ds_write_b64 v97, {vr(H+8,2)} offset:2048")
        self.norm(QM[0], QR, QR + 1, 85)
        self.init_main_regs()
        a("s_waitcnt lgkmcnt(0)")
        self.stamp(4)
        a("s_barrier")
        a(f"v_mov_b32 v6, {L_KMAX}", "ds_read_b32 v6, v6")
        self.main_prologue_loads()
        if o['prio']:
            a("s_setprio 2")
        a(f"s_mov_b32 s{S_BAR}, {32//o['unp'] - o['barit']}", f"s_mov_b32 s{S_STG}, 0")
        a("s_waitcnt lgkmcnt(0)", "s_branch L_attn")

    def norm(self, qm, qr, dst, tmp):
        a = self.a
        a(f"v_dot2_f32_bf16 v{dst}, v{qm}, v{qm}, 0", f"v_dot2_f32_bf16 v{tmp}, v{qm+4}, v{qm+4}, 0")
        for j in range(1, 4):
            a(f"v_dot2_f32_bf16 v{dst}, v{qm+j}, v{qm+j}, v{dst}", f"v_dot2_f32_bf16 v{tmp}, v{qm+4+j}, v{qm+4+j}, v{tmp}")
        a("s_nop 2", f"v_permlane32_swap_b32 v{dst}, v{tmp}", "s_nop 1", f"v_add_f32 v{dst}, v{dst}, v{tmp}", "s_nop 2",
          f"v_dot2_f32_bf16 v{dst}, v{qr}, v{qr}, v{dst}", "s_nop 2", f"v_sqrt_f32 v{dst}, v{dst}", "s_nop 0")

    def init_main_regs(self):
        a = self.a
        a(f"v_mov_b32 v{KR[0]+1}, 0x3f803f80", f"v_mov_b32 v{KR[1]+1}, 0x3f803f80")
        for r in range(O[0], O[0] + 32):
            a(f"v_mov_b32 v{r}, 0")
        for r in range(S[1] + 24, S[1] + 32):
            a(f"v_mov_b32 v{r}, 0")
        for r in range(VV[1][1], VV[1][1] + 4):
            a(f"v_mov_b32 v{r}, 0")

    def ldKm(self, kb):
        return [f"ds_read_b128 {vr(KM[kb%2],4)}, v{V_AK} offset:{(kb//2)*PB+(kb%2)*1024}"]

    def ldKr(self, p):
        return [f"ds_read_b32 v{KR[p%2]}, v{V_AR} offset:{p*PB}"]

    def ldV(self, kb):
        return [f"ds_read_b128 {vr(VV[kb%2][i],4)}, v{V_AV} offset:{(kb//2)*PB+((kb%2)*2+i)*VG}" for i in range(2)]

    def qk(self, dst, kb):
        return [B2(dst, KR[(kb//2) % 2], QR, kb % 2), K16(dst, KM[kb % 2], QM[0]), K16(dst + 16, KM[kb % 2], QM[1])]

    def main_prologue_loads(self):
        self.a(self.ldKr(0), self.ldKm(0), self.ldKm(1), self.ldKr(1), self.ldV(0))

    def late_front(self):
        a, o = self.a, self.o
        a.label("L_late")
        a("v_lshrrev_b32 v13, 4, v0", "v_and_b32 v14, 15, v0", "v_lshlrev_b32 v15, 2, v13", "v_xor_b32 v14, v14, v15",
          "v_lshrrev_b32 v15, 1, v14", "v_mul_u32_u24 v15, 36, v15", "v_and_b32 v14, 1, v14", "v_lshl_add_u32 v15, v14, 4, v15",
          "v_mul_u32_u24 v13, 0x480, v13", f"s_mul_i32 s{S_T0}, s{S_I}, {4*1152}", f"s_mul_i32 s{S_T1}, s{S_HG}, 288",
          f"s_add_u32 s{S_T0}, s{S_T0}, s{S_T1}", f"v_add3_u32 v10, v13, v15, s{S_T0}", f"v_add_u32 v11, {16*1152}, v10",
          f"s_mul_i32 s{S_ROW}, s{S_GI}, {64*1152}", f"s_lshl_b32 s{S_M0A}, s{S_I}, 10")
        self.wq_dma(0, (0, 1))
        a("v_and_b32 v13, 4, v0", "v_bfe_u32 v14, v0, 1, 1", "v_or_b32 v13, v13, v14", "v_and_b32 v14, 1, v0", "v_lshl_add_u32 v13, v14, 1, v13",
          "v_mul_u32_u24 v13, 36, v13", "v_lshrrev_b32 v14, 3, v0", "v_mul_u32_u24 v14, 0x480, v14",
          f"s_mul_i32 s{S_T0}, s{S_I}, {8*1152}", f"s_add_u32 s{S_T0}, s{S_T0}, s{S_T1}", f"s_add_u32 s{S_T0}, s{S_T0}, 32",
          f"v_add3_u32 v12, v13, v14, s{S_T0}",
          f"s_mul_i32 s{S_M0R}, s{S_HQ}, {SLOT}", f"s_lshl_b32 s{S_T0}, s{S_PBI}, 8", f"s_add_u32 s{S_M0R}, s{S_M0R}, s{S_T0}",
          f"s_add_u32 s{S_M0R}, s{S_M0R}, 4096")
        self.wq_dma(0, (2,))
        for d in range(1, 7):
            self.wq_dma(d)
        a("v_and_b32 v13, 15, v0", "v_lshrrev_b32 v16, 4, v0",
          "v_bfe_u32 v17, v0, 1, 3", "v_xor_b32 v17, v16, v17", "v_lshlrev_b32 v17, 4, v17",
          "v_and_b32 v18, 7, v0", "v_lshl_add_u32 v17, v18, 7, v17", "v_bfe_u32 v18, v0, 3, 1", "v_mul_u32_u24 v18, 0x2400, v18",
          f"s_lshr_b32 s{S_T0}, s{S_HG}, 1", f"s_lshl_b32 s{S_T0}, s{S_T0}, 1", f"s_add_u32 s{S_T0}, s{S_T0}, s{S_PBI}",
          f"s_mul_i32 s{S_T1}, s{S_T0}, {2*9216}", f"s_add_u32 s{S_T1}, s{S_T1}, {L_X}", f"v_add3_u32 v14, v17, v18, s{S_T1}", "v_xor_b32 v15, 64, v14",
          "v_bfe_u32 v17, v0, 2, 2", "v_lshl_add_u32 v17, v16, 3, v17",
          f"s_cmp_eq_u32 s{S_HQ}, 0", f"s_cselect_b32 s{S_T2}, 5, 3", f"s_mov_b32 s{S_T3}, {L_WR}", f"s_cselect_b32 s{S_T3}, {L_W}, s{S_T3}", f"s_movk_i32 s{S_T5}, 256", f"s_cselect_b32 s{S_T5}, 1024, s{S_T5}",
          f"s_cselect_b32 s{S_T4}, 8, 0", f"v_lshlrev_b32 v17, s{S_T2}, v17", "v_and_b32 v18, 3, v0", f"v_mul_u32_u24 v18, s{S_T4}, v18",
          f"v_add3_u32 v19, v17, v18, s{S_T3}", f"s_lshr_b32 s{S_T4}, s{S_T5}, 3", f"v_add_u32 v17, s{S_T4}, v19", "v_mov_b32 v16, v19")
        a("v_lshrrev_b32 v18, 4, v0", "v_and_b32 v19, 1, v18", "v_lshlrev_b32 v19, 9, v19", "v_lshl_add_u32 v19, v13, 4, v19",
          "v_lshrrev_b32 v18, 1, v18", "v_lshl_add_u32 v28, v18, 3, v19", "v_lshlrev_b32 v29, 2, v13",
          f"s_mul_i32 s{S_KVS}, s{S_PG}, {PB}", f"s_mov_b32 s{S_OEX}, s{S_T0}")
        a("s_waitcnt vmcnt(21)", f"v_mov_b32 v{V_AV}, v20")
        self.stamp(1)
        a("s_barrier")
        a(f"s_bitcmp1_b32 s{S_HG}, 0", "s_cbranch_scc1 L_vproj")
        D = 32
        for isv in (0, 1):
            if isv:
                a.label("L_vproj")
            NB = 4

            def rd(s):
                xb = 40 + 8 * (s % NB)
                return [f"ds_read_b128 {vr(xb,4)}, v{14+(s&1)} offset:{(s>>1)*1024}",
                        f"ds_read_b64_tr_b16 {vr(xb+4,2)}, v16", f"ds_read_b64_tr_b16 {vr(xb+6,2)}, v17",
                        f"v_add_u32 v16, s{S_T5}, v16", f"v_add_u32 v17, s{S_T5}, v17"]
            for s in range(NB - 1):
                a(rd(s))
            for s in range(18):
                if s + NB - 1 < 18:
                    a(rd(s + NB - 1))
                left = min(18 - 1 - s, NB - 1)
                xb = 40 + 8 * (s % NB)
                c = "0" if s == 0 else None
                a(f"s_waitcnt lgkmcnt({3*left})", M16(D, xb, xb + 4, c) if isv else M16(D, xb + 4, xb, c))
            g = S_OEX
            if not isv:
                a(f"s_lshr_b32 s{S_T0}, s{g}, 1", f"s_lshl_b32 s{S_T0}, s{S_T0}, 10", f"s_lshl_b32 s{S_T1}, s{S_PBI}, 8", f"s_add_u32 s{S_T0}, s{S_T0}, s{S_T1}",
                  f"s_add_u32 s{S_T0}, s{S_T0}, s{S_KVS}",
                  f"s_lshl_b32 s{S_T1}, s{g}, 6", f"s_add_u32 s{S_T1}, s{S_T1}, s{S_KVS}", f"s_add_u32 s{S_T1}, s{S_T1}, 2048",
                  f"s_mov_b32 s{S_T2}, {hex(f2u(CSCALE))}")
                for r in range(4):
                    a(f"v_mul_f32 v{D+r}, s{S_T2}, v{D+r}")
                a(f"v_cvt_pk_bf16_f32 v{D}, v{D}, v{D+1}", f"v_cvt_pk_bf16_f32 v{D+1}, v{D+2}, v{D+3}",
                  f"s_lshl_b32 s{S_T3}, s{S_PG}, 2", f"s_add_u32 s{S_T3}, s{S_T3}, s{g}", f"s_lshl_b32 s{S_T3}, s{S_T3}, 2", f"s_add_u32 s{S_T3}, s{S_T3}, {WS_KN}",
                  f"v_dot2_f32_bf16 v36, v{D}, v{D}, 0",
                  f"s_cmp_eq_u32 s{S_HQ}, 0", "s_cbranch_scc0 L_krem",
                  f"buffer_store_dwordx2 {vr(D,2)}, v28, s[{R_WS}:{R_WS+3}], s{S_T0} offen sc1",
                  f"v_dot2_f32_bf16 v36, v{D+1}, v{D+1}, v36", "s_nop 2", "v_mov_b32 v37, v36", "s_nop 1",
                  "v_permlane16_swap_b32 v36, v37", "s_nop 1", "v_add_f32 v36, v36, v37", "s_nop 0", "v_mov_b32 v37, v36", "s_nop 1",
                  "v_permlane32_swap_b32 v36, v37", "s_nop 1", "v_add_f32 v36, v36, v37", "s_branch L_knorm",
                  "L_krem:", "s_mov_b64 exec, 0xffff",
                  f"buffer_store_dword v{D}, v29, s[{R_WS}:{R_WS+3}], s{S_T1} offen sc1", "s_mov_b64 exec, -1", f"s_add_u32 s{S_T3}, s{S_T3}, 512",
                  "L_knorm:", "s_nop 1")
                self.row_max16(36)
                a("v_mov_b32 v37, 0", "s_mov_b64 exec, 1", f"buffer_store_dword v36, v37, s[{R_WS}:{R_WS+3}], s{S_T3} offen sc1", "s_mov_b64 exec, -1",
                  "s_branch L_kvdone")
            else:
                a(f"s_mul_i32 s{S_T0}, s{g}, {VG}", f"s_add_u32 s{S_T0}, s{S_T0}, s{S_KVS}", f"s_add_u32 s{S_T0}, s{S_T0}, 2304",
                  "v_cmp_eq_u32 vcc, 2, v13", f"v_cmp_eq_u32 s[{S_EX}:{S_EX+1}], 3, v13", "v_mov_b32 v30, 0x3f803f80", "s_nop 0",
                  f"s_cmp_eq_u32 s{S_HQ}, 0",
                  f"v_cvt_pk_bf16_f32 v{D}, v{D}, v{D+1}", f"v_cvt_pk_bf16_f32 v{D+1}, v{D+2}, v{D+3}", "s_cbranch_scc0 L_vrem",
                  f"buffer_store_dwordx2 {vr(D,2)}, v21, s[{R_WS}:{R_WS+3}], s{S_T0} offen sc1", "s_branch L_kvdone",
                  "L_vrem:",
                  f"v_cndmask_b32 v{D}, v{D}, v30, vcc", f"v_cndmask_b32 v{D+1}, v{D+1}, v30, vcc",
                  f"v_cndmask_b32 v{D}, v{D}, 0, s[{S_EX}:{S_EX+1}]", f"v_cndmask_b32 v{D+1}, v{D+1}, 0, s[{S_EX}:{S_EX+1}]",
                  "s_mov_b32 exec_lo, 0x000f000f", "s_mov_b32 exec_hi, 0x000f000f",
                  f"buffer_store_dwordx2 {vr(D,2)}, v22, s[{R_WS}:{R_WS+3}], s{S_T0} offen sc1", "s_mov_b64 exec, -1")
        a.label("L_kvdone")
        self.stamp(2)
        a("s_barrier")
        for d in range(7, 12):
            self.wq_dma(d)
        a("s_waitcnt vmcnt(15)", "s_barrier")
        for d in range(12, 17):
            self.wq_dma(d)
        self.wq_dma(17, (0,))
        a("s_waitcnt vmcnt(16)", "s_barrier")
        self.wq_dma(17, (1, 2))
        a(f"v_mov_b32 v30, {L_FLAG}", "v_mov_b32 v31, 0", "ds_write_b32 v30, v31")
        a(f"s_and_b32 s{S_T0}, s{S_GI}, 3", f"s_mul_i32 s{S_KVS}, s{S_T0}, {37*1024}", f"s_add_u32 s{S_KVS}, s{S_KVS}, s{S_M0A}")
        a("s_waitcnt vmcnt(0) lgkmcnt(0)", "s_barrier")
        self.stamp(3)
        a(f"s_mov_b32 s{S_CNT}, {SPIN}", f"s_cmp_lg_u32 s{S_WAVE}, 4", "s_cbranch_scc1 L_relay", f"s_lshl_b32 s{S_T0}, s{S_B}, 7")
        a("L_poll1:", f"buffer_load_dword v32, v31, s[{R_DBG}:{R_DBG+3}], s{S_T0} offen sc0 sc1", f"s_sub_u32 s{S_CNT}, s{S_CNT}, 1",
          "s_cbranch_scc1 L_poll1d", "s_waitcnt vmcnt(0)", "v_cmp_ne_u32 vcc, 0x80, v32", "s_cbranch_vccnz L_poll1",
          "L_poll1d:", "v_mov_b32 v32, 1", "ds_write_b32 v30, v32", "v_lshlrev_b32 v33, 3, v0", f"s_mov_b32 s{S_T0}, {WS_KN}",
          f"buffer_load_dwordx2 v[34:35], v33, s[{R_WS}:{R_WS+3}], s{S_T0} offen sc1",
          f"buffer_load_dwordx2 v[36:37], v33, s[{R_WS}:{R_WS+3}], s{S_T0} offen offset:512 sc1", "s_branch L_flagok")
        a("L_relay:", "ds_read_b32 v32, v30", f"s_sub_u32 s{S_CNT}, s{S_CNT}, 1", "s_cbranch_scc1 L_flagok", "s_waitcnt lgkmcnt(0)",
          "v_cmp_eq_u32 vcc, 0, v32", "s_cbranch_vccnz L_relay", "L_flagok:")
        self.stamp(4)
        self.kv_dma(0, 12)
        a(f"s_cmp_lg_u32 s{S_WAVE}, 4", "s_cbranch_scc1 L_nokn", "s_waitcnt vmcnt(12)", "v_max_f32 v34, v34, v35", "v_max_f32 v36, v36, v37")
        self.row_max16(34)
        self.row_max16(36)
        a("s_nop 0")
        for k in range(4):
            a(f"v_readlane_b32 s{16+k}, v34, {16*k}", f"v_readlane_b32 s{20+k}, v36, {16*k}")
        a("s_nop 1", "s_max_u32 s16, s16, s17", "s_max_u32 s18, s18, s19", "s_max_u32 s20, s20, s21", "s_max_u32 s22, s22, s23",
          "s_max_u32 s16, s16, s18", "s_max_u32 s20, s20, s22", "v_mov_b32 v34, s16", "v_add_f32 v34, s20, v34", "v_sqrt_f32 v34, v34",
          f"v_mov_b32 v35, {L_KMAX}", "ds_write_b32 v35, v34", "L_nokn:")
        a(f"v_mov_b32 v{V_IDX}, 0xdddddddd", f"v_add_u32 v{V_AK}, {L_KV}, v1", f"v_lshlrev_b32 v{V_AR}, 2, v0", f"v_add_u32 v{V_AR}, {L_KV+2048}, v{V_AR}",
          f"s_mul_i32 s{S_T0}, s{S_I}, 2560", f"v_add_u32 v8, s{S_T0}, v1", "v_lshlrev_b32 v9, 3, v0", f"v_add_u32 v9, s{S_T0}, v9", f"v_mov_b32 v6, {L_KMAX}")
        a("s_waitcnt vmcnt(0) lgkmcnt(0)", "s_barrier")
        a("ds_read_b32 v6, v6", f"ds_read_b64 {vr(QR,2)}, v9 offset:2048", f"ds_read_b128 {vr(QM[1],4)}, v8 offset:1024", f"ds_read_b128 {vr(QM[0],4)}, v8")
        self.wo_job_loads(0)
        self.kv_dma(48, 25)
        self.poison()
        self.wo_job_finish(0, 30)
        a(f"s_cmp_ge_u32 s{S_OEX}, {648-512}", "s_cbranch_scc1 L_nowo2", f"s_add_u32 s{S_OEX}, s{S_OEX}, 512")
        self.wo_job_loads(1)
        self.wo_job_finish(1, 0)
        a("L_nowo2:")
        self.init_main_regs()
        a("s_waitcnt vmcnt(0) lgkmcnt(0)")
        self.stamp(5)
        a("s_barrier")
        a(f"s_cmp_lg_u32 s{S_WAVE}, 4", "s_cbranch_scc1 L_nosig2", "v_mov_b32 v146, 1", "v_mov_b32 v147, 0", f"s_lshl_b32 s{S_T0}, s{S_B}, 7", "s_mov_b64 exec, 1",
          f"buffer_atomic_add v146, v147, s[{R_DBG}:{R_DBG+3}], s{S_T0} offen offset:4 sc1", "s_mov_b64 exec, -1", "L_nosig2:")
        self.main_prologue_loads()
        if o['prio']:
            a("s_setprio 1")
        a(f"s_mov_b32 s{S_BAR}, -1", f"s_mov_b32 s{S_STG}, 1", "s_waitcnt lgkmcnt(0)")

    def wo_job_loads(self, rep):
        a = self.a
        if rep == 0:
            a(f"s_lshl_b32 s{S_OEX}, s{S_PG}, 2", f"s_add_u32 s{S_OEX}, s{S_OEX}, s{S_HG}", f"s_lshl_b32 s{S_OEX}, s{S_OEX}, 2", f"s_add_u32 s{S_OEX}, s{S_OEX}, s{S_I}")
        f = S_OEX
        a(f"s_mul_i32 s16, s{f}, 7282", "s_lshr_b32 s16, s16, 16", "s_mul_i32 s17, s16, 9", f"s_sub_u32 s17, s{f}, s17",
          "s_mul_i32 s18, s16, 7282", "s_lshr_b32 s18, s18, 16", "s_mul_i32 s19, s18, 9", "s_sub_u32 s19, s16, s19",
          "s_and_b32 s20, s18, 1", "s_lshr_b32 s21, s18, 1")
        a("s_mul_i32 s22, s21, 288", "s_lshr_b32 s23, s17, 1", "s_lshl_b32 s23, s23, 6", "s_add_u32 s22, s22, s23", "s_and_b32 s23, s17, 1", "s_lshl_b32 s23, s23, 3",
          "s_add_u32 s22, s22, s23", "s_cmp_eq_u32 s17, 8", "s_cselect_b32 s23, 3, 4",
          "v_bfe_u32 v150, v0, 2, 2", "v_lshlrev_b32 v150, s23, v150", "v_and_b32 v151, 3, v0", "v_lshl_add_u32 v150, v151, 1, v150", "v_add_u32 v150, s22, v150",
          f"s_mul_i32 s22, s20, {36*1152}", "s_cmp_eq_u32 s19, 8", f"s_cbranch_scc1 L_wok1_{rep}")
        cy = [(j & 3) + 8 * (j >> 2) for j in range(8)]
        a(f"s_mul_i32 s23, s19, {72*1152}", "s_add_u32 s22, s22, s23", "v_lshrrev_b32 v151, 5, v0", "v_bfe_u32 v152, v0, 4, 1",
          f"v_mul_u32_u24 v153, {4*1152}, v151", "v_add_u32 v153, v150, v153",
          f"v_mul_u32_u24 v154, {3*1152}, v151", f"v_sub_u32 v154, {16*1152}, v154", "v_mul_u32_u24 v154, v152, v154", "v_add_u32 v168, v153, v154")
        for j in range(1, 8):
            dj = 18 + cy[j-1] - cy[j]
            a(f"v_mul_u32_u24 v154, {dj*1152}, v152", f"v_add_u32 v154, {cy[j]*1152}, v154", f"v_add_u32 v{168+j}, v153, v154")
        a(f"s_branch L_wold_{rep}", f"L_wok1_{rep}:", "v_lshrrev_b32 v151, 4, v0", f"v_mul_u32_u24 v151, {144*1152}, v151", "v_add_u32 v153, v150, v151")
        for j in range(8):
            hq, hh, e = j >> 2, (j >> 1) & 1, j & 1
            row = 72 * hq + 18 + ((16 + hh) if e else (11 + 4 * hh))
            a(f"v_add_u32 v{168+j}, {row*1152}, v153")
        a(f"L_wold_{rep}:")
        for j in range(8):
            a(f"buffer_load_ushort v{160+j}, v{168+j}, s[{R_WO}:{R_WO+3}], s22 offen")

    def wo_job_finish(self, rep, later):
        a = self.a
        a(f"s_lshl_b32 s22, s{S_OEX}, 10", f"s_add_u32 s22, s22, {WS_WOT}", f"s_waitcnt vmcnt({later})")
        for j in range(4):
            a(f"v_lshl_or_b32 v{156+j}, v{161+2*j}, 16, v{160+2*j}")
        a(f"buffer_store_dwordx4 v[156:159], v1, s[{R_WS}:{R_WS+3}], s22 offen sc1", "s_nop 1")

    def poison(self):
        a = self.a
        a([f"v_mov_b32 v{176+j}, -1" for j in range(4)])
        a(f"s_mul_i32 s24, s{S_PG}, {OEX_G}", f"s_mul_i32 s25, s{S_HQ}, {OEX_S}", "s_add_u32 s24, s24, s25", f"s_add_u32 s24, s24, {WS_OEX}",
          f"s_lshl_b32 s25, s{S_HG}, 13", f"s_lshl_b32 s26, s{S_PBI}, 12", "s_add_u32 s25, s25, s26", "s_add_u32 s25, s25, s24",
          f"s_lshl_b32 s26, s{S_HG}, 6", "s_add_u32 s26, s26, s24", "s_add_u32 s26, s26, 32768",
          "v_lshrrev_b32 v180, 2, v0", "v_lshlrev_b32 v180, 8, v180", "v_and_b32 v181, 3, v0", "v_lshl_add_u32 v180, v181, 4, v180")
        for k in range(4):
            a(f"buffer_store_dwordx4 v[176:179], v1, s[{R_WS}:{R_WS+3}], s25 offen offset:{k*1024} sc1")
        a(f"buffer_store_dwordx4 v[176:179], v180, s[{R_WS}:{R_WS+3}], s26 offen sc1")

    def attention(self):
        a, o = self.a, self.o
        UNP = o['unp']
        a.label("L_attn")
        a(f"v_mul_f32 v7, v6, v{QR+1}", f"v_mov_b32 v6, {hex(f2u(-1.0 if o['force_fb'] else TSAFE))}",
          "v_cmp_nle_f32 vcc, v7, v6", "v_sub_f32 v7, 0, v7", f"v_cvt_pk_bf16_f32 v{QR+1}, v7, 0", "s_cbranch_vccnz L_fallback", "L_fbdone:")
        q = self.qk(S[0], 0)
        a("s_nop 0", q[0], "s_nop 15", "s_nop 1", q[1], q[2], f"s_mov_b32 s{S_CNT}, {32//UNP}", "s_nop 9")
        self.stamp(6)
        body = []
        for kb in range(2 * UNP):
            cur, nxt = S[kb % 2], S[(kb + 1) % 2]
            q = self.qk(nxt, kb + 1)
            e = EX(cur, 32)
            sm3p = SM(O[1], VV[(kb - 1) % 2][1], nxt + 24)
            sm = [SM(O[0], VV[kb % 2][0], cur), SM(O[0], VV[kb % 2][1], cur + 8), SM(O[1], VV[kb % 2][0], cur + 16)]
            cl = self.ldKm(kb + 2) + (self.ldKr((kb + 3) // 2) if kb % 2 == 1 else []) + self.ldV(kb + 1)
            body += e[0:2] + [sm3p] + e[2:5] + [q[0]] + e[5:13] + ["s_waitcnt lgkmcnt(0)", sm[0]] + e[13:18] + [sm[1]] + e[18:21] + [q[1]] + e[21:24] + [q[2]] + cl + e[24:27] + [sm[2]] + e[27:32]
        body += [f"v_add_u32 v{V_AK}, {UNP*PB}, v{V_AK}", f"v_add_u32 v{V_AR}, {UNP*PB}, v{V_AR}", f"v_add_u32 v{V_AV}, {UNP*PB}, v{V_AV}"]
        self.loop_body = body
        a(".p2align 6", "L_main:", body, f"s_sub_u32 s{S_CNT}, s{S_CNT}, 1", f"s_cmp_lg_u32 s{S_CNT}, s{S_BAR}", "s_cbranch_scc1 L_nob7", "s_barrier", "L_nob7:",
          f"s_cmp_lg_u32 s{S_CNT}, 0", "s_cbranch_scc1 L_main")
        a("s_nop 0", SM(O[1], VV[1][1], S[1] + 24), "s_waitcnt lgkmcnt(0)")
        self.stamp(7)
        a(f"s_mul_i32 s{S_OEX}, s{S_PG}, {OEX_G}", f"s_add_u32 s{S_OEX}, s{S_OEX}, {WS_OEX}", f"s_mul_i32 s{S_T0}, s{S_STG}, {OEX_S}", f"s_add_u32 s{S_T0}, s{S_T0}, s{S_OEX}",
          f"s_lshl_b32 s{S_T1}, s{S_PBI}, 11", f"s_add_u32 s{S_T0}, s{S_T0}, s{S_T1}",
          f"s_lshl_b32 s{S_T1}, s{S_HG}, 13", f"s_lshl_b32 s{S_T2}, s{S_HQ}, 12", f"s_add_u32 s{S_T1}, s{S_T1}, s{S_T2}", f"s_add_u32 s{S_T1}, s{S_T1}, s{S_T0}",
          f"s_lshl_b32 s{S_T2}, s{S_HG}, 6", f"s_lshl_b32 s{S_T3}, s{S_HQ}, 9", f"s_add_u32 s{S_T2}, s{S_T2}, s{S_T3}", f"s_add_u32 s{S_T2}, s{S_T2}, s{S_T0}",
          f"s_add_u32 s{S_T2}, s{S_T2}, 32768",
          "v_bfe_u32 v10, v0, 4, 1", "v_lshlrev_b32 v10, 10, v10", "v_lshrrev_b32 v11, 5, v0", "v_and_b32 v12, 15, v0",
          "v_lshl_add_u32 v8, v11, 9, v10", "v_lshl_add_u32 v8, v12, 4, v8", "v_lshl_add_u32 v9, v11, 8, v10", "v_lshl_add_u32 v9, v12, 2, v9")
        a(f"v_rcp_f32 v10, v{O[0]+9}", f"v_rcp_f32 v11, v{O[1]+9}")
        vals = [O[0] + j for j in range(9)] + [O[1] + j for j in range(9)]
        for j, r in enumerate(vals):
            a(f"v_mul_f32 v{r}, v{r}, v{10 if j < 9 else 11}")
        for j in range(9):
            a(f"v_cvt_pk_bf16_f32 v{12+j}, v{vals[2*j]}, v{vals[2*j+1]}")
            if j == 3:
                a(f"buffer_store_dwordx4 v[12:15], v8, s[{R_WS}:{R_WS+3}], s{S_T1} offen sc0 sc1")
            if j == 7:
                a(f"buffer_store_dwordx4 v[16:19], v8, s[{R_WS}:{R_WS+3}], s{S_T1} offen offset:256 sc0 sc1")
        a(f"buffer_store_dword v20, v9, s[{R_WS}:{R_WS+3}], s{S_T2} offen sc0 sc1")
        a(f"s_cmp_eq_u32 s{S_STG}, 0", "s_cbranch_scc1 L_oproj", "s_barrier")
        self.dump_stamps()
        a("s_endpgm")

    def fallback(self):
        a, o = self.a, self.o
        a.label("L_fallback")
        a(f"s_cmp_eq_u32 s{S_BAR}, -1", "s_cbranch_scc1 L_fb1", "s_barrier", f"s_mov_b32 s{S_BAR}, -1", "L_fb1:")
        a(f"v_mov_b32 v{QR+1}, 0", f"v_mov_b32 v144, v{V_AK}", f"v_mov_b32 v145, v{V_AR}", "v_mov_b32 v146, 0xff800000", "v_mov_b32 v147, 0xff800000",
          "v_mov_b32 v151, 0x3f803f80", f"s_mov_b32 s{S_CNT}, 32", "L_fbl:",
          "ds_read_b32 v150, v145", "ds_read_b128 v[152:155], v144", "ds_read_b128 v[156:159], v144 offset:1024",
          f"v_add_u32 v144, {PB}, v144", f"v_add_u32 v145, {PB}, v145", "s_waitcnt lgkmcnt(0)")
        for h in range(2):
            a(B2(160, 150, QR, h), "s_nop 15", "s_nop 1", K16(160, 152 + 4 * h, QM[0]), K16(176, 152 + 4 * h, QM[1]), "s_nop 11")
            for j in range(8):
                a(f"v_max3_f32 v146, v146, v{160+2*j}, v{161+2*j}", f"v_max3_f32 v147, v147, v{176+2*j}, v{177+2*j}")
        a(f"s_sub_u32 s{S_CNT}, s{S_CNT}, 1", f"s_cmp_lg_u32 s{S_CNT}, 0", "s_cbranch_scc1 L_fbl",
          "s_nop 0", "v_permlane32_swap_b32 v146, v147", "s_nop 1", "v_max_f32 v146, v146, v147", "v_sub_f32 v146, 0, v146",
          "v_cvt_pk_bf16_f32 v147, v146, 0", "v_lshlrev_b32 v148, 16, v147", "v_sub_f32 v148, v146, v148", f"v_cvt_pk_bf16_f32 v{QR+1}, v146, v148",
          "s_branch L_fbdone")

    def oproj(self):
        a, o = self.a, self.o
        a.label("L_oproj")
        if o['prio']:
            a("s_setprio 0")
        WF, ACC, OB = 148, 112, [8, 56]
        for tp in range(4):
            a(f"s_xor_b32 s{S_T0}, s{S_WAVE}, {tp}", f"s_lshl_b32 s{S_T0}, s{S_T0}, 10", f"v_add_u32 v{104+tp}, s{S_T0}, v1",
              f"v_lshlrev_b32 v{108+tp}, 2, v0", f"v_add_u32 v{108+tp}, s{S_T0}, v{108+tp}")
        a(f"s_mov_b32 s{S_CNT}, {SPIN}", f"s_lshl_b32 s{S_T0}, s{S_B}, 7", "v_mov_b32 v6, 0",
          "L_poll2:", f"buffer_load_dword v7, v6, s[{R_DBG}:{R_DBG+3}], s{S_T0} offen offset:4 sc0 sc1", f"s_sub_u32 s{S_CNT}, s{S_CNT}, 1",
          "s_cbranch_scc1 L_poll2d", "s_waitcnt vmcnt(0)", "v_cmp_ne_u32 vcc, 0x80, v7", "s_cbranch_vccnz L_poll2", "L_poll2d:")
        for r in range(ACC, ACC + 36):
            a(f"v_mov_b32 v{r}, 0")
        a.label("L_stage")
        a(f"s_lshl_b32 s{S_T0}, s{S_HG}, 1", f"s_add_u32 s{S_T0}, s{S_T0}, s{S_STG}", f"s_mul_i32 s{S_T0}, s{S_T0}, {81*1024}", f"s_add_u32 s{S_T0}, s{S_T0}, {WS_WOT}",
          f"s_lshl_b32 s{S_T1}, s{S_WAVE}, 11", f"s_add_u32 s{S_T1}, s{S_T1}, s{S_T0}", f"s_add_u32 s{S_T0}, s{S_T0}, 8192")
        for ks in range(9):
            a(f"buffer_load_dwordx4 {vr(WF+12*ks,4)}, v1, s[{R_WS}:{R_WS+3}], s{S_T1} offen sc1",
              f"buffer_load_dwordx4 {vr(WF+12*ks+4,4)}, v1, s[{R_WS}:{R_WS+3}], s{S_T1} offen offset:1024 sc1",
              f"buffer_load_dwordx4 {vr(WF+12*ks+8,4)}, v1, s[{R_WS}:{R_WS+3}], s{S_T0} offen sc1")
            if ks < 8:
                a(f"s_add_u32 s{S_T1}, s{S_T1}, 9216", f"s_add_u32 s{S_T0}, s{S_T0}, 9216")
        a(f"s_mul_i32 s{S_T3}, s{S_STG}, {OEX_S}", f"s_add_u32 s{S_T3}, s{S_T3}, s{S_OEX}",
          f"s_cmp_eq_u32 s{S_STG}, 0", "s_cbranch_scc1 L_nob8", "s_waitcnt vmcnt(0)", "s_barrier", "L_nob8:")
        if o['prio']:
            pass
        a(f"s_mov_b32 s{S_CNT}, {SPIN}")

        def loads(bt):
            buf = OB[bt % 2]
            x = []
            for k in range(3):
                ks = 3 * bt + k
                x.append(f"s_add_u32 s{S_T0}, s{S_T3}, {ks*4096}")
                for tp in range(4):
                    r = buf + 16 * k + 4 * tp
                    if ks < 8:
                        x.append(f"buffer_load_dwordx4 {vr(r,4)}, v{104+tp}, s[{R_WS}:{R_WS+3}], s{S_T0} offen sc0 sc1")
                    else:
                        x += [f"buffer_load_dword v{r+j}, v{108+tp}, s[{R_WS}:{R_WS+3}], s{S_T0} offen offset:{j*256} sc0 sc1" for j in range(4)]
            return x
        nld = [12, 12, 24]
        a(loads(0), loads(1))
        for bt in range(3):
            buf = OB[bt % 2]
            later = {0: 12, 1: 24, 2: 0}[bt]
            a(f"s_waitcnt vmcnt({later})", f"L_chk{bt}:", f"v_max3_u32 v6, v{buf}, v{buf+1}, v{buf+2}", f"v_max3_u32 v7, v{buf+3}, v{buf+4}, v{buf+5}")
            for j in range(6, 48, 4):
                if j + 3 < 48:
                    a(f"v_max3_u32 v6, v6, v{buf+j}, v{buf+j+1}", f"v_max3_u32 v7, v7, v{buf+j+2}, v{buf+j+3}")
                else:
                    a(f"v_max3_u32 v6, v6, v{buf+j}, v{buf+j+1}")
            a("v_max_u32 v6, v6, v7", "v_cmp_eq_u32 vcc, -1, v6", f"s_cbranch_vccz L_ok{bt}",
              f"s_sub_u32 s{S_CNT}, s{S_CNT}, 1", f"s_cbranch_scc1 L_ok{bt}", "s_waitcnt vmcnt(0)", loads(bt), "s_waitcnt vmcnt(0)", f"s_branch L_chk{bt}", f"L_ok{bt}:")
            for k in range(3):
                ks = 3 * bt + k
                w = WF + 12 * ks
                for tp in range(4):
                    ob = buf + 16 * k + 4 * tp
                    a(M16(ACC + 4 * tp, w, ob), M16(ACC + 16 + 4 * tp, w + 4, ob))
                    if tp == 0:
                        a(M16(ACC + 32, w + 8, ob))
            if bt == 0:
                a(loads(2))
        a(f"s_add_u32 s{S_STG}, s{S_STG}, 1", f"s_cmp_eq_u32 s{S_STG}, 1", "s_cbranch_scc1 L_stage")
        a(f"s_mul_i32 s{S_T0}, s{S_PG}, {64*2304}", f"s_mul_i32 s{S_T1}, s{S_B}, 1152", f"s_add_u32 s{S_T0}, s{S_T0}, s{S_T1}", f"s_mul_i32 s{S_T1}, s{S_HG}, 288",
          f"s_add_u32 s{S_T0}, s{S_T0}, s{S_T1}", f"s_lshl_b32 s{S_T1}, s{S_WAVE}, 6", f"s_add_u32 s{S_T1}, s{S_T1}, s{S_T0}",
          "v_and_b32 v8, 15, v0", "v_mul_u32_u24 v8, 0x900, v8", "v_lshrrev_b32 v9, 4, v0", "v_lshl_add_u32 v10, v9, 3, v8", "v_lshl_add_u32 v8, v9, 4, v8")
        for tp in range(4):
            r = 12 + 4 * tp
            a(f"s_xor_b32 s{S_T2}, s{S_WAVE}, {tp}", f"s_mul_i32 s{S_T2}, s{S_T2}, {16*2304}", f"s_add_u32 s{S_T3}, s{S_T2}, s{S_T1}",
              f"v_cvt_pk_bf16_f32 v{r}, v{ACC+4*tp}, v{ACC+4*tp+1}", f"v_cvt_pk_bf16_f32 v{r+1}, v{ACC+4*tp+2}, v{ACC+4*tp+3}",
              f"v_cvt_pk_bf16_f32 v{r+2}, v{ACC+16+4*tp}, v{ACC+16+4*tp+1}", f"v_cvt_pk_bf16_f32 v{r+3}, v{ACC+16+4*tp+2}, v{ACC+16+4*tp+3}",
              f"buffer_store_dwordx4 {vr(r,4)}, v8, s[{R_OUT}:{R_OUT+3}], s{S_T3} offen")
            if tp == 0:
                a(f"s_add_u32 s{S_T2}, s{S_T2}, s{S_T0}", f"v_cvt_pk_bf16_f32 v28, v{ACC+32}, v{ACC+33}", f"v_cvt_pk_bf16_f32 v29, v{ACC+34}, v{ACC+35}",
                  f"buffer_store_dwordx2 v[28:29], v10, s[{R_OUT}:{R_OUT+3}], s{S_T2} offen offset:256")
        if o['stamps']:
            a("s_waitcnt vmcnt(0)")
            self.stamp(5)
        self.dump_stamps()
        a("L_end:", "s_endpgm")

    def build(self):
        self.start()
        self.early_front()
        self.late_front()
        self.attention()
        self.oproj()
        self.fallback()
        hdr = ("; fused MQA attention x2 (QKV proj + softmax attention + out proj), one launch, 1 workgroup per CU\n"
               f"; @launch grid=(256,1,1) block=(512,1,1) lds={LDS_BYTES}\n"
               '.amdgcn_target "amdgcn-amd-amdhsa--gfx950"\n.text\n'
               f".globl {NAME}\n.p2align 8\n.type {NAME},@function\n{NAME}:\n")
        body = "".join((x + "\n") if x.endswith(":") else ("    " + x + "\n") for x in self.a.L)
        t = table()
        tab = ".p2align 6\n.type L_table,@object\nL_table:\n" + "".join("    .long " + ", ".join(str(int(v)) for v in row) + "\n" for row in t)
        tab += f".fill (1024 - ((. - {NAME}) & 1023)) & 1023, 1, 0\nL_codeend:\n.size L_table, L_codeend-L_table\n"
        kd = f""".section .rodata,"a"
.p2align 6
.amdhsa_kernel {NAME}
  .amdhsa_next_free_vgpr 256
  .amdhsa_next_free_sgpr 102
  .amdhsa_accum_offset 256
  .amdhsa_group_segment_fixed_size 0
  .amdhsa_kernarg_size 104
  .amdhsa_user_sgpr_count 2
  .amdhsa_user_sgpr_kernarg_segment_ptr 1
  .amdhsa_system_sgpr_workgroup_id_x 1
.end_amdhsa_kernel
"""
        return hdr + body + tab + kd


if __name__ == "__main__":
    out = sys.argv[1]
    opt = {}
    for kv in sys.argv[2:]:
        k, v = kv.split("=")
        opt[k] = int(v)
    g = Gen(opt)
    open(out, "w").write(g.build())
```

```python
import sys, math, struct
import numpy as np

NAME = "concat_heads__grouped_kv_mqa__grouped_kv_mqa__prompt_kernel"

VG = 608
PB = 2048 + 256 + 4 * VG
KVB = 32 * PB
L_KV = 12288
L_HAND = 0
L_KMAX = 10240
L_FLAG = 10256
L_W = 67072
L_WR = L_W + 18432
L_X = 90112
SLOT = 4608
L_LAST = 62464
LDS_BYTES = 163840
WS_KV = 0
WS_KN = KVB
WS_WOT = 0x28000
WS_OEX = 0xD0000
WS_BR = 0x400000
WS_STAMP = 0x1000000
OEX_G = 73728
OEX_S = 36864
CSCALE = math.log2(math.e) / math.sqrt(18.0)
TSAFE = 40.0
SPIN = 200000


def f2u(x):
    return struct.unpack("<I", struct.pack("<f", x))[0]


def slot_addr(ks):
    if ks < 14:
        return ks * SLOT
    if ks < 35:
        return L_W + (ks - 14) * SLOT
    return L_LAST


G0 = [0, 1, 2, 3, 12, 13, 14, 15, 20]
G1 = [4, 5, 6, 7, 8, 9, 10, 11, 16]
POS_ONES, POS_ZERO = 22, 23


def vpos(h, row):
    if row in G0:
        return [list(range(0, 9)), [18, 19, 20, 21, 24, 25, 26, 27, 28]][h][G0.index(row)]
    if row in G1:
        return [list(range(9, 18)), list(range(29, 38))][h][G1.index(row)]
    if row in (17, 21):
        return POS_ONES
    return POS_ZERO


def table():
    t = np.zeros((64, 4), dtype=np.uint32)
    for l in range(64):
        t[l, 0] = L_KV + 2304 + vpos(l >> 5, l & 31) * 16
        n, g = l & 15, l >> 4
        t[l, 1] = vpos(g >> 1, n) * 16 + (g & 1) * 8
        p = {0: vpos(g >> 1, 16), 1: vpos(g >> 1, 20), 2: POS_ONES, 3: POS_ZERO}.get(n, POS_ZERO)
        t[l, 2] = p * 16 + (g & 1) * 8
    return t


def vr(a, n=1):
    return f"v[{a}:{a+n-1}]" if n > 1 else f"v{a}"


def sr(a, n=1):
    return f"s[{a}:{a+n-1}]" if n > 1 else f"s{a}"


S_WAVE = 3
R_X, R_WQ, R_W, R_WO, R_WS, R_OUT, R_DBG = 44, 48, 52, 56, 60, 64, 68
S_B, S_HG, S_GI, S_PG, S_I = 4, 5, 6, 7, 8
S_T0, S_T1, S_T2, S_T3, S_T4, S_T5 = 9, 10, 11, 12, 13, 14
S_CNT = 15
S_M0A, S_M0R, S_ROW = 72, 73, 74
S_BAR = 75
S_PBI, S_HQ = 76, 77
S_EX = 78
S_KVS = 80
S_OEX = 81
S_STG = 82
S_ST = 84

V_IDX, V_AK, V_AR, V_AV = 2, 3, 4, 5
QM = [8, 12]
QR = 16
KR = [18, 20]
O = [24, 40]
KM = [56, 60]
VV = [[64, 68], [72, 76]]
S = [80, 112]


class A:
    def __init__(self):
        self.L = []

    def __call__(self, *xs):
        for x in xs:
            if isinstance(x, (list, tuple)):
                self(*x)
            else:
                self.L.append(x)

    def label(self, n):
        self.L.append(n + ":")


def K16(d, a, b, c=None):
    return f"v_mfma_f32_32x32x16_bf16 {vr(d,16)}, {vr(a,4)}, {vr(b,4)}, {c if c else vr(d,16)}"


def M16(d, a, b, c=None):
    return f"v_mfma_f32_16x16x32_bf16 {vr(d,4)}, {vr(a,4)}, {vr(b,4)}, {c if c else vr(d,4)}"


def B2(d, a, b, abid):
    return f"v_mfma_f32_32x32x4_2b_bf16 {vr(d,32)}, {vr(a,2)}, {vr(b,2)}, 0 cbsz:1 abid:{abid}"


def SM(d, a, b):
    return f"v_smfmac_f32_32x32x32_bf16 {vr(d,16)}, {vr(a,4)}, {vr(b,8)}, v{V_IDX}"


def EX(r, n):
    return [f"v_exp_f32 v{r+i}, v{r+i}" for i in range(n)]


def srd(a, dst, lo, hi, size):
    a(f"s_mov_b32 s{dst}, {lo}", f"s_mov_b32 s{dst+1}, {hi}", f"s_mov_b32 s{dst+2}, {size}", f"s_mov_b32 s{dst+3}, 0x20000")


class Gen:
    def __init__(self, opt):
        self.o = dict(unp=4, barit=1, stamps=False, force_fb=False, prefetch=True, prio=True, dbgspan=0)
        self.o.update(opt)
        self.a = A()
        self.nst = 0

    def stamp(self, i):
        if self.o['stamps'] or self.o['dbgspan']:
            self.a(f"{'s_memtime' if self.o['stamps']==2 else 's_memrealtime'} s[{S_ST+2*i}:{S_ST+2*i+1}]")

    def dump_stamps(self):
        if self.o['dbgspan']:
            a = self.a
            n = self.nst = self.nst + 1
            a("s_waitcnt lgkmcnt(0)", f"s_cmp_lg_u32 s{S_I}, 0", f"s_cbranch_scc1 L_nodump{n}", "s_mov_b64 exec, 1", "v_mov_b32 v8, 0", f"s_not_b32 s{S_T0}, s{S_ST}", f"v_mov_b32 v9, s{S_T0}",
              f"buffer_atomic_umax v9, v8, s[{R_DBG}:{R_DBG+3}], 0 offen offset:8 sc1")
            for k, i in enumerate((0, 1, 3, 6, 7, 5) if n == 2 else (1, 2, 4, 5, 6, 7)):
                a(f"v_mov_b32 v{10+k}, s{S_ST+2*i}", f"buffer_atomic_umax v{10+k}, v8, s[{R_DBG}:{R_DBG+3}], 0 offen offset:{(12 if n == 2 else 36)+4*k} sc1")
            a(f"L_nodump{n}:")
            return
        if not self.o['stamps']:
            return
        a = self.a
        a("s_waitcnt lgkmcnt(0)", f"s_lshl_b32 s{S_T0}, s2, 3", f"s_add_u32 s{S_T0}, s{S_T0}, s{S_WAVE}", f"s_lshl_b32 s{S_T0}, s{S_T0}, 6",
          f"s_mul_i32 s{S_T1}, s{S_B}, {WS_BR}", f"s_sub_u32 s{S_T0}, s{S_T0}, s{S_T1}", f"s_add_u32 s{S_T0}, s{S_T0}, {WS_STAMP}",
          f"s_mov_b32 s{R_WS+2}, 0x2000000", "v_mov_b32 v8, 0")
        for i in range(4):
            for k in range(4):
                a(f"v_mov_b32 v{12+k}, s{S_ST+4*i+k}")
            a(f"buffer_store_dwordx4 v[12:15], v8, s[{R_WS}:{R_WS+3}], s{S_T0} offen offset:{16*i}", "s_nop 1")

    def wq_dma(self, d, parts=(0, 1, 2)):
        a = self.a
        s0, s1 = slot_addr(2 * d), slot_addr(2 * d + 1)
        assert d == 17 or s1 == s0 + SLOT
        if 0 in parts:
            a(f"s_add_u32 m0, s{S_M0A}, {s0}", "s_nop 0",
              f"buffer_load_dwordx4 v10, s[{R_WQ}:{R_WQ+3}], s{S_ROW} offen lds")
        if 1 in parts:
            a(f"s_add_u32 m0, s{S_M0A}, {s1}", "s_nop 0",
              f"buffer_load_dwordx4 v11, s[{R_WQ}:{R_WQ+3}], s{S_ROW} offen lds")
        if 2 in parts:
            if d == 17:
                a(f"s_cmp_ge_u32 s{S_I}, 2", f"s_mov_b32 s{S_T0}, {s0}", f"s_cselect_b32 s{S_T0}, {s1 - SLOT}, s{S_T0}", f"s_add_u32 m0, s{S_M0R}, s{S_T0}")
            else:
                a(f"s_add_u32 m0, s{S_M0R}, {s0}")
            a("s_nop 0", f"buffer_load_dword v12, s[{R_WQ}:{R_WQ+3}], s{S_ROW} offen lds")
            a(f"s_add_u32 s{S_ROW}, s{S_ROW}, {32*1152}", f"s_cmp_ge_u32 s{S_ROW}, {576*1152}",
              f"s_cselect_b32 s{S_T0}, {576*1152}, 0", f"s_sub_u32 s{S_ROW}, s{S_ROW}, s{S_T0}")

    def kv_dma(self, p0, n):
        a = self.a
        for k in range(n):
            a(f"s_add_u32 m0, s{S_M0A}, {L_KV + (p0 + 4*k)*1024}", f"s_add_u32 s{S_T0}, s{S_KVS}, 4096",
              f"buffer_load_dwordx4 v1, s[{R_WS}:{R_WS+3}], s{S_KVS} offen sc1 lds",
              f"s_cmp_ge_u32 s{S_T0}, {KVB}", f"s_cselect_b32 s{S_T1}, {KVB}, 0", f"s_sub_u32 s{S_KVS}, s{S_T0}, s{S_T1}")

    def row_max16(self, v):
        a = self.a
        for k in (8, 4, 2, 1):
            a("s_nop 1", f"v_max_f32_dpp v{v}, v{v}, v{v} row_ror:{k} row_mask:0xf bank_mask:0xf")

    def start(self):
        a, o = self.a, self.o
        a("s_cmp_ge_u32 s2, 256", "s_cbranch_scc1 L_end")
        a("s_load_dwordx16 s[16:31], s[0:1], 0", "s_load_dwordx8 s[32:39], s[0:1], 64", "s_load_dwordx2 s[40:41], s[0:1], 96")
        self.stamp(0)
        a("s_getpc_b64 s[42:43]", "L_pc:")
        a("v_lshrrev_b32 v1, 6, v0", "v_and_b32 v0, 63, v0", f"v_readfirstlane_b32 s{S_WAVE}, v1", "v_lshlrev_b32 v1, 4, v0")
        a(f"s_add_u32 s{S_T0}, s42, L_table-L_pc", f"s_addc_u32 s{S_T1}, s43, 0",
          f"v_mov_b32 v7, s{S_T1}", f"v_add_co_u32 v6, vcc, s{S_T0}, v1", f"s_and_b32 s{S_B}, s2, 1", f"s_lshr_b32 s{S_T2}, s2, 3",
          "v_addc_co_u32 v7, vcc, 0, v7, vcc", f"s_and_b32 s{S_HG}, s{S_T2}, 3", f"s_lshr_b32 s{S_GI}, s2, 5",
          "global_load_dwordx4 v[20:23], v[6:7], off")
        if o['prefetch']:
            a(f"s_cmp_lg_u32 s{S_WAVE}, 7", "s_cbranch_scc1 L_nopf", f"s_cmp_ge_u32 s{S_T2}, (L_codeend-{NAME})/1024", "s_cbranch_scc1 L_nopf",
              f"s_lshl_b32 s{S_T2}, s{S_T2}, 10", f"s_sub_u32 s{S_T0}, s42, L_pc-{NAME}", f"s_subb_u32 s{S_T1}, s43, 0",
              f"s_add_u32 s{S_T0}, s{S_T0}, s{S_T2}", f"s_addc_u32 s{S_T1}, s{S_T1}, 0",
              f"v_mov_b32 v7, s{S_T1}", f"v_add_co_u32 v6, vcc, s{S_T0}, v1", "s_nop 1", "v_addc_co_u32 v7, vcc, 0, v7, vcc", "s_nop 0",
              "global_load_dwordx4 v[24:27], v[6:7], off", "L_nopf:")
        a(f"s_bfe_u32 s{S_PG}, s2, 0x20001", f"s_lshl_b32 s{S_PG}, s{S_PG}, 3", f"s_add_u32 s{S_PG}, s{S_PG}, s{S_GI}",
          f"s_and_b32 s{S_I}, s{S_WAVE}, 3", f"s_and_b32 s{S_PBI}, s{S_WAVE}, 1", f"s_lshr_b32 s{S_HQ}, s{S_I}, 1")
        a("v_lshrrev_b32 v8, 3, v0", "v_lshrrev_b32 v9, 4, v0", f"s_lshl_b32 s{S_T0}, s{S_PBI}, 2", f"v_or_b32 v9, s{S_T0}, v9",
          "v_and_b32 v10, 7, v0", "v_xor_b32 v9, v9, v10", "v_lshlrev_b32 v9, 4, v9", "v_mov_b32 v10, 0x480", "v_mad_u32_u24 v8, v8, v10, v9")
        a(f"s_lshl_b32 s{S_T0}, s{S_PG}, 3", f"s_add_u32 s{S_T0}, s{S_T0}, s{S_WAVE}", f"s_mul_i32 s{S_T0}, s{S_T0}, {8*1152}",
          f"s_lshl_b32 s{S_T1}, s{S_GI}, 7", f"s_mul_i32 s{S_T2}, s{S_WAVE}, 9216", f"s_add_u32 s{S_T2}, s{S_T2}, {L_X}")
        a("s_waitcnt lgkmcnt(0)", f"s_cmp_eq_u32 s{S_B}, 0", f"s_cselect_b64 s[{R_X}:{R_X+1}], s[16:17], s[26:27]",
          f"s_mov_b32 s{R_X+2}, 2359296", f"s_mov_b32 s{R_X+3}, 0x20000")
        for i in range(9):
            a(f"s_add_u32 m0, s{S_T2}, {i*1024}", f"s_add_u32 s{S_T3}, s{S_T0}, s{S_T1}",
              f"buffer_load_dwordx4 v8, s[{R_X}:{R_X+3}], s{S_T3} offen lds")
            if i < 8:
                a(f"s_add_u32 s{S_T1}, s{S_T1}, 128", f"s_cmp_eq_u32 s{S_T1}, 1152", f"s_cselect_b32 s{S_T1}, 0, s{S_T1}")
        a(f"s_cmp_eq_u32 s{S_B}, 0",
          f"s_cselect_b64 s[{R_WQ}:{R_WQ+1}], s[18:19], s[28:29]", f"s_cselect_b64 s[20:21], s[20:21], s[30:31]",
          f"s_cselect_b64 s[22:23], s[22:23], s[32:33]", f"s_cselect_b64 s[{R_WO}:{R_WO+1}], s[24:25], s[34:35]",
          f"s_bitcmp0_b32 s{S_HG}, 0", f"s_cselect_b64 s[{R_W}:{R_W+1}], s[20:21], s[22:23]",
          f"s_mov_b32 s{R_WQ+2}, 663552", f"s_mov_b32 s{R_WQ+3}, 0x20000", f"s_mov_b32 s{R_W+2}, 20736", f"s_mov_b32 s{R_W+3}, 0x20000",
          f"s_mov_b32 s{R_WO+2}, 663552", f"s_mov_b32 s{R_WO+3}, 0x20000",
          f"s_mul_i32 s{S_T0}, s{S_B}, {WS_BR}", f"s_add_u32 s{R_WS}, s40, s{S_T0}", f"s_addc_u32 s{R_WS+1}, s41, 0",
          f"s_mov_b32 s{R_WS+2}, {WS_OEX + 32*OEX_G}", f"s_mov_b32 s{R_WS+3}, 0x20000")
        srd(a, R_OUT, "s36", "s37", 4718592)
        srd(a, R_DBG, "s38", "s39", 256)
        a(f"s_cmp_ge_u32 s{S_WAVE}, 4", "s_cbranch_scc1 L_late")

    def early_front(self):
        a, o = self.a, self.o
        a("v_lshrrev_b32 v9, 1, v0", "v_mul_u32_u24 v9, 36, v9", f"s_mul_i32 s{S_T0}, s{S_GI}, {64*36}", f"s_mul_i32 s{S_T1}, s{S_PBI}, {32*36}",
          f"v_add_u32 v9, s{S_T1}, v9", f"s_cmp_ge_u32 s{S_WAVE}, 2", "s_cbranch_scc1 L_wrem")
        a("v_and_b32 v10, 1, v0", "v_lshl_add_u32 v9, v10, 4, v9", f"s_lshl_b32 s{S_T2}, s{S_PBI}, 10")
        for n in range(9):
            a(f"s_add_u32 m0, s{S_T2}, {L_W + n*2048}", f"s_add_u32 s{S_T1}, s{S_T0}, {64*36}",
              f"buffer_load_dwordx4 v9, s[{R_W}:{R_W+3}], s{S_T0} offen lds", f"s_cmp_eq_u32 s{S_T1}, 20736", f"s_cselect_b32 s{S_T0}, 0, s{S_T1}")
        a("s_branch L_wdone", "L_wrem:", "v_add_u32 v9, 32, v9", f"s_lshl_b32 s{S_T2}, s{S_PBI}, 8")
        for n in range(9):
            a(f"s_add_u32 m0, s{S_T2}, {L_WR + n*512}", f"s_add_u32 s{S_T1}, s{S_T0}, {64*36}",
              f"buffer_load_dword v9, s[{R_W}:{R_W+3}], s{S_T0} offen lds", f"s_cmp_eq_u32 s{S_T1}, 20736", f"s_cselect_b32 s{S_T0}, 0, s{S_T1}")
        a("L_wdone:")
        a("v_and_b32 v12, 31, v0", "v_lshrrev_b32 v13, 5, v0", "v_bfe_u32 v14, v0, 1, 3", "v_xor_b32 v13, v13, v14", "v_lshlrev_b32 v13, 4, v13",
          "v_and_b32 v14, 7, v0", "v_lshl_add_u32 v13, v14, 7, v13", "v_lshrrev_b32 v12, 3, v12", "v_mul_u32_u24 v12, 0x2400, v12",
          f"s_mul_i32 s{S_T0}, s{S_PBI}, {4*9216}", f"s_add_u32 s{S_T0}, s{S_T0}, {L_X}", f"v_add3_u32 v8, v12, v13, s{S_T0}",
          "v_xor_b32 v9, 32, v8", "v_xor_b32 v10, 64, v8", "v_xor_b32 v11, 0x60, v8")
        a("v_bfe_u32 v12, v0, 2, 2",
          "v_and_b32 v13, 3, v0",
          "v_bfe_u32 v14, v0, 4, 1",
          "v_lshrrev_b32 v15, 5, v0",
          "v_lshl_add_u32 v15, v15, 3, v12",
          f"s_lshl_b32 s{S_T0}, s{S_HQ}, 3",
          "v_lshrrev_b32 v16, 1, v13", "v_lshl_add_u32 v16, v14, 1, v16", f"v_or_b32 v16, s{S_T0}, v16",
          "v_lshlrev_b32 v17, 2, v12", "v_xor_b32 v16, v16, v17", "v_lshlrev_b32 v16, 4, v16",
          "v_and_b32 v13, 1, v13", "v_lshl_add_u32 v16, v13, 3, v16", "v_lshl_add_u32 v6, v15, 8, v16", "v_xor_b32 v7, 64, v6",
          f"s_lshl_b32 s{S_T0}, s{S_HQ}, 4", f"s_add_u32 s{S_T0}, s{S_T0}, 4096", "v_lshlrev_b32 v13, 3, v13", "v_lshl_add_u32 v13, v15, 5, v13",
          f"v_add_u32 v18, s{S_T0}, v13")
        a("s_waitcnt vmcnt(0)", f"v_mov_b32 v{V_AV}, v20", "v_mov_b32 v22, v18")
        self.stamp(1)
        a("s_barrier")
        XF = 112
        for i in range(36):
            a(f"ds_read_b128 {vr(XF+4*i,4)}, v{8+(i&3)} offset:{(i>>2)*1024}")
        a("s_waitcnt lgkmcnt(0)", "s_barrier")
        a("v_mov_b32 v100, 1", "v_mov_b32 v101, 0", f"s_lshl_b32 s{S_T0}, s{S_B}, 7", f"s_cmp_lg_u32 s{S_WAVE}, 3")
        a("s_barrier")
        a("s_cbranch_scc1 L_nosig", "s_mov_b64 exec, 1",
          f"buffer_atomic_add v100, v101, s[{R_DBG}:{R_DBG+3}], s{S_T0} offen sc1", "s_mov_b64 exec, -1", "L_nosig:")
        self.stamp(2)
        T0, T1, TR = 24, 40, 56
        FB = [72, 84]

        def rd(ks, base):
            off = slot_addr(ks) - base
            f = FB[ks & 1]
            return [f"ds_read_b64_tr_b16 {vr(f,2)}, v6 offset:{off}", f"ds_read_b64_tr_b16 {vr(f+2,2)}, v6 offset:{off+1024}",
                    f"ds_read_b64_tr_b16 {vr(f+4,2)}, v7 offset:{off}", f"ds_read_b64_tr_b16 {vr(f+6,2)}, v7 offset:{off+1024}",
                    f"ds_read_b64_tr_b16 {vr(f+8,2)}, v22 offset:{off}", f"ds_read_b64_tr_b16 {vr(f+10,2)}, v22 offset:{off+128}"]

        def mm(ks):
            f = FB[ks & 1]
            c = "0" if ks == 0 else None
            return [K16(T0, f, XF + 4 * ks, c), K16(T1, f + 4, XF + 4 * ks, c), K16(TR, f + 8, XF + 4 * ks, c)]
        base = 0
        for (k0, k1) in ((0, 14), (14, 24), (24, 36)):
            nb = min(slot_addr(k) for k in range(k0, k1))
            if k0 == 24:
                nb = slot_addr(24)
            if nb != base:
                a([f"v_add_u32 v{r}, {nb-base}, v{r}" for r in (6, 7, 22)])
                base = nb
            a(rd(k0, base))
            for ks in range(k0, k1):
                m = mm(ks)
                if ks + 1 < k1:
                    if ks + 1 == 35:
                        a([f"v_subrev_u32 v{r}, {base-L_LAST}, v{r}" for r in (6, 7, 22)])
                        base = L_LAST
                    n = rd(ks + 1, base)
                    a(n[0:2], "s_waitcnt lgkmcnt(6)", m[0], n[2:4], "s_waitcnt lgkmcnt(6)", m[1], n[4:6], "s_waitcnt lgkmcnt(6)", m[2])
                else:
                    a("s_waitcnt lgkmcnt(4)", m[0], "s_waitcnt lgkmcnt(2)", m[1], "s_waitcnt lgkmcnt(0)", m[2])
            if k1 < 36:
                a("s_barrier")
        self.stamp(3)
        H = 72
        a(f"s_mul_i32 s{S_T0}, s{S_WAVE}, 2560", f"v_add_u32 v96, s{S_T0}, v1", "v_lshlrev_b32 v97, 3, v0", f"v_add_u32 v97, s{S_T0}, v97")
        a(f"v_mov_b32 v{V_IDX}, 0xdddddddd", f"v_add_u32 v{V_AK}, {L_KV}, v1", f"v_lshlrev_b32 v{V_AR}, 2, v0", f"v_add_u32 v{V_AR}, {L_KV+2048}, v{V_AR}")
        a("s_nop 1")
        for j in range(8):
            a(f"v_cvt_pk_bf16_f32 v{H+j}, v{T1+2*j}, v{T1+2*j+1}")
        a(f"v_cvt_pk_bf16_f32 v{H+8}, v{TR+2}, v{TR+3}")
        a(f"ds_write_b128 v96, {vr(H,4)}", f"ds_write_b128 v96, {vr(H+4,4)} offset:1024")
        a(f"v_cvt_pk_bf16_f32 v{QR}, v{TR}, v{TR+1}")
        for j in range(8):
            a(f"v_cvt_pk_bf16_f32 v{QM[0]+j}, v{T0+2*j}, v{T0+2*j+1}")
        self.norm(H, H + 8, H + 9, 85)
        a(f"ds_write_b64 v97, {vr(H+8,2)} offset:2048")
        self.norm(QM[0], QR, QR + 1, 85)
        self.init_main_regs()
        a("s_waitcnt lgkmcnt(0)")
        self.stamp(4)
        a("s_barrier")
        a(f"v_mov_b32 v6, {L_KMAX}", "ds_read_b32 v6, v6")
        self.main_prologue_loads()
        if o['prio']:
            a("s_setprio 2")
        a(f"s_mov_b32 s{S_BAR}, {32//o['unp'] - o['barit']}", f"s_mov_b32 s{S_STG}, 0")
        a("s_waitcnt lgkmcnt(0)", "s_branch L_attn")

    def norm(self, qm, qr, dst, tmp):
        a = self.a
        a(f"v_dot2_f32_bf16 v{dst}, v{qm}, v{qm}, 0", f"v_dot2_f32_bf16 v{tmp}, v{qm+4}, v{qm+4}, 0")
        for j in range(1, 4):
            a(f"v_dot2_f32_bf16 v{dst}, v{qm+j}, v{qm+j}, v{dst}", f"v_dot2_f32_bf16 v{tmp}, v{qm+4+j}, v{qm+4+j}, v{tmp}")
        a("s_nop 2", f"v_permlane32_swap_b32 v{dst}, v{tmp}", "s_nop 1", f"v_add_f32 v{dst}, v{dst}, v{tmp}", "s_nop 2",
          f"v_dot2_f32_bf16 v{dst}, v{qr}, v{qr}, v{dst}", "s_nop 2", f"v_sqrt_f32 v{dst}, v{dst}", "s_nop 0")

    def init_main_regs(self):
        a = self.a
        a(f"v_mov_b32 v{KR[0]+1}, 0x3f803f80", f"v_mov_b32 v{KR[1]+1}, 0x3f803f80")
        for r in range(O[0], O[0] + 32):
            a(f"v_mov_b32 v{r}, 0")
        for r in range(S[1] + 24, S[1] + 32):
            a(f"v_mov_b32 v{r}, 0")
        for r in range(VV[1][1], VV[1][1] + 4):
            a(f"v_mov_b32 v{r}, 0")

    def ldKm(self, kb):
        return [f"ds_read_b128 {vr(KM[kb%2],4)}, v{V_AK} offset:{(kb//2)*PB+(kb%2)*1024}"]

    def ldKr(self, p):
        return [f"ds_read_b32 v{KR[p%2]}, v{V_AR} offset:{p*PB}"]

    def ldV(self, kb):
        return [f"ds_read_b128 {vr(VV[kb%2][i],4)}, v{V_AV} offset:{(kb//2)*PB+((kb%2)*2+i)*VG}" for i in range(2)]

    def qk(self, dst, kb):
        return [B2(dst, KR[(kb//2) % 2], QR, kb % 2), K16(dst, KM[kb % 2], QM[0]), K16(dst + 16, KM[kb % 2], QM[1])]

    def main_prologue_loads(self):
        self.a(self.ldKr(0), self.ldKm(0), self.ldKm(1), self.ldKr(1), self.ldV(0))

    def late_front(self):
        a, o = self.a, self.o
        a.label("L_late")
        a("v_lshrrev_b32 v13, 4, v0", "v_and_b32 v14, 15, v0", "v_lshlrev_b32 v15, 2, v13", "v_xor_b32 v14, v14, v15",
          "v_lshrrev_b32 v15, 1, v14", "v_mul_u32_u24 v15, 36, v15", "v_and_b32 v14, 1, v14", "v_lshl_add_u32 v15, v14, 4, v15",
          "v_mul_u32_u24 v13, 0x480, v13", f"s_mul_i32 s{S_T0}, s{S_I}, {4*1152}", f"s_mul_i32 s{S_T1}, s{S_HG}, 288",
          f"s_add_u32 s{S_T0}, s{S_T0}, s{S_T1}", f"v_add3_u32 v10, v13, v15, s{S_T0}", f"v_add_u32 v11, {16*1152}, v10",
          f"s_mul_i32 s{S_ROW}, s{S_GI}, {64*1152}", f"s_lshl_b32 s{S_M0A}, s{S_I}, 10")
        self.wq_dma(0, (0, 1))
        a("v_and_b32 v13, 4, v0", "v_bfe_u32 v14, v0, 1, 1", "v_or_b32 v13, v13, v14", "v_and_b32 v14, 1, v0", "v_lshl_add_u32 v13, v14, 1, v13",
          "v_mul_u32_u24 v13, 36, v13", "v_lshrrev_b32 v14, 3, v0", "v_mul_u32_u24 v14, 0x480, v14",
          f"s_mul_i32 s{S_T0}, s{S_I}, {8*1152}", f"s_add_u32 s{S_T0}, s{S_T0}, s{S_T1}", f"s_add_u32 s{S_T0}, s{S_T0}, 32",
          f"v_add3_u32 v12, v13, v14, s{S_T0}",
          f"s_mul_i32 s{S_M0R}, s{S_HQ}, {SLOT}", f"s_lshl_b32 s{S_T0}, s{S_PBI}, 8", f"s_add_u32 s{S_M0R}, s{S_M0R}, s{S_T0}",
          f"s_add_u32 s{S_M0R}, s{S_M0R}, 4096")
        self.wq_dma(0, (2,))
        for d in range(1, 7):
            self.wq_dma(d)
        a("v_and_b32 v13, 15, v0", "v_lshrrev_b32 v16, 4, v0",
          "v_bfe_u32 v17, v0, 1, 3", "v_xor_b32 v17, v16, v17", "v_lshlrev_b32 v17, 4, v17",
          "v_and_b32 v18, 7, v0", "v_lshl_add_u32 v17, v18, 7, v17", "v_bfe_u32 v18, v0, 3, 1", "v_mul_u32_u24 v18, 0x2400, v18",
          f"s_lshr_b32 s{S_T0}, s{S_HG}, 1", f"s_lshl_b32 s{S_T0}, s{S_T0}, 1", f"s_add_u32 s{S_T0}, s{S_T0}, s{S_PBI}",
          f"s_mul_i32 s{S_T1}, s{S_T0}, {2*9216}", f"s_add_u32 s{S_T1}, s{S_T1}, {L_X}", f"v_add3_u32 v14, v17, v18, s{S_T1}", "v_xor_b32 v15, 64, v14",
          "v_bfe_u32 v17, v0, 2, 2", "v_lshl_add_u32 v17, v16, 3, v17",
          f"s_cmp_eq_u32 s{S_HQ}, 0", f"s_cselect_b32 s{S_T2}, 5, 3", f"s_mov_b32 s{S_T3}, {L_WR}", f"s_cselect_b32 s{S_T3}, {L_W}, s{S_T3}", f"s_movk_i32 s{S_T5}, 256", f"s_cselect_b32 s{S_T5}, 1024, s{S_T5}",
          f"s_cselect_b32 s{S_T4}, 8, 0", f"v_lshlrev_b32 v17, s{S_T2}, v17", "v_and_b32 v18, 3, v0", f"v_mul_u32_u24 v18, s{S_T4}, v18",
          f"v_add3_u32 v19, v17, v18, s{S_T3}", f"s_lshr_b32 s{S_T4}, s{S_T5}, 3", f"v_add_u32 v17, s{S_T4}, v19", "v_mov_b32 v16, v19")
        a("v_lshrrev_b32 v18, 4, v0", "v_and_b32 v19, 1, v18", "v_lshlrev_b32 v19, 9, v19", "v_lshl_add_u32 v19, v13, 4, v19",
          "v_lshrrev_b32 v18, 1, v18", "v_lshl_add_u32 v28, v18, 3, v19", "v_lshlrev_b32 v29, 2, v13",
          f"s_mul_i32 s{S_KVS}, s{S_PG}, {PB}", f"s_mov_b32 s{S_OEX}, s{S_T0}")
        a("s_waitcnt vmcnt(21)", f"v_mov_b32 v{V_AV}, v20")
        self.stamp(1)
        a("s_barrier")
        a(f"s_bitcmp1_b32 s{S_HG}, 0", "s_cbranch_scc1 L_vproj")
        D = 32
        for isv in (0, 1):
            if isv:
                a.label("L_vproj")
            NB = 4

            def rd(s):
                xb = 40 + 8 * (s % NB)
                return [f"ds_read_b128 {vr(xb,4)}, v{14+(s&1)} offset:{(s>>1)*1024}",
                        f"ds_read_b64_tr_b16 {vr(xb+4,2)}, v16", f"ds_read_b64_tr_b16 {vr(xb+6,2)}, v17",
                        f"v_add_u32 v16, s{S_T5}, v16", f"v_add_u32 v17, s{S_T5}, v17"]
            for s in range(NB - 1):
                a(rd(s))
            for s in range(18):
                if s + NB - 1 < 18:
                    a(rd(s + NB - 1))
                left = min(18 - 1 - s, NB - 1)
                xb = 40 + 8 * (s % NB)
                c = "0" if s == 0 else None
                a(f"s_waitcnt lgkmcnt({3*left})", M16(D, xb, xb + 4, c) if isv else M16(D, xb + 4, xb, c))
            g = S_OEX
            if not isv:
                a(f"s_lshr_b32 s{S_T0}, s{g}, 1", f"s_lshl_b32 s{S_T0}, s{S_T0}, 10", f"s_lshl_b32 s{S_T1}, s{S_PBI}, 8", f"s_add_u32 s{S_T0}, s{S_T0}, s{S_T1}",
                  f"s_add_u32 s{S_T0}, s{S_T0}, s{S_KVS}",
                  f"s_lshl_b32 s{S_T1}, s{g}, 6", f"s_add_u32 s{S_T1}, s{S_T1}, s{S_KVS}", f"s_add_u32 s{S_T1}, s{S_T1}, 2048",
                  f"s_mov_b32 s{S_T2}, {hex(f2u(CSCALE))}")
                for r in range(4):
                    a(f"v_mul_f32 v{D+r}, s{S_T2}, v{D+r}")
                a(f"v_cvt_pk_bf16_f32 v{D}, v{D}, v{D+1}", f"v_cvt_pk_bf16_f32 v{D+1}, v{D+2}, v{D+3}",
                  f"s_lshl_b32 s{S_T3}, s{S_PG}, 2", f"s_add_u32 s{S_T3}, s{S_T3}, s{g}", f"s_lshl_b32 s{S_T3}, s{S_T3}, 2", f"s_add_u32 s{S_T3}, s{S_T3}, {WS_KN}",
                  f"v_dot2_f32_bf16 v36, v{D}, v{D}, 0",
                  f"s_cmp_eq_u32 s{S_HQ}, 0", "s_cbranch_scc0 L_krem",
                  f"buffer_store_dwordx2 {vr(D,2)}, v28, s[{R_WS}:{R_WS+3}], s{S_T0} offen sc1",
                  f"v_dot2_f32_bf16 v36, v{D+1}, v{D+1}, v36", "s_nop 2", "v_mov_b32 v37, v36", "s_nop 1",
                  "v_permlane16_swap_b32 v36, v37", "s_nop 1", "v_add_f32 v36, v36, v37", "s_nop 0", "v_mov_b32 v37, v36", "s_nop 1",
                  "v_permlane32_swap_b32 v36, v37", "s_nop 1", "v_add_f32 v36, v36, v37", "s_branch L_knorm",
                  "L_krem:", "s_mov_b64 exec, 0xffff",
                  f"buffer_store_dword v{D}, v29, s[{R_WS}:{R_WS+3}], s{S_T1} offen sc1", "s_mov_b64 exec, -1", f"s_add_u32 s{S_T3}, s{S_T3}, 512",
                  "L_knorm:", "s_nop 1")
                self.row_max16(36)
                a("v_mov_b32 v37, 0", "s_mov_b64 exec, 1", f"buffer_store_dword v36, v37, s[{R_WS}:{R_WS+3}], s{S_T3} offen sc1", "s_mov_b64 exec, -1",
                  "s_branch L_kvdone")
            else:
                a(f"s_mul_i32 s{S_T0}, s{g}, {VG}", f"s_add_u32 s{S_T0}, s{S_T0}, s{S_KVS}", f"s_add_u32 s{S_T0}, s{S_T0}, 2304",
                  "v_cmp_eq_u32 vcc, 2, v13", f"v_cmp_eq_u32 s[{S_EX}:{S_EX+1}], 3, v13", "v_mov_b32 v30, 0x3f803f80", "s_nop 0",
                  f"s_cmp_eq_u32 s{S_HQ}, 0",
                  f"v_cvt_pk_bf16_f32 v{D}, v{D}, v{D+1}", f"v_cvt_pk_bf16_f32 v{D+1}, v{D+2}, v{D+3}", "s_cbranch_scc0 L_vrem",
                  f"buffer_store_dwordx2 {vr(D,2)}, v21, s[{R_WS}:{R_WS+3}], s{S_T0} offen sc1", "s_branch L_kvdone",
                  "L_vrem:",
                  f"v_cndmask_b32 v{D}, v{D}, v30, vcc", f"v_cndmask_b32 v{D+1}, v{D+1}, v30, vcc",
                  f"v_cndmask_b32 v{D}, v{D}, 0, s[{S_EX}:{S_EX+1}]", f"v_cndmask_b32 v{D+1}, v{D+1}, 0, s[{S_EX}:{S_EX+1}]",
                  "s_mov_b32 exec_lo, 0x000f000f", "s_mov_b32 exec_hi, 0x000f000f",
                  f"buffer_store_dwordx2 {vr(D,2)}, v22, s[{R_WS}:{R_WS+3}], s{S_T0} offen sc1", "s_mov_b64 exec, -1")
        a.label("L_kvdone")
        self.stamp(2)
        a("s_barrier")
        for d in range(7, 12):
            self.wq_dma(d)
        a("s_waitcnt vmcnt(15)", "s_barrier")
        for d in range(12, 17):
            self.wq_dma(d)
        self.wq_dma(17, (0,))
        a("s_waitcnt vmcnt(16)", "s_barrier")
        self.wq_dma(17, (1, 2))
        a(f"v_mov_b32 v30, {L_FLAG}", "v_mov_b32 v31, 0", "ds_write_b32 v30, v31")
        a(f"s_and_b32 s{S_T0}, s{S_GI}, 3", f"s_mul_i32 s{S_KVS}, s{S_T0}, {37*1024}", f"s_add_u32 s{S_KVS}, s{S_KVS}, s{S_M0A}")
        a("s_waitcnt vmcnt(0) lgkmcnt(0)", "s_barrier")
        self.stamp(3)
        a(f"s_mov_b32 s{S_CNT}, {SPIN}", f"s_cmp_lg_u32 s{S_WAVE}, 4", "s_cbranch_scc1 L_relay", f"s_lshl_b32 s{S_T0}, s{S_B}, 7")
        a("L_poll1:", f"buffer_load_dword v32, v31, s[{R_DBG}:{R_DBG+3}], s{S_T0} offen sc0 sc1", f"s_sub_u32 s{S_CNT}, s{S_CNT}, 1",
          "s_cbranch_scc1 L_poll1d", "s_waitcnt vmcnt(0)", "v_cmp_gt_u32 vcc, 0x80, v32", "s_cbranch_vccnz L_poll1",
          "L_poll1d:", "v_mov_b32 v32, 1", "ds_write_b32 v30, v32", "v_lshlrev_b32 v33, 3, v0", f"s_mov_b32 s{S_T0}, {WS_KN}",
          f"buffer_load_dwordx2 v[34:35], v33, s[{R_WS}:{R_WS+3}], s{S_T0} offen sc1",
          f"buffer_load_dwordx2 v[36:37], v33, s[{R_WS}:{R_WS+3}], s{S_T0} offen offset:512 sc1", "s_branch L_flagok")
        a("L_relay:", "ds_read_b32 v32, v30", f"s_sub_u32 s{S_CNT}, s{S_CNT}, 1", "s_cbranch_scc1 L_flagok", "s_waitcnt lgkmcnt(0)",
          "v_cmp_eq_u32 vcc, 0, v32", "s_cbranch_vccnz L_relay", "L_flagok:")
        self.stamp(4)
        self.kv_dma(0, 12)
        a(f"s_cmp_lg_u32 s{S_WAVE}, 4", "s_cbranch_scc1 L_nokn", "s_waitcnt vmcnt(12)", "v_max_f32 v34, v34, v35", "v_max_f32 v36, v36, v37")
        self.row_max16(34)
        self.row_max16(36)
        a("s_nop 0")
        for k in range(4):
            a(f"v_readlane_b32 s{16+k}, v34, {16*k}", f"v_readlane_b32 s{20+k}, v36, {16*k}")
        a("s_nop 1", "s_max_u32 s16, s16, s17", "s_max_u32 s18, s18, s19", "s_max_u32 s20, s20, s21", "s_max_u32 s22, s22, s23",
          "s_max_u32 s16, s16, s18", "s_max_u32 s20, s20, s22", "v_mov_b32 v34, s16", "v_add_f32 v34, s20, v34", "v_sqrt_f32 v34, v34",
          f"v_mov_b32 v35, {L_KMAX}", "ds_write_b32 v35, v34", "L_nokn:")
        a(f"v_mov_b32 v{V_IDX}, 0xdddddddd", f"v_add_u32 v{V_AK}, {L_KV}, v1", f"v_lshlrev_b32 v{V_AR}, 2, v0", f"v_add_u32 v{V_AR}, {L_KV+2048}, v{V_AR}",
          f"s_mul_i32 s{S_T0}, s{S_I}, 2560", f"v_add_u32 v8, s{S_T0}, v1", "v_lshlrev_b32 v9, 3, v0", f"v_add_u32 v9, s{S_T0}, v9", f"v_mov_b32 v6, {L_KMAX}")
        a("s_waitcnt vmcnt(0) lgkmcnt(0)", "s_barrier")
        a("ds_read_b32 v6, v6", f"ds_read_b64 {vr(QR,2)}, v9 offset:2048", f"ds_read_b128 {vr(QM[1],4)}, v8 offset:1024", f"ds_read_b128 {vr(QM[0],4)}, v8")
        self.wo_job_loads(0)
        self.kv_dma(48, 25)
        self.poison()
        self.wo_job_finish(0, 30)
        a(f"s_cmp_ge_u32 s{S_OEX}, {648-512}", "s_cbranch_scc1 L_nowo2", f"s_add_u32 s{S_OEX}, s{S_OEX}, 512")
        self.wo_job_loads(1)
        self.wo_job_finish(1, 0)
        a("L_nowo2:")
        self.init_main_regs()
        a("s_waitcnt vmcnt(0) lgkmcnt(0)")
        self.stamp(5)
        a("s_barrier")
        a(f"s_cmp_lg_u32 s{S_WAVE}, 4", "s_cbranch_scc1 L_nosig2", "v_mov_b32 v146, 1", "v_mov_b32 v147, 0", f"s_lshl_b32 s{S_T0}, s{S_B}, 7", "s_mov_b64 exec, 1",
          f"buffer_atomic_add v146, v147, s[{R_DBG}:{R_DBG+3}], s{S_T0} offen offset:4 sc1", "s_mov_b64 exec, -1", "L_nosig2:")
        self.main_prologue_loads()
        if o['prio']:
            a("s_setprio 1")
        a(f"s_mov_b32 s{S_BAR}, -1", f"s_mov_b32 s{S_STG}, 1", "s_waitcnt lgkmcnt(0)")

    def wo_job_loads(self, rep):
        a = self.a
        if rep == 0:
            a(f"s_lshl_b32 s{S_OEX}, s{S_PG}, 2", f"s_add_u32 s{S_OEX}, s{S_OEX}, s{S_HG}", f"s_lshl_b32 s{S_OEX}, s{S_OEX}, 2", f"s_add_u32 s{S_OEX}, s{S_OEX}, s{S_I}")
        f = S_OEX
        a(f"s_mul_i32 s16, s{f}, 7282", "s_lshr_b32 s16, s16, 16", "s_mul_i32 s17, s16, 9", f"s_sub_u32 s17, s{f}, s17",
          "s_mul_i32 s18, s16, 7282", "s_lshr_b32 s18, s18, 16", "s_mul_i32 s19, s18, 9", "s_sub_u32 s19, s16, s19",
          "s_and_b32 s20, s18, 1", "s_lshr_b32 s21, s18, 1")
        a("s_mul_i32 s22, s21, 288", "s_lshr_b32 s23, s17, 1", "s_lshl_b32 s23, s23, 6", "s_add_u32 s22, s22, s23", "s_and_b32 s23, s17, 1", "s_lshl_b32 s23, s23, 3",
          "s_add_u32 s22, s22, s23", "s_cmp_eq_u32 s17, 8", "s_cselect_b32 s23, 3, 4",
          "v_bfe_u32 v150, v0, 2, 2", "v_lshlrev_b32 v150, s23, v150", "v_and_b32 v151, 3, v0", "v_lshl_add_u32 v150, v151, 1, v150", "v_add_u32 v150, s22, v150",
          f"s_mul_i32 s22, s20, {36*1152}", "s_cmp_eq_u32 s19, 8", f"s_cbranch_scc1 L_wok1_{rep}")
        cy = [(j & 3) + 8 * (j >> 2) for j in range(8)]
        a(f"s_mul_i32 s23, s19, {72*1152}", "s_add_u32 s22, s22, s23", "v_lshrrev_b32 v151, 5, v0", "v_bfe_u32 v152, v0, 4, 1",
          f"v_mul_u32_u24 v153, {4*1152}, v151", "v_add_u32 v153, v150, v153",
          f"v_mul_u32_u24 v154, {3*1152}, v151", f"v_sub_u32 v154, {16*1152}, v154", "v_mul_u32_u24 v154, v152, v154", "v_add_u32 v168, v153, v154")
        for j in range(1, 8):
            dj = 18 + cy[j-1] - cy[j]
            a(f"v_mul_u32_u24 v154, {dj*1152}, v152", f"v_add_u32 v154, {cy[j]*1152}, v154", f"v_add_u32 v{168+j}, v153, v154")
        a(f"s_branch L_wold_{rep}", f"L_wok1_{rep}:", "v_lshrrev_b32 v151, 4, v0", f"v_mul_u32_u24 v151, {144*1152}, v151", "v_add_u32 v153, v150, v151")
        for j in range(8):
            hq, hh, e = j >> 2, (j >> 1) & 1, j & 1
            row = 72 * hq + 18 + ((16 + hh) if e else (11 + 4 * hh))
            a(f"v_add_u32 v{168+j}, {row*1152}, v153")
        a(f"L_wold_{rep}:")
        for j in range(8):
            a(f"buffer_load_ushort v{160+j}, v{168+j}, s[{R_WO}:{R_WO+3}], s22 offen")

    def wo_job_finish(self, rep, later):
        a = self.a
        a(f"s_lshl_b32 s22, s{S_OEX}, 10", f"s_add_u32 s22, s22, {WS_WOT}", f"s_waitcnt vmcnt({later})")
        for j in range(4):
            a(f"v_lshl_or_b32 v{156+j}, v{161+2*j}, 16, v{160+2*j}")
        a(f"buffer_store_dwordx4 v[156:159], v1, s[{R_WS}:{R_WS+3}], s22 offen sc1", "s_nop 1")

    def poison(self):
        a = self.a
        a([f"v_mov_b32 v{176+j}, -1" for j in range(4)])
        a(f"s_mul_i32 s24, s{S_PG}, {OEX_G}", f"s_mul_i32 s25, s{S_HQ}, {OEX_S}", "s_add_u32 s24, s24, s25", f"s_add_u32 s24, s24, {WS_OEX}",
          f"s_lshl_b32 s25, s{S_HG}, 13", f"s_lshl_b32 s26, s{S_PBI}, 12", "s_add_u32 s25, s25, s26", "s_add_u32 s25, s25, s24",
          f"s_lshl_b32 s26, s{S_HG}, 6", "s_add_u32 s26, s26, s24", "s_add_u32 s26, s26, 32768",
          "v_lshrrev_b32 v180, 2, v0", "v_lshlrev_b32 v180, 8, v180", "v_and_b32 v181, 3, v0", "v_lshl_add_u32 v180, v181, 4, v180")
        for k in range(4):
            a(f"buffer_store_dwordx4 v[176:179], v1, s[{R_WS}:{R_WS+3}], s25 offen offset:{k*1024} sc1")
        a(f"buffer_store_dwordx4 v[176:179], v180, s[{R_WS}:{R_WS+3}], s26 offen sc1")

    def attention(self):
        a, o = self.a, self.o
        UNP = o['unp']
        a.label("L_attn")
        a(f"v_mul_f32 v7, v6, v{QR+1}", f"v_mov_b32 v6, {hex(f2u(-1.0 if o['force_fb'] else TSAFE))}",
          "v_cmp_nle_f32 vcc, v7, v6", "v_sub_f32 v7, 0, v7", f"v_cvt_pk_bf16_f32 v{QR+1}, v7, 0", "s_cbranch_vccnz L_fallback", "L_fbdone:")
        q = self.qk(S[0], 0)
        a("s_nop 0", q[0], "s_nop 15", "s_nop 1", q[1], q[2], f"s_mov_b32 s{S_CNT}, {32//UNP}", "s_nop 9")
        self.stamp(6)
        body = []
        for kb in range(2 * UNP):
            cur, nxt = S[kb % 2], S[(kb + 1) % 2]
            q = self.qk(nxt, kb + 1)
            e = EX(cur, 32)
            sm3p = SM(O[1], VV[(kb - 1) % 2][1], nxt + 24)
            sm = [SM(O[0], VV[kb % 2][0], cur), SM(O[0], VV[kb % 2][1], cur + 8), SM(O[1], VV[kb % 2][0], cur + 16)]
            cl = self.ldKm(kb + 2) + (self.ldKr((kb + 3) // 2) if kb % 2 == 1 else []) + self.ldV(kb + 1)
            body += e[0:2] + [sm3p] + e[2:5] + [q[0]] + e[5:13] + ["s_waitcnt lgkmcnt(0)", sm[0]] + e[13:18] + [sm[1]] + e[18:21] + [q[1]] + e[21:24] + [q[2]] + cl + e[24:27] + [sm[2]] + e[27:32]
        body += [f"v_add_u32 v{V_AK}, {UNP*PB}, v{V_AK}", f"v_add_u32 v{V_AR}, {UNP*PB}, v{V_AR}", f"v_add_u32 v{V_AV}, {UNP*PB}, v{V_AV}"]
        self.loop_body = body
        a(".p2align 6", "L_main:", body, f"s_sub_u32 s{S_CNT}, s{S_CNT}, 1", f"s_cmp_lg_u32 s{S_CNT}, s{S_BAR}", "s_cbranch_scc1 L_nob7", "s_barrier", "L_nob7:",
          f"s_cmp_lg_u32 s{S_CNT}, 0", "s_cbranch_scc1 L_main")
        a("s_nop 0", SM(O[1], VV[1][1], S[1] + 24), "s_waitcnt lgkmcnt(0)")
        self.stamp(7)
        a(f"s_mul_i32 s{S_OEX}, s{S_PG}, {OEX_G}", f"s_add_u32 s{S_OEX}, s{S_OEX}, {WS_OEX}", f"s_mul_i32 s{S_T0}, s{S_STG}, {OEX_S}", f"s_add_u32 s{S_T0}, s{S_T0}, s{S_OEX}",
          f"s_lshl_b32 s{S_T1}, s{S_PBI}, 11", f"s_add_u32 s{S_T0}, s{S_T0}, s{S_T1}",
          f"s_lshl_b32 s{S_T1}, s{S_HG}, 13", f"s_lshl_b32 s{S_T2}, s{S_HQ}, 12", f"s_add_u32 s{S_T1}, s{S_T1}, s{S_T2}", f"s_add_u32 s{S_T1}, s{S_T1}, s{S_T0}",
          f"s_lshl_b32 s{S_T2}, s{S_HG}, 6", f"s_lshl_b32 s{S_T3}, s{S_HQ}, 9", f"s_add_u32 s{S_T2}, s{S_T2}, s{S_T3}", f"s_add_u32 s{S_T2}, s{S_T2}, s{S_T0}",
          f"s_add_u32 s{S_T2}, s{S_T2}, 32768",
          "v_bfe_u32 v10, v0, 4, 1", "v_lshlrev_b32 v10, 10, v10", "v_lshrrev_b32 v11, 5, v0", "v_and_b32 v12, 15, v0",
          "v_lshl_add_u32 v8, v11, 9, v10", "v_lshl_add_u32 v8, v12, 4, v8", "v_lshl_add_u32 v9, v11, 8, v10", "v_lshl_add_u32 v9, v12, 2, v9")
        a(f"v_rcp_f32 v10, v{O[0]+9}", f"v_rcp_f32 v11, v{O[1]+9}")
        vals = [O[0] + j for j in range(9)] + [O[1] + j for j in range(9)]
        for j, r in enumerate(vals):
            a(f"v_mul_f32 v{r}, v{r}, v{10 if j < 9 else 11}")
        for j in range(9):
            a(f"v_cvt_pk_bf16_f32 v{12+j}, v{vals[2*j]}, v{vals[2*j+1]}")
            if j == 3:
                a(f"buffer_store_dwordx4 v[12:15], v8, s[{R_WS}:{R_WS+3}], s{S_T1} offen sc0 sc1")
            if j == 7:
                a(f"buffer_store_dwordx4 v[16:19], v8, s[{R_WS}:{R_WS+3}], s{S_T1} offen offset:256 sc0 sc1")
        a(f"buffer_store_dword v20, v9, s[{R_WS}:{R_WS+3}], s{S_T2} offen sc0 sc1")
        a(f"s_cmp_eq_u32 s{S_STG}, 0", "s_cbranch_scc1 L_oproj", "s_barrier")
        self.dump_stamps()
        a("s_endpgm")

    def fallback(self):
        a, o = self.a, self.o
        a.label("L_fallback")
        a(f"s_cmp_eq_u32 s{S_BAR}, -1", "s_cbranch_scc1 L_fb1", "s_barrier", f"s_mov_b32 s{S_BAR}, -1", "L_fb1:")
        a(f"v_mov_b32 v{QR+1}, 0", f"v_mov_b32 v144, v{V_AK}", f"v_mov_b32 v145, v{V_AR}", "v_mov_b32 v146, 0xff800000", "v_mov_b32 v147, 0xff800000",
          "v_mov_b32 v151, 0x3f803f80", f"s_mov_b32 s{S_CNT}, 32", "L_fbl:",
          "ds_read_b32 v150, v145", "ds_read_b128 v[152:155], v144", "ds_read_b128 v[156:159], v144 offset:1024",
          f"v_add_u32 v144, {PB}, v144", f"v_add_u32 v145, {PB}, v145", "s_waitcnt lgkmcnt(0)")
        for h in range(2):
            a(B2(160, 150, QR, h), "s_nop 15", "s_nop 1", K16(160, 152 + 4 * h, QM[0]), K16(176, 152 + 4 * h, QM[1]), "s_nop 11")
            for j in range(8):
                a(f"v_max3_f32 v146, v146, v{160+2*j}, v{161+2*j}", f"v_max3_f32 v147, v147, v{176+2*j}, v{177+2*j}")
        a(f"s_sub_u32 s{S_CNT}, s{S_CNT}, 1", f"s_cmp_lg_u32 s{S_CNT}, 0", "s_cbranch_scc1 L_fbl",
          "s_nop 0", "v_permlane32_swap_b32 v146, v147", "s_nop 1", "v_max_f32 v146, v146, v147", "v_sub_f32 v146, 0, v146",
          "v_cvt_pk_bf16_f32 v147, v146, 0", "v_lshlrev_b32 v148, 16, v147", "v_sub_f32 v148, v146, v148", f"v_cvt_pk_bf16_f32 v{QR+1}, v146, v148",
          "s_branch L_fbdone")

    def oproj(self):
        a, o = self.a, self.o
        a.label("L_oproj")
        if o['prio']:
            a("s_setprio 0")
        WF, ACC, OB = 148, 112, [8, 56]
        for tp in range(4):
            a(f"s_xor_b32 s{S_T0}, s{S_WAVE}, {tp}", f"s_lshl_b32 s{S_T0}, s{S_T0}, 10", f"v_add_u32 v{104+tp}, s{S_T0}, v1",
              f"v_lshlrev_b32 v{108+tp}, 2, v0", f"v_add_u32 v{108+tp}, s{S_T0}, v{108+tp}")
        a(f"s_mov_b32 s{S_CNT}, {SPIN}", f"s_lshl_b32 s{S_T0}, s{S_B}, 7", "v_mov_b32 v6, 0",
          "L_poll2:", f"buffer_load_dword v7, v6, s[{R_DBG}:{R_DBG+3}], s{S_T0} offen offset:4 sc0 sc1", f"s_sub_u32 s{S_CNT}, s{S_CNT}, 1",
          "s_cbranch_scc1 L_poll2d", "s_waitcnt vmcnt(0)", "v_cmp_gt_u32 vcc, 0x80, v7", "s_cbranch_vccnz L_poll2", "L_poll2d:")
        for r in range(ACC, ACC + 36):
            a(f"v_mov_b32 v{r}, 0")
        a.label("L_stage")
        a(f"s_lshl_b32 s{S_T0}, s{S_HG}, 1", f"s_add_u32 s{S_T0}, s{S_T0}, s{S_STG}", f"s_mul_i32 s{S_T0}, s{S_T0}, {81*1024}", f"s_add_u32 s{S_T0}, s{S_T0}, {WS_WOT}",
          f"s_lshl_b32 s{S_T1}, s{S_WAVE}, 11", f"s_add_u32 s{S_T1}, s{S_T1}, s{S_T0}", f"s_add_u32 s{S_T0}, s{S_T0}, 8192")
        for ks in range(9):
            a(f"buffer_load_dwordx4 {vr(WF+12*ks,4)}, v1, s[{R_WS}:{R_WS+3}], s{S_T1} offen sc1",
              f"buffer_load_dwordx4 {vr(WF+12*ks+4,4)}, v1, s[{R_WS}:{R_WS+3}], s{S_T1} offen offset:1024 sc1",
              f"buffer_load_dwordx4 {vr(WF+12*ks+8,4)}, v1, s[{R_WS}:{R_WS+3}], s{S_T0} offen sc1")
            if ks < 8:
                a(f"s_add_u32 s{S_T1}, s{S_T1}, 9216", f"s_add_u32 s{S_T0}, s{S_T0}, 9216")
        a(f"s_mul_i32 s{S_T3}, s{S_STG}, {OEX_S}", f"s_add_u32 s{S_T3}, s{S_T3}, s{S_OEX}",
          f"s_cmp_eq_u32 s{S_STG}, 0", "s_cbranch_scc1 L_nob8", "s_waitcnt vmcnt(0)", "s_barrier", "L_nob8:")
        if o['prio']:
            pass
        a(f"s_mov_b32 s{S_CNT}, {SPIN}")

        def loads(bt):
            buf = OB[bt % 2]
            x = []
            for k in range(3):
                ks = 3 * bt + k
                x.append(f"s_add_u32 s{S_T0}, s{S_T3}, {ks*4096}")
                for tp in range(4):
                    r = buf + 16 * k + 4 * tp
                    if ks < 8:
                        x.append(f"buffer_load_dwordx4 {vr(r,4)}, v{104+tp}, s[{R_WS}:{R_WS+3}], s{S_T0} offen sc0 sc1")
                    else:
                        x += [f"buffer_load_dword v{r+j}, v{108+tp}, s[{R_WS}:{R_WS+3}], s{S_T0} offen offset:{j*256} sc0 sc1" for j in range(4)]
            return x
        nld = [12, 12, 24]
        a(loads(0), loads(1))
        for bt in range(3):
            buf = OB[bt % 2]
            later = {0: 12, 1: 24, 2: 0}[bt]
            a(f"s_waitcnt vmcnt({later})", f"L_chk{bt}:", f"v_max3_u32 v6, v{buf}, v{buf+1}, v{buf+2}", f"v_max3_u32 v7, v{buf+3}, v{buf+4}, v{buf+5}")
            for j in range(6, 48, 4):
                if j + 3 < 48:
                    a(f"v_max3_u32 v6, v6, v{buf+j}, v{buf+j+1}", f"v_max3_u32 v7, v7, v{buf+j+2}, v{buf+j+3}")
                else:
                    a(f"v_max3_u32 v6, v6, v{buf+j}, v{buf+j+1}")
            a("v_max_u32 v6, v6, v7", "v_cmp_eq_u32 vcc, -1, v6", f"s_cbranch_vccz L_ok{bt}",
              f"s_sub_u32 s{S_CNT}, s{S_CNT}, 1", f"s_cbranch_scc1 L_ok{bt}", "s_waitcnt vmcnt(0)", loads(bt), "s_waitcnt vmcnt(0)", f"s_branch L_chk{bt}", f"L_ok{bt}:")
            for k in range(3):
                ks = 3 * bt + k
                w = WF + 12 * ks
                for tp in range(4):
                    ob = buf + 16 * k + 4 * tp
                    a(M16(ACC + 4 * tp, w, ob), M16(ACC + 16 + 4 * tp, w + 4, ob))
                    if tp == 0:
                        a(M16(ACC + 32, w + 8, ob))
            if bt == 0:
                a(loads(2))
        a(f"s_add_u32 s{S_STG}, s{S_STG}, 1", f"s_cmp_eq_u32 s{S_STG}, 1", "s_cbranch_scc1 L_stage")
        a(f"s_mul_i32 s{S_T0}, s{S_PG}, {64*2304}", f"s_mul_i32 s{S_T1}, s{S_B}, 1152", f"s_add_u32 s{S_T0}, s{S_T0}, s{S_T1}", f"s_mul_i32 s{S_T1}, s{S_HG}, 288",
          f"s_add_u32 s{S_T0}, s{S_T0}, s{S_T1}", f"s_lshl_b32 s{S_T1}, s{S_WAVE}, 6", f"s_add_u32 s{S_T1}, s{S_T1}, s{S_T0}",
          "v_and_b32 v8, 15, v0", "v_mul_u32_u24 v8, 0x900, v8", "v_lshrrev_b32 v9, 4, v0", "v_lshl_add_u32 v10, v9, 3, v8", "v_lshl_add_u32 v8, v9, 4, v8")
        for tp in range(4):
            r = 12 + 4 * tp
            a(f"s_xor_b32 s{S_T2}, s{S_WAVE}, {tp}", f"s_mul_i32 s{S_T2}, s{S_T2}, {16*2304}", f"s_add_u32 s{S_T3}, s{S_T2}, s{S_T1}",
              f"v_cvt_pk_bf16_f32 v{r}, v{ACC+4*tp}, v{ACC+4*tp+1}", f"v_cvt_pk_bf16_f32 v{r+1}, v{ACC+4*tp+2}, v{ACC+4*tp+3}",
              f"v_cvt_pk_bf16_f32 v{r+2}, v{ACC+16+4*tp}, v{ACC+16+4*tp+1}", f"v_cvt_pk_bf16_f32 v{r+3}, v{ACC+16+4*tp+2}, v{ACC+16+4*tp+3}",
              f"buffer_store_dwordx4 {vr(r,4)}, v8, s[{R_OUT}:{R_OUT+3}], s{S_T3} offen")
            if tp == 0:
                a(f"s_add_u32 s{S_T2}, s{S_T2}, s{S_T0}", f"v_cvt_pk_bf16_f32 v28, v{ACC+32}, v{ACC+33}", f"v_cvt_pk_bf16_f32 v29, v{ACC+34}, v{ACC+35}",
                  f"buffer_store_dwordx2 v[28:29], v10, s[{R_OUT}:{R_OUT+3}], s{S_T2} offen offset:256")
        if o['stamps'] or o['dbgspan']:
            a("s_waitcnt vmcnt(0)")
            self.stamp(5)
        self.dump_stamps()
        a("L_end:", "s_endpgm")

    def build(self):
        self.start()
        self.early_front()
        self.late_front()
        self.attention()
        self.oproj()
        self.fallback()
        hdr = ("; fused MQA attention x2 (QKV proj + softmax attention + out proj), one launch, 1 workgroup per CU\n"
               f"; @launch grid=(256,1,1) block=(512,1,1) lds={LDS_BYTES}\n"
               '.amdgcn_target "amdgcn-amd-amdhsa--gfx950"\n.text\n'
               f".globl {NAME}\n.p2align 8\n.type {NAME},@function\n{NAME}:\n")
        body = "".join((x + "\n") if x.endswith(":") else ("    " + x + "\n") for x in self.a.L)
        t = table()
        tab = ".p2align 6\n.type L_table,@object\nL_table:\n" + "".join("    .long " + ", ".join(str(int(v)) for v in row) + "\n" for row in t)
        tab += f".fill (1024 - ((. - {NAME}) & 1023)) & 1023, 1, 0\nL_codeend:\n.size L_table, L_codeend-L_table\n"
        kd = f""".section .rodata,"a"
.p2align 6
.amdhsa_kernel {NAME}
  .amdhsa_next_free_vgpr 256
  .amdhsa_next_free_sgpr 102
  .amdhsa_accum_offset 256
  .amdhsa_group_segment_fixed_size 0
  .amdhsa_kernarg_size 104
  .amdhsa_user_sgpr_count 2
  .amdhsa_user_sgpr_kernarg_segment_ptr 1
  .amdhsa_system_sgpr_workgroup_id_x 1
.end_amdhsa_kernel
"""
        return hdr + body + tab + kd


if __name__ == "__main__":
    out = sys.argv[1]
    opt = {}
    for kv in sys.argv[2:]:
        k, v = kv.split("=")
        opt[k] = int(v)
    g = Gen(opt)
    open(out, "w").write(g.build())
```

```python
import sys, math, struct
import numpy as np

NAME = "concat_heads__grouped_kv_mqa__grouped_kv_mqa__prompt_kernel"

VG = 608
PB = 2048 + 256 + 4 * VG
KVB = 32 * PB
L_KV = 12288
L_HAND = 0
L_KMAX = 10240
L_FLAG = 10256
L_W = 62464
L_X = 90112
SLOT = 4608
L_LAST = 9 * 4608
LDS_BYTES = 163840
WS_KV = 0
WS_KN = KVB
WS_WOT = 0x28000
WS_OEX = 0xD0000
WS_BR = 0x400000
WS_STAMP = 0x1000000
OEX_G = 73728
OEX_S = 36864
CSCALE = math.log2(math.e) / math.sqrt(18.0)
TSAFE = 40.0
SPIN = 200000


def f2u(x):
    return struct.unpack("<I", struct.pack("<f", x))[0]


def slot_addr(ks):
    if ks < 13:
        return ks * SLOT
    if ks < 35:
        return L_W + (ks - 13) * SLOT
    return L_LAST


G0 = [0, 1, 2, 3, 12, 13, 14, 15, 20]
G1 = [4, 5, 6, 7, 8, 9, 10, 11, 16]
POS_ONES, POS_ZERO = 22, 23


def vpos(h, row):
    if row in G0:
        return [list(range(0, 9)), [18, 19, 20, 21, 24, 25, 26, 27, 28]][h][G0.index(row)]
    if row in G1:
        return [list(range(9, 18)), list(range(29, 38))][h][G1.index(row)]
    if row in (17, 21):
        return POS_ONES
    return POS_ZERO


def table():
    t = np.zeros((64, 4), dtype=np.uint32)
    for l in range(64):
        t[l, 0] = L_KV + 2304 + vpos(l >> 5, l & 31) * 16
        n, g = l & 15, l >> 4
        t[l, 1] = vpos(g >> 1, n) * 16 + (g & 1) * 8
        p = {0: vpos(g >> 1, 16), 1: vpos(g >> 1, 20), 2: POS_ONES, 3: POS_ZERO}.get(n, POS_ZERO)
        t[l, 2] = p * 16 + (g & 1) * 8
    return t


def vr(a, n=1):
    return f"v[{a}:{a+n-1}]" if n > 1 else f"v{a}"


def sr(a, n=1):
    return f"s[{a}:{a+n-1}]" if n > 1 else f"s{a}"


S_WAVE = 3
R_X, R_WQ, R_W, R_WO, R_WS, R_OUT, R_DBG = 44, 48, 52, 56, 60, 64, 68
S_B, S_HG, S_GI, S_PG, S_I = 4, 5, 6, 7, 8
S_T0, S_T1, S_T2, S_T3, S_T4, S_T5 = 9, 10, 11, 12, 13, 14
S_CNT = 15
S_M0A, S_M0R, S_ROW = 72, 73, 74
S_BAR = 75
S_PBI, S_HQ = 76, 77
S_EX = 42
S_KVS = 80
S_OEX = 81
S_STG = 82
S_OEXB = 78
S_XI, S_XB, S_XS, S_XM = 83, 100, 101, 79
S_DI, S_DS, S_LI, S_LS = 72, 73, 74, 75
S_ST = 84

V_IDX, V_AK, V_AR, V_AV = 2, 3, 4, 5
QM = [8, 12]
QR = 16
KR = [18, 20]
O = [24, 40]
KM = [56, 60]
VV = [[64, 68], [72, 76]]
S = [80, 112]


class A:
    def __init__(self):
        self.L = []

    def __call__(self, *xs):
        for x in xs:
            if isinstance(x, (list, tuple)):
                self(*x)
            else:
                self.L.append(x)

    def label(self, n):
        self.L.append(n + ":")


def K16(d, a, b, c=None):
    return f"v_mfma_f32_32x32x16_bf16 {vr(d,16)}, {vr(a,4)}, {vr(b,4)}, {c if c else vr(d,16)}"


def M16(d, a, b, c=None):
    return f"v_mfma_f32_16x16x32_bf16 {vr(d,4)}, {vr(a,4)}, {vr(b,4)}, {c if c else vr(d,4)}"


def B2(d, a, b, abid):
    return f"v_mfma_f32_32x32x4_2b_bf16 {vr(d,32)}, {vr(a,2)}, {vr(b,2)}, 0 cbsz:1 abid:{abid}"


def K8Z(d, z):
    return f"v_mfma_f32_32x32x8_bf16 {vr(d,16)}, {vr(z,2)}, {vr(z,2)}, 0"


def SM(d, a, b):
    return f"v_smfmac_f32_32x32x32_bf16 {vr(d,16)}, {vr(a,4)}, {vr(b,8)}, v{V_IDX}"


def EX(r, n):
    return [f"v_exp_f32 v{r+i}, v{r+i}" for i in range(n)]


def srd(a, dst, lo, hi, size):
    a(f"s_mov_b32 s{dst}, {lo}", f"s_mov_b32 s{dst+1}, {hi}", f"s_mov_b32 s{dst+2}, {size}", f"s_mov_b32 s{dst+3}, 0x20000")


class Gen:
    def __init__(self, opt):
        self.o = dict(unp=4, barit=1, stamps=False, force_fb=False, prefetch=True, prio=True, dbgspan=0, set=0, nb=5, kv1=6, win=3, sb=11)
        self.o.update(opt)
        self.a = A()
        self.nst = 0

    def stamp(self, i, st=0):
        if i not in (0, 7) and st != self.o['set']:
            return
        if self.o['stamps'] or self.o['dbgspan']:
            self.a(f"{'s_memtime' if self.o['stamps']==2 else 's_memrealtime'} s[{S_ST+2*i}:{S_ST+2*i+1}]")

    def dump_stamps(self):
        if self.o['dbgspan']:
            a = self.a
            n = self.nst = self.nst + 1
            a("s_waitcnt lgkmcnt(0)", f"s_cmp_lg_u32 s{S_I}, 0", f"s_cbranch_scc1 L_nodump{n}", "s_mov_b64 exec, 1", "v_mov_b32 v8, 0", f"s_not_b32 s{S_T0}, s{S_ST}", f"v_mov_b32 v9, s{S_T0}",
              f"buffer_atomic_umax v9, v8, s[{R_DBG}:{R_DBG+3}], 0 offen offset:8 sc1")
            for k, i in enumerate((0, 1, 3, 6, 7, 5) if n == 2 else (1, 2, 4, 5, 6, 7)):
                a(f"v_mov_b32 v{10+k}, s{S_ST+2*i}", f"buffer_atomic_umax v{10+k}, v8, s[{R_DBG}:{R_DBG+3}], 0 offen offset:{(12 if n == 2 else 36)+4*k} sc1")
            a(f"L_nodump{n}:")
            return
        if not self.o['stamps']:
            return
        a = self.a
        a("s_waitcnt lgkmcnt(0)", f"s_lshl_b32 s{S_T0}, s2, 3", f"s_add_u32 s{S_T0}, s{S_T0}, s{S_WAVE}", f"s_lshl_b32 s{S_T0}, s{S_T0}, 6",
          f"s_mul_i32 s{S_T1}, s{S_B}, {WS_BR}", f"s_sub_u32 s{S_T0}, s{S_T0}, s{S_T1}", f"s_add_u32 s{S_T0}, s{S_T0}, {WS_STAMP}",
          f"s_mov_b32 s{R_WS+2}, 0x2000000", "v_mov_b32 v8, 0")
        for i in range(4):
            for k in range(4):
                a(f"v_mov_b32 v{12+k}, s{S_ST+4*i+k}")
            a(f"buffer_store_dwordx4 v[12:15], v8, s[{R_WS}:{R_WS+3}], s{S_T0} offen offset:{16*i}", "s_nop 1")

    def kv_dma(self, p0, n):
        a = self.a
        for k in range(n):
            a(f"s_add_u32 m0, s{S_M0A}, {L_KV + (p0 + 4*k)*1024}", f"s_add_u32 s{S_T0}, s{S_KVS}, 4096",
              f"buffer_load_dwordx4 v1, s[{R_WS}:{R_WS+3}], s{S_KVS} offen sc1 lds",
              f"s_cmp_ge_u32 s{S_T0}, {KVB}", f"s_cselect_b32 s{S_T1}, {KVB}, 0", f"s_sub_u32 s{S_KVS}, s{S_T0}, s{S_T1}")

    def row_max16(self, v):
        a = self.a
        for k in (8, 4, 2, 1):
            a("s_nop 1", f"v_max_f32_dpp v{v}, v{v}, v{v} row_ror:{k} row_mask:0xf bank_mask:0xf")

    def rest_srds(self):
        a = self.a
        a(f"s_mov_b32 s{R_WO+2}, 663552", f"s_mov_b32 s{R_WO+3}, 0x20000",
          f"s_mul_i32 s{S_T0}, s{S_B}, {WS_BR}", f"s_add_u32 s{R_WS}, s40, s{S_T0}", f"s_addc_u32 s{R_WS+1}, s41, 0",
          f"s_mov_b32 s{R_WS+2}, {WS_OEX + 32*OEX_G}", f"s_mov_b32 s{R_WS+3}, 0x20000")
        srd(a, R_OUT, "s36", "s37", 4718592)
        srd(a, R_DBG, "s38", "s39", 256)

    def norm2(self, x, y):
        a = self.a
        for j in range(4):
            for (qm, qr, dst, tmp) in (x, y):
                a(f"v_dot2_f32_bf16 v{dst}, v{qm+j}, v{qm+j}, {'0' if j == 0 else 'v%d' % dst}",
                  f"v_dot2_f32_bf16 v{tmp}, v{qm+4+j}, v{qm+4+j}, {'0' if j == 0 else 'v%d' % tmp}")
        a("s_nop 0", f"v_permlane32_swap_b32 v{x[2]}, v{x[3]}", "s_nop 0", f"v_permlane32_swap_b32 v{y[2]}, v{y[3]}",
          f"v_add_f32 v{x[2]}, v{x[2]}, v{x[3]}", f"v_add_f32 v{y[2]}, v{y[2]}, v{y[3]}",
          f"v_dot2_f32_bf16 v{x[2]}, v{x[1]}, v{x[1]}, v{x[2]}", f"v_dot2_f32_bf16 v{y[2]}, v{y[1]}, v{y[1]}, v{y[2]}", "s_nop 1",
          f"v_sqrt_f32 v{x[2]}, v{x[2]}", f"v_sqrt_f32 v{y[2]}, v{y[2]}")

    def init_main_regs(self):
        a = self.a
        a(f"v_mov_b32 v{KR[0]+1}, 0x3f803f80", f"v_mov_b32 v{KR[1]+1}, 0x3f803f80")
        for r in range(O[0], O[0] + 32):
            a(f"v_mov_b32 v{r}, 0")
        for r in range(S[1] + 24, S[1] + 32):
            a(f"v_mov_b32 v{r}, 0")
        for r in range(VV[1][1], VV[1][1] + 4):
            a(f"v_mov_b32 v{r}, 0")

    def ldKm(self, kb):
        return [f"ds_read_b128 {vr(KM[kb%2],4)}, v{V_AK} offset:{(kb//2)*PB+(kb%2)*1024}"]

    def ldKr(self, p):
        return [f"ds_read_b32 v{KR[p%2]}, v{V_AR} offset:{p*PB}"]

    def ldV(self, kb):
        return [f"ds_read_b128 {vr(VV[kb%2][i],4)}, v{V_AV} offset:{(kb//2)*PB+((kb%2)*2+i)*VG}" for i in range(2)]

    def qk(self, dst, kb):
        return [B2(dst, KR[(kb//2) % 2], QR, kb % 2), K16(dst, KM[kb % 2], QM[0]), K16(dst + 16, KM[kb % 2], QM[1])]

    def main_prologue_loads(self):
        self.a(self.ldKr(0), self.ldKm(0), self.ldKm(1), self.ldKr(1), self.ldV(0))

    def start(self):
        a, o = self.a, self.o
        a("s_cmp_ge_u32 s2, 256", "s_cbranch_scc1 L_end")
        a("s_load_dwordx16 s[16:31], s[0:1], 0", "s_load_dwordx8 s[32:39], s[0:1], 64", "s_load_dwordx2 s[40:41], s[0:1], 96")
        self.stamp(0)
        a("s_getpc_b64 s[42:43]", "L_pc:")
        a("v_lshrrev_b32 v1, 6, v0", "v_and_b32 v0, 63, v0", f"v_readfirstlane_b32 s{S_WAVE}, v1", "v_lshlrev_b32 v1, 4, v0",
          f"s_lshr_b32 s{S_T2}, s2, 3", f"s_and_b32 s{S_B}, s2, 1", f"s_and_b32 s{S_HG}, s{S_T2}, 3", f"s_lshr_b32 s{S_GI}, s2, 5")
        if o['prefetch']:
            a(f"s_cmp_lg_u32 s{S_WAVE}, 7", "s_cbranch_scc1 L_nopf", f"s_cmp_ge_u32 s{S_T2}, (L_codeend-{NAME})/1024", "s_cbranch_scc1 L_nopf",
              f"s_lshl_b32 s{S_T2}, s{S_T2}, 10", f"s_sub_u32 s{S_T0}, s42, L_pc-{NAME}", f"s_subb_u32 s{S_T1}, s43, 0",
              f"s_add_u32 s{S_T0}, s{S_T0}, s{S_T2}", f"s_addc_u32 s{S_T1}, s{S_T1}, 0",
              f"v_mov_b32 v7, s{S_T1}", f"v_add_co_u32 v6, vcc, s{S_T0}, v1", "s_nop 1", "v_addc_co_u32 v7, vcc, 0, v7, vcc", "s_nop 0",
              "global_load_dwordx4 v[24:27], v[6:7], off", "L_nopf:")
        a(f"s_bfe_u32 s{S_PG}, s2, 0x20001", f"s_lshl_b32 s{S_PG}, s{S_PG}, 3", f"s_add_u32 s{S_PG}, s{S_PG}, s{S_GI}",
          f"s_and_b32 s{S_I}, s{S_WAVE}, 3", f"s_and_b32 s{S_PBI}, s{S_WAVE}, 1", f"s_lshr_b32 s{S_HQ}, s{S_I}, 1")
        a("v_lshrrev_b32 v8, 3, v0", "v_lshrrev_b32 v9, 4, v0", f"s_lshl_b32 s{S_T0}, s{S_PBI}, 2", f"v_or_b32 v9, s{S_T0}, v9",
          "v_and_b32 v10, 7, v0", "v_xor_b32 v9, v9, v10", "v_lshlrev_b32 v9, 4, v9", "v_mov_b32 v10, 0x480", "v_mad_u32_u24 v8, v8, v10, v9",
          f"s_lshl_b32 s{S_T0}, s{S_I}, 6", f"v_add_u32 v9, s{S_T0}, v0", "v_mul_u32_u24 v10, 0xab, v9", "v_lshrrev_b32 v10, 9, v10", "v_mul_u32_u24 v10, 12, v10",
          "v_lshlrev_b32 v9, 4, v9", "v_sub_u32 v9, v9, v10")
        a(f"s_and_b32 s{S_T4}, s{S_HG}, 2", f"s_lshl_b32 s{S_T4}, s{S_T4}, 1", f"s_add_u32 s{S_T4}, s{S_T4}, s{S_I}",
          f"s_lshl_b32 s{S_T5}, s{S_PG}, 3", f"s_add_u32 s{S_XB}, s{S_T5}, s{S_T4}", f"s_mul_i32 s{S_XB}, s{S_XB}, {8*1152}",
          f"s_mul_i32 s{S_XM}, s{S_T4}, 9216", f"s_add_u32 s{S_XM}, s{S_XM}, {L_X}", f"s_lshl_b32 s{S_T0}, s{S_I}, 10", f"s_add_u32 s{S_T0}, s{S_T0}, {L_W}",
          f"s_lshr_b32 s{S_T1}, s{S_HG}, 1", f"s_movk_i32 s{S_DI}, 3072", f"s_movk_i32 s{S_DS}, 2304",
          f"s_cmp_lt_u32 s{S_WAVE}, 4", "s_cselect_b64 vcc, -1, 0", f"s_cselect_b32 s{S_XB}, s{S_XB}, 0", f"s_cselect_b32 s{S_XM}, s{S_XM}, s{S_T0}",
          f"s_cselect_b32 s{S_T1}, s{S_HG}, s{S_T1}", f"s_cselect_b32 s{S_DI}, 1024, s{S_DI}", f"s_cselect_b32 s{S_DS}, 128, s{S_DS}",
          "v_cndmask_b32 v9, v9, v8, vcc")
        self.dma9_setup(S_T1)
        a("s_waitcnt lgkmcnt(0)", f"s_cmp_eq_u32 s{S_B}, 0", f"s_cselect_b64 s[{R_X}:{R_X+1}], s[16:17], s[26:27]",
          f"s_cselect_b64 s[20:21], s[20:21], s[30:31]", f"s_cselect_b64 s[22:23], s[22:23], s[32:33]",
          f"s_cselect_b64 s[{R_WQ}:{R_WQ+1}], s[18:19], s[28:29]", f"s_cselect_b64 s[{R_WO}:{R_WO+1}], s[24:25], s[34:35]",
          f"s_bitcmp0_b32 s{S_HG}, 0", f"s_cselect_b64 s[{R_W}:{R_W+1}], s[20:21], s[22:23]", f"s_mov_b32 s{R_X+2}, 2359296", f"s_movk_i32 s{R_W+2}, 20736",
          f"s_cmp_lt_u32 s{S_WAVE}, 4", f"s_cselect_b64 s[{R_W}:{R_W+1}], s[{R_X}:{R_X+1}], s[{R_W}:{R_W+1}]", f"s_cselect_b32 s{R_W+2}, s{R_X+2}, s{R_W+2}",
          f"s_mov_b32 s{R_W+3}, 0x20000", f"s_mov_b32 s{R_X+3}, 0x20000")
        self.stamp(1, 2)
        a(f"s_cmp_eq_u32 s{S_WAVE}, 7", "s_cbranch_scc1 L_late")
        self.dma9(R_W, 9)
        a(f"s_cmp_ge_u32 s{S_WAVE}, 4", "s_cbranch_scc1 L_late")

    def dma9_setup(self, sel):
        self.a(f"s_bitcmp1_b32 s{sel}, 0", f"s_cselect_b32 s{S_XI}, 5, 0",
               f"s_add_u32 s{S_XS}, s{S_XI}, s{S_GI}", f"s_cmp_ge_u32 s{S_XS}, 9", f"s_cselect_b32 s{S_T0}, 9, 0", f"s_sub_u32 s{S_XS}, s{S_XS}, s{S_T0}",
               f"s_mul_i32 s{S_XS}, s{S_XS}, s{S_DS}", f"s_mul_i32 s{S_XI}, s{S_XI}, s{S_DI}", f"s_mul_i32 s{S_LI}, s{S_DI}, 9", f"s_mul_i32 s{S_LS}, s{S_DS}, 9")

    def dma9(self, srd_, v):
        for i in range(9):
            self.a(f"s_add_u32 m0, s{S_XM}, s{S_XI}", f"s_add_u32 s{S_T3}, s{S_XB}, s{S_XS}",
                   f"buffer_load_dwordx4 v{v}, s[{srd_}:{srd_+3}], s{S_T3} offen lds")
            if i < 8:
                self.a(f"s_add_u32 s{S_XS}, s{S_XS}, s{S_DS}", f"s_cmp_eq_u32 s{S_XS}, s{S_LS}", f"s_cselect_b32 s{S_XS}, 0, s{S_XS}",
                       f"s_add_u32 s{S_XI}, s{S_XI}, s{S_DI}", f"s_cmp_eq_u32 s{S_XI}, s{S_LI}", f"s_cselect_b32 s{S_XI}, 0, s{S_XI}")

    def table_load(self):
        self.a(f"s_add_u32 s{S_T0}, s42, L_table-L_pc", f"s_addc_u32 s{S_T1}, s43, 0",
               f"v_mov_b32 v7, s{S_T1}", f"v_add_co_u32 v6, vcc, s{S_T0}, v1", "s_nop 1", "v_addc_co_u32 v7, vcc, 0, v7, vcc", "s_nop 0",
               "global_load_dwordx4 v[20:23], v[6:7], off")

    def wq_setup(self, d):
        self.a(f"s_mov_b32 s{R_WQ+2}, 663552", f"s_mov_b32 s{R_WQ+3}, 0x20000",
               "v_lshrrev_b32 v13, 4, v0", "v_and_b32 v14, 15, v0", "v_lshlrev_b32 v15, 2, v13", "v_xor_b32 v14, v14, v15",
               "v_lshrrev_b32 v15, 1, v14", "v_mul_u32_u24 v15, 36, v15", "v_and_b32 v14, 1, v14", "v_lshl_add_u32 v15, v14, 4, v15",
               "v_mul_u32_u24 v13, 0x480, v13", f"s_mul_i32 s{S_T0}, s{S_I}, {4*1152}", f"s_mul_i32 s{S_T1}, s{S_HG}, 288",
               f"s_add_u32 s{S_T0}, s{S_T0}, s{S_T1}", f"v_add3_u32 v10, v13, v15, s{S_T0}", f"v_add_u32 v11, {16*1152}, v10",
               "v_and_b32 v13, 4, v0", "v_bfe_u32 v14, v0, 1, 1", "v_or_b32 v13, v13, v14", "v_and_b32 v14, 1, v0", "v_lshl_add_u32 v13, v14, 1, v13",
               "v_mul_u32_u24 v13, 36, v13", "v_lshrrev_b32 v14, 3, v0", "v_mul_u32_u24 v14, 0x480, v14",
               f"s_mul_i32 s{S_T0}, s{S_I}, {8*1152}", f"s_add_u32 s{S_T0}, s{S_T0}, s{S_T1}", f"s_add_u32 s{S_T0}, s{S_T0}, 32",
               f"v_add3_u32 v12, v13, v14, s{S_T0}",
               f"s_lshl_b32 s{S_M0A}, s{S_I}, 10", f"s_lshl_b32 s{S_M0R}, s{S_PBI}, 8", f"s_add_u32 s{S_M0R}, s{S_M0R}, 4096",
               f"s_mul_i32 s{S_ROW}, s{S_GI}, {64*1152}")
        if d:
            self.a(f"s_add_u32 s{S_ROW}, s{S_ROW}, {32*d*1152}", f"s_cmp_ge_u32 s{S_ROW}, {576*1152}",
                   f"s_cselect_b32 s{S_T0}, {576*1152}, 0", f"s_sub_u32 s{S_ROW}, s{S_ROW}, s{S_T0}")

    def wq_dma(self, d):
        s0, s1 = slot_addr(2 * d), slot_addr(2 * d + 1)
        ld = lambda r, x: f"buffer_load_dword{x} v{r}, s[{R_WQ}:{R_WQ+3}], s{S_ROW} offen lds"
        self.a(f"s_add_u32 m0, s{S_M0A}, {s0}", f"s_mul_i32 s{S_T1}, s{S_HQ}, {s1-s0}", ld(10, 'x4'),
               f"s_add_u32 m0, s{S_M0A}, {s1}", f"s_add_u32 s{S_T1}, s{S_T1}, s{S_M0R}", ld(11, 'x4'),
               f"s_add_u32 m0, s{S_T1}, {s0}", f"s_add_u32 s{S_T0}, s{S_ROW}, {32*1152}", ld(12, ''),
               f"s_cmp_ge_u32 s{S_T0}, {576*1152}", f"s_cselect_b32 s{S_T1}, {576*1152}, 0", f"s_sub_u32 s{S_ROW}, s{S_T0}, s{S_T1}")

    GROUPS = [(4, 3), (7, 9), (10, 15), (13, 21), (15, 27), (17, 31)]

    def early_front(self):
        a, o = self.a, self.o
        self.stamp(2, 2)
        self.table_load()
        self.wq_setup(0)
        self.wq_dma(0)
        a("s_waitcnt vmcnt(4)")
        self.stamp(3, 2)
        a("s_barrier")
        self.wq_dma(1)
        self.wq_dma(2)
        self.rest_srds()
        a("v_and_b32 v16, 31, v0", "v_lshrrev_b32 v13, 5, v0", "v_bfe_u32 v14, v0, 1, 3", "v_xor_b32 v13, v13, v14", "v_lshlrev_b32 v13, 4, v13",
          "v_and_b32 v14, 7, v0", "v_lshl_add_u32 v13, v14, 7, v13", "v_lshrrev_b32 v16, 3, v16", "v_mul_u32_u24 v16, 0x2400, v16",
          f"s_mul_i32 s{S_T0}, s{S_PBI}, {4*9216}", f"s_add_u32 s{S_T0}, s{S_T0}, {L_X}", f"v_add3_u32 v104, v16, v13, s{S_T0}",
          "v_xor_b32 v105, 32, v104", "v_xor_b32 v106, 64, v104", "v_xor_b32 v107, 0x60, v104")
        a("v_bfe_u32 v18, v0, 2, 2",
          "v_and_b32 v13, 3, v0",
          "v_bfe_u32 v14, v0, 4, 1",
          "v_lshrrev_b32 v15, 5, v0",
          "v_lshl_add_u32 v15, v15, 3, v18",
          f"s_lshl_b32 s{S_T0}, s{S_HQ}, 3",
          "v_lshrrev_b32 v16, 1, v13", "v_lshl_add_u32 v16, v14, 1, v16", f"v_or_b32 v16, s{S_T0}, v16",
          "v_lshlrev_b32 v17, 2, v18", "v_xor_b32 v16, v16, v17", "v_lshlrev_b32 v16, 4, v16",
          "v_and_b32 v13, 1, v13", "v_lshl_add_u32 v16, v13, 3, v16", "v_lshl_add_u32 v6, v15, 8, v16", "v_xor_b32 v7, 64, v6",
          f"s_lshl_b32 s{S_T0}, s{S_HQ}, 4", f"s_add_u32 s{S_T0}, s{S_T0}, 4096", "v_lshlrev_b32 v13, 3, v13", "v_lshl_add_u32 v13, v15, 5, v13",
          f"v_add_u32 v19, s{S_T0}, v13")
        a(f"s_mul_i32 s{S_T0}, s{S_WAVE}, 2560", f"v_add_u32 v96, s{S_T0}, v1", "v_lshlrev_b32 v97, 3, v0", f"v_add_u32 v97, s{S_T0}, v97",
          f"v_mov_b32 v{V_IDX}, 0xdddddddd", f"v_add_u32 v{V_AK}, {L_KV}, v1", f"v_lshlrev_b32 v{V_AR}, 2, v0", f"v_add_u32 v{V_AR}, {L_KV+2048}, v{V_AR}",
          "v_mov_b32 v102, 0", "v_mov_b32 v103, 0", f"v_mov_b32 v98, {L_KMAX}")
        a("v_mov_b32 v100, 1", "v_mov_b32 v101, 0")
        self.wq_dma(3)
        self.wq_dma(4)
        self.stamp(1)
        self.stamp(4, 2)
        a("s_barrier")
        self.stamp(5, 2)
        XF = 112
        T0, T1, TR = 24, 40, 56
        FB = [72, 84]
        state = dict(base=0)

        def rd(ks):
            x = []
            off = slot_addr(ks) - state['base']
            if off < 0 or off + 1024 > 65535:
                d = slot_addr(ks) - state['base']
                x += [f"v_add_u32 v{r}, {d}, v{r}" if d > 0 else f"v_subrev_u32 v{r}, {-d}, v{r}" for r in (6, 7, 19)]
                state['base'] = slot_addr(ks)
                off = 0
            f = FB[ks & 1]
            return x, [f"ds_read_b64_tr_b16 {vr(f,2)}, v6 offset:{off}", f"ds_read_b64_tr_b16 {vr(f+2,2)}, v6 offset:{off+1024}",
                       f"ds_read_b64_tr_b16 {vr(f+4,2)}, v7 offset:{off}", f"ds_read_b64_tr_b16 {vr(f+6,2)}, v7 offset:{off+1024}",
                       f"ds_read_b64_tr_b16 {vr(f+8,2)}, v19 offset:{off}", f"ds_read_b64_tr_b16 {vr(f+10,2)}, v19 offset:{off+128}"]

        def mm(ks):
            f = FB[ks & 1]
            c = "0" if ks == 0 else None
            return [K16(T0, f, XF + 4 * ks, c), K16(T1, f + 4, XF + 4 * ks, c), K16(TR, f + 8, XF + 4 * ks, c)]
        for i in range(36):
            a(f"ds_read_b128 {vr(XF+4*i,4)}, v{104+(i&3)} offset:{(i>>2)*1024}")
        a("s_waitcnt vmcnt(9)", f"v_mov_b32 v{V_AV}, v20", "v_mov_b32 v21, 0x3f803f80", "s_waitcnt lgkmcnt(0)", "s_barrier")
        self.stamp(2)
        self.stamp(6, 2)
        a(rd(0)[1])
        ev = {k: ["s_barrier"] for _, k in self.GROUPS}
        ev[3] = ["s_waitcnt vmcnt(0)", "s_barrier"]
        ev[9] = ["s_barrier", f"s_cmp_lg_u32 s{S_WAVE}, 3", "s_cbranch_scc1 L_nosig", f"s_lshl_b32 s{S_T0}, s{S_B}, 7", "s_mov_b64 exec, 1",
                 f"buffer_atomic_add v100, v101, s[{R_DBG}:{R_DBG+3}], s{S_T0} offen sc1", "s_mov_b64 exec, -1", "L_nosig:"]
        for ks in range(36):
            m = mm(ks)
            if ks in ev:
                a(ev[ks])
            if ks + 1 < 36:
                pre, n = rd(ks + 1)
                a(pre, n[0:2], "s_waitcnt lgkmcnt(6)", m[0], n[2:4], "s_waitcnt lgkmcnt(6)", m[1], n[4:6], "s_waitcnt lgkmcnt(6)", m[2])
            else:
                a("s_waitcnt lgkmcnt(4)", m[0], "s_waitcnt lgkmcnt(2)", m[1], "s_waitcnt lgkmcnt(0)", m[2])
        self.stamp(3)
        H = 72
        a(f"v_mov_b32 v{KR[0]+1}, 0x3f803f80", f"s_mov_b32 s{S_BAR}, {32//o['unp'] - o['barit']}", f"s_mov_b32 s{S_STG}, 0", "s_nop 4")
        for j in range(8):
            a(f"v_cvt_pk_bf16_f32 v{QM[0]+j}, v{T0+2*j}, v{T0+2*j+1}")
        for j in range(8):
            a(f"v_cvt_pk_bf16_f32 v{H+j}, v{T1+2*j}, v{T1+2*j+1}")
        a(f"v_cvt_pk_bf16_f32 v{H+8}, v{TR+2}, v{TR+3}", f"v_cvt_pk_bf16_f32 v{QR}, v{TR}, v{TR+1}")
        a(f"ds_write_b128 v96, {vr(H,4)}", f"ds_write_b128 v96, {vr(H+4,4)} offset:1024")
        self.norm2((H, H + 8, H + 9, 85), (QM[0], QR, QR + 1, 86))
        a(f"ds_write_b64 v97, {vr(H+8,2)} offset:2048")
        a(K8Z(O[0], 102), K8Z(O[1], 102))
        a("s_waitcnt lgkmcnt(0)")
        a("s_barrier")
        a("ds_read_b32 v6, v98")
        self.main_prologue_loads()
        a([f"v_mov_b32 v{r}, 0" for r in range(VV[1][1], VV[1][1] + 4)])
        if o['prio']:
            a("s_setprio 2")
        a("s_waitcnt lgkmcnt(0)", "s_branch L_attn")

    def late_front(self):
        a, o = self.a, self.o
        a.label("L_late")
        a("s_setprio 1")
        self.stamp(2, 2)
        a(f"s_xor_b32 s{S_T4}, s{S_T4}, 4", f"s_add_u32 s{S_XB}, s{S_T5}, s{S_T4}", f"s_mul_i32 s{S_XB}, s{S_XB}, {8*1152}",
          f"s_mul_i32 s{S_XM}, s{S_T4}, 9216", f"s_add_u32 s{S_XM}, s{S_XM}, {L_X}", f"s_movk_i32 s{S_DI}, 1024", f"s_movk_i32 s{S_DS}, 128")
        self.dma9_setup(S_HG)
        self.dma9(R_X, 8)
        self.stamp(3, 2)
        self.table_load()
        self.wq_setup(5)
        self.rest_srds()
        a("v_and_b32 v13, 15, v0", "v_lshrrev_b32 v16, 4, v0",
          "v_bfe_u32 v17, v0, 1, 3", "v_xor_b32 v17, v16, v17", "v_lshlrev_b32 v17, 4, v17",
          "v_and_b32 v18, 7, v0", "v_lshl_add_u32 v17, v18, 7, v17", "v_bfe_u32 v18, v0, 3, 1", "v_mul_u32_u24 v18, 0x2400, v18",
          f"s_lshr_b32 s{S_T0}, s{S_HG}, 1", f"s_lshl_b32 s{S_T0}, s{S_T0}, 1", f"s_add_u32 s{S_T0}, s{S_T0}, s{S_PBI}",
          f"s_mul_i32 s{S_T1}, s{S_T0}, {2*9216}", f"s_add_u32 s{S_T1}, s{S_T1}, {L_X}", f"v_add3_u32 v14, v17, v18, s{S_T1}", "v_xor_b32 v15, 64, v14",
          "v_bfe_u32 v17, v0, 2, 2", "v_lshl_add_u32 v17, v16, 3, v17",
          "v_mul_u32_u24 v17, 48, v17", "v_and_b32 v18, 3, v0", "v_lshlrev_b32 v18, 3, v18",
          f"s_cmp_eq_u32 s{S_HQ}, 0", "s_cselect_b64 vcc, -1, 0", "v_mov_b32 v19, 32", "v_cndmask_b32 v18, v19, v18, vcc", f"v_add_u32 v17, {L_W}, v17", "v_add_u32 v17, v17, v18")
        a("v_lshrrev_b32 v18, 4, v0", "v_and_b32 v19, 1, v18", "v_lshlrev_b32 v19, 9, v19", "v_lshl_add_u32 v19, v13, 4, v19",
          "v_lshrrev_b32 v18, 1, v18", "v_lshl_add_u32 v28, v18, 3, v19", "v_lshlrev_b32 v29, 2, v13",
          f"s_mul_i32 s{S_KVS}, s{S_PG}, {PB}", f"s_mov_b32 s{S_OEX}, s{S_T0}")
        a("s_waitcnt vmcnt(10)")
        self.stamp(1)
        self.stamp(4, 2)
        a("s_barrier")
        a(f"s_bitcmp1_b32 s{S_HG}, 0", "s_cbranch_scc1 L_vproj")
        D = 32
        NB = o['nb']
        for isv in (0, 1):
            if isv:
                a.label("L_vproj")

            def rd(s):
                xb = 40 + 8 * (s % NB)
                return [f"ds_read_b128 {vr(xb,4)}, v{14+(s&1)} offset:{(s>>1)*1024}",
                        f"ds_read_b64_tr_b16 {vr(xb+4,2)}, v17 offset:{s*1536}", f"ds_read_b64_tr_b16 {vr(xb+6,2)}, v17 offset:{s*1536+192}"]
            for s in range(NB - 1):
                a(rd(s))
            for s in range(18):
                if s == o['sb']:
                    a("s_waitcnt vmcnt(0)", "s_barrier")
                if s + NB - 1 < 18:
                    a(rd(s + NB - 1))
                left = min(18 - 1 - s, NB - 1)
                xb = 40 + 8 * (s % NB)
                c = "0" if s == 0 else None
                a(f"s_waitcnt lgkmcnt({min(15,3*left)})", M16(D, xb, xb + 4, c) if isv else M16(D, xb + 4, xb, c))
            g = S_OEX
            if not isv:
                a(f"s_lshr_b32 s{S_T0}, s{g}, 1", f"s_lshl_b32 s{S_T0}, s{S_T0}, 10", f"s_lshl_b32 s{S_T1}, s{S_PBI}, 8", f"s_add_u32 s{S_T0}, s{S_T0}, s{S_T1}",
                  f"s_add_u32 s{S_T0}, s{S_T0}, s{S_KVS}",
                  f"s_lshl_b32 s{S_T1}, s{g}, 6", f"s_add_u32 s{S_T1}, s{S_T1}, s{S_KVS}", f"s_add_u32 s{S_T1}, s{S_T1}, 2048",
                  f"s_mov_b32 s{S_T2}, {hex(f2u(CSCALE))}")
                for r in range(4):
                    a(f"v_mul_f32 v{D+r}, s{S_T2}, v{D+r}")
                a(f"v_cvt_pk_bf16_f32 v{D}, v{D}, v{D+1}", f"v_cvt_pk_bf16_f32 v{D+1}, v{D+2}, v{D+3}",
                  f"s_lshl_b32 s{S_T3}, s{S_PG}, 2", f"s_add_u32 s{S_T3}, s{S_T3}, s{g}", f"s_lshl_b32 s{S_T3}, s{S_T3}, 2", f"s_add_u32 s{S_T3}, s{S_T3}, {WS_KN}",
                  f"v_dot2_f32_bf16 v36, v{D}, v{D}, 0",
                  f"s_cmp_eq_u32 s{S_HQ}, 0", "s_cbranch_scc0 L_krem",
                  f"buffer_store_dwordx2 {vr(D,2)}, v28, s[{R_WS}:{R_WS+3}], s{S_T0} offen sc1",
                  f"v_dot2_f32_bf16 v36, v{D+1}, v{D+1}, v36", "s_nop 2", "v_mov_b32 v37, v36", "s_nop 1",
                  "v_permlane16_swap_b32 v36, v37", "s_nop 1", "v_add_f32 v36, v36, v37", "s_nop 0", "v_mov_b32 v37, v36", "s_nop 1",
                  "v_permlane32_swap_b32 v36, v37", "s_nop 1", "v_add_f32 v36, v36, v37", "s_branch L_knorm",
                  "L_krem:", "s_mov_b64 exec, 0xffff",
                  f"buffer_store_dword v{D}, v29, s[{R_WS}:{R_WS+3}], s{S_T1} offen sc1", "s_mov_b64 exec, -1", f"s_add_u32 s{S_T3}, s{S_T3}, 512",
                  "L_knorm:", "s_nop 1")
                self.row_max16(36)
                a("v_mov_b32 v37, 0", "s_mov_b64 exec, 1", f"buffer_store_dword v36, v37, s[{R_WS}:{R_WS+3}], s{S_T3} offen sc1", "s_mov_b64 exec, -1",
                  "s_branch L_kvdone")
            else:
                a(f"s_mul_i32 s{S_T0}, s{g}, {VG}", f"s_add_u32 s{S_T0}, s{S_T0}, s{S_KVS}", f"s_add_u32 s{S_T0}, s{S_T0}, 2304",
                  "v_cmp_eq_u32 vcc, 2, v13", f"v_cmp_eq_u32 s[{S_EX}:{S_EX+1}], 3, v13", "v_mov_b32 v30, 0x3f803f80", "s_nop 0",
                  f"s_cmp_eq_u32 s{S_HQ}, 0",
                  f"v_cvt_pk_bf16_f32 v{D}, v{D}, v{D+1}", f"v_cvt_pk_bf16_f32 v{D+1}, v{D+2}, v{D+3}", "s_cbranch_scc0 L_vrem",
                  f"buffer_store_dwordx2 {vr(D,2)}, v21, s[{R_WS}:{R_WS+3}], s{S_T0} offen sc1", "s_branch L_kvdone",
                  "L_vrem:",
                  f"v_cndmask_b32 v{D}, v{D}, v30, vcc", f"v_cndmask_b32 v{D+1}, v{D+1}, v30, vcc",
                  f"v_cndmask_b32 v{D}, v{D}, 0, s[{S_EX}:{S_EX+1}]", f"v_cndmask_b32 v{D+1}, v{D+1}, 0, s[{S_EX}:{S_EX+1}]",
                  "s_mov_b32 exec_lo, 0x000f000f", "s_mov_b32 exec_hi, 0x000f000f",
                  f"buffer_store_dwordx2 {vr(D,2)}, v22, s[{R_WS}:{R_WS+3}], s{S_T0} offen sc1", "s_mov_b64 exec, -1")
        a.label("L_kvdone")
        self.stamp(2)
        self.stamp(5, 2)
        a(f"v_mov_b32 v{V_AV}, v20")
        self.wq_dma(5)
        a("s_barrier")
        nxt = 6
        for gi_, (last, _) in enumerate(self.GROUPS):
            lim = 16 if gi_ < 3 else 17
            while nxt <= min(last + o['win'], lim):
                self.wq_dma(nxt)
                nxt += 1
            assert nxt > last
            if gi_ > 0:
                a(f"s_waitcnt vmcnt({3*(nxt-1-last)})")
            if gi_ == 2:
                a(f"v_mov_b32 v150, {L_FLAG}", "v_mov_b32 v152, 0", "v_mov_b32 v153, 0", "v_mov_b32 v151, 0", "ds_write_b64 v150, v[152:153]", "s_waitcnt lgkmcnt(0)")
            if gi_ == len(self.GROUPS) - 1:
                self.init_main_regs()
            a("s_barrier")
        self.stamp(3)
        self.stamp(6, 2)
        a(f"s_and_b32 s{S_T0}, s{S_GI}, 3", f"s_mul_i32 s{S_KVS}, s{S_T0}, {37*1024}", f"s_add_u32 s{S_KVS}, s{S_KVS}, s{S_M0A}")
        a(f"s_mov_b32 s{S_CNT}, {SPIN}", f"s_cmp_lg_u32 s{S_WAVE}, 4", "s_cbranch_scc1 L_relay", f"s_lshl_b32 s{S_T0}, s{S_B}, 7")
        a("L_poll1:", f"buffer_load_dword v152, v151, s[{R_DBG}:{R_DBG+3}], s{S_T0} offen sc0 sc1", f"s_sub_u32 s{S_CNT}, s{S_CNT}, 1",
          "s_cbranch_scc1 L_poll1d", "s_waitcnt vmcnt(0)", "v_cmp_gt_u32 vcc, 0x80, v152", "s_cbranch_vccnz L_poll1",
          "L_poll1d:", "v_mov_b32 v152, 1", "ds_write_b32 v150, v152", "v_lshlrev_b32 v153, 3, v0", f"s_mov_b32 s{S_T0}, {WS_KN}",
          f"buffer_load_dwordx2 v[154:155], v153, s[{R_WS}:{R_WS+3}], s{S_T0} offen sc1",
          f"buffer_load_dwordx2 v[156:157], v153, s[{R_WS}:{R_WS+3}], s{S_T0} offen offset:512 sc1", "s_branch L_flagok")
        a("L_relay:", "ds_read_b32 v152, v150", f"s_sub_u32 s{S_CNT}, s{S_CNT}, 1", "s_cbranch_scc1 L_flagok", "s_waitcnt lgkmcnt(0)",
          "v_cmp_eq_u32 vcc, 0, v152", "s_cbranch_vccnz L_relay", "L_flagok:")
        self.stamp(4)
        self.kv_dma(0, o['kv1'])
        a(f"s_cmp_lg_u32 s{S_WAVE}, 4", "s_cbranch_scc1 L_nokn", f"s_waitcnt vmcnt({o['kv1']})", "v_max_f32 v154, v154, v155", "v_max_f32 v156, v156, v157")
        self.row_max16(154)
        self.row_max16(156)
        a("s_nop 0")
        for k in range(4):
            a(f"v_readlane_b32 s{16+k}, v154, {16*k}", f"v_readlane_b32 s{20+k}, v156, {16*k}")
        a("s_nop 1", "s_max_u32 s16, s16, s17", "s_max_u32 s18, s18, s19", "s_max_u32 s20, s20, s21", "s_max_u32 s22, s22, s23",
          "s_max_u32 s16, s16, s18", "s_max_u32 s20, s20, s22", "v_mov_b32 v154, s16", "v_add_f32 v154, s20, v154", "v_sqrt_f32 v154, v154",
          f"v_mov_b32 v155, {L_KMAX}", "ds_write_b32 v155, v154", "L_nokn:")
        a(f"v_mov_b32 v{V_IDX}, 0xdddddddd", f"v_add_u32 v{V_AK}, {L_KV}, v1", f"v_lshlrev_b32 v{V_AR}, 2, v0", f"v_add_u32 v{V_AR}, {L_KV+2048}, v{V_AR}",
          f"s_mul_i32 s{S_T0}, s{S_I}, 2560", f"v_add_u32 v8, s{S_T0}, v1", "v_lshlrev_b32 v9, 3, v0", f"v_add_u32 v9, s{S_T0}, v9", f"v_mov_b32 v6, {L_KMAX}")
        a("s_waitcnt vmcnt(0) lgkmcnt(0)", "s_barrier")
        a("ds_read_b32 v6, v6", f"ds_read_b64 {vr(QR,2)}, v9 offset:2048", f"ds_read_b128 {vr(QM[1],4)}, v8 offset:1024", f"ds_read_b128 {vr(QM[0],4)}, v8")
        self.kv_dma(4 * o['kv1'], 37 - o['kv1'])
        a("s_waitcnt vmcnt(0) lgkmcnt(0)")
        self.stamp(5)
        a("s_barrier")
        self.wo_job_loads(0)
        a(f"s_cmp_ge_u32 s{S_OEX}, {648-512}", "s_cbranch_scc1 L_nowo2", f"s_add_u32 s{S_OEX}, s{S_OEX}, 512")
        self.wo_job_loads(1)
        a("L_nowo2:")
        self.poison()
        a("s_waitcnt vmcnt(5)", f"s_cmp_ge_u32 s{S_OEX}, 512", "s_cbranch_scc0 L_wo3")
        self.wo_job_finish(1)
        a(f"s_sub_u32 s{S_OEX}, s{S_OEX}, 512", "L_wo3:")
        self.wo_job_finish(0)
        self.main_prologue_loads()
        self.join_signal(200, "l")
        a("s_mov_b64 exec, -1", f"s_mov_b32 s{S_BAR}, -1", f"s_mov_b32 s{S_STG}, 1")

    def join_signal(self, v, tag):
        self.a(f"v_mov_b32 v{v}, {L_FLAG+4}", f"v_mov_b32 v{v+1}, 1", f"v_mov_b32 v{v+3}, 0", f"s_lshl_b32 s{S_T0}, s{S_B}, 7", "s_mov_b64 exec, 1",
               "s_waitcnt vmcnt(0)", f"ds_add_rtn_u32 v{v+2}, v{v}, v{v+1}", "s_waitcnt lgkmcnt(0)", f"v_cmp_eq_u32 vcc, 3, v{v+2}", f"s_cbranch_vccz L_js{tag}",
               f"buffer_atomic_add v{v+1}, v{v+3}, s[{R_DBG}:{R_DBG+3}], s{S_T0} offen offset:4 sc1", f"L_js{tag}:")

    def wo_job_loads(self, rep):
        a = self.a
        if rep == 0:
            a(f"s_lshl_b32 s{S_OEX}, s{S_PG}, 2", f"s_add_u32 s{S_OEX}, s{S_OEX}, s{S_HG}", f"s_lshl_b32 s{S_OEX}, s{S_OEX}, 2", f"s_add_u32 s{S_OEX}, s{S_OEX}, s{S_I}")
        f = S_OEX
        AD, DT = 208, 216 + 8 * rep
        a(f"s_mul_i32 s16, s{f}, 7282", "s_lshr_b32 s16, s16, 16", "s_mul_i32 s17, s16, 9", f"s_sub_u32 s17, s{f}, s17",
          "s_mul_i32 s18, s16, 7282", "s_lshr_b32 s18, s18, 16", "s_mul_i32 s19, s18, 9", "s_sub_u32 s19, s16, s19",
          "s_and_b32 s20, s18, 1", "s_lshr_b32 s21, s18, 1")
        a("s_mul_i32 s22, s21, 288", "s_lshr_b32 s23, s17, 1", "s_lshl_b32 s23, s23, 6", "s_add_u32 s22, s22, s23", "s_and_b32 s23, s17, 1", "s_lshl_b32 s23, s23, 3",
          "s_add_u32 s22, s22, s23", "s_cmp_eq_u32 s17, 8", "s_cselect_b32 s23, 3, 4",
          "v_bfe_u32 v200, v0, 2, 2", "v_lshlrev_b32 v200, s23, v200", "v_and_b32 v201, 3, v0", "v_lshl_add_u32 v200, v201, 1, v200", "v_add_u32 v200, s22, v200",
          f"s_mul_i32 s22, s20, {36*1152}", "s_cmp_eq_u32 s19, 8", f"s_cbranch_scc1 L_wok1_{rep}")
        cy = [(j & 3) + 8 * (j >> 2) for j in range(8)]
        a(f"s_mul_i32 s23, s19, {72*1152}", "s_add_u32 s22, s22, s23", "v_lshrrev_b32 v201, 5, v0", "v_bfe_u32 v202, v0, 4, 1",
          f"v_mul_u32_u24 v203, {4*1152}, v201", "v_add_u32 v203, v200, v203",
          f"v_mul_u32_u24 v204, {3*1152}, v201", f"v_sub_u32 v204, {16*1152}, v204", "v_mul_u32_u24 v204, v202, v204", f"v_add_u32 v{AD}, v203, v204")
        for j in range(1, 8):
            dj = 18 + cy[j-1] - cy[j]
            a(f"v_mul_u32_u24 v204, {dj*1152}, v202", f"v_add_u32 v204, {cy[j]*1152}, v204", f"v_add_u32 v{AD+j}, v203, v204")
        a(f"s_branch L_wold_{rep}", f"L_wok1_{rep}:", "v_lshrrev_b32 v201, 4, v0", f"v_mul_u32_u24 v201, {144*1152}, v201", "v_add_u32 v203, v200, v201")
        for j in range(8):
            hq, hh, e = j >> 2, (j >> 1) & 1, j & 1
            row = 72 * hq + 18 + ((16 + hh) if e else (11 + 4 * hh))
            a(f"v_add_u32 v{AD+j}, {row*1152}, v203")
        a(f"L_wold_{rep}:")
        for j in range(8):
            a(f"buffer_load_ushort v{DT+j}, v{AD+j}, s[{R_WO}:{R_WO+3}], s22 offen")

    def wo_job_finish(self, rep):
        a = self.a
        DT = 216 + 8 * rep
        a(f"s_lshl_b32 s22, s{S_OEX}, 10", f"s_add_u32 s22, s22, {WS_WOT}")
        for j in range(4):
            a(f"v_lshl_or_b32 v{232+4*rep+j}, v{DT+1+2*j}, 16, v{DT+2*j}")
        a(f"buffer_store_dwordx4 {vr(232+4*rep,4)}, v1, s[{R_WS}:{R_WS+3}], s22 offen sc1")

    def poison(self):
        a = self.a
        a([f"v_mov_b32 v{176+j}, -1" for j in range(4)])
        a(f"s_mul_i32 s24, s{S_PG}, {OEX_G}", f"s_mul_i32 s25, s{S_HQ}, {OEX_S}", "s_add_u32 s24, s24, s25", f"s_add_u32 s24, s24, {WS_OEX}",
          f"s_lshl_b32 s25, s{S_HG}, 13", f"s_lshl_b32 s26, s{S_PBI}, 12", "s_add_u32 s25, s25, s26", "s_add_u32 s25, s25, s24",
          f"s_lshl_b32 s26, s{S_HG}, 6", "s_add_u32 s26, s26, s24", "s_add_u32 s26, s26, 32768",
          "v_lshrrev_b32 v180, 2, v0", "v_lshlrev_b32 v180, 8, v180", "v_and_b32 v181, 3, v0", "v_lshl_add_u32 v180, v181, 4, v180")
        for k in range(4):
            a(f"buffer_store_dwordx4 v[176:179], v1, s[{R_WS}:{R_WS+3}], s25 offen offset:{k*1024} sc0 sc1")
        a(f"buffer_store_dwordx4 v[176:179], v180, s[{R_WS}:{R_WS+3}], s26 offen sc0 sc1")

    def coop_load(self, n, tag):
        a = self.a
        B = 8
        a(f"s_lshl_b32 s{S_T0}, s{S_WAVE}, 10", f"v_add_u32 v6, s{S_T0}, v1", f"s_add_u32 s{S_T0}, s{S_T0}, s{S_OEXB}", f"s_add_u32 s{S_T0}, s{S_T0}, {OEX_S}")
        for k in range(1, n):
            a(f"s_add_u32 s{16+k}, s{S_T0}, {8192*k}")
        a(f"s_mov_b32 s{S_CNT}, {SPIN}")
        a("s_barrier")
        if tag == 'l':
            self.stamp(1, 1)
        a.label(f"L_cl{tag}")
        for k in range(n):
            a(f"buffer_load_dwordx4 {vr(B+4*k,4)}, v1, s[{R_WS}:{R_WS+3}], s{16+k if k else S_T0} offen sc0 sc1")
        a(f"s_sub_u32 s{S_CNT}, s{S_CNT}, 1", f"s_cbranch_scc1 L_cld{tag}")
        for k in range(n):
            r = B + 4 * k
            a(f"s_waitcnt vmcnt({n-1-k})")
            if k == 0:
                a(f"v_max3_u32 v7, v{r}, v{r+1}, v{r+2}", f"v_max_u32 v7, v7, v{r+3}")
            else:
                a(f"v_max3_u32 v7, v7, v{r}, v{r+1}", f"v_max3_u32 v7, v7, v{r+2}, v{r+3}")
        a("v_cmp_eq_u32 vcc, -1, v7", f"s_cbranch_vccnz L_cl{tag}", f"L_cld{tag}:", "s_waitcnt vmcnt(0)")
        if tag == 'l':
            self.stamp(2, 1)
            if self.o['stamps'] and self.o['set'] == 1:
                a(f"s_mov_b32 s{S_ST+8}, s{S_CNT}")
        for k in range(n):
            a(f"ds_write_b128 v6, {vr(B+4*k,4)} offset:{L_KV + 8192*k}")
        a("s_waitcnt lgkmcnt(0)", "s_barrier")
        if tag == 'l':
            self.stamp(3, 1)

    def attention(self):
        a, o = self.a, self.o
        UNP = o['unp']
        a.label("L_attn")
        a(f"v_mul_f32 v7, v6, v{QR+1}", f"v_mov_b32 v6, {hex(f2u(-1.0 if o['force_fb'] else TSAFE))}",
          "v_cmp_nle_f32 vcc, v7, v6", "v_sub_f32 v7, 0, v7", f"v_cvt_pk_bf16_f32 v{QR+1}, v7, 0", "s_cbranch_vccnz L_fallback", "L_fbdone:")
        q = self.qk(S[0], 0)
        a("s_nop 0", q[0], "s_nop 15", "s_nop 1", q[1], q[2], f"s_mov_b32 s{S_CNT}, {32//UNP}", "s_nop 9")
        self.stamp(6)
        body = []
        for kb in range(2 * UNP):
            cur, nxt = S[kb % 2], S[(kb + 1) % 2]
            q = self.qk(nxt, kb + 1)
            e = EX(cur, 32)
            sm3p = SM(O[1], VV[(kb - 1) % 2][1], nxt + 24)
            sm = [SM(O[0], VV[kb % 2][0], cur), SM(O[0], VV[kb % 2][1], cur + 8), SM(O[1], VV[kb % 2][0], cur + 16)]
            cl = self.ldKm(kb + 2) + (self.ldKr((kb + 3) // 2) if kb % 2 == 1 else []) + self.ldV(kb + 1)
            body += e[0:2] + [sm3p] + e[2:5] + [q[0]] + e[5:13] + ["s_waitcnt lgkmcnt(0)", sm[0]] + e[13:18] + [sm[1]] + e[18:21] + [q[1]] + e[21:24] + [q[2]] + cl + e[24:27] + [sm[2]] + e[27:32]
        body += [f"v_add_u32 v{V_AK}, {UNP*PB}, v{V_AK}", f"v_add_u32 v{V_AR}, {UNP*PB}, v{V_AR}", f"v_add_u32 v{V_AV}, {UNP*PB}, v{V_AV}"]
        self.loop_body = body
        a(".p2align 6", "L_main:", body, f"s_sub_u32 s{S_CNT}, s{S_CNT}, 1", f"s_cmp_lg_u32 s{S_CNT}, s{S_BAR}", "s_cbranch_scc1 L_nob7", "s_barrier", "L_nob7:",
          f"s_cmp_lg_u32 s{S_CNT}, 0", "s_cbranch_scc1 L_main")
        a(f"v_mov_b32 v22, {L_FLAG+4}", SM(O[1], VV[1][1], S[1] + 24), "ds_read_b32 v23, v22")
        self.stamp(7)
        a(f"s_mul_i32 s{S_OEXB}, s{S_PG}, {OEX_G}", f"s_add_u32 s{S_OEXB}, s{S_OEXB}, {WS_OEX}", f"s_mul_i32 s{S_T0}, s{S_STG}, {OEX_S}", f"s_add_u32 s{S_T0}, s{S_T0}, s{S_OEXB}",
          f"s_lshl_b32 s{S_T1}, s{S_PBI}, 11", f"s_add_u32 s{S_T0}, s{S_T0}, s{S_T1}",
          f"s_lshl_b32 s{S_T1}, s{S_HG}, 13", f"s_lshl_b32 s{S_T2}, s{S_HQ}, 12", f"s_add_u32 s{S_T1}, s{S_T1}, s{S_T2}", f"s_add_u32 s{S_T1}, s{S_T1}, s{S_T0}",
          f"s_lshl_b32 s{S_T2}, s{S_HG}, 6", f"s_lshl_b32 s{S_T3}, s{S_HQ}, 9", f"s_add_u32 s{S_T2}, s{S_T2}, s{S_T3}", f"s_add_u32 s{S_T2}, s{S_T2}, s{S_T0}",
          f"s_add_u32 s{S_T2}, s{S_T2}, 32768",
          "v_bfe_u32 v10, v0, 4, 1", "v_lshlrev_b32 v10, 10, v10", "v_lshrrev_b32 v11, 5, v0", "v_and_b32 v12, 15, v0",
          "v_lshl_add_u32 v8, v11, 9, v10", "v_lshl_add_u32 v8, v12, 4, v8", "v_lshl_add_u32 v9, v11, 8, v10", "v_lshl_add_u32 v9, v12, 2, v9")
        a(f"v_rcp_f32 v10, v{O[0]+9}", f"v_rcp_f32 v11, v{O[1]+9}")
        vals = [O[0] + j for j in range(9)] + [O[1] + j for j in range(9)]
        for j, r in enumerate(vals):
            a(f"v_mul_f32 v{r}, v{r}, v{10 if j < 9 else 11}")
        a(f"s_mov_b32 s{S_CNT}, {SPIN}", "L_pchk:", "s_waitcnt lgkmcnt(0)", "v_cmp_gt_u32 vcc, 4, v23", "s_cbranch_vccz L_pok",
          "ds_read_b32 v23, v22", f"s_sub_u32 s{S_CNT}, s{S_CNT}, 1", "s_cbranch_scc0 L_pchk", "L_pok:")
        for j in range(9):
            a(f"v_cvt_pk_bf16_f32 v{12+j}, v{vals[2*j]}, v{vals[2*j+1]}")
            if j == 3:
                a(f"buffer_store_dwordx4 v[12:15], v8, s[{R_WS}:{R_WS+3}], s{S_T1} offen sc0 sc1")
            if j == 7:
                a(f"buffer_store_dwordx4 v[16:19], v8, s[{R_WS}:{R_WS+3}], s{S_T1} offen offset:256 sc0 sc1")
        a(f"buffer_store_dword v20, v9, s[{R_WS}:{R_WS+3}], s{S_T2} offen sc0 sc1")
        a(f"s_cmp_eq_u32 s{S_STG}, 0", "s_cbranch_scc1 L_oproj")
        self.coop_load(4, "l")
        self.dump_stamps()
        a("s_endpgm")

    def fallback(self):
        a, o = self.a, self.o
        a.label("L_fallback")
        a(f"s_cmp_eq_u32 s{S_STG}, 1", "s_cbranch_scc1 L_fb1", "s_barrier", f"s_mov_b32 s{S_BAR}, -1", "L_fb1:")
        a(f"v_mov_b32 v{QR+1}, 0", f"v_mov_b32 v144, v{V_AK}", f"v_mov_b32 v145, v{V_AR}", "v_mov_b32 v146, 0xff800000", "v_mov_b32 v147, 0xff800000",
          "v_mov_b32 v151, 0x3f803f80", f"s_mov_b32 s{S_CNT}, 32", "L_fbl:",
          "ds_read_b32 v150, v145", "ds_read_b128 v[152:155], v144", "ds_read_b128 v[156:159], v144 offset:1024",
          f"v_add_u32 v144, {PB}, v144", f"v_add_u32 v145, {PB}, v145", "s_waitcnt lgkmcnt(0)")
        for h in range(2):
            a(B2(160, 150, QR, h), "s_nop 15", "s_nop 1", K16(160, 152 + 4 * h, QM[0]), K16(176, 152 + 4 * h, QM[1]), "s_nop 11")
            for j in range(8):
                a(f"v_max3_f32 v146, v146, v{160+2*j}, v{161+2*j}", f"v_max3_f32 v147, v147, v{176+2*j}, v{177+2*j}")
        a(f"s_sub_u32 s{S_CNT}, s{S_CNT}, 1", f"s_cmp_lg_u32 s{S_CNT}, 0", "s_cbranch_scc1 L_fbl",
          "s_nop 0", "v_permlane32_swap_b32 v146, v147", "s_nop 1", "v_max_f32 v146, v146, v147", "v_sub_f32 v146, 0, v146",
          "v_cvt_pk_bf16_f32 v147, v146, 0", "v_lshlrev_b32 v148, 16, v147", "v_sub_f32 v148, v146, v148", f"v_cvt_pk_bf16_f32 v{QR+1}, v146, v148",
          "s_branch L_fbdone")

    def oproj(self):
        a, o = self.a, self.o
        a.label("L_oproj")
        if o['prio'] == 2:
            a("s_setprio 0")
        WF, ACC, OB = 148, 112, [8, 56]
        for tp in range(4):
            a(f"s_xor_b32 s{S_T0}, s{S_WAVE}, {tp}", f"s_lshl_b32 s{S_T0}, s{S_T0}, 10", f"v_add_u32 v{104+tp}, s{S_T0}, v1",
              f"v_lshlrev_b32 v{108+tp}, 2, v0", f"v_add_u32 v{108+tp}, s{S_T0}, v{108+tp}")
        a(f"s_mov_b32 s{S_CNT}, {SPIN}", f"s_lshl_b32 s{S_T0}, s{S_B}, 7", "v_mov_b32 v11, 0")
        self.stamp(1, 1)
        a("L_poll2:", f"buffer_load_dword v7, v11, s[{R_DBG}:{R_DBG+3}], s{S_T0} offen offset:4 sc0 sc1", f"s_sub_u32 s{S_CNT}, s{S_CNT}, 1",
          "s_cbranch_scc1 L_poll2d", "s_waitcnt vmcnt(0)", "v_cmp_gt_u32 vcc, 0x80, v7", "s_cbranch_vccz L_poll2d", "s_sleep 16", "s_branch L_poll2", "L_poll2d:")

        def wo_loads(stg):
            a(f"s_lshl_b32 s{S_T0}, s{S_HG}, 1", f"s_add_u32 s{S_T0}, s{S_T0}, {stg}", f"s_mul_i32 s{S_T0}, s{S_T0}, {81*1024}", f"s_add_u32 s{S_T0}, s{S_T0}, {WS_WOT}",
              f"s_lshl_b32 s{S_T1}, s{S_WAVE}, 11", f"s_add_u32 s{S_T1}, s{S_T1}, s{S_T0}", f"s_add_u32 s{S_T0}, s{S_T0}, 8192")
            for ks in range(9):
                a(f"buffer_load_dwordx4 {vr(WF+12*ks,4)}, v1, s[{R_WS}:{R_WS+3}], s{S_T1} offen sc1",
                  f"buffer_load_dwordx4 {vr(WF+12*ks+4,4)}, v1, s[{R_WS}:{R_WS+3}], s{S_T1} offen offset:1024 sc1",
                  f"buffer_load_dwordx4 {vr(WF+12*ks+8,4)}, v1, s[{R_WS}:{R_WS+3}], s{S_T0} offen sc1")
                if ks < 8:
                    a(f"s_add_u32 s{S_T1}, s{S_T1}, 9216", f"s_add_u32 s{S_T0}, s{S_T0}, 9216")

        def mms(ks, ob, first):
            w = WF + 12 * ks
            x = []
            for tp in range(4):
                c = "0" if first else None
                x.append([M16(ACC + 4 * tp, w, ob + 4 * tp, c), M16(ACC + 16 + 4 * tp, w + 4, ob + 4 * tp, c)] + ([M16(ACC + 32, w + 8, ob, c)] if tp == 0 else []))
            return x

        def loads(bt):
            buf = OB[bt % 2]
            x = []
            for k in range(3):
                ks = 3 * bt + k
                x.append(f"s_add_u32 s{S_T0}, s{S_OEXB}, {ks*4096}")
                for tp in range(4):
                    r = buf + 16 * k + 4 * tp
                    if ks < 8:
                        x.append(f"buffer_load_dwordx4 {vr(r,4)}, v{104+tp}, s[{R_WS}:{R_WS+3}], s{S_T0} offen sc0 sc1")
                    else:
                        x += [f"buffer_load_dword v{r+j}, v{108+tp}, s[{R_WS}:{R_WS+3}], s{S_T0} offen offset:{j*256} sc0 sc1" for j in range(4)]
            return x
        wo_loads(0)
        a("v_lshlrev_b32 v6, 6, v0", f"s_add_u32 s{S_T0}, s{S_OEXB}, 32768", f"s_mov_b32 s{S_CNT}, {SPIN}",
          "L_pre:", f"buffer_load_dword v7, v6, s[{R_WS}:{R_WS+3}], s{S_T0} offen sc0 sc1", f"s_sub_u32 s{S_CNT}, s{S_CNT}, 1",
          "s_cbranch_scc1 L_pred", "s_waitcnt vmcnt(0)", "v_cmp_eq_u32 vcc, -1, v7", "s_cbranch_vccz L_pred", "s_sleep 8", "s_branch L_pre", "L_pred:")
        self.stamp(2, 1)
        a(loads(0), loads(1))
        for bt in range(3):
            buf = OB[bt % 2]
            a(f"s_waitcnt vmcnt({ {0: 12, 1: 24, 2: 0}[bt] })", f"L_chk{bt}:", f"v_max3_u32 v6, v{buf}, v{buf+1}, v{buf+2}", f"v_max3_u32 v7, v{buf+3}, v{buf+4}, v{buf+5}")
            for j in range(6, 48, 4):
                if j + 3 < 48:
                    a(f"v_max3_u32 v6, v6, v{buf+j}, v{buf+j+1}", f"v_max3_u32 v7, v7, v{buf+j+2}, v{buf+j+3}")
                else:
                    a(f"v_max3_u32 v6, v6, v{buf+j}, v{buf+j+1}")
            a("v_max_u32 v6, v6, v7", "v_cmp_eq_u32 vcc, -1, v6", f"s_cbranch_vccz L_ok{bt}",
              f"s_sub_u32 s{S_CNT}, s{S_CNT}, 1", f"s_cbranch_scc1 L_ok{bt}", "s_waitcnt vmcnt(0)", loads(bt), "s_waitcnt vmcnt(0)", f"s_branch L_chk{bt}", f"L_ok{bt}:")
            for k in range(3):
                a(mms(3 * bt + k, buf + 16 * k, bt == 0 and k == 0))
            if bt == 0:
                a(loads(2))
        self.stamp(3, 1)
        wo_loads(1)
        for tp in range(4):
            a(f"v_add_u32 v{104+tp}, {L_KV}, v{104+tp}", f"v_add_u32 v{108+tp}, {L_KV+32768}, v{108+tp}")
        a("s_waitcnt vmcnt(0)")
        if o['prio']:
            a("s_setprio 2")
        self.stamp(6, 1)
        self.coop_load(5, "e")
        self.stamp(4, o['set'] & 1)
        RB = [8, 24, 40]

        def lrd(ks):
            r = RB[ks % 3]
            if ks < 8:
                return [[f"ds_read_b128 {vr(r+4*tp,4)}, v{104+tp} offset:{ks*4096}"] for tp in range(4)]
            return [[f"ds_read2st64_b32 {vr(r+4*tp,2)}, v{108+tp} offset0:0 offset1:1", f"ds_read2st64_b32 {vr(r+4*tp+2,2)}, v{108+tp} offset0:2 offset1:3"] for tp in range(4)]
        a(lrd(0), lrd(1))
        order = []
        for ks in (0, 1):
            order += [(ks, tp, len(lrd(ks)[tp])) for tp in range(4)]
        for ks in range(9):
            m = mms(ks, RB[ks % 3], False)
            nx = lrd(ks + 2) if ks + 2 < 9 else None
            for tp in range(4):
                assert order[0][:2] == (ks, tp)
                order.pop(0)
                a(f"s_waitcnt lgkmcnt({sum(x[2] for x in order)})", m[tp])
                if nx:
                    a(nx[tp])
                    order.append((ks + 2, tp, len(nx[tp])))
        a(f"s_mul_i32 s{S_T0}, s{S_PG}, {64*2304}", f"s_mul_i32 s{S_T1}, s{S_B}, 1152", f"s_add_u32 s{S_T0}, s{S_T0}, s{S_T1}", f"s_mul_i32 s{S_T1}, s{S_HG}, 288",
          f"s_add_u32 s{S_T0}, s{S_T0}, s{S_T1}", f"s_lshl_b32 s{S_T1}, s{S_WAVE}, 6", f"s_add_u32 s{S_T1}, s{S_T1}, s{S_T0}",
          "v_and_b32 v8, 15, v0", "v_mul_u32_u24 v8, 0x900, v8", "v_lshrrev_b32 v9, 4, v0", "v_lshl_add_u32 v10, v9, 3, v8", "v_lshl_add_u32 v8, v9, 4, v8")
        for tp in range(4):
            r = 12 + 4 * tp
            a(f"s_xor_b32 s{S_T2}, s{S_WAVE}, {tp}", f"s_mul_i32 s{S_T2}, s{S_T2}, {16*2304}", f"s_add_u32 s{S_T3}, s{S_T2}, s{S_T1}",
              f"v_cvt_pk_bf16_f32 v{r}, v{ACC+4*tp}, v{ACC+4*tp+1}", f"v_cvt_pk_bf16_f32 v{r+1}, v{ACC+4*tp+2}, v{ACC+4*tp+3}",
              f"v_cvt_pk_bf16_f32 v{r+2}, v{ACC+16+4*tp}, v{ACC+16+4*tp+1}", f"v_cvt_pk_bf16_f32 v{r+3}, v{ACC+16+4*tp+2}, v{ACC+16+4*tp+3}",
              f"buffer_store_dwordx4 {vr(r,4)}, v8, s[{R_OUT}:{R_OUT+3}], s{S_T3} offen")
            if tp == 0:
                a(f"s_add_u32 s{S_T2}, s{S_T2}, s{S_T0}", f"v_cvt_pk_bf16_f32 v28, v{ACC+32}, v{ACC+33}", f"v_cvt_pk_bf16_f32 v29, v{ACC+34}, v{ACC+35}",
                  f"buffer_store_dwordx2 v[28:29], v10, s[{R_OUT}:{R_OUT+3}], s{S_T2} offen offset:256")
        if o['stamps'] or o['dbgspan']:
            a("s_waitcnt vmcnt(0)")
            self.stamp(5, o['set'] & 1)
        self.dump_stamps()
        a("L_end:", "s_endpgm")

    def build(self):
        self.start()
        self.early_front()
        self.late_front()
        self.attention()
        self.oproj()
        self.fallback()
        hdr = ("; fused MQA attention x2 (QKV proj + softmax attention + out proj), one launch, 1 workgroup per CU\n"
               f"; @launch grid=(256,1,1) block=(512,1,1) lds={LDS_BYTES}\n"
               '.amdgcn_target "amdgcn-amd-amdhsa--gfx950"\n.text\n'
               f".globl {NAME}\n.p2align 8\n.type {NAME},@function\n{NAME}:\n")
        body = "".join((x + "\n") if x.endswith(":") else ("    " + x + "\n") for x in self.a.L)
        t = table()
        tab = ".p2align 6\n.type L_table,@object\nL_table:\n" + "".join("    .long " + ", ".join(str(int(v)) for v in row) + "\n" for row in t)
        tab += f".fill (1024 - ((. - {NAME}) & 1023)) & 1023, 1, 0\nL_codeend:\n.size L_table, L_codeend-L_table\n"
        kd = f""".section .rodata,"a"
.p2align 6
.amdhsa_kernel {NAME}
  .amdhsa_next_free_vgpr 256
  .amdhsa_next_free_sgpr 102
  .amdhsa_accum_offset 256
  .amdhsa_group_segment_fixed_size 0
  .amdhsa_kernarg_size 104
  .amdhsa_user_sgpr_count 2
  .amdhsa_user_sgpr_kernarg_segment_ptr 1
  .amdhsa_system_sgpr_workgroup_id_x 1
.end_amdhsa_kernel
"""
        return hdr + body + tab + kd


if __name__ == "__main__":
    out = sys.argv[1]
    opt = {}
    for kv in sys.argv[2:]:
        k, v = kv.split("=")
        opt[k] = int(v)
    g = Gen(opt)
    open(out, "w").write(g.build())
```

```python
import sys, math, struct
import numpy as np

NAME = "concat_heads__grouped_kv_mqa__grouped_kv_mqa__prompt_kernel"

VG = 608
PB = 2048 + 256 + 4 * VG
KVB = 32 * PB
L_KV = 12288
L_HAND = 0
L_KMAX = 10240
L_FLAG = 10256
L_W = 62464
L_X = 90112
SLOT = 4608
L_LAST = 9 * 4608
LDS_BYTES = 163840
WS_KV = 0
WS_KN = KVB
WS_WOT = 0x28000
WS_OEX = 0xD0000
WS_BR = 0x400000
WS_STAMP = 0x1000000
OEX_G = 73728
OEX_S = 36864
CSCALE = math.log2(math.e) / math.sqrt(18.0)
TSAFE = 40.0
SPIN = 200000


def f2u(x):
    return struct.unpack("<I", struct.pack("<f", x))[0]


def slot_addr(ks):
    if ks < 13:
        return ks * SLOT
    if ks < 35:
        return L_W + (ks - 13) * SLOT
    return L_LAST


G0 = [0, 1, 2, 3, 12, 13, 14, 15, 20]
G1 = [4, 5, 6, 7, 8, 9, 10, 11, 16]
POS_ONES, POS_ZERO = 22, 23


def vpos(h, row):
    if row in G0:
        return [list(range(0, 9)), [18, 19, 20, 21, 24, 25, 26, 27, 28]][h][G0.index(row)]
    if row in G1:
        return [list(range(9, 18)), list(range(29, 38))][h][G1.index(row)]
    if row in (17, 21):
        return POS_ONES
    return POS_ZERO


def table():
    t = np.zeros((64, 4), dtype=np.uint32)
    for l in range(64):
        t[l, 0] = L_KV + 2304 + vpos(l >> 5, l & 31) * 16
        n, g = l & 15, l >> 4
        t[l, 1] = vpos(g >> 1, n) * 16 + (g & 1) * 8
        p = {0: vpos(g >> 1, 16), 1: vpos(g >> 1, 20), 2: POS_ONES, 3: POS_ZERO}.get(n, POS_ZERO)
        t[l, 2] = p * 16 + (g & 1) * 8
    return t


def vr(a, n=1):
    return f"v[{a}:{a+n-1}]" if n > 1 else f"v{a}"


def sr(a, n=1):
    return f"s[{a}:{a+n-1}]" if n > 1 else f"s{a}"


S_WAVE = 3
R_X, R_WQ, R_W, R_WO, R_WS, R_OUT, R_DBG = 44, 48, 52, 56, 60, 64, 68
S_B, S_HG, S_GI, S_PG, S_I = 4, 5, 6, 7, 8
S_T0, S_T1, S_T2, S_T3, S_T4, S_T5 = 9, 10, 11, 12, 13, 14
S_CNT = 15
S_M0A, S_M0R, S_ROW = 72, 73, 74
S_BAR = 75
S_PBI, S_HQ = 76, 77
S_EX = 42
S_KVS = 80
S_OEX = 81
S_STG = 82
S_OEXB = 78
S_XI, S_XB, S_XS, S_XM = 83, 100, 101, 79
S_DI, S_DS, S_LI, S_LS = 72, 73, 74, 75
S_ST = 84

V_IDX, V_AK, V_AR, V_AV = 2, 3, 4, 5
QM = [8, 12]
QR = 16
KR = [18, 20]
O = [24, 40]
KM = [56, 60]
VV = [[64, 68], [72, 76]]
S = [80, 112]


class A:
    def __init__(self):
        self.L = []

    def __call__(self, *xs):
        for x in xs:
            if isinstance(x, (list, tuple)):
                self(*x)
            else:
                self.L.append(x)

    def label(self, n):
        self.L.append(n + ":")


def K16(d, a, b, c=None):
    return f"v_mfma_f32_32x32x16_bf16 {vr(d,16)}, {vr(a,4)}, {vr(b,4)}, {c if c else vr(d,16)}"


def M16(d, a, b, c=None):
    return f"v_mfma_f32_16x16x32_bf16 {vr(d,4)}, {vr(a,4)}, {vr(b,4)}, {c if c else vr(d,4)}"


def B2(d, a, b, abid):
    return f"v_mfma_f32_32x32x4_2b_bf16 {vr(d,32)}, {vr(a,2)}, {vr(b,2)}, 0 cbsz:1 abid:{abid}"


def K8Z(d, z):
    return f"v_mfma_f32_32x32x8_bf16 {vr(d,16)}, {vr(z,2)}, {vr(z,2)}, 0"


def SM(d, a, b):
    return f"v_smfmac_f32_32x32x32_bf16 {vr(d,16)}, {vr(a,4)}, {vr(b,8)}, v{V_IDX}"


def EX(r, n):
    return [f"v_exp_f32 v{r+i}, v{r+i}" for i in range(n)]


def srd(a, dst, lo, hi, size):
    a(f"s_mov_b32 s{dst}, {lo}", f"s_mov_b32 s{dst+1}, {hi}", f"s_mov_b32 s{dst+2}, {size}", f"s_mov_b32 s{dst+3}, 0x20000")


class Gen:
    def __init__(self, opt):
        self.o = dict(unp=4, barit=1, stamps=False, force_fb=False, prefetch=True, prio=True, dbgspan=0, ampa=0, ampb=0, ampk=0, set=0, nb=5, kv1=6, win=3, sb=11)
        self.o.update(opt)
        self.a = A()
        self.nst = 0

    def stamp(self, i, st=0):
        if i not in (0, 7) and st != self.o['set']:
            return
        if self.o['stamps'] or self.o['dbgspan'] or self.o['ampk']:
            self.a(f"{'s_memtime' if self.o['stamps']==2 else 's_memrealtime'} s[{S_ST+2*i}:{S_ST+2*i+1}]")

    def dump_stamps(self):
        if self.o['dbgspan']:
            a = self.a
            n = self.nst = self.nst + 1
            a("s_waitcnt lgkmcnt(0)", f"s_cmp_lg_u32 s{S_I}, 0", f"s_cbranch_scc1 L_nodump{n}", "s_mov_b64 exec, 1", "v_mov_b32 v8, 0", f"s_not_b32 s{S_T0}, s{S_ST}", f"v_mov_b32 v9, s{S_T0}",
              f"buffer_atomic_umax v9, v8, s[{R_DBG}:{R_DBG+3}], 0 offen offset:8 sc1")
            for k, i in enumerate((0, 1, 3, 6, 7, 5) if n == 2 else (1, 2, 4, 5, 6, 7)):
                a(f"v_mov_b32 v{10+k}, s{S_ST+2*i}", f"buffer_atomic_umax v{10+k}, v8, s[{R_DBG}:{R_DBG+3}], 0 offen offset:{(12 if n == 2 else 36)+4*k} sc1")
            a(f"L_nodump{n}:")
            return
        if not self.o['stamps']:
            return
        a = self.a
        a("s_waitcnt lgkmcnt(0)", f"s_lshl_b32 s{S_T0}, s2, 3", f"s_add_u32 s{S_T0}, s{S_T0}, s{S_WAVE}", f"s_lshl_b32 s{S_T0}, s{S_T0}, 6",
          f"s_mul_i32 s{S_T1}, s{S_B}, {WS_BR}", f"s_sub_u32 s{S_T0}, s{S_T0}, s{S_T1}", f"s_add_u32 s{S_T0}, s{S_T0}, {WS_STAMP}",
          f"s_mov_b32 s{R_WS+2}, 0x2000000", "v_mov_b32 v8, 0")
        for i in range(4):
            for k in range(4):
                a(f"v_mov_b32 v{12+k}, s{S_ST+4*i+k}")
            a(f"buffer_store_dwordx4 v[12:15], v8, s[{R_WS}:{R_WS+3}], s{S_T0} offen offset:{16*i}", "s_nop 1")

    def kv_dma(self, p0, n):
        a = self.a
        for k in range(n):
            a(f"s_add_u32 m0, s{S_M0A}, {L_KV + (p0 + 4*k)*1024}", f"s_add_u32 s{S_T0}, s{S_KVS}, 4096",
              f"buffer_load_dwordx4 v1, s[{R_WS}:{R_WS+3}], s{S_KVS} offen sc1 lds",
              f"s_cmp_ge_u32 s{S_T0}, {KVB}", f"s_cselect_b32 s{S_T1}, {KVB}, 0", f"s_sub_u32 s{S_KVS}, s{S_T0}, s{S_T1}")

    def row_max16(self, v):
        a = self.a
        for k in (8, 4, 2, 1):
            a("s_nop 1", f"v_max_f32_dpp v{v}, v{v}, v{v} row_ror:{k} row_mask:0xf bank_mask:0xf")

    def rest_srds(self):
        a = self.a
        a(f"s_mov_b32 s{R_WO+2}, 663552", f"s_mov_b32 s{R_WO+3}, 0x20000",
          f"s_mul_i32 s{S_T0}, s{S_B}, {WS_BR}", f"s_add_u32 s{R_WS}, s40, s{S_T0}", f"s_addc_u32 s{R_WS+1}, s41, 0",
          f"s_mov_b32 s{R_WS+2}, {WS_OEX + 32*OEX_G}", f"s_mov_b32 s{R_WS+3}, 0x20000")
        srd(a, R_OUT, "s36", "s37", 4718592)
        srd(a, R_DBG, "s38", "s39", 256)

    def norm2(self, x, y):
        a = self.a
        for j in range(4):
            for (qm, qr, dst, tmp) in (x, y):
                a(f"v_dot2_f32_bf16 v{dst}, v{qm+j}, v{qm+j}, {'0' if j == 0 else 'v%d' % dst}",
                  f"v_dot2_f32_bf16 v{tmp}, v{qm+4+j}, v{qm+4+j}, {'0' if j == 0 else 'v%d' % tmp}")
        a("s_nop 0", f"v_permlane32_swap_b32 v{x[2]}, v{x[3]}", "s_nop 0", f"v_permlane32_swap_b32 v{y[2]}, v{y[3]}",
          f"v_add_f32 v{x[2]}, v{x[2]}, v{x[3]}", f"v_add_f32 v{y[2]}, v{y[2]}, v{y[3]}",
          f"v_dot2_f32_bf16 v{x[2]}, v{x[1]}, v{x[1]}, v{x[2]}", f"v_dot2_f32_bf16 v{y[2]}, v{y[1]}, v{y[1]}, v{y[2]}", "s_nop 1",
          f"v_sqrt_f32 v{x[2]}, v{x[2]}", f"v_sqrt_f32 v{y[2]}, v{y[2]}")

    def init_main_regs(self):
        a = self.a
        a(f"v_mov_b32 v{KR[0]+1}, 0x3f803f80", f"v_mov_b32 v{KR[1]+1}, 0x3f803f80")
        for r in range(O[0], O[0] + 32):
            a(f"v_mov_b32 v{r}, 0")
        for r in range(S[1] + 24, S[1] + 32):
            a(f"v_mov_b32 v{r}, 0")
        for r in range(VV[1][1], VV[1][1] + 4):
            a(f"v_mov_b32 v{r}, 0")

    def ldKm(self, kb):
        return [f"ds_read_b128 {vr(KM[kb%2],4)}, v{V_AK} offset:{(kb//2)*PB+(kb%2)*1024}"]

    def ldKr(self, p):
        return [f"ds_read_b32 v{KR[p%2]}, v{V_AR} offset:{p*PB}"]

    def ldV(self, kb):
        return [f"ds_read_b128 {vr(VV[kb%2][i],4)}, v{V_AV} offset:{(kb//2)*PB+((kb%2)*2+i)*VG}" for i in range(2)]

    def qk(self, dst, kb):
        return [B2(dst, KR[(kb//2) % 2], QR, kb % 2), K16(dst, KM[kb % 2], QM[0]), K16(dst + 16, KM[kb % 2], QM[1])]

    def main_prologue_loads(self):
        self.a(self.ldKr(0), self.ldKm(0), self.ldKm(1), self.ldKr(1), self.ldV(0))

    def start(self):
        a, o = self.a, self.o
        a("s_cmp_ge_u32 s2, 256", "s_cbranch_scc1 L_end")
        a("s_load_dwordx16 s[16:31], s[0:1], 0", "s_load_dwordx8 s[32:39], s[0:1], 64", "s_load_dwordx2 s[40:41], s[0:1], 96")
        self.stamp(0)
        a("s_getpc_b64 s[42:43]", "L_pc:")
        a("v_lshrrev_b32 v1, 6, v0", "v_and_b32 v0, 63, v0", f"v_readfirstlane_b32 s{S_WAVE}, v1", "v_lshlrev_b32 v1, 4, v0",
          f"s_lshr_b32 s{S_T2}, s2, 3", f"s_and_b32 s{S_B}, s2, 1", f"s_and_b32 s{S_HG}, s{S_T2}, 3", f"s_lshr_b32 s{S_GI}, s2, 5")
        if o['prefetch']:
            a(f"s_cmp_lg_u32 s{S_WAVE}, 7", "s_cbranch_scc1 L_nopf", f"s_cmp_ge_u32 s{S_T2}, (L_codeend-{NAME})/1024", "s_cbranch_scc1 L_nopf",
              f"s_lshl_b32 s{S_T2}, s{S_T2}, 10", f"s_sub_u32 s{S_T0}, s42, L_pc-{NAME}", f"s_subb_u32 s{S_T1}, s43, 0",
              f"s_add_u32 s{S_T0}, s{S_T0}, s{S_T2}", f"s_addc_u32 s{S_T1}, s{S_T1}, 0",
              f"v_mov_b32 v7, s{S_T1}", f"v_add_co_u32 v6, vcc, s{S_T0}, v1", "s_nop 1", "v_addc_co_u32 v7, vcc, 0, v7, vcc", "s_nop 0",
              "global_load_dwordx4 v[24:27], v[6:7], off", "L_nopf:")
        a(f"s_bfe_u32 s{S_PG}, s2, 0x20001", f"s_lshl_b32 s{S_PG}, s{S_PG}, 3", f"s_add_u32 s{S_PG}, s{S_PG}, s{S_GI}",
          f"s_and_b32 s{S_I}, s{S_WAVE}, 3", f"s_and_b32 s{S_PBI}, s{S_WAVE}, 1", f"s_lshr_b32 s{S_HQ}, s{S_I}, 1")
        a("v_lshrrev_b32 v8, 3, v0", "v_lshrrev_b32 v9, 4, v0", f"s_lshl_b32 s{S_T0}, s{S_PBI}, 2", f"v_or_b32 v9, s{S_T0}, v9",
          "v_and_b32 v10, 7, v0", "v_xor_b32 v9, v9, v10", "v_lshlrev_b32 v9, 4, v9", "v_mov_b32 v10, 0x480", "v_mad_u32_u24 v8, v8, v10, v9",
          f"s_lshl_b32 s{S_T0}, s{S_I}, 6", f"v_add_u32 v9, s{S_T0}, v0", "v_mul_u32_u24 v10, 0xab, v9", "v_lshrrev_b32 v10, 9, v10", "v_mul_u32_u24 v10, 12, v10",
          "v_lshlrev_b32 v9, 4, v9", "v_sub_u32 v9, v9, v10")
        a(f"s_and_b32 s{S_T4}, s{S_HG}, 2", f"s_lshl_b32 s{S_T4}, s{S_T4}, 1", f"s_add_u32 s{S_T4}, s{S_T4}, s{S_I}",
          f"s_lshl_b32 s{S_T5}, s{S_PG}, 3", f"s_add_u32 s{S_XB}, s{S_T5}, s{S_T4}", f"s_mul_i32 s{S_XB}, s{S_XB}, {8*1152}",
          f"s_mul_i32 s{S_XM}, s{S_T4}, 9216", f"s_add_u32 s{S_XM}, s{S_XM}, {L_X}", f"s_lshl_b32 s{S_T0}, s{S_I}, 10", f"s_add_u32 s{S_T0}, s{S_T0}, {L_W}",
          f"s_lshr_b32 s{S_T1}, s{S_HG}, 1", f"s_movk_i32 s{S_DI}, 3072", f"s_movk_i32 s{S_DS}, 2304",
          f"s_cmp_lt_u32 s{S_WAVE}, 4", "s_cselect_b64 vcc, -1, 0", f"s_cselect_b32 s{S_XB}, s{S_XB}, 0", f"s_cselect_b32 s{S_XM}, s{S_XM}, s{S_T0}",
          f"s_cselect_b32 s{S_T1}, s{S_HG}, s{S_T1}", f"s_cselect_b32 s{S_DI}, 1024, s{S_DI}", f"s_cselect_b32 s{S_DS}, 128, s{S_DS}",
          "v_cndmask_b32 v9, v9, v8, vcc")
        self.dma9_setup(S_T1)
        a("s_waitcnt lgkmcnt(0)", f"s_cmp_eq_u32 s{S_B}, 0", f"s_cselect_b64 s[{R_X}:{R_X+1}], s[16:17], s[26:27]",
          f"s_cselect_b64 s[20:21], s[20:21], s[30:31]", f"s_cselect_b64 s[22:23], s[22:23], s[32:33]",
          f"s_cselect_b64 s[{R_WQ}:{R_WQ+1}], s[18:19], s[28:29]", f"s_cselect_b64 s[{R_WO}:{R_WO+1}], s[24:25], s[34:35]",
          f"s_bitcmp0_b32 s{S_HG}, 0", f"s_cselect_b64 s[{R_W}:{R_W+1}], s[20:21], s[22:23]", f"s_mov_b32 s{R_X+2}, 2359296", f"s_movk_i32 s{R_W+2}, 20736",
          f"s_cmp_lt_u32 s{S_WAVE}, 4", f"s_cselect_b64 s[{R_W}:{R_W+1}], s[{R_X}:{R_X+1}], s[{R_W}:{R_W+1}]", f"s_cselect_b32 s{R_W+2}, s{R_X+2}, s{R_W+2}",
          f"s_mov_b32 s{R_W+3}, 0x20000", f"s_mov_b32 s{R_X+3}, 0x20000")
        self.stamp(1, 2)
        a(f"s_cmp_eq_u32 s{S_WAVE}, 7", "s_cbranch_scc1 L_late")
        self.dma9(R_W, 9)
        a(f"s_cmp_ge_u32 s{S_WAVE}, 4", "s_cbranch_scc1 L_late")

    def dma9_setup(self, sel):
        self.a(f"s_bitcmp1_b32 s{sel}, 0", f"s_cselect_b32 s{S_XI}, 5, 0",
               f"s_add_u32 s{S_XS}, s{S_XI}, s{S_GI}", f"s_cmp_ge_u32 s{S_XS}, 9", f"s_cselect_b32 s{S_T0}, 9, 0", f"s_sub_u32 s{S_XS}, s{S_XS}, s{S_T0}",
               f"s_mul_i32 s{S_XS}, s{S_XS}, s{S_DS}", f"s_mul_i32 s{S_XI}, s{S_XI}, s{S_DI}", f"s_mul_i32 s{S_LI}, s{S_DI}, 9", f"s_mul_i32 s{S_LS}, s{S_DS}, 9")

    def dma9(self, srd_, v):
        for i in range(9):
            self.a(f"s_add_u32 m0, s{S_XM}, s{S_XI}", f"s_add_u32 s{S_T3}, s{S_XB}, s{S_XS}",
                   f"buffer_load_dwordx4 v{v}, s[{srd_}:{srd_+3}], s{S_T3} offen lds")
            if i < 8:
                self.a(f"s_add_u32 s{S_XS}, s{S_XS}, s{S_DS}", f"s_cmp_eq_u32 s{S_XS}, s{S_LS}", f"s_cselect_b32 s{S_XS}, 0, s{S_XS}",
                       f"s_add_u32 s{S_XI}, s{S_XI}, s{S_DI}", f"s_cmp_eq_u32 s{S_XI}, s{S_LI}", f"s_cselect_b32 s{S_XI}, 0, s{S_XI}")

    def table_load(self):
        self.a(f"s_add_u32 s{S_T0}, s42, L_table-L_pc", f"s_addc_u32 s{S_T1}, s43, 0",
               f"v_mov_b32 v7, s{S_T1}", f"v_add_co_u32 v6, vcc, s{S_T0}, v1", "s_nop 1", "v_addc_co_u32 v7, vcc, 0, v7, vcc", "s_nop 0",
               "global_load_dwordx4 v[20:23], v[6:7], off")

    def wq_setup(self, d):
        self.a(f"s_mov_b32 s{R_WQ+2}, 663552", f"s_mov_b32 s{R_WQ+3}, 0x20000",
               "v_lshrrev_b32 v13, 4, v0", "v_and_b32 v14, 15, v0", "v_lshlrev_b32 v15, 2, v13", "v_xor_b32 v14, v14, v15",
               "v_lshrrev_b32 v15, 1, v14", "v_mul_u32_u24 v15, 36, v15", "v_and_b32 v14, 1, v14", "v_lshl_add_u32 v15, v14, 4, v15",
               "v_mul_u32_u24 v13, 0x480, v13", f"s_mul_i32 s{S_T0}, s{S_I}, {4*1152}", f"s_mul_i32 s{S_T1}, s{S_HG}, 288",
               f"s_add_u32 s{S_T0}, s{S_T0}, s{S_T1}", f"v_add3_u32 v10, v13, v15, s{S_T0}", f"v_add_u32 v11, {16*1152}, v10",
               "v_and_b32 v13, 4, v0", "v_bfe_u32 v14, v0, 1, 1", "v_or_b32 v13, v13, v14", "v_and_b32 v14, 1, v0", "v_lshl_add_u32 v13, v14, 1, v13",
               "v_mul_u32_u24 v13, 36, v13", "v_lshrrev_b32 v14, 3, v0", "v_mul_u32_u24 v14, 0x480, v14",
               f"s_mul_i32 s{S_T0}, s{S_I}, {8*1152}", f"s_add_u32 s{S_T0}, s{S_T0}, s{S_T1}", f"s_add_u32 s{S_T0}, s{S_T0}, 32",
               f"v_add3_u32 v12, v13, v14, s{S_T0}",
               f"s_lshl_b32 s{S_M0A}, s{S_I}, 10", f"s_lshl_b32 s{S_M0R}, s{S_PBI}, 8", f"s_add_u32 s{S_M0R}, s{S_M0R}, 4096",
               f"s_mul_i32 s{S_ROW}, s{S_GI}, {64*1152}")
        if d:
            self.a(f"s_add_u32 s{S_ROW}, s{S_ROW}, {32*d*1152}", f"s_cmp_ge_u32 s{S_ROW}, {576*1152}",
                   f"s_cselect_b32 s{S_T0}, {576*1152}, 0", f"s_sub_u32 s{S_ROW}, s{S_ROW}, s{S_T0}")

    def wq_dma(self, d):
        s0, s1 = slot_addr(2 * d), slot_addr(2 * d + 1)
        ld = lambda r, x: f"buffer_load_dword{x} v{r}, s[{R_WQ}:{R_WQ+3}], s{S_ROW} offen lds"
        self.a(f"s_add_u32 m0, s{S_M0A}, {s0}", f"s_mul_i32 s{S_T1}, s{S_HQ}, {s1-s0}", ld(10, 'x4'),
               f"s_add_u32 m0, s{S_M0A}, {s1}", f"s_add_u32 s{S_T1}, s{S_T1}, s{S_M0R}", ld(11, 'x4'),
               f"s_add_u32 m0, s{S_T1}, {s0}", f"s_add_u32 s{S_T0}, s{S_ROW}, {32*1152}", ld(12, ''),
               f"s_cmp_ge_u32 s{S_T0}, {576*1152}", f"s_cselect_b32 s{S_T1}, {576*1152}, 0", f"s_sub_u32 s{S_ROW}, s{S_T0}, s{S_T1}")

    GROUPS = [(4, 3), (7, 9), (10, 15), (13, 21), (15, 27), (17, 31)]

    def early_front(self):
        a, o = self.a, self.o
        self.stamp(2, 2)
        self.table_load()
        self.wq_setup(0)
        self.wq_dma(0)
        a("s_waitcnt vmcnt(4)")
        self.stamp(3, 2)
        a("s_barrier")
        self.wq_dma(1)
        self.wq_dma(2)
        self.rest_srds()
        a("v_and_b32 v16, 31, v0", "v_lshrrev_b32 v13, 5, v0", "v_bfe_u32 v14, v0, 1, 3", "v_xor_b32 v13, v13, v14", "v_lshlrev_b32 v13, 4, v13",
          "v_and_b32 v14, 7, v0", "v_lshl_add_u32 v13, v14, 7, v13", "v_lshrrev_b32 v16, 3, v16", "v_mul_u32_u24 v16, 0x2400, v16",
          f"s_mul_i32 s{S_T0}, s{S_PBI}, {4*9216}", f"s_add_u32 s{S_T0}, s{S_T0}, {L_X}", f"v_add3_u32 v104, v16, v13, s{S_T0}",
          "v_xor_b32 v105, 32, v104", "v_xor_b32 v106, 64, v104", "v_xor_b32 v107, 0x60, v104")
        a("v_bfe_u32 v18, v0, 2, 2",
          "v_and_b32 v13, 3, v0",
          "v_bfe_u32 v14, v0, 4, 1",
          "v_lshrrev_b32 v15, 5, v0",
          "v_lshl_add_u32 v15, v15, 3, v18",
          f"s_lshl_b32 s{S_T0}, s{S_HQ}, 3",
          "v_lshrrev_b32 v16, 1, v13", "v_lshl_add_u32 v16, v14, 1, v16", f"v_or_b32 v16, s{S_T0}, v16",
          "v_lshlrev_b32 v17, 2, v18", "v_xor_b32 v16, v16, v17", "v_lshlrev_b32 v16, 4, v16",
          "v_and_b32 v13, 1, v13", "v_lshl_add_u32 v16, v13, 3, v16", "v_lshl_add_u32 v6, v15, 8, v16", "v_xor_b32 v7, 64, v6",
          f"s_lshl_b32 s{S_T0}, s{S_HQ}, 4", f"s_add_u32 s{S_T0}, s{S_T0}, 4096", "v_lshlrev_b32 v13, 3, v13", "v_lshl_add_u32 v13, v15, 5, v13",
          f"v_add_u32 v19, s{S_T0}, v13")
        a(f"s_mul_i32 s{S_T0}, s{S_WAVE}, 2560", f"v_add_u32 v96, s{S_T0}, v1", "v_lshlrev_b32 v97, 3, v0", f"v_add_u32 v97, s{S_T0}, v97",
          f"v_mov_b32 v{V_IDX}, 0xdddddddd", f"v_add_u32 v{V_AK}, {L_KV}, v1", f"v_lshlrev_b32 v{V_AR}, 2, v0", f"v_add_u32 v{V_AR}, {L_KV+2048}, v{V_AR}",
          "v_mov_b32 v102, 0", "v_mov_b32 v103, 0", f"v_mov_b32 v98, {L_KMAX}")
        a("v_mov_b32 v100, 1", "v_mov_b32 v101, 0")
        self.wq_dma(3)
        self.wq_dma(4)
        self.stamp(1)
        self.stamp(4, 2)
        a("s_barrier")
        self.stamp(5, 2)
        XF = 112
        T0, T1, TR = 24, 40, 56
        FB = [72, 84]
        state = dict(base=0)

        def rd(ks):
            x = []
            off = slot_addr(ks) - state['base']
            if off < 0 or off + 1024 > 65535:
                d = slot_addr(ks) - state['base']
                x += [f"v_add_u32 v{r}, {d}, v{r}" if d > 0 else f"v_subrev_u32 v{r}, {-d}, v{r}" for r in (6, 7, 19)]
                state['base'] = slot_addr(ks)
                off = 0
            f = FB[ks & 1]
            return x, [f"ds_read_b64_tr_b16 {vr(f,2)}, v6 offset:{off}", f"ds_read_b64_tr_b16 {vr(f+2,2)}, v6 offset:{off+1024}",
                       f"ds_read_b64_tr_b16 {vr(f+4,2)}, v7 offset:{off}", f"ds_read_b64_tr_b16 {vr(f+6,2)}, v7 offset:{off+1024}",
                       f"ds_read_b64_tr_b16 {vr(f+8,2)}, v19 offset:{off}", f"ds_read_b64_tr_b16 {vr(f+10,2)}, v19 offset:{off+128}"]

        def mm(ks):
            f = FB[ks & 1]
            c = "0" if ks == 0 else None
            return [K16(T0, f, XF + 4 * ks, c), K16(T1, f + 4, XF + 4 * ks, c), K16(TR, f + 8, XF + 4 * ks, c)]
        for i in range(36):
            a(f"ds_read_b128 {vr(XF+4*i,4)}, v{104+(i&3)} offset:{(i>>2)*1024}")
        a("s_waitcnt vmcnt(9)", f"v_mov_b32 v{V_AV}, v20", "v_mov_b32 v21, 0x3f803f80", "s_waitcnt lgkmcnt(0)", "s_barrier")
        self.stamp(2)
        self.stamp(6, 2)
        a(rd(0)[1])
        ev = {k: ["s_barrier"] for _, k in self.GROUPS}
        ev[3] = ["s_waitcnt vmcnt(0)", "s_barrier"]
        ev[9] = ["s_barrier", f"s_cmp_lg_u32 s{S_WAVE}, 3", "s_cbranch_scc1 L_nosig", f"s_lshl_b32 s{S_T0}, s{S_B}, 7", "s_mov_b64 exec, 1",
                 f"buffer_atomic_add v100, v101, s[{R_DBG}:{R_DBG+3}], s{S_T0} offen sc1", "s_mov_b64 exec, -1", "L_nosig:"]
        for ks in range(36):
            m = mm(ks)
            if ks in ev:
                a(ev[ks])
            if ks + 1 < 36:
                pre, n = rd(ks + 1)
                a(pre, n[0:2], "s_waitcnt lgkmcnt(6)", m[0], n[2:4], "s_waitcnt lgkmcnt(6)", m[1], n[4:6], "s_waitcnt lgkmcnt(6)", m[2])
            else:
                a("s_waitcnt lgkmcnt(4)", m[0], "s_waitcnt lgkmcnt(2)", m[1], "s_waitcnt lgkmcnt(0)", m[2])
        self.stamp(3)
        H = 72
        a(f"v_mov_b32 v{KR[0]+1}, 0x3f803f80", f"s_mov_b32 s{S_BAR}, {32//o['unp'] - o['barit']}", f"s_mov_b32 s{S_STG}, 0", "s_nop 4")
        for j in range(8):
            a(f"v_cvt_pk_bf16_f32 v{QM[0]+j}, v{T0+2*j}, v{T0+2*j+1}")
        for j in range(8):
            a(f"v_cvt_pk_bf16_f32 v{H+j}, v{T1+2*j}, v{T1+2*j+1}")
        a(f"v_cvt_pk_bf16_f32 v{H+8}, v{TR+2}, v{TR+3}", f"v_cvt_pk_bf16_f32 v{QR}, v{TR}, v{TR+1}")
        a(f"ds_write_b128 v96, {vr(H,4)}", f"ds_write_b128 v96, {vr(H+4,4)} offset:1024")
        self.norm2((H, H + 8, H + 9, 85), (QM[0], QR, QR + 1, 86))
        a(f"ds_write_b64 v97, {vr(H+8,2)} offset:2048")
        a(K8Z(O[0], 102), K8Z(O[1], 102))
        a("s_waitcnt lgkmcnt(0)")
        a("s_barrier")
        a("ds_read_b32 v6, v98")
        self.main_prologue_loads()
        a([f"v_mov_b32 v{r}, 0" for r in range(VV[1][1], VV[1][1] + 4)])
        if o['prio']:
            a("s_setprio 2")
        a("s_waitcnt lgkmcnt(0)", "s_branch L_attn")

    def late_front(self):
        a, o = self.a, self.o
        a.label("L_late")
        a("s_setprio 1")
        self.stamp(2, 2)
        a(f"s_xor_b32 s{S_T4}, s{S_T4}, 4", f"s_add_u32 s{S_XB}, s{S_T5}, s{S_T4}", f"s_mul_i32 s{S_XB}, s{S_XB}, {8*1152}",
          f"s_mul_i32 s{S_XM}, s{S_T4}, 9216", f"s_add_u32 s{S_XM}, s{S_XM}, {L_X}", f"s_movk_i32 s{S_DI}, 1024", f"s_movk_i32 s{S_DS}, 128")
        self.dma9_setup(S_HG)
        self.dma9(R_X, 8)
        self.stamp(3, 2)
        self.table_load()
        self.wq_setup(5)
        self.rest_srds()
        a("v_and_b32 v13, 15, v0", "v_lshrrev_b32 v16, 4, v0",
          "v_bfe_u32 v17, v0, 1, 3", "v_xor_b32 v17, v16, v17", "v_lshlrev_b32 v17, 4, v17",
          "v_and_b32 v18, 7, v0", "v_lshl_add_u32 v17, v18, 7, v17", "v_bfe_u32 v18, v0, 3, 1", "v_mul_u32_u24 v18, 0x2400, v18",
          f"s_lshr_b32 s{S_T0}, s{S_HG}, 1", f"s_lshl_b32 s{S_T0}, s{S_T0}, 1", f"s_add_u32 s{S_T0}, s{S_T0}, s{S_PBI}",
          f"s_mul_i32 s{S_T1}, s{S_T0}, {2*9216}", f"s_add_u32 s{S_T1}, s{S_T1}, {L_X}", f"v_add3_u32 v14, v17, v18, s{S_T1}", "v_xor_b32 v15, 64, v14",
          "v_bfe_u32 v17, v0, 2, 2", "v_lshl_add_u32 v17, v16, 3, v17",
          "v_mul_u32_u24 v17, 48, v17", "v_and_b32 v18, 3, v0", "v_lshlrev_b32 v18, 3, v18",
          f"s_cmp_eq_u32 s{S_HQ}, 0", "s_cselect_b64 vcc, -1, 0", "v_mov_b32 v19, 32", "v_cndmask_b32 v18, v19, v18, vcc", f"v_add_u32 v17, {L_W}, v17", "v_add_u32 v17, v17, v18")
        a("v_lshrrev_b32 v18, 4, v0", "v_and_b32 v19, 1, v18", "v_lshlrev_b32 v19, 9, v19", "v_lshl_add_u32 v19, v13, 4, v19",
          "v_lshrrev_b32 v18, 1, v18", "v_lshl_add_u32 v28, v18, 3, v19", "v_lshlrev_b32 v29, 2, v13",
          f"s_mul_i32 s{S_KVS}, s{S_PG}, {PB}", f"s_mov_b32 s{S_OEX}, s{S_T0}")
        a("s_waitcnt vmcnt(10)")
        self.stamp(1)
        self.stamp(4, 2)
        a("s_barrier")
        a(f"s_bitcmp1_b32 s{S_HG}, 0", "s_cbranch_scc1 L_vproj")
        D = 32
        NB = o['nb']
        for isv in (0, 1):
            if isv:
                a.label("L_vproj")

            def rd(s):
                xb = 40 + 8 * (s % NB)
                return [f"ds_read_b128 {vr(xb,4)}, v{14+(s&1)} offset:{(s>>1)*1024}",
                        f"ds_read_b64_tr_b16 {vr(xb+4,2)}, v17 offset:{s*1536}", f"ds_read_b64_tr_b16 {vr(xb+6,2)}, v17 offset:{s*1536+192}"]
            for s in range(NB - 1):
                a(rd(s))
            for s in range(18):
                if s == o['sb']:
                    a("s_waitcnt vmcnt(0)", "s_barrier")
                if s + NB - 1 < 18:
                    a(rd(s + NB - 1))
                left = min(18 - 1 - s, NB - 1)
                xb = 40 + 8 * (s % NB)
                c = "0" if s == 0 else None
                a(f"s_waitcnt lgkmcnt({min(15,3*left)})", M16(D, xb, xb + 4, c) if isv else M16(D, xb + 4, xb, c))
            g = S_OEX
            if not isv:
                a(f"s_lshr_b32 s{S_T0}, s{g}, 1", f"s_lshl_b32 s{S_T0}, s{S_T0}, 10", f"s_lshl_b32 s{S_T1}, s{S_PBI}, 8", f"s_add_u32 s{S_T0}, s{S_T0}, s{S_T1}",
                  f"s_add_u32 s{S_T0}, s{S_T0}, s{S_KVS}",
                  f"s_lshl_b32 s{S_T1}, s{g}, 6", f"s_add_u32 s{S_T1}, s{S_T1}, s{S_KVS}", f"s_add_u32 s{S_T1}, s{S_T1}, 2048",
                  f"s_mov_b32 s{S_T2}, {hex(f2u(CSCALE))}")
                for r in range(4):
                    a(f"v_mul_f32 v{D+r}, s{S_T2}, v{D+r}")
                a(f"v_cvt_pk_bf16_f32 v{D}, v{D}, v{D+1}", f"v_cvt_pk_bf16_f32 v{D+1}, v{D+2}, v{D+3}",
                  f"s_lshl_b32 s{S_T3}, s{S_PG}, 2", f"s_add_u32 s{S_T3}, s{S_T3}, s{g}", f"s_lshl_b32 s{S_T3}, s{S_T3}, 2", f"s_add_u32 s{S_T3}, s{S_T3}, {WS_KN}",
                  f"v_dot2_f32_bf16 v36, v{D}, v{D}, 0",
                  f"s_cmp_eq_u32 s{S_HQ}, 0", "s_cbranch_scc0 L_krem",
                  f"buffer_store_dwordx2 {vr(D,2)}, v28, s[{R_WS}:{R_WS+3}], s{S_T0} offen sc1",
                  f"v_dot2_f32_bf16 v36, v{D+1}, v{D+1}, v36", "s_nop 2", "v_mov_b32 v37, v36", "s_nop 1",
                  "v_permlane16_swap_b32 v36, v37", "s_nop 1", "v_add_f32 v36, v36, v37", "s_nop 0", "v_mov_b32 v37, v36", "s_nop 1",
                  "v_permlane32_swap_b32 v36, v37", "s_nop 1", "v_add_f32 v36, v36, v37", "s_branch L_knorm",
                  "L_krem:", "s_mov_b64 exec, 0xffff",
                  f"buffer_store_dword v{D}, v29, s[{R_WS}:{R_WS+3}], s{S_T1} offen sc1", "s_mov_b64 exec, -1", f"s_add_u32 s{S_T3}, s{S_T3}, 512",
                  "L_knorm:", "s_nop 1")
                self.row_max16(36)
                a("v_mov_b32 v37, 0", "s_mov_b64 exec, 1", f"buffer_store_dword v36, v37, s[{R_WS}:{R_WS+3}], s{S_T3} offen sc1", "s_mov_b64 exec, -1",
                  "s_branch L_kvdone")
            else:
                a(f"s_mul_i32 s{S_T0}, s{g}, {VG}", f"s_add_u32 s{S_T0}, s{S_T0}, s{S_KVS}", f"s_add_u32 s{S_T0}, s{S_T0}, 2304",
                  "v_cmp_eq_u32 vcc, 2, v13", f"v_cmp_eq_u32 s[{S_EX}:{S_EX+1}], 3, v13", "v_mov_b32 v30, 0x3f803f80", "s_nop 0",
                  f"s_cmp_eq_u32 s{S_HQ}, 0",
                  f"v_cvt_pk_bf16_f32 v{D}, v{D}, v{D+1}", f"v_cvt_pk_bf16_f32 v{D+1}, v{D+2}, v{D+3}", "s_cbranch_scc0 L_vrem",
                  f"buffer_store_dwordx2 {vr(D,2)}, v21, s[{R_WS}:{R_WS+3}], s{S_T0} offen sc1", "s_branch L_kvdone",
                  "L_vrem:",
                  f"v_cndmask_b32 v{D}, v{D}, v30, vcc", f"v_cndmask_b32 v{D+1}, v{D+1}, v30, vcc",
                  f"v_cndmask_b32 v{D}, v{D}, 0, s[{S_EX}:{S_EX+1}]", f"v_cndmask_b32 v{D+1}, v{D+1}, 0, s[{S_EX}:{S_EX+1}]",
                  "s_mov_b32 exec_lo, 0x000f000f", "s_mov_b32 exec_hi, 0x000f000f",
                  f"buffer_store_dwordx2 {vr(D,2)}, v22, s[{R_WS}:{R_WS+3}], s{S_T0} offen sc1", "s_mov_b64 exec, -1")
        a.label("L_kvdone")
        self.stamp(2)
        self.stamp(5, 2)
        a(f"v_mov_b32 v{V_AV}, v20")
        self.wq_dma(5)
        a("s_barrier")
        nxt = 6
        for gi_, (last, _) in enumerate(self.GROUPS):
            lim = 16 if gi_ < 3 else 17
            while nxt <= min(last + o['win'], lim):
                self.wq_dma(nxt)
                nxt += 1
            assert nxt > last
            if gi_ > 0:
                a(f"s_waitcnt vmcnt({3*(nxt-1-last)})")
            if gi_ == 2:
                a(f"v_mov_b32 v150, {L_FLAG}", "v_mov_b32 v152, 0", "v_mov_b32 v153, 0", "v_mov_b32 v151, 0", "ds_write_b64 v150, v[152:153]", "s_waitcnt lgkmcnt(0)")
            if gi_ == len(self.GROUPS) - 1:
                self.init_main_regs()
            a("s_barrier")
        self.stamp(3)
        self.stamp(6, 2)
        a(f"s_and_b32 s{S_T0}, s{S_GI}, 3", f"s_mul_i32 s{S_KVS}, s{S_T0}, {37*1024}", f"s_add_u32 s{S_KVS}, s{S_KVS}, s{S_M0A}")
        a(f"s_mov_b32 s{S_CNT}, {SPIN}", f"s_cmp_lg_u32 s{S_WAVE}, 4", "s_cbranch_scc1 L_relay", f"s_lshl_b32 s{S_T0}, s{S_B}, 7")
        a("L_poll1:", f"buffer_load_dword v152, v151, s[{R_DBG}:{R_DBG+3}], s{S_T0} offen sc0 sc1", f"s_sub_u32 s{S_CNT}, s{S_CNT}, 1",
          "s_cbranch_scc1 L_poll1d", "s_waitcnt vmcnt(0)", "v_cmp_gt_u32 vcc, 0x80, v152", "s_cbranch_vccnz L_poll1",
          "L_poll1d:", "v_mov_b32 v152, 1", "ds_write_b32 v150, v152", "v_lshlrev_b32 v153, 3, v0", f"s_mov_b32 s{S_T0}, {WS_KN}",
          f"buffer_load_dwordx2 v[154:155], v153, s[{R_WS}:{R_WS+3}], s{S_T0} offen sc1",
          f"buffer_load_dwordx2 v[156:157], v153, s[{R_WS}:{R_WS+3}], s{S_T0} offen offset:512 sc1", "s_branch L_flagok")
        a("L_relay:", "ds_read_b32 v152, v150", f"s_sub_u32 s{S_CNT}, s{S_CNT}, 1", "s_cbranch_scc1 L_flagok", "s_waitcnt lgkmcnt(0)",
          "v_cmp_eq_u32 vcc, 0, v152", "s_cbranch_vccnz L_relay", "L_flagok:")
        self.stamp(4)
        self.kv_dma(0, o['kv1'])
        a(f"s_cmp_lg_u32 s{S_WAVE}, 4", "s_cbranch_scc1 L_nokn", f"s_waitcnt vmcnt({o['kv1']})", "v_max_f32 v154, v154, v155", "v_max_f32 v156, v156, v157")
        self.row_max16(154)
        self.row_max16(156)
        a("s_nop 0")
        for k in range(4):
            a(f"v_readlane_b32 s{16+k}, v154, {16*k}", f"v_readlane_b32 s{20+k}, v156, {16*k}")
        a("s_nop 1", "s_max_u32 s16, s16, s17", "s_max_u32 s18, s18, s19", "s_max_u32 s20, s20, s21", "s_max_u32 s22, s22, s23",
          "s_max_u32 s16, s16, s18", "s_max_u32 s20, s20, s22", "v_mov_b32 v154, s16", "v_add_f32 v154, s20, v154", "v_sqrt_f32 v154, v154",
          f"v_mov_b32 v155, {L_KMAX}", "ds_write_b32 v155, v154", "L_nokn:")
        a(f"v_mov_b32 v{V_IDX}, 0xdddddddd", f"v_add_u32 v{V_AK}, {L_KV}, v1", f"v_lshlrev_b32 v{V_AR}, 2, v0", f"v_add_u32 v{V_AR}, {L_KV+2048}, v{V_AR}",
          f"s_mul_i32 s{S_T0}, s{S_I}, 2560", f"v_add_u32 v8, s{S_T0}, v1", "v_lshlrev_b32 v9, 3, v0", f"v_add_u32 v9, s{S_T0}, v9", f"v_mov_b32 v6, {L_KMAX}")
        a("s_waitcnt vmcnt(0) lgkmcnt(0)", "s_barrier")
        a("ds_read_b32 v6, v6", f"ds_read_b64 {vr(QR,2)}, v9 offset:2048", f"ds_read_b128 {vr(QM[1],4)}, v8 offset:1024", f"ds_read_b128 {vr(QM[0],4)}, v8")
        self.kv_dma(4 * o['kv1'], 37 - o['kv1'])
        a("s_waitcnt vmcnt(0) lgkmcnt(0)")
        self.stamp(5)
        a("s_barrier")
        self.wo_job_loads(0)
        a(f"s_cmp_ge_u32 s{S_OEX}, {648-512}", "s_cbranch_scc1 L_nowo2", f"s_add_u32 s{S_OEX}, s{S_OEX}, 512")
        self.wo_job_loads(1)
        a("L_nowo2:")
        self.poison()
        a("s_waitcnt vmcnt(5)", f"s_cmp_ge_u32 s{S_OEX}, 512", "s_cbranch_scc0 L_wo3")
        self.wo_job_finish(1)
        a(f"s_sub_u32 s{S_OEX}, s{S_OEX}, 512", "L_wo3:")
        self.wo_job_finish(0)
        self.main_prologue_loads()
        self.join_signal(200, "l")
        a("s_mov_b64 exec, -1", f"s_mov_b32 s{S_BAR}, -1", f"s_mov_b32 s{S_STG}, 1")

    def join_signal(self, v, tag):
        self.a(f"v_mov_b32 v{v}, {L_FLAG+4}", f"v_mov_b32 v{v+1}, 1", f"v_mov_b32 v{v+3}, 0", f"s_lshl_b32 s{S_T0}, s{S_B}, 7", "s_mov_b64 exec, 1",
               "s_waitcnt vmcnt(0)", f"ds_add_rtn_u32 v{v+2}, v{v}, v{v+1}", "s_waitcnt lgkmcnt(0)", f"v_cmp_eq_u32 vcc, 3, v{v+2}", f"s_cbranch_vccz L_js{tag}",
               f"buffer_atomic_add v{v+1}, v{v+3}, s[{R_DBG}:{R_DBG+3}], s{S_T0} offen offset:4 sc1", f"L_js{tag}:")

    def wo_job_loads(self, rep):
        a = self.a
        if rep == 0:
            a(f"s_lshl_b32 s{S_OEX}, s{S_PG}, 2", f"s_add_u32 s{S_OEX}, s{S_OEX}, s{S_HG}", f"s_lshl_b32 s{S_OEX}, s{S_OEX}, 2", f"s_add_u32 s{S_OEX}, s{S_OEX}, s{S_I}")
        f = S_OEX
        AD, DT = 208, 216 + 8 * rep
        a(f"s_mul_i32 s16, s{f}, 7282", "s_lshr_b32 s16, s16, 16", "s_mul_i32 s17, s16, 9", f"s_sub_u32 s17, s{f}, s17",
          "s_mul_i32 s18, s16, 7282", "s_lshr_b32 s18, s18, 16", "s_mul_i32 s19, s18, 9", "s_sub_u32 s19, s16, s19",
          "s_and_b32 s20, s18, 1", "s_lshr_b32 s21, s18, 1")
        a("s_mul_i32 s22, s21, 288", "s_lshr_b32 s23, s17, 1", "s_lshl_b32 s23, s23, 6", "s_add_u32 s22, s22, s23", "s_and_b32 s23, s17, 1", "s_lshl_b32 s23, s23, 3",
          "s_add_u32 s22, s22, s23", "s_cmp_eq_u32 s17, 8", "s_cselect_b32 s23, 3, 4",
          "v_bfe_u32 v200, v0, 2, 2", "v_lshlrev_b32 v200, s23, v200", "v_and_b32 v201, 3, v0", "v_lshl_add_u32 v200, v201, 1, v200", "v_add_u32 v200, s22, v200",
          f"s_mul_i32 s22, s20, {36*1152}", "s_cmp_eq_u32 s19, 8", f"s_cbranch_scc1 L_wok1_{rep}")
        cy = [(j & 3) + 8 * (j >> 2) for j in range(8)]
        a(f"s_mul_i32 s23, s19, {72*1152}", "s_add_u32 s22, s22, s23", "v_lshrrev_b32 v201, 5, v0", "v_bfe_u32 v202, v0, 4, 1",
          f"v_mul_u32_u24 v203, {4*1152}, v201", "v_add_u32 v203, v200, v203",
          f"v_mul_u32_u24 v204, {3*1152}, v201", f"v_sub_u32 v204, {16*1152}, v204", "v_mul_u32_u24 v204, v202, v204", f"v_add_u32 v{AD}, v203, v204")
        for j in range(1, 8):
            dj = 18 + cy[j-1] - cy[j]
            a(f"v_mul_u32_u24 v204, {dj*1152}, v202", f"v_add_u32 v204, {cy[j]*1152}, v204", f"v_add_u32 v{AD+j}, v203, v204")
        a(f"s_branch L_wold_{rep}", f"L_wok1_{rep}:", "v_lshrrev_b32 v201, 4, v0", f"v_mul_u32_u24 v201, {144*1152}, v201", "v_add_u32 v203, v200, v201")
        for j in range(8):
            hq, hh, e = j >> 2, (j >> 1) & 1, j & 1
            row = 72 * hq + 18 + ((16 + hh) if e else (11 + 4 * hh))
            a(f"v_add_u32 v{AD+j}, {row*1152}, v203")
        a(f"L_wold_{rep}:")
        for j in range(8):
            a(f"buffer_load_ushort v{DT+j}, v{AD+j}, s[{R_WO}:{R_WO+3}], s22 offen")

    def wo_job_finish(self, rep):
        a = self.a
        DT = 216 + 8 * rep
        a(f"s_lshl_b32 s22, s{S_OEX}, 10", f"s_add_u32 s22, s22, {WS_WOT}")
        for j in range(4):
            a(f"v_lshl_or_b32 v{232+4*rep+j}, v{DT+1+2*j}, 16, v{DT+2*j}")
        a(f"buffer_store_dwordx4 {vr(232+4*rep,4)}, v1, s[{R_WS}:{R_WS+3}], s22 offen sc1")

    def poison(self):
        a = self.a
        a([f"v_mov_b32 v{176+j}, -1" for j in range(4)])
        a(f"s_mul_i32 s24, s{S_PG}, {OEX_G}", f"s_mul_i32 s25, s{S_HQ}, {OEX_S}", "s_add_u32 s24, s24, s25", f"s_add_u32 s24, s24, {WS_OEX}",
          f"s_lshl_b32 s25, s{S_HG}, 13", f"s_lshl_b32 s26, s{S_PBI}, 12", "s_add_u32 s25, s25, s26", "s_add_u32 s25, s25, s24",
          f"s_lshl_b32 s26, s{S_HG}, 6", "s_add_u32 s26, s26, s24", "s_add_u32 s26, s26, 32768",
          "v_lshrrev_b32 v180, 2, v0", "v_lshlrev_b32 v180, 8, v180", "v_and_b32 v181, 3, v0", "v_lshl_add_u32 v180, v181, 4, v180")
        for k in range(4):
            a(f"buffer_store_dwordx4 v[176:179], v1, s[{R_WS}:{R_WS+3}], s25 offen offset:{k*1024} sc0 sc1")
        a(f"buffer_store_dwordx4 v[176:179], v180, s[{R_WS}:{R_WS+3}], s26 offen sc0 sc1")

    def coop_load(self, n, tag):
        a = self.a
        B = 8
        a(f"s_lshl_b32 s{S_T0}, s{S_WAVE}, 10", f"v_add_u32 v6, s{S_T0}, v1", f"s_add_u32 s{S_T0}, s{S_T0}, s{S_OEXB}", f"s_add_u32 s{S_T0}, s{S_T0}, {OEX_S}")
        for k in range(1, n):
            a(f"s_add_u32 s{16+k}, s{S_T0}, {8192*k}")
        a(f"s_mov_b32 s{S_CNT}, {SPIN}")
        a("s_barrier")
        if tag == 'l':
            self.stamp(1, 1)
        a.label(f"L_cl{tag}")
        for k in range(n):
            a(f"buffer_load_dwordx4 {vr(B+4*k,4)}, v1, s[{R_WS}:{R_WS+3}], s{16+k if k else S_T0} offen sc0 sc1")
        a(f"s_sub_u32 s{S_CNT}, s{S_CNT}, 1", f"s_cbranch_scc1 L_cld{tag}")
        for k in range(n):
            r = B + 4 * k
            a(f"s_waitcnt vmcnt({n-1-k})")
            if k == 0:
                a(f"v_max3_u32 v7, v{r}, v{r+1}, v{r+2}", f"v_max_u32 v7, v7, v{r+3}")
            else:
                a(f"v_max3_u32 v7, v7, v{r}, v{r+1}", f"v_max3_u32 v7, v7, v{r+2}, v{r+3}")
        a("v_cmp_eq_u32 vcc, -1, v7", f"s_cbranch_vccnz L_cl{tag}", f"L_cld{tag}:", "s_waitcnt vmcnt(0)")
        if tag == 'l':
            self.stamp(2, 1)
            if self.o['stamps'] and self.o['set'] == 1:
                a(f"s_mov_b32 s{S_ST+8}, s{S_CNT}")
        for k in range(n):
            a(f"ds_write_b128 v6, {vr(B+4*k,4)} offset:{L_KV + 8192*k}")
        a("s_waitcnt lgkmcnt(0)", "s_barrier")
        if tag == 'l':
            self.stamp(3, 1)

    def attention(self):
        a, o = self.a, self.o
        UNP = o['unp']
        a.label("L_attn")
        a(f"v_mul_f32 v7, v6, v{QR+1}", f"v_mov_b32 v6, {hex(f2u(-1.0 if o['force_fb'] else TSAFE))}",
          "v_cmp_nle_f32 vcc, v7, v6", "v_sub_f32 v7, 0, v7", f"v_cvt_pk_bf16_f32 v{QR+1}, v7, 0", "s_cbranch_vccnz L_fallback", "L_fbdone:")
        q = self.qk(S[0], 0)
        a("s_nop 0", q[0], "s_nop 15", "s_nop 1", q[1], q[2], f"s_mov_b32 s{S_CNT}, {32//UNP}", "s_nop 9")
        self.stamp(6)
        body = []
        for kb in range(2 * UNP):
            cur, nxt = S[kb % 2], S[(kb + 1) % 2]
            q = self.qk(nxt, kb + 1)
            e = EX(cur, 32)
            sm3p = SM(O[1], VV[(kb - 1) % 2][1], nxt + 24)
            sm = [SM(O[0], VV[kb % 2][0], cur), SM(O[0], VV[kb % 2][1], cur + 8), SM(O[1], VV[kb % 2][0], cur + 16)]
            cl = self.ldKm(kb + 2) + (self.ldKr((kb + 3) // 2) if kb % 2 == 1 else []) + self.ldV(kb + 1)
            body += e[0:2] + [sm3p] + e[2:5] + [q[0]] + e[5:13] + ["s_waitcnt lgkmcnt(0)", sm[0]] + e[13:18] + [sm[1]] + e[18:21] + [q[1]] + e[21:24] + [q[2]] + cl + e[24:27] + [sm[2]] + e[27:32]
        body += [f"v_add_u32 v{V_AK}, {UNP*PB}, v{V_AK}", f"v_add_u32 v{V_AR}, {UNP*PB}, v{V_AR}", f"v_add_u32 v{V_AV}, {UNP*PB}, v{V_AV}"]
        self.loop_body = body
        a(".p2align 6", "L_main:", body, f"s_sub_u32 s{S_CNT}, s{S_CNT}, 1", f"s_cmp_lg_u32 s{S_CNT}, s{S_BAR}", "s_cbranch_scc1 L_nob7", "s_barrier", "L_nob7:",
          f"s_cmp_lg_u32 s{S_CNT}, 0", "s_cbranch_scc1 L_main")
        a(f"v_mov_b32 v22, {L_FLAG+4}", SM(O[1], VV[1][1], S[1] + 24), "ds_read_b32 v23, v22")
        self.stamp(7)
        a(f"s_mul_i32 s{S_OEXB}, s{S_PG}, {OEX_G}", f"s_add_u32 s{S_OEXB}, s{S_OEXB}, {WS_OEX}", f"s_mul_i32 s{S_T0}, s{S_STG}, {OEX_S}", f"s_add_u32 s{S_T0}, s{S_T0}, s{S_OEXB}",
          f"s_lshl_b32 s{S_T1}, s{S_PBI}, 11", f"s_add_u32 s{S_T0}, s{S_T0}, s{S_T1}",
          f"s_lshl_b32 s{S_T1}, s{S_HG}, 13", f"s_lshl_b32 s{S_T2}, s{S_HQ}, 12", f"s_add_u32 s{S_T1}, s{S_T1}, s{S_T2}", f"s_add_u32 s{S_T1}, s{S_T1}, s{S_T0}",
          f"s_lshl_b32 s{S_T2}, s{S_HG}, 6", f"s_lshl_b32 s{S_T3}, s{S_HQ}, 9", f"s_add_u32 s{S_T2}, s{S_T2}, s{S_T3}", f"s_add_u32 s{S_T2}, s{S_T2}, s{S_T0}",
          f"s_add_u32 s{S_T2}, s{S_T2}, 32768",
          "v_bfe_u32 v10, v0, 4, 1", "v_lshlrev_b32 v10, 10, v10", "v_lshrrev_b32 v11, 5, v0", "v_and_b32 v12, 15, v0",
          "v_lshl_add_u32 v8, v11, 9, v10", "v_lshl_add_u32 v8, v12, 4, v8", "v_lshl_add_u32 v9, v11, 8, v10", "v_lshl_add_u32 v9, v12, 2, v9")
        a(f"v_rcp_f32 v10, v{O[0]+9}", f"v_rcp_f32 v11, v{O[1]+9}")
        vals = [O[0] + j for j in range(9)] + [O[1] + j for j in range(9)]
        for j, r in enumerate(vals):
            a(f"v_mul_f32 v{r}, v{r}, v{10 if j < 9 else 11}")
        a(f"s_mov_b32 s{S_CNT}, {SPIN}", "L_pchk:", "s_waitcnt lgkmcnt(0)", "v_cmp_gt_u32 vcc, 4, v23", "s_cbranch_vccz L_pok",
          "ds_read_b32 v23, v22", f"s_sub_u32 s{S_CNT}, s{S_CNT}, 1", "s_cbranch_scc0 L_pchk", "L_pok:")
        for j in range(9):
            a(f"v_cvt_pk_bf16_f32 v{12+j}, v{vals[2*j]}, v{vals[2*j+1]}")
            if j == 3:
                a(f"buffer_store_dwordx4 v[12:15], v8, s[{R_WS}:{R_WS+3}], s{S_T1} offen sc0 sc1")
            if j == 7:
                a(f"buffer_store_dwordx4 v[16:19], v8, s[{R_WS}:{R_WS+3}], s{S_T1} offen offset:256 sc0 sc1")
        a(f"buffer_store_dword v20, v9, s[{R_WS}:{R_WS+3}], s{S_T2} offen sc0 sc1")
        a(f"s_cmp_eq_u32 s{S_STG}, 0", "s_cbranch_scc1 L_oproj")
        self.coop_load(4, "l")
        self.dump_stamps()
        a("s_endpgm")

    def fallback(self):
        a, o = self.a, self.o
        a.label("L_fallback")
        a(f"s_cmp_eq_u32 s{S_STG}, 1", "s_cbranch_scc1 L_fb1", "s_barrier", f"s_mov_b32 s{S_BAR}, -1", "L_fb1:")
        a(f"v_mov_b32 v{QR+1}, 0", f"v_mov_b32 v144, v{V_AK}", f"v_mov_b32 v145, v{V_AR}", "v_mov_b32 v146, 0xff800000", "v_mov_b32 v147, 0xff800000",
          "v_mov_b32 v151, 0x3f803f80", f"s_mov_b32 s{S_CNT}, 32", "L_fbl:",
          "ds_read_b32 v150, v145", "ds_read_b128 v[152:155], v144", "ds_read_b128 v[156:159], v144 offset:1024",
          f"v_add_u32 v144, {PB}, v144", f"v_add_u32 v145, {PB}, v145", "s_waitcnt lgkmcnt(0)")
        for h in range(2):
            a(B2(160, 150, QR, h), "s_nop 15", "s_nop 1", K16(160, 152 + 4 * h, QM[0]), K16(176, 152 + 4 * h, QM[1]), "s_nop 11")
            for j in range(8):
                a(f"v_max3_f32 v146, v146, v{160+2*j}, v{161+2*j}", f"v_max3_f32 v147, v147, v{176+2*j}, v{177+2*j}")
        a(f"s_sub_u32 s{S_CNT}, s{S_CNT}, 1", f"s_cmp_lg_u32 s{S_CNT}, 0", "s_cbranch_scc1 L_fbl",
          "s_nop 0", "v_permlane32_swap_b32 v146, v147", "s_nop 1", "v_max_f32 v146, v146, v147", "v_sub_f32 v146, 0, v146",
          "v_cvt_pk_bf16_f32 v147, v146, 0", "v_lshlrev_b32 v148, 16, v147", "v_sub_f32 v148, v146, v148", f"v_cvt_pk_bf16_f32 v{QR+1}, v146, v148",
          "s_branch L_fbdone")

    def oproj(self):
        a, o = self.a, self.o
        a.label("L_oproj")
        if o['prio'] == 2:
            a("s_setprio 0")
        WF, ACC, OB = 148, 112, [8, 56]
        for tp in range(4):
            a(f"s_xor_b32 s{S_T0}, s{S_WAVE}, {tp}", f"s_lshl_b32 s{S_T0}, s{S_T0}, 10", f"v_add_u32 v{104+tp}, s{S_T0}, v1",
              f"v_lshlrev_b32 v{108+tp}, 2, v0", f"v_add_u32 v{108+tp}, s{S_T0}, v{108+tp}")
        a(f"s_mov_b32 s{S_CNT}, {SPIN}", f"s_lshl_b32 s{S_T0}, s{S_B}, 7", "v_mov_b32 v11, 0")
        self.stamp(1, 1)
        a("L_poll2:", f"buffer_load_dword v7, v11, s[{R_DBG}:{R_DBG+3}], s{S_T0} offen offset:4 sc0 sc1", f"s_sub_u32 s{S_CNT}, s{S_CNT}, 1",
          "s_cbranch_scc1 L_poll2d", "s_waitcnt vmcnt(0)", "v_cmp_gt_u32 vcc, 0x80, v7", "s_cbranch_vccz L_poll2d", "s_sleep 16", "s_branch L_poll2", "L_poll2d:")

        def wo_loads(stg):
            a(f"s_lshl_b32 s{S_T0}, s{S_HG}, 1", f"s_add_u32 s{S_T0}, s{S_T0}, {stg}", f"s_mul_i32 s{S_T0}, s{S_T0}, {81*1024}", f"s_add_u32 s{S_T0}, s{S_T0}, {WS_WOT}",
              f"s_lshl_b32 s{S_T1}, s{S_WAVE}, 11", f"s_add_u32 s{S_T1}, s{S_T1}, s{S_T0}", f"s_add_u32 s{S_T0}, s{S_T0}, 8192")
            for ks in range(9):
                a(f"buffer_load_dwordx4 {vr(WF+12*ks,4)}, v1, s[{R_WS}:{R_WS+3}], s{S_T1} offen sc1",
                  f"buffer_load_dwordx4 {vr(WF+12*ks+4,4)}, v1, s[{R_WS}:{R_WS+3}], s{S_T1} offen offset:1024 sc1",
                  f"buffer_load_dwordx4 {vr(WF+12*ks+8,4)}, v1, s[{R_WS}:{R_WS+3}], s{S_T0} offen sc1")
                if ks < 8:
                    a(f"s_add_u32 s{S_T1}, s{S_T1}, 9216", f"s_add_u32 s{S_T0}, s{S_T0}, 9216")

        def mms(ks, ob, first):
            w = WF + 12 * ks
            x = []
            for tp in range(4):
                c = "0" if first else None
                x.append([M16(ACC + 4 * tp, w, ob + 4 * tp, c), M16(ACC + 16 + 4 * tp, w + 4, ob + 4 * tp, c)] + ([M16(ACC + 32, w + 8, ob, c)] if tp == 0 else []))
            return x

        def loads(bt):
            buf = OB[bt % 2]
            x = []
            for k in range(3):
                ks = 3 * bt + k
                x.append(f"s_add_u32 s{S_T0}, s{S_OEXB}, {ks*4096}")
                for tp in range(4):
                    r = buf + 16 * k + 4 * tp
                    if ks < 8:
                        x.append(f"buffer_load_dwordx4 {vr(r,4)}, v{104+tp}, s[{R_WS}:{R_WS+3}], s{S_T0} offen sc0 sc1")
                    else:
                        x += [f"buffer_load_dword v{r+j}, v{108+tp}, s[{R_WS}:{R_WS+3}], s{S_T0} offen offset:{j*256} sc0 sc1" for j in range(4)]
            return x
        wo_loads(0)
        a("v_lshlrev_b32 v6, 6, v0", f"s_add_u32 s{S_T0}, s{S_OEXB}, 32768", f"s_mov_b32 s{S_CNT}, {SPIN}",
          "L_pre:", f"buffer_load_dword v7, v6, s[{R_WS}:{R_WS+3}], s{S_T0} offen sc0 sc1", f"s_sub_u32 s{S_CNT}, s{S_CNT}, 1",
          "s_cbranch_scc1 L_pred", "s_waitcnt vmcnt(0)", "v_cmp_eq_u32 vcc, -1, v7", "s_cbranch_vccz L_pred", "s_sleep 8", "s_branch L_pre", "L_pred:")
        self.stamp(2, 1)
        a(loads(0), loads(1))
        for bt in range(3):
            buf = OB[bt % 2]
            a(f"s_waitcnt vmcnt({ {0: 12, 1: 24, 2: 0}[bt] })", f"L_chk{bt}:", f"v_max3_u32 v6, v{buf}, v{buf+1}, v{buf+2}", f"v_max3_u32 v7, v{buf+3}, v{buf+4}, v{buf+5}")
            for j in range(6, 48, 4):
                if j + 3 < 48:
                    a(f"v_max3_u32 v6, v6, v{buf+j}, v{buf+j+1}", f"v_max3_u32 v7, v7, v{buf+j+2}, v{buf+j+3}")
                else:
                    a(f"v_max3_u32 v6, v6, v{buf+j}, v{buf+j+1}")
            a("v_max_u32 v6, v6, v7", "v_cmp_eq_u32 vcc, -1, v6", f"s_cbranch_vccz L_ok{bt}",
              f"s_sub_u32 s{S_CNT}, s{S_CNT}, 1", f"s_cbranch_scc1 L_ok{bt}", "s_waitcnt vmcnt(0)", loads(bt), "s_waitcnt vmcnt(0)", f"s_branch L_chk{bt}", f"L_ok{bt}:")
            for k in range(3):
                a(mms(3 * bt + k, buf + 16 * k, bt == 0 and k == 0))
            if bt == 0:
                a(loads(2))
        self.stamp(3, 1)
        wo_loads(1)
        for tp in range(4):
            a(f"v_add_u32 v{104+tp}, {L_KV}, v{104+tp}", f"v_add_u32 v{108+tp}, {L_KV+32768}, v{108+tp}")
        a("s_waitcnt vmcnt(0)")
        if o['prio']:
            a("s_setprio 2")
        self.stamp(6, 1)
        self.coop_load(5, "e")
        self.stamp(4, o['set'] & 1)
        RB = [8, 24, 40]

        def lrd(ks):
            r = RB[ks % 3]
            if ks < 8:
                return [[f"ds_read_b128 {vr(r+4*tp,4)}, v{104+tp} offset:{ks*4096}"] for tp in range(4)]
            return [[f"ds_read2st64_b32 {vr(r+4*tp,2)}, v{108+tp} offset0:0 offset1:1", f"ds_read2st64_b32 {vr(r+4*tp+2,2)}, v{108+tp} offset0:2 offset1:3"] for tp in range(4)]
        a(lrd(0), lrd(1))
        order = []
        for ks in (0, 1):
            order += [(ks, tp, len(lrd(ks)[tp])) for tp in range(4)]
        for ks in range(9):
            m = mms(ks, RB[ks % 3], False)
            nx = lrd(ks + 2) if ks + 2 < 9 else None
            for tp in range(4):
                assert order[0][:2] == (ks, tp)
                order.pop(0)
                a(f"s_waitcnt lgkmcnt({sum(x[2] for x in order)})", m[tp])
                if nx:
                    a(nx[tp])
                    order.append((ks + 2, tp, len(nx[tp])))
        a(f"s_mul_i32 s{S_T0}, s{S_PG}, {64*2304}", f"s_mul_i32 s{S_T1}, s{S_B}, 1152", f"s_add_u32 s{S_T0}, s{S_T0}, s{S_T1}", f"s_mul_i32 s{S_T1}, s{S_HG}, 288",
          f"s_add_u32 s{S_T0}, s{S_T0}, s{S_T1}", f"s_lshl_b32 s{S_T1}, s{S_WAVE}, 6", f"s_add_u32 s{S_T1}, s{S_T1}, s{S_T0}",
          "v_and_b32 v8, 15, v0", "v_mul_u32_u24 v8, 0x900, v8", "v_lshrrev_b32 v9, 4, v0", "v_lshl_add_u32 v10, v9, 3, v8", "v_lshl_add_u32 v8, v9, 4, v8")
        for tp in range(4):
            r = 12 + 4 * tp
            a(f"s_xor_b32 s{S_T2}, s{S_WAVE}, {tp}", f"s_mul_i32 s{S_T2}, s{S_T2}, {16*2304}", f"s_add_u32 s{S_T3}, s{S_T2}, s{S_T1}",
              f"v_cvt_pk_bf16_f32 v{r}, v{ACC+4*tp}, v{ACC+4*tp+1}", f"v_cvt_pk_bf16_f32 v{r+1}, v{ACC+4*tp+2}, v{ACC+4*tp+3}",
              f"v_cvt_pk_bf16_f32 v{r+2}, v{ACC+16+4*tp}, v{ACC+16+4*tp+1}", f"v_cvt_pk_bf16_f32 v{r+3}, v{ACC+16+4*tp+2}, v{ACC+16+4*tp+3}",
              f"buffer_store_dwordx4 {vr(r,4)}, v8, s[{R_OUT}:{R_OUT+3}], s{S_T3} offen")
            if tp == 0:
                a(f"s_add_u32 s{S_T2}, s{S_T2}, s{S_T0}", f"v_cvt_pk_bf16_f32 v28, v{ACC+32}, v{ACC+33}", f"v_cvt_pk_bf16_f32 v29, v{ACC+34}, v{ACC+35}",
                  f"buffer_store_dwordx2 v[28:29], v10, s[{R_OUT}:{R_OUT+3}], s{S_T2} offen offset:256")
        if o['stamps'] or o['dbgspan'] or o['ampk']:
            a("s_waitcnt vmcnt(0)")
            self.stamp(5, o['set'] & 1)
        if o['ampk']:
            a("s_waitcnt lgkmcnt(0)", f"s_sub_u32 s{S_T0}, s{S_ST+2*o['ampb']}, s{S_ST+2*o['ampa']}", f"s_mul_i32 s{S_T0}, s{S_T0}, {o['ampk']}", f"s_min_u32 s{S_T0}, s{S_T0}, 100000",
              "L_amp:", "s_memrealtime s[16:17]", "s_waitcnt lgkmcnt(0)", f"s_sub_u32 s16, s16, s{S_ST+10}", f"s_cmp_lt_u32 s16, s{S_T0}", "s_cbranch_scc1 L_amp")
        self.dump_stamps()
        a("L_end:", "s_endpgm")

    def build(self):
        self.start()
        self.early_front()
        self.late_front()
        self.attention()
        self.oproj()
        self.fallback()
        hdr = ("; fused MQA attention x2 (QKV proj + softmax attention + out proj), one launch, 1 workgroup per CU\n"
               f"; @launch grid=(256,1,1) block=(512,1,1) lds={LDS_BYTES}\n"
               '.amdgcn_target "amdgcn-amd-amdhsa--gfx950"\n.text\n'
               f".globl {NAME}\n.p2align 8\n.type {NAME},@function\n{NAME}:\n")
        body = "".join((x + "\n") if x.endswith(":") else ("    " + x + "\n") for x in self.a.L)
        t = table()
        tab = ".p2align 6\n.type L_table,@object\nL_table:\n" + "".join("    .long " + ", ".join(str(int(v)) for v in row) + "\n" for row in t)
        tab += f".fill (1024 - ((. - {NAME}) & 1023)) & 1023, 1, 0\nL_codeend:\n.size L_table, L_codeend-L_table\n"
        kd = f""".section .rodata,"a"
.p2align 6
.amdhsa_kernel {NAME}
  .amdhsa_next_free_vgpr 256
  .amdhsa_next_free_sgpr 102
  .amdhsa_accum_offset 256
  .amdhsa_group_segment_fixed_size 0
  .amdhsa_kernarg_size 104
  .amdhsa_user_sgpr_count 2
  .amdhsa_user_sgpr_kernarg_segment_ptr 1
  .amdhsa_system_sgpr_workgroup_id_x 1
.end_amdhsa_kernel
"""
        return hdr + body + tab + kd


if __name__ == "__main__":
    out = sys.argv[1]
    opt = {}
    for kv in sys.argv[2:]:
        k, v = kv.split("=")
        opt[k] = int(v)
    g = Gen(opt)
    open(out, "w").write(g.build())
```

```python
import sys, math, struct
import numpy as np

NAME = "concat_heads__grouped_kv_mqa__grouped_kv_mqa__prompt_kernel"

VG = 608
PB = 2048 + 256 + 4 * VG
KVB = 32 * PB
L_KV = 12288
L_HAND = 0
L_KMAX = 10240
L_FLAG = 10256
L_W = 62464
L_X = 90112
SLOT = 4608
L_LAST = 9 * 4608
LDS_BYTES = 163840
WS_KV = 0
WS_KN = KVB
WS_WOT = 0x28000
WS_OEX = 0xD0000
WS_BR = 0x400000
WS_STAMP = 0x1000000
OEX_G = 73728
OEX_S = 36864
CSCALE = math.log2(math.e) / math.sqrt(18.0)
TSAFE = 40.0
SPIN = 200000


def f2u(x):
    return struct.unpack("<I", struct.pack("<f", x))[0]


def slot_addr(ks):
    if ks < 13:
        return ks * SLOT
    if ks < 35:
        return L_W + (ks - 13) * SLOT
    return L_LAST


G0 = [0, 1, 2, 3, 12, 13, 14, 15, 20]
G1 = [4, 5, 6, 7, 8, 9, 10, 11, 16]
POS_ONES, POS_ZERO = 22, 23


def vpos(h, row):
    if row in G0:
        return [list(range(0, 9)), [18, 19, 20, 21, 24, 25, 26, 27, 28]][h][G0.index(row)]
    if row in G1:
        return [list(range(9, 18)), list(range(29, 38))][h][G1.index(row)]
    if row in (17, 21):
        return POS_ONES
    return POS_ZERO


def table():
    t = np.zeros((64, 4), dtype=np.uint32)
    for l in range(64):
        t[l, 0] = L_KV + 2304 + vpos(l >> 5, l & 31) * 16
        n, g = l & 15, l >> 4
        t[l, 1] = vpos(g >> 1, n) * 16 + (g & 1) * 8
        p = {0: vpos(g >> 1, 16), 1: vpos(g >> 1, 20), 2: POS_ONES, 3: POS_ZERO}.get(n, POS_ZERO)
        t[l, 2] = p * 16 + (g & 1) * 8
    return t


def vr(a, n=1):
    return f"v[{a}:{a+n-1}]" if n > 1 else f"v{a}"


def sr(a, n=1):
    return f"s[{a}:{a+n-1}]" if n > 1 else f"s{a}"


S_WAVE = 3
R_X, R_WQ, R_W, R_WO, R_WS, R_OUT, R_DBG = 44, 48, 52, 56, 60, 64, 68
S_B, S_HG, S_GI, S_PG, S_I = 4, 5, 6, 7, 8
S_T0, S_T1, S_T2, S_T3, S_T4, S_T5 = 9, 10, 11, 12, 13, 14
S_CNT = 15
S_M0A, S_M0R, S_ROW = 72, 73, 74
S_BAR = 75
S_PBI, S_HQ = 76, 77
S_EX = 42
S_KVS = 80
S_OEX = 81
S_STG = 82
S_OEXB = 78
S_XI, S_XB, S_XS, S_XM = 83, 100, 101, 79
S_DI, S_DS, S_LI, S_LS = 72, 73, 74, 75
S_ST = 84

V_IDX, V_AK, V_AR, V_AV = 2, 3, 4, 5
QM = [8, 12]
QR = 16
KR = [18, 20]
O = [24, 40]
KM = [56, 60]
VV = [[64, 68], [72, 76]]
S = [80, 112]


class A:
    def __init__(self):
        self.L = []

    def __call__(self, *xs):
        for x in xs:
            if isinstance(x, (list, tuple)):
                self(*x)
            else:
                self.L.append(x)

    def label(self, n):
        self.L.append(n + ":")


def K16(d, a, b, c=None):
    return f"v_mfma_f32_32x32x16_bf16 {vr(d,16)}, {vr(a,4)}, {vr(b,4)}, {c if c else vr(d,16)}"


def M16(d, a, b, c=None):
    return f"v_mfma_f32_16x16x32_bf16 {vr(d,4)}, {vr(a,4)}, {vr(b,4)}, {c if c else vr(d,4)}"


def B2(d, a, b, abid):
    return f"v_mfma_f32_32x32x4_2b_bf16 {vr(d,32)}, {vr(a,2)}, {vr(b,2)}, 0 cbsz:1 abid:{abid}"


def K8Z(d, z):
    return f"v_mfma_f32_32x32x8_bf16 {vr(d,16)}, {vr(z,2)}, {vr(z,2)}, 0"


def SM(d, a, b):
    return f"v_smfmac_f32_32x32x32_bf16 {vr(d,16)}, {vr(a,4)}, {vr(b,8)}, v{V_IDX}"


def EX(r, n):
    return [f"v_exp_f32 v{r+i}, v{r+i}" for i in range(n)]


def srd(a, dst, lo, hi, size):
    a(f"s_mov_b32 s{dst}, {lo}", f"s_mov_b32 s{dst+1}, {hi}", f"s_mov_b32 s{dst+2}, {size}", f"s_mov_b32 s{dst+3}, 0x20000")


class Gen:
    def __init__(self, opt):
        self.o = dict(unp=4, barit=1, stamps=False, force_fb=False, prefetch=True, prio=True, dbgspan=0, outf=0, of=0, ampa=0, ampb=0, ampk=0, set=0, nb=5, kv1=6, win=3, sb=11)
        self.o.update(opt)
        self.a = A()
        self.nst = 0

    def stamp(self, i, st=0):
        if i not in (0, 7) and st != self.o['set']:
            return
        if self.o['stamps'] or self.o['dbgspan'] or self.o['ampk']:
            self.a(f"{'s_memtime' if self.o['stamps']==2 else 's_memrealtime'} s[{S_ST+2*i}:{S_ST+2*i+1}]")

    def dump_stamps(self):
        if self.o['dbgspan']:
            a = self.a
            n = self.nst = self.nst + 1
            a("s_waitcnt lgkmcnt(0)", f"s_cmp_lg_u32 s{S_I}, 0", f"s_cbranch_scc1 L_nodump{n}", "s_mov_b64 exec, 1", "v_mov_b32 v8, 0", f"s_not_b32 s{S_T0}, s{S_ST}", f"v_mov_b32 v9, s{S_T0}",
              f"buffer_atomic_umax v9, v8, s[{R_DBG}:{R_DBG+3}], 0 offen offset:8 sc1")
            for k, i in enumerate((0, 1, 3, 6, 7, 5) if n == 2 else (1, 2, 4, 5, 6, 7)):
                a(f"v_mov_b32 v{10+k}, s{S_ST+2*i}", f"buffer_atomic_umax v{10+k}, v8, s[{R_DBG}:{R_DBG+3}], 0 offen offset:{(12 if n == 2 else 36)+4*k} sc1")
            a(f"L_nodump{n}:")
            return
        if not self.o['stamps']:
            return
        a = self.a
        a("s_waitcnt lgkmcnt(0)", f"s_lshl_b32 s{S_T0}, s2, 3", f"s_add_u32 s{S_T0}, s{S_T0}, s{S_WAVE}", f"s_lshl_b32 s{S_T0}, s{S_T0}, 6",
          f"s_mul_i32 s{S_T1}, s{S_B}, {WS_BR}", f"s_sub_u32 s{S_T0}, s{S_T0}, s{S_T1}", f"s_add_u32 s{S_T0}, s{S_T0}, {WS_STAMP}",
          f"s_mov_b32 s{R_WS+2}, 0x2000000", "v_mov_b32 v8, 0")
        for i in range(4):
            for k in range(4):
                a(f"v_mov_b32 v{12+k}, s{S_ST+4*i+k}")
            a(f"buffer_store_dwordx4 v[12:15], v8, s[{R_WS}:{R_WS+3}], s{S_T0} offen offset:{16*i}", "s_nop 1")

    def kv_dma(self, p0, n):
        a = self.a
        for k in range(n):
            a(f"s_add_u32 m0, s{S_M0A}, {L_KV + (p0 + 4*k)*1024}", f"s_add_u32 s{S_T0}, s{S_KVS}, 4096",
              f"buffer_load_dwordx4 v1, s[{R_WS}:{R_WS+3}], s{S_KVS} offen sc1 lds",
              f"s_cmp_ge_u32 s{S_T0}, {KVB}", f"s_cselect_b32 s{S_T1}, {KVB}, 0", f"s_sub_u32 s{S_KVS}, s{S_T0}, s{S_T1}")

    def row_max16(self, v):
        a = self.a
        for k in (8, 4, 2, 1):
            a("s_nop 1", f"v_max_f32_dpp v{v}, v{v}, v{v} row_ror:{k} row_mask:0xf bank_mask:0xf")

    def rest_srds(self):
        a = self.a
        a(f"s_mov_b32 s{R_WO+2}, 663552", f"s_mov_b32 s{R_WO+3}, 0x20000",
          f"s_mul_i32 s{S_T0}, s{S_B}, {WS_BR}", f"s_add_u32 s{R_WS}, s40, s{S_T0}", f"s_addc_u32 s{R_WS+1}, s41, 0",
          f"s_mov_b32 s{R_WS+2}, {WS_OEX + 32*OEX_G}", f"s_mov_b32 s{R_WS+3}, 0x20000")
        srd(a, R_OUT, "s36", "s37", 4718592)
        srd(a, R_DBG, "s38", "s39", 256)

    def norm2(self, x, y):
        a = self.a
        for j in range(4):
            for (qm, qr, dst, tmp) in (x, y):
                a(f"v_dot2_f32_bf16 v{dst}, v{qm+j}, v{qm+j}, {'0' if j == 0 else 'v%d' % dst}",
                  f"v_dot2_f32_bf16 v{tmp}, v{qm+4+j}, v{qm+4+j}, {'0' if j == 0 else 'v%d' % tmp}")
        a("s_nop 0", f"v_permlane32_swap_b32 v{x[2]}, v{x[3]}", "s_nop 0", f"v_permlane32_swap_b32 v{y[2]}, v{y[3]}",
          f"v_add_f32 v{x[2]}, v{x[2]}, v{x[3]}", f"v_add_f32 v{y[2]}, v{y[2]}, v{y[3]}",
          f"v_dot2_f32_bf16 v{x[2]}, v{x[1]}, v{x[1]}, v{x[2]}", f"v_dot2_f32_bf16 v{y[2]}, v{y[1]}, v{y[1]}, v{y[2]}", "s_nop 1",
          f"v_sqrt_f32 v{x[2]}, v{x[2]}", f"v_sqrt_f32 v{y[2]}, v{y[2]}")

    def init_main_regs(self):
        a = self.a
        a(f"v_mov_b32 v{KR[0]+1}, 0x3f803f80", f"v_mov_b32 v{KR[1]+1}, 0x3f803f80")
        for r in range(O[0], O[0] + 32):
            a(f"v_mov_b32 v{r}, 0")
        for r in range(S[1] + 24, S[1] + 32):
            a(f"v_mov_b32 v{r}, 0")
        for r in range(VV[1][1], VV[1][1] + 4):
            a(f"v_mov_b32 v{r}, 0")

    def ldKm(self, kb):
        return [f"ds_read_b128 {vr(KM[kb%2],4)}, v{V_AK} offset:{(kb//2)*PB+(kb%2)*1024}"]

    def ldKr(self, p):
        return [f"ds_read_b32 v{KR[p%2]}, v{V_AR} offset:{p*PB}"]

    def ldV(self, kb):
        return [f"ds_read_b128 {vr(VV[kb%2][i],4)}, v{V_AV} offset:{(kb//2)*PB+((kb%2)*2+i)*VG}" for i in range(2)]

    def qk(self, dst, kb):
        return [B2(dst, KR[(kb//2) % 2], QR, kb % 2), K16(dst, KM[kb % 2], QM[0]), K16(dst + 16, KM[kb % 2], QM[1])]

    def main_prologue_loads(self):
        self.a(self.ldKr(0), self.ldKm(0), self.ldKm(1), self.ldKr(1), self.ldV(0))

    def start(self):
        a, o = self.a, self.o
        a("s_cmp_ge_u32 s2, 256", "s_cbranch_scc1 L_end")
        a("s_load_dwordx16 s[16:31], s[0:1], 0", "s_load_dwordx8 s[32:39], s[0:1], 64", "s_load_dwordx2 s[40:41], s[0:1], 96")
        self.stamp(0)
        a("s_getpc_b64 s[42:43]", "L_pc:")
        a("v_lshrrev_b32 v1, 6, v0", "v_and_b32 v0, 63, v0", f"v_readfirstlane_b32 s{S_WAVE}, v1", "v_lshlrev_b32 v1, 4, v0",
          f"s_lshr_b32 s{S_T2}, s2, 3", f"s_and_b32 s{S_B}, s2, 1", f"s_and_b32 s{S_HG}, s{S_T2}, 3", f"s_lshr_b32 s{S_GI}, s2, 5")
        if o['prefetch']:
            a(f"s_cmp_lg_u32 s{S_WAVE}, 7", "s_cbranch_scc1 L_nopf", f"s_cmp_ge_u32 s{S_T2}, (L_codeend-{NAME})/1024", "s_cbranch_scc1 L_nopf",
              f"s_lshl_b32 s{S_T2}, s{S_T2}, 10", f"s_sub_u32 s{S_T0}, s42, L_pc-{NAME}", f"s_subb_u32 s{S_T1}, s43, 0",
              f"s_add_u32 s{S_T0}, s{S_T0}, s{S_T2}", f"s_addc_u32 s{S_T1}, s{S_T1}, 0",
              f"v_mov_b32 v7, s{S_T1}", f"v_add_co_u32 v6, vcc, s{S_T0}, v1", "s_nop 1", "v_addc_co_u32 v7, vcc, 0, v7, vcc", "s_nop 0",
              "global_load_dwordx4 v[24:27], v[6:7], off", "L_nopf:")
        a(f"s_bfe_u32 s{S_PG}, s2, 0x20001", f"s_lshl_b32 s{S_PG}, s{S_PG}, 3", f"s_add_u32 s{S_PG}, s{S_PG}, s{S_GI}",
          f"s_and_b32 s{S_I}, s{S_WAVE}, 3", f"s_and_b32 s{S_PBI}, s{S_WAVE}, 1", f"s_lshr_b32 s{S_HQ}, s{S_I}, 1")
        a("v_lshrrev_b32 v8, 3, v0", "v_lshrrev_b32 v9, 4, v0", f"s_lshl_b32 s{S_T0}, s{S_PBI}, 2", f"v_or_b32 v9, s{S_T0}, v9",
          "v_and_b32 v10, 7, v0", "v_xor_b32 v9, v9, v10", "v_lshlrev_b32 v9, 4, v9", "v_mov_b32 v10, 0x480", "v_mad_u32_u24 v8, v8, v10, v9",
          f"s_lshl_b32 s{S_T0}, s{S_I}, 6", f"v_add_u32 v9, s{S_T0}, v0", "v_mul_u32_u24 v10, 0xab, v9", "v_lshrrev_b32 v10, 9, v10", "v_mul_u32_u24 v10, 12, v10",
          "v_lshlrev_b32 v9, 4, v9", "v_sub_u32 v9, v9, v10")
        a(f"s_and_b32 s{S_T4}, s{S_HG}, 2", f"s_lshl_b32 s{S_T4}, s{S_T4}, 1", f"s_add_u32 s{S_T4}, s{S_T4}, s{S_I}",
          f"s_lshl_b32 s{S_T5}, s{S_PG}, 3", f"s_add_u32 s{S_XB}, s{S_T5}, s{S_T4}", f"s_mul_i32 s{S_XB}, s{S_XB}, {8*1152}",
          f"s_mul_i32 s{S_XM}, s{S_T4}, 9216", f"s_add_u32 s{S_XM}, s{S_XM}, {L_X}", f"s_lshl_b32 s{S_T0}, s{S_I}, 10", f"s_add_u32 s{S_T0}, s{S_T0}, {L_W}",
          f"s_lshr_b32 s{S_T1}, s{S_HG}, 1", f"s_movk_i32 s{S_DI}, 3072", f"s_movk_i32 s{S_DS}, 2304",
          f"s_cmp_lt_u32 s{S_WAVE}, 4", "s_cselect_b64 vcc, -1, 0", f"s_cselect_b32 s{S_XB}, s{S_XB}, 0", f"s_cselect_b32 s{S_XM}, s{S_XM}, s{S_T0}",
          f"s_cselect_b32 s{S_T1}, s{S_HG}, s{S_T1}", f"s_cselect_b32 s{S_DI}, 1024, s{S_DI}", f"s_cselect_b32 s{S_DS}, 128, s{S_DS}",
          "v_cndmask_b32 v9, v9, v8, vcc")
        self.dma9_setup(S_T1)
        a("s_waitcnt lgkmcnt(0)", f"s_cmp_eq_u32 s{S_B}, 0", f"s_cselect_b64 s[{R_X}:{R_X+1}], s[16:17], s[26:27]",
          f"s_cselect_b64 s[20:21], s[20:21], s[30:31]", f"s_cselect_b64 s[22:23], s[22:23], s[32:33]",
          f"s_cselect_b64 s[{R_WQ}:{R_WQ+1}], s[18:19], s[28:29]", f"s_cselect_b64 s[{R_WO}:{R_WO+1}], s[24:25], s[34:35]",
          f"s_bitcmp0_b32 s{S_HG}, 0", f"s_cselect_b64 s[{R_W}:{R_W+1}], s[20:21], s[22:23]", f"s_mov_b32 s{R_X+2}, 2359296", f"s_movk_i32 s{R_W+2}, 20736",
          f"s_cmp_lt_u32 s{S_WAVE}, 4", f"s_cselect_b64 s[{R_W}:{R_W+1}], s[{R_X}:{R_X+1}], s[{R_W}:{R_W+1}]", f"s_cselect_b32 s{R_W+2}, s{R_X+2}, s{R_W+2}",
          f"s_mov_b32 s{R_W+3}, 0x20000", f"s_mov_b32 s{R_X+3}, 0x20000")
        self.stamp(1, 2)
        a(f"s_cmp_eq_u32 s{S_WAVE}, 7", "s_cbranch_scc1 L_late")
        self.dma9(R_W, 9)
        a(f"s_cmp_ge_u32 s{S_WAVE}, 4", "s_cbranch_scc1 L_late")

    def dma9_setup(self, sel):
        self.a(f"s_bitcmp1_b32 s{sel}, 0", f"s_cselect_b32 s{S_XI}, 5, 0",
               f"s_add_u32 s{S_XS}, s{S_XI}, s{S_GI}", f"s_cmp_ge_u32 s{S_XS}, 9", f"s_cselect_b32 s{S_T0}, 9, 0", f"s_sub_u32 s{S_XS}, s{S_XS}, s{S_T0}",
               f"s_mul_i32 s{S_XS}, s{S_XS}, s{S_DS}", f"s_mul_i32 s{S_XI}, s{S_XI}, s{S_DI}", f"s_mul_i32 s{S_LI}, s{S_DI}, 9", f"s_mul_i32 s{S_LS}, s{S_DS}, 9")

    def dma9(self, srd_, v):
        for i in range(9):
            self.a(f"s_add_u32 m0, s{S_XM}, s{S_XI}", f"s_add_u32 s{S_T3}, s{S_XB}, s{S_XS}",
                   f"buffer_load_dwordx4 v{v}, s[{srd_}:{srd_+3}], s{S_T3} offen lds")
            if i < 8:
                self.a(f"s_add_u32 s{S_XS}, s{S_XS}, s{S_DS}", f"s_cmp_eq_u32 s{S_XS}, s{S_LS}", f"s_cselect_b32 s{S_XS}, 0, s{S_XS}",
                       f"s_add_u32 s{S_XI}, s{S_XI}, s{S_DI}", f"s_cmp_eq_u32 s{S_XI}, s{S_LI}", f"s_cselect_b32 s{S_XI}, 0, s{S_XI}")

    def table_load(self):
        self.a(f"s_add_u32 s{S_T0}, s42, L_table-L_pc", f"s_addc_u32 s{S_T1}, s43, 0",
               f"v_mov_b32 v7, s{S_T1}", f"v_add_co_u32 v6, vcc, s{S_T0}, v1", "s_nop 1", "v_addc_co_u32 v7, vcc, 0, v7, vcc", "s_nop 0",
               "global_load_dwordx4 v[20:23], v[6:7], off")

    def wq_setup(self, d):
        self.a(f"s_mov_b32 s{R_WQ+2}, 663552", f"s_mov_b32 s{R_WQ+3}, 0x20000",
               "v_lshrrev_b32 v13, 4, v0", "v_and_b32 v14, 15, v0", "v_lshlrev_b32 v15, 2, v13", "v_xor_b32 v14, v14, v15",
               "v_lshrrev_b32 v15, 1, v14", "v_mul_u32_u24 v15, 36, v15", "v_and_b32 v14, 1, v14", "v_lshl_add_u32 v15, v14, 4, v15",
               "v_mul_u32_u24 v13, 0x480, v13", f"s_mul_i32 s{S_T0}, s{S_I}, {4*1152}", f"s_mul_i32 s{S_T1}, s{S_HG}, 288",
               f"s_add_u32 s{S_T0}, s{S_T0}, s{S_T1}", f"v_add3_u32 v10, v13, v15, s{S_T0}", f"v_add_u32 v11, {16*1152}, v10",
               "v_and_b32 v13, 4, v0", "v_bfe_u32 v14, v0, 1, 1", "v_or_b32 v13, v13, v14", "v_and_b32 v14, 1, v0", "v_lshl_add_u32 v13, v14, 1, v13",
               "v_mul_u32_u24 v13, 36, v13", "v_lshrrev_b32 v14, 3, v0", "v_mul_u32_u24 v14, 0x480, v14",
               f"s_mul_i32 s{S_T0}, s{S_I}, {8*1152}", f"s_add_u32 s{S_T0}, s{S_T0}, s{S_T1}", f"s_add_u32 s{S_T0}, s{S_T0}, 32",
               f"v_add3_u32 v12, v13, v14, s{S_T0}",
               f"s_lshl_b32 s{S_M0A}, s{S_I}, 10", f"s_lshl_b32 s{S_M0R}, s{S_PBI}, 8", f"s_add_u32 s{S_M0R}, s{S_M0R}, 4096",
               f"s_mul_i32 s{S_ROW}, s{S_GI}, {64*1152}")
        if d:
            self.a(f"s_add_u32 s{S_ROW}, s{S_ROW}, {32*d*1152}", f"s_cmp_ge_u32 s{S_ROW}, {576*1152}",
                   f"s_cselect_b32 s{S_T0}, {576*1152}, 0", f"s_sub_u32 s{S_ROW}, s{S_ROW}, s{S_T0}")

    def wq_dma(self, d):
        s0, s1 = slot_addr(2 * d), slot_addr(2 * d + 1)
        ld = lambda r, x: f"buffer_load_dword{x} v{r}, s[{R_WQ}:{R_WQ+3}], s{S_ROW} offen lds"
        self.a(f"s_add_u32 m0, s{S_M0A}, {s0}", f"s_mul_i32 s{S_T1}, s{S_HQ}, {s1-s0}", ld(10, 'x4'),
               f"s_add_u32 m0, s{S_M0A}, {s1}", f"s_add_u32 s{S_T1}, s{S_T1}, s{S_M0R}", ld(11, 'x4'),
               f"s_add_u32 m0, s{S_T1}, {s0}", f"s_add_u32 s{S_T0}, s{S_ROW}, {32*1152}", ld(12, ''),
               f"s_cmp_ge_u32 s{S_T0}, {576*1152}", f"s_cselect_b32 s{S_T1}, {576*1152}, 0", f"s_sub_u32 s{S_ROW}, s{S_T0}, s{S_T1}")

    GROUPS = [(4, 3), (7, 9), (10, 15), (13, 21), (15, 27), (17, 31)]

    def early_front(self):
        a, o = self.a, self.o
        self.stamp(2, 2)
        self.table_load()
        self.wq_setup(0)
        self.wq_dma(0)
        a("s_waitcnt vmcnt(4)")
        self.stamp(3, 2)
        a("s_barrier")
        self.wq_dma(1)
        self.wq_dma(2)
        self.rest_srds()
        a("v_and_b32 v16, 31, v0", "v_lshrrev_b32 v13, 5, v0", "v_bfe_u32 v14, v0, 1, 3", "v_xor_b32 v13, v13, v14", "v_lshlrev_b32 v13, 4, v13",
          "v_and_b32 v14, 7, v0", "v_lshl_add_u32 v13, v14, 7, v13", "v_lshrrev_b32 v16, 3, v16", "v_mul_u32_u24 v16, 0x2400, v16",
          f"s_mul_i32 s{S_T0}, s{S_PBI}, {4*9216}", f"s_add_u32 s{S_T0}, s{S_T0}, {L_X}", f"v_add3_u32 v104, v16, v13, s{S_T0}",
          "v_xor_b32 v105, 32, v104", "v_xor_b32 v106, 64, v104", "v_xor_b32 v107, 0x60, v104")
        a("v_bfe_u32 v18, v0, 2, 2",
          "v_and_b32 v13, 3, v0",
          "v_bfe_u32 v14, v0, 4, 1",
          "v_lshrrev_b32 v15, 5, v0",
          "v_lshl_add_u32 v15, v15, 3, v18",
          f"s_lshl_b32 s{S_T0}, s{S_HQ}, 3",
          "v_lshrrev_b32 v16, 1, v13", "v_lshl_add_u32 v16, v14, 1, v16", f"v_or_b32 v16, s{S_T0}, v16",
          "v_lshlrev_b32 v17, 2, v18", "v_xor_b32 v16, v16, v17", "v_lshlrev_b32 v16, 4, v16",
          "v_and_b32 v13, 1, v13", "v_lshl_add_u32 v16, v13, 3, v16", "v_lshl_add_u32 v6, v15, 8, v16", "v_xor_b32 v7, 64, v6",
          f"s_lshl_b32 s{S_T0}, s{S_HQ}, 4", f"s_add_u32 s{S_T0}, s{S_T0}, 4096", "v_lshlrev_b32 v13, 3, v13", "v_lshl_add_u32 v13, v15, 5, v13",
          f"v_add_u32 v19, s{S_T0}, v13")
        a(f"s_mul_i32 s{S_T0}, s{S_WAVE}, 2560", f"v_add_u32 v96, s{S_T0}, v1", "v_lshlrev_b32 v97, 3, v0", f"v_add_u32 v97, s{S_T0}, v97",
          f"v_mov_b32 v{V_IDX}, 0xdddddddd", f"v_add_u32 v{V_AK}, {L_KV}, v1", f"v_lshlrev_b32 v{V_AR}, 2, v0", f"v_add_u32 v{V_AR}, {L_KV+2048}, v{V_AR}",
          "v_mov_b32 v102, 0", "v_mov_b32 v103, 0", f"v_mov_b32 v98, {L_KMAX}")
        a("v_mov_b32 v100, 1", "v_mov_b32 v101, 0")
        self.wq_dma(3)
        self.wq_dma(4)
        self.stamp(1)
        self.stamp(4, 2)
        a("s_barrier")
        self.stamp(5, 2)
        XF = 112
        T0, T1, TR = 24, 40, 56
        FB = [72, 84]
        state = dict(base=0)

        def rd(ks):
            x = []
            off = slot_addr(ks) - state['base']
            if off < 0 or off + 1024 > 65535:
                d = slot_addr(ks) - state['base']
                x += [f"v_add_u32 v{r}, {d}, v{r}" if d > 0 else f"v_subrev_u32 v{r}, {-d}, v{r}" for r in (6, 7, 19)]
                state['base'] = slot_addr(ks)
                off = 0
            f = FB[ks & 1]
            return x, [f"ds_read_b64_tr_b16 {vr(f,2)}, v6 offset:{off}", f"ds_read_b64_tr_b16 {vr(f+2,2)}, v6 offset:{off+1024}",
                       f"ds_read_b64_tr_b16 {vr(f+4,2)}, v7 offset:{off}", f"ds_read_b64_tr_b16 {vr(f+6,2)}, v7 offset:{off+1024}",
                       f"ds_read_b64_tr_b16 {vr(f+8,2)}, v19 offset:{off}", f"ds_read_b64_tr_b16 {vr(f+10,2)}, v19 offset:{off+128}"]

        def mm(ks):
            f = FB[ks & 1]
            c = "0" if ks == 0 else None
            return [K16(T0, f, XF + 4 * ks, c), K16(T1, f + 4, XF + 4 * ks, c), K16(TR, f + 8, XF + 4 * ks, c)]
        for i in range(36):
            a(f"ds_read_b128 {vr(XF+4*i,4)}, v{104+(i&3)} offset:{(i>>2)*1024}")
        a("s_waitcnt vmcnt(9)", f"v_mov_b32 v{V_AV}, v20", "v_mov_b32 v21, 0x3f803f80", "s_waitcnt lgkmcnt(0)", "s_barrier")
        self.stamp(2)
        self.stamp(6, 2)
        a(rd(0)[1])
        ev = {k: ["s_barrier"] for _, k in self.GROUPS}
        ev[3] = ["s_waitcnt vmcnt(0)", "s_barrier"]
        ev[9] = ["s_barrier", f"s_cmp_lg_u32 s{S_WAVE}, 3", "s_cbranch_scc1 L_nosig", f"s_lshl_b32 s{S_T0}, s{S_B}, 7", "s_mov_b64 exec, 1",
                 f"buffer_atomic_add v100, v101, s[{R_DBG}:{R_DBG+3}], s{S_T0} offen sc1", "s_mov_b64 exec, -1", "L_nosig:"]
        for ks in range(36):
            m = mm(ks)
            if ks in ev:
                a(ev[ks])
            if ks + 1 < 36:
                pre, n = rd(ks + 1)
                a(pre, n[0:2], "s_waitcnt lgkmcnt(6)", m[0], n[2:4], "s_waitcnt lgkmcnt(6)", m[1], n[4:6], "s_waitcnt lgkmcnt(6)", m[2])
            else:
                a("s_waitcnt lgkmcnt(4)", m[0], "s_waitcnt lgkmcnt(2)", m[1], "s_waitcnt lgkmcnt(0)", m[2])
        self.stamp(3)
        H = 72
        a(f"v_mov_b32 v{KR[0]+1}, 0x3f803f80", f"s_mov_b32 s{S_BAR}, {32//o['unp'] - o['barit']}", f"s_mov_b32 s{S_STG}, 0", "s_nop 4")
        for j in range(8):
            a(f"v_cvt_pk_bf16_f32 v{QM[0]+j}, v{T0+2*j}, v{T0+2*j+1}")
        for j in range(8):
            a(f"v_cvt_pk_bf16_f32 v{H+j}, v{T1+2*j}, v{T1+2*j+1}")
        a(f"v_cvt_pk_bf16_f32 v{H+8}, v{TR+2}, v{TR+3}", f"v_cvt_pk_bf16_f32 v{QR}, v{TR}, v{TR+1}")
        a(f"ds_write_b128 v96, {vr(H,4)}", f"ds_write_b128 v96, {vr(H+4,4)} offset:1024")
        self.norm2((H, H + 8, H + 9, 85), (QM[0], QR, QR + 1, 86))
        a(f"ds_write_b64 v97, {vr(H+8,2)} offset:2048")
        a(K8Z(O[0], 102), K8Z(O[1], 102))
        a("s_waitcnt lgkmcnt(0)")
        a("s_barrier")
        a("ds_read_b32 v6, v98")
        self.main_prologue_loads()
        a([f"v_mov_b32 v{r}, 0" for r in range(VV[1][1], VV[1][1] + 4)])
        if o['prio']:
            a("s_setprio 2")
        a("s_waitcnt lgkmcnt(0)", "s_branch L_attn")

    def late_front(self):
        a, o = self.a, self.o
        a.label("L_late")
        a("s_setprio 1")
        self.stamp(2, 2)
        a(f"s_xor_b32 s{S_T4}, s{S_T4}, 4", f"s_add_u32 s{S_XB}, s{S_T5}, s{S_T4}", f"s_mul_i32 s{S_XB}, s{S_XB}, {8*1152}",
          f"s_mul_i32 s{S_XM}, s{S_T4}, 9216", f"s_add_u32 s{S_XM}, s{S_XM}, {L_X}", f"s_movk_i32 s{S_DI}, 1024", f"s_movk_i32 s{S_DS}, 128")
        self.dma9_setup(S_HG)
        self.dma9(R_X, 8)
        self.stamp(3, 2)
        self.table_load()
        self.wq_setup(5)
        self.rest_srds()
        a("v_and_b32 v13, 15, v0", "v_lshrrev_b32 v16, 4, v0",
          "v_bfe_u32 v17, v0, 1, 3", "v_xor_b32 v17, v16, v17", "v_lshlrev_b32 v17, 4, v17",
          "v_and_b32 v18, 7, v0", "v_lshl_add_u32 v17, v18, 7, v17", "v_bfe_u32 v18, v0, 3, 1", "v_mul_u32_u24 v18, 0x2400, v18",
          f"s_lshr_b32 s{S_T0}, s{S_HG}, 1", f"s_lshl_b32 s{S_T0}, s{S_T0}, 1", f"s_add_u32 s{S_T0}, s{S_T0}, s{S_PBI}",
          f"s_mul_i32 s{S_T1}, s{S_T0}, {2*9216}", f"s_add_u32 s{S_T1}, s{S_T1}, {L_X}", f"v_add3_u32 v14, v17, v18, s{S_T1}", "v_xor_b32 v15, 64, v14",
          "v_bfe_u32 v17, v0, 2, 2", "v_lshl_add_u32 v17, v16, 3, v17",
          "v_mul_u32_u24 v17, 48, v17", "v_and_b32 v18, 3, v0", "v_lshlrev_b32 v18, 3, v18",
          f"s_cmp_eq_u32 s{S_HQ}, 0", "s_cselect_b64 vcc, -1, 0", "v_mov_b32 v19, 32", "v_cndmask_b32 v18, v19, v18, vcc", f"v_add_u32 v17, {L_W}, v17", "v_add_u32 v17, v17, v18")
        a("v_lshrrev_b32 v18, 4, v0", "v_and_b32 v19, 1, v18", "v_lshlrev_b32 v19, 9, v19", "v_lshl_add_u32 v19, v13, 4, v19",
          "v_lshrrev_b32 v18, 1, v18", "v_lshl_add_u32 v28, v18, 3, v19", "v_lshlrev_b32 v29, 2, v13",
          f"s_mul_i32 s{S_KVS}, s{S_PG}, {PB}", f"s_mov_b32 s{S_OEX}, s{S_T0}")
        a("s_waitcnt vmcnt(10)")
        self.stamp(1)
        self.stamp(4, 2)
        a("s_barrier")
        a(f"s_bitcmp1_b32 s{S_HG}, 0", "s_cbranch_scc1 L_vproj")
        D = 32
        NB = o['nb']
        for isv in (0, 1):
            if isv:
                a.label("L_vproj")

            def rd(s):
                xb = 40 + 8 * (s % NB)
                return [f"ds_read_b128 {vr(xb,4)}, v{14+(s&1)} offset:{(s>>1)*1024}",
                        f"ds_read_b64_tr_b16 {vr(xb+4,2)}, v17 offset:{s*1536}", f"ds_read_b64_tr_b16 {vr(xb+6,2)}, v17 offset:{s*1536+192}"]
            for s in range(NB - 1):
                a(rd(s))
            for s in range(18):
                if s == o['sb']:
                    a("s_waitcnt vmcnt(0)", "s_barrier")
                if s + NB - 1 < 18:
                    a(rd(s + NB - 1))
                left = min(18 - 1 - s, NB - 1)
                xb = 40 + 8 * (s % NB)
                c = "0" if s == 0 else None
                a(f"s_waitcnt lgkmcnt({min(15,3*left)})", M16(D, xb, xb + 4, c) if isv else M16(D, xb + 4, xb, c))
            g = S_OEX
            if not isv:
                a(f"s_lshr_b32 s{S_T0}, s{g}, 1", f"s_lshl_b32 s{S_T0}, s{S_T0}, 10", f"s_lshl_b32 s{S_T1}, s{S_PBI}, 8", f"s_add_u32 s{S_T0}, s{S_T0}, s{S_T1}",
                  f"s_add_u32 s{S_T0}, s{S_T0}, s{S_KVS}",
                  f"s_lshl_b32 s{S_T1}, s{g}, 6", f"s_add_u32 s{S_T1}, s{S_T1}, s{S_KVS}", f"s_add_u32 s{S_T1}, s{S_T1}, 2048",
                  f"s_mov_b32 s{S_T2}, {hex(f2u(CSCALE))}")
                for r in range(4):
                    a(f"v_mul_f32 v{D+r}, s{S_T2}, v{D+r}")
                a(f"v_cvt_pk_bf16_f32 v{D}, v{D}, v{D+1}", f"v_cvt_pk_bf16_f32 v{D+1}, v{D+2}, v{D+3}",
                  f"s_lshl_b32 s{S_T3}, s{S_PG}, 2", f"s_add_u32 s{S_T3}, s{S_T3}, s{g}", f"s_lshl_b32 s{S_T3}, s{S_T3}, 2", f"s_add_u32 s{S_T3}, s{S_T3}, {WS_KN}",
                  f"v_dot2_f32_bf16 v36, v{D}, v{D}, 0",
                  f"s_cmp_eq_u32 s{S_HQ}, 0", "s_cbranch_scc0 L_krem",
                  f"buffer_store_dwordx2 {vr(D,2)}, v28, s[{R_WS}:{R_WS+3}], s{S_T0} offen sc1",
                  f"v_dot2_f32_bf16 v36, v{D+1}, v{D+1}, v36", "s_nop 2", "v_mov_b32 v37, v36", "s_nop 1",
                  "v_permlane16_swap_b32 v36, v37", "s_nop 1", "v_add_f32 v36, v36, v37", "s_nop 0", "v_mov_b32 v37, v36", "s_nop 1",
                  "v_permlane32_swap_b32 v36, v37", "s_nop 1", "v_add_f32 v36, v36, v37", "s_branch L_knorm",
                  "L_krem:", "s_mov_b64 exec, 0xffff",
                  f"buffer_store_dword v{D}, v29, s[{R_WS}:{R_WS+3}], s{S_T1} offen sc1", "s_mov_b64 exec, -1", f"s_add_u32 s{S_T3}, s{S_T3}, 512",
                  "L_knorm:", "s_nop 1")
                self.row_max16(36)
                a("v_mov_b32 v37, 0", "s_mov_b64 exec, 1", f"buffer_store_dword v36, v37, s[{R_WS}:{R_WS+3}], s{S_T3} offen sc1", "s_mov_b64 exec, -1",
                  "s_branch L_kvdone")
            else:
                a(f"s_mul_i32 s{S_T0}, s{g}, {VG}", f"s_add_u32 s{S_T0}, s{S_T0}, s{S_KVS}", f"s_add_u32 s{S_T0}, s{S_T0}, 2304",
                  "v_cmp_eq_u32 vcc, 2, v13", f"v_cmp_eq_u32 s[{S_EX}:{S_EX+1}], 3, v13", "v_mov_b32 v30, 0x3f803f80", "s_nop 0",
                  f"s_cmp_eq_u32 s{S_HQ}, 0",
                  f"v_cvt_pk_bf16_f32 v{D}, v{D}, v{D+1}", f"v_cvt_pk_bf16_f32 v{D+1}, v{D+2}, v{D+3}", "s_cbranch_scc0 L_vrem",
                  f"buffer_store_dwordx2 {vr(D,2)}, v21, s[{R_WS}:{R_WS+3}], s{S_T0} offen sc1", "s_branch L_kvdone",
                  "L_vrem:",
                  f"v_cndmask_b32 v{D}, v{D}, v30, vcc", f"v_cndmask_b32 v{D+1}, v{D+1}, v30, vcc",
                  f"v_cndmask_b32 v{D}, v{D}, 0, s[{S_EX}:{S_EX+1}]", f"v_cndmask_b32 v{D+1}, v{D+1}, 0, s[{S_EX}:{S_EX+1}]",
                  "s_mov_b32 exec_lo, 0x000f000f", "s_mov_b32 exec_hi, 0x000f000f",
                  f"buffer_store_dwordx2 {vr(D,2)}, v22, s[{R_WS}:{R_WS+3}], s{S_T0} offen sc1", "s_mov_b64 exec, -1")
        a.label("L_kvdone")
        self.stamp(2)
        self.stamp(5, 2)
        a(f"v_mov_b32 v{V_AV}, v20")
        self.wq_dma(5)
        a("s_barrier")
        nxt = 6
        for gi_, (last, _) in enumerate(self.GROUPS):
            lim = 16 if gi_ < 3 else 17
            while nxt <= min(last + o['win'], lim):
                self.wq_dma(nxt)
                nxt += 1
            assert nxt > last
            if gi_ > 0:
                a(f"s_waitcnt vmcnt({3*(nxt-1-last)})")
            if gi_ == 2:
                a(f"v_mov_b32 v150, {L_FLAG}", "v_mov_b32 v152, 0", "v_mov_b32 v153, 0", "v_mov_b32 v151, 0", "ds_write_b64 v150, v[152:153]", "s_waitcnt lgkmcnt(0)")
            if gi_ == len(self.GROUPS) - 1:
                self.init_main_regs()
            a("s_barrier")
        self.stamp(3)
        self.stamp(6, 2)
        a(f"s_and_b32 s{S_T0}, s{S_GI}, 3", f"s_mul_i32 s{S_KVS}, s{S_T0}, {37*1024}", f"s_add_u32 s{S_KVS}, s{S_KVS}, s{S_M0A}")
        a(f"s_mov_b32 s{S_CNT}, {SPIN}", f"s_cmp_lg_u32 s{S_WAVE}, 4", "s_cbranch_scc1 L_relay", f"s_lshl_b32 s{S_T0}, s{S_B}, 7")
        a("L_poll1:", f"buffer_load_dword v152, v151, s[{R_DBG}:{R_DBG+3}], s{S_T0} offen sc0 sc1", f"s_sub_u32 s{S_CNT}, s{S_CNT}, 1",
          "s_cbranch_scc1 L_poll1d", "s_waitcnt vmcnt(0)", "v_cmp_gt_u32 vcc, 0x80, v152", "s_cbranch_vccnz L_poll1",
          "L_poll1d:", "v_mov_b32 v152, 1", "ds_write_b32 v150, v152", "v_lshlrev_b32 v153, 3, v0", f"s_mov_b32 s{S_T0}, {WS_KN}",
          f"buffer_load_dwordx2 v[154:155], v153, s[{R_WS}:{R_WS+3}], s{S_T0} offen sc1",
          f"buffer_load_dwordx2 v[156:157], v153, s[{R_WS}:{R_WS+3}], s{S_T0} offen offset:512 sc1", "s_branch L_flagok")
        a("L_relay:", "ds_read_b32 v152, v150", f"s_sub_u32 s{S_CNT}, s{S_CNT}, 1", "s_cbranch_scc1 L_flagok", "s_waitcnt lgkmcnt(0)",
          "v_cmp_eq_u32 vcc, 0, v152", "s_cbranch_vccnz L_relay", "L_flagok:")
        self.stamp(4)
        self.kv_dma(0, o['kv1'])
        a(f"s_cmp_lg_u32 s{S_WAVE}, 4", "s_cbranch_scc1 L_nokn", f"s_waitcnt vmcnt({o['kv1']})", "v_max_f32 v154, v154, v155", "v_max_f32 v156, v156, v157")
        self.row_max16(154)
        self.row_max16(156)
        a("s_nop 0")
        for k in range(4):
            a(f"v_readlane_b32 s{16+k}, v154, {16*k}", f"v_readlane_b32 s{20+k}, v156, {16*k}")
        a("s_nop 1", "s_max_u32 s16, s16, s17", "s_max_u32 s18, s18, s19", "s_max_u32 s20, s20, s21", "s_max_u32 s22, s22, s23",
          "s_max_u32 s16, s16, s18", "s_max_u32 s20, s20, s22", "v_mov_b32 v154, s16", "v_add_f32 v154, s20, v154", "v_sqrt_f32 v154, v154",
          f"v_mov_b32 v155, {L_KMAX}", "ds_write_b32 v155, v154", "L_nokn:")
        a(f"v_mov_b32 v{V_IDX}, 0xdddddddd", f"v_add_u32 v{V_AK}, {L_KV}, v1", f"v_lshlrev_b32 v{V_AR}, 2, v0", f"v_add_u32 v{V_AR}, {L_KV+2048}, v{V_AR}",
          f"s_mul_i32 s{S_T0}, s{S_I}, 2560", f"v_add_u32 v8, s{S_T0}, v1", "v_lshlrev_b32 v9, 3, v0", f"v_add_u32 v9, s{S_T0}, v9", f"v_mov_b32 v6, {L_KMAX}")
        a("s_waitcnt vmcnt(0) lgkmcnt(0)", "s_barrier")
        a("ds_read_b32 v6, v6", f"ds_read_b64 {vr(QR,2)}, v9 offset:2048", f"ds_read_b128 {vr(QM[1],4)}, v8 offset:1024", f"ds_read_b128 {vr(QM[0],4)}, v8")
        self.kv_dma(4 * o['kv1'], 37 - o['kv1'])
        a("s_waitcnt vmcnt(0) lgkmcnt(0)")
        self.stamp(5)
        a("s_barrier")
        self.wo_job_loads(0)
        a(f"s_cmp_ge_u32 s{S_OEX}, {648-512}", "s_cbranch_scc1 L_nowo2", f"s_add_u32 s{S_OEX}, s{S_OEX}, 512")
        self.wo_job_loads(1)
        a("L_nowo2:")
        self.poison()
        a("s_waitcnt vmcnt(5)", f"s_cmp_ge_u32 s{S_OEX}, 512", "s_cbranch_scc0 L_wo3")
        self.wo_job_finish(1)
        a(f"s_sub_u32 s{S_OEX}, s{S_OEX}, 512", "L_wo3:")
        self.wo_job_finish(0)
        self.main_prologue_loads()
        self.join_signal(200, "l")
        a("s_mov_b64 exec, -1", f"s_mov_b32 s{S_BAR}, -1", f"s_mov_b32 s{S_STG}, 1")

    def join_signal(self, v, tag):
        self.a(f"v_mov_b32 v{v}, {L_FLAG+4}", f"v_mov_b32 v{v+1}, 1", f"v_mov_b32 v{v+3}, 0", f"s_lshl_b32 s{S_T0}, s{S_B}, 7", "s_mov_b64 exec, 1",
               "s_waitcnt vmcnt(0)", f"ds_add_rtn_u32 v{v+2}, v{v}, v{v+1}", "s_waitcnt lgkmcnt(0)", f"v_cmp_eq_u32 vcc, 3, v{v+2}", f"s_cbranch_vccz L_js{tag}",
               f"buffer_atomic_add v{v+1}, v{v+3}, s[{R_DBG}:{R_DBG+3}], s{S_T0} offen offset:4 sc1", f"L_js{tag}:")

    def wo_job_loads(self, rep):
        a = self.a
        if rep == 0:
            a(f"s_lshl_b32 s{S_OEX}, s{S_PG}, 2", f"s_add_u32 s{S_OEX}, s{S_OEX}, s{S_HG}", f"s_lshl_b32 s{S_OEX}, s{S_OEX}, 2", f"s_add_u32 s{S_OEX}, s{S_OEX}, s{S_I}")
        f = S_OEX
        AD, DT = 208, 216 + 8 * rep
        a(f"s_mul_i32 s16, s{f}, 7282", "s_lshr_b32 s16, s16, 16", "s_mul_i32 s17, s16, 9", f"s_sub_u32 s17, s{f}, s17",
          "s_mul_i32 s18, s16, 7282", "s_lshr_b32 s18, s18, 16", "s_mul_i32 s19, s18, 9", "s_sub_u32 s19, s16, s19",
          "s_and_b32 s20, s18, 1", "s_lshr_b32 s21, s18, 1")
        a("s_mul_i32 s22, s21, 288", "s_lshr_b32 s23, s17, 1", "s_lshl_b32 s23, s23, 6", "s_add_u32 s22, s22, s23", "s_and_b32 s23, s17, 1", "s_lshl_b32 s23, s23, 3",
          "s_add_u32 s22, s22, s23", "s_cmp_eq_u32 s17, 8", "s_cselect_b32 s23, 3, 4",
          "v_bfe_u32 v200, v0, 2, 2", "v_lshlrev_b32 v200, s23, v200", "v_and_b32 v201, 3, v0", "v_lshl_add_u32 v200, v201, 1, v200", "v_add_u32 v200, s22, v200",
          f"s_mul_i32 s22, s20, {36*1152}", "s_cmp_eq_u32 s19, 8", f"s_cbranch_scc1 L_wok1_{rep}")
        cy = [(j & 3) + 8 * (j >> 2) for j in range(8)]
        a(f"s_mul_i32 s23, s19, {72*1152}", "s_add_u32 s22, s22, s23", "v_lshrrev_b32 v201, 5, v0", "v_bfe_u32 v202, v0, 4, 1",
          f"v_mul_u32_u24 v203, {4*1152}, v201", "v_add_u32 v203, v200, v203",
          f"v_mul_u32_u24 v204, {3*1152}, v201", f"v_sub_u32 v204, {16*1152}, v204", "v_mul_u32_u24 v204, v202, v204", f"v_add_u32 v{AD}, v203, v204")
        for j in range(1, 8):
            dj = 18 + cy[j-1] - cy[j]
            a(f"v_mul_u32_u24 v204, {dj*1152}, v202", f"v_add_u32 v204, {cy[j]*1152}, v204", f"v_add_u32 v{AD+j}, v203, v204")
        a(f"s_branch L_wold_{rep}", f"L_wok1_{rep}:", "v_lshrrev_b32 v201, 4, v0", f"v_mul_u32_u24 v201, {144*1152}, v201", "v_add_u32 v203, v200, v201")
        for j in range(8):
            hq, hh, e = j >> 2, (j >> 1) & 1, j & 1
            row = 72 * hq + 18 + ((16 + hh) if e else (11 + 4 * hh))
            a(f"v_add_u32 v{AD+j}, {row*1152}, v203")
        a(f"L_wold_{rep}:")
        for j in range(8):
            a(f"buffer_load_ushort v{DT+j}, v{AD+j}, s[{R_WO}:{R_WO+3}], s22 offen")

    def wo_job_finish(self, rep):
        a = self.a
        DT = 216 + 8 * rep
        a(f"s_lshl_b32 s22, s{S_OEX}, 10", f"s_add_u32 s22, s22, {WS_WOT}")
        for j in range(4):
            a(f"v_lshl_or_b32 v{232+4*rep+j}, v{DT+1+2*j}, 16, v{DT+2*j}")
        a(f"buffer_store_dwordx4 {vr(232+4*rep,4)}, v1, s[{R_WS}:{R_WS+3}], s22 offen sc1")

    def poison(self):
        a = self.a
        a([f"v_mov_b32 v{176+j}, -1" for j in range(4)])
        a(f"s_mul_i32 s24, s{S_PG}, {OEX_G}", f"s_mul_i32 s25, s{S_HQ}, {OEX_S}", "s_add_u32 s24, s24, s25", f"s_add_u32 s24, s24, {WS_OEX}",
          f"s_lshl_b32 s25, s{S_HG}, 13", f"s_lshl_b32 s26, s{S_PBI}, 12", "s_add_u32 s25, s25, s26", "s_add_u32 s25, s25, s24",
          f"s_lshl_b32 s26, s{S_HG}, 6", "s_add_u32 s26, s26, s24", "s_add_u32 s26, s26, 32768",
          "v_lshrrev_b32 v180, 2, v0", "v_lshlrev_b32 v180, 8, v180", "v_and_b32 v181, 3, v0", "v_lshl_add_u32 v180, v181, 4, v180")
        for k in range(4):
            a(f"buffer_store_dwordx4 v[176:179], v1, s[{R_WS}:{R_WS+3}], s25 offen offset:{k*1024} sc0 sc1")
        a(f"buffer_store_dwordx4 v[176:179], v180, s[{R_WS}:{R_WS+3}], s26 offen sc0 sc1")

    def coop_load(self, n, tag):
        a = self.a
        B = 8
        a(f"s_lshl_b32 s{S_T0}, s{S_WAVE}, 10", f"v_add_u32 v6, s{S_T0}, v1", f"s_add_u32 s{S_T0}, s{S_T0}, s{S_OEXB}", f"s_add_u32 s{S_T0}, s{S_T0}, {OEX_S}")
        for k in range(1, n):
            a(f"s_add_u32 s{16+k}, s{S_T0}, {8192*k}")
        a(f"s_mov_b32 s{S_CNT}, {SPIN}")
        a("s_barrier")
        if tag == 'l':
            self.stamp(1, 1)
        a.label(f"L_cl{tag}")
        for k in range(n):
            a(f"buffer_load_dwordx4 {vr(B+4*k,4)}, v1, s[{R_WS}:{R_WS+3}], s{16+k if k else S_T0} offen sc0 sc1")
        a(f"s_sub_u32 s{S_CNT}, s{S_CNT}, 1", f"s_cbranch_scc1 L_cld{tag}")
        for k in range(n):
            r = B + 4 * k
            a(f"s_waitcnt vmcnt({n-1-k})")
            if k == 0:
                a(f"v_max3_u32 v7, v{r}, v{r+1}, v{r+2}", f"v_max_u32 v7, v7, v{r+3}")
            else:
                a(f"v_max3_u32 v7, v7, v{r}, v{r+1}", f"v_max3_u32 v7, v7, v{r+2}, v{r+3}")
        a("v_cmp_eq_u32 vcc, -1, v7", f"s_cbranch_vccnz L_cl{tag}", f"L_cld{tag}:", "s_waitcnt vmcnt(0)")
        if tag == 'l':
            self.stamp(2, 1)
            if self.o['stamps'] and self.o['set'] == 1:
                a(f"s_mov_b32 s{S_ST+8}, s{S_CNT}")
        for k in range(n):
            a(f"ds_write_b128 v6, {vr(B+4*k,4)} offset:{L_KV + 8192*k}")
        a("s_waitcnt lgkmcnt(0)", "s_barrier")
        if tag == 'l':
            self.stamp(3, 1)

    def attention(self):
        a, o = self.a, self.o
        UNP = o['unp']
        a.label("L_attn")
        a(f"v_mul_f32 v7, v6, v{QR+1}", f"v_mov_b32 v6, {hex(f2u(-1.0 if o['force_fb'] else TSAFE))}",
          "v_cmp_nle_f32 vcc, v7, v6", "v_sub_f32 v7, 0, v7", f"v_cvt_pk_bf16_f32 v{QR+1}, v7, 0", "s_cbranch_vccnz L_fallback", "L_fbdone:")
        q = self.qk(S[0], 0)
        a("s_nop 0", q[0], "s_nop 15", "s_nop 1", q[1], q[2], f"s_mov_b32 s{S_CNT}, {32//UNP}", "s_nop 9")
        self.stamp(6)
        body = []
        for kb in range(2 * UNP):
            cur, nxt = S[kb % 2], S[(kb + 1) % 2]
            q = self.qk(nxt, kb + 1)
            e = EX(cur, 32)
            sm3p = SM(O[1], VV[(kb - 1) % 2][1], nxt + 24)
            sm = [SM(O[0], VV[kb % 2][0], cur), SM(O[0], VV[kb % 2][1], cur + 8), SM(O[1], VV[kb % 2][0], cur + 16)]
            cl = self.ldKm(kb + 2) + (self.ldKr((kb + 3) // 2) if kb % 2 == 1 else []) + self.ldV(kb + 1)
            body += e[0:2] + [sm3p] + e[2:5] + [q[0]] + e[5:13] + ["s_waitcnt lgkmcnt(0)", sm[0]] + e[13:18] + [sm[1]] + e[18:21] + [q[1]] + e[21:24] + [q[2]] + cl + e[24:27] + [sm[2]] + e[27:32]
        body += [f"v_add_u32 v{V_AK}, {UNP*PB}, v{V_AK}", f"v_add_u32 v{V_AR}, {UNP*PB}, v{V_AR}", f"v_add_u32 v{V_AV}, {UNP*PB}, v{V_AV}"]
        self.loop_body = body
        a(".p2align 6", "L_main:", body, f"s_sub_u32 s{S_CNT}, s{S_CNT}, 1", f"s_cmp_lg_u32 s{S_CNT}, s{S_BAR}", "s_cbranch_scc1 L_nob7", "s_barrier", "L_nob7:",
          f"s_cmp_lg_u32 s{S_CNT}, 0", "s_cbranch_scc1 L_main")
        a(f"v_mov_b32 v22, {L_FLAG+4}", SM(O[1], VV[1][1], S[1] + 24), "ds_read_b32 v23, v22")
        self.stamp(7)
        a(f"s_mul_i32 s{S_OEXB}, s{S_PG}, {OEX_G}", f"s_add_u32 s{S_OEXB}, s{S_OEXB}, {WS_OEX}", f"s_mul_i32 s{S_T0}, s{S_STG}, {OEX_S}", f"s_add_u32 s{S_T0}, s{S_T0}, s{S_OEXB}",
          f"s_lshl_b32 s{S_T1}, s{S_PBI}, 11", f"s_add_u32 s{S_T0}, s{S_T0}, s{S_T1}",
          f"s_lshl_b32 s{S_T1}, s{S_HG}, 13", f"s_lshl_b32 s{S_T2}, s{S_HQ}, 12", f"s_add_u32 s{S_T1}, s{S_T1}, s{S_T2}", f"s_add_u32 s{S_T1}, s{S_T1}, s{S_T0}",
          f"s_lshl_b32 s{S_T2}, s{S_HG}, 6", f"s_lshl_b32 s{S_T3}, s{S_HQ}, 9", f"s_add_u32 s{S_T2}, s{S_T2}, s{S_T3}", f"s_add_u32 s{S_T2}, s{S_T2}, s{S_T0}",
          f"s_add_u32 s{S_T2}, s{S_T2}, 32768",
          "v_bfe_u32 v10, v0, 4, 1", "v_lshlrev_b32 v10, 10, v10", "v_lshrrev_b32 v11, 5, v0", "v_and_b32 v12, 15, v0",
          "v_lshl_add_u32 v8, v11, 9, v10", "v_lshl_add_u32 v8, v12, 4, v8", "v_lshl_add_u32 v9, v11, 8, v10", "v_lshl_add_u32 v9, v12, 2, v9")
        a(f"v_rcp_f32 v10, v{O[0]+9}", f"v_rcp_f32 v11, v{O[1]+9}")
        vals = [O[0] + j for j in range(9)] + [O[1] + j for j in range(9)]
        for j, r in enumerate(vals):
            a(f"v_mul_f32 v{r}, v{r}, v{10 if j < 9 else 11}")
        a(f"s_mov_b32 s{S_CNT}, {SPIN}", "L_pchk:", "s_waitcnt lgkmcnt(0)", "v_cmp_gt_u32 vcc, 4, v23", "s_cbranch_vccz L_pok",
          "ds_read_b32 v23, v22", f"s_sub_u32 s{S_CNT}, s{S_CNT}, 1", "s_cbranch_scc0 L_pchk", "L_pok:")
        for j in range(9):
            a(f"v_cvt_pk_bf16_f32 v{12+j}, v{vals[2*j]}, v{vals[2*j+1]}")
            if j == 3:
                a(f"buffer_store_dwordx4 v[12:15], v8, s[{R_WS}:{R_WS+3}], s{S_T1} offen sc0 sc1")
            if j == 7:
                a(f"buffer_store_dwordx4 v[16:19], v8, s[{R_WS}:{R_WS+3}], s{S_T1} offen offset:256 sc0 sc1")
        a(f"buffer_store_dword v20, v9, s[{R_WS}:{R_WS+3}], s{S_T2} offen sc0 sc1")
        a(f"s_cmp_eq_u32 s{S_STG}, 0", "s_cbranch_scc1 L_oproj")
        self.coop_load(4, "l")
        self.dump_stamps()
        a("s_endpgm")

    def fallback(self):
        a, o = self.a, self.o
        a.label("L_fallback")
        a(f"s_cmp_eq_u32 s{S_STG}, 1", "s_cbranch_scc1 L_fb1", "s_barrier", f"s_mov_b32 s{S_BAR}, -1", "L_fb1:")
        a(f"v_mov_b32 v{QR+1}, 0", f"v_mov_b32 v144, v{V_AK}", f"v_mov_b32 v145, v{V_AR}", "v_mov_b32 v146, 0xff800000", "v_mov_b32 v147, 0xff800000",
          "v_mov_b32 v151, 0x3f803f80", f"s_mov_b32 s{S_CNT}, 32", "L_fbl:",
          "ds_read_b32 v150, v145", "ds_read_b128 v[152:155], v144", "ds_read_b128 v[156:159], v144 offset:1024",
          f"v_add_u32 v144, {PB}, v144", f"v_add_u32 v145, {PB}, v145", "s_waitcnt lgkmcnt(0)")
        for h in range(2):
            a(B2(160, 150, QR, h), "s_nop 15", "s_nop 1", K16(160, 152 + 4 * h, QM[0]), K16(176, 152 + 4 * h, QM[1]), "s_nop 11")
            for j in range(8):
                a(f"v_max3_f32 v146, v146, v{160+2*j}, v{161+2*j}", f"v_max3_f32 v147, v147, v{176+2*j}, v{177+2*j}")
        a(f"s_sub_u32 s{S_CNT}, s{S_CNT}, 1", f"s_cmp_lg_u32 s{S_CNT}, 0", "s_cbranch_scc1 L_fbl",
          "s_nop 0", "v_permlane32_swap_b32 v146, v147", "s_nop 1", "v_max_f32 v146, v146, v147", "v_sub_f32 v146, 0, v146",
          "v_cvt_pk_bf16_f32 v147, v146, 0", "v_lshlrev_b32 v148, 16, v147", "v_sub_f32 v148, v146, v148", f"v_cvt_pk_bf16_f32 v{QR+1}, v146, v148",
          "s_branch L_fbdone")

    def oproj(self):
        a, o = self.a, self.o
        a.label("L_oproj")
        if o['prio'] == 2:
            a("s_setprio 0")
        WF, ACC, OB = 148, 112, [8, 56]
        for tp in range(4):
            a(f"s_xor_b32 s{S_T0}, s{S_WAVE}, {tp}", f"s_lshl_b32 s{S_T0}, s{S_T0}, 10", f"v_add_u32 v{104+tp}, s{S_T0}, v1",
              f"v_lshlrev_b32 v{108+tp}, 2, v0", f"v_add_u32 v{108+tp}, s{S_T0}, v{108+tp}")
        a(f"s_mov_b32 s{S_CNT}, {SPIN}", f"s_lshl_b32 s{S_T0}, s{S_B}, 7", "v_mov_b32 v11, 0")
        self.stamp(1, 1)
        a("L_poll2:", f"buffer_load_dword v7, v11, s[{R_DBG}:{R_DBG+3}], s{S_T0} offen offset:4 sc0 sc1", f"s_sub_u32 s{S_CNT}, s{S_CNT}, 1",
          "s_cbranch_scc1 L_poll2d", "s_waitcnt vmcnt(0)", "v_cmp_gt_u32 vcc, 0x80, v7", "s_cbranch_vccz L_poll2d", "s_sleep 16", "s_branch L_poll2", "L_poll2d:")

        def wo_loads(stg):
            a(f"s_lshl_b32 s{S_T0}, s{S_HG}, 1", f"s_add_u32 s{S_T0}, s{S_T0}, {stg}", f"s_mul_i32 s{S_T0}, s{S_T0}, {81*1024}", f"s_add_u32 s{S_T0}, s{S_T0}, {WS_WOT}",
              f"s_lshl_b32 s{S_T1}, s{S_WAVE}, 11", f"s_add_u32 s{S_T1}, s{S_T1}, s{S_T0}", f"s_add_u32 s{S_T0}, s{S_T0}, 8192")
            for ks in range(9):
                a(f"buffer_load_dwordx4 {vr(WF+12*ks,4)}, v1, s[{R_WS}:{R_WS+3}], s{S_T1} offen sc1",
                  f"buffer_load_dwordx4 {vr(WF+12*ks+4,4)}, v1, s[{R_WS}:{R_WS+3}], s{S_T1} offen offset:1024 sc1",
                  f"buffer_load_dwordx4 {vr(WF+12*ks+8,4)}, v1, s[{R_WS}:{R_WS+3}], s{S_T0} offen sc1")
                if ks < 8:
                    a(f"s_add_u32 s{S_T1}, s{S_T1}, 9216", f"s_add_u32 s{S_T0}, s{S_T0}, 9216")

        def mms(ks, ob, first):
            w = WF + 12 * ks
            x = []
            for tp in range(4):
                c = "0" if first else None
                x.append([M16(ACC + 4 * tp, w, ob + 4 * tp, c), M16(ACC + 16 + 4 * tp, w + 4, ob + 4 * tp, c)] + ([M16(ACC + 32, w + 8, ob, c)] if tp == 0 else []))
            return x

        def loads(bt):
            buf = OB[bt % 2]
            x = []
            for k in range(3):
                ks = 3 * bt + k
                x.append(f"s_add_u32 s{S_T0}, s{S_OEXB}, {ks*4096}")
                for tp in range(4):
                    r = buf + 16 * k + 4 * tp
                    if ks < 8:
                        x.append(f"buffer_load_dwordx4 {vr(r,4)}, v{104+tp}, s[{R_WS}:{R_WS+3}], s{S_T0} offen sc0 sc1")
                    else:
                        x += [f"buffer_load_dword v{r+j}, v{108+tp}, s[{R_WS}:{R_WS+3}], s{S_T0} offen offset:{j*256} sc0 sc1" for j in range(4)]
            return x
        wo_loads(0)
        a("v_lshlrev_b32 v6, 6, v0", f"s_add_u32 s{S_T0}, s{S_OEXB}, 32768", f"s_mov_b32 s{S_CNT}, {SPIN}",
          "L_pre:", f"buffer_load_dword v7, v6, s[{R_WS}:{R_WS+3}], s{S_T0} offen sc0 sc1", f"s_sub_u32 s{S_CNT}, s{S_CNT}, 1",
          "s_cbranch_scc1 L_pred", "s_waitcnt vmcnt(0)", "v_cmp_eq_u32 vcc, -1, v7", "s_cbranch_vccz L_pred", "s_sleep 8", "s_branch L_pre", "L_pred:")
        self.stamp(2, 1)
        a(loads(0), loads(1))
        for bt in range(3):
            buf = OB[bt % 2]
            a(f"s_waitcnt vmcnt({ {0: 12, 1: 24, 2: 0}[bt] })", f"L_chk{bt}:", f"v_max3_u32 v6, v{buf}, v{buf+1}, v{buf+2}", f"v_max3_u32 v7, v{buf+3}, v{buf+4}, v{buf+5}")
            for j in range(6, 48, 4):
                if j + 3 < 48:
                    a(f"v_max3_u32 v6, v6, v{buf+j}, v{buf+j+1}", f"v_max3_u32 v7, v7, v{buf+j+2}, v{buf+j+3}")
                else:
                    a(f"v_max3_u32 v6, v6, v{buf+j}, v{buf+j+1}")
            a("v_max_u32 v6, v6, v7", "v_cmp_eq_u32 vcc, -1, v6", f"s_cbranch_vccz L_ok{bt}",
              f"s_sub_u32 s{S_CNT}, s{S_CNT}, 1", f"s_cbranch_scc1 L_ok{bt}", "s_waitcnt vmcnt(0)", loads(bt), "s_waitcnt vmcnt(0)", f"s_branch L_chk{bt}", f"L_ok{bt}:")
            for k in range(3):
                a(mms(3 * bt + k, buf + 16 * k, bt == 0 and k == 0))
            if bt == 0:
                a(loads(2))
        self.stamp(3, 1)
        wo_loads(1)
        for tp in range(4):
            a(f"v_add_u32 v{104+tp}, {L_KV}, v{104+tp}", f"v_add_u32 v{108+tp}, {L_KV+32768}, v{108+tp}")
        a("s_waitcnt vmcnt(0)")
        if o['prio']:
            a("s_setprio 2")
        self.stamp(6, 1)
        self.coop_load(5, "e")
        self.stamp(4, o['set'] & 1)
        RB = [8, 24, 40]

        def lrd(ks):
            r = RB[ks % 3]
            if ks < 8:
                return [[f"ds_read_b128 {vr(r+4*tp,4)}, v{104+tp} offset:{ks*4096}"] for tp in range(4)]
            return [[f"ds_read2st64_b32 {vr(r+4*tp,2)}, v{108+tp} offset0:0 offset1:1", f"ds_read2st64_b32 {vr(r+4*tp+2,2)}, v{108+tp} offset0:2 offset1:3"] for tp in range(4)]
        a(lrd(0), lrd(1))
        order = []
        for ks in (0, 1):
            order += [(ks, tp, len(lrd(ks)[tp])) for tp in range(4)]
        for ks in range(9):
            m = mms(ks, RB[ks % 3], False)
            nx = lrd(ks + 2) if ks + 2 < 9 else None
            for tp in range(4):
                assert order[0][:2] == (ks, tp)
                order.pop(0)
                a(f"s_waitcnt lgkmcnt({sum(x[2] for x in order)})", m[tp])
                if nx:
                    a(nx[tp])
                    order.append((ks + 2, tp, len(nx[tp])))
        OUTF = ['', ' sc1', ' sc0 sc1', ' nt'][o['outf']]
        a(f"s_mul_i32 s{S_T0}, s{S_PG}, {64*2304}", f"s_mul_i32 s{S_T1}, s{S_B}, 1152", f"s_add_u32 s{S_T0}, s{S_T0}, s{S_T1}", f"s_mul_i32 s{S_T1}, s{S_HG}, 288",
          f"s_add_u32 s{S_T0}, s{S_T0}, s{S_T1}", f"s_lshl_b32 s{S_T1}, s{S_WAVE}, 6", f"s_add_u32 s{S_T1}, s{S_T1}, s{S_T0}",
          "v_and_b32 v8, 15, v0", "v_mul_u32_u24 v8, 0x900, v8", "v_lshrrev_b32 v9, 4, v0", "v_lshl_add_u32 v10, v9, 3, v8", "v_lshl_add_u32 v8, v9, 4, v8")
        for tp in range(4):
            r = 12 + 4 * tp
            a(f"s_xor_b32 s{S_T2}, s{S_WAVE}, {tp}", f"s_mul_i32 s{S_T2}, s{S_T2}, {16*2304}", f"s_add_u32 s{S_T3}, s{S_T2}, s{S_T1}",
              f"v_cvt_pk_bf16_f32 v{r}, v{ACC+4*tp}, v{ACC+4*tp+1}", f"v_cvt_pk_bf16_f32 v{r+1}, v{ACC+4*tp+2}, v{ACC+4*tp+3}",
              f"v_cvt_pk_bf16_f32 v{r+2}, v{ACC+16+4*tp}, v{ACC+16+4*tp+1}", f"v_cvt_pk_bf16_f32 v{r+3}, v{ACC+16+4*tp+2}, v{ACC+16+4*tp+3}",
              f"buffer_store_dwordx4 {vr(r,4)}, v8, s[{R_OUT}:{R_OUT+3}], s{S_T3} offen{OUTF}")
            if tp == 0:
                a(f"s_add_u32 s{S_T2}, s{S_T2}, s{S_T0}", f"v_cvt_pk_bf16_f32 v28, v{ACC+32}, v{ACC+33}", f"v_cvt_pk_bf16_f32 v29, v{ACC+34}, v{ACC+35}",
                  f"buffer_store_dwordx2 v[28:29], v10, s[{R_OUT}:{R_OUT+3}], s{S_T2} offen offset:256{OUTF}")
        if o['stamps'] or o['dbgspan'] or o['ampk']:
            a("s_waitcnt vmcnt(0)")
            self.stamp(5, o['set'] & 1)
        if o['ampk']:
            a("s_waitcnt lgkmcnt(0)", f"s_sub_u32 s{S_T0}, s{S_ST+2*o['ampb']}, s{S_ST+2*o['ampa']}", f"s_mul_i32 s{S_T0}, s{S_T0}, {o['ampk']}", f"s_min_u32 s{S_T0}, s{S_T0}, 100000",
              "L_amp:", "s_memrealtime s[16:17]", "s_waitcnt lgkmcnt(0)", f"s_sub_u32 s16, s16, s{S_ST+10}", f"s_cmp_lt_u32 s16, s{S_T0}", "s_cbranch_scc1 L_amp")
        self.dump_stamps()
        a("L_end:", "s_endpgm")

    def build(self):
        self.start()
        self.early_front()
        self.late_front()
        self.attention()
        self.oproj()
        self.fallback()
        hdr = ("; fused MQA attention x2 (QKV proj + softmax attention + out proj), one launch, 1 workgroup per CU\n"
               f"; @launch grid=(256,1,1) block=(512,1,1) lds={LDS_BYTES}\n"
               '.amdgcn_target "amdgcn-amd-amdhsa--gfx950"\n.text\n'
               f".globl {NAME}\n.p2align 8\n.type {NAME},@function\n{NAME}:\n")
        if self.o['of'] & 1:
            self.a.L = [x.replace(" sc0 sc1", " sc1") if "buffer_store" in x and f"s[{R_WS}:" in x else x for x in self.a.L]
        if self.o['of'] & 2:
            self.a.L = [x.replace(" sc0 sc1", " sc1") if "buffer_load" in x and f"s[{R_WS}:" in x else x for x in self.a.L]
        body = "".join((x + "\n") if x.endswith(":") else ("    " + x + "\n") for x in self.a.L)
        t = table()
        tab = ".p2align 6\n.type L_table,@object\nL_table:\n" + "".join("    .long " + ", ".join(str(int(v)) for v in row) + "\n" for row in t)
        tab += f".fill (1024 - ((. - {NAME}) & 1023)) & 1023, 1, 0\nL_codeend:\n.size L_table, L_codeend-L_table\n"
        kd = f""".section .rodata,"a"
.p2align 6
.amdhsa_kernel {NAME}
  .amdhsa_next_free_vgpr 256
  .amdhsa_next_free_sgpr 102
  .amdhsa_accum_offset 256
  .amdhsa_group_segment_fixed_size 0
  .amdhsa_kernarg_size 104
  .amdhsa_user_sgpr_count 2
  .amdhsa_user_sgpr_kernarg_segment_ptr 1
  .amdhsa_system_sgpr_workgroup_id_x 1
.end_amdhsa_kernel
"""
        return hdr + body + tab + kd


if __name__ == "__main__":
    out = sys.argv[1]
    opt = {}
    for kv in sys.argv[2:]:
        k, v = kv.split("=")
        opt[k] = int(v)
    g = Gen(opt)
    open(out, "w").write(g.build())
```

```python
import sys, math, struct
import numpy as np

NAME = "concat_heads__grouped_kv_mqa__grouped_kv_mqa__prompt_kernel"

VG = 608
PB = 2048 + 256 + 4 * VG
KVB = 32 * PB
L_KV = 12288
L_HAND = 0
L_KMAX = 10240
L_FLAG = 10256
L_W = 62464
L_X = 90112
SLOT = 4608
LDS_BYTES = 163840
WS_KV = 0
WS_KN = KVB
WS_WOT = 0x28000
WS_OEX = 0xD0000
WS_BR = 0x400000
WS_STAMP = 0x1000000
OEX_G = 73728
OEX_S = 36864
CSCALE = math.log2(math.e) / math.sqrt(18.0)
TSAFE = 40.0
SPIN = 200000


def f2u(x):
    return struct.unpack("<I", struct.pack("<f", x))[0]


def dslot(d):
    if d < 6:
        return d * 2 * SLOT
    if d < 17:
        return L_W + (d - 6) * 2 * SLOT
    return 4 * 2 * SLOT


def slot_addr(ks):
    return dslot(ks >> 1) + (ks & 1) * SLOT


G0 = [0, 1, 2, 3, 12, 13, 14, 15, 20]
G1 = [4, 5, 6, 7, 8, 9, 10, 11, 16]
POS_ONES, POS_ZERO = 22, 23


def vpos(h, row):
    if row in G0:
        return [list(range(0, 9)), [18, 19, 20, 21, 24, 25, 26, 27, 28]][h][G0.index(row)]
    if row in G1:
        return [list(range(9, 18)), list(range(29, 38))][h][G1.index(row)]
    if row in (17, 21):
        return POS_ONES
    return POS_ZERO


def table():
    t = np.zeros((64, 4), dtype=np.uint32)
    for l in range(64):
        t[l, 0] = L_KV + 2304 + vpos(l >> 5, l & 31) * 16
        n, g = l & 15, l >> 4
        t[l, 1] = vpos(g >> 1, n) * 16 + (g & 1) * 8
        p = {0: vpos(g >> 1, 16), 1: vpos(g >> 1, 20), 2: POS_ONES, 3: POS_ZERO}.get(n, POS_ZERO)
        t[l, 2] = p * 16 + (g & 1) * 8
    return t


def vr(a, n=1):
    return f"v[{a}:{a+n-1}]" if n > 1 else f"v{a}"


def sr(a, n=1):
    return f"s[{a}:{a+n-1}]" if n > 1 else f"s{a}"


S_WAVE = 3
R_X, R_WQ, R_W, R_WO, R_WS, R_OUT, R_DBG = 44, 48, 52, 56, 60, 64, 68
S_B, S_HG, S_GI, S_PG, S_I = 4, 5, 6, 7, 8
S_T0, S_T1, S_T2, S_T3, S_T4, S_T5 = 9, 10, 11, 12, 13, 14
S_CNT = 15
S_M0A, S_M0R, S_ROW = 72, 73, 74
S_BAR = 75
S_PBI, S_HQ = 76, 77
S_EX = 42
S_KVS = 80
S_OEX = 81
S_STG = 82
S_OEXB = 78
S_XI, S_XB, S_XS, S_XM = 83, 100, 101, 79
S_DI, S_DS, S_LI, S_LS = 72, 73, 74, 75
S_ST = 84

V_IDX, V_AK, V_AR, V_AV = 2, 3, 4, 5
QM = [8, 12]
QR = 16
KR = [18, 20]
O = [24, 40]
KM = [56, 60]
VV = [[64, 68], [72, 76]]
S = [80, 112]


class A:
    def __init__(self):
        self.L = []

    def __call__(self, *xs):
        for x in xs:
            if isinstance(x, (list, tuple)):
                self(*x)
            else:
                self.L.append(x)

    def label(self, n):
        self.L.append(n + ":")


def K16(d, a, b, c=None):
    return f"v_mfma_f32_32x32x16_bf16 {vr(d,16)}, {vr(a,4)}, {vr(b,4)}, {c if c else vr(d,16)}"


def M16(d, a, b, c=None):
    return f"v_mfma_f32_16x16x32_bf16 {vr(d,4)}, {vr(a,4)}, {vr(b,4)}, {c if c else vr(d,4)}"


def B2(d, a, b, abid):
    return f"v_mfma_f32_32x32x4_2b_bf16 {vr(d,32)}, {vr(a,2)}, {vr(b,2)}, 0 cbsz:1 abid:{abid}"


def K8Z(d, z):
    return f"v_mfma_f32_32x32x8_bf16 {vr(d,16)}, {vr(z,2)}, {vr(z,2)}, 0"


def SM(d, a, b):
    return f"v_smfmac_f32_32x32x32_bf16 {vr(d,16)}, {vr(a,4)}, {vr(b,8)}, v{V_IDX}"


def EX(r, n):
    return [f"v_exp_f32 v{r+i}, v{r+i}" for i in range(n)]


def srd(a, dst, lo, hi, size):
    a(f"s_mov_b32 s{dst}, {lo}", f"s_mov_b32 s{dst+1}, {hi}", f"s_mov_b32 s{dst+2}, {size}", f"s_mov_b32 s{dst+3}, 0x20000")


class Gen:
    def __init__(self, opt):
        self.o = dict(unp=4, barit=1, stamps=False, force_fb=False, prefetch=True, prio=True, dbgspan=0, xp=0, outf=0, of=0, ampa=0, ampb=0, ampk=0, set=0, nb=5, kv1=6, win=3, sb=11)
        self.o.update(opt)
        self.a = A()
        self.nst = 0

    def stamp(self, i, st=0):
        if i not in (0, 7) and st != self.o['set']:
            return
        if self.o['stamps'] or self.o['dbgspan'] or self.o['ampk']:
            cyc = self.o['stamps'] == 2 or (self.o['ampk'] < 0 and i != 5)
            self.a(f"{'s_memtime' if cyc else 's_memrealtime'} s[{S_ST+2*i}:{S_ST+2*i+1}]")

    def dump_stamps(self):
        if self.o['dbgspan']:
            a = self.a
            n = self.nst = self.nst + 1
            a("s_waitcnt lgkmcnt(0)", f"s_cmp_lg_u32 s{S_I}, 0", f"s_cbranch_scc1 L_nodump{n}", "s_mov_b64 exec, 1", "v_mov_b32 v8, 0", f"s_not_b32 s{S_T0}, s{S_ST}", f"v_mov_b32 v9, s{S_T0}",
              f"buffer_atomic_umax v9, v8, s[{R_DBG}:{R_DBG+3}], 0 offen offset:8 sc1")
            for k, i in enumerate((0, 1, 3, 6, 7, 5) if n == 2 else (1, 2, 4, 5, 6, 7)):
                a(f"v_mov_b32 v{10+k}, s{S_ST+2*i}", f"buffer_atomic_umax v{10+k}, v8, s[{R_DBG}:{R_DBG+3}], 0 offen offset:{(12 if n == 2 else 36)+4*k} sc1")
            a(f"L_nodump{n}:")
            return
        if not self.o['stamps']:
            return
        a = self.a
        a("s_waitcnt lgkmcnt(0)", f"s_lshl_b32 s{S_T0}, s2, 3", f"s_add_u32 s{S_T0}, s{S_T0}, s{S_WAVE}", f"s_lshl_b32 s{S_T0}, s{S_T0}, 6",
          f"s_mul_i32 s{S_T1}, s{S_B}, {WS_BR}", f"s_sub_u32 s{S_T0}, s{S_T0}, s{S_T1}", f"s_add_u32 s{S_T0}, s{S_T0}, {WS_STAMP}",
          f"s_mov_b32 s{R_WS+2}, 0x2000000", "v_mov_b32 v8, 0")
        for i in range(4):
            for k in range(4):
                a(f"v_mov_b32 v{12+k}, s{S_ST+4*i+k}")
            a(f"buffer_store_dwordx4 v[12:15], v8, s[{R_WS}:{R_WS+3}], s{S_T0} offen offset:{16*i}", "s_nop 1")

    def kv_dma(self, p0, n):
        a = self.a
        for k in range(n):
            a(f"s_add_u32 m0, s{S_M0A}, {L_KV + (p0 + 4*k)*1024}", f"s_add_u32 s{S_T0}, s{S_KVS}, 4096",
              f"buffer_load_dwordx4 v1, s[{R_WS}:{R_WS+3}], s{S_KVS} offen sc1 lds",
              f"s_cmp_ge_u32 s{S_T0}, {KVB}", f"s_cselect_b32 s{S_T1}, {KVB}, 0", f"s_sub_u32 s{S_KVS}, s{S_T0}, s{S_T1}")

    def row_max16(self, v):
        a = self.a
        for k in (8, 4, 2, 1):
            a("s_nop 1", f"v_max_f32_dpp v{v}, v{v}, v{v} row_ror:{k} row_mask:0xf bank_mask:0xf")

    def rest_srds(self):
        a = self.a
        a(f"s_mov_b32 s{R_WO+2}, 663552", f"s_mov_b32 s{R_WO+3}, 0x20000",
          f"s_mul_i32 s{S_T0}, s{S_B}, {WS_BR}", f"s_add_u32 s{R_WS}, s40, s{S_T0}", f"s_addc_u32 s{R_WS+1}, s41, 0",
          f"s_mov_b32 s{R_WS+2}, {WS_OEX + 32*OEX_G}", f"s_mov_b32 s{R_WS+3}, 0x20000")
        srd(a, R_OUT, "s36", "s37", 4718592)
        srd(a, R_DBG, "s38", "s39", 256)

    def norm2(self, x, y):
        a = self.a
        for j in range(4):
            for (qm, qr, dst, tmp) in (x, y):
                a(f"v_dot2_f32_bf16 v{dst}, v{qm+j}, v{qm+j}, {'0' if j == 0 else 'v%d' % dst}",
                  f"v_dot2_f32_bf16 v{tmp}, v{qm+4+j}, v{qm+4+j}, {'0' if j == 0 else 'v%d' % tmp}")
        a("s_nop 0", f"v_permlane32_swap_b32 v{x[2]}, v{x[3]}", "s_nop 0", f"v_permlane32_swap_b32 v{y[2]}, v{y[3]}",
          f"v_add_f32 v{x[2]}, v{x[2]}, v{x[3]}", f"v_add_f32 v{y[2]}, v{y[2]}, v{y[3]}",
          f"v_dot2_f32_bf16 v{x[2]}, v{x[1]}, v{x[1]}, v{x[2]}", f"v_dot2_f32_bf16 v{y[2]}, v{y[1]}, v{y[1]}, v{y[2]}", "s_nop 1",
          f"v_sqrt_f32 v{x[2]}, v{x[2]}", f"v_sqrt_f32 v{y[2]}, v{y[2]}")

    def init_main_regs(self):
        a = self.a
        a(f"v_mov_b32 v{KR[0]+1}, 0x3f803f80", f"v_mov_b32 v{KR[1]+1}, 0x3f803f80")
        for r in range(O[0], O[0] + 32):
            a(f"v_mov_b32 v{r}, 0")
        for r in range(S[1] + 24, S[1] + 32):
            a(f"v_mov_b32 v{r}, 0")
        for r in range(VV[1][1], VV[1][1] + 4):
            a(f"v_mov_b32 v{r}, 0")

    def ldKm(self, kb):
        return [f"ds_read_b128 {vr(KM[kb%2],4)}, v{V_AK} offset:{(kb//2)*PB+(kb%2)*1024}"]

    def ldKr(self, p):
        return [f"ds_read_b32 v{KR[p%2]}, v{V_AR} offset:{p*PB}"]

    def ldV(self, kb):
        return [f"ds_read_b128 {vr(VV[kb%2][i],4)}, v{V_AV} offset:{(kb//2)*PB+((kb%2)*2+i)*VG}" for i in range(2)]

    def qk(self, dst, kb):
        return [B2(dst, KR[(kb//2) % 2], QR, kb % 2), K16(dst, KM[kb % 2], QM[0]), K16(dst + 16, KM[kb % 2], QM[1])]

    def main_prologue_loads(self):
        self.a(self.ldKr(0), self.ldKm(0), self.ldKm(1), self.ldKr(1), self.ldV(0))

    def start(self):
        a, o = self.a, self.o
        a("s_cmp_ge_u32 s2, 256", "s_cbranch_scc1 L_end")
        a("s_load_dwordx16 s[16:31], s[0:1], 0", "s_load_dwordx8 s[32:39], s[0:1], 64", "s_load_dwordx2 s[40:41], s[0:1], 96")
        self.stamp(0)
        a("s_getpc_b64 s[42:43]", "L_pc:")
        a("v_lshrrev_b32 v1, 6, v0", "v_and_b32 v0, 63, v0", f"v_readfirstlane_b32 s{S_WAVE}, v1", "v_lshlrev_b32 v1, 4, v0",
          f"s_lshr_b32 s{S_T2}, s2, 3", f"s_and_b32 s{S_B}, s2, 1", f"s_and_b32 s{S_HG}, s{S_T2}, 3", f"s_lshr_b32 s{S_GI}, s2, 5")
        if o['prefetch']:
            a(f"s_cmp_lg_u32 s{S_WAVE}, 7", "s_cbranch_scc1 L_nopf", f"s_cmp_ge_u32 s{S_T2}, (L_codeend-{NAME})/1024", "s_cbranch_scc1 L_nopf",
              f"s_lshl_b32 s{S_T2}, s{S_T2}, 10", f"s_sub_u32 s{S_T0}, s42, L_pc-{NAME}", f"s_subb_u32 s{S_T1}, s43, 0",
              f"s_add_u32 s{S_T0}, s{S_T0}, s{S_T2}", f"s_addc_u32 s{S_T1}, s{S_T1}, 0",
              f"v_mov_b32 v7, s{S_T1}", f"v_add_co_u32 v6, vcc, s{S_T0}, v1", "s_nop 1", "v_addc_co_u32 v7, vcc, 0, v7, vcc", "s_nop 0",
              "global_load_dwordx4 v[24:27], v[6:7], off", "L_nopf:")
        a(f"s_bfe_u32 s{S_PG}, s2, 0x20001", f"s_lshl_b32 s{S_PG}, s{S_PG}, 3", f"s_add_u32 s{S_PG}, s{S_PG}, s{S_GI}",
          f"s_and_b32 s{S_I}, s{S_WAVE}, 3", f"s_and_b32 s{S_PBI}, s{S_WAVE}, 1", f"s_lshr_b32 s{S_HQ}, s{S_I}, 1")
        a("v_lshrrev_b32 v8, 3, v0", "v_lshrrev_b32 v9, 4, v0", f"s_lshl_b32 s{S_T0}, s{S_PBI}, 2", f"v_or_b32 v9, s{S_T0}, v9",
          "v_and_b32 v10, 7, v0", "v_xor_b32 v9, v9, v10", "v_lshlrev_b32 v9, 4, v9", "v_mov_b32 v10, 0x480", "v_mad_u32_u24 v8, v8, v10, v9",
          f"s_lshl_b32 s{S_T0}, s{S_I}, 6", f"v_add_u32 v9, s{S_T0}, v0", "v_mul_u32_u24 v10, 0xab, v9", "v_lshrrev_b32 v10, 9, v10", "v_mul_u32_u24 v10, 12, v10",
          "v_lshlrev_b32 v9, 4, v9", "v_sub_u32 v9, v9, v10")
        a(f"s_and_b32 s{S_T4}, s{S_HG}, 2", f"s_lshl_b32 s{S_T4}, s{S_T4}, 1", f"s_add_u32 s{S_T4}, s{S_T4}, s{S_I}",
          f"s_lshl_b32 s{S_T5}, s{S_PG}, 3", f"s_add_u32 s{S_XB}, s{S_T5}, s{S_T4}", f"s_mul_i32 s{S_XB}, s{S_XB}, {8*1152}",
          f"s_mul_i32 s{S_XM}, s{S_T4}, 9216", f"s_add_u32 s{S_XM}, s{S_XM}, {L_X}", f"s_lshl_b32 s{S_T0}, s{S_I}, 10", f"s_add_u32 s{S_T0}, s{S_T0}, {L_W}",
          f"s_lshr_b32 s{S_T1}, s{S_HG}, 1", f"s_movk_i32 s{S_DI}, 3072", f"s_movk_i32 s{S_DS}, 2304",
          f"s_cmp_lt_u32 s{S_WAVE}, 4", "s_cselect_b64 vcc, -1, 0", f"s_cselect_b32 s{S_XB}, s{S_XB}, 0", f"s_cselect_b32 s{S_XM}, s{S_XM}, s{S_T0}",
          f"s_cselect_b32 s{S_T1}, s{S_HG}, s{S_T1}", f"s_cselect_b32 s{S_DI}, 1024, s{S_DI}", f"s_cselect_b32 s{S_DS}, 128, s{S_DS}",
          "v_cndmask_b32 v9, v9, v8, vcc")
        self.dma9_setup(S_T1)
        a("s_waitcnt lgkmcnt(0)", f"s_cmp_eq_u32 s{S_B}, 0", f"s_cselect_b64 s[{R_X}:{R_X+1}], s[16:17], s[26:27]",
          f"s_cselect_b64 s[20:21], s[20:21], s[30:31]", f"s_cselect_b64 s[22:23], s[22:23], s[32:33]",
          f"s_cselect_b64 s[{R_WQ}:{R_WQ+1}], s[18:19], s[28:29]", f"s_cselect_b64 s[{R_WO}:{R_WO+1}], s[24:25], s[34:35]",
          f"s_bitcmp0_b32 s{S_HG}, 0", f"s_cselect_b64 s[{R_W}:{R_W+1}], s[20:21], s[22:23]", f"s_mov_b32 s{R_X+2}, 2359296", f"s_movk_i32 s{R_W+2}, 20736",
          f"s_cmp_lt_u32 s{S_WAVE}, 4", f"s_cselect_b64 s[{R_W}:{R_W+1}], s[{R_X}:{R_X+1}], s[{R_W}:{R_W+1}]", f"s_cselect_b32 s{R_W+2}, s{R_X+2}, s{R_W+2}",
          f"s_mov_b32 s{R_W+3}, 0x20000", f"s_mov_b32 s{R_X+3}, 0x20000")
        self.stamp(1, 2)
        a(f"s_cmp_lt_u32 s{S_WAVE}, 4", "s_cbranch_scc1 L_r1", "s_setprio 1", f"s_cmp_eq_u32 s{S_WAVE}, 7", "s_cbranch_scc1 L_late", "L_r1:")
        self.dma9(R_W, 9)
        a(f"s_cmp_ge_u32 s{S_WAVE}, 4", "s_cbranch_scc1 L_late")

    def dma9_setup(self, sel):
        self.a(f"s_bitcmp1_b32 s{sel}, 0", f"s_cselect_b32 s{S_XI}, 5, 0",
               f"s_add_u32 s{S_XS}, s{S_XI}, s{S_GI}", f"s_cmp_ge_u32 s{S_XS}, 9", f"s_cselect_b32 s{S_T0}, 9, 0", f"s_sub_u32 s{S_XS}, s{S_XS}, s{S_T0}",
               f"s_mul_i32 s{S_XS}, s{S_XS}, s{S_DS}", f"s_mul_i32 s{S_XI}, s{S_XI}, s{S_DI}", f"s_mul_i32 s{S_LI}, s{S_DI}, 9", f"s_mul_i32 s{S_LS}, s{S_DS}, 9")

    def dma9(self, srd_, v):
        for i in range(9):
            self.a(f"s_add_u32 m0, s{S_XM}, s{S_XI}", f"s_add_u32 s{S_T3}, s{S_XB}, s{S_XS}",
                   f"buffer_load_dwordx4 v{v}, s[{srd_}:{srd_+3}], s{S_T3} offen lds")
            if i < 8:
                self.a(f"s_add_u32 s{S_XS}, s{S_XS}, s{S_DS}", f"s_cmp_eq_u32 s{S_XS}, s{S_LS}", f"s_cselect_b32 s{S_XS}, 0, s{S_XS}",
                       f"s_add_u32 s{S_XI}, s{S_XI}, s{S_DI}", f"s_cmp_eq_u32 s{S_XI}, s{S_LI}", f"s_cselect_b32 s{S_XI}, 0, s{S_XI}")

    def table_load(self):
        self.a(f"s_add_u32 s{S_T0}, s42, L_table-L_pc", f"s_addc_u32 s{S_T1}, s43, 0",
               f"v_mov_b32 v7, s{S_T1}", f"v_add_co_u32 v6, vcc, s{S_T0}, v1", "s_nop 1", "v_addc_co_u32 v7, vcc, 0, v7, vcc", "s_nop 0",
               "global_load_dwordx4 v[20:23], v[6:7], off")

    def wq_setup(self, d, part=3):
        a = self.a
        if part & 1:
            a(f"s_mov_b32 s{R_WQ+2}, 663552", f"s_mov_b32 s{R_WQ+3}, 0x20000", f"s_lshl_b32 s{S_T0}, s{S_I}, 6", f"s_mul_i32 s{S_T1}, s{S_HG}, 288", "v_mov_b32 v16, 0x480")
        for t in range(3 if part & 1 else 0):
            a(f"v_add_u32 v13, s{S_T0}, v0", "v_mul_u32_u24 v14, 0xe39, v13", "v_lshrrev_b32 v14, 16, v14",
              "v_mul_u32_u24 v15, 18, v14", "v_sub_u32 v13, v13, v15", "v_lshlrev_b32 v13, 4, v13",
              "v_bfe_u32 v15, v14, 1, 2", "v_and_b32 v17, 1, v14", "v_lshl_add_u32 v15, v17, 2, v15", "v_and_b32 v14, 24, v14", "v_add_u32 v14, v14, v15",
              "v_mad_u32_u24 v13, v14, v16, v13", f"v_add_u32 v{10+t}, s{S_T1}, v13")
            if t < 2:
                a(f"s_add_u32 s{S_T0}, s{S_T0}, 192")
        if not part & 2:
            return
        a(f"s_lshl_b32 s{S_M0A}, s{S_I}, 10", f"s_mul_i32 s{S_ROW}, s{S_GI}, {64*1152}")
        if d:
            a(f"s_add_u32 s{S_ROW}, s{S_ROW}, {32*d*1152}", f"s_cmp_ge_u32 s{S_ROW}, {576*1152}",
              f"s_cselect_b32 s{S_T0}, {576*1152}, 0", f"s_sub_u32 s{S_ROW}, s{S_ROW}, s{S_T0}")

    def wq_list(self, d):
        n = self.nlab = getattr(self, 'nlab', 0) + 1
        s0 = dslot(d)
        ld = lambda r: f"buffer_load_dwordx4 v{r}, s[{R_WQ}:{R_WQ+3}], s{S_ROW} offen lds"
        return [f"s_cbranch_vccz L_wq{n}",
                f"s_add_u32 m0, s{S_M0A}, {s0}", f"s_add_u32 s{S_T0}, s{S_ROW}, {32*1152}", ld(10),
                f"s_add_u32 m0, s{S_M0A}, {s0+3072}", "s_nop 0", ld(11),
                f"s_add_u32 m0, s{S_M0A}, {s0+6144}", f"s_cmp_ge_u32 s{S_T0}, {576*1152}", ld(12),
                f"s_cselect_b32 s{S_T1}, {576*1152}, 0", f"s_sub_u32 s{S_ROW}, s{S_T0}, s{S_T1}", f"L_wq{n}:"]

    def wq_dma(self, d):
        self.a(self.wq_list(d))

    def loader_flag(self):
        self.a(f"s_cmp_lt_u32 s{S_I}, 3", "s_cselect_b64 vcc, -1, 0")

    GROUPS = [(3, 3), (5, 7), (8, 11), (11, 17), (14, 23), (16, 29), (17, 33)]

    def early_front(self):
        a, o = self.a, self.o
        self.stamp(2, 2)
        self.table_load()
        self.wq_setup(0)
        self.loader_flag()
        self.wq_dma(0)
        self.rest_srds()
        a("v_and_b32 v16, 31, v0", "v_lshrrev_b32 v13, 5, v0", "v_bfe_u32 v14, v0, 1, 3", "v_xor_b32 v13, v13, v14", "v_lshlrev_b32 v13, 4, v13",
          "v_and_b32 v14, 7, v0", "v_lshl_add_u32 v13, v14, 7, v13", "v_lshrrev_b32 v16, 3, v16", "v_mul_u32_u24 v16, 0x2400, v16",
          f"s_mul_i32 s{S_T0}, s{S_PBI}, {4*9216}", f"s_add_u32 s{S_T0}, s{S_T0}, {L_X}", f"v_add3_u32 v104, v16, v13, s{S_T0}",
          "v_xor_b32 v105, 32, v104", "v_xor_b32 v106, 64, v104", "v_xor_b32 v107, 0x60, v104")
        a("v_bfe_u32 v18, v0, 2, 2", "v_lshrrev_b32 v15, 5, v0", "v_lshlrev_b32 v15, 2, v15", "v_add_u32 v15, v15, v18", "v_mul_u32_u24 v15, 0x240, v15",
          f"s_mul_i32 s{S_T0}, s{S_HQ}, 144", "v_and_b32 v13, 1, v0", "v_lshl_add_u32 v15, v13, 4, v15", f"v_add_u32 v15, s{S_T0}, v15",
          "v_bfe_u32 v13, v0, 1, 1", "v_bfe_u32 v14, v0, 4, 1", "v_lshl_add_u32 v6, v13, 3, v15", "v_lshl_add_u32 v6, v14, 5, v6",
          "v_mul_u32_u24 v13, 72, v13", "v_add3_u32 v7, v13, v15, 48")
        a(f"s_mul_i32 s{S_T0}, s{S_WAVE}, 2560", f"v_add_u32 v96, s{S_T0}, v1", "v_lshlrev_b32 v97, 3, v0", f"v_add_u32 v97, s{S_T0}, v97",
          f"v_mov_b32 v{V_IDX}, 0xdddddddd", f"v_add_u32 v{V_AK}, {L_KV}, v1", f"v_lshlrev_b32 v{V_AR}, 2, v0", f"v_add_u32 v{V_AR}, {L_KV+2048}, v{V_AR}",
          "v_mov_b32 v102, 0", "v_mov_b32 v103, 0", f"v_mov_b32 v98, {L_KMAX}")
        a("v_mov_b32 v100, 1", "v_mov_b32 v101, 0")
        a(f"s_cmp_eq_u32 s{S_WAVE}, 3", "s_cbranch_scc0 L_e3", "s_waitcnt vmcnt(1)", "L_e3:", "s_waitcnt vmcnt(4)")
        self.stamp(3, 2)
        a("s_barrier")
        self.wq_dma(1)
        self.wq_dma(2)
        self.stamp(1)
        self.stamp(4, 2)
        a("s_barrier")
        self.stamp(5, 2)
        XF = 112
        T0, T1, TR = 24, 40, 56
        FB = [72, 84]
        state = dict(base=0)

        def rd(ks):
            x = []
            off = slot_addr(ks) - state['base']
            if off < 0 or off + 360 > 65535:
                d = slot_addr(ks) - state['base']
                x += [f"v_add_u32 v{r}, {d}, v{r}" if d > 0 else f"v_subrev_u32 v{r}, {-d}, v{r}" for r in (6, 7)]
                state['base'] = slot_addr(ks)
                off = 0
            f = FB[ks & 1]
            return x, [f"ds_read_b64_tr_b16 {vr(f,2)}, v6 offset:{off}", f"ds_read_b64_tr_b16 {vr(f+2,2)}, v6 offset:{off+288}",
                       f"ds_read_b64_tr_b16 {vr(f+4,2)}, v6 offset:{off+72}", f"ds_read_b64_tr_b16 {vr(f+6,2)}, v6 offset:{off+360}",
                       f"ds_read_b64_tr_b16 {vr(f+8,2)}, v7 offset:{off}", f"ds_read_b64_tr_b16 {vr(f+10,2)}, v7 offset:{off+288}"]

        def mm(ks):
            f = FB[ks & 1]
            c = "0" if ks == 0 else None
            return [K16(T0, f, XF + 4 * ks, c), K16(T1, f + 4, XF + 4 * ks, c), K16(TR, f + 8, XF + 4 * ks, c)]
        for i in range(36):
            a(f"ds_read_b128 {vr(XF+4*i,4)}, v{104+(i&3)} offset:{(i>>2)*1024}")
            if i in (9, 19, 29):
                self.wq_dma(3 + i // 10)
        a(f"s_cmp_eq_u32 s{S_WAVE}, 3", "s_cbranch_scc0 L_e4", "s_waitcnt vmcnt(0)", "L_e4:")
        a("s_waitcnt vmcnt(12)", f"v_mov_b32 v{V_AV}, v20", "v_mov_b32 v21, 0x3f803f80", "s_waitcnt lgkmcnt(0)", "s_barrier")
        self.stamp(2)
        self.stamp(6, 2)
        a(rd(0)[1])
        ev = {k: ["s_barrier"] for _, k in self.GROUPS}
        ev[3] = ["s_waitcnt vmcnt(6)", "s_barrier"]
        ev[7] = ["s_waitcnt vmcnt(0)", "s_barrier", f"s_cmp_lg_u32 s{S_WAVE}, 3", "s_cbranch_scc1 L_nosig", f"s_lshl_b32 s{S_T0}, s{S_B}, 7", "s_mov_b64 exec, 1",
                 f"buffer_atomic_add v100, v101, s[{R_DBG}:{R_DBG+3}], s{S_T0} offen sc1", "s_mov_b64 exec, -1", "L_nosig:"]
        for ks in range(36):
            m = mm(ks)
            if ks in ev:
                if ks in (3, 7):
                    a(ev[ks][0])
                if sorted(ev).index(ks) > 0:
                    self.stamp(sorted(ev).index(ks), 3)
                a(ev[ks])
            if ks + 1 < 36:
                pre, n = rd(ks + 1)
                if o['xp'] & 1:
                    n = ["s_nop 0"] * 6
                if o['xp'] & 2:
                    m = ["s_nop 7"] * 3
                if o['xp'] & 4:
                    n = n[:4] + ["s_nop 0"] * 2
                    m = m[:2] + ["s_nop 0"]
                a(pre, n[0:2], "s_waitcnt lgkmcnt(6)", m[0], n[2:4], "s_waitcnt lgkmcnt(6)", m[1], n[4:6], "s_waitcnt lgkmcnt(6)", m[2])
            else:
                a("s_waitcnt lgkmcnt(4)", m[0], "s_waitcnt lgkmcnt(2)", m[1], "s_waitcnt lgkmcnt(0)", m[2])
        self.stamp(3)
        H = 72
        a(f"v_mov_b32 v{KR[0]+1}, 0x3f803f80", f"s_mov_b32 s{S_BAR}, {32//o['unp'] - o['barit']}", f"s_mov_b32 s{S_STG}, 0", "s_nop 2")
        a("s_mov_b32 vcc_lo, 0", "s_mov_b32 vcc_hi, -1")
        for (dst, t) in ((QM[0], T0), (H, T1)):
            for j, r in enumerate((0, 2, 4, 6, 10, 12, 14)):
                a(f"v_cvt_pk_bf16_f32 v{dst+j}, v{t+r}, v{t+r+1}")
        for (dst, qr, t, t2, tmp) in ((H, H + 8, T1, TR + 4, 85), (QM[0], QR, T0, TR, 86)):
            a(f"v_cvt_pk_bf16_f32 v{dst+7}, v{t2}, v{t2+1}", f"v_cvt_pk_bf16_f32 v{qr}, v{t+8}, v{t+9}", f"v_cvt_pk_bf16_f32 v{tmp}, v{t2+2}, v{t2+3}")
        a(f"v_cndmask_b32 v{H+8}, v{H+8}, v85, vcc", f"v_cndmask_b32 v{QR}, v{QR}, v86, vcc")
        a(f"ds_write_b128 v96, {vr(H,4)}", f"ds_write_b128 v96, {vr(H+4,4)} offset:1024")
        self.norm2((H, H + 8, H + 9, 85), (QM[0], QR, QR + 1, 86))
        a(f"ds_write_b64 v97, {vr(H+8,2)} offset:2048")
        a(K8Z(O[0], 102), K8Z(O[1], 102))
        a("s_waitcnt lgkmcnt(0)")
        a("s_barrier")
        a("ds_read_b32 v6, v98")
        self.main_prologue_loads()
        a([f"v_mov_b32 v{r}, 0" for r in range(VV[1][1], VV[1][1] + 4)])
        if o['prio']:
            a("s_setprio 2")
        a("s_waitcnt lgkmcnt(0)", "s_branch L_attn")

    def late_front(self):
        a, o = self.a, self.o
        a.label("L_late")
        a("s_setprio 0")
        self.stamp(2, 2)
        self.wq_setup(6, 1)
        a(f"s_xor_b32 s{S_T4}, s{S_T4}, 4", f"s_add_u32 s{S_XB}, s{S_T5}, s{S_T4}", f"s_mul_i32 s{S_XB}, s{S_XB}, {8*1152}",
          f"s_mul_i32 s{S_XM}, s{S_T4}, 9216", f"s_add_u32 s{S_XM}, s{S_XM}, {L_X}", f"s_movk_i32 s{S_DI}, 1024", f"s_movk_i32 s{S_DS}, 128")
        self.rest_srds()
        a("v_and_b32 v13, 15, v0", "v_lshrrev_b32 v16, 4, v0",
          "v_bfe_u32 v17, v0, 1, 3", "v_xor_b32 v17, v16, v17", "v_lshlrev_b32 v17, 4, v17",
          "v_and_b32 v18, 7, v0", "v_lshl_add_u32 v17, v18, 7, v17", "v_bfe_u32 v18, v0, 3, 1", "v_mul_u32_u24 v18, 0x2400, v18",
          f"s_lshr_b32 s{S_T0}, s{S_HG}, 1", f"s_lshl_b32 s{S_T0}, s{S_T0}, 1", f"s_add_u32 s{S_T0}, s{S_T0}, s{S_PBI}",
          f"s_mul_i32 s{S_T1}, s{S_T0}, {2*9216}", f"s_add_u32 s{S_T1}, s{S_T1}, {L_X}", f"v_add3_u32 v14, v17, v18, s{S_T1}", "v_xor_b32 v15, 64, v14",
          "v_bfe_u32 v17, v0, 2, 2", "v_lshl_add_u32 v17, v16, 3, v17",
          "v_mul_u32_u24 v17, 48, v17", "v_and_b32 v18, 3, v0", "v_lshlrev_b32 v18, 3, v18",
          f"s_cmp_eq_u32 s{S_HQ}, 0", "s_cselect_b64 vcc, -1, 0", "v_mov_b32 v19, 32", "v_cndmask_b32 v18, v19, v18, vcc", f"v_add_u32 v17, {L_W}, v17", "v_add_u32 v17, v17, v18")
        a("v_lshrrev_b32 v19, 5, v0", "v_lshlrev_b32 v19, 9, v19", "v_lshl_add_u32 v19, v13, 4, v19",
          "v_bfe_u32 v18, v0, 4, 1", "v_lshl_add_u32 v28, v18, 3, v19", "v_lshlrev_b32 v29, 2, v13",
          f"s_mul_i32 s{S_KVS}, s{S_PG}, {PB}", f"s_mov_b32 s{S_OEX}, s{S_T0}")
        self.dma9_setup(S_HG)
        self.dma9(R_X, 8)
        self.stamp(3, 2)
        self.table_load()
        a("s_setprio 1", "s_waitcnt vmcnt(10)")
        self.stamp(1)
        self.stamp(4, 2)
        a("s_barrier")
        a(f"s_bitcmp1_b32 s{S_HG}, 0", "s_cbranch_scc1 L_vproj")
        D = 32
        NB = o['nb']
        for isv in (0, 1):
            if isv:
                a.label("L_vproj")

            def rd(s):
                xb = 40 + 8 * (s % NB)
                return [f"ds_read_b128 {vr(xb,4)}, v{14+(s&1)} offset:{(s>>1)*1024}",
                        f"ds_read_b64_tr_b16 {vr(xb+4,2)}, v17 offset:{s*1536}", f"ds_read_b64_tr_b16 {vr(xb+6,2)}, v17 offset:{s*1536+192}"]
            for s in range(NB - 1):
                a(rd(s))
            for s in range(18):
                if s == o['sb']:
                    a("s_waitcnt vmcnt(0)", "s_barrier")
                if s + NB - 1 < 18:
                    a(rd(s + NB - 1))
                left = min(18 - 1 - s, NB - 1)
                xb = 40 + 8 * (s % NB)
                c = "0" if s == 0 else None
                a(f"s_waitcnt lgkmcnt({min(15,3*left)})", M16(D, xb, xb + 4, c) if isv else M16(D, xb + 4, xb, c))
            g = S_OEX
            if not isv:
                a(f"s_lshr_b32 s{S_T0}, s{g}, 1", f"s_lshl_b32 s{S_T0}, s{S_T0}, 10", f"s_lshl_b32 s{S_T1}, s{S_PBI}, 8", f"s_add_u32 s{S_T0}, s{S_T0}, s{S_T1}",
                  f"s_add_u32 s{S_T0}, s{S_T0}, s{S_KVS}",
                  f"s_lshl_b32 s{S_T1}, s{g}, 6", f"s_add_u32 s{S_T1}, s{S_T1}, s{S_KVS}", f"s_add_u32 s{S_T1}, s{S_T1}, 2048",
                  f"s_mov_b32 s{S_T2}, {hex(f2u(CSCALE))}")
                for r in range(4):
                    a(f"v_mul_f32 v{D+r}, s{S_T2}, v{D+r}")
                a(f"v_cvt_pk_bf16_f32 v{D}, v{D}, v{D+1}", f"v_cvt_pk_bf16_f32 v{D+1}, v{D+2}, v{D+3}",
                  f"s_lshl_b32 s{S_T3}, s{S_PG}, 2", f"s_add_u32 s{S_T3}, s{S_T3}, s{g}", f"s_lshl_b32 s{S_T3}, s{S_T3}, 2", f"s_add_u32 s{S_T3}, s{S_T3}, {WS_KN}",
                  f"v_dot2_f32_bf16 v36, v{D}, v{D}, 0",
                  f"s_cmp_eq_u32 s{S_HQ}, 0", "s_cbranch_scc0 L_krem",
                  f"buffer_store_dwordx2 {vr(D,2)}, v28, s[{R_WS}:{R_WS+3}], s{S_T0} offen sc1",
                  f"v_dot2_f32_bf16 v36, v{D+1}, v{D+1}, v36", "s_nop 2", "v_mov_b32 v37, v36", "s_nop 1",
                  "v_permlane16_swap_b32 v36, v37", "s_nop 1", "v_add_f32 v36, v36, v37", "s_nop 0", "v_mov_b32 v37, v36", "s_nop 1",
                  "v_permlane32_swap_b32 v36, v37", "s_nop 1", "v_add_f32 v36, v36, v37", "s_branch L_knorm",
                  "L_krem:", "s_mov_b64 exec, 0xffff",
                  f"buffer_store_dword v{D}, v29, s[{R_WS}:{R_WS+3}], s{S_T1} offen sc1", "s_mov_b64 exec, -1", f"s_add_u32 s{S_T3}, s{S_T3}, 512",
                  "L_knorm:", "s_nop 1")
                self.row_max16(36)
                a("v_mov_b32 v37, 0", "s_mov_b64 exec, 1", f"buffer_store_dword v36, v37, s[{R_WS}:{R_WS+3}], s{S_T3} offen sc1", "s_mov_b64 exec, -1",
                  "s_branch L_kvdone")
            else:
                a(f"s_mul_i32 s{S_T0}, s{g}, {VG}", f"s_add_u32 s{S_T0}, s{S_T0}, s{S_KVS}", f"s_add_u32 s{S_T0}, s{S_T0}, 2304",
                  "v_cmp_eq_u32 vcc, 2, v13", f"v_cmp_eq_u32 s[{S_EX}:{S_EX+1}], 3, v13", "v_mov_b32 v30, 0x3f803f80", "s_nop 0",
                  f"s_cmp_eq_u32 s{S_HQ}, 0",
                  f"v_cvt_pk_bf16_f32 v{D}, v{D}, v{D+1}", f"v_cvt_pk_bf16_f32 v{D+1}, v{D+2}, v{D+3}", "s_cbranch_scc0 L_vrem",
                  f"buffer_store_dwordx2 {vr(D,2)}, v21, s[{R_WS}:{R_WS+3}], s{S_T0} offen sc1", "s_branch L_kvdone",
                  "L_vrem:",
                  f"v_cndmask_b32 v{D}, v{D}, v30, vcc", f"v_cndmask_b32 v{D+1}, v{D+1}, v30, vcc",
                  f"v_cndmask_b32 v{D}, v{D}, 0, s[{S_EX}:{S_EX+1}]", f"v_cndmask_b32 v{D+1}, v{D+1}, 0, s[{S_EX}:{S_EX+1}]",
                  "s_mov_b32 exec_lo, 0x000f000f", "s_mov_b32 exec_hi, 0x000f000f",
                  f"buffer_store_dwordx2 {vr(D,2)}, v22, s[{R_WS}:{R_WS+3}], s{S_T0} offen sc1", "s_mov_b64 exec, -1")
        a.label("L_kvdone")
        self.stamp(2)
        self.stamp(5, 2)
        a(f"v_mov_b32 v{V_AV}, v20")
        self.wq_setup(6, 2)
        self.loader_flag()
        a("s_barrier")
        nxt = 6
        for gi_, (last, _) in enumerate(self.GROUPS):
            lim = 16 if gi_ < 3 else 17
            tgt = {0: 7, 1: 5 + o['win']}.get(gi_, last + o['win'])
            while nxt <= min(tgt, lim):
                self.wq_dma(nxt)
                nxt += 1
            assert nxt > last
            if gi_ == 1:
                a(f"s_cbranch_vccnz L_l{gi_}", "s_waitcnt vmcnt(0)", f"L_l{gi_}:", f"s_waitcnt vmcnt({3*(nxt-6)})")
            if gi_ > 1:
                a(f"s_waitcnt vmcnt({3*(nxt-1-last)})")
            if gi_ == 2:
                a(f"v_mov_b32 v150, {L_FLAG}", "v_mov_b32 v152, 0", "v_mov_b32 v153, 0", "v_mov_b32 v151, 0", "ds_write_b64 v150, v[152:153]", "s_waitcnt lgkmcnt(0)")
            if gi_ == 4:
                self.init_main_regs()
                a(f"s_and_b32 s{S_T0}, s{S_GI}, 3", f"s_mul_i32 s{S_KVS}, s{S_T0}, {37*1024}", f"s_add_u32 s{S_KVS}, s{S_KVS}, s{S_M0A}",
                  "v_lshlrev_b32 v153, 3, v0", f"s_mov_b32 s{S_T4}, {WS_KN}", f"s_lshl_b32 s{S_T5}, s{S_B}, 7")
            if gi_ == 5:
                assert nxt == 18
                a("s_cbranch_vccnz L_try0", f"buffer_load_dword v152, v151, s[{R_DBG}:{R_DBG+3}], s{S_T5} offen sc0 sc1", "s_waitcnt vmcnt(0)",
                  "v_lshrrev_b32 v152, 7, v152", "ds_write_b32 v150, v152", "s_waitcnt lgkmcnt(0)", "L_try0:")
            if gi_ > 0:
                self.stamp(gi_, 3)
            a("s_barrier")
            if gi_ == 5:
                break
        kn = [f"s_cmp_lg_u32 s{S_WAVE}, 7", None, f"buffer_load_dwordx2 v[154:155], v153, s[{R_WS}:{R_WS+3}], s{S_T4} offen sc1",
              f"buffer_load_dwordx2 v[156:157], v153, s[{R_WS}:{R_WS+3}], s{S_T4} offen offset:512 sc1"]
        a("ds_read_b32 v152, v150", "s_waitcnt lgkmcnt(0)", "v_cmp_eq_u32 vcc, 0, v152", "s_cbranch_vccnz L_notyet")
        self.stamp(4)
        a(kn[0], "s_cbranch_scc1 L_kna", kn[2:], "L_kna:")
        self.kv_dma(0, o['kv1'])
        a(f"s_cmp_eq_u32 s{S_WAVE}, 7", "s_cbranch_scc1 L_knb", f"s_waitcnt vmcnt({o['kv1']})", "L_knb:")
        self.stamp(6, 3)
        a("s_barrier", "s_branch L_first")
        a("L_notyet:", "s_waitcnt vmcnt(0)")
        self.stamp(6, 3)
        a("s_barrier")
        a(f"s_mov_b32 s{S_CNT}, {SPIN}", f"s_cmp_lg_u32 s{S_WAVE}, 7", "s_cbranch_scc1 L_relay")
        a("L_poll1:", f"buffer_load_dword v152, v151, s[{R_DBG}:{R_DBG+3}], s{S_T5} offen sc0 sc1", f"s_sub_u32 s{S_CNT}, s{S_CNT}, 1",
          "s_cbranch_scc1 L_poll1d", "s_waitcnt vmcnt(0)", "v_cmp_gt_u32 vcc, 0x80, v152", "s_cbranch_vccnz L_poll1",
          "L_poll1d:", "v_mov_b32 v152, 1", "ds_write_b32 v150, v152", kn[2:], "s_branch L_flagok")
        a("L_relay:", "ds_read_b32 v152, v150", f"s_sub_u32 s{S_CNT}, s{S_CNT}, 1", "s_cbranch_scc1 L_flagok", "s_waitcnt lgkmcnt(0)",
          "v_cmp_eq_u32 vcc, 0, v152", "s_cbranch_vccnz L_relay", "L_flagok:")
        self.stamp(4)
        self.kv_dma(0, o['kv1'])
        a("L_first:")
        self.stamp(3)
        self.stamp(6, 2)
        a(f"s_cmp_lg_u32 s{S_WAVE}, 7", "s_cbranch_scc1 L_nokn", f"s_waitcnt vmcnt({o['kv1']})", "v_max_f32 v154, v154, v155", "v_max_f32 v156, v156, v157")
        self.row_max16(154)
        self.row_max16(156)
        a("s_nop 0")
        for k in range(4):
            a(f"v_readlane_b32 s{16+k}, v154, {16*k}", f"v_readlane_b32 s{20+k}, v156, {16*k}")
        a("s_nop 1", "s_max_u32 s16, s16, s17", "s_max_u32 s18, s18, s19", "s_max_u32 s20, s20, s21", "s_max_u32 s22, s22, s23",
          "s_max_u32 s16, s16, s18", "s_max_u32 s20, s20, s22", "v_mov_b32 v154, s16", "v_add_f32 v154, s20, v154", "v_sqrt_f32 v154, v154",
          f"v_mov_b32 v155, {L_KMAX}", "ds_write_b32 v155, v154", "L_nokn:")
        a(f"v_mov_b32 v{V_IDX}, 0xdddddddd", f"v_add_u32 v{V_AK}, {L_KV}, v1", f"v_lshlrev_b32 v{V_AR}, 2, v0", f"v_add_u32 v{V_AR}, {L_KV+2048}, v{V_AR}",
          f"s_mul_i32 s{S_T0}, s{S_I}, 2560", f"v_add_u32 v8, s{S_T0}, v1", "v_lshlrev_b32 v9, 3, v0", f"v_add_u32 v9, s{S_T0}, v9", f"v_mov_b32 v6, {L_KMAX}")
        a("s_waitcnt vmcnt(0) lgkmcnt(0)", "s_barrier")
        a("ds_read_b32 v6, v6", f"ds_read_b64 {vr(QR,2)}, v9 offset:2048", f"ds_read_b128 {vr(QM[1],4)}, v8 offset:1024", f"ds_read_b128 {vr(QM[0],4)}, v8")
        self.kv_dma(4 * o['kv1'], 37 - o['kv1'])
        a("s_waitcnt vmcnt(0) lgkmcnt(0)")
        self.stamp(5)
        a("s_barrier")
        self.wo_job_loads(0)
        a(f"s_cmp_ge_u32 s{S_OEX}, {648-512}", "s_cbranch_scc1 L_nowo2", f"s_add_u32 s{S_OEX}, s{S_OEX}, 512")
        self.wo_job_loads(1)
        a("L_nowo2:")
        self.poison()
        a("s_waitcnt vmcnt(5)", f"s_cmp_ge_u32 s{S_OEX}, 512", "s_cbranch_scc0 L_wo3")
        self.wo_job_finish(1)
        a(f"s_sub_u32 s{S_OEX}, s{S_OEX}, 512", "L_wo3:")
        self.wo_job_finish(0)
        self.main_prologue_loads()
        self.join_signal(200, "l")
        a("s_mov_b64 exec, -1", f"s_mov_b32 s{S_BAR}, -1", f"s_mov_b32 s{S_STG}, 1")

    def join_signal(self, v, tag):
        self.a(f"v_mov_b32 v{v}, {L_FLAG+4}", f"v_mov_b32 v{v+1}, 1", f"v_mov_b32 v{v+3}, 0", f"s_lshl_b32 s{S_T0}, s{S_B}, 7", "s_mov_b64 exec, 1",
               "s_waitcnt vmcnt(0)", f"ds_add_rtn_u32 v{v+2}, v{v}, v{v+1}", "s_waitcnt lgkmcnt(0)", f"v_cmp_eq_u32 vcc, 3, v{v+2}", f"s_cbranch_vccz L_js{tag}",
               f"buffer_atomic_add v{v+1}, v{v+3}, s[{R_DBG}:{R_DBG+3}], s{S_T0} offen offset:4 sc1", f"L_js{tag}:")

    def wo_job_loads(self, rep):
        a = self.a
        if rep == 0:
            a(f"s_lshl_b32 s{S_OEX}, s{S_PG}, 2", f"s_add_u32 s{S_OEX}, s{S_OEX}, s{S_HG}", f"s_lshl_b32 s{S_OEX}, s{S_OEX}, 2", f"s_add_u32 s{S_OEX}, s{S_OEX}, s{S_I}")
        f = S_OEX
        AD, DT = 208, 216 + 8 * rep
        a(f"s_mul_i32 s16, s{f}, 7282", "s_lshr_b32 s16, s16, 16", "s_mul_i32 s17, s16, 9", f"s_sub_u32 s17, s{f}, s17",
          "s_mul_i32 s18, s16, 7282", "s_lshr_b32 s18, s18, 16", "s_mul_i32 s19, s18, 9", "s_sub_u32 s19, s16, s19",
          "s_and_b32 s20, s18, 1", "s_lshr_b32 s21, s18, 1")
        a("s_mul_i32 s22, s21, 288", "s_lshr_b32 s23, s17, 1", "s_lshl_b32 s23, s23, 6", "s_add_u32 s22, s22, s23", "s_and_b32 s23, s17, 1", "s_lshl_b32 s23, s23, 3",
          "s_add_u32 s22, s22, s23", "s_cmp_eq_u32 s17, 8", "s_cselect_b32 s23, 3, 4",
          "v_bfe_u32 v200, v0, 2, 2", "v_lshlrev_b32 v200, s23, v200", "v_and_b32 v201, 3, v0", "v_lshl_add_u32 v200, v201, 1, v200", "v_add_u32 v200, s22, v200",
          f"s_mul_i32 s22, s20, {36*1152}", "s_cmp_eq_u32 s19, 8", f"s_cbranch_scc1 L_wok1_{rep}")
        cy = [(j & 3) + 8 * (j >> 2) for j in range(8)]
        a(f"s_mul_i32 s23, s19, {72*1152}", "s_add_u32 s22, s22, s23", "v_lshrrev_b32 v201, 5, v0", "v_bfe_u32 v202, v0, 4, 1",
          f"v_mul_u32_u24 v203, {4*1152}, v201", "v_add_u32 v203, v200, v203",
          f"v_mul_u32_u24 v204, {3*1152}, v201", f"v_sub_u32 v204, {16*1152}, v204", "v_mul_u32_u24 v204, v202, v204", f"v_add_u32 v{AD}, v203, v204")
        for j in range(1, 8):
            dj = 18 + cy[j-1] - cy[j]
            a(f"v_mul_u32_u24 v204, {dj*1152}, v202", f"v_add_u32 v204, {cy[j]*1152}, v204", f"v_add_u32 v{AD+j}, v203, v204")
        a(f"s_branch L_wold_{rep}", f"L_wok1_{rep}:", "v_lshrrev_b32 v201, 4, v0", f"v_mul_u32_u24 v201, {144*1152}, v201", "v_add_u32 v203, v200, v201")
        for j in range(8):
            hq, hh, e = j >> 2, (j >> 1) & 1, j & 1
            row = 72 * hq + 18 + ((16 + hh) if e else (11 + 4 * hh))
            a(f"v_add_u32 v{AD+j}, {row*1152}, v203")
        a(f"L_wold_{rep}:")
        for j in range(8):
            a(f"buffer_load_ushort v{DT+j}, v{AD+j}, s[{R_WO}:{R_WO+3}], s22 offen")

    def wo_job_finish(self, rep):
        a = self.a
        DT = 216 + 8 * rep
        a(f"s_lshl_b32 s22, s{S_OEX}, 10", f"s_add_u32 s22, s22, {WS_WOT}")
        for j in range(4):
            a(f"v_lshl_or_b32 v{232+4*rep+j}, v{DT+1+2*j}, 16, v{DT+2*j}")
        a(f"buffer_store_dwordx4 {vr(232+4*rep,4)}, v1, s[{R_WS}:{R_WS+3}], s22 offen sc1")

    def poison(self):
        a = self.a
        a([f"v_mov_b32 v{176+j}, -1" for j in range(4)])
        a(f"s_mul_i32 s24, s{S_PG}, {OEX_G}", f"s_mul_i32 s25, s{S_HQ}, {OEX_S}", "s_add_u32 s24, s24, s25", f"s_add_u32 s24, s24, {WS_OEX}",
          f"s_lshl_b32 s25, s{S_HG}, 13", f"s_lshl_b32 s26, s{S_PBI}, 12", "s_add_u32 s25, s25, s26", "s_add_u32 s25, s25, s24",
          f"s_lshl_b32 s26, s{S_HG}, 6", "s_add_u32 s26, s26, s24", "s_add_u32 s26, s26, 32768",
          "v_lshrrev_b32 v180, 2, v0", "v_lshlrev_b32 v180, 8, v180", "v_and_b32 v181, 3, v0", "v_lshl_add_u32 v180, v181, 4, v180")
        for k in range(4):
            a(f"buffer_store_dwordx4 v[176:179], v1, s[{R_WS}:{R_WS+3}], s25 offen offset:{k*1024} sc0 sc1")
        a(f"buffer_store_dwordx4 v[176:179], v180, s[{R_WS}:{R_WS+3}], s26 offen sc0 sc1")

    def coop_load(self, n, tag):
        a = self.a
        B = 8
        a(f"s_lshl_b32 s{S_T0}, s{S_WAVE}, 10", f"v_add_u32 v6, s{S_T0}, v1", f"s_add_u32 s{S_T0}, s{S_T0}, s{S_OEXB}", f"s_add_u32 s{S_T0}, s{S_T0}, {OEX_S}")
        for k in range(1, n):
            a(f"s_add_u32 s{16+k}, s{S_T0}, {8192*k}")
        a(f"s_mov_b32 s{S_CNT}, {SPIN}")
        a("s_barrier")
        self.stamp(1, 4)
        if tag == 'l':
            self.stamp(1, 1)
        a.label(f"L_cl{tag}")
        for k in range(n):
            a(f"buffer_load_dwordx4 {vr(B+4*k,4)}, v1, s[{R_WS}:{R_WS+3}], s{16+k if k else S_T0} offen sc0 sc1")
        a(f"s_sub_u32 s{S_CNT}, s{S_CNT}, 1", f"s_cbranch_scc1 L_cld{tag}")
        for k in range(n):
            r = B + 4 * k
            a(f"s_waitcnt vmcnt({n-1-k})")
            if k == 0:
                self.stamp(3, 4)
            if k == 0:
                a(f"v_max3_u32 v7, v{r}, v{r+1}, v{r+2}", f"v_max_u32 v7, v7, v{r+3}")
            else:
                a(f"v_max3_u32 v7, v7, v{r}, v{r+1}", f"v_max3_u32 v7, v7, v{r+2}, v{r+3}")
        a("v_cmp_eq_u32 vcc, -1, v7", f"s_cbranch_vccnz L_cl{tag}", f"L_cld{tag}:", "s_waitcnt vmcnt(0)")
        self.stamp(2, 4)
        if self.o['stamps'] and self.o['set'] == 4:
            a(f"s_mov_b32 s{S_ST+12}, s{S_CNT}")
        if tag == 'l':
            self.stamp(2, 1)
        for k in range(n):
            a(f"ds_write_b128 v6, {vr(B+4*k,4)} offset:{L_KV + 8192*k}")
        a("s_waitcnt lgkmcnt(0)", "s_barrier")
        self.stamp(4, 4)
        if tag == 'l':
            self.stamp(3, 1)

    def attention(self):
        a, o = self.a, self.o
        UNP = o['unp']
        a.label("L_attn")
        a(f"v_mul_f32 v7, v6, v{QR+1}", f"v_mov_b32 v6, {hex(f2u(-1.0 if o['force_fb'] else TSAFE))}",
          "v_cmp_nle_f32 vcc, v7, v6", "v_sub_f32 v7, 0, v7", f"v_cvt_pk_bf16_f32 v{QR+1}, v7, 0", "s_cbranch_vccnz L_fallback", "L_fbdone:")
        q = self.qk(S[0], 0)
        a("s_nop 0", q[0], "s_nop 15", "s_nop 1", q[1], q[2], f"s_mov_b32 s{S_CNT}, {32//UNP}", "s_nop 9")
        self.stamp(6)
        body = []
        for kb in range(2 * UNP):
            cur, nxt = S[kb % 2], S[(kb + 1) % 2]
            q = self.qk(nxt, kb + 1)
            e = EX(cur, 32)
            sm3p = SM(O[1], VV[(kb - 1) % 2][1], nxt + 24)
            sm = [SM(O[0], VV[kb % 2][0], cur), SM(O[0], VV[kb % 2][1], cur + 8), SM(O[1], VV[kb % 2][0], cur + 16)]
            cl = self.ldKm(kb + 2) + (self.ldKr((kb + 3) // 2) if kb % 2 == 1 else []) + self.ldV(kb + 1)
            body += e[0:2] + [sm3p] + e[2:5] + [q[0]] + e[5:13] + ["s_waitcnt lgkmcnt(0)", sm[0]] + e[13:18] + [sm[1]] + e[18:21] + [q[1]] + e[21:24] + [q[2]] + cl + e[24:27] + [sm[2]] + e[27:32]
        body += [f"v_add_u32 v{V_AK}, {UNP*PB}, v{V_AK}", f"v_add_u32 v{V_AR}, {UNP*PB}, v{V_AR}", f"v_add_u32 v{V_AV}, {UNP*PB}, v{V_AV}"]
        self.loop_body = body
        a(".p2align 6", "L_main:", body, f"s_sub_u32 s{S_CNT}, s{S_CNT}, 1", f"s_cmp_lg_u32 s{S_CNT}, s{S_BAR}", "s_cbranch_scc1 L_nob7", "s_barrier", "L_nob7:",
          f"s_cmp_lg_u32 s{S_CNT}, 0", "s_cbranch_scc1 L_main")
        a(f"v_mov_b32 v22, {L_FLAG+4}", SM(O[1], VV[1][1], S[1] + 24), "ds_read_b32 v23, v22")
        self.stamp(7)
        a(f"s_mul_i32 s{S_OEXB}, s{S_PG}, {OEX_G}", f"s_add_u32 s{S_OEXB}, s{S_OEXB}, {WS_OEX}", f"s_mul_i32 s{S_T0}, s{S_STG}, {OEX_S}", f"s_add_u32 s{S_T0}, s{S_T0}, s{S_OEXB}",
          f"s_lshl_b32 s{S_T1}, s{S_PBI}, 11", f"s_add_u32 s{S_T0}, s{S_T0}, s{S_T1}",
          f"s_lshl_b32 s{S_T1}, s{S_HG}, 13", f"s_lshl_b32 s{S_T2}, s{S_HQ}, 12", f"s_add_u32 s{S_T1}, s{S_T1}, s{S_T2}", f"s_add_u32 s{S_T1}, s{S_T1}, s{S_T0}",
          f"s_lshl_b32 s{S_T2}, s{S_HG}, 6", f"s_lshl_b32 s{S_T3}, s{S_HQ}, 9", f"s_add_u32 s{S_T2}, s{S_T2}, s{S_T3}", f"s_add_u32 s{S_T2}, s{S_T2}, s{S_T0}",
          f"s_add_u32 s{S_T2}, s{S_T2}, 32768",
          "v_bfe_u32 v10, v0, 4, 1", "v_lshlrev_b32 v10, 10, v10", "v_lshrrev_b32 v11, 5, v0", "v_and_b32 v12, 15, v0",
          "v_lshl_add_u32 v8, v11, 9, v10", "v_lshl_add_u32 v8, v12, 4, v8", "v_lshl_add_u32 v9, v11, 8, v10", "v_lshl_add_u32 v9, v12, 2, v9")
        a(f"v_rcp_f32 v10, v{O[0]+9}", f"v_rcp_f32 v11, v{O[1]+9}")
        vals = [O[0] + j for j in range(9)] + [O[1] + j for j in range(9)]
        for j, r in enumerate(vals):
            a(f"v_mul_f32 v{r}, v{r}, v{10 if j < 9 else 11}")
        a(f"s_mov_b32 s{S_CNT}, {SPIN}", "L_pchk:", "s_waitcnt lgkmcnt(0)", "v_cmp_gt_u32 vcc, 4, v23", "s_cbranch_vccz L_pok",
          "ds_read_b32 v23, v22", f"s_sub_u32 s{S_CNT}, s{S_CNT}, 1", "s_cbranch_scc0 L_pchk", "L_pok:")
        for j in range(9):
            a(f"v_cvt_pk_bf16_f32 v{12+j}, v{vals[2*j]}, v{vals[2*j+1]}")
            if j == 3:
                a(f"buffer_store_dwordx4 v[12:15], v8, s[{R_WS}:{R_WS+3}], s{S_T1} offen sc0 sc1")
            if j == 7:
                a(f"buffer_store_dwordx4 v[16:19], v8, s[{R_WS}:{R_WS+3}], s{S_T1} offen offset:256 sc0 sc1")
        a(f"buffer_store_dword v20, v9, s[{R_WS}:{R_WS+3}], s{S_T2} offen sc0 sc1")
        a(f"s_cmp_eq_u32 s{S_STG}, 0", "s_cbranch_scc1 L_oproj")
        self.coop_load(4, "l")
        self.dump_stamps()
        a("s_endpgm")

    def fallback(self):
        a, o = self.a, self.o
        a.label("L_fallback")
        a(f"s_cmp_eq_u32 s{S_STG}, 1", "s_cbranch_scc1 L_fb1", "s_barrier", f"s_mov_b32 s{S_BAR}, -1", "L_fb1:")
        a(f"v_mov_b32 v{QR+1}, 0", f"v_mov_b32 v144, v{V_AK}", f"v_mov_b32 v145, v{V_AR}", "v_mov_b32 v146, 0xff800000", "v_mov_b32 v147, 0xff800000",
          "v_mov_b32 v151, 0x3f803f80", f"s_mov_b32 s{S_CNT}, 32", "L_fbl:",
          "ds_read_b32 v150, v145", "ds_read_b128 v[152:155], v144", "ds_read_b128 v[156:159], v144 offset:1024",
          f"v_add_u32 v144, {PB}, v144", f"v_add_u32 v145, {PB}, v145", "s_waitcnt lgkmcnt(0)")
        for h in range(2):
            a(B2(160, 150, QR, h), "s_nop 15", "s_nop 1", K16(160, 152 + 4 * h, QM[0]), K16(176, 152 + 4 * h, QM[1]), "s_nop 11")
            for j in range(8):
                a(f"v_max3_f32 v146, v146, v{160+2*j}, v{161+2*j}", f"v_max3_f32 v147, v147, v{176+2*j}, v{177+2*j}")
        a(f"s_sub_u32 s{S_CNT}, s{S_CNT}, 1", f"s_cmp_lg_u32 s{S_CNT}, 0", "s_cbranch_scc1 L_fbl",
          "s_nop 0", "v_permlane32_swap_b32 v146, v147", "s_nop 1", "v_max_f32 v146, v146, v147", "v_sub_f32 v146, 0, v146",
          "v_cvt_pk_bf16_f32 v147, v146, 0", "v_lshlrev_b32 v148, 16, v147", "v_sub_f32 v148, v146, v148", f"v_cvt_pk_bf16_f32 v{QR+1}, v146, v148",
          "s_branch L_fbdone")

    def oproj(self):
        a, o = self.a, self.o
        a.label("L_oproj")
        if o['prio'] == 2:
            a("s_setprio 0")
        WF, ACC, OB = 148, 112, [8, 56]
        for tp in range(4):
            a(f"s_xor_b32 s{S_T0}, s{S_WAVE}, {tp}", f"s_lshl_b32 s{S_T0}, s{S_T0}, 10", f"v_add_u32 v{104+tp}, s{S_T0}, v1",
              f"v_lshlrev_b32 v{108+tp}, 2, v0", f"v_add_u32 v{108+tp}, s{S_T0}, v{108+tp}")
        a(f"s_mov_b32 s{S_CNT}, {SPIN}", f"s_lshl_b32 s{S_T0}, s{S_B}, 7", "v_mov_b32 v11, 0")
        self.stamp(1, 1)
        a("L_poll2:", f"buffer_load_dword v7, v11, s[{R_DBG}:{R_DBG+3}], s{S_T0} offen offset:4 sc0 sc1", f"s_sub_u32 s{S_CNT}, s{S_CNT}, 1",
          "s_cbranch_scc1 L_poll2d", "s_waitcnt vmcnt(0)", "v_cmp_gt_u32 vcc, 0x80, v7", "s_cbranch_vccz L_poll2d", "s_sleep 16", "s_branch L_poll2", "L_poll2d:")

        def wo_loads(stg):
            a(f"s_lshl_b32 s{S_T0}, s{S_HG}, 1", f"s_add_u32 s{S_T0}, s{S_T0}, {stg}", f"s_mul_i32 s{S_T0}, s{S_T0}, {81*1024}", f"s_add_u32 s{S_T0}, s{S_T0}, {WS_WOT}",
              f"s_lshl_b32 s{S_T1}, s{S_WAVE}, 11", f"s_add_u32 s{S_T1}, s{S_T1}, s{S_T0}", f"s_add_u32 s{S_T0}, s{S_T0}, 8192")
            for ks in range(9):
                a(f"buffer_load_dwordx4 {vr(WF+12*ks,4)}, v1, s[{R_WS}:{R_WS+3}], s{S_T1} offen sc1",
                  f"buffer_load_dwordx4 {vr(WF+12*ks+4,4)}, v1, s[{R_WS}:{R_WS+3}], s{S_T1} offen offset:1024 sc1",
                  f"buffer_load_dwordx4 {vr(WF+12*ks+8,4)}, v1, s[{R_WS}:{R_WS+3}], s{S_T0} offen sc1")
                if ks < 8:
                    a(f"s_add_u32 s{S_T1}, s{S_T1}, 9216", f"s_add_u32 s{S_T0}, s{S_T0}, 9216")

        def mms(ks, ob, first):
            w = WF + 12 * ks
            x = []
            for tp in range(4):
                c = "0" if first else None
                x.append([M16(ACC + 4 * tp, w, ob + 4 * tp, c), M16(ACC + 16 + 4 * tp, w + 4, ob + 4 * tp, c)] + ([M16(ACC + 32, w + 8, ob, c)] if tp == 0 else []))
            return x

        def loads(bt):
            buf = OB[bt % 2]
            x = []
            for k in range(3):
                ks = 3 * bt + k
                x.append(f"s_add_u32 s{S_T0}, s{S_OEXB}, {ks*4096}")
                for tp in range(4):
                    r = buf + 16 * k + 4 * tp
                    if ks < 8:
                        x.append(f"buffer_load_dwordx4 {vr(r,4)}, v{104+tp}, s[{R_WS}:{R_WS+3}], s{S_T0} offen sc0 sc1")
                    else:
                        x += [f"buffer_load_dword v{r+j}, v{108+tp}, s[{R_WS}:{R_WS+3}], s{S_T0} offen offset:{j*256} sc0 sc1" for j in range(4)]
            return x
        wo_loads(0)
        a("v_lshlrev_b32 v6, 6, v0", f"s_add_u32 s{S_T0}, s{S_OEXB}, 32768", f"s_mov_b32 s{S_CNT}, {SPIN}",
          "L_pre:", f"buffer_load_dword v7, v6, s[{R_WS}:{R_WS+3}], s{S_T0} offen sc0 sc1", f"s_sub_u32 s{S_CNT}, s{S_CNT}, 1",
          "s_cbranch_scc1 L_pred", "s_waitcnt vmcnt(0)", "v_cmp_eq_u32 vcc, -1, v7", "s_cbranch_vccz L_pred", "s_sleep 8", "s_branch L_pre", "L_pred:")
        self.stamp(2, 1)
        a(loads(0), loads(1))
        for bt in range(3):
            buf = OB[bt % 2]
            a(f"s_waitcnt vmcnt({ {0: 12, 1: 24, 2: 0}[bt] })", f"L_chk{bt}:", f"v_max3_u32 v6, v{buf}, v{buf+1}, v{buf+2}", f"v_max3_u32 v7, v{buf+3}, v{buf+4}, v{buf+5}")
            for j in range(6, 48, 4):
                if j + 3 < 48:
                    a(f"v_max3_u32 v6, v6, v{buf+j}, v{buf+j+1}", f"v_max3_u32 v7, v7, v{buf+j+2}, v{buf+j+3}")
                else:
                    a(f"v_max3_u32 v6, v6, v{buf+j}, v{buf+j+1}")
            a("v_max_u32 v6, v6, v7", "v_cmp_eq_u32 vcc, -1, v6", f"s_cbranch_vccz L_ok{bt}",
              f"s_sub_u32 s{S_CNT}, s{S_CNT}, 1", f"s_cbranch_scc1 L_ok{bt}", "s_waitcnt vmcnt(0)", loads(bt), "s_waitcnt vmcnt(0)", f"s_branch L_chk{bt}", f"L_ok{bt}:")
            for k in range(3):
                a(mms(3 * bt + k, buf + 16 * k, bt == 0 and k == 0))
            if bt == 0:
                a(loads(2))
        self.stamp(3, 1)
        wo_loads(1)
        for tp in range(4):
            a(f"v_add_u32 v{104+tp}, {L_KV}, v{104+tp}", f"v_add_u32 v{108+tp}, {L_KV+32768}, v{108+tp}")
        a("s_waitcnt vmcnt(0)")
        if o['prio']:
            a("s_setprio 2")
        self.stamp(6, 1)
        self.coop_load(5, "e")
        self.stamp(4, 1 if o['set'] == 1 else 0)
        RB = [8, 24, 40]

        def lrd(ks):
            r = RB[ks % 3]
            if ks < 8:
                return [[f"ds_read_b128 {vr(r+4*tp,4)}, v{104+tp} offset:{ks*4096}"] for tp in range(4)]
            return [[f"ds_read2st64_b32 {vr(r+4*tp,2)}, v{108+tp} offset0:0 offset1:1", f"ds_read2st64_b32 {vr(r+4*tp+2,2)}, v{108+tp} offset0:2 offset1:3"] for tp in range(4)]
        a(lrd(0), lrd(1))
        order = []
        for ks in (0, 1):
            order += [(ks, tp, len(lrd(ks)[tp])) for tp in range(4)]
        for ks in range(9):
            m = mms(ks, RB[ks % 3], False)
            nx = lrd(ks + 2) if ks + 2 < 9 else None
            for tp in range(4):
                assert order[0][:2] == (ks, tp)
                order.pop(0)
                a(f"s_waitcnt lgkmcnt({sum(x[2] for x in order)})", m[tp])
                if nx:
                    a(nx[tp])
                    order.append((ks + 2, tp, len(nx[tp])))
        OUTF = ['', ' sc1', ' sc0 sc1', ' nt'][o['outf']]
        a(f"s_mul_i32 s{S_T0}, s{S_PG}, {64*2304}", f"s_mul_i32 s{S_T1}, s{S_B}, 1152", f"s_add_u32 s{S_T0}, s{S_T0}, s{S_T1}", f"s_mul_i32 s{S_T1}, s{S_HG}, 288",
          f"s_add_u32 s{S_T0}, s{S_T0}, s{S_T1}", f"s_lshl_b32 s{S_T1}, s{S_WAVE}, 6", f"s_add_u32 s{S_T1}, s{S_T1}, s{S_T0}",
          "v_and_b32 v8, 15, v0", "v_mul_u32_u24 v8, 0x900, v8", "v_lshrrev_b32 v9, 4, v0", "v_lshl_add_u32 v10, v9, 3, v8", "v_lshl_add_u32 v8, v9, 4, v8")
        for tp in range(4):
            r = 12 + 4 * tp
            a(f"s_xor_b32 s{S_T2}, s{S_WAVE}, {tp}", f"s_mul_i32 s{S_T2}, s{S_T2}, {16*2304}", f"s_add_u32 s{S_T3}, s{S_T2}, s{S_T1}",
              f"v_cvt_pk_bf16_f32 v{r}, v{ACC+4*tp}, v{ACC+4*tp+1}", f"v_cvt_pk_bf16_f32 v{r+1}, v{ACC+4*tp+2}, v{ACC+4*tp+3}",
              f"v_cvt_pk_bf16_f32 v{r+2}, v{ACC+16+4*tp}, v{ACC+16+4*tp+1}", f"v_cvt_pk_bf16_f32 v{r+3}, v{ACC+16+4*tp+2}, v{ACC+16+4*tp+3}",
              f"buffer_store_dwordx4 {vr(r,4)}, v8, s[{R_OUT}:{R_OUT+3}], s{S_T3} offen{OUTF}")
            if tp == 0:
                a(f"s_add_u32 s{S_T2}, s{S_T2}, s{S_T0}", f"v_cvt_pk_bf16_f32 v28, v{ACC+32}, v{ACC+33}", f"v_cvt_pk_bf16_f32 v29, v{ACC+34}, v{ACC+35}",
                  f"buffer_store_dwordx2 v[28:29], v10, s[{R_OUT}:{R_OUT+3}], s{S_T2} offen offset:256{OUTF}")
        if o['stamps'] or o['dbgspan'] or o['ampk']:
            a("s_waitcnt vmcnt(0)")
            self.stamp(5, o['set'] if o['set'] in (1, 4) else 0)
        if o['ampk']:
            a("s_waitcnt lgkmcnt(0)", f"s_sub_u32 s{S_T0}, s{S_ST+2*o['ampb']}, s{S_ST+2*o['ampa']}", f"s_mul_i32 s{S_T0}, s{S_T0}, {o['ampk']}" if o['ampk'] > 0 else f"s_lshr_b32 s{S_T0}, s{S_T0}, {-o['ampk']}", f"s_min_u32 s{S_T0}, s{S_T0}, 100000",
              "L_amp:", "s_memrealtime s[16:17]", "s_waitcnt lgkmcnt(0)", f"s_sub_u32 s16, s16, s{S_ST+10}", f"s_cmp_lt_u32 s16, s{S_T0}", "s_cbranch_scc1 L_amp")
        self.dump_stamps()
        a("L_end:", "s_endpgm")

    def build(self):
        self.start()
        self.early_front()
        self.late_front()
        self.attention()
        self.oproj()
        self.fallback()
        hdr = ("; fused MQA attention x2 (QKV proj + softmax attention + out proj), one launch, 1 workgroup per CU\n"
               f"; @launch grid=(256,1,1) block=(512,1,1) lds={LDS_BYTES}\n"
               '.amdgcn_target "amdgcn-amd-amdhsa--gfx950"\n.text\n'
               f".globl {NAME}\n.p2align 8\n.type {NAME},@function\n{NAME}:\n")
        if self.o['of'] & 1:
            self.a.L = [x.replace(" sc0 sc1", " sc1") if "buffer_store" in x and f"s[{R_WS}:" in x else x for x in self.a.L]
        if self.o['of'] & 2:
            self.a.L = [x.replace(" sc0 sc1", " sc1") if "buffer_load" in x and f"s[{R_WS}:" in x else x for x in self.a.L]
        body = "".join((x + "\n") if x.endswith(":") else ("    " + x + "\n") for x in self.a.L)
        t = table()
        tab = ".p2align 6\n.type L_table,@object\nL_table:\n" + "".join("    .long " + ", ".join(str(int(v)) for v in row) + "\n" for row in t)
        tab += f".fill (1024 - ((. - {NAME}) & 1023)) & 1023, 1, 0\nL_codeend:\n.size L_table, L_codeend-L_table\n"
        kd = f""".section .rodata,"a"
.p2align 6
.amdhsa_kernel {NAME}
  .amdhsa_next_free_vgpr 256
  .amdhsa_next_free_sgpr 102
  .amdhsa_accum_offset 256
  .amdhsa_group_segment_fixed_size 0
  .amdhsa_kernarg_size 104
  .amdhsa_user_sgpr_count 2
  .amdhsa_user_sgpr_kernarg_segment_ptr 1
  .amdhsa_system_sgpr_workgroup_id_x 1
.end_amdhsa_kernel
"""
        return hdr + body + tab + kd


if __name__ == "__main__":
    out = sys.argv[1]
    opt = {}
    for kv in sys.argv[2:]:
        k, v = kv.split("=")
        opt[k] = int(v)
    g = Gen(opt)
    open(out, "w").write(g.build())
```

```python
import sys, math, struct
import numpy as np

NAME = "concat_heads__grouped_kv_mqa__grouped_kv_mqa__prompt_kernel"

VG = 608
PB = 2048 + 256 + 4 * VG
KVB = 32 * PB
L_KV = 12288
L_HAND = 0
L_KMAX = 10240
L_FLAG = 10256
L_W = 62464
L_X = 90112
SLOT = 4608
LDS_BYTES = 163840
WS_KV = 0
WS_KN = KVB
WS_XID = WS_KN + 1024
WS_WOT = 0x28000
WS_OEX = 0xD0000
WS_BR = 0x400000
WS_STAMP = 0x1000000
OEX_G = 73728
OEX_S = 36864
CSCALE = math.log2(math.e) / math.sqrt(18.0)
TSAFE = 40.0
SPIN = 200000


def f2u(x):
    return struct.unpack("<I", struct.pack("<f", x))[0]


def dslot(d):
    if d < 6:
        return d * 2 * SLOT
    if d < 17:
        return L_W + (d - 6) * 2 * SLOT
    return 4 * 2 * SLOT


def slot_addr(ks):
    return dslot(ks >> 1) + (ks & 1) * SLOT


G0 = [0, 1, 2, 3, 12, 13, 14, 15, 20]
G1 = [4, 5, 6, 7, 8, 9, 10, 11, 16]
POS_ONES, POS_ZERO = 22, 23


def vpos(h, row):
    if row in G0:
        return [list(range(0, 9)), [18, 19, 20, 21, 24, 25, 26, 27, 28]][h][G0.index(row)]
    if row in G1:
        return [list(range(9, 18)), list(range(29, 38))][h][G1.index(row)]
    if row in (17, 21):
        return POS_ONES
    return POS_ZERO


def table():
    t = np.zeros((64, 4), dtype=np.uint32)
    for l in range(64):
        t[l, 0] = L_KV + 2304 + vpos(l >> 5, l & 31) * 16
        n, g = l & 15, l >> 4
        t[l, 1] = vpos(g >> 1, n) * 16 + (g & 1) * 8
        p = {0: vpos(g >> 1, 16), 1: vpos(g >> 1, 20), 2: POS_ONES, 3: POS_ZERO}.get(n, POS_ZERO)
        t[l, 2] = p * 16 + (g & 1) * 8
    return t


def vr(a, n=1):
    return f"v[{a}:{a+n-1}]" if n > 1 else f"v{a}"


def sr(a, n=1):
    return f"s[{a}:{a+n-1}]" if n > 1 else f"s{a}"


S_WAVE = 3
R_X, R_WQ, R_W, R_WO, R_WS, R_OUT, R_DBG = 44, 48, 52, 56, 60, 64, 68
S_B, S_HG, S_GI, S_PG, S_I = 4, 5, 6, 7, 8
S_T0, S_T1, S_T2, S_T3, S_T4, S_T5 = 9, 10, 11, 12, 13, 14
S_CNT = 15
S_M0A, S_M0R, S_ROW = 72, 73, 74
S_BAR = 75
S_PBI, S_HQ = 76, 77
S_EX = 42
S_KVS = 80
S_OEX = 81
S_STG = 82
S_OEXB = 78
S_SAME, S_OA, S_OB = 26, 27, 28
V_OA, V_OB, V_JN = 144, 145, 146
S_XI, S_XB, S_XS, S_XM = 83, 100, 101, 79
S_DI, S_DS, S_LI, S_LS = 72, 73, 74, 75
S_ST = 84

V_IDX, V_AK, V_AR, V_AV = 2, 3, 4, 5
QM = [8, 12]
QR = 16
KR = [18, 20]
O = [24, 40]
KM = [56, 60]
VV = [[64, 68], [72, 76]]
S = [80, 112]


class A:
    def __init__(self):
        self.L = []

    def __call__(self, *xs):
        for x in xs:
            if isinstance(x, (list, tuple)):
                self(*x)
            else:
                self.L.append(x)

    def label(self, n):
        self.L.append(n + ":")


def K16(d, a, b, c=None):
    return f"v_mfma_f32_32x32x16_bf16 {vr(d,16)}, {vr(a,4)}, {vr(b,4)}, {c if c else vr(d,16)}"


def M16(d, a, b, c=None):
    return f"v_mfma_f32_16x16x32_bf16 {vr(d,4)}, {vr(a,4)}, {vr(b,4)}, {c if c else vr(d,4)}"


def B2(d, a, b, abid):
    return f"v_mfma_f32_32x32x4_2b_bf16 {vr(d,32)}, {vr(a,2)}, {vr(b,2)}, 0 cbsz:1 abid:{abid}"


def K8Z(d, z):
    return f"v_mfma_f32_32x32x8_bf16 {vr(d,16)}, {vr(z,2)}, {vr(z,2)}, 0"


def SM(d, a, b):
    return f"v_smfmac_f32_32x32x32_bf16 {vr(d,16)}, {vr(a,4)}, {vr(b,8)}, v{V_IDX}"


def EX(r, n):
    return [f"v_exp_f32 v{r+i}, v{r+i}" for i in range(n)]


def srd(a, dst, lo, hi, size):
    a(f"s_mov_b32 s{dst}, {lo}", f"s_mov_b32 s{dst+1}, {hi}", f"s_mov_b32 s{dst+2}, {size}", f"s_mov_b32 s{dst+3}, 0x20000")


class Gen:
    def __init__(self, opt):
        self.o = dict(unp=4, barit=1, stamps=False, force_fb=False, prefetch=True, prio=True, dbgspan=0, xcc=1, xp=0, outf=0, of=0, ampa=0, ampb=0, ampk=0, set=0, nb=5, kv1=6, win=3, sb=11)
        self.o.update(opt)
        self.a = A()
        self.nst = 0

    def stamp(self, i, st=0):
        if i not in (0, 7) and st != self.o['set']:
            return
        if self.o['stamps'] or self.o['dbgspan'] or self.o['ampk']:
            cyc = self.o['stamps'] == 2 or self.o['ampk'] < 0
            self.a(f"{'s_memtime' if cyc else 's_memrealtime'} s[{S_ST+2*i}:{S_ST+2*i+1}]")

    def dump_stamps(self):
        if self.o['dbgspan']:
            a = self.a
            n = self.nst = self.nst + 1
            a("s_waitcnt lgkmcnt(0)", f"s_cmp_lg_u32 s{S_I}, 0", f"s_cbranch_scc1 L_nodump{n}", "s_mov_b64 exec, 1", "v_mov_b32 v8, 0", f"s_not_b32 s{S_T0}, s{S_ST}", f"v_mov_b32 v9, s{S_T0}",
              f"buffer_atomic_umax v9, v8, s[{R_DBG}:{R_DBG+3}], 0 offen offset:8 sc1")
            for k, i in enumerate((0, 1, 3, 6, 7, 5) if n == 2 else (1, 2, 4, 5, 6, 7)):
                a(f"v_mov_b32 v{10+k}, s{S_ST+2*i}", f"buffer_atomic_umax v{10+k}, v8, s[{R_DBG}:{R_DBG+3}], 0 offen offset:{(12 if n == 2 else 36)+4*k} sc1")
            a(f"L_nodump{n}:")
            return
        if not self.o['stamps']:
            return
        a = self.a
        a("s_waitcnt lgkmcnt(0)", f"s_lshl_b32 s{S_T0}, s2, 3", f"s_add_u32 s{S_T0}, s{S_T0}, s{S_WAVE}", f"s_lshl_b32 s{S_T0}, s{S_T0}, 6",
          f"s_mul_i32 s{S_T1}, s{S_B}, {WS_BR}", f"s_sub_u32 s{S_T0}, s{S_T0}, s{S_T1}", f"s_add_u32 s{S_T0}, s{S_T0}, {WS_STAMP}",
          f"s_mov_b32 s{R_WS+2}, 0x2000000", "v_mov_b32 v8, 0")
        for i in range(4):
            for k in range(4):
                a(f"v_mov_b32 v{12+k}, s{S_ST+4*i+k}")
            a(f"buffer_store_dwordx4 v[12:15], v8, s[{R_WS}:{R_WS+3}], s{S_T0} offen offset:{16*i}", "s_nop 1")

    def kv_dma(self, p0, n):
        a = self.a
        for k in range(n):
            a(f"s_add_u32 m0, s{S_M0A}, {L_KV + (p0 + 4*k)*1024}", f"s_add_u32 s{S_T0}, s{S_KVS}, 4096",
              f"buffer_load_dwordx4 v1, s[{R_WS}:{R_WS+3}], s{S_KVS} offen sc1 lds",
              f"s_cmp_ge_u32 s{S_T0}, {KVB}", f"s_cselect_b32 s{S_T1}, {KVB}, 0", f"s_sub_u32 s{S_KVS}, s{S_T0}, s{S_T1}")

    def row_max16(self, v):
        a = self.a
        for k in (8, 4, 2, 1):
            a("s_nop 1", f"v_max_f32_dpp v{v}, v{v}, v{v} row_ror:{k} row_mask:0xf bank_mask:0xf")

    def rest_srds(self):
        a = self.a
        a(f"s_mov_b32 s{R_WO+2}, 663552", f"s_mov_b32 s{R_WO+3}, 0x20000",
          f"s_mul_i32 s{S_T0}, s{S_B}, {WS_BR}", f"s_add_u32 s{R_WS}, s40, s{S_T0}", f"s_addc_u32 s{R_WS+1}, s41, 0",
          f"s_mov_b32 s{R_WS+2}, {WS_OEX + 32*OEX_G}", f"s_mov_b32 s{R_WS+3}, 0x20000")
        srd(a, R_OUT, "s36", "s37", 4718592)
        srd(a, R_DBG, "s38", "s39", 256)

    def norm2(self, x, y):
        a = self.a
        for j in range(4):
            for (qm, qr, dst, tmp) in (x, y):
                a(f"v_dot2_f32_bf16 v{dst}, v{qm+j}, v{qm+j}, {'0' if j == 0 else 'v%d' % dst}",
                  f"v_dot2_f32_bf16 v{tmp}, v{qm+4+j}, v{qm+4+j}, {'0' if j == 0 else 'v%d' % tmp}")
        a("s_nop 0", f"v_permlane32_swap_b32 v{x[2]}, v{x[3]}", "s_nop 0", f"v_permlane32_swap_b32 v{y[2]}, v{y[3]}",
          f"v_add_f32 v{x[2]}, v{x[2]}, v{x[3]}", f"v_add_f32 v{y[2]}, v{y[2]}, v{y[3]}",
          f"v_dot2_f32_bf16 v{x[2]}, v{x[1]}, v{x[1]}, v{x[2]}", f"v_dot2_f32_bf16 v{y[2]}, v{y[1]}, v{y[1]}, v{y[2]}", "s_nop 1",
          f"v_sqrt_f32 v{x[2]}, v{x[2]}", f"v_sqrt_f32 v{y[2]}, v{y[2]}")

    def init_main_regs(self):
        a = self.a
        a(f"v_mov_b32 v{KR[0]+1}, 0x3f803f80", f"v_mov_b32 v{KR[1]+1}, 0x3f803f80")
        for r in range(O[0], O[0] + 32):
            a(f"v_mov_b32 v{r}, 0")
        for r in range(S[1] + 24, S[1] + 32):
            a(f"v_mov_b32 v{r}, 0")
        for r in range(VV[1][1], VV[1][1] + 4):
            a(f"v_mov_b32 v{r}, 0")

    def ldKm(self, kb):
        return [f"ds_read_b128 {vr(KM[kb%2],4)}, v{V_AK} offset:{(kb//2)*PB+(kb%2)*1024}"]

    def ldKr(self, p):
        return [f"ds_read_b32 v{KR[p%2]}, v{V_AR} offset:{p*PB}"]

    def ldV(self, kb):
        return [f"ds_read_b128 {vr(VV[kb%2][i],4)}, v{V_AV} offset:{(kb//2)*PB+((kb%2)*2+i)*VG}" for i in range(2)]

    def qk(self, dst, kb):
        return [B2(dst, KR[(kb//2) % 2], QR, kb % 2), K16(dst, KM[kb % 2], QM[0]), K16(dst + 16, KM[kb % 2], QM[1])]

    def main_prologue_loads(self):
        self.a(self.ldKr(0), self.ldKm(0), self.ldKm(1), self.ldKr(1), self.ldV(0))

    def start(self):
        a, o = self.a, self.o
        a("s_cmp_ge_u32 s2, 256", "s_cbranch_scc1 L_end")
        a("s_load_dwordx16 s[16:31], s[0:1], 0", "s_load_dwordx8 s[32:39], s[0:1], 64", "s_load_dwordx2 s[40:41], s[0:1], 96")
        self.stamp(0)
        a("s_getpc_b64 s[42:43]", "L_pc:")
        a("v_lshrrev_b32 v1, 6, v0", "v_and_b32 v0, 63, v0", f"v_readfirstlane_b32 s{S_WAVE}, v1", "v_lshlrev_b32 v1, 4, v0",
          f"s_lshr_b32 s{S_T2}, s2, 3", f"s_and_b32 s{S_B}, s2, 1", f"s_and_b32 s{S_HG}, s{S_T2}, 3", f"s_lshr_b32 s{S_GI}, s2, 5")
        if o['prefetch']:
            a(f"s_cmp_lg_u32 s{S_WAVE}, 7", "s_cbranch_scc1 L_nopf", f"s_cmp_ge_u32 s{S_T2}, (L_codeend-{NAME})/1024", "s_cbranch_scc1 L_nopf",
              f"s_lshl_b32 s{S_T2}, s{S_T2}, 10", f"s_sub_u32 s{S_T0}, s42, L_pc-{NAME}", f"s_subb_u32 s{S_T1}, s43, 0",
              f"s_add_u32 s{S_T0}, s{S_T0}, s{S_T2}", f"s_addc_u32 s{S_T1}, s{S_T1}, 0",
              f"v_mov_b32 v7, s{S_T1}", f"v_add_co_u32 v6, vcc, s{S_T0}, v1", "s_nop 1", "v_addc_co_u32 v7, vcc, 0, v7, vcc", "s_nop 0",
              "global_load_dwordx4 v[24:27], v[6:7], off", "L_nopf:")
        a(f"s_bfe_u32 s{S_PG}, s2, 0x20001", f"s_lshl_b32 s{S_PG}, s{S_PG}, 3", f"s_add_u32 s{S_PG}, s{S_PG}, s{S_GI}",
          f"s_and_b32 s{S_I}, s{S_WAVE}, 3", f"s_and_b32 s{S_PBI}, s{S_WAVE}, 1", f"s_lshr_b32 s{S_HQ}, s{S_I}, 1")
        a("v_lshrrev_b32 v8, 3, v0", "v_lshrrev_b32 v9, 4, v0", f"s_lshl_b32 s{S_T0}, s{S_PBI}, 2", f"v_or_b32 v9, s{S_T0}, v9",
          "v_and_b32 v10, 7, v0", "v_xor_b32 v9, v9, v10", "v_lshlrev_b32 v9, 4, v9", "v_mov_b32 v10, 0x480", "v_mad_u32_u24 v8, v8, v10, v9",
          f"s_lshl_b32 s{S_T0}, s{S_I}, 6", f"v_add_u32 v9, s{S_T0}, v0", "v_mul_u32_u24 v10, 0xab, v9", "v_lshrrev_b32 v10, 9, v10", "v_mul_u32_u24 v10, 12, v10",
          "v_lshlrev_b32 v9, 4, v9", "v_sub_u32 v9, v9, v10")
        a(f"s_and_b32 s{S_T4}, s{S_HG}, 2", f"s_lshl_b32 s{S_T4}, s{S_T4}, 1", f"s_add_u32 s{S_T4}, s{S_T4}, s{S_I}",
          f"s_lshl_b32 s{S_T5}, s{S_PG}, 3", f"s_add_u32 s{S_XB}, s{S_T5}, s{S_T4}", f"s_mul_i32 s{S_XB}, s{S_XB}, {8*1152}",
          f"s_mul_i32 s{S_XM}, s{S_T4}, 9216", f"s_add_u32 s{S_XM}, s{S_XM}, {L_X}", f"s_lshl_b32 s{S_T0}, s{S_I}, 10", f"s_add_u32 s{S_T0}, s{S_T0}, {L_W}",
          f"s_lshr_b32 s{S_T1}, s{S_HG}, 1", f"s_movk_i32 s{S_DI}, 3072", f"s_movk_i32 s{S_DS}, 2304",
          f"s_cmp_lt_u32 s{S_WAVE}, 4", "s_cselect_b64 vcc, -1, 0", f"s_cselect_b32 s{S_XB}, s{S_XB}, 0", f"s_cselect_b32 s{S_XM}, s{S_XM}, s{S_T0}",
          f"s_cselect_b32 s{S_T1}, s{S_HG}, s{S_T1}", f"s_cselect_b32 s{S_DI}, 1024, s{S_DI}", f"s_cselect_b32 s{S_DS}, 128, s{S_DS}",
          "v_cndmask_b32 v9, v9, v8, vcc")
        self.dma9_setup(S_T1)
        a("s_waitcnt lgkmcnt(0)", f"s_cmp_eq_u32 s{S_B}, 0", f"s_cselect_b64 s[{R_X}:{R_X+1}], s[16:17], s[26:27]",
          f"s_cselect_b64 s[20:21], s[20:21], s[30:31]", f"s_cselect_b64 s[22:23], s[22:23], s[32:33]",
          f"s_cselect_b64 s[{R_WQ}:{R_WQ+1}], s[18:19], s[28:29]", f"s_cselect_b64 s[{R_WO}:{R_WO+1}], s[24:25], s[34:35]",
          f"s_bitcmp0_b32 s{S_HG}, 0", f"s_cselect_b64 s[{R_W}:{R_W+1}], s[20:21], s[22:23]", f"s_mov_b32 s{R_X+2}, 2359296", f"s_movk_i32 s{R_W+2}, 20736",
          f"s_cmp_lt_u32 s{S_WAVE}, 4", f"s_cselect_b64 s[{R_W}:{R_W+1}], s[{R_X}:{R_X+1}], s[{R_W}:{R_W+1}]", f"s_cselect_b32 s{R_W+2}, s{R_X+2}, s{R_W+2}",
          f"s_mov_b32 s{R_W+3}, 0x20000", f"s_mov_b32 s{R_X+3}, 0x20000")
        self.stamp(1, 2)
        a(f"s_cmp_lt_u32 s{S_WAVE}, 4", "s_cbranch_scc1 L_r1", "s_setprio 1", f"s_cmp_eq_u32 s{S_WAVE}, 7", "s_cbranch_scc1 L_late", "L_r1:")
        self.dma9(R_W, 9)
        a(f"s_cmp_ge_u32 s{S_WAVE}, 4", "s_cbranch_scc1 L_late")

    def dma9_setup(self, sel):
        self.a(f"s_bitcmp1_b32 s{sel}, 0", f"s_cselect_b32 s{S_XI}, 5, 0",
               f"s_add_u32 s{S_XS}, s{S_XI}, s{S_GI}", f"s_cmp_ge_u32 s{S_XS}, 9", f"s_cselect_b32 s{S_T0}, 9, 0", f"s_sub_u32 s{S_XS}, s{S_XS}, s{S_T0}",
               f"s_mul_i32 s{S_XS}, s{S_XS}, s{S_DS}", f"s_mul_i32 s{S_XI}, s{S_XI}, s{S_DI}", f"s_mul_i32 s{S_LI}, s{S_DI}, 9", f"s_mul_i32 s{S_LS}, s{S_DS}, 9")

    def dma9(self, srd_, v):
        for i in range(9):
            self.a(f"s_add_u32 m0, s{S_XM}, s{S_XI}", f"s_add_u32 s{S_T3}, s{S_XB}, s{S_XS}",
                   f"buffer_load_dwordx4 v{v}, s[{srd_}:{srd_+3}], s{S_T3} offen lds")
            if i < 8:
                self.a(f"s_add_u32 s{S_XS}, s{S_XS}, s{S_DS}", f"s_cmp_eq_u32 s{S_XS}, s{S_LS}", f"s_cselect_b32 s{S_XS}, 0, s{S_XS}",
                       f"s_add_u32 s{S_XI}, s{S_XI}, s{S_DI}", f"s_cmp_eq_u32 s{S_XI}, s{S_LI}", f"s_cselect_b32 s{S_XI}, 0, s{S_XI}")

    def table_load(self):
        self.a(f"s_add_u32 s{S_T0}, s42, L_table-L_pc", f"s_addc_u32 s{S_T1}, s43, 0",
               f"v_mov_b32 v7, s{S_T1}", f"v_add_co_u32 v6, vcc, s{S_T0}, v1", "s_nop 1", "v_addc_co_u32 v7, vcc, 0, v7, vcc", "s_nop 0",
               "global_load_dwordx4 v[20:23], v[6:7], off")

    def wq_setup(self, d, part=3):
        a = self.a
        if part & 1:
            a(f"s_mov_b32 s{R_WQ+2}, 663552", f"s_mov_b32 s{R_WQ+3}, 0x20000", f"s_lshl_b32 s{S_T0}, s{S_I}, 6", f"s_mul_i32 s{S_T1}, s{S_HG}, 288", "v_mov_b32 v16, 0x480")
        for t in range(3 if part & 1 else 0):
            a(f"v_add_u32 v13, s{S_T0}, v0", "v_mul_u32_u24 v14, 0xe39, v13", "v_lshrrev_b32 v14, 16, v14",
              "v_mul_u32_u24 v15, 18, v14", "v_sub_u32 v13, v13, v15", "v_lshlrev_b32 v13, 4, v13",
              "v_bfe_u32 v15, v14, 1, 2", "v_and_b32 v17, 1, v14", "v_lshl_add_u32 v15, v17, 2, v15", "v_and_b32 v14, 24, v14", "v_add_u32 v14, v14, v15",
              "v_mad_u32_u24 v13, v14, v16, v13", f"v_add_u32 v{10+t}, s{S_T1}, v13")
            if t < 2:
                a(f"s_add_u32 s{S_T0}, s{S_T0}, 192")
        if not part & 2:
            return
        a(f"s_lshl_b32 s{S_M0A}, s{S_I}, 10", f"s_mul_i32 s{S_ROW}, s{S_GI}, {64*1152}")
        if d:
            a(f"s_add_u32 s{S_ROW}, s{S_ROW}, {32*d*1152}", f"s_cmp_ge_u32 s{S_ROW}, {576*1152}",
              f"s_cselect_b32 s{S_T0}, {576*1152}, 0", f"s_sub_u32 s{S_ROW}, s{S_ROW}, s{S_T0}")

    def wq_list(self, d):
        n = self.nlab = getattr(self, 'nlab', 0) + 1
        s0 = dslot(d)
        ld = lambda r: f"buffer_load_dwordx4 v{r}, s[{R_WQ}:{R_WQ+3}], s{S_ROW} offen lds"
        return [f"s_cbranch_vccz L_wq{n}",
                f"s_add_u32 m0, s{S_M0A}, {s0}", f"s_add_u32 s{S_T0}, s{S_ROW}, {32*1152}", ld(10),
                f"s_add_u32 m0, s{S_M0A}, {s0+3072}", "s_nop 0", ld(11),
                f"s_add_u32 m0, s{S_M0A}, {s0+6144}", f"s_cmp_ge_u32 s{S_T0}, {576*1152}", ld(12),
                f"s_cselect_b32 s{S_T1}, {576*1152}, 0", f"s_sub_u32 s{S_ROW}, s{S_T0}, s{S_T1}", f"L_wq{n}:"]

    def wq_dma(self, d):
        self.a(self.wq_list(d))

    def loader_flag(self):
        self.a(f"s_cmp_lt_u32 s{S_I}, 3", "s_cselect_b64 vcc, -1, 0")

    GROUPS = [(3, 3), (5, 7), (8, 11), (11, 17), (14, 23), (16, 29), (17, 33)]

    def early_front(self):
        a, o = self.a, self.o
        self.stamp(2, 2)
        self.table_load()
        self.wq_setup(0)
        self.loader_flag()
        self.wq_dma(0)
        self.rest_srds()
        a("v_and_b32 v16, 31, v0", "v_lshrrev_b32 v13, 5, v0", "v_bfe_u32 v14, v0, 1, 3", "v_xor_b32 v13, v13, v14", "v_lshlrev_b32 v13, 4, v13",
          "v_and_b32 v14, 7, v0", "v_lshl_add_u32 v13, v14, 7, v13", "v_lshrrev_b32 v16, 3, v16", "v_mul_u32_u24 v16, 0x2400, v16",
          f"s_mul_i32 s{S_T0}, s{S_PBI}, {4*9216}", f"s_add_u32 s{S_T0}, s{S_T0}, {L_X}", f"v_add3_u32 v104, v16, v13, s{S_T0}",
          "v_xor_b32 v105, 32, v104", "v_xor_b32 v106, 64, v104", "v_xor_b32 v107, 0x60, v104")
        a("v_bfe_u32 v18, v0, 2, 2", "v_lshrrev_b32 v15, 5, v0", "v_lshlrev_b32 v15, 2, v15", "v_add_u32 v15, v15, v18", "v_mul_u32_u24 v15, 0x240, v15",
          f"s_mul_i32 s{S_T0}, s{S_HQ}, 144", "v_and_b32 v13, 1, v0", "v_lshl_add_u32 v15, v13, 4, v15", f"v_add_u32 v15, s{S_T0}, v15",
          "v_bfe_u32 v13, v0, 1, 1", "v_bfe_u32 v14, v0, 4, 1", "v_lshl_add_u32 v6, v13, 3, v15", "v_lshl_add_u32 v6, v14, 5, v6",
          "v_mul_u32_u24 v13, 72, v13", "v_add3_u32 v7, v13, v15, 48")
        a(f"s_mul_i32 s{S_T0}, s{S_WAVE}, 2560", f"v_add_u32 v96, s{S_T0}, v1", "v_lshlrev_b32 v97, 3, v0", f"v_add_u32 v97, s{S_T0}, v97",
          f"v_mov_b32 v{V_IDX}, 0xdddddddd", f"v_add_u32 v{V_AK}, {L_KV}, v1", f"v_lshlrev_b32 v{V_AR}, 2, v0", f"v_add_u32 v{V_AR}, {L_KV+2048}, v{V_AR}",
          "v_mov_b32 v102, 0", "v_mov_b32 v103, 0", f"v_mov_b32 v98, {L_KMAX}")
        a("v_mov_b32 v100, 1", "v_mov_b32 v101, 0")
        a(f"s_cmp_eq_u32 s{S_WAVE}, 3", "s_cbranch_scc0 L_e3", "s_waitcnt vmcnt(1)", "L_e3:", "s_waitcnt vmcnt(4)")
        self.stamp(3, 2)
        a("s_barrier")
        self.wq_dma(1)
        self.wq_dma(2)
        self.stamp(1)
        self.stamp(4, 2)
        a("s_barrier")
        self.stamp(5, 2)
        XF = 112
        T0, T1, TR = 24, 40, 56
        FB = [72, 84]
        state = dict(base=0)

        def rd(ks):
            x = []
            off = slot_addr(ks) - state['base']
            if off < 0 or off + 360 > 65535:
                d = slot_addr(ks) - state['base']
                x += [f"v_add_u32 v{r}, {d}, v{r}" if d > 0 else f"v_subrev_u32 v{r}, {-d}, v{r}" for r in (6, 7)]
                state['base'] = slot_addr(ks)
                off = 0
            f = FB[ks & 1]
            return x, [f"ds_read_b64_tr_b16 {vr(f,2)}, v6 offset:{off}", f"ds_read_b64_tr_b16 {vr(f+2,2)}, v6 offset:{off+288}",
                       f"ds_read_b64_tr_b16 {vr(f+4,2)}, v6 offset:{off+72}", f"ds_read_b64_tr_b16 {vr(f+6,2)}, v6 offset:{off+360}",
                       f"ds_read_b64_tr_b16 {vr(f+8,2)}, v7 offset:{off}", f"ds_read_b64_tr_b16 {vr(f+10,2)}, v7 offset:{off+288}"]

        def mm(ks):
            f = FB[ks & 1]
            c = "0" if ks == 0 else None
            return [K16(T0, f, XF + 4 * ks, c), K16(T1, f + 4, XF + 4 * ks, c), K16(TR, f + 8, XF + 4 * ks, c)]
        for i in range(36):
            a(f"ds_read_b128 {vr(XF+4*i,4)}, v{104+(i&3)} offset:{(i>>2)*1024}")
            if i in (9, 19, 29):
                self.wq_dma(3 + i // 10)
        a(f"s_cmp_eq_u32 s{S_WAVE}, 3", "s_cbranch_scc0 L_e4", "s_waitcnt vmcnt(0)", "L_e4:")
        a("s_waitcnt vmcnt(12)", f"v_mov_b32 v{V_AV}, v20", "v_mov_b32 v21, 0x3f803f80", "s_waitcnt lgkmcnt(0)", "s_barrier")
        self.stamp(2)
        self.stamp(6, 2)
        a(rd(0)[1])
        ev = {k: ["s_barrier"] for _, k in self.GROUPS}
        ev[3] = ["s_waitcnt vmcnt(6)", "s_barrier"]
        ev[7] = ["s_waitcnt vmcnt(0)", "s_barrier", f"s_cmp_lg_u32 s{S_WAVE}, 3", "s_cbranch_scc1 L_nosig", f"s_lshl_b32 s{S_T0}, s{S_B}, 7", "s_mov_b64 exec, 1",
                 f"buffer_atomic_add v100, v101, s[{R_DBG}:{R_DBG+3}], s{S_T0} offen sc1", "s_mov_b64 exec, -1", "L_nosig:"]
        for ks in range(36):
            m = mm(ks)
            if ks in ev:
                if ks in (3, 7):
                    a(ev[ks][0])
                if sorted(ev).index(ks) > 0:
                    self.stamp(sorted(ev).index(ks), 3)
                a(ev[ks])
            if ks + 1 < 36:
                pre, n = rd(ks + 1)
                if o['xp'] & 1:
                    n = ["s_nop 0"] * 6
                if o['xp'] & 2:
                    m = ["s_nop 7"] * 3
                if o['xp'] & 4:
                    n = n[:4] + ["s_nop 0"] * 2
                    m = m[:2] + ["s_nop 0"]
                a(pre, n[0:2], "s_waitcnt lgkmcnt(6)", m[0], n[2:4], "s_waitcnt lgkmcnt(6)", m[1], n[4:6], "s_waitcnt lgkmcnt(6)", m[2])
            else:
                a("s_waitcnt lgkmcnt(4)", m[0], "s_waitcnt lgkmcnt(2)", m[1], "s_waitcnt lgkmcnt(0)", m[2])
        self.stamp(3)
        H = 72
        a(f"v_mov_b32 v{KR[0]+1}, 0x3f803f80", f"s_mov_b32 s{S_BAR}, {32//o['unp'] - o['barit']}", f"s_mov_b32 s{S_STG}, 0", f"s_mov_b32 s{S_SAME}, 0", "s_nop 1")
        a("s_mov_b32 vcc_lo, 0", "s_mov_b32 vcc_hi, -1")
        for (dst, t) in ((QM[0], T0), (H, T1)):
            for j, r in enumerate((0, 2, 4, 6, 10, 12, 14)):
                a(f"v_cvt_pk_bf16_f32 v{dst+j}, v{t+r}, v{t+r+1}")
        for (dst, qr, t, t2, tmp) in ((H, H + 8, T1, TR + 4, 85), (QM[0], QR, T0, TR, 86)):
            a(f"v_cvt_pk_bf16_f32 v{dst+7}, v{t2}, v{t2+1}", f"v_cvt_pk_bf16_f32 v{qr}, v{t+8}, v{t+9}", f"v_cvt_pk_bf16_f32 v{tmp}, v{t2+2}, v{t2+3}")
        a(f"v_cndmask_b32 v{H+8}, v{H+8}, v85, vcc", f"v_cndmask_b32 v{QR}, v{QR}, v86, vcc")
        a(f"ds_write_b128 v96, {vr(H,4)}", f"ds_write_b128 v96, {vr(H+4,4)} offset:1024")
        self.norm2((H, H + 8, H + 9, 85), (QM[0], QR, QR + 1, 86))
        a(f"ds_write_b64 v97, {vr(H+8,2)} offset:2048")
        a(K8Z(O[0], 102), K8Z(O[1], 102))
        a("s_waitcnt lgkmcnt(0)")
        a("s_barrier")
        a("ds_read_b32 v6, v98")
        self.main_prologue_loads()
        a([f"v_mov_b32 v{r}, 0" for r in range(VV[1][1], VV[1][1] + 4)])
        if o['prio']:
            a("s_setprio 2")
        a("s_waitcnt lgkmcnt(0)", "s_branch L_attn")

    def late_front(self):
        a, o = self.a, self.o
        a.label("L_late")
        a("s_setprio 0")
        self.stamp(2, 2)
        self.wq_setup(6, 1)
        a(f"s_xor_b32 s{S_T4}, s{S_T4}, 4", f"s_add_u32 s{S_XB}, s{S_T5}, s{S_T4}", f"s_mul_i32 s{S_XB}, s{S_XB}, {8*1152}",
          f"s_mul_i32 s{S_XM}, s{S_T4}, 9216", f"s_add_u32 s{S_XM}, s{S_XM}, {L_X}", f"s_movk_i32 s{S_DI}, 1024", f"s_movk_i32 s{S_DS}, 128")
        self.rest_srds()
        a("v_and_b32 v13, 15, v0", "v_lshrrev_b32 v16, 4, v0",
          "v_bfe_u32 v17, v0, 1, 3", "v_xor_b32 v17, v16, v17", "v_lshlrev_b32 v17, 4, v17",
          "v_and_b32 v18, 7, v0", "v_lshl_add_u32 v17, v18, 7, v17", "v_bfe_u32 v18, v0, 3, 1", "v_mul_u32_u24 v18, 0x2400, v18",
          f"s_lshr_b32 s{S_T0}, s{S_HG}, 1", f"s_lshl_b32 s{S_T0}, s{S_T0}, 1", f"s_add_u32 s{S_T0}, s{S_T0}, s{S_PBI}",
          f"s_mul_i32 s{S_T1}, s{S_T0}, {2*9216}", f"s_add_u32 s{S_T1}, s{S_T1}, {L_X}", f"v_add3_u32 v14, v17, v18, s{S_T1}", "v_xor_b32 v15, 64, v14",
          "v_bfe_u32 v17, v0, 2, 2", "v_lshl_add_u32 v17, v16, 3, v17",
          "v_mul_u32_u24 v17, 48, v17", "v_and_b32 v18, 3, v0", "v_lshlrev_b32 v18, 3, v18",
          f"s_cmp_eq_u32 s{S_HQ}, 0", "s_cselect_b64 vcc, -1, 0", "v_mov_b32 v19, 32", "v_cndmask_b32 v18, v19, v18, vcc", f"v_add_u32 v17, {L_W}, v17", "v_add_u32 v17, v17, v18")
        a("v_lshrrev_b32 v19, 5, v0", "v_lshlrev_b32 v19, 9, v19", "v_lshl_add_u32 v19, v13, 4, v19",
          "v_bfe_u32 v18, v0, 4, 1", "v_lshl_add_u32 v28, v18, 3, v19", "v_lshlrev_b32 v29, 2, v13",
          f"s_mul_i32 s{S_KVS}, s{S_PG}, {PB}", f"s_mov_b32 s{S_OEX}, s{S_T0}")
        self.dma9_setup(S_HG)
        self.dma9(R_X, 8)
        self.stamp(3, 2)
        self.table_load()
        a("s_setprio 1", "s_waitcnt vmcnt(10)")
        self.stamp(1)
        self.stamp(4, 2)
        a("s_barrier")
        a(f"s_bitcmp1_b32 s{S_HG}, 0", "s_cbranch_scc1 L_vproj")
        D = 32
        NB = o['nb']
        for isv in (0, 1):
            if isv:
                a.label("L_vproj")

            def rd(s):
                xb = 40 + 8 * (s % NB)
                return [f"ds_read_b128 {vr(xb,4)}, v{14+(s&1)} offset:{(s>>1)*1024}",
                        f"ds_read_b64_tr_b16 {vr(xb+4,2)}, v17 offset:{s*1536}", f"ds_read_b64_tr_b16 {vr(xb+6,2)}, v17 offset:{s*1536+192}"]
            for s in range(NB - 1):
                a(rd(s))
            for s in range(18):
                if s == o['sb']:
                    a("s_waitcnt vmcnt(0)", "s_barrier")
                if s + NB - 1 < 18:
                    a(rd(s + NB - 1))
                left = min(18 - 1 - s, NB - 1)
                xb = 40 + 8 * (s % NB)
                c = "0" if s == 0 else None
                a(f"s_waitcnt lgkmcnt({min(15,3*left)})", M16(D, xb, xb + 4, c) if isv else M16(D, xb + 4, xb, c))
            g = S_OEX
            if not isv:
                a(f"s_lshr_b32 s{S_T0}, s{g}, 1", f"s_lshl_b32 s{S_T0}, s{S_T0}, 10", f"s_lshl_b32 s{S_T1}, s{S_PBI}, 8", f"s_add_u32 s{S_T0}, s{S_T0}, s{S_T1}",
                  f"s_add_u32 s{S_T0}, s{S_T0}, s{S_KVS}",
                  f"s_lshl_b32 s{S_T1}, s{g}, 6", f"s_add_u32 s{S_T1}, s{S_T1}, s{S_KVS}", f"s_add_u32 s{S_T1}, s{S_T1}, 2048",
                  f"s_mov_b32 s{S_T2}, {hex(f2u(CSCALE))}")
                for r in range(4):
                    a(f"v_mul_f32 v{D+r}, s{S_T2}, v{D+r}")
                a(f"v_cvt_pk_bf16_f32 v{D}, v{D}, v{D+1}", f"v_cvt_pk_bf16_f32 v{D+1}, v{D+2}, v{D+3}",
                  f"s_lshl_b32 s{S_T3}, s{S_PG}, 2", f"s_add_u32 s{S_T3}, s{S_T3}, s{g}", f"s_lshl_b32 s{S_T3}, s{S_T3}, 2", f"s_add_u32 s{S_T3}, s{S_T3}, {WS_KN}",
                  f"v_dot2_f32_bf16 v36, v{D}, v{D}, 0",
                  f"s_cmp_eq_u32 s{S_HQ}, 0", "s_cbranch_scc0 L_krem",
                  f"buffer_store_dwordx2 {vr(D,2)}, v28, s[{R_WS}:{R_WS+3}], s{S_T0} offen sc1",
                  f"v_dot2_f32_bf16 v36, v{D+1}, v{D+1}, v36", "s_nop 2", "v_mov_b32 v37, v36", "s_nop 1",
                  "v_permlane16_swap_b32 v36, v37", "s_nop 1", "v_add_f32 v36, v36, v37", "s_nop 0", "v_mov_b32 v37, v36", "s_nop 1",
                  "v_permlane32_swap_b32 v36, v37", "s_nop 1", "v_add_f32 v36, v36, v37", "s_branch L_knorm",
                  "L_krem:", "s_mov_b64 exec, 0xffff",
                  f"buffer_store_dword v{D}, v29, s[{R_WS}:{R_WS+3}], s{S_T1} offen sc1", "s_mov_b64 exec, -1", f"s_add_u32 s{S_T3}, s{S_T3}, 512",
                  "L_knorm:", "s_nop 1")
                self.row_max16(36)
                a("v_mov_b32 v37, 0", "s_mov_b64 exec, 1", f"buffer_store_dword v36, v37, s[{R_WS}:{R_WS+3}], s{S_T3} offen sc1", "s_mov_b64 exec, -1",
                  "s_branch L_kvdone")
            else:
                a(f"s_mul_i32 s{S_T0}, s{g}, {VG}", f"s_add_u32 s{S_T0}, s{S_T0}, s{S_KVS}", f"s_add_u32 s{S_T0}, s{S_T0}, 2304",
                  "v_cmp_eq_u32 vcc, 2, v13", f"v_cmp_eq_u32 s[{S_EX}:{S_EX+1}], 3, v13", "v_mov_b32 v30, 0x3f803f80", "s_nop 0",
                  f"s_cmp_eq_u32 s{S_HQ}, 0",
                  f"v_cvt_pk_bf16_f32 v{D}, v{D}, v{D+1}", f"v_cvt_pk_bf16_f32 v{D+1}, v{D+2}, v{D+3}", "s_cbranch_scc0 L_vrem",
                  f"buffer_store_dwordx2 {vr(D,2)}, v21, s[{R_WS}:{R_WS+3}], s{S_T0} offen sc1", "s_branch L_kvdone",
                  "L_vrem:",
                  f"v_cndmask_b32 v{D}, v{D}, v30, vcc", f"v_cndmask_b32 v{D+1}, v{D+1}, v30, vcc",
                  f"v_cndmask_b32 v{D}, v{D}, 0, s[{S_EX}:{S_EX+1}]", f"v_cndmask_b32 v{D+1}, v{D+1}, 0, s[{S_EX}:{S_EX+1}]",
                  "s_mov_b32 exec_lo, 0x000f000f", "s_mov_b32 exec_hi, 0x000f000f",
                  f"buffer_store_dwordx2 {vr(D,2)}, v22, s[{R_WS}:{R_WS+3}], s{S_T0} offen sc1", "s_mov_b64 exec, -1")
        a.label("L_kvdone")
        if o['xcc']:
            a("s_getreg_b32 s29, hwreg(HW_REG_XCC_ID, 0, 4)", f"s_cmp_lg_u32 s{S_WAVE}, 4", "s_cbranch_scc1 L_noxid",
              f"s_lshl_b32 s{S_T0}, s{S_PG}, 2", f"s_add_u32 s{S_T0}, s{S_T0}, s{S_HG}", f"s_lshl_b32 s{S_T0}, s{S_T0}, 2", f"s_add_u32 s{S_T0}, s{S_T0}, {WS_XID}",
              "v_mov_b32 v38, s29", "v_mov_b32 v39, 0", "s_mov_b64 exec, 1", f"buffer_store_dword v38, v39, s[{R_WS}:{R_WS+3}], s{S_T0} offen sc1", "s_mov_b64 exec, -1", "L_noxid:")
        self.stamp(2)
        self.stamp(5, 2)
        a(f"v_mov_b32 v{V_AV}, v20")
        self.wq_setup(6, 2)
        self.loader_flag()
        a("s_barrier")
        nxt = 6
        for gi_, (last, _) in enumerate(self.GROUPS):
            lim = 16 if gi_ < 3 else 17
            tgt = {0: 7, 1: 5 + o['win']}.get(gi_, last + o['win'])
            while nxt <= min(tgt, lim):
                self.wq_dma(nxt)
                nxt += 1
            assert nxt > last
            if gi_ == 1:
                a(f"s_cbranch_vccnz L_l{gi_}", "s_waitcnt vmcnt(0)", f"L_l{gi_}:", f"s_waitcnt vmcnt({3*(nxt-6)})")
            if gi_ > 1:
                a(f"s_waitcnt vmcnt({3*(nxt-1-last)})")
            if gi_ == 2:
                a(f"v_mov_b32 v150, {L_FLAG}", "v_mov_b32 v152, 0", "v_mov_b32 v153, 0", "v_mov_b32 v151, 0", "ds_write_b64 v150, v[152:153]", "s_waitcnt lgkmcnt(0)")
            if gi_ == 4:
                self.init_main_regs()
                a(f"s_and_b32 s{S_T0}, s{S_GI}, 3", f"s_mul_i32 s{S_KVS}, s{S_T0}, {37*1024}", f"s_add_u32 s{S_KVS}, s{S_KVS}, s{S_M0A}",
                  "v_lshlrev_b32 v153, 3, v0", f"s_mov_b32 s{S_T4}, {WS_KN}", f"s_lshl_b32 s{S_T5}, s{S_B}, 7")
            if gi_ == 5:
                assert nxt == 18
                a("s_cbranch_vccnz L_try0", f"buffer_load_dword v152, v151, s[{R_DBG}:{R_DBG+3}], s{S_T5} offen sc0 sc1", "s_waitcnt vmcnt(0)",
                  "v_lshrrev_b32 v152, 7, v152", "ds_write_b32 v150, v152", "s_waitcnt lgkmcnt(0)", "L_try0:")
            if gi_ > 0:
                self.stamp(gi_, 3)
            a("s_barrier")
            if gi_ == 5:
                break
        kn = [f"s_cmp_lg_u32 s{S_WAVE}, 7", None, f"buffer_load_dwordx2 v[154:155], v153, s[{R_WS}:{R_WS+3}], s{S_T4} offen sc1",
              f"buffer_load_dwordx2 v[156:157], v153, s[{R_WS}:{R_WS+3}], s{S_T4} offen offset:512 sc1"]
        a("ds_read_b32 v152, v150", "s_waitcnt lgkmcnt(0)", "v_cmp_eq_u32 vcc, 0, v152", "s_cbranch_vccnz L_notyet")
        self.stamp(4)
        a(kn[0], "s_cbranch_scc1 L_kna", kn[2:], "L_kna:")
        self.kv_dma(0, o['kv1'])
        a(f"s_cmp_eq_u32 s{S_WAVE}, 7", "s_cbranch_scc1 L_knb", f"s_waitcnt vmcnt({o['kv1']})", "L_knb:")
        self.stamp(6, 3)
        a("s_barrier", "s_branch L_first")
        a("L_notyet:", "s_waitcnt vmcnt(0)")
        self.stamp(6, 3)
        a("s_barrier")
        a(f"s_mov_b32 s{S_CNT}, {SPIN}", f"s_cmp_lg_u32 s{S_WAVE}, 7", "s_cbranch_scc1 L_relay")
        a("L_poll1:", f"buffer_load_dword v152, v151, s[{R_DBG}:{R_DBG+3}], s{S_T5} offen sc0 sc1", f"s_sub_u32 s{S_CNT}, s{S_CNT}, 1",
          "s_cbranch_scc1 L_poll1d", "s_waitcnt vmcnt(0)", "v_cmp_gt_u32 vcc, 0x80, v152", "s_cbranch_vccnz L_poll1",
          "L_poll1d:", "v_mov_b32 v152, 1", "ds_write_b32 v150, v152", kn[2:], "s_branch L_flagok")
        a("L_relay:", "ds_read_b32 v152, v150", f"s_sub_u32 s{S_CNT}, s{S_CNT}, 1", "s_cbranch_scc1 L_flagok", "s_waitcnt lgkmcnt(0)",
          "v_cmp_eq_u32 vcc, 0, v152", "s_cbranch_vccnz L_relay", "L_flagok:")
        self.stamp(4)
        self.kv_dma(0, o['kv1'])
        a("L_first:")
        self.stamp(3)
        self.stamp(6, 2)
        a(f"s_cmp_lg_u32 s{S_WAVE}, 7", "s_cbranch_scc1 L_nokn", f"s_waitcnt vmcnt({o['kv1']})", "v_max_f32 v154, v154, v155", "v_max_f32 v156, v156, v157")
        self.row_max16(154)
        self.row_max16(156)
        a("s_nop 0")
        for k in range(4):
            a(f"v_readlane_b32 s{16+k}, v154, {16*k}", f"v_readlane_b32 s{20+k}, v156, {16*k}")
        a("s_nop 1", "s_max_u32 s16, s16, s17", "s_max_u32 s18, s18, s19", "s_max_u32 s20, s20, s21", "s_max_u32 s22, s22, s23",
          "s_max_u32 s16, s16, s18", "s_max_u32 s20, s20, s22", "v_mov_b32 v154, s16", "v_add_f32 v154, s20, v154", "v_sqrt_f32 v154, v154",
          f"v_mov_b32 v155, {L_KMAX}", "ds_write_b32 v155, v154", "L_nokn:")
        a(f"v_mov_b32 v{V_IDX}, 0xdddddddd", f"v_add_u32 v{V_AK}, {L_KV}, v1", f"v_lshlrev_b32 v{V_AR}, 2, v0", f"v_add_u32 v{V_AR}, {L_KV+2048}, v{V_AR}",
          f"s_mul_i32 s{S_T0}, s{S_I}, 2560", f"v_add_u32 v8, s{S_T0}, v1", "v_lshlrev_b32 v9, 3, v0", f"v_add_u32 v9, s{S_T0}, v9", f"v_mov_b32 v6, {L_KMAX}")
        a("s_waitcnt vmcnt(0) lgkmcnt(0)", "s_barrier")
        a("ds_read_b32 v6, v6", f"ds_read_b64 {vr(QR,2)}, v9 offset:2048", f"ds_read_b128 {vr(QM[1],4)}, v8 offset:1024", f"ds_read_b128 {vr(QM[0],4)}, v8")
        self.kv_dma(4 * o['kv1'], 37 - o['kv1'])
        if o['xcc']:
            a(f"s_lshl_b32 s{S_T0}, s{S_PG}, 4", f"s_add_u32 s{S_T0}, s{S_T0}, {WS_XID}", "v_and_b32 v148, 3, v0", "v_lshlrev_b32 v148, 2, v148",
              f"buffer_load_dword v148, v148, s[{R_WS}:{R_WS+3}], s{S_T0} offen sc1")
        a("s_waitcnt vmcnt(0) lgkmcnt(0)")
        self.stamp(5)
        a("s_barrier")
        self.wo_job_loads(0)
        a(f"s_cmp_ge_u32 s{S_OEX}, {648-512}", "s_cbranch_scc1 L_nowo2", f"s_add_u32 s{S_OEX}, s{S_OEX}, 512")
        self.wo_job_loads(1)
        a("L_nowo2:")
        self.poison()
        a("s_waitcnt vmcnt(5)", f"s_cmp_ge_u32 s{S_OEX}, 512", "s_cbranch_scc0 L_wo3")
        self.wo_job_finish(1)
        a(f"s_sub_u32 s{S_OEX}, s{S_OEX}, 512", "L_wo3:")
        self.wo_job_finish(0)
        self.main_prologue_loads()
        self.join_signal(200, "l")
        a("s_mov_b64 exec, -1", f"s_mov_b32 s{S_BAR}, -1", f"s_mov_b32 s{S_STG}, 1", f"s_mov_b32 s{S_SAME}, 0")
        if o['xcc']:
            a("v_cmp_ne_u32 vcc, s29, v148", "s_cbranch_vccnz L_nosame", f"s_mov_b32 s{S_SAME}, 1", "L_nosame:")

    def join_signal(self, v, tag):
        self.a(f"v_mov_b32 v{v}, {L_FLAG+4}", f"v_mov_b32 v{v+1}, 1", f"v_mov_b32 v{v+3}, 0", f"s_lshl_b32 s{S_T0}, s{S_B}, 7", "s_mov_b64 exec, 1",
               "s_waitcnt vmcnt(0)", f"ds_add_rtn_u32 v{v+2}, v{v}, v{v+1}", "s_waitcnt lgkmcnt(0)", f"v_cmp_eq_u32 vcc, 3, v{v+2}", f"s_cbranch_vccz L_js{tag}",
               f"buffer_atomic_add v{v+1}, v{v+3}, s[{R_DBG}:{R_DBG+3}], s{S_T0} offen offset:4 sc1", f"L_js{tag}:")

    def wo_job_loads(self, rep):
        a = self.a
        if rep == 0:
            a(f"s_lshl_b32 s{S_OEX}, s{S_PG}, 2", f"s_add_u32 s{S_OEX}, s{S_OEX}, s{S_HG}", f"s_lshl_b32 s{S_OEX}, s{S_OEX}, 2", f"s_add_u32 s{S_OEX}, s{S_OEX}, s{S_I}")
        f = S_OEX
        AD, DT = 208, 216 + 8 * rep
        a(f"s_mul_i32 s16, s{f}, 7282", "s_lshr_b32 s16, s16, 16", "s_mul_i32 s17, s16, 9", f"s_sub_u32 s17, s{f}, s17",
          "s_mul_i32 s18, s16, 7282", "s_lshr_b32 s18, s18, 16", "s_mul_i32 s19, s18, 9", "s_sub_u32 s19, s16, s19",
          "s_and_b32 s20, s18, 1", "s_lshr_b32 s21, s18, 1")
        a("s_mul_i32 s22, s21, 288", "s_lshr_b32 s23, s17, 1", "s_lshl_b32 s23, s23, 6", "s_add_u32 s22, s22, s23", "s_and_b32 s23, s17, 1", "s_lshl_b32 s23, s23, 3",
          "s_add_u32 s22, s22, s23", "s_cmp_eq_u32 s17, 8", "s_cselect_b32 s23, 3, 4",
          "v_bfe_u32 v200, v0, 2, 2", "v_lshlrev_b32 v200, s23, v200", "v_and_b32 v201, 3, v0", "v_lshl_add_u32 v200, v201, 1, v200", "v_add_u32 v200, s22, v200",
          f"s_mul_i32 s22, s20, {36*1152}", "s_cmp_eq_u32 s19, 8", f"s_cbranch_scc1 L_wok1_{rep}")
        cy = [(j & 3) + 8 * (j >> 2) for j in range(8)]
        a(f"s_mul_i32 s23, s19, {72*1152}", "s_add_u32 s22, s22, s23", "v_lshrrev_b32 v201, 5, v0", "v_bfe_u32 v202, v0, 4, 1",
          f"v_mul_u32_u24 v203, {4*1152}, v201", "v_add_u32 v203, v200, v203",
          f"v_mul_u32_u24 v204, {3*1152}, v201", f"v_sub_u32 v204, {16*1152}, v204", "v_mul_u32_u24 v204, v202, v204", f"v_add_u32 v{AD}, v203, v204")
        for j in range(1, 8):
            dj = 18 + cy[j-1] - cy[j]
            a(f"v_mul_u32_u24 v204, {dj*1152}, v202", f"v_add_u32 v204, {cy[j]*1152}, v204", f"v_add_u32 v{AD+j}, v203, v204")
        a(f"s_branch L_wold_{rep}", f"L_wok1_{rep}:", "v_lshrrev_b32 v201, 4, v0", f"v_mul_u32_u24 v201, {144*1152}, v201", "v_add_u32 v203, v200, v201")
        for j in range(8):
            hq, hh, e = j >> 2, (j >> 1) & 1, j & 1
            row = 72 * hq + 18 + ((16 + hh) if e else (11 + 4 * hh))
            a(f"v_add_u32 v{AD+j}, {row*1152}, v203")
        a(f"L_wold_{rep}:")
        for j in range(8):
            a(f"buffer_load_ushort v{DT+j}, v{AD+j}, s[{R_WO}:{R_WO+3}], s22 offen")

    def wo_job_finish(self, rep):
        a = self.a
        DT = 216 + 8 * rep
        a(f"s_lshl_b32 s22, s{S_OEX}, 10", f"s_add_u32 s22, s22, {WS_WOT}")
        for j in range(4):
            a(f"v_lshl_or_b32 v{232+4*rep+j}, v{DT+1+2*j}, 16, v{DT+2*j}")
        a(f"buffer_store_dwordx4 {vr(232+4*rep,4)}, v1, s[{R_WS}:{R_WS+3}], s22 offen sc1")

    def poison(self):
        a = self.a
        a([f"v_mov_b32 v{176+j}, -1" for j in range(4)])
        a(f"s_mul_i32 s24, s{S_PG}, {OEX_G}", f"s_mul_i32 s25, s{S_HQ}, {OEX_S}", "s_add_u32 s24, s24, s25", f"s_add_u32 s24, s24, {WS_OEX}",
          f"s_lshl_b32 s25, s{S_HG}, 13", f"s_lshl_b32 s26, s{S_PBI}, 12", "s_add_u32 s25, s25, s26", "s_add_u32 s25, s25, s24",
          f"s_lshl_b32 s26, s{S_HG}, 6", "s_add_u32 s26, s26, s24", "s_add_u32 s26, s26, 32768",
          "v_lshrrev_b32 v180, 2, v0", "v_lshlrev_b32 v180, 8, v180", "v_and_b32 v181, 3, v0", "v_lshl_add_u32 v180, v181, 4, v180")
        for k in range(4):
            a(f"buffer_store_dwordx4 v[176:179], v1, s[{R_WS}:{R_WS+3}], s25 offen offset:{k*1024} sc0 sc1")
        a(f"buffer_store_dwordx4 v[176:179], v180, s[{R_WS}:{R_WS+3}], s26 offen sc0 sc1")

    def coop_load(self, n, tag):
        a = self.a
        B = 8
        a(f"s_lshl_b32 s{S_T0}, s{S_WAVE}, 10", f"v_add_u32 v6, s{S_T0}, v1", f"s_add_u32 s{S_T0}, s{S_T0}, s{S_OEXB}", f"s_add_u32 s{S_T0}, s{S_T0}, {OEX_S}")
        for k in range(1, n):
            a(f"s_add_u32 s{16+k}, s{S_T0}, {8192*k}")
        a(f"s_mov_b32 s{S_CNT}, {SPIN}")
        a("s_barrier")
        self.stamp(1, 4)
        if tag == 'l':
            self.stamp(1, 1)
        a.label(f"L_cl{tag}")
        for k in range(n):
            a(f"buffer_load_dwordx4 {vr(B+4*k,4)}, v1, s[{R_WS}:{R_WS+3}], s{16+k if k else S_T0} offen sc0 sc1")
        a(f"s_sub_u32 s{S_CNT}, s{S_CNT}, 1", f"s_cbranch_scc1 L_cld{tag}")
        for k in range(n):
            r = B + 4 * k
            a(f"s_waitcnt vmcnt({n-1-k})")
            if k == 0:
                self.stamp(3, 4)
            if k == 0:
                a(f"v_max3_u32 v7, v{r}, v{r+1}, v{r+2}", f"v_max_u32 v7, v7, v{r+3}")
            else:
                a(f"v_max3_u32 v7, v7, v{r}, v{r+1}", f"v_max3_u32 v7, v7, v{r+2}, v{r+3}")
        a("v_cmp_eq_u32 vcc, -1, v7", f"s_cbranch_vccnz L_cl{tag}", f"L_cld{tag}:", "s_waitcnt vmcnt(0)")
        self.stamp(2, 4)
        if self.o['stamps'] and self.o['set'] == 4:
            a(f"s_mov_b32 s{S_ST+12}, s{S_CNT}")
        if tag == 'l':
            self.stamp(2, 1)
        for k in range(n):
            a(f"ds_write_b128 v6, {vr(B+4*k,4)} offset:{L_KV + 8192*k}")
        a("s_waitcnt lgkmcnt(0)", "s_barrier")
        self.stamp(4, 4)
        if tag == 'l':
            self.stamp(3, 1)

    def attention(self):
        a, o = self.a, self.o
        UNP = o['unp']
        a.label("L_attn")
        a(f"v_mul_f32 v7, v6, v{QR+1}", f"v_mov_b32 v6, {hex(f2u(-1.0 if o['force_fb'] else TSAFE))}",
          "v_cmp_nle_f32 vcc, v7, v6", "v_sub_f32 v7, 0, v7", f"v_cvt_pk_bf16_f32 v{QR+1}, v7, 0", "s_cbranch_vccnz L_fallback", "L_fbdone:")
        q = self.qk(S[0], 0)
        f1 = [f"s_mul_i32 s{S_OEXB}, s{S_PG}, {OEX_G}", f"s_add_u32 s{S_OEXB}, s{S_OEXB}, {WS_OEX}", f"s_mul_i32 s{S_T0}, s{S_STG}, {OEX_S}", f"s_add_u32 s{S_T0}, s{S_T0}, s{S_OEXB}",
              f"s_lshl_b32 s{S_T1}, s{S_PBI}, 11", f"s_add_u32 s{S_T0}, s{S_T0}, s{S_T1}",
              f"s_lshl_b32 s{S_T1}, s{S_HG}, 13", f"s_lshl_b32 s{S_T2}, s{S_HQ}, 12", f"s_add_u32 s{S_T1}, s{S_T1}, s{S_T2}", f"s_add_u32 s{S_OA}, s{S_T1}, s{S_T0}",
              f"s_lshl_b32 s{S_T2}, s{S_HG}, 6", f"s_lshl_b32 s{S_T3}, s{S_HQ}, 9", f"s_add_u32 s{S_T2}, s{S_T2}, s{S_T3}", f"s_add_u32 s{S_T2}, s{S_T2}, s{S_T0}",
              f"s_add_u32 s{S_OB}, s{S_T2}, 32768", f"v_mov_b32 v{V_JN}, {L_FLAG+4}", f"s_mov_b32 s{S_CNT}, {32//UNP}", "s_nop 0"]
        f2 = ["v_bfe_u32 v6, v0, 4, 1", "v_lshlrev_b32 v6, 10, v6", "v_lshrrev_b32 v7, 5, v0", "v_and_b32 v22, 15, v0",
              f"v_lshl_add_u32 v{V_OA}, v7, 9, v6", f"v_lshl_add_u32 v{V_OA}, v22, 4, v{V_OA}", f"v_lshl_add_u32 v{V_OB}, v7, 8, v6", f"v_lshl_add_u32 v{V_OB}, v22, 2, v{V_OB}", "s_nop 2"]
        a("s_nop 0", q[0], f1, q[1], q[2], f2)
        self.stamp(6)
        body = []
        for kb in range(2 * UNP):
            cur, nxt = S[kb % 2], S[(kb + 1) % 2]
            q = self.qk(nxt, kb + 1)
            e = EX(cur, 32)
            sm3p = SM(O[1], VV[(kb - 1) % 2][1], nxt + 24)
            sm = [SM(O[0], VV[kb % 2][0], cur), SM(O[0], VV[kb % 2][1], cur + 8), SM(O[1], VV[kb % 2][0], cur + 16)]
            cl = self.ldKm(kb + 2) + (self.ldKr((kb + 3) // 2) if kb % 2 == 1 else []) + self.ldV(kb + 1)
            body += e[0:2] + [sm3p] + e[2:5] + [q[0]] + e[5:13] + ["s_waitcnt lgkmcnt(0)", sm[0]] + e[13:18] + [sm[1]] + e[18:21] + [q[1]] + e[21:24] + [q[2]] + cl + e[24:27] + [sm[2]] + e[27:32]
        body += [f"v_add_u32 v{V_AK}, {UNP*PB}, v{V_AK}", f"v_add_u32 v{V_AR}, {UNP*PB}, v{V_AR}", f"v_add_u32 v{V_AV}, {UNP*PB}, v{V_AV}"]
        self.loop_body = body
        a(".p2align 6", "L_main:", body, f"s_sub_u32 s{S_CNT}, s{S_CNT}, 1", f"s_cmp_lg_u32 s{S_CNT}, s{S_BAR}", "s_cbranch_scc1 L_nob7", "s_barrier", "L_nob7:",
          f"s_cmp_lg_u32 s{S_CNT}, 0", "s_cbranch_scc1 L_main")
        a(f"ds_read_b32 v23, v{V_JN}", SM(O[1], VV[1][1], S[1] + 24))
        self.stamp(7)
        vals = [O[0] + j for j in range(9)] + [O[1] + j for j in range(9)]
        a(f"v_rcp_f32 v10, v{O[0]+9}", f"s_mov_b32 s{S_CNT}, {SPIN}")
        for r in vals[:9]:
            a(f"v_mul_f32 v{r}, v{r}, v10")
        for j in range(4):
            a(f"v_cvt_pk_bf16_f32 v{12+j}, v{vals[2*j]}, v{vals[2*j+1]}")
        a(f"v_rcp_f32 v11, v{O[1]+9}")
        a("L_pchk:", "s_waitcnt lgkmcnt(0)", "v_cmp_gt_u32 vcc, 4, v23", "s_cbranch_vccz L_pok",
          f"ds_read_b32 v23, v{V_JN}", f"s_sub_u32 s{S_CNT}, s{S_CNT}, 1", "s_cbranch_scc0 L_pchk", "L_pok:")
        a(f"s_cmp_eq_u32 s{S_SAME}, 1", "s_cbranch_scc1 L_pub1")
        for fl in (" sc0 sc1", ""):
            a(f"buffer_store_dwordx4 v[12:15], v{V_OA}, s[{R_WS}:{R_WS+3}], s{S_OA} offen{fl}")
            for r in vals[9:]:
                a(f"v_mul_f32 v{r}, v{r}, v11")
            for j in range(4, 9):
                a(f"v_cvt_pk_bf16_f32 v{12+j}, v{vals[2*j]}, v{vals[2*j+1]}")
                if j == 7:
                    a(f"buffer_store_dwordx4 v[16:19], v{V_OA}, s[{R_WS}:{R_WS+3}], s{S_OA} offen offset:256{fl}")
            a(f"buffer_store_dword v20, v{V_OB}, s[{R_WS}:{R_WS+3}], s{S_OB} offen{fl}")
            if fl:
                a(f"s_cmp_eq_u32 s{S_STG}, 0", "s_cbranch_scc1 L_oproj", "s_branch L_pub2", "L_pub1:")
        a("L_pub2:")
        self.coop_load(4, "l")
        self.dump_stamps()
        a("s_endpgm")

    def fallback(self):
        a, o = self.a, self.o
        a.label("L_fallback")
        a(f"s_cmp_eq_u32 s{S_STG}, 1", "s_cbranch_scc1 L_fb1", "s_barrier", f"s_mov_b32 s{S_BAR}, -1", "L_fb1:")
        a(f"v_mov_b32 v{QR+1}, 0", f"v_mov_b32 v144, v{V_AK}", f"v_mov_b32 v145, v{V_AR}", "v_mov_b32 v146, 0xff800000", "v_mov_b32 v147, 0xff800000",
          "v_mov_b32 v151, 0x3f803f80", f"s_mov_b32 s{S_CNT}, 32", "L_fbl:",
          "ds_read_b32 v150, v145", "ds_read_b128 v[152:155], v144", "ds_read_b128 v[156:159], v144 offset:1024",
          f"v_add_u32 v144, {PB}, v144", f"v_add_u32 v145, {PB}, v145", "s_waitcnt lgkmcnt(0)")
        for h in range(2):
            a(B2(160, 150, QR, h), "s_nop 15", "s_nop 1", K16(160, 152 + 4 * h, QM[0]), K16(176, 152 + 4 * h, QM[1]), "s_nop 11")
            for j in range(8):
                a(f"v_max3_f32 v146, v146, v{160+2*j}, v{161+2*j}", f"v_max3_f32 v147, v147, v{176+2*j}, v{177+2*j}")
        a(f"s_sub_u32 s{S_CNT}, s{S_CNT}, 1", f"s_cmp_lg_u32 s{S_CNT}, 0", "s_cbranch_scc1 L_fbl",
          "s_nop 0", "v_permlane32_swap_b32 v146, v147", "s_nop 1", "v_max_f32 v146, v146, v147", "v_sub_f32 v146, 0, v146",
          "v_cvt_pk_bf16_f32 v147, v146, 0", "v_lshlrev_b32 v148, 16, v147", "v_sub_f32 v148, v146, v148", f"v_cvt_pk_bf16_f32 v{QR+1}, v146, v148",
          "s_branch L_fbdone")

    def oproj(self):
        a, o = self.a, self.o
        a.label("L_oproj")
        if o['prio'] == 2:
            a("s_setprio 0")
        WF, ACC, OB = 148, 112, [8, 56]
        for tp in range(4):
            a(f"s_xor_b32 s{S_T0}, s{S_WAVE}, {tp}", f"s_lshl_b32 s{S_T0}, s{S_T0}, 10", f"v_add_u32 v{104+tp}, s{S_T0}, v1",
              f"v_lshlrev_b32 v{108+tp}, 2, v0", f"v_add_u32 v{108+tp}, s{S_T0}, v{108+tp}")
        a(f"s_mov_b32 s{S_CNT}, {SPIN}", f"s_lshl_b32 s{S_T0}, s{S_B}, 7", "v_mov_b32 v11, 0")
        self.stamp(1, 1)
        a("L_poll2:", f"buffer_load_dword v7, v11, s[{R_DBG}:{R_DBG+3}], s{S_T0} offen offset:4 sc0 sc1", f"s_sub_u32 s{S_CNT}, s{S_CNT}, 1",
          "s_cbranch_scc1 L_poll2d", "s_waitcnt vmcnt(0)", "v_cmp_gt_u32 vcc, 0x80, v7", "s_cbranch_vccz L_poll2d", "s_sleep 16", "s_branch L_poll2", "L_poll2d:")

        def wo_loads(stg):
            a(f"s_lshl_b32 s{S_T0}, s{S_HG}, 1", f"s_add_u32 s{S_T0}, s{S_T0}, {stg}", f"s_mul_i32 s{S_T0}, s{S_T0}, {81*1024}", f"s_add_u32 s{S_T0}, s{S_T0}, {WS_WOT}",
              f"s_lshl_b32 s{S_T1}, s{S_WAVE}, 11", f"s_add_u32 s{S_T1}, s{S_T1}, s{S_T0}", f"s_add_u32 s{S_T0}, s{S_T0}, 8192")
            for ks in range(9):
                a(f"buffer_load_dwordx4 {vr(WF+12*ks,4)}, v1, s[{R_WS}:{R_WS+3}], s{S_T1} offen sc1",
                  f"buffer_load_dwordx4 {vr(WF+12*ks+4,4)}, v1, s[{R_WS}:{R_WS+3}], s{S_T1} offen offset:1024 sc1",
                  f"buffer_load_dwordx4 {vr(WF+12*ks+8,4)}, v1, s[{R_WS}:{R_WS+3}], s{S_T0} offen sc1")
                if ks < 8:
                    a(f"s_add_u32 s{S_T1}, s{S_T1}, 9216", f"s_add_u32 s{S_T0}, s{S_T0}, 9216")

        def mms(ks, ob, first):
            w = WF + 12 * ks
            x = []
            for tp in range(4):
                c = "0" if first else None
                x.append([M16(ACC + 4 * tp, w, ob + 4 * tp, c), M16(ACC + 16 + 4 * tp, w + 4, ob + 4 * tp, c)] + ([M16(ACC + 32, w + 8, ob, c)] if tp == 0 else []))
            return x

        def loads(bt):
            buf = OB[bt % 2]
            x = []
            for k in range(3):
                ks = 3 * bt + k
                x.append(f"s_add_u32 s{S_T0}, s{S_OEXB}, {ks*4096}")
                for tp in range(4):
                    r = buf + 16 * k + 4 * tp
                    if ks < 8:
                        x.append(f"buffer_load_dwordx4 {vr(r,4)}, v{104+tp}, s[{R_WS}:{R_WS+3}], s{S_T0} offen sc0 sc1")
                    else:
                        x += [f"buffer_load_dword v{r+j}, v{108+tp}, s[{R_WS}:{R_WS+3}], s{S_T0} offen offset:{j*256} sc0 sc1" for j in range(4)]
            return x
        wo_loads(0)
        a("v_lshlrev_b32 v6, 6, v0", f"s_add_u32 s{S_T0}, s{S_OEXB}, 32768", f"s_mov_b32 s{S_CNT}, {SPIN}",
          "L_pre:", f"buffer_load_dword v7, v6, s[{R_WS}:{R_WS+3}], s{S_T0} offen sc0 sc1", f"s_sub_u32 s{S_CNT}, s{S_CNT}, 1",
          "s_cbranch_scc1 L_pred", "s_waitcnt vmcnt(0)", "v_cmp_eq_u32 vcc, -1, v7", "s_cbranch_vccz L_pred", "s_sleep 8", "s_branch L_pre", "L_pred:")
        self.stamp(2, 1)
        a(loads(0), loads(1))
        for bt in range(3):
            buf = OB[bt % 2]
            a(f"s_waitcnt vmcnt({ {0: 12, 1: 24, 2: 0}[bt] })", f"L_chk{bt}:", f"v_max3_u32 v6, v{buf}, v{buf+1}, v{buf+2}", f"v_max3_u32 v7, v{buf+3}, v{buf+4}, v{buf+5}")
            for j in range(6, 48, 4):
                if j + 3 < 48:
                    a(f"v_max3_u32 v6, v6, v{buf+j}, v{buf+j+1}", f"v_max3_u32 v7, v7, v{buf+j+2}, v{buf+j+3}")
                else:
                    a(f"v_max3_u32 v6, v6, v{buf+j}, v{buf+j+1}")
            a("v_max_u32 v6, v6, v7", "v_cmp_eq_u32 vcc, -1, v6", f"s_cbranch_vccz L_ok{bt}",
              f"s_sub_u32 s{S_CNT}, s{S_CNT}, 1", f"s_cbranch_scc1 L_ok{bt}", "s_waitcnt vmcnt(0)", loads(bt), "s_waitcnt vmcnt(0)", f"s_branch L_chk{bt}", f"L_ok{bt}:")
            for k in range(3):
                a(mms(3 * bt + k, buf + 16 * k, bt == 0 and k == 0))
            if bt == 0:
                a(loads(2))
        self.stamp(3, 1)
        wo_loads(1)
        for tp in range(4):
            a(f"v_add_u32 v{104+tp}, {L_KV}, v{104+tp}", f"v_add_u32 v{108+tp}, {L_KV+32768}, v{108+tp}")
        OUTF = ['', ' sc1', ' sc0 sc1', ' nt'][o['outf']]
        a(f"s_mul_i32 s{S_T0}, s{S_PG}, {64*2304}", f"s_mul_i32 s{S_T1}, s{S_B}, 1152", f"s_add_u32 s{S_T0}, s{S_T0}, s{S_T1}", f"s_mul_i32 s{S_T1}, s{S_HG}, 288",
          f"s_add_u32 s{S_T0}, s{S_T0}, s{S_T1}", f"s_lshl_b32 s{S_T1}, s{S_WAVE}, 6", f"s_add_u32 s{S_T1}, s{S_T1}, s{S_T0}",
          "v_and_b32 v100, 15, v0", "v_mul_u32_u24 v100, 0x900, v100", "v_lshrrev_b32 v102, 4, v0", "v_lshl_add_u32 v101, v102, 3, v100", "v_lshl_add_u32 v100, v102, 4, v100")
        for tp in range(4):
            a(f"s_xor_b32 s{S_T2}, s{S_WAVE}, {tp}", f"s_mul_i32 s{S_T2}, s{S_T2}, {16*2304}", f"s_add_u32 s{30+tp}, s{S_T2}, s{S_T1}")
            if tp == 0:
                a(f"s_add_u32 s34, s{S_T2}, s{S_T0}")
        a("s_waitcnt vmcnt(0)")
        self.stamp(6, 1)
        self.coop_load(5, "e")
        self.stamp(4, 1 if o['set'] == 1 else 0)
        NBUF = 8
        seq = [(tp, ks) for tp in (1, 2, 3, 0) for ks in range(9)]

        def lrd(n):
            tp, ks = seq[n]
            r = 8 + 4 * (n % NBUF)
            if ks < 8:
                return [f"ds_read_b128 {vr(r,4)}, v{104+tp} offset:{ks*4096}"]
            return [f"ds_read2st64_b32 {vr(r,2)}, v{108+tp} offset0:0 offset1:1", f"ds_read2st64_b32 {vr(r+2,2)}, v{108+tp} offset0:2 offset1:3"]

        def outp(tp):
            r = 56 + 4 * tp
            x = [f"v_cvt_pk_bf16_f32 v{r}, v{ACC+4*tp}, v{ACC+4*tp+1}", f"v_cvt_pk_bf16_f32 v{r+1}, v{ACC+4*tp+2}, v{ACC+4*tp+3}",
                 f"v_cvt_pk_bf16_f32 v{r+2}, v{ACC+16+4*tp}, v{ACC+16+4*tp+1}", f"v_cvt_pk_bf16_f32 v{r+3}, v{ACC+16+4*tp+2}, v{ACC+16+4*tp+3}",
                 f"buffer_store_dwordx4 {vr(r,4)}, v100, s[{R_OUT}:{R_OUT+3}], s{30+tp} offen{OUTF}"]
            if tp == 0:
                x += [f"v_cvt_pk_bf16_f32 v72, v{ACC+32}, v{ACC+33}", f"v_cvt_pk_bf16_f32 v73, v{ACC+34}, v{ACC+35}",
                      f"buffer_store_dwordx2 v[72:73], v101, s[{R_OUT}:{R_OUT+3}], s34 offen offset:256{OUTF}"]
            return x
        PF = NBUF - 1
        pend = []
        for n in range(PF):
            a(lrd(n))
            pend.append(len(lrd(n)))
        for n, (tp, ks) in enumerate(seq):
            pend.pop(0)
            ob = 8 + 4 * (n % NBUF)
            w = WF + 12 * ks
            a(f"s_waitcnt lgkmcnt({sum(pend)})", M16(ACC + 4 * tp, w, ob), M16(ACC + 16 + 4 * tp, w + 4, ob))
            if tp == 0:
                a(M16(ACC + 32, w + 8, ob))
            if n + PF < len(seq):
                a(lrd(n + PF))
                pend.append(len(lrd(n + PF)))
            if ks == 2 and n > 9:
                a(outp(seq[n - 9][0]))
        a("s_nop 5", outp(0))
        if o['stamps'] or o['dbgspan'] or o['ampk']:
            a("s_waitcnt vmcnt(0)")
            self.stamp(5, o['set'] if o['set'] in (1, 4) else 0)
        if o['ampk']:
            a("s_memrealtime s[18:19]", "s_waitcnt lgkmcnt(0)", f"s_sub_u32 s{S_T0}, s{S_ST+2*o['ampb']}, s{S_ST+2*o['ampa']}", f"s_mul_i32 s{S_T0}, s{S_T0}, {o['ampk']}" if o['ampk'] > 0 else f"s_lshr_b32 s{S_T0}, s{S_T0}, {-o['ampk']}", f"s_min_u32 s{S_T0}, s{S_T0}, 100000",
              "L_amp:", "s_memrealtime s[16:17]", "s_waitcnt lgkmcnt(0)", "s_sub_u32 s16, s16, s18", f"s_cmp_lt_u32 s16, s{S_T0}", "s_cbranch_scc1 L_amp")
        self.dump_stamps()
        a("L_end:", "s_endpgm")

    def build(self):
        self.start()
        self.early_front()
        self.late_front()
        self.attention()
        self.oproj()
        self.fallback()
        hdr = ("; fused MQA attention x2 (QKV proj + softmax attention + out proj), one launch, 1 workgroup per CU\n"
               f"; @launch grid=(256,1,1) block=(512,1,1) lds={LDS_BYTES}\n"
               '.amdgcn_target "amdgcn-amd-amdhsa--gfx950"\n.text\n'
               f".globl {NAME}\n.p2align 8\n.type {NAME},@function\n{NAME}:\n")
        if self.o['of'] & 1:
            self.a.L = [x.replace(" sc0 sc1", " sc1") if "buffer_store" in x and f"s[{R_WS}:" in x else x for x in self.a.L]
        if self.o['of'] & 2:
            self.a.L = [x.replace(" sc0 sc1", " sc1") if "buffer_load" in x and f"s[{R_WS}:" in x else x for x in self.a.L]
        body = "".join((x + "\n") if x.endswith(":") else ("    " + x + "\n") for x in self.a.L)
        t = table()
        tab = ".p2align 6\n.type L_table,@object\nL_table:\n" + "".join("    .long " + ", ".join(str(int(v)) for v in row) + "\n" for row in t)
        tab += f".fill (1024 - ((. - {NAME}) & 1023)) & 1023, 1, 0\nL_codeend:\n.size L_table, L_codeend-L_table\n"
        kd = f""".section .rodata,"a"
.p2align 6
.amdhsa_kernel {NAME}
  .amdhsa_next_free_vgpr 256
  .amdhsa_next_free_sgpr 102
  .amdhsa_accum_offset 256
  .amdhsa_group_segment_fixed_size 0
  .amdhsa_kernarg_size 104
  .amdhsa_user_sgpr_count 2
  .amdhsa_user_sgpr_kernarg_segment_ptr 1
  .amdhsa_system_sgpr_workgroup_id_x 1
.end_amdhsa_kernel
"""
        return hdr + body + tab + kd


if __name__ == "__main__":
    out = sys.argv[1]
    opt = {}
    for kv in sys.argv[2:]:
        k, v = kv.split("=")
        opt[k] = int(v)
    g = Gen(opt)
    open(out, "w").write(g.build())
```

```python
import sys, math, struct
import numpy as np

NAME = "concat_heads__grouped_kv_mqa__grouped_kv_mqa__prompt_kernel"

VG = 608
PB = 2048 + 256 + 4 * VG
KVB = 32 * PB
L_KV = 12288
L_HAND = 0
L_KMAX = 10240
L_FLAG = 10256
L_W = 62464
L_X = 90112
SLOT = 4608
LDS_BYTES = 163840
WS_KV = 0
WS_KN = KVB
WS_XID = WS_KN + 1024
WS_WOT = 0x28000
WS_OEX = 0xD0000
WS_BR = 0x400000
WS_STAMP = 0x1000000
OEX_G = 73728
OEX_S = 36864
CSCALE = math.log2(math.e) / math.sqrt(18.0)
TSAFE = 40.0
SPIN = 200000


def f2u(x):
    return struct.unpack("<I", struct.pack("<f", x))[0]


def dslot(d):
    if d < 6:
        return d * 2 * SLOT
    if d < 17:
        return L_W + (d - 6) * 2 * SLOT
    return 4 * 2 * SLOT


def slot_addr(ks):
    return dslot(ks >> 1) + (ks & 1) * SLOT


G0 = [0, 1, 2, 3, 12, 13, 14, 15, 20]
G1 = [4, 5, 6, 7, 8, 9, 10, 11, 16]
POS_ONES, POS_ZERO = 22, 23


def vpos(h, row):
    if row in G0:
        return [list(range(0, 9)), [18, 19, 20, 21, 24, 25, 26, 27, 28]][h][G0.index(row)]
    if row in G1:
        return [list(range(9, 18)), list(range(29, 38))][h][G1.index(row)]
    if row in (17, 21):
        return POS_ONES
    return POS_ZERO


def table():
    t = np.zeros((64, 4), dtype=np.uint32)
    for l in range(64):
        t[l, 0] = L_KV + 2304 + vpos(l >> 5, l & 31) * 16
        n, g = l & 15, l >> 4
        t[l, 1] = vpos(g >> 1, n) * 16 + (g & 1) * 8
        p = {0: vpos(g >> 1, 16), 1: vpos(g >> 1, 20), 2: POS_ONES, 3: POS_ZERO}.get(n, POS_ZERO)
        t[l, 2] = p * 16 + (g & 1) * 8
    return t


def vr(a, n=1):
    return f"v[{a}:{a+n-1}]" if n > 1 else f"v{a}"


def sr(a, n=1):
    return f"s[{a}:{a+n-1}]" if n > 1 else f"s{a}"


S_WAVE = 3
R_X, R_WQ, R_W, R_WO, R_WS, R_OUT, R_DBG = 44, 48, 52, 56, 60, 64, 68
S_B, S_HG, S_GI, S_PG, S_I = 4, 5, 6, 7, 8
S_T0, S_T1, S_T2, S_T3, S_T4, S_T5 = 9, 10, 11, 12, 13, 14
S_CNT = 15
S_M0A, S_M0R, S_ROW = 72, 73, 74
S_BAR = 75
S_PBI, S_HQ = 76, 77
S_EX = 42
S_KVS = 80
S_OEX = 81
S_STG = 82
S_OEXB = 78
S_SAME, S_OA, S_OB = 26, 27, 28
V_OA, V_OB, V_JN = 144, 145, 146
S_XI, S_XB, S_XS, S_XM = 83, 100, 101, 79
S_DI, S_DS, S_LI, S_LS = 72, 73, 74, 75
S_ST = 84

V_IDX, V_AK, V_AR, V_AV = 2, 3, 4, 5
QM = [8, 12]
QR = 16
KR = [18, 20]
O = [24, 40]
KM = [56, 60]
VV = [[64, 68], [72, 76]]
S = [80, 112]


class A:
    def __init__(self):
        self.L = []

    def __call__(self, *xs):
        for x in xs:
            if isinstance(x, (list, tuple)):
                self(*x)
            else:
                self.L.append(x)

    def label(self, n):
        self.L.append(n + ":")


def K16(d, a, b, c=None):
    return f"v_mfma_f32_32x32x16_bf16 {vr(d,16)}, {vr(a,4)}, {vr(b,4)}, {c if c else vr(d,16)}"


def M16(d, a, b, c=None):
    return f"v_mfma_f32_16x16x32_bf16 {vr(d,4)}, {vr(a,4)}, {vr(b,4)}, {c if c else vr(d,4)}"


def B2(d, a, b, abid):
    return f"v_mfma_f32_32x32x4_2b_bf16 {vr(d,32)}, {vr(a,2)}, {vr(b,2)}, 0 cbsz:1 abid:{abid}"


def K8Z(d, z):
    return f"v_mfma_f32_32x32x8_bf16 {vr(d,16)}, {vr(z,2)}, {vr(z,2)}, 0"


def SM(d, a, b):
    return f"v_smfmac_f32_32x32x32_bf16 {vr(d,16)}, {vr(a,4)}, {vr(b,8)}, v{V_IDX}"


def EX(r, n):
    return [f"v_exp_f32 v{r+i}, v{r+i}" for i in range(n)]


def srd(a, dst, lo, hi, size):
    a(f"s_mov_b32 s{dst}, {lo}", f"s_mov_b32 s{dst+1}, {hi}", f"s_mov_b32 s{dst+2}, {size}", f"s_mov_b32 s{dst+3}, 0x20000")


class Gen:
    def __init__(self, opt):
        self.o = dict(unp=4, barit=1, stamps=False, force_fb=False, prefetch=True, prio=True, dbgspan=0, avg=0, xcc=1, xp=0, outf=0, of=0, ampa=0, ampb=0, ampk=0, set=0, nb=5, kv1=6, win=3, sb=11)
        self.o.update(opt)
        self.a = A()
        self.nst = 0

    def stamp(self, i, st=0):
        if i not in (0, 7) and st != self.o['set']:
            return
        if self.o['stamps'] or self.o['dbgspan'] or self.o['ampk']:
            cyc = self.o['stamps'] == 2 or self.o['ampk'] < 0
            self.a(f"{'s_memtime' if cyc else 's_memrealtime'} s[{S_ST+2*i}:{S_ST+2*i+1}]")

    def dump_stamps(self):
        if self.o['dbgspan']:
            a = self.a
            n = self.nst = self.nst + 1
            a("s_waitcnt lgkmcnt(0)", f"s_cmp_lg_u32 s{S_I}, 0", f"s_cbranch_scc1 L_nodump{n}", "s_mov_b64 exec, 1", "v_mov_b32 v8, 0", f"s_not_b32 s{S_T0}, s{S_ST}", f"v_mov_b32 v9, s{S_T0}",
              f"buffer_atomic_umax v9, v8, s[{R_DBG}:{R_DBG+3}], 0 offen offset:8 sc1")
            for k, i in enumerate((0, 1, 3, 6, 7, 5) if n == 2 else (1, 2, 4, 5, 6, 7)):
                a(f"v_mov_b32 v{10+k}, s{S_ST+2*i}", f"buffer_atomic_umax v{10+k}, v8, s[{R_DBG}:{R_DBG+3}], 0 offen offset:{(12 if n == 2 else 36)+4*k} sc1")
            a(f"L_nodump{n}:")
            return
        if not self.o['stamps']:
            return
        a = self.a
        a("s_waitcnt lgkmcnt(0)", f"s_lshl_b32 s{S_T0}, s2, 3", f"s_add_u32 s{S_T0}, s{S_T0}, s{S_WAVE}", f"s_lshl_b32 s{S_T0}, s{S_T0}, 6",
          f"s_mul_i32 s{S_T1}, s{S_B}, {WS_BR}", f"s_sub_u32 s{S_T0}, s{S_T0}, s{S_T1}", f"s_add_u32 s{S_T0}, s{S_T0}, {WS_STAMP}",
          f"s_mov_b32 s{R_WS+2}, 0x2000000", "v_mov_b32 v8, 0")
        for i in range(4):
            for k in range(4):
                a(f"v_mov_b32 v{12+k}, s{S_ST+4*i+k}")
            a(f"buffer_store_dwordx4 v[12:15], v8, s[{R_WS}:{R_WS+3}], s{S_T0} offen offset:{16*i}", "s_nop 1")

    def kv_dma(self, p0, n):
        a = self.a
        for k in range(n):
            a(f"s_add_u32 m0, s{S_M0A}, {L_KV + (p0 + 4*k)*1024}", f"s_add_u32 s{S_T0}, s{S_KVS}, 4096",
              f"buffer_load_dwordx4 v1, s[{R_WS}:{R_WS+3}], s{S_KVS} offen sc1 lds",
              f"s_cmp_ge_u32 s{S_T0}, {KVB}", f"s_cselect_b32 s{S_T1}, {KVB}, 0", f"s_sub_u32 s{S_KVS}, s{S_T0}, s{S_T1}")

    def row_max16(self, v):
        a = self.a
        for k in (8, 4, 2, 1):
            a("s_nop 1", f"v_max_f32_dpp v{v}, v{v}, v{v} row_ror:{k} row_mask:0xf bank_mask:0xf")

    def rest_srds(self):
        a = self.a
        a(f"s_mov_b32 s{R_WO+2}, 663552", f"s_mov_b32 s{R_WO+3}, 0x20000",
          f"s_mul_i32 s{S_T0}, s{S_B}, {WS_BR}", f"s_add_u32 s{R_WS}, s40, s{S_T0}", f"s_addc_u32 s{R_WS+1}, s41, 0",
          f"s_mov_b32 s{R_WS+2}, {WS_OEX + 32*OEX_G}", f"s_mov_b32 s{R_WS+3}, 0x20000")
        srd(a, R_OUT, "s36", "s37", 4718592)
        srd(a, R_DBG, "s38", "s39", 256)

    def norm2(self, x, y):
        a = self.a
        for j in range(4):
            for (qm, qr, dst, tmp) in (x, y):
                a(f"v_dot2_f32_bf16 v{dst}, v{qm+j}, v{qm+j}, {'0' if j == 0 else 'v%d' % dst}",
                  f"v_dot2_f32_bf16 v{tmp}, v{qm+4+j}, v{qm+4+j}, {'0' if j == 0 else 'v%d' % tmp}")
        a("s_nop 0", f"v_permlane32_swap_b32 v{x[2]}, v{x[3]}", "s_nop 0", f"v_permlane32_swap_b32 v{y[2]}, v{y[3]}",
          f"v_add_f32 v{x[2]}, v{x[2]}, v{x[3]}", f"v_add_f32 v{y[2]}, v{y[2]}, v{y[3]}",
          f"v_dot2_f32_bf16 v{x[2]}, v{x[1]}, v{x[1]}, v{x[2]}", f"v_dot2_f32_bf16 v{y[2]}, v{y[1]}, v{y[1]}, v{y[2]}", "s_nop 1",
          f"v_sqrt_f32 v{x[2]}, v{x[2]}", f"v_sqrt_f32 v{y[2]}, v{y[2]}")

    def init_main_regs(self):
        a = self.a
        a(f"v_mov_b32 v{KR[0]+1}, 0x3f803f80", f"v_mov_b32 v{KR[1]+1}, 0x3f803f80")
        for r in range(O[0], O[0] + 32):
            a(f"v_mov_b32 v{r}, 0")
        for r in range(S[1] + 24, S[1] + 32):
            a(f"v_mov_b32 v{r}, 0")
        for r in range(VV[1][1], VV[1][1] + 4):
            a(f"v_mov_b32 v{r}, 0")

    def ldKm(self, kb):
        return [f"ds_read_b128 {vr(KM[kb%2],4)}, v{V_AK} offset:{(kb//2)*PB+(kb%2)*1024}"]

    def ldKr(self, p):
        return [f"ds_read_b32 v{KR[p%2]}, v{V_AR} offset:{p*PB}"]

    def ldV(self, kb):
        return [f"ds_read_b128 {vr(VV[kb%2][i],4)}, v{V_AV} offset:{(kb//2)*PB+((kb%2)*2+i)*VG}" for i in range(2)]

    def qk(self, dst, kb):
        return [B2(dst, KR[(kb//2) % 2], QR, kb % 2), K16(dst, KM[kb % 2], QM[0]), K16(dst + 16, KM[kb % 2], QM[1])]

    def main_prologue_loads(self):
        self.a(self.ldKr(0), self.ldKm(0), self.ldKm(1), self.ldKr(1), self.ldV(0))

    def start(self):
        a, o = self.a, self.o
        a("s_cmp_ge_u32 s2, 256", "s_cbranch_scc1 L_end")
        a("s_load_dwordx16 s[16:31], s[0:1], 0", "s_load_dwordx8 s[32:39], s[0:1], 64", "s_load_dwordx2 s[40:41], s[0:1], 96")
        self.stamp(0)
        a("s_getpc_b64 s[42:43]", "L_pc:")
        a("v_lshrrev_b32 v1, 6, v0", "v_and_b32 v0, 63, v0", f"v_readfirstlane_b32 s{S_WAVE}, v1", "v_lshlrev_b32 v1, 4, v0",
          f"s_lshr_b32 s{S_T2}, s2, 3", f"s_and_b32 s{S_B}, s2, 1", f"s_and_b32 s{S_HG}, s{S_T2}, 3", f"s_lshr_b32 s{S_GI}, s2, 5")
        if o['prefetch']:
            a(f"s_cmp_lg_u32 s{S_WAVE}, 7", "s_cbranch_scc1 L_nopf", f"s_cmp_ge_u32 s{S_T2}, (L_codeend-{NAME})/1024", "s_cbranch_scc1 L_nopf",
              f"s_lshl_b32 s{S_T2}, s{S_T2}, 10", f"s_sub_u32 s{S_T0}, s42, L_pc-{NAME}", f"s_subb_u32 s{S_T1}, s43, 0",
              f"s_add_u32 s{S_T0}, s{S_T0}, s{S_T2}", f"s_addc_u32 s{S_T1}, s{S_T1}, 0",
              f"v_mov_b32 v7, s{S_T1}", f"v_add_co_u32 v6, vcc, s{S_T0}, v1", "s_nop 1", "v_addc_co_u32 v7, vcc, 0, v7, vcc", "s_nop 0",
              "global_load_dwordx4 v[24:27], v[6:7], off", "L_nopf:")
        a(f"s_bfe_u32 s{S_PG}, s2, 0x20001", f"s_lshl_b32 s{S_PG}, s{S_PG}, 3", f"s_add_u32 s{S_PG}, s{S_PG}, s{S_GI}",
          f"s_and_b32 s{S_I}, s{S_WAVE}, 3", f"s_and_b32 s{S_PBI}, s{S_WAVE}, 1", f"s_lshr_b32 s{S_HQ}, s{S_I}, 1")
        a("v_lshrrev_b32 v8, 3, v0", "v_lshrrev_b32 v9, 4, v0", f"s_lshl_b32 s{S_T0}, s{S_PBI}, 2", f"v_or_b32 v9, s{S_T0}, v9",
          "v_and_b32 v10, 7, v0", "v_xor_b32 v9, v9, v10", "v_lshlrev_b32 v9, 4, v9", "v_mov_b32 v10, 0x480", "v_mad_u32_u24 v8, v8, v10, v9",
          f"s_lshl_b32 s{S_T0}, s{S_I}, 6", f"v_add_u32 v9, s{S_T0}, v0", "v_mul_u32_u24 v10, 0xab, v9", "v_lshrrev_b32 v10, 9, v10", "v_mul_u32_u24 v10, 12, v10",
          "v_lshlrev_b32 v9, 4, v9", "v_sub_u32 v9, v9, v10")
        a(f"s_and_b32 s{S_T4}, s{S_HG}, 2", f"s_lshl_b32 s{S_T4}, s{S_T4}, 1", f"s_add_u32 s{S_T4}, s{S_T4}, s{S_I}",
          f"s_lshl_b32 s{S_T5}, s{S_PG}, 3", f"s_add_u32 s{S_XB}, s{S_T5}, s{S_T4}", f"s_mul_i32 s{S_XB}, s{S_XB}, {8*1152}",
          f"s_mul_i32 s{S_XM}, s{S_T4}, 9216", f"s_add_u32 s{S_XM}, s{S_XM}, {L_X}", f"s_lshl_b32 s{S_T0}, s{S_I}, 10", f"s_add_u32 s{S_T0}, s{S_T0}, {L_W}",
          f"s_lshr_b32 s{S_T1}, s{S_HG}, 1", f"s_movk_i32 s{S_DI}, 3072", f"s_movk_i32 s{S_DS}, 2304",
          f"s_cmp_lt_u32 s{S_WAVE}, 4", "s_cselect_b64 vcc, -1, 0", f"s_cselect_b32 s{S_XB}, s{S_XB}, 0", f"s_cselect_b32 s{S_XM}, s{S_XM}, s{S_T0}",
          f"s_cselect_b32 s{S_T1}, s{S_HG}, s{S_T1}", f"s_cselect_b32 s{S_DI}, 1024, s{S_DI}", f"s_cselect_b32 s{S_DS}, 128, s{S_DS}",
          "v_cndmask_b32 v9, v9, v8, vcc")
        self.dma9_setup(S_T1)
        a("s_waitcnt lgkmcnt(0)", f"s_cmp_eq_u32 s{S_B}, 0", f"s_cselect_b64 s[{R_X}:{R_X+1}], s[16:17], s[26:27]",
          f"s_cselect_b64 s[20:21], s[20:21], s[30:31]", f"s_cselect_b64 s[22:23], s[22:23], s[32:33]",
          f"s_cselect_b64 s[{R_WQ}:{R_WQ+1}], s[18:19], s[28:29]", f"s_cselect_b64 s[{R_WO}:{R_WO+1}], s[24:25], s[34:35]",
          f"s_bitcmp0_b32 s{S_HG}, 0", f"s_cselect_b64 s[{R_W}:{R_W+1}], s[20:21], s[22:23]", f"s_mov_b32 s{R_X+2}, 2359296", f"s_movk_i32 s{R_W+2}, 20736",
          f"s_cmp_lt_u32 s{S_WAVE}, 4", f"s_cselect_b64 s[{R_W}:{R_W+1}], s[{R_X}:{R_X+1}], s[{R_W}:{R_W+1}]", f"s_cselect_b32 s{R_W+2}, s{R_X+2}, s{R_W+2}",
          f"s_mov_b32 s{R_W+3}, 0x20000", f"s_mov_b32 s{R_X+3}, 0x20000")
        self.stamp(1, 2)
        a(f"s_cmp_lt_u32 s{S_WAVE}, 4", "s_cbranch_scc1 L_r1", "s_setprio 1", f"s_cmp_eq_u32 s{S_WAVE}, 7", "s_cbranch_scc1 L_late", "L_r1:")
        self.dma9(R_W, 9)
        a(f"s_cmp_ge_u32 s{S_WAVE}, 4", "s_cbranch_scc1 L_late")

    def dma9_setup(self, sel):
        self.a(f"s_bitcmp1_b32 s{sel}, 0", f"s_cselect_b32 s{S_XI}, 5, 0",
               f"s_add_u32 s{S_XS}, s{S_XI}, s{S_GI}", f"s_cmp_ge_u32 s{S_XS}, 9", f"s_cselect_b32 s{S_T0}, 9, 0", f"s_sub_u32 s{S_XS}, s{S_XS}, s{S_T0}",
               f"s_mul_i32 s{S_XS}, s{S_XS}, s{S_DS}", f"s_mul_i32 s{S_XI}, s{S_XI}, s{S_DI}", f"s_mul_i32 s{S_LI}, s{S_DI}, 9", f"s_mul_i32 s{S_LS}, s{S_DS}, 9")

    def dma9(self, srd_, v):
        for i in range(9):
            self.a(f"s_add_u32 m0, s{S_XM}, s{S_XI}", f"s_add_u32 s{S_T3}, s{S_XB}, s{S_XS}",
                   f"buffer_load_dwordx4 v{v}, s[{srd_}:{srd_+3}], s{S_T3} offen lds")
            if i < 8:
                self.a(f"s_add_u32 s{S_XS}, s{S_XS}, s{S_DS}", f"s_cmp_eq_u32 s{S_XS}, s{S_LS}", f"s_cselect_b32 s{S_XS}, 0, s{S_XS}",
                       f"s_add_u32 s{S_XI}, s{S_XI}, s{S_DI}", f"s_cmp_eq_u32 s{S_XI}, s{S_LI}", f"s_cselect_b32 s{S_XI}, 0, s{S_XI}")

    def table_load(self):
        self.a(f"s_add_u32 s{S_T0}, s42, L_table-L_pc", f"s_addc_u32 s{S_T1}, s43, 0",
               f"v_mov_b32 v7, s{S_T1}", f"v_add_co_u32 v6, vcc, s{S_T0}, v1", "s_nop 1", "v_addc_co_u32 v7, vcc, 0, v7, vcc", "s_nop 0",
               "global_load_dwordx4 v[20:23], v[6:7], off")

    def wq_setup(self, d, part=3):
        a = self.a
        if part & 1:
            a(f"s_mov_b32 s{R_WQ+2}, 663552", f"s_mov_b32 s{R_WQ+3}, 0x20000", f"s_lshl_b32 s{S_T0}, s{S_I}, 6", f"s_mul_i32 s{S_T1}, s{S_HG}, 288", "v_mov_b32 v16, 0x480")
        for t in range(3 if part & 1 else 0):
            a(f"v_add_u32 v13, s{S_T0}, v0", "v_mul_u32_u24 v14, 0xe39, v13", "v_lshrrev_b32 v14, 16, v14",
              "v_mul_u32_u24 v15, 18, v14", "v_sub_u32 v13, v13, v15", "v_lshlrev_b32 v13, 4, v13",
              "v_bfe_u32 v15, v14, 1, 2", "v_and_b32 v17, 1, v14", "v_lshl_add_u32 v15, v17, 2, v15", "v_and_b32 v14, 24, v14", "v_add_u32 v14, v14, v15",
              "v_mad_u32_u24 v13, v14, v16, v13", f"v_add_u32 v{10+t}, s{S_T1}, v13")
            if t < 2:
                a(f"s_add_u32 s{S_T0}, s{S_T0}, 192")
        if not part & 2:
            return
        a(f"s_lshl_b32 s{S_M0A}, s{S_I}, 10", f"s_mul_i32 s{S_ROW}, s{S_GI}, {64*1152}")
        if d:
            a(f"s_add_u32 s{S_ROW}, s{S_ROW}, {32*d*1152}", f"s_cmp_ge_u32 s{S_ROW}, {576*1152}",
              f"s_cselect_b32 s{S_T0}, {576*1152}, 0", f"s_sub_u32 s{S_ROW}, s{S_ROW}, s{S_T0}")

    def wq_list(self, d):
        n = self.nlab = getattr(self, 'nlab', 0) + 1
        s0 = dslot(d)
        ld = lambda r: f"buffer_load_dwordx4 v{r}, s[{R_WQ}:{R_WQ+3}], s{S_ROW} offen lds"
        return [f"s_cbranch_vccz L_wq{n}",
                f"s_add_u32 m0, s{S_M0A}, {s0}", f"s_add_u32 s{S_T0}, s{S_ROW}, {32*1152}", ld(10),
                f"s_add_u32 m0, s{S_M0A}, {s0+3072}", "s_nop 0", ld(11),
                f"s_add_u32 m0, s{S_M0A}, {s0+6144}", f"s_cmp_ge_u32 s{S_T0}, {576*1152}", ld(12),
                f"s_cselect_b32 s{S_T1}, {576*1152}, 0", f"s_sub_u32 s{S_ROW}, s{S_T0}, s{S_T1}", f"L_wq{n}:"]

    def wq_dma(self, d):
        self.a(self.wq_list(d))

    def loader_flag(self):
        self.a(f"s_cmp_lt_u32 s{S_I}, 3", "s_cselect_b64 vcc, -1, 0")

    GROUPS = [(3, 3), (5, 7), (8, 11), (11, 17), (14, 23), (16, 29), (17, 33)]

    def early_front(self):
        a, o = self.a, self.o
        self.stamp(2, 2)
        self.table_load()
        self.wq_setup(0)
        self.loader_flag()
        self.wq_dma(0)
        self.rest_srds()
        a("v_and_b32 v16, 31, v0", "v_lshrrev_b32 v13, 5, v0", "v_bfe_u32 v14, v0, 1, 3", "v_xor_b32 v13, v13, v14", "v_lshlrev_b32 v13, 4, v13",
          "v_and_b32 v14, 7, v0", "v_lshl_add_u32 v13, v14, 7, v13", "v_lshrrev_b32 v16, 3, v16", "v_mul_u32_u24 v16, 0x2400, v16",
          f"s_mul_i32 s{S_T0}, s{S_PBI}, {4*9216}", f"s_add_u32 s{S_T0}, s{S_T0}, {L_X}", f"v_add3_u32 v104, v16, v13, s{S_T0}",
          "v_xor_b32 v105, 32, v104", "v_xor_b32 v106, 64, v104", "v_xor_b32 v107, 0x60, v104")
        a("v_bfe_u32 v18, v0, 2, 2", "v_lshrrev_b32 v15, 5, v0", "v_lshlrev_b32 v15, 2, v15", "v_add_u32 v15, v15, v18", "v_mul_u32_u24 v15, 0x240, v15",
          f"s_mul_i32 s{S_T0}, s{S_HQ}, 144", "v_and_b32 v13, 1, v0", "v_lshl_add_u32 v15, v13, 4, v15", f"v_add_u32 v15, s{S_T0}, v15",
          "v_bfe_u32 v13, v0, 1, 1", "v_bfe_u32 v14, v0, 4, 1", "v_lshl_add_u32 v6, v13, 3, v15", "v_lshl_add_u32 v6, v14, 5, v6",
          "v_mul_u32_u24 v13, 72, v13", "v_add3_u32 v7, v13, v15, 48")
        a(f"s_mul_i32 s{S_T0}, s{S_WAVE}, 2560", f"v_add_u32 v96, s{S_T0}, v1", "v_lshlrev_b32 v97, 3, v0", f"v_add_u32 v97, s{S_T0}, v97",
          f"v_mov_b32 v{V_IDX}, 0xdddddddd", f"v_add_u32 v{V_AK}, {L_KV}, v1", f"v_lshlrev_b32 v{V_AR}, 2, v0", f"v_add_u32 v{V_AR}, {L_KV+2048}, v{V_AR}",
          "v_mov_b32 v102, 0", "v_mov_b32 v103, 0", f"v_mov_b32 v98, {L_KMAX}")
        a("v_mov_b32 v100, 1", "v_mov_b32 v101, 0")
        a(f"s_cmp_eq_u32 s{S_WAVE}, 3", "s_cbranch_scc0 L_e3", "s_waitcnt vmcnt(1)", "L_e3:", "s_waitcnt vmcnt(4)")
        self.stamp(3, 2)
        a("s_barrier")
        self.wq_dma(1)
        self.wq_dma(2)
        self.stamp(1)
        self.stamp(4, 2)
        a("s_barrier")
        self.stamp(5, 2)
        XF = 112
        T0, T1, TR = 24, 40, 56
        FB = [72, 84]
        state = dict(base=0)

        def rd(ks):
            x = []
            off = slot_addr(ks) - state['base']
            if off < 0 or off + 360 > 65535:
                d = slot_addr(ks) - state['base']
                x += [f"v_add_u32 v{r}, {d}, v{r}" if d > 0 else f"v_subrev_u32 v{r}, {-d}, v{r}" for r in (6, 7)]
                state['base'] = slot_addr(ks)
                off = 0
            f = FB[ks & 1]
            return x, [f"ds_read_b64_tr_b16 {vr(f,2)}, v6 offset:{off}", f"ds_read_b64_tr_b16 {vr(f+2,2)}, v6 offset:{off+288}",
                       f"ds_read_b64_tr_b16 {vr(f+4,2)}, v6 offset:{off+72}", f"ds_read_b64_tr_b16 {vr(f+6,2)}, v6 offset:{off+360}",
                       f"ds_read_b64_tr_b16 {vr(f+8,2)}, v7 offset:{off}", f"ds_read_b64_tr_b16 {vr(f+10,2)}, v7 offset:{off+288}"]

        def mm(ks):
            f = FB[ks & 1]
            c = "0" if ks == 0 else None
            return [K16(T0, f, XF + 4 * ks, c), K16(T1, f + 4, XF + 4 * ks, c), K16(TR, f + 8, XF + 4 * ks, c)]
        for i in range(36):
            a(f"ds_read_b128 {vr(XF+4*i,4)}, v{104+(i&3)} offset:{(i>>2)*1024}")
            if i in (9, 19, 29):
                self.wq_dma(3 + i // 10)
        a(f"s_cmp_eq_u32 s{S_WAVE}, 3", "s_cbranch_scc0 L_e4", "s_waitcnt vmcnt(0)", "L_e4:")
        a("s_waitcnt vmcnt(12)", f"v_mov_b32 v{V_AV}, v20", "v_mov_b32 v21, 0x3f803f80", "s_waitcnt lgkmcnt(0)", "s_barrier")
        self.stamp(2)
        self.stamp(6, 2)
        a(rd(0)[1])
        ev = {k: ["s_barrier"] for _, k in self.GROUPS}
        ev[3] = ["s_waitcnt vmcnt(6)", "s_barrier"]
        ev[7] = ["s_waitcnt vmcnt(0)", "s_barrier", f"s_cmp_lg_u32 s{S_WAVE}, 3", "s_cbranch_scc1 L_nosig", f"s_lshl_b32 s{S_T0}, s{S_B}, 7", "s_mov_b64 exec, 1",
                 f"buffer_atomic_add v100, v101, s[{R_DBG}:{R_DBG+3}], s{S_T0} offen sc1", "s_mov_b64 exec, -1", "L_nosig:"]
        for ks in range(36):
            m = mm(ks)
            if ks in ev:
                if ks in (3, 7):
                    a(ev[ks][0])
                if sorted(ev).index(ks) > 0:
                    self.stamp(sorted(ev).index(ks), 3)
                a(ev[ks])
            if ks + 1 < 36:
                pre, n = rd(ks + 1)
                if o['xp'] & 1:
                    n = ["s_nop 0"] * 6
                if o['xp'] & 2:
                    m = ["s_nop 7"] * 3
                if o['xp'] & 4:
                    n = n[:4] + ["s_nop 0"] * 2
                    m = m[:2] + ["s_nop 0"]
                a(pre, n[0:2], "s_waitcnt lgkmcnt(6)", m[0], n[2:4], "s_waitcnt lgkmcnt(6)", m[1], n[4:6], "s_waitcnt lgkmcnt(6)", m[2])
            else:
                a("s_waitcnt lgkmcnt(4)", m[0], "s_waitcnt lgkmcnt(2)", m[1], "s_waitcnt lgkmcnt(0)", m[2])
        self.stamp(3)
        H = 72
        a(f"v_mov_b32 v{KR[0]+1}, 0x3f803f80", f"s_mov_b32 s{S_BAR}, {32//o['unp'] - o['barit']}", f"s_mov_b32 s{S_STG}, 0", f"s_mov_b32 s{S_SAME}, 0", "s_nop 1")
        a("s_mov_b32 vcc_lo, 0", "s_mov_b32 vcc_hi, -1")
        for (dst, t) in ((QM[0], T0), (H, T1)):
            for j, r in enumerate((0, 2, 4, 6, 10, 12, 14)):
                a(f"v_cvt_pk_bf16_f32 v{dst+j}, v{t+r}, v{t+r+1}")
        for (dst, qr, t, t2, tmp) in ((H, H + 8, T1, TR + 4, 85), (QM[0], QR, T0, TR, 86)):
            a(f"v_cvt_pk_bf16_f32 v{dst+7}, v{t2}, v{t2+1}", f"v_cvt_pk_bf16_f32 v{qr}, v{t+8}, v{t+9}", f"v_cvt_pk_bf16_f32 v{tmp}, v{t2+2}, v{t2+3}")
        a(f"v_cndmask_b32 v{H+8}, v{H+8}, v85, vcc", f"v_cndmask_b32 v{QR}, v{QR}, v86, vcc")
        a(f"ds_write_b128 v96, {vr(H,4)}", f"ds_write_b128 v96, {vr(H+4,4)} offset:1024")
        self.norm2((H, H + 8, H + 9, 85), (QM[0], QR, QR + 1, 86))
        a(f"ds_write_b64 v97, {vr(H+8,2)} offset:2048")
        a(K8Z(O[0], 102), K8Z(O[1], 102))
        a("s_waitcnt lgkmcnt(0)")
        a("s_barrier")
        a("ds_read_b32 v6, v98")
        self.main_prologue_loads()
        a([f"v_mov_b32 v{r}, 0" for r in range(VV[1][1], VV[1][1] + 4)])
        if o['prio']:
            a("s_setprio 2")
        a("s_waitcnt lgkmcnt(0)", "s_branch L_attn")

    def late_front(self):
        a, o = self.a, self.o
        a.label("L_late")
        a("s_setprio 0")
        self.stamp(2, 2)
        self.wq_setup(6, 1)
        a(f"s_xor_b32 s{S_T4}, s{S_T4}, 4", f"s_add_u32 s{S_XB}, s{S_T5}, s{S_T4}", f"s_mul_i32 s{S_XB}, s{S_XB}, {8*1152}",
          f"s_mul_i32 s{S_XM}, s{S_T4}, 9216", f"s_add_u32 s{S_XM}, s{S_XM}, {L_X}", f"s_movk_i32 s{S_DI}, 1024", f"s_movk_i32 s{S_DS}, 128")
        self.rest_srds()
        a("v_and_b32 v13, 15, v0", "v_lshrrev_b32 v16, 4, v0",
          "v_bfe_u32 v17, v0, 1, 3", "v_xor_b32 v17, v16, v17", "v_lshlrev_b32 v17, 4, v17",
          "v_and_b32 v18, 7, v0", "v_lshl_add_u32 v17, v18, 7, v17", "v_bfe_u32 v18, v0, 3, 1", "v_mul_u32_u24 v18, 0x2400, v18",
          f"s_lshr_b32 s{S_T0}, s{S_HG}, 1", f"s_lshl_b32 s{S_T0}, s{S_T0}, 1", f"s_add_u32 s{S_T0}, s{S_T0}, s{S_PBI}",
          f"s_mul_i32 s{S_T1}, s{S_T0}, {2*9216}", f"s_add_u32 s{S_T1}, s{S_T1}, {L_X}", f"v_add3_u32 v14, v17, v18, s{S_T1}", "v_xor_b32 v15, 64, v14",
          "v_bfe_u32 v17, v0, 2, 2", "v_lshl_add_u32 v17, v16, 3, v17",
          "v_mul_u32_u24 v17, 48, v17", "v_and_b32 v18, 3, v0", "v_lshlrev_b32 v18, 3, v18",
          f"s_cmp_eq_u32 s{S_HQ}, 0", "s_cselect_b64 vcc, -1, 0", "v_mov_b32 v19, 32", "v_cndmask_b32 v18, v19, v18, vcc", f"v_add_u32 v17, {L_W}, v17", "v_add_u32 v17, v17, v18")
        a("v_lshrrev_b32 v19, 5, v0", "v_lshlrev_b32 v19, 9, v19", "v_lshl_add_u32 v19, v13, 4, v19",
          "v_bfe_u32 v18, v0, 4, 1", "v_lshl_add_u32 v28, v18, 3, v19", "v_lshlrev_b32 v29, 2, v13",
          f"s_mul_i32 s{S_KVS}, s{S_PG}, {PB}", f"s_mov_b32 s{S_OEX}, s{S_T0}")
        self.dma9_setup(S_HG)
        self.dma9(R_X, 8)
        self.stamp(3, 2)
        self.table_load()
        a("s_setprio 1", "s_waitcnt vmcnt(10)")
        self.stamp(1)
        self.stamp(4, 2)
        a("s_barrier")
        a(f"s_bitcmp1_b32 s{S_HG}, 0", "s_cbranch_scc1 L_vproj")
        D = 32
        NB = o['nb']
        for isv in (0, 1):
            if isv:
                a.label("L_vproj")

            def rd(s):
                xb = 40 + 8 * (s % NB)
                return [f"ds_read_b128 {vr(xb,4)}, v{14+(s&1)} offset:{(s>>1)*1024}",
                        f"ds_read_b64_tr_b16 {vr(xb+4,2)}, v17 offset:{s*1536}", f"ds_read_b64_tr_b16 {vr(xb+6,2)}, v17 offset:{s*1536+192}"]
            for s in range(NB - 1):
                a(rd(s))
            for s in range(18):
                if s == o['sb']:
                    a("s_waitcnt vmcnt(0)", "s_barrier")
                if s + NB - 1 < 18:
                    a(rd(s + NB - 1))
                left = min(18 - 1 - s, NB - 1)
                xb = 40 + 8 * (s % NB)
                c = "0" if s == 0 else None
                a(f"s_waitcnt lgkmcnt({min(15,3*left)})", M16(D, xb, xb + 4, c) if isv else M16(D, xb + 4, xb, c))
            g = S_OEX
            if not isv:
                a(f"s_lshr_b32 s{S_T0}, s{g}, 1", f"s_lshl_b32 s{S_T0}, s{S_T0}, 10", f"s_lshl_b32 s{S_T1}, s{S_PBI}, 8", f"s_add_u32 s{S_T0}, s{S_T0}, s{S_T1}",
                  f"s_add_u32 s{S_T0}, s{S_T0}, s{S_KVS}",
                  f"s_lshl_b32 s{S_T1}, s{g}, 6", f"s_add_u32 s{S_T1}, s{S_T1}, s{S_KVS}", f"s_add_u32 s{S_T1}, s{S_T1}, 2048",
                  f"s_mov_b32 s{S_T2}, {hex(f2u(CSCALE))}")
                for r in range(4):
                    a(f"v_mul_f32 v{D+r}, s{S_T2}, v{D+r}")
                a(f"v_cvt_pk_bf16_f32 v{D}, v{D}, v{D+1}", f"v_cvt_pk_bf16_f32 v{D+1}, v{D+2}, v{D+3}",
                  f"s_lshl_b32 s{S_T3}, s{S_PG}, 2", f"s_add_u32 s{S_T3}, s{S_T3}, s{g}", f"s_lshl_b32 s{S_T3}, s{S_T3}, 2", f"s_add_u32 s{S_T3}, s{S_T3}, {WS_KN}",
                  f"v_dot2_f32_bf16 v36, v{D}, v{D}, 0",
                  f"s_cmp_eq_u32 s{S_HQ}, 0", "s_cbranch_scc0 L_krem",
                  f"buffer_store_dwordx2 {vr(D,2)}, v28, s[{R_WS}:{R_WS+3}], s{S_T0} offen sc1",
                  f"v_dot2_f32_bf16 v36, v{D+1}, v{D+1}, v36", "s_nop 2", "v_mov_b32 v37, v36", "s_nop 1",
                  "v_permlane16_swap_b32 v36, v37", "s_nop 1", "v_add_f32 v36, v36, v37", "s_nop 0", "v_mov_b32 v37, v36", "s_nop 1",
                  "v_permlane32_swap_b32 v36, v37", "s_nop 1", "v_add_f32 v36, v36, v37", "s_branch L_knorm",
                  "L_krem:", "s_mov_b64 exec, 0xffff",
                  f"buffer_store_dword v{D}, v29, s[{R_WS}:{R_WS+3}], s{S_T1} offen sc1", "s_mov_b64 exec, -1", f"s_add_u32 s{S_T3}, s{S_T3}, 512",
                  "L_knorm:", "s_nop 1")
                self.row_max16(36)
                a("v_mov_b32 v37, 0", "s_mov_b64 exec, 1", f"buffer_store_dword v36, v37, s[{R_WS}:{R_WS+3}], s{S_T3} offen sc1", "s_mov_b64 exec, -1",
                  "s_branch L_kvdone")
            else:
                a(f"s_mul_i32 s{S_T0}, s{g}, {VG}", f"s_add_u32 s{S_T0}, s{S_T0}, s{S_KVS}", f"s_add_u32 s{S_T0}, s{S_T0}, 2304",
                  "v_cmp_eq_u32 vcc, 2, v13", f"v_cmp_eq_u32 s[{S_EX}:{S_EX+1}], 3, v13", "v_mov_b32 v30, 0x3f803f80", "s_nop 0",
                  f"s_cmp_eq_u32 s{S_HQ}, 0",
                  f"v_cvt_pk_bf16_f32 v{D}, v{D}, v{D+1}", f"v_cvt_pk_bf16_f32 v{D+1}, v{D+2}, v{D+3}", "s_cbranch_scc0 L_vrem",
                  f"buffer_store_dwordx2 {vr(D,2)}, v21, s[{R_WS}:{R_WS+3}], s{S_T0} offen sc1", "s_branch L_kvdone",
                  "L_vrem:",
                  f"v_cndmask_b32 v{D}, v{D}, v30, vcc", f"v_cndmask_b32 v{D+1}, v{D+1}, v30, vcc",
                  f"v_cndmask_b32 v{D}, v{D}, 0, s[{S_EX}:{S_EX+1}]", f"v_cndmask_b32 v{D+1}, v{D+1}, 0, s[{S_EX}:{S_EX+1}]",
                  "s_mov_b32 exec_lo, 0x000f000f", "s_mov_b32 exec_hi, 0x000f000f",
                  f"buffer_store_dwordx2 {vr(D,2)}, v22, s[{R_WS}:{R_WS+3}], s{S_T0} offen sc1", "s_mov_b64 exec, -1")
        a.label("L_kvdone")
        if o['xcc']:
            a("s_getreg_b32 s29, hwreg(HW_REG_XCC_ID, 0, 4)", f"s_cmp_lg_u32 s{S_WAVE}, 4", "s_cbranch_scc1 L_noxid",
              f"s_lshl_b32 s{S_T0}, s{S_PG}, 2", f"s_add_u32 s{S_T0}, s{S_T0}, s{S_HG}", f"s_lshl_b32 s{S_T0}, s{S_T0}, 2", f"s_add_u32 s{S_T0}, s{S_T0}, {WS_XID}",
              "v_mov_b32 v38, s29", "v_mov_b32 v39, 0", "s_mov_b64 exec, 1", f"buffer_store_dword v38, v39, s[{R_WS}:{R_WS+3}], s{S_T0} offen sc1", "s_mov_b64 exec, -1", "L_noxid:")
        self.stamp(2)
        self.stamp(5, 2)
        a(f"v_mov_b32 v{V_AV}, v20")
        self.wq_setup(6, 2)
        self.loader_flag()
        a("s_barrier")
        nxt = 6
        for gi_, (last, _) in enumerate(self.GROUPS):
            lim = 16 if gi_ < 3 else 17
            tgt = {0: 7, 1: 5 + o['win']}.get(gi_, last + o['win'])
            while nxt <= min(tgt, lim):
                self.wq_dma(nxt)
                nxt += 1
            assert nxt > last
            if gi_ == 1:
                a(f"s_cbranch_vccnz L_l{gi_}", "s_waitcnt vmcnt(0)", f"L_l{gi_}:", f"s_waitcnt vmcnt({3*(nxt-6)})")
            if gi_ > 1:
                a(f"s_waitcnt vmcnt({3*(nxt-1-last)})")
            if gi_ == 2:
                a(f"v_mov_b32 v150, {L_FLAG}", "v_mov_b32 v152, 0", "v_mov_b32 v153, 0", "v_mov_b32 v151, 0", "ds_write_b64 v150, v[152:153]", "s_waitcnt lgkmcnt(0)")
            if gi_ == 4:
                self.init_main_regs()
                a(f"s_and_b32 s{S_T0}, s{S_GI}, 3", f"s_mul_i32 s{S_KVS}, s{S_T0}, {37*1024}", f"s_add_u32 s{S_KVS}, s{S_KVS}, s{S_M0A}",
                  "v_lshlrev_b32 v153, 3, v0", f"s_mov_b32 s{S_T4}, {WS_KN}", f"s_lshl_b32 s{S_T5}, s{S_B}, 7")
            if gi_ == 5:
                assert nxt == 18
                a("s_cbranch_vccnz L_try0", f"buffer_load_dword v152, v151, s[{R_DBG}:{R_DBG+3}], s{S_T5} offen sc0 sc1", "s_waitcnt vmcnt(0)",
                  "v_lshrrev_b32 v152, 7, v152", "ds_write_b32 v150, v152", "s_waitcnt lgkmcnt(0)", "L_try0:")
            if gi_ > 0:
                self.stamp(gi_, 3)
            a("s_barrier")
            if gi_ == 5:
                break
        kn = [f"s_cmp_lg_u32 s{S_WAVE}, 7", None, f"buffer_load_dwordx2 v[154:155], v153, s[{R_WS}:{R_WS+3}], s{S_T4} offen sc1",
              f"buffer_load_dwordx2 v[156:157], v153, s[{R_WS}:{R_WS+3}], s{S_T4} offen offset:512 sc1"]
        a("ds_read_b32 v152, v150", "s_waitcnt lgkmcnt(0)", "v_cmp_eq_u32 vcc, 0, v152", "s_cbranch_vccnz L_notyet")
        self.stamp(4)
        a(kn[0], "s_cbranch_scc1 L_kna", kn[2:], "L_kna:")
        self.kv_dma(0, o['kv1'])
        a(f"s_cmp_eq_u32 s{S_WAVE}, 7", "s_cbranch_scc1 L_knb", f"s_waitcnt vmcnt({o['kv1']})", "L_knb:")
        self.stamp(6, 3)
        a("s_barrier", "s_branch L_first")
        a("L_notyet:", "s_waitcnt vmcnt(0)")
        self.stamp(6, 3)
        a("s_barrier")
        a(f"s_mov_b32 s{S_CNT}, {SPIN}", f"s_cmp_lg_u32 s{S_WAVE}, 7", "s_cbranch_scc1 L_relay")
        a("L_poll1:", f"buffer_load_dword v152, v151, s[{R_DBG}:{R_DBG+3}], s{S_T5} offen sc0 sc1", f"s_sub_u32 s{S_CNT}, s{S_CNT}, 1",
          "s_cbranch_scc1 L_poll1d", "s_waitcnt vmcnt(0)", "v_cmp_gt_u32 vcc, 0x80, v152", "s_cbranch_vccnz L_poll1",
          "L_poll1d:", "v_mov_b32 v152, 1", "ds_write_b32 v150, v152", kn[2:], "s_branch L_flagok")
        a("L_relay:", "ds_read_b32 v152, v150", f"s_sub_u32 s{S_CNT}, s{S_CNT}, 1", "s_cbranch_scc1 L_flagok", "s_waitcnt lgkmcnt(0)",
          "v_cmp_eq_u32 vcc, 0, v152", "s_cbranch_vccnz L_relay", "L_flagok:")
        self.stamp(4)
        self.kv_dma(0, o['kv1'])
        a("L_first:")
        self.stamp(3)
        self.stamp(6, 2)
        a(f"s_cmp_lg_u32 s{S_WAVE}, 7", "s_cbranch_scc1 L_nokn", f"s_waitcnt vmcnt({o['kv1']})", "v_max_f32 v154, v154, v155", "v_max_f32 v156, v156, v157")
        self.row_max16(154)
        self.row_max16(156)
        a("s_nop 0")
        for k in range(4):
            a(f"v_readlane_b32 s{16+k}, v154, {16*k}", f"v_readlane_b32 s{20+k}, v156, {16*k}")
        a("s_nop 1", "s_max_u32 s16, s16, s17", "s_max_u32 s18, s18, s19", "s_max_u32 s20, s20, s21", "s_max_u32 s22, s22, s23",
          "s_max_u32 s16, s16, s18", "s_max_u32 s20, s20, s22", "v_mov_b32 v154, s16", "v_add_f32 v154, s20, v154", "v_sqrt_f32 v154, v154",
          f"v_mov_b32 v155, {L_KMAX}", "ds_write_b32 v155, v154", "L_nokn:")
        a(f"v_mov_b32 v{V_IDX}, 0xdddddddd", f"v_add_u32 v{V_AK}, {L_KV}, v1", f"v_lshlrev_b32 v{V_AR}, 2, v0", f"v_add_u32 v{V_AR}, {L_KV+2048}, v{V_AR}",
          f"s_mul_i32 s{S_T0}, s{S_I}, 2560", f"v_add_u32 v8, s{S_T0}, v1", "v_lshlrev_b32 v9, 3, v0", f"v_add_u32 v9, s{S_T0}, v9", f"v_mov_b32 v6, {L_KMAX}")
        a("s_waitcnt vmcnt(0) lgkmcnt(0)", "s_barrier")
        a("ds_read_b32 v6, v6", f"ds_read_b64 {vr(QR,2)}, v9 offset:2048", f"ds_read_b128 {vr(QM[1],4)}, v8 offset:1024", f"ds_read_b128 {vr(QM[0],4)}, v8")
        self.kv_dma(4 * o['kv1'], 37 - o['kv1'])
        if o['xcc']:
            a(f"s_lshl_b32 s{S_T0}, s{S_PG}, 4", f"s_add_u32 s{S_T0}, s{S_T0}, {WS_XID}", "v_and_b32 v148, 3, v0", "v_lshlrev_b32 v148, 2, v148",
              f"buffer_load_dword v148, v148, s[{R_WS}:{R_WS+3}], s{S_T0} offen sc1")
        a("s_waitcnt vmcnt(0) lgkmcnt(0)")
        self.stamp(5)
        a("s_barrier")
        self.wo_job_loads(0)
        a(f"s_cmp_ge_u32 s{S_OEX}, {648-512}", "s_cbranch_scc1 L_nowo2", f"s_add_u32 s{S_OEX}, s{S_OEX}, 512")
        self.wo_job_loads(1)
        a("L_nowo2:")
        self.poison()
        a("s_waitcnt vmcnt(5)", f"s_cmp_ge_u32 s{S_OEX}, 512", "s_cbranch_scc0 L_wo3")
        self.wo_job_finish(1)
        a(f"s_sub_u32 s{S_OEX}, s{S_OEX}, 512", "L_wo3:")
        self.wo_job_finish(0)
        self.main_prologue_loads()
        self.join_signal(200, "l")
        a("s_mov_b64 exec, -1", f"s_mov_b32 s{S_BAR}, -1", f"s_mov_b32 s{S_STG}, 1", f"s_mov_b32 s{S_SAME}, 0")
        if o['xcc']:
            a("v_cmp_ne_u32 vcc, s29, v148", "s_cbranch_vccnz L_nosame", f"s_mov_b32 s{S_SAME}, 1", "L_nosame:")

    def join_signal(self, v, tag):
        self.a(f"v_mov_b32 v{v}, {L_FLAG+4}", f"v_mov_b32 v{v+1}, 1", f"v_mov_b32 v{v+3}, 0", f"s_lshl_b32 s{S_T0}, s{S_B}, 7", "s_mov_b64 exec, 1",
               "s_waitcnt vmcnt(0)", f"ds_add_rtn_u32 v{v+2}, v{v}, v{v+1}", "s_waitcnt lgkmcnt(0)", f"v_cmp_eq_u32 vcc, 3, v{v+2}", f"s_cbranch_vccz L_js{tag}",
               f"buffer_atomic_add v{v+1}, v{v+3}, s[{R_DBG}:{R_DBG+3}], s{S_T0} offen offset:4 sc1", f"L_js{tag}:")

    def wo_job_loads(self, rep):
        a = self.a
        if rep == 0:
            a(f"s_lshl_b32 s{S_OEX}, s{S_PG}, 2", f"s_add_u32 s{S_OEX}, s{S_OEX}, s{S_HG}", f"s_lshl_b32 s{S_OEX}, s{S_OEX}, 2", f"s_add_u32 s{S_OEX}, s{S_OEX}, s{S_I}")
        f = S_OEX
        AD, DT = 208, 216 + 8 * rep
        a(f"s_mul_i32 s16, s{f}, 7282", "s_lshr_b32 s16, s16, 16", "s_mul_i32 s17, s16, 9", f"s_sub_u32 s17, s{f}, s17",
          "s_mul_i32 s18, s16, 7282", "s_lshr_b32 s18, s18, 16", "s_mul_i32 s19, s18, 9", "s_sub_u32 s19, s16, s19",
          "s_and_b32 s20, s18, 1", "s_lshr_b32 s21, s18, 1")
        a("s_mul_i32 s22, s21, 288", "s_lshr_b32 s23, s17, 1", "s_lshl_b32 s23, s23, 6", "s_add_u32 s22, s22, s23", "s_and_b32 s23, s17, 1", "s_lshl_b32 s23, s23, 3",
          "s_add_u32 s22, s22, s23", "s_cmp_eq_u32 s17, 8", "s_cselect_b32 s23, 3, 4",
          "v_bfe_u32 v200, v0, 2, 2", "v_lshlrev_b32 v200, s23, v200", "v_and_b32 v201, 3, v0", "v_lshl_add_u32 v200, v201, 1, v200", "v_add_u32 v200, s22, v200",
          f"s_mul_i32 s22, s20, {36*1152}", "s_cmp_eq_u32 s19, 8", f"s_cbranch_scc1 L_wok1_{rep}")
        cy = [(j & 3) + 8 * (j >> 2) for j in range(8)]
        a(f"s_mul_i32 s23, s19, {72*1152}", "s_add_u32 s22, s22, s23", "v_lshrrev_b32 v201, 5, v0", "v_bfe_u32 v202, v0, 4, 1",
          f"v_mul_u32_u24 v203, {4*1152}, v201", "v_add_u32 v203, v200, v203",
          f"v_mul_u32_u24 v204, {3*1152}, v201", f"v_sub_u32 v204, {16*1152}, v204", "v_mul_u32_u24 v204, v202, v204", f"v_add_u32 v{AD}, v203, v204")
        for j in range(1, 8):
            dj = 18 + cy[j-1] - cy[j]
            a(f"v_mul_u32_u24 v204, {dj*1152}, v202", f"v_add_u32 v204, {cy[j]*1152}, v204", f"v_add_u32 v{AD+j}, v203, v204")
        a(f"s_branch L_wold_{rep}", f"L_wok1_{rep}:", "v_lshrrev_b32 v201, 4, v0", f"v_mul_u32_u24 v201, {144*1152}, v201", "v_add_u32 v203, v200, v201")
        for j in range(8):
            hq, hh, e = j >> 2, (j >> 1) & 1, j & 1
            row = 72 * hq + 18 + ((16 + hh) if e else (11 + 4 * hh))
            a(f"v_add_u32 v{AD+j}, {row*1152}, v203")
        a(f"L_wold_{rep}:")
        for j in range(8):
            a(f"buffer_load_ushort v{DT+j}, v{AD+j}, s[{R_WO}:{R_WO+3}], s22 offen")

    def wo_job_finish(self, rep):
        a = self.a
        DT = 216 + 8 * rep
        a(f"s_lshl_b32 s22, s{S_OEX}, 10", f"s_add_u32 s22, s22, {WS_WOT}")
        for j in range(4):
            a(f"v_lshl_or_b32 v{232+4*rep+j}, v{DT+1+2*j}, 16, v{DT+2*j}")
        a(f"buffer_store_dwordx4 {vr(232+4*rep,4)}, v1, s[{R_WS}:{R_WS+3}], s22 offen sc1")

    def poison(self):
        a = self.a
        a([f"v_mov_b32 v{176+j}, -1" for j in range(4)])
        a(f"s_mul_i32 s24, s{S_PG}, {OEX_G}", f"s_mul_i32 s25, s{S_HQ}, {OEX_S}", "s_add_u32 s24, s24, s25", f"s_add_u32 s24, s24, {WS_OEX}",
          f"s_lshl_b32 s25, s{S_HG}, 13", f"s_lshl_b32 s26, s{S_PBI}, 12", "s_add_u32 s25, s25, s26", "s_add_u32 s25, s25, s24",
          f"s_lshl_b32 s26, s{S_HG}, 6", "s_add_u32 s26, s26, s24", "s_add_u32 s26, s26, 32768",
          "v_lshrrev_b32 v180, 2, v0", "v_lshlrev_b32 v180, 8, v180", "v_and_b32 v181, 3, v0", "v_lshl_add_u32 v180, v181, 4, v180")
        for k in range(4):
            a(f"buffer_store_dwordx4 v[176:179], v1, s[{R_WS}:{R_WS+3}], s25 offen offset:{k*1024} sc0 sc1")
        a(f"buffer_store_dwordx4 v[176:179], v180, s[{R_WS}:{R_WS+3}], s26 offen sc0 sc1")

    def coop_load(self, n, tag):
        a = self.a
        B = 8
        a(f"s_lshl_b32 s{S_T0}, s{S_WAVE}, 10", f"v_add_u32 v6, s{S_T0}, v1", f"s_add_u32 s{S_T0}, s{S_T0}, s{S_OEXB}", f"s_add_u32 s{S_T0}, s{S_T0}, {OEX_S}")
        for k in range(1, n):
            a(f"s_add_u32 s{16+k}, s{S_T0}, {8192*k}")
        a(f"s_mov_b32 s{S_CNT}, {SPIN}")
        a("s_barrier")
        self.stamp(1, 4)
        if tag == 'l':
            self.stamp(1, 1)
        a.label(f"L_cl{tag}")
        for k in range(n):
            a(f"buffer_load_dwordx4 {vr(B+4*k,4)}, v1, s[{R_WS}:{R_WS+3}], s{16+k if k else S_T0} offen sc0 sc1")
        a(f"s_sub_u32 s{S_CNT}, s{S_CNT}, 1", f"s_cbranch_scc1 L_cld{tag}")
        for k in range(n):
            r = B + 4 * k
            a(f"s_waitcnt vmcnt({n-1-k})")
            if k == 0:
                self.stamp(3, 4)
            if k == 0:
                a(f"v_max3_u32 v7, v{r}, v{r+1}, v{r+2}", f"v_max_u32 v7, v7, v{r+3}")
            else:
                a(f"v_max3_u32 v7, v7, v{r}, v{r+1}", f"v_max3_u32 v7, v7, v{r+2}, v{r+3}")
        a("v_cmp_eq_u32 vcc, -1, v7", f"s_cbranch_vccnz L_cl{tag}", f"L_cld{tag}:", "s_waitcnt vmcnt(0)")
        self.stamp(2, 4)
        if self.o['stamps'] and self.o['set'] == 4:
            a(f"s_mov_b32 s{S_ST+12}, s{S_CNT}")
        if tag == 'l':
            self.stamp(2, 1)
        for k in range(n):
            a(f"ds_write_b128 v6, {vr(B+4*k,4)} offset:{L_KV + 8192*k}")
        a("s_waitcnt lgkmcnt(0)", "s_barrier")
        self.stamp(4, 4)
        if tag == 'l':
            self.stamp(3, 1)

    def attention(self):
        a, o = self.a, self.o
        UNP = o['unp']
        a.label("L_attn")
        a(f"v_mul_f32 v7, v6, v{QR+1}", f"v_mov_b32 v6, {hex(f2u(-1.0 if o['force_fb'] else TSAFE))}",
          "v_cmp_nle_f32 vcc, v7, v6", "v_sub_f32 v7, 0, v7", f"v_cvt_pk_bf16_f32 v{QR+1}, v7, 0", "s_cbranch_vccnz L_fallback", "L_fbdone:")
        q = self.qk(S[0], 0)
        f1 = [f"s_mul_i32 s{S_OEXB}, s{S_PG}, {OEX_G}", f"s_add_u32 s{S_OEXB}, s{S_OEXB}, {WS_OEX}", f"s_mul_i32 s{S_T0}, s{S_STG}, {OEX_S}", f"s_add_u32 s{S_T0}, s{S_T0}, s{S_OEXB}",
              f"s_lshl_b32 s{S_T1}, s{S_PBI}, 11", f"s_add_u32 s{S_T0}, s{S_T0}, s{S_T1}",
              f"s_lshl_b32 s{S_T1}, s{S_HG}, 13", f"s_lshl_b32 s{S_T2}, s{S_HQ}, 12", f"s_add_u32 s{S_T1}, s{S_T1}, s{S_T2}", f"s_add_u32 s{S_OA}, s{S_T1}, s{S_T0}",
              f"s_lshl_b32 s{S_T2}, s{S_HG}, 6", f"s_lshl_b32 s{S_T3}, s{S_HQ}, 9", f"s_add_u32 s{S_T2}, s{S_T2}, s{S_T3}", f"s_add_u32 s{S_T2}, s{S_T2}, s{S_T0}",
              f"s_add_u32 s{S_OB}, s{S_T2}, 32768", f"v_mov_b32 v{V_JN}, {L_FLAG+4}", f"s_mov_b32 s{S_CNT}, {32//UNP}", "s_nop 0"]
        f2 = ["v_bfe_u32 v6, v0, 4, 1", "v_lshlrev_b32 v6, 10, v6", "v_lshrrev_b32 v7, 5, v0", "v_and_b32 v22, 15, v0",
              f"v_lshl_add_u32 v{V_OA}, v7, 9, v6", f"v_lshl_add_u32 v{V_OA}, v22, 4, v{V_OA}", f"v_lshl_add_u32 v{V_OB}, v7, 8, v6", f"v_lshl_add_u32 v{V_OB}, v22, 2, v{V_OB}", "s_nop 2"]
        a("s_nop 0", q[0], f1, q[1], q[2], f2)
        self.stamp(6)
        body = []
        for kb in range(2 * UNP):
            cur, nxt = S[kb % 2], S[(kb + 1) % 2]
            q = self.qk(nxt, kb + 1)
            e = EX(cur, 32)
            sm3p = SM(O[1], VV[(kb - 1) % 2][1], nxt + 24)
            sm = [SM(O[0], VV[kb % 2][0], cur), SM(O[0], VV[kb % 2][1], cur + 8), SM(O[1], VV[kb % 2][0], cur + 16)]
            cl = self.ldKm(kb + 2) + (self.ldKr((kb + 3) // 2) if kb % 2 == 1 else []) + self.ldV(kb + 1)
            body += e[0:2] + [sm3p] + e[2:5] + [q[0]] + e[5:13] + ["s_waitcnt lgkmcnt(0)", sm[0]] + e[13:18] + [sm[1]] + e[18:21] + [q[1]] + e[21:24] + [q[2]] + cl + e[24:27] + [sm[2]] + e[27:32]
        body += [f"v_add_u32 v{V_AK}, {UNP*PB}, v{V_AK}", f"v_add_u32 v{V_AR}, {UNP*PB}, v{V_AR}", f"v_add_u32 v{V_AV}, {UNP*PB}, v{V_AV}"]
        self.loop_body = body
        a(".p2align 6", "L_main:", body, f"s_sub_u32 s{S_CNT}, s{S_CNT}, 1", f"s_cmp_lg_u32 s{S_CNT}, s{S_BAR}", "s_cbranch_scc1 L_nob7", "s_barrier", "L_nob7:",
          f"s_cmp_lg_u32 s{S_CNT}, 0", "s_cbranch_scc1 L_main")
        a(f"ds_read_b32 v23, v{V_JN}", SM(O[1], VV[1][1], S[1] + 24))
        self.stamp(7)
        vals = [O[0] + j for j in range(9)] + [O[1] + j for j in range(9)]
        a(f"v_rcp_f32 v10, v{O[0]+9}", f"s_mov_b32 s{S_CNT}, {SPIN}")
        for r in vals[:9]:
            a(f"v_mul_f32 v{r}, v{r}, v10")
        for j in range(4):
            a(f"v_cvt_pk_bf16_f32 v{12+j}, v{vals[2*j]}, v{vals[2*j+1]}")
        a(f"v_rcp_f32 v11, v{O[1]+9}")
        a("L_pchk:", "s_waitcnt lgkmcnt(0)", "v_cmp_gt_u32 vcc, 4, v23", "s_cbranch_vccz L_pok",
          f"ds_read_b32 v23, v{V_JN}", f"s_sub_u32 s{S_CNT}, s{S_CNT}, 1", "s_cbranch_scc0 L_pchk", "L_pok:")
        a(f"s_cmp_eq_u32 s{S_SAME}, 1", "s_cbranch_scc1 L_pub1")
        for fl in (" sc0 sc1", ""):
            a(f"buffer_store_dwordx4 v[12:15], v{V_OA}, s[{R_WS}:{R_WS+3}], s{S_OA} offen{fl}")
            for r in vals[9:]:
                a(f"v_mul_f32 v{r}, v{r}, v11")
            for j in range(4, 9):
                a(f"v_cvt_pk_bf16_f32 v{12+j}, v{vals[2*j]}, v{vals[2*j+1]}")
                if j == 7:
                    a(f"buffer_store_dwordx4 v[16:19], v{V_OA}, s[{R_WS}:{R_WS+3}], s{S_OA} offen offset:256{fl}")
            a(f"buffer_store_dword v20, v{V_OB}, s[{R_WS}:{R_WS+3}], s{S_OB} offen{fl}")
            if fl:
                a(f"s_cmp_eq_u32 s{S_STG}, 0", "s_cbranch_scc1 L_oproj", "s_branch L_pub2", "L_pub1:")
        a("L_pub2:")
        self.coop_load(4, "l")
        self.dump_stamps()
        a("s_endpgm")

    def fallback(self):
        a, o = self.a, self.o
        a.label("L_fallback")
        a(f"s_cmp_eq_u32 s{S_STG}, 1", "s_cbranch_scc1 L_fb1", "s_barrier", f"s_mov_b32 s{S_BAR}, -1", "L_fb1:")
        a(f"v_mov_b32 v{QR+1}, 0", f"v_mov_b32 v144, v{V_AK}", f"v_mov_b32 v145, v{V_AR}", "v_mov_b32 v146, 0xff800000", "v_mov_b32 v147, 0xff800000",
          "v_mov_b32 v151, 0x3f803f80", f"s_mov_b32 s{S_CNT}, 32", "L_fbl:",
          "ds_read_b32 v150, v145", "ds_read_b128 v[152:155], v144", "ds_read_b128 v[156:159], v144 offset:1024",
          f"v_add_u32 v144, {PB}, v144", f"v_add_u32 v145, {PB}, v145", "s_waitcnt lgkmcnt(0)")
        for h in range(2):
            a(B2(160, 150, QR, h), "s_nop 15", "s_nop 1", K16(160, 152 + 4 * h, QM[0]), K16(176, 152 + 4 * h, QM[1]), "s_nop 11")
            for j in range(8):
                a(f"v_max3_f32 v146, v146, v{160+2*j}, v{161+2*j}", f"v_max3_f32 v147, v147, v{176+2*j}, v{177+2*j}")
        a(f"s_sub_u32 s{S_CNT}, s{S_CNT}, 1", f"s_cmp_lg_u32 s{S_CNT}, 0", "s_cbranch_scc1 L_fbl",
          "s_nop 0", "v_permlane32_swap_b32 v146, v147", "s_nop 1", "v_max_f32 v146, v146, v147", "v_sub_f32 v146, 0, v146",
          "v_cvt_pk_bf16_f32 v147, v146, 0", "v_lshlrev_b32 v148, 16, v147", "v_sub_f32 v148, v146, v148", f"v_cvt_pk_bf16_f32 v{QR+1}, v146, v148",
          "s_branch L_fbdone")

    def oproj(self):
        a, o = self.a, self.o
        a.label("L_oproj")
        if o['prio'] == 2:
            a("s_setprio 0")
        WF, ACC, OB = 148, 112, [8, 56]
        for tp in range(4):
            a(f"s_xor_b32 s{S_T0}, s{S_WAVE}, {tp}", f"s_lshl_b32 s{S_T0}, s{S_T0}, 10", f"v_add_u32 v{104+tp}, s{S_T0}, v1",
              f"v_lshlrev_b32 v{108+tp}, 2, v0", f"v_add_u32 v{108+tp}, s{S_T0}, v{108+tp}")
        a(f"s_mov_b32 s{S_CNT}, {SPIN}", f"s_lshl_b32 s{S_T0}, s{S_B}, 7", "v_mov_b32 v11, 0")
        self.stamp(1, 1)
        a("L_poll2:", f"buffer_load_dword v7, v11, s[{R_DBG}:{R_DBG+3}], s{S_T0} offen offset:4 sc0 sc1", f"s_sub_u32 s{S_CNT}, s{S_CNT}, 1",
          "s_cbranch_scc1 L_poll2d", "s_waitcnt vmcnt(0)", "v_cmp_gt_u32 vcc, 0x80, v7", "s_cbranch_vccz L_poll2d", "s_sleep 16", "s_branch L_poll2", "L_poll2d:")

        def wo_loads(stg):
            a(f"s_lshl_b32 s{S_T0}, s{S_HG}, 1", f"s_add_u32 s{S_T0}, s{S_T0}, {stg}", f"s_mul_i32 s{S_T0}, s{S_T0}, {81*1024}", f"s_add_u32 s{S_T0}, s{S_T0}, {WS_WOT}",
              f"s_lshl_b32 s{S_T1}, s{S_WAVE}, 11", f"s_add_u32 s{S_T1}, s{S_T1}, s{S_T0}", f"s_add_u32 s{S_T0}, s{S_T0}, 8192")
            for ks in range(9):
                a(f"buffer_load_dwordx4 {vr(WF+12*ks,4)}, v1, s[{R_WS}:{R_WS+3}], s{S_T1} offen sc1",
                  f"buffer_load_dwordx4 {vr(WF+12*ks+4,4)}, v1, s[{R_WS}:{R_WS+3}], s{S_T1} offen offset:1024 sc1",
                  f"buffer_load_dwordx4 {vr(WF+12*ks+8,4)}, v1, s[{R_WS}:{R_WS+3}], s{S_T0} offen sc1")
                if ks < 8:
                    a(f"s_add_u32 s{S_T1}, s{S_T1}, 9216", f"s_add_u32 s{S_T0}, s{S_T0}, 9216")

        def mms(ks, ob, first):
            w = WF + 12 * ks
            x = []
            for tp in range(4):
                c = "0" if first else None
                x.append([M16(ACC + 4 * tp, w, ob + 4 * tp, c), M16(ACC + 16 + 4 * tp, w + 4, ob + 4 * tp, c)] + ([M16(ACC + 32, w + 8, ob, c)] if tp == 0 else []))
            return x

        def loads(bt):
            buf = OB[bt % 2]
            x = []
            for k in range(3):
                ks = 3 * bt + k
                x.append(f"s_add_u32 s{S_T0}, s{S_OEXB}, {ks*4096}")
                for tp in range(4):
                    r = buf + 16 * k + 4 * tp
                    if ks < 8:
                        x.append(f"buffer_load_dwordx4 {vr(r,4)}, v{104+tp}, s[{R_WS}:{R_WS+3}], s{S_T0} offen sc0 sc1")
                    else:
                        x += [f"buffer_load_dword v{r+j}, v{108+tp}, s[{R_WS}:{R_WS+3}], s{S_T0} offen offset:{j*256} sc0 sc1" for j in range(4)]
            return x
        wo_loads(0)
        a("v_lshlrev_b32 v6, 6, v0", f"s_add_u32 s{S_T0}, s{S_OEXB}, 32768", f"s_mov_b32 s{S_CNT}, {SPIN}",
          "L_pre:", f"buffer_load_dword v7, v6, s[{R_WS}:{R_WS+3}], s{S_T0} offen sc0 sc1", f"s_sub_u32 s{S_CNT}, s{S_CNT}, 1",
          "s_cbranch_scc1 L_pred", "s_waitcnt vmcnt(0)", "v_cmp_eq_u32 vcc, -1, v7", "s_cbranch_vccz L_pred", "s_sleep 8", "s_branch L_pre", "L_pred:")
        self.stamp(2, 1)
        a(loads(0), loads(1))
        for bt in range(3):
            buf = OB[bt % 2]
            a(f"s_waitcnt vmcnt({ {0: 12, 1: 24, 2: 0}[bt] })", f"L_chk{bt}:", f"v_max3_u32 v6, v{buf}, v{buf+1}, v{buf+2}", f"v_max3_u32 v7, v{buf+3}, v{buf+4}, v{buf+5}")
            for j in range(6, 48, 4):
                if j + 3 < 48:
                    a(f"v_max3_u32 v6, v6, v{buf+j}, v{buf+j+1}", f"v_max3_u32 v7, v7, v{buf+j+2}, v{buf+j+3}")
                else:
                    a(f"v_max3_u32 v6, v6, v{buf+j}, v{buf+j+1}")
            a("v_max_u32 v6, v6, v7", "v_cmp_eq_u32 vcc, -1, v6", f"s_cbranch_vccz L_ok{bt}",
              f"s_sub_u32 s{S_CNT}, s{S_CNT}, 1", f"s_cbranch_scc1 L_ok{bt}", "s_waitcnt vmcnt(0)", loads(bt), "s_waitcnt vmcnt(0)", f"s_branch L_chk{bt}", f"L_ok{bt}:")
            for k in range(3):
                a(mms(3 * bt + k, buf + 16 * k, bt == 0 and k == 0))
            if bt == 0:
                a(loads(2))
        self.stamp(3, 1)
        wo_loads(1)
        for tp in range(4):
            a(f"v_add_u32 v{104+tp}, {L_KV}, v{104+tp}", f"v_add_u32 v{108+tp}, {L_KV+32768}, v{108+tp}")
        OUTF = ['', ' sc1', ' sc0 sc1', ' nt'][o['outf']]
        a(f"s_mul_i32 s{S_T0}, s{S_PG}, {64*2304}", f"s_mul_i32 s{S_T1}, s{S_B}, 1152", f"s_add_u32 s{S_T0}, s{S_T0}, s{S_T1}", f"s_mul_i32 s{S_T1}, s{S_HG}, 288",
          f"s_add_u32 s{S_T0}, s{S_T0}, s{S_T1}", f"s_lshl_b32 s{S_T1}, s{S_WAVE}, 6", f"s_add_u32 s{S_T1}, s{S_T1}, s{S_T0}",
          "v_and_b32 v100, 15, v0", "v_mul_u32_u24 v100, 0x900, v100", "v_lshrrev_b32 v102, 4, v0", "v_lshl_add_u32 v101, v102, 3, v100", "v_lshl_add_u32 v100, v102, 4, v100")
        for tp in range(4):
            a(f"s_xor_b32 s{S_T2}, s{S_WAVE}, {tp}", f"s_mul_i32 s{S_T2}, s{S_T2}, {16*2304}", f"s_add_u32 s{30+tp}, s{S_T2}, s{S_T1}")
            if tp == 0:
                a(f"s_add_u32 s34, s{S_T2}, s{S_T0}")
        a("s_waitcnt vmcnt(0)")
        self.stamp(6, 1)
        self.coop_load(5, "e")
        self.stamp(4, 1 if o['set'] == 1 else 0)
        NBUF = 8
        seq = [(tp, ks) for tp in (1, 2, 3, 0) for ks in range(9)]

        def lrd(n):
            tp, ks = seq[n]
            r = 8 + 4 * (n % NBUF)
            if ks < 8:
                return [f"ds_read_b128 {vr(r,4)}, v{104+tp} offset:{ks*4096}"]
            return [f"ds_read2st64_b32 {vr(r,2)}, v{108+tp} offset0:0 offset1:1", f"ds_read2st64_b32 {vr(r+2,2)}, v{108+tp} offset0:2 offset1:3"]

        def outp(tp):
            r = 56 + 4 * tp
            x = [f"v_cvt_pk_bf16_f32 v{r}, v{ACC+4*tp}, v{ACC+4*tp+1}", f"v_cvt_pk_bf16_f32 v{r+1}, v{ACC+4*tp+2}, v{ACC+4*tp+3}",
                 f"v_cvt_pk_bf16_f32 v{r+2}, v{ACC+16+4*tp}, v{ACC+16+4*tp+1}", f"v_cvt_pk_bf16_f32 v{r+3}, v{ACC+16+4*tp+2}, v{ACC+16+4*tp+3}",
                 f"buffer_store_dwordx4 {vr(r,4)}, v100, s[{R_OUT}:{R_OUT+3}], s{30+tp} offen{OUTF}"]
            if tp == 0:
                x += [f"v_cvt_pk_bf16_f32 v72, v{ACC+32}, v{ACC+33}", f"v_cvt_pk_bf16_f32 v73, v{ACC+34}, v{ACC+35}",
                      f"buffer_store_dwordx2 v[72:73], v101, s[{R_OUT}:{R_OUT+3}], s34 offen offset:256{OUTF}"]
            return x
        PF = NBUF - 1
        pend = []
        for n in range(PF):
            a(lrd(n))
            pend.append(len(lrd(n)))
        for n, (tp, ks) in enumerate(seq):
            pend.pop(0)
            ob = 8 + 4 * (n % NBUF)
            w = WF + 12 * ks
            a(f"s_waitcnt lgkmcnt({sum(pend)})", M16(ACC + 4 * tp, w, ob), M16(ACC + 16 + 4 * tp, w + 4, ob))
            if tp == 0:
                a(M16(ACC + 32, w + 8, ob))
            if n + PF < len(seq):
                a(lrd(n + PF))
                pend.append(len(lrd(n + PF)))
            if ks == 2 and n > 9:
                a(outp(seq[n - 9][0]))
        a("s_nop 5", outp(0))
        if o['stamps'] or o['dbgspan'] or o['ampk']:
            a("s_waitcnt vmcnt(0)")
            self.stamp(5, o['set'] if o['set'] in (1, 4) else 0)
        if o['ampk']:
            a("s_waitcnt lgkmcnt(0)", f"s_sub_u32 s{S_T0}, s{S_ST+2*o['ampb']}, s{S_ST+2*o['ampa']}")
            if o['avg']:
                a(f"s_cmp_lg_u32 s{S_WAVE}, 0", "s_cbranch_scc1 L_end", "s_mov_b64 exec, 1", "v_mov_b32 v8, 0", f"v_mov_b32 v9, s{S_T0}", "v_mov_b32 v10, 1",
                  f"buffer_atomic_add v9, v8, s[{R_DBG}:{R_DBG+3}], 0 offen offset:16 sc1", "s_waitcnt vmcnt(0)",
                  f"buffer_atomic_add v10, v8, s[{R_DBG}:{R_DBG+3}], 0 offen offset:144 sc0 sc1", "s_waitcnt vmcnt(0)", "v_cmp_eq_u32 vcc, 0xff, v10", "s_cbranch_vccz L_end",
                  f"buffer_load_dword v9, v8, s[{R_DBG}:{R_DBG+3}], 0 offen offset:16 sc0 sc1", "s_waitcnt vmcnt(0)", f"v_readfirstlane_b32 s{S_T0}, v9", "s_nop 3", f"s_mul_i32 s{S_T0}, s{S_T0}, {o['ampk']}", f"s_lshr_b32 s{S_T0}, s{S_T0}, 8")
            else:
                a(f"s_mul_i32 s{S_T0}, s{S_T0}, {o['ampk']}" if o['ampk'] > 0 else f"s_lshr_b32 s{S_T0}, s{S_T0}, {-o['ampk']}")
            a("s_memrealtime s[18:19]", f"s_min_u32 s{S_T0}, s{S_T0}, 100000",
              "L_amp:", "s_memrealtime s[16:17]", "s_waitcnt lgkmcnt(0)", "s_sub_u32 s16, s16, s18", f"s_cmp_lt_u32 s16, s{S_T0}", "s_cbranch_scc1 L_amp")
        self.dump_stamps()
        a("L_end:", "s_endpgm")

    def build(self):
        self.start()
        self.early_front()
        self.late_front()
        self.attention()
        self.oproj()
        self.fallback()
        hdr = ("; fused MQA attention x2 (QKV proj + softmax attention + out proj), one launch, 1 workgroup per CU\n"
               f"; @launch grid=(256,1,1) block=(512,1,1) lds={LDS_BYTES}\n"
               '.amdgcn_target "amdgcn-amd-amdhsa--gfx950"\n.text\n'
               f".globl {NAME}\n.p2align 8\n.type {NAME},@function\n{NAME}:\n")
        if self.o['of'] & 1:
            self.a.L = [x.replace(" sc0 sc1", " sc1") if "buffer_store" in x and f"s[{R_WS}:" in x else x for x in self.a.L]
        if self.o['of'] & 2:
            self.a.L = [x.replace(" sc0 sc1", " sc1") if "buffer_load" in x and f"s[{R_WS}:" in x else x for x in self.a.L]
        body = "".join((x + "\n") if x.endswith(":") else ("    " + x + "\n") for x in self.a.L)
        t = table()
        tab = ".p2align 6\n.type L_table,@object\nL_table:\n" + "".join("    .long " + ", ".join(str(int(v)) for v in row) + "\n" for row in t)
        tab += f".fill (1024 - ((. - {NAME}) & 1023)) & 1023, 1, 0\nL_codeend:\n.size L_table, L_codeend-L_table\n"
        kd = f""".section .rodata,"a"
.p2align 6
.amdhsa_kernel {NAME}
  .amdhsa_next_free_vgpr 256
  .amdhsa_next_free_sgpr 102
  .amdhsa_accum_offset 256
  .amdhsa_group_segment_fixed_size 0
  .amdhsa_kernarg_size 104
  .amdhsa_user_sgpr_count 2
  .amdhsa_user_sgpr_kernarg_segment_ptr 1
  .amdhsa_system_sgpr_workgroup_id_x 1
.end_amdhsa_kernel
"""
        return hdr + body + tab + kd


if __name__ == "__main__":
    out = sys.argv[1]
    opt = {}
    for kv in sys.argv[2:]:
        k, v = kv.split("=")
        opt[k] = int(v)
    g = Gen(opt)
    open(out, "w").write(g.build())
```

```python
import sys, math, struct
import numpy as np

NAME = "concat_heads__grouped_kv_mqa__grouped_kv_mqa__prompt_kernel"

VG = 608
PB = 2048 + 256 + 4 * VG
KVB = 32 * PB
L_KV = 12288
L_HAND = 0
L_KMAX = 10240
L_FLAG = 10256
L_W = 62464
L_X = 90112
SLOT = 4608
LDS_BYTES = 163840
WS_KV = 0
WS_KN = KVB
WS_XID = WS_KN + 1024
WS_CNT = 0x26000
WS_WOT = 0x28000
WS_OEX = 0xD0000
WS_BR = 0x400000
WS_STAMP = 0x1000000
OEX_G = 73728
OEX_S = 36864
CSCALE = math.log2(math.e) / math.sqrt(18.0)
TSAFE = 40.0
SPIN = 200000


def f2u(x):
    return struct.unpack("<I", struct.pack("<f", x))[0]


def dslot(d):
    if d < 6:
        return d * 2 * SLOT
    if d < 17:
        return L_W + (d - 6) * 2 * SLOT
    return 4 * 2 * SLOT


def slot_addr(ks):
    return dslot(ks >> 1) + (ks & 1) * SLOT


G0 = [0, 1, 2, 3, 12, 13, 14, 15, 20]
G1 = [4, 5, 6, 7, 8, 9, 10, 11, 16]
POS_ONES, POS_ZERO = 22, 23


def vpos(h, row):
    if row in G0:
        return [list(range(0, 9)), [18, 19, 20, 21, 24, 25, 26, 27, 28]][h][G0.index(row)]
    if row in G1:
        return [list(range(9, 18)), list(range(29, 38))][h][G1.index(row)]
    if row in (17, 21):
        return POS_ONES
    return POS_ZERO


def table():
    t = np.zeros((64, 4), dtype=np.uint32)
    for l in range(64):
        t[l, 0] = L_KV + 2304 + vpos(l >> 5, l & 31) * 16
        n, g = l & 15, l >> 4
        t[l, 1] = vpos(g >> 1, n) * 16 + (g & 1) * 8
        p = {0: vpos(g >> 1, 16), 1: vpos(g >> 1, 20), 2: POS_ONES, 3: POS_ZERO}.get(n, POS_ZERO)
        t[l, 2] = p * 16 + (g & 1) * 8
    return t


def vr(a, n=1):
    return f"v[{a}:{a+n-1}]" if n > 1 else f"v{a}"


def sr(a, n=1):
    return f"s[{a}:{a+n-1}]" if n > 1 else f"s{a}"


S_WAVE = 3
R_X, R_WQ, R_W, R_WO, R_WS, R_OUT, R_DBG = 44, 48, 52, 56, 60, 64, 68
S_B, S_HG, S_GI, S_PG, S_I = 4, 5, 6, 7, 8
S_T0, S_T1, S_T2, S_T3, S_T4, S_T5 = 9, 10, 11, 12, 13, 14
S_CNT = 15
S_M0A, S_M0R, S_ROW = 72, 73, 74
S_BAR = 75
S_PBI, S_HQ = 76, 77
S_EX = 42
S_KVS = 80
S_OEX = 81
S_STG = 82
S_OEXB = 78
S_SAME, S_OA, S_OB = 26, 27, 28
V_OA, V_OB, V_JN = 144, 145, 146
S_XI, S_XB, S_XS, S_XM = 83, 100, 101, 79
S_DI, S_DS, S_LI, S_LS = 72, 73, 74, 75
S_ST = 84

V_IDX, V_AK, V_AR, V_AV = 2, 3, 4, 5
QM = [8, 12]
QR = 16
KR = [18, 20]
O = [24, 40]
KM = [56, 60]
VV = [[64, 68], [72, 76]]
S = [80, 112]


class A:
    def __init__(self):
        self.L = []

    def __call__(self, *xs):
        for x in xs:
            if isinstance(x, (list, tuple)):
                self(*x)
            else:
                self.L.append(x)

    def label(self, n):
        self.L.append(n + ":")


def K16(d, a, b, c=None):
    return f"v_mfma_f32_32x32x16_bf16 {vr(d,16)}, {vr(a,4)}, {vr(b,4)}, {c if c else vr(d,16)}"


def M16(d, a, b, c=None):
    return f"v_mfma_f32_16x16x32_bf16 {vr(d,4)}, {vr(a,4)}, {vr(b,4)}, {c if c else vr(d,4)}"


def B2(d, a, b, abid):
    return f"v_mfma_f32_32x32x4_2b_bf16 {vr(d,32)}, {vr(a,2)}, {vr(b,2)}, 0 cbsz:1 abid:{abid}"


def K8Z(d, z):
    return f"v_mfma_f32_32x32x8_bf16 {vr(d,16)}, {vr(z,2)}, {vr(z,2)}, 0"


def SM(d, a, b):
    return f"v_smfmac_f32_32x32x32_bf16 {vr(d,16)}, {vr(a,4)}, {vr(b,8)}, v{V_IDX}"


def EX(r, n):
    return [f"v_exp_f32 v{r+i}, v{r+i}" for i in range(n)]


def srd(a, dst, lo, hi, size):
    a(f"s_mov_b32 s{dst}, {lo}", f"s_mov_b32 s{dst+1}, {hi}", f"s_mov_b32 s{dst+2}, {size}", f"s_mov_b32 s{dst+3}, 0x20000")


class Gen:
    def __init__(self, opt):
        self.o = dict(unp=4, barit=1, stamps=False, force_fb=False, prefetch=True, prio=True, dbgspan=0, dly=0, d0l=1, pre=1, xe=0, sigb2=1, tre=1, badv0=0, shard=1, nslow=64, spf=0, avg=0, xcc=1, xp=0, outf=0, of=0, ampa=0, ampb=0, ampk=0, set=0, nb=5, kv1=6, pd=2, win=5, t1=7, t2=9, sb=11)
        self.o.update(opt)
        self.a = A()
        self.nst = 0

    def stamp(self, i, st=0):
        if i not in (0, 7) and st != self.o['set']:
            return
        if self.o['stamps'] or self.o['dbgspan'] or self.o['ampk']:
            cyc = self.o['stamps'] == 2 or self.o['ampk'] < 0
            self.a(f"{'s_memtime' if cyc else 's_memrealtime'} s[{S_ST+2*i}:{S_ST+2*i+1}]")

    def dump_stamps(self):
        if self.o['dbgspan']:
            a = self.a
            n = self.nst = self.nst + 1
            a("s_waitcnt lgkmcnt(0)", f"s_cmp_lg_u32 s{S_I}, 0", f"s_cbranch_scc1 L_nodump{n}", "s_mov_b64 exec, 1", "v_mov_b32 v8, 0", f"s_not_b32 s{S_T0}, s{S_ST}", f"v_mov_b32 v9, s{S_T0}",
              f"buffer_atomic_umax v9, v8, s[{R_DBG}:{R_DBG+3}], 0 offen offset:8 sc1")
            for k, i in enumerate((0, 1, 3, 6, 7, 5) if n == 2 else (1, 2, 4, 5, 6, 7)):
                a(f"v_mov_b32 v{10+k}, s{S_ST+2*i}", f"buffer_atomic_umax v{10+k}, v8, s[{R_DBG}:{R_DBG+3}], 0 offen offset:{(12 if n == 2 else 36)+4*k} sc1")
            a(f"L_nodump{n}:")
            return
        if not self.o['stamps']:
            return
        a = self.a
        a("s_waitcnt lgkmcnt(0)", f"s_lshl_b32 s{S_T0}, s2, 3", f"s_add_u32 s{S_T0}, s{S_T0}, s{S_WAVE}", f"s_lshl_b32 s{S_T0}, s{S_T0}, 6",
          f"s_mul_i32 s{S_T1}, s{S_B}, {WS_BR}", f"s_sub_u32 s{S_T0}, s{S_T0}, s{S_T1}", f"s_add_u32 s{S_T0}, s{S_T0}, {WS_STAMP}",
          f"s_mov_b32 s{R_WS+2}, 0x2000000", "v_mov_b32 v8, 0")
        for i in range(4):
            for k in range(4):
                a(f"v_mov_b32 v{12+k}, s{S_ST+4*i+k}")
            a(f"buffer_store_dwordx4 v[12:15], v8, s[{R_WS}:{R_WS+3}], s{S_T0} offen offset:{16*i}", "s_nop 1")

    def kv_dma(self, p0, n):
        a = self.a
        for k in range(n):
            a(f"s_add_u32 m0, s{S_M0A}, {L_KV + (p0 + 4*k)*1024}", f"s_add_u32 s{S_T0}, s{S_KVS}, 4096",
              f"buffer_load_dwordx4 v1, s[{R_WS}:{R_WS+3}], s{S_KVS} offen sc1 lds",
              f"s_cmp_ge_u32 s{S_T0}, {KVB}", f"s_cselect_b32 s{S_T1}, {KVB}, 0", f"s_sub_u32 s{S_KVS}, s{S_T0}, s{S_T1}")

    def row_max16(self, v):
        a = self.a
        for k in (8, 4, 2, 1):
            a("s_nop 1", f"v_max_f32_dpp v{v}, v{v}, v{v} row_ror:{k} row_mask:0xf bank_mask:0xf")

    def rest_srds(self):
        a = self.a
        a(f"s_mov_b32 s{R_WO+2}, 663552", f"s_mov_b32 s{R_WO+3}, 0x20000",
          f"s_mul_i32 s{S_T0}, s{S_B}, {WS_BR}", f"s_add_u32 s{R_WS}, s40, s{S_T0}", f"s_addc_u32 s{R_WS+1}, s41, 0",
          f"s_mov_b32 s{R_WS+2}, {WS_OEX + 32*OEX_G}", f"s_mov_b32 s{R_WS+3}, 0x20000")
        srd(a, R_OUT, "s36", "s37", 4718592)
        srd(a, R_DBG, "s38", "s39", 256)

    def norm2(self, x, y):
        a = self.a
        for j in range(4):
            for (qm, qr, dst, tmp) in (x, y):
                a(f"v_dot2_f32_bf16 v{dst}, v{qm+j}, v{qm+j}, {'0' if j == 0 else 'v%d' % dst}",
                  f"v_dot2_f32_bf16 v{tmp}, v{qm+4+j}, v{qm+4+j}, {'0' if j == 0 else 'v%d' % tmp}")
        a("s_nop 0", f"v_permlane32_swap_b32 v{x[2]}, v{x[3]}", "s_nop 0", f"v_permlane32_swap_b32 v{y[2]}, v{y[3]}",
          f"v_add_f32 v{x[2]}, v{x[2]}, v{x[3]}", f"v_add_f32 v{y[2]}, v{y[2]}, v{y[3]}",
          f"v_dot2_f32_bf16 v{x[2]}, v{x[1]}, v{x[1]}, v{x[2]}", f"v_dot2_f32_bf16 v{y[2]}, v{y[1]}, v{y[1]}, v{y[2]}", "s_nop 1",
          f"v_sqrt_f32 v{x[2]}, v{x[2]}", f"v_sqrt_f32 v{y[2]}, v{y[2]}")

    def init_main_regs(self):
        a = self.a
        a(f"v_mov_b32 v{KR[0]+1}, 0x3f803f80", f"v_mov_b32 v{KR[1]+1}, 0x3f803f80")
        for r in range(O[0], O[0] + 32):
            a(f"v_mov_b32 v{r}, 0")
        for r in range(S[1] + 24, S[1] + 32):
            a(f"v_mov_b32 v{r}, 0")
        for r in range(VV[1][1], VV[1][1] + 4):
            a(f"v_mov_b32 v{r}, 0")

    def ldKm(self, kb):
        return [f"ds_read_b128 {vr(KM[kb%2],4)}, v{V_AK} offset:{(kb//2)*PB+(kb%2)*1024}"]

    def ldKr(self, p):
        return [f"ds_read_b32 v{KR[p%2]}, v{V_AR} offset:{p*PB}"]

    def ldV(self, kb):
        return [f"ds_read_b128 {vr(VV[kb%2][i],4)}, v{V_AV} offset:{(kb//2)*PB+((kb%2)*2+i)*VG}" for i in range(2)]

    def qk(self, dst, kb):
        return [B2(dst, KR[(kb//2) % 2], QR, kb % 2), K16(dst, KM[kb % 2], QM[0]), K16(dst + 16, KM[kb % 2], QM[1])]

    def main_prologue_loads(self):
        self.a(self.ldKr(0), self.ldKm(0), self.ldKm(1), self.ldKr(1), self.ldV(0))

    def start(self):
        a, o = self.a, self.o
        a("s_cmp_ge_u32 s2, 256", "s_cbranch_scc1 L_end")
        a("s_load_dwordx16 s[16:31], s[0:1], 0", "s_load_dwordx8 s[32:39], s[0:1], 64", "s_load_dwordx2 s[40:41], s[0:1], 96")
        self.stamp(0)
        a("s_getpc_b64 s[42:43]", "L_pc:")
        a("v_lshrrev_b32 v1, 6, v0", "v_and_b32 v0, 63, v0", f"v_readfirstlane_b32 s{S_WAVE}, v1", "v_lshlrev_b32 v1, 4, v0",
          f"s_lshr_b32 s{S_T2}, s2, 3", f"s_and_b32 s{S_B}, s2, 1", f"s_and_b32 s{S_HG}, s{S_T2}, 3", f"s_lshr_b32 s{S_GI}, s2, 5")
        if o['prefetch']:
            a(f"s_cmp_lg_u32 s{S_WAVE}, 7", "s_cbranch_scc1 L_nopf", f"s_cmp_ge_u32 s{S_T2}, (L_codeend-{NAME})/1024", "s_cbranch_scc1 L_nopf",
              f"s_lshl_b32 s{S_T2}, s{S_T2}, 10", f"s_sub_u32 s{S_T0}, s42, L_pc-{NAME}", f"s_subb_u32 s{S_T1}, s43, 0",
              f"s_add_u32 s{S_T0}, s{S_T0}, s{S_T2}", f"s_addc_u32 s{S_T1}, s{S_T1}, 0",
              f"v_mov_b32 v7, s{S_T1}", f"v_add_co_u32 v6, vcc, s{S_T0}, v1", "s_nop 1", "v_addc_co_u32 v7, vcc, 0, v7, vcc", "s_nop 0",
              "global_load_dwordx4 v[24:27], v[6:7], off", "L_nopf:")
        a(f"s_bfe_u32 s{S_PG}, s2, 0x20001", f"s_lshl_b32 s{S_PG}, s{S_PG}, 3", f"s_add_u32 s{S_PG}, s{S_PG}, s{S_GI}",
          f"s_and_b32 s{S_I}, s{S_WAVE}, 3", f"s_and_b32 s{S_PBI}, s{S_WAVE}, 1", f"s_lshr_b32 s{S_HQ}, s{S_I}, 1")
        a("v_lshrrev_b32 v8, 3, v0", "v_lshrrev_b32 v9, 4, v0", f"s_lshl_b32 s{S_T0}, s{S_PBI}, 2", f"v_or_b32 v9, s{S_T0}, v9",
          "v_and_b32 v10, 7, v0", "v_xor_b32 v9, v9, v10", "v_lshlrev_b32 v9, 4, v9", "v_mov_b32 v10, 0x480", "v_mad_u32_u24 v8, v8, v10, v9",
          f"s_lshl_b32 s{S_T0}, s{S_I}, 6", f"v_add_u32 v9, s{S_T0}, v0", "v_mul_u32_u24 v10, 0xab, v9", "v_lshrrev_b32 v10, 9, v10", "v_mul_u32_u24 v10, 12, v10",
          "v_lshlrev_b32 v9, 4, v9", "v_sub_u32 v9, v9, v10")
        a(f"s_and_b32 s{S_T4}, s{S_HG}, 2", f"s_lshl_b32 s{S_T4}, s{S_T4}, 1", f"s_add_u32 s{S_T4}, s{S_T4}, s{S_I}",
          f"s_lshl_b32 s{S_T5}, s{S_PG}, 3", f"s_add_u32 s{S_XB}, s{S_T5}, s{S_T4}", f"s_mul_i32 s{S_XB}, s{S_XB}, {8*1152}",
          f"s_mul_i32 s{S_XM}, s{S_T4}, 9216", f"s_add_u32 s{S_XM}, s{S_XM}, {L_X}", f"s_lshl_b32 s{S_T0}, s{S_I}, 10", f"s_add_u32 s{S_T0}, s{S_T0}, {L_W}",
          f"s_lshr_b32 s{S_T1}, s{S_HG}, 1", f"s_movk_i32 s{S_DI}, 3072", f"s_movk_i32 s{S_DS}, 2304",
          f"s_cmp_lt_u32 s{S_WAVE}, 4", "s_cselect_b64 vcc, -1, 0", f"s_cselect_b32 s{S_XB}, s{S_XB}, 0", f"s_cselect_b32 s{S_XM}, s{S_XM}, s{S_T0}",
          f"s_cselect_b32 s{S_T1}, s{S_HG}, s{S_T1}", f"s_cselect_b32 s{S_DI}, 1024, s{S_DI}", f"s_cselect_b32 s{S_DS}, 128, s{S_DS}",
          "v_cndmask_b32 v9, v9, v8, vcc")
        self.dma9_setup(S_T1)
        a("s_waitcnt lgkmcnt(0)", f"s_cmp_eq_u32 s{S_B}, 0", f"s_cselect_b64 s[{R_X}:{R_X+1}], s[16:17], s[26:27]",
          f"s_cselect_b64 s[20:21], s[20:21], s[30:31]", f"s_cselect_b64 s[22:23], s[22:23], s[32:33]",
          f"s_cselect_b64 s[{R_WQ}:{R_WQ+1}], s[18:19], s[28:29]", f"s_cselect_b64 s[{R_WO}:{R_WO+1}], s[24:25], s[34:35]",
          f"s_bitcmp0_b32 s{S_HG}, 0", f"s_cselect_b64 s[{R_W}:{R_W+1}], s[20:21], s[22:23]", f"s_mov_b32 s{R_X+2}, 2359296", f"s_movk_i32 s{R_W+2}, 20736",
          f"s_cmp_lt_u32 s{S_WAVE}, 4", f"s_cselect_b64 s[{R_W}:{R_W+1}], s[{R_X}:{R_X+1}], s[{R_W}:{R_W+1}]", f"s_cselect_b32 s{R_W+2}, s{R_X+2}, s{R_W+2}",
          f"s_mov_b32 s{R_W+3}, 0x20000", f"s_mov_b32 s{R_X+3}, 0x20000")
        self.stamp(1, 2)
        a(f"s_cmp_lt_u32 s{S_WAVE}, 4", "s_cbranch_scc1 L_r1", "s_setprio 1", f"s_cmp_eq_u32 s{S_WAVE}, 7", "s_cbranch_scc1 L_late", "L_r1:")
        self.dma9(R_W, 9)
        a(f"s_cmp_ge_u32 s{S_WAVE}, 4", "s_cbranch_scc1 L_late")

    def wq_prefetch(self, n, first):
        a = self.a
        a(f"s_mov_b32 s{R_WQ+2}, 663552", f"s_mov_b32 s{R_WQ+3}, 0x20000", "v_lshlrev_b32 v30, 7, v0", f"s_lshr_b32 s{S_T0}, s2, 3", f"s_mul_i32 s{S_T0}, s{S_T0}, 20736")
        if first:
            a(f"s_mul_i32 s{S_T1}, s{first}, 6912", f"s_add_u32 s{S_T0}, s{S_T0}, s{S_T1}")
        a("s_mov_b32 exec_hi, 0x3fffff")
        for k in range(n):
            a(f"buffer_load_dword v{108+k}, v30, s[{R_WQ}:{R_WQ+3}], s{S_T0} offen", f"s_add_u32 s{S_T0}, s{S_T0}, 6912")
        a("s_mov_b32 exec_hi, -1")

    def dma9_setup(self, sel):
        self.a(f"s_bitcmp1_b32 s{sel}, 0", f"s_cselect_b32 s{S_XI}, 5, 0",
               f"s_add_u32 s{S_XS}, s{S_XI}, s{S_GI}", f"s_cmp_ge_u32 s{S_XS}, 9", f"s_cselect_b32 s{S_T0}, 9, 0", f"s_sub_u32 s{S_XS}, s{S_XS}, s{S_T0}",
               f"s_mul_i32 s{S_XS}, s{S_XS}, s{S_DS}", f"s_mul_i32 s{S_XI}, s{S_XI}, s{S_DI}", f"s_mul_i32 s{S_LI}, s{S_DI}, 9", f"s_mul_i32 s{S_LS}, s{S_DS}, 9")

    def dma9(self, srd_, v):
        for i in range(9):
            self.a(f"s_add_u32 m0, s{S_XM}, s{S_XI}", f"s_add_u32 s{S_T3}, s{S_XB}, s{S_XS}",
                   f"buffer_load_dwordx4 v{v}, s[{srd_}:{srd_+3}], s{S_T3} offen lds")
            if i < 8:
                self.a(f"s_add_u32 s{S_XS}, s{S_XS}, s{S_DS}", f"s_cmp_eq_u32 s{S_XS}, s{S_LS}", f"s_cselect_b32 s{S_XS}, 0, s{S_XS}",
                       f"s_add_u32 s{S_XI}, s{S_XI}, s{S_DI}", f"s_cmp_eq_u32 s{S_XI}, s{S_LI}", f"s_cselect_b32 s{S_XI}, 0, s{S_XI}")

    def table_load(self):
        self.a(f"s_add_u32 s{S_T0}, s42, L_table-L_pc", f"s_addc_u32 s{S_T1}, s43, 0",
               f"v_mov_b32 v7, s{S_T1}", f"v_add_co_u32 v6, vcc, s{S_T0}, v1", "s_nop 1", "v_addc_co_u32 v7, vcc, 0, v7, vcc", "s_nop 0",
               "global_load_dwordx4 v[20:23], v[6:7], off")

    def wq_setup(self, d, part=3):
        a = self.a
        if part & 1:
            a(f"s_mov_b32 s{R_WQ+2}, 663552", f"s_mov_b32 s{R_WQ+3}, 0x20000", f"s_lshl_b32 s{S_T0}, s{S_I}, 6", f"s_mul_i32 s{S_T1}, s{S_HG}, 288", "v_mov_b32 v16, 0x480")
        for t in range(3 if part & 1 else 0):
            a(f"v_add_u32 v13, s{S_T0}, v0", "v_mul_u32_u24 v14, 0xe39, v13", "v_lshrrev_b32 v14, 16, v14",
              "v_mul_u32_u24 v15, 18, v14", "v_sub_u32 v13, v13, v15", "v_lshlrev_b32 v13, 4, v13",
              "v_bfe_u32 v15, v14, 1, 2", "v_and_b32 v17, 1, v14", "v_lshl_add_u32 v15, v17, 2, v15", "v_and_b32 v14, 24, v14", "v_add_u32 v14, v14, v15",
              "v_mad_u32_u24 v13, v14, v16, v13", f"v_add_u32 v{10+t}, s{S_T1}, v13")
            if t < 2:
                a(f"s_add_u32 s{S_T0}, s{S_T0}, 192")
        if not part & 2:
            return
        a(f"s_lshl_b32 s{S_M0A}, s{S_I}, 10", f"s_mul_i32 s{S_ROW}, s{S_GI}, {64*1152}")
        if d:
            a(f"s_add_u32 s{S_ROW}, s{S_ROW}, {32*d*1152}", f"s_cmp_ge_u32 s{S_ROW}, {576*1152}",
              f"s_cselect_b32 s{S_T0}, {576*1152}, 0", f"s_sub_u32 s{S_ROW}, s{S_ROW}, s{S_T0}")

    def wq_list(self, d):
        n = self.nlab = getattr(self, 'nlab', 0) + 1
        s0 = dslot(d)
        ld = lambda r: f"buffer_load_dwordx4 v{r}, s[{R_WQ}:{R_WQ+3}], s{S_ROW} offen lds"
        return [f"s_cbranch_vccz L_wq{n}",
                f"s_add_u32 m0, s{S_M0A}, {s0}", f"s_add_u32 s{S_T0}, s{S_ROW}, {32*1152}", ld(10),
                f"s_add_u32 m0, s{S_M0A}, {s0+3072}", "s_nop 0", ld(11),
                f"s_add_u32 m0, s{S_M0A}, {s0+6144}", f"s_cmp_ge_u32 s{S_T0}, {576*1152}", ld(12),
                f"s_cselect_b32 s{S_T1}, {576*1152}, 0", f"s_sub_u32 s{S_ROW}, s{S_T0}, s{S_T1}", f"L_wq{n}:"]

    def wq_dma(self, d):
        self.a(self.wq_list(d))

    def loader_flag(self):
        self.a(f"s_cmp_lt_u32 s{S_I}, 3", "s_cselect_b64 vcc, -1, 0")

    GROUPS = [(3, 3), (5, 7), (7, 11), (9, 15), (11, 19), (13, 23), (15, 27), (17, 31)]

    def early_front(self):
        a, o = self.a, self.o
        self.stamp(2, 2)
        if o['spf'] == 5:
            a(f"s_cmp_lg_u32 s{S_WAVE}, 3", "s_cbranch_scc1 L_nospf", "s_waitcnt vmcnt(6)")
            self.wq_prefetch(3, None)
            a("L_nospf:")
        self.table_load()
        self.wq_setup(0)
        self.loader_flag()
        if not o['d0l']:
            self.wq_dma(0)
        self.rest_srds()
        a("v_and_b32 v16, 31, v0", "v_lshrrev_b32 v13, 5, v0", "v_bfe_u32 v14, v0, 1, 3", "v_xor_b32 v13, v13, v14", "v_lshlrev_b32 v13, 4, v13",
          "v_and_b32 v14, 7, v0", "v_lshl_add_u32 v13, v14, 7, v13", "v_lshrrev_b32 v16, 3, v16", "v_mul_u32_u24 v16, 0x2400, v16",
          f"s_mul_i32 s{S_T0}, s{S_PBI}, {4*9216}", f"s_add_u32 s{S_T0}, s{S_T0}, {L_X}", f"v_add3_u32 v104, v16, v13, s{S_T0}",
          "v_xor_b32 v105, 32, v104", "v_xor_b32 v106, 64, v104", "v_xor_b32 v107, 0x60, v104")
        a("v_bfe_u32 v18, v0, 2, 2", "v_lshrrev_b32 v15, 5, v0", "v_lshlrev_b32 v15, 2, v15", "v_add_u32 v15, v15, v18", "v_mul_u32_u24 v15, 0x240, v15",
          f"s_mul_i32 s{S_T0}, s{S_HQ}, 144", "v_and_b32 v13, 1, v0", "v_lshl_add_u32 v15, v13, 4, v15", f"v_add_u32 v15, s{S_T0}, v15",
          "v_bfe_u32 v13, v0, 1, 1", "v_bfe_u32 v14, v0, 4, 1", "v_lshl_add_u32 v6, v13, 3, v15", "v_lshl_add_u32 v6, v14, 5, v6",
          "v_mul_u32_u24 v13, 72, v13", "v_add3_u32 v7, v13, v15, 48")
        a(f"s_mul_i32 s{S_T0}, s{S_WAVE}, 2560", f"v_add_u32 v17, s{S_T0}, v1", "v_lshlrev_b32 v18, 3, v0", f"v_add_u32 v18, s{S_T0}, v18",
          f"v_mov_b32 v{V_IDX}, 0xdddddddd", f"v_add_u32 v{V_AK}, {L_KV}, v1", f"v_lshlrev_b32 v{V_AR}, 2, v0", f"v_add_u32 v{V_AR}, {L_KV+2048}, v{V_AR}",
          "v_mov_b32 v110, 0", "v_mov_b32 v111, 0", f"v_mov_b32 v19, {L_KMAX}")
        if o['d0l']:
            a("s_waitcnt vmcnt(1)")
        else:
            a(f"s_cmp_eq_u32 s{S_WAVE}, 3", "s_cbranch_scc0 L_e3", f"s_waitcnt vmcnt({4 if o['spf'] == 5 else 1})", "L_e3:", "s_waitcnt vmcnt(4)")
        self.stamp(3, 2)
        a("s_barrier")
        XF = 112
        xr = [f"ds_read_b128 {vr(XF+4*i,4)}, v{104+(i&3)} offset:{(i>>2)*1024}" for i in range(36)]
        if o['xe']:
            a(f"s_lshr_b32 s{S_T2}, s{S_HG}, 1", f"s_cmp_eq_u32 s{S_T2}, s{S_PBI}", "s_cbranch_scc0 L_xl")
            for i in range(36):
                a(xr[i])
                if i % 7 == 6:
                    self.wq_dma(1 + i // 7)
            a("s_waitcnt lgkmcnt(0)", "s_barrier", "s_branch L_xd", "L_xl:")
        for d in range(0 if o['d0l'] else 1, 1 + o['pre']):
            self.wq_dma(d)
        self.stamp(1)
        self.stamp(4, 2)
        a("s_barrier")
        self.stamp(5, 2)
        XF = 112
        T0, T1, TR = 24, 40, 56
        PD = o['pd']
        FB = [72, 84, 96]
        state = dict(base=0)

        def rd(ks):
            x = []
            off = slot_addr(ks) - state['base']
            if off < 0 or off + 360 > 65535:
                d = slot_addr(ks) - state['base']
                x += [f"v_add_u32 v{r}, {d}, v{r}" if d > 0 else f"v_subrev_u32 v{r}, {-d}, v{r}" for r in (6, 7)]
                state['base'] = slot_addr(ks)
                off = 0
            f = FB[ks % (PD + 1)]
            return x, [f"ds_read_b64_tr_b16 {vr(f,2)}, v6 offset:{off}", f"ds_read_b64_tr_b16 {vr(f+2,2)}, v6 offset:{off+288}",
                       f"ds_read_b64_tr_b16 {vr(f+4,2)}, v6 offset:{off+72}", f"ds_read_b64_tr_b16 {vr(f+6,2)}, v6 offset:{off+360}",
                       f"ds_read_b64_tr_b16 {vr(f+8,2)}, v7 offset:{off}", f"ds_read_b64_tr_b16 {vr(f+10,2)}, v7 offset:{off+288}"]

        def mm(ks):
            f = FB[ks % (PD + 1)]
            c = "0" if ks == 0 else None
            return [K16(T0, f, XF + 4 * ks, c), K16(T1, f + 4, XF + 4 * ks, c), K16(TR, f + 8, XF + 4 * ks, c)]
        rest = list(range(1 + o['pre'], 6))
        o['nr'] = len(rest)
        for i in range(36):
            a(xr[i])
            if i % (36 // (o['nr'] + 1)) == 36 // (o['nr'] + 1) - 1 and rest:
                self.wq_dma(rest.pop(0))
        assert not rest
        a("L_xd:")
        a(f"s_cmp_eq_u32 s{S_WAVE}, 3", "s_cbranch_scc0 L_e4", "s_waitcnt vmcnt(0)", "L_e4:")
        a("s_waitcnt vmcnt(12)", f"v_mov_b32 v{V_AV}, v20", "v_mov_b32 v21, 0x3f803f80", "s_waitcnt lgkmcnt(0)", "s_barrier")
        self.stamp(2)
        self.stamp(6, 2)
        for k0 in range(PD):
            a(rd(k0)[1])
        G = [k - (PD - 1) for _, k in self.GROUPS]
        ev = {k: ["s_barrier"] for k in G}
        ev[G[0]] = ["s_waitcnt vmcnt(6)", "s_barrier"]
        ev[G[1]] = ["s_waitcnt vmcnt(0)", "s_barrier"]
        for ks in range(36):
            m = mm(ks)
            if ks in ev:
                if ks in G[:2]:
                    a(ev[ks][0])
                if sorted(ev).index(ks) > 1:
                    self.stamp(sorted(ev).index(ks) - 1, 3)
                a(ev[ks])
            if ks + PD < 36:
                pre, n = rd(ks + PD)
                if o['xp'] & 4:
                    m = m[:2] + ["s_nop 0"]
                if o['xp'] & 16 and ks % 2:
                    m = m[:2] + ["s_nop 0"]
                if o['xp'] & 2:
                    m = ["s_nop 0"] * 3
                if PD == 1:
                    a(pre, n[0:2], "s_waitcnt lgkmcnt(6)", m[0], n[2:4], "s_waitcnt lgkmcnt(6)", m[1], n[4:6], "s_waitcnt lgkmcnt(6)", m[2])
                else:
                    a("s_waitcnt lgkmcnt(6)", m[0], pre, n[0:2], m[1], n[2:4], m[2], n[4:6])
            elif ks < 35:
                a("s_waitcnt lgkmcnt(6)", m)
            else:
                a("s_waitcnt lgkmcnt(4)", m[0], "s_waitcnt lgkmcnt(2)", m[1], "s_waitcnt lgkmcnt(0)", m[2])
        self.stamp(3)
        H = 96
        a("v_mov_b32 v22, v17", "v_mov_b32 v23, v18", "v_mov_b32 v7, v19", f"v_mov_b32 v{KR[0]+1}, 0x3f803f80", f"s_mov_b32 s{S_BAR}, {32//o['unp'] - o['barit']}", f"s_mov_b32 s{S_STG}, 0", f"s_mov_b32 s{S_SAME}, 0")
        a("s_mov_b32 vcc_lo, 0", "s_mov_b32 vcc_hi, -1")
        for (dst, t) in ((QM[0], T0), (H, T1)):
            for j, r in enumerate((0, 2, 4, 6, 10, 12, 14)):
                a(f"v_cvt_pk_bf16_f32 v{dst+j}, v{t+r}, v{t+r+1}")
        for (dst, qr, t, t2, tmp) in ((H, H + 8, T1, TR + 4, 107), (QM[0], QR, T0, TR, 108)):
            a(f"v_cvt_pk_bf16_f32 v{dst+7}, v{t2}, v{t2+1}", f"v_cvt_pk_bf16_f32 v{qr}, v{t+8}, v{t+9}", f"v_cvt_pk_bf16_f32 v{tmp}, v{t2+2}, v{t2+3}")
        a(f"v_cndmask_b32 v{H+8}, v{H+8}, v107, vcc", f"v_cndmask_b32 v{QR}, v{QR}, v108, vcc")
        a(f"ds_write_b128 v22, {vr(H,4)}", f"ds_write_b128 v22, {vr(H+4,4)} offset:1024")
        self.norm2((H, H + 8, H + 9, 107), (QM[0], QR, QR + 1, 108))
        a(f"ds_write_b64 v23, {vr(H+8,2)} offset:2048")
        a(K8Z(O[0], 110), K8Z(O[1], 110))
        if o['dly']:
            a("s_memrealtime s[18:19]", "L_dly:", "s_memrealtime s[16:17]", "s_waitcnt lgkmcnt(0)", "s_sub_u32 s16, s16, s18", f"s_cmp_lt_u32 s16, {o['dly']}", "s_cbranch_scc1 L_dly")
        a("s_waitcnt lgkmcnt(0)")
        a("s_barrier")
        a("ds_read_b32 v6, v7")
        self.main_prologue_loads()
        a([f"v_mov_b32 v{r}, 0" for r in range(VV[1][1], VV[1][1] + 4)])
        if o['prio']:
            a("s_setprio 2")
        a("s_waitcnt lgkmcnt(0)", "s_branch L_attn")

    def late_front(self):
        a, o = self.a, self.o
        a.label("L_late")
        a("s_setprio 0")
        if o['spf'] == 3:
            a(f"s_cmp_lg_u32 s{S_WAVE}, 7", "s_cbranch_scc1 L_nospf")
            self.wq_prefetch(3, None)
            a("L_nospf:")
        if o['spf'] == 4:
            a(f"s_cmp_eq_u32 s{S_WAVE}, 7", "s_cbranch_scc1 L_nospf")
            self.wq_prefetch(1, S_I)
            a("L_nospf:")
        self.stamp(2, 2)
        self.rest_srds()
        if o['shard']:
            a("v_and_b32 v160, 7, v0", "v_lshlrev_b32 v160, 9, v160", f"s_cmp_lg_u32 s{S_WAVE}, 7", "s_cbranch_scc1 L_nov0", f"s_mov_b32 s{S_T0}, {WS_CNT}",
              f"buffer_load_dword v161, v160, s[{R_WS}:{R_WS+3}], s{S_T0} offen sc0 sc1", "L_nov0:")
        self.wq_setup(6, 1)
        a(f"s_xor_b32 s{S_T4}, s{S_T4}, 4", f"s_add_u32 s{S_XB}, s{S_T5}, s{S_T4}", f"s_mul_i32 s{S_XB}, s{S_XB}, {8*1152}",
          f"s_mul_i32 s{S_XM}, s{S_T4}, 9216", f"s_add_u32 s{S_XM}, s{S_XM}, {L_X}", f"s_movk_i32 s{S_DI}, 1024", f"s_movk_i32 s{S_DS}, 128")
        a("v_and_b32 v13, 15, v0", "v_lshrrev_b32 v16, 4, v0",
          "v_bfe_u32 v17, v0, 1, 3", "v_xor_b32 v17, v16, v17", "v_lshlrev_b32 v17, 4, v17",
          "v_and_b32 v18, 7, v0", "v_lshl_add_u32 v17, v18, 7, v17", "v_bfe_u32 v18, v0, 3, 1", "v_mul_u32_u24 v18, 0x2400, v18",
          f"s_lshr_b32 s{S_T0}, s{S_HG}, 1", f"s_lshl_b32 s{S_T0}, s{S_T0}, 1", f"s_add_u32 s{S_T0}, s{S_T0}, s{S_PBI}",
          f"s_mul_i32 s{S_T1}, s{S_T0}, {2*9216}", f"s_add_u32 s{S_T1}, s{S_T1}, {L_X}", f"v_add3_u32 v14, v17, v18, s{S_T1}", "v_xor_b32 v15, 64, v14",
          "v_bfe_u32 v17, v0, 2, 2", "v_lshl_add_u32 v17, v16, 3, v17",
          "v_mul_u32_u24 v17, 48, v17", "v_and_b32 v18, 3, v0", "v_lshlrev_b32 v18, 3, v18",
          f"s_cmp_eq_u32 s{S_HQ}, 0", "s_cselect_b64 vcc, -1, 0", "v_mov_b32 v19, 32", "v_cndmask_b32 v18, v19, v18, vcc", f"v_add_u32 v17, {L_W}, v17", "v_add_u32 v17, v17, v18")
        a("v_lshrrev_b32 v19, 5, v0", "v_lshlrev_b32 v19, 9, v19", "v_lshl_add_u32 v19, v13, 4, v19",
          "v_bfe_u32 v18, v0, 4, 1", "v_lshl_add_u32 v28, v18, 3, v19", "v_lshlrev_b32 v29, 2, v13",
          f"s_mul_i32 s{S_KVS}, s{S_PG}, {PB}", f"s_mov_b32 s{S_OEX}, s{S_T0}")
        self.dma9_setup(S_HG)
        self.dma9(R_X, 8)
        self.stamp(3, 2)
        self.table_load()
        if o['spf'] == 2:
            a(f"s_cmp_lg_u32 s{S_WAVE}, 7", "s_cbranch_scc1 L_nospf")
            self.wq_prefetch(3, None)
            a("L_nospf:")
        a("s_setprio 1", "s_waitcnt vmcnt(10)")
        self.stamp(1)
        self.stamp(4, 2)
        a("s_barrier")
        a(f"s_bitcmp1_b32 s{S_HG}, 0", "s_cbranch_scc1 L_vproj")
        D = 32
        NB = o['nb']
        for isv in (0, 1):
            if isv:
                a.label("L_vproj")

            def rd(s):
                xb = 40 + 8 * (s % NB)
                return [f"ds_read_b128 {vr(xb,4)}, v{14+(s&1)} offset:{(s>>1)*1024}",
                        f"ds_read_b64_tr_b16 {vr(xb+4,2)}, v17 offset:{s*1536}", f"ds_read_b64_tr_b16 {vr(xb+6,2)}, v17 offset:{s*1536+192}"]
            for s in range(NB - 1):
                a(rd(s))
            for s in range(18):
                if s == o['sb']:
                    a("s_waitcnt vmcnt(0)", "s_barrier")
                if s + NB - 1 < 18:
                    a(rd(s + NB - 1))
                left = min(18 - 1 - s, NB - 1)
                xb = 40 + 8 * (s % NB)
                c = "0" if s == 0 else None
                a(f"s_waitcnt lgkmcnt({min(15,3*left)})", M16(D, xb, xb + 4, c) if isv else M16(D, xb + 4, xb, c))
            g = S_OEX
            if not isv:
                a(f"s_lshr_b32 s{S_T0}, s{g}, 1", f"s_lshl_b32 s{S_T0}, s{S_T0}, 10", f"s_lshl_b32 s{S_T1}, s{S_PBI}, 8", f"s_add_u32 s{S_T0}, s{S_T0}, s{S_T1}",
                  f"s_add_u32 s{S_T0}, s{S_T0}, s{S_KVS}",
                  f"s_lshl_b32 s{S_T1}, s{g}, 6", f"s_add_u32 s{S_T1}, s{S_T1}, s{S_KVS}", f"s_add_u32 s{S_T1}, s{S_T1}, 2048",
                  f"s_mov_b32 s{S_T2}, {hex(f2u(CSCALE))}")
                for r in range(4):
                    a(f"v_mul_f32 v{D+r}, s{S_T2}, v{D+r}")
                a(f"v_cvt_pk_bf16_f32 v{D}, v{D}, v{D+1}", f"v_cvt_pk_bf16_f32 v{D+1}, v{D+2}, v{D+3}",
                  f"s_lshl_b32 s{S_T3}, s{S_PG}, 2", f"s_add_u32 s{S_T3}, s{S_T3}, s{g}", f"s_lshl_b32 s{S_T3}, s{S_T3}, 2", f"s_add_u32 s{S_T3}, s{S_T3}, {WS_KN}",
                  f"v_dot2_f32_bf16 v36, v{D}, v{D}, 0",
                  f"s_cmp_eq_u32 s{S_HQ}, 0", "s_cbranch_scc0 L_krem",
                  f"buffer_store_dwordx2 {vr(D,2)}, v28, s[{R_WS}:{R_WS+3}], s{S_T0} offen sc1",
                  f"v_dot2_f32_bf16 v36, v{D+1}, v{D+1}, v36", "s_nop 2", "v_mov_b32 v37, v36", "s_nop 1",
                  "v_permlane16_swap_b32 v36, v37", "s_nop 1", "v_add_f32 v36, v36, v37", "s_nop 0", "v_mov_b32 v37, v36", "s_nop 1",
                  "v_permlane32_swap_b32 v36, v37", "s_nop 1", "v_add_f32 v36, v36, v37", "s_branch L_knorm",
                  "L_krem:", "s_mov_b64 exec, 0xffff",
                  f"buffer_store_dword v{D}, v29, s[{R_WS}:{R_WS+3}], s{S_T1} offen sc1", "s_mov_b64 exec, -1", f"s_add_u32 s{S_T3}, s{S_T3}, 512",
                  "L_knorm:", "s_nop 1")
                self.row_max16(36)
                a("v_mov_b32 v37, 0", "s_mov_b64 exec, 1", f"buffer_store_dword v36, v37, s[{R_WS}:{R_WS+3}], s{S_T3} offen sc1", "s_mov_b64 exec, -1",
                  "s_branch L_kvdone")
            else:
                a(f"s_mul_i32 s{S_T0}, s{g}, {VG}", f"s_add_u32 s{S_T0}, s{S_T0}, s{S_KVS}", f"s_add_u32 s{S_T0}, s{S_T0}, 2304",
                  "v_cmp_eq_u32 vcc, 2, v13", f"v_cmp_eq_u32 s[{S_EX}:{S_EX+1}], 3, v13", "v_mov_b32 v30, 0x3f803f80", "s_nop 0",
                  f"s_cmp_eq_u32 s{S_HQ}, 0",
                  f"v_cvt_pk_bf16_f32 v{D}, v{D}, v{D+1}", f"v_cvt_pk_bf16_f32 v{D+1}, v{D+2}, v{D+3}", "s_cbranch_scc0 L_vrem",
                  f"buffer_store_dwordx2 {vr(D,2)}, v21, s[{R_WS}:{R_WS+3}], s{S_T0} offen sc1", "s_branch L_kvdone",
                  "L_vrem:",
                  f"v_cndmask_b32 v{D}, v{D}, v30, vcc", f"v_cndmask_b32 v{D+1}, v{D+1}, v30, vcc",
                  f"v_cndmask_b32 v{D}, v{D}, 0, s[{S_EX}:{S_EX+1}]", f"v_cndmask_b32 v{D+1}, v{D+1}, 0, s[{S_EX}:{S_EX+1}]",
                  "s_mov_b32 exec_lo, 0x000f000f", "s_mov_b32 exec_hi, 0x000f000f",
                  f"buffer_store_dwordx2 {vr(D,2)}, v22, s[{R_WS}:{R_WS+3}], s{S_T0} offen sc1", "s_mov_b64 exec, -1")
        a.label("L_kvdone")
        if o['xcc']:
            a("s_getreg_b32 s29, hwreg(HW_REG_XCC_ID, 0, 4)", f"s_cmp_lg_u32 s{S_WAVE}, 4", "s_cbranch_scc1 L_noxid",
              f"s_lshl_b32 s{S_T0}, s{S_PG}, 2", f"s_add_u32 s{S_T0}, s{S_T0}, s{S_HG}", f"s_lshl_b32 s{S_T0}, s{S_T0}, 2", f"s_add_u32 s{S_T0}, s{S_T0}, {WS_XID}",
              "v_mov_b32 v38, s29", "v_mov_b32 v39, 0", "s_mov_b64 exec, 1", f"buffer_store_dword v38, v39, s[{R_WS}:{R_WS+3}], s{S_T0} offen sc1", "s_mov_b64 exec, -1", "L_noxid:")
        self.stamp(2)
        self.stamp(5, 2)
        a(f"v_mov_b32 v{V_AV}, v20")
        self.wq_setup(6, 2)
        self.loader_flag()
        a("v_mov_b32 v100, 1", "v_mov_b32 v101, 0")
        if o['sigb2']:
            a("s_waitcnt vmcnt(0)")
        a("s_barrier")
        if o['sigb2']:
            self.kv_signal()
        nxt = 6
        NG = len(self.GROUPS)
        if o['xp'] & 8:
            self.stamp(1, 5)
            for d in range(6, 18):
                self.wq_dma(d)
                if d == 11:
                    self.stamp(2, 5)
            self.stamp(3, 5)
            a("s_waitcnt vmcnt(18)")
            self.stamp(4, 5)
            a("s_waitcnt vmcnt(0)")
            self.stamp(5, 5)
            nxt = 18
        for gi_, (last, _) in enumerate(self.GROUPS):
            lim = 16 if gi_ < 3 else 17
            tgt = {0: o['t1'], 1: o['t2']}.get(gi_, last + o['win'])
            while nxt <= min(tgt, lim):
                self.wq_dma(nxt)
                nxt += 1
            assert nxt > last
            if gi_ == 1 and not o['sigb2']:
                a(f"s_cbranch_vccnz L_l{gi_}", "s_waitcnt vmcnt(0)", f"L_l{gi_}:", f"s_waitcnt vmcnt({3*(nxt-6)})")
            if gi_ > 1:
                a(f"s_waitcnt vmcnt({3*(nxt-1-last)})")
            if gi_ == 2:
                a(f"v_mov_b32 v150, {L_FLAG}", "v_mov_b32 v152, 0", "v_mov_b32 v153, 0", "v_mov_b32 v151, 0", "ds_write_b64 v150, v[152:153]", "s_waitcnt lgkmcnt(0)")
            if gi_ == NG - 3:
                self.init_main_regs()
                a(f"s_and_b32 s{S_T0}, s{S_GI}, 3", f"s_mul_i32 s{S_KVS}, s{S_T0}, {37*1024}", f"s_add_u32 s{S_KVS}, s{S_KVS}, s{S_M0A}",
                  "v_lshlrev_b32 v153, 3, v0", f"s_mov_b32 s{S_T4}, {WS_KN}", f"s_lshl_b32 s{S_T5}, s{S_B}, 7")
            if gi_ == NG - 3 and o['tre']:
                a("s_cbranch_vccnz L_try1", f"s_mov_b32 s{S_T0}, {WS_CNT}", f"buffer_load_dword v152, v160, s[{R_WS}:{R_WS+3}], s{S_T0} offen sc0 sc1", "L_try1:")
            if gi_ == NG - 2:
                assert nxt == 18
                if o['shard']:
                    a("s_cbranch_vccnz L_try0")
                    if not o['tre']:
                        a(f"s_mov_b32 s{S_T0}, {WS_CNT}", f"buffer_load_dword v152, v160, s[{R_WS}:{R_WS+3}], s{S_T0} offen sc0 sc1")
                    a("s_waitcnt vmcnt(0)",
                      "v_cmp_ne_u32 s[16:17], v152, v161", "s_cmp_eq_u64 s[16:17], 0", "s_cselect_b32 s16, 1, 0", "v_mov_b32 v152, s16", "ds_write_b32 v150, v152", "s_waitcnt lgkmcnt(0)", "L_try0:")
                else:
                    a("s_cbranch_vccnz L_try0", f"buffer_load_dword v152, v151, s[{R_DBG}:{R_DBG+3}], s{S_T5} offen sc0 sc1", "s_waitcnt vmcnt(0)",
                      "v_lshrrev_b32 v152, 7, v152", "ds_write_b32 v150, v152", "s_waitcnt lgkmcnt(0)", "L_try0:")
            if gi_ > 1:
                self.stamp(gi_ - 1, 3)
            a("s_barrier")
            if gi_ == 1 and not o['sigb2']:
                self.kv_signal()
            if gi_ == NG - 2:
                break
        kn = [f"s_cmp_lg_u32 s{S_WAVE}, 7", None, f"buffer_load_dwordx2 v[154:155], v153, s[{R_WS}:{R_WS+3}], s{S_T4} offen sc1",
              f"buffer_load_dwordx2 v[156:157], v153, s[{R_WS}:{R_WS+3}], s{S_T4} offen offset:512 sc1"]
        a("ds_read_b32 v152, v150", "s_waitcnt lgkmcnt(0)", "v_cmp_eq_u32 vcc, 0, v152", "s_cbranch_vccnz L_notyet")
        self.stamp(4)
        a(kn[0], "s_cbranch_scc1 L_kna", kn[2:], "L_kna:")
        self.kv_dma(0, o['kv1'])
        a(f"s_cmp_eq_u32 s{S_WAVE}, 7", "s_cbranch_scc1 L_knb", f"s_waitcnt vmcnt({o['kv1']})", "L_knb:")
        self.stamp(6, 3)
        a("s_barrier", "s_branch L_first")
        a("L_notyet:", "s_waitcnt vmcnt(0)")
        self.stamp(6, 3)
        a("s_barrier")
        a(f"s_mov_b32 s{S_CNT}, {SPIN}", f"s_cmp_lg_u32 s{S_WAVE}, 7", "s_cbranch_scc1 L_relay")
        if o['shard']:
            a(f"s_mov_b32 s{S_T0}, {WS_CNT}", "L_poll1:", f"buffer_load_dword v152, v160, s[{R_WS}:{R_WS+3}], s{S_T0} offen sc0 sc1",
              f"s_cmp_gt_u32 s{S_CNT}, {SPIN - o['nslow']}", "s_cbranch_scc1 L_pf", f"s_cmp_lg_u32 s{S_CNT}, {SPIN - o['nslow']}", "s_cbranch_scc1 L_ps",
              "s_mov_b64 exec, 1", f"buffer_atomic_add v100, v101, s[{R_DBG}:{R_DBG+3}], s{S_T5} offen sc1", "s_mov_b64 exec, -1",
              "L_ps:", f"buffer_load_dwordx2 v[162:163], v151, s[{R_DBG}:{R_DBG+3}], s{S_T5} offen sc0 sc1", "s_waitcnt vmcnt(0)",
              "v_lshrrev_b32 v162, 7, v162", "v_or_b32 v162, v162, v163", "v_cmp_ne_u32 vcc, 0, v162", "s_cbranch_vccnz L_poll1d",
              "L_pf:", f"s_sub_u32 s{S_CNT}, s{S_CNT}, 1", "s_cbranch_scc1 L_poll1d", "s_waitcnt vmcnt(0)", "v_cmp_ne_u32 vcc, v152, v161", "s_cbranch_vccnz L_poll1")
        else:
            a("L_poll1:", f"buffer_load_dword v152, v151, s[{R_DBG}:{R_DBG+3}], s{S_T5} offen sc0 sc1", f"s_sub_u32 s{S_CNT}, s{S_CNT}, 1",
              "s_cbranch_scc1 L_poll1d", "s_waitcnt vmcnt(0)", "v_cmp_gt_u32 vcc, 0x80, v152", "s_cbranch_vccnz L_poll1")
        a("L_poll1d:", "v_mov_b32 v152, 1", "ds_write_b32 v150, v152", kn[2:], "s_branch L_flagok")
        a("L_relay:", "ds_read_b32 v152, v150", f"s_sub_u32 s{S_CNT}, s{S_CNT}, 1", "s_cbranch_scc1 L_flagok", "s_waitcnt lgkmcnt(0)",
          "v_cmp_eq_u32 vcc, 0, v152", "s_cbranch_vccnz L_relay", "L_flagok:")
        self.stamp(4)
        self.kv_dma(0, o['kv1'])
        a("L_first:")
        self.stamp(3)
        self.stamp(6, 2)
        a(f"s_cmp_lg_u32 s{S_WAVE}, 7", "s_cbranch_scc1 L_nokn", f"s_waitcnt vmcnt({o['kv1']})", "v_max_f32 v154, v154, v155", "v_max_f32 v156, v156, v157")
        self.row_max16(154)
        self.row_max16(156)
        a("s_nop 0")
        for k in range(4):
            a(f"v_readlane_b32 s{16+k}, v154, {16*k}", f"v_readlane_b32 s{20+k}, v156, {16*k}")
        a("s_nop 1", "s_max_u32 s16, s16, s17", "s_max_u32 s18, s18, s19", "s_max_u32 s20, s20, s21", "s_max_u32 s22, s22, s23",
          "s_max_u32 s16, s16, s18", "s_max_u32 s20, s20, s22", "v_mov_b32 v154, s16", "v_add_f32 v154, s20, v154", "v_sqrt_f32 v154, v154",
          f"v_mov_b32 v155, {L_KMAX}", "ds_write_b32 v155, v154", "L_nokn:")
        a(f"v_mov_b32 v{V_IDX}, 0xdddddddd", f"v_add_u32 v{V_AK}, {L_KV}, v1", f"v_lshlrev_b32 v{V_AR}, 2, v0", f"v_add_u32 v{V_AR}, {L_KV+2048}, v{V_AR}",
          f"s_mul_i32 s{S_T0}, s{S_I}, 2560", f"v_add_u32 v8, s{S_T0}, v1", "v_lshlrev_b32 v9, 3, v0", f"v_add_u32 v9, s{S_T0}, v9", f"v_mov_b32 v6, {L_KMAX}")
        a("s_waitcnt vmcnt(0) lgkmcnt(0)", "s_barrier")
        a("ds_read_b32 v6, v6", f"ds_read_b64 {vr(QR,2)}, v9 offset:2048", f"ds_read_b128 {vr(QM[1],4)}, v8 offset:1024", f"ds_read_b128 {vr(QM[0],4)}, v8")
        self.kv_dma(4 * o['kv1'], 37 - o['kv1'])
        if o['xcc']:
            a(f"s_lshl_b32 s{S_T0}, s{S_PG}, 4", f"s_add_u32 s{S_T0}, s{S_T0}, {WS_XID}", "v_and_b32 v148, 3, v0", "v_lshlrev_b32 v148, 2, v148",
              f"buffer_load_dword v148, v148, s[{R_WS}:{R_WS+3}], s{S_T0} offen sc1")
        a("s_waitcnt vmcnt(0) lgkmcnt(0)")
        self.stamp(5)
        a("s_barrier")
        self.wo_job_loads(0)
        a(f"s_cmp_ge_u32 s{S_OEX}, {648-512}", "s_cbranch_scc1 L_nowo2", f"s_add_u32 s{S_OEX}, s{S_OEX}, 512")
        self.wo_job_loads(1)
        a("L_nowo2:")
        self.poison()
        a("s_waitcnt vmcnt(5)", f"s_cmp_ge_u32 s{S_OEX}, 512", "s_cbranch_scc0 L_wo3")
        self.wo_job_finish(1)
        a(f"s_sub_u32 s{S_OEX}, s{S_OEX}, 512", "L_wo3:")
        self.wo_job_finish(0)
        self.main_prologue_loads()
        self.join_signal(200, "l")
        a("s_mov_b64 exec, -1", f"s_mov_b32 s{S_BAR}, -1", f"s_mov_b32 s{S_STG}, 1", f"s_mov_b32 s{S_SAME}, 0")
        if o['xcc']:
            a("v_cmp_ne_u32 vcc, s29, v148", "s_cbranch_vccnz L_nosame", f"s_mov_b32 s{S_SAME}, 1", "L_nosame:")

    def kv_signal(self):
        a, o = self.a, self.o
        if o['shard']:
            a("s_cbranch_vccnz L_nosig", "s_setprio 3", f"v_add_u32 v161, {17 if o['badv0'] else 16}, v161",
              f"s_bfe_u32 s{S_T0}, s2, 0x20001", f"s_lshl_b32 s{S_T0}, s{S_T0}, 1", f"s_and_b32 s{S_T1}, s{S_GI}, 1", f"s_add_u32 s{S_T0}, s{S_T0}, s{S_T1}",
              f"s_lshl_b32 s{S_T0}, s{S_T0}, 9", f"s_add_u32 s{S_T0}, s{S_T0}, {WS_CNT}", "s_mov_b64 exec, 1",
              f"buffer_atomic_add v100, v101, s[{R_WS}:{R_WS+3}], s{S_T0} offen sc1", "s_mov_b64 exec, -1", "s_setprio 1", "L_nosig:")
        else:
            a("s_cbranch_vccnz L_nosig", "s_setprio 3", f"s_lshl_b32 s{S_T0}, s{S_B}, 7", "s_mov_b64 exec, 1",
              f"buffer_atomic_add v100, v101, s[{R_DBG}:{R_DBG+3}], s{S_T0} offen sc1", "s_mov_b64 exec, -1", "s_setprio 1", "L_nosig:")

    def join_signal(self, v, tag):
        self.a(f"v_mov_b32 v{v}, {L_FLAG+4}", f"v_mov_b32 v{v+1}, 1", f"v_mov_b32 v{v+3}, 0", f"s_lshl_b32 s{S_T0}, s{S_B}, 7", "s_mov_b64 exec, 1",
               "s_waitcnt vmcnt(0)", f"ds_add_rtn_u32 v{v+2}, v{v}, v{v+1}", "s_waitcnt lgkmcnt(0)", f"v_cmp_eq_u32 vcc, 3, v{v+2}", f"s_cbranch_vccz L_js{tag}",
               f"buffer_atomic_add v{v+1}, v{v+3}, s[{R_DBG}:{R_DBG+3}], s{S_T0} offen offset:4 sc1", f"L_js{tag}:")

    def wo_job_loads(self, rep):
        a = self.a
        if rep == 0:
            a(f"s_lshl_b32 s{S_OEX}, s{S_PG}, 2", f"s_add_u32 s{S_OEX}, s{S_OEX}, s{S_HG}", f"s_lshl_b32 s{S_OEX}, s{S_OEX}, 2", f"s_add_u32 s{S_OEX}, s{S_OEX}, s{S_I}")
        f = S_OEX
        AD, DT = 208, 216 + 8 * rep
        a(f"s_mul_i32 s16, s{f}, 7282", "s_lshr_b32 s16, s16, 16", "s_mul_i32 s17, s16, 9", f"s_sub_u32 s17, s{f}, s17",
          "s_mul_i32 s18, s16, 7282", "s_lshr_b32 s18, s18, 16", "s_mul_i32 s19, s18, 9", "s_sub_u32 s19, s16, s19",
          "s_and_b32 s20, s18, 1", "s_lshr_b32 s21, s18, 1")
        a("s_mul_i32 s22, s21, 288", "s_lshr_b32 s23, s17, 1", "s_lshl_b32 s23, s23, 6", "s_add_u32 s22, s22, s23", "s_and_b32 s23, s17, 1", "s_lshl_b32 s23, s23, 3",
          "s_add_u32 s22, s22, s23", "s_cmp_eq_u32 s17, 8", "s_cselect_b32 s23, 3, 4",
          "v_bfe_u32 v200, v0, 2, 2", "v_lshlrev_b32 v200, s23, v200", "v_and_b32 v201, 3, v0", "v_lshl_add_u32 v200, v201, 1, v200", "v_add_u32 v200, s22, v200",
          f"s_mul_i32 s22, s20, {36*1152}", "s_cmp_eq_u32 s19, 8", f"s_cbranch_scc1 L_wok1_{rep}")
        cy = [(j & 3) + 8 * (j >> 2) for j in range(8)]
        a(f"s_mul_i32 s23, s19, {72*1152}", "s_add_u32 s22, s22, s23", "v_lshrrev_b32 v201, 5, v0", "v_bfe_u32 v202, v0, 4, 1",
          f"v_mul_u32_u24 v203, {4*1152}, v201", "v_add_u32 v203, v200, v203",
          f"v_mul_u32_u24 v204, {3*1152}, v201", f"v_sub_u32 v204, {16*1152}, v204", "v_mul_u32_u24 v204, v202, v204", f"v_add_u32 v{AD}, v203, v204")
        for j in range(1, 8):
            dj = 18 + cy[j-1] - cy[j]
            a(f"v_mul_u32_u24 v204, {dj*1152}, v202", f"v_add_u32 v204, {cy[j]*1152}, v204", f"v_add_u32 v{AD+j}, v203, v204")
        a(f"s_branch L_wold_{rep}", f"L_wok1_{rep}:", "v_lshrrev_b32 v201, 4, v0", f"v_mul_u32_u24 v201, {144*1152}, v201", "v_add_u32 v203, v200, v201")
        for j in range(8):
            hq, hh, e = j >> 2, (j >> 1) & 1, j & 1
            row = 72 * hq + 18 + ((16 + hh) if e else (11 + 4 * hh))
            a(f"v_add_u32 v{AD+j}, {row*1152}, v203")
        a(f"L_wold_{rep}:")
        for j in range(8):
            a(f"buffer_load_ushort v{DT+j}, v{AD+j}, s[{R_WO}:{R_WO+3}], s22 offen")

    def wo_job_finish(self, rep):
        a = self.a
        DT = 216 + 8 * rep
        a(f"s_lshl_b32 s22, s{S_OEX}, 10", f"s_add_u32 s22, s22, {WS_WOT}")
        for j in range(4):
            a(f"v_lshl_or_b32 v{232+4*rep+j}, v{DT+1+2*j}, 16, v{DT+2*j}")
        a(f"buffer_store_dwordx4 {vr(232+4*rep,4)}, v1, s[{R_WS}:{R_WS+3}], s22 offen sc1")

    def poison(self):
        a = self.a
        a([f"v_mov_b32 v{176+j}, -1" for j in range(4)])
        a(f"s_mul_i32 s24, s{S_PG}, {OEX_G}", f"s_mul_i32 s25, s{S_HQ}, {OEX_S}", "s_add_u32 s24, s24, s25", f"s_add_u32 s24, s24, {WS_OEX}",
          f"s_lshl_b32 s25, s{S_HG}, 13", f"s_lshl_b32 s26, s{S_PBI}, 12", "s_add_u32 s25, s25, s26", "s_add_u32 s25, s25, s24",
          f"s_lshl_b32 s26, s{S_HG}, 6", "s_add_u32 s26, s26, s24", "s_add_u32 s26, s26, 32768",
          "v_lshrrev_b32 v180, 2, v0", "v_lshlrev_b32 v180, 8, v180", "v_and_b32 v181, 3, v0", "v_lshl_add_u32 v180, v181, 4, v180")
        for k in range(4):
            a(f"buffer_store_dwordx4 v[176:179], v1, s[{R_WS}:{R_WS+3}], s25 offen offset:{k*1024} sc0 sc1")
        a(f"buffer_store_dwordx4 v[176:179], v180, s[{R_WS}:{R_WS+3}], s26 offen sc0 sc1")

    def coop_load(self, n, tag):
        a = self.a
        B = 8
        a(f"s_lshl_b32 s{S_T0}, s{S_WAVE}, 10", f"v_add_u32 v6, s{S_T0}, v1", f"s_add_u32 s{S_T0}, s{S_T0}, s{S_OEXB}", f"s_add_u32 s{S_T0}, s{S_T0}, {OEX_S}")
        for k in range(1, n):
            a(f"s_add_u32 s{16+k}, s{S_T0}, {8192*k}")
        a(f"s_mov_b32 s{S_CNT}, {SPIN}")
        a("s_barrier")
        self.stamp(1, 4)
        if tag == 'l':
            self.stamp(1, 1)
        a.label(f"L_cl{tag}")
        for k in range(n):
            a(f"buffer_load_dwordx4 {vr(B+4*k,4)}, v1, s[{R_WS}:{R_WS+3}], s{16+k if k else S_T0} offen sc0 sc1")
        a(f"s_sub_u32 s{S_CNT}, s{S_CNT}, 1", f"s_cbranch_scc1 L_cld{tag}")
        for k in range(n):
            r = B + 4 * k
            a(f"s_waitcnt vmcnt({n-1-k})")
            if k == 0:
                self.stamp(3, 4)
            if k == 0:
                a(f"v_max3_u32 v7, v{r}, v{r+1}, v{r+2}", f"v_max_u32 v7, v7, v{r+3}")
            else:
                a(f"v_max3_u32 v7, v7, v{r}, v{r+1}", f"v_max3_u32 v7, v7, v{r+2}, v{r+3}")
        a("v_cmp_eq_u32 vcc, -1, v7", f"s_cbranch_vccnz L_cl{tag}", f"L_cld{tag}:", "s_waitcnt vmcnt(0)")
        self.stamp(2, 4)
        if self.o['stamps'] and self.o['set'] == 4:
            a(f"s_mov_b32 s{S_ST+12}, s{S_CNT}")
        if tag == 'l':
            self.stamp(2, 1)
        for k in range(n):
            a(f"ds_write_b128 v6, {vr(B+4*k,4)} offset:{L_KV + 8192*k}")
        a("s_waitcnt lgkmcnt(0)", "s_barrier")
        self.stamp(4, 4)
        if tag == 'l':
            self.stamp(3, 1)

    def attention(self):
        a, o = self.a, self.o
        UNP = o['unp']
        a.label("L_attn")
        a(f"v_mul_f32 v7, v6, v{QR+1}", f"v_mov_b32 v6, {hex(f2u(-1.0 if o['force_fb'] else TSAFE))}",
          "v_cmp_nle_f32 vcc, v7, v6", "v_sub_f32 v7, 0, v7", f"v_cvt_pk_bf16_f32 v{QR+1}, v7, 0", "s_cbranch_vccnz L_fallback", "L_fbdone:")
        q = self.qk(S[0], 0)
        f1 = [f"s_mul_i32 s{S_OEXB}, s{S_PG}, {OEX_G}", f"s_add_u32 s{S_OEXB}, s{S_OEXB}, {WS_OEX}", f"s_mul_i32 s{S_T0}, s{S_STG}, {OEX_S}", f"s_add_u32 s{S_T0}, s{S_T0}, s{S_OEXB}",
              f"s_lshl_b32 s{S_T1}, s{S_PBI}, 11", f"s_add_u32 s{S_T0}, s{S_T0}, s{S_T1}",
              f"s_lshl_b32 s{S_T1}, s{S_HG}, 13", f"s_lshl_b32 s{S_T2}, s{S_HQ}, 12", f"s_add_u32 s{S_T1}, s{S_T1}, s{S_T2}", f"s_add_u32 s{S_OA}, s{S_T1}, s{S_T0}",
              f"s_lshl_b32 s{S_T2}, s{S_HG}, 6", f"s_lshl_b32 s{S_T3}, s{S_HQ}, 9", f"s_add_u32 s{S_T2}, s{S_T2}, s{S_T3}", f"s_add_u32 s{S_T2}, s{S_T2}, s{S_T0}",
              f"s_add_u32 s{S_OB}, s{S_T2}, 32768", f"v_mov_b32 v{V_JN}, {L_FLAG+4}", f"s_mov_b32 s{S_CNT}, {32//UNP}", "s_nop 0"]
        f2 = ["v_bfe_u32 v6, v0, 4, 1", "v_lshlrev_b32 v6, 10, v6", "v_lshrrev_b32 v7, 5, v0", "v_and_b32 v22, 15, v0",
              f"v_lshl_add_u32 v{V_OA}, v7, 9, v6", f"v_lshl_add_u32 v{V_OA}, v22, 4, v{V_OA}", f"v_lshl_add_u32 v{V_OB}, v7, 8, v6", f"v_lshl_add_u32 v{V_OB}, v22, 2, v{V_OB}", "s_nop 2"]
        a("s_nop 0", q[0], f1, q[1], q[2], f2)
        self.stamp(6)
        body = []
        for kb in range(2 * UNP):
            cur, nxt = S[kb % 2], S[(kb + 1) % 2]
            q = self.qk(nxt, kb + 1)
            e = EX(cur, 32)
            sm3p = SM(O[1], VV[(kb - 1) % 2][1], nxt + 24)
            sm = [SM(O[0], VV[kb % 2][0], cur), SM(O[0], VV[kb % 2][1], cur + 8), SM(O[1], VV[kb % 2][0], cur + 16)]
            cl = self.ldKm(kb + 2) + (self.ldKr((kb + 3) // 2) if kb % 2 == 1 else []) + self.ldV(kb + 1)
            body += e[0:2] + [sm3p] + e[2:5] + [q[0]] + e[5:13] + ["s_waitcnt lgkmcnt(0)", sm[0]] + e[13:18] + [sm[1]] + e[18:21] + [q[1]] + e[21:24] + [q[2]] + cl + e[24:27] + [sm[2]] + e[27:32]
        body += [f"v_add_u32 v{V_AK}, {UNP*PB}, v{V_AK}", f"v_add_u32 v{V_AR}, {UNP*PB}, v{V_AR}", f"v_add_u32 v{V_AV}, {UNP*PB}, v{V_AV}"]
        self.loop_body = body
        a(".p2align 6", "L_main:", body, f"s_sub_u32 s{S_CNT}, s{S_CNT}, 1", f"s_cmp_lg_u32 s{S_CNT}, s{S_BAR}", "s_cbranch_scc1 L_nob7", "s_barrier", "L_nob7:",
          f"s_cmp_lg_u32 s{S_CNT}, 0", "s_cbranch_scc1 L_main")
        a(f"ds_read_b32 v23, v{V_JN}", SM(O[1], VV[1][1], S[1] + 24))
        self.stamp(7)
        vals = [O[0] + j for j in range(9)] + [O[1] + j for j in range(9)]
        a(f"v_rcp_f32 v10, v{O[0]+9}", f"s_mov_b32 s{S_CNT}, {SPIN}")
        for r in vals[:9]:
            a(f"v_mul_f32 v{r}, v{r}, v10")
        for j in range(4):
            a(f"v_cvt_pk_bf16_f32 v{12+j}, v{vals[2*j]}, v{vals[2*j+1]}")
        a(f"v_rcp_f32 v11, v{O[1]+9}")
        a("L_pchk:", "s_waitcnt lgkmcnt(0)", "v_cmp_gt_u32 vcc, 4, v23", "s_cbranch_vccz L_pok",
          f"ds_read_b32 v23, v{V_JN}", f"s_sub_u32 s{S_CNT}, s{S_CNT}, 1", "s_cbranch_scc0 L_pchk", "L_pok:")
        a(f"s_cmp_eq_u32 s{S_SAME}, 1", "s_cbranch_scc1 L_pub1")
        for fl in (" sc0 sc1", ""):
            a(f"buffer_store_dwordx4 v[12:15], v{V_OA}, s[{R_WS}:{R_WS+3}], s{S_OA} offen{fl}")
            for r in vals[9:]:
                a(f"v_mul_f32 v{r}, v{r}, v11")
            for j in range(4, 9):
                a(f"v_cvt_pk_bf16_f32 v{12+j}, v{vals[2*j]}, v{vals[2*j+1]}")
                if j == 7:
                    a(f"buffer_store_dwordx4 v[16:19], v{V_OA}, s[{R_WS}:{R_WS+3}], s{S_OA} offen offset:256{fl}")
            a(f"buffer_store_dword v20, v{V_OB}, s[{R_WS}:{R_WS+3}], s{S_OB} offen{fl}")
            if fl:
                a(f"s_cmp_eq_u32 s{S_STG}, 0", "s_cbranch_scc1 L_oproj", "s_branch L_pub2", "L_pub1:")
        a("L_pub2:")
        self.coop_load(4, "l")
        self.dump_stamps()
        a("s_endpgm")

    def fallback(self):
        a, o = self.a, self.o
        a.label("L_fallback")
        a(f"s_cmp_eq_u32 s{S_STG}, 1", "s_cbranch_scc1 L_fb1", "s_barrier", f"s_mov_b32 s{S_BAR}, -1", "L_fb1:")
        a(f"v_mov_b32 v{QR+1}, 0", f"v_mov_b32 v144, v{V_AK}", f"v_mov_b32 v145, v{V_AR}", "v_mov_b32 v146, 0xff800000", "v_mov_b32 v147, 0xff800000",
          "v_mov_b32 v151, 0x3f803f80", f"s_mov_b32 s{S_CNT}, 32", "L_fbl:",
          "ds_read_b32 v150, v145", "ds_read_b128 v[152:155], v144", "ds_read_b128 v[156:159], v144 offset:1024",
          f"v_add_u32 v144, {PB}, v144", f"v_add_u32 v145, {PB}, v145", "s_waitcnt lgkmcnt(0)")
        for h in range(2):
            a(B2(160, 150, QR, h), "s_nop 15", "s_nop 1", K16(160, 152 + 4 * h, QM[0]), K16(176, 152 + 4 * h, QM[1]), "s_nop 11")
            for j in range(8):
                a(f"v_max3_f32 v146, v146, v{160+2*j}, v{161+2*j}", f"v_max3_f32 v147, v147, v{176+2*j}, v{177+2*j}")
        a(f"s_sub_u32 s{S_CNT}, s{S_CNT}, 1", f"s_cmp_lg_u32 s{S_CNT}, 0", "s_cbranch_scc1 L_fbl",
          "s_nop 0", "v_permlane32_swap_b32 v146, v147", "s_nop 1", "v_max_f32 v146, v146, v147", "v_sub_f32 v146, 0, v146",
          "v_cvt_pk_bf16_f32 v147, v146, 0", "v_lshlrev_b32 v148, 16, v147", "v_sub_f32 v148, v146, v148", f"v_cvt_pk_bf16_f32 v{QR+1}, v146, v148",
          "s_branch L_fbdone")

    def oproj(self):
        a, o = self.a, self.o
        a.label("L_oproj")
        if o['prio'] == 2:
            a("s_setprio 0")
        WF, ACC, OB = 148, 112, [8, 56]
        for tp in range(4):
            a(f"s_xor_b32 s{S_T0}, s{S_WAVE}, {tp}", f"s_lshl_b32 s{S_T0}, s{S_T0}, 10", f"v_add_u32 v{104+tp}, s{S_T0}, v1",
              f"v_lshlrev_b32 v{108+tp}, 2, v0", f"v_add_u32 v{108+tp}, s{S_T0}, v{108+tp}")
        a(f"s_mov_b32 s{S_CNT}, {SPIN}", f"s_lshl_b32 s{S_T0}, s{S_B}, 7", "v_mov_b32 v11, 0")
        self.stamp(1, 1)
        a("L_poll2:", f"buffer_load_dword v7, v11, s[{R_DBG}:{R_DBG+3}], s{S_T0} offen offset:4 sc0 sc1", f"s_sub_u32 s{S_CNT}, s{S_CNT}, 1",
          "s_cbranch_scc1 L_poll2d", "s_waitcnt vmcnt(0)", "v_cmp_gt_u32 vcc, 0x80, v7", "s_cbranch_vccz L_poll2d", "s_sleep 16", "s_branch L_poll2", "L_poll2d:")

        def wo_loads(stg):
            a(f"s_lshl_b32 s{S_T0}, s{S_HG}, 1", f"s_add_u32 s{S_T0}, s{S_T0}, {stg}", f"s_mul_i32 s{S_T0}, s{S_T0}, {81*1024}", f"s_add_u32 s{S_T0}, s{S_T0}, {WS_WOT}",
              f"s_lshl_b32 s{S_T1}, s{S_WAVE}, 11", f"s_add_u32 s{S_T1}, s{S_T1}, s{S_T0}", f"s_add_u32 s{S_T0}, s{S_T0}, 8192")
            for ks in range(9):
                a(f"buffer_load_dwordx4 {vr(WF+12*ks,4)}, v1, s[{R_WS}:{R_WS+3}], s{S_T1} offen sc1",
                  f"buffer_load_dwordx4 {vr(WF+12*ks+4,4)}, v1, s[{R_WS}:{R_WS+3}], s{S_T1} offen offset:1024 sc1",
                  f"buffer_load_dwordx4 {vr(WF+12*ks+8,4)}, v1, s[{R_WS}:{R_WS+3}], s{S_T0} offen sc1")
                if ks < 8:
                    a(f"s_add_u32 s{S_T1}, s{S_T1}, 9216", f"s_add_u32 s{S_T0}, s{S_T0}, 9216")

        def mms(ks, ob, first):
            w = WF + 12 * ks
            x = []
            for tp in range(4):
                c = "0" if first else None
                x.append([M16(ACC + 4 * tp, w, ob + 4 * tp, c), M16(ACC + 16 + 4 * tp, w + 4, ob + 4 * tp, c)] + ([M16(ACC + 32, w + 8, ob, c)] if tp == 0 else []))
            return x

        def loads(bt):
            buf = OB[bt % 2]
            x = []
            for k in range(3):
                ks = 3 * bt + k
                x.append(f"s_add_u32 s{S_T0}, s{S_OEXB}, {ks*4096}")
                for tp in range(4):
                    r = buf + 16 * k + 4 * tp
                    if ks < 8:
                        x.append(f"buffer_load_dwordx4 {vr(r,4)}, v{104+tp}, s[{R_WS}:{R_WS+3}], s{S_T0} offen sc0 sc1")
                    else:
                        x += [f"buffer_load_dword v{r+j}, v{108+tp}, s[{R_WS}:{R_WS+3}], s{S_T0} offen offset:{j*256} sc0 sc1" for j in range(4)]
            return x
        wo_loads(0)
        a("v_lshlrev_b32 v6, 6, v0", f"s_add_u32 s{S_T0}, s{S_OEXB}, 32768", f"s_mov_b32 s{S_CNT}, {SPIN}",
          "L_pre:", f"buffer_load_dword v7, v6, s[{R_WS}:{R_WS+3}], s{S_T0} offen sc0 sc1", f"s_sub_u32 s{S_CNT}, s{S_CNT}, 1",
          "s_cbranch_scc1 L_pred", "s_waitcnt vmcnt(0)", "v_cmp_eq_u32 vcc, -1, v7", "s_cbranch_vccz L_pred", "s_sleep 8", "s_branch L_pre", "L_pred:")
        self.stamp(2, 1)
        a(loads(0), loads(1))
        for bt in range(3):
            buf = OB[bt % 2]
            a(f"s_waitcnt vmcnt({ {0: 12, 1: 24, 2: 0}[bt] })", f"L_chk{bt}:", f"v_max3_u32 v6, v{buf}, v{buf+1}, v{buf+2}", f"v_max3_u32 v7, v{buf+3}, v{buf+4}, v{buf+5}")
            for j in range(6, 48, 4):
                if j + 3 < 48:
                    a(f"v_max3_u32 v6, v6, v{buf+j}, v{buf+j+1}", f"v_max3_u32 v7, v7, v{buf+j+2}, v{buf+j+3}")
                else:
                    a(f"v_max3_u32 v6, v6, v{buf+j}, v{buf+j+1}")
            a("v_max_u32 v6, v6, v7", "v_cmp_eq_u32 vcc, -1, v6", f"s_cbranch_vccz L_ok{bt}",
              f"s_sub_u32 s{S_CNT}, s{S_CNT}, 1", f"s_cbranch_scc1 L_ok{bt}", "s_waitcnt vmcnt(0)", loads(bt), "s_waitcnt vmcnt(0)", f"s_branch L_chk{bt}", f"L_ok{bt}:")
            for k in range(3):
                a(mms(3 * bt + k, buf + 16 * k, bt == 0 and k == 0))
            if bt == 0:
                a(loads(2))
        self.stamp(3, 1)
        wo_loads(1)
        for tp in range(4):
            a(f"v_add_u32 v{104+tp}, {L_KV}, v{104+tp}", f"v_add_u32 v{108+tp}, {L_KV+32768}, v{108+tp}")
        OUTF = ['', ' sc1', ' sc0 sc1', ' nt'][o['outf']]
        a(f"s_mul_i32 s{S_T0}, s{S_PG}, {64*2304}", f"s_mul_i32 s{S_T1}, s{S_B}, 1152", f"s_add_u32 s{S_T0}, s{S_T0}, s{S_T1}", f"s_mul_i32 s{S_T1}, s{S_HG}, 288",
          f"s_add_u32 s{S_T0}, s{S_T0}, s{S_T1}", f"s_lshl_b32 s{S_T1}, s{S_WAVE}, 6", f"s_add_u32 s{S_T1}, s{S_T1}, s{S_T0}",
          "v_and_b32 v100, 15, v0", "v_mul_u32_u24 v100, 0x900, v100", "v_lshrrev_b32 v102, 4, v0", "v_lshl_add_u32 v101, v102, 3, v100", "v_lshl_add_u32 v100, v102, 4, v100")
        for tp in range(4):
            a(f"s_xor_b32 s{S_T2}, s{S_WAVE}, {tp}", f"s_mul_i32 s{S_T2}, s{S_T2}, {16*2304}", f"s_add_u32 s{30+tp}, s{S_T2}, s{S_T1}")
            if tp == 0:
                a(f"s_add_u32 s34, s{S_T2}, s{S_T0}")
        a("s_waitcnt vmcnt(0)")
        self.stamp(6, 1)
        self.coop_load(5, "e")
        self.stamp(4, 1 if o['set'] == 1 else 0)
        NBUF = 8
        seq = [(tp, ks) for tp in (1, 2, 3, 0) for ks in range(9)]

        def lrd(n):
            tp, ks = seq[n]
            r = 8 + 4 * (n % NBUF)
            if ks < 8:
                return [f"ds_read_b128 {vr(r,4)}, v{104+tp} offset:{ks*4096}"]
            return [f"ds_read2st64_b32 {vr(r,2)}, v{108+tp} offset0:0 offset1:1", f"ds_read2st64_b32 {vr(r+2,2)}, v{108+tp} offset0:2 offset1:3"]

        def outp(tp):
            r = 56 + 4 * tp
            x = [f"v_cvt_pk_bf16_f32 v{r}, v{ACC+4*tp}, v{ACC+4*tp+1}", f"v_cvt_pk_bf16_f32 v{r+1}, v{ACC+4*tp+2}, v{ACC+4*tp+3}",
                 f"v_cvt_pk_bf16_f32 v{r+2}, v{ACC+16+4*tp}, v{ACC+16+4*tp+1}", f"v_cvt_pk_bf16_f32 v{r+3}, v{ACC+16+4*tp+2}, v{ACC+16+4*tp+3}",
                 f"buffer_store_dwordx4 {vr(r,4)}, v100, s[{R_OUT}:{R_OUT+3}], s{30+tp} offen{OUTF}"]
            if tp == 0:
                x += [f"v_cvt_pk_bf16_f32 v72, v{ACC+32}, v{ACC+33}", f"v_cvt_pk_bf16_f32 v73, v{ACC+34}, v{ACC+35}",
                      f"buffer_store_dwordx2 v[72:73], v101, s[{R_OUT}:{R_OUT+3}], s34 offen offset:256{OUTF}"]
            return x
        PF = NBUF - 1
        pend = []
        for n in range(PF):
            a(lrd(n))
            pend.append(len(lrd(n)))
        for n, (tp, ks) in enumerate(seq):
            pend.pop(0)
            ob = 8 + 4 * (n % NBUF)
            w = WF + 12 * ks
            a(f"s_waitcnt lgkmcnt({sum(pend)})", M16(ACC + 4 * tp, w, ob), M16(ACC + 16 + 4 * tp, w + 4, ob))
            if tp == 0:
                a(M16(ACC + 32, w + 8, ob))
            if n + PF < len(seq):
                a(lrd(n + PF))
                pend.append(len(lrd(n + PF)))
            if ks == 2 and n > 9:
                a(outp(seq[n - 9][0]))
        a("s_nop 5", outp(0))
        if o['stamps'] or o['dbgspan'] or o['ampk']:
            a("s_waitcnt vmcnt(0)")
            self.stamp(5, o['set'] if o['set'] in (1, 4) else 0)
        if o['ampk']:
            a("s_waitcnt lgkmcnt(0)", f"s_sub_u32 s{S_T0}, s{S_ST+2*o['ampb']}, s{S_ST+2*o['ampa']}")
            if o['avg']:
                a(f"s_cmp_lg_u32 s{S_WAVE}, 0", "s_cbranch_scc1 L_end", "s_mov_b64 exec, 1", "v_mov_b32 v8, 0", f"v_mov_b32 v9, s{S_T0}", "v_mov_b32 v10, 1",
                  f"buffer_atomic_add v9, v8, s[{R_DBG}:{R_DBG+3}], 0 offen offset:16 sc1", "s_waitcnt vmcnt(0)",
                  f"buffer_atomic_add v10, v8, s[{R_DBG}:{R_DBG+3}], 0 offen offset:144 sc0 sc1", "s_waitcnt vmcnt(0)", "v_cmp_eq_u32 vcc, 0xff, v10", "s_cbranch_vccz L_end",
                  f"buffer_load_dword v9, v8, s[{R_DBG}:{R_DBG+3}], 0 offen offset:16 sc0 sc1", "s_waitcnt vmcnt(0)", f"v_readfirstlane_b32 s{S_T0}, v9", "s_nop 3", f"s_mul_i32 s{S_T0}, s{S_T0}, {o['ampk']}", f"s_lshr_b32 s{S_T0}, s{S_T0}, 8")
            else:
                a(f"s_mul_i32 s{S_T0}, s{S_T0}, {o['ampk']}" if o['ampk'] > 0 else f"s_lshr_b32 s{S_T0}, s{S_T0}, {-o['ampk']}")
            a("s_memrealtime s[18:19]", f"s_min_u32 s{S_T0}, s{S_T0}, 100000",
              "L_amp:", "s_memrealtime s[16:17]", "s_waitcnt lgkmcnt(0)", "s_sub_u32 s16, s16, s18", f"s_cmp_lt_u32 s16, s{S_T0}", "s_cbranch_scc1 L_amp")
        self.dump_stamps()
        a("L_end:", "s_endpgm")

    def build(self):
        self.start()
        self.early_front()
        self.late_front()
        self.attention()
        self.oproj()
        self.fallback()
        hdr = ("; fused MQA attention x2 (QKV proj + softmax attention + out proj), one launch, 1 workgroup per CU\n"
               f"; @launch grid=(256,1,1) block=(512,1,1) lds={LDS_BYTES}\n"
               '.amdgcn_target "amdgcn-amd-amdhsa--gfx950"\n.text\n'
               f".globl {NAME}\n.p2align 8\n.type {NAME},@function\n{NAME}:\n")
        if self.o['of'] & 1:
            self.a.L = [x.replace(" sc0 sc1", " sc1") if "buffer_store" in x and f"s[{R_WS}:" in x else x for x in self.a.L]
        if self.o['of'] & 2:
            self.a.L = [x.replace(" sc0 sc1", " sc1") if "buffer_load" in x and f"s[{R_WS}:" in x else x for x in self.a.L]
        body = "".join((x + "\n") if x.endswith(":") else ("    " + x + "\n") for x in self.a.L)
        t = table()
        tab = ".p2align 6\n.type L_table,@object\nL_table:\n" + "".join("    .long " + ", ".join(str(int(v)) for v in row) + "\n" for row in t)
        tab += f".fill (1024 - ((. - {NAME}) & 1023)) & 1023, 1, 0\nL_codeend:\n.size L_table, L_codeend-L_table\n"
        kd = f""".section .rodata,"a"
.p2align 6
.amdhsa_kernel {NAME}
  .amdhsa_next_free_vgpr 256
  .amdhsa_next_free_sgpr 102
  .amdhsa_accum_offset 256
  .amdhsa_group_segment_fixed_size 0
  .amdhsa_kernarg_size 104
  .amdhsa_user_sgpr_count 2
  .amdhsa_user_sgpr_kernarg_segment_ptr 1
  .amdhsa_system_sgpr_workgroup_id_x 1
.end_amdhsa_kernel
"""
        return hdr + body + tab + kd


if __name__ == "__main__":
    out = sys.argv[1]
    opt = {}
    for kv in sys.argv[2:]:
        k, v = kv.split("=")
        opt[k] = int(v)
    g = Gen(opt)
    open(out, "w").write(g.build())
```

```python
import sys, math, struct
import numpy as np

NAME = "concat_heads__grouped_kv_mqa__grouped_kv_mqa__prompt_kernel"

VG = 608
PB = 2048 + 256 + 4 * VG
KVB = 32 * PB
L_KV = 12288
L_HAND = 0
L_KMAX = 10240
L_FLAG = 10256
L_S0 = 12288
L_S1 = L_S0 + 36864
L_PS = L_S1 + 36864
L_W = 62464
L_X = 90112
SLOT = 4608
LDS_BYTES = 163840
WS_KV = 0
WS_KN = KVB
WS_XID = WS_KN + 1024
WS_CNT = 0x26000
WS_WOT = 0x28000
WS_OEX = 0xD0000
WS_BR = 0x400000
WS_STAMP = 0x1000000
OEX_G = 73728
OEX_W = 18432
CSCALE = math.log2(math.e) / math.sqrt(18.0)
TSAFE = 40.0
SPIN = 200000


def f2u(x):
    return struct.unpack("<I", struct.pack("<f", x))[0]


def dslot(d):
    if d < 6:
        return d * 2 * SLOT
    if d < 17:
        return L_W + (d - 6) * 2 * SLOT
    return 4 * 2 * SLOT


def slot_addr(ks):
    return dslot(ks >> 1) + (ks & 1) * SLOT


G0 = [0, 1, 2, 3, 12, 13, 14, 15, 20]
G1 = [4, 5, 6, 7, 8, 9, 10, 11, 16]
POS_ONES, POS_ZERO = 22, 23


def vpos(h, row):
    if row in G0:
        return [list(range(0, 9)), [18, 19, 20, 21, 24, 25, 26, 27, 28]][h][G0.index(row)]
    if row in G1:
        return [list(range(9, 18)), list(range(29, 38))][h][G1.index(row)]
    if row in (17, 21):
        return POS_ONES
    return POS_ZERO


def table():
    t = np.zeros((64, 4), dtype=np.uint32)
    for l in range(64):
        t[l, 0] = L_KV + 2304 + vpos(l >> 5, l & 31) * 16
        n, g = l & 15, l >> 4
        t[l, 1] = vpos(g >> 1, n) * 16 + (g & 1) * 8
        p = {0: vpos(g >> 1, 16), 1: vpos(g >> 1, 20), 2: POS_ONES, 3: POS_ZERO}.get(n, POS_ZERO)
        t[l, 2] = p * 16 + (g & 1) * 8
    return t


def vr(a, n=1):
    return f"v[{a}:{a+n-1}]" if n > 1 else f"v{a}"


def sr(a, n=1):
    return f"s[{a}:{a+n-1}]" if n > 1 else f"s{a}"


S_WAVE = 3
R_X, R_WQ, R_W, R_WO, R_WS, R_OUT, R_DBG = 44, 48, 52, 56, 60, 64, 68
S_B, S_HG, S_GI, S_PG, S_I = 4, 5, 6, 7, 8
S_T0, S_T1, S_T2, S_T3, S_T4, S_T5 = 9, 10, 11, 12, 13, 14
S_CNT = 15
S_M0A, S_M0R, S_ROW = 72, 73, 74
S_BAR = 75
S_PBI, S_HQ = 76, 77
S_EX = 42
S_KVS = 80
S_OEX = 81
S_STG = 82
S_OEXB = 78
S_SAME, S_OA, S_OB, S_OW = 26, 27, 28, 25
V_OA, V_OB, V_JN = 144, 145, 146
S_XI, S_XB, S_XS, S_XM = 83, 100, 101, 79
S_DI, S_DS, S_LI, S_LS = 72, 73, 74, 75
S_ST = 84

V_IDX, V_AK, V_AR, V_AV = 2, 3, 4, 5
QM = [8, 12]
QR = 16
KR = [18, 20]
O = [24, 40]
KM = [56, 60]
VV = [[64, 68], [72, 76]]
S = [80, 112]


class A:
    def __init__(self):
        self.L = []

    def __call__(self, *xs):
        for x in xs:
            if isinstance(x, (list, tuple)):
                self(*x)
            else:
                self.L.append(x)

    def label(self, n):
        self.L.append(n + ":")


def K16(d, a, b, c=None):
    return f"v_mfma_f32_32x32x16_bf16 {vr(d,16)}, {vr(a,4)}, {vr(b,4)}, {c if c else vr(d,16)}"


def M16(d, a, b, c=None):
    return f"v_mfma_f32_16x16x32_bf16 {vr(d,4)}, {vr(a,4)}, {vr(b,4)}, {c if c else vr(d,4)}"


def B2(d, a, b, abid):
    return f"v_mfma_f32_32x32x4_2b_bf16 {vr(d,32)}, {vr(a,2)}, {vr(b,2)}, 0 cbsz:1 abid:{abid}"


def K8Z(d, z):
    return f"v_mfma_f32_32x32x8_bf16 {vr(d,16)}, {vr(z,2)}, {vr(z,2)}, 0"


def SM(d, a, b):
    return f"v_smfmac_f32_32x32x32_bf16 {vr(d,16)}, {vr(a,4)}, {vr(b,8)}, v{V_IDX}"


def EX(r, n):
    return [f"v_exp_f32 v{r+i}, v{r+i}" for i in range(n)]


def srd(a, dst, lo, hi, size):
    a(f"s_mov_b32 s{dst}, {lo}", f"s_mov_b32 s{dst+1}, {hi}", f"s_mov_b32 s{dst+2}, {size}", f"s_mov_b32 s{dst+3}, 0x20000")


class Gen:
    def __init__(self, opt):
        self.o = dict(unp=4, barit=1, stamps=False, force_fb=False, prefetch=True, prio=True, dbgspan=0, tp=1, x2j=31, amps=0, p1=3, p2=5, p3=7, lo0=0, lo1=0, ka=2, lnorm=1, xper=3, dly=0, d0l=1, pre=2, xe=0, sigb2=1, tre=1, badv0=0, shard=1, nslow=64, spf=0, avg=0, xcc=1, xp=0, outf=0, of=0, ampa=0, ampb=0, ampk=0, set=0, nb=5, kv1=6, pd=2, win=3, t1=7, t2=9, sb=18)
        self.o.update(opt)
        self.a = A()
        self.nst = 0

    def stamp(self, i, st=0):
        if i not in (0, 7) and st != self.o['set']:
            return
        if self.o['stamps'] or self.o['dbgspan'] or self.o['ampk']:
            cyc = self.o['stamps'] == 2 or self.o['ampk'] < 0
            self.a(f"{'s_memtime' if cyc else 's_memrealtime'} s[{S_ST+2*i}:{S_ST+2*i+1}]")

    def dump_stamps(self):
        if self.o['dbgspan']:
            a = self.a
            n = self.nst = self.nst + 1
            a("s_waitcnt lgkmcnt(0)", f"s_cmp_lg_u32 s{S_I}, 0", f"s_cbranch_scc1 L_nodump{n}", "s_mov_b64 exec, 1", "v_mov_b32 v8, 0", f"s_not_b32 s{S_T0}, s{S_ST}", f"v_mov_b32 v9, s{S_T0}",
              f"buffer_atomic_umax v9, v8, s[{R_DBG}:{R_DBG+3}], 0 offen offset:8 sc1")
            for k, i in enumerate((0, 1, 3, 6, 7, 5) if n == 2 else (1, 2, 4, 5, 6, 7)):
                a(f"v_mov_b32 v{10+k}, s{S_ST+2*i}", f"buffer_atomic_umax v{10+k}, v8, s[{R_DBG}:{R_DBG+3}], 0 offen offset:{(12 if n == 2 else 36)+4*k} sc1")
            a(f"L_nodump{n}:")
            return
        if not self.o['stamps']:
            return
        a = self.a
        a("s_waitcnt lgkmcnt(0)", f"s_lshl_b32 s{S_T0}, s2, 3", f"s_add_u32 s{S_T0}, s{S_T0}, s{S_WAVE}", f"s_lshl_b32 s{S_T0}, s{S_T0}, 6",
          f"s_mul_i32 s{S_T1}, s{S_B}, {WS_BR}", f"s_sub_u32 s{S_T0}, s{S_T0}, s{S_T1}", f"s_add_u32 s{S_T0}, s{S_T0}, {WS_STAMP}",
          f"s_mov_b32 s{R_WS+2}, 0x2000000", "v_mov_b32 v8, 0")
        for i in range(4):
            for k in range(4):
                a(f"v_mov_b32 v{12+k}, s{S_ST+4*i+k}")
            a(f"buffer_store_dwordx4 v[12:15], v8, s[{R_WS}:{R_WS+3}], s{S_T0} offen offset:{16*i}", "s_nop 1")

    def kv_dma(self, p0, n):
        a = self.a
        for k in range(n):
            a(f"s_add_u32 m0, s{S_M0A}, {L_KV + (p0 + 4*k)*1024}", f"s_add_u32 s{S_T0}, s{S_KVS}, 4096",
              f"buffer_load_dwordx4 v1, s[{R_WS}:{R_WS+3}], s{S_KVS} offen sc1 lds",
              f"s_cmp_ge_u32 s{S_T0}, {KVB}", f"s_cselect_b32 s{S_T1}, {KVB}, 0", f"s_sub_u32 s{S_KVS}, s{S_T0}, s{S_T1}")

    def row_max16(self, v):
        a = self.a
        for k in (8, 4, 2, 1):
            a("s_nop 1", f"v_max_f32_dpp v{v}, v{v}, v{v} row_ror:{k} row_mask:0xf bank_mask:0xf")

    def rest_srds(self):
        a = self.a
        a(f"s_mov_b32 s{R_WO+2}, 663552", f"s_mov_b32 s{R_WO+3}, 0x20000",
          f"s_mul_i32 s{S_T0}, s{S_B}, {WS_BR}", f"s_add_u32 s{R_WS}, s40, s{S_T0}", f"s_addc_u32 s{R_WS+1}, s41, 0",
          f"s_mov_b32 s{R_WS+2}, {WS_OEX + 32*OEX_G}", f"s_mov_b32 s{R_WS+3}, 0x20000")
        srd(a, R_OUT, "s36", "s37", 4718592)
        srd(a, R_DBG, "s38", "s39", 256)

    def norm2(self, x, y):
        a = self.a
        for j in range(4):
            for (qm, qr, dst, tmp) in (x, y):
                a(f"v_dot2_f32_bf16 v{dst}, v{qm+j}, v{qm+j}, {'0' if j == 0 else 'v%d' % dst}",
                  f"v_dot2_f32_bf16 v{tmp}, v{qm+4+j}, v{qm+4+j}, {'0' if j == 0 else 'v%d' % tmp}")
        a("s_nop 0", f"v_permlane32_swap_b32 v{x[2]}, v{x[3]}", "s_nop 0", f"v_permlane32_swap_b32 v{y[2]}, v{y[3]}",
          f"v_add_f32 v{x[2]}, v{x[2]}, v{x[3]}", f"v_add_f32 v{y[2]}, v{y[2]}, v{y[3]}",
          f"v_dot2_f32_bf16 v{x[2]}, v{x[1]}, v{x[1]}, v{x[2]}", f"v_dot2_f32_bf16 v{y[2]}, v{y[1]}, v{y[1]}, v{y[2]}", "s_nop 1",
          f"v_sqrt_f32 v{x[2]}, v{x[2]}", f"v_sqrt_f32 v{y[2]}, v{y[2]}")

    def norm1(self, qm, qr, dst, tmp):
        a = self.a
        for j in range(4):
            a(f"v_dot2_f32_bf16 v{dst}, v{qm+j}, v{qm+j}, {'0' if j == 0 else 'v%d' % dst}",
              f"v_dot2_f32_bf16 v{tmp}, v{qm+4+j}, v{qm+4+j}, {'0' if j == 0 else 'v%d' % tmp}")
        a("s_nop 2", f"v_permlane32_swap_b32 v{dst}, v{tmp}", "s_nop 0", f"v_add_f32 v{dst}, v{dst}, v{tmp}",
          f"v_dot2_f32_bf16 v{dst}, v{qr}, v{qr}, v{dst}", "s_nop 2", f"v_sqrt_f32 v{dst}, v{dst}")

    def init_main_regs(self):
        a = self.a
        a(f"v_mov_b32 v{KR[0]+1}, 0x3f803f80", f"v_mov_b32 v{KR[1]+1}, 0x3f803f80")
        for r in range(O[0], O[0] + 32):
            a(f"v_mov_b32 v{r}, 0")
        for r in range(S[1] + 24, S[1] + 32):
            a(f"v_mov_b32 v{r}, 0")
        for r in range(VV[1][1], VV[1][1] + 4):
            a(f"v_mov_b32 v{r}, 0")

    def ldKm(self, kb):
        return [f"ds_read_b128 {vr(KM[kb%2],4)}, v{V_AK} offset:{(kb//2)*PB+(kb%2)*1024}"]

    def ldKr(self, p):
        return [f"ds_read_b32 v{KR[p%2]}, v{V_AR} offset:{p*PB}"]

    def ldV(self, kb):
        return [f"ds_read_b128 {vr(VV[kb%2][i],4)}, v{V_AV} offset:{(kb//2)*PB+((kb%2)*2+i)*VG}" for i in range(2)]

    def qk(self, dst, kb):
        return [B2(dst, KR[(kb//2) % 2], QR, kb % 2), K16(dst, KM[kb % 2], QM[0]), K16(dst + 16, KM[kb % 2], QM[1])]

    def main_prologue_loads(self):
        self.a(self.ldKr(0), self.ldKm(0), self.ldKm(1), self.ldKr(1), self.ldV(0))

    def start(self):
        a, o = self.a, self.o
        a("s_cmp_ge_u32 s2, 256", "s_cbranch_scc1 L_end")
        a("s_load_dwordx16 s[16:31], s[0:1], 0", "s_load_dwordx8 s[32:39], s[0:1], 64", "s_load_dwordx2 s[40:41], s[0:1], 96")
        self.stamp(0)
        a("s_getpc_b64 s[42:43]", "L_pc:")
        a("v_lshrrev_b32 v1, 6, v0", "v_and_b32 v0, 63, v0", f"v_readfirstlane_b32 s{S_WAVE}, v1", "v_lshlrev_b32 v1, 4, v0",
          f"s_lshr_b32 s{S_T2}, s2, 3", f"s_and_b32 s{S_B}, s2, 1", f"s_and_b32 s{S_HG}, s{S_T2}, 3", f"s_lshr_b32 s{S_GI}, s2, 5")
        if o['prefetch']:
            a(f"s_cmp_lg_u32 s{S_WAVE}, 7", "s_cbranch_scc1 L_nopf", f"s_cmp_ge_u32 s{S_T2}, (L_codeend-{NAME})/1024", "s_cbranch_scc1 L_nopf",
              f"s_lshl_b32 s{S_T2}, s{S_T2}, 10", f"s_sub_u32 s{S_T0}, s42, L_pc-{NAME}", f"s_subb_u32 s{S_T1}, s43, 0",
              f"s_add_u32 s{S_T0}, s{S_T0}, s{S_T2}", f"s_addc_u32 s{S_T1}, s{S_T1}, 0",
              f"v_mov_b32 v7, s{S_T1}", f"v_add_co_u32 v6, vcc, s{S_T0}, v1", "s_nop 1", "v_addc_co_u32 v7, vcc, 0, v7, vcc", "s_nop 0",
              "global_load_dwordx4 v[24:27], v[6:7], off", "L_nopf:")
        a(f"s_bfe_u32 s{S_PG}, s2, 0x20001", f"s_lshl_b32 s{S_PG}, s{S_PG}, 3", f"s_add_u32 s{S_PG}, s{S_PG}, s{S_GI}",
          f"s_and_b32 s{S_I}, s{S_WAVE}, 3", f"s_and_b32 s{S_PBI}, s{S_WAVE}, 1", f"s_lshr_b32 s{S_HQ}, s{S_I}, 1")
        a("v_lshrrev_b32 v8, 3, v0", "v_lshrrev_b32 v9, 4, v0", f"s_lshl_b32 s{S_T0}, s{S_PBI}, 2", f"v_or_b32 v9, s{S_T0}, v9",
          "v_and_b32 v10, 7, v0", "v_xor_b32 v9, v9, v10", "v_lshlrev_b32 v9, 4, v9", "v_mov_b32 v10, 0x480", "v_mad_u32_u24 v8, v8, v10, v9",
          f"s_lshl_b32 s{S_T0}, s{S_I}, 6", f"v_add_u32 v9, s{S_T0}, v0", "v_mul_u32_u24 v10, 0xab, v9", "v_lshrrev_b32 v10, 9, v10", "v_mul_u32_u24 v10, 12, v10",
          "v_lshlrev_b32 v9, 4, v9", "v_sub_u32 v9, v9, v10")
        a(f"s_and_b32 s{S_T4}, s{S_HG}, 2", f"s_lshl_b32 s{S_T4}, s{S_T4}, 1", f"s_add_u32 s{S_T4}, s{S_T4}, s{S_I}",
          f"s_lshl_b32 s{S_T5}, s{S_PG}, 3", f"s_add_u32 s{S_XB}, s{S_T5}, s{S_T4}", f"s_mul_i32 s{S_XB}, s{S_XB}, {8*1152}",
          f"s_mul_i32 s{S_XM}, s{S_T4}, 9216", f"s_add_u32 s{S_XM}, s{S_XM}, {L_X}", f"s_lshl_b32 s{S_T0}, s{S_I}, 10", f"s_add_u32 s{S_T0}, s{S_T0}, {L_W}",
          f"s_lshr_b32 s{S_T1}, s{S_HG}, 1", f"s_movk_i32 s{S_DI}, 3072", f"s_movk_i32 s{S_DS}, 2304",
          f"s_cmp_lt_u32 s{S_WAVE}, 4", "s_cselect_b64 vcc, -1, 0", f"s_cselect_b32 s{S_XB}, s{S_XB}, 0", f"s_cselect_b32 s{S_XM}, s{S_XM}, s{S_T0}",
          f"s_cselect_b32 s{S_T1}, s{S_HG}, s{S_T1}", f"s_cselect_b32 s{S_DI}, 1024, s{S_DI}", f"s_cselect_b32 s{S_DS}, 128, s{S_DS}",
          "v_cndmask_b32 v9, v9, v8, vcc")
        self.dma9_setup(S_T1)
        a("s_waitcnt lgkmcnt(0)", f"s_cmp_eq_u32 s{S_B}, 0", f"s_cselect_b64 s[{R_X}:{R_X+1}], s[16:17], s[26:27]",
          f"s_cselect_b64 s[20:21], s[20:21], s[30:31]", f"s_cselect_b64 s[22:23], s[22:23], s[32:33]",
          f"s_cselect_b64 s[{R_WQ}:{R_WQ+1}], s[18:19], s[28:29]", f"s_cselect_b64 s[{R_WO}:{R_WO+1}], s[24:25], s[34:35]",
          f"s_bitcmp0_b32 s{S_HG}, 0", f"s_cselect_b64 s[{R_W}:{R_W+1}], s[20:21], s[22:23]", f"s_mov_b32 s{R_X+2}, 2359296", f"s_movk_i32 s{R_W+2}, 20736",
          f"s_cmp_lt_u32 s{S_WAVE}, 4", f"s_cselect_b64 s[{R_W}:{R_W+1}], s[{R_X}:{R_X+1}], s[{R_W}:{R_W+1}]", f"s_cselect_b32 s{R_W+2}, s{R_X+2}, s{R_W+2}",
          f"s_mov_b32 s{R_W+3}, 0x20000", f"s_mov_b32 s{R_X+3}, 0x20000")
        self.stamp(1, 2)
        a(f"s_cmp_lt_u32 s{S_WAVE}, 4", "s_cbranch_scc1 L_r1", "s_setprio 1", f"s_cmp_eq_u32 s{S_WAVE}, 7", "s_cbranch_scc1 L_late", "L_r1:")
        self.dma9(R_W, 9)
        a(f"s_cmp_ge_u32 s{S_WAVE}, 4", "s_cbranch_scc1 L_late")

    def wq_prefetch(self, n, first):
        a = self.a
        a(f"s_mov_b32 s{R_WQ+2}, 663552", f"s_mov_b32 s{R_WQ+3}, 0x20000", "v_lshlrev_b32 v30, 7, v0", f"s_lshr_b32 s{S_T0}, s2, 3", f"s_mul_i32 s{S_T0}, s{S_T0}, 20736")
        if first:
            a(f"s_mul_i32 s{S_T1}, s{first}, 6912", f"s_add_u32 s{S_T0}, s{S_T0}, s{S_T1}")
        a("s_mov_b32 exec_hi, 0x3fffff")
        for k in range(n):
            a(f"buffer_load_dword v{108+k}, v30, s[{R_WQ}:{R_WQ+3}], s{S_T0} offen", f"s_add_u32 s{S_T0}, s{S_T0}, 6912")
        a("s_mov_b32 exec_hi, -1")

    def dma9_setup(self, sel):
        self.a(f"s_bitcmp1_b32 s{sel}, 0", f"s_cselect_b32 s{S_XI}, 5, 0",
               f"s_add_u32 s{S_XS}, s{S_XI}, s{S_GI}", f"s_cmp_ge_u32 s{S_XS}, 9", f"s_cselect_b32 s{S_T0}, 9, 0", f"s_sub_u32 s{S_XS}, s{S_XS}, s{S_T0}",
               f"s_mul_i32 s{S_XS}, s{S_XS}, s{S_DS}", f"s_mul_i32 s{S_XI}, s{S_XI}, s{S_DI}", f"s_mul_i32 s{S_LI}, s{S_DI}, 9", f"s_mul_i32 s{S_LS}, s{S_DS}, 9")

    def dma9(self, srd_, v):
        for i in range(9):
            self.a(f"s_add_u32 m0, s{S_XM}, s{S_XI}", f"s_add_u32 s{S_T3}, s{S_XB}, s{S_XS}",
                   f"buffer_load_dwordx4 v{v}, s[{srd_}:{srd_+3}], s{S_T3} offen lds")
            if i < 8:
                self.a(f"s_add_u32 s{S_XS}, s{S_XS}, s{S_DS}", f"s_cmp_eq_u32 s{S_XS}, s{S_LS}", f"s_cselect_b32 s{S_XS}, 0, s{S_XS}",
                       f"s_add_u32 s{S_XI}, s{S_XI}, s{S_DI}", f"s_cmp_eq_u32 s{S_XI}, s{S_LI}", f"s_cselect_b32 s{S_XI}, 0, s{S_XI}")

    def table_load(self):
        self.a(f"s_add_u32 s{S_T0}, s42, L_table-L_pc", f"s_addc_u32 s{S_T1}, s43, 0",
               f"v_mov_b32 v7, s{S_T1}", f"v_add_co_u32 v6, vcc, s{S_T0}, v1", "s_nop 1", "v_addc_co_u32 v7, vcc, 0, v7, vcc", "s_nop 0",
               "global_load_dwordx4 v[20:23], v[6:7], off")

    def wq_setup(self, d, part=3):
        a = self.a
        if part & 1:
            a(f"s_mov_b32 s{R_WQ+2}, 663552", f"s_mov_b32 s{R_WQ+3}, 0x20000", f"s_lshl_b32 s{S_T0}, s{S_I}, 6", f"s_mul_i32 s{S_T1}, s{S_HG}, 288", "v_mov_b32 v16, 0x480")
        for t in range(3 if part & 1 else 0):
            a(f"v_add_u32 v13, s{S_T0}, v0", "v_mul_u32_u24 v14, 0xe39, v13", "v_lshrrev_b32 v14, 16, v14",
              "v_mul_u32_u24 v15, 18, v14", "v_sub_u32 v13, v13, v15", "v_lshlrev_b32 v13, 4, v13",
              "v_bfe_u32 v15, v14, 1, 2", "v_and_b32 v17, 1, v14", "v_lshl_add_u32 v15, v17, 2, v15", "v_and_b32 v14, 24, v14", "v_add_u32 v14, v14, v15",
              "v_mad_u32_u24 v13, v14, v16, v13", f"v_add_u32 v{10+t}, s{S_T1}, v13")
            if t < 2:
                a(f"s_add_u32 s{S_T0}, s{S_T0}, 192")
        if not part & 2:
            return
        a(f"s_lshl_b32 s{S_M0A}, s{S_I}, 10", f"s_mul_i32 s{S_ROW}, s{S_GI}, {64*1152}")
        if d:
            a(f"s_add_u32 s{S_ROW}, s{S_ROW}, {32*d*1152}", f"s_cmp_ge_u32 s{S_ROW}, {576*1152}",
              f"s_cselect_b32 s{S_T0}, {576*1152}, 0", f"s_sub_u32 s{S_ROW}, s{S_ROW}, s{S_T0}")

    def wq_list(self, d):
        n = self.nlab = getattr(self, 'nlab', 0) + 1
        s0 = dslot(d)
        ld = lambda r: f"buffer_load_dwordx4 v{r}, s[{R_WQ}:{R_WQ+3}], s{S_ROW} offen lds"
        return [f"s_cbranch_vccz L_wq{n}",
                f"s_add_u32 m0, s{S_M0A}, {s0}", f"s_add_u32 s{S_T0}, s{S_ROW}, {32*1152}", ld(10),
                f"s_add_u32 m0, s{S_M0A}, {s0+3072}", "s_nop 0", ld(11),
                f"s_add_u32 m0, s{S_M0A}, {s0+6144}", f"s_cmp_ge_u32 s{S_T0}, {576*1152}", ld(12),
                f"s_cselect_b32 s{S_T1}, {576*1152}, 0", f"s_sub_u32 s{S_ROW}, s{S_T0}, s{S_T1}", f"L_wq{n}:"]

    def wq_dma(self, d):
        self.a(self.wq_list(d))

    def loader_flag(self):
        self.a(f"s_cmp_lt_u32 s{S_I}, 3", "s_cselect_b64 vcc, -1, 0")

    @property
    def GROUPS(self):
        if self.o['pre'] == 5:
            return [(3, 2), (5, 6), (7, 10), (9, 14), (11, 18), (13, 22), (15, 26), (17, 30)]
        if self.o['pre'] == 1:
            return [(3, 2), (5, 6), (7, 10), (9, 14), (11, 18), (13, 22), (15, 26), (17, 30)]
        if self.o['pre'] == 2:
            return [(2, 2), (3, 4), (5, 6), (7, 10), (9, 14), (11, 18), (13, 22), (15, 26), (17, 30)]
        return [(3, 2), (5, 6), (7, 10), (9, 14), (11, 18), (13, 22), (15, 26), (17, 30)]

    def early_front(self):
        a, o = self.a, self.o
        self.stamp(2, 2)
        if o['spf'] == 5:
            a(f"s_cmp_lg_u32 s{S_WAVE}, 3", "s_cbranch_scc1 L_nospf", "s_waitcnt vmcnt(6)")
            self.wq_prefetch(3, None)
            a("L_nospf:")
        self.table_load()
        self.wq_setup(0)
        self.loader_flag()
        if not o['d0l']:
            self.wq_dma(0)
        self.rest_srds()
        a("v_and_b32 v16, 31, v0", "v_lshrrev_b32 v13, 5, v0", "v_bfe_u32 v14, v0, 1, 3", "v_xor_b32 v13, v13, v14", "v_lshlrev_b32 v13, 4, v13",
          "v_and_b32 v14, 7, v0", "v_lshl_add_u32 v13, v14, 7, v13", "v_lshrrev_b32 v16, 3, v16", "v_mul_u32_u24 v16, 0x2400, v16",
          f"s_mul_i32 s{S_T0}, s{S_PBI}, {4*9216}", f"s_add_u32 s{S_T0}, s{S_T0}, {L_X}", f"v_add3_u32 v8, v16, v13, s{S_T0}",
          "v_xor_b32 v9, 32, v8", "v_xor_b32 v108, 64, v8", "v_xor_b32 v109, 0x60, v8")
        a("v_bfe_u32 v18, v0, 2, 2", "v_lshrrev_b32 v15, 5, v0", "v_lshlrev_b32 v15, 2, v15", "v_add_u32 v15, v15, v18", "v_mul_u32_u24 v15, 0x240, v15",
          f"s_mul_i32 s{S_T0}, s{S_HQ}, 144", "v_and_b32 v13, 1, v0", "v_lshl_add_u32 v15, v13, 4, v15", f"v_add_u32 v15, s{S_T0}, v15",
          "v_bfe_u32 v13, v0, 1, 1", "v_bfe_u32 v14, v0, 4, 1", "v_lshl_add_u32 v6, v13, 3, v15", "v_lshl_add_u32 v6, v14, 5, v6",
          "v_mul_u32_u24 v13, 72, v13", "v_add3_u32 v7, v13, v15, 48")
        a(f"s_mul_i32 s{S_T0}, s{S_WAVE}, 2560", f"v_add_u32 v17, s{S_T0}, v1", "v_lshlrev_b32 v18, 3, v0", f"v_add_u32 v18, s{S_T0}, v18",
          f"v_mov_b32 v{V_IDX}, 0xdddddddd", f"v_add_u32 v{V_AK}, {L_KV}, v1", f"v_lshlrev_b32 v{V_AR}, 2, v0", f"v_add_u32 v{V_AR}, {L_KV+2048}, v{V_AR}",
          "v_mov_b32 v110, 0", "v_mov_b32 v111, 0", f"v_mov_b32 v19, {L_KMAX}")
        if o['d0l']:
            a("s_waitcnt vmcnt(1)")
        else:
            a(f"s_cmp_eq_u32 s{S_WAVE}, 3", "s_cbranch_scc0 L_e3", f"s_waitcnt vmcnt({4 if o['spf'] == 5 else 1})", "L_e3:", "s_waitcnt vmcnt(4)")
        self.stamp(3, 2)
        a("s_barrier")
        PRE = o['pre']
        for d in range(PRE + 1):
            self.wq_dma(d)
        a(f"s_cmp_eq_u32 s{S_WAVE}, 3", "s_cbranch_scc0 L_e4", "s_waitcnt vmcnt(0)", "L_e4:", f"s_waitcnt vmcnt({3*(PRE-1)})", f"v_mov_b32 v{V_AV}, v20", "v_mov_b32 v21, 0x3f803f80")
        self.stamp(1)
        self.stamp(4, 2)
        a("s_barrier")
        self.stamp(5, 2)
        XF = 112
        T0, T1, TR = 24, 40, 56
        PD = o['pd']
        FB = [72, 84, 96]
        state = dict(base=0)

        def rd(ks):
            x = []
            off = slot_addr(ks) - state['base']
            if off < 0 or off + 360 > 65535:
                d = slot_addr(ks) - state['base']
                x += [f"v_add_u32 v{r}, {d}, v{r}" if d > 0 else f"v_subrev_u32 v{r}, {-d}, v{r}" for r in (6, 7)]
                state['base'] = slot_addr(ks)
                off = 0
            f = FB[ks % (PD + 1)]
            return x, [f"ds_read_b64_tr_b16 {vr(f,2)}, v6 offset:{off}", f"ds_read_b64_tr_b16 {vr(f+2,2)}, v6 offset:{off+288}",
                       f"ds_read_b64_tr_b16 {vr(f+4,2)}, v6 offset:{off+72}", f"ds_read_b64_tr_b16 {vr(f+6,2)}, v6 offset:{off+360}",
                       f"ds_read_b64_tr_b16 {vr(f+8,2)}, v7 offset:{off}", f"ds_read_b64_tr_b16 {vr(f+10,2)}, v7 offset:{off+288}"]

        def mm(ks):
            f = FB[ks % (PD + 1)]
            c = "0" if ks == 0 else None
            return [K16(T0, f, XF + 4 * ks, c), K16(T1, f + 4, XF + 4 * ks, c), K16(TR, f + 8, XF + 4 * ks, c)]
        XA = [8, 9, 108, 109]
        q = []

        def issue(tag, ins):
            a(ins)
            q.append(tag)

        def need(*tags):
            last = max((i for i, t in enumerate(q) if t in tags), default=-1)
            if last >= 0:
                left = len(q) - 1 - last
                a(f"s_waitcnt lgkmcnt({min(left, 14)})")
                del q[:last + 1]

        def xrd(i):
            issue(('x', i), f"ds_read_b128 {vr(XF+4*i,4)}, v{XA[i&3]} offset:{(i>>2)*1024}")
        xrd(0)
        for j, r in enumerate(rd(0)[1]):
            issue(('w', 0, j >> 1), r)
        xrd(1)
        for j, r in enumerate(rd(1)[1]):
            issue(('w', 1, j >> 1), r)
        nx = 2
        G = [k for _, k in self.GROUPS]
        ev = {k: ["s_barrier"] for k in G}
        prev = 1
        for last, k in self.GROUPS:
            if prev < PRE:
                ev[k] = [f"s_waitcnt vmcnt({3*max(PRE-last, 0)})", "s_barrier"]
            prev = last
        for ks in range(36):
            m = mm(ks)
            if ks in ev:
                if ks == 6:
                    assert nx == 36 and not any(t[0] == 'x' for t in q)
                if len(ev[ks]) > 1 and o["stamps"]:
                    a(ev[ks][0])
                if ks in (2, 6, 10, 14, 22, 30):
                    self.stamp(1 + (2, 6, 10, 14, 22, 30).index(ks), 3)
                a(ev[ks])
                if ks == 6:
                    self.stamp(2)
                    self.stamp(6, 2)
            pre, n = rd(ks + 2) if ks + 2 < 36 else ([], [])
            fine = nx < 36 or ks == 35
            if not fine:
                need(('x', ks), ('w', ks, 2))
            for t in range(3):
                if fine:
                    need(('x', ks), ('w', ks, t))
                a(m[t])
                if t == 0:
                    a(pre)
                for k in range(o['xper']):
                    if nx < 36:
                        xrd(nx)
                        nx += 1
                for r in n[2*t:2*t+2]:
                    issue(('w', ks + 2, t), r)
        self.stamp(3)
        H = 96
        a("v_mov_b32 v22, v17", "v_mov_b32 v23, v18", "v_mov_b32 v7, v19", f"v_mov_b32 v{KR[0]+1}, 0x3f803f80", f"s_mov_b32 s{S_BAR}, {32//o['unp'] - o['barit']}", f"s_mov_b32 s{S_STG}, 0", f"s_mov_b32 s{S_SAME}, 0")
        a("s_mov_b32 vcc_lo, 0", "s_mov_b32 vcc_hi, -1")
        for (dst, t) in ((QM[0], T0), (H, T1)):
            for j, r in enumerate((0, 2, 4, 6, 10, 12, 14)):
                a(f"v_cvt_pk_bf16_f32 v{dst+j}, v{t+r}, v{t+r+1}")
        for (dst, qr, t, t2, tmp) in ((H, H + 8, T1, TR + 4, 107), (QM[0], QR, T0, TR, 108)):
            a(f"v_cvt_pk_bf16_f32 v{dst+7}, v{t2}, v{t2+1}", f"v_cvt_pk_bf16_f32 v{qr}, v{t+8}, v{t+9}", f"v_cvt_pk_bf16_f32 v{tmp}, v{t2+2}, v{t2+3}")
        a(f"v_cndmask_b32 v{H+8}, v{H+8}, v107, vcc", f"v_cndmask_b32 v{QR}, v{QR}, v108, vcc")
        a(f"ds_write_b128 v22, {vr(H,4)}", f"ds_write_b128 v22, {vr(H+4,4)} offset:1024")
        if o['lnorm']:
            a(f"ds_write_b64 v23, {vr(H+8,2)} offset:2048")
            self.norm1(QM[0], QR, QR + 1, 108)
        else:
            self.norm2((H, H + 8, H + 9, 107), (QM[0], QR, QR + 1, 108))
            a(f"ds_write_b64 v23, {vr(H+8,2)} offset:2048")
        a(K8Z(O[0], 110), K8Z(O[1], 110))
        if o['dly']:
            a("s_memrealtime s[18:19]", "L_dly:", "s_memrealtime s[16:17]", "s_waitcnt lgkmcnt(0)", "s_sub_u32 s16, s16, s18", f"s_cmp_lt_u32 s16, {o['dly']}", "s_cbranch_scc1 L_dly")
        a("s_waitcnt lgkmcnt(0)")
        a("s_barrier")
        a("ds_read_b32 v6, v7")
        self.main_prologue_loads()
        a([f"v_mov_b32 v{r}, 0" for r in range(VV[1][1], VV[1][1] + 4)])
        if o['prio']:
            a("s_setprio 3")
        a("s_waitcnt lgkmcnt(0)", "s_branch L_attn")

    def late_front(self):
        a, o = self.a, self.o
        a.label("L_late")
        a("s_setprio 0")
        if o['spf'] == 3:
            a(f"s_cmp_lg_u32 s{S_WAVE}, 7", "s_cbranch_scc1 L_nospf")
            self.wq_prefetch(3, None)
            a("L_nospf:")
        if o['spf'] == 4:
            a(f"s_cmp_eq_u32 s{S_WAVE}, 7", "s_cbranch_scc1 L_nospf")
            self.wq_prefetch(1, S_I)
            a("L_nospf:")
        self.stamp(2, 2)
        self.rest_srds()
        if o['shard']:
            a("v_and_b32 v160, 7, v0", "v_lshlrev_b32 v160, 9, v160", f"s_cmp_lg_u32 s{S_WAVE}, 7", "s_cbranch_scc1 L_nov0", f"s_mov_b32 s{S_T0}, {WS_CNT}",
              f"buffer_load_dword v161, v160, s[{R_WS}:{R_WS+3}], s{S_T0} offen sc0 sc1", "L_nov0:")
        self.wq_setup(6, 1)
        a(f"s_xor_b32 s{S_T4}, s{S_T4}, 4", f"s_add_u32 s{S_XB}, s{S_T5}, s{S_T4}", f"s_mul_i32 s{S_XB}, s{S_XB}, {8*1152}",
          f"s_mul_i32 s{S_XM}, s{S_T4}, 9216", f"s_add_u32 s{S_XM}, s{S_XM}, {L_X}", f"s_movk_i32 s{S_DI}, 1024", f"s_movk_i32 s{S_DS}, 128")
        a("v_and_b32 v13, 15, v0", "v_lshrrev_b32 v16, 4, v0",
          "v_bfe_u32 v17, v0, 1, 3", "v_xor_b32 v17, v16, v17", "v_lshlrev_b32 v17, 4, v17",
          "v_and_b32 v18, 7, v0", "v_lshl_add_u32 v17, v18, 7, v17", "v_bfe_u32 v18, v0, 3, 1", "v_mul_u32_u24 v18, 0x2400, v18",
          f"s_lshr_b32 s{S_T0}, s{S_HG}, 1", f"s_lshl_b32 s{S_T0}, s{S_T0}, 1", f"s_add_u32 s{S_T0}, s{S_T0}, s{S_PBI}",
          f"s_mul_i32 s{S_T1}, s{S_T0}, {2*9216}", f"s_add_u32 s{S_T1}, s{S_T1}, {L_X}", f"v_add3_u32 v14, v17, v18, s{S_T1}", "v_xor_b32 v15, 64, v14",
          "v_bfe_u32 v17, v0, 2, 2", "v_lshl_add_u32 v17, v16, 3, v17",
          "v_mul_u32_u24 v17, 48, v17", "v_and_b32 v18, 3, v0", "v_lshlrev_b32 v18, 3, v18",
          f"s_cmp_eq_u32 s{S_HQ}, 0", "s_cselect_b64 vcc, -1, 0", "v_mov_b32 v19, 32", "v_cndmask_b32 v18, v19, v18, vcc", f"v_add_u32 v17, {L_W}, v17", "v_add_u32 v17, v17, v18")
        a("v_lshrrev_b32 v19, 5, v0", "v_lshlrev_b32 v19, 9, v19", "v_lshl_add_u32 v19, v13, 4, v19",
          "v_bfe_u32 v18, v0, 4, 1", "v_lshl_add_u32 v28, v18, 3, v19", "v_lshlrev_b32 v29, 2, v13",
          f"s_mul_i32 s{S_KVS}, s{S_PG}, {PB}", f"s_mov_b32 s{S_OEX}, s{S_T0}")
        self.dma9_setup(S_HG)
        self.dma9(R_X, 8)
        self.stamp(3, 2)
        self.table_load()
        if o['spf'] == 2:
            a(f"s_cmp_lg_u32 s{S_WAVE}, 7", "s_cbranch_scc1 L_nospf")
            self.wq_prefetch(3, None)
            a("L_nospf:")
        a("s_setprio 1", "s_waitcnt vmcnt(10)")
        self.stamp(1)
        self.stamp(4, 2)
        a("s_barrier")
        a(f"s_bitcmp1_b32 s{S_HG}, 0", "s_cbranch_scc1 L_vproj")
        D = 32
        NB = o['nb']
        for isv in (0, 1):
            if isv:
                a.label("L_vproj")

            def rd(s):
                xb = 40 + 8 * (s % NB)
                return [f"ds_read_b128 {vr(xb,4)}, v{14+(s&1)} offset:{(s>>1)*1024}",
                        f"ds_read_b64_tr_b16 {vr(xb+4,2)}, v17 offset:{s*1536}", f"ds_read_b64_tr_b16 {vr(xb+6,2)}, v17 offset:{s*1536+192}"]
            for s in range(NB - 1):
                a(rd(s))
            for s in range(18):
                if s == o['sb']:
                    a("s_waitcnt vmcnt(0)", "s_barrier")
                if s == 17 and o['sb'] == 18:
                    a("s_waitcnt vmcnt(0)")
                if s + NB - 1 < 18:
                    a(rd(s + NB - 1))
                left = min(18 - 1 - s, NB - 1)
                xb = 40 + 8 * (s % NB)
                c = "0" if s == 0 else None
                a(f"s_waitcnt lgkmcnt({min(15,3*left)})", M16(D, xb, xb + 4, c) if isv else M16(D, xb + 4, xb, c))
            g = S_OEX
            if not isv:
                a(f"s_lshr_b32 s{S_T0}, s{g}, 1", f"s_lshl_b32 s{S_T0}, s{S_T0}, 10", f"s_lshl_b32 s{S_T1}, s{S_PBI}, 8", f"s_add_u32 s{S_T0}, s{S_T0}, s{S_T1}",
                  f"s_add_u32 s{S_T0}, s{S_T0}, s{S_KVS}",
                  f"s_lshl_b32 s{S_T1}, s{g}, 6", f"s_add_u32 s{S_T1}, s{S_T1}, s{S_KVS}", f"s_add_u32 s{S_T1}, s{S_T1}, 2048",
                  f"s_mov_b32 s{S_T2}, {hex(f2u(CSCALE))}")
                for r in range(4):
                    a(f"v_mul_f32 v{D+r}, s{S_T2}, v{D+r}")
                a(f"v_cvt_pk_bf16_f32 v{D}, v{D}, v{D+1}", f"v_cvt_pk_bf16_f32 v{D+1}, v{D+2}, v{D+3}",
                  f"s_lshl_b32 s{S_T3}, s{S_PG}, 2", f"s_add_u32 s{S_T3}, s{S_T3}, s{g}", f"s_lshl_b32 s{S_T3}, s{S_T3}, 2", f"s_add_u32 s{S_T3}, s{S_T3}, {WS_KN}",
                  f"v_dot2_f32_bf16 v36, v{D}, v{D}, 0",
                  f"s_cmp_eq_u32 s{S_HQ}, 0", "s_cbranch_scc0 L_krem",
                  f"buffer_store_dwordx2 {vr(D,2)}, v28, s[{R_WS}:{R_WS+3}], s{S_T0} offen sc1",
                  f"v_dot2_f32_bf16 v36, v{D+1}, v{D+1}, v36", "s_nop 2", "v_mov_b32 v37, v36", "s_nop 1",
                  "v_permlane16_swap_b32 v36, v37", "s_nop 1", "v_add_f32 v36, v36, v37", "s_nop 0", "v_mov_b32 v37, v36", "s_nop 1",
                  "v_permlane32_swap_b32 v36, v37", "s_nop 1", "v_add_f32 v36, v36, v37", "s_branch L_knorm",
                  "L_krem:", "s_mov_b64 exec, 0xffff",
                  f"buffer_store_dword v{D}, v29, s[{R_WS}:{R_WS+3}], s{S_T1} offen sc1", "s_mov_b64 exec, -1", f"s_add_u32 s{S_T3}, s{S_T3}, 512",
                  "L_knorm:", "s_nop 1")
                self.row_max16(36)
                a("v_mov_b32 v37, 0", "s_mov_b64 exec, 1", f"buffer_store_dword v36, v37, s[{R_WS}:{R_WS+3}], s{S_T3} offen sc1", "s_mov_b64 exec, -1",
                  "s_branch L_kvdone")
            else:
                a(f"s_mul_i32 s{S_T0}, s{g}, {VG}", f"s_add_u32 s{S_T0}, s{S_T0}, s{S_KVS}", f"s_add_u32 s{S_T0}, s{S_T0}, 2304",
                  "v_cmp_eq_u32 vcc, 2, v13", f"v_cmp_eq_u32 s[{S_EX}:{S_EX+1}], 3, v13", "v_mov_b32 v30, 0x3f803f80", "s_nop 0",
                  f"s_cmp_eq_u32 s{S_HQ}, 0",
                  f"v_cvt_pk_bf16_f32 v{D}, v{D}, v{D+1}", f"v_cvt_pk_bf16_f32 v{D+1}, v{D+2}, v{D+3}", "s_cbranch_scc0 L_vrem",
                  f"buffer_store_dwordx2 {vr(D,2)}, v21, s[{R_WS}:{R_WS+3}], s{S_T0} offen sc1", "s_branch L_kvdone",
                  "L_vrem:",
                  f"v_cndmask_b32 v{D}, v{D}, v30, vcc", f"v_cndmask_b32 v{D+1}, v{D+1}, v30, vcc",
                  f"v_cndmask_b32 v{D}, v{D}, 0, s[{S_EX}:{S_EX+1}]", f"v_cndmask_b32 v{D+1}, v{D+1}, 0, s[{S_EX}:{S_EX+1}]",
                  "s_mov_b32 exec_lo, 0x000f000f", "s_mov_b32 exec_hi, 0x000f000f",
                  f"buffer_store_dwordx2 {vr(D,2)}, v22, s[{R_WS}:{R_WS+3}], s{S_T0} offen sc1", "s_mov_b64 exec, -1")
        a.label("L_kvdone")
        if o['xcc']:
            a("s_getreg_b32 s29, hwreg(HW_REG_XCC_ID, 0, 4)", f"s_cmp_lg_u32 s{S_WAVE}, 4", "s_cbranch_scc1 L_noxid",
              f"s_lshl_b32 s{S_T0}, s{S_PG}, 2", f"s_add_u32 s{S_T0}, s{S_T0}, s{S_HG}", f"s_lshl_b32 s{S_T0}, s{S_T0}, 2", f"s_add_u32 s{S_T0}, s{S_T0}, {WS_XID}",
              "v_mov_b32 v38, s29", "v_mov_b32 v39, 0", "s_mov_b64 exec, 1", f"buffer_store_dword v38, v39, s[{R_WS}:{R_WS+3}], s{S_T0} offen sc1", "s_mov_b64 exec, -1", "L_noxid:")
        self.stamp(2)
        self.stamp(5, 2)
        a(f"v_mov_b32 v{V_AV}, v20")
        self.wq_setup(o['pre'] + 1, 2)
        self.loader_flag()
        a("v_mov_b32 v100, 1", "v_mov_b32 v101, 0")
        if o['sb'] == 18:
            a("s_barrier")
        nxt = first = o['pre'] + 1
        NG = len(self.GROUPS)
        passed = -1
        signalled = False
        for gi_, (last, step) in enumerate(self.GROUPS):
            lim = 5 if passed < 2 else 8 if passed < 6 else 16 if passed < 10 else 17
            tgt = min(last + o['win'], lim)
            while nxt <= tgt:
                self.wq_dma(nxt)
                nxt += 1
            assert nxt > last
            if step == 14:
                self.wo_job_addr(0)
                self.poison_addr()
            if step == 18:
                a(f"s_cmp_ge_u32 s{S_OEX}, {648-512}", "s_cselect_b32 s16, 0, 512", f"s_add_u32 s{S_OEX}, s{S_OEX}, s16")
                self.wo_job_addr(1)
                self.loader_flag()
            if gi_ == NG - 3:
                self.init_main_regs()
                a(f"s_and_b32 s{S_T0}, s{S_GI}, 3", f"s_mul_i32 s{S_KVS}, s{S_T0}, {37*1024}", f"s_add_u32 s{S_KVS}, s{S_KVS}, s{S_M0A}",
                  "v_lshlrev_b32 v153, 3, v0", f"s_mov_b32 s{S_T4}, {WS_KN}", f"s_lshl_b32 s{S_T5}, s{S_B}, 7")
            sig = last >= first and not signalled
            if sig:
                a(f"s_cbranch_vccnz L_l{gi_}", "s_waitcnt vmcnt(0)", f"L_l{gi_}:")
                signalled = True
            if last >= first:
                a(f"s_waitcnt vmcnt({3*(nxt-1-last)})")
            passed = step
            if step == 10:
                a(f"v_mov_b32 v150, {L_FLAG}", "v_mov_b32 v152, 0", "v_mov_b32 v153, 0", "v_mov_b32 v154, 0", "v_mov_b32 v155, 0", "v_mov_b32 v151, 0", "ds_write_b128 v150, v[152:155]", "s_waitcnt lgkmcnt(0)")
            if gi_ == NG - 3 and o['tre']:
                a("s_cbranch_vccnz L_try1", f"s_mov_b32 s{S_T0}, {WS_CNT}", f"buffer_load_dword v152, v160, s[{R_WS}:{R_WS+3}], s{S_T0} offen sc0 sc1", "L_try1:")
            if gi_ == NG - 2:
                assert nxt == 18
                if o['shard']:
                    a("s_cbranch_vccnz L_try0")
                    if not o['tre']:
                        a(f"s_mov_b32 s{S_T0}, {WS_CNT}", f"buffer_load_dword v152, v160, s[{R_WS}:{R_WS+3}], s{S_T0} offen sc0 sc1")
                    a("s_waitcnt vmcnt(0)",
                      "v_cmp_ne_u32 s[16:17], v152, v161", "s_cmp_eq_u64 s[16:17], 0", "s_cselect_b32 s16, 1, 0", "v_mov_b32 v152, s16", "ds_write_b32 v150, v152", "s_waitcnt lgkmcnt(0)", "L_try0:")
                else:
                    a("s_cbranch_vccnz L_try0", f"buffer_load_dword v152, v151, s[{R_DBG}:{R_DBG+3}], s{S_T5} offen sc0 sc1", "s_waitcnt vmcnt(0)",
                      "v_lshrrev_b32 v152, 7, v152", "ds_write_b32 v150, v152", "s_waitcnt lgkmcnt(0)", "L_try0:")
            if step in (2, 6, 10, 14, 22):
                self.stamp(1 + (2, 6, 10, 14, 22).index(step), 3)
            a("s_barrier")
            if sig:
                self.kv_signal()
            if gi_ == NG - 2:
                break
        kn = [f"s_cmp_lg_u32 s{S_WAVE}, 7", None, f"buffer_load_dwordx2 v[154:155], v153, s[{R_WS}:{R_WS+3}], s{S_T4} offen sc1",
              f"buffer_load_dwordx2 v[156:157], v153, s[{R_WS}:{R_WS+3}], s{S_T4} offen offset:512 sc1"]
        a("ds_read_b32 v152, v150", "s_waitcnt lgkmcnt(0)", "v_cmp_eq_u32 vcc, 0, v152", "s_cbranch_vccnz L_notyet")
        self.stamp(4)
        a(kn[0], "s_cbranch_scc1 L_kna", kn[2:], "L_kna:")
        self.kv_dma(0, o['ka'])
        a(f"s_cmp_eq_u32 s{S_WAVE}, 7", "s_cbranch_scc1 L_knb", f"s_waitcnt vmcnt({o['ka']})", "L_knb:")
        self.stamp(6, 3)
        a("s_barrier")
        self.kv_dma(4 * o['ka'], o['kv1'] - o['ka'])
        a("s_branch L_first")
        a("L_notyet:", "s_waitcnt vmcnt(0)")
        self.stamp(6, 3)
        a("s_barrier")
        a(f"s_mov_b32 s{S_CNT}, {SPIN}", f"s_cmp_lg_u32 s{S_WAVE}, 7", "s_cbranch_scc1 L_relay")
        if o['shard']:
            a(f"s_mov_b32 s{S_T0}, {WS_CNT}", "L_poll1:", f"buffer_load_dword v152, v160, s[{R_WS}:{R_WS+3}], s{S_T0} offen sc0 sc1",
              f"s_cmp_gt_u32 s{S_CNT}, {SPIN - o['nslow']}", "s_cbranch_scc1 L_pf", f"s_cmp_lg_u32 s{S_CNT}, {SPIN - o['nslow']}", "s_cbranch_scc1 L_ps",
              "s_mov_b64 exec, 1", f"buffer_atomic_add v100, v101, s[{R_DBG}:{R_DBG+3}], s{S_T5} offen sc1", "s_mov_b64 exec, -1",
              "L_ps:", f"buffer_load_dwordx2 v[162:163], v151, s[{R_DBG}:{R_DBG+3}], s{S_T5} offen sc0 sc1", "s_waitcnt vmcnt(0)",
              "v_lshrrev_b32 v162, 7, v162", "v_or_b32 v162, v162, v163", "v_cmp_ne_u32 vcc, 0, v162", "s_cbranch_vccnz L_poll1d",
              "L_pf:", f"s_sub_u32 s{S_CNT}, s{S_CNT}, 1", "s_cbranch_scc1 L_poll1d", "s_waitcnt vmcnt(0)", "v_cmp_ne_u32 vcc, v152, v161", "s_cbranch_vccnz L_poll1")
        else:
            a("L_poll1:", f"buffer_load_dword v152, v151, s[{R_DBG}:{R_DBG+3}], s{S_T5} offen sc0 sc1", f"s_sub_u32 s{S_CNT}, s{S_CNT}, 1",
              "s_cbranch_scc1 L_poll1d", "s_waitcnt vmcnt(0)", "v_cmp_gt_u32 vcc, 0x80, v152", "s_cbranch_vccnz L_poll1")
        a("L_poll1d:", "v_mov_b32 v152, 1", "ds_write_b32 v150, v152", kn[2:], "s_branch L_flagok")
        a("L_relay:", "ds_read_b32 v152, v150", f"s_sub_u32 s{S_CNT}, s{S_CNT}, 1", "s_cbranch_scc1 L_flagok", "s_waitcnt lgkmcnt(0)",
          "v_cmp_eq_u32 vcc, 0, v152", "s_cbranch_vccnz L_relay", "L_flagok:")
        self.stamp(4)
        self.kv_dma(0, o['kv1'])
        a("L_first:")
        self.stamp(3)
        self.stamp(6, 2)
        a(f"s_cmp_lg_u32 s{S_WAVE}, 7", "s_cbranch_scc1 L_nokn", f"s_waitcnt vmcnt({o['kv1']})", "v_max_f32 v154, v154, v155", "v_max_f32 v156, v156, v157")
        self.row_max16(154)
        self.row_max16(156)
        a("s_nop 0")
        for k in range(4):
            a(f"v_readlane_b32 s{16+k}, v154, {16*k}", f"v_readlane_b32 s{20+k}, v156, {16*k}")
        a("s_nop 1", "s_max_u32 s16, s16, s17", "s_max_u32 s18, s18, s19", "s_max_u32 s20, s20, s21", "s_max_u32 s22, s22, s23",
          "s_max_u32 s16, s16, s18", "s_max_u32 s20, s20, s22", "v_mov_b32 v154, s16", "v_add_f32 v154, s20, v154", "v_sqrt_f32 v154, v154",
          f"v_mov_b32 v155, {L_KMAX}", "ds_write_b32 v155, v154", "L_nokn:")
        a(f"v_mov_b32 v{V_IDX}, 0xdddddddd", f"v_add_u32 v{V_AK}, {L_KV}, v1", f"v_lshlrev_b32 v{V_AR}, 2, v0", f"v_add_u32 v{V_AR}, {L_KV+2048}, v{V_AR}",
          f"s_mul_i32 s{S_T0}, s{S_I}, 2560", f"v_add_u32 v8, s{S_T0}, v1", "v_lshlrev_b32 v9, 3, v0", f"v_add_u32 v9, s{S_T0}, v9", f"v_mov_b32 v6, {L_KMAX}")
        a("s_waitcnt vmcnt(0) lgkmcnt(0)", "s_barrier")
        a("ds_read_b32 v6, v6", f"ds_read_b64 {vr(QR,2)}, v9 offset:2048", f"ds_read_b128 {vr(QM[1],4)}, v8 offset:1024", f"ds_read_b128 {vr(QM[0],4)}, v8")
        self.wo_job_loads(0)
        a(f"s_cmp_lt_u32 s{S_OEX}, 512", "s_cbranch_scc1 L_nowo2")
        self.wo_job_loads(1)
        a("L_nowo2:")
        self.kv_dma(4 * o['kv1'], 37 - o['kv1'])
        a("s_waitcnt vmcnt(0) lgkmcnt(0)")
        self.stamp(5)
        a("s_barrier")
        a("s_setprio 3")
        self.main_prologue_loads()
        self.poison()
        a(f"s_cmp_ge_u32 s{S_OEX}, 512", "s_cbranch_scc0 L_wo3")
        self.wo_job_finish(1)
        a(f"s_sub_u32 s{S_OEX}, s{S_OEX}, 512", "L_wo3:")
        self.wo_job_finish(0)
        if o['lnorm']:
            self.norm1(QM[0], QR, QR + 1, 149)
        a(f"s_mov_b32 s{S_BAR}, {32//o['unp'] - 1}", f"s_mov_b32 s{S_STG}, 1", f"s_mov_b32 s{S_SAME}, 0")
        a("s_waitcnt lgkmcnt(0)")

    def kv_signal(self):
        a, o = self.a, self.o
        if o['shard']:
            a("s_cbranch_vccnz L_nosig", "s_setprio 3", f"v_add_u32 v161, {17 if o['badv0'] else 16}, v161",
              f"s_bfe_u32 s{S_T0}, s2, 0x20001", f"s_lshl_b32 s{S_T0}, s{S_T0}, 1", f"s_and_b32 s{S_T1}, s{S_GI}, 1", f"s_add_u32 s{S_T0}, s{S_T0}, s{S_T1}",
              f"s_lshl_b32 s{S_T0}, s{S_T0}, 9", f"s_add_u32 s{S_T0}, s{S_T0}, {WS_CNT}", "s_mov_b64 exec, 1",
              f"buffer_atomic_add v100, v101, s[{R_WS}:{R_WS+3}], s{S_T0} offen sc1", "s_mov_b64 exec, -1", "s_setprio 1", "L_nosig:")
        else:
            a("s_cbranch_vccnz L_nosig", "s_setprio 3", f"s_lshl_b32 s{S_T0}, s{S_B}, 7", "s_mov_b64 exec, 1",
              f"buffer_atomic_add v100, v101, s[{R_DBG}:{R_DBG+3}], s{S_T0} offen sc1", "s_mov_b64 exec, -1", "s_setprio 1", "L_nosig:")

    def join_signal(self, v, tag):
        self.a(f"v_mov_b32 v{v}, {L_FLAG+4}", f"v_mov_b32 v{v+1}, 1", f"v_mov_b32 v{v+3}, 0", f"s_lshl_b32 s{S_T0}, s{S_B}, 7", "s_mov_b64 exec, 1",
               "s_waitcnt vmcnt(0)", f"ds_add_rtn_u32 v{v+2}, v{v}, v{v+1}", "s_waitcnt lgkmcnt(0)", f"v_cmp_eq_u32 vcc, 3, v{v+2}", f"s_cbranch_vccz L_js{tag}",
               f"buffer_atomic_add v{v+1}, v{v+3}, s[{R_DBG}:{R_DBG+3}], s{S_T0} offen offset:4 sc1", f"L_js{tag}:")

    def wo_job_addr(self, rep):
        a = self.a
        if rep == 0:
            a(f"s_lshl_b32 s{S_OEX}, s{S_PG}, 2", f"s_add_u32 s{S_OEX}, s{S_OEX}, s{S_HG}", f"s_lshl_b32 s{S_OEX}, s{S_OEX}, 2", f"s_add_u32 s{S_OEX}, s{S_OEX}, s{S_I}")
        f = S_OEX
        AD = 208 + 8 * rep
        a(f"s_mul_i32 s16, s{f}, 7282", "s_lshr_b32 s16, s16, 16", "s_mul_i32 s17, s16, 9", f"s_sub_u32 s17, s{f}, s17",
          "s_mul_i32 s18, s16, 7282", "s_lshr_b32 s18, s18, 16", "s_mul_i32 s19, s18, 9", "s_sub_u32 s19, s16, s19",
          "s_and_b32 s20, s18, 1", "s_lshr_b32 s21, s18, 1")
        a("s_mul_i32 s22, s21, 288", "s_lshr_b32 s23, s17, 1", "s_lshl_b32 s23, s23, 6", "s_add_u32 s22, s22, s23", "s_and_b32 s23, s17, 1", "s_lshl_b32 s23, s23, 3",
          "s_add_u32 s22, s22, s23", "s_cmp_eq_u32 s17, 8", "s_cselect_b32 s23, 3, 4",
          "v_bfe_u32 v200, v0, 2, 2", "v_lshlrev_b32 v200, s23, v200", "v_and_b32 v201, 3, v0", "v_lshl_add_u32 v200, v201, 1, v200", "v_add_u32 v200, s22, v200",
          f"s_mul_i32 s22, s20, {36*1152}", "s_cmp_eq_u32 s19, 8", f"s_cbranch_scc1 L_wok1_{rep}")
        cy = [(j & 3) + 8 * (j >> 2) for j in range(8)]
        a(f"s_mul_i32 s23, s19, {72*1152}", "s_add_u32 s22, s22, s23", "v_lshrrev_b32 v201, 5, v0", "v_bfe_u32 v202, v0, 4, 1",
          f"v_mul_u32_u24 v203, {4*1152}, v201", "v_add_u32 v203, v200, v203",
          f"v_mul_u32_u24 v204, {3*1152}, v201", f"v_sub_u32 v204, {16*1152}, v204", "v_mul_u32_u24 v204, v202, v204", f"v_add_u32 v{AD}, v203, v204")
        for j in range(1, 8):
            dj = 18 + cy[j-1] - cy[j]
            a(f"v_mul_u32_u24 v204, {dj*1152}, v202", f"v_add_u32 v204, {cy[j]*1152}, v204", f"v_add_u32 v{AD+j}, v203, v204")
        a(f"s_branch L_wold_{rep}", f"L_wok1_{rep}:", "v_lshrrev_b32 v201, 4, v0", f"v_mul_u32_u24 v201, {144*1152}, v201", "v_add_u32 v203, v200, v201")
        for j in range(8):
            hq, hh, e = j >> 2, (j >> 1) & 1, j & 1
            row = 72 * hq + 18 + ((16 + hh) if e else (11 + 4 * hh))
            a(f"v_add_u32 v{AD+j}, {row*1152}, v203")
        a(f"L_wold_{rep}:")
        a(f"s_mov_b32 s{30+rep}, s22")

    def wo_job_loads(self, rep):
        for j in range(8):
            self.a(f"buffer_load_ushort v{224+8*rep+j}, v{208+8*rep+j}, s[{R_WO}:{R_WO+3}], s{30+rep} offen")

    def wo_job_finish(self, rep):
        a = self.a
        DT = 224 + 8 * rep
        a(f"s_lshl_b32 s22, s{S_OEX}, 10", f"s_add_u32 s22, s22, {WS_WOT}")
        for j in range(4):
            a(f"v_lshl_or_b32 v{240+4*rep+j}, v{DT+1+2*j}, 16, v{DT+2*j}")
        a(f"buffer_store_dwordx4 {vr(240+4*rep,4)}, v1, s[{R_WS}:{R_WS+3}], s22 offen sc1")

    def poison_addr(self):
        a = self.a
        a([f"v_mov_b32 v{192+j}, -1" for j in range(4)])
        a(f"s_lshl_b32 s32, s{S_PG}, 2", f"s_add_u32 s32, s32, s{S_HG}", f"s_mul_i32 s32, s32, {OEX_W}", f"s_add_u32 s32, s32, {WS_OEX}",
          f"s_lshl_b32 s33, s{S_I}, 12", "s_add_u32 s33, s33, s32", f"s_lshl_b32 s34, s{S_PBI}, 10", "s_add_u32 s34, s34, s32", "s_add_u32 s34, s34, 16384")

    def poison(self):
        a = self.a
        for k in range(4):
            a(f"buffer_store_dwordx4 v[192:195], v1, s[{R_WS}:{R_WS+3}], s33 offen offset:{k*1024} sc0 sc1")
        a(f"buffer_store_dwordx4 v[192:195], v1, s[{R_WS}:{R_WS+3}], s34 offen sc0 sc1")

    def attention(self):
        a, o = self.a, self.o
        UNP = o['unp']
        a.label("L_attn")
        a(f"v_mul_f32 v7, v6, v{QR+1}", f"v_mov_b32 v6, {hex(f2u(-1.0 if o['force_fb'] else TSAFE))}",
          "v_cmp_nle_f32 vcc, v7, v6", "v_sub_f32 v7, 0, v7", f"v_cvt_pk_bf16_f32 v{QR+1}, v7, 0", "s_cbranch_vccnz L_fallback", "L_fbdone:")
        q = self.qk(S[0], 0)
        f1 = [f"s_mul_i32 s{S_OEXB}, s{S_PG}, {OEX_G}", f"s_add_u32 s{S_OEXB}, s{S_OEXB}, {WS_OEX}", f"s_mul_i32 s{S_OW}, s{S_HG}, {OEX_W}", f"s_add_u32 s{S_OW}, s{S_OW}, s{S_OEXB}",
              f"s_lshl_b32 s{S_T0}, s{S_STG}, 1", f"s_add_u32 s{S_T0}, s{S_T0}, s{S_HQ}", f"s_lshl_b32 s{S_T0}, s{S_T0}, 12", f"s_lshl_b32 s{S_T1}, s{S_PBI}, 11", f"s_add_u32 s{S_OA}, s{S_T0}, s{S_T1}",
              f"s_lshl_b32 s{S_T0}, s{S_STG}, 10", f"s_lshl_b32 s{S_T1}, s{S_PBI}, 9", f"s_add_u32 s{S_T0}, s{S_T0}, s{S_T1}", f"s_lshl_b32 s{S_T1}, s{S_HQ}, 7", f"s_add_u32 s{S_OB}, s{S_T0}, s{S_T1}",
              f"v_mov_b32 v{V_JN}, {L_FLAG+4}", f"s_mov_b32 s{S_CNT}, {32//UNP}", "v_bfe_u32 v6, v0, 4, 1", "v_lshrrev_b32 v7, 5, v0"]
        f2 = ["v_and_b32 v22, 15, v0", f"v_lshlrev_b32 v{V_OA}, 10, v6", f"v_lshl_add_u32 v{V_OA}, v7, 9, v{V_OA}", f"v_lshl_add_u32 v{V_OA}, v22, 4, v{V_OA}", f"v_add_u32 v{V_OA}, s{S_OA}, v{V_OA}",
              f"v_lshlrev_b32 v{V_OB}, 8, v6", f"v_lshl_add_u32 v{V_OB}, v7, 6, v{V_OB}", f"v_lshl_add_u32 v{V_OB}, v22, 2, v{V_OB}", f"v_add_u32 v{V_OB}, s{S_OB}, v{V_OB}",
              f"s_add_u32 s{S_OB}, s{S_OW}, 16384", "s_nop 0"]
        a("s_nop 0", q[0], f1, q[1], q[2], f2)
        self.stamp(6)
        body = []
        for kb in range(2 * UNP):
            cur, nxt = S[kb % 2], S[(kb + 1) % 2]
            q = self.qk(nxt, kb + 1)
            e = EX(cur, 32)
            sm3p = SM(O[1], VV[(kb - 1) % 2][1], nxt + 24)
            sm = [SM(O[0], VV[kb % 2][0], cur), SM(O[0], VV[kb % 2][1], cur + 8), SM(O[1], VV[kb % 2][0], cur + 16)]
            cl = self.ldKm(kb + 2) + (self.ldKr((kb + 3) // 2) if kb % 2 == 1 else []) + self.ldV(kb + 1)
            body += e[0:2] + [sm3p] + e[2:5] + [q[0]] + e[5:13] + ["s_waitcnt lgkmcnt(0)", sm[0]] + e[13:18] + [sm[1]] + e[18:21] + [q[1]] + e[21:24] + [q[2]] + cl + e[24:27] + [sm[2]] + e[27:32]
        body += [f"v_add_u32 v{V_AK}, {UNP*PB}, v{V_AK}", f"v_add_u32 v{V_AR}, {UNP*PB}, v{V_AR}", f"v_add_u32 v{V_AV}, {UNP*PB}, v{V_AV}"]
        self.loop_body = body
        a(".p2align 6", "L_main:", body, f"s_sub_u32 s{S_CNT}, s{S_CNT}, 1", f"s_cmp_lg_u32 s{S_CNT}, s{S_BAR}", "s_cbranch_scc0 L_event", "L_nob7:",
          f"s_cmp_lg_u32 s{S_CNT}, 0", "s_cbranch_scc1 L_main")
        a(f"ds_read_b32 v23, v{V_JN}", SM(O[1], VV[1][1], S[1] + 24))
        self.stamp(7)
        a("s_setprio 3", f"s_cmp_eq_u32 s{S_STG}, 0", "s_cbranch_scc1 L_nox1", "s_barrier", "L_nox1:")
        vals = [O[0] + j for j in range(9)] + [O[1] + j for j in range(9)]
        a(f"v_rcp_f32 v10, v{O[0]+9}", f"s_mov_b32 s{S_CNT}, {SPIN}")
        for r in vals[:9]:
            a(f"v_mul_f32 v{r}, v{r}, v10")
        for j in range(4):
            a(f"v_cvt_pk_bf16_f32 v{12+j}, v{vals[2*j]}, v{vals[2*j+1]}")
        a(f"v_rcp_f32 v11, v{O[1]+9}")
        a("L_pchk:", "s_waitcnt lgkmcnt(0)", "v_cmp_gt_u32 vcc, 4, v23", "s_cbranch_vccz L_pok",
          f"ds_read_b32 v23, v{V_JN}", f"s_sub_u32 s{S_CNT}, s{S_CNT}, 1", "s_cbranch_scc0 L_pchk", "L_pok:")
        a(f"s_cmp_eq_u32 s{S_SAME}, 1", "s_cbranch_scc1 L_pub1")
        for fl in (" sc0 sc1", ""):
            a(f"buffer_store_dwordx4 v[12:15], v{V_OA}, s[{R_WS}:{R_WS+3}], s{S_OW} offen{fl}")
            for r in vals[9:]:
                a(f"v_mul_f32 v{r}, v{r}, v11")
            for j in range(4, 9):
                a(f"v_cvt_pk_bf16_f32 v{12+j}, v{vals[2*j]}, v{vals[2*j+1]}")
                if j == 7:
                    a(f"buffer_store_dwordx4 v[16:19], v{V_OA}, s[{R_WS}:{R_WS+3}], s{S_OW} offen offset:256{fl}")
            a(f"buffer_store_dword v20, v{V_OB}, s[{R_WS}:{R_WS+3}], s{S_OB} offen{fl}")
            if fl:
                a("s_branch L_pub2", "L_pub1:")
        a("L_pub2:")
        self.oproj2()

    def events(self):
        a, o = self.a, self.o
        n = 32 // o['unp']
        assert L_PS + 36864 <= L_KV + o['p3'] * o['unp'] * PB and o['barit'] == 1 and 1 < o['p1'] < o['p2'] < o['p3'] < n
        a("L_event:", f"s_cmp_eq_u32 s{S_CNT}, {n - o['p1']}", "s_cbranch_scc1 L_ev1", f"s_cmp_eq_u32 s{S_CNT}, {n - o['p2']}", "s_cbranch_scc1 L_ev2",
          f"s_cmp_eq_u32 s{S_CNT}, {n - o['p3']}", "s_cbranch_scc1 L_ev3", f"s_mov_b32 s{S_BAR}, {n - o['p1']}",
          f"s_cmp_eq_u32 s{S_STG}, 0", "s_cbranch_scc0 L_ev0", "s_barrier", "s_branch L_nob7", "L_ev0:")
        self.join_signal(200, "l")
        a("s_mov_b64 exec, -1", "s_branch L_nob7")
        a("L_ev1:", "s_setprio 2", f"s_mov_b32 s{S_BAR}, {n - o['p2']}", "s_branch L_nob7")
        a("L_ev2:", f"s_mov_b32 s{S_T2}, {SPIN}", f"s_lshl_b32 s{S_T0}, s{S_B}, 7", "v_mov_b32 v147, 0",
          "L_poll2:", f"buffer_load_dword v148, v147, s[{R_DBG}:{R_DBG+3}], s{S_T0} offen offset:4 sc0 sc1", f"s_sub_u32 s{S_T2}, s{S_T2}, 1",
          "s_cbranch_scc1 L_poll2d", "s_waitcnt vmcnt(0)", "v_cmp_gt_u32 vcc, 0x80, v148", "s_cbranch_vccnz L_poll2", "L_poll2d:")
        if o['xcc']:
            a("s_getreg_b32 s29, hwreg(HW_REG_XCC_ID, 0, 4)", f"s_lshl_b32 s{S_T0}, s{S_PG}, 4", f"s_add_u32 s{S_T0}, s{S_T0}, {WS_XID}", "v_and_b32 v147, 3, v0", "v_lshlrev_b32 v147, 2, v147",
              f"buffer_load_dword v148, v147, s[{R_WS}:{R_WS+3}], s{S_T0} offen sc1", "s_waitcnt vmcnt(0)",
              "v_cmp_ne_u32 vcc, s29, v148", "s_cbranch_vccnz L_nosame", f"s_mov_b32 s{S_SAME}, 1", "L_nosame:")
        self.wo_loads(148)
        a("s_setprio 1", f"s_mov_b32 s{S_BAR}, {n - o['p3']}", "s_branch L_nob7")
        a("L_ev3:", "v_mov_b32 v147, 1", "s_mov_b64 exec, 1", f"ds_add_u32 v{V_JN}, v147 offset:4", "s_mov_b64 exec, -1")
        self.oproj()
        a("s_setprio 0", "s_branch L_nob7")

    def wo_loads(self, WF):
        a = self.a
        a(f"s_lshl_b32 s{S_T0}, s{S_HG}, 1", f"s_add_u32 s{S_T0}, s{S_T0}, s{S_STG}", f"s_mul_i32 s{S_T0}, s{S_T0}, {81*1024}", f"s_add_u32 s{S_T0}, s{S_T0}, {WS_WOT}",
          f"s_lshl_b32 s{S_T1}, s{S_I}, 11", f"s_add_u32 s{S_T1}, s{S_T1}, s{S_T0}", f"s_add_u32 s{S_T0}, s{S_T0}, 8192")
        for ks in range(9):
            a(f"buffer_load_dwordx4 {vr(WF+12*ks,4)}, v1, s[{R_WS}:{R_WS+3}], s{S_T1} offen sc1",
              f"buffer_load_dwordx4 {vr(WF+12*ks+4,4)}, v1, s[{R_WS}:{R_WS+3}], s{S_T1} offen offset:1024 sc1",
              f"buffer_load_dwordx4 {vr(WF+12*ks+8,4)}, v1, s[{R_WS}:{R_WS+3}], s{S_T0} offen sc1")
            if ks < 8:
                a(f"s_add_u32 s{S_T1}, s{S_T1}, 9216", f"s_add_u32 s{S_T0}, s{S_T0}, 9216")

    def fallback(self):
        a, o = self.a, self.o
        a.label("L_fallback")
        a(f"s_cmp_eq_u32 s{S_STG}, 1", "s_cbranch_scc1 L_fb1", "s_barrier", f"s_mov_b32 s{S_BAR}, {32//o['unp'] - o['p1']}", "L_fb1:")
        a(f"v_mov_b32 v{QR+1}, 0", f"v_mov_b32 v144, v{V_AK}", f"v_mov_b32 v145, v{V_AR}", "v_mov_b32 v146, 0xff800000", "v_mov_b32 v147, 0xff800000",
          "v_mov_b32 v151, 0x3f803f80", f"s_mov_b32 s{S_CNT}, 32", "L_fbl:",
          "ds_read_b32 v150, v145", "ds_read_b128 v[152:155], v144", "ds_read_b128 v[156:159], v144 offset:1024",
          f"v_add_u32 v144, {PB}, v144", f"v_add_u32 v145, {PB}, v145", "s_waitcnt lgkmcnt(0)")
        for h in range(2):
            a(B2(160, 150, QR, h), "s_nop 15", "s_nop 1", K16(160, 152 + 4 * h, QM[0]), K16(176, 152 + 4 * h, QM[1]), "s_nop 11")
            for j in range(8):
                a(f"v_max3_f32 v146, v146, v{160+2*j}, v{161+2*j}", f"v_max3_f32 v147, v147, v{176+2*j}, v{177+2*j}")
        a(f"s_sub_u32 s{S_CNT}, s{S_CNT}, 1", f"s_cmp_lg_u32 s{S_CNT}, 0", "s_cbranch_scc1 L_fbl",
          "s_nop 0", "v_permlane32_swap_b32 v146, v147", "s_nop 1", "v_max_f32 v146, v146, v147", "v_sub_f32 v146, 0, v146",
          "v_cvt_pk_bf16_f32 v147, v146, 0", "v_lshlrev_b32 v148, 16, v147", "v_sub_f32 v148, v146, v148", f"v_cvt_pk_bf16_f32 v{QR+1}, v146, v148",
          "s_branch L_fbdone")

    def oproj(self):
        a, o = self.a, self.o
        a(f"s_mul_i32 s24, s{S_STG}, {L_S1-L_S0}", f"s_add_u32 s24, s24, {L_S0}", f"s_lshl_b32 s23, s{S_STG}, 13", f"s_lshl_b32 s{S_T4}, s{S_STG}, 10", f"s_add_u32 s{S_T4}, s{S_T4}, 16384")
        for k in range(7):
            a(f"s_add_u32 s{S_T0}, s{S_I}, {4*k}")
            if k == 6:
                a(f"s_min_u32 s{S_T0}, s{S_T0}, 26")
            a(f"s_mul_i32 s{S_T1}, s{S_T0}, 7282", f"s_lshr_b32 s{S_T1}, s{S_T1}, 16", f"s_mul_i32 s{S_T2}, s{S_T1}, 9", f"s_sub_u32 s{S_T2}, s{S_T0}, s{S_T2}",
              f"s_add_u32 s{S_T1}, s{S_T1}, s{S_HG}", f"s_add_u32 s{S_T1}, s{S_T1}, 1", f"s_and_b32 s{S_T1}, s{S_T1}, 3",
              f"s_lshl_b32 s{S_T0}, s{S_T2}, 10", f"s_add_u32 s{S_T3}, s{S_T0}, s23", f"s_lshl_b32 s{S_T5}, s{S_T1}, 13", f"s_add_u32 s{S_T0}, s{S_T0}, s{S_T5}",
              f"s_lshl_b32 s{S_T5}, s{S_T1}, 10", f"s_add_u32 s{S_T5}, s{S_T5}, 32768",
              f"s_cmp_eq_u32 s{S_T2}, 8", f"s_cselect_b32 s{S_T3}, s{S_T4}, s{S_T3}", f"s_cselect_b32 s{S_T0}, s{S_T5}, s{S_T0}",
              f"s_add_u32 s{30+k}, s{S_T0}, s24", f"s_mul_i32 s{S_T1}, s{S_T1}, {OEX_W}", f"s_add_u32 s{S_T3}, s{S_T3}, s{S_T1}", f"s_add_u32 s{16+k}, s{S_T3}, s{S_OEXB}")
        a(f"s_mul_i32 s{S_T0}, s{S_PG}, {64*2304}", f"s_mul_i32 s{S_T1}, s{S_B}, 1152", f"s_add_u32 s{S_T0}, s{S_T0}, s{S_T1}", f"s_mul_i32 s{S_T1}, s{S_HG}, 288",
          f"s_add_u32 s{S_T0}, s{S_T0}, s{S_T1}", f"s_lshl_b32 s{S_T1}, s{S_I}, 6", f"s_add_u32 s{S_T1}, s{S_T1}, s{S_T0}")
        for tp in range(4):
            a(f"s_xor_b32 s{S_T2}, s{S_I}, {tp}", f"s_mul_i32 s{S_T2}, s{S_T2}, {16*2304}", f"s_add_u32 s{37+tp}, s{S_T2}, s{S_T1}")
            if tp == 0:
                a(f"s_add_u32 s41, s{S_T2}, s{S_T0}", "s_add_u32 s41, s41, 256")
        a(f"s_lshl_b32 s{S_T0}, s{S_HG}, 13", f"s_sub_u32 s23, s{S_T0}, s23", "s_add_u32 s23, s23, s24",
          f"s_sub_u32 s{S_T0}, s{S_HG}, s{S_STG}", f"s_lshl_b32 s{S_T0}, s{S_T0}, 10", f"s_add_u32 s42, s{S_T0}, s24", "s_add_u32 s42, s42, 32768")

    def oproj2(self):
        a, o = self.a, self.o
        WF, ACC, PB_, PS = 148, 56, 24, 124
        RING = [92 + 4 * i for i in range(8)]
        OUTF = ['', ' sc1', ' sc0 sc1', ' nt'][o['outf']]
        loads = [f"buffer_load_dwordx4 {vr(PB_+4*k,4)}, v1, s[{R_WS}:{R_WS+3}], s{16+k} offen sc0 sc1" for k in range(7)]
        a(f"ds_read_b32 v23, v{V_JN} offset:4", loads)
        a(f"v_add_u32 v{V_OA}, s23, v{V_OA}", f"v_add_u32 v{V_OB}, s42, v{V_OB}",
          f"s_lshl_b32 s{S_T0}, s{S_I}, 10", f"s_add_u32 s{S_T0}, s{S_T0}, s24", f"v_add_u32 v8, s{S_T0}, v1", "v_xor_b32 v9, 0x400, v8", "v_xor_b32 v10, 0x800, v8", "v_xor_b32 v11, 0xc00, v8",
          "v_lshrrev_b32 v6, 4, v0", "v_lshlrev_b32 v6, 10, v6", "v_and_b32 v7, 15, v0", "v_lshl_add_u32 v6, v7, 2, v6", f"s_lshl_b32 s{S_T0}, s{S_I}, 8", f"s_add_u32 s{S_T0}, s{S_T0}, s24",
          f"s_add_u32 s{S_T0}, s{S_T0}, 32768", f"v_add_u32 v52, s{S_T0}, v6", "v_xor_b32 v53, 0x100, v52", "v_xor_b32 v54, 0x200, v52", "v_xor_b32 v55, 0x300, v52",
          f"s_mul_i32 s{S_T0}, s{S_I}, 9216", f"s_add_u32 s{S_T0}, s{S_T0}, {L_PS}", f"v_add_u32 v21, s{S_T0}, v1", f"s_mov_b32 s{S_CNT}, {SPIN}")
        a("L_free:", "s_waitcnt lgkmcnt(0)", "v_cmp_gt_u32 vcc, 8, v23", "s_cbranch_vccz L_freed",
          f"ds_read_b32 v23, v{V_JN} offset:4", f"s_sub_u32 s{S_CNT}, s{S_CNT}, 1", "s_cbranch_scc0 L_free", "L_freed:")
        a(f"ds_write_b128 v{V_OA}, v[12:15]", f"ds_write_b128 v{V_OA}, v[16:19] offset:256", f"ds_write_b32 v{V_OB}, v20")
        self.stamp(1, 4)
        a(f"s_mov_b32 s{S_CNT}, {SPIN}", "L_cl:", "s_waitcnt vmcnt(0)")
        self.stamp(3, 4)
        a(f"v_max3_u32 v6, v{PB_}, v{PB_+1}, v{PB_+2}", f"v_max3_u32 v7, v{PB_+3}, v{PB_+4}, v{PB_+5}")
        for j in range(6, 28, 4):
            a(f"v_max3_u32 v6, v6, v{PB_+j}, v{PB_+j+1}")
            if j + 3 < 28:
                a(f"v_max3_u32 v7, v7, v{PB_+j+2}, v{PB_+j+3}")
        a("v_max_u32 v7, v7, v6", "v_cmp_eq_u32 vcc, -1, v7", "s_cbranch_vccz L_cld", f"s_sub_u32 s{S_CNT}, s{S_CNT}, 1", "s_cbranch_scc1 L_cld", loads, "s_branch L_cl", "L_cld:")
        self.stamp(2, 4)
        for k in range(7):
            a(f"v_add_u32 v{6+(k&1)}, s{30+k}, v1", f"ds_write_b128 v{6+(k&1)}, {vr(PB_+4*k,4)}")
        a("v_and_b32 v22, 15, v0", "v_mul_u32_u24 v22, 0x900, v22", "v_lshrrev_b32 v7, 4, v0", "v_lshl_add_u32 v23, v7, 3, v22", "v_lshl_add_u32 v22, v7, 4, v22")
        a(f"s_cmp_eq_u32 s{S_STG}, 0", "s_waitcnt lgkmcnt(0)", "s_barrier")
        self.stamp(4, 4)
        self.stamp(4, 0)
        q = []

        def issue(n, tp, ks):
            r = RING[n % 8]
            if ks < 8:
                a(f"ds_read_b128 {vr(r,4)}, v{8+tp} offset:{ks*4096}")
                q.append(n)
            else:
                a(f"ds_read2_b32 {vr(r,2)}, v{52+tp} offset0:0 offset1:16", f"ds_read2_b32 {vr(r+2,2)}, v{52+tp} offset0:32 offset1:48")
                q.extend([n] * 2)

        def need(n):
            last = max((i for i, t in enumerate(q) if t == n), default=-1)
            if last >= 0:
                a(f"s_waitcnt lgkmcnt({min(len(q) - 1 - last, 14)})")
                del q[:last + 1]

        def run(after, zero, before={}):
            seq = [(tp, ks) for tp in (1, 2, 3, 0) for ks in range(9)]
            PF = 7
            for j in range(PF):
                issue(j, *seq[j])
            for j, (tp, ks) in enumerate(seq):
                if j in before:
                    before[j]()
                need(j)
                c = "0" if ks == 0 and zero else None
                w = WF + 12 * ks
                a(M16(ACC + 4 * tp, w, RING[j % 8], c), M16(ACC + 16 + 4 * tp, w + 4, RING[j % 8], c))
                if tp == 0:
                    a(M16(ACC + 32, w + 8, RING[j % 8], c))
                if j + PF < len(seq):
                    issue(j + PF, *seq[j + PF])
                if j in after:
                    after[j]()

        def tiles(tp):
            return [tp, 4 + tp] + ([8] if tp == 0 else [])
        a("s_cbranch_scc0 L_tail_l", f"s_setprio {o['tp']}")

        def put(tp):
            for t in tiles(tp):
                a(f"ds_write_b128 v21, {vr(ACC+4*t,4)} offset:{t*1024}")
                q.append(('w', tp))

        def x2():
            need(('w', 3))
            a("s_barrier")
        ev = {9 * i + 2: (lambda i=i: put(i)) for i in (1, 2, 3)}
        ev[o['x2j']] = x2
        run(ev, True)
        a("s_nop 6")
        put(0)
        a("s_waitcnt lgkmcnt(0)", "s_barrier", "s_branch L_fin")
        q.clear()
        a("L_tail_l:")

        def get(tp):
            if tp == 0:
                a("s_barrier")
            for t in tiles(tp):
                a(f"ds_read_b128 {vr(ACC+4*t,4)}, v21 offset:{t*1024}")
                q.append(('p', tp))

        def outp(tp):
            r = 12 + 4 * (tp & 1)
            a([f"v_cvt_pk_bf16_f32 v{r+k}, v{ACC+16*(k>>1)+4*tp+2*(k&1)}, v{ACC+16*(k>>1)+4*tp+2*(k&1)+1}" for k in range(4)],
              f"buffer_store_dwordx4 {vr(r,4)}, v22, s[{R_OUT}:{R_OUT+3}], s{37+tp} offen{OUTF}")
            if tp == 0:
                a(f"v_cvt_pk_bf16_f32 v6, v{ACC+32}, v{ACC+33}", f"v_cvt_pk_bf16_f32 v7, v{ACC+34}, v{ACC+35}",
                  f"buffer_store_dwordx2 v[6:7], v23, s[{R_OUT}:{R_OUT+3}], s41 offen{OUTF}")
        get(1)
        ev = {9 * i + 2: (lambda i=i: outp(i)) for i in (1, 2, 3)}
        ev[3] = lambda: get(2)
        ev[12] = lambda: get(3)
        ev[22] = lambda: get(0)
        run(ev, False, {9 * i: (lambda t=t: need(('p', t))) for i, t in enumerate((1, 2, 3, 0))})
        a("s_nop 5")
        outp(0)
        a("L_fin:")
        if o['stamps'] or o['dbgspan'] or o['ampk']:
            a("s_waitcnt vmcnt(0)")
            self.stamp(5, o['set'] if o['set'] in (1, 4) else 0)
        if o['ampk']:
            a(f"s_cmp_eq_u32 s{S_STG}, {1 - o['amps']}", "s_cbranch_scc1 L_end", "s_waitcnt lgkmcnt(0)", f"s_sub_u32 s{S_T0}, s{S_ST+2*o['ampb']}, s{S_ST+2*o['ampa']}")
            if o['avg']:
                a(f"s_cmp_lg_u32 s{S_I}, 0", "s_cbranch_scc1 L_end", "s_mov_b64 exec, 1", "v_mov_b32 v8, 0", f"v_mov_b32 v9, s{S_T0}", "v_mov_b32 v10, 1",
                  f"buffer_atomic_add v9, v8, s[{R_DBG}:{R_DBG+3}], 0 offen offset:16 sc1", "s_waitcnt vmcnt(0)",
                  f"buffer_atomic_add v10, v8, s[{R_DBG}:{R_DBG+3}], 0 offen offset:144 sc0 sc1", "s_waitcnt vmcnt(0)", "v_cmp_eq_u32 vcc, 0xff, v10", "s_cbranch_vccz L_end",
                  f"buffer_load_dword v9, v8, s[{R_DBG}:{R_DBG+3}], 0 offen offset:16 sc0 sc1", "s_waitcnt vmcnt(0)", f"v_readfirstlane_b32 s{S_T0}, v9", "s_nop 3", f"s_mul_i32 s{S_T0}, s{S_T0}, {o['ampk']}", f"s_lshr_b32 s{S_T0}, s{S_T0}, 8")
            else:
                a(f"s_mul_i32 s{S_T0}, s{S_T0}, {o['ampk']}" if o['ampk'] > 0 else f"s_lshr_b32 s{S_T0}, s{S_T0}, {-o['ampk']}")
            a("s_memrealtime s[18:19]", f"s_min_u32 s{S_T0}, s{S_T0}, 100000",
              "L_amp:", "s_memrealtime s[16:17]", "s_waitcnt lgkmcnt(0)", "s_sub_u32 s16, s16, s18", f"s_cmp_lt_u32 s16, s{S_T0}", "s_cbranch_scc1 L_amp")
        self.dump_stamps()
        a("L_end:", "s_endpgm")

    def build(self):
        self.start()
        self.early_front()
        self.late_front()
        self.attention()
        self.events()
        self.fallback()
        hdr = ("; fused MQA attention x2 (QKV proj + softmax attention + out proj), one launch, 1 workgroup per CU\n"
               f"; @launch grid=(256,1,1) block=(512,1,1) lds={LDS_BYTES}\n"
               '.amdgcn_target "amdgcn-amd-amdhsa--gfx950"\n.text\n'
               f".globl {NAME}\n.p2align 8\n.type {NAME},@function\n{NAME}:\n")
        if self.o['of'] & 1:
            self.a.L = [x.replace(" sc0 sc1", " sc1") if "buffer_store" in x and f"s[{R_WS}:" in x else x for x in self.a.L]
        if self.o['of'] & 2:
            self.a.L = [x.replace(" sc0 sc1", " sc1") if "buffer_load" in x and f"s[{R_WS}:" in x else x for x in self.a.L]
        body = "".join((x + "\n") if x.endswith(":") else ("    " + x + "\n") for x in self.a.L)
        t = table()
        tab = ".p2align 6\n.type L_table,@object\nL_table:\n" + "".join("    .long " + ", ".join(str(int(v)) for v in row) + "\n" for row in t)
        tab += f".fill (1024 - ((. - {NAME}) & 1023)) & 1023, 1, 0\nL_codeend:\n.size L_table, L_codeend-L_table\n"
        kd = f""".section .rodata,"a"
.p2align 6
.amdhsa_kernel {NAME}
  .amdhsa_next_free_vgpr 256
  .amdhsa_next_free_sgpr 102
  .amdhsa_accum_offset 256
  .amdhsa_group_segment_fixed_size 0
  .amdhsa_kernarg_size 104
  .amdhsa_user_sgpr_count 2
  .amdhsa_user_sgpr_kernarg_segment_ptr 1
  .amdhsa_system_sgpr_workgroup_id_x 1
.end_amdhsa_kernel
"""
        return hdr + body + tab + kd


if __name__ == "__main__":
    out = sys.argv[1]
    opt = {}
    for kv in sys.argv[2:]:
        k, v = kv.split("=")
        opt[k] = int(v)
    g = Gen(opt)
    open(out, "w").write(g.build())
```

```python
import sys, math, struct
import numpy as np

NAME = "concat_heads__grouped_kv_mqa__grouped_kv_mqa__prompt_kernel"

VG = 608
PB = 2048 + 256 + 4 * VG
KVB = 32 * PB
L_KV = 12288
L_HAND = 0
L_KMAX = 10240
L_FLAG = 10256
L_S0 = 12288
L_S1 = L_S0 + 36864
L_PS = L_S1 + 36864
L_W = 62464
L_X = 90112
SLOT = 4608
LDS_BYTES = 163840
WS_KV = 0
WS_KN = KVB
WS_XID = WS_KN + 1024
WS_CNT = 0x26000
WS_WOT = 0x28000
WS_OEX = 0xD0000
WS_BR = 0x400000
WS_STAMP = 0x1000000
OEX_G = 73728
OEX_W = 18432
CSCALE = math.log2(math.e) / math.sqrt(18.0)
TSAFE = 40.0
SPIN = 200000


def f2u(x):
    return struct.unpack("<I", struct.pack("<f", x))[0]


def dslot(d):
    if d < 6:
        return d * 2 * SLOT
    if d < 17:
        return L_W + (d - 6) * 2 * SLOT
    return 5 * 2 * SLOT


def slot_addr(ks):
    return dslot(ks >> 1) + (ks & 1) * SLOT


G0 = [0, 1, 2, 3, 12, 13, 14, 15, 20]
G1 = [4, 5, 6, 7, 8, 9, 10, 11, 16]
POS_ONES, POS_ZERO = 22, 23


def vpos(h, row):
    if row in G0:
        return [list(range(0, 9)), [18, 19, 20, 21, 24, 25, 26, 27, 28]][h][G0.index(row)]
    if row in G1:
        return [list(range(9, 18)), list(range(29, 38))][h][G1.index(row)]
    if row in (17, 21):
        return POS_ONES
    return POS_ZERO


def table():
    t = np.zeros((64, 4), dtype=np.uint32)
    for l in range(64):
        t[l, 0] = L_KV + 2304 + vpos(l >> 5, l & 31) * 16
        n, g = l & 15, l >> 4
        t[l, 1] = vpos(g >> 1, n) * 16 + (g & 1) * 8
        p = {0: vpos(g >> 1, 16), 1: vpos(g >> 1, 20), 2: POS_ONES, 3: POS_ZERO}.get(n, POS_ZERO)
        t[l, 2] = p * 16 + (g & 1) * 8
    return t


def vr(a, n=1):
    return f"v[{a}:{a+n-1}]" if n > 1 else f"v{a}"


def sr(a, n=1):
    return f"s[{a}:{a+n-1}]" if n > 1 else f"s{a}"


S_WAVE = 3
R_X, R_WQ, R_W, R_WO, R_WS, R_OUT, R_DBG = 44, 48, 52, 56, 60, 64, 68
S_B, S_HG, S_GI, S_PG, S_I = 4, 5, 6, 7, 8
S_T0, S_T1, S_T2, S_T3, S_T4, S_T5 = 9, 10, 11, 12, 13, 14
S_CNT = 15
S_M0A, S_M0R, S_ROW = 72, 73, 74
S_BAR = 75
S_PBI, S_HQ = 76, 77
S_EX = 42
S_KVS = 80
S_OEX = 81
S_STG = 82
S_OEXB = 78
S_SAME, S_OA, S_OB, S_OW = 26, 27, 28, 25
V_OA, V_OB, V_JN = 144, 145, 146
S_XI, S_XB, S_XS, S_XM = 83, 100, 101, 79
S_DI, S_DS, S_LI, S_LS = 72, 73, 74, 75
S_ST = 84

V_IDX, V_AK, V_AR, V_AV = 2, 3, 4, 5
QM = [8, 12]
QR = 16
KR = [18, 20]
O = [24, 40]
KM = [56, 60]
VV = [[64, 68], [72, 76]]
S = [80, 112]


class A:
    def __init__(self):
        self.L = []

    def __call__(self, *xs):
        for x in xs:
            if isinstance(x, (list, tuple)):
                self(*x)
            else:
                self.L.append(x)

    def label(self, n):
        self.L.append(n + ":")


def K16(d, a, b, c=None):
    return f"v_mfma_f32_32x32x16_bf16 {vr(d,16)}, {vr(a,4)}, {vr(b,4)}, {c if c else vr(d,16)}"


def M16(d, a, b, c=None):
    return f"v_mfma_f32_16x16x32_bf16 {vr(d,4)}, {vr(a,4)}, {vr(b,4)}, {c if c else vr(d,4)}"


def B2(d, a, b, abid):
    return f"v_mfma_f32_32x32x4_2b_bf16 {vr(d,32)}, {vr(a,2)}, {vr(b,2)}, 0 cbsz:1 abid:{abid}"


def K8Z(d, z):
    return f"v_mfma_f32_32x32x8_bf16 {vr(d,16)}, {vr(z,2)}, {vr(z,2)}, 0"


def SM(d, a, b):
    return f"v_smfmac_f32_32x32x32_bf16 {vr(d,16)}, {vr(a,4)}, {vr(b,8)}, v{V_IDX}"


def EX(r, n):
    return [f"v_exp_f32 v{r+i}, v{r+i}" for i in range(n)]


def srd(a, dst, lo, hi, size):
    a(f"s_mov_b32 s{dst}, {lo}", f"s_mov_b32 s{dst+1}, {hi}", f"s_mov_b32 s{dst+2}, {size}", f"s_mov_b32 s{dst+3}, 0x20000")


class Gen:
    def __init__(self, opt):
        self.o = dict(unp=4, barit=1, stamps=False, force_fb=False, prefetch=True, prio=True, dbgspan=0, tp=1, x2j=31, amps=0, p1=3, p2=5, p3=7, lo0=0, lo1=0, ka=2, lnorm=1, xper=3, dly=0, d0l=1, pre=2, xe=0, sigb2=1, tre=1, badv0=0, shard=1, nslow=64, spf=0, avg=0, xcc=1, xp=0, outf=0, of=0, ampa=0, ampb=0, ampk=0, set=0, nb=5, kv1=7, pd=2, win=3, t1=7, t2=9, sb=18)
        self.o.update(opt)
        self.a = A()
        self.nst = 0

    def stamp(self, i, st=0):
        if i not in (0, 7) and st != self.o['set']:
            return
        if self.o['stamps'] or self.o['dbgspan'] or self.o['ampk']:
            cyc = self.o['stamps'] == 2 or self.o['ampk'] < 0
            self.a(f"{'s_memtime' if cyc else 's_memrealtime'} s[{S_ST+2*i}:{S_ST+2*i+1}]")

    def dump_stamps(self):
        if self.o['dbgspan']:
            a = self.a
            n = self.nst = self.nst + 1
            a("s_waitcnt lgkmcnt(0)", f"s_cmp_lg_u32 s{S_I}, 0", f"s_cbranch_scc1 L_nodump{n}", "s_mov_b64 exec, 1", "v_mov_b32 v8, 0", f"s_not_b32 s{S_T0}, s{S_ST}", f"v_mov_b32 v9, s{S_T0}",
              f"buffer_atomic_umax v9, v8, s[{R_DBG}:{R_DBG+3}], 0 offen offset:8 sc1")
            for k, i in enumerate((0, 1, 3, 6, 7, 5) if n == 2 else (1, 2, 4, 5, 6, 7)):
                a(f"v_mov_b32 v{10+k}, s{S_ST+2*i}", f"buffer_atomic_umax v{10+k}, v8, s[{R_DBG}:{R_DBG+3}], 0 offen offset:{(12 if n == 2 else 36)+4*k} sc1")
            a(f"L_nodump{n}:")
            return
        if not self.o['stamps']:
            return
        a = self.a
        a("s_waitcnt lgkmcnt(0)", f"s_lshl_b32 s{S_T0}, s2, 3", f"s_add_u32 s{S_T0}, s{S_T0}, s{S_WAVE}", f"s_lshl_b32 s{S_T0}, s{S_T0}, 6",
          f"s_mul_i32 s{S_T1}, s{S_B}, {WS_BR}", f"s_sub_u32 s{S_T0}, s{S_T0}, s{S_T1}", f"s_add_u32 s{S_T0}, s{S_T0}, {WS_STAMP}",
          f"s_mov_b32 s{R_WS+2}, 0x2000000", "v_mov_b32 v8, 0")
        for i in range(4):
            for k in range(4):
                a(f"v_mov_b32 v{12+k}, s{S_ST+4*i+k}")
            a(f"buffer_store_dwordx4 v[12:15], v8, s[{R_WS}:{R_WS+3}], s{S_T0} offen offset:{16*i}", "s_nop 1")

    def kv_dma(self, p0, n):
        a = self.a
        for k in range(n):
            a(f"s_add_u32 m0, s{S_M0A}, {L_KV + (p0 + 4*k)*1024}", f"s_add_u32 s{S_T0}, s{S_KVS}, 4096",
              f"buffer_load_dwordx4 v1, s[{R_WS}:{R_WS+3}], s{S_KVS} offen sc1 lds",
              f"s_cmp_ge_u32 s{S_T0}, {KVB}", f"s_cselect_b32 s{S_T1}, {KVB}, 0", f"s_sub_u32 s{S_KVS}, s{S_T0}, s{S_T1}")

    def row_max16(self, v):
        a = self.a
        for k in (8, 4, 2, 1):
            a("s_nop 1", f"v_max_f32_dpp v{v}, v{v}, v{v} row_ror:{k} row_mask:0xf bank_mask:0xf")

    def rest_srds(self):
        a = self.a
        a(f"s_mov_b32 s{R_WO+2}, 663552", f"s_mov_b32 s{R_WO+3}, 0x20000",
          f"s_mul_i32 s{S_T0}, s{S_B}, {WS_BR}", f"s_add_u32 s{R_WS}, s40, s{S_T0}", f"s_addc_u32 s{R_WS+1}, s41, 0",
          f"s_mov_b32 s{R_WS+2}, {WS_OEX + 32*OEX_G}", f"s_mov_b32 s{R_WS+3}, 0x20000")
        srd(a, R_OUT, "s36", "s37", 4718592)
        srd(a, R_DBG, "s38", "s39", 256)

    def norm2(self, x, y):
        a = self.a
        for j in range(4):
            for (qm, qr, dst, tmp) in (x, y):
                a(f"v_dot2_f32_bf16 v{dst}, v{qm+j}, v{qm+j}, {'0' if j == 0 else 'v%d' % dst}",
                  f"v_dot2_f32_bf16 v{tmp}, v{qm+4+j}, v{qm+4+j}, {'0' if j == 0 else 'v%d' % tmp}")
        a("s_nop 0", f"v_permlane32_swap_b32 v{x[2]}, v{x[3]}", "s_nop 0", f"v_permlane32_swap_b32 v{y[2]}, v{y[3]}",
          f"v_add_f32 v{x[2]}, v{x[2]}, v{x[3]}", f"v_add_f32 v{y[2]}, v{y[2]}, v{y[3]}",
          f"v_dot2_f32_bf16 v{x[2]}, v{x[1]}, v{x[1]}, v{x[2]}", f"v_dot2_f32_bf16 v{y[2]}, v{y[1]}, v{y[1]}, v{y[2]}", "s_nop 1",
          f"v_sqrt_f32 v{x[2]}, v{x[2]}", f"v_sqrt_f32 v{y[2]}, v{y[2]}")

    def norm1(self, qm, qr, dst, tmp):
        a = self.a
        for j in range(4):
            a(f"v_dot2_f32_bf16 v{dst}, v{qm+j}, v{qm+j}, {'0' if j == 0 else 'v%d' % dst}",
              f"v_dot2_f32_bf16 v{tmp}, v{qm+4+j}, v{qm+4+j}, {'0' if j == 0 else 'v%d' % tmp}")
        a("s_nop 2", f"v_permlane32_swap_b32 v{dst}, v{tmp}", "s_nop 0", f"v_add_f32 v{dst}, v{dst}, v{tmp}",
          f"v_dot2_f32_bf16 v{dst}, v{qr}, v{qr}, v{dst}", "s_nop 2", f"v_sqrt_f32 v{dst}, v{dst}")

    def init_main_regs(self):
        a = self.a
        a(f"v_mov_b32 v{KR[0]+1}, 0x3f803f80", f"v_mov_b32 v{KR[1]+1}, 0x3f803f80")
        for r in range(O[0], O[0] + 32):
            a(f"v_mov_b32 v{r}, 0")
        for r in range(S[1] + 24, S[1] + 32):
            a(f"v_mov_b32 v{r}, 0")
        for r in range(VV[1][1], VV[1][1] + 4):
            a(f"v_mov_b32 v{r}, 0")

    def ldKm(self, kb):
        return [f"ds_read_b128 {vr(KM[kb%2],4)}, v{V_AK} offset:{(kb//2)*PB+(kb%2)*1024}"]

    def ldKr(self, p):
        return [f"ds_read_b32 v{KR[p%2]}, v{V_AR} offset:{p*PB}"]

    def ldV(self, kb):
        return [f"ds_read_b128 {vr(VV[kb%2][i],4)}, v{V_AV} offset:{(kb//2)*PB+((kb%2)*2+i)*VG}" for i in range(2)]

    def qk(self, dst, kb):
        return [B2(dst, KR[(kb//2) % 2], QR, kb % 2), K16(dst, KM[kb % 2], QM[0]), K16(dst + 16, KM[kb % 2], QM[1])]

    def main_prologue_loads(self):
        self.a(self.ldKr(0), self.ldKm(0), self.ldKm(1), self.ldKr(1), self.ldV(0))

    def start(self):
        a, o = self.a, self.o
        a("s_cmp_ge_u32 s2, 256", "s_cbranch_scc1 L_end")
        a("s_load_dwordx16 s[16:31], s[0:1], 0", "s_load_dwordx8 s[32:39], s[0:1], 64", "s_load_dwordx2 s[40:41], s[0:1], 96")
        self.stamp(0)
        a("s_getpc_b64 s[42:43]", "L_pc:")
        a("v_lshrrev_b32 v1, 6, v0", "v_and_b32 v0, 63, v0", f"v_readfirstlane_b32 s{S_WAVE}, v1", "v_lshlrev_b32 v1, 4, v0",
          f"s_lshr_b32 s{S_T2}, s2, 3", f"s_and_b32 s{S_B}, s2, 1", f"s_and_b32 s{S_HG}, s{S_T2}, 3", f"s_lshr_b32 s{S_GI}, s2, 5")
        if o['prefetch']:
            a(f"s_cmp_lg_u32 s{S_WAVE}, 7", "s_cbranch_scc1 L_nopf", f"s_cmp_ge_u32 s{S_T2}, (L_codeend-{NAME})/1024", "s_cbranch_scc1 L_nopf",
              f"s_lshl_b32 s{S_T2}, s{S_T2}, 10", f"s_sub_u32 s{S_T0}, s42, L_pc-{NAME}", f"s_subb_u32 s{S_T1}, s43, 0",
              f"s_add_u32 s{S_T0}, s{S_T0}, s{S_T2}", f"s_addc_u32 s{S_T1}, s{S_T1}, 0",
              f"v_mov_b32 v7, s{S_T1}", f"v_add_co_u32 v6, vcc, s{S_T0}, v1", "s_nop 1", "v_addc_co_u32 v7, vcc, 0, v7, vcc", "s_nop 0",
              "global_load_dwordx4 v[24:27], v[6:7], off", "L_nopf:")
        a(f"s_bfe_u32 s{S_PG}, s2, 0x20001", f"s_lshl_b32 s{S_PG}, s{S_PG}, 3", f"s_add_u32 s{S_PG}, s{S_PG}, s{S_GI}",
          f"s_and_b32 s{S_I}, s{S_WAVE}, 3", f"s_and_b32 s{S_PBI}, s{S_WAVE}, 1", f"s_lshr_b32 s{S_HQ}, s{S_I}, 1")
        a("v_lshrrev_b32 v8, 3, v0", "v_lshrrev_b32 v9, 4, v0", f"s_lshl_b32 s{S_T0}, s{S_PBI}, 2", f"v_or_b32 v9, s{S_T0}, v9",
          "v_and_b32 v10, 7, v0", "v_xor_b32 v9, v9, v10", "v_lshlrev_b32 v9, 4, v9", "v_mov_b32 v10, 0x480", "v_mad_u32_u24 v8, v8, v10, v9",
          f"s_lshl_b32 s{S_T0}, s{S_I}, 6", f"v_add_u32 v9, s{S_T0}, v0", "v_mul_u32_u24 v10, 0xab, v9", "v_lshrrev_b32 v10, 9, v10", "v_mul_u32_u24 v10, 12, v10",
          "v_lshlrev_b32 v9, 4, v9", "v_sub_u32 v9, v9, v10")
        a(f"s_and_b32 s{S_T4}, s{S_HG}, 2", f"s_lshl_b32 s{S_T4}, s{S_T4}, 1", f"s_add_u32 s{S_T4}, s{S_T4}, s{S_I}",
          f"s_lshl_b32 s{S_T5}, s{S_PG}, 3", f"s_add_u32 s{S_XB}, s{S_T5}, s{S_T4}", f"s_mul_i32 s{S_XB}, s{S_XB}, {8*1152}",
          f"s_mul_i32 s{S_XM}, s{S_T4}, 9216", f"s_add_u32 s{S_XM}, s{S_XM}, {L_X}", f"s_lshl_b32 s{S_T0}, s{S_I}, 10", f"s_add_u32 s{S_T0}, s{S_T0}, {L_W}",
          f"s_lshr_b32 s{S_T1}, s{S_HG}, 1", f"s_movk_i32 s{S_DI}, 3072", f"s_movk_i32 s{S_DS}, 2304",
          f"s_cmp_lt_u32 s{S_WAVE}, 4", "s_cselect_b64 vcc, -1, 0", f"s_cselect_b32 s{S_XB}, s{S_XB}, 0", f"s_cselect_b32 s{S_XM}, s{S_XM}, s{S_T0}",
          f"s_cselect_b32 s{S_T1}, s{S_HG}, s{S_T1}", f"s_cselect_b32 s{S_DI}, 1024, s{S_DI}", f"s_cselect_b32 s{S_DS}, 128, s{S_DS}",
          "v_cndmask_b32 v9, v9, v8, vcc")
        self.dma9_setup(S_T1)
        a("s_waitcnt lgkmcnt(0)", f"s_cmp_eq_u32 s{S_B}, 0", f"s_cselect_b64 s[{R_X}:{R_X+1}], s[16:17], s[26:27]",
          f"s_cselect_b64 s[20:21], s[20:21], s[30:31]", f"s_cselect_b64 s[22:23], s[22:23], s[32:33]",
          f"s_cselect_b64 s[{R_WQ}:{R_WQ+1}], s[18:19], s[28:29]", f"s_cselect_b64 s[{R_WO}:{R_WO+1}], s[24:25], s[34:35]",
          f"s_bitcmp0_b32 s{S_HG}, 0", f"s_cselect_b64 s[{R_W}:{R_W+1}], s[20:21], s[22:23]", f"s_mov_b32 s{R_X+2}, 2359296", f"s_movk_i32 s{R_W+2}, 20736",
          f"s_cmp_lt_u32 s{S_WAVE}, 4", f"s_cselect_b64 s[{R_W}:{R_W+1}], s[{R_X}:{R_X+1}], s[{R_W}:{R_W+1}]", f"s_cselect_b32 s{R_W+2}, s{R_X+2}, s{R_W+2}",
          f"s_mov_b32 s{R_W+3}, 0x20000", f"s_mov_b32 s{R_X+3}, 0x20000")
        self.stamp(1, 2)
        a(f"s_cmp_lt_u32 s{S_WAVE}, 4", "s_cbranch_scc1 L_r1", "s_setprio 1", f"s_cmp_eq_u32 s{S_WAVE}, 7", "s_cbranch_scc1 L_late", "L_r1:")
        self.dma9(R_W, 9)
        a(f"s_cmp_ge_u32 s{S_WAVE}, 4", "s_cbranch_scc1 L_late")

    def wq_prefetch(self, n, first):
        a = self.a
        a(f"s_mov_b32 s{R_WQ+2}, 663552", f"s_mov_b32 s{R_WQ+3}, 0x20000", "v_lshlrev_b32 v30, 7, v0", f"s_lshr_b32 s{S_T0}, s2, 3", f"s_mul_i32 s{S_T0}, s{S_T0}, 20736")
        if first:
            a(f"s_mul_i32 s{S_T1}, s{first}, 6912", f"s_add_u32 s{S_T0}, s{S_T0}, s{S_T1}")
        a("s_mov_b32 exec_hi, 0x3fffff")
        for k in range(n):
            a(f"buffer_load_dword v{108+k}, v30, s[{R_WQ}:{R_WQ+3}], s{S_T0} offen", f"s_add_u32 s{S_T0}, s{S_T0}, 6912")
        a("s_mov_b32 exec_hi, -1")

    def dma9_setup(self, sel):
        self.a(f"s_bitcmp1_b32 s{sel}, 0", f"s_cselect_b32 s{S_XI}, 5, 0",
               f"s_add_u32 s{S_XS}, s{S_XI}, s{S_GI}", f"s_cmp_ge_u32 s{S_XS}, 9", f"s_cselect_b32 s{S_T0}, 9, 0", f"s_sub_u32 s{S_XS}, s{S_XS}, s{S_T0}",
               f"s_mul_i32 s{S_XS}, s{S_XS}, s{S_DS}", f"s_mul_i32 s{S_XI}, s{S_XI}, s{S_DI}", f"s_mul_i32 s{S_LI}, s{S_DI}, 9", f"s_mul_i32 s{S_LS}, s{S_DS}, 9")

    def dma9(self, srd_, v):
        for i in range(9):
            self.a(f"s_add_u32 m0, s{S_XM}, s{S_XI}", f"s_add_u32 s{S_T3}, s{S_XB}, s{S_XS}",
                   f"buffer_load_dwordx4 v{v}, s[{srd_}:{srd_+3}], s{S_T3} offen lds")
            if i < 8:
                self.a(f"s_add_u32 s{S_XS}, s{S_XS}, s{S_DS}", f"s_cmp_eq_u32 s{S_XS}, s{S_LS}", f"s_cselect_b32 s{S_XS}, 0, s{S_XS}",
                       f"s_add_u32 s{S_XI}, s{S_XI}, s{S_DI}", f"s_cmp_eq_u32 s{S_XI}, s{S_LI}", f"s_cselect_b32 s{S_XI}, 0, s{S_XI}")

    def table_load(self):
        self.a(f"s_add_u32 s{S_T0}, s42, L_table-L_pc", f"s_addc_u32 s{S_T1}, s43, 0",
               f"v_mov_b32 v7, s{S_T1}", f"v_add_co_u32 v6, vcc, s{S_T0}, v1", "s_nop 1", "v_addc_co_u32 v7, vcc, 0, v7, vcc", "s_nop 0",
               "global_load_dwordx4 v[20:23], v[6:7], off")

    def wq_setup(self, d, part=3):
        a = self.a
        if part & 1:
            a(f"s_mov_b32 s{R_WQ+2}, 663552", f"s_mov_b32 s{R_WQ+3}, 0x20000", f"s_lshl_b32 s{S_T0}, s{S_I}, 6", f"s_mul_i32 s{S_T1}, s{S_HG}, 288", "v_mov_b32 v16, 0x480")
        for t in range(3 if part & 1 else 0):
            a(f"v_add_u32 v13, s{S_T0}, v0", "v_mul_u32_u24 v14, 0xe39, v13", "v_lshrrev_b32 v14, 16, v14",
              "v_mul_u32_u24 v15, 18, v14", "v_sub_u32 v13, v13, v15", "v_lshlrev_b32 v13, 4, v13",
              "v_bfe_u32 v15, v14, 1, 2", "v_and_b32 v17, 1, v14", "v_lshl_add_u32 v15, v17, 2, v15", "v_and_b32 v14, 24, v14", "v_add_u32 v14, v14, v15",
              "v_mad_u32_u24 v13, v14, v16, v13", f"v_add_u32 v{10+t}, s{S_T1}, v13")
            if t < 2:
                a(f"s_add_u32 s{S_T0}, s{S_T0}, 192")
        if not part & 2:
            return
        a(f"s_lshl_b32 s{S_M0A}, s{S_I}, 10", f"s_mul_i32 s{S_ROW}, s{S_GI}, {64*1152}")
        if d:
            a(f"s_add_u32 s{S_ROW}, s{S_ROW}, {32*d*1152}", f"s_cmp_ge_u32 s{S_ROW}, {576*1152}",
              f"s_cselect_b32 s{S_T0}, {576*1152}, 0", f"s_sub_u32 s{S_ROW}, s{S_ROW}, s{S_T0}")

    def wq_list(self, d):
        n = self.nlab = getattr(self, 'nlab', 0) + 1
        s0 = dslot(d)
        ld = lambda r: f"buffer_load_dwordx4 v{r}, s[{R_WQ}:{R_WQ+3}], s{S_ROW} offen lds"
        return [f"s_cbranch_vccz L_wq{n}",
                f"s_add_u32 m0, s{S_M0A}, {s0}", f"s_add_u32 s{S_T0}, s{S_ROW}, {32*1152}", ld(10),
                f"s_add_u32 m0, s{S_M0A}, {s0+3072}", "s_nop 0", ld(11),
                f"s_add_u32 m0, s{S_M0A}, {s0+6144}", f"s_cmp_ge_u32 s{S_T0}, {576*1152}", ld(12),
                f"s_cselect_b32 s{S_T1}, {576*1152}, 0", f"s_sub_u32 s{S_ROW}, s{S_T0}, s{S_T1}", f"L_wq{n}:"]

    def wq_dma(self, d):
        self.a(self.wq_list(d))

    def loader_flag(self):
        self.a(f"s_cmp_lt_u32 s{S_I}, 3", "s_cselect_b64 vcc, -1, 0")

    @property
    def GROUPS(self):
        if self.o['pre'] == 5:
            return [(3, 2), (5, 6), (7, 10), (9, 14), (11, 18), (13, 22), (15, 26), (17, 30)]
        if self.o['pre'] == 1:
            return [(3, 2), (5, 6), (7, 10), (9, 14), (11, 18), (13, 22), (15, 26), (17, 30)]
        if self.o['pre'] == 2:
            return [(2, 2), (3, 4), (5, 6), (7, 10), (9, 14), (11, 18), (13, 22), (15, 26), (17, 30)]
        return [(3, 2), (5, 6), (7, 10), (9, 14), (11, 18), (13, 22), (15, 26), (17, 30)]

    def early_front(self):
        a, o = self.a, self.o
        self.stamp(2, 2)
        if o['spf'] == 5:
            a(f"s_cmp_lg_u32 s{S_WAVE}, 3", "s_cbranch_scc1 L_nospf", "s_waitcnt vmcnt(6)")
            self.wq_prefetch(3, None)
            a("L_nospf:")
        self.table_load()
        self.wq_setup(0)
        self.loader_flag()
        if not o['d0l']:
            self.wq_dma(0)
        self.rest_srds()
        a("v_and_b32 v16, 31, v0", "v_lshrrev_b32 v13, 5, v0", "v_bfe_u32 v14, v0, 1, 3", "v_xor_b32 v13, v13, v14", "v_lshlrev_b32 v13, 4, v13",
          "v_and_b32 v14, 7, v0", "v_lshl_add_u32 v13, v14, 7, v13", "v_lshrrev_b32 v16, 3, v16", "v_mul_u32_u24 v16, 0x2400, v16",
          f"s_mul_i32 s{S_T0}, s{S_PBI}, {4*9216}", f"s_add_u32 s{S_T0}, s{S_T0}, {L_X}", f"v_add3_u32 v8, v16, v13, s{S_T0}",
          "v_xor_b32 v9, 32, v8", "v_xor_b32 v108, 64, v8", "v_xor_b32 v109, 0x60, v8")
        a("v_bfe_u32 v18, v0, 2, 2", "v_lshrrev_b32 v15, 5, v0", "v_lshlrev_b32 v15, 2, v15", "v_add_u32 v15, v15, v18", "v_mul_u32_u24 v15, 0x240, v15",
          f"s_mul_i32 s{S_T0}, s{S_HQ}, 144", "v_and_b32 v13, 1, v0", "v_lshl_add_u32 v15, v13, 4, v15", f"v_add_u32 v15, s{S_T0}, v15",
          "v_bfe_u32 v13, v0, 1, 1", "v_bfe_u32 v14, v0, 4, 1", "v_lshl_add_u32 v6, v13, 3, v15", "v_lshl_add_u32 v6, v14, 5, v6",
          "v_mul_u32_u24 v13, 72, v13", "v_add3_u32 v7, v13, v15, 48")
        a(f"s_mul_i32 s{S_T0}, s{S_WAVE}, 2560", f"v_add_u32 v17, s{S_T0}, v1", "v_lshlrev_b32 v18, 3, v0", f"v_add_u32 v18, s{S_T0}, v18",
          f"v_mov_b32 v{V_IDX}, 0xdddddddd", f"v_add_u32 v{V_AK}, {L_KV}, v1", f"v_lshlrev_b32 v{V_AR}, 2, v0", f"v_add_u32 v{V_AR}, {L_KV+2048}, v{V_AR}",
          "v_mov_b32 v110, 0", "v_mov_b32 v111, 0", f"v_mov_b32 v19, {L_KMAX}")
        if o['d0l']:
            a("s_waitcnt vmcnt(1)")
        else:
            a(f"s_cmp_eq_u32 s{S_WAVE}, 3", "s_cbranch_scc0 L_e3", f"s_waitcnt vmcnt({4 if o['spf'] == 5 else 1})", "L_e3:", "s_waitcnt vmcnt(4)")
        self.stamp(3, 2)
        a("s_barrier")
        PRE = o['pre']
        for d in range(PRE + 1):
            self.wq_dma(d)
        a(f"s_cmp_eq_u32 s{S_WAVE}, 3", "s_cbranch_scc0 L_e4", "s_waitcnt vmcnt(0)", "L_e4:", f"s_waitcnt vmcnt({3*(PRE-1)})", f"v_mov_b32 v{V_AV}, v20", "v_mov_b32 v21, 0x3f803f80")
        self.stamp(1)
        self.stamp(4, 2)
        a("s_barrier")
        self.stamp(5, 2)
        XF = 112
        T0, T1, TR = 24, 40, 56
        PD = o['pd']
        FB = [72, 84, 96]
        state = dict(base=0)

        def rd(ks):
            x = []
            off = slot_addr(ks) - state['base']
            if off < 0 or off + 360 > 65535:
                d = slot_addr(ks) - state['base']
                x += [f"v_add_u32 v{r}, {d}, v{r}" if d > 0 else f"v_subrev_u32 v{r}, {-d}, v{r}" for r in (6, 7)]
                state['base'] = slot_addr(ks)
                off = 0
            f = FB[ks % (PD + 1)]
            return x, [f"ds_read_b64_tr_b16 {vr(f,2)}, v6 offset:{off}", f"ds_read_b64_tr_b16 {vr(f+2,2)}, v6 offset:{off+288}",
                       f"ds_read_b64_tr_b16 {vr(f+4,2)}, v6 offset:{off+72}", f"ds_read_b64_tr_b16 {vr(f+6,2)}, v6 offset:{off+360}",
                       f"ds_read_b64_tr_b16 {vr(f+8,2)}, v7 offset:{off}", f"ds_read_b64_tr_b16 {vr(f+10,2)}, v7 offset:{off+288}"]

        def mm(ks):
            f = FB[ks % (PD + 1)]
            c = "0" if ks == 0 else None
            return [K16(T0, f, XF + 4 * ks, c), K16(T1, f + 4, XF + 4 * ks, c), K16(TR, f + 8, XF + 4 * ks, c)]
        XA = [8, 9, 108, 109]
        q = []

        def issue(tag, ins):
            a(ins)
            q.append(tag)

        def need(*tags):
            last = max((i for i, t in enumerate(q) if t in tags), default=-1)
            if last >= 0:
                left = len(q) - 1 - last
                a(f"s_waitcnt lgkmcnt({min(left, 14)})")
                del q[:last + 1]

        def xrd(i):
            issue(('x', i), f"ds_read_b128 {vr(XF+4*i,4)}, v{XA[i&3]} offset:{(i>>2)*1024}")
        xrd(0)
        for j, r in enumerate(rd(0)[1]):
            issue(('w', 0, j >> 1), r)
        xrd(1)
        for j, r in enumerate(rd(1)[1]):
            issue(('w', 1, j >> 1), r)
        nx = 2
        G = [k for _, k in self.GROUPS]
        ev = {k: ["s_barrier"] for k in G}
        prev = 1
        for last, k in self.GROUPS:
            if prev < PRE:
                ev[k] = [f"s_waitcnt vmcnt({3*max(PRE-last, 0)})", "s_barrier"]
            prev = last
        for ks in range(36):
            m = mm(ks)
            if ks in ev:
                if ks == 6:
                    assert nx == 36 and not any(t[0] == 'x' for t in q)
                if len(ev[ks]) > 1 and o["stamps"]:
                    a(ev[ks][0])
                if ks in (2, 6, 10, 14, 22, 30):
                    self.stamp(1 + (2, 6, 10, 14, 22, 30).index(ks), 3)
                a(ev[ks])
                if ks == 6:
                    self.stamp(2)
                    self.stamp(6, 2)
            pre, n = rd(ks + 2) if ks + 2 < 36 else ([], [])
            fine = nx < 36 or ks == 35
            if not fine:
                need(('x', ks), ('w', ks, 2))
            for t in range(3):
                if fine:
                    need(('x', ks), ('w', ks, t))
                a(m[t])
                if t == 0:
                    a(pre)
                for k in range(o['xper']):
                    if nx < 36:
                        xrd(nx)
                        nx += 1
                for r in n[2*t:2*t+2]:
                    issue(('w', ks + 2, t), r)
        self.stamp(3)
        H = 96
        a("v_mov_b32 v22, v17", "v_mov_b32 v23, v18", "v_mov_b32 v7, v19", f"v_mov_b32 v{KR[0]+1}, 0x3f803f80", f"s_mov_b32 s{S_BAR}, {32//o['unp'] - o['barit']}", f"s_mov_b32 s{S_STG}, 0", f"s_mov_b32 s{S_SAME}, 0")
        a("s_mov_b32 vcc_lo, 0", "s_mov_b32 vcc_hi, -1")
        for (dst, t) in ((QM[0], T0), (H, T1)):
            for j, r in enumerate((0, 2, 4, 6, 10, 12, 14)):
                a(f"v_cvt_pk_bf16_f32 v{dst+j}, v{t+r}, v{t+r+1}")
        for (dst, qr, t, t2, tmp) in ((H, H + 8, T1, TR + 4, 107), (QM[0], QR, T0, TR, 108)):
            a(f"v_cvt_pk_bf16_f32 v{dst+7}, v{t2}, v{t2+1}", f"v_cvt_pk_bf16_f32 v{qr}, v{t+8}, v{t+9}", f"v_cvt_pk_bf16_f32 v{tmp}, v{t2+2}, v{t2+3}")
        a(f"v_cndmask_b32 v{H+8}, v{H+8}, v107, vcc", f"v_cndmask_b32 v{QR}, v{QR}, v108, vcc")
        a(f"ds_write_b128 v22, {vr(H,4)}", f"ds_write_b128 v22, {vr(H+4,4)} offset:1024")
        if o['lnorm']:
            a(f"ds_write_b64 v23, {vr(H+8,2)} offset:2048")
            self.norm1(QM[0], QR, QR + 1, 108)
        else:
            self.norm2((H, H + 8, H + 9, 107), (QM[0], QR, QR + 1, 108))
            a(f"ds_write_b64 v23, {vr(H+8,2)} offset:2048")
        a(K8Z(O[0], 110), K8Z(O[1], 110))
        if o['dly']:
            a("s_memrealtime s[18:19]", "L_dly:", "s_memrealtime s[16:17]", "s_waitcnt lgkmcnt(0)", "s_sub_u32 s16, s16, s18", f"s_cmp_lt_u32 s16, {o['dly']}", "s_cbranch_scc1 L_dly")
        a("s_waitcnt lgkmcnt(0)")
        a("s_barrier")
        a("ds_read_b32 v6, v7")
        self.main_prologue_loads()
        a([f"v_mov_b32 v{r}, 0" for r in range(VV[1][1], VV[1][1] + 4)])
        if o['prio']:
            a("s_setprio 3")
        a("s_waitcnt lgkmcnt(0)", "s_branch L_attn")

    def late_front(self):
        a, o = self.a, self.o
        a.label("L_late")
        a("s_setprio 0")
        if o['spf'] == 3:
            a(f"s_cmp_lg_u32 s{S_WAVE}, 7", "s_cbranch_scc1 L_nospf")
            self.wq_prefetch(3, None)
            a("L_nospf:")
        if o['spf'] == 4:
            a(f"s_cmp_eq_u32 s{S_WAVE}, 7", "s_cbranch_scc1 L_nospf")
            self.wq_prefetch(1, S_I)
            a("L_nospf:")
        self.stamp(2, 2)
        self.rest_srds()
        if o['shard']:
            a("v_and_b32 v160, 7, v0", "v_lshlrev_b32 v160, 9, v160", f"s_cmp_lg_u32 s{S_WAVE}, 7", "s_cbranch_scc1 L_nov0", f"s_mov_b32 s{S_T0}, {WS_CNT}",
              f"buffer_load_dword v161, v160, s[{R_WS}:{R_WS+3}], s{S_T0} offen sc0 sc1", "L_nov0:")
        self.wq_setup(6, 1)
        a(f"s_xor_b32 s{S_T4}, s{S_T4}, 4", f"s_add_u32 s{S_XB}, s{S_T5}, s{S_T4}", f"s_mul_i32 s{S_XB}, s{S_XB}, {8*1152}",
          f"s_mul_i32 s{S_XM}, s{S_T4}, 9216", f"s_add_u32 s{S_XM}, s{S_XM}, {L_X}", f"s_movk_i32 s{S_DI}, 1024", f"s_movk_i32 s{S_DS}, 128")
        a("v_and_b32 v13, 15, v0", "v_lshrrev_b32 v16, 4, v0",
          "v_bfe_u32 v17, v0, 1, 3", "v_xor_b32 v17, v16, v17", "v_lshlrev_b32 v17, 4, v17",
          "v_and_b32 v18, 7, v0", "v_lshl_add_u32 v17, v18, 7, v17", "v_bfe_u32 v18, v0, 3, 1", "v_mul_u32_u24 v18, 0x2400, v18",
          f"s_lshr_b32 s{S_T0}, s{S_HG}, 1", f"s_lshl_b32 s{S_T0}, s{S_T0}, 1", f"s_add_u32 s{S_T0}, s{S_T0}, s{S_PBI}",
          f"s_mul_i32 s{S_T1}, s{S_T0}, {2*9216}", f"s_add_u32 s{S_T1}, s{S_T1}, {L_X}", f"v_add3_u32 v14, v17, v18, s{S_T1}", "v_xor_b32 v15, 64, v14",
          "v_bfe_u32 v17, v0, 2, 2", "v_lshl_add_u32 v17, v16, 3, v17",
          "v_mul_u32_u24 v17, 48, v17", "v_and_b32 v18, 3, v0", "v_lshlrev_b32 v18, 3, v18",
          f"s_cmp_eq_u32 s{S_HQ}, 0", "s_cselect_b64 vcc, -1, 0", "v_mov_b32 v19, 32", "v_cndmask_b32 v18, v19, v18, vcc", f"v_add_u32 v17, {L_W}, v17", "v_add_u32 v17, v17, v18")
        a("v_lshrrev_b32 v19, 5, v0", "v_lshlrev_b32 v19, 9, v19", "v_lshl_add_u32 v19, v13, 4, v19",
          "v_bfe_u32 v18, v0, 4, 1", "v_lshl_add_u32 v28, v18, 3, v19", "v_lshlrev_b32 v29, 2, v13",
          f"s_mul_i32 s{S_KVS}, s{S_PG}, {PB}", f"s_mov_b32 s{S_OEX}, s{S_T0}")
        self.dma9_setup(S_HG)
        self.dma9(R_X, 8)
        self.stamp(3, 2)
        self.table_load()
        if o['spf'] == 2:
            a(f"s_cmp_lg_u32 s{S_WAVE}, 7", "s_cbranch_scc1 L_nospf")
            self.wq_prefetch(3, None)
            a("L_nospf:")
        a("s_setprio 1", "s_waitcnt vmcnt(10)")
        self.stamp(1)
        self.stamp(4, 2)
        a("s_barrier")
        a(f"s_bitcmp1_b32 s{S_HG}, 0", "s_cbranch_scc1 L_vproj")
        D = 32
        NB = o['nb']
        for isv in (0, 1):
            if isv:
                a.label("L_vproj")

            def rd(s):
                xb = 40 + 8 * (s % NB)
                return [f"ds_read_b128 {vr(xb,4)}, v{14+(s&1)} offset:{(s>>1)*1024}",
                        f"ds_read_b64_tr_b16 {vr(xb+4,2)}, v17 offset:{s*1536}", f"ds_read_b64_tr_b16 {vr(xb+6,2)}, v17 offset:{s*1536+192}"]
            for s in range(NB - 1):
                a(rd(s))
            for s in range(18):
                if s == o['sb']:
                    a("s_waitcnt vmcnt(0)", "s_barrier")
                if s == 17 and o['sb'] == 18:
                    a("s_waitcnt vmcnt(0)")
                if s + NB - 1 < 18:
                    a(rd(s + NB - 1))
                left = min(18 - 1 - s, NB - 1)
                xb = 40 + 8 * (s % NB)
                c = "0" if s == 0 else None
                a(f"s_waitcnt lgkmcnt({min(15,3*left)})", M16(D, xb, xb + 4, c) if isv else M16(D, xb + 4, xb, c))
            g = S_OEX
            if not isv:
                a(f"s_lshr_b32 s{S_T0}, s{g}, 1", f"s_lshl_b32 s{S_T0}, s{S_T0}, 10", f"s_lshl_b32 s{S_T1}, s{S_PBI}, 8", f"s_add_u32 s{S_T0}, s{S_T0}, s{S_T1}",
                  f"s_add_u32 s{S_T0}, s{S_T0}, s{S_KVS}",
                  f"s_lshl_b32 s{S_T1}, s{g}, 6", f"s_add_u32 s{S_T1}, s{S_T1}, s{S_KVS}", f"s_add_u32 s{S_T1}, s{S_T1}, 2048",
                  f"s_mov_b32 s{S_T2}, {hex(f2u(CSCALE))}")
                for r in range(4):
                    a(f"v_mul_f32 v{D+r}, s{S_T2}, v{D+r}")
                a(f"v_cvt_pk_bf16_f32 v{D}, v{D}, v{D+1}", f"v_cvt_pk_bf16_f32 v{D+1}, v{D+2}, v{D+3}",
                  f"s_lshl_b32 s{S_T3}, s{S_PG}, 2", f"s_add_u32 s{S_T3}, s{S_T3}, s{g}", f"s_lshl_b32 s{S_T3}, s{S_T3}, 2", f"s_add_u32 s{S_T3}, s{S_T3}, {WS_KN}",
                  f"v_dot2_f32_bf16 v36, v{D}, v{D}, 0",
                  f"s_cmp_eq_u32 s{S_HQ}, 0", "s_cbranch_scc0 L_krem",
                  f"buffer_store_dwordx2 {vr(D,2)}, v28, s[{R_WS}:{R_WS+3}], s{S_T0} offen sc1",
                  f"v_dot2_f32_bf16 v36, v{D+1}, v{D+1}, v36", "s_nop 2", "v_mov_b32 v37, v36", "s_nop 1",
                  "v_permlane16_swap_b32 v36, v37", "s_nop 1", "v_add_f32 v36, v36, v37", "s_nop 0", "v_mov_b32 v37, v36", "s_nop 1",
                  "v_permlane32_swap_b32 v36, v37", "s_nop 1", "v_add_f32 v36, v36, v37", "s_branch L_knorm",
                  "L_krem:", "s_mov_b64 exec, 0xffff",
                  f"buffer_store_dword v{D}, v29, s[{R_WS}:{R_WS+3}], s{S_T1} offen sc1", "s_mov_b64 exec, -1", f"s_add_u32 s{S_T3}, s{S_T3}, 512",
                  "L_knorm:", "s_nop 1")
                self.row_max16(36)
                a("v_mov_b32 v37, 0", "s_mov_b64 exec, 1", f"buffer_store_dword v36, v37, s[{R_WS}:{R_WS+3}], s{S_T3} offen sc1", "s_mov_b64 exec, -1",
                  "s_branch L_kvdone")
            else:
                a(f"s_mul_i32 s{S_T0}, s{g}, {VG}", f"s_add_u32 s{S_T0}, s{S_T0}, s{S_KVS}", f"s_add_u32 s{S_T0}, s{S_T0}, 2304",
                  "v_cmp_eq_u32 vcc, 2, v13", f"v_cmp_eq_u32 s[{S_EX}:{S_EX+1}], 3, v13", "v_mov_b32 v30, 0x3f803f80", "s_nop 0",
                  f"s_cmp_eq_u32 s{S_HQ}, 0",
                  f"v_cvt_pk_bf16_f32 v{D}, v{D}, v{D+1}", f"v_cvt_pk_bf16_f32 v{D+1}, v{D+2}, v{D+3}", "s_cbranch_scc0 L_vrem",
                  f"buffer_store_dwordx2 {vr(D,2)}, v21, s[{R_WS}:{R_WS+3}], s{S_T0} offen sc1", "s_branch L_kvdone",
                  "L_vrem:",
                  f"v_cndmask_b32 v{D}, v{D}, v30, vcc", f"v_cndmask_b32 v{D+1}, v{D+1}, v30, vcc",
                  f"v_cndmask_b32 v{D}, v{D}, 0, s[{S_EX}:{S_EX+1}]", f"v_cndmask_b32 v{D+1}, v{D+1}, 0, s[{S_EX}:{S_EX+1}]",
                  "s_mov_b32 exec_lo, 0x000f000f", "s_mov_b32 exec_hi, 0x000f000f",
                  f"buffer_store_dwordx2 {vr(D,2)}, v22, s[{R_WS}:{R_WS+3}], s{S_T0} offen sc1", "s_mov_b64 exec, -1")
        a.label("L_kvdone")
        if o['xcc']:
            a("s_getreg_b32 s29, hwreg(HW_REG_XCC_ID, 0, 4)", f"s_cmp_lg_u32 s{S_WAVE}, 4", "s_cbranch_scc1 L_noxid",
              f"s_lshl_b32 s{S_T0}, s{S_PG}, 2", f"s_add_u32 s{S_T0}, s{S_T0}, s{S_HG}", f"s_lshl_b32 s{S_T0}, s{S_T0}, 2", f"s_add_u32 s{S_T0}, s{S_T0}, {WS_XID}",
              "v_mov_b32 v38, s29", "v_mov_b32 v39, 0", "s_mov_b64 exec, 1", f"buffer_store_dword v38, v39, s[{R_WS}:{R_WS+3}], s{S_T0} offen sc1", "s_mov_b64 exec, -1", "L_noxid:")
        self.stamp(2)
        self.stamp(5, 2)
        a(f"v_mov_b32 v{V_AV}, v20")
        self.wq_setup(o['pre'] + 1, 2)
        self.loader_flag()
        a("v_mov_b32 v100, 1", "v_mov_b32 v101, 0")
        if o['sb'] == 18:
            a("s_barrier")
        nxt = first = o['pre'] + 1
        NG = len(self.GROUPS)
        passed = -1
        signalled = False
        for gi_, (last, step) in enumerate(self.GROUPS):
            lim = 5 if passed < 2 else 8 if passed < 6 else 16 if passed < 14 else 17
            tgt = min(last + o['win'], lim)
            while nxt <= tgt:
                self.wq_dma(nxt)
                nxt += 1
            assert nxt > last
            if step == 14:
                self.wo_job_addr(0)
                self.poison_addr()
            if step == 18:
                a(f"s_cmp_ge_u32 s{S_OEX}, {648-512}", "s_cselect_b32 s16, 0, 512", f"s_add_u32 s{S_OEX}, s{S_OEX}, s16")
                self.wo_job_addr(1)
                self.loader_flag()
            if gi_ == NG - 3:
                self.init_main_regs()
                a(f"s_and_b32 s{S_T0}, s{S_GI}, 3", f"s_mul_i32 s{S_KVS}, s{S_T0}, {37*1024}", f"s_add_u32 s{S_KVS}, s{S_KVS}, s{S_M0A}",
                  "v_lshlrev_b32 v153, 3, v0", f"s_mov_b32 s{S_T4}, {WS_KN}", f"s_lshl_b32 s{S_T5}, s{S_B}, 7")
            sig = last >= first and not signalled
            if sig:
                a(f"s_cbranch_vccnz L_l{gi_}", "s_waitcnt vmcnt(0)", f"L_l{gi_}:")
                signalled = True
            if last >= first:
                a(f"s_waitcnt vmcnt({3*(nxt-1-last)})")
            passed = step
            if step == 10:
                a(f"v_mov_b32 v150, {L_FLAG}", "v_mov_b32 v152, 0", "v_mov_b32 v153, 0", "v_mov_b32 v154, 0", "v_mov_b32 v155, 0", "v_mov_b32 v151, 0", "ds_write_b128 v150, v[152:155]", "s_waitcnt lgkmcnt(0)")
            if gi_ == NG - 3 and o['tre']:
                a("s_cbranch_vccnz L_try1", f"s_mov_b32 s{S_T0}, {WS_CNT}", f"buffer_load_dword v152, v160, s[{R_WS}:{R_WS+3}], s{S_T0} offen sc0 sc1", "L_try1:")
            if gi_ == NG - 2:
                assert nxt == 18
                if o['shard']:
                    a("s_cbranch_vccnz L_try0")
                    if not o['tre']:
                        a(f"s_mov_b32 s{S_T0}, {WS_CNT}", f"buffer_load_dword v152, v160, s[{R_WS}:{R_WS+3}], s{S_T0} offen sc0 sc1")
                    a("s_waitcnt vmcnt(0)",
                      "v_cmp_ne_u32 s[16:17], v152, v161", "s_cmp_eq_u64 s[16:17], 0", "s_cselect_b32 s16, 1, 0", "v_mov_b32 v152, s16", "ds_write_b32 v150, v152", "s_waitcnt lgkmcnt(0)", "L_try0:")
                else:
                    a("s_cbranch_vccnz L_try0", f"buffer_load_dword v152, v151, s[{R_DBG}:{R_DBG+3}], s{S_T5} offen sc0 sc1", "s_waitcnt vmcnt(0)",
                      "v_lshrrev_b32 v152, 7, v152", "ds_write_b32 v150, v152", "s_waitcnt lgkmcnt(0)", "L_try0:")
            if step in (2, 6, 10, 14, 22):
                self.stamp(1 + (2, 6, 10, 14, 22).index(step), 3)
            a("s_barrier")
            if sig:
                self.kv_signal()
            if gi_ == NG - 2:
                break
        kn = [f"s_cmp_lg_u32 s{S_WAVE}, 7", None, f"buffer_load_dwordx2 v[154:155], v153, s[{R_WS}:{R_WS+3}], s{S_T4} offen sc1",
              f"buffer_load_dwordx2 v[156:157], v153, s[{R_WS}:{R_WS+3}], s{S_T4} offen offset:512 sc1"]
        a("ds_read_b32 v152, v150", "s_waitcnt lgkmcnt(0)", "v_cmp_eq_u32 vcc, 0, v152", "s_cbranch_vccnz L_notyet")
        self.stamp(4)
        a(kn[0], "s_cbranch_scc1 L_kna", kn[2:], "L_kna:")
        self.kv_dma(0, o['ka'])
        a(f"s_cmp_eq_u32 s{S_WAVE}, 7", "s_cbranch_scc1 L_knb", f"s_waitcnt vmcnt({o['ka']})", "L_knb:")
        self.stamp(6, 3)
        a("s_barrier")
        self.kv_dma(4 * o['ka'], o['kv1'] - o['ka'])
        a("s_branch L_first")
        a("L_notyet:", "s_waitcnt vmcnt(0)")
        self.stamp(6, 3)
        a("s_barrier")
        a(f"s_mov_b32 s{S_CNT}, {SPIN}", f"s_cmp_lg_u32 s{S_WAVE}, 7", "s_cbranch_scc1 L_relay")
        if o['shard']:
            a(f"s_mov_b32 s{S_T0}, {WS_CNT}", "L_poll1:", f"buffer_load_dword v152, v160, s[{R_WS}:{R_WS+3}], s{S_T0} offen sc0 sc1",
              f"s_cmp_gt_u32 s{S_CNT}, {SPIN - o['nslow']}", "s_cbranch_scc1 L_pf", f"s_cmp_lg_u32 s{S_CNT}, {SPIN - o['nslow']}", "s_cbranch_scc1 L_ps",
              "s_mov_b64 exec, 1", f"buffer_atomic_add v100, v101, s[{R_DBG}:{R_DBG+3}], s{S_T5} offen sc1", "s_mov_b64 exec, -1",
              "L_ps:", f"buffer_load_dwordx2 v[162:163], v151, s[{R_DBG}:{R_DBG+3}], s{S_T5} offen sc0 sc1", "s_waitcnt vmcnt(0)",
              "v_lshrrev_b32 v162, 7, v162", "v_or_b32 v162, v162, v163", "v_cmp_ne_u32 vcc, 0, v162", "s_cbranch_vccnz L_poll1d",
              "L_pf:", f"s_sub_u32 s{S_CNT}, s{S_CNT}, 1", "s_cbranch_scc1 L_poll1d", "s_waitcnt vmcnt(0)", "v_cmp_ne_u32 vcc, v152, v161", "s_cbranch_vccnz L_poll1")
        else:
            a("L_poll1:", f"buffer_load_dword v152, v151, s[{R_DBG}:{R_DBG+3}], s{S_T5} offen sc0 sc1", f"s_sub_u32 s{S_CNT}, s{S_CNT}, 1",
              "s_cbranch_scc1 L_poll1d", "s_waitcnt vmcnt(0)", "v_cmp_gt_u32 vcc, 0x80, v152", "s_cbranch_vccnz L_poll1")
        a("L_poll1d:", "v_mov_b32 v152, 1", "ds_write_b32 v150, v152", kn[2:], "s_branch L_flagok")
        a("L_relay:", "ds_read_b32 v152, v150", f"s_sub_u32 s{S_CNT}, s{S_CNT}, 1", "s_cbranch_scc1 L_flagok", "s_waitcnt lgkmcnt(0)",
          "v_cmp_eq_u32 vcc, 0, v152", "s_cbranch_vccnz L_relay", "L_flagok:")
        self.stamp(4)
        self.kv_dma(0, o['kv1'])
        a("L_first:")
        self.stamp(3)
        self.stamp(6, 2)
        a(f"s_cmp_lg_u32 s{S_WAVE}, 7", "s_cbranch_scc1 L_nokn", f"s_waitcnt vmcnt({o['kv1']})", "v_max_f32 v154, v154, v155", "v_max_f32 v156, v156, v157")
        self.row_max16(154)
        self.row_max16(156)
        a("s_nop 0")
        for k in range(4):
            a(f"v_readlane_b32 s{16+k}, v154, {16*k}", f"v_readlane_b32 s{20+k}, v156, {16*k}")
        a("s_nop 1", "s_max_u32 s16, s16, s17", "s_max_u32 s18, s18, s19", "s_max_u32 s20, s20, s21", "s_max_u32 s22, s22, s23",
          "s_max_u32 s16, s16, s18", "s_max_u32 s20, s20, s22", "v_mov_b32 v154, s16", "v_add_f32 v154, s20, v154", "v_sqrt_f32 v154, v154",
          f"v_mov_b32 v155, {L_KMAX}", "ds_write_b32 v155, v154", "L_nokn:")
        a(f"v_mov_b32 v{V_IDX}, 0xdddddddd", f"v_add_u32 v{V_AK}, {L_KV}, v1", f"v_lshlrev_b32 v{V_AR}, 2, v0", f"v_add_u32 v{V_AR}, {L_KV+2048}, v{V_AR}",
          f"s_mul_i32 s{S_T0}, s{S_I}, 2560", f"v_add_u32 v8, s{S_T0}, v1", "v_lshlrev_b32 v9, 3, v0", f"v_add_u32 v9, s{S_T0}, v9", f"v_mov_b32 v6, {L_KMAX}")
        a("s_waitcnt vmcnt(0) lgkmcnt(0)", "s_barrier")
        a("ds_read_b32 v6, v6", f"ds_read_b64 {vr(QR,2)}, v9 offset:2048", f"ds_read_b128 {vr(QM[1],4)}, v8 offset:1024", f"ds_read_b128 {vr(QM[0],4)}, v8")
        self.wo_job_loads(0)
        a(f"s_cmp_lt_u32 s{S_OEX}, 512", "s_cbranch_scc1 L_nowo2")
        self.wo_job_loads(1)
        a("L_nowo2:")
        self.kv_dma(4 * o['kv1'], 37 - o['kv1'])
        a("s_waitcnt vmcnt(0) lgkmcnt(0)")
        self.stamp(5)
        a("s_barrier")
        a("s_setprio 3")
        self.main_prologue_loads()
        self.poison()
        a(f"s_cmp_ge_u32 s{S_OEX}, 512", "s_cbranch_scc0 L_wo3")
        self.wo_job_finish(1)
        a(f"s_sub_u32 s{S_OEX}, s{S_OEX}, 512", "L_wo3:")
        self.wo_job_finish(0)
        if o['lnorm']:
            self.norm1(QM[0], QR, QR + 1, 149)
        a(f"s_mov_b32 s{S_BAR}, {32//o['unp'] - 1}", f"s_mov_b32 s{S_STG}, 1", f"s_mov_b32 s{S_SAME}, 0")
        a("s_waitcnt lgkmcnt(0)")

    def kv_signal(self):
        a, o = self.a, self.o
        if o['shard']:
            a("s_cbranch_vccnz L_nosig", "s_setprio 3", f"v_add_u32 v161, {17 if o['badv0'] else 16}, v161",
              f"s_bfe_u32 s{S_T0}, s2, 0x20001", f"s_lshl_b32 s{S_T0}, s{S_T0}, 1", f"s_and_b32 s{S_T1}, s{S_GI}, 1", f"s_add_u32 s{S_T0}, s{S_T0}, s{S_T1}",
              f"s_lshl_b32 s{S_T0}, s{S_T0}, 9", f"s_add_u32 s{S_T0}, s{S_T0}, {WS_CNT}", "s_mov_b64 exec, 1",
              f"buffer_atomic_add v100, v101, s[{R_WS}:{R_WS+3}], s{S_T0} offen sc1", "s_mov_b64 exec, -1", "s_setprio 1", "L_nosig:")
        else:
            a("s_cbranch_vccnz L_nosig", "s_setprio 3", f"s_lshl_b32 s{S_T0}, s{S_B}, 7", "s_mov_b64 exec, 1",
              f"buffer_atomic_add v100, v101, s[{R_DBG}:{R_DBG+3}], s{S_T0} offen sc1", "s_mov_b64 exec, -1", "s_setprio 1", "L_nosig:")

    def join_signal(self, v, tag):
        self.a(f"v_mov_b32 v{v}, {L_FLAG+4}", f"v_mov_b32 v{v+1}, 1", f"v_mov_b32 v{v+3}, 0", f"s_lshl_b32 s{S_T0}, s{S_B}, 7", "s_mov_b64 exec, 1",
               "s_waitcnt vmcnt(0)", f"ds_add_rtn_u32 v{v+2}, v{v}, v{v+1}", "s_waitcnt lgkmcnt(0)", f"v_cmp_eq_u32 vcc, 3, v{v+2}", f"s_cbranch_vccz L_js{tag}",
               f"buffer_atomic_add v{v+1}, v{v+3}, s[{R_DBG}:{R_DBG+3}], s{S_T0} offen offset:4 sc1", f"L_js{tag}:")

    def wo_job_addr(self, rep):
        a = self.a
        if rep == 0:
            a(f"s_lshl_b32 s{S_OEX}, s{S_PG}, 2", f"s_add_u32 s{S_OEX}, s{S_OEX}, s{S_HG}", f"s_lshl_b32 s{S_OEX}, s{S_OEX}, 2", f"s_add_u32 s{S_OEX}, s{S_OEX}, s{S_I}")
        f = S_OEX
        AD = 208 + 8 * rep
        a(f"s_mul_i32 s16, s{f}, 7282", "s_lshr_b32 s16, s16, 16", "s_mul_i32 s17, s16, 9", f"s_sub_u32 s17, s{f}, s17",
          "s_mul_i32 s18, s16, 7282", "s_lshr_b32 s18, s18, 16", "s_mul_i32 s19, s18, 9", "s_sub_u32 s19, s16, s19",
          "s_and_b32 s20, s18, 1", "s_lshr_b32 s21, s18, 1")
        a("s_mul_i32 s22, s21, 288", "s_lshr_b32 s23, s17, 1", "s_lshl_b32 s23, s23, 6", "s_add_u32 s22, s22, s23", "s_and_b32 s23, s17, 1", "s_lshl_b32 s23, s23, 3",
          "s_add_u32 s22, s22, s23", "s_cmp_eq_u32 s17, 8", "s_cselect_b32 s23, 3, 4",
          "v_bfe_u32 v200, v0, 2, 2", "v_lshlrev_b32 v200, s23, v200", "v_and_b32 v201, 3, v0", "v_lshl_add_u32 v200, v201, 1, v200", "v_add_u32 v200, s22, v200",
          f"s_mul_i32 s22, s20, {36*1152}", "s_cmp_eq_u32 s19, 8", f"s_cbranch_scc1 L_wok1_{rep}")
        cy = [(j & 3) + 8 * (j >> 2) for j in range(8)]
        a(f"s_mul_i32 s23, s19, {72*1152}", "s_add_u32 s22, s22, s23", "v_lshrrev_b32 v201, 5, v0", "v_bfe_u32 v202, v0, 4, 1",
          f"v_mul_u32_u24 v203, {4*1152}, v201", "v_add_u32 v203, v200, v203",
          f"v_mul_u32_u24 v204, {3*1152}, v201", f"v_sub_u32 v204, {16*1152}, v204", "v_mul_u32_u24 v204, v202, v204", f"v_add_u32 v{AD}, v203, v204")
        for j in range(1, 8):
            dj = 18 + cy[j-1] - cy[j]
            a(f"v_mul_u32_u24 v204, {dj*1152}, v202", f"v_add_u32 v204, {cy[j]*1152}, v204", f"v_add_u32 v{AD+j}, v203, v204")
        a(f"s_branch L_wold_{rep}", f"L_wok1_{rep}:", "v_lshrrev_b32 v201, 4, v0", f"v_mul_u32_u24 v201, {144*1152}, v201", "v_add_u32 v203, v200, v201")
        for j in range(8):
            hq, hh, e = j >> 2, (j >> 1) & 1, j & 1
            row = 72 * hq + 18 + ((16 + hh) if e else (11 + 4 * hh))
            a(f"v_add_u32 v{AD+j}, {row*1152}, v203")
        a(f"L_wold_{rep}:")
        a(f"s_mov_b32 s{30+rep}, s22")

    def wo_job_loads(self, rep):
        for j in range(8):
            self.a(f"buffer_load_ushort v{224+8*rep+j}, v{208+8*rep+j}, s[{R_WO}:{R_WO+3}], s{30+rep} offen")

    def wo_job_finish(self, rep):
        a = self.a
        DT = 224 + 8 * rep
        a(f"s_lshl_b32 s22, s{S_OEX}, 10", f"s_add_u32 s22, s22, {WS_WOT}")
        for j in range(4):
            a(f"v_lshl_or_b32 v{240+4*rep+j}, v{DT+1+2*j}, 16, v{DT+2*j}")
        a(f"buffer_store_dwordx4 {vr(240+4*rep,4)}, v1, s[{R_WS}:{R_WS+3}], s22 offen sc1")

    def poison_addr(self):
        a = self.a
        a([f"v_mov_b32 v{192+j}, -1" for j in range(4)])
        a(f"s_lshl_b32 s32, s{S_PG}, 2", f"s_add_u32 s32, s32, s{S_HG}", f"s_mul_i32 s32, s32, {OEX_W}", f"s_add_u32 s32, s32, {WS_OEX}",
          f"s_lshl_b32 s33, s{S_I}, 12", "s_add_u32 s33, s33, s32", f"s_lshl_b32 s34, s{S_PBI}, 10", "s_add_u32 s34, s34, s32", "s_add_u32 s34, s34, 16384")

    def poison(self):
        a = self.a
        for k in range(4):
            a(f"buffer_store_dwordx4 v[192:195], v1, s[{R_WS}:{R_WS+3}], s33 offen offset:{k*1024} sc0 sc1")
        a(f"buffer_store_dwordx4 v[192:195], v1, s[{R_WS}:{R_WS+3}], s34 offen sc0 sc1")

    def attention(self):
        a, o = self.a, self.o
        UNP = o['unp']
        a.label("L_attn")
        a(f"v_mul_f32 v7, v6, v{QR+1}", f"v_mov_b32 v6, {hex(f2u(-1.0 if o['force_fb'] else TSAFE))}",
          "v_cmp_nle_f32 vcc, v7, v6", "v_sub_f32 v7, 0, v7", f"v_cvt_pk_bf16_f32 v{QR+1}, v7, 0", "s_cbranch_vccnz L_fallback", "L_fbdone:")
        q = self.qk(S[0], 0)
        f1 = [f"s_mul_i32 s{S_OEXB}, s{S_PG}, {OEX_G}", f"s_add_u32 s{S_OEXB}, s{S_OEXB}, {WS_OEX}", f"s_mul_i32 s{S_OW}, s{S_HG}, {OEX_W}", f"s_add_u32 s{S_OW}, s{S_OW}, s{S_OEXB}",
              f"s_lshl_b32 s{S_T0}, s{S_STG}, 1", f"s_add_u32 s{S_T0}, s{S_T0}, s{S_HQ}", f"s_lshl_b32 s{S_T0}, s{S_T0}, 12", f"s_lshl_b32 s{S_T1}, s{S_PBI}, 11", f"s_add_u32 s{S_OA}, s{S_T0}, s{S_T1}",
              f"s_lshl_b32 s{S_T0}, s{S_STG}, 10", f"s_lshl_b32 s{S_T1}, s{S_PBI}, 9", f"s_add_u32 s{S_T0}, s{S_T0}, s{S_T1}", f"s_lshl_b32 s{S_T1}, s{S_HQ}, 7", f"s_add_u32 s{S_OB}, s{S_T0}, s{S_T1}",
              f"v_mov_b32 v{V_JN}, {L_FLAG+4}", f"s_mov_b32 s{S_CNT}, {32//UNP}", "v_bfe_u32 v6, v0, 4, 1", "v_lshrrev_b32 v7, 5, v0"]
        f2 = ["v_and_b32 v22, 15, v0", f"v_lshlrev_b32 v{V_OA}, 10, v6", f"v_lshl_add_u32 v{V_OA}, v7, 9, v{V_OA}", f"v_lshl_add_u32 v{V_OA}, v22, 4, v{V_OA}", f"v_add_u32 v{V_OA}, s{S_OA}, v{V_OA}",
              f"v_lshlrev_b32 v{V_OB}, 8, v6", f"v_lshl_add_u32 v{V_OB}, v7, 6, v{V_OB}", f"v_lshl_add_u32 v{V_OB}, v22, 2, v{V_OB}", f"v_add_u32 v{V_OB}, s{S_OB}, v{V_OB}",
              f"s_add_u32 s{S_OB}, s{S_OW}, 16384", "s_nop 0"]
        a("s_nop 0", q[0], f1, q[1], q[2], f2)
        self.stamp(6)
        body = []
        for kb in range(2 * UNP):
            cur, nxt = S[kb % 2], S[(kb + 1) % 2]
            q = self.qk(nxt, kb + 1)
            e = EX(cur, 32)
            sm3p = SM(O[1], VV[(kb - 1) % 2][1], nxt + 24)
            sm = [SM(O[0], VV[kb % 2][0], cur), SM(O[0], VV[kb % 2][1], cur + 8), SM(O[1], VV[kb % 2][0], cur + 16)]
            cl = self.ldKm(kb + 2) + (self.ldKr((kb + 3) // 2) if kb % 2 == 1 else []) + self.ldV(kb + 1)
            body += e[0:2] + [sm3p] + e[2:5] + [q[0]] + e[5:13] + ["s_waitcnt lgkmcnt(0)", sm[0]] + e[13:18] + [sm[1]] + e[18:21] + [q[1]] + e[21:24] + [q[2]] + cl + e[24:27] + [sm[2]] + e[27:32]
        body += [f"v_add_u32 v{V_AK}, {UNP*PB}, v{V_AK}", f"v_add_u32 v{V_AR}, {UNP*PB}, v{V_AR}", f"v_add_u32 v{V_AV}, {UNP*PB}, v{V_AV}"]
        reach = max(int(x.split("offset:")[1]) + {V_AK: 1024, V_AR: 2048 + 256, V_AV: 2304 + VG}[int(x.split(", v")[1].split()[0])] for x in body if x.startswith("ds_read"))
        assert reach + (o['barit'] - 1) * UNP * PB <= 4096 * o['kv1'] and L_KV + 4096 * o['kv1'] <= dslot(17)
        self.loop_body = body
        a(".p2align 6", "L_main:", body, f"s_sub_u32 s{S_CNT}, s{S_CNT}, 1", f"s_cmp_lg_u32 s{S_CNT}, s{S_BAR}", "s_cbranch_scc0 L_event", "L_nob7:",
          f"s_cmp_lg_u32 s{S_CNT}, 0", "s_cbranch_scc1 L_main")
        a(f"ds_read_b32 v23, v{V_JN}", SM(O[1], VV[1][1], S[1] + 24))
        self.stamp(7)
        a("s_setprio 3", f"s_cmp_eq_u32 s{S_STG}, 0", "s_cbranch_scc1 L_nox1", "s_barrier", "L_nox1:")
        vals = [O[0] + j for j in range(9)] + [O[1] + j for j in range(9)]
        a(f"v_rcp_f32 v10, v{O[0]+9}", f"s_mov_b32 s{S_CNT}, {SPIN}")
        for r in vals[:9]:
            a(f"v_mul_f32 v{r}, v{r}, v10")
        for j in range(4):
            a(f"v_cvt_pk_bf16_f32 v{12+j}, v{vals[2*j]}, v{vals[2*j+1]}")
        a(f"v_rcp_f32 v11, v{O[1]+9}")
        a("L_pchk:", "s_waitcnt lgkmcnt(0)", "v_cmp_gt_u32 vcc, 4, v23", "s_cbranch_vccz L_pok",
          f"ds_read_b32 v23, v{V_JN}", f"s_sub_u32 s{S_CNT}, s{S_CNT}, 1", "s_cbranch_scc0 L_pchk", "L_pok:")
        a(f"s_cmp_eq_u32 s{S_SAME}, 1", "s_cbranch_scc1 L_pub1")
        for fl in (" sc0 sc1", ""):
            a(f"buffer_store_dwordx4 v[12:15], v{V_OA}, s[{R_WS}:{R_WS+3}], s{S_OW} offen{fl}")
            for r in vals[9:]:
                a(f"v_mul_f32 v{r}, v{r}, v11")
            for j in range(4, 9):
                a(f"v_cvt_pk_bf16_f32 v{12+j}, v{vals[2*j]}, v{vals[2*j+1]}")
                if j == 7:
                    a(f"buffer_store_dwordx4 v[16:19], v{V_OA}, s[{R_WS}:{R_WS+3}], s{S_OW} offen offset:256{fl}")
            a(f"buffer_store_dword v20, v{V_OB}, s[{R_WS}:{R_WS+3}], s{S_OB} offen{fl}")
            if fl:
                a("s_branch L_pub2", "L_pub1:")
        a("L_pub2:")
        self.oproj2()

    def events(self):
        a, o = self.a, self.o
        n = 32 // o['unp']
        assert L_PS + 36864 <= L_KV + o['p3'] * o['unp'] * PB and o['barit'] == 1 and 1 < o['p1'] < o['p2'] < o['p3'] < n
        a("L_event:", f"s_cmp_eq_u32 s{S_CNT}, {n - o['p1']}", "s_cbranch_scc1 L_ev1", f"s_cmp_eq_u32 s{S_CNT}, {n - o['p2']}", "s_cbranch_scc1 L_ev2",
          f"s_cmp_eq_u32 s{S_CNT}, {n - o['p3']}", "s_cbranch_scc1 L_ev3", f"s_mov_b32 s{S_BAR}, {n - o['p1']}",
          f"s_cmp_eq_u32 s{S_STG}, 0", "s_cbranch_scc0 L_ev0", "s_barrier", "s_branch L_nob7", "L_ev0:")
        self.join_signal(200, "l")
        a("s_mov_b64 exec, -1", "s_branch L_nob7")
        a("L_ev1:", "s_setprio 2", f"s_mov_b32 s{S_BAR}, {n - o['p2']}", "s_branch L_nob7")
        a("L_ev2:", f"s_mov_b32 s{S_T2}, {SPIN}", f"s_lshl_b32 s{S_T0}, s{S_B}, 7", "v_mov_b32 v147, 0",
          "L_poll2:", f"buffer_load_dword v148, v147, s[{R_DBG}:{R_DBG+3}], s{S_T0} offen offset:4 sc0 sc1", f"s_sub_u32 s{S_T2}, s{S_T2}, 1",
          "s_cbranch_scc1 L_poll2d", "s_waitcnt vmcnt(0)", "v_cmp_gt_u32 vcc, 0x80, v148", "s_cbranch_vccnz L_poll2", "L_poll2d:")
        if o['xcc']:
            a("s_getreg_b32 s29, hwreg(HW_REG_XCC_ID, 0, 4)", f"s_lshl_b32 s{S_T0}, s{S_PG}, 4", f"s_add_u32 s{S_T0}, s{S_T0}, {WS_XID}", "v_and_b32 v147, 3, v0", "v_lshlrev_b32 v147, 2, v147",
              f"buffer_load_dword v148, v147, s[{R_WS}:{R_WS+3}], s{S_T0} offen sc1", "s_waitcnt vmcnt(0)",
              "v_cmp_ne_u32 vcc, s29, v148", "s_cbranch_vccnz L_nosame", f"s_mov_b32 s{S_SAME}, 1", "L_nosame:")
        self.wo_loads(148)
        a("s_setprio 1", f"s_mov_b32 s{S_BAR}, {n - o['p3']}", "s_branch L_nob7")
        a("L_ev3:", "v_mov_b32 v147, 1", "s_mov_b64 exec, 1", f"ds_add_u32 v{V_JN}, v147 offset:4", "s_mov_b64 exec, -1")
        self.oproj()
        a("s_setprio 0", "s_branch L_nob7")

    def wo_loads(self, WF):
        a = self.a
        a(f"s_lshl_b32 s{S_T0}, s{S_HG}, 1", f"s_add_u32 s{S_T0}, s{S_T0}, s{S_STG}", f"s_mul_i32 s{S_T0}, s{S_T0}, {81*1024}", f"s_add_u32 s{S_T0}, s{S_T0}, {WS_WOT}",
          f"s_lshl_b32 s{S_T1}, s{S_I}, 11", f"s_add_u32 s{S_T1}, s{S_T1}, s{S_T0}", f"s_add_u32 s{S_T0}, s{S_T0}, 8192")
        for ks in range(9):
            a(f"buffer_load_dwordx4 {vr(WF+12*ks,4)}, v1, s[{R_WS}:{R_WS+3}], s{S_T1} offen sc1",
              f"buffer_load_dwordx4 {vr(WF+12*ks+4,4)}, v1, s[{R_WS}:{R_WS+3}], s{S_T1} offen offset:1024 sc1",
              f"buffer_load_dwordx4 {vr(WF+12*ks+8,4)}, v1, s[{R_WS}:{R_WS+3}], s{S_T0} offen sc1")
            if ks < 8:
                a(f"s_add_u32 s{S_T1}, s{S_T1}, 9216", f"s_add_u32 s{S_T0}, s{S_T0}, 9216")

    def fallback(self):
        a, o = self.a, self.o
        a.label("L_fallback")
        a(f"s_cmp_eq_u32 s{S_STG}, 1", "s_cbranch_scc1 L_fb1", "s_barrier", f"s_mov_b32 s{S_BAR}, {32//o['unp'] - o['p1']}", "L_fb1:")
        a(f"v_mov_b32 v{QR+1}, 0", f"v_mov_b32 v144, v{V_AK}", f"v_mov_b32 v145, v{V_AR}", "v_mov_b32 v146, 0xff800000", "v_mov_b32 v147, 0xff800000",
          "v_mov_b32 v151, 0x3f803f80", f"s_mov_b32 s{S_CNT}, 32", "L_fbl:",
          "ds_read_b32 v150, v145", "ds_read_b128 v[152:155], v144", "ds_read_b128 v[156:159], v144 offset:1024",
          f"v_add_u32 v144, {PB}, v144", f"v_add_u32 v145, {PB}, v145", "s_waitcnt lgkmcnt(0)")
        for h in range(2):
            a(B2(160, 150, QR, h), "s_nop 15", "s_nop 1", K16(160, 152 + 4 * h, QM[0]), K16(176, 152 + 4 * h, QM[1]), "s_nop 11")
            for j in range(8):
                a(f"v_max3_f32 v146, v146, v{160+2*j}, v{161+2*j}", f"v_max3_f32 v147, v147, v{176+2*j}, v{177+2*j}")
        a(f"s_sub_u32 s{S_CNT}, s{S_CNT}, 1", f"s_cmp_lg_u32 s{S_CNT}, 0", "s_cbranch_scc1 L_fbl",
          "s_nop 0", "v_permlane32_swap_b32 v146, v147", "s_nop 1", "v_max_f32 v146, v146, v147", "v_sub_f32 v146, 0, v146",
          "v_cvt_pk_bf16_f32 v147, v146, 0", "v_lshlrev_b32 v148, 16, v147", "v_sub_f32 v148, v146, v148", f"v_cvt_pk_bf16_f32 v{QR+1}, v146, v148",
          "s_branch L_fbdone")

    def oproj(self):
        a, o = self.a, self.o
        a(f"s_mul_i32 s24, s{S_STG}, {L_S1-L_S0}", f"s_add_u32 s24, s24, {L_S0}", f"s_lshl_b32 s23, s{S_STG}, 13", f"s_lshl_b32 s{S_T4}, s{S_STG}, 10", f"s_add_u32 s{S_T4}, s{S_T4}, 16384")
        for k in range(7):
            a(f"s_add_u32 s{S_T0}, s{S_I}, {4*k}")
            if k == 6:
                a(f"s_min_u32 s{S_T0}, s{S_T0}, 26")
            a(f"s_mul_i32 s{S_T1}, s{S_T0}, 7282", f"s_lshr_b32 s{S_T1}, s{S_T1}, 16", f"s_mul_i32 s{S_T2}, s{S_T1}, 9", f"s_sub_u32 s{S_T2}, s{S_T0}, s{S_T2}",
              f"s_add_u32 s{S_T1}, s{S_T1}, s{S_HG}", f"s_add_u32 s{S_T1}, s{S_T1}, 1", f"s_and_b32 s{S_T1}, s{S_T1}, 3",
              f"s_lshl_b32 s{S_T0}, s{S_T2}, 10", f"s_add_u32 s{S_T3}, s{S_T0}, s23", f"s_lshl_b32 s{S_T5}, s{S_T1}, 13", f"s_add_u32 s{S_T0}, s{S_T0}, s{S_T5}",
              f"s_lshl_b32 s{S_T5}, s{S_T1}, 10", f"s_add_u32 s{S_T5}, s{S_T5}, 32768",
              f"s_cmp_eq_u32 s{S_T2}, 8", f"s_cselect_b32 s{S_T3}, s{S_T4}, s{S_T3}", f"s_cselect_b32 s{S_T0}, s{S_T5}, s{S_T0}",
              f"s_add_u32 s{30+k}, s{S_T0}, s24", f"s_mul_i32 s{S_T1}, s{S_T1}, {OEX_W}", f"s_add_u32 s{S_T3}, s{S_T3}, s{S_T1}", f"s_add_u32 s{16+k}, s{S_T3}, s{S_OEXB}")
        a(f"s_mul_i32 s{S_T0}, s{S_PG}, {64*2304}", f"s_mul_i32 s{S_T1}, s{S_B}, 1152", f"s_add_u32 s{S_T0}, s{S_T0}, s{S_T1}", f"s_mul_i32 s{S_T1}, s{S_HG}, 288",
          f"s_add_u32 s{S_T0}, s{S_T0}, s{S_T1}", f"s_lshl_b32 s{S_T1}, s{S_I}, 6", f"s_add_u32 s{S_T1}, s{S_T1}, s{S_T0}")
        for tp in range(4):
            a(f"s_xor_b32 s{S_T2}, s{S_I}, {tp}", f"s_mul_i32 s{S_T2}, s{S_T2}, {16*2304}", f"s_add_u32 s{37+tp}, s{S_T2}, s{S_T1}")
            if tp == 0:
                a(f"s_add_u32 s41, s{S_T2}, s{S_T0}", "s_add_u32 s41, s41, 256")
        a(f"s_lshl_b32 s{S_T0}, s{S_HG}, 13", f"s_sub_u32 s23, s{S_T0}, s23", "s_add_u32 s23, s23, s24",
          f"s_sub_u32 s{S_T0}, s{S_HG}, s{S_STG}", f"s_lshl_b32 s{S_T0}, s{S_T0}, 10", f"s_add_u32 s42, s{S_T0}, s24", "s_add_u32 s42, s42, 32768")

    def oproj2(self):
        a, o = self.a, self.o
        WF, ACC, PB_, PS = 148, 56, 24, 124
        RING = [92 + 4 * i for i in range(8)]
        OUTF = ['', ' sc1', ' sc0 sc1', ' nt'][o['outf']]
        loads = [f"buffer_load_dwordx4 {vr(PB_+4*k,4)}, v1, s[{R_WS}:{R_WS+3}], s{16+k} offen sc0 sc1" for k in range(7)]
        a(f"ds_read_b32 v23, v{V_JN} offset:4", loads)
        a(f"v_add_u32 v{V_OA}, s23, v{V_OA}", f"v_add_u32 v{V_OB}, s42, v{V_OB}",
          f"s_lshl_b32 s{S_T0}, s{S_I}, 10", f"s_add_u32 s{S_T0}, s{S_T0}, s24", f"v_add_u32 v8, s{S_T0}, v1", "v_xor_b32 v9, 0x400, v8", "v_xor_b32 v10, 0x800, v8", "v_xor_b32 v11, 0xc00, v8",
          "v_lshrrev_b32 v6, 4, v0", "v_lshlrev_b32 v6, 10, v6", "v_and_b32 v7, 15, v0", "v_lshl_add_u32 v6, v7, 2, v6", f"s_lshl_b32 s{S_T0}, s{S_I}, 8", f"s_add_u32 s{S_T0}, s{S_T0}, s24",
          f"s_add_u32 s{S_T0}, s{S_T0}, 32768", f"v_add_u32 v52, s{S_T0}, v6", "v_xor_b32 v53, 0x100, v52", "v_xor_b32 v54, 0x200, v52", "v_xor_b32 v55, 0x300, v52",
          f"s_mul_i32 s{S_T0}, s{S_I}, 9216", f"s_add_u32 s{S_T0}, s{S_T0}, {L_PS}", f"v_add_u32 v21, s{S_T0}, v1", f"s_mov_b32 s{S_CNT}, {SPIN}")
        a("L_free:", "s_waitcnt lgkmcnt(0)", "v_cmp_gt_u32 vcc, 8, v23", "s_cbranch_vccz L_freed",
          f"ds_read_b32 v23, v{V_JN} offset:4", f"s_sub_u32 s{S_CNT}, s{S_CNT}, 1", "s_cbranch_scc0 L_free", "L_freed:")
        a(f"ds_write_b128 v{V_OA}, v[12:15]", f"ds_write_b128 v{V_OA}, v[16:19] offset:256", f"ds_write_b32 v{V_OB}, v20")
        self.stamp(1, 4)
        a(f"s_mov_b32 s{S_CNT}, {SPIN}", "L_cl:", "s_waitcnt vmcnt(0)")
        self.stamp(3, 4)
        a(f"v_max3_u32 v6, v{PB_}, v{PB_+1}, v{PB_+2}", f"v_max3_u32 v7, v{PB_+3}, v{PB_+4}, v{PB_+5}")
        for j in range(6, 28, 4):
            a(f"v_max3_u32 v6, v6, v{PB_+j}, v{PB_+j+1}")
            if j + 3 < 28:
                a(f"v_max3_u32 v7, v7, v{PB_+j+2}, v{PB_+j+3}")
        a("v_max_u32 v7, v7, v6", "v_cmp_eq_u32 vcc, -1, v7", "s_cbranch_vccz L_cld", f"s_sub_u32 s{S_CNT}, s{S_CNT}, 1", "s_cbranch_scc1 L_cld", loads, "s_branch L_cl", "L_cld:")
        self.stamp(2, 4)
        for k in range(7):
            a(f"v_add_u32 v{6+(k&1)}, s{30+k}, v1", f"ds_write_b128 v{6+(k&1)}, {vr(PB_+4*k,4)}")
        a("v_and_b32 v22, 15, v0", "v_mul_u32_u24 v22, 0x900, v22", "v_lshrrev_b32 v7, 4, v0", "v_lshl_add_u32 v23, v7, 3, v22", "v_lshl_add_u32 v22, v7, 4, v22")
        a(f"s_cmp_eq_u32 s{S_STG}, 0", "s_waitcnt lgkmcnt(0)", "s_barrier")
        self.stamp(4, 4)
        self.stamp(4, 0)
        q = []

        def issue(n, tp, ks):
            r = RING[n % 8]
            if ks < 8:
                a(f"ds_read_b128 {vr(r,4)}, v{8+tp} offset:{ks*4096}")
                q.append(n)
            else:
                a(f"ds_read2_b32 {vr(r,2)}, v{52+tp} offset0:0 offset1:16", f"ds_read2_b32 {vr(r+2,2)}, v{52+tp} offset0:32 offset1:48")
                q.extend([n] * 2)

        def need(n):
            last = max((i for i, t in enumerate(q) if t == n), default=-1)
            if last >= 0:
                a(f"s_waitcnt lgkmcnt({min(len(q) - 1 - last, 14)})")
                del q[:last + 1]

        def run(after, zero, before={}):
            seq = [(tp, ks) for tp in (1, 2, 3, 0) for ks in range(9)]
            PF = 7
            for j in range(PF):
                issue(j, *seq[j])
            for j, (tp, ks) in enumerate(seq):
                if j in before:
                    before[j]()
                need(j)
                c = "0" if ks == 0 and zero else None
                w = WF + 12 * ks
                a(M16(ACC + 4 * tp, w, RING[j % 8], c), M16(ACC + 16 + 4 * tp, w + 4, RING[j % 8], c))
                if tp == 0:
                    a(M16(ACC + 32, w + 8, RING[j % 8], c))
                if j + PF < len(seq):
                    issue(j + PF, *seq[j + PF])
                if j in after:
                    after[j]()

        def tiles(tp):
            return [tp, 4 + tp] + ([8] if tp == 0 else [])
        a("s_cbranch_scc0 L_tail_l", f"s_setprio {o['tp']}")

        def put(tp):
            for t in tiles(tp):
                a(f"ds_write_b128 v21, {vr(ACC+4*t,4)} offset:{t*1024}")
                q.append(('w', tp))

        def x2():
            need(('w', 3))
            a("s_barrier")
        ev = {9 * i + 2: (lambda i=i: put(i)) for i in (1, 2, 3)}
        ev[o['x2j']] = x2
        run(ev, True)
        a("s_nop 6")
        put(0)
        a("s_waitcnt lgkmcnt(0)", "s_barrier", "s_branch L_fin")
        q.clear()
        a("L_tail_l:")

        def get(tp):
            if tp == 0:
                a("s_barrier")
            for t in tiles(tp):
                a(f"ds_read_b128 {vr(ACC+4*t,4)}, v21 offset:{t*1024}")
                q.append(('p', tp))

        def outp(tp):
            r = 12 + 4 * (tp & 1)
            a([f"v_cvt_pk_bf16_f32 v{r+k}, v{ACC+16*(k>>1)+4*tp+2*(k&1)}, v{ACC+16*(k>>1)+4*tp+2*(k&1)+1}" for k in range(4)],
              f"buffer_store_dwordx4 {vr(r,4)}, v22, s[{R_OUT}:{R_OUT+3}], s{37+tp} offen{OUTF}")
            if tp == 0:
                a(f"v_cvt_pk_bf16_f32 v6, v{ACC+32}, v{ACC+33}", f"v_cvt_pk_bf16_f32 v7, v{ACC+34}, v{ACC+35}",
                  f"buffer_store_dwordx2 v[6:7], v23, s[{R_OUT}:{R_OUT+3}], s41 offen{OUTF}")
        get(1)
        ev = {9 * i + 2: (lambda i=i: outp(i)) for i in (1, 2, 3)}
        ev[3] = lambda: get(2)
        ev[12] = lambda: get(3)
        ev[22] = lambda: get(0)
        run(ev, False, {9 * i: (lambda t=t: need(('p', t))) for i, t in enumerate((1, 2, 3, 0))})
        a("s_nop 5")
        outp(0)
        a("L_fin:")
        if o['stamps'] or o['dbgspan'] or o['ampk']:
            a("s_waitcnt vmcnt(0)")
            self.stamp(5, o['set'] if o['set'] in (1, 4) else 0)
        if o['ampk']:
            a(f"s_cmp_eq_u32 s{S_STG}, {1 - o['amps']}", "s_cbranch_scc1 L_end", "s_waitcnt lgkmcnt(0)", f"s_sub_u32 s{S_T0}, s{S_ST+2*o['ampb']}, s{S_ST+2*o['ampa']}")
            if o['avg']:
                a(f"s_cmp_lg_u32 s{S_I}, 0", "s_cbranch_scc1 L_end", "s_mov_b64 exec, 1", "v_mov_b32 v8, 0", f"v_mov_b32 v9, s{S_T0}", "v_mov_b32 v10, 1",
                  f"buffer_atomic_add v9, v8, s[{R_DBG}:{R_DBG+3}], 0 offen offset:16 sc1", "s_waitcnt vmcnt(0)",
                  f"buffer_atomic_add v10, v8, s[{R_DBG}:{R_DBG+3}], 0 offen offset:144 sc0 sc1", "s_waitcnt vmcnt(0)", "v_cmp_eq_u32 vcc, 0xff, v10", "s_cbranch_vccz L_end",
                  f"buffer_load_dword v9, v8, s[{R_DBG}:{R_DBG+3}], 0 offen offset:16 sc0 sc1", "s_waitcnt vmcnt(0)", f"v_readfirstlane_b32 s{S_T0}, v9", "s_nop 3", f"s_mul_i32 s{S_T0}, s{S_T0}, {o['ampk']}", f"s_lshr_b32 s{S_T0}, s{S_T0}, 8")
            else:
                a(f"s_mul_i32 s{S_T0}, s{S_T0}, {o['ampk']}" if o['ampk'] > 0 else f"s_lshr_b32 s{S_T0}, s{S_T0}, {-o['ampk']}")
            a("s_memrealtime s[18:19]", f"s_min_u32 s{S_T0}, s{S_T0}, 100000",
              "L_amp:", "s_memrealtime s[16:17]", "s_waitcnt lgkmcnt(0)", "s_sub_u32 s16, s16, s18", f"s_cmp_lt_u32 s16, s{S_T0}", "s_cbranch_scc1 L_amp")
        self.dump_stamps()
        a("L_end:", "s_endpgm")

    def build(self):
        self.start()
        self.early_front()
        self.late_front()
        self.attention()
        self.events()
        self.fallback()
        hdr = ("; fused MQA attention x2 (QKV proj + softmax attention + out proj), one launch, 1 workgroup per CU\n"
               f"; @launch grid=(256,1,1) block=(512,1,1) lds={LDS_BYTES}\n"
               '.amdgcn_target "amdgcn-amd-amdhsa--gfx950"\n.text\n'
               f".globl {NAME}\n.p2align 8\n.type {NAME},@function\n{NAME}:\n")
        if self.o['of'] & 1:
            self.a.L = [x.replace(" sc0 sc1", " sc1") if "buffer_store" in x and f"s[{R_WS}:" in x else x for x in self.a.L]
        if self.o['of'] & 2:
            self.a.L = [x.replace(" sc0 sc1", " sc1") if "buffer_load" in x and f"s[{R_WS}:" in x else x for x in self.a.L]
        body = "".join((x + "\n") if x.endswith(":") else ("    " + x + "\n") for x in self.a.L)
        t = table()
        tab = ".p2align 6\n.type L_table,@object\nL_table:\n" + "".join("    .long " + ", ".join(str(int(v)) for v in row) + "\n" for row in t)
        tab += f".fill (1024 - ((. - {NAME}) & 1023)) & 1023, 1, 0\nL_codeend:\n.size L_table, L_codeend-L_table\n"
        kd = f""".section .rodata,"a"
.p2align 6
.amdhsa_kernel {NAME}
  .amdhsa_next_free_vgpr 256
  .amdhsa_next_free_sgpr 102
  .amdhsa_accum_offset 256
  .amdhsa_group_segment_fixed_size 0
  .amdhsa_kernarg_size 104
  .amdhsa_user_sgpr_count 2
  .amdhsa_user_sgpr_kernarg_segment_ptr 1
  .amdhsa_system_sgpr_workgroup_id_x 1
.end_amdhsa_kernel
"""
        return hdr + body + tab + kd


if __name__ == "__main__":
    out = sys.argv[1]
    opt = {}
    for kv in sys.argv[2:]:
        k, v = kv.split("=")
        opt[k] = int(v)
    g = Gen(opt)
    open(out, "w").write(g.build())
```

```python
import sys, math, struct
import numpy as np

NAME = "concat_heads__grouped_kv_mqa__grouped_kv_mqa__prompt_kernel"

VG = 608
PB = 2048 + 256 + 4 * VG
KVB = 32 * PB
L_KV = 12288
L_HAND = 0
L_KMAX = 10240
L_FLAG = 10256
L_T2X = 81920
L_S0 = 12288
L_S1 = L_S0 + 36864
L_PS = L_S1 + 36864
L_W = 62464
L_X = 90112
SLOT = 4608
LDS_BYTES = 163840
WS_KV = 0
WS_KN = KVB
WS_XID = WS_KN + 1024
WS_CNT = 0x26000
WS_WOT = 0x28000
WS_OEX = 0xD0000
WS_BR = 0x400000
WS_STAMP = 0x1000000
OEX_G = 73728
OEX_W = 18432
CSCALE = math.log2(math.e) / math.sqrt(18.0)
TSAFE = 40.0
SPIN = 200000


def f2u(x):
    return struct.unpack("<I", struct.pack("<f", x))[0]


def dslot(d):
    if d < 6:
        return d * 2 * SLOT
    if d < 17:
        return L_W + (d - 6) * 2 * SLOT
    return 5 * 2 * SLOT


def slot_addr(ks):
    return dslot(ks >> 1) + (ks & 1) * SLOT


G0 = [0, 1, 2, 3, 12, 13, 14, 15, 20]
G1 = [4, 5, 6, 7, 8, 9, 10, 11, 16]
POS_ONES, POS_ZERO = 22, 23


def vpos(h, row):
    if row in G0:
        return [list(range(0, 9)), [18, 19, 20, 21, 24, 25, 26, 27, 28]][h][G0.index(row)]
    if row in G1:
        return [list(range(9, 18)), list(range(29, 38))][h][G1.index(row)]
    if row in (17, 21):
        return POS_ONES
    return POS_ZERO


def table():
    t = np.zeros((64, 4), dtype=np.uint32)
    for l in range(64):
        t[l, 0] = L_KV + 2304 + vpos(l >> 5, l & 31) * 16
        n, g = l & 15, l >> 4
        t[l, 1] = vpos(g >> 1, n) * 16 + (g & 1) * 8
        p = {0: vpos(g >> 1, 16), 1: vpos(g >> 1, 20), 2: POS_ONES, 3: POS_ZERO}.get(n, POS_ZERO)
        t[l, 2] = p * 16 + (g & 1) * 8
    return t


def vr(a, n=1):
    return f"v[{a}:{a+n-1}]" if n > 1 else f"v{a}"


def sr(a, n=1):
    return f"s[{a}:{a+n-1}]" if n > 1 else f"s{a}"


S_WAVE = 3
R_X, R_WQ, R_W, R_WO, R_WS, R_OUT, R_DBG = 44, 48, 52, 56, 60, 64, 68
S_B, S_HG, S_GI, S_PG, S_I = 4, 5, 6, 7, 8
S_T0, S_T1, S_T2, S_T3, S_T4, S_T5 = 9, 10, 11, 12, 13, 14
S_CNT = 15
S_M0A, S_M0R, S_ROW = 72, 73, 74
S_BAR = 75
S_PBI, S_HQ = 76, 77
S_EX = 42
S_KVS = 80
S_OEX = 81
S_STG = 82
S_OEXB = 78
S_SAME, S_OA, S_OB, S_OW = 26, 27, 28, 25
V_OA, V_OB, V_JN = 144, 145, 146
S_VM = 0
S_XI, S_XB, S_XS, S_XM = 83, 100, 101, 79
S_DI, S_DS, S_LI, S_LS = 72, 73, 74, 75
S_ST = 84

V_IDX, V_AK, V_AR, V_AV = 2, 3, 4, 5
QM = [8, 12]
QR = 16
KR = [18, 20]
O = [24, 40]
KM = [56, 60]
VV = [[64, 68], [72, 76]]
S = [80, 112]


DOC = """;
;     dims 16, 17 and m), p = exp2(S), O^T += V^T p with the 2:4-sparse MFMA picking the high halves of the fp32 p registers
;     exp2 can overflow or underflow); otherwise the wave first computes the true row max in an extra pass (L_fallback).
"""


class A:
    def __init__(self):
        self.L = []

    def __call__(self, *xs):
        for x in xs:
            if isinstance(x, (list, tuple)):
                self(*x)
            else:
                self.L.append(x)

    def label(self, n):
        self.L.append(n + ":")


def K16(d, a, b, c=None):
    return f"v_mfma_f32_32x32x16_bf16 {vr(d,16)}, {vr(a,4)}, {vr(b,4)}, {c if c else vr(d,16)}"


def M16(d, a, b, c=None):
    return f"v_mfma_f32_16x16x32_bf16 {vr(d,4)}, {vr(a,4)}, {vr(b,4)}, {c if c else vr(d,4)}"


def B2(d, a, b, abid):
    return f"v_mfma_f32_32x32x4_2b_bf16 {vr(d,32)}, {vr(a,2)}, {vr(b,2)}, 0 cbsz:1 abid:{abid}"


def K8Z(d, z):
    return f"v_mfma_f32_32x32x8_bf16 {vr(d,16)}, {vr(z,2)}, {vr(z,2)}, 0"


def SM(d, a, b):
    return f"v_smfmac_f32_32x32x32_bf16 {vr(d,16)}, {vr(a,4)}, {vr(b,8)}, v{V_IDX}"


def EX(r, n):
    return [f"v_exp_f32 v{r+i}, v{r+i}" for i in range(n)]


def srd(a, dst, lo, hi, size):
    a(f"s_mov_b32 s{dst}, {lo}", f"s_mov_b32 s{dst+1}, {hi}", f"s_mov_b32 s{dst+2}, {size}", f"s_mov_b32 s{dst+3}, 0x20000")


class Gen:
    def __init__(self, opt):
        self.o = dict(unp=4, barit=1, stamps=False, force_fb=False, prefetch=True, prio=True, dbgspan=0, xe1=0, x1l=0, pw=0, ks2=0, binv=0, z2=1, vexec=0, ga=1, tp=1, x2j=31, amps=0, p1=2, p2=5, p3=7, lo0=0, lo1=0, ka=2, lnorm=1, xper=3, dly=0, d0l=1, pre=2, xe=0, sigb2=1, tre=1, badv0=0, shard=1, nslow=64, spf=0, avg=0, xcc=1, xp=0, outf=0, of=0, ampa=0, ampb=0, ampk=0, set=0, nb=5, kv1=7, pd=2, win=3, t1=7, t2=9, sb=18)
        self.o.update(opt)
        self.a = A()
        self.nst = 0

    def stamp(self, i, st=0):
        if i not in (0, 7) and st != self.o['set']:
            return
        if self.o['stamps'] or self.o['dbgspan'] or self.o['ampk']:
            cyc = self.o['stamps'] == 2 or self.o['ampk'] < 0
            self.a(f"{'s_memtime' if cyc else 's_memrealtime'} s[{S_ST+2*i}:{S_ST+2*i+1}]")

    def dump_stamps(self):
        if self.o['dbgspan']:
            a = self.a
            n = self.nst = self.nst + 1
            a("s_waitcnt lgkmcnt(0)", f"s_cmp_lg_u32 s{S_I}, 0", f"s_cbranch_scc1 L_nodump{n}", "s_mov_b64 exec, 1", "v_mov_b32 v8, 0", f"s_not_b32 s{S_T0}, s{S_ST}", f"v_mov_b32 v9, s{S_T0}",
              f"buffer_atomic_umax v9, v8, s[{R_DBG}:{R_DBG+3}], 0 offen offset:8 sc1")
            for k, i in enumerate((0, 1, 3, 6, 7, 5) if n == 2 else (1, 2, 4, 5, 6, 7)):
                a(f"v_mov_b32 v{10+k}, s{S_ST+2*i}", f"buffer_atomic_umax v{10+k}, v8, s[{R_DBG}:{R_DBG+3}], 0 offen offset:{(12 if n == 2 else 36)+4*k} sc1")
            a(f"L_nodump{n}:")
            return
        if not self.o['stamps']:
            return
        a = self.a
        a("s_waitcnt lgkmcnt(0)", f"s_lshl_b32 s{S_T0}, s2, 3", f"s_add_u32 s{S_T0}, s{S_T0}, s{S_WAVE}", f"s_lshl_b32 s{S_T0}, s{S_T0}, 6",
          f"s_mul_i32 s{S_T1}, s{S_B}, {WS_BR}", f"s_sub_u32 s{S_T0}, s{S_T0}, s{S_T1}", f"s_add_u32 s{S_T0}, s{S_T0}, {WS_STAMP}",
          f"s_mov_b32 s{R_WS+2}, 0x2000000", "v_mov_b32 v8, 0")
        for i in range(4):
            for k in range(4):
                a(f"v_mov_b32 v{12+k}, s{S_ST+4*i+k}")
            a(f"buffer_store_dwordx4 v[12:15], v8, s[{R_WS}:{R_WS+3}], s{S_T0} offen offset:{16*i}", "s_nop 1")

    def kv_dma(self, p0, n):
        a = self.a
        for k in range(n):
            a(f"s_add_u32 m0, s{S_M0A}, {L_KV + (p0 + 4*k)*1024}", f"s_add_u32 s{S_T0}, s{S_KVS}, 4096",
              f"buffer_load_dwordx4 v1, s[{R_WS}:{R_WS+3}], s{S_KVS} offen sc1 lds",
              f"s_cmp_ge_u32 s{S_T0}, {KVB}", f"s_cselect_b32 s{S_T1}, {KVB}, 0", f"s_sub_u32 s{S_KVS}, s{S_T0}, s{S_T1}")

    def row_max16(self, v):
        a = self.a
        for k in (8, 4, 2, 1):
            a("s_nop 1", f"v_max_f32_dpp v{v}, v{v}, v{v} row_ror:{k} row_mask:0xf bank_mask:0xf")

    def rest_srds(self):
        a = self.a
        a(f"s_mov_b32 s{R_WO+2}, 663552", f"s_mov_b32 s{R_WO+3}, 0x20000",
          f"s_mul_i32 s{S_T0}, s{S_B}, {WS_BR}", f"s_add_u32 s{R_WS}, s40, s{S_T0}", f"s_addc_u32 s{R_WS+1}, s41, 0",
          f"s_mov_b32 s{R_WS+2}, {WS_OEX + 32*OEX_G}", f"s_mov_b32 s{R_WS+3}, 0x20000")
        srd(a, R_OUT, "s36", "s37", 4718592)
        srd(a, R_DBG, "s38", "s39", 256)

    def norm2(self, x, y):
        a = self.a
        for j in range(4):
            for (qm, qr, dst, tmp) in (x, y):
                a(f"v_dot2_f32_bf16 v{dst}, v{qm+j}, v{qm+j}, {'0' if j == 0 else 'v%d' % dst}",
                  f"v_dot2_f32_bf16 v{tmp}, v{qm+4+j}, v{qm+4+j}, {'0' if j == 0 else 'v%d' % tmp}")
        a("s_nop 0", f"v_permlane32_swap_b32 v{x[2]}, v{x[3]}", "s_nop 0", f"v_permlane32_swap_b32 v{y[2]}, v{y[3]}",
          f"v_add_f32 v{x[2]}, v{x[2]}, v{x[3]}", f"v_add_f32 v{y[2]}, v{y[2]}, v{y[3]}",
          f"v_dot2_f32_bf16 v{x[2]}, v{x[1]}, v{x[1]}, v{x[2]}", f"v_dot2_f32_bf16 v{y[2]}, v{y[1]}, v{y[1]}, v{y[2]}", "s_nop 1",
          f"v_sqrt_f32 v{x[2]}, v{x[2]}", f"v_sqrt_f32 v{y[2]}, v{y[2]}")

    def norm1(self, qm, qr, dst, tmp):
        a = self.a
        for j in range(4):
            a(f"v_dot2_f32_bf16 v{dst}, v{qm+j}, v{qm+j}, {'0' if j == 0 else 'v%d' % dst}",
              f"v_dot2_f32_bf16 v{tmp}, v{qm+4+j}, v{qm+4+j}, {'0' if j == 0 else 'v%d' % tmp}")
        a("s_nop 2", f"v_permlane32_swap_b32 v{dst}, v{tmp}", "s_nop 0", f"v_add_f32 v{dst}, v{dst}, v{tmp}",
          f"v_dot2_f32_bf16 v{dst}, v{qr}, v{qr}, v{dst}", "s_nop 2", f"v_sqrt_f32 v{dst}, v{dst}")

    def init_main_regs(self):
        a = self.a
        a(f"v_mov_b32 v{KR[0]+1}, 0x3f803f80", f"v_mov_b32 v{KR[1]+1}, 0x3f803f80")
        for r in range(O[0], O[0] + 32):
            a(f"v_mov_b32 v{r}, 0")
        for r in range(S[1] + 24, S[1] + 32):
            a(f"v_mov_b32 v{r}, 0")
        if self.o['vexec']:
            self.init_v()
            self.loader_flag()
        else:
            a([f"v_mov_b32 v{r}, 0" for r in range(VV[1][1], VV[1][1] + 4)])

    def ldKm(self, kb):
        return [f"ds_read_b128 {vr(KM[kb%2],4)}, v{V_AK} offset:{(kb//2)*PB+(kb%2)*1024}"]

    def ldKr(self, p):
        return [f"ds_read_b32 v{KR[p%2]}, v{V_AR} offset:{p*PB}"]

    def ldV(self, kb):
        x = [f"ds_read_b128 {vr(VV[kb%2][i],4)}, v{V_AV} offset:{(kb//2)*PB+((kb%2)*2+i)*VG}" for i in range(2)]
        if self.o['vexec']:
            x = [f"s_mov_b64 exec, s[{S_VM}:{S_VM+1}]"] + x + ["s_mov_b64 exec, -1"]
        return x

    def init_v(self):
        a = self.a
        m = sum(1 << r for r in G0 + G1)
        a(f"s_mov_b32 s{S_VM}, {hex(m)}", f"s_mov_b32 s{S_VM+1}, {hex(m)}", "s_mov_b32 vcc_lo, 0x220000", "s_mov_b32 vcc_hi, 0x220000",
          f"v_mov_b32 v{VV[0][0]}, 0x3f803f80", f"v_cndmask_b32 v{VV[0][0]}, 0, v{VV[0][0]}, vcc")
        a([f"v_mov_b32 v{VV[0][0]+k}, v{VV[0][0]}" for k in range(1, 16)])

    def qk(self, dst, kb):
        return [B2(dst, KR[(kb//2) % 2], QR, kb % 2), K16(dst, KM[kb % 2], QM[0]), K16(dst + 16, KM[kb % 2], QM[1])]

    def main_prologue_loads(self):
        self.a(self.ldKr(0), self.ldKm(0), self.ldKm(1), self.ldKr(1), self.ldV(0))

    def start(self):
        a, o = self.a, self.o
        a("s_cmp_ge_u32 s2, 256", "s_cbranch_scc1 L_end")
        a("s_load_dwordx16 s[16:31], s[0:1], 0", "s_load_dwordx8 s[32:39], s[0:1], 64", "s_load_dwordx2 s[40:41], s[0:1], 96")
        self.stamp(0)
        a("s_getpc_b64 s[42:43]", "L_pc:")
        a("v_lshrrev_b32 v1, 6, v0", "v_and_b32 v0, 63, v0", f"v_readfirstlane_b32 s{S_WAVE}, v1", "v_lshlrev_b32 v1, 4, v0",
          f"s_lshr_b32 s{S_T2}, s2, 3", f"s_and_b32 s{S_B}, s2, 1", f"s_and_b32 s{S_HG}, s{S_T2}, 3", f"s_lshr_b32 s{S_GI}, s2, 5")
        if o['binv']:
            a(f"s_xor_b32 s{S_B}, s{S_B}, 1")
        if o['prefetch']:
            a(f"s_cmp_lg_u32 s{S_WAVE}, 7", "s_cbranch_scc1 L_nopf", f"s_cmp_ge_u32 s{S_T2}, (L_codeend-{NAME})/1024", "s_cbranch_scc1 L_nopf",
              f"s_lshl_b32 s{S_T2}, s{S_T2}, 10", f"s_sub_u32 s{S_T0}, s42, L_pc-{NAME}", f"s_subb_u32 s{S_T1}, s43, 0",
              f"s_add_u32 s{S_T0}, s{S_T0}, s{S_T2}", f"s_addc_u32 s{S_T1}, s{S_T1}, 0",
              f"v_mov_b32 v7, s{S_T1}", f"v_add_co_u32 v6, vcc, s{S_T0}, v1", "s_nop 1", "v_addc_co_u32 v7, vcc, 0, v7, vcc", "s_nop 0",
              "global_load_dwordx4 v[24:27], v[6:7], off", "L_nopf:")
        a(f"s_bfe_u32 s{S_PG}, s2, 0x20001", f"s_lshl_b32 s{S_PG}, s{S_PG}, 3", f"s_add_u32 s{S_PG}, s{S_PG}, s{S_GI}",
          f"s_and_b32 s{S_I}, s{S_WAVE}, 3", f"s_and_b32 s{S_PBI}, s{S_WAVE}, 1", f"s_lshr_b32 s{S_HQ}, s{S_I}, 1")
        a("v_lshrrev_b32 v8, 3, v0", "v_lshrrev_b32 v9, 4, v0", f"s_lshl_b32 s{S_T0}, s{S_PBI}, 2", f"v_or_b32 v9, s{S_T0}, v9",
          "v_and_b32 v10, 7, v0", "v_xor_b32 v9, v9, v10", "v_lshlrev_b32 v9, 4, v9", "v_mov_b32 v10, 0x480", "v_mad_u32_u24 v8, v8, v10, v9",
          f"s_lshl_b32 s{S_T0}, s{S_I}, 6", f"v_add_u32 v9, s{S_T0}, v0", "v_mul_u32_u24 v10, 0xab, v9", "v_lshrrev_b32 v10, 9, v10", "v_mul_u32_u24 v10, 12, v10",
          "v_lshlrev_b32 v9, 4, v9", "v_sub_u32 v9, v9, v10")
        a(f"s_and_b32 s{S_T4}, s{S_HG}, 2", f"s_lshl_b32 s{S_T4}, s{S_T4}, 1", f"s_add_u32 s{S_T4}, s{S_T4}, s{S_I}",
          f"s_lshl_b32 s{S_T5}, s{S_PG}, 3", f"s_add_u32 s{S_XB}, s{S_T5}, s{S_T4}", f"s_mul_i32 s{S_XB}, s{S_XB}, {8*1152}",
          f"s_mul_i32 s{S_XM}, s{S_T4}, 9216", f"s_add_u32 s{S_XM}, s{S_XM}, {L_X}", f"s_lshl_b32 s{S_T0}, s{S_I}, 10", f"s_add_u32 s{S_T0}, s{S_T0}, {L_W}",
          f"s_lshr_b32 s{S_T1}, s{S_HG}, 1", f"s_movk_i32 s{S_DI}, 3072", f"s_movk_i32 s{S_DS}, 2304",
          f"s_cmp_lt_u32 s{S_WAVE}, 4", "s_cselect_b64 vcc, -1, 0", f"s_cselect_b32 s{S_XB}, s{S_XB}, 0", f"s_cselect_b32 s{S_XM}, s{S_XM}, s{S_T0}",
          f"s_cselect_b32 s{S_T1}, s{S_HG}, s{S_T1}", f"s_cselect_b32 s{S_DI}, 1024, s{S_DI}", f"s_cselect_b32 s{S_DS}, 128, s{S_DS}",
          "v_cndmask_b32 v9, v9, v8, vcc")
        self.dma9_setup(S_T1)
        a("s_waitcnt lgkmcnt(0)", f"s_cmp_eq_u32 s{S_B}, 0", f"s_cselect_b64 s[{R_X}:{R_X+1}], s[16:17], s[26:27]",
          f"s_cselect_b64 s[20:21], s[20:21], s[30:31]", f"s_cselect_b64 s[22:23], s[22:23], s[32:33]",
          f"s_cselect_b64 s[{R_WQ}:{R_WQ+1}], s[18:19], s[28:29]", f"s_cselect_b64 s[{R_WO}:{R_WO+1}], s[24:25], s[34:35]",
          f"s_bitcmp0_b32 s{S_HG}, 0", f"s_cselect_b64 s[{R_W}:{R_W+1}], s[20:21], s[22:23]", f"s_mov_b32 s{R_X+2}, 2359296", f"s_movk_i32 s{R_W+2}, 20736",
          f"s_cmp_lt_u32 s{S_WAVE}, 4", f"s_cselect_b64 s[{R_W}:{R_W+1}], s[{R_X}:{R_X+1}], s[{R_W}:{R_W+1}]", f"s_cselect_b32 s{R_W+2}, s{R_X+2}, s{R_W+2}",
          f"s_mov_b32 s{R_W+3}, 0x20000", f"s_mov_b32 s{R_X+3}, 0x20000")
        self.stamp(1, 2)
        a(f"s_cmp_lt_u32 s{S_WAVE}, 4", "s_cbranch_scc1 L_r1", "s_setprio 1", f"s_cmp_eq_u32 s{S_WAVE}, 7", "s_cbranch_scc1 L_late", "L_r1:")
        self.dma9(R_W, 9)
        a(f"s_cmp_ge_u32 s{S_WAVE}, 4", "s_cbranch_scc1 L_late")

    def wq_prefetch(self, n, first):
        a = self.a
        a(f"s_mov_b32 s{R_WQ+2}, 663552", f"s_mov_b32 s{R_WQ+3}, 0x20000", "v_lshlrev_b32 v30, 7, v0", f"s_lshr_b32 s{S_T0}, s2, 3", f"s_mul_i32 s{S_T0}, s{S_T0}, 20736")
        if first:
            a(f"s_mul_i32 s{S_T1}, s{first}, 6912", f"s_add_u32 s{S_T0}, s{S_T0}, s{S_T1}")
        a("s_mov_b32 exec_hi, 0x3fffff")
        for k in range(n):
            a(f"buffer_load_dword v{108+k}, v30, s[{R_WQ}:{R_WQ+3}], s{S_T0} offen", f"s_add_u32 s{S_T0}, s{S_T0}, 6912")
        a("s_mov_b32 exec_hi, -1")

    def dma9_setup(self, sel):
        self.a(f"s_bitcmp1_b32 s{sel}, 0", f"s_cselect_b32 s{S_XI}, 5, 0",
               f"s_add_u32 s{S_XS}, s{S_XI}, s{S_GI}", f"s_cmp_ge_u32 s{S_XS}, 9", f"s_cselect_b32 s{S_T0}, 9, 0", f"s_sub_u32 s{S_XS}, s{S_XS}, s{S_T0}",
               f"s_mul_i32 s{S_XS}, s{S_XS}, s{S_DS}", f"s_mul_i32 s{S_XI}, s{S_XI}, s{S_DI}", f"s_mul_i32 s{S_LI}, s{S_DI}, 9", f"s_mul_i32 s{S_LS}, s{S_DS}, 9")

    def dma9(self, srd_, v):
        for i in range(9):
            self.a(f"s_add_u32 m0, s{S_XM}, s{S_XI}", f"s_add_u32 s{S_T3}, s{S_XB}, s{S_XS}",
                   f"buffer_load_dwordx4 v{v}, s[{srd_}:{srd_+3}], s{S_T3} offen lds")
            if i < 8:
                self.a(f"s_add_u32 s{S_XS}, s{S_XS}, s{S_DS}", f"s_cmp_eq_u32 s{S_XS}, s{S_LS}", f"s_cselect_b32 s{S_XS}, 0, s{S_XS}",
                       f"s_add_u32 s{S_XI}, s{S_XI}, s{S_DI}", f"s_cmp_eq_u32 s{S_XI}, s{S_LI}", f"s_cselect_b32 s{S_XI}, 0, s{S_XI}")

    def table_load(self):
        self.a(f"s_add_u32 s{S_T0}, s42, L_table-L_pc", f"s_addc_u32 s{S_T1}, s43, 0",
               f"v_mov_b32 v7, s{S_T1}", f"v_add_co_u32 v6, vcc, s{S_T0}, v1", "s_nop 1", "v_addc_co_u32 v7, vcc, 0, v7, vcc", "s_nop 0",
               "global_load_dwordx4 v[20:23], v[6:7], off")

    def wq_setup(self, d, part=3):
        a = self.a
        if part & 1:
            a(f"s_mov_b32 s{R_WQ+2}, 663552", f"s_mov_b32 s{R_WQ+3}, 0x20000", f"s_lshl_b32 s{S_T0}, s{S_I}, 6", f"s_mul_i32 s{S_T1}, s{S_HG}, 288", "v_mov_b32 v16, 0x480")
        for t in range(3 if part & 1 else 0):
            a(f"v_add_u32 v13, s{S_T0}, v0", "v_mul_u32_u24 v14, 0xe39, v13", "v_lshrrev_b32 v14, 16, v14",
              "v_mul_u32_u24 v15, 18, v14", "v_sub_u32 v13, v13, v15", "v_lshlrev_b32 v13, 4, v13",
              "v_bfe_u32 v15, v14, 1, 2", "v_and_b32 v17, 1, v14", "v_lshl_add_u32 v15, v17, 2, v15", "v_and_b32 v14, 24, v14", "v_add_u32 v14, v14, v15",
              "v_mad_u32_u24 v13, v14, v16, v13", f"v_add_u32 v{10+t}, s{S_T1}, v13")
            if t < 2:
                a(f"s_add_u32 s{S_T0}, s{S_T0}, 192")
        if not part & 2:
            return
        a(f"s_lshl_b32 s{S_M0A}, s{S_I}, 10", f"s_mul_i32 s{S_ROW}, s{S_GI}, {64*1152}")
        if d:
            a(f"s_add_u32 s{S_ROW}, s{S_ROW}, {32*d*1152}", f"s_cmp_ge_u32 s{S_ROW}, {576*1152}",
              f"s_cselect_b32 s{S_T0}, {576*1152}, 0", f"s_sub_u32 s{S_ROW}, s{S_ROW}, s{S_T0}")

    def wq_list(self, d):
        n = self.nlab = getattr(self, 'nlab', 0) + 1
        s0 = dslot(d)
        ld = lambda r: f"buffer_load_dwordx4 v{r}, s[{R_WQ}:{R_WQ+3}], s{S_ROW} offen lds"
        return [f"s_cbranch_vccz L_wq{n}",
                f"s_add_u32 m0, s{S_M0A}, {s0}", f"s_add_u32 s{S_T0}, s{S_ROW}, {32*1152}", ld(10),
                f"s_add_u32 m0, s{S_M0A}, {s0+3072}", "s_nop 0", ld(11),
                f"s_add_u32 m0, s{S_M0A}, {s0+6144}", f"s_cmp_ge_u32 s{S_T0}, {576*1152}", ld(12),
                f"s_cselect_b32 s{S_T1}, {576*1152}, 0", f"s_sub_u32 s{S_ROW}, s{S_T0}, s{S_T1}", f"L_wq{n}:"]

    def wq_dma(self, d):
        self.a(self.wq_list(d))

    def loader_flag(self):
        self.a(f"s_cmp_lt_u32 s{S_I}, 3", "s_cselect_b64 vcc, -1, 0")

    @property
    def GROUPS(self):
        if self.o['pre'] == 5:
            return [(3, 2), (5, 6), (7, 10), (9, 14), (11, 18), (13, 22), (15, 26), (17, 30)]
        if self.o['pre'] == 1:
            return [(3, 2), (5, 6), (7, 10), (9, 14), (11, 18), (13, 22), (15, 26), (17, 30)]
        if self.o['pre'] == 2:
            return [(2, 2), (3, 4), (5, 6), (7, 10), (9, 14), (11, 18), (13, 22), (15, 26), (17, 30)]
        return [(3, 2), (5, 6), (7, 10), (9, 14), (11, 18), (13, 22), (15, 26), (17, 30)]

    def early_front(self):
        a, o = self.a, self.o
        self.stamp(2, 2)
        if o['spf'] == 5:
            a(f"s_cmp_lg_u32 s{S_WAVE}, 3", "s_cbranch_scc1 L_nospf", "s_waitcnt vmcnt(6)")
            self.wq_prefetch(3, None)
            a("L_nospf:")
        self.table_load()
        self.wq_setup(0)
        self.loader_flag()
        if not o['d0l']:
            self.wq_dma(0)
        self.rest_srds()
        a("v_and_b32 v16, 31, v0", "v_lshrrev_b32 v13, 5, v0", "v_bfe_u32 v14, v0, 1, 3", "v_xor_b32 v13, v13, v14", "v_lshlrev_b32 v13, 4, v13",
          "v_and_b32 v14, 7, v0", "v_lshl_add_u32 v13, v14, 7, v13", "v_lshrrev_b32 v16, 3, v16", "v_mul_u32_u24 v16, 0x2400, v16",
          f"s_mul_i32 s{S_T0}, s{S_PBI}, {4*9216}", f"s_add_u32 s{S_T0}, s{S_T0}, {L_X}", f"v_add3_u32 v8, v16, v13, s{S_T0}",
          "v_xor_b32 v9, 32, v8", "v_xor_b32 v108, 64, v8", "v_xor_b32 v109, 0x60, v8")
        a("v_bfe_u32 v18, v0, 2, 2", "v_lshrrev_b32 v15, 5, v0", "v_lshlrev_b32 v15, 2, v15", "v_add_u32 v15, v15, v18", "v_mul_u32_u24 v15, 0x240, v15",
          f"s_mul_i32 s{S_T0}, s{S_HQ}, 144", "v_and_b32 v13, 1, v0", "v_lshl_add_u32 v15, v13, 4, v15", f"v_add_u32 v15, s{S_T0}, v15",
          "v_bfe_u32 v13, v0, 1, 1", "v_bfe_u32 v14, v0, 4, 1", "v_lshl_add_u32 v6, v13, 3, v15", "v_lshl_add_u32 v6, v14, 5, v6",
          "v_mul_u32_u24 v13, 72, v13", "v_add3_u32 v7, v13, v15, 48")
        if o['ks2']:
            a(f"s_mul_i32 s{S_T0}, s{S_HQ}, -288", f"s_add_u32 s{S_T0}, s{S_T0}, 144", f"v_mul_i32_i24 v13, s{S_T0}, v14", "v_add_u32 v7, v7, v13")
        elif o['z2']:
            a("v_lshl_add_u32 v7, v14, 20, v7")
        a(f"s_mul_i32 s{S_T0}, s{S_WAVE}, 2560", f"v_add_u32 v17, s{S_T0}, v1", "v_lshlrev_b32 v18, 3, v0", f"v_add_u32 v18, s{S_T0}, v18",
          f"v_mov_b32 v{V_IDX}, 0xdddddddd", f"v_add_u32 v{V_AK}, {L_KV}, v1", f"v_lshlrev_b32 v{V_AR}, 2, v0", f"v_add_u32 v{V_AR}, {L_KV+2048}, v{V_AR}",
          "v_mov_b32 v110, 0", "v_mov_b32 v111, 0", f"v_mov_b32 v19, {L_KMAX}")
        if o['d0l']:
            a("s_waitcnt vmcnt(1)")
        else:
            a(f"s_cmp_eq_u32 s{S_WAVE}, 3", "s_cbranch_scc0 L_e3", f"s_waitcnt vmcnt({4 if o['spf'] == 5 else 1})", "L_e3:", "s_waitcnt vmcnt(4)")
        self.stamp(3, 2)
        a("s_barrier")
        PRE = o['pre']
        for d in range(PRE + 1):
            self.wq_dma(d)
        a(f"s_cmp_eq_u32 s{S_WAVE}, 3", "s_cbranch_scc0 L_e4", "s_waitcnt vmcnt(0)", "L_e4:", f"s_waitcnt vmcnt({3*(PRE-1)})", f"v_mov_b32 v{V_AV}, v20", "v_mov_b32 v21, 0x3f803f80")
        self.stamp(1)
        self.stamp(4, 2)
        a("s_barrier")
        self.stamp(5, 2)
        XF = 112
        T0, T1, TR, TR2 = 24, 40, 56, 128
        KX = 26
        PD = o['pd']
        FB = [72, 84, 96]
        state = dict(base=0)

        def rd(ks):
            x = []
            off = slot_addr(ks) - state['base']
            if off < 0 or off + 360 > 65535:
                d = slot_addr(ks) - state['base']
                x += [f"v_add_u32 v{r}, {d}, v{r}" if d > 0 else f"v_subrev_u32 v{r}, {-d}, v{r}" for r in (6, 7)]
                state['base'] = slot_addr(ks)
                off = 0
            f = FB[ks % (PD + 1)]
            return x, [f"ds_read_b64_tr_b16 {vr(f,2)}, v6 offset:{off}", f"ds_read_b64_tr_b16 {vr(f+2,2)}, v6 offset:{off+288}",
                       f"ds_read_b64_tr_b16 {vr(f+4,2)}, v6 offset:{off+72}", f"ds_read_b64_tr_b16 {vr(f+6,2)}, v6 offset:{off+360}",
                       f"ds_read_b64_tr_b16 {vr(f+8,2)}, v7 offset:{off}", f"ds_read_b64_tr_b16 {vr(f+10,2)}, v7 offset:{off+288}"]

        def mm(ks, first2):
            f = FB[ks % (PD + 1)]
            c = "0" if ks == 0 else None
            if o['ks2'] and ks >= KX:
                m2 = K16(TR2, f + 8, XF + 4 * ks, vr(TR, 16) if ks == KX else None)
            else:
                m2 = K16(TR, f + 8, XF + 4 * ks, "0" if first2 else None)
            return [K16(T0, f, XF + 4 * ks, c), K16(T1, f + 4, XF + 4 * ks, c), m2]

        def kloop(par):
            state['base'] = 0
            nt = lambda ks: 2 if (o['ks2'] and ks < KX and ks % 2 != par) else 3
            XA = [8, 9, 108, 109]
            q = []

            def issue(tag, ins):
                a(ins)
                q.append(tag)

            def need(*tags):
                last = max((i for i, t in enumerate(q) if t in tags), default=-1)
                if last >= 0:
                    left = len(q) - 1 - last
                    a(f"s_waitcnt lgkmcnt({min(left, 14)})")
                    del q[:last + 1]

            def xrd(i):
                issue(('x', i), f"ds_read_b128 {vr(XF+4*i,4)}, v{XA[i&3]} offset:{(i>>2)*1024}")
            xrd(0)
            for j, r in enumerate(rd(0)[1][:2*nt(0)]):
                issue(('w', 0, j >> 1), r)
            xrd(1)
            for j, r in enumerate(rd(1)[1][:2*nt(1)]):
                issue(('w', 1, j >> 1), r)
            nx = 2
            G = [k for _, k in self.GROUPS]
            ev = {k: ["s_barrier"] for k in G}
            prev = 1
            for last, k in self.GROUPS:
                if prev < PRE:
                    ev[k] = [f"s_waitcnt vmcnt({3*max(PRE-last, 0)})", "s_barrier"]
                prev = last
            for ks in range(36):
                m = mm(ks, ks == par)
                if ks in ev:
                    if ks == 6:
                        need(('x', 35))
                        assert nx == 36 and not any(t[0] == 'x' for t in q)
                    if len(ev[ks]) > 1 and o["stamps"]:
                        a(ev[ks][0])
                    if ks in (2, 6, 10, 14, 22, 30):
                        self.stamp(1 + (2, 6, 10, 14, 22, 30).index(ks), 3)
                    if ks == 30:
                        need('e')
                    a(ev[ks])
                    if ks == 6:
                        self.stamp(2)
                        self.stamp(6, 2)
                pre, n = rd(ks + 2) if ks + 2 < 36 else ([], [])
                fine = nx < 36 or ks == 35
                if not fine:
                    need(('x', ks), ('w', ks, nt(ks) - 1))
                for t in range(3):
                    if t < nt(ks):
                        if fine:
                            need(('x', ks), ('w', ks, t))
                        a(m[t])
                    if t == 0:
                        a(pre)
                    for k in range(o['xper']):
                        if nx < 36:
                            xrd(nx)
                            nx += 1
                    if t < nt(ks + 2):
                        for r in n[2*t:2*t+2]:
                            issue(('w', ks + 2, t), r)
                if o['ks2'] and ks == KX + 2:
                    issue('e', f"ds_write_b128 v13, {vr(TR+8,4)}")
                    issue('e', f"ds_write_b128 v13, {vr(TR+12,4)} offset:1024")
                if o['ks2'] and ks == 31:
                    issue('i', f"ds_read_b128 {vr(XF,4)}, v14")
                    issue('i', f"ds_read_b128 {vr(XF+4,4)}, v14 offset:1024")
            assert not [t for t in q if t != 'i'] and True
            need('i')
        if o['ks2']:
            a(f"s_mul_i32 s{S_T0}, s{S_WAVE}, 2048", f"s_add_u32 s{S_T0}, s{S_T0}, {L_T2X}", f"v_add_u32 v13, s{S_T0}, v1", "v_xor_b32 v14, 0x1000, v13",
              f"s_cmp_eq_u32 s{S_HQ}, 1", "s_cbranch_scc1 L_kodd")
            kloop(0)
            a("s_branch L_kdone", "L_kodd:")
            kloop(1)
            a("L_kdone:")
        else:
            kloop(0)
        self.stamp(3)
        self.stamp(3, 6)
        H = 96
        a("v_mov_b32 v22, v17", "v_mov_b32 v23, v18", "v_mov_b32 v7, v19", f"v_mov_b32 v{KR[0]+1}, 0x3f803f80", f"s_mov_b32 s{S_BAR}, {32//o['unp'] - o['barit']}", f"s_mov_b32 s{S_STG}, 0", f"s_mov_b32 s{S_SAME}, 0")
        a("s_mov_b32 vcc_lo, 0", "s_mov_b32 vcc_hi, -1")
        for (dst, t) in ((QM[0], T0), (H, T1)):
            for j, r in enumerate((0, 2, 4, 6, 10, 12, 14)):
                a(f"v_cvt_pk_bf16_f32 v{dst+j}, v{t+r}, v{t+r+1}")
        if o['ks2']:
            a([f"v_add_f32 v{TR+k}, v{TR2+k}, v{XF+k}" for k in range(8)])
        for (dst, qr, t, t2, tmp) in ((H, H + 8, T1, TR + 4, 107), (QM[0], QR, T0, TR, 108)):
            a(f"v_cvt_pk_bf16_f32 v{dst+7}, v{t2}, v{t2+1}", f"v_cvt_pk_bf16_f32 v{qr}, v{t+8}, v{t+9}", f"v_cvt_pk_bf16_f32 v{tmp}, v{t2+2}, v{t2+3}")
        a(f"v_cndmask_b32 v{H+8}, v{H+8}, v107, vcc", f"v_cndmask_b32 v{QR}, v{QR}, v108, vcc")
        a(f"ds_write_b128 v22, {vr(H,4)}", f"ds_write_b128 v22, {vr(H+4,4)} offset:1024")
        if o['lnorm']:
            a(f"ds_write_b64 v23, {vr(H+8,2)} offset:2048")
        else:
            self.norm2((H, H + 8, H + 9, 107), (QM[0], QR, QR + 1, 108))
            a(f"ds_write_b64 v23, {vr(H+8,2)} offset:2048")
        a(K8Z(O[0], 110), K8Z(O[1], 110))
        if o['vexec']:
            self.init_v()
            a([f"v_mov_b32 v{r}, 0" for r in range(S[1] + 24, S[1] + 32)])
        if o['dly']:
            a("s_memrealtime s[18:19]", "L_dly:", "s_memrealtime s[16:17]", "s_waitcnt lgkmcnt(0)", "s_sub_u32 s16, s16, s18", f"s_cmp_lt_u32 s16, {o['dly']}", "s_cbranch_scc1 L_dly")
        a("s_waitcnt lgkmcnt(0)")
        self.stamp(1, 6)
        a("s_barrier")
        self.stamp(2, 6)
        a("ds_read_b32 v6, v7")
        self.main_prologue_loads()
        if o['lnorm']:
            self.norm1(QM[0], QR, QR + 1, 108)
        if not o['vexec']:
            a([f"v_mov_b32 v{r}, 0" for r in range(VV[1][1], VV[1][1] + 4)])
        if o['prio']:
            a("s_setprio 3")
        a("s_waitcnt lgkmcnt(0)")

    def late_front(self):
        a, o = self.a, self.o
        a.label("L_late")
        a("s_setprio 0")
        if o['spf'] == 3:
            a(f"s_cmp_lg_u32 s{S_WAVE}, 7", "s_cbranch_scc1 L_nospf")
            self.wq_prefetch(3, None)
            a("L_nospf:")
        if o['spf'] == 4:
            a(f"s_cmp_eq_u32 s{S_WAVE}, 7", "s_cbranch_scc1 L_nospf")
            self.wq_prefetch(1, S_I)
            a("L_nospf:")
        self.stamp(2, 2)
        self.rest_srds()
        if o['shard']:
            a("v_and_b32 v160, 7, v0", "v_lshlrev_b32 v160, 9, v160", f"s_cmp_lg_u32 s{S_WAVE}, 7", "s_cbranch_scc1 L_nov0", f"s_mov_b32 s{S_T0}, {WS_CNT}",
              f"buffer_load_dword v161, v160, s[{R_WS}:{R_WS+3}], s{S_T0} offen sc0 sc1", "L_nov0:")
        self.wq_setup(6, 1)
        a(f"s_xor_b32 s{S_T4}, s{S_T4}, 4", f"s_add_u32 s{S_XB}, s{S_T5}, s{S_T4}", f"s_mul_i32 s{S_XB}, s{S_XB}, {8*1152}",
          f"s_mul_i32 s{S_XM}, s{S_T4}, 9216", f"s_add_u32 s{S_XM}, s{S_XM}, {L_X}", f"s_movk_i32 s{S_DI}, 1024", f"s_movk_i32 s{S_DS}, 128")
        a("v_and_b32 v13, 15, v0", "v_lshrrev_b32 v16, 4, v0",
          "v_bfe_u32 v17, v0, 1, 3", "v_xor_b32 v17, v16, v17", "v_lshlrev_b32 v17, 4, v17",
          "v_and_b32 v18, 7, v0", "v_lshl_add_u32 v17, v18, 7, v17", "v_bfe_u32 v18, v0, 3, 1", "v_mul_u32_u24 v18, 0x2400, v18",
          f"s_lshr_b32 s{S_T0}, s{S_HG}, 1", f"s_lshl_b32 s{S_T0}, s{S_T0}, 1", f"s_add_u32 s{S_T0}, s{S_T0}, s{S_PBI}",
          f"s_mul_i32 s{S_T1}, s{S_T0}, {2*9216}", f"s_add_u32 s{S_T1}, s{S_T1}, {L_X}", f"v_add3_u32 v14, v17, v18, s{S_T1}", "v_xor_b32 v15, 64, v14",
          "v_bfe_u32 v17, v0, 2, 2", "v_lshl_add_u32 v17, v16, 3, v17",
          "v_mul_u32_u24 v17, 48, v17", "v_and_b32 v18, 3, v0", "v_lshlrev_b32 v18, 3, v18",
          f"s_cmp_eq_u32 s{S_HQ}, 0", "s_cselect_b64 vcc, -1, 0", "v_mov_b32 v19, 32", "v_cndmask_b32 v18, v19, v18, vcc", f"v_add_u32 v17, {L_W}, v17", "v_add_u32 v17, v17, v18")
        a("v_lshrrev_b32 v19, 5, v0", "v_lshlrev_b32 v19, 9, v19", "v_lshl_add_u32 v19, v13, 4, v19",
          "v_bfe_u32 v18, v0, 4, 1", "v_lshl_add_u32 v28, v18, 3, v19", "v_lshlrev_b32 v29, 2, v13",
          f"s_mul_i32 s{S_KVS}, s{S_PG}, {PB}", f"s_mov_b32 s{S_OEX}, s{S_T0}")
        self.dma9_setup(S_HG)
        self.dma9(R_X, 8)
        self.stamp(3, 2)
        self.table_load()
        if o['spf'] == 2:
            a(f"s_cmp_lg_u32 s{S_WAVE}, 7", "s_cbranch_scc1 L_nospf")
            self.wq_prefetch(3, None)
            a("L_nospf:")
        a("s_setprio 1", "s_waitcnt vmcnt(10)")
        self.stamp(1)
        self.stamp(4, 2)
        a("s_barrier")
        a(f"s_bitcmp1_b32 s{S_HG}, 0", "s_cbranch_scc1 L_vproj")
        D = 32
        NB = o['nb']
        for isv in (0, 1):
            if isv:
                a.label("L_vproj")

            def rd(s):
                xb = 40 + 8 * (s % NB)
                return [f"ds_read_b128 {vr(xb,4)}, v{14+(s&1)} offset:{(s>>1)*1024}",
                        f"ds_read_b64_tr_b16 {vr(xb+4,2)}, v17 offset:{s*1536}", f"ds_read_b64_tr_b16 {vr(xb+6,2)}, v17 offset:{s*1536+192}"]
            for s in range(NB - 1):
                a(rd(s))
            for s in range(18):
                if s == o['sb']:
                    a("s_waitcnt vmcnt(0)", "s_barrier")
                if s == 17 and o['sb'] == 18:
                    a("s_waitcnt vmcnt(0)")
                if s + NB - 1 < 18:
                    a(rd(s + NB - 1))
                left = min(18 - 1 - s, NB - 1)
                xb = 40 + 8 * (s % NB)
                c = "0" if s == 0 else None
                a(f"s_waitcnt lgkmcnt({min(15,3*left)})", M16(D, xb, xb + 4, c) if isv else M16(D, xb + 4, xb, c))
            g = S_OEX
            if not isv:
                a(f"s_lshr_b32 s{S_T0}, s{g}, 1", f"s_lshl_b32 s{S_T0}, s{S_T0}, 10", f"s_lshl_b32 s{S_T1}, s{S_PBI}, 8", f"s_add_u32 s{S_T0}, s{S_T0}, s{S_T1}",
                  f"s_add_u32 s{S_T0}, s{S_T0}, s{S_KVS}",
                  f"s_lshl_b32 s{S_T1}, s{g}, 6", f"s_add_u32 s{S_T1}, s{S_T1}, s{S_KVS}", f"s_add_u32 s{S_T1}, s{S_T1}, 2048",
                  f"s_mov_b32 s{S_T2}, {hex(f2u(CSCALE))}")
                for r in range(4):
                    a(f"v_mul_f32 v{D+r}, s{S_T2}, v{D+r}")
                a(f"v_cvt_pk_bf16_f32 v{D}, v{D}, v{D+1}", f"v_cvt_pk_bf16_f32 v{D+1}, v{D+2}, v{D+3}",
                  f"s_lshl_b32 s{S_T3}, s{S_PG}, 2", f"s_add_u32 s{S_T3}, s{S_T3}, s{g}", f"s_lshl_b32 s{S_T3}, s{S_T3}, 2", f"s_add_u32 s{S_T3}, s{S_T3}, {WS_KN}",
                  f"v_dot2_f32_bf16 v36, v{D}, v{D}, 0",
                  f"s_cmp_eq_u32 s{S_HQ}, 0", "s_cbranch_scc0 L_krem",
                  f"buffer_store_dwordx2 {vr(D,2)}, v28, s[{R_WS}:{R_WS+3}], s{S_T0} offen sc1",
                  f"v_dot2_f32_bf16 v36, v{D+1}, v{D+1}, v36", "s_nop 2", "v_mov_b32 v37, v36", "s_nop 1",
                  "v_permlane16_swap_b32 v36, v37", "s_nop 1", "v_add_f32 v36, v36, v37", "s_nop 0", "v_mov_b32 v37, v36", "s_nop 1",
                  "v_permlane32_swap_b32 v36, v37", "s_nop 1", "v_add_f32 v36, v36, v37", "s_branch L_knorm",
                  "L_krem:", "s_mov_b64 exec, 0xffff",
                  f"buffer_store_dword v{D}, v29, s[{R_WS}:{R_WS+3}], s{S_T1} offen sc1", "s_mov_b64 exec, -1", f"s_add_u32 s{S_T3}, s{S_T3}, 512",
                  "L_knorm:", "s_nop 1")
                self.row_max16(36)
                a("v_mov_b32 v37, 0", "s_mov_b64 exec, 1", f"buffer_store_dword v36, v37, s[{R_WS}:{R_WS+3}], s{S_T3} offen sc1", "s_mov_b64 exec, -1",
                  "s_branch L_kvdone")
            else:
                a(f"s_mul_i32 s{S_T0}, s{g}, {VG}", f"s_add_u32 s{S_T0}, s{S_T0}, s{S_KVS}", f"s_add_u32 s{S_T0}, s{S_T0}, 2304",
                  "v_cmp_eq_u32 vcc, 2, v13", f"v_cmp_eq_u32 s[{S_EX}:{S_EX+1}], 3, v13", "v_mov_b32 v30, 0x3f803f80", "s_nop 0",
                  f"s_cmp_eq_u32 s{S_HQ}, 0",
                  f"v_cvt_pk_bf16_f32 v{D}, v{D}, v{D+1}", f"v_cvt_pk_bf16_f32 v{D+1}, v{D+2}, v{D+3}", "s_cbranch_scc0 L_vrem",
                  f"buffer_store_dwordx2 {vr(D,2)}, v21, s[{R_WS}:{R_WS+3}], s{S_T0} offen sc1", "s_branch L_kvdone",
                  "L_vrem:",
                  f"v_cndmask_b32 v{D}, v{D}, v30, vcc", f"v_cndmask_b32 v{D+1}, v{D+1}, v30, vcc",
                  f"v_cndmask_b32 v{D}, v{D}, 0, s[{S_EX}:{S_EX+1}]", f"v_cndmask_b32 v{D+1}, v{D+1}, 0, s[{S_EX}:{S_EX+1}]",
                  "s_mov_b32 exec_lo, 0x000f000f", "s_mov_b32 exec_hi, 0x000f000f",
                  f"buffer_store_dwordx2 {vr(D,2)}, v22, s[{R_WS}:{R_WS+3}], s{S_T0} offen sc1", "s_mov_b64 exec, -1")
        a.label("L_kvdone")
        if o['xcc']:
            a("s_getreg_b32 s29, hwreg(HW_REG_XCC_ID, 0, 4)", f"s_cmp_lg_u32 s{S_WAVE}, 4", "s_cbranch_scc1 L_noxid",
              f"s_lshl_b32 s{S_T0}, s{S_PG}, 2", f"s_add_u32 s{S_T0}, s{S_T0}, s{S_HG}", f"s_lshl_b32 s{S_T0}, s{S_T0}, 2", f"s_add_u32 s{S_T0}, s{S_T0}, {WS_XID}",
              "v_mov_b32 v38, s29", "v_mov_b32 v39, 0", "s_mov_b64 exec, 1", f"buffer_store_dword v38, v39, s[{R_WS}:{R_WS+3}], s{S_T0} offen sc1", "s_mov_b64 exec, -1", "L_noxid:")
        self.stamp(2)
        self.stamp(5, 2)
        a(f"v_mov_b32 v{V_AV}, v20")
        self.wq_setup(o['pre'] + 1, 2)
        self.loader_flag()
        a("v_mov_b32 v100, 1", "v_mov_b32 v101, 0")
        if o['sb'] == 18:
            a("s_barrier")
        nxt = first = o['pre'] + 1
        NG = len(self.GROUPS)
        passed = -1
        signalled = False
        for gi_, (last, step) in enumerate(self.GROUPS):
            lim = 5 if passed < 2 else 8 if passed < 6 else 16 if passed < 14 else 17
            tgt = min(last + o['win'], lim)
            while nxt <= tgt:
                self.wq_dma(nxt)
                nxt += 1
            assert nxt > last
            if step == 14:
                self.wo_job_addr(0)
                self.poison_addr()
            if step == 18:
                a(f"s_cmp_ge_u32 s{S_OEX}, {648-512}", "s_cselect_b32 s16, 0, 512", f"s_add_u32 s{S_OEX}, s{S_OEX}, s16")
                self.wo_job_addr(1)
                self.loader_flag()
            if gi_ == NG - 3:
                self.init_main_regs()
                a(f"s_and_b32 s{S_T0}, s{S_GI}, 3", f"s_mul_i32 s{S_KVS}, s{S_T0}, {37*1024}", f"s_add_u32 s{S_KVS}, s{S_KVS}, s{S_M0A}",
                  "v_lshlrev_b32 v153, 3, v0", f"s_mov_b32 s{S_T4}, {WS_KN}", f"s_lshl_b32 s{S_T5}, s{S_B}, 7")
            sig = last >= first and not signalled
            if sig:
                a(f"s_cbranch_vccnz L_l{gi_}", "s_waitcnt vmcnt(0)", f"L_l{gi_}:")
                signalled = True
            if last >= first:
                a(f"s_waitcnt vmcnt({3*(nxt-1-last)})")
            passed = step
            if step == 10:
                a(f"v_mov_b32 v150, {L_FLAG}", "v_mov_b32 v152, 0", "v_mov_b32 v153, 0", "v_mov_b32 v154, 0", "v_mov_b32 v155, 0", "v_mov_b32 v151, 0", "ds_write_b128 v150, v[152:155]", "s_waitcnt lgkmcnt(0)")
            if gi_ == NG - 3 and o['tre']:
                a("s_cbranch_vccnz L_try1", f"s_mov_b32 s{S_T0}, {WS_CNT}", f"buffer_load_dword v152, v160, s[{R_WS}:{R_WS+3}], s{S_T0} offen sc0 sc1", "L_try1:")
            if gi_ == NG - 2:
                assert nxt == 18
                if o['shard']:
                    a("s_cbranch_vccnz L_try0")
                    if not o['tre']:
                        a(f"s_mov_b32 s{S_T0}, {WS_CNT}", f"buffer_load_dword v152, v160, s[{R_WS}:{R_WS+3}], s{S_T0} offen sc0 sc1")
                    a("s_waitcnt vmcnt(0)",
                      "v_cmp_ne_u32 s[16:17], v152, v161", "s_cmp_eq_u64 s[16:17], 0", "s_cselect_b32 s16, 1, 0", "v_mov_b32 v152, s16", "ds_write_b32 v150, v152", "s_waitcnt lgkmcnt(0)", "L_try0:")
                else:
                    a("s_cbranch_vccnz L_try0", f"buffer_load_dword v152, v151, s[{R_DBG}:{R_DBG+3}], s{S_T5} offen sc0 sc1", "s_waitcnt vmcnt(0)",
                      "v_lshrrev_b32 v152, 7, v152", "ds_write_b32 v150, v152", "s_waitcnt lgkmcnt(0)", "L_try0:")
            if step in (2, 6, 10, 14, 22):
                self.stamp(1 + (2, 6, 10, 14, 22).index(step), 3)
            a("s_barrier")
            if sig:
                self.kv_signal()
            if gi_ == NG - 2:
                break
        kn = [f"s_cmp_lg_u32 s{S_WAVE}, 7", None, f"buffer_load_dwordx2 v[154:155], v153, s[{R_WS}:{R_WS+3}], s{S_T4} offen sc1",
              f"buffer_load_dwordx2 v[156:157], v153, s[{R_WS}:{R_WS+3}], s{S_T4} offen offset:512 sc1"]
        a("ds_read_b32 v152, v150", "s_waitcnt lgkmcnt(0)", "v_cmp_eq_u32 vcc, 0, v152", "s_cbranch_vccnz L_notyet")
        self.stamp(4)
        a(kn[0], "s_cbranch_scc1 L_kna", kn[2:], "L_kna:")
        self.kv_dma(0, o['ka'])
        a(f"s_cmp_eq_u32 s{S_WAVE}, 7", "s_cbranch_scc1 L_knb", f"s_waitcnt vmcnt({o['ka']})", "L_knb:")
        self.stamp(6, 3)
        a("s_barrier")
        self.kv_dma(4 * o['ka'], o['kv1'] - o['ka'])
        a("s_branch L_first")
        a("L_notyet:", "s_waitcnt vmcnt(0)")
        self.stamp(6, 3)
        a("s_barrier")
        a(f"s_mov_b32 s{S_CNT}, {SPIN}", f"s_cmp_lg_u32 s{S_WAVE}, 7", "s_cbranch_scc1 L_relay")
        if o['shard']:
            a(f"s_mov_b32 s{S_T0}, {WS_CNT}", "L_poll1:", f"buffer_load_dword v152, v160, s[{R_WS}:{R_WS+3}], s{S_T0} offen sc0 sc1",
              f"s_cmp_gt_u32 s{S_CNT}, {SPIN - 4}", "s_cbranch_scc1 L_pf", f"s_cmp_lg_u32 s{S_CNT}, {SPIN - o['nslow']}", "s_cbranch_scc1 L_ps",
              "s_mov_b64 exec, 1", f"buffer_atomic_add v100, v101, s[{R_DBG}:{R_DBG+3}], s{S_T5} offen sc1", "s_mov_b64 exec, -1",
              "L_ps:", f"buffer_load_dwordx3 v[162:164], v151, s[{R_DBG}:{R_DBG+3}], s{S_T5} offen sc0 sc1", "s_waitcnt vmcnt(0)",
              "v_lshrrev_b32 v162, 7, v162", "v_or3_b32 v162, v162, v163, v164", "v_cmp_ne_u32 vcc, 0, v162", "s_cbranch_vccnz L_poll1d",
              "L_pf:", f"s_sub_u32 s{S_CNT}, s{S_CNT}, 1", "s_cbranch_scc1 L_poll1d", "s_waitcnt vmcnt(0)", "v_cmp_ne_u32 vcc, v152, v161", "s_cbranch_vccnz L_poll1")
        else:
            a("L_poll1:", f"buffer_load_dword v152, v151, s[{R_DBG}:{R_DBG+3}], s{S_T5} offen sc0 sc1", f"s_sub_u32 s{S_CNT}, s{S_CNT}, 1",
              "s_cbranch_scc1 L_poll1d", "s_waitcnt vmcnt(0)", "v_cmp_gt_u32 vcc, 0x80, v152", "s_cbranch_vccnz L_poll1")
        a("L_poll1d:", "v_mov_b32 v152, 1", "ds_write_b32 v150, v152", kn[2:], "s_branch L_flagok")
        a("L_relay:", "ds_read_b32 v152, v150", f"s_sub_u32 s{S_CNT}, s{S_CNT}, 1", "s_cbranch_scc1 L_flagok", "s_waitcnt lgkmcnt(0)",
          "v_cmp_eq_u32 vcc, 0, v152", "s_cbranch_vccnz L_relay", "L_flagok:")
        self.stamp(4)
        self.kv_dma(0, o['kv1'])
        a("L_first:")
        self.stamp(3)
        self.stamp(6, 2)
        a(f"s_cmp_lg_u32 s{S_WAVE}, 7", "s_cbranch_scc1 L_nokn", f"s_waitcnt vmcnt({o['kv1']})", "v_max_f32 v154, v154, v155", "v_max_f32 v156, v156, v157")
        self.row_max16(154)
        self.row_max16(156)
        a("s_nop 0")
        for k in range(4):
            a(f"v_readlane_b32 s{16+k}, v154, {16*k}", f"v_readlane_b32 s{20+k}, v156, {16*k}")
        a("s_nop 1", "s_max_u32 s16, s16, s17", "s_max_u32 s18, s18, s19", "s_max_u32 s20, s20, s21", "s_max_u32 s22, s22, s23",
          "s_max_u32 s16, s16, s18", "s_max_u32 s20, s20, s22", "v_mov_b32 v154, s16", "v_add_f32 v154, s20, v154", "v_sqrt_f32 v154, v154",
          f"v_mov_b32 v155, {L_KMAX}", "ds_write_b32 v155, v154", "L_nokn:")
        a(f"v_mov_b32 v{V_IDX}, 0xdddddddd", f"v_add_u32 v{V_AK}, {L_KV}, v1", f"v_lshlrev_b32 v{V_AR}, 2, v0", f"v_add_u32 v{V_AR}, {L_KV+2048}, v{V_AR}",
          f"s_mul_i32 s{S_T0}, s{S_I}, 2560", f"v_add_u32 v8, s{S_T0}, v1", "v_lshlrev_b32 v9, 3, v0", f"v_add_u32 v9, s{S_T0}, v9", f"v_mov_b32 v6, {L_KMAX}")
        self.stamp(3, 6)
        a("s_waitcnt vmcnt(0) lgkmcnt(0)")
        self.stamp(1, 6)
        a("s_barrier")
        self.stamp(2, 6)
        a("ds_read_b32 v6, v6", f"ds_read_b64 {vr(QR,2)}, v9 offset:2048", f"ds_read_b128 {vr(QM[1],4)}, v8 offset:1024", f"ds_read_b128 {vr(QM[0],4)}, v8")
        self.kv_dma(4 * o['kv1'], 37 - o['kv1'])
        a(f"s_mov_b32 s{S_BAR}, {32//o['unp'] - 1}", f"s_mov_b32 s{S_STG}, 1", f"s_mov_b32 s{S_SAME}, 0", "s_waitcnt lgkmcnt(0)")
        self.main_prologue_loads()
        a("s_waitcnt vmcnt(0)")
        self.stamp(5)
        self.stamp(4, 6)
        a("s_barrier")
        self.stamp(5, 6)
        a("s_setprio 3")
        if o['shard']:
            a(f"s_cmp_lg_u32 s{S_WAVE}, 7", "s_cbranch_scc1 L_nosaw", "s_cmp_ge_u32 s2, 8", "s_cbranch_scc1 L_nosaw", "s_mov_b64 exec, 1",
              f"buffer_atomic_add v100, v101, s[{R_DBG}:{R_DBG+3}], s{S_T5} offen offset:8 sc1", "s_mov_b64 exec, -1", "L_nosaw:")
        self.poison()
        self.wo_job_loads(0)
        a(f"s_cmp_lt_u32 s{S_OEX}, 512", "s_cbranch_scc1 L_nowo2")
        self.wo_job_loads(1)
        a("L_nowo2:")
        self.norm1(QM[0], QR, QR + 1, 149)
        a("s_waitcnt lgkmcnt(0)", "s_branch L_attn")

    def kv_signal(self):
        a, o = self.a, self.o
        if o['shard']:
            a("s_cbranch_vccnz L_nosig", "s_setprio 3", f"v_add_u32 v161, {17 if o['badv0'] else 16}, v161",
              f"s_bfe_u32 s{S_T0}, s2, 0x20001", f"s_lshl_b32 s{S_T0}, s{S_T0}, 1", f"s_and_b32 s{S_T1}, s{S_GI}, 1", f"s_add_u32 s{S_T0}, s{S_T0}, s{S_T1}",
              f"s_lshl_b32 s{S_T0}, s{S_T0}, 9", f"s_add_u32 s{S_T0}, s{S_T0}, {WS_CNT}", "s_mov_b64 exec, 1",
              f"buffer_atomic_add v100, v101, s[{R_WS}:{R_WS+3}], s{S_T0} offen sc1", "s_mov_b64 exec, -1", "s_setprio 1", "L_nosig:")
        else:
            a("s_cbranch_vccnz L_nosig", "s_setprio 3", f"s_lshl_b32 s{S_T0}, s{S_B}, 7", "s_mov_b64 exec, 1",
              f"buffer_atomic_add v100, v101, s[{R_DBG}:{R_DBG+3}], s{S_T0} offen sc1", "s_mov_b64 exec, -1", "s_setprio 1", "L_nosig:")

    def join_signal(self, v, tag):
        self.a(f"v_mov_b32 v{v}, {L_FLAG+4}", f"v_mov_b32 v{v+1}, 1", f"v_mov_b32 v{v+3}, 0", f"s_lshl_b32 s{S_T0}, s{S_B}, 7", "s_mov_b64 exec, 1",
               "s_waitcnt vmcnt(0)", f"ds_add_rtn_u32 v{v+2}, v{v}, v{v+1}", "s_waitcnt lgkmcnt(0)", f"v_cmp_eq_u32 vcc, 3, v{v+2}", f"s_cbranch_vccz L_js{tag}",
               f"buffer_atomic_add v{v+1}, v{v+3}, s[{R_DBG}:{R_DBG+3}], s{S_T0} offen offset:4 sc1", f"L_js{tag}:")

    def wo_job_addr(self, rep):
        a = self.a
        if rep == 0:
            a(f"s_lshl_b32 s{S_OEX}, s{S_PG}, 2", f"s_add_u32 s{S_OEX}, s{S_OEX}, s{S_HG}", f"s_lshl_b32 s{S_OEX}, s{S_OEX}, 2", f"s_add_u32 s{S_OEX}, s{S_OEX}, s{S_I}")
        f = S_OEX
        AD = 208 + 8 * rep
        a(f"s_mul_i32 s16, s{f}, 7282", "s_lshr_b32 s16, s16, 16", "s_mul_i32 s17, s16, 9", f"s_sub_u32 s17, s{f}, s17",
          "s_mul_i32 s18, s16, 7282", "s_lshr_b32 s18, s18, 16", "s_mul_i32 s19, s18, 9", "s_sub_u32 s19, s16, s19",
          "s_and_b32 s20, s18, 1", "s_lshr_b32 s21, s18, 1")
        a("s_mul_i32 s22, s21, 288", "s_lshr_b32 s23, s17, 1", "s_lshl_b32 s23, s23, 6", "s_add_u32 s22, s22, s23", "s_and_b32 s23, s17, 1", "s_lshl_b32 s23, s23, 3",
          "s_add_u32 s22, s22, s23", "s_cmp_eq_u32 s17, 8", "s_cselect_b32 s23, 3, 4",
          "v_bfe_u32 v200, v0, 2, 2", "v_lshlrev_b32 v200, s23, v200", "v_and_b32 v201, 3, v0", "v_lshl_add_u32 v200, v201, 1, v200", "v_add_u32 v200, s22, v200",
          f"s_mul_i32 s22, s20, {36*1152}", "s_cmp_eq_u32 s19, 8", f"s_cbranch_scc1 L_wok1_{rep}")
        cy = [(j & 3) + 8 * (j >> 2) for j in range(8)]
        a(f"s_mul_i32 s23, s19, {72*1152}", "s_add_u32 s22, s22, s23", "v_lshrrev_b32 v201, 5, v0", "v_bfe_u32 v202, v0, 4, 1",
          f"v_mul_u32_u24 v203, {4*1152}, v201", "v_add_u32 v203, v200, v203",
          f"v_mul_u32_u24 v204, {3*1152}, v201", f"v_sub_u32 v204, {16*1152}, v204", "v_mul_u32_u24 v204, v202, v204", f"v_add_u32 v{AD}, v203, v204")
        for j in range(1, 8):
            dj = 18 + cy[j-1] - cy[j]
            a(f"v_mul_u32_u24 v204, {dj*1152}, v202", f"v_add_u32 v204, {cy[j]*1152}, v204", f"v_add_u32 v{AD+j}, v203, v204")
        a(f"s_branch L_wold_{rep}", f"L_wok1_{rep}:", "v_lshrrev_b32 v201, 4, v0", f"v_mul_u32_u24 v201, {144*1152}, v201", "v_add_u32 v203, v200, v201")
        for j in range(8):
            hq, hh, e = j >> 2, (j >> 1) & 1, j & 1
            row = 72 * hq + 18 + ((16 + hh) if e else (11 + 4 * hh))
            a(f"v_add_u32 v{AD+j}, {row*1152}, v203")
        a(f"L_wold_{rep}:")
        a(f"s_mov_b32 s{30+rep}, s22")

    def wo_job_loads(self, rep):
        for j in range(8):
            self.a(f"buffer_load_ushort v{224+8*rep+j}, v{208+8*rep+j}, s[{R_WO}:{R_WO+3}], s{30+rep} offen")

    def wo_job_finish(self, rep):
        a = self.a
        DT = 224 + 8 * rep
        a(f"s_lshl_b32 s22, s{S_OEX}, 10", f"s_add_u32 s22, s22, {WS_WOT}")
        for j in range(4):
            a(f"v_lshl_or_b32 v{240+4*rep+j}, v{DT+1+2*j}, 16, v{DT+2*j}")
        a(f"buffer_store_dwordx4 {vr(240+4*rep,4)}, v1, s[{R_WS}:{R_WS+3}], s22 offen sc1")

    def wo_finish(self):
        a = self.a
        a(f"s_cmp_ge_u32 s{S_OEX}, 512", "s_cbranch_scc0 L_wo3")
        self.wo_job_finish(1)
        a(f"s_sub_u32 s{S_OEX}, s{S_OEX}, 512", "L_wo3:")
        self.wo_job_finish(0)

    def poison_addr(self):
        a = self.a
        a([f"v_mov_b32 v{192+j}, -1" for j in range(4)])
        a(f"s_lshl_b32 s32, s{S_PG}, 2", f"s_add_u32 s32, s32, s{S_HG}", f"s_mul_i32 s32, s32, {OEX_W}", f"s_add_u32 s32, s32, {WS_OEX}",
          f"s_lshl_b32 s33, s{S_I}, 12", "s_add_u32 s33, s33, s32", f"s_lshl_b32 s34, s{S_PBI}, 10", "s_add_u32 s34, s34, s32", "s_add_u32 s34, s34, 16384")

    def poison(self):
        a = self.a
        for k in range(4):
            a(f"buffer_store_dwordx4 v[192:195], v1, s[{R_WS}:{R_WS+3}], s33 offen offset:{k*1024} sc0 sc1")
        a(f"buffer_store_dwordx4 v[192:195], v1, s[{R_WS}:{R_WS+3}], s34 offen sc0 sc1")

    def attention(self):
        a, o = self.a, self.o
        UNP = o['unp']
        a.label("L_attn")
        a(f"v_mul_f32 v7, v6, v{QR+1}", f"v_mov_b32 v6, {hex(f2u(-1.0 if o['force_fb'] else TSAFE))}",
          "v_cmp_nle_f32 vcc, v7, v6", "v_sub_f32 v7, 0, v7", f"v_cvt_pk_bf16_f32 v{QR+1}, v7, 0", "s_cbranch_vccnz L_fallback", "L_fbdone:")
        q = self.qk(S[0], 0)
        f1 = [f"s_mul_i32 s{S_OEXB}, s{S_PG}, {OEX_G}", f"s_add_u32 s{S_OEXB}, s{S_OEXB}, {WS_OEX}", f"s_mul_i32 s{S_OW}, s{S_HG}, {OEX_W}", f"s_add_u32 s{S_OW}, s{S_OW}, s{S_OEXB}",
              f"s_lshl_b32 s{S_T0}, s{S_STG}, 1", f"s_add_u32 s{S_T0}, s{S_T0}, s{S_HQ}", f"s_lshl_b32 s{S_T0}, s{S_T0}, 12", f"s_lshl_b32 s{S_T1}, s{S_PBI}, 11", f"s_add_u32 s{S_OA}, s{S_T0}, s{S_T1}",
              f"s_lshl_b32 s{S_T0}, s{S_STG}, 10", f"s_lshl_b32 s{S_T1}, s{S_PBI}, 9", f"s_add_u32 s{S_T0}, s{S_T0}, s{S_T1}", f"s_lshl_b32 s{S_T1}, s{S_HQ}, 7", f"s_add_u32 s{S_OB}, s{S_T0}, s{S_T1}",
              f"v_mov_b32 v{V_JN}, {L_FLAG+4}", f"s_mov_b32 s{S_CNT}, {32//UNP}", "v_bfe_u32 v6, v0, 4, 1", "v_lshrrev_b32 v7, 5, v0"]
        f2 = ["v_and_b32 v22, 15, v0", f"v_lshlrev_b32 v{V_OA}, 10, v6", f"v_lshl_add_u32 v{V_OA}, v7, 9, v{V_OA}", f"v_lshl_add_u32 v{V_OA}, v22, 4, v{V_OA}", f"v_add_u32 v{V_OA}, s{S_OA}, v{V_OA}",
              f"v_lshlrev_b32 v{V_OB}, 8, v6", f"v_lshl_add_u32 v{V_OB}, v7, 6, v{V_OB}", f"v_lshl_add_u32 v{V_OB}, v22, 2, v{V_OB}", f"v_add_u32 v{V_OB}, s{S_OB}, v{V_OB}",
              f"s_add_u32 s{S_OB}, s{S_OW}, 16384", "s_nop 0"]
        a("s_nop 0", q[0], f1, q[1], q[2], f2)
        self.stamp(6)
        self.stamp(6, 6)
        body = []
        for kb in range(2 * UNP):
            cur, nxt = S[kb % 2], S[(kb + 1) % 2]
            q = self.qk(nxt, kb + 1)
            e = EX(cur, 32)
            sm3p = SM(O[1], VV[(kb - 1) % 2][1], nxt + 24)
            sm = [SM(O[0], VV[kb % 2][0], cur), SM(O[0], VV[kb % 2][1], cur + 8), SM(O[1], VV[kb % 2][0], cur + 16)]
            cl = self.ldKm(kb + 2) + (self.ldKr((kb + 3) // 2) if kb % 2 == 1 else []) + self.ldV(kb + 1)
            body += e[0:2] + [sm3p] + e[2:5] + [q[0]] + e[5:13] + ["s_waitcnt lgkmcnt(0)", sm[0]] + e[13:18] + [sm[1]] + e[18:21] + [q[1]] + e[21:24] + [q[2]] + cl + e[24:27] + [sm[2]] + e[27:32]
        body += [f"v_add_u32 v{V_AK}, {UNP*PB}, v{V_AK}", f"v_add_u32 v{V_AR}, {UNP*PB}, v{V_AR}", f"v_add_u32 v{V_AV}, {UNP*PB}, v{V_AV}"]
        reach = max(int(x.split("offset:")[1]) + {V_AK: 1024, V_AR: 2048 + 256, V_AV: 2304 + VG}[int(x.split(", v")[1].split()[0])] for x in body if x.startswith("ds_read"))
        assert reach + (o['barit'] - 1) * UNP * PB <= 4096 * o['kv1'] and L_KV + 4096 * o['kv1'] <= dslot(17)
        self.loop_body = body
        a(".p2align 6", "L_main:", body, f"s_sub_u32 s{S_CNT}, s{S_CNT}, 1", f"s_cmp_lg_u32 s{S_CNT}, s{S_BAR}", "s_cbranch_scc0 L_event", "L_nob7:",
          f"s_cmp_lg_u32 s{S_CNT}, 0", "s_cbranch_scc1 L_main")
        a(f"ds_read_b32 v23, v{V_JN}", SM(O[1], VV[1][1], S[1] + 24))
        self.stamp(7)
        x1 = [f"s_cmp_eq_u32 s{S_STG}, 0", "s_cbranch_scc1 L_nox1", "s_barrier", "L_nox1:"]
        a("s_setprio 3")
        if not o['x1l'] and not o['xe1']:
            a(x1)
        self.stamp(1, 7)
        vals = [O[0] + j for j in range(9)] + [O[1] + j for j in range(9)]
        a(f"v_rcp_f32 v10, v{O[0]+9}", f"s_mov_b32 s{S_CNT}, {SPIN}")
        a([f"v_mul_f32 v{r}, v{r}, v10" for r in vals[:9]])
        for j in range(4):
            a(f"v_cvt_pk_bf16_f32 v{12+j}, v{vals[2*j]}, v{vals[2*j+1]}")
        a(f"v_rcp_f32 v11, v{O[1]+9}")
        a("L_pchk:", "s_waitcnt lgkmcnt(0)", "v_cmp_gt_u32 vcc, 4, v23", "s_cbranch_vccz L_pok",
          f"ds_read_b32 v23, v{V_JN}", f"s_sub_u32 s{S_CNT}, s{S_CNT}, 1", "s_cbranch_scc0 L_pchk", "L_pok:")
        a(f"s_cmp_eq_u32 s{S_SAME}, 1", "s_cbranch_scc1 L_pub1")
        for fl in (" sc0 sc1", ""):
            a(f"buffer_store_dwordx4 v[12:15], v{V_OA}, s[{R_WS}:{R_WS+3}], s{S_OW} offen{fl}")
            self.stamp(2, 7)
            a([f"v_mul_f32 v{r}, v{r}, v11" for r in vals[9:]])
            for j in range(4, 9):
                a(f"v_cvt_pk_bf16_f32 v{12+j}, v{vals[2*j]}, v{vals[2*j+1]}")
                if j == 7:
                    a(f"buffer_store_dwordx4 v[16:19], v{V_OA}, s[{R_WS}:{R_WS+3}], s{S_OW} offen offset:256{fl}")
            a(f"buffer_store_dword v20, v{V_OB}, s[{R_WS}:{R_WS+3}], s{S_OB} offen{fl}")
            if fl:
                a("s_branch L_pub2", "L_pub1:")
        a("L_pub2:")
        if o['x1l']:
            a(x1)
        self.stamp(3, 7)
        self.oproj2()

    def events(self):
        a, o = self.a, self.o
        n = 32 // o['unp']
        assert L_PS + 36864 <= L_KV + o['p3'] * o['unp'] * PB and o['barit'] == 1 and 1 < o['p1'] < o['p2'] < o['p3'] < n
        a("L_event:", f"s_cmp_eq_u32 s{S_CNT}, {n - o['p1']}", "s_cbranch_scc1 L_ev1", f"s_cmp_eq_u32 s{S_CNT}, {n - o['p2']}", "s_cbranch_scc1 L_ev2",
          f"s_cmp_eq_u32 s{S_CNT}, {n - o['p3']}", "s_cbranch_scc1 L_ev3", f"s_mov_b32 s{S_BAR}, {n - o['p1']}",
          f"s_cmp_eq_u32 s{S_STG}, 0", "s_cbranch_scc0 L_ev0")
        self.stamp(4, 6)
        a("s_barrier")
        self.stamp(5, 6)
        a("s_branch L_nob7", "L_ev0:")
        if o['ga']:
            a("s_waitcnt vmcnt(0)")
            self.wo_finish()
            a("s_branch L_nob7")
            a("L_ev1:", f"s_mov_b32 s{S_BAR}, {n - o['p2']}", f"s_cmp_eq_u32 s{S_STG}, 0", "s_cbranch_scc1 L_ev1e")
            self.join_signal(200, "l")
            a("s_mov_b64 exec, -1", "L_ev1e:", "s_setprio 2", "s_branch L_nob7")
        else:
            self.join_signal(200, "l")
            a("s_mov_b64 exec, -1", "s_branch L_nob7")
            a("L_ev1:", "s_setprio 2", f"s_mov_b32 s{S_BAR}, {n - o['p2']}", "s_branch L_nob7")
        a("L_ev2:", f"s_mov_b32 s{S_T2}, {SPIN}", f"s_lshl_b32 s{S_T0}, s{S_B}, 7", "v_mov_b32 v147, 0",
          "L_poll2:", f"buffer_load_dword v148, v147, s[{R_DBG}:{R_DBG+3}], s{S_T0} offen offset:4 sc0 sc1", f"s_sub_u32 s{S_T2}, s{S_T2}, 1",
          "s_cbranch_scc1 L_poll2d", "s_waitcnt vmcnt(0)", "v_cmp_gt_u32 vcc, 0x80, v148", "s_cbranch_vccnz L_poll2", "L_poll2d:")
        if o['xcc']:
            a("s_getreg_b32 s29, hwreg(HW_REG_XCC_ID, 0, 4)", f"s_lshl_b32 s{S_T0}, s{S_PG}, 4", f"s_add_u32 s{S_T0}, s{S_T0}, {WS_XID}", "v_and_b32 v147, 3, v0", "v_lshlrev_b32 v147, 2, v147",
              f"buffer_load_dword v148, v147, s[{R_WS}:{R_WS+3}], s{S_T0} offen sc1", "s_waitcnt vmcnt(0)",
              "v_cmp_ne_u32 vcc, s29, v148", "s_cbranch_vccnz L_nosame", f"s_mov_b32 s{S_SAME}, 1", "L_nosame:")
        self.wo_loads(148)
        a(f"s_setprio {2 if o['xe1'] else 1}", f"s_mov_b32 s{S_BAR}, {n - o['p3']}", "s_branch L_nob7")
        a("L_ev3:", "v_mov_b32 v147, 1", "s_mov_b64 exec, 1", f"ds_add_u32 v{V_JN}, v147 offset:4", "s_mov_b64 exec, -1")
        self.oproj()
        a(f"s_setprio {1 if o['xe1'] else 0}", "s_branch L_nob7")

    def wo_loads(self, WF):
        a = self.a
        a(f"s_lshl_b32 s{S_T0}, s{S_HG}, 1", f"s_add_u32 s{S_T0}, s{S_T0}, s{S_STG}", f"s_mul_i32 s{S_T0}, s{S_T0}, {81*1024}", f"s_add_u32 s{S_T0}, s{S_T0}, {WS_WOT}",
          f"s_lshl_b32 s{S_T1}, s{S_I}, 11", f"s_add_u32 s{S_T1}, s{S_T1}, s{S_T0}", f"s_add_u32 s{S_T0}, s{S_T0}, 8192")
        for ks in range(9):
            a(f"buffer_load_dwordx4 {vr(WF+12*ks,4)}, v1, s[{R_WS}:{R_WS+3}], s{S_T1} offen sc1",
              f"buffer_load_dwordx4 {vr(WF+12*ks+4,4)}, v1, s[{R_WS}:{R_WS+3}], s{S_T1} offen offset:1024 sc1",
              f"buffer_load_dwordx4 {vr(WF+12*ks+8,4)}, v1, s[{R_WS}:{R_WS+3}], s{S_T0} offen sc1")
            if ks < 8:
                a(f"s_add_u32 s{S_T1}, s{S_T1}, 9216", f"s_add_u32 s{S_T0}, s{S_T0}, 9216")

    def fallback(self):
        a, o = self.a, self.o
        a.label("L_fallback")
        a(f"s_cmp_eq_u32 s{S_STG}, 1", "s_cbranch_scc1 L_fb1", "s_barrier", f"s_mov_b32 s{S_BAR}, {32//o['unp'] - o['p1']}", "L_fb1:")
        a(f"v_mov_b32 v{QR+1}, 0", f"v_mov_b32 v144, v{V_AK}", f"v_mov_b32 v145, v{V_AR}", "v_mov_b32 v146, 0xff800000", "v_mov_b32 v147, 0xff800000",
          "v_mov_b32 v151, 0x3f803f80", f"s_mov_b32 s{S_CNT}, 32", "L_fbl:",
          "ds_read_b32 v150, v145", "ds_read_b128 v[152:155], v144", "ds_read_b128 v[156:159], v144 offset:1024",
          f"v_add_u32 v144, {PB}, v144", f"v_add_u32 v145, {PB}, v145", "s_waitcnt lgkmcnt(0)")
        for h in range(2):
            a(B2(160, 150, QR, h), "s_nop 15", "s_nop 1", K16(160, 152 + 4 * h, QM[0]), K16(176, 152 + 4 * h, QM[1]), "s_nop 11")
            for j in range(8):
                a(f"v_max3_f32 v146, v146, v{160+2*j}, v{161+2*j}", f"v_max3_f32 v147, v147, v{176+2*j}, v{177+2*j}")
        a(f"s_sub_u32 s{S_CNT}, s{S_CNT}, 1", f"s_cmp_lg_u32 s{S_CNT}, 0", "s_cbranch_scc1 L_fbl",
          "s_nop 0", "v_permlane32_swap_b32 v146, v147", "s_nop 1", "v_max_f32 v146, v146, v147", "v_sub_f32 v146, 0, v146",
          "v_cvt_pk_bf16_f32 v147, v146, 0", "v_lshlrev_b32 v148, 16, v147", "v_sub_f32 v148, v146, v148", f"v_cvt_pk_bf16_f32 v{QR+1}, v146, v148",
          "s_branch L_fbdone")

    def oproj(self):
        a, o = self.a, self.o
        a(f"s_mul_i32 s24, s{S_STG}, {L_S1-L_S0}", f"s_add_u32 s24, s24, {L_S0}", f"s_lshl_b32 s23, s{S_STG}, 13", f"s_lshl_b32 s{S_T4}, s{S_STG}, 10", f"s_add_u32 s{S_T4}, s{S_T4}, 16384")
        for k in range(7):
            a(f"s_add_u32 s{S_T0}, s{S_I}, {4*k}")
            if k == 6:
                a(f"s_min_u32 s{S_T0}, s{S_T0}, 26")
            a(f"s_mul_i32 s{S_T1}, s{S_T0}, 7282", f"s_lshr_b32 s{S_T1}, s{S_T1}, 16", f"s_mul_i32 s{S_T2}, s{S_T1}, 9", f"s_sub_u32 s{S_T2}, s{S_T0}, s{S_T2}",
              f"s_add_u32 s{S_T1}, s{S_T1}, s{S_HG}", f"s_add_u32 s{S_T1}, s{S_T1}, 1", f"s_and_b32 s{S_T1}, s{S_T1}, 3",
              f"s_lshl_b32 s{S_T0}, s{S_T2}, 10", f"s_add_u32 s{S_T3}, s{S_T0}, s23", f"s_lshl_b32 s{S_T5}, s{S_T1}, 13", f"s_add_u32 s{S_T0}, s{S_T0}, s{S_T5}",
              f"s_lshl_b32 s{S_T5}, s{S_T1}, 10", f"s_add_u32 s{S_T5}, s{S_T5}, 32768",
              f"s_cmp_eq_u32 s{S_T2}, 8", f"s_cselect_b32 s{S_T3}, s{S_T4}, s{S_T3}", f"s_cselect_b32 s{S_T0}, s{S_T5}, s{S_T0}",
              f"s_add_u32 s{30+k}, s{S_T0}, s24", f"s_mul_i32 s{S_T1}, s{S_T1}, {OEX_W}", f"s_add_u32 s{S_T3}, s{S_T3}, s{S_T1}", f"s_add_u32 s{16+k}, s{S_T3}, s{S_OEXB}")
        a(f"s_mul_i32 s{S_T0}, s{S_PG}, {64*2304}", f"s_mul_i32 s{S_T1}, s{S_B}, 1152", f"s_add_u32 s{S_T0}, s{S_T0}, s{S_T1}", f"s_mul_i32 s{S_T1}, s{S_HG}, 288",
          f"s_add_u32 s{S_T0}, s{S_T0}, s{S_T1}", f"s_lshl_b32 s{S_T1}, s{S_I}, 6", f"s_add_u32 s{S_T1}, s{S_T1}, s{S_T0}")
        for tp in range(4):
            a(f"s_xor_b32 s{S_T2}, s{S_I}, {tp}", f"s_mul_i32 s{S_T2}, s{S_T2}, {16*2304}", f"s_add_u32 s{37+tp}, s{S_T2}, s{S_T1}")
            if tp == 0:
                a(f"s_add_u32 s41, s{S_T2}, s{S_T0}", "s_add_u32 s41, s41, 256")
        a(f"s_lshl_b32 s{S_T0}, s{S_HG}, 13", f"s_sub_u32 s23, s{S_T0}, s23", "s_add_u32 s23, s23, s24",
          f"s_sub_u32 s{S_T0}, s{S_HG}, s{S_STG}", f"s_lshl_b32 s{S_T0}, s{S_T0}, 10", f"s_add_u32 s42, s{S_T0}, s24", "s_add_u32 s42, s42, 32768")

    def oproj2(self):
        a, o = self.a, self.o
        WF, ACC, PB_, PS = 148, 56, 24, 124
        RING = [92 + 4 * i for i in range(8)]
        OUTF = ['', ' sc1', ' sc0 sc1', ' nt'][o['outf']]
        loads = [f"buffer_load_dwordx4 {vr(PB_+4*k,4)}, v1, s[{R_WS}:{R_WS+3}], s{16+k} offen sc0 sc1" for k in range(7)]
        a(f"ds_read_b32 v23, v{V_JN} offset:4", loads)
        self.stamp(4, 7)
        a(f"v_add_u32 v{V_OA}, s23, v{V_OA}", f"v_add_u32 v{V_OB}, s42, v{V_OB}",
          f"s_lshl_b32 s{S_T0}, s{S_I}, 10", f"s_add_u32 s{S_T0}, s{S_T0}, s24", f"v_add_u32 v8, s{S_T0}, v1", "v_xor_b32 v9, 0x400, v8", "v_xor_b32 v10, 0x800, v8", "v_xor_b32 v11, 0xc00, v8",
          "v_lshrrev_b32 v6, 4, v0", "v_lshlrev_b32 v6, 10, v6", "v_and_b32 v7, 15, v0", "v_lshl_add_u32 v6, v7, 2, v6", f"s_lshl_b32 s{S_T0}, s{S_I}, 8", f"s_add_u32 s{S_T0}, s{S_T0}, s24",
          f"s_add_u32 s{S_T0}, s{S_T0}, 32768", f"v_add_u32 v52, s{S_T0}, v6", "v_xor_b32 v53, 0x100, v52", "v_xor_b32 v54, 0x200, v52", "v_xor_b32 v55, 0x300, v52",
          f"s_mul_i32 s{S_T0}, s{S_I}, 9216", f"s_add_u32 s{S_T0}, s{S_T0}, {L_PS}", f"v_add_u32 v21, s{S_T0}, v1", f"s_mov_b32 s{S_CNT}, {SPIN}")
        a("L_free:", "s_waitcnt lgkmcnt(0)", "v_cmp_gt_u32 vcc, 8, v23", "s_cbranch_vccz L_freed",
          f"ds_read_b32 v23, v{V_JN} offset:4", f"s_sub_u32 s{S_CNT}, s{S_CNT}, 1", "s_cbranch_scc0 L_free", "L_freed:")
        self.stamp(5, 7)
        a(f"ds_write_b128 v{V_OA}, v[12:15]", f"ds_write_b128 v{V_OA}, v[16:19] offset:256", f"ds_write_b32 v{V_OB}, v20")
        self.stamp(1, 4)
        if o['pw']:
            a([f"v_add_u32 v{136+k}, s{30+k}, v1" for k in range(7)])
            a(f"s_mov_b32 s{S_CNT}, {SPIN}", "L_cl:")
            for k in range(7):
                r = PB_ + 4 * k
                a(f"s_waitcnt vmcnt({6-k})")
                if k == 0:
                    self.stamp(3, 4)
                a(f"ds_write_b128 v{136+k}, {vr(r,4)}")
                if k == 0:
                    a(f"v_max3_u32 v7, v{r}, v{r+1}, v{r+2}", f"v_max_u32 v7, v7, v{r+3}")
                else:
                    a(f"v_max3_u32 v7, v7, v{r}, v{r+1}", f"v_max3_u32 v7, v7, v{r+2}, v{r+3}")
            a("v_cmp_eq_u32 vcc, -1, v7", "s_cbranch_vccz L_cld", f"s_sub_u32 s{S_CNT}, s{S_CNT}, 1", "s_cbranch_scc1 L_cld", "s_waitcnt lgkmcnt(0)", loads, "s_branch L_cl", "L_cld:")
            self.stamp(2, 4)
        else:
            a(f"s_mov_b32 s{S_CNT}, {SPIN}", "L_cl:", "s_waitcnt vmcnt(0)")
            self.stamp(3, 4)
            a(f"v_max3_u32 v6, v{PB_}, v{PB_+1}, v{PB_+2}", f"v_max3_u32 v7, v{PB_+3}, v{PB_+4}, v{PB_+5}")
            for j in range(6, 28, 4):
                a(f"v_max3_u32 v6, v6, v{PB_+j}, v{PB_+j+1}")
                if j + 3 < 28:
                    a(f"v_max3_u32 v7, v7, v{PB_+j+2}, v{PB_+j+3}")
            a("v_max_u32 v7, v7, v6", "v_cmp_eq_u32 vcc, -1, v7", "s_cbranch_vccz L_cld", f"s_sub_u32 s{S_CNT}, s{S_CNT}, 1", "s_cbranch_scc1 L_cld", loads, "s_branch L_cl", "L_cld:")
            self.stamp(2, 4)
            self.stamp(6, 7)
            for k in range(7):
                a(f"v_add_u32 v{6+(k&1)}, s{30+k}, v1", f"ds_write_b128 v{6+(k&1)}, {vr(PB_+4*k,4)}")
        a("v_and_b32 v22, 15, v0", "v_mul_u32_u24 v22, 0x900, v22", "v_lshrrev_b32 v7, 4, v0", "v_lshl_add_u32 v23, v7, 3, v22", "v_lshl_add_u32 v22, v7, 4, v22")
        if o['xe1']:
            a(f"s_cmp_eq_u32 s{S_STG}, 0", "s_waitcnt lgkmcnt(0)", "s_cbranch_scc1 L_ej", "s_barrier", "s_branch L_ejd",
              "L_ej:", "s_setprio 0", "v_mov_b32 v6, 1", f"v_mov_b32 v7, {L_FLAG+12}", "s_mov_b64 exec, 1", "ds_add_u32 v7, v6", "s_mov_b64 exec, -1", f"s_mov_b32 s{S_CNT}, {SPIN}",
              "L_ej1:", "ds_read_b32 v6, v7", f"s_sub_u32 s{S_CNT}, s{S_CNT}, 1", "s_cbranch_scc1 L_ej2", "s_waitcnt lgkmcnt(0)", "v_cmp_gt_u32 vcc, 4, v6", "s_cbranch_vccnz L_ej1",
              "L_ej2:", "s_waitcnt lgkmcnt(0)", "L_ejd:", f"s_cmp_eq_u32 s{S_STG}, 0")
        else:
            a(f"s_cmp_eq_u32 s{S_STG}, 0", "s_waitcnt lgkmcnt(0)", "s_barrier")
        self.stamp(4, 4)
        self.stamp(4, 0)
        q = []

        def issue(n, tp, ks):
            r = RING[n % 8]
            if ks < 8:
                a(f"ds_read_b128 {vr(r,4)}, v{8+tp} offset:{ks*4096}")
                q.append(n)
            else:
                a(f"ds_read2_b32 {vr(r,2)}, v{52+tp} offset0:0 offset1:16", f"ds_read2_b32 {vr(r+2,2)}, v{52+tp} offset0:32 offset1:48")
                q.extend([n] * 2)

        def need(n):
            last = max((i for i, t in enumerate(q) if t == n), default=-1)
            if last >= 0:
                a(f"s_waitcnt lgkmcnt({min(len(q) - 1 - last, 14)})")
                del q[:last + 1]

        def run(after, zero, before={}):
            seq = [(tp, ks) for tp in (1, 2, 3, 0) for ks in range(9)]
            PF = 7
            for j in range(PF):
                issue(j, *seq[j])
            for j, (tp, ks) in enumerate(seq):
                if j in before:
                    before[j]()
                need(j)
                c = "0" if ks == 0 and zero else None
                w = WF + 12 * ks
                a(M16(ACC + 4 * tp, w, RING[j % 8], c), M16(ACC + 16 + 4 * tp, w + 4, RING[j % 8], c))
                if tp == 0:
                    a(M16(ACC + 32, w + 8, RING[j % 8], c))
                if j + PF < len(seq):
                    issue(j + PF, *seq[j + PF])
                if j in after:
                    after[j]()

        def tiles(tp):
            return [tp, 4 + tp] + ([8] if tp == 0 else [])
        a("s_cbranch_scc0 L_tail_l", f"s_setprio {o['tp']}")

        def put(tp):
            for t in tiles(tp):
                a(f"ds_write_b128 v21, {vr(ACC+4*t,4)} offset:{t*1024}")
                q.append(('w', tp))

        def x2():
            need(('w', 3 if o['x2j'] > 29 else 2))
            a("s_barrier")
        ev = {9 * i + 2: (lambda i=i: put(i)) for i in (1, 2, 3)}
        ev[o['x2j']] = x2
        run(ev, True)
        a("s_nop 6")
        put(0)
        a("s_waitcnt lgkmcnt(0)", "s_barrier", "s_branch L_fin")
        q.clear()
        a("L_tail_l:")

        def get(tp):
            if tp == (0 if o['x2j'] > 29 else 3):
                a("s_barrier")
            for t in tiles(tp):
                a(f"ds_read_b128 {vr(ACC+4*t,4)}, v21 offset:{t*1024}")
                q.append(('p', tp))

        def outp(tp):
            r = 12 + 4 * (tp & 1)
            a([f"v_cvt_pk_bf16_f32 v{r+k}, v{ACC+16*(k>>1)+4*tp+2*(k&1)}, v{ACC+16*(k>>1)+4*tp+2*(k&1)+1}" for k in range(4)],
              f"buffer_store_dwordx4 {vr(r,4)}, v22, s[{R_OUT}:{R_OUT+3}], s{37+tp} offen{OUTF}")
            if tp == 0:
                a(f"v_cvt_pk_bf16_f32 v6, v{ACC+32}, v{ACC+33}", f"v_cvt_pk_bf16_f32 v7, v{ACC+34}, v{ACC+35}",
                  f"buffer_store_dwordx2 v[6:7], v23, s[{R_OUT}:{R_OUT+3}], s41 offen{OUTF}")
        get(1)
        ev = {9 * i + 2: (lambda i=i: outp(i)) for i in (1, 2, 3)}
        ev[3] = lambda: get(2)
        ev[12 if o['x2j'] > 29 else 16] = lambda: get(3)
        ev[22] = lambda: get(0)
        run(ev, False, {9 * i: (lambda t=t: need(('p', t))) for i, t in enumerate((1, 2, 3, 0))})
        a("s_nop 5")
        outp(0)
        a("L_fin:")
        if o['stamps'] or o['dbgspan'] or o['ampk']:
            a("s_waitcnt vmcnt(0)")
            self.stamp(5, o['set'] if o['set'] in (1, 4) else 0)
        if o['ampk']:
            a(f"s_cmp_eq_u32 s{S_STG}, {1 - o['amps']}", "s_cbranch_scc1 L_end", "s_waitcnt lgkmcnt(0)", f"s_sub_u32 s{S_T0}, s{S_ST+2*o['ampb']}, s{S_ST+2*o['ampa']}")
            if o['avg']:
                a(f"s_cmp_lg_u32 s{S_I}, 0", "s_cbranch_scc1 L_end", "s_mov_b64 exec, 1", "v_mov_b32 v8, 0", f"v_mov_b32 v9, s{S_T0}", "v_mov_b32 v10, 1",
                  f"buffer_atomic_add v9, v8, s[{R_DBG}:{R_DBG+3}], 0 offen offset:16 sc1", "s_waitcnt vmcnt(0)",
                  f"buffer_atomic_add v10, v8, s[{R_DBG}:{R_DBG+3}], 0 offen offset:144 sc0 sc1", "s_waitcnt vmcnt(0)", "v_cmp_eq_u32 vcc, 0xff, v10", "s_cbranch_vccz L_end",
                  f"buffer_load_dword v9, v8, s[{R_DBG}:{R_DBG+3}], 0 offen offset:16 sc0 sc1", "s_waitcnt vmcnt(0)", f"v_readfirstlane_b32 s{S_T0}, v9", "s_nop 3", f"s_mul_i32 s{S_T0}, s{S_T0}, {o['ampk']}", f"s_lshr_b32 s{S_T0}, s{S_T0}, 8")
            else:
                a(f"s_mul_i32 s{S_T0}, s{S_T0}, {o['ampk']}" if o['ampk'] > 0 else f"s_lshr_b32 s{S_T0}, s{S_T0}, {-o['ampk']}")
            a("s_memrealtime s[18:19]", f"s_min_u32 s{S_T0}, s{S_T0}, 100000",
              "L_amp:", "s_memrealtime s[16:17]", "s_waitcnt lgkmcnt(0)", "s_sub_u32 s16, s16, s18", f"s_cmp_lt_u32 s16, s{S_T0}", "s_cbranch_scc1 L_amp")
        self.dump_stamps()
        a("L_end:", "s_endpgm")

    def build(self):
        self.start()
        self.early_front()
        self.attention()
        self.late_front()
        self.events()
        self.fallback()
        hdr = (open('concat_heads__grouped_kv_mqa__grouped_kv_mqa__prompt.s.ref').read().split("; Override launch geometry")[0] +
               f"; @launch grid=(256,1,1) block=(512,1,1) lds={LDS_BYTES}\n" + DOC +
               '.amdgcn_target "amdgcn-amd-amdhsa--gfx950"\n.text\n'
               f".globl {NAME}\n.p2align 8\n.type {NAME},@function\n{NAME}:\n")
        if self.o['of'] & 1:
            self.a.L = [x.replace(" sc0 sc1", " sc1") if "buffer_store" in x and f"s[{R_WS}:" in x else x for x in self.a.L]
        if self.o['of'] & 2:
            self.a.L = [x.replace(" sc0 sc1", " sc1") if "buffer_load" in x and f"s[{R_WS}:" in x else x for x in self.a.L]
        body = "".join((x + "\n") if x.endswith(":") or x.startswith(";") else ("    " + x + "\n") for x in self.a.L)
        t = table()
        tab = ".p2align 6\n.type L_table,@object\nL_table:\n" + "".join("    .long " + ", ".join(str(int(v)) for v in row) + "\n" for row in t)
        tab += f".fill (1024 - ((. - {NAME}) & 1023)) & 1023, 1, 0\nL_codeend:\n.size L_table, L_codeend-L_table\n"
        kd = f""".section .rodata,"a"
.p2align 6
.amdhsa_kernel {NAME}
  .amdhsa_next_free_vgpr 256
  .amdhsa_next_free_sgpr 102
  .amdhsa_accum_offset 256
  .amdhsa_group_segment_fixed_size 0
  .amdhsa_kernarg_size 104
  .amdhsa_user_sgpr_count 2
  .amdhsa_user_sgpr_kernarg_segment_ptr 1
  .amdhsa_system_sgpr_workgroup_id_x 1
.end_amdhsa_kernel
"""
        return hdr + body + tab + kd


if __name__ == "__main__":
    out = sys.argv[1]
    opt = {}
    for kv in sys.argv[2:]:
        k, v = kv.split("=")
        opt[k] = int(v)
    g = Gen(opt)
    open(out, "w").write(g.build())
```

```python
import sys, math, struct
import numpy as np

NAME = "concat_heads__grouped_kv_mqa__grouped_kv_mqa__prompt_kernel"

VG = 608
PB = 2048 + 256 + 4 * VG
KVB = 32 * PB
L_KV = 12288
L_HAND = 0
L_KMAX = 10240
L_FLAG = 10256
L_T2X = 81920
L_S0 = 12288
L_S1 = L_S0 + 36864
L_PS = L_S1 + 36864
L_W = 62464
L_X = 90112
SLOT = 4608
LDS_BYTES = 163840
WS_KV = 0
WS_KN = KVB
WS_XID = WS_KN + 1024
WS_CNT = 0x26000
WS_WOT = 0x28000
WS_OEX = 0xD0000
WS_BR = 0x400000
WS_STAMP = 0x1000000
OEX_G = 73728
OEX_W = 18432
CSCALE = math.log2(math.e) / math.sqrt(18.0)
TSAFE = 40.0
SPIN = 200000


def f2u(x):
    return struct.unpack("<I", struct.pack("<f", x))[0]


def dslot(d):
    if d < 6:
        return d * 2 * SLOT
    if d < 17:
        return L_W + (d - 6) * 2 * SLOT
    return 5 * 2 * SLOT


def slot_addr(ks):
    return dslot(ks >> 1) + (ks & 1) * SLOT


G0 = [0, 1, 2, 3, 12, 13, 14, 15, 20]
G1 = [4, 5, 6, 7, 8, 9, 10, 11, 16]
POS_ONES, POS_ZERO = 22, 23


def vpos(h, row):
    if row in G0:
        return [list(range(0, 9)), [18, 19, 20, 21, 24, 25, 26, 27, 28]][h][G0.index(row)]
    if row in G1:
        return [list(range(9, 18)), list(range(29, 38))][h][G1.index(row)]
    if row in (17, 21):
        return POS_ONES
    return POS_ZERO


def table():
    t = np.zeros((64, 4), dtype=np.uint32)
    for l in range(64):
        t[l, 0] = L_KV + 2304 + vpos(l >> 5, l & 31) * 16
        n, g = l & 15, l >> 4
        t[l, 1] = vpos(g >> 1, n) * 16 + (g & 1) * 8
        p = {0: vpos(g >> 1, 16), 1: vpos(g >> 1, 20), 2: POS_ONES, 3: POS_ZERO}.get(n, POS_ZERO)
        t[l, 2] = p * 16 + (g & 1) * 8
    return t


def vr(a, n=1):
    return f"v[{a}:{a+n-1}]" if n > 1 else f"v{a}"


def sr(a, n=1):
    return f"s[{a}:{a+n-1}]" if n > 1 else f"s{a}"


S_WAVE = 3
R_X, R_WQ, R_W, R_WO, R_WS, R_OUT, R_DBG = 44, 48, 52, 56, 60, 64, 68
S_B, S_HG, S_GI, S_PG, S_I = 4, 5, 6, 7, 8
S_T0, S_T1, S_T2, S_T3, S_T4, S_T5 = 9, 10, 11, 12, 13, 14
S_CNT = 15
S_M0A, S_M0R, S_ROW = 72, 73, 74
S_BAR = 75
S_PBI, S_HQ = 76, 77
S_EX = 42
S_KVS = 80
S_OEX = 81
S_STG = 82
S_OEXB = 78
S_SAME, S_OA, S_OB, S_OW = 26, 27, 28, 25
V_OA, V_OB, V_JN = 144, 145, 146
S_VM = 0
S_XI, S_XB, S_XS, S_XM = 83, 100, 101, 79
S_DI, S_DS, S_LI, S_LS = 72, 73, 74, 75
S_ST = 84

V_IDX, V_AK, V_AR, V_AV = 2, 3, 4, 5
QM = [8, 12]
QR = 16
KR = [18, 20]
O = [24, 40]
KM = [56, 60]
VV = [[64, 68], [72, 76]]
S = [80, 112]


DOC = """;
;     dims 16, 17 and m), p = exp2(S), O^T += V^T p with the 2:4-sparse MFMA picking the high halves of the fp32 p registers
;     exp2 can overflow or underflow); otherwise the wave first computes the true row max in an extra pass (L_fallback).
"""


class A:
    def __init__(self):
        self.L = []

    def __call__(self, *xs):
        for x in xs:
            if isinstance(x, (list, tuple)):
                self(*x)
            else:
                self.L.append(x)

    def label(self, n):
        self.L.append(n + ":")


def K16(d, a, b, c=None):
    return f"v_mfma_f32_32x32x16_bf16 {vr(d,16)}, {vr(a,4)}, {vr(b,4)}, {c if c else vr(d,16)}"


def M16(d, a, b, c=None):
    return f"v_mfma_f32_16x16x32_bf16 {vr(d,4)}, {vr(a,4)}, {vr(b,4)}, {c if c else vr(d,4)}"


def B2(d, a, b, abid):
    return f"v_mfma_f32_32x32x4_2b_bf16 {vr(d,32)}, {vr(a,2)}, {vr(b,2)}, 0 cbsz:1 abid:{abid}"


def K8Z(d, z):
    return f"v_mfma_f32_32x32x8_bf16 {vr(d,16)}, {vr(z,2)}, {vr(z,2)}, 0"


def SM(d, a, b):
    return f"v_smfmac_f32_32x32x32_bf16 {vr(d,16)}, {vr(a,4)}, {vr(b,8)}, v{V_IDX}"


def EX(r, n):
    return [f"v_exp_f32 v{r+i}, v{r+i}" for i in range(n)]


def srd(a, dst, lo, hi, size):
    a(f"s_mov_b32 s{dst}, {lo}", f"s_mov_b32 s{dst+1}, {hi}", f"s_mov_b32 s{dst+2}, {size}", f"s_mov_b32 s{dst+3}, 0x20000")


class Gen:
    def __init__(self, opt):
        self.o = dict(unp=4, barit=1, stamps=False, force_fb=False, prefetch=True, prio=True, dbgspan=0, sched=1, dbl=0, xe1=0, x1l=0, pw=0, ks2=0, binv=0, z2=1, vexec=0, ga=1, tp=1, x2j=31, amps=0, p1=2, p2=5, p3=7, lo0=0, lo1=0, ka=2, lnorm=1, xper=3, dly=0, d0l=1, pre=2, xe=0, sigb2=1, tre=1, badv0=0, shard=1, nslow=64, spf=0, avg=0, xcc=1, xp=0, outf=0, of=0, ampa=0, ampb=0, ampk=0, set=0, nb=5, kv1=7, pd=2, win=3, t1=7, t2=9, sb=18)
        self.o.update(opt)
        self.a = A()
        self.nst = 0

    def stamp(self, i, st=0):
        if i not in (0, 7) and st != self.o['set']:
            return
        if self.o['stamps'] or self.o['dbgspan'] or self.o['ampk']:
            cyc = self.o['stamps'] == 2 or self.o['ampk'] < 0
            self.a(f"{'s_memtime' if cyc else 's_memrealtime'} s[{S_ST+2*i}:{S_ST+2*i+1}]")

    def dump_stamps(self):
        if self.o['dbgspan']:
            a = self.a
            n = self.nst = self.nst + 1
            a("s_waitcnt lgkmcnt(0)", f"s_cmp_lg_u32 s{S_I}, 0", f"s_cbranch_scc1 L_nodump{n}", "s_mov_b64 exec, 1", "v_mov_b32 v8, 0", f"s_not_b32 s{S_T0}, s{S_ST}", f"v_mov_b32 v9, s{S_T0}",
              f"buffer_atomic_umax v9, v8, s[{R_DBG}:{R_DBG+3}], 0 offen offset:8 sc1")
            for k, i in enumerate((0, 1, 3, 6, 7, 5) if n == 2 else (1, 2, 4, 5, 6, 7)):
                a(f"v_mov_b32 v{10+k}, s{S_ST+2*i}", f"buffer_atomic_umax v{10+k}, v8, s[{R_DBG}:{R_DBG+3}], 0 offen offset:{(12 if n == 2 else 36)+4*k} sc1")
            a(f"L_nodump{n}:")
            return
        if not self.o['stamps']:
            return
        a = self.a
        a("s_waitcnt lgkmcnt(0)", f"s_lshl_b32 s{S_T0}, s2, 3", f"s_add_u32 s{S_T0}, s{S_T0}, s{S_WAVE}", f"s_lshl_b32 s{S_T0}, s{S_T0}, 6",
          f"s_mul_i32 s{S_T1}, s{S_B}, {WS_BR}", f"s_sub_u32 s{S_T0}, s{S_T0}, s{S_T1}", f"s_add_u32 s{S_T0}, s{S_T0}, {WS_STAMP}",
          f"s_mov_b32 s{R_WS+2}, 0x2000000", "v_mov_b32 v8, 0")
        for i in range(4):
            for k in range(4):
                a(f"v_mov_b32 v{12+k}, s{S_ST+4*i+k}")
            a(f"buffer_store_dwordx4 v[12:15], v8, s[{R_WS}:{R_WS+3}], s{S_T0} offen offset:{16*i}", "s_nop 1")

    def kv_dma(self, p0, n):
        a = self.a
        for k in range(n):
            a(f"s_add_u32 m0, s{S_M0A}, {L_KV + (p0 + 4*k)*1024}", f"s_add_u32 s{S_T0}, s{S_KVS}, 4096",
              f"buffer_load_dwordx4 v1, s[{R_WS}:{R_WS+3}], s{S_KVS} offen sc1 lds",
              f"s_cmp_ge_u32 s{S_T0}, {KVB}", f"s_cselect_b32 s{S_T1}, {KVB}, 0", f"s_sub_u32 s{S_KVS}, s{S_T0}, s{S_T1}")

    def row_max16(self, v):
        a = self.a
        for k in (8, 4, 2, 1):
            a("s_nop 1", f"v_max_f32_dpp v{v}, v{v}, v{v} row_ror:{k} row_mask:0xf bank_mask:0xf")

    def rest_srds(self):
        a = self.a
        a(f"s_mov_b32 s{R_WO+2}, 663552", f"s_mov_b32 s{R_WO+3}, 0x20000",
          f"s_mul_i32 s{S_T0}, s{S_B}, {WS_BR}", f"s_add_u32 s{R_WS}, s40, s{S_T0}", f"s_addc_u32 s{R_WS+1}, s41, 0",
          f"s_mov_b32 s{R_WS+2}, {WS_OEX + 32*OEX_G}", f"s_mov_b32 s{R_WS+3}, 0x20000")
        srd(a, R_OUT, "s36", "s37", 4718592)
        srd(a, R_DBG, "s38", "s39", 256)

    def norm2(self, x, y):
        a = self.a
        for j in range(4):
            for (qm, qr, dst, tmp) in (x, y):
                a(f"v_dot2_f32_bf16 v{dst}, v{qm+j}, v{qm+j}, {'0' if j == 0 else 'v%d' % dst}",
                  f"v_dot2_f32_bf16 v{tmp}, v{qm+4+j}, v{qm+4+j}, {'0' if j == 0 else 'v%d' % tmp}")
        a("s_nop 0", f"v_permlane32_swap_b32 v{x[2]}, v{x[3]}", "s_nop 0", f"v_permlane32_swap_b32 v{y[2]}, v{y[3]}",
          f"v_add_f32 v{x[2]}, v{x[2]}, v{x[3]}", f"v_add_f32 v{y[2]}, v{y[2]}, v{y[3]}",
          f"v_dot2_f32_bf16 v{x[2]}, v{x[1]}, v{x[1]}, v{x[2]}", f"v_dot2_f32_bf16 v{y[2]}, v{y[1]}, v{y[1]}, v{y[2]}", "s_nop 1",
          f"v_sqrt_f32 v{x[2]}, v{x[2]}", f"v_sqrt_f32 v{y[2]}, v{y[2]}")

    def norm1(self, qm, qr, dst, tmp):
        a = self.a
        for j in range(4):
            a(f"v_dot2_f32_bf16 v{dst}, v{qm+j}, v{qm+j}, {'0' if j == 0 else 'v%d' % dst}",
              f"v_dot2_f32_bf16 v{tmp}, v{qm+4+j}, v{qm+4+j}, {'0' if j == 0 else 'v%d' % tmp}")
        a("s_nop 2", f"v_permlane32_swap_b32 v{dst}, v{tmp}", "s_nop 0", f"v_add_f32 v{dst}, v{dst}, v{tmp}",
          f"v_dot2_f32_bf16 v{dst}, v{qr}, v{qr}, v{dst}", "s_nop 2", f"v_sqrt_f32 v{dst}, v{dst}")

    def init_main_regs(self):
        a = self.a
        a(f"v_mov_b32 v{KR[0]+1}, 0x3f803f80", f"v_mov_b32 v{KR[1]+1}, 0x3f803f80")
        for r in range(O[0], O[0] + 32):
            a(f"v_mov_b32 v{r}, 0")
        for r in range(S[1] + 24, S[1] + 32):
            a(f"v_mov_b32 v{r}, 0")
        if self.o['vexec']:
            self.init_v()
            self.loader_flag()
        else:
            a([f"v_mov_b32 v{r}, 0" for r in range(VV[1][1], VV[1][1] + 4)])

    def ldKm(self, kb):
        return [f"ds_read_b128 {vr(KM[kb%2],4)}, v{V_AK} offset:{(kb//2)*PB+(kb%2)*1024}"]

    def ldKr(self, p):
        return [f"ds_read_b32 v{KR[p%2]}, v{V_AR} offset:{p*PB}"]

    def ldV(self, kb):
        x = [f"ds_read_b128 {vr(VV[kb%2][i],4)}, v{V_AV} offset:{(kb//2)*PB+((kb%2)*2+i)*VG}" for i in range(2)]
        if self.o['vexec']:
            x = [f"s_mov_b64 exec, s[{S_VM}:{S_VM+1}]"] + x + ["s_mov_b64 exec, -1"]
        return x

    def init_v(self):
        a = self.a
        m = sum(1 << r for r in G0 + G1)
        a(f"s_mov_b32 s{S_VM}, {hex(m)}", f"s_mov_b32 s{S_VM+1}, {hex(m)}", "s_mov_b32 vcc_lo, 0x220000", "s_mov_b32 vcc_hi, 0x220000",
          f"v_mov_b32 v{VV[0][0]}, 0x3f803f80", f"v_cndmask_b32 v{VV[0][0]}, 0, v{VV[0][0]}, vcc")
        a([f"v_mov_b32 v{VV[0][0]+k}, v{VV[0][0]}" for k in range(1, 16)])

    def qk(self, dst, kb):
        return [B2(dst, KR[(kb//2) % 2], QR, kb % 2), K16(dst, KM[kb % 2], QM[0]), K16(dst + 16, KM[kb % 2], QM[1])]

    def main_prologue_loads(self):
        self.a(self.ldKr(0), self.ldKm(0), self.ldKm(1), self.ldKr(1), self.ldV(0))

    def start(self):
        a, o = self.a, self.o
        a("s_cmp_ge_u32 s2, 256", "s_cbranch_scc1 L_end")
        a("s_load_dwordx16 s[16:31], s[0:1], 0", "s_load_dwordx8 s[32:39], s[0:1], 64", "s_load_dwordx2 s[40:41], s[0:1], 96")
        self.stamp(0)
        a("s_getpc_b64 s[42:43]", "L_pc:")
        a("v_lshrrev_b32 v1, 6, v0", "v_and_b32 v0, 63, v0", f"v_readfirstlane_b32 s{S_WAVE}, v1", "v_lshlrev_b32 v1, 4, v0",
          f"s_lshr_b32 s{S_T2}, s2, 3", f"s_and_b32 s{S_B}, s2, 1", f"s_and_b32 s{S_HG}, s{S_T2}, 3", f"s_lshr_b32 s{S_GI}, s2, 5")
        if o['binv']:
            a(f"s_xor_b32 s{S_B}, s{S_B}, 1")
        if o['prefetch']:
            a(f"s_cmp_lg_u32 s{S_WAVE}, 7", "s_cbranch_scc1 L_nopf", f"s_cmp_ge_u32 s{S_T2}, (L_codeend-{NAME})/1024", "s_cbranch_scc1 L_nopf",
              f"s_lshl_b32 s{S_T2}, s{S_T2}, 10", f"s_sub_u32 s{S_T0}, s42, L_pc-{NAME}", f"s_subb_u32 s{S_T1}, s43, 0",
              f"s_add_u32 s{S_T0}, s{S_T0}, s{S_T2}", f"s_addc_u32 s{S_T1}, s{S_T1}, 0",
              f"v_mov_b32 v7, s{S_T1}", f"v_add_co_u32 v6, vcc, s{S_T0}, v1", "s_nop 1", "v_addc_co_u32 v7, vcc, 0, v7, vcc", "s_nop 0",
              "global_load_dwordx4 v[24:27], v[6:7], off", "L_nopf:")
        a(f"s_bfe_u32 s{S_PG}, s2, 0x20001", f"s_lshl_b32 s{S_PG}, s{S_PG}, 3", f"s_add_u32 s{S_PG}, s{S_PG}, s{S_GI}",
          f"s_and_b32 s{S_I}, s{S_WAVE}, 3", f"s_and_b32 s{S_PBI}, s{S_WAVE}, 1", f"s_lshr_b32 s{S_HQ}, s{S_I}, 1")
        a("v_lshrrev_b32 v8, 3, v0", "v_lshrrev_b32 v9, 4, v0", f"s_lshl_b32 s{S_T0}, s{S_PBI}, 2", f"v_or_b32 v9, s{S_T0}, v9",
          "v_and_b32 v10, 7, v0", "v_xor_b32 v9, v9, v10", "v_lshlrev_b32 v9, 4, v9", "v_mov_b32 v10, 0x480", "v_mad_u32_u24 v8, v8, v10, v9",
          f"s_lshl_b32 s{S_T0}, s{S_I}, 6", f"v_add_u32 v9, s{S_T0}, v0", "v_mul_u32_u24 v10, 0xab, v9", "v_lshrrev_b32 v10, 9, v10", "v_mul_u32_u24 v10, 12, v10",
          "v_lshlrev_b32 v9, 4, v9", "v_sub_u32 v9, v9, v10")
        a(f"s_and_b32 s{S_T4}, s{S_HG}, 2", f"s_lshl_b32 s{S_T4}, s{S_T4}, 1", f"s_add_u32 s{S_T4}, s{S_T4}, s{S_I}",
          f"s_lshl_b32 s{S_T5}, s{S_PG}, 3", f"s_add_u32 s{S_XB}, s{S_T5}, s{S_T4}", f"s_mul_i32 s{S_XB}, s{S_XB}, {8*1152}",
          f"s_mul_i32 s{S_XM}, s{S_T4}, 9216", f"s_add_u32 s{S_XM}, s{S_XM}, {L_X}", f"s_lshl_b32 s{S_T0}, s{S_I}, 10", f"s_add_u32 s{S_T0}, s{S_T0}, {L_W}",
          f"s_lshr_b32 s{S_T1}, s{S_HG}, 1", f"s_movk_i32 s{S_DI}, 3072", f"s_movk_i32 s{S_DS}, 2304",
          f"s_cmp_lt_u32 s{S_WAVE}, 4", "s_cselect_b64 vcc, -1, 0", f"s_cselect_b32 s{S_XB}, s{S_XB}, 0", f"s_cselect_b32 s{S_XM}, s{S_XM}, s{S_T0}",
          f"s_cselect_b32 s{S_T1}, s{S_HG}, s{S_T1}", f"s_cselect_b32 s{S_DI}, 1024, s{S_DI}", f"s_cselect_b32 s{S_DS}, 128, s{S_DS}",
          "v_cndmask_b32 v9, v9, v8, vcc")
        self.dma9_setup(S_T1)
        a("s_waitcnt lgkmcnt(0)", f"s_cmp_eq_u32 s{S_B}, 0", f"s_cselect_b64 s[{R_X}:{R_X+1}], s[16:17], s[26:27]",
          f"s_cselect_b64 s[20:21], s[20:21], s[30:31]", f"s_cselect_b64 s[22:23], s[22:23], s[32:33]",
          f"s_cselect_b64 s[{R_WQ}:{R_WQ+1}], s[18:19], s[28:29]", f"s_cselect_b64 s[{R_WO}:{R_WO+1}], s[24:25], s[34:35]",
          f"s_bitcmp0_b32 s{S_HG}, 0", f"s_cselect_b64 s[{R_W}:{R_W+1}], s[20:21], s[22:23]", f"s_mov_b32 s{R_X+2}, 2359296", f"s_movk_i32 s{R_W+2}, 20736",
          f"s_cmp_lt_u32 s{S_WAVE}, 4", f"s_cselect_b64 s[{R_W}:{R_W+1}], s[{R_X}:{R_X+1}], s[{R_W}:{R_W+1}]", f"s_cselect_b32 s{R_W+2}, s{R_X+2}, s{R_W+2}",
          f"s_mov_b32 s{R_W+3}, 0x20000", f"s_mov_b32 s{R_X+3}, 0x20000")
        self.stamp(1, 2)
        a(f"s_cmp_lt_u32 s{S_WAVE}, 4", "s_cbranch_scc1 L_r1", "s_setprio 1", f"s_cmp_eq_u32 s{S_WAVE}, 7", "s_cbranch_scc1 L_late", "L_r1:")
        self.dma9(R_W, 9)
        a(f"s_cmp_ge_u32 s{S_WAVE}, 4", "s_cbranch_scc1 L_late")

    def wq_prefetch(self, n, first):
        a = self.a
        a(f"s_mov_b32 s{R_WQ+2}, 663552", f"s_mov_b32 s{R_WQ+3}, 0x20000", "v_lshlrev_b32 v30, 7, v0", f"s_lshr_b32 s{S_T0}, s2, 3", f"s_mul_i32 s{S_T0}, s{S_T0}, 20736")
        if first:
            a(f"s_mul_i32 s{S_T1}, s{first}, 6912", f"s_add_u32 s{S_T0}, s{S_T0}, s{S_T1}")
        a("s_mov_b32 exec_hi, 0x3fffff")
        for k in range(n):
            a(f"buffer_load_dword v{108+k}, v30, s[{R_WQ}:{R_WQ+3}], s{S_T0} offen", f"s_add_u32 s{S_T0}, s{S_T0}, 6912")
        a("s_mov_b32 exec_hi, -1")

    def dma9_setup(self, sel):
        self.a(f"s_bitcmp1_b32 s{sel}, 0", f"s_cselect_b32 s{S_XI}, 5, 0",
               f"s_add_u32 s{S_XS}, s{S_XI}, s{S_GI}", f"s_cmp_ge_u32 s{S_XS}, 9", f"s_cselect_b32 s{S_T0}, 9, 0", f"s_sub_u32 s{S_XS}, s{S_XS}, s{S_T0}",
               f"s_mul_i32 s{S_XS}, s{S_XS}, s{S_DS}", f"s_mul_i32 s{S_XI}, s{S_XI}, s{S_DI}", f"s_mul_i32 s{S_LI}, s{S_DI}, 9", f"s_mul_i32 s{S_LS}, s{S_DS}, 9")

    def dma9(self, srd_, v):
        for i in range(9):
            self.a(f"s_add_u32 m0, s{S_XM}, s{S_XI}", f"s_add_u32 s{S_T3}, s{S_XB}, s{S_XS}",
                   f"buffer_load_dwordx4 v{v}, s[{srd_}:{srd_+3}], s{S_T3} offen lds")
            if i < 8:
                self.a(f"s_add_u32 s{S_XS}, s{S_XS}, s{S_DS}", f"s_cmp_eq_u32 s{S_XS}, s{S_LS}", f"s_cselect_b32 s{S_XS}, 0, s{S_XS}",
                       f"s_add_u32 s{S_XI}, s{S_XI}, s{S_DI}", f"s_cmp_eq_u32 s{S_XI}, s{S_LI}", f"s_cselect_b32 s{S_XI}, 0, s{S_XI}")

    def table_load(self):
        self.a(f"s_add_u32 s{S_T0}, s42, L_table-L_pc", f"s_addc_u32 s{S_T1}, s43, 0",
               f"v_mov_b32 v7, s{S_T1}", f"v_add_co_u32 v6, vcc, s{S_T0}, v1", "s_nop 1", "v_addc_co_u32 v7, vcc, 0, v7, vcc", "s_nop 0",
               "global_load_dwordx4 v[20:23], v[6:7], off")

    def wq_setup(self, d, part=3):
        a = self.a
        if part & 1:
            a(f"s_mov_b32 s{R_WQ+2}, 663552", f"s_mov_b32 s{R_WQ+3}, 0x20000", f"s_lshl_b32 s{S_T0}, s{S_I}, 6", f"s_mul_i32 s{S_T1}, s{S_HG}, 288", "v_mov_b32 v16, 0x480")
        for t in range(3 if part & 1 else 0):
            a(f"v_add_u32 v13, s{S_T0}, v0", "v_mul_u32_u24 v14, 0xe39, v13", "v_lshrrev_b32 v14, 16, v14",
              "v_mul_u32_u24 v15, 18, v14", "v_sub_u32 v13, v13, v15", "v_lshlrev_b32 v13, 4, v13",
              "v_bfe_u32 v15, v14, 1, 2", "v_and_b32 v17, 1, v14", "v_lshl_add_u32 v15, v17, 2, v15", "v_and_b32 v14, 24, v14", "v_add_u32 v14, v14, v15",
              "v_mad_u32_u24 v13, v14, v16, v13", f"v_add_u32 v{10+t}, s{S_T1}, v13")
            if t < 2:
                a(f"s_add_u32 s{S_T0}, s{S_T0}, 192")
        if not part & 2:
            return
        a(f"s_lshl_b32 s{S_M0A}, s{S_I}, 10", f"s_mul_i32 s{S_ROW}, s{S_GI}, {64*1152}")
        if d:
            a(f"s_add_u32 s{S_ROW}, s{S_ROW}, {32*d*1152}", f"s_cmp_ge_u32 s{S_ROW}, {576*1152}",
              f"s_cselect_b32 s{S_T0}, {576*1152}, 0", f"s_sub_u32 s{S_ROW}, s{S_ROW}, s{S_T0}")

    def wq_list(self, d):
        n = self.nlab = getattr(self, 'nlab', 0) + 1
        s0 = dslot(d)
        ld = lambda r: f"buffer_load_dwordx4 v{r}, s[{R_WQ}:{R_WQ+3}], s{S_ROW} offen lds"
        return [f"s_cbranch_vccz L_wq{n}",
                f"s_add_u32 m0, s{S_M0A}, {s0}", f"s_add_u32 s{S_T0}, s{S_ROW}, {32*1152}", ld(10),
                f"s_add_u32 m0, s{S_M0A}, {s0+3072}", "s_nop 0", ld(11),
                f"s_add_u32 m0, s{S_M0A}, {s0+6144}", f"s_cmp_ge_u32 s{S_T0}, {576*1152}", ld(12),
                f"s_cselect_b32 s{S_T1}, {576*1152}, 0", f"s_sub_u32 s{S_ROW}, s{S_T0}, s{S_T1}", f"L_wq{n}:"]

    def wq_dma(self, d):
        self.a(self.wq_list(d))

    def loader_flag(self):
        self.a(f"s_cmp_lt_u32 s{S_I}, 3", "s_cselect_b64 vcc, -1, 0")

    @property
    def GROUPS(self):
        if self.o['pre'] == 5:
            return [(3, 2), (5, 6), (7, 10), (9, 14), (11, 18), (13, 22), (15, 26), (17, 30)]
        if self.o['pre'] == 1:
            return [(3, 2), (5, 6), (7, 10), (9, 14), (11, 18), (13, 22), (15, 26), (17, 30)]
        if self.o['pre'] == 2:
            return [(2, 2), (3, 4), (5, 6), (7, 10), (9, 14), (11, 18), (13, 22), (15, 26), (17, 30)]
        return [(3, 2), (5, 6), (7, 10), (9, 14), (11, 18), (13, 22), (15, 26), (17, 30)]

    def early_front(self):
        a, o = self.a, self.o
        self.stamp(2, 2)
        if o['spf'] == 5:
            a(f"s_cmp_lg_u32 s{S_WAVE}, 3", "s_cbranch_scc1 L_nospf", "s_waitcnt vmcnt(6)")
            self.wq_prefetch(3, None)
            a("L_nospf:")
        self.table_load()
        self.wq_setup(0)
        self.loader_flag()
        if not o['d0l']:
            self.wq_dma(0)
        self.rest_srds()
        a("v_and_b32 v16, 31, v0", "v_lshrrev_b32 v13, 5, v0", "v_bfe_u32 v14, v0, 1, 3", "v_xor_b32 v13, v13, v14", "v_lshlrev_b32 v13, 4, v13",
          "v_and_b32 v14, 7, v0", "v_lshl_add_u32 v13, v14, 7, v13", "v_lshrrev_b32 v16, 3, v16", "v_mul_u32_u24 v16, 0x2400, v16",
          f"s_mul_i32 s{S_T0}, s{S_PBI}, {4*9216}", f"s_add_u32 s{S_T0}, s{S_T0}, {L_X}", f"v_add3_u32 v8, v16, v13, s{S_T0}",
          "v_xor_b32 v9, 32, v8", "v_xor_b32 v108, 64, v8", "v_xor_b32 v109, 0x60, v8")
        a("v_bfe_u32 v18, v0, 2, 2", "v_lshrrev_b32 v15, 5, v0", "v_lshlrev_b32 v15, 2, v15", "v_add_u32 v15, v15, v18", "v_mul_u32_u24 v15, 0x240, v15",
          f"s_mul_i32 s{S_T0}, s{S_HQ}, 144", "v_and_b32 v13, 1, v0", "v_lshl_add_u32 v15, v13, 4, v15", f"v_add_u32 v15, s{S_T0}, v15",
          "v_bfe_u32 v13, v0, 1, 1", "v_bfe_u32 v14, v0, 4, 1", "v_lshl_add_u32 v6, v13, 3, v15", "v_lshl_add_u32 v6, v14, 5, v6",
          "v_mul_u32_u24 v13, 72, v13", "v_add3_u32 v7, v13, v15, 48")
        if o['ks2']:
            a(f"s_mul_i32 s{S_T0}, s{S_HQ}, -288", f"s_add_u32 s{S_T0}, s{S_T0}, 144", f"v_mul_i32_i24 v13, s{S_T0}, v14", "v_add_u32 v7, v7, v13")
        elif o['z2']:
            a("v_lshl_add_u32 v7, v14, 20, v7")
        a(f"s_mul_i32 s{S_T0}, s{S_WAVE}, 2560", f"v_add_u32 v17, s{S_T0}, v1", "v_lshlrev_b32 v18, 3, v0", f"v_add_u32 v18, s{S_T0}, v18",
          f"v_mov_b32 v{V_IDX}, 0xdddddddd", f"v_add_u32 v{V_AK}, {L_KV}, v1", f"v_lshlrev_b32 v{V_AR}, 2, v0", f"v_add_u32 v{V_AR}, {L_KV+2048}, v{V_AR}",
          "v_mov_b32 v110, 0", "v_mov_b32 v111, 0", f"v_mov_b32 v19, {L_KMAX}")
        if o['d0l']:
            a("s_waitcnt vmcnt(1)")
        else:
            a(f"s_cmp_eq_u32 s{S_WAVE}, 3", "s_cbranch_scc0 L_e3", f"s_waitcnt vmcnt({4 if o['spf'] == 5 else 1})", "L_e3:", "s_waitcnt vmcnt(4)")
        self.stamp(3, 2)
        a("s_barrier")
        PRE = o['pre']
        for d in range(PRE + 1):
            self.wq_dma(d)
        a(f"s_cmp_eq_u32 s{S_WAVE}, 3", "s_cbranch_scc0 L_e4", "s_waitcnt vmcnt(0)", "L_e4:", f"s_waitcnt vmcnt({3*(PRE-1)})", f"v_mov_b32 v{V_AV}, v20", "v_mov_b32 v21, 0x3f803f80")
        self.stamp(1)
        self.stamp(4, 2)
        a("s_barrier")
        self.stamp(5, 2)
        XF = 112
        T0, T1, TR, TR2 = 24, 40, 56, 128
        KX = 26
        PD = o['pd']
        FB = [72, 84, 96]
        state = dict(base=0)

        def rd(ks):
            x = []
            off = slot_addr(ks) - state['base']
            if off < 0 or off + 360 > 65535:
                d = slot_addr(ks) - state['base']
                x += [f"v_add_u32 v{r}, {d}, v{r}" if d > 0 else f"v_subrev_u32 v{r}, {-d}, v{r}" for r in (6, 7)]
                state['base'] = slot_addr(ks)
                off = 0
            f = FB[ks % (PD + 1)]
            return x, [f"ds_read_b64_tr_b16 {vr(f,2)}, v6 offset:{off}", f"ds_read_b64_tr_b16 {vr(f+2,2)}, v6 offset:{off+288}",
                       f"ds_read_b64_tr_b16 {vr(f+4,2)}, v6 offset:{off+72}", f"ds_read_b64_tr_b16 {vr(f+6,2)}, v6 offset:{off+360}",
                       f"ds_read_b64_tr_b16 {vr(f+8,2)}, v7 offset:{off}", f"ds_read_b64_tr_b16 {vr(f+10,2)}, v7 offset:{off+288}"]

        def mm(ks, first2):
            f = FB[ks % (PD + 1)]
            c = "0" if ks == 0 else None
            if o['ks2'] and ks >= KX:
                m2 = K16(TR2, f + 8, XF + 4 * ks, vr(TR, 16) if ks == KX else None)
            else:
                m2 = K16(TR, f + 8, XF + 4 * ks, "0" if first2 else None)
            return [K16(T0, f, XF + 4 * ks, c), K16(T1, f + 4, XF + 4 * ks, c), m2]

        def kloop(par):
            state['base'] = 0
            nt = lambda ks: 2 if (o['ks2'] and ks < KX and ks % 2 != par) else 3
            XA = [8, 9, 108, 109]
            q = []

            def issue(tag, ins):
                a(ins)
                q.append(tag)

            def need(*tags):
                last = max((i for i, t in enumerate(q) if t in tags), default=-1)
                if last >= 0:
                    left = len(q) - 1 - last
                    a(f"s_waitcnt lgkmcnt({min(left, 14)})")
                    del q[:last + 1]

            def xrd(i):
                issue(('x', i), f"ds_read_b128 {vr(XF+4*i,4)}, v{XA[i&3]} offset:{(i>>2)*1024}")
            xrd(0)
            for j, r in enumerate(rd(0)[1][:2*nt(0)]):
                issue(('w', 0, j >> 1), r)
            xrd(1)
            for j, r in enumerate(rd(1)[1][:2*nt(1)]):
                issue(('w', 1, j >> 1), r)
            nx = 2
            G = [k for _, k in self.GROUPS]
            ev = {k: ["s_barrier"] for k in G}
            prev = 1
            for last, k in self.GROUPS:
                if prev < PRE:
                    ev[k] = [f"s_waitcnt vmcnt({3*max(PRE-last, 0)})", "s_barrier"]
                prev = last
            for ks in range(36):
                m = mm(ks, ks == par)
                if ks in ev:
                    if ks == 6:
                        need(('x', 35))
                        assert nx == 36 and not any(t[0] == 'x' for t in q)
                    if len(ev[ks]) > 1 and o["stamps"]:
                        a(ev[ks][0])
                    if ks in (2, 6, 10, 14, 22, 30):
                        self.stamp(1 + (2, 6, 10, 14, 22, 30).index(ks), 3)
                    if ks == 30:
                        need('e')
                    a(ev[ks])
                    if ks == 6:
                        self.stamp(2)
                        self.stamp(6, 2)
                pre, n = rd(ks + 2) if ks + 2 < 36 else ([], [])
                fine = nx < 36 or ks == 35
                if not fine:
                    need(('x', ks), ('w', ks, nt(ks) - 1))
                for t in range(3):
                    if t < nt(ks):
                        if fine:
                            need(('x', ks), ('w', ks, t))
                        a(m[t])
                    if t == 0:
                        a(pre)
                    for k in range(o['xper']):
                        if nx < 36:
                            xrd(nx)
                            nx += 1
                    if t < nt(ks + 2):
                        for r in n[2*t:2*t+2]:
                            issue(('w', ks + 2, t), r)
                if o['ks2'] and ks == KX + 2:
                    issue('e', f"ds_write_b128 v13, {vr(TR+8,4)}")
                    issue('e', f"ds_write_b128 v13, {vr(TR+12,4)} offset:1024")
                if o['ks2'] and ks == 31:
                    issue('i', f"ds_read_b128 {vr(XF,4)}, v14")
                    issue('i', f"ds_read_b128 {vr(XF+4,4)}, v14 offset:1024")
            assert not [t for t in q if t != 'i'] and True
            need('i')
        if o['ks2']:
            a(f"s_mul_i32 s{S_T0}, s{S_WAVE}, 2048", f"s_add_u32 s{S_T0}, s{S_T0}, {L_T2X}", f"v_add_u32 v13, s{S_T0}, v1", "v_xor_b32 v14, 0x1000, v13",
              f"s_cmp_eq_u32 s{S_HQ}, 1", "s_cbranch_scc1 L_kodd")
            kloop(0)
            a("s_branch L_kdone", "L_kodd:")
            kloop(1)
            a("L_kdone:")
        else:
            kloop(0)
        self.stamp(3)
        self.stamp(3, 6)
        H = 96
        a("v_mov_b32 v22, v17", "v_mov_b32 v23, v18", "v_mov_b32 v7, v19", f"v_mov_b32 v{KR[0]+1}, 0x3f803f80", f"s_mov_b32 s{S_BAR}, {32//o['unp'] - o['barit']}", f"s_mov_b32 s{S_STG}, 0", f"s_mov_b32 s{S_SAME}, 0")
        a("s_mov_b32 vcc_lo, 0", "s_mov_b32 vcc_hi, -1")
        for (dst, t) in ((QM[0], T0), (H, T1)):
            for j, r in enumerate((0, 2, 4, 6, 10, 12, 14)):
                a(f"v_cvt_pk_bf16_f32 v{dst+j}, v{t+r}, v{t+r+1}")
        if o['ks2']:
            a([f"v_add_f32 v{TR+k}, v{TR2+k}, v{XF+k}" for k in range(8)])
        for (dst, qr, t, t2, tmp) in ((H, H + 8, T1, TR + 4, 107), (QM[0], QR, T0, TR, 108)):
            a(f"v_cvt_pk_bf16_f32 v{dst+7}, v{t2}, v{t2+1}", f"v_cvt_pk_bf16_f32 v{qr}, v{t+8}, v{t+9}", f"v_cvt_pk_bf16_f32 v{tmp}, v{t2+2}, v{t2+3}")
        a(f"v_cndmask_b32 v{H+8}, v{H+8}, v107, vcc", f"v_cndmask_b32 v{QR}, v{QR}, v108, vcc")
        a(f"ds_write_b128 v22, {vr(H,4)}", f"ds_write_b128 v22, {vr(H+4,4)} offset:1024")
        if o['lnorm']:
            a(f"ds_write_b64 v23, {vr(H+8,2)} offset:2048")
        else:
            self.norm2((H, H + 8, H + 9, 107), (QM[0], QR, QR + 1, 108))
            a(f"ds_write_b64 v23, {vr(H+8,2)} offset:2048")
        a(K8Z(O[0], 110), K8Z(O[1], 110))
        if o['vexec']:
            self.init_v()
            a([f"v_mov_b32 v{r}, 0" for r in range(S[1] + 24, S[1] + 32)])
        if o['dly']:
            a("s_memrealtime s[18:19]", "L_dly:", "s_memrealtime s[16:17]", "s_waitcnt lgkmcnt(0)", "s_sub_u32 s16, s16, s18", f"s_cmp_lt_u32 s16, {o['dly']}", "s_cbranch_scc1 L_dly")
        a("s_waitcnt lgkmcnt(0)")
        self.stamp(1, 6)
        a("s_barrier")
        self.stamp(2, 6)
        a("ds_read_b32 v6, v7")
        self.main_prologue_loads()
        if o['lnorm']:
            self.norm1(QM[0], QR, QR + 1, 108)
        if not o['vexec']:
            a([f"v_mov_b32 v{r}, 0" for r in range(VV[1][1], VV[1][1] + 4)])
        if o['prio']:
            a("s_setprio 3")
        a("s_waitcnt lgkmcnt(0)")

    def late_front(self):
        a, o = self.a, self.o
        a.label("L_late")
        a("s_setprio 0")
        if o['spf'] == 3:
            a(f"s_cmp_lg_u32 s{S_WAVE}, 7", "s_cbranch_scc1 L_nospf")
            self.wq_prefetch(3, None)
            a("L_nospf:")
        if o['spf'] == 4:
            a(f"s_cmp_eq_u32 s{S_WAVE}, 7", "s_cbranch_scc1 L_nospf")
            self.wq_prefetch(1, S_I)
            a("L_nospf:")
        self.stamp(2, 2)
        self.rest_srds()
        if o['shard']:
            a("v_and_b32 v160, 7, v0", "v_lshlrev_b32 v160, 9, v160", f"s_cmp_lg_u32 s{S_WAVE}, 7", "s_cbranch_scc1 L_nov0", f"s_mov_b32 s{S_T0}, {WS_CNT}",
              f"buffer_load_dword v161, v160, s[{R_WS}:{R_WS+3}], s{S_T0} offen sc0 sc1", "L_nov0:")
        self.wq_setup(6, 1)
        a(f"s_xor_b32 s{S_T4}, s{S_T4}, 4", f"s_add_u32 s{S_XB}, s{S_T5}, s{S_T4}", f"s_mul_i32 s{S_XB}, s{S_XB}, {8*1152}",
          f"s_mul_i32 s{S_XM}, s{S_T4}, 9216", f"s_add_u32 s{S_XM}, s{S_XM}, {L_X}", f"s_movk_i32 s{S_DI}, 1024", f"s_movk_i32 s{S_DS}, 128")
        a("v_and_b32 v13, 15, v0", "v_lshrrev_b32 v16, 4, v0",
          "v_bfe_u32 v17, v0, 1, 3", "v_xor_b32 v17, v16, v17", "v_lshlrev_b32 v17, 4, v17",
          "v_and_b32 v18, 7, v0", "v_lshl_add_u32 v17, v18, 7, v17", "v_bfe_u32 v18, v0, 3, 1", "v_mul_u32_u24 v18, 0x2400, v18",
          f"s_lshr_b32 s{S_T0}, s{S_HG}, 1", f"s_lshl_b32 s{S_T0}, s{S_T0}, 1", f"s_add_u32 s{S_T0}, s{S_T0}, s{S_PBI}",
          f"s_mul_i32 s{S_T1}, s{S_T0}, {2*9216}", f"s_add_u32 s{S_T1}, s{S_T1}, {L_X}", f"v_add3_u32 v14, v17, v18, s{S_T1}", "v_xor_b32 v15, 64, v14",
          "v_bfe_u32 v17, v0, 2, 2", "v_lshl_add_u32 v17, v16, 3, v17",
          "v_mul_u32_u24 v17, 48, v17", "v_and_b32 v18, 3, v0", "v_lshlrev_b32 v18, 3, v18",
          f"s_cmp_eq_u32 s{S_HQ}, 0", "s_cselect_b64 vcc, -1, 0", "v_mov_b32 v19, 32", "v_cndmask_b32 v18, v19, v18, vcc", f"v_add_u32 v17, {L_W}, v17", "v_add_u32 v17, v17, v18")
        a("v_lshrrev_b32 v19, 5, v0", "v_lshlrev_b32 v19, 9, v19", "v_lshl_add_u32 v19, v13, 4, v19",
          "v_bfe_u32 v18, v0, 4, 1", "v_lshl_add_u32 v28, v18, 3, v19", "v_lshlrev_b32 v29, 2, v13",
          f"s_mul_i32 s{S_KVS}, s{S_PG}, {PB}", f"s_mov_b32 s{S_OEX}, s{S_T0}")
        self.dma9_setup(S_HG)
        self.dma9(R_X, 8)
        self.stamp(3, 2)
        self.table_load()
        if o['spf'] == 2:
            a(f"s_cmp_lg_u32 s{S_WAVE}, 7", "s_cbranch_scc1 L_nospf")
            self.wq_prefetch(3, None)
            a("L_nospf:")
        a("s_setprio 1", "s_waitcnt vmcnt(10)")
        self.stamp(1)
        self.stamp(4, 2)
        a("s_barrier")
        a(f"s_bitcmp1_b32 s{S_HG}, 0", "s_cbranch_scc1 L_vproj")
        D = 32
        NB = o['nb']
        for isv in (0, 1):
            if isv:
                a.label("L_vproj")

            def rd(s):
                xb = 40 + 8 * (s % NB)
                return [f"ds_read_b128 {vr(xb,4)}, v{14+(s&1)} offset:{(s>>1)*1024}",
                        f"ds_read_b64_tr_b16 {vr(xb+4,2)}, v17 offset:{s*1536}", f"ds_read_b64_tr_b16 {vr(xb+6,2)}, v17 offset:{s*1536+192}"]
            for s in range(NB - 1):
                a(rd(s))
            for s in range(18):
                if s == o['sb']:
                    a("s_waitcnt vmcnt(0)", "s_barrier")
                if s == 17 and o['sb'] == 18:
                    a("s_waitcnt vmcnt(0)")
                if s + NB - 1 < 18:
                    a(rd(s + NB - 1))
                left = min(18 - 1 - s, NB - 1)
                xb = 40 + 8 * (s % NB)
                c = "0" if s == 0 else None
                a(f"s_waitcnt lgkmcnt({min(15,3*left)})", M16(D, xb, xb + 4, c) if isv else M16(D, xb + 4, xb, c))
            g = S_OEX
            if not isv:
                a(f"s_lshr_b32 s{S_T0}, s{g}, 1", f"s_lshl_b32 s{S_T0}, s{S_T0}, 10", f"s_lshl_b32 s{S_T1}, s{S_PBI}, 8", f"s_add_u32 s{S_T0}, s{S_T0}, s{S_T1}",
                  f"s_add_u32 s{S_T0}, s{S_T0}, s{S_KVS}",
                  f"s_lshl_b32 s{S_T1}, s{g}, 6", f"s_add_u32 s{S_T1}, s{S_T1}, s{S_KVS}", f"s_add_u32 s{S_T1}, s{S_T1}, 2048",
                  f"s_mov_b32 s{S_T2}, {hex(f2u(CSCALE))}")
                for r in range(4):
                    a(f"v_mul_f32 v{D+r}, s{S_T2}, v{D+r}")
                a(f"v_cvt_pk_bf16_f32 v{D}, v{D}, v{D+1}", f"v_cvt_pk_bf16_f32 v{D+1}, v{D+2}, v{D+3}",
                  f"s_lshl_b32 s{S_T3}, s{S_PG}, 2", f"s_add_u32 s{S_T3}, s{S_T3}, s{g}", f"s_lshl_b32 s{S_T3}, s{S_T3}, 2", f"s_add_u32 s{S_T3}, s{S_T3}, {WS_KN}",
                  f"v_dot2_f32_bf16 v36, v{D}, v{D}, 0",
                  f"s_cmp_eq_u32 s{S_HQ}, 0", "s_cbranch_scc0 L_krem",
                  f"buffer_store_dwordx2 {vr(D,2)}, v28, s[{R_WS}:{R_WS+3}], s{S_T0} offen sc1",
                  f"v_dot2_f32_bf16 v36, v{D+1}, v{D+1}, v36", "s_nop 2", "v_mov_b32 v37, v36", "s_nop 1",
                  "v_permlane16_swap_b32 v36, v37", "s_nop 1", "v_add_f32 v36, v36, v37", "s_nop 0", "v_mov_b32 v37, v36", "s_nop 1",
                  "v_permlane32_swap_b32 v36, v37", "s_nop 1", "v_add_f32 v36, v36, v37", "s_branch L_knorm",
                  "L_krem:", "s_mov_b64 exec, 0xffff",
                  f"buffer_store_dword v{D}, v29, s[{R_WS}:{R_WS+3}], s{S_T1} offen sc1", "s_mov_b64 exec, -1", f"s_add_u32 s{S_T3}, s{S_T3}, 512",
                  "L_knorm:", "s_nop 1")
                self.row_max16(36)
                a("v_mov_b32 v37, 0", "s_mov_b64 exec, 1", f"buffer_store_dword v36, v37, s[{R_WS}:{R_WS+3}], s{S_T3} offen sc1", "s_mov_b64 exec, -1",
                  "s_branch L_kvdone")
            else:
                a(f"s_mul_i32 s{S_T0}, s{g}, {VG}", f"s_add_u32 s{S_T0}, s{S_T0}, s{S_KVS}", f"s_add_u32 s{S_T0}, s{S_T0}, 2304",
                  "v_cmp_eq_u32 vcc, 2, v13", f"v_cmp_eq_u32 s[{S_EX}:{S_EX+1}], 3, v13", "v_mov_b32 v30, 0x3f803f80", "s_nop 0",
                  f"s_cmp_eq_u32 s{S_HQ}, 0",
                  f"v_cvt_pk_bf16_f32 v{D}, v{D}, v{D+1}", f"v_cvt_pk_bf16_f32 v{D+1}, v{D+2}, v{D+3}", "s_cbranch_scc0 L_vrem",
                  f"buffer_store_dwordx2 {vr(D,2)}, v21, s[{R_WS}:{R_WS+3}], s{S_T0} offen sc1", "s_branch L_kvdone",
                  "L_vrem:",
                  f"v_cndmask_b32 v{D}, v{D}, v30, vcc", f"v_cndmask_b32 v{D+1}, v{D+1}, v30, vcc",
                  f"v_cndmask_b32 v{D}, v{D}, 0, s[{S_EX}:{S_EX+1}]", f"v_cndmask_b32 v{D+1}, v{D+1}, 0, s[{S_EX}:{S_EX+1}]",
                  "s_mov_b32 exec_lo, 0x000f000f", "s_mov_b32 exec_hi, 0x000f000f",
                  f"buffer_store_dwordx2 {vr(D,2)}, v22, s[{R_WS}:{R_WS+3}], s{S_T0} offen sc1", "s_mov_b64 exec, -1")
        a.label("L_kvdone")
        if o['xcc']:
            a("s_getreg_b32 s29, hwreg(HW_REG_XCC_ID, 0, 4)", f"s_cmp_lg_u32 s{S_WAVE}, 4", "s_cbranch_scc1 L_noxid",
              f"s_lshl_b32 s{S_T0}, s{S_PG}, 2", f"s_add_u32 s{S_T0}, s{S_T0}, s{S_HG}", f"s_lshl_b32 s{S_T0}, s{S_T0}, 2", f"s_add_u32 s{S_T0}, s{S_T0}, {WS_XID}",
              "v_mov_b32 v38, s29", "v_mov_b32 v39, 0", "s_mov_b64 exec, 1", f"buffer_store_dword v38, v39, s[{R_WS}:{R_WS+3}], s{S_T0} offen sc1", "s_mov_b64 exec, -1", "L_noxid:")
        self.stamp(2)
        self.stamp(5, 2)
        a(f"v_mov_b32 v{V_AV}, v20")
        self.wq_setup(o['pre'] + 1, 2)
        self.loader_flag()
        a("v_mov_b32 v100, 1", "v_mov_b32 v101, 0")
        if o['sb'] == 18:
            a("s_barrier")
        nxt = first = o['pre'] + 1
        NG = len(self.GROUPS)
        passed = -1
        signalled = False
        for gi_, (last, step) in enumerate(self.GROUPS):
            lim = 5 if passed < 2 else 8 if passed < 6 else 16 if passed < 14 else 17
            tgt = min(last + o['win'], lim)
            while nxt <= tgt:
                self.wq_dma(nxt)
                nxt += 1
            assert nxt > last
            if step == 14:
                self.wo_job_addr(0)
                self.poison_addr()
            if step == 18:
                a(f"s_cmp_ge_u32 s{S_OEX}, {648-512}", "s_cselect_b32 s16, 0, 512", f"s_add_u32 s{S_OEX}, s{S_OEX}, s16")
                self.wo_job_addr(1)
                self.loader_flag()
            if gi_ == NG - 3:
                self.init_main_regs()
                a(f"s_and_b32 s{S_T0}, s{S_GI}, 3", f"s_mul_i32 s{S_KVS}, s{S_T0}, {37*1024}", f"s_add_u32 s{S_KVS}, s{S_KVS}, s{S_M0A}",
                  "v_lshlrev_b32 v153, 3, v0", f"s_mov_b32 s{S_T4}, {WS_KN}", f"s_lshl_b32 s{S_T5}, s{S_B}, 7")
            sig = last >= first and not signalled
            if sig:
                a(f"s_cbranch_vccnz L_l{gi_}", "s_waitcnt vmcnt(0)", f"L_l{gi_}:")
                signalled = True
            if last >= first:
                a(f"s_waitcnt vmcnt({3*(nxt-1-last)})")
            passed = step
            if step == 10:
                a(f"v_mov_b32 v150, {L_FLAG}", "v_mov_b32 v152, 0", "v_mov_b32 v153, 0", "v_mov_b32 v154, 0", "v_mov_b32 v155, 0", "v_mov_b32 v151, 0", "ds_write_b128 v150, v[152:155]", "s_waitcnt lgkmcnt(0)")
            if gi_ == NG - 3 and o['tre']:
                a("s_cbranch_vccnz L_try1", f"s_mov_b32 s{S_T0}, {WS_CNT}", f"buffer_load_dword v152, v160, s[{R_WS}:{R_WS+3}], s{S_T0} offen sc0 sc1", "L_try1:")
            if gi_ == NG - 2:
                assert nxt == 18
                if o['shard']:
                    a("s_cbranch_vccnz L_try0")
                    if not o['tre']:
                        a(f"s_mov_b32 s{S_T0}, {WS_CNT}", f"buffer_load_dword v152, v160, s[{R_WS}:{R_WS+3}], s{S_T0} offen sc0 sc1")
                    a("s_waitcnt vmcnt(0)",
                      "v_cmp_ne_u32 s[16:17], v152, v161", "s_cmp_eq_u64 s[16:17], 0", "s_cselect_b32 s16, 1, 0", "v_mov_b32 v152, s16", "ds_write_b32 v150, v152", "s_waitcnt lgkmcnt(0)", "L_try0:")
                else:
                    a("s_cbranch_vccnz L_try0", f"buffer_load_dword v152, v151, s[{R_DBG}:{R_DBG+3}], s{S_T5} offen sc0 sc1", "s_waitcnt vmcnt(0)",
                      "v_lshrrev_b32 v152, 7, v152", "ds_write_b32 v150, v152", "s_waitcnt lgkmcnt(0)", "L_try0:")
            if step in (2, 6, 10, 14, 22):
                self.stamp(1 + (2, 6, 10, 14, 22).index(step), 3)
            a("s_barrier")
            if sig:
                self.kv_signal()
            if gi_ == NG - 2:
                break
        kn = [f"s_cmp_lg_u32 s{S_WAVE}, 7", None, f"buffer_load_dwordx2 v[154:155], v153, s[{R_WS}:{R_WS+3}], s{S_T4} offen sc1",
              f"buffer_load_dwordx2 v[156:157], v153, s[{R_WS}:{R_WS+3}], s{S_T4} offen offset:512 sc1"]
        a("ds_read_b32 v152, v150", "s_waitcnt lgkmcnt(0)", "v_cmp_eq_u32 vcc, 0, v152", "s_cbranch_vccnz L_notyet")
        self.stamp(4)
        a(kn[0], "s_cbranch_scc1 L_kna", kn[2:], "L_kna:")
        self.kv_dma(0, o['ka'])
        a(f"s_cmp_eq_u32 s{S_WAVE}, 7", "s_cbranch_scc1 L_knb", f"s_waitcnt vmcnt({o['ka']})", "L_knb:")
        self.stamp(6, 3)
        a("s_barrier")
        self.kv_dma(4 * o['ka'], o['kv1'] - o['ka'])
        a("s_branch L_first")
        a("L_notyet:", "s_waitcnt vmcnt(0)")
        self.stamp(6, 3)
        a("s_barrier")
        a(f"s_mov_b32 s{S_CNT}, {SPIN}", f"s_cmp_lg_u32 s{S_WAVE}, 7", "s_cbranch_scc1 L_relay")
        if o['shard']:
            a(f"s_mov_b32 s{S_T0}, {WS_CNT}", "L_poll1:", f"buffer_load_dword v152, v160, s[{R_WS}:{R_WS+3}], s{S_T0} offen sc0 sc1",
              f"s_cmp_gt_u32 s{S_CNT}, {SPIN - 4}", "s_cbranch_scc1 L_pf", f"s_cmp_lg_u32 s{S_CNT}, {SPIN - o['nslow']}", "s_cbranch_scc1 L_ps",
              "s_mov_b64 exec, 1", f"buffer_atomic_add v100, v101, s[{R_DBG}:{R_DBG+3}], s{S_T5} offen sc1", "s_mov_b64 exec, -1",
              "L_ps:", f"buffer_load_dwordx3 v[162:164], v151, s[{R_DBG}:{R_DBG+3}], s{S_T5} offen sc0 sc1", "s_waitcnt vmcnt(0)",
              "v_lshrrev_b32 v162, 7, v162", "v_or3_b32 v162, v162, v163, v164", "v_cmp_ne_u32 vcc, 0, v162", "s_cbranch_vccnz L_poll1d",
              "L_pf:", f"s_sub_u32 s{S_CNT}, s{S_CNT}, 1", "s_cbranch_scc1 L_poll1d", "s_waitcnt vmcnt(0)", "v_cmp_ne_u32 vcc, v152, v161", "s_cbranch_vccnz L_poll1")
        else:
            a("L_poll1:", f"buffer_load_dword v152, v151, s[{R_DBG}:{R_DBG+3}], s{S_T5} offen sc0 sc1", f"s_sub_u32 s{S_CNT}, s{S_CNT}, 1",
              "s_cbranch_scc1 L_poll1d", "s_waitcnt vmcnt(0)", "v_cmp_gt_u32 vcc, 0x80, v152", "s_cbranch_vccnz L_poll1")
        a("L_poll1d:", "v_mov_b32 v152, 1", "ds_write_b32 v150, v152", kn[2:], "s_branch L_flagok")
        a("L_relay:", "ds_read_b32 v152, v150", f"s_sub_u32 s{S_CNT}, s{S_CNT}, 1", "s_cbranch_scc1 L_flagok", "s_waitcnt lgkmcnt(0)",
          "v_cmp_eq_u32 vcc, 0, v152", "s_cbranch_vccnz L_relay", "L_flagok:")
        self.stamp(4)
        self.kv_dma(0, o['kv1'])
        a("L_first:")
        self.stamp(3)
        self.stamp(6, 2)
        a(f"s_cmp_lg_u32 s{S_WAVE}, 7", "s_cbranch_scc1 L_nokn", f"s_waitcnt vmcnt({o['kv1']})", "v_max_f32 v154, v154, v155", "v_max_f32 v156, v156, v157")
        self.row_max16(154)
        self.row_max16(156)
        a("s_nop 0")
        for k in range(4):
            a(f"v_readlane_b32 s{16+k}, v154, {16*k}", f"v_readlane_b32 s{20+k}, v156, {16*k}")
        a("s_nop 1", "s_max_u32 s16, s16, s17", "s_max_u32 s18, s18, s19", "s_max_u32 s20, s20, s21", "s_max_u32 s22, s22, s23",
          "s_max_u32 s16, s16, s18", "s_max_u32 s20, s20, s22", "v_mov_b32 v154, s16", "v_add_f32 v154, s20, v154", "v_sqrt_f32 v154, v154",
          f"v_mov_b32 v155, {L_KMAX}", "ds_write_b32 v155, v154", "L_nokn:")
        a(f"v_mov_b32 v{V_IDX}, 0xdddddddd", f"v_add_u32 v{V_AK}, {L_KV}, v1", f"v_lshlrev_b32 v{V_AR}, 2, v0", f"v_add_u32 v{V_AR}, {L_KV+2048}, v{V_AR}",
          f"s_mul_i32 s{S_T0}, s{S_I}, 2560", f"v_add_u32 v8, s{S_T0}, v1", "v_lshlrev_b32 v9, 3, v0", f"v_add_u32 v9, s{S_T0}, v9", f"v_mov_b32 v6, {L_KMAX}")
        self.stamp(3, 6)
        a("s_waitcnt vmcnt(0) lgkmcnt(0)")
        self.stamp(1, 6)
        a("s_barrier")
        self.stamp(2, 6)
        a("ds_read_b32 v6, v6", f"ds_read_b64 {vr(QR,2)}, v9 offset:2048", f"ds_read_b128 {vr(QM[1],4)}, v8 offset:1024", f"ds_read_b128 {vr(QM[0],4)}, v8")
        self.kv_dma(4 * o['kv1'], 37 - o['kv1'])
        a(f"s_mov_b32 s{S_BAR}, {32//o['unp'] - 1}", f"s_mov_b32 s{S_STG}, 1", f"s_mov_b32 s{S_SAME}, 0", "s_waitcnt lgkmcnt(0)")
        self.main_prologue_loads()
        a("s_waitcnt vmcnt(0)")
        self.stamp(5)
        self.stamp(4, 6)
        a("s_barrier")
        self.stamp(5, 6)
        a("s_setprio 3")
        if o['shard']:
            a(f"s_cmp_lg_u32 s{S_WAVE}, 7", "s_cbranch_scc1 L_nosaw", "s_cmp_ge_u32 s2, 8", "s_cbranch_scc1 L_nosaw", "s_mov_b64 exec, 1",
              f"buffer_atomic_add v100, v101, s[{R_DBG}:{R_DBG+3}], s{S_T5} offen offset:8 sc1", "s_mov_b64 exec, -1", "L_nosaw:")
        self.poison()
        self.wo_job_loads(0)
        a(f"s_cmp_lt_u32 s{S_OEX}, 512", "s_cbranch_scc1 L_nowo2")
        self.wo_job_loads(1)
        a("L_nowo2:")
        self.norm1(QM[0], QR, QR + 1, 149)
        a("s_waitcnt lgkmcnt(0)", "s_branch L_attn")

    def kv_signal(self):
        a, o = self.a, self.o
        if o['shard']:
            a("s_cbranch_vccnz L_nosig", "s_setprio 3", f"v_add_u32 v161, {17 if o['badv0'] else 16}, v161",
              f"s_bfe_u32 s{S_T0}, s2, 0x20001", f"s_lshl_b32 s{S_T0}, s{S_T0}, 1", f"s_and_b32 s{S_T1}, s{S_GI}, 1", f"s_add_u32 s{S_T0}, s{S_T0}, s{S_T1}",
              f"s_lshl_b32 s{S_T0}, s{S_T0}, 9", f"s_add_u32 s{S_T0}, s{S_T0}, {WS_CNT}", "s_mov_b64 exec, 1",
              f"buffer_atomic_add v100, v101, s[{R_WS}:{R_WS+3}], s{S_T0} offen sc1", "s_mov_b64 exec, -1", "s_setprio 1", "L_nosig:")
        else:
            a("s_cbranch_vccnz L_nosig", "s_setprio 3", f"s_lshl_b32 s{S_T0}, s{S_B}, 7", "s_mov_b64 exec, 1",
              f"buffer_atomic_add v100, v101, s[{R_DBG}:{R_DBG+3}], s{S_T0} offen sc1", "s_mov_b64 exec, -1", "s_setprio 1", "L_nosig:")

    def join_signal(self, v, tag):
        self.a(f"v_mov_b32 v{v}, {L_FLAG+4}", f"v_mov_b32 v{v+1}, 1", f"v_mov_b32 v{v+3}, 0", f"s_lshl_b32 s{S_T0}, s{S_B}, 7", "s_mov_b64 exec, 1",
               "s_waitcnt vmcnt(0)", f"ds_add_rtn_u32 v{v+2}, v{v}, v{v+1}", "s_waitcnt lgkmcnt(0)", f"v_cmp_eq_u32 vcc, 3, v{v+2}", f"s_cbranch_vccz L_js{tag}",
               f"buffer_atomic_add v{v+1}, v{v+3}, s[{R_DBG}:{R_DBG+3}], s{S_T0} offen offset:4 sc1", f"L_js{tag}:")

    def wo_job_addr(self, rep):
        a = self.a
        if rep == 0:
            a(f"s_lshl_b32 s{S_OEX}, s{S_PG}, 2", f"s_add_u32 s{S_OEX}, s{S_OEX}, s{S_HG}", f"s_lshl_b32 s{S_OEX}, s{S_OEX}, 2", f"s_add_u32 s{S_OEX}, s{S_OEX}, s{S_I}")
        f = S_OEX
        AD = 208 + 8 * rep
        a(f"s_mul_i32 s16, s{f}, 7282", "s_lshr_b32 s16, s16, 16", "s_mul_i32 s17, s16, 9", f"s_sub_u32 s17, s{f}, s17",
          "s_mul_i32 s18, s16, 7282", "s_lshr_b32 s18, s18, 16", "s_mul_i32 s19, s18, 9", "s_sub_u32 s19, s16, s19",
          "s_and_b32 s20, s18, 1", "s_lshr_b32 s21, s18, 1")
        a("s_mul_i32 s22, s21, 288", "s_lshr_b32 s23, s17, 1", "s_lshl_b32 s23, s23, 6", "s_add_u32 s22, s22, s23", "s_and_b32 s23, s17, 1", "s_lshl_b32 s23, s23, 3",
          "s_add_u32 s22, s22, s23", "s_cmp_eq_u32 s17, 8", "s_cselect_b32 s23, 3, 4",
          "v_bfe_u32 v200, v0, 2, 2", "v_lshlrev_b32 v200, s23, v200", "v_and_b32 v201, 3, v0", "v_lshl_add_u32 v200, v201, 1, v200", "v_add_u32 v200, s22, v200",
          f"s_mul_i32 s22, s20, {36*1152}", "s_cmp_eq_u32 s19, 8", f"s_cbranch_scc1 L_wok1_{rep}")
        cy = [(j & 3) + 8 * (j >> 2) for j in range(8)]
        a(f"s_mul_i32 s23, s19, {72*1152}", "s_add_u32 s22, s22, s23", "v_lshrrev_b32 v201, 5, v0", "v_bfe_u32 v202, v0, 4, 1",
          f"v_mul_u32_u24 v203, {4*1152}, v201", "v_add_u32 v203, v200, v203",
          f"v_mul_u32_u24 v204, {3*1152}, v201", f"v_sub_u32 v204, {16*1152}, v204", "v_mul_u32_u24 v204, v202, v204", f"v_add_u32 v{AD}, v203, v204")
        for j in range(1, 8):
            dj = 18 + cy[j-1] - cy[j]
            a(f"v_mul_u32_u24 v204, {dj*1152}, v202", f"v_add_u32 v204, {cy[j]*1152}, v204", f"v_add_u32 v{AD+j}, v203, v204")
        a(f"s_branch L_wold_{rep}", f"L_wok1_{rep}:", "v_lshrrev_b32 v201, 4, v0", f"v_mul_u32_u24 v201, {144*1152}, v201", "v_add_u32 v203, v200, v201")
        for j in range(8):
            hq, hh, e = j >> 2, (j >> 1) & 1, j & 1
            row = 72 * hq + 18 + ((16 + hh) if e else (11 + 4 * hh))
            a(f"v_add_u32 v{AD+j}, {row*1152}, v203")
        a(f"L_wold_{rep}:")
        a(f"s_mov_b32 s{30+rep}, s22")

    def wo_job_loads(self, rep):
        for j in range(8):
            self.a(f"buffer_load_ushort v{224+8*rep+j}, v{208+8*rep+j}, s[{R_WO}:{R_WO+3}], s{30+rep} offen")

    def wo_job_finish(self, rep):
        a = self.a
        DT = 224 + 8 * rep
        a(f"s_lshl_b32 s22, s{S_OEX}, 10", f"s_add_u32 s22, s22, {WS_WOT}")
        for j in range(4):
            a(f"v_lshl_or_b32 v{240+4*rep+j}, v{DT+1+2*j}, 16, v{DT+2*j}")
        a(f"buffer_store_dwordx4 {vr(240+4*rep,4)}, v1, s[{R_WS}:{R_WS+3}], s22 offen sc1")

    def wo_finish(self):
        a = self.a
        a(f"s_cmp_ge_u32 s{S_OEX}, 512", "s_cbranch_scc0 L_wo3")
        self.wo_job_finish(1)
        a(f"s_sub_u32 s{S_OEX}, s{S_OEX}, 512", "L_wo3:")
        self.wo_job_finish(0)

    def poison_addr(self):
        a = self.a
        a([f"v_mov_b32 v{192+j}, -1" for j in range(4)])
        a(f"s_lshl_b32 s32, s{S_PG}, 2", f"s_add_u32 s32, s32, s{S_HG}", f"s_mul_i32 s32, s32, {OEX_W}", f"s_add_u32 s32, s32, {WS_OEX}",
          f"s_lshl_b32 s33, s{S_I}, 12", "s_add_u32 s33, s33, s32", f"s_lshl_b32 s34, s{S_PBI}, 10", "s_add_u32 s34, s34, s32", "s_add_u32 s34, s34, 16384")

    def poison(self):
        a = self.a
        for k in range(4):
            a(f"buffer_store_dwordx4 v[192:195], v1, s[{R_WS}:{R_WS+3}], s33 offen offset:{k*1024} sc0 sc1")
        a(f"buffer_store_dwordx4 v[192:195], v1, s[{R_WS}:{R_WS+3}], s34 offen sc0 sc1")

    def attention(self):
        a, o = self.a, self.o
        UNP = o['unp']
        a.label("L_attn")
        a(f"v_mul_f32 v7, v6, v{QR+1}", f"v_mov_b32 v6, {hex(f2u(-1.0 if o['force_fb'] else TSAFE))}",
          "v_cmp_nle_f32 vcc, v7, v6", "v_sub_f32 v7, 0, v7", f"v_cvt_pk_bf16_f32 v{QR+1}, v7, 0", "s_cbranch_vccnz L_fallback", "L_fbdone:")
        q = self.qk(S[0], 0)
        f1 = [f"s_mul_i32 s{S_OEXB}, s{S_PG}, {OEX_G}", f"s_add_u32 s{S_OEXB}, s{S_OEXB}, {WS_OEX}", f"s_mul_i32 s{S_OW}, s{S_HG}, {OEX_W}", f"s_add_u32 s{S_OW}, s{S_OW}, s{S_OEXB}",
              f"s_lshl_b32 s{S_T0}, s{S_STG}, 1", f"s_add_u32 s{S_T0}, s{S_T0}, s{S_HQ}", f"s_lshl_b32 s{S_T0}, s{S_T0}, 12", f"s_lshl_b32 s{S_T1}, s{S_PBI}, 11", f"s_add_u32 s{S_OA}, s{S_T0}, s{S_T1}",
              f"s_lshl_b32 s{S_T0}, s{S_STG}, 10", f"s_lshl_b32 s{S_T1}, s{S_PBI}, 9", f"s_add_u32 s{S_T0}, s{S_T0}, s{S_T1}", f"s_lshl_b32 s{S_T1}, s{S_HQ}, 7", f"s_add_u32 s{S_OB}, s{S_T0}, s{S_T1}",
              f"v_mov_b32 v{V_JN}, {L_FLAG+4}", f"s_mov_b32 s{S_CNT}, {32//UNP}", "v_bfe_u32 v6, v0, 4, 1", "v_lshrrev_b32 v7, 5, v0"]
        f2 = ["v_and_b32 v22, 15, v0", f"v_lshlrev_b32 v{V_OA}, 10, v6", f"v_lshl_add_u32 v{V_OA}, v7, 9, v{V_OA}", f"v_lshl_add_u32 v{V_OA}, v22, 4, v{V_OA}", f"v_add_u32 v{V_OA}, s{S_OA}, v{V_OA}",
              f"v_lshlrev_b32 v{V_OB}, 8, v6", f"v_lshl_add_u32 v{V_OB}, v7, 6, v{V_OB}", f"v_lshl_add_u32 v{V_OB}, v22, 2, v{V_OB}", f"v_add_u32 v{V_OB}, s{S_OB}, v{V_OB}",
              f"s_add_u32 s{S_OB}, s{S_OW}, 16384", "s_nop 0"]
        a("s_nop 0", q[0], f1, q[1], q[2], f2)
        self.stamp(6)
        self.stamp(6, 6)
        self.stamp(6, 8)
        body = []
        REP = 2 if o['dbl'] else 1
        chk = lambda lab: [f"s_sub_u32 s{S_CNT}, s{S_CNT}, 1", f"s_cmp_lg_u32 s{S_CNT}, s{S_BAR}", "s_cbranch_scc0 L_event", lab + ":"]
        for kb in range(2 * UNP * REP):
            if kb == 2 * UNP:
                first = list(body)
                body += chk("L_mid")
            cur, nxt = S[kb % 2], S[(kb + 1) % 2]
            q = self.qk(nxt, kb + 1)
            e = EX(cur, 32)
            sm3p = SM(O[1], VV[(kb - 1) % 2][1], nxt + 24)
            sm = [SM(O[0], VV[kb % 2][0], cur), SM(O[0], VV[kb % 2][1], cur + 8), SM(O[1], VV[kb % 2][0], cur + 16)]
            km, kr, vv = self.ldKm(kb + 2), (self.ldKr((kb + 3) // 2) if kb % 2 == 1 else []), self.ldV(kb + 1)
            if o['sched']:
                body += e[0:2] + [sm3p, vv[0]] + e[2:5] + [q[0]] + e[5:13] + [sm[0], vv[1]] + e[13:18] + [sm[1]] + km + e[18:21] + [q[1]] + kr + e[21:24] + [q[2]] + e[24:27] + [sm[2], "s_waitcnt lgkmcnt(0)"] + e[27:32]
            else:
                body += e[0:2] + [sm3p] + e[2:5] + [q[0]] + e[5:13] + ["s_waitcnt lgkmcnt(0)", sm[0]] + e[13:18] + [sm[1]] + e[18:21] + [q[1]] + e[21:24] + [q[2]] + km + kr + vv + e[24:27] + [sm[2]] + e[27:32]
        if REP == 1:
            first = list(body)
        body += [f"v_add_u32 v{V_AK}, {REP*UNP*PB}, v{V_AK}", f"v_add_u32 v{V_AR}, {REP*UNP*PB}, v{V_AR}", f"v_add_u32 v{V_AV}, {REP*UNP*PB}, v{V_AV}"]
        reach = max(int(x.split("offset:")[1]) + {V_AK: 1024, V_AR: 2048 + 256, V_AV: 2304 + VG}[int(x.split(", v")[1].split()[0])] for x in first if x.startswith("ds_read"))
        assert reach + (o['barit'] - 1) * UNP * PB <= 4096 * o['kv1'] and L_KV + 4096 * o['kv1'] <= dslot(17)
        self.loop_body = body
        a(".p2align 6", "L_main:", body, chk("L_back"), f"s_cmp_lg_u32 s{S_CNT}, 0", "s_cbranch_scc1 L_main")
        a(f"ds_read_b32 v23, v{V_JN}", SM(O[1], VV[1][1], S[1] + 24))
        self.stamp(7)
        x1 = [f"s_cmp_eq_u32 s{S_STG}, 0", "s_cbranch_scc1 L_nox1", "s_barrier", "L_nox1:"]
        a("s_setprio 3")
        if not o['x1l'] and not o['xe1']:
            a(x1)
        self.stamp(1, 7)
        vals = [O[0] + j for j in range(9)] + [O[1] + j for j in range(9)]
        a(f"v_rcp_f32 v10, v{O[0]+9}", f"s_mov_b32 s{S_CNT}, {SPIN}")
        a([f"v_mul_f32 v{r}, v{r}, v10" for r in vals[:9]])
        for j in range(4):
            a(f"v_cvt_pk_bf16_f32 v{12+j}, v{vals[2*j]}, v{vals[2*j+1]}")
        a(f"v_rcp_f32 v11, v{O[1]+9}")
        a("L_pchk:", "s_waitcnt lgkmcnt(0)", "v_cmp_gt_u32 vcc, 4, v23", "s_cbranch_vccz L_pok",
          f"ds_read_b32 v23, v{V_JN}", f"s_sub_u32 s{S_CNT}, s{S_CNT}, 1", "s_cbranch_scc0 L_pchk", "L_pok:")
        a(f"s_cmp_eq_u32 s{S_SAME}, 1", "s_cbranch_scc1 L_pub1")
        for fl in (" sc0 sc1", ""):
            a(f"buffer_store_dwordx4 v[12:15], v{V_OA}, s[{R_WS}:{R_WS+3}], s{S_OW} offen{fl}")
            self.stamp(2, 7)
            a([f"v_mul_f32 v{r}, v{r}, v11" for r in vals[9:]])
            for j in range(4, 9):
                a(f"v_cvt_pk_bf16_f32 v{12+j}, v{vals[2*j]}, v{vals[2*j+1]}")
                if j == 7:
                    a(f"buffer_store_dwordx4 v[16:19], v{V_OA}, s[{R_WS}:{R_WS+3}], s{S_OW} offen offset:256{fl}")
            a(f"buffer_store_dword v20, v{V_OB}, s[{R_WS}:{R_WS+3}], s{S_OB} offen{fl}")
            if fl:
                a("s_branch L_pub2", "L_pub1:")
        a("L_pub2:")
        if o['x1l']:
            a(x1)
        self.stamp(3, 7)
        self.oproj2()

    def events(self):
        a, o = self.a, self.o
        n = 32 // o['unp']
        assert L_PS + 36864 <= L_KV + o['p3'] * o['unp'] * PB and o['barit'] == 1 and 1 < o['p1'] < o['p2'] < o['p3'] < n
        a("L_nob7:")
        if o['dbl']:
            a(f"s_bitcmp1_b32 s{S_CNT}, 0", "s_cbranch_scc1 L_mid")
        a("s_branch L_back")
        a("L_event:", f"s_cmp_eq_u32 s{S_CNT}, {n - o['p1']}", "s_cbranch_scc1 L_ev1", f"s_cmp_eq_u32 s{S_CNT}, {n - o['p2']}", "s_cbranch_scc1 L_ev2",
          f"s_cmp_eq_u32 s{S_CNT}, {n - o['p3']}", "s_cbranch_scc1 L_ev3", f"s_mov_b32 s{S_BAR}, {n - o['p1']}",
          f"s_cmp_eq_u32 s{S_STG}, 0", "s_cbranch_scc0 L_ev0")
        self.stamp(4, 6)
        a("s_barrier")
        self.stamp(5, 6)
        a("s_branch L_nob7", "L_ev0:")
        if o['ga']:
            a("s_waitcnt vmcnt(0)")
            self.wo_finish()
            a("s_branch L_nob7")
            a("L_ev1:")
            self.stamp(1, 8)
            a(f"s_mov_b32 s{S_BAR}, {n - o['p2']}", f"s_cmp_eq_u32 s{S_STG}, 0", "s_cbranch_scc1 L_ev1e")
            self.join_signal(200, "l")
            a("s_mov_b64 exec, -1", "L_ev1e:", "s_setprio 2", "s_branch L_nob7")
        else:
            self.join_signal(200, "l")
            a("s_mov_b64 exec, -1", "s_branch L_nob7")
            a("L_ev1:", "s_setprio 2", f"s_mov_b32 s{S_BAR}, {n - o['p2']}", "s_branch L_nob7")
        a("L_ev2:")
        self.stamp(2, 8)
        a(f"s_mov_b32 s{S_T2}, {SPIN}", f"s_lshl_b32 s{S_T0}, s{S_B}, 7", "v_mov_b32 v147, 0",
          "L_poll2:", f"buffer_load_dword v148, v147, s[{R_DBG}:{R_DBG+3}], s{S_T0} offen offset:4 sc0 sc1", f"s_sub_u32 s{S_T2}, s{S_T2}, 1",
          "s_cbranch_scc1 L_poll2d", "s_waitcnt vmcnt(0)", "v_cmp_gt_u32 vcc, 0x80, v148", "s_cbranch_vccnz L_poll2", "L_poll2d:")
        if o['xcc']:
            a("s_getreg_b32 s29, hwreg(HW_REG_XCC_ID, 0, 4)", f"s_lshl_b32 s{S_T0}, s{S_PG}, 4", f"s_add_u32 s{S_T0}, s{S_T0}, {WS_XID}", "v_and_b32 v147, 3, v0", "v_lshlrev_b32 v147, 2, v147",
              f"buffer_load_dword v148, v147, s[{R_WS}:{R_WS+3}], s{S_T0} offen sc1", "s_waitcnt vmcnt(0)",
              "v_cmp_ne_u32 vcc, s29, v148", "s_cbranch_vccnz L_nosame", f"s_mov_b32 s{S_SAME}, 1", "L_nosame:")
        self.wo_loads(148)
        self.stamp(3, 8)
        a(f"s_setprio {2 if o['xe1'] else 1}", f"s_mov_b32 s{S_BAR}, {n - o['p3']}", "s_branch L_nob7")
        a("L_ev3:")
        self.stamp(4, 8)
        a("v_mov_b32 v147, 1", "s_mov_b64 exec, 1", f"ds_add_u32 v{V_JN}, v147 offset:4", "s_mov_b64 exec, -1")
        self.oproj()
        self.stamp(5, 8)
        a(f"s_setprio {1 if o['xe1'] else 0}", "s_branch L_nob7")

    def wo_loads(self, WF):
        a = self.a
        a(f"s_lshl_b32 s{S_T0}, s{S_HG}, 1", f"s_add_u32 s{S_T0}, s{S_T0}, s{S_STG}", f"s_mul_i32 s{S_T0}, s{S_T0}, {81*1024}", f"s_add_u32 s{S_T0}, s{S_T0}, {WS_WOT}",
          f"s_lshl_b32 s{S_T1}, s{S_I}, 11", f"s_add_u32 s{S_T1}, s{S_T1}, s{S_T0}", f"s_add_u32 s{S_T0}, s{S_T0}, 8192")
        for ks in range(9):
            a(f"buffer_load_dwordx4 {vr(WF+12*ks,4)}, v1, s[{R_WS}:{R_WS+3}], s{S_T1} offen sc1",
              f"buffer_load_dwordx4 {vr(WF+12*ks+4,4)}, v1, s[{R_WS}:{R_WS+3}], s{S_T1} offen offset:1024 sc1",
              f"buffer_load_dwordx4 {vr(WF+12*ks+8,4)}, v1, s[{R_WS}:{R_WS+3}], s{S_T0} offen sc1")
            if ks < 8:
                a(f"s_add_u32 s{S_T1}, s{S_T1}, 9216", f"s_add_u32 s{S_T0}, s{S_T0}, 9216")

    def fallback(self):
        a, o = self.a, self.o
        a.label("L_fallback")
        a(f"s_cmp_eq_u32 s{S_STG}, 1", "s_cbranch_scc1 L_fb1", "s_barrier", f"s_mov_b32 s{S_BAR}, {32//o['unp'] - o['p1']}", "L_fb1:")
        a(f"v_mov_b32 v{QR+1}, 0", f"v_mov_b32 v144, v{V_AK}", f"v_mov_b32 v145, v{V_AR}", "v_mov_b32 v146, 0xff800000", "v_mov_b32 v147, 0xff800000",
          "v_mov_b32 v151, 0x3f803f80", f"s_mov_b32 s{S_CNT}, 32", "L_fbl:",
          "ds_read_b32 v150, v145", "ds_read_b128 v[152:155], v144", "ds_read_b128 v[156:159], v144 offset:1024",
          f"v_add_u32 v144, {PB}, v144", f"v_add_u32 v145, {PB}, v145", "s_waitcnt lgkmcnt(0)")
        for h in range(2):
            a(B2(160, 150, QR, h), "s_nop 15", "s_nop 1", K16(160, 152 + 4 * h, QM[0]), K16(176, 152 + 4 * h, QM[1]), "s_nop 11")
            for j in range(8):
                a(f"v_max3_f32 v146, v146, v{160+2*j}, v{161+2*j}", f"v_max3_f32 v147, v147, v{176+2*j}, v{177+2*j}")
        a(f"s_sub_u32 s{S_CNT}, s{S_CNT}, 1", f"s_cmp_lg_u32 s{S_CNT}, 0", "s_cbranch_scc1 L_fbl",
          "s_nop 0", "v_permlane32_swap_b32 v146, v147", "s_nop 1", "v_max_f32 v146, v146, v147", "v_sub_f32 v146, 0, v146",
          "v_cvt_pk_bf16_f32 v147, v146, 0", "v_lshlrev_b32 v148, 16, v147", "v_sub_f32 v148, v146, v148", f"v_cvt_pk_bf16_f32 v{QR+1}, v146, v148",
          "s_branch L_fbdone")

    def oproj(self):
        a, o = self.a, self.o
        a(f"s_mul_i32 s24, s{S_STG}, {L_S1-L_S0}", f"s_add_u32 s24, s24, {L_S0}", f"s_lshl_b32 s23, s{S_STG}, 13", f"s_lshl_b32 s{S_T4}, s{S_STG}, 10", f"s_add_u32 s{S_T4}, s{S_T4}, 16384")
        for k in range(7):
            a(f"s_add_u32 s{S_T0}, s{S_I}, {4*k}")
            if k == 6:
                a(f"s_min_u32 s{S_T0}, s{S_T0}, 26")
            a(f"s_mul_i32 s{S_T1}, s{S_T0}, 7282", f"s_lshr_b32 s{S_T1}, s{S_T1}, 16", f"s_mul_i32 s{S_T2}, s{S_T1}, 9", f"s_sub_u32 s{S_T2}, s{S_T0}, s{S_T2}",
              f"s_add_u32 s{S_T1}, s{S_T1}, s{S_HG}", f"s_add_u32 s{S_T1}, s{S_T1}, 1", f"s_and_b32 s{S_T1}, s{S_T1}, 3",
              f"s_lshl_b32 s{S_T0}, s{S_T2}, 10", f"s_add_u32 s{S_T3}, s{S_T0}, s23", f"s_lshl_b32 s{S_T5}, s{S_T1}, 13", f"s_add_u32 s{S_T0}, s{S_T0}, s{S_T5}",
              f"s_lshl_b32 s{S_T5}, s{S_T1}, 10", f"s_add_u32 s{S_T5}, s{S_T5}, 32768",
              f"s_cmp_eq_u32 s{S_T2}, 8", f"s_cselect_b32 s{S_T3}, s{S_T4}, s{S_T3}", f"s_cselect_b32 s{S_T0}, s{S_T5}, s{S_T0}",
              f"s_add_u32 s{30+k}, s{S_T0}, s24", f"s_mul_i32 s{S_T1}, s{S_T1}, {OEX_W}", f"s_add_u32 s{S_T3}, s{S_T3}, s{S_T1}", f"s_add_u32 s{16+k}, s{S_T3}, s{S_OEXB}")
        a(f"s_mul_i32 s{S_T0}, s{S_PG}, {64*2304}", f"s_mul_i32 s{S_T1}, s{S_B}, 1152", f"s_add_u32 s{S_T0}, s{S_T0}, s{S_T1}", f"s_mul_i32 s{S_T1}, s{S_HG}, 288",
          f"s_add_u32 s{S_T0}, s{S_T0}, s{S_T1}", f"s_lshl_b32 s{S_T1}, s{S_I}, 6", f"s_add_u32 s{S_T1}, s{S_T1}, s{S_T0}")
        for tp in range(4):
            a(f"s_xor_b32 s{S_T2}, s{S_I}, {tp}", f"s_mul_i32 s{S_T2}, s{S_T2}, {16*2304}", f"s_add_u32 s{37+tp}, s{S_T2}, s{S_T1}")
            if tp == 0:
                a(f"s_add_u32 s41, s{S_T2}, s{S_T0}", "s_add_u32 s41, s41, 256")
        a(f"s_lshl_b32 s{S_T0}, s{S_HG}, 13", f"s_sub_u32 s23, s{S_T0}, s23", "s_add_u32 s23, s23, s24",
          f"s_sub_u32 s{S_T0}, s{S_HG}, s{S_STG}", f"s_lshl_b32 s{S_T0}, s{S_T0}, 10", f"s_add_u32 s42, s{S_T0}, s24", "s_add_u32 s42, s42, 32768")

    def oproj2(self):
        a, o = self.a, self.o
        WF, ACC, PB_, PS = 148, 56, 24, 124
        RING = [92 + 4 * i for i in range(8)]
        OUTF = ['', ' sc1', ' sc0 sc1', ' nt'][o['outf']]
        loads = [f"buffer_load_dwordx4 {vr(PB_+4*k,4)}, v1, s[{R_WS}:{R_WS+3}], s{16+k} offen sc0 sc1" for k in range(7)]
        a(f"ds_read_b32 v23, v{V_JN} offset:4", loads)
        self.stamp(4, 7)
        a(f"v_add_u32 v{V_OA}, s23, v{V_OA}", f"v_add_u32 v{V_OB}, s42, v{V_OB}",
          f"s_lshl_b32 s{S_T0}, s{S_I}, 10", f"s_add_u32 s{S_T0}, s{S_T0}, s24", f"v_add_u32 v8, s{S_T0}, v1", "v_xor_b32 v9, 0x400, v8", "v_xor_b32 v10, 0x800, v8", "v_xor_b32 v11, 0xc00, v8",
          "v_lshrrev_b32 v6, 4, v0", "v_lshlrev_b32 v6, 10, v6", "v_and_b32 v7, 15, v0", "v_lshl_add_u32 v6, v7, 2, v6", f"s_lshl_b32 s{S_T0}, s{S_I}, 8", f"s_add_u32 s{S_T0}, s{S_T0}, s24",
          f"s_add_u32 s{S_T0}, s{S_T0}, 32768", f"v_add_u32 v52, s{S_T0}, v6", "v_xor_b32 v53, 0x100, v52", "v_xor_b32 v54, 0x200, v52", "v_xor_b32 v55, 0x300, v52",
          f"s_mul_i32 s{S_T0}, s{S_I}, 9216", f"s_add_u32 s{S_T0}, s{S_T0}, {L_PS}", f"v_add_u32 v21, s{S_T0}, v1", f"s_mov_b32 s{S_CNT}, {SPIN}")
        a("L_free:", "s_waitcnt lgkmcnt(0)", "v_cmp_gt_u32 vcc, 8, v23", "s_cbranch_vccz L_freed",
          f"ds_read_b32 v23, v{V_JN} offset:4", f"s_sub_u32 s{S_CNT}, s{S_CNT}, 1", "s_cbranch_scc0 L_free", "L_freed:")
        self.stamp(5, 7)
        a(f"ds_write_b128 v{V_OA}, v[12:15]", f"ds_write_b128 v{V_OA}, v[16:19] offset:256", f"ds_write_b32 v{V_OB}, v20")
        self.stamp(1, 4)
        if o['pw']:
            a([f"v_add_u32 v{136+k}, s{30+k}, v1" for k in range(7)])
            a(f"s_mov_b32 s{S_CNT}, {SPIN}", "L_cl:")
            for k in range(7):
                r = PB_ + 4 * k
                a(f"s_waitcnt vmcnt({6-k})")
                if k == 0:
                    self.stamp(3, 4)
                a(f"ds_write_b128 v{136+k}, {vr(r,4)}")
                if k == 0:
                    a(f"v_max3_u32 v7, v{r}, v{r+1}, v{r+2}", f"v_max_u32 v7, v7, v{r+3}")
                else:
                    a(f"v_max3_u32 v7, v7, v{r}, v{r+1}", f"v_max3_u32 v7, v7, v{r+2}, v{r+3}")
            a("v_cmp_eq_u32 vcc, -1, v7", "s_cbranch_vccz L_cld", f"s_sub_u32 s{S_CNT}, s{S_CNT}, 1", "s_cbranch_scc1 L_cld", "s_waitcnt lgkmcnt(0)", loads, "s_branch L_cl", "L_cld:")
            self.stamp(2, 4)
        else:
            a(f"s_mov_b32 s{S_CNT}, {SPIN}", "L_cl:", "s_waitcnt vmcnt(0)")
            self.stamp(3, 4)
            a(f"v_max3_u32 v6, v{PB_}, v{PB_+1}, v{PB_+2}", f"v_max3_u32 v7, v{PB_+3}, v{PB_+4}, v{PB_+5}")
            for j in range(6, 28, 4):
                a(f"v_max3_u32 v6, v6, v{PB_+j}, v{PB_+j+1}")
                if j + 3 < 28:
                    a(f"v_max3_u32 v7, v7, v{PB_+j+2}, v{PB_+j+3}")
            a("v_max_u32 v7, v7, v6", "v_cmp_eq_u32 vcc, -1, v7", "s_cbranch_vccz L_cld", f"s_sub_u32 s{S_CNT}, s{S_CNT}, 1", "s_cbranch_scc1 L_cld", loads, "s_branch L_cl", "L_cld:")
            self.stamp(2, 4)
            self.stamp(6, 7)
            for k in range(7):
                a(f"v_add_u32 v{6+(k&1)}, s{30+k}, v1", f"ds_write_b128 v{6+(k&1)}, {vr(PB_+4*k,4)}")
        a("v_and_b32 v22, 15, v0", "v_mul_u32_u24 v22, 0x900, v22", "v_lshrrev_b32 v7, 4, v0", "v_lshl_add_u32 v23, v7, 3, v22", "v_lshl_add_u32 v22, v7, 4, v22")
        if o['xe1']:
            a(f"s_cmp_eq_u32 s{S_STG}, 0", "s_waitcnt lgkmcnt(0)", "s_cbranch_scc1 L_ej", "s_barrier", "s_branch L_ejd",
              "L_ej:", "s_setprio 0", "v_mov_b32 v6, 1", f"v_mov_b32 v7, {L_FLAG+12}", "s_mov_b64 exec, 1", "ds_add_u32 v7, v6", "s_mov_b64 exec, -1", f"s_mov_b32 s{S_CNT}, {SPIN}",
              "L_ej1:", "ds_read_b32 v6, v7", f"s_sub_u32 s{S_CNT}, s{S_CNT}, 1", "s_cbranch_scc1 L_ej2", "s_waitcnt lgkmcnt(0)", "v_cmp_gt_u32 vcc, 4, v6", "s_cbranch_vccnz L_ej1",
              "L_ej2:", "s_waitcnt lgkmcnt(0)", "L_ejd:", f"s_cmp_eq_u32 s{S_STG}, 0")
        else:
            a(f"s_cmp_eq_u32 s{S_STG}, 0", "s_waitcnt lgkmcnt(0)", "s_barrier")
        self.stamp(4, 4)
        self.stamp(4, 0)
        q = []

        def issue(n, tp, ks):
            r = RING[n % 8]
            if ks < 8:
                a(f"ds_read_b128 {vr(r,4)}, v{8+tp} offset:{ks*4096}")
                q.append(n)
            else:
                a(f"ds_read2_b32 {vr(r,2)}, v{52+tp} offset0:0 offset1:16", f"ds_read2_b32 {vr(r+2,2)}, v{52+tp} offset0:32 offset1:48")
                q.extend([n] * 2)

        def need(n):
            last = max((i for i, t in enumerate(q) if t == n), default=-1)
            if last >= 0:
                a(f"s_waitcnt lgkmcnt({min(len(q) - 1 - last, 14)})")
                del q[:last + 1]

        def run(after, zero, before={}):
            seq = [(tp, ks) for tp in (1, 2, 3, 0) for ks in range(9)]
            PF = 7
            for j in range(PF):
                issue(j, *seq[j])
            for j, (tp, ks) in enumerate(seq):
                if j in before:
                    before[j]()
                need(j)
                c = "0" if ks == 0 and zero else None
                w = WF + 12 * ks
                a(M16(ACC + 4 * tp, w, RING[j % 8], c), M16(ACC + 16 + 4 * tp, w + 4, RING[j % 8], c))
                if tp == 0:
                    a(M16(ACC + 32, w + 8, RING[j % 8], c))
                if j + PF < len(seq):
                    issue(j + PF, *seq[j + PF])
                if j in after:
                    after[j]()

        def tiles(tp):
            return [tp, 4 + tp] + ([8] if tp == 0 else [])
        a("s_cbranch_scc0 L_tail_l", f"s_setprio {o['tp']}")

        def put(tp):
            for t in tiles(tp):
                a(f"ds_write_b128 v21, {vr(ACC+4*t,4)} offset:{t*1024}")
                q.append(('w', tp))

        def x2():
            need(('w', 3 if o['x2j'] > 29 else 2))
            a("s_barrier")
        ev = {9 * i + 2: (lambda i=i: put(i)) for i in (1, 2, 3)}
        ev[o['x2j']] = x2
        run(ev, True)
        a("s_nop 6")
        put(0)
        a("s_waitcnt lgkmcnt(0)", "s_barrier", "s_branch L_fin")
        q.clear()
        a("L_tail_l:")

        def get(tp):
            if tp == (0 if o['x2j'] > 29 else 3):
                a("s_barrier")
            for t in tiles(tp):
                a(f"ds_read_b128 {vr(ACC+4*t,4)}, v21 offset:{t*1024}")
                q.append(('p', tp))

        def outp(tp):
            r = 12 + 4 * (tp & 1)
            a([f"v_cvt_pk_bf16_f32 v{r+k}, v{ACC+16*(k>>1)+4*tp+2*(k&1)}, v{ACC+16*(k>>1)+4*tp+2*(k&1)+1}" for k in range(4)],
              f"buffer_store_dwordx4 {vr(r,4)}, v22, s[{R_OUT}:{R_OUT+3}], s{37+tp} offen{OUTF}")
            if tp == 0:
                a(f"v_cvt_pk_bf16_f32 v6, v{ACC+32}, v{ACC+33}", f"v_cvt_pk_bf16_f32 v7, v{ACC+34}, v{ACC+35}",
                  f"buffer_store_dwordx2 v[6:7], v23, s[{R_OUT}:{R_OUT+3}], s41 offen{OUTF}")
        get(1)
        ev = {9 * i + 2: (lambda i=i: outp(i)) for i in (1, 2, 3)}
        ev[3] = lambda: get(2)
        ev[12 if o['x2j'] > 29 else 16] = lambda: get(3)
        ev[22] = lambda: get(0)
        run(ev, False, {9 * i: (lambda t=t: need(('p', t))) for i, t in enumerate((1, 2, 3, 0))})
        a("s_nop 5")
        outp(0)
        a("L_fin:")
        if o['stamps'] or o['dbgspan'] or o['ampk']:
            a("s_waitcnt vmcnt(0)")
            self.stamp(5, o['set'] if o['set'] in (1, 4) else 0)
        if o['ampk']:
            a(f"s_cmp_eq_u32 s{S_STG}, {1 - o['amps']}", "s_cbranch_scc1 L_end", "s_waitcnt lgkmcnt(0)", f"s_sub_u32 s{S_T0}, s{S_ST+2*o['ampb']}, s{S_ST+2*o['ampa']}")
            if o['avg']:
                a(f"s_cmp_lg_u32 s{S_I}, 0", "s_cbranch_scc1 L_end", "s_mov_b64 exec, 1", "v_mov_b32 v8, 0", f"v_mov_b32 v9, s{S_T0}", "v_mov_b32 v10, 1",
                  f"buffer_atomic_add v9, v8, s[{R_DBG}:{R_DBG+3}], 0 offen offset:16 sc1", "s_waitcnt vmcnt(0)",
                  f"buffer_atomic_add v10, v8, s[{R_DBG}:{R_DBG+3}], 0 offen offset:144 sc0 sc1", "s_waitcnt vmcnt(0)", "v_cmp_eq_u32 vcc, 0xff, v10", "s_cbranch_vccz L_end",
                  f"buffer_load_dword v9, v8, s[{R_DBG}:{R_DBG+3}], 0 offen offset:16 sc0 sc1", "s_waitcnt vmcnt(0)", f"v_readfirstlane_b32 s{S_T0}, v9", "s_nop 3", f"s_mul_i32 s{S_T0}, s{S_T0}, {o['ampk']}", f"s_lshr_b32 s{S_T0}, s{S_T0}, 8")
            else:
                a(f"s_mul_i32 s{S_T0}, s{S_T0}, {o['ampk']}" if o['ampk'] > 0 else f"s_lshr_b32 s{S_T0}, s{S_T0}, {-o['ampk']}")
            a("s_memrealtime s[18:19]", f"s_min_u32 s{S_T0}, s{S_T0}, 100000",
              "L_amp:", "s_memrealtime s[16:17]", "s_waitcnt lgkmcnt(0)", "s_sub_u32 s16, s16, s18", f"s_cmp_lt_u32 s16, s{S_T0}", "s_cbranch_scc1 L_amp")
        self.dump_stamps()
        a("L_end:", "s_endpgm")

    def build(self):
        self.start()
        self.early_front()
        self.attention()
        self.late_front()
        self.events()
        self.fallback()
        hdr = (open('concat_heads__grouped_kv_mqa__grouped_kv_mqa__prompt.s.ref').read().split("; Override launch geometry")[0] +
               f"; @launch grid=(256,1,1) block=(512,1,1) lds={LDS_BYTES}\n" + DOC +
               '.amdgcn_target "amdgcn-amd-amdhsa--gfx950"\n.text\n'
               f".globl {NAME}\n.p2align 8\n.type {NAME},@function\n{NAME}:\n")
        if self.o['of'] & 1:
            self.a.L = [x.replace(" sc0 sc1", " sc1") if "buffer_store" in x and f"s[{R_WS}:" in x else x for x in self.a.L]
        if self.o['of'] & 2:
            self.a.L = [x.replace(" sc0 sc1", " sc1") if "buffer_load" in x and f"s[{R_WS}:" in x else x for x in self.a.L]
        body = "".join((x + "\n") if x.endswith(":") or x.startswith(";") else ("    " + x + "\n") for x in self.a.L)
        t = table()
        tab = ".p2align 6\n.type L_table,@object\nL_table:\n" + "".join("    .long " + ", ".join(str(int(v)) for v in row) + "\n" for row in t)
        tab += f".fill (1024 - ((. - {NAME}) & 1023)) & 1023, 1, 0\nL_codeend:\n.size L_table, L_codeend-L_table\n"
        kd = f""".section .rodata,"a"
.p2align 6
.amdhsa_kernel {NAME}
  .amdhsa_next_free_vgpr 256
  .amdhsa_next_free_sgpr 102
  .amdhsa_accum_offset 256
  .amdhsa_group_segment_fixed_size 0
  .amdhsa_kernarg_size 104
  .amdhsa_user_sgpr_count 2
  .amdhsa_user_sgpr_kernarg_segment_ptr 1
  .amdhsa_system_sgpr_workgroup_id_x 1
.end_amdhsa_kernel
"""
        return hdr + body + tab + kd


if __name__ == "__main__":
    out = sys.argv[1]
    opt = {}
    for kv in sys.argv[2:]:
        k, v = kv.split("=")
        opt[k] = int(v)
    g = Gen(opt)
    open(out, "w").write(g.build())
```

```python
import sys, math, struct
import numpy as np

NAME = "concat_heads__grouped_kv_mqa__grouped_kv_mqa__prompt_kernel"

VG = 608
PB = 2048 + 256 + 4 * VG
KVB = 32 * PB
L_KV = 12288
L_HAND = 0
L_KMAX = 10240
L_FLAG = 10256
L_T2X = 81920
L_S0 = 12288
L_S1 = L_S0 + 36864
L_PS = L_S1 + 36864
L_W = 62464
L_X = 90112
SLOT = 4608
LDS_BYTES = 163840
WS_KV = 0
WS_KN = KVB
WS_XID = WS_KN + 1024
WS_CNT = 0x26000
WS_WOT = 0x28000
WS_OEX = 0xD0000
WS_BR = 0x400000
WS_STAMP = 0x1000000
OEX_G = 73728
OEX_W = 18432
CSCALE = math.log2(math.e) / math.sqrt(18.0)
TSAFE = 40.0
SPIN = 500000
SPIN_L = 16 * SPIN


def f2u(x):
    return struct.unpack("<I", struct.pack("<f", x))[0]


def dslot(d):
    if d < 6:
        return d * 2 * SLOT
    if d < 17:
        return L_W + (d - 6) * 2 * SLOT
    return 5 * 2 * SLOT


def slot_addr(ks):
    return dslot(ks >> 1) + (ks & 1) * SLOT


G0 = [0, 1, 2, 3, 12, 13, 14, 15, 20]
G1 = [4, 5, 6, 7, 8, 9, 10, 11, 16]
POS_ONES, POS_ZERO = 22, 23


def vpos(h, row):
    if row in G0:
        return [list(range(0, 9)), [18, 19, 20, 21, 24, 25, 26, 27, 28]][h][G0.index(row)]
    if row in G1:
        return [list(range(9, 18)), list(range(29, 38))][h][G1.index(row)]
    if row in (17, 21):
        return POS_ONES
    return POS_ZERO


def table():
    t = np.zeros((64, 4), dtype=np.uint32)
    for l in range(64):
        t[l, 0] = L_KV + 2304 + vpos(l >> 5, l & 31) * 16
        n, g = l & 15, l >> 4
        t[l, 1] = vpos(g >> 1, n) * 16 + (g & 1) * 8
        p = {0: vpos(g >> 1, 16), 1: vpos(g >> 1, 20), 2: POS_ONES, 3: POS_ZERO}.get(n, POS_ZERO)
        t[l, 2] = p * 16 + (g & 1) * 8
    return t


def vr(a, n=1):
    return f"v[{a}:{a+n-1}]" if n > 1 else f"v{a}"


def sr(a, n=1):
    return f"s[{a}:{a+n-1}]" if n > 1 else f"s{a}"


S_WAVE = 3
R_X, R_WQ, R_W, R_WO, R_WS, R_OUT, R_DBG = 44, 48, 52, 56, 60, 64, 68
S_B, S_HG, S_GI, S_PG, S_I = 4, 5, 6, 7, 8
S_T0, S_T1, S_T2, S_T3, S_T4, S_T5 = 9, 10, 11, 12, 13, 14
S_CNT = 15
S_M0A, S_M0R, S_ROW = 72, 73, 74
S_BAR = 75
S_PBI, S_HQ = 76, 77
S_EX = 42
S_KVS = 80
S_OEX = 81
S_STG = 82
S_OEXB = 78
S_SAME, S_OA, S_OB, S_OW = 26, 27, 28, 25
V_OA, V_OB, V_JN = 144, 145, 146
S_VM = 0
S_XI, S_XB, S_XS, S_XM = 83, 100, 101, 79
S_DI, S_DS, S_LI, S_LS = 72, 73, 74, 75
S_ST = 84

V_IDX, V_AK, V_AR, V_AV = 2, 3, 4, 5
QM = [8, 12]
QR = 16
KR = [18, 20]
O = [24, 40]
KM = [56, 60]
VV = [[64, 68], [72, 76]]
S = [80, 112]


DOC = """;
;     dims 16, 17 and m), p = exp2(S), O^T += V^T p with the 2:4-sparse MFMA picking the high halves of the fp32 p registers
;     exp2 can overflow or underflow); otherwise the wave first computes the true row max in an extra pass (L_fallback).
"""


class A:
    def __init__(self):
        self.L = []

    def __call__(self, *xs):
        for x in xs:
            if isinstance(x, (list, tuple)):
                self(*x)
            else:
                self.L.append(x)

    def label(self, n):
        self.L.append(n + ":")


def K16(d, a, b, c=None):
    return f"v_mfma_f32_32x32x16_bf16 {vr(d,16)}, {vr(a,4)}, {vr(b,4)}, {c if c else vr(d,16)}"


def M16(d, a, b, c=None):
    return f"v_mfma_f32_16x16x32_bf16 {vr(d,4)}, {vr(a,4)}, {vr(b,4)}, {c if c else vr(d,4)}"


def B2(d, a, b, abid):
    return f"v_mfma_f32_32x32x4_2b_bf16 {vr(d,32)}, {vr(a,2)}, {vr(b,2)}, 0 cbsz:1 abid:{abid}"


def K8Z(d, z):
    return f"v_mfma_f32_32x32x8_bf16 {vr(d,16)}, {vr(z,2)}, {vr(z,2)}, 0"


def SM(d, a, b):
    return f"v_smfmac_f32_32x32x32_bf16 {vr(d,16)}, {vr(a,4)}, {vr(b,8)}, v{V_IDX}"


def EX(r, n):
    return [f"v_exp_f32 v{r+i}, v{r+i}" for i in range(n)]


def srd(a, dst, lo, hi, size):
    a(f"s_mov_b32 s{dst}, {lo}", f"s_mov_b32 s{dst+1}, {hi}", f"s_mov_b32 s{dst+2}, {size}", f"s_mov_b32 s{dst+3}, 0x20000")


class Gen:
    def __init__(self, opt):
        self.o = dict(unp=4, barit=1, stamps=False, force_fb=False, prefetch=True, prio=True, dbgspan=0, l01=0, sched=1, dbl=0, xe1=0, x1l=0, pw=0, ks2=0, binv=0, z2=1, vexec=0, ga=1, tp=1, x2j=31, amps=0, p1=2, p2=5, p3=7, lo0=0, lo1=0, ka=2, lnorm=1, xper=3, dly=0, d0l=1, pre=2, xe=0, sigb2=1, tre=1, badv0=0, shard=1, nslow=64, spf=0, avg=0, xcc=1, xp=0, outf=0, of=0, ampa=0, ampb=0, ampk=0, set=0, nb=5, kv1=7, pd=2, win=3, t1=7, t2=9, sb=18)
        self.o.update(opt)
        self.a = A()
        self.nst = 0

    def stamp(self, i, st=0):
        if i not in (0, 7) and st != self.o['set']:
            return
        if self.o['stamps'] or self.o['dbgspan'] or self.o['ampk']:
            cyc = self.o['stamps'] == 2 or self.o['ampk'] < 0
            self.a(f"{'s_memtime' if cyc else 's_memrealtime'} s[{S_ST+2*i}:{S_ST+2*i+1}]")

    def dump_stamps(self):
        if self.o['dbgspan']:
            a = self.a
            n = self.nst = self.nst + 1
            a("s_waitcnt lgkmcnt(0)", f"s_cmp_lg_u32 s{S_I}, 0", f"s_cbranch_scc1 L_nodump{n}", "s_mov_b64 exec, 1", "v_mov_b32 v8, 0", f"s_not_b32 s{S_T0}, s{S_ST}", f"v_mov_b32 v9, s{S_T0}",
              f"buffer_atomic_umax v9, v8, s[{R_DBG}:{R_DBG+3}], 0 offen offset:8 sc1")
            for k, i in enumerate((0, 1, 3, 6, 7, 5) if n == 2 else (1, 2, 4, 5, 6, 7)):
                a(f"v_mov_b32 v{10+k}, s{S_ST+2*i}", f"buffer_atomic_umax v{10+k}, v8, s[{R_DBG}:{R_DBG+3}], 0 offen offset:{(12 if n == 2 else 36)+4*k} sc1")
            a(f"L_nodump{n}:")
            return
        if not self.o['stamps']:
            return
        a = self.a
        a("s_waitcnt lgkmcnt(0)", f"s_lshl_b32 s{S_T0}, s2, 3", f"s_add_u32 s{S_T0}, s{S_T0}, s{S_WAVE}", f"s_lshl_b32 s{S_T0}, s{S_T0}, 6",
          f"s_mul_i32 s{S_T1}, s{S_B}, {WS_BR}", f"s_sub_u32 s{S_T0}, s{S_T0}, s{S_T1}", f"s_add_u32 s{S_T0}, s{S_T0}, {WS_STAMP}",
          f"s_mov_b32 s{R_WS+2}, 0x2000000", "v_mov_b32 v8, 0")
        for i in range(4):
            for k in range(4):
                a(f"v_mov_b32 v{12+k}, s{S_ST+4*i+k}")
            a(f"buffer_store_dwordx4 v[12:15], v8, s[{R_WS}:{R_WS+3}], s{S_T0} offen offset:{16*i}", "s_nop 1")

    def kv_dma(self, p0, n):
        a = self.a
        for k in range(n):
            a(f"s_add_u32 m0, s{S_M0A}, {L_KV + (p0 + 4*k)*1024}", f"s_add_u32 s{S_T0}, s{S_KVS}, 4096",
              f"buffer_load_dwordx4 v1, s[{R_WS}:{R_WS+3}], s{S_KVS} offen sc1 lds",
              f"s_cmp_ge_u32 s{S_T0}, {KVB}", f"s_cselect_b32 s{S_T1}, {KVB}, 0", f"s_sub_u32 s{S_KVS}, s{S_T0}, s{S_T1}")

    def row_max16(self, v):
        a = self.a
        for k in (8, 4, 2, 1):
            a("s_nop 1", f"v_max_f32_dpp v{v}, v{v}, v{v} row_ror:{k} row_mask:0xf bank_mask:0xf")

    def rest_srds(self):
        a = self.a
        a(f"s_mov_b32 s{R_WO+2}, 663552", f"s_mov_b32 s{R_WO+3}, 0x20000",
          f"s_mul_i32 s{S_T0}, s{S_B}, {WS_BR}", f"s_add_u32 s{R_WS}, s40, s{S_T0}", f"s_addc_u32 s{R_WS+1}, s41, 0",
          f"s_mov_b32 s{R_WS+2}, {WS_OEX + 32*OEX_G}", f"s_mov_b32 s{R_WS+3}, 0x20000")
        srd(a, R_OUT, "s36", "s37", 4718592)
        srd(a, R_DBG, "s38", "s39", 256)

    def norm2(self, x, y):
        a = self.a
        for j in range(4):
            for (qm, qr, dst, tmp) in (x, y):
                a(f"v_dot2_f32_bf16 v{dst}, v{qm+j}, v{qm+j}, {'0' if j == 0 else 'v%d' % dst}",
                  f"v_dot2_f32_bf16 v{tmp}, v{qm+4+j}, v{qm+4+j}, {'0' if j == 0 else 'v%d' % tmp}")
        a("s_nop 0", f"v_permlane32_swap_b32 v{x[2]}, v{x[3]}", "s_nop 0", f"v_permlane32_swap_b32 v{y[2]}, v{y[3]}",
          f"v_add_f32 v{x[2]}, v{x[2]}, v{x[3]}", f"v_add_f32 v{y[2]}, v{y[2]}, v{y[3]}",
          f"v_dot2_f32_bf16 v{x[2]}, v{x[1]}, v{x[1]}, v{x[2]}", f"v_dot2_f32_bf16 v{y[2]}, v{y[1]}, v{y[1]}, v{y[2]}", "s_nop 1",
          f"v_sqrt_f32 v{x[2]}, v{x[2]}", f"v_sqrt_f32 v{y[2]}, v{y[2]}")

    def norm1(self, qm, qr, dst, tmp):
        a = self.a
        for j in range(4):
            a(f"v_dot2_f32_bf16 v{dst}, v{qm+j}, v{qm+j}, {'0' if j == 0 else 'v%d' % dst}",
              f"v_dot2_f32_bf16 v{tmp}, v{qm+4+j}, v{qm+4+j}, {'0' if j == 0 else 'v%d' % tmp}")
        a("s_nop 2", f"v_permlane32_swap_b32 v{dst}, v{tmp}", "s_nop 0", f"v_add_f32 v{dst}, v{dst}, v{tmp}",
          f"v_dot2_f32_bf16 v{dst}, v{qr}, v{qr}, v{dst}", "s_nop 2", f"v_sqrt_f32 v{dst}, v{dst}")

    def init_main_regs(self):
        a = self.a
        a(f"v_mov_b32 v{KR[0]+1}, 0x3f803f80", f"v_mov_b32 v{KR[1]+1}, 0x3f803f80")
        for r in range(O[0], O[0] + 32):
            a(f"v_mov_b32 v{r}, 0")
        for r in range(S[1] + 24, S[1] + 32):
            a(f"v_mov_b32 v{r}, 0")
        if self.o['vexec']:
            self.init_v()
            self.loader_flag()
        else:
            a([f"v_mov_b32 v{r}, 0" for r in range(VV[1][1], VV[1][1] + 4)])

    def ldKm(self, kb):
        return [f"ds_read_b128 {vr(KM[kb%2],4)}, v{V_AK} offset:{(kb//2)*PB+(kb%2)*1024}"]

    def ldKr(self, p):
        return [f"ds_read_b32 v{KR[p%2]}, v{V_AR} offset:{p*PB}"]

    def ldV(self, kb):
        x = [f"ds_read_b128 {vr(VV[kb%2][i],4)}, v{V_AV} offset:{(kb//2)*PB+((kb%2)*2+i)*VG}" for i in range(2)]
        if self.o['vexec']:
            x = [f"s_mov_b64 exec, s[{S_VM}:{S_VM+1}]"] + x + ["s_mov_b64 exec, -1"]
        return x

    def init_v(self):
        a = self.a
        m = sum(1 << r for r in G0 + G1)
        a(f"s_mov_b32 s{S_VM}, {hex(m)}", f"s_mov_b32 s{S_VM+1}, {hex(m)}", "s_mov_b32 vcc_lo, 0x220000", "s_mov_b32 vcc_hi, 0x220000",
          f"v_mov_b32 v{VV[0][0]}, 0x3f803f80", f"v_cndmask_b32 v{VV[0][0]}, 0, v{VV[0][0]}, vcc")
        a([f"v_mov_b32 v{VV[0][0]+k}, v{VV[0][0]}" for k in range(1, 16)])

    def qk(self, dst, kb):
        return [B2(dst, KR[(kb//2) % 2], QR, kb % 2), K16(dst, KM[kb % 2], QM[0]), K16(dst + 16, KM[kb % 2], QM[1])]

    def main_prologue_loads(self):
        self.a(self.ldKr(0), self.ldKm(0), self.ldKm(1), self.ldKr(1), self.ldV(0))

    def start(self):
        a, o = self.a, self.o
        a("s_cmp_ge_u32 s2, 256", "s_cbranch_scc1 L_end")
        a("s_load_dwordx16 s[16:31], s[0:1], 0", "s_load_dwordx8 s[32:39], s[0:1], 64", "s_load_dwordx2 s[40:41], s[0:1], 96")
        self.stamp(0)
        a("s_getpc_b64 s[42:43]", "L_pc:")
        a("v_lshrrev_b32 v1, 6, v0", "v_and_b32 v0, 63, v0", f"v_readfirstlane_b32 s{S_WAVE}, v1", "v_lshlrev_b32 v1, 4, v0",
          f"s_lshr_b32 s{S_T2}, s2, 3", f"s_and_b32 s{S_B}, s2, 1", f"s_and_b32 s{S_HG}, s{S_T2}, 3", f"s_lshr_b32 s{S_GI}, s2, 5")
        if o['binv']:
            a(f"s_xor_b32 s{S_B}, s{S_B}, 1")
        if o['prefetch']:
            a(f"s_cmp_lg_u32 s{S_WAVE}, 7", "s_cbranch_scc1 L_nopf", f"s_cmp_ge_u32 s{S_T2}, (L_codeend-{NAME})/1024", "s_cbranch_scc1 L_nopf",
              f"s_lshl_b32 s{S_T2}, s{S_T2}, 10", f"s_sub_u32 s{S_T0}, s42, L_pc-{NAME}", f"s_subb_u32 s{S_T1}, s43, 0",
              f"s_add_u32 s{S_T0}, s{S_T0}, s{S_T2}", f"s_addc_u32 s{S_T1}, s{S_T1}, 0",
              f"v_mov_b32 v7, s{S_T1}", f"v_add_co_u32 v6, vcc, s{S_T0}, v1", "s_nop 1", "v_addc_co_u32 v7, vcc, 0, v7, vcc", "s_nop 0",
              "global_load_dwordx4 v[24:27], v[6:7], off", "L_nopf:")
        a(f"s_bfe_u32 s{S_PG}, s2, 0x20001", f"s_lshl_b32 s{S_PG}, s{S_PG}, 3", f"s_add_u32 s{S_PG}, s{S_PG}, s{S_GI}",
          f"s_and_b32 s{S_I}, s{S_WAVE}, 3", f"s_and_b32 s{S_PBI}, s{S_WAVE}, 1", f"s_lshr_b32 s{S_HQ}, s{S_I}, 1")
        a("v_lshrrev_b32 v8, 3, v0", "v_lshrrev_b32 v9, 4, v0", f"s_lshl_b32 s{S_T0}, s{S_PBI}, 2", f"v_or_b32 v9, s{S_T0}, v9",
          "v_and_b32 v10, 7, v0", "v_xor_b32 v9, v9, v10", "v_lshlrev_b32 v9, 4, v9", "v_mov_b32 v10, 0x480", "v_mad_u32_u24 v8, v8, v10, v9",
          f"s_lshl_b32 s{S_T0}, s{S_I}, 6", f"v_add_u32 v9, s{S_T0}, v0", "v_mul_u32_u24 v10, 0xab, v9", "v_lshrrev_b32 v10, 9, v10", "v_mul_u32_u24 v10, 12, v10",
          "v_lshlrev_b32 v9, 4, v9", "v_sub_u32 v9, v9, v10")
        a(f"s_and_b32 s{S_T4}, s{S_HG}, 2", f"s_lshl_b32 s{S_T4}, s{S_T4}, 1", f"s_add_u32 s{S_T4}, s{S_T4}, s{S_I}",
          f"s_lshl_b32 s{S_T5}, s{S_PG}, 3", f"s_add_u32 s{S_XB}, s{S_T5}, s{S_T4}", f"s_mul_i32 s{S_XB}, s{S_XB}, {8*1152}",
          f"s_mul_i32 s{S_XM}, s{S_T4}, 9216", f"s_add_u32 s{S_XM}, s{S_XM}, {L_X}", f"s_lshl_b32 s{S_T0}, s{S_I}, 10", f"s_add_u32 s{S_T0}, s{S_T0}, {L_W}",
          f"s_lshr_b32 s{S_T1}, s{S_HG}, 1", f"s_movk_i32 s{S_DI}, 3072", f"s_movk_i32 s{S_DS}, 2304",
          f"s_cmp_lt_u32 s{S_WAVE}, 4", "s_cselect_b64 vcc, -1, 0", f"s_cselect_b32 s{S_XB}, s{S_XB}, 0", f"s_cselect_b32 s{S_XM}, s{S_XM}, s{S_T0}",
          f"s_cselect_b32 s{S_T1}, s{S_HG}, s{S_T1}", f"s_cselect_b32 s{S_DI}, 1024, s{S_DI}", f"s_cselect_b32 s{S_DS}, 128, s{S_DS}",
          "v_cndmask_b32 v9, v9, v8, vcc")
        self.dma9_setup(S_T1)
        a("s_waitcnt lgkmcnt(0)", f"s_cmp_eq_u32 s{S_B}, 0", f"s_cselect_b64 s[{R_X}:{R_X+1}], s[16:17], s[26:27]",
          f"s_cselect_b64 s[20:21], s[20:21], s[30:31]", f"s_cselect_b64 s[22:23], s[22:23], s[32:33]",
          f"s_cselect_b64 s[{R_WQ}:{R_WQ+1}], s[18:19], s[28:29]", f"s_cselect_b64 s[{R_WO}:{R_WO+1}], s[24:25], s[34:35]",
          f"s_bitcmp0_b32 s{S_HG}, 0", f"s_cselect_b64 s[{R_W}:{R_W+1}], s[20:21], s[22:23]", f"s_mov_b32 s{R_X+2}, 2359296", f"s_movk_i32 s{R_W+2}, 20736",
          f"s_cmp_lt_u32 s{S_WAVE}, 4", f"s_cselect_b64 s[{R_W}:{R_W+1}], s[{R_X}:{R_X+1}], s[{R_W}:{R_W+1}]", f"s_cselect_b32 s{R_W+2}, s{R_X+2}, s{R_W+2}",
          f"s_mov_b32 s{R_W+3}, 0x20000", f"s_mov_b32 s{R_X+3}, 0x20000")
        self.stamp(1, 2)
        a(f"s_cmp_lt_u32 s{S_WAVE}, 4", "s_cbranch_scc1 L_r1", "s_setprio 1", f"s_cmp_eq_u32 s{S_WAVE}, 7", "s_cbranch_scc1 L_late", "L_r1:")
        self.dma9(R_W, 9)
        a(f"s_cmp_ge_u32 s{S_WAVE}, 4", "s_cbranch_scc1 L_late")

    def wq_prefetch(self, n, first):
        a = self.a
        a(f"s_mov_b32 s{R_WQ+2}, 663552", f"s_mov_b32 s{R_WQ+3}, 0x20000", "v_lshlrev_b32 v30, 7, v0", f"s_lshr_b32 s{S_T0}, s2, 3", f"s_mul_i32 s{S_T0}, s{S_T0}, 20736")
        if first:
            a(f"s_mul_i32 s{S_T1}, s{first}, 6912", f"s_add_u32 s{S_T0}, s{S_T0}, s{S_T1}")
        a("s_mov_b32 exec_hi, 0x3fffff")
        for k in range(n):
            a(f"buffer_load_dword v{108+k}, v30, s[{R_WQ}:{R_WQ+3}], s{S_T0} offen", f"s_add_u32 s{S_T0}, s{S_T0}, 6912")
        a("s_mov_b32 exec_hi, -1")

    def dma9_setup(self, sel):
        self.a(f"s_bitcmp1_b32 s{sel}, 0", f"s_cselect_b32 s{S_XI}, 5, 0",
               f"s_add_u32 s{S_XS}, s{S_XI}, s{S_GI}", f"s_cmp_ge_u32 s{S_XS}, 9", f"s_cselect_b32 s{S_T0}, 9, 0", f"s_sub_u32 s{S_XS}, s{S_XS}, s{S_T0}",
               f"s_mul_i32 s{S_XS}, s{S_XS}, s{S_DS}", f"s_mul_i32 s{S_XI}, s{S_XI}, s{S_DI}", f"s_mul_i32 s{S_LI}, s{S_DI}, 9", f"s_mul_i32 s{S_LS}, s{S_DS}, 9")

    def dma9(self, srd_, v):
        for i in range(9):
            self.a(f"s_add_u32 m0, s{S_XM}, s{S_XI}", f"s_add_u32 s{S_T3}, s{S_XB}, s{S_XS}",
                   f"buffer_load_dwordx4 v{v}, s[{srd_}:{srd_+3}], s{S_T3} offen lds")
            if i < 8:
                self.a(f"s_add_u32 s{S_XS}, s{S_XS}, s{S_DS}", f"s_cmp_eq_u32 s{S_XS}, s{S_LS}", f"s_cselect_b32 s{S_XS}, 0, s{S_XS}",
                       f"s_add_u32 s{S_XI}, s{S_XI}, s{S_DI}", f"s_cmp_eq_u32 s{S_XI}, s{S_LI}", f"s_cselect_b32 s{S_XI}, 0, s{S_XI}")

    def table_load(self):
        self.a(f"s_add_u32 s{S_T0}, s42, L_table-L_pc", f"s_addc_u32 s{S_T1}, s43, 0",
               f"v_mov_b32 v7, s{S_T1}", f"v_add_co_u32 v6, vcc, s{S_T0}, v1", "s_nop 1", "v_addc_co_u32 v7, vcc, 0, v7, vcc", "s_nop 0",
               "global_load_dwordx4 v[20:23], v[6:7], off")

    def wq_setup(self, d, part=3):
        a = self.a
        if part & 1:
            a(f"s_mov_b32 s{R_WQ+2}, 663552", f"s_mov_b32 s{R_WQ+3}, 0x20000", f"s_lshl_b32 s{S_T0}, s{S_I}, 6", f"s_mul_i32 s{S_T1}, s{S_HG}, 288", "v_mov_b32 v16, 0x480")
        for t in range(3 if part & 1 else 0):
            a(f"v_add_u32 v13, s{S_T0}, v0", "v_mul_u32_u24 v14, 0xe39, v13", "v_lshrrev_b32 v14, 16, v14",
              "v_mul_u32_u24 v15, 18, v14", "v_sub_u32 v13, v13, v15", "v_lshlrev_b32 v13, 4, v13",
              "v_bfe_u32 v15, v14, 1, 2", "v_and_b32 v17, 1, v14", "v_lshl_add_u32 v15, v17, 2, v15", "v_and_b32 v14, 24, v14", "v_add_u32 v14, v14, v15",
              "v_mad_u32_u24 v13, v14, v16, v13", f"v_add_u32 v{10+t}, s{S_T1}, v13")
            if t < 2:
                a(f"s_add_u32 s{S_T0}, s{S_T0}, 192")
        if not part & 2:
            return
        a(f"s_lshl_b32 s{S_M0A}, s{S_I}, 10", f"s_mul_i32 s{S_ROW}, s{S_GI}, {64*1152}")
        if d:
            a(f"s_add_u32 s{S_ROW}, s{S_ROW}, {32*d*1152}", f"s_cmp_ge_u32 s{S_ROW}, {576*1152}",
              f"s_cselect_b32 s{S_T0}, {576*1152}, 0", f"s_sub_u32 s{S_ROW}, s{S_ROW}, s{S_T0}")

    def wq_list(self, d):
        n = self.nlab = getattr(self, 'nlab', 0) + 1
        s0 = dslot(d)
        ld = lambda r: f"buffer_load_dwordx4 v{r}, s[{R_WQ}:{R_WQ+3}], s{S_ROW} offen lds"
        return [f"s_cbranch_vccz L_wq{n}",
                f"s_add_u32 m0, s{S_M0A}, {s0}", f"s_add_u32 s{S_T0}, s{S_ROW}, {32*1152}", ld(10),
                f"s_add_u32 m0, s{S_M0A}, {s0+3072}", "s_nop 0", ld(11),
                f"s_add_u32 m0, s{S_M0A}, {s0+6144}", f"s_cmp_ge_u32 s{S_T0}, {576*1152}", ld(12),
                f"s_cselect_b32 s{S_T1}, {576*1152}, 0", f"s_sub_u32 s{S_ROW}, s{S_T0}, s{S_T1}", f"L_wq{n}:"]

    def wq_dma(self, d):
        self.a(self.wq_list(d))

    def loader_flag(self):
        self.a(f"s_cmp_lt_u32 s{S_I}, 3", "s_cselect_b64 vcc, -1, 0")

    @property
    def GROUPS(self):
        if self.o['pre'] == 5:
            return [(3, 2), (5, 6), (7, 10), (9, 14), (11, 18), (13, 22), (15, 26), (17, 30)]
        if self.o['pre'] == 1:
            return [(3, 2), (5, 6), (7, 10), (9, 14), (11, 18), (13, 22), (15, 26), (17, 30)]
        if self.o['pre'] == 2:
            return [(2, 2), (3, 4), (5, 6), (7, 10), (9, 14), (11, 18), (13, 22), (15, 26), (17, 30)]
        return [(3, 2), (5, 6), (7, 10), (9, 14), (11, 18), (13, 22), (15, 26), (17, 30)]

    def early_front(self):
        a, o = self.a, self.o
        self.stamp(2, 2)
        if o['spf'] == 5:
            a(f"s_cmp_lg_u32 s{S_WAVE}, 3", "s_cbranch_scc1 L_nospf", "s_waitcnt vmcnt(6)")
            self.wq_prefetch(3, None)
            a("L_nospf:")
        self.table_load()
        self.wq_setup(o['l01'])
        self.loader_flag()
        if not o['d0l']:
            self.wq_dma(0)
        self.rest_srds()
        a("v_and_b32 v16, 31, v0", "v_lshrrev_b32 v13, 5, v0", "v_bfe_u32 v14, v0, 1, 3", "v_xor_b32 v13, v13, v14", "v_lshlrev_b32 v13, 4, v13",
          "v_and_b32 v14, 7, v0", "v_lshl_add_u32 v13, v14, 7, v13", "v_lshrrev_b32 v16, 3, v16", "v_mul_u32_u24 v16, 0x2400, v16",
          f"s_mul_i32 s{S_T0}, s{S_PBI}, {4*9216}", f"s_add_u32 s{S_T0}, s{S_T0}, {L_X}", f"v_add3_u32 v8, v16, v13, s{S_T0}",
          "v_xor_b32 v9, 32, v8", "v_xor_b32 v108, 64, v8", "v_xor_b32 v109, 0x60, v8")
        a("v_bfe_u32 v18, v0, 2, 2", "v_lshrrev_b32 v15, 5, v0", "v_lshlrev_b32 v15, 2, v15", "v_add_u32 v15, v15, v18", "v_mul_u32_u24 v15, 0x240, v15",
          f"s_mul_i32 s{S_T0}, s{S_HQ}, 144", "v_and_b32 v13, 1, v0", "v_lshl_add_u32 v15, v13, 4, v15", f"v_add_u32 v15, s{S_T0}, v15",
          "v_bfe_u32 v13, v0, 1, 1", "v_bfe_u32 v14, v0, 4, 1", "v_lshl_add_u32 v6, v13, 3, v15", "v_lshl_add_u32 v6, v14, 5, v6",
          "v_mul_u32_u24 v13, 72, v13", "v_add3_u32 v7, v13, v15, 48")
        if o['ks2']:
            a(f"s_mul_i32 s{S_T0}, s{S_HQ}, -288", f"s_add_u32 s{S_T0}, s{S_T0}, 144", f"v_mul_i32_i24 v13, s{S_T0}, v14", "v_add_u32 v7, v7, v13")
        elif o['z2']:
            a("v_lshl_add_u32 v7, v14, 20, v7")
        a(f"s_mul_i32 s{S_T0}, s{S_WAVE}, 2560", f"v_add_u32 v17, s{S_T0}, v1", "v_lshlrev_b32 v18, 3, v0", f"v_add_u32 v18, s{S_T0}, v18",
          f"v_mov_b32 v{V_IDX}, 0xdddddddd", f"v_add_u32 v{V_AK}, {L_KV}, v1", f"v_lshlrev_b32 v{V_AR}, 2, v0", f"v_add_u32 v{V_AR}, {L_KV+2048}, v{V_AR}",
          "v_mov_b32 v110, 0", "v_mov_b32 v111, 0", f"v_mov_b32 v19, {L_KMAX}")
        if o['d0l']:
            a("s_waitcnt vmcnt(1)")
        else:
            a(f"s_cmp_eq_u32 s{S_WAVE}, 3", "s_cbranch_scc0 L_e3", f"s_waitcnt vmcnt({4 if o['spf'] == 5 else 1})", "L_e3:", "s_waitcnt vmcnt(4)")
        self.stamp(3, 2)
        a("s_barrier")
        PRE = o['pre']
        for d in range(o['l01'], PRE + 1):
            self.wq_dma(d)
        a(f"s_cmp_eq_u32 s{S_WAVE}, 3", "s_cbranch_scc0 L_e4", "s_waitcnt vmcnt(0)", "L_e4:", f"s_waitcnt vmcnt({3*(PRE-1)})", f"v_mov_b32 v{V_AV}, v20", "v_mov_b32 v21, 0x3f803f80")
        self.stamp(1)
        self.stamp(4, 2)
        a("s_barrier")
        self.stamp(5, 2)
        XF = 112
        T0, T1, TR, TR2 = 24, 40, 56, 128
        KX = 26
        PD = o['pd']
        FB = [72, 84, 96]
        state = dict(base=0)

        def rd(ks):
            x = []
            off = slot_addr(ks) - state['base']
            if off < 0 or off + 360 > 65535:
                d = slot_addr(ks) - state['base']
                x += [f"v_add_u32 v{r}, {d}, v{r}" if d > 0 else f"v_subrev_u32 v{r}, {-d}, v{r}" for r in (6, 7)]
                state['base'] = slot_addr(ks)
                off = 0
            f = FB[ks % (PD + 1)]
            return x, [f"ds_read_b64_tr_b16 {vr(f,2)}, v6 offset:{off}", f"ds_read_b64_tr_b16 {vr(f+2,2)}, v6 offset:{off+288}",
                       f"ds_read_b64_tr_b16 {vr(f+4,2)}, v6 offset:{off+72}", f"ds_read_b64_tr_b16 {vr(f+6,2)}, v6 offset:{off+360}",
                       f"ds_read_b64_tr_b16 {vr(f+8,2)}, v7 offset:{off}", f"ds_read_b64_tr_b16 {vr(f+10,2)}, v7 offset:{off+288}"]

        def mm(ks, first2):
            f = FB[ks % (PD + 1)]
            c = "0" if ks == 0 else None
            if o['ks2'] and ks >= KX:
                m2 = K16(TR2, f + 8, XF + 4 * ks, vr(TR, 16) if ks == KX else None)
            else:
                m2 = K16(TR, f + 8, XF + 4 * ks, "0" if first2 else None)
            return [K16(T0, f, XF + 4 * ks, c), K16(T1, f + 4, XF + 4 * ks, c), m2]

        def kloop(par):
            state['base'] = 0
            nt = lambda ks: 2 if (o['ks2'] and ks < KX and ks % 2 != par) else 3
            XA = [8, 9, 108, 109]
            q = []

            def issue(tag, ins):
                a(ins)
                q.append(tag)

            def need(*tags):
                last = max((i for i, t in enumerate(q) if t in tags), default=-1)
                if last >= 0:
                    left = len(q) - 1 - last
                    a(f"s_waitcnt lgkmcnt({min(left, 14)})")
                    del q[:last + 1]

            def xrd(i):
                issue(('x', i), f"ds_read_b128 {vr(XF+4*i,4)}, v{XA[i&3]} offset:{(i>>2)*1024}")
            xrd(0)
            for j, r in enumerate(rd(0)[1][:2*nt(0)]):
                issue(('w', 0, j >> 1), r)
            xrd(1)
            for j, r in enumerate(rd(1)[1][:2*nt(1)]):
                issue(('w', 1, j >> 1), r)
            nx = 2
            G = [k for _, k in self.GROUPS]
            ev = {k: ["s_barrier"] for k in G}
            prev = 1
            for last, k in self.GROUPS:
                if prev < PRE:
                    ev[k] = [f"s_waitcnt vmcnt({3*max(PRE-last, 0)})", "s_barrier"]
                prev = last
            for ks in range(36):
                m = mm(ks, ks == par)
                if ks in ev:
                    if ks == 6:
                        need(('x', 35))
                        assert nx == 36 and not any(t[0] == 'x' for t in q)
                    if len(ev[ks]) > 1 and o["stamps"]:
                        a(ev[ks][0])
                    if ks in (2, 6, 10, 14, 22, 30):
                        self.stamp(1 + (2, 6, 10, 14, 22, 30).index(ks), 3)
                    if ks == 30:
                        need('e')
                    a(ev[ks])
                    if ks == 6:
                        self.stamp(2)
                        self.stamp(6, 2)
                pre, n = rd(ks + 2) if ks + 2 < 36 else ([], [])
                fine = nx < 36 or ks == 35
                if not fine:
                    need(('x', ks), ('w', ks, nt(ks) - 1))
                for t in range(3):
                    if t < nt(ks):
                        if fine:
                            need(('x', ks), ('w', ks, t))
                        a(m[t])
                    if t == 0:
                        a(pre)
                    for k in range(o['xper']):
                        if nx < 36:
                            xrd(nx)
                            nx += 1
                    if t < nt(ks + 2):
                        for r in n[2*t:2*t+2]:
                            issue(('w', ks + 2, t), r)
                if o['ks2'] and ks == KX + 2:
                    issue('e', f"ds_write_b128 v13, {vr(TR+8,4)}")
                    issue('e', f"ds_write_b128 v13, {vr(TR+12,4)} offset:1024")
                if o['ks2'] and ks == 31:
                    issue('i', f"ds_read_b128 {vr(XF,4)}, v14")
                    issue('i', f"ds_read_b128 {vr(XF+4,4)}, v14 offset:1024")
            assert not [t for t in q if t != 'i'] and True
            need('i')
        if o['ks2']:
            a(f"s_mul_i32 s{S_T0}, s{S_WAVE}, 2048", f"s_add_u32 s{S_T0}, s{S_T0}, {L_T2X}", f"v_add_u32 v13, s{S_T0}, v1", "v_xor_b32 v14, 0x1000, v13",
              f"s_cmp_eq_u32 s{S_HQ}, 1", "s_cbranch_scc1 L_kodd")
            kloop(0)
            a("s_branch L_kdone", "L_kodd:")
            kloop(1)
            a("L_kdone:")
        else:
            kloop(0)
        self.stamp(3)
        self.stamp(3, 6)
        H = 96
        a("v_mov_b32 v22, v17", "v_mov_b32 v23, v18", "v_mov_b32 v7, v19", f"v_mov_b32 v{KR[0]+1}, 0x3f803f80", f"s_mov_b32 s{S_BAR}, {32//o['unp'] - o['barit']}", f"s_mov_b32 s{S_STG}, 0", f"s_mov_b32 s{S_SAME}, 0")
        a("s_mov_b32 vcc_lo, 0", "s_mov_b32 vcc_hi, -1")
        for (dst, t) in ((QM[0], T0), (H, T1)):
            for j, r in enumerate((0, 2, 4, 6, 10, 12, 14)):
                a(f"v_cvt_pk_bf16_f32 v{dst+j}, v{t+r}, v{t+r+1}")
        if o['ks2']:
            a([f"v_add_f32 v{TR+k}, v{TR2+k}, v{XF+k}" for k in range(8)])
        for (dst, qr, t, t2, tmp) in ((H, H + 8, T1, TR + 4, 107), (QM[0], QR, T0, TR, 108)):
            a(f"v_cvt_pk_bf16_f32 v{dst+7}, v{t2}, v{t2+1}", f"v_cvt_pk_bf16_f32 v{qr}, v{t+8}, v{t+9}", f"v_cvt_pk_bf16_f32 v{tmp}, v{t2+2}, v{t2+3}")
        a(f"v_cndmask_b32 v{H+8}, v{H+8}, v107, vcc", f"v_cndmask_b32 v{QR}, v{QR}, v108, vcc")
        a(f"ds_write_b128 v22, {vr(H,4)}", f"ds_write_b128 v22, {vr(H+4,4)} offset:1024")
        if o['lnorm']:
            a(f"ds_write_b64 v23, {vr(H+8,2)} offset:2048")
        else:
            self.norm2((H, H + 8, H + 9, 107), (QM[0], QR, QR + 1, 108))
            a(f"ds_write_b64 v23, {vr(H+8,2)} offset:2048")
        a(K8Z(O[0], 110), K8Z(O[1], 110))
        if o['vexec']:
            self.init_v()
            a([f"v_mov_b32 v{r}, 0" for r in range(S[1] + 24, S[1] + 32)])
        if o['dly']:
            a("s_memrealtime s[18:19]", "L_dly:", "s_memrealtime s[16:17]", "s_waitcnt lgkmcnt(0)", "s_sub_u32 s16, s16, s18", f"s_cmp_lt_u32 s16, {o['dly']}", "s_cbranch_scc1 L_dly")
        a("s_waitcnt lgkmcnt(0)")
        self.stamp(1, 6)
        a("s_barrier")
        self.stamp(2, 6)
        a("ds_read_b32 v6, v7")
        self.main_prologue_loads()
        if o['lnorm']:
            self.norm1(QM[0], QR, QR + 1, 108)
        if not o['vexec']:
            a([f"v_mov_b32 v{r}, 0" for r in range(VV[1][1], VV[1][1] + 4)])
        if o['prio']:
            a("s_setprio 3")
        a("s_waitcnt lgkmcnt(0)")

    def late_front(self):
        a, o = self.a, self.o
        a.label("L_late")
        a("s_setprio 0")
        if o['spf'] == 3:
            a(f"s_cmp_lg_u32 s{S_WAVE}, 7", "s_cbranch_scc1 L_nospf")
            self.wq_prefetch(3, None)
            a("L_nospf:")
        if o['spf'] == 4:
            a(f"s_cmp_eq_u32 s{S_WAVE}, 7", "s_cbranch_scc1 L_nospf")
            self.wq_prefetch(1, S_I)
            a("L_nospf:")
        self.stamp(2, 2)
        self.rest_srds()
        if o['shard']:
            a("v_and_b32 v160, 7, v0", "v_lshlrev_b32 v160, 9, v160", f"s_cmp_lg_u32 s{S_WAVE}, 7", "s_cbranch_scc1 L_nov0", f"s_mov_b32 s{S_T0}, {WS_CNT}",
              f"buffer_load_dword v161, v160, s[{R_WS}:{R_WS+3}], s{S_T0} offen sc0 sc1", "L_nov0:")
        self.wq_setup(6, 1)
        a(f"s_xor_b32 s{S_T4}, s{S_T4}, 4", f"s_add_u32 s{S_XB}, s{S_T5}, s{S_T4}", f"s_mul_i32 s{S_XB}, s{S_XB}, {8*1152}",
          f"s_mul_i32 s{S_XM}, s{S_T4}, 9216", f"s_add_u32 s{S_XM}, s{S_XM}, {L_X}", f"s_movk_i32 s{S_DI}, 1024", f"s_movk_i32 s{S_DS}, 128")
        a("v_and_b32 v13, 15, v0", "v_lshrrev_b32 v16, 4, v0",
          "v_bfe_u32 v17, v0, 1, 3", "v_xor_b32 v17, v16, v17", "v_lshlrev_b32 v17, 4, v17",
          "v_and_b32 v18, 7, v0", "v_lshl_add_u32 v17, v18, 7, v17", "v_bfe_u32 v18, v0, 3, 1", "v_mul_u32_u24 v18, 0x2400, v18",
          f"s_lshr_b32 s{S_T0}, s{S_HG}, 1", f"s_lshl_b32 s{S_T0}, s{S_T0}, 1", f"s_add_u32 s{S_T0}, s{S_T0}, s{S_PBI}",
          f"s_mul_i32 s{S_T1}, s{S_T0}, {2*9216}", f"s_add_u32 s{S_T1}, s{S_T1}, {L_X}", f"v_add3_u32 v14, v17, v18, s{S_T1}", "v_xor_b32 v15, 64, v14",
          "v_bfe_u32 v17, v0, 2, 2", "v_lshl_add_u32 v17, v16, 3, v17",
          "v_mul_u32_u24 v17, 48, v17", "v_and_b32 v18, 3, v0", "v_lshlrev_b32 v18, 3, v18",
          f"s_cmp_eq_u32 s{S_HQ}, 0", "s_cselect_b64 vcc, -1, 0", "v_mov_b32 v19, 32", "v_cndmask_b32 v18, v19, v18, vcc", f"v_add_u32 v17, {L_W}, v17", "v_add_u32 v17, v17, v18")
        a("v_lshrrev_b32 v19, 5, v0", "v_lshlrev_b32 v19, 9, v19", "v_lshl_add_u32 v19, v13, 4, v19",
          "v_bfe_u32 v18, v0, 4, 1", "v_lshl_add_u32 v28, v18, 3, v19", "v_lshlrev_b32 v29, 2, v13",
          f"s_mul_i32 s{S_KVS}, s{S_PG}, {PB}", f"s_mov_b32 s{S_OEX}, s{S_T0}")
        self.dma9_setup(S_HG)
        self.dma9(R_X, 8)
        self.stamp(3, 2)
        self.table_load()
        if o['spf'] == 2:
            a(f"s_cmp_lg_u32 s{S_WAVE}, 7", "s_cbranch_scc1 L_nospf")
            self.wq_prefetch(3, None)
            a("L_nospf:")
        if o['l01']:
            self.wq_setup(0, 2)
            self.loader_flag()
            for d in range(o['l01']):
                self.wq_dma(d)
        a("s_setprio 1", f"s_waitcnt vmcnt({10 + 3 * o['l01']})")
        self.stamp(1)
        self.stamp(4, 2)
        a("s_barrier")
        a(f"s_bitcmp1_b32 s{S_HG}, 0", "s_cbranch_scc1 L_vproj")
        D = 32
        NB = o['nb']
        for isv in (0, 1):
            if isv:
                a.label("L_vproj")

            def rd(s):
                xb = 40 + 8 * (s % NB)
                return [f"ds_read_b128 {vr(xb,4)}, v{14+(s&1)} offset:{(s>>1)*1024}",
                        f"ds_read_b64_tr_b16 {vr(xb+4,2)}, v17 offset:{s*1536}", f"ds_read_b64_tr_b16 {vr(xb+6,2)}, v17 offset:{s*1536+192}"]
            for s in range(NB - 1):
                a(rd(s))
            for s in range(18):
                if s == o['sb']:
                    a("s_waitcnt vmcnt(0)", "s_barrier")
                if s == 17 and o['sb'] == 18 and not o['l01']:
                    a("s_waitcnt vmcnt(0)")
                if s + NB - 1 < 18:
                    a(rd(s + NB - 1))
                left = min(18 - 1 - s, NB - 1)
                xb = 40 + 8 * (s % NB)
                c = "0" if s == 0 else None
                a(f"s_waitcnt lgkmcnt({min(15,3*left)})", M16(D, xb, xb + 4, c) if isv else M16(D, xb + 4, xb, c))
            g = S_OEX
            if not isv:
                a(f"s_lshr_b32 s{S_T0}, s{g}, 1", f"s_lshl_b32 s{S_T0}, s{S_T0}, 10", f"s_lshl_b32 s{S_T1}, s{S_PBI}, 8", f"s_add_u32 s{S_T0}, s{S_T0}, s{S_T1}",
                  f"s_add_u32 s{S_T0}, s{S_T0}, s{S_KVS}",
                  f"s_lshl_b32 s{S_T1}, s{g}, 6", f"s_add_u32 s{S_T1}, s{S_T1}, s{S_KVS}", f"s_add_u32 s{S_T1}, s{S_T1}, 2048",
                  f"s_mov_b32 s{S_T2}, {hex(f2u(CSCALE))}")
                for r in range(4):
                    a(f"v_mul_f32 v{D+r}, s{S_T2}, v{D+r}")
                a(f"v_cvt_pk_bf16_f32 v{D}, v{D}, v{D+1}", f"v_cvt_pk_bf16_f32 v{D+1}, v{D+2}, v{D+3}",
                  f"s_lshl_b32 s{S_T3}, s{S_PG}, 2", f"s_add_u32 s{S_T3}, s{S_T3}, s{g}", f"s_lshl_b32 s{S_T3}, s{S_T3}, 2", f"s_add_u32 s{S_T3}, s{S_T3}, {WS_KN}",
                  f"v_dot2_f32_bf16 v36, v{D}, v{D}, 0",
                  f"s_cmp_eq_u32 s{S_HQ}, 0", "s_cbranch_scc0 L_krem",
                  f"buffer_store_dwordx2 {vr(D,2)}, v28, s[{R_WS}:{R_WS+3}], s{S_T0} offen sc1",
                  f"v_dot2_f32_bf16 v36, v{D+1}, v{D+1}, v36", "s_nop 2", "v_mov_b32 v37, v36", "s_nop 1",
                  "v_permlane16_swap_b32 v36, v37", "s_nop 1", "v_add_f32 v36, v36, v37", "s_nop 0", "v_mov_b32 v37, v36", "s_nop 1",
                  "v_permlane32_swap_b32 v36, v37", "s_nop 1", "v_add_f32 v36, v36, v37", "s_branch L_knorm",
                  "L_krem:", "s_mov_b64 exec, 0xffff",
                  f"buffer_store_dword v{D}, v29, s[{R_WS}:{R_WS+3}], s{S_T1} offen sc1", "s_mov_b64 exec, -1", f"s_add_u32 s{S_T3}, s{S_T3}, 512",
                  "L_knorm:", "s_nop 1")
                self.row_max16(36)
                a("v_mov_b32 v37, 0", "s_mov_b64 exec, 1", f"buffer_store_dword v36, v37, s[{R_WS}:{R_WS+3}], s{S_T3} offen sc1", "s_mov_b64 exec, -1")
                if o['l01']:
                    a("s_waitcnt vmcnt(2)")
                a("s_branch L_kvdone")
            else:
                a(f"s_mul_i32 s{S_T0}, s{g}, {VG}", f"s_add_u32 s{S_T0}, s{S_T0}, s{S_KVS}", f"s_add_u32 s{S_T0}, s{S_T0}, 2304",
                  "v_cmp_eq_u32 vcc, 2, v13", f"v_cmp_eq_u32 s[{S_EX}:{S_EX+1}], 3, v13", "v_mov_b32 v30, 0x3f803f80", "s_nop 0",
                  f"s_cmp_eq_u32 s{S_HQ}, 0",
                  f"v_cvt_pk_bf16_f32 v{D}, v{D}, v{D+1}", f"v_cvt_pk_bf16_f32 v{D+1}, v{D+2}, v{D+3}", "s_cbranch_scc0 L_vrem",
                  f"buffer_store_dwordx2 {vr(D,2)}, v21, s[{R_WS}:{R_WS+3}], s{S_T0} offen sc1", "s_branch L_vdone",
                  "L_vrem:",
                  f"v_cndmask_b32 v{D}, v{D}, v30, vcc", f"v_cndmask_b32 v{D+1}, v{D+1}, v30, vcc",
                  f"v_cndmask_b32 v{D}, v{D}, 0, s[{S_EX}:{S_EX+1}]", f"v_cndmask_b32 v{D+1}, v{D+1}, 0, s[{S_EX}:{S_EX+1}]",
                  "s_mov_b32 exec_lo, 0x000f000f", "s_mov_b32 exec_hi, 0x000f000f",
                  f"buffer_store_dwordx2 {vr(D,2)}, v22, s[{R_WS}:{R_WS+3}], s{S_T0} offen sc1", "s_mov_b64 exec, -1", "L_vdone:")
                if o['l01']:
                    a("s_waitcnt vmcnt(1)")
        a.label("L_kvdone")
        if o['xcc']:
            a("s_getreg_b32 s29, hwreg(HW_REG_XCC_ID, 0, 4)", f"s_cmp_lg_u32 s{S_WAVE}, 4", "s_cbranch_scc1 L_noxid",
              f"s_lshl_b32 s{S_T0}, s{S_PG}, 2", f"s_add_u32 s{S_T0}, s{S_T0}, s{S_HG}", f"s_lshl_b32 s{S_T0}, s{S_T0}, 2", f"s_add_u32 s{S_T0}, s{S_T0}, {WS_XID}",
              "v_mov_b32 v38, s29", "v_mov_b32 v39, 0", "s_mov_b64 exec, 1", f"buffer_store_dword v38, v39, s[{R_WS}:{R_WS+3}], s{S_T0} offen sc1", "s_mov_b64 exec, -1", "L_noxid:")
        self.stamp(2)
        self.stamp(5, 2)
        a(f"v_mov_b32 v{V_AV}, v20")
        self.wq_setup(o['pre'] + 1, 2)
        self.loader_flag()
        a("v_mov_b32 v100, 1", "v_mov_b32 v101, 0")
        if o['sb'] == 18:
            a("s_barrier")
        nxt = first = o['pre'] + 1
        NG = len(self.GROUPS)
        passed = -1
        signalled = False
        for gi_, (last, step) in enumerate(self.GROUPS):
            lim = 5 if passed < 2 else 8 if passed < 6 else 16 if passed < 14 else 17
            tgt = min(last + o['win'], lim)
            while nxt <= tgt:
                self.wq_dma(nxt)
                nxt += 1
            assert nxt > last
            if step == 14:
                self.wo_job_addr(0)
                self.poison_addr()
            if step == 18:
                a(f"s_cmp_ge_u32 s{S_OEX}, {648-512}", "s_cselect_b32 s16, 0, 512", f"s_add_u32 s{S_OEX}, s{S_OEX}, s16")
                self.wo_job_addr(1)
                self.loader_flag()
            if gi_ == NG - 3:
                self.init_main_regs()
                a(f"s_and_b32 s{S_T0}, s{S_GI}, 3", f"s_mul_i32 s{S_KVS}, s{S_T0}, {37*1024}", f"s_add_u32 s{S_KVS}, s{S_KVS}, s{S_M0A}",
                  "v_lshlrev_b32 v153, 3, v0", f"s_mov_b32 s{S_T4}, {WS_KN}", f"s_lshl_b32 s{S_T5}, s{S_B}, 7")
            sig = last >= first and not signalled
            if sig:
                a(f"s_cbranch_vccnz L_l{gi_}", "s_waitcnt vmcnt(0)", f"L_l{gi_}:")
                signalled = True
            if last >= first:
                a(f"s_waitcnt vmcnt({3*(nxt-1-last)})")
            passed = step
            if step == 10:
                a(f"v_mov_b32 v150, {L_FLAG}", "v_mov_b32 v152, 0", "v_mov_b32 v153, 0", "v_mov_b32 v154, 0", "v_mov_b32 v155, 0", "v_mov_b32 v151, 0", "ds_write_b128 v150, v[152:155]", "s_waitcnt lgkmcnt(0)")
            if gi_ == NG - 3 and o['tre']:
                a("s_cbranch_vccnz L_try1", f"s_mov_b32 s{S_T0}, {WS_CNT}", f"buffer_load_dword v152, v160, s[{R_WS}:{R_WS+3}], s{S_T0} offen sc0 sc1", "L_try1:")
            if gi_ == NG - 2:
                assert nxt == 18
                if o['shard']:
                    a("s_cbranch_vccnz L_try0")
                    if not o['tre']:
                        a(f"s_mov_b32 s{S_T0}, {WS_CNT}", f"buffer_load_dword v152, v160, s[{R_WS}:{R_WS+3}], s{S_T0} offen sc0 sc1")
                    a("s_waitcnt vmcnt(0)",
                      "v_cmp_ne_u32 s[16:17], v152, v161", "s_cmp_eq_u64 s[16:17], 0", "s_cselect_b32 s16, 1, 0", "v_mov_b32 v152, s16", "ds_write_b32 v150, v152", "s_waitcnt lgkmcnt(0)", "L_try0:")
                else:
                    a("s_cbranch_vccnz L_try0", f"buffer_load_dword v152, v151, s[{R_DBG}:{R_DBG+3}], s{S_T5} offen sc0 sc1", "s_waitcnt vmcnt(0)",
                      "v_lshrrev_b32 v152, 7, v152", "ds_write_b32 v150, v152", "s_waitcnt lgkmcnt(0)", "L_try0:")
            if step in (2, 6, 10, 14, 22):
                self.stamp(1 + (2, 6, 10, 14, 22).index(step), 3)
            a("s_barrier")
            if sig:
                self.kv_signal()
            if gi_ == NG - 2:
                break
        kn = [f"s_cmp_lg_u32 s{S_WAVE}, 7", None, f"buffer_load_dwordx2 v[154:155], v153, s[{R_WS}:{R_WS+3}], s{S_T4} offen sc1",
              f"buffer_load_dwordx2 v[156:157], v153, s[{R_WS}:{R_WS+3}], s{S_T4} offen offset:512 sc1"]
        a("ds_read_b32 v152, v150", "s_waitcnt lgkmcnt(0)", "v_cmp_eq_u32 vcc, 0, v152", "s_cbranch_vccnz L_notyet")
        self.stamp(4)
        a(kn[0], "s_cbranch_scc1 L_kna", kn[2:], "L_kna:")
        self.kv_dma(0, o['ka'])
        a(f"s_cmp_eq_u32 s{S_WAVE}, 7", "s_cbranch_scc1 L_knb", f"s_waitcnt vmcnt({o['ka']})", "L_knb:")
        self.stamp(6, 3)
        a("s_barrier")
        self.kv_dma(4 * o['ka'], o['kv1'] - o['ka'])
        a("s_branch L_first")
        a("L_notyet:", "s_waitcnt vmcnt(0)")
        self.stamp(6, 3)
        a("s_barrier")
        a(f"s_mov_b32 s{S_CNT}, {SPIN_L}", f"s_cmp_lg_u32 s{S_WAVE}, 7", "s_cbranch_scc1 L_relay", f"s_mov_b32 s{S_CNT}, {SPIN}")
        if o['shard']:
            a(f"s_mov_b32 s{S_T0}, {WS_CNT}", "L_poll1:", f"buffer_load_dword v152, v160, s[{R_WS}:{R_WS+3}], s{S_T0} offen sc0 sc1",
              f"s_cmp_gt_u32 s{S_CNT}, {SPIN - 4}", "s_cbranch_scc1 L_pf", f"s_cmp_lg_u32 s{S_CNT}, {SPIN - o['nslow']}", "s_cbranch_scc1 L_ps",
              "s_mov_b64 exec, 1", f"buffer_atomic_add v100, v101, s[{R_DBG}:{R_DBG+3}], s{S_T5} offen sc1", "s_mov_b64 exec, -1",
              "L_ps:", f"buffer_load_dwordx3 v[162:164], v151, s[{R_DBG}:{R_DBG+3}], s{S_T5} offen sc0 sc1", "s_waitcnt vmcnt(0)",
              "v_lshrrev_b32 v162, 7, v162", "v_or3_b32 v162, v162, v163, v164", "v_cmp_ne_u32 vcc, 0, v162", "s_cbranch_vccnz L_poll1d",
              "L_pf:", f"s_sub_u32 s{S_CNT}, s{S_CNT}, 1", "s_cbranch_scc1 L_poll1d", "s_waitcnt vmcnt(0)", "v_cmp_ne_u32 vcc, v152, v161", "s_cbranch_vccnz L_poll1")
        else:
            a("L_poll1:", f"buffer_load_dword v152, v151, s[{R_DBG}:{R_DBG+3}], s{S_T5} offen sc0 sc1", f"s_sub_u32 s{S_CNT}, s{S_CNT}, 1",
              "s_cbranch_scc1 L_poll1d", "s_waitcnt vmcnt(0)", "v_cmp_gt_u32 vcc, 0x80, v152", "s_cbranch_vccnz L_poll1")
        a("L_poll1d:", "v_mov_b32 v152, 1", "ds_write_b32 v150, v152", kn[2:], "s_branch L_flagok")
        a("L_relay:", "ds_read_b32 v152, v150", f"s_sub_u32 s{S_CNT}, s{S_CNT}, 1", "s_cbranch_scc1 L_flagok", "s_waitcnt lgkmcnt(0)",
          "v_cmp_eq_u32 vcc, 0, v152", "s_cbranch_vccnz L_relay", "L_flagok:")
        self.stamp(4)
        self.kv_dma(0, o['kv1'])
        a("L_first:")
        self.stamp(3)
        self.stamp(6, 2)
        a(f"s_cmp_lg_u32 s{S_WAVE}, 7", "s_cbranch_scc1 L_nokn", f"s_waitcnt vmcnt({o['kv1']})", "v_max_f32 v154, v154, v155", "v_max_f32 v156, v156, v157")
        self.row_max16(154)
        self.row_max16(156)
        a("s_nop 0")
        for k in range(4):
            a(f"v_readlane_b32 s{16+k}, v154, {16*k}", f"v_readlane_b32 s{20+k}, v156, {16*k}")
        a("s_nop 1", "s_max_u32 s16, s16, s17", "s_max_u32 s18, s18, s19", "s_max_u32 s20, s20, s21", "s_max_u32 s22, s22, s23",
          "s_max_u32 s16, s16, s18", "s_max_u32 s20, s20, s22", "v_mov_b32 v154, s16", "v_add_f32 v154, s20, v154", "v_sqrt_f32 v154, v154",
          f"v_mov_b32 v155, {L_KMAX}", "ds_write_b32 v155, v154", "L_nokn:")
        a(f"v_mov_b32 v{V_IDX}, 0xdddddddd", f"v_add_u32 v{V_AK}, {L_KV}, v1", f"v_lshlrev_b32 v{V_AR}, 2, v0", f"v_add_u32 v{V_AR}, {L_KV+2048}, v{V_AR}",
          f"s_mul_i32 s{S_T0}, s{S_I}, 2560", f"v_add_u32 v8, s{S_T0}, v1", "v_lshlrev_b32 v9, 3, v0", f"v_add_u32 v9, s{S_T0}, v9", f"v_mov_b32 v6, {L_KMAX}")
        self.stamp(3, 6)
        a("s_waitcnt vmcnt(0) lgkmcnt(0)")
        self.stamp(1, 6)
        a("s_barrier")
        self.stamp(2, 6)
        a("ds_read_b32 v6, v6", f"ds_read_b64 {vr(QR,2)}, v9 offset:2048", f"ds_read_b128 {vr(QM[1],4)}, v8 offset:1024", f"ds_read_b128 {vr(QM[0],4)}, v8")
        self.kv_dma(4 * o['kv1'], 37 - o['kv1'])
        a(f"s_mov_b32 s{S_BAR}, {32//o['unp'] - 1}", f"s_mov_b32 s{S_STG}, 1", f"s_mov_b32 s{S_SAME}, 0", "s_waitcnt lgkmcnt(0)")
        self.main_prologue_loads()
        a("s_waitcnt vmcnt(0)")
        self.stamp(5)
        self.stamp(4, 6)
        a("s_barrier")
        self.stamp(5, 6)
        a("s_setprio 3")
        if o['shard']:
            a(f"s_cmp_lg_u32 s{S_WAVE}, 7", "s_cbranch_scc1 L_nosaw", "s_cmp_ge_u32 s2, 8", "s_cbranch_scc1 L_nosaw", "s_mov_b64 exec, 1",
              f"buffer_atomic_add v100, v101, s[{R_DBG}:{R_DBG+3}], s{S_T5} offen offset:8 sc1", "s_mov_b64 exec, -1", "L_nosaw:")
        self.poison()
        self.wo_job_loads(0)
        a(f"s_cmp_lt_u32 s{S_OEX}, 512", "s_cbranch_scc1 L_nowo2")
        self.wo_job_loads(1)
        a("L_nowo2:")
        self.norm1(QM[0], QR, QR + 1, 149)
        a("s_waitcnt lgkmcnt(0)", "s_branch L_attn")

    def kv_signal(self):
        a, o = self.a, self.o
        if o['shard']:
            a("s_cbranch_vccnz L_nosig", "s_setprio 3", f"v_add_u32 v161, {17 if o['badv0'] else 16}, v161",
              f"s_bfe_u32 s{S_T0}, s2, 0x20001", f"s_lshl_b32 s{S_T0}, s{S_T0}, 1", f"s_and_b32 s{S_T1}, s{S_GI}, 1", f"s_add_u32 s{S_T0}, s{S_T0}, s{S_T1}",
              f"s_lshl_b32 s{S_T0}, s{S_T0}, 9", f"s_add_u32 s{S_T0}, s{S_T0}, {WS_CNT}", "s_mov_b64 exec, 1",
              f"buffer_atomic_add v100, v101, s[{R_WS}:{R_WS+3}], s{S_T0} offen sc1", "s_mov_b64 exec, -1", "s_setprio 1", "L_nosig:")
        else:
            a("s_cbranch_vccnz L_nosig", "s_setprio 3", f"s_lshl_b32 s{S_T0}, s{S_B}, 7", "s_mov_b64 exec, 1",
              f"buffer_atomic_add v100, v101, s[{R_DBG}:{R_DBG+3}], s{S_T0} offen sc1", "s_mov_b64 exec, -1", "s_setprio 1", "L_nosig:")

    def join_signal(self, v, tag):
        self.a(f"v_mov_b32 v{v}, {L_FLAG+4}", f"v_mov_b32 v{v+1}, 1", f"v_mov_b32 v{v+3}, 0", f"s_lshl_b32 s{S_T0}, s{S_B}, 7", "s_mov_b64 exec, 1",
               "s_waitcnt vmcnt(0)", f"ds_add_rtn_u32 v{v+2}, v{v}, v{v+1}", "s_waitcnt lgkmcnt(0)", f"v_cmp_eq_u32 vcc, 3, v{v+2}", f"s_cbranch_vccz L_js{tag}",
               f"buffer_atomic_add v{v+1}, v{v+3}, s[{R_DBG}:{R_DBG+3}], s{S_T0} offen offset:4 sc1", f"L_js{tag}:")

    def wo_job_addr(self, rep):
        a = self.a
        if rep == 0:
            a(f"s_lshl_b32 s{S_OEX}, s{S_PG}, 2", f"s_add_u32 s{S_OEX}, s{S_OEX}, s{S_HG}", f"s_lshl_b32 s{S_OEX}, s{S_OEX}, 2", f"s_add_u32 s{S_OEX}, s{S_OEX}, s{S_I}")
        f = S_OEX
        AD = 208 + 8 * rep
        a(f"s_mul_i32 s16, s{f}, 7282", "s_lshr_b32 s16, s16, 16", "s_mul_i32 s17, s16, 9", f"s_sub_u32 s17, s{f}, s17",
          "s_mul_i32 s18, s16, 7282", "s_lshr_b32 s18, s18, 16", "s_mul_i32 s19, s18, 9", "s_sub_u32 s19, s16, s19",
          "s_and_b32 s20, s18, 1", "s_lshr_b32 s21, s18, 1")
        a("s_mul_i32 s22, s21, 288", "s_lshr_b32 s23, s17, 1", "s_lshl_b32 s23, s23, 6", "s_add_u32 s22, s22, s23", "s_and_b32 s23, s17, 1", "s_lshl_b32 s23, s23, 3",
          "s_add_u32 s22, s22, s23", "s_cmp_eq_u32 s17, 8", "s_cselect_b32 s23, 3, 4",
          "v_bfe_u32 v200, v0, 2, 2", "v_lshlrev_b32 v200, s23, v200", "v_and_b32 v201, 3, v0", "v_lshl_add_u32 v200, v201, 1, v200", "v_add_u32 v200, s22, v200",
          f"s_mul_i32 s22, s20, {36*1152}", "s_cmp_eq_u32 s19, 8", f"s_cbranch_scc1 L_wok1_{rep}")
        cy = [(j & 3) + 8 * (j >> 2) for j in range(8)]
        a(f"s_mul_i32 s23, s19, {72*1152}", "s_add_u32 s22, s22, s23", "v_lshrrev_b32 v201, 5, v0", "v_bfe_u32 v202, v0, 4, 1",
          f"v_mul_u32_u24 v203, {4*1152}, v201", "v_add_u32 v203, v200, v203",
          f"v_mul_u32_u24 v204, {3*1152}, v201", f"v_sub_u32 v204, {16*1152}, v204", "v_mul_u32_u24 v204, v202, v204", f"v_add_u32 v{AD}, v203, v204")
        for j in range(1, 8):
            dj = 18 + cy[j-1] - cy[j]
            a(f"v_mul_u32_u24 v204, {dj*1152}, v202", f"v_add_u32 v204, {cy[j]*1152}, v204", f"v_add_u32 v{AD+j}, v203, v204")
        a(f"s_branch L_wold_{rep}", f"L_wok1_{rep}:", "v_lshrrev_b32 v201, 4, v0", f"v_mul_u32_u24 v201, {144*1152}, v201", "v_add_u32 v203, v200, v201")
        for j in range(8):
            hq, hh, e = j >> 2, (j >> 1) & 1, j & 1
            row = 72 * hq + 18 + ((16 + hh) if e else (11 + 4 * hh))
            a(f"v_add_u32 v{AD+j}, {row*1152}, v203")
        a(f"L_wold_{rep}:")
        a(f"s_mov_b32 s{30+rep}, s22")

    def wo_job_loads(self, rep):
        for j in range(8):
            self.a(f"buffer_load_ushort v{224+8*rep+j}, v{208+8*rep+j}, s[{R_WO}:{R_WO+3}], s{30+rep} offen")

    def wo_job_finish(self, rep):
        a = self.a
        DT = 224 + 8 * rep
        a(f"s_lshl_b32 s22, s{S_OEX}, 10", f"s_add_u32 s22, s22, {WS_WOT}")
        for j in range(4):
            a(f"v_lshl_or_b32 v{240+4*rep+j}, v{DT+1+2*j}, 16, v{DT+2*j}")
        a(f"buffer_store_dwordx4 {vr(240+4*rep,4)}, v1, s[{R_WS}:{R_WS+3}], s22 offen sc1")

    def wo_finish(self):
        a = self.a
        a(f"s_cmp_ge_u32 s{S_OEX}, 512", "s_cbranch_scc0 L_wo3")
        self.wo_job_finish(1)
        a(f"s_sub_u32 s{S_OEX}, s{S_OEX}, 512", "L_wo3:")
        self.wo_job_finish(0)

    def poison_addr(self):
        a = self.a
        a([f"v_mov_b32 v{192+j}, -1" for j in range(4)])
        a(f"s_lshl_b32 s32, s{S_PG}, 2", f"s_add_u32 s32, s32, s{S_HG}", f"s_mul_i32 s32, s32, {OEX_W}", f"s_add_u32 s32, s32, {WS_OEX}",
          f"s_lshl_b32 s33, s{S_I}, 12", "s_add_u32 s33, s33, s32", f"s_lshl_b32 s34, s{S_PBI}, 10", "s_add_u32 s34, s34, s32", "s_add_u32 s34, s34, 16384")

    def poison(self):
        a = self.a
        for k in range(4):
            a(f"buffer_store_dwordx4 v[192:195], v1, s[{R_WS}:{R_WS+3}], s33 offen offset:{k*1024} sc0 sc1")
        a(f"buffer_store_dwordx4 v[192:195], v1, s[{R_WS}:{R_WS+3}], s34 offen sc0 sc1")

    def attention(self):
        a, o = self.a, self.o
        UNP = o['unp']
        a.label("L_attn")
        a(f"v_mul_f32 v7, v6, v{QR+1}", f"v_mov_b32 v6, {hex(f2u(-1.0 if o['force_fb'] else TSAFE))}",
          "v_cmp_nle_f32 vcc, v7, v6", "v_sub_f32 v7, 0, v7", f"v_cvt_pk_bf16_f32 v{QR+1}, v7, 0", "s_cbranch_vccnz L_fallback", "L_fbdone:")
        q = self.qk(S[0], 0)
        f1 = [f"s_mul_i32 s{S_OEXB}, s{S_PG}, {OEX_G}", f"s_add_u32 s{S_OEXB}, s{S_OEXB}, {WS_OEX}", f"s_mul_i32 s{S_OW}, s{S_HG}, {OEX_W}", f"s_add_u32 s{S_OW}, s{S_OW}, s{S_OEXB}",
              f"s_lshl_b32 s{S_T0}, s{S_STG}, 1", f"s_add_u32 s{S_T0}, s{S_T0}, s{S_HQ}", f"s_lshl_b32 s{S_T0}, s{S_T0}, 12", f"s_lshl_b32 s{S_T1}, s{S_PBI}, 11", f"s_add_u32 s{S_OA}, s{S_T0}, s{S_T1}",
              f"s_lshl_b32 s{S_T0}, s{S_STG}, 10", f"s_lshl_b32 s{S_T1}, s{S_PBI}, 9", f"s_add_u32 s{S_T0}, s{S_T0}, s{S_T1}", f"s_lshl_b32 s{S_T1}, s{S_HQ}, 7", f"s_add_u32 s{S_OB}, s{S_T0}, s{S_T1}",
              f"v_mov_b32 v{V_JN}, {L_FLAG+4}", f"s_mov_b32 s{S_CNT}, {32//UNP}", "v_bfe_u32 v6, v0, 4, 1", "v_lshrrev_b32 v7, 5, v0"]
        f2 = ["v_and_b32 v22, 15, v0", f"v_lshlrev_b32 v{V_OA}, 10, v6", f"v_lshl_add_u32 v{V_OA}, v7, 9, v{V_OA}", f"v_lshl_add_u32 v{V_OA}, v22, 4, v{V_OA}", f"v_add_u32 v{V_OA}, s{S_OA}, v{V_OA}",
              f"v_lshlrev_b32 v{V_OB}, 8, v6", f"v_lshl_add_u32 v{V_OB}, v7, 6, v{V_OB}", f"v_lshl_add_u32 v{V_OB}, v22, 2, v{V_OB}", f"v_add_u32 v{V_OB}, s{S_OB}, v{V_OB}",
              f"s_add_u32 s{S_OB}, s{S_OW}, 16384", "s_nop 0"]
        a("s_nop 0", q[0], f1, q[1], q[2], f2)
        self.stamp(6)
        self.stamp(6, 6)
        self.stamp(6, 8)
        body = []
        REP = 2 if o['dbl'] else 1
        chk = lambda lab: [f"s_sub_u32 s{S_CNT}, s{S_CNT}, 1", f"s_cmp_lg_u32 s{S_CNT}, s{S_BAR}", "s_cbranch_scc0 L_event", lab + ":"]
        for kb in range(2 * UNP * REP):
            if kb == 2 * UNP:
                first = list(body)
                body += chk("L_mid")
            cur, nxt = S[kb % 2], S[(kb + 1) % 2]
            q = self.qk(nxt, kb + 1)
            e = EX(cur, 32)
            sm3p = SM(O[1], VV[(kb - 1) % 2][1], nxt + 24)
            sm = [SM(O[0], VV[kb % 2][0], cur), SM(O[0], VV[kb % 2][1], cur + 8), SM(O[1], VV[kb % 2][0], cur + 16)]
            km, kr, vv = self.ldKm(kb + 2), (self.ldKr((kb + 3) // 2) if kb % 2 == 1 else []), self.ldV(kb + 1)
            if o['sched']:
                body += e[0:2] + [sm3p, vv[0]] + e[2:5] + [q[0]] + e[5:13] + [sm[0], vv[1]] + e[13:18] + [sm[1]] + km + e[18:21] + [q[1]] + kr + e[21:24] + [q[2]] + e[24:27] + [sm[2], "s_waitcnt lgkmcnt(0)"] + e[27:32]
            else:
                body += e[0:2] + [sm3p] + e[2:5] + [q[0]] + e[5:13] + ["s_waitcnt lgkmcnt(0)", sm[0]] + e[13:18] + [sm[1]] + e[18:21] + [q[1]] + e[21:24] + [q[2]] + km + kr + vv + e[24:27] + [sm[2]] + e[27:32]
        if REP == 1:
            first = list(body)
        body += [f"v_add_u32 v{V_AK}, {REP*UNP*PB}, v{V_AK}", f"v_add_u32 v{V_AR}, {REP*UNP*PB}, v{V_AR}", f"v_add_u32 v{V_AV}, {REP*UNP*PB}, v{V_AV}"]
        reach = max(int(x.split("offset:")[1]) + {V_AK: 1024, V_AR: 2048 + 256, V_AV: 2304 + VG}[int(x.split(", v")[1].split()[0])] for x in first if x.startswith("ds_read"))
        assert reach + (o['barit'] - 1) * UNP * PB <= 4096 * o['kv1'] and L_KV + 4096 * o['kv1'] <= dslot(17)
        self.loop_body = body
        a(".p2align 6", "L_main:", body, chk("L_back"), f"s_cmp_lg_u32 s{S_CNT}, 0", "s_cbranch_scc1 L_main")
        a(f"ds_read_b32 v23, v{V_JN}", SM(O[1], VV[1][1], S[1] + 24))
        self.stamp(7)
        x1 = [f"s_cmp_eq_u32 s{S_STG}, 0", "s_cbranch_scc1 L_nox1", "s_barrier", "L_nox1:"]
        a("s_setprio 3")
        if not o['x1l'] and not o['xe1']:
            a(x1)
        self.stamp(1, 7)
        vals = [O[0] + j for j in range(9)] + [O[1] + j for j in range(9)]
        a(f"v_rcp_f32 v10, v{O[0]+9}", f"s_mov_b32 s{S_CNT}, {SPIN_L}")
        a([f"v_mul_f32 v{r}, v{r}, v10" for r in vals[:9]])
        for j in range(4):
            a(f"v_cvt_pk_bf16_f32 v{12+j}, v{vals[2*j]}, v{vals[2*j+1]}")
        a(f"v_rcp_f32 v11, v{O[1]+9}")
        a("L_pchk:", "s_waitcnt lgkmcnt(0)", "v_cmp_gt_u32 vcc, 4, v23", "s_cbranch_vccz L_pok",
          f"ds_read_b32 v23, v{V_JN}", f"s_sub_u32 s{S_CNT}, s{S_CNT}, 1", "s_cbranch_scc0 L_pchk", "L_pok:")
        a(f"s_cmp_eq_u32 s{S_SAME}, 1", "s_cbranch_scc1 L_pub1")
        for fl in (" sc0 sc1", ""):
            a(f"buffer_store_dwordx4 v[12:15], v{V_OA}, s[{R_WS}:{R_WS+3}], s{S_OW} offen{fl}")
            self.stamp(2, 7)
            a([f"v_mul_f32 v{r}, v{r}, v11" for r in vals[9:]])
            for j in range(4, 9):
                a(f"v_cvt_pk_bf16_f32 v{12+j}, v{vals[2*j]}, v{vals[2*j+1]}")
                if j == 7:
                    a(f"buffer_store_dwordx4 v[16:19], v{V_OA}, s[{R_WS}:{R_WS+3}], s{S_OW} offen offset:256{fl}")
            a(f"buffer_store_dword v20, v{V_OB}, s[{R_WS}:{R_WS+3}], s{S_OB} offen{fl}")
            if fl:
                a("s_branch L_pub2", "L_pub1:")
        a("L_pub2:")
        if o['x1l']:
            a(x1)
        self.stamp(3, 7)
        self.oproj2()

    def events(self):
        a, o = self.a, self.o
        n = 32 // o['unp']
        assert L_PS + 36864 <= L_KV + o['p3'] * o['unp'] * PB and o['barit'] == 1 and 1 < o['p1'] < o['p2'] < o['p3'] < n
        a("L_nob7:")
        if o['dbl']:
            a(f"s_bitcmp1_b32 s{S_CNT}, 0", "s_cbranch_scc1 L_mid")
        a("s_branch L_back")
        a("L_event:", f"s_cmp_eq_u32 s{S_CNT}, {n - o['p1']}", "s_cbranch_scc1 L_ev1", f"s_cmp_eq_u32 s{S_CNT}, {n - o['p2']}", "s_cbranch_scc1 L_ev2",
          f"s_cmp_eq_u32 s{S_CNT}, {n - o['p3']}", "s_cbranch_scc1 L_ev3", f"s_mov_b32 s{S_BAR}, {n - o['p1']}",
          f"s_cmp_eq_u32 s{S_STG}, 0", "s_cbranch_scc0 L_ev0")
        self.stamp(4, 6)
        a("s_barrier")
        self.stamp(5, 6)
        a("s_branch L_nob7", "L_ev0:")
        if o['ga']:
            a("s_waitcnt vmcnt(0)")
            self.wo_finish()
            a("s_branch L_nob7")
            a("L_ev1:")
            self.stamp(1, 8)
            a(f"s_mov_b32 s{S_BAR}, {n - o['p2']}", f"s_cmp_eq_u32 s{S_STG}, 0", "s_cbranch_scc1 L_ev1e")
            self.join_signal(200, "l")
            a("s_mov_b64 exec, -1", "L_ev1e:", "s_setprio 2", "s_branch L_nob7")
        else:
            self.join_signal(200, "l")
            a("s_mov_b64 exec, -1", "s_branch L_nob7")
            a("L_ev1:", "s_setprio 2", f"s_mov_b32 s{S_BAR}, {n - o['p2']}", "s_branch L_nob7")
        a("L_ev2:")
        self.stamp(2, 8)
        a(f"s_mov_b32 s{S_T2}, {SPIN}", f"s_lshl_b32 s{S_T0}, s{S_B}, 7", "v_mov_b32 v147, 0",
          "L_poll2:", f"buffer_load_dword v148, v147, s[{R_DBG}:{R_DBG+3}], s{S_T0} offen offset:4 sc0 sc1", f"s_sub_u32 s{S_T2}, s{S_T2}, 1",
          "s_cbranch_scc1 L_poll2d", "s_waitcnt vmcnt(0)", "v_cmp_gt_u32 vcc, 0x80, v148", "s_cbranch_vccnz L_poll2", "L_poll2d:")
        if o['xcc']:
            a("s_getreg_b32 s29, hwreg(HW_REG_XCC_ID, 0, 4)", f"s_lshl_b32 s{S_T0}, s{S_PG}, 4", f"s_add_u32 s{S_T0}, s{S_T0}, {WS_XID}", "v_and_b32 v147, 3, v0", "v_lshlrev_b32 v147, 2, v147",
              f"buffer_load_dword v148, v147, s[{R_WS}:{R_WS+3}], s{S_T0} offen sc1", "s_waitcnt vmcnt(0)",
              "v_cmp_ne_u32 vcc, s29, v148", "s_cbranch_vccnz L_nosame", f"s_mov_b32 s{S_SAME}, 1", "L_nosame:")
        self.wo_loads(148)
        self.stamp(3, 8)
        a(f"s_setprio {2 if o['xe1'] else 1}", f"s_mov_b32 s{S_BAR}, {n - o['p3']}", "s_branch L_nob7")
        a("L_ev3:")
        self.stamp(4, 8)
        a("v_mov_b32 v147, 1", "s_mov_b64 exec, 1", f"ds_add_u32 v{V_JN}, v147 offset:4", "s_mov_b64 exec, -1")
        self.oproj()
        self.stamp(5, 8)
        a(f"s_setprio {1 if o['xe1'] else 0}", "s_branch L_nob7")

    def wo_loads(self, WF):
        a = self.a
        a(f"s_lshl_b32 s{S_T0}, s{S_HG}, 1", f"s_add_u32 s{S_T0}, s{S_T0}, s{S_STG}", f"s_mul_i32 s{S_T0}, s{S_T0}, {81*1024}", f"s_add_u32 s{S_T0}, s{S_T0}, {WS_WOT}",
          f"s_lshl_b32 s{S_T1}, s{S_I}, 11", f"s_add_u32 s{S_T1}, s{S_T1}, s{S_T0}", f"s_add_u32 s{S_T0}, s{S_T0}, 8192")
        for ks in range(9):
            a(f"buffer_load_dwordx4 {vr(WF+12*ks,4)}, v1, s[{R_WS}:{R_WS+3}], s{S_T1} offen sc1",
              f"buffer_load_dwordx4 {vr(WF+12*ks+4,4)}, v1, s[{R_WS}:{R_WS+3}], s{S_T1} offen offset:1024 sc1",
              f"buffer_load_dwordx4 {vr(WF+12*ks+8,4)}, v1, s[{R_WS}:{R_WS+3}], s{S_T0} offen sc1")
            if ks < 8:
                a(f"s_add_u32 s{S_T1}, s{S_T1}, 9216", f"s_add_u32 s{S_T0}, s{S_T0}, 9216")

    def fallback(self):
        a, o = self.a, self.o
        a.label("L_fallback")
        a(f"s_cmp_eq_u32 s{S_STG}, 1", "s_cbranch_scc1 L_fb1", "s_barrier", f"s_mov_b32 s{S_BAR}, {32//o['unp'] - o['p1']}", "L_fb1:")
        a(f"v_mov_b32 v{QR+1}, 0", f"v_mov_b32 v144, v{V_AK}", f"v_mov_b32 v145, v{V_AR}", "v_mov_b32 v146, 0xff800000", "v_mov_b32 v147, 0xff800000",
          "v_mov_b32 v151, 0x3f803f80", f"s_mov_b32 s{S_CNT}, 32", "L_fbl:",
          "ds_read_b32 v150, v145", "ds_read_b128 v[152:155], v144", "ds_read_b128 v[156:159], v144 offset:1024",
          f"v_add_u32 v144, {PB}, v144", f"v_add_u32 v145, {PB}, v145", "s_waitcnt lgkmcnt(0)")
        for h in range(2):
            a(B2(160, 150, QR, h), "s_nop 15", "s_nop 1", K16(160, 152 + 4 * h, QM[0]), K16(176, 152 + 4 * h, QM[1]), "s_nop 11")
            for j in range(8):
                a(f"v_max3_f32 v146, v146, v{160+2*j}, v{161+2*j}", f"v_max3_f32 v147, v147, v{176+2*j}, v{177+2*j}")
        a(f"s_sub_u32 s{S_CNT}, s{S_CNT}, 1", f"s_cmp_lg_u32 s{S_CNT}, 0", "s_cbranch_scc1 L_fbl",
          "s_nop 0", "v_permlane32_swap_b32 v146, v147", "s_nop 1", "v_max_f32 v146, v146, v147", "v_sub_f32 v146, 0, v146",
          "v_cvt_pk_bf16_f32 v147, v146, 0", "v_lshlrev_b32 v148, 16, v147", "v_sub_f32 v148, v146, v148", f"v_cvt_pk_bf16_f32 v{QR+1}, v146, v148",
          "s_branch L_fbdone")

    def oproj(self):
        a, o = self.a, self.o
        a(f"s_mul_i32 s24, s{S_STG}, {L_S1-L_S0}", f"s_add_u32 s24, s24, {L_S0}", f"s_lshl_b32 s23, s{S_STG}, 13", f"s_lshl_b32 s{S_T4}, s{S_STG}, 10", f"s_add_u32 s{S_T4}, s{S_T4}, 16384")
        for k in range(7):
            a(f"s_add_u32 s{S_T0}, s{S_I}, {4*k}")
            if k == 6:
                a(f"s_min_u32 s{S_T0}, s{S_T0}, 26")
            a(f"s_mul_i32 s{S_T1}, s{S_T0}, 7282", f"s_lshr_b32 s{S_T1}, s{S_T1}, 16", f"s_mul_i32 s{S_T2}, s{S_T1}, 9", f"s_sub_u32 s{S_T2}, s{S_T0}, s{S_T2}",
              f"s_add_u32 s{S_T1}, s{S_T1}, s{S_HG}", f"s_add_u32 s{S_T1}, s{S_T1}, 1", f"s_and_b32 s{S_T1}, s{S_T1}, 3",
              f"s_lshl_b32 s{S_T0}, s{S_T2}, 10", f"s_add_u32 s{S_T3}, s{S_T0}, s23", f"s_lshl_b32 s{S_T5}, s{S_T1}, 13", f"s_add_u32 s{S_T0}, s{S_T0}, s{S_T5}",
              f"s_lshl_b32 s{S_T5}, s{S_T1}, 10", f"s_add_u32 s{S_T5}, s{S_T5}, 32768",
              f"s_cmp_eq_u32 s{S_T2}, 8", f"s_cselect_b32 s{S_T3}, s{S_T4}, s{S_T3}", f"s_cselect_b32 s{S_T0}, s{S_T5}, s{S_T0}",
              f"s_add_u32 s{30+k}, s{S_T0}, s24", f"s_mul_i32 s{S_T1}, s{S_T1}, {OEX_W}", f"s_add_u32 s{S_T3}, s{S_T3}, s{S_T1}", f"s_add_u32 s{16+k}, s{S_T3}, s{S_OEXB}")
        a(f"s_mul_i32 s{S_T0}, s{S_PG}, {64*2304}", f"s_mul_i32 s{S_T1}, s{S_B}, 1152", f"s_add_u32 s{S_T0}, s{S_T0}, s{S_T1}", f"s_mul_i32 s{S_T1}, s{S_HG}, 288",
          f"s_add_u32 s{S_T0}, s{S_T0}, s{S_T1}", f"s_lshl_b32 s{S_T1}, s{S_I}, 6", f"s_add_u32 s{S_T1}, s{S_T1}, s{S_T0}")
        for tp in range(4):
            a(f"s_xor_b32 s{S_T2}, s{S_I}, {tp}", f"s_mul_i32 s{S_T2}, s{S_T2}, {16*2304}", f"s_add_u32 s{37+tp}, s{S_T2}, s{S_T1}")
            if tp == 0:
                a(f"s_add_u32 s41, s{S_T2}, s{S_T0}", "s_add_u32 s41, s41, 256")
        a(f"s_lshl_b32 s{S_T0}, s{S_HG}, 13", f"s_sub_u32 s23, s{S_T0}, s23", "s_add_u32 s23, s23, s24",
          f"s_sub_u32 s{S_T0}, s{S_HG}, s{S_STG}", f"s_lshl_b32 s{S_T0}, s{S_T0}, 10", f"s_add_u32 s42, s{S_T0}, s24", "s_add_u32 s42, s42, 32768")

    def oproj2(self):
        a, o = self.a, self.o
        WF, ACC, PB_, PS = 148, 56, 24, 124
        RING = [92 + 4 * i for i in range(8)]
        OUTF = ['', ' sc1', ' sc0 sc1', ' nt'][o['outf']]
        loads = [f"buffer_load_dwordx4 {vr(PB_+4*k,4)}, v1, s[{R_WS}:{R_WS+3}], s{16+k} offen sc0 sc1" for k in range(7)]
        a(f"ds_read_b32 v23, v{V_JN} offset:4", loads)
        self.stamp(4, 7)
        a(f"v_add_u32 v{V_OA}, s23, v{V_OA}", f"v_add_u32 v{V_OB}, s42, v{V_OB}",
          f"s_lshl_b32 s{S_T0}, s{S_I}, 10", f"s_add_u32 s{S_T0}, s{S_T0}, s24", f"v_add_u32 v8, s{S_T0}, v1", "v_xor_b32 v9, 0x400, v8", "v_xor_b32 v10, 0x800, v8", "v_xor_b32 v11, 0xc00, v8",
          "v_lshrrev_b32 v6, 4, v0", "v_lshlrev_b32 v6, 10, v6", "v_and_b32 v7, 15, v0", "v_lshl_add_u32 v6, v7, 2, v6", f"s_lshl_b32 s{S_T0}, s{S_I}, 8", f"s_add_u32 s{S_T0}, s{S_T0}, s24",
          f"s_add_u32 s{S_T0}, s{S_T0}, 32768", f"v_add_u32 v52, s{S_T0}, v6", "v_xor_b32 v53, 0x100, v52", "v_xor_b32 v54, 0x200, v52", "v_xor_b32 v55, 0x300, v52",
          f"s_mul_i32 s{S_T0}, s{S_I}, 9216", f"s_add_u32 s{S_T0}, s{S_T0}, {L_PS}", f"v_add_u32 v21, s{S_T0}, v1", f"s_mov_b32 s{S_CNT}, {SPIN_L}")
        a("L_free:", "s_waitcnt lgkmcnt(0)", "v_cmp_gt_u32 vcc, 8, v23", "s_cbranch_vccz L_freed",
          f"ds_read_b32 v23, v{V_JN} offset:4", f"s_sub_u32 s{S_CNT}, s{S_CNT}, 1", "s_cbranch_scc0 L_free", "L_freed:")
        self.stamp(5, 7)
        a(f"ds_write_b128 v{V_OA}, v[12:15]", f"ds_write_b128 v{V_OA}, v[16:19] offset:256", f"ds_write_b32 v{V_OB}, v20")
        self.stamp(1, 4)
        if o['pw']:
            a([f"v_add_u32 v{136+k}, s{30+k}, v1" for k in range(7)])
            a(f"s_mov_b32 s{S_CNT}, {SPIN}", "L_cl:")
            for k in range(7):
                r = PB_ + 4 * k
                a(f"s_waitcnt vmcnt({6-k})")
                if k == 0:
                    self.stamp(3, 4)
                a(f"ds_write_b128 v{136+k}, {vr(r,4)}")
                if k == 0:
                    a(f"v_max3_u32 v7, v{r}, v{r+1}, v{r+2}", f"v_max_u32 v7, v7, v{r+3}")
                else:
                    a(f"v_max3_u32 v7, v7, v{r}, v{r+1}", f"v_max3_u32 v7, v7, v{r+2}, v{r+3}")
            a("v_cmp_eq_u32 vcc, -1, v7", "s_cbranch_vccz L_cld", f"s_sub_u32 s{S_CNT}, s{S_CNT}, 1", "s_cbranch_scc1 L_cld", "s_waitcnt lgkmcnt(0)", loads, "s_branch L_cl", "L_cld:")
            self.stamp(2, 4)
        else:
            a(f"s_mov_b32 s{S_CNT}, {SPIN}", "L_cl:", "s_waitcnt vmcnt(0)")
            self.stamp(3, 4)
            a(f"v_max3_u32 v6, v{PB_}, v{PB_+1}, v{PB_+2}", f"v_max3_u32 v7, v{PB_+3}, v{PB_+4}, v{PB_+5}")
            for j in range(6, 28, 4):
                a(f"v_max3_u32 v6, v6, v{PB_+j}, v{PB_+j+1}")
                if j + 3 < 28:
                    a(f"v_max3_u32 v7, v7, v{PB_+j+2}, v{PB_+j+3}")
            a("v_max_u32 v7, v7, v6", "v_cmp_eq_u32 vcc, -1, v7", "s_cbranch_vccz L_cld", f"s_sub_u32 s{S_CNT}, s{S_CNT}, 1", "s_cbranch_scc1 L_cld", loads, "s_branch L_cl", "L_cld:")
            self.stamp(2, 4)
            self.stamp(6, 7)
            for k in range(7):
                a(f"v_add_u32 v{6+(k&1)}, s{30+k}, v1", f"ds_write_b128 v{6+(k&1)}, {vr(PB_+4*k,4)}")
        a("v_and_b32 v22, 15, v0", "v_mul_u32_u24 v22, 0x900, v22", "v_lshrrev_b32 v7, 4, v0", "v_lshl_add_u32 v23, v7, 3, v22", "v_lshl_add_u32 v22, v7, 4, v22")
        if o['xe1']:
            a(f"s_cmp_eq_u32 s{S_STG}, 0", "s_waitcnt lgkmcnt(0)", "s_cbranch_scc1 L_ej", "s_barrier", "s_branch L_ejd",
              "L_ej:", "s_setprio 0", "v_mov_b32 v6, 1", f"v_mov_b32 v7, {L_FLAG+12}", "s_mov_b64 exec, 1", "ds_add_u32 v7, v6", "s_mov_b64 exec, -1", f"s_mov_b32 s{S_CNT}, {SPIN}",
              "L_ej1:", "ds_read_b32 v6, v7", f"s_sub_u32 s{S_CNT}, s{S_CNT}, 1", "s_cbranch_scc1 L_ej2", "s_waitcnt lgkmcnt(0)", "v_cmp_gt_u32 vcc, 4, v6", "s_cbranch_vccnz L_ej1",
              "L_ej2:", "s_waitcnt lgkmcnt(0)", "L_ejd:", f"s_cmp_eq_u32 s{S_STG}, 0")
        else:
            a(f"s_cmp_eq_u32 s{S_STG}, 0", "s_waitcnt lgkmcnt(0)", "s_barrier")
        self.stamp(4, 4)
        self.stamp(4, 0)
        q = []

        def issue(n, tp, ks):
            r = RING[n % 8]
            if ks < 8:
                a(f"ds_read_b128 {vr(r,4)}, v{8+tp} offset:{ks*4096}")
                q.append(n)
            else:
                a(f"ds_read2_b32 {vr(r,2)}, v{52+tp} offset0:0 offset1:16", f"ds_read2_b32 {vr(r+2,2)}, v{52+tp} offset0:32 offset1:48")
                q.extend([n] * 2)

        def need(n):
            last = max((i for i, t in enumerate(q) if t == n), default=-1)
            if last >= 0:
                a(f"s_waitcnt lgkmcnt({min(len(q) - 1 - last, 14)})")
                del q[:last + 1]

        def run(after, zero, before={}):
            seq = [(tp, ks) for tp in (1, 2, 3, 0) for ks in range(9)]
            PF = 7
            for j in range(PF):
                issue(j, *seq[j])
            for j, (tp, ks) in enumerate(seq):
                if j in before:
                    before[j]()
                need(j)
                c = "0" if ks == 0 and zero else None
                w = WF + 12 * ks
                a(M16(ACC + 4 * tp, w, RING[j % 8], c), M16(ACC + 16 + 4 * tp, w + 4, RING[j % 8], c))
                if tp == 0:
                    a(M16(ACC + 32, w + 8, RING[j % 8], c))
                if j + PF < len(seq):
                    issue(j + PF, *seq[j + PF])
                if j in after:
                    after[j]()

        def tiles(tp):
            return [tp, 4 + tp] + ([8] if tp == 0 else [])
        a("s_cbranch_scc0 L_tail_l", f"s_setprio {o['tp']}")

        def put(tp):
            for t in tiles(tp):
                a(f"ds_write_b128 v21, {vr(ACC+4*t,4)} offset:{t*1024}")
                q.append(('w', tp))

        def x2():
            need(('w', 3 if o['x2j'] > 29 else 2))
            a("s_barrier")
        ev = {9 * i + 2: (lambda i=i: put(i)) for i in (1, 2, 3)}
        ev[o['x2j']] = x2
        run(ev, True)
        a("s_nop 6")
        put(0)
        a("s_waitcnt lgkmcnt(0)", "s_barrier", "s_branch L_fin")
        q.clear()
        a("L_tail_l:")

        def get(tp):
            if tp == (0 if o['x2j'] > 29 else 3):
                a("s_barrier")
            for t in tiles(tp):
                a(f"ds_read_b128 {vr(ACC+4*t,4)}, v21 offset:{t*1024}")
                q.append(('p', tp))

        def outp(tp):
            r = 12 + 4 * (tp & 1)
            a([f"v_cvt_pk_bf16_f32 v{r+k}, v{ACC+16*(k>>1)+4*tp+2*(k&1)}, v{ACC+16*(k>>1)+4*tp+2*(k&1)+1}" for k in range(4)],
              f"buffer_store_dwordx4 {vr(r,4)}, v22, s[{R_OUT}:{R_OUT+3}], s{37+tp} offen{OUTF}")
            if tp == 0:
                a(f"v_cvt_pk_bf16_f32 v6, v{ACC+32}, v{ACC+33}", f"v_cvt_pk_bf16_f32 v7, v{ACC+34}, v{ACC+35}",
                  f"buffer_store_dwordx2 v[6:7], v23, s[{R_OUT}:{R_OUT+3}], s41 offen{OUTF}")
        get(1)
        ev = {9 * i + 2: (lambda i=i: outp(i)) for i in (1, 2, 3)}
        ev[3] = lambda: get(2)
        ev[12 if o['x2j'] > 29 else 16] = lambda: get(3)
        ev[22] = lambda: get(0)
        run(ev, False, {9 * i: (lambda t=t: need(('p', t))) for i, t in enumerate((1, 2, 3, 0))})
        a("s_nop 5")
        outp(0)
        a("L_fin:")
        if o['stamps'] or o['dbgspan'] or o['ampk']:
            a("s_waitcnt vmcnt(0)")
            self.stamp(5, o['set'] if o['set'] in (1, 4) else 0)
        if o['ampk']:
            a(f"s_cmp_eq_u32 s{S_STG}, {1 - o['amps']}", "s_cbranch_scc1 L_end", "s_waitcnt lgkmcnt(0)", f"s_sub_u32 s{S_T0}, s{S_ST+2*o['ampb']}, s{S_ST+2*o['ampa']}")
            if o['avg']:
                a(f"s_cmp_lg_u32 s{S_I}, 0", "s_cbranch_scc1 L_end", "s_mov_b64 exec, 1", "v_mov_b32 v8, 0", f"v_mov_b32 v9, s{S_T0}", "v_mov_b32 v10, 1",
                  f"buffer_atomic_add v9, v8, s[{R_DBG}:{R_DBG+3}], 0 offen offset:16 sc1", "s_waitcnt vmcnt(0)",
                  f"buffer_atomic_add v10, v8, s[{R_DBG}:{R_DBG+3}], 0 offen offset:144 sc0 sc1", "s_waitcnt vmcnt(0)", "v_cmp_eq_u32 vcc, 0xff, v10", "s_cbranch_vccz L_end",
                  f"buffer_load_dword v9, v8, s[{R_DBG}:{R_DBG+3}], 0 offen offset:16 sc0 sc1", "s_waitcnt vmcnt(0)", f"v_readfirstlane_b32 s{S_T0}, v9", "s_nop 3", f"s_mul_i32 s{S_T0}, s{S_T0}, {o['ampk']}", f"s_lshr_b32 s{S_T0}, s{S_T0}, 8")
            else:
                a(f"s_mul_i32 s{S_T0}, s{S_T0}, {o['ampk']}" if o['ampk'] > 0 else f"s_lshr_b32 s{S_T0}, s{S_T0}, {-o['ampk']}")
            a("s_memrealtime s[18:19]", f"s_min_u32 s{S_T0}, s{S_T0}, 100000",
              "L_amp:", "s_memrealtime s[16:17]", "s_waitcnt lgkmcnt(0)", "s_sub_u32 s16, s16, s18", f"s_cmp_lt_u32 s16, s{S_T0}", "s_cbranch_scc1 L_amp")
        self.dump_stamps()
        a("L_end:", "s_endpgm")

    def build(self):
        self.start()
        self.early_front()
        self.attention()
        self.late_front()
        self.events()
        self.fallback()
        hdr = (open('concat_heads__grouped_kv_mqa__grouped_kv_mqa__prompt.s.ref').read().split("; Override launch geometry")[0] +
               f"; @launch grid=(256,1,1) block=(512,1,1) lds={LDS_BYTES}\n" + DOC +
               '.amdgcn_target "amdgcn-amd-amdhsa--gfx950"\n.text\n'
               f".globl {NAME}\n.p2align 8\n.type {NAME},@function\n{NAME}:\n")
        if self.o['of'] & 1:
            self.a.L = [x.replace(" sc0 sc1", " sc1") if "buffer_store" in x and f"s[{R_WS}:" in x else x for x in self.a.L]
        if self.o['of'] & 2:
            self.a.L = [x.replace(" sc0 sc1", " sc1") if "buffer_load" in x and f"s[{R_WS}:" in x else x for x in self.a.L]
        body = "".join((x + "\n") if x.endswith(":") or x.startswith(";") else ("    " + x + "\n") for x in self.a.L)
        t = table()
        tab = ".p2align 6\n.type L_table,@object\nL_table:\n" + "".join("    .long " + ", ".join(str(int(v)) for v in row) + "\n" for row in t)
        tab += f".fill (1024 - ((. - {NAME}) & 1023)) & 1023, 1, 0\nL_codeend:\n.size L_table, L_codeend-L_table\n"
        kd = f""".section .rodata,"a"
.p2align 6
.amdhsa_kernel {NAME}
  .amdhsa_next_free_vgpr 256
  .amdhsa_next_free_sgpr 102
  .amdhsa_accum_offset 256
  .amdhsa_group_segment_fixed_size 0
  .amdhsa_kernarg_size 104
  .amdhsa_user_sgpr_count 2
  .amdhsa_user_sgpr_kernarg_segment_ptr 1
  .amdhsa_system_sgpr_workgroup_id_x 1
.end_amdhsa_kernel
"""
        return hdr + body + tab + kd


if __name__ == "__main__":
    out = sys.argv[1]
    opt = {}
    for kv in sys.argv[2:]:
        k, v = kv.split("=")
        opt[k] = int(v)
    g = Gen(opt)
    open(out, "w").write(g.build())
```

```python
import sys, math, struct
import numpy as np

NAME = "concat_heads__grouped_kv_mqa__grouped_kv_mqa__prompt_kernel"

VG = 608
PB = 2048 + 256 + 4 * VG
KVB = 32 * PB
L_KV = 12288
L_HAND = 0
L_KMAX = 10240
L_FLAG = 10256
L_T2X = 81920
L_O = 12288
L_W8 = L_O + 73728
L_W = 62464
L_X = 90112
SLOT = 4608
LDS_BYTES = 163840
WS_KV = 0
WS_KN = KVB
WS_XID = WS_KN + 1024
WS_CNT = 0x26000
WS_WOT = 0x28000
WS_OEX = 0xD0000
WS_BR = 0x400000
WS_STAMP = 0x1000000
OEX_G = 73728
OEX_W = 18432
CSCALE = math.log2(math.e) / math.sqrt(18.0)
TSAFE = 40.0
SPIN = 500000
SPIN_L = 16 * SPIN


def f2u(x):
    return struct.unpack("<I", struct.pack("<f", x))[0]


def dslot(d):
    if d < 6:
        return d * 2 * SLOT
    if d < 17:
        return L_W + (d - 6) * 2 * SLOT
    return 5 * 2 * SLOT


def slot_addr(ks):
    return dslot(ks >> 1) + (ks & 1) * SLOT


G0 = [0, 1, 2, 3, 12, 13, 14, 15, 20]
G1 = [4, 5, 6, 7, 8, 9, 10, 11, 16]
POS_ONES, POS_ZERO = 22, 23


def vpos(h, row):
    if row in G0:
        return [list(range(0, 9)), [18, 19, 20, 21, 24, 25, 26, 27, 28]][h][G0.index(row)]
    if row in G1:
        return [list(range(9, 18)), list(range(29, 38))][h][G1.index(row)]
    if row in (17, 21):
        return POS_ONES
    return POS_ZERO


def table():
    t = np.zeros((64, 4), dtype=np.uint32)
    for l in range(64):
        t[l, 0] = L_KV + 2304 + vpos(l >> 5, l & 31) * 16
        n, g = l & 15, l >> 4
        t[l, 1] = vpos(g >> 1, n) * 16 + (g & 1) * 8
        p = {0: vpos(g >> 1, 16), 1: vpos(g >> 1, 20), 2: POS_ONES, 3: POS_ZERO}.get(n, POS_ZERO)
        t[l, 2] = p * 16 + (g & 1) * 8
    return t


def vr(a, n=1):
    return f"v[{a}:{a+n-1}]" if n > 1 else f"v{a}"


def sr(a, n=1):
    return f"s[{a}:{a+n-1}]" if n > 1 else f"s{a}"


S_WAVE = 3
R_X, R_WQ, R_W, R_WO, R_WS, R_OUT, R_DBG = 44, 48, 52, 56, 60, 64, 68
S_B, S_HG, S_GI, S_PG, S_I = 4, 5, 6, 7, 8
S_T0, S_T1, S_T2, S_T3, S_T4, S_T5 = 9, 10, 11, 12, 13, 14
S_CNT = 15
S_M0A, S_M0R, S_ROW = 72, 73, 74
S_BAR = 75
S_PBI, S_HQ = 76, 77
S_EX = 42
S_KVS = 80
S_OEX = 81
S_STG = 82
S_OEXB = 78
S_SAME, S_OA, S_OB, S_OW = 26, 27, 28, 25
V_OA, V_OB, V_JN = 144, 145, 146
S_VM = 0
S_XI, S_XB, S_XS, S_XM = 83, 100, 101, 79
S_DI, S_DS, S_LI, S_LS = 72, 73, 74, 75
S_ST = 84

V_IDX, V_AK, V_AR, V_AV = 2, 3, 4, 5
QM = [8, 12]
QR = 16
KR = [18, 20]
O = [24, 40]
KM = [56, 60]
VV = [[64, 68], [72, 76]]
S = [80, 112]
QM2 = [148, 152]
QR2 = 156
O2 = [160, 176]
QMS, QRS, OS = QM + QM2, [QR, QR2], O + O2


DOC = """;
"""


class A:
    def __init__(self):
        self.L = []

    def __call__(self, *xs):
        for x in xs:
            if isinstance(x, (list, tuple)):
                self(*x)
            else:
                self.L.append(x)

    def label(self, n):
        self.L.append(n + ":")


def K16(d, a, b, c=None):
    return f"v_mfma_f32_32x32x16_bf16 {vr(d,16)}, {vr(a,4)}, {vr(b,4)}, {c if c else vr(d,16)}"


def M16(d, a, b, c=None):
    return f"v_mfma_f32_16x16x32_bf16 {vr(d,4)}, {vr(a,4)}, {vr(b,4)}, {c if c else vr(d,4)}"


def B2(d, a, b, abid):
    return f"v_mfma_f32_32x32x4_2b_bf16 {vr(d,32)}, {vr(a,2)}, {vr(b,2)}, 0 cbsz:1 abid:{abid}"


def K8Z(d, z):
    return f"v_mfma_f32_32x32x8_bf16 {vr(d,16)}, {vr(z,2)}, {vr(z,2)}, 0"


def SM(d, a, b):
    return f"v_smfmac_f32_32x32x32_bf16 {vr(d,16)}, {vr(a,4)}, {vr(b,8)}, v{V_IDX}"


def EX(r, n):
    return [f"v_exp_f32 v{r+i}, v{r+i}" for i in range(n)]


def srd(a, dst, lo, hi, size):
    a(f"s_mov_b32 s{dst}, {lo}", f"s_mov_b32 s{dst+1}, {hi}", f"s_mov_b32 s{dst+2}, {size}", f"s_mov_b32 s{dst+3}, 0x20000")


class Gen:
    def __init__(self, opt):
        self.o = dict(unp=4, barit=1, stamps=False, force_fb=False, prefetch=True, prio=True, dbgspan=0, nj=9, own1=0, l01=0, sched=1, dbl=0, xe1=0, x1l=0, pw=0, ks2=0, binv=0, z2=1, vexec=0, ga=1, tp=1, x2j=31, amps=0, p1=2, p2=5, p3=7, lo0=0, lo1=0, ka=2, lnorm=1, xper=3, dly=0, d0l=1, pre=2, xe=0, sigb2=1, tre=1, badv0=0, shard=1, nslow=64, spf=0, avg=0, xcc=1, xp=0, outf=0, of=0, ampa=0, ampb=0, ampk=0, set=0, nb=5, kv1=7, pd=2, win=3, t1=7, t2=9, sb=18)
        self.o.update(opt)
        self.a = A()
        self.nst = 0

    def stamp(self, i, st=0):
        if i not in (0, 7) and st != self.o['set']:
            return
        if self.o['stamps'] or self.o['dbgspan'] or self.o['ampk']:
            cyc = self.o['stamps'] == 2 or self.o['ampk'] < 0
            self.a(f"{'s_memtime' if cyc else 's_memrealtime'} s[{S_ST+2*i}:{S_ST+2*i+1}]")

    def dump_stamps(self):
        if self.o['dbgspan']:
            a = self.a
            n = self.nst = self.nst + 1
            a("s_waitcnt lgkmcnt(0)", f"s_cmp_lg_u32 s{S_I}, 0", f"s_cbranch_scc1 L_nodump{n}", "s_mov_b64 exec, 1", "v_mov_b32 v8, 0", f"s_not_b32 s{S_T0}, s{S_ST}", f"v_mov_b32 v9, s{S_T0}",
              f"buffer_atomic_umax v9, v8, s[{R_DBG}:{R_DBG+3}], 0 offen offset:8 sc1")
            for k, i in enumerate((0, 1, 3, 6, 7, 5) if n == 2 else (1, 2, 4, 5, 6, 7)):
                a(f"v_mov_b32 v{10+k}, s{S_ST+2*i}", f"buffer_atomic_umax v{10+k}, v8, s[{R_DBG}:{R_DBG+3}], 0 offen offset:{(12 if n == 2 else 36)+4*k} sc1")
            a(f"L_nodump{n}:")
            return
        if not self.o['stamps']:
            return
        a = self.a
        a("s_waitcnt lgkmcnt(0)", f"s_lshl_b32 s{S_T0}, s2, 3", f"s_add_u32 s{S_T0}, s{S_T0}, s{S_WAVE}", f"s_lshl_b32 s{S_T0}, s{S_T0}, 6",
          f"s_mul_i32 s{S_T1}, s{S_B}, {WS_BR}", f"s_sub_u32 s{S_T0}, s{S_T0}, s{S_T1}", f"s_add_u32 s{S_T0}, s{S_T0}, {WS_STAMP}",
          f"s_mov_b32 s{R_WS+2}, 0x2000000", "v_mov_b32 v8, 0")
        for i in range(4):
            for k in range(4):
                a(f"v_mov_b32 v{12+k}, s{S_ST+4*i+k}")
            a(f"buffer_store_dwordx4 v[12:15], v8, s[{R_WS}:{R_WS+3}], s{S_T0} offen offset:{16*i}", "s_nop 1")

    def kv_dma(self, p0, n):
        a = self.a
        for k in range(n):
            a(f"s_add_u32 m0, s{S_M0A}, {L_KV + (p0 + 4*k)*1024}", f"s_add_u32 s{S_T0}, s{S_KVS}, 4096",
              f"buffer_load_dwordx4 v1, s[{R_WS}:{R_WS+3}], s{S_KVS} offen sc1 lds",
              f"s_cmp_ge_u32 s{S_T0}, {KVB}", f"s_cselect_b32 s{S_T1}, {KVB}, 0", f"s_sub_u32 s{S_KVS}, s{S_T0}, s{S_T1}")

    def row_max16(self, v):
        a = self.a
        for k in (8, 4, 2, 1):
            a("s_nop 1", f"v_max_f32_dpp v{v}, v{v}, v{v} row_ror:{k} row_mask:0xf bank_mask:0xf")

    def rest_srds(self):
        a = self.a
        a(f"s_mov_b32 s{R_WO+2}, 663552", f"s_mov_b32 s{R_WO+3}, 0x20000",
          f"s_mul_i32 s{S_T0}, s{S_B}, {WS_BR}", f"s_add_u32 s{R_WS}, s40, s{S_T0}", f"s_addc_u32 s{R_WS+1}, s41, 0",
          f"s_mov_b32 s{R_WS+2}, {WS_OEX + 32*OEX_G}", f"s_mov_b32 s{R_WS+3}, 0x20000")
        srd(a, R_OUT, "s36", "s37", 4718592)
        srd(a, R_DBG, "s38", "s39", 256)

    def norm2(self, x, y):
        a = self.a
        for j in range(4):
            for (qm, qr, dst, tmp) in (x, y):
                a(f"v_dot2_f32_bf16 v{dst}, v{qm+j}, v{qm+j}, {'0' if j == 0 else 'v%d' % dst}",
                  f"v_dot2_f32_bf16 v{tmp}, v{qm+4+j}, v{qm+4+j}, {'0' if j == 0 else 'v%d' % tmp}")
        a("s_nop 0", f"v_permlane32_swap_b32 v{x[2]}, v{x[3]}", "s_nop 0", f"v_permlane32_swap_b32 v{y[2]}, v{y[3]}",
          f"v_add_f32 v{x[2]}, v{x[2]}, v{x[3]}", f"v_add_f32 v{y[2]}, v{y[2]}, v{y[3]}",
          f"v_dot2_f32_bf16 v{x[2]}, v{x[1]}, v{x[1]}, v{x[2]}", f"v_dot2_f32_bf16 v{y[2]}, v{y[1]}, v{y[1]}, v{y[2]}", "s_nop 1",
          f"v_sqrt_f32 v{x[2]}, v{x[2]}", f"v_sqrt_f32 v{y[2]}, v{y[2]}")

    def norm1(self, qm, qr, dst, tmp):
        a = self.a
        for j in range(4):
            a(f"v_dot2_f32_bf16 v{dst}, v{qm+j}, v{qm+j}, {'0' if j == 0 else 'v%d' % dst}",
              f"v_dot2_f32_bf16 v{tmp}, v{qm+4+j}, v{qm+4+j}, {'0' if j == 0 else 'v%d' % tmp}")
        a("s_nop 2", f"v_permlane32_swap_b32 v{dst}, v{tmp}", "s_nop 0", f"v_add_f32 v{dst}, v{dst}, v{tmp}",
          f"v_dot2_f32_bf16 v{dst}, v{qr}, v{qr}, v{dst}", "s_nop 2", f"v_sqrt_f32 v{dst}, v{dst}")

    def init_main_regs(self):
        a = self.a
        a(f"v_mov_b32 v{KR[0]+1}, 0x3f803f80", f"v_mov_b32 v{KR[1]+1}, 0x3f803f80")
        for r in range(O[0], O[0] + 32):
            a(f"v_mov_b32 v{r}, 0")
        for r in range(S[1] + 24, S[1] + 32):
            a(f"v_mov_b32 v{r}, 0")
        if self.o['vexec']:
            self.init_v()
            self.loader_flag()
        else:
            a([f"v_mov_b32 v{r}, 0" for r in range(VV[1][1], VV[1][1] + 4)])

    def ldKm(self, kb):
        return [f"ds_read_b128 {vr(KM[kb%2],4)}, v{V_AK} offset:{(kb//2)*PB+(kb%2)*1024}"]

    def ldKr(self, p):
        return [f"ds_read_b32 v{KR[p%2]}, v{V_AR} offset:{p*PB}"]

    def ldV(self, kb):
        x = [f"ds_read_b128 {vr(VV[kb%2][i],4)}, v{V_AV} offset:{(kb//2)*PB+((kb%2)*2+i)*VG}" for i in range(2)]
        if self.o['vexec']:
            x = [f"s_mov_b64 exec, s[{S_VM}:{S_VM+1}]"] + x + ["s_mov_b64 exec, -1"]
        return x

    def init_v(self):
        a = self.a
        m = sum(1 << r for r in G0 + G1)
        a(f"s_mov_b32 s{S_VM}, {hex(m)}", f"s_mov_b32 s{S_VM+1}, {hex(m)}", "s_mov_b32 vcc_lo, 0x220000", "s_mov_b32 vcc_hi, 0x220000",
          f"v_mov_b32 v{VV[0][0]}, 0x3f803f80", f"v_cndmask_b32 v{VV[0][0]}, 0, v{VV[0][0]}, vcc")
        a([f"v_mov_b32 v{VV[0][0]+k}, v{VV[0][0]}" for k in range(1, 16)])

    def qk(self, dst, kb, pr):
        return [B2(dst, KR[(kb//2) % 2], QRS[pr], kb % 2), K16(dst, KM[kb % 2], QMS[2*pr]), K16(dst + 16, KM[kb % 2], QMS[2*pr+1])]

    def main_prologue_loads(self):
        self.a(self.ldKr(0), self.ldKm(0), self.ldKm(1), self.ldKr(1), self.ldV(0))

    def start(self):
        a, o = self.a, self.o
        a("s_cmp_ge_u32 s2, 256", "s_cbranch_scc1 L_end")
        a("s_load_dwordx16 s[16:31], s[0:1], 0", "s_load_dwordx8 s[32:39], s[0:1], 64", "s_load_dwordx2 s[40:41], s[0:1], 96")
        self.stamp(0)
        a("s_getpc_b64 s[42:43]", "L_pc:")
        a("v_lshrrev_b32 v1, 6, v0", "v_and_b32 v0, 63, v0", f"v_readfirstlane_b32 s{S_WAVE}, v1", "v_lshlrev_b32 v1, 4, v0",
          f"s_lshr_b32 s{S_T2}, s2, 3", f"s_and_b32 s{S_B}, s2, 1", f"s_and_b32 s{S_HG}, s{S_T2}, 3", f"s_lshr_b32 s{S_GI}, s2, 5")
        if o['binv']:
            a(f"s_xor_b32 s{S_B}, s{S_B}, 1")
        if o['prefetch']:
            a(f"s_cmp_lg_u32 s{S_WAVE}, 7", "s_cbranch_scc1 L_nopf", f"s_cmp_ge_u32 s{S_T2}, (L_codeend-{NAME})/1024", "s_cbranch_scc1 L_nopf",
              f"s_lshl_b32 s{S_T2}, s{S_T2}, 10", f"s_sub_u32 s{S_T0}, s42, L_pc-{NAME}", f"s_subb_u32 s{S_T1}, s43, 0",
              f"s_add_u32 s{S_T0}, s{S_T0}, s{S_T2}", f"s_addc_u32 s{S_T1}, s{S_T1}, 0",
              f"v_mov_b32 v7, s{S_T1}", f"v_add_co_u32 v6, vcc, s{S_T0}, v1", "s_nop 1", "v_addc_co_u32 v7, vcc, 0, v7, vcc", "s_nop 0",
              "global_load_dwordx4 v[24:27], v[6:7], off", "L_nopf:")
        a(f"s_bfe_u32 s{S_PG}, s2, 0x20001", f"s_lshl_b32 s{S_PG}, s{S_PG}, 3", f"s_add_u32 s{S_PG}, s{S_PG}, s{S_GI}",
          f"s_and_b32 s{S_I}, s{S_WAVE}, 3", f"s_and_b32 s{S_PBI}, s{S_WAVE}, 1", f"s_lshr_b32 s{S_HQ}, s{S_I}, 1")
        a("v_lshrrev_b32 v8, 3, v0", "v_lshrrev_b32 v9, 4, v0", f"s_lshl_b32 s{S_T0}, s{S_PBI}, 2", f"v_or_b32 v9, s{S_T0}, v9",
          "v_and_b32 v10, 7, v0", "v_xor_b32 v9, v9, v10", "v_lshlrev_b32 v9, 4, v9", "v_mov_b32 v10, 0x480", "v_mad_u32_u24 v8, v8, v10, v9",
          f"s_lshl_b32 s{S_T0}, s{S_I}, 6", f"v_add_u32 v9, s{S_T0}, v0", "v_mul_u32_u24 v10, 0xab, v9", "v_lshrrev_b32 v10, 9, v10", "v_mul_u32_u24 v10, 12, v10",
          "v_lshlrev_b32 v9, 4, v9", "v_sub_u32 v9, v9, v10")
        a(f"s_and_b32 s{S_T4}, s{S_HG}, 2", f"s_lshl_b32 s{S_T4}, s{S_T4}, 1", f"s_add_u32 s{S_T4}, s{S_T4}, s{S_I}",
          f"s_lshl_b32 s{S_T5}, s{S_PG}, 3", f"s_add_u32 s{S_XB}, s{S_T5}, s{S_T4}", f"s_mul_i32 s{S_XB}, s{S_XB}, {8*1152}",
          f"s_mul_i32 s{S_XM}, s{S_T4}, 9216", f"s_add_u32 s{S_XM}, s{S_XM}, {L_X}", f"s_lshl_b32 s{S_T0}, s{S_I}, 10", f"s_add_u32 s{S_T0}, s{S_T0}, {L_W}",
          f"s_lshr_b32 s{S_T1}, s{S_HG}, 1", f"s_movk_i32 s{S_DI}, 3072", f"s_movk_i32 s{S_DS}, 2304",
          f"s_cmp_lt_u32 s{S_WAVE}, 4", "s_cselect_b64 vcc, -1, 0", f"s_cselect_b32 s{S_XB}, s{S_XB}, 0", f"s_cselect_b32 s{S_XM}, s{S_XM}, s{S_T0}",
          f"s_cselect_b32 s{S_T1}, s{S_HG}, s{S_T1}", f"s_cselect_b32 s{S_DI}, 1024, s{S_DI}", f"s_cselect_b32 s{S_DS}, 128, s{S_DS}",
          "v_cndmask_b32 v9, v9, v8, vcc")
        self.dma9_setup(S_T1)
        a("s_waitcnt lgkmcnt(0)", f"s_cmp_eq_u32 s{S_B}, 0", f"s_cselect_b64 s[{R_X}:{R_X+1}], s[16:17], s[26:27]",
          f"s_cselect_b64 s[20:21], s[20:21], s[30:31]", f"s_cselect_b64 s[22:23], s[22:23], s[32:33]",
          f"s_cselect_b64 s[{R_WQ}:{R_WQ+1}], s[18:19], s[28:29]", f"s_cselect_b64 s[{R_WO}:{R_WO+1}], s[24:25], s[34:35]",
          f"s_bitcmp0_b32 s{S_HG}, 0", f"s_cselect_b64 s[{R_W}:{R_W+1}], s[20:21], s[22:23]", f"s_mov_b32 s{R_X+2}, 2359296", f"s_movk_i32 s{R_W+2}, 20736",
          f"s_cmp_lt_u32 s{S_WAVE}, 4", f"s_cselect_b64 s[{R_W}:{R_W+1}], s[{R_X}:{R_X+1}], s[{R_W}:{R_W+1}]", f"s_cselect_b32 s{R_W+2}, s{R_X+2}, s{R_W+2}",
          f"s_mov_b32 s{R_W+3}, 0x20000", f"s_mov_b32 s{R_X+3}, 0x20000")
        self.stamp(1, 2)
        a(f"s_cmp_lt_u32 s{S_WAVE}, 4", "s_cbranch_scc1 L_r1", "s_setprio 1", f"s_cmp_eq_u32 s{S_WAVE}, 7", "s_cbranch_scc1 L_late", "L_r1:")
        self.dma9(R_W, 9)
        a(f"s_cmp_ge_u32 s{S_WAVE}, 4", "s_cbranch_scc1 L_late")

    def wq_prefetch(self, n, first):
        a = self.a
        a(f"s_mov_b32 s{R_WQ+2}, 663552", f"s_mov_b32 s{R_WQ+3}, 0x20000", "v_lshlrev_b32 v30, 7, v0", f"s_lshr_b32 s{S_T0}, s2, 3", f"s_mul_i32 s{S_T0}, s{S_T0}, 20736")
        if first:
            a(f"s_mul_i32 s{S_T1}, s{first}, 6912", f"s_add_u32 s{S_T0}, s{S_T0}, s{S_T1}")
        a("s_mov_b32 exec_hi, 0x3fffff")
        for k in range(n):
            a(f"buffer_load_dword v{108+k}, v30, s[{R_WQ}:{R_WQ+3}], s{S_T0} offen", f"s_add_u32 s{S_T0}, s{S_T0}, 6912")
        a("s_mov_b32 exec_hi, -1")

    def dma9_setup(self, sel):
        self.a(f"s_bitcmp1_b32 s{sel}, 0", f"s_cselect_b32 s{S_XI}, 5, 0",
               f"s_add_u32 s{S_XS}, s{S_XI}, s{S_GI}", f"s_cmp_ge_u32 s{S_XS}, 9", f"s_cselect_b32 s{S_T0}, 9, 0", f"s_sub_u32 s{S_XS}, s{S_XS}, s{S_T0}",
               f"s_mul_i32 s{S_XS}, s{S_XS}, s{S_DS}", f"s_mul_i32 s{S_XI}, s{S_XI}, s{S_DI}", f"s_mul_i32 s{S_LI}, s{S_DI}, 9", f"s_mul_i32 s{S_LS}, s{S_DS}, 9")

    def dma9(self, srd_, v):
        for i in range(9):
            self.a(f"s_add_u32 m0, s{S_XM}, s{S_XI}", f"s_add_u32 s{S_T3}, s{S_XB}, s{S_XS}",
                   f"buffer_load_dwordx4 v{v}, s[{srd_}:{srd_+3}], s{S_T3} offen lds")
            if i < 8:
                self.a(f"s_add_u32 s{S_XS}, s{S_XS}, s{S_DS}", f"s_cmp_eq_u32 s{S_XS}, s{S_LS}", f"s_cselect_b32 s{S_XS}, 0, s{S_XS}",
                       f"s_add_u32 s{S_XI}, s{S_XI}, s{S_DI}", f"s_cmp_eq_u32 s{S_XI}, s{S_LI}", f"s_cselect_b32 s{S_XI}, 0, s{S_XI}")

    def table_load(self):
        self.a(f"s_add_u32 s{S_T0}, s42, L_table-L_pc", f"s_addc_u32 s{S_T1}, s43, 0",
               f"v_mov_b32 v7, s{S_T1}", f"v_add_co_u32 v6, vcc, s{S_T0}, v1", "s_nop 1", "v_addc_co_u32 v7, vcc, 0, v7, vcc", "s_nop 0",
               "global_load_dwordx4 v[20:23], v[6:7], off")

    def wq_setup(self, d, part=3):
        a = self.a
        if part & 1:
            a(f"s_mov_b32 s{R_WQ+2}, 663552", f"s_mov_b32 s{R_WQ+3}, 0x20000", f"s_lshl_b32 s{S_T0}, s{S_I}, 6", f"s_mul_i32 s{S_T1}, s{S_HG}, 288", "v_mov_b32 v16, 0x480")
        for t in range(3 if part & 1 else 0):
            a(f"v_add_u32 v13, s{S_T0}, v0", "v_mul_u32_u24 v14, 0xe39, v13", "v_lshrrev_b32 v14, 16, v14",
              "v_mul_u32_u24 v15, 18, v14", "v_sub_u32 v13, v13, v15", "v_lshlrev_b32 v13, 4, v13",
              "v_bfe_u32 v15, v14, 1, 2", "v_and_b32 v17, 1, v14", "v_lshl_add_u32 v15, v17, 2, v15", "v_and_b32 v14, 24, v14", "v_add_u32 v14, v14, v15",
              "v_mad_u32_u24 v13, v14, v16, v13", f"v_add_u32 v{10+t}, s{S_T1}, v13")
            if t < 2:
                a(f"s_add_u32 s{S_T0}, s{S_T0}, 192")
        if not part & 2:
            return
        a(f"s_lshl_b32 s{S_M0A}, s{S_I}, 10", f"s_mul_i32 s{S_ROW}, s{S_GI}, {64*1152}")
        if d:
            a(f"s_add_u32 s{S_ROW}, s{S_ROW}, {32*d*1152}", f"s_cmp_ge_u32 s{S_ROW}, {576*1152}",
              f"s_cselect_b32 s{S_T0}, {576*1152}, 0", f"s_sub_u32 s{S_ROW}, s{S_ROW}, s{S_T0}")

    def wq_list(self, d):
        n = self.nlab = getattr(self, 'nlab', 0) + 1
        s0 = dslot(d)
        ld = lambda r: f"buffer_load_dwordx4 v{r}, s[{R_WQ}:{R_WQ+3}], s{S_ROW} offen lds"
        return [f"s_cbranch_vccz L_wq{n}",
                f"s_add_u32 m0, s{S_M0A}, {s0}", f"s_add_u32 s{S_T0}, s{S_ROW}, {32*1152}", ld(10),
                f"s_add_u32 m0, s{S_M0A}, {s0+3072}", "s_nop 0", ld(11),
                f"s_add_u32 m0, s{S_M0A}, {s0+6144}", f"s_cmp_ge_u32 s{S_T0}, {576*1152}", ld(12),
                f"s_cselect_b32 s{S_T1}, {576*1152}, 0", f"s_sub_u32 s{S_ROW}, s{S_T0}, s{S_T1}", f"L_wq{n}:"]

    def wq_dma(self, d):
        self.a(self.wq_list(d))

    def loader_flag(self):
        self.a(f"s_cmp_lt_u32 s{S_I}, 3", "s_cselect_b64 vcc, -1, 0")

    @property
    def GROUPS(self):
        if self.o['pre'] == 5:
            return [(3, 2), (5, 6), (7, 10), (9, 14), (11, 18), (13, 22), (15, 26), (17, 30)]
        if self.o['pre'] == 1:
            return [(3, 2), (5, 6), (7, 10), (9, 14), (11, 18), (13, 22), (15, 26), (17, 30)]
        if self.o['pre'] == 2:
            return [(2, 2), (3, 4), (5, 6), (7, 10), (9, 14), (11, 18), (13, 22), (15, 26), (17, 30)]
        return [(3, 2), (5, 6), (7, 10), (9, 14), (11, 18), (13, 22), (15, 26), (17, 30)]

    def early_front(self):
        a, o = self.a, self.o
        self.stamp(2, 2)
        if o['spf'] == 5:
            a(f"s_cmp_lg_u32 s{S_WAVE}, 3", "s_cbranch_scc1 L_nospf", "s_waitcnt vmcnt(6)")
            self.wq_prefetch(3, None)
            a("L_nospf:")
        self.table_load()
        self.wq_setup(o['l01'])
        self.loader_flag()
        if not o['d0l']:
            self.wq_dma(0)
        self.rest_srds()
        a("v_and_b32 v16, 31, v0", "v_lshrrev_b32 v13, 5, v0", "v_bfe_u32 v14, v0, 1, 3", "v_xor_b32 v13, v13, v14", "v_lshlrev_b32 v13, 4, v13",
          "v_and_b32 v14, 7, v0", "v_lshl_add_u32 v13, v14, 7, v13", "v_lshrrev_b32 v16, 3, v16", "v_mul_u32_u24 v16, 0x2400, v16",
          f"s_mul_i32 s{S_T0}, s{S_PBI}, {4*9216}", f"s_add_u32 s{S_T0}, s{S_T0}, {L_X}", f"v_add3_u32 v8, v16, v13, s{S_T0}",
          "v_xor_b32 v9, 32, v8", "v_xor_b32 v108, 64, v8", "v_xor_b32 v109, 0x60, v8")
        a("v_bfe_u32 v18, v0, 2, 2", "v_lshrrev_b32 v15, 5, v0", "v_lshlrev_b32 v15, 2, v15", "v_add_u32 v15, v15, v18", "v_mul_u32_u24 v15, 0x240, v15",
          f"s_mul_i32 s{S_T0}, s{S_HQ}, 144", "v_and_b32 v13, 1, v0", "v_lshl_add_u32 v15, v13, 4, v15", f"v_add_u32 v15, s{S_T0}, v15",
          "v_bfe_u32 v13, v0, 1, 1", "v_bfe_u32 v14, v0, 4, 1", "v_lshl_add_u32 v6, v13, 3, v15", "v_lshl_add_u32 v6, v14, 5, v6",
          "v_mul_u32_u24 v13, 72, v13", "v_add3_u32 v7, v13, v15, 48")
        if o['ks2']:
            a(f"s_mul_i32 s{S_T0}, s{S_HQ}, -288", f"s_add_u32 s{S_T0}, s{S_T0}, 144", f"v_mul_i32_i24 v13, s{S_T0}, v14", "v_add_u32 v7, v7, v13")
        elif o['z2']:
            a("v_lshl_add_u32 v7, v14, 20, v7")
        a(f"v_mov_b32 v{V_IDX}, 0xdddddddd", f"v_add_u32 v{V_AK}, {L_KV}, v1", f"v_lshlrev_b32 v{V_AR}, 2, v0", f"v_add_u32 v{V_AR}, {L_KV+2048}, v{V_AR}",
          "v_mov_b32 v110, 0", "v_mov_b32 v111, 0", f"v_mov_b32 v19, {L_KMAX}", f"s_mov_b32 s{S_STG}, 1")
        self.tail_scalars()
        if o['d0l']:
            a("s_waitcnt vmcnt(1)")
        else:
            a(f"s_cmp_eq_u32 s{S_WAVE}, 3", "s_cbranch_scc0 L_e3", f"s_waitcnt vmcnt({4 if o['spf'] == 5 else 1})", "L_e3:", "s_waitcnt vmcnt(4)")
        self.stamp(3, 2)
        a("s_barrier")
        PRE = o['pre']
        for d in range(o['l01'], PRE + 1):
            self.wq_dma(d)
        a(f"s_cmp_eq_u32 s{S_WAVE}, 3", "s_cbranch_scc0 L_e4", "s_waitcnt vmcnt(0)", "L_e4:", f"s_waitcnt vmcnt({3*(PRE-1)})", f"v_mov_b32 v{V_AV}, v20", "v_mov_b32 v21, 0x3f803f80")
        self.stamp(1)
        self.stamp(4, 2)
        a("s_barrier")
        self.stamp(5, 2)
        XF = 112
        T0, T1, TR, TR2 = 24, 40, 56, 128
        KX = 26
        PD = o['pd']
        FB = [72, 84, 96]
        state = dict(base=0)

        def rd(ks):
            x = []
            off = slot_addr(ks) - state['base']
            if off < 0 or off + 360 > 65535:
                d = slot_addr(ks) - state['base']
                x += [f"v_add_u32 v{r}, {d}, v{r}" if d > 0 else f"v_subrev_u32 v{r}, {-d}, v{r}" for r in (6, 7)]
                state['base'] = slot_addr(ks)
                off = 0
            f = FB[ks % (PD + 1)]
            return x, [f"ds_read_b64_tr_b16 {vr(f,2)}, v6 offset:{off}", f"ds_read_b64_tr_b16 {vr(f+2,2)}, v6 offset:{off+288}",
                       f"ds_read_b64_tr_b16 {vr(f+4,2)}, v6 offset:{off+72}", f"ds_read_b64_tr_b16 {vr(f+6,2)}, v6 offset:{off+360}",
                       f"ds_read_b64_tr_b16 {vr(f+8,2)}, v7 offset:{off}", f"ds_read_b64_tr_b16 {vr(f+10,2)}, v7 offset:{off+288}"]

        def mm(ks, first2):
            f = FB[ks % (PD + 1)]
            c = "0" if ks == 0 else None
            if o['ks2'] and ks >= KX:
                m2 = K16(TR2, f + 8, XF + 4 * ks, vr(TR, 16) if ks == KX else None)
            else:
                m2 = K16(TR, f + 8, XF + 4 * ks, "0" if first2 else None)
            return [K16(T0, f, XF + 4 * ks, c), K16(T1, f + 4, XF + 4 * ks, c), m2]

        def kloop(par):
            state['base'] = 0
            nt = lambda ks: 2 if (o['ks2'] and ks < KX and ks % 2 != par) else 3
            XA = [8, 9, 108, 109]
            q = []

            def issue(tag, ins):
                a(ins)
                q.append(tag)

            def need(*tags):
                last = max((i for i, t in enumerate(q) if t in tags), default=-1)
                if last >= 0:
                    left = len(q) - 1 - last
                    a(f"s_waitcnt lgkmcnt({min(left, 14)})")
                    del q[:last + 1]

            def xrd(i):
                issue(('x', i), f"ds_read_b128 {vr(XF+4*i,4)}, v{XA[i&3]} offset:{(i>>2)*1024}")
            xrd(0)
            for j, r in enumerate(rd(0)[1][:2*nt(0)]):
                issue(('w', 0, j >> 1), r)
            xrd(1)
            for j, r in enumerate(rd(1)[1][:2*nt(1)]):
                issue(('w', 1, j >> 1), r)
            nx = 2
            G = [k for _, k in self.GROUPS]
            ev = {k: ["s_barrier"] for k in G}
            prev = 1
            for last, k in self.GROUPS:
                if prev < PRE:
                    ev[k] = [f"s_waitcnt vmcnt({3*max(PRE-last, 0)})", "s_barrier"]
                prev = last
            for ks in range(36):
                m = mm(ks, ks == par)
                if ks in ev:
                    if ks == 6:
                        need(('x', 35))
                        assert nx == 36 and not any(t[0] == 'x' for t in q)
                    if len(ev[ks]) > 1 and o["stamps"]:
                        a(ev[ks][0])
                    if ks in (2, 6, 10, 14, 22, 30):
                        self.stamp(1 + (2, 6, 10, 14, 22, 30).index(ks), 3)
                    if ks == 30:
                        need('e')
                    a(ev[ks])
                    if ks == 6:
                        self.stamp(2)
                        self.stamp(6, 2)
                pre, n = rd(ks + 2) if ks + 2 < 36 else ([], [])
                fine = nx < 36 or ks == 35
                if not fine:
                    need(('x', ks), ('w', ks, nt(ks) - 1))
                for t in range(3):
                    if t < nt(ks):
                        if fine:
                            need(('x', ks), ('w', ks, t))
                        a(m[t])
                    if t == 0:
                        a(pre)
                    for k in range(o['xper']):
                        if nx < 36:
                            xrd(nx)
                            nx += 1
                    if t < nt(ks + 2):
                        for r in n[2*t:2*t+2]:
                            issue(('w', ks + 2, t), r)
                if o['ks2'] and ks == KX + 2:
                    issue('e', f"ds_write_b128 v13, {vr(TR+8,4)}")
                    issue('e', f"ds_write_b128 v13, {vr(TR+12,4)} offset:1024")
                if o['ks2'] and ks == 31:
                    issue('i', f"ds_read_b128 {vr(XF,4)}, v14")
                    issue('i', f"ds_read_b128 {vr(XF+4,4)}, v14 offset:1024")
            assert not [t for t in q if t != 'i'] and True
            need('i')
        if o['ks2']:
            a(f"s_mul_i32 s{S_T0}, s{S_WAVE}, 2048", f"s_add_u32 s{S_T0}, s{S_T0}, {L_T2X}", f"v_add_u32 v13, s{S_T0}, v1", "v_xor_b32 v14, 0x1000, v13",
              f"s_cmp_eq_u32 s{S_HQ}, 1", "s_cbranch_scc1 L_kodd")
            kloop(0)
            a("s_branch L_kdone", "L_kodd:")
            kloop(1)
            a("L_kdone:")
        else:
            kloop(0)
        self.stamp(3)
        self.stamp(3, 6)
        a("v_mov_b32 v7, v19", f"v_mov_b32 v{KR[0]+1}, 0x3f803f80", f"s_mov_b32 s{S_BAR}, {32//o['unp'] - 1}", "s_mov_b32 vcc_lo, 0", "s_mov_b32 vcc_hi, -1", "s_nop 2")
        for (dst, t) in ((QM[0], T0), (QM2[0], T1)):
            for j, r in enumerate((0, 2, 4, 6, 10, 12, 14)):
                a(f"v_cvt_pk_bf16_f32 v{dst+j}, v{t+r}, v{t+r+1}")
        for (dst, qr, t, t2, tmp) in ((QM[0], QR, T0, TR, 108), (QM2[0], QR2, T1, TR + 4, 107)):
            a(f"v_cvt_pk_bf16_f32 v{dst+7}, v{t2}, v{t2+1}", f"v_cvt_pk_bf16_f32 v{qr}, v{t+8}, v{t+9}", f"v_cvt_pk_bf16_f32 v{tmp}, v{t2+2}, v{t2+3}")
        a(f"v_cndmask_b32 v{QR}, v{QR}, v108, vcc", f"v_cndmask_b32 v{QR2}, v{QR2}, v107, vcc")
        a([K8Z(x, 110) for x in (O2[1], O[0])])
        self.stamp(1, 6)
        a("s_barrier")
        self.stamp(2, 6)
        a("ds_read_b32 v6, v7")
        self.main_prologue_loads()
        self.norm2((QM[0], QR, QR + 1, 108), (QM2[0], QR2, QR2 + 1, 107))
        a([K8Z(x, 110) for x in (O[1], O2[0])])
        a([f"v_mov_b32 v{r}, 0" for r in range(VV[1][1], VV[1][1] + 4)])
        a("s_setprio 1", "s_waitcnt lgkmcnt(0)")

    def late_front(self):
        a, o = self.a, self.o
        a.label("L_late")
        a("s_setprio 0")
        if o['spf'] == 3:
            a(f"s_cmp_lg_u32 s{S_WAVE}, 7", "s_cbranch_scc1 L_nospf")
            self.wq_prefetch(3, None)
            a("L_nospf:")
        if o['spf'] == 4:
            a(f"s_cmp_eq_u32 s{S_WAVE}, 7", "s_cbranch_scc1 L_nospf")
            self.wq_prefetch(1, S_I)
            a("L_nospf:")
        self.stamp(2, 2)
        self.rest_srds()
        if o['shard']:
            a("v_and_b32 v160, 7, v0", "v_lshlrev_b32 v160, 9, v160", f"s_cmp_lg_u32 s{S_WAVE}, 7", "s_cbranch_scc1 L_nov0", f"s_mov_b32 s{S_T0}, {WS_CNT}",
              f"buffer_load_dword v161, v160, s[{R_WS}:{R_WS+3}], s{S_T0} offen sc0 sc1", "L_nov0:")
        self.wq_setup(6, 1)
        a(f"s_xor_b32 s{S_T4}, s{S_T4}, 4", f"s_add_u32 s{S_XB}, s{S_T5}, s{S_T4}", f"s_mul_i32 s{S_XB}, s{S_XB}, {8*1152}",
          f"s_mul_i32 s{S_XM}, s{S_T4}, 9216", f"s_add_u32 s{S_XM}, s{S_XM}, {L_X}", f"s_movk_i32 s{S_DI}, 1024", f"s_movk_i32 s{S_DS}, 128")
        a("v_and_b32 v13, 15, v0", "v_lshrrev_b32 v16, 4, v0",
          "v_bfe_u32 v17, v0, 1, 3", "v_xor_b32 v17, v16, v17", "v_lshlrev_b32 v17, 4, v17",
          "v_and_b32 v18, 7, v0", "v_lshl_add_u32 v17, v18, 7, v17", "v_bfe_u32 v18, v0, 3, 1", "v_mul_u32_u24 v18, 0x2400, v18",
          f"s_lshr_b32 s{S_T0}, s{S_HG}, 1", f"s_lshl_b32 s{S_T0}, s{S_T0}, 1", f"s_add_u32 s{S_T0}, s{S_T0}, s{S_PBI}",
          f"s_mul_i32 s{S_T1}, s{S_T0}, {2*9216}", f"s_add_u32 s{S_T1}, s{S_T1}, {L_X}", f"v_add3_u32 v14, v17, v18, s{S_T1}", "v_xor_b32 v15, 64, v14",
          "v_bfe_u32 v17, v0, 2, 2", "v_lshl_add_u32 v17, v16, 3, v17",
          "v_mul_u32_u24 v17, 48, v17", "v_and_b32 v18, 3, v0", "v_lshlrev_b32 v18, 3, v18",
          f"s_cmp_eq_u32 s{S_HQ}, 0", "s_cselect_b64 vcc, -1, 0", "v_mov_b32 v19, 32", "v_cndmask_b32 v18, v19, v18, vcc", f"v_add_u32 v17, {L_W}, v17", "v_add_u32 v17, v17, v18")
        a("v_lshrrev_b32 v19, 5, v0", "v_lshlrev_b32 v19, 9, v19", "v_lshl_add_u32 v19, v13, 4, v19",
          "v_bfe_u32 v18, v0, 4, 1", "v_lshl_add_u32 v28, v18, 3, v19", "v_lshlrev_b32 v29, 2, v13",
          f"s_mul_i32 s{S_KVS}, s{S_PG}, {PB}", f"s_mov_b32 s{S_OEX}, s{S_T0}")
        self.dma9_setup(S_HG)
        self.dma9(R_X, 8)
        self.stamp(3, 2)
        self.table_load()
        if o['spf'] == 2:
            a(f"s_cmp_lg_u32 s{S_WAVE}, 7", "s_cbranch_scc1 L_nospf")
            self.wq_prefetch(3, None)
            a("L_nospf:")
        if o['l01']:
            self.wq_setup(0, 2)
            self.loader_flag()
            for d in range(o['l01']):
                self.wq_dma(d)
        a("s_setprio 1", f"s_waitcnt vmcnt({10 + 3 * o['l01']})")
        self.stamp(1)
        self.stamp(4, 2)
        a("s_barrier")
        a(f"s_bitcmp1_b32 s{S_HG}, 0", "s_cbranch_scc1 L_vproj")
        D = 32
        NB = o['nb']
        for isv in (0, 1):
            if isv:
                a.label("L_vproj")

            def rd(s):
                xb = 40 + 8 * (s % NB)
                return [f"ds_read_b128 {vr(xb,4)}, v{14+(s&1)} offset:{(s>>1)*1024}",
                        f"ds_read_b64_tr_b16 {vr(xb+4,2)}, v17 offset:{s*1536}", f"ds_read_b64_tr_b16 {vr(xb+6,2)}, v17 offset:{s*1536+192}"]
            for s in range(NB - 1):
                a(rd(s))
            for s in range(18):
                if s == o['sb']:
                    a("s_waitcnt vmcnt(0)", "s_barrier")
                if s == 17 and o['sb'] == 18 and not o['l01']:
                    a("s_waitcnt vmcnt(0)")
                if s + NB - 1 < 18:
                    a(rd(s + NB - 1))
                left = min(18 - 1 - s, NB - 1)
                xb = 40 + 8 * (s % NB)
                c = "0" if s == 0 else None
                a(f"s_waitcnt lgkmcnt({min(15,3*left)})", M16(D, xb, xb + 4, c) if isv else M16(D, xb + 4, xb, c))
            g = S_OEX
            if not isv:
                a(f"s_lshr_b32 s{S_T0}, s{g}, 1", f"s_lshl_b32 s{S_T0}, s{S_T0}, 10", f"s_lshl_b32 s{S_T1}, s{S_PBI}, 8", f"s_add_u32 s{S_T0}, s{S_T0}, s{S_T1}",
                  f"s_add_u32 s{S_T0}, s{S_T0}, s{S_KVS}",
                  f"s_lshl_b32 s{S_T1}, s{g}, 6", f"s_add_u32 s{S_T1}, s{S_T1}, s{S_KVS}", f"s_add_u32 s{S_T1}, s{S_T1}, 2048",
                  f"s_mov_b32 s{S_T2}, {hex(f2u(CSCALE))}")
                for r in range(4):
                    a(f"v_mul_f32 v{D+r}, s{S_T2}, v{D+r}")
                a(f"v_cvt_pk_bf16_f32 v{D}, v{D}, v{D+1}", f"v_cvt_pk_bf16_f32 v{D+1}, v{D+2}, v{D+3}",
                  f"s_lshl_b32 s{S_T3}, s{S_PG}, 2", f"s_add_u32 s{S_T3}, s{S_T3}, s{g}", f"s_lshl_b32 s{S_T3}, s{S_T3}, 2", f"s_add_u32 s{S_T3}, s{S_T3}, {WS_KN}",
                  f"v_dot2_f32_bf16 v36, v{D}, v{D}, 0",
                  f"s_cmp_eq_u32 s{S_HQ}, 0", "s_cbranch_scc0 L_krem",
                  f"buffer_store_dwordx2 {vr(D,2)}, v28, s[{R_WS}:{R_WS+3}], s{S_T0} offen sc1",
                  f"v_dot2_f32_bf16 v36, v{D+1}, v{D+1}, v36", "s_nop 2", "v_mov_b32 v37, v36", "s_nop 1",
                  "v_permlane16_swap_b32 v36, v37", "s_nop 1", "v_add_f32 v36, v36, v37", "s_nop 0", "v_mov_b32 v37, v36", "s_nop 1",
                  "v_permlane32_swap_b32 v36, v37", "s_nop 1", "v_add_f32 v36, v36, v37", "s_branch L_knorm",
                  "L_krem:", "s_mov_b64 exec, 0xffff",
                  f"buffer_store_dword v{D}, v29, s[{R_WS}:{R_WS+3}], s{S_T1} offen sc1", "s_mov_b64 exec, -1", f"s_add_u32 s{S_T3}, s{S_T3}, 512",
                  "L_knorm:", "s_nop 1")
                self.row_max16(36)
                a("v_mov_b32 v37, 0", "s_mov_b64 exec, 1", f"buffer_store_dword v36, v37, s[{R_WS}:{R_WS+3}], s{S_T3} offen sc1", "s_mov_b64 exec, -1")
                if o['l01']:
                    a("s_waitcnt vmcnt(2)")
                a("s_branch L_kvdone")
            else:
                a(f"s_mul_i32 s{S_T0}, s{g}, {VG}", f"s_add_u32 s{S_T0}, s{S_T0}, s{S_KVS}", f"s_add_u32 s{S_T0}, s{S_T0}, 2304",
                  "v_cmp_eq_u32 vcc, 2, v13", f"v_cmp_eq_u32 s[{S_EX}:{S_EX+1}], 3, v13", "v_mov_b32 v30, 0x3f803f80", "s_nop 0",
                  f"s_cmp_eq_u32 s{S_HQ}, 0",
                  f"v_cvt_pk_bf16_f32 v{D}, v{D}, v{D+1}", f"v_cvt_pk_bf16_f32 v{D+1}, v{D+2}, v{D+3}", "s_cbranch_scc0 L_vrem",
                  f"buffer_store_dwordx2 {vr(D,2)}, v21, s[{R_WS}:{R_WS+3}], s{S_T0} offen sc1", "s_branch L_vdone",
                  "L_vrem:",
                  f"v_cndmask_b32 v{D}, v{D}, v30, vcc", f"v_cndmask_b32 v{D+1}, v{D+1}, v30, vcc",
                  f"v_cndmask_b32 v{D}, v{D}, 0, s[{S_EX}:{S_EX+1}]", f"v_cndmask_b32 v{D+1}, v{D+1}, 0, s[{S_EX}:{S_EX+1}]",
                  "s_mov_b32 exec_lo, 0x000f000f", "s_mov_b32 exec_hi, 0x000f000f",
                  f"buffer_store_dwordx2 {vr(D,2)}, v22, s[{R_WS}:{R_WS+3}], s{S_T0} offen sc1", "s_mov_b64 exec, -1", "L_vdone:")
                if o['l01']:
                    a("s_waitcnt vmcnt(1)")
        a.label("L_kvdone")
        if True:
            a("s_getreg_b32 s29, hwreg(HW_REG_XCC_ID, 0, 4)", f"s_cmp_lg_u32 s{S_WAVE}, 4", "s_cbranch_scc1 L_noxid",
              f"s_lshl_b32 s{S_T0}, s{S_PG}, 2", f"s_add_u32 s{S_T0}, s{S_T0}, s{S_HG}", f"s_lshl_b32 s{S_T0}, s{S_T0}, 2", f"s_add_u32 s{S_T0}, s{S_T0}, {WS_XID}",
              "v_mov_b32 v38, s29", "v_mov_b32 v39, 0", "s_mov_b64 exec, 1", f"buffer_store_dword v38, v39, s[{R_WS}:{R_WS+3}], s{S_T0} offen sc1", "s_mov_b64 exec, -1", "L_noxid:")
        self.stamp(2)
        self.stamp(5, 2)
        a(f"v_mov_b32 v{V_AV}, v20")
        self.wq_setup(o['pre'] + 1, 2)
        self.loader_flag()
        a("v_mov_b32 v100, 1", "v_mov_b32 v101, 0")
        if o['sb'] == 18:
            a("s_barrier")
        nxt = first = o['pre'] + 1
        NG = len(self.GROUPS)
        passed = -1
        signalled = False
        for gi_, (last, step) in enumerate(self.GROUPS):
            lim = 5 if passed < 2 else 8 if passed < 6 else 16 if passed < 14 else 17
            tgt = min(last + o['win'], lim)
            while nxt <= tgt:
                self.wq_dma(nxt)
                nxt += 1
            assert nxt > last
            if step == 14:
                self.wo_job_addr(0)
                self.poison_addr()
            if step == 18:
                a(f"s_cmp_ge_u32 s{S_OEX}, {648-512}", "s_cselect_b32 s16, 0, 512", f"s_add_u32 s{S_OEX}, s{S_OEX}, s16")
                self.wo_job_addr(1)
                self.loader_flag()
            if gi_ == NG - 3:
                a(f"s_and_b32 s{S_T0}, s{S_GI}, 3", f"s_mul_i32 s{S_KVS}, s{S_T0}, {37*1024}", f"s_add_u32 s{S_KVS}, s{S_KVS}, s{S_M0A}",
                  "v_lshlrev_b32 v153, 3, v0", f"s_mov_b32 s{S_T4}, {WS_KN}", f"s_lshl_b32 s{S_T5}, s{S_B}, 7")
            sig = last >= first and not signalled
            if sig:
                a(f"s_cbranch_vccnz L_l{gi_}", "s_waitcnt vmcnt(0)", f"L_l{gi_}:")
                signalled = True
            if last >= first:
                a(f"s_waitcnt vmcnt({3*(nxt-1-last)})")
            passed = step
            if step == 10:
                a(f"v_mov_b32 v150, {L_FLAG}", "v_mov_b32 v152, 0", "v_mov_b32 v153, 0", "v_mov_b32 v154, 0", "v_mov_b32 v155, 0", "v_mov_b32 v151, 0", "ds_write_b128 v150, v[152:155]", "s_waitcnt lgkmcnt(0)")
            if gi_ == NG - 3 and o['tre']:
                a("s_cbranch_vccnz L_try1", f"s_mov_b32 s{S_T0}, {WS_CNT}", f"buffer_load_dword v152, v160, s[{R_WS}:{R_WS+3}], s{S_T0} offen sc0 sc1", "L_try1:")
            if gi_ == NG - 2:
                assert nxt == 18
                if o['shard']:
                    a("s_cbranch_vccnz L_try0")
                    if not o['tre']:
                        a(f"s_mov_b32 s{S_T0}, {WS_CNT}", f"buffer_load_dword v152, v160, s[{R_WS}:{R_WS+3}], s{S_T0} offen sc0 sc1")
                    a("s_waitcnt vmcnt(0)",
                      "v_cmp_ne_u32 s[16:17], v152, v161", "s_cmp_eq_u64 s[16:17], 0", "s_cselect_b32 s16, 1, 0", "v_mov_b32 v152, s16", "ds_write_b32 v150, v152", "s_waitcnt lgkmcnt(0)", "L_try0:")
                else:
                    a("s_cbranch_vccnz L_try0", f"buffer_load_dword v152, v151, s[{R_DBG}:{R_DBG+3}], s{S_T5} offen sc0 sc1", "s_waitcnt vmcnt(0)",
                      "v_lshrrev_b32 v152, 7, v152", "ds_write_b32 v150, v152", "s_waitcnt lgkmcnt(0)", "L_try0:")
            if step in (2, 6, 10, 14, 22):
                self.stamp(1 + (2, 6, 10, 14, 22).index(step), 3)
            a("s_barrier")
            if sig:
                self.kv_signal()
            if gi_ == NG - 2:
                break
        kn = [f"s_cmp_lg_u32 s{S_WAVE}, 7", None, f"buffer_load_dwordx2 v[154:155], v153, s[{R_WS}:{R_WS+3}], s{S_T4} offen sc1",
              f"buffer_load_dwordx2 v[156:157], v153, s[{R_WS}:{R_WS+3}], s{S_T4} offen offset:512 sc1"]
        a("ds_read_b32 v152, v150", "s_waitcnt lgkmcnt(0)", "v_cmp_eq_u32 vcc, 0, v152", "s_cbranch_vccnz L_notyet")
        self.stamp(4)
        a(kn[0], "s_cbranch_scc1 L_kna", kn[2:], "L_kna:")
        self.kv_dma(0, o['ka'])
        a(f"s_cmp_eq_u32 s{S_WAVE}, 7", "s_cbranch_scc1 L_knb", f"s_waitcnt vmcnt({o['ka']})", "L_knb:")
        self.stamp(6, 3)
        a("s_barrier")
        self.kv_dma(4 * o['ka'], o['kv1'] - o['ka'])
        a("s_branch L_first")
        a("L_notyet:", "s_waitcnt vmcnt(0)")
        self.stamp(6, 3)
        a("s_barrier")
        a(f"s_mov_b32 s{S_CNT}, {SPIN_L}", f"s_cmp_lg_u32 s{S_WAVE}, 7", "s_cbranch_scc1 L_relay", f"s_mov_b32 s{S_CNT}, {SPIN}")
        if o['shard']:
            a(f"s_mov_b32 s{S_T0}, {WS_CNT}", "L_poll1:", f"buffer_load_dword v152, v160, s[{R_WS}:{R_WS+3}], s{S_T0} offen sc0 sc1",
              f"s_cmp_gt_u32 s{S_CNT}, {SPIN - 4}", "s_cbranch_scc1 L_pf", f"s_cmp_lg_u32 s{S_CNT}, {SPIN - o['nslow']}", "s_cbranch_scc1 L_ps",
              "s_mov_b64 exec, 1", f"buffer_atomic_add v100, v101, s[{R_DBG}:{R_DBG+3}], s{S_T5} offen sc1", "s_mov_b64 exec, -1",
              "L_ps:", f"buffer_load_dwordx3 v[162:164], v151, s[{R_DBG}:{R_DBG+3}], s{S_T5} offen sc0 sc1", "s_waitcnt vmcnt(0)",
              "v_lshrrev_b32 v162, 7, v162", "v_or3_b32 v162, v162, v163, v164", "v_cmp_ne_u32 vcc, 0, v162", "s_cbranch_vccnz L_poll1d",
              "L_pf:", f"s_sub_u32 s{S_CNT}, s{S_CNT}, 1", "s_cbranch_scc1 L_poll1d", "s_waitcnt vmcnt(0)", "v_cmp_ne_u32 vcc, v152, v161", "s_cbranch_vccnz L_poll1")
        else:
            a("L_poll1:", f"buffer_load_dword v152, v151, s[{R_DBG}:{R_DBG+3}], s{S_T5} offen sc0 sc1", f"s_sub_u32 s{S_CNT}, s{S_CNT}, 1",
              "s_cbranch_scc1 L_poll1d", "s_waitcnt vmcnt(0)", "v_cmp_gt_u32 vcc, 0x80, v152", "s_cbranch_vccnz L_poll1")
        a("L_poll1d:", "v_mov_b32 v152, 1", "ds_write_b32 v150, v152", kn[2:], "s_branch L_flagok")
        a("L_relay:", "ds_read_b32 v152, v150", f"s_sub_u32 s{S_CNT}, s{S_CNT}, 1", "s_cbranch_scc1 L_flagok", "s_waitcnt lgkmcnt(0)",
          "v_cmp_eq_u32 vcc, 0, v152", "s_cbranch_vccnz L_relay", "L_flagok:")
        self.stamp(4)
        self.kv_dma(0, o['kv1'])
        a("L_first:")
        self.stamp(3)
        self.stamp(6, 2)
        a(f"s_cmp_lg_u32 s{S_WAVE}, 7", "s_cbranch_scc1 L_nokn", f"s_waitcnt vmcnt({o['kv1']})", "v_max_f32 v154, v154, v155", "v_max_f32 v156, v156, v157")
        self.row_max16(154)
        self.row_max16(156)
        a("s_nop 0")
        for k in range(4):
            a(f"v_readlane_b32 s{16+k}, v154, {16*k}", f"v_readlane_b32 s{20+k}, v156, {16*k}")
        a("s_nop 1", "s_max_u32 s16, s16, s17", "s_max_u32 s18, s18, s19", "s_max_u32 s20, s20, s21", "s_max_u32 s22, s22, s23",
          "s_max_u32 s16, s16, s18", "s_max_u32 s20, s20, s22", "v_mov_b32 v154, s16", "v_add_f32 v154, s20, v154", "v_sqrt_f32 v154, v154",
          f"v_mov_b32 v155, {L_KMAX}", "ds_write_b32 v155, v154", "L_nokn:")
        self.stamp(3, 6)
        a("s_waitcnt vmcnt(0) lgkmcnt(0)")
        self.stamp(1, 6)
        a("s_barrier")
        self.stamp(2, 6)
        self.kv_dma(4 * o['kv1'], 37 - o['kv1'])
        a("s_setprio 2", f"s_mov_b32 s{S_STG}, 0", "s_waitcnt vmcnt(0)")
        self.stamp(5)
        self.stamp(4, 6)
        a("s_barrier")
        self.stamp(5, 6)
        if o['shard']:
            a(f"s_cmp_lg_u32 s{S_WAVE}, 7", "s_cbranch_scc1 L_nosaw", "s_cmp_ge_u32 s2, 8", "s_cbranch_scc1 L_nosaw", "s_mov_b64 exec, 1",
              f"buffer_atomic_add v100, v101, s[{R_DBG}:{R_DBG+3}], s{S_T5} offen offset:8 sc1", "s_mov_b64 exec, -1", "L_nosaw:")
        self.wo_job_loads(0)
        a(f"s_cmp_lt_u32 s{S_OEX}, 512", "s_cbranch_scc1 L_nowo2")
        self.wo_job_loads(1)
        a("L_nowo2:", f"s_lshl_b32 s{S_T0}, s{S_PG}, 4", f"s_add_u32 s{S_T0}, s{S_T0}, {WS_XID}", "v_and_b32 v8, 3, v0", "v_lshlrev_b32 v8, 2, v8",
          f"buffer_load_dword v9, v8, s[{R_WS}:{R_WS+3}], s{S_T0} offen sc1")
        self.poison()
        a("s_waitcnt vmcnt(5)")
        self.wo_finish()
        a(f"v_mov_b32 v10, {L_FLAG+8}", "v_cmp_ne_u32 vcc, s29, v9", "s_cmp_eq_u64 vcc, 0", f"s_cselect_b32 s{S_T0}, {o['xcc']}, 0", f"v_mov_b32 v11, s{S_T0}",
          "ds_write_b32 v10, v11", "s_waitcnt lgkmcnt(0)")
        self.join_signal(12, "l")
        a("s_mov_b64 exec, -1")
        self.tail_scalars()
        a("v_mov_b32 v12, 1", f"s_mov_b32 s{S_CNT}, {SPIN}", f"s_cmp_lg_u32 s{S_WAVE}, 7", "s_cbranch_scc1 L_rel2", f"s_lshl_b32 s{S_T0}, s{S_B}, 7",
          "L_poll2:", f"buffer_load_dword v11, v15, s[{R_DBG}:{R_DBG+3}], s{S_T0} offen offset:4 sc0 sc1", f"s_sub_u32 s{S_CNT}, s{S_CNT}, 1",
          "s_cbranch_scc1 L_poll2d", "s_waitcnt vmcnt(0)", "v_cmp_gt_u32 vcc, 0x80, v11", "s_cbranch_vccz L_poll2d", "s_sleep 16", "s_branch L_poll2",
          "L_poll2d:", "ds_write_b32 v10, v12 offset:4", "s_branch L_rel2d",
          "L_rel2:", "ds_read_b32 v11, v10 offset:4", f"s_sub_u32 s{S_CNT}, s{S_CNT}, 1", "s_cbranch_scc1 L_rel2d", "s_waitcnt lgkmcnt(0)",
          "v_cmp_ne_u32 vcc, 0, v11", "s_cbranch_vccnz L_rel2d", "s_sleep 16", "s_branch L_rel2", "L_rel2d:")
        a(f"s_mul_i32 s{S_T0}, s{S_HG}, 9", f"s_lshl_b32 s{S_T1}, s{S_I}, 1", f"s_add_u32 s{S_T0}, s{S_T0}, s{S_T1}", f"s_mul_i32 s{S_T0}, s{S_T0}, {18*1024}", f"s_add_u32 s{S_T0}, s{S_T0}, {WS_WOT}")
        for n in range(36):
            a(f"buffer_load_dwordx4 {vr(112+4*n,4)}, v1, s[{R_WS}:{R_WS+3}], s{S_T0} offen offset:{(n&3)*1024} sc1")
            if n & 3 == 3:
                a(f"s_add_u32 s{S_T0}, s{S_T0}, 4096")
        self.tail_vaddr()
        a("s_waitcnt vmcnt(0) lgkmcnt(0)", "s_barrier")
        a(f"s_mul_i32 s{S_T0}, s{S_HG}, 9", f"s_add_u32 s{S_T0}, s{S_T0}, 8", f"s_mul_i32 s{S_T0}, s{S_T0}, {18*1024}", f"s_add_u32 s{S_T0}, s{S_T0}, {WS_WOT}",
          f"s_add_u32 s{S_T0}, s{S_T0}, s{S_M0A}")
        for k in range(4):
            a(f"s_add_u32 m0, s{S_M0A}, {L_W8 + 4096*k}", f"s_add_u32 s{S_T1}, s{S_T0}, {4096*k}", f"buffer_load_dwordx4 v1, s[{R_WS}:{R_WS+3}], s{S_T1} offen sc1 lds")
        a(f"s_and_b32 s{S_T2}, s{S_I}, 2", f"s_sub_u32 s{S_T2}, 16, s{S_T2}", f"s_lshl_b32 s{S_T2}, s{S_T2}, 10", f"s_add_u32 s{S_T1}, s{S_T0}, s{S_T2}",
          f"s_add_u32 s{S_T2}, s{S_T2}, s{S_M0A}", f"s_add_u32 m0, s{S_T2}, {L_W8}", "s_nop 0", f"buffer_load_dwordx4 v1, s[{R_WS}:{R_WS+3}], s{S_T1} offen sc1 lds",
          "s_waitcnt vmcnt(0)")
        self.tail_late()

    def kv_signal(self):
        a, o = self.a, self.o
        if o['shard']:
            a("s_cbranch_vccnz L_nosig", "s_setprio 3", f"v_add_u32 v161, {17 if o['badv0'] else 16}, v161",
              f"s_bfe_u32 s{S_T0}, s2, 0x20001", f"s_lshl_b32 s{S_T0}, s{S_T0}, 1", f"s_and_b32 s{S_T1}, s{S_GI}, 1", f"s_add_u32 s{S_T0}, s{S_T0}, s{S_T1}",
              f"s_lshl_b32 s{S_T0}, s{S_T0}, 9", f"s_add_u32 s{S_T0}, s{S_T0}, {WS_CNT}", "s_mov_b64 exec, 1",
              f"buffer_atomic_add v100, v101, s[{R_WS}:{R_WS+3}], s{S_T0} offen sc1", "s_mov_b64 exec, -1", "s_setprio 1", "L_nosig:")
        else:
            a("s_cbranch_vccnz L_nosig", "s_setprio 3", f"s_lshl_b32 s{S_T0}, s{S_B}, 7", "s_mov_b64 exec, 1",
              f"buffer_atomic_add v100, v101, s[{R_DBG}:{R_DBG+3}], s{S_T0} offen sc1", "s_mov_b64 exec, -1", "s_setprio 1", "L_nosig:")

    def join_signal(self, v, tag):
        self.a(f"v_mov_b32 v{v}, {L_FLAG+4}", f"v_mov_b32 v{v+1}, 1", f"v_mov_b32 v{v+3}, 0", f"s_lshl_b32 s{S_T0}, s{S_B}, 7", "s_mov_b64 exec, 1",
               "s_waitcnt vmcnt(0)", f"ds_add_rtn_u32 v{v+2}, v{v}, v{v+1}", "s_waitcnt lgkmcnt(0)", f"v_cmp_eq_u32 vcc, 3, v{v+2}", f"s_cbranch_vccz L_js{tag}",
               f"buffer_atomic_add v{v+1}, v{v+3}, s[{R_DBG}:{R_DBG+3}], s{S_T0} offen offset:4 sc1", f"L_js{tag}:")

    def wo_job_addr(self, rep):
        a = self.a
        if rep == 0:
            a(f"s_lshl_b32 s{S_OEX}, s{S_PG}, 2", f"s_add_u32 s{S_OEX}, s{S_OEX}, s{S_HG}", f"s_lshl_b32 s{S_OEX}, s{S_OEX}, 2", f"s_add_u32 s{S_OEX}, s{S_OEX}, s{S_I}")
        f = S_OEX
        AD = 208 + 8 * rep
        a(f"s_mul_i32 s16, s{f}, 3641", "s_lshr_b32 s16, s16, 16", "s_mul_i32 s19, s16, 18", f"s_sub_u32 s19, s{f}, s19",
          "s_mul_i32 s21, s16, 7282", "s_lshr_b32 s21, s21, 16", "s_mul_i32 s17, s21, 9", "s_sub_u32 s17, s16, s17")
        a("s_mul_i32 s22, s21, 288", "s_lshr_b32 s23, s17, 1", "s_lshl_b32 s23, s23, 6", "s_add_u32 s22, s22, s23", "s_and_b32 s23, s17, 1", "s_lshl_b32 s23, s23, 3",
          "s_add_u32 s22, s22, s23", "s_cmp_eq_u32 s17, 8", "s_cselect_b32 s23, 3, 4",
          "v_bfe_u32 v200, v0, 2, 2", "v_lshlrev_b32 v200, s23, v200", "v_and_b32 v201, 3, v0", "v_lshl_add_u32 v200, v201, 1, v200", "v_add_u32 v200, s22, v200",
          "s_cmp_ge_u32 s19, 16", f"s_cbranch_scc1 L_wok1_{rep}")
        cy = [(j & 3) + 8 * (j >> 2) for j in range(8)]
        a("s_lshr_b32 s23, s19, 2", "s_add_u32 s23, s23, s21", "s_and_b32 s23, s23, 3", f"s_mul_i32 s22, s23, {144*1152}",
          "s_and_b32 s23, s19, 1", f"s_mul_i32 s23, s23, {72*1152}", "s_add_u32 s22, s22, s23", "s_bfe_u32 s23, s19, 0x10001", f"s_mul_i32 s23, s23, {36*1152}", "s_add_u32 s22, s22, s23",
          "v_lshrrev_b32 v201, 5, v0", "v_bfe_u32 v202, v0, 4, 1",
          f"v_mul_u32_u24 v203, {4*1152}, v201", "v_add_u32 v203, v200, v203",
          f"v_mul_u32_u24 v204, {3*1152}, v201", f"v_sub_u32 v204, {16*1152}, v204", "v_mul_u32_u24 v204, v202, v204", f"v_add_u32 v{AD}, v203, v204")
        for j in range(1, 8):
            dj = 18 + cy[j-1] - cy[j]
            a(f"v_mul_u32_u24 v204, {dj*1152}, v202", f"v_add_u32 v204, {cy[j]*1152}, v204", f"v_add_u32 v{AD+j}, v203, v204")
        a(f"s_branch L_wold_{rep}", f"L_wok1_{rep}:", "s_and_b32 s22, s19, 1", f"s_mul_i32 s22, s22, {36*1152}",
          "v_lshrrev_b32 v201, 4, v0", "v_add_u32 v201, s21, v201", "v_and_b32 v201, 3, v201", f"v_mul_u32_u24 v201, {144*1152}, v201", "v_add_u32 v203, v200, v201")
        for j in range(8):
            hq, hh, e = j >> 2, (j >> 1) & 1, j & 1
            row = 72 * hq + 18 + ((16 + hh) if e else (11 + 4 * hh))
            a(f"v_add_u32 v{AD+j}, {row*1152}, v203")
        a(f"L_wold_{rep}:")
        a(f"s_mov_b32 s{30+rep}, s22")

    def wo_job_loads(self, rep):
        for j in range(8):
            self.a(f"buffer_load_ushort v{224+8*rep+j}, v{208+8*rep+j}, s[{R_WO}:{R_WO+3}], s{30+rep} offen")

    def wo_job_finish(self, rep):
        a = self.a
        DT = 224 + 8 * rep
        a(f"s_lshl_b32 s22, s{S_OEX}, 10", f"s_add_u32 s22, s22, {WS_WOT}")
        for j in range(4):
            a(f"v_lshl_or_b32 v{240+4*rep+j}, v{DT+1+2*j}, 16, v{DT+2*j}")
        a(f"buffer_store_dwordx4 {vr(240+4*rep,4)}, v1, s[{R_WS}:{R_WS+3}], s22 offen sc1")

    def wo_finish(self):
        a = self.a
        a(f"s_cmp_ge_u32 s{S_OEX}, 512", "s_cbranch_scc0 L_wo3")
        self.wo_job_finish(1)
        a(f"s_sub_u32 s{S_OEX}, s{S_OEX}, 512", "L_wo3:")
        self.wo_job_finish(0)

    def poison_addr(self):
        a = self.a
        a([f"v_mov_b32 v{192+j}, -1" for j in range(4)])
        a(f"s_lshl_b32 s32, s{S_PG}, 2", f"s_add_u32 s32, s32, s{S_HG}", f"s_mul_i32 s32, s32, {OEX_W}", f"s_add_u32 s32, s32, {WS_OEX}",
          f"s_lshl_b32 s33, s{S_I}, 12", "s_add_u32 s33, s33, s32", f"s_lshl_b32 s34, s{S_PBI}, 10", "s_add_u32 s34, s34, s32", "s_add_u32 s34, s34, 16384")

    def poison(self):
        a = self.a
        for k in range(4):
            a(f"buffer_store_dwordx4 v[192:195], v1, s[{R_WS}:{R_WS+3}], s33 offen offset:{k*1024} sc0 sc1")
        a(f"buffer_store_dwordx4 v[192:195], v1, s[{R_WS}:{R_WS+3}], s34 offen sc0 sc1")

    def attention(self):
        a, o = self.a, self.o
        UNP = o['unp']
        a(f"v_mul_f32 v7, v6, v{QR+1}", f"v_mul_f32 v22, v6, v{QR2+1}", f"v_mov_b32 v6, {hex(f2u(-1.0 if o['force_fb'] else TSAFE))}",
          "v_cmp_nle_f32 vcc, v7, v6", "v_cmp_nle_f32 s[42:43], v22, v6", "v_sub_f32 v7, 0, v7", "v_sub_f32 v22, 0, v22",
          f"v_cvt_pk_bf16_f32 v{QR+1}, v7, 0", f"v_cvt_pk_bf16_f32 v{QR2+1}, v22, 0", "s_or_b64 vcc, vcc, s[42:43]", "s_cbranch_vccnz L_fallback", "L_fbdone:")
        q = self.qk(S[0], 0, 0)
        f1 = [f"s_lshl_b32 s{S_T0}, s{S_HQ}, 12", f"s_lshl_b32 s{S_T1}, s{S_PBI}, 11", f"s_add_u32 s{S_T2}, s{S_T0}, s{S_T1}",
              f"s_lshl_b32 s{S_T0}, s{S_PBI}, 9", f"s_lshl_b32 s{S_T1}, s{S_HQ}, 7", f"s_add_u32 s{S_T3}, s{S_T0}, s{S_T1}",
              f"v_mov_b32 v{V_JN}, {L_FLAG+4}", f"s_mov_b32 s{S_CNT}, {32//UNP}", "v_bfe_u32 v6, v0, 4, 1", "v_lshrrev_b32 v7, 5, v0",
              "v_and_b32 v22, 15, v0", f"v_lshlrev_b32 v{V_OA}, 10, v6", f"v_lshl_add_u32 v{V_OA}, v7, 9, v{V_OA}", f"v_lshl_add_u32 v{V_OA}, v22, 4, v{V_OA}", f"v_add_u32 v{V_OA}, s{S_T2}, v{V_OA}",
              f"v_lshlrev_b32 v{V_OB}, 8, v6", f"v_lshl_add_u32 v{V_OB}, v7, 6, v{V_OB}", f"v_lshl_add_u32 v{V_OB}, v22, 2, v{V_OB}"]
        a("s_nop 0", q[0], f1, q[1], q[2], f"v_add_u32 v{V_OB}, s{S_T3}, v{V_OB}", "s_nop 9")
        self.stamp(6)
        self.stamp(6, 6)
        body = []
        units = [(kb, pr) for kb in range(2 * UNP) for pr in range(2)]
        for i, (kb, pr) in enumerate(units):
            cur, nxt = S[i % 2], S[(i + 1) % 2]
            q = self.qk(nxt, kb + pr, 1 - pr)
            e = EX(cur, 32)
            sm3p = SM(OS[2*(1-pr)+1], VV[(kb - 1 + pr) % 2][1], nxt + 24)
            sm = [SM(OS[2*pr], VV[kb % 2][0], cur), SM(OS[2*pr], VV[kb % 2][1], cur + 8), SM(OS[2*pr+1], VV[kb % 2][0], cur + 16)]
            if pr == 0:
                v0, v1 = self.ldV(kb + 1)
                x = [[v0], [v1], [], [], []]
            else:
                x = [[], [], self.ldKm(kb + 2), self.ldKr((kb + 3) // 2) if kb % 2 == 1 else [], ["s_waitcnt lgkmcnt(0)"]]
            body += e[0:2] + [sm3p] + x[0] + e[2:5] + [q[0]] + e[5:13] + [sm[0]] + x[1] + e[13:18] + [sm[1]] + x[2] + e[18:21] + [q[1]] + x[3] + e[21:24] + [q[2]] + e[24:27] + [sm[2]] + x[4] + e[27:32]
        reach = max(int(x.split("offset:")[1]) + {V_AK: 1024, V_AR: 2048 + 256, V_AV: 2304 + VG}[int(x.split(", v")[1].split()[0])] for x in body if x.startswith("ds_read"))
        assert reach <= 4096 * o['kv1'] and L_KV + 4096 * o['kv1'] <= dslot(17)
        assert L_W8 + 18432 <= L_KV + (32 - UNP) * PB
        body += [f"v_add_u32 v{V_AK}, {UNP*PB}, v{V_AK}", f"v_add_u32 v{V_AR}, {UNP*PB}, v{V_AR}", f"v_add_u32 v{V_AV}, {UNP*PB}, v{V_AV}"]
        a(".p2align 6", "L_main:", body, f"s_sub_u32 s{S_CNT}, s{S_CNT}, 1", f"s_cmp_lg_u32 s{S_CNT}, s{S_BAR}", "s_cbranch_scc1 L_nob", "s_barrier", "L_nob:",
          f"s_cmp_lg_u32 s{S_CNT}, 1", "s_cbranch_scc1 L_main")
        a("s_barrier", f"ds_read_b64 v[22:23], v{V_JN}")
        DW = [192, 204]

        def publish(pr):
            x, y, d = OS[2*pr], OS[2*pr+1], DW[pr]
            vals = [x + j for j in range(9)] + [y + j for j in range(9)]
            c = [f"v_cvt_pk_bf16_f32 v{d+j}, v{vals[2*j]}, v{vals[2*j+1]}" for j in range(9)]
            a(f"v_rcp_f32 v6, v{x+9}", "s_nop 0" if pr else f"s_mov_b32 s{S_CNT}, {SPIN_L}", [f"v_mul_f32 v{r}, v{r}, v6" for r in vals[:9]], c[:4], f"v_rcp_f32 v7, v{y+9}")
            if pr == 0:
                a("L_pchk:", "v_cmp_gt_u32 vcc, 4, v22", "s_cbranch_vccz L_pok",
                  f"ds_read_b64 v[22:23], v{V_JN}", "s_waitcnt lgkmcnt(0)", f"s_sub_u32 s{S_CNT}, s{S_CNT}, 1", "s_cbranch_scc0 L_pchk", "L_pok:")
            a("v_cmp_ne_u32 vcc, 0, v23", f"s_cbranch_vccnz L_pub1{pr}")
            for fl in (" sc0 sc1", ""):
                st = lambda n, r, v, so, off: f"buffer_store_dword{n} {r}, v{v}, s[{R_WS}:{R_WS+3}], s{so} offen offset:{off}{fl}"
                so = S_OA if pr else S_OW
                a(st('x4', vr(d, 4), V_OA, so, 0), [f"v_mul_f32 v{r}, v{r}, v7" for r in vals[9:]], c[4:8], st('x4', vr(d + 4, 4), V_OA, so, 256), c[8], st('', vr(d + 8), V_OB, S_OB, 1024 * pr))
                if fl:
                    a(f"s_branch L_pub2{pr}", f"L_pub1{pr}:")
            a(f"L_pub2{pr}:")
            if pr:
                a(self.peer_loads())
            else:
                a(f"v_add_u32 v201, {L_O}, v{V_OA}", f"v_add_u32 v202, {L_O + 65536}, v{V_OB}")
            a(f"ds_write_b128 v201, {vr(d, 4)} offset:{8192*pr}", f"ds_write_b128 v201, {vr(d + 4, 4)} offset:{8192*pr + 256}", f"ds_write_b32 v202, v{d + 8} offset:{1024*pr}")
        NV = 2 * UNP
        for j in range(2 * NV):
            pr, kb = j // NV, j % NV
            cur, nxt = S[j % 2], S[(j + 1) % 2]
            q = self.qk(nxt, (j + 1) % NV, (j + 1) // NV) if j + 1 < 2 * NV else [[], [], []]
            e = EX(cur, 32)
            sm3p = SM(OS[2*((j - 1) // NV % 2)+1], VV[(j - 1) % 2][1], nxt + 24)
            sm = [SM(OS[2*pr], VV[j % 2][0], cur), SM(OS[2*pr], VV[j % 2][1], cur + 8), SM(OS[2*pr+1], VV[j % 2][0], cur + 16)]
            v0, v1 = self.ldV((j + 1) % NV) if j + 1 < 2 * NV else ([], [])
            km = self.ldKm((j + 2) % NV) if j + 2 < 2 * NV else []
            kr = self.ldKr(((j + 3) // 2) % UNP) if j % 2 == 1 and j + 3 < 2 * NV else []
            a(e[0:2], sm3p, v0, e[2:5], q[0], e[5:13], sm[0], v1, e[13:18], sm[1], km, e[18:21], q[1], kr, e[21:24], q[2], e[24:27], sm[2], "s_waitcnt lgkmcnt(0)", e[27:32])
            if j == NV:
                publish(0)
            if j == o['nj']:
                a("s_barrier")
        a("s_nop 1", SM(O2[1], VV[1][1], S[1] + 24))
        self.stamp(7)
        a("s_setprio 3", "s_barrier")
        publish(1)
        self.tail_vaddr()
        a(f"v_add_u32 v21, {L_W8}, v1")
        self.stamp(1, 4)
        if o['own1']:
            a("s_waitcnt lgkmcnt(0)", "s_barrier")
        self.collect("e")
        q = []
        RO, RW, ACC = [56 + 8 * k for k in range(5)], [60 + 8 * k for k in range(5)], 100
        for n in range(18 + 4):
            if n >= 4:
                ks = n - 4
                last = max(i for i, t in enumerate(q) if t == ks)
                a(f"s_waitcnt lgkmcnt({min(len(q) - 1 - last, 14)})", M16(ACC, RW[ks % 5], RO[ks % 5], "0" if ks == 0 else None))
                del q[:last + 1]
            if n < 18:
                x = self.ofrag(RO[n % 5], 0, n) + [f"ds_read_b128 {vr(RW[n % 5], 4)}, v21 offset:{n*1024}"]
                a(x)
                q += [n] * len(x)
        a("s_nop 7", f"v_cvt_pk_bf16_f32 v6, v{ACC}, v{ACC+1}", f"v_cvt_pk_bf16_f32 v7, v{ACC+2}, v{ACC+3}",
          f"buffer_store_dwordx2 v[6:7], v23, s[{R_OUT}:{R_OUT+3}], s41 offen")
        self.finish()

    def peer_loads(self):
        return [f"buffer_load_dwordx4 {vr(24+4*k,4)}, v1, s[{R_WS}:{R_WS+3}], s{16+k} offen sc0 sc1" for k in range(7)]

    def ofrag(self, r, tp, ks):
        if ks < 16:
            return [f"ds_read_b128 {vr(r,4)}, v{8+tp} offset:{ks*4096}"]
        if ks == 16:
            return [f"ds_read2_b32 {vr(r,2)}, v{52+tp} offset0:0 offset1:16", f"ds_read2_b32 {vr(r+2,2)}, v{52+tp} offset0:32 offset1:48"]
        return [f"ds_read2_b32 {vr(r,2)}, v{16+tp} offset0:0 offset1:16", f"ds_read2_b32 {vr(r+2,2)}, v{16+tp} offset0:32 offset1:48"]

    def tail_vaddr(self):
        self.a(f"s_lshl_b32 s{S_T0}, s{S_I}, 10", f"s_add_u32 s{S_T0}, s{S_T0}, {L_O}", f"v_add_u32 v8, s{S_T0}, v1", "v_xor_b32 v9, 0x400, v8", "v_xor_b32 v10, 0x800, v8", "v_xor_b32 v11, 0xc00, v8",
               "v_lshrrev_b32 v6, 4, v0", "v_and_b32 v7, 15, v0", "v_mul_u32_u24 v22, 0x900, v7", "v_lshl_add_u32 v23, v6, 3, v22", "v_lshl_add_u32 v22, v6, 4, v22",
               "v_lshlrev_b32 v6, 11, v6", "v_lshl_add_u32 v6, v7, 2, v6", f"s_lshl_b32 s{S_T0}, s{S_I}, 8", f"s_add_u32 s{S_T0}, s{S_T0}, {L_O + 65536}",
               f"v_add_u32 v52, s{S_T0}, v6", "v_xor_b32 v53, 0x100, v52", "v_xor_b32 v54, 0x200, v52", "v_xor_b32 v55, 0x300, v52",
               [f"v_add_u32 v{16+k}, 0x400, v{52+k}" for k in range(4)])

    def collect(self, tag):
        a, PB_ = self.a, 24
        a(f"s_mov_b32 s{S_CNT}, {SPIN}", f"L_cl{tag}:", "s_waitcnt vmcnt(0)")
        self.stamp(3, 4)
        a(f"v_max3_u32 v6, v{PB_}, v{PB_+1}, v{PB_+2}", f"v_max3_u32 v7, v{PB_+3}, v{PB_+4}, v{PB_+5}")
        for j in range(6, 28, 4):
            a(f"v_max3_u32 v6, v6, v{PB_+j}, v{PB_+j+1}")
            if j + 3 < 28:
                a(f"v_max3_u32 v7, v7, v{PB_+j+2}, v{PB_+j+3}")
        a("v_max_u32 v7, v7, v6", "v_cmp_eq_u32 vcc, -1, v7", f"s_cbranch_vccz L_cld{tag}", f"s_sub_u32 s{S_CNT}, s{S_CNT}, 1", f"s_cbranch_scc1 L_cld{tag}", self.peer_loads(), f"s_branch L_cl{tag}", f"L_cld{tag}:")
        self.stamp(2, 4)
        for k in range(7):
            a(f"v_add_u32 v{6+(k&1)}, s{30+k}, v1", f"ds_write_b128 v{6+(k&1)}, {vr(PB_+4*k,4)}")
        a("s_waitcnt lgkmcnt(0)", "s_barrier")
        self.stamp(4, 4)
        self.stamp(4, 0)

    def tail_late(self):
        a, o = self.a, self.o
        WF, ACC = 112, 80
        RING = [56 + 4 * i for i in range(6)]
        a("s_setprio 2", "s_barrier", self.peer_loads())
        self.collect("l")
        a("s_setprio 1")
        self.stamp(7)
        q = []

        def run(seq, n0, after):
            PF = 5

            def issue(j):
                x = self.ofrag(RING[(n0 + j) % 6], *seq[j])
                a(x)
                q.extend([n0 + j] * len(x))
            for j in range(PF):
                issue(j)
            for j, (tp, ks) in enumerate(seq):
                last = max(i for i, t in enumerate(q) if t == n0 + j)
                a(f"s_waitcnt lgkmcnt({min(len(q) - 1 - last, 14)})")
                del q[:last + 1]
                c = "0" if ks == 0 else None
                r = RING[(n0 + j) % 6]
                a(M16(ACC + 4 * tp, WF + 4 * ks, r, c), M16(ACC + 16 + 4 * tp, WF + 72 + 4 * ks, r, c))
                if j + PF < len(seq):
                    issue(j + PF)
                a(after.get(j, []))

        def outp(tp):
            r = 24 + 4 * tp
            return [f"v_cvt_pk_bf16_f32 v{r+k}, v{ACC+16*(k>>1)+4*tp+2*(k&1)}, v{ACC+16*(k>>1)+4*tp+2*(k&1)+1}" for k in range(4)] + \
                   [f"buffer_store_dwordx4 {vr(r,4)}, v22, s[{R_OUT}:{R_OUT+3}], s{37+tp} offen"]
        k0 = [0, 1, 4, 5, 8, 9, 12, 13, 16]
        k1 = [6, 7, 10, 11, 14, 15, 17]
        run([(tp, ks) for ks in k0 for tp in range(4)], 0, {})
        if o['own1']:
            a("s_barrier")
            run([(tp, ks) for ks in (2, 3) for tp in range(4)], 36, {})
        else:
            k1 = [2, 3] + k1
        a("s_setprio 3", "s_barrier")
        self.stamp(6, 4)
        n1 = len(k1)
        run([(tp, ks) for tp in range(4) for ks in k1], 44, {n1 * i + 2: outp(i - 1) for i in (1, 2, 3)})
        a("s_nop 6", outp(3), "s_branch L_fin")

    def tail_scalars(self):
        a, o = self.a, self.o
        a(f"s_mul_i32 s{S_OEXB}, s{S_PG}, {OEX_G}", f"s_add_u32 s{S_OEXB}, s{S_OEXB}, {WS_OEX}", f"s_mul_i32 s{S_OW}, s{S_HG}, {OEX_W}", f"s_add_u32 s{S_OW}, s{S_OW}, s{S_OEXB}",
          f"s_add_u32 s{S_OA}, s{S_OW}, 8192", f"s_add_u32 s{S_OB}, s{S_OW}, 16384",
          f"s_lshl_b32 s23, s{S_STG}, 13", f"s_lshl_b32 s24, s{S_STG}, 10")
        for k in range(7):
            a(f"s_add_u32 s{S_T0}, s{S_I}, {4*k}")
            if k == 6:
                a(f"s_min_u32 s{S_T0}, s{S_T0}, 26")
            a(f"s_mul_i32 s{S_T1}, s{S_T0}, 7282", f"s_lshr_b32 s{S_T1}, s{S_T1}, 16", f"s_mul_i32 s{S_T2}, s{S_T1}, 9", f"s_sub_u32 s{S_T2}, s{S_T0}, s{S_T2}",
              f"s_add_u32 s{S_T1}, s{S_T1}, 1",
              f"s_lshl_b32 s{S_T0}, s{S_T2}, 10", f"s_add_u32 s{S_T0}, s{S_T0}, s23", f"s_add_u32 s{S_T3}, s24, 16384",
              f"s_lshl_b32 s{30+k}, s{S_T1}, 14", f"s_add_u32 s{30+k}, s{30+k}, s{S_T0}", f"s_lshl_b32 s{16+k}, s{S_T1}, 11", f"s_add_u32 s{16+k}, s{16+k}, s24", f"s_add_u32 s{16+k}, s{16+k}, 65536",
              f"s_cmp_eq_u32 s{S_T2}, 8", f"s_cselect_b32 s{S_T0}, s{S_T3}, s{S_T0}", f"s_cselect_b32 s{30+k}, s{16+k}, s{30+k}", f"s_add_u32 s{30+k}, s{30+k}, {L_O}",
              f"s_add_u32 s{S_T1}, s{S_T1}, s{S_HG}", f"s_and_b32 s{S_T1}, s{S_T1}, 3", f"s_mul_i32 s{S_T1}, s{S_T1}, {OEX_W}", f"s_add_u32 s{S_T0}, s{S_T0}, s{S_T1}", f"s_add_u32 s{16+k}, s{S_T0}, s{S_OEXB}")
        a(f"s_mul_i32 s{S_T0}, s{S_PG}, {64*2304}", f"s_mul_i32 s{S_T1}, s{S_B}, 1152", f"s_add_u32 s{S_T0}, s{S_T0}, s{S_T1}", f"s_mul_i32 s{S_T1}, s{S_HG}, 288",
          f"s_add_u32 s{S_T0}, s{S_T0}, s{S_T1}", f"s_lshl_b32 s{S_T1}, s{S_I}, 6", f"s_add_u32 s{S_T1}, s{S_T1}, s{S_T0}")
        for tp in range(4):
            a(f"s_xor_b32 s{S_T2}, s{S_I}, {tp}", f"s_mul_i32 s{S_T2}, s{S_T2}, {16*2304}", f"s_add_u32 s{37+tp}, s{S_T2}, s{S_T1}")
            if tp == 0:
                a(f"s_add_u32 s41, s{S_T2}, s{S_T0}", "s_add_u32 s41, s41, 256")

    def fallback(self):
        a, o = self.a, self.o
        a.label("L_fallback")
        a("s_barrier", f"s_mov_b32 s{S_BAR}, -1")
        a(f"v_mov_b32 v{QR+1}, 0", f"v_mov_b32 v{QR2+1}, 0", f"v_mov_b32 v192, v{V_AK}", f"v_mov_b32 v193, v{V_AR}", [f"v_mov_b32 v{194+k}, 0xff800000" for k in range(4)],
          "v_mov_b32 v199, 0x3f803f80", f"s_mov_b32 s{S_CNT}, 32", "L_fbl:",
          "ds_read_b32 v198, v193", "ds_read_b128 v[200:203], v192", "ds_read_b128 v[204:207], v192 offset:1024",
          f"v_add_u32 v192, {PB}, v192", f"v_add_u32 v193, {PB}, v193", "s_waitcnt lgkmcnt(0)")
        for h in range(2):
            for pr in range(2):
                a(B2(208, 198, QRS[pr], h), "s_nop 15", "s_nop 1", K16(208, 200 + 4 * h, QMS[2*pr]), K16(224, 200 + 4 * h, QMS[2*pr+1]), "s_nop 11")
                for j in range(8):
                    a(f"v_max3_f32 v{194+2*pr}, v{194+2*pr}, v{208+2*j}, v{209+2*j}", f"v_max3_f32 v{195+2*pr}, v{195+2*pr}, v{224+2*j}, v{225+2*j}")
        a(f"s_sub_u32 s{S_CNT}, s{S_CNT}, 1", f"s_cmp_lg_u32 s{S_CNT}, 0", "s_cbranch_scc1 L_fbl")
        for pr in range(2):
            x, y = 194 + 2 * pr, 195 + 2 * pr
            a("s_nop 0", f"v_permlane32_swap_b32 v{x}, v{y}", "s_nop 1", f"v_max_f32 v{x}, v{x}, v{y}", f"v_sub_f32 v{x}, 0, v{x}",
              f"v_cvt_pk_bf16_f32 v{y}, v{x}, 0", f"v_lshlrev_b32 v{y}, 16, v{y}", f"v_sub_f32 v{y}, v{x}, v{y}", f"v_cvt_pk_bf16_f32 v{QRS[pr]+1}, v{x}, v{y}")
        a("s_branch L_fbdone")

    def finish(self):
        a, o = self.a, self.o
        a("L_fin:")
        if o['stamps'] or o['dbgspan'] or o['ampk']:
            a("s_waitcnt vmcnt(0)")
            self.stamp(5, o['set'] if o['set'] in (1, 4) else 0)
        if o['ampk']:
            a(f"s_cmp_eq_u32 s{S_STG}, {1 - o['amps']}", "s_cbranch_scc1 L_end", "s_waitcnt lgkmcnt(0)", f"s_sub_u32 s{S_T0}, s{S_ST+2*o['ampb']}, s{S_ST+2*o['ampa']}")
            if o['avg']:
                a(f"s_cmp_lg_u32 s{S_I}, 0", "s_cbranch_scc1 L_end", "s_mov_b64 exec, 1", "v_mov_b32 v8, 0", f"v_mov_b32 v9, s{S_T0}", "v_mov_b32 v10, 1",
                  f"buffer_atomic_add v9, v8, s[{R_DBG}:{R_DBG+3}], 0 offen offset:16 sc1", "s_waitcnt vmcnt(0)",
                  f"buffer_atomic_add v10, v8, s[{R_DBG}:{R_DBG+3}], 0 offen offset:144 sc0 sc1", "s_waitcnt vmcnt(0)", "v_cmp_eq_u32 vcc, 0xff, v10", "s_cbranch_vccz L_end",
                  f"buffer_load_dword v9, v8, s[{R_DBG}:{R_DBG+3}], 0 offen offset:16 sc0 sc1", "s_waitcnt vmcnt(0)", f"v_readfirstlane_b32 s{S_T0}, v9", "s_nop 3", f"s_mul_i32 s{S_T0}, s{S_T0}, {o['ampk']}", f"s_lshr_b32 s{S_T0}, s{S_T0}, 8")
            else:
                a(f"s_mul_i32 s{S_T0}, s{S_T0}, {o['ampk']}" if o['ampk'] > 0 else f"s_lshr_b32 s{S_T0}, s{S_T0}, {-o['ampk']}")
            a("s_memrealtime s[18:19]", f"s_min_u32 s{S_T0}, s{S_T0}, 100000",
              "L_amp:", "s_memrealtime s[16:17]", "s_waitcnt lgkmcnt(0)", "s_sub_u32 s16, s16, s18", f"s_cmp_lt_u32 s16, s{S_T0}", "s_cbranch_scc1 L_amp")
        self.dump_stamps()
        a("L_end:", "s_endpgm")

    def build(self):
        self.start()
        self.early_front()
        self.attention()
        self.late_front()
        self.fallback()
        hdr = (open('concat_heads__grouped_kv_mqa__grouped_kv_mqa__prompt.s.ref').read().split("; Override launch geometry")[0] +
               f"; @launch grid=(256,1,1) block=(512,1,1) lds={LDS_BYTES}\n" + DOC +
               '.amdgcn_target "amdgcn-amd-amdhsa--gfx950"\n.text\n'
               f".globl {NAME}\n.p2align 8\n.type {NAME},@function\n{NAME}:\n")
        if self.o['of'] & 1:
            self.a.L = [x.replace(" sc0 sc1", " sc1") if "buffer_store" in x and f"s[{R_WS}:" in x else x for x in self.a.L]
        if self.o['of'] & 2:
            self.a.L = [x.replace(" sc0 sc1", " sc1") if "buffer_load" in x and f"s[{R_WS}:" in x else x for x in self.a.L]
        body = "".join((x + "\n") if x.endswith(":") or x.startswith(";") else ("    " + x + "\n") for x in self.a.L)
        t = table()
        tab = ".p2align 6\n.type L_table,@object\nL_table:\n" + "".join("    .long " + ", ".join(str(int(v)) for v in row) + "\n" for row in t)
        tab += f".fill (1024 - ((. - {NAME}) & 1023)) & 1023, 1, 0\nL_codeend:\n.size L_table, L_codeend-L_table\n"
        kd = f""".section .rodata,"a"
.p2align 6
.amdhsa_kernel {NAME}
  .amdhsa_next_free_vgpr 256
  .amdhsa_next_free_sgpr 102
  .amdhsa_accum_offset 256
  .amdhsa_group_segment_fixed_size 0
  .amdhsa_kernarg_size 104
  .amdhsa_user_sgpr_count 2
  .amdhsa_user_sgpr_kernarg_segment_ptr 1
  .amdhsa_system_sgpr_workgroup_id_x 1
.end_amdhsa_kernel
"""
        return hdr + body + tab + kd


if __name__ == "__main__":
    out = sys.argv[1]
    opt = {}
    for kv in sys.argv[2:]:
        k, v = kv.split("=")
        opt[k] = int(v)
    g = Gen(opt)
    open(out, "w").write(g.build())
```

```python
import sys, math, struct
import numpy as np

NAME = "concat_heads__grouped_kv_mqa__grouped_kv_mqa__prompt_kernel"

VG = 608
PB = 2048 + 256 + 4 * VG
KVB = 32 * PB
L_KV = 12288
L_HAND = 0
L_KMAX = 10240
L_FLAG = 10256
L_T2X = 81920
L_O = 12288
L_W8 = L_O + 73728
L_W = 62464
L_X = 90112
SLOT = 4608
LDS_BYTES = 163840
WS_KV = 0
WS_KN = KVB
WS_XID = WS_KN + 1024
WS_CNT = 0x26000
WS_WOT = 0x28000
WS_OEX = 0xD0000
WS_BR = 0x400000
WS_STAMP = 0x1000000
OEX_G = 73728
OEX_W = 18432
CSCALE = math.log2(math.e) / math.sqrt(18.0)
TSAFE = 40.0
SPIN = 500000
SPIN_L = 16 * SPIN


def f2u(x):
    return struct.unpack("<I", struct.pack("<f", x))[0]


def dslot(d):
    if d < 6:
        return d * 2 * SLOT
    if d < 17:
        return L_W + (d - 6) * 2 * SLOT
    return 5 * 2 * SLOT


def slot_addr(ks):
    return dslot(ks >> 1) + (ks & 1) * SLOT


G0 = [0, 1, 2, 3, 12, 13, 14, 15, 20]
G1 = [4, 5, 6, 7, 8, 9, 10, 11, 16]
POS_ONES, POS_ZERO = 22, 23


def vpos(h, row):
    if row in G0:
        return [list(range(0, 9)), [18, 19, 20, 21, 24, 25, 26, 27, 28]][h][G0.index(row)]
    if row in G1:
        return [list(range(9, 18)), list(range(29, 38))][h][G1.index(row)]
    if row in (17, 21):
        return POS_ONES
    return POS_ZERO


def table():
    t = np.zeros((64, 4), dtype=np.uint32)
    for l in range(64):
        t[l, 0] = L_KV + 2304 + vpos(l >> 5, l & 31) * 16
        n, g = l & 15, l >> 4
        t[l, 1] = vpos(g >> 1, n) * 16 + (g & 1) * 8
        p = {0: vpos(g >> 1, 16), 1: vpos(g >> 1, 20), 2: POS_ONES, 3: POS_ZERO}.get(n, POS_ZERO)
        t[l, 2] = p * 16 + (g & 1) * 8
    return t


def vr(a, n=1):
    return f"v[{a}:{a+n-1}]" if n > 1 else f"v{a}"


def sr(a, n=1):
    return f"s[{a}:{a+n-1}]" if n > 1 else f"s{a}"


S_WAVE = 3
R_X, R_WQ, R_W, R_WO, R_WS, R_OUT, R_DBG = 44, 48, 52, 56, 60, 64, 68
S_B, S_HG, S_GI, S_PG, S_I = 4, 5, 6, 7, 8
S_T0, S_T1, S_T2, S_T3, S_T4, S_T5 = 9, 10, 11, 12, 13, 14
S_CNT = 15
S_M0A, S_M0R, S_ROW = 72, 73, 74
S_BAR = 75
S_PBI, S_HQ = 76, 77
S_EX = 42
S_KVS = 80
S_OEX = 81
S_STG = 82
S_OEXB = 78
S_SAME, S_OA, S_OB, S_OW = 26, 27, 28, 25
V_OA, V_OB, V_JN = 144, 145, 146
S_VM = 0
S_XI, S_XB, S_XS, S_XM = 83, 100, 101, 79
S_DI, S_DS, S_LI, S_LS = 72, 73, 74, 75
S_ST = 84

V_IDX, V_AK, V_AR, V_AV = 2, 3, 4, 5
QM = [8, 12]
QR = 16
KR = [18, 20]
O = [24, 40]
KM = [56, 60]
VV = [[64, 68], [72, 76]]
S = [80, 112]
QM2 = [148, 152]
QR2 = 156
O2 = [160, 176]
QMS, QRS, OS = QM + QM2, [QR, QR2], O + O2


DOC = """;
"""


class A:
    def __init__(self):
        self.L = []

    def __call__(self, *xs):
        for x in xs:
            if isinstance(x, (list, tuple)):
                self(*x)
            else:
                self.L.append(x)

    def label(self, n):
        self.L.append(n + ":")


def K16(d, a, b, c=None):
    return f"v_mfma_f32_32x32x16_bf16 {vr(d,16)}, {vr(a,4)}, {vr(b,4)}, {c if c else vr(d,16)}"


def M16(d, a, b, c=None):
    return f"v_mfma_f32_16x16x32_bf16 {vr(d,4)}, {vr(a,4)}, {vr(b,4)}, {c if c else vr(d,4)}"


def B2(d, a, b, abid):
    return f"v_mfma_f32_32x32x4_2b_bf16 {vr(d,32)}, {vr(a,2)}, {vr(b,2)}, 0 cbsz:1 abid:{abid}"


def K8Z(d, z):
    return f"v_mfma_f32_32x32x8_bf16 {vr(d,16)}, {vr(z,2)}, {vr(z,2)}, 0"


def SM(d, a, b):
    return f"v_smfmac_f32_32x32x32_bf16 {vr(d,16)}, {vr(a,4)}, {vr(b,8)}, v{V_IDX}"


def EX(r, n):
    return [f"v_exp_f32 v{r+i}, v{r+i}" for i in range(n)]


def srd(a, dst, lo, hi, size):
    a(f"s_mov_b32 s{dst}, {lo}", f"s_mov_b32 s{dst+1}, {hi}", f"s_mov_b32 s{dst+2}, {size}", f"s_mov_b32 s{dst+3}, 0x20000")


class Gen:
    def __init__(self, opt):
        self.o = dict(unp=4, barit=1, stamps=False, force_fb=False, prefetch=True, prio=True, dbgspan=0, hst=1, sh=1, nj=9, own1=0, l01=0, sched=1, dbl=0, xe1=0, x1l=0, pw=0, ks2=0, binv=0, z2=1, vexec=0, ga=1, tp=1, x2j=31, amps=0, p1=2, p2=5, p3=7, lo0=0, lo1=0, ka=2, lnorm=1, xper=3, dly=0, d0l=1, pre=2, xe=0, sigb2=1, tre=1, badv0=0, shard=1, nslow=64, spf=0, avg=0, xcc=1, xp=0, outf=0, of=0, ampa=0, ampb=0, ampk=0, set=0, nb=5, kv1=7, pd=2, win=3, t1=7, t2=9, sb=18)
        self.o.update(opt)
        self.a = A()
        self.nst = 0

    def stamp(self, i, st=0):
        if i not in (0, 7) and st != self.o['set']:
            return
        if self.o['stamps'] or self.o['dbgspan'] or self.o['ampk']:
            cyc = self.o['stamps'] == 2 or self.o['ampk'] < 0
            self.a(f"{'s_memtime' if cyc else 's_memrealtime'} s[{S_ST+2*i}:{S_ST+2*i+1}]")

    def dump_stamps(self):
        if self.o['dbgspan']:
            a = self.a
            n = self.nst = self.nst + 1
            a("s_waitcnt lgkmcnt(0)", f"s_cmp_lg_u32 s{S_I}, 0", f"s_cbranch_scc1 L_nodump{n}", "s_mov_b64 exec, 1", "v_mov_b32 v8, 0", f"s_not_b32 s{S_T0}, s{S_ST}", f"v_mov_b32 v9, s{S_T0}",
              f"buffer_atomic_umax v9, v8, s[{R_DBG}:{R_DBG+3}], 0 offen offset:8 sc1")
            for k, i in enumerate((0, 1, 3, 6, 7, 5) if n == 2 else (1, 2, 4, 5, 6, 7)):
                a(f"v_mov_b32 v{10+k}, s{S_ST+2*i}", f"buffer_atomic_umax v{10+k}, v8, s[{R_DBG}:{R_DBG+3}], 0 offen offset:{(12 if n == 2 else 36)+4*k} sc1")
            a(f"L_nodump{n}:")
            return
        if not self.o['stamps']:
            return
        a = self.a
        a("s_waitcnt lgkmcnt(0)", f"s_lshl_b32 s{S_T0}, s2, 3", f"s_add_u32 s{S_T0}, s{S_T0}, s{S_WAVE}", f"s_lshl_b32 s{S_T0}, s{S_T0}, 6",
          f"s_mul_i32 s{S_T1}, s{S_B}, {WS_BR}", f"s_sub_u32 s{S_T0}, s{S_T0}, s{S_T1}", f"s_add_u32 s{S_T0}, s{S_T0}, {WS_STAMP}",
          f"s_mov_b32 s{R_WS+2}, 0x2000000", "v_mov_b32 v8, 0")
        for i in range(4):
            for k in range(4):
                a(f"v_mov_b32 v{12+k}, s{S_ST+4*i+k}")
            a(f"buffer_store_dwordx4 v[12:15], v8, s[{R_WS}:{R_WS+3}], s{S_T0} offen offset:{16*i}", "s_nop 1")

    def kv_dma(self, p0, n):
        a = self.a
        for k in range(n):
            a(f"s_add_u32 m0, s{S_M0A}, {L_KV + (p0 + 4*k)*1024}", f"s_add_u32 s{S_T0}, s{S_KVS}, 4096",
              f"buffer_load_dwordx4 v1, s[{R_WS}:{R_WS+3}], s{S_KVS} offen sc1 lds",
              f"s_cmp_ge_u32 s{S_T0}, {KVB}", f"s_cselect_b32 s{S_T1}, {KVB}, 0", f"s_sub_u32 s{S_KVS}, s{S_T0}, s{S_T1}")

    def row_max16(self, v):
        a = self.a
        for k in (8, 4, 2, 1):
            a("s_nop 1", f"v_max_f32_dpp v{v}, v{v}, v{v} row_ror:{k} row_mask:0xf bank_mask:0xf")

    def rest_srds(self):
        a = self.a
        a(f"s_mov_b32 s{R_WO+2}, 663552", f"s_mov_b32 s{R_WO+3}, 0x20000",
          f"s_mul_i32 s{S_T0}, s{S_B}, {WS_BR}", f"s_add_u32 s{R_WS}, s40, s{S_T0}", f"s_addc_u32 s{R_WS+1}, s41, 0",
          f"s_mov_b32 s{R_WS+2}, {WS_OEX + 32*OEX_G}", f"s_mov_b32 s{R_WS+3}, 0x20000")
        srd(a, R_OUT, "s36", "s37", 4718592)
        srd(a, R_DBG, "s38", "s39", 256)

    def norm2(self, x, y):
        a = self.a
        for j in range(4):
            for (qm, qr, dst, tmp) in (x, y):
                a(f"v_dot2_f32_bf16 v{dst}, v{qm+j}, v{qm+j}, {'0' if j == 0 else 'v%d' % dst}",
                  f"v_dot2_f32_bf16 v{tmp}, v{qm+4+j}, v{qm+4+j}, {'0' if j == 0 else 'v%d' % tmp}")
        a("s_nop 0", f"v_permlane32_swap_b32 v{x[2]}, v{x[3]}", "s_nop 0", f"v_permlane32_swap_b32 v{y[2]}, v{y[3]}",
          f"v_add_f32 v{x[2]}, v{x[2]}, v{x[3]}", f"v_add_f32 v{y[2]}, v{y[2]}, v{y[3]}",
          f"v_dot2_f32_bf16 v{x[2]}, v{x[1]}, v{x[1]}, v{x[2]}", f"v_dot2_f32_bf16 v{y[2]}, v{y[1]}, v{y[1]}, v{y[2]}", "s_nop 1",
          f"v_sqrt_f32 v{x[2]}, v{x[2]}", f"v_sqrt_f32 v{y[2]}, v{y[2]}")

    def norm1(self, qm, qr, dst, tmp):
        a = self.a
        for j in range(4):
            a(f"v_dot2_f32_bf16 v{dst}, v{qm+j}, v{qm+j}, {'0' if j == 0 else 'v%d' % dst}",
              f"v_dot2_f32_bf16 v{tmp}, v{qm+4+j}, v{qm+4+j}, {'0' if j == 0 else 'v%d' % tmp}")
        a("s_nop 2", f"v_permlane32_swap_b32 v{dst}, v{tmp}", "s_nop 0", f"v_add_f32 v{dst}, v{dst}, v{tmp}",
          f"v_dot2_f32_bf16 v{dst}, v{qr}, v{qr}, v{dst}", "s_nop 2", f"v_sqrt_f32 v{dst}, v{dst}")

    def init_main_regs(self):
        a = self.a
        a(f"v_mov_b32 v{KR[0]+1}, 0x3f803f80", f"v_mov_b32 v{KR[1]+1}, 0x3f803f80")
        for r in range(O[0], O[0] + 32):
            a(f"v_mov_b32 v{r}, 0")
        for r in range(S[1] + 24, S[1] + 32):
            a(f"v_mov_b32 v{r}, 0")
        if self.o['vexec']:
            self.init_v()
            self.loader_flag()
        else:
            a([f"v_mov_b32 v{r}, 0" for r in range(VV[1][1], VV[1][1] + 4)])

    def ldKm(self, kb):
        return [f"ds_read_b128 {vr(KM[kb%2],4)}, v{V_AK} offset:{(kb//2)*PB+(kb%2)*1024}"]

    def ldKr(self, p):
        return [f"ds_read_b32 v{KR[p%2]}, v{V_AR} offset:{p*PB}"]

    def ldV(self, kb):
        x = [f"ds_read_b128 {vr(VV[kb%2][i],4)}, v{V_AV} offset:{(kb//2)*PB+((kb%2)*2+i)*VG}" for i in range(2)]
        if self.o['vexec']:
            x = [f"s_mov_b64 exec, s[{S_VM}:{S_VM+1}]"] + x + ["s_mov_b64 exec, -1"]
        return x

    def init_v(self):
        a = self.a
        m = sum(1 << r for r in G0 + G1)
        a(f"s_mov_b32 s{S_VM}, {hex(m)}", f"s_mov_b32 s{S_VM+1}, {hex(m)}", "s_mov_b32 vcc_lo, 0x220000", "s_mov_b32 vcc_hi, 0x220000",
          f"v_mov_b32 v{VV[0][0]}, 0x3f803f80", f"v_cndmask_b32 v{VV[0][0]}, 0, v{VV[0][0]}, vcc")
        a([f"v_mov_b32 v{VV[0][0]+k}, v{VV[0][0]}" for k in range(1, 16)])

    def qk(self, dst, kb, pr):
        return [B2(dst, KR[(kb//2) % 2], QRS[pr], kb % 2), K16(dst, KM[kb % 2], QMS[2*pr]), K16(dst + 16, KM[kb % 2], QMS[2*pr+1])]

    def main_prologue_loads(self):
        self.a(self.ldKr(0), self.ldKm(0), self.ldKm(1), self.ldKr(1), self.ldV(0))

    def start(self):
        a, o = self.a, self.o
        a("s_cmp_ge_u32 s2, 256", "s_cbranch_scc1 L_end")
        a("s_load_dwordx16 s[16:31], s[0:1], 0", "s_load_dwordx8 s[32:39], s[0:1], 64", "s_load_dwordx2 s[40:41], s[0:1], 96")
        self.stamp(0)
        a("s_getpc_b64 s[42:43]", "L_pc:")
        a("v_lshrrev_b32 v1, 6, v0", "v_and_b32 v0, 63, v0", f"v_readfirstlane_b32 s{S_WAVE}, v1", "v_lshlrev_b32 v1, 4, v0",
          f"s_lshr_b32 s{S_T2}, s2, 3", f"s_and_b32 s{S_B}, s2, 1", f"s_and_b32 s{S_HG}, s{S_T2}, 3", f"s_lshr_b32 s{S_GI}, s2, 5")
        if o['binv']:
            a(f"s_xor_b32 s{S_B}, s{S_B}, 1")
        if o['prefetch']:
            a(f"s_cmp_lg_u32 s{S_WAVE}, 7", "s_cbranch_scc1 L_nopf", f"s_cmp_ge_u32 s{S_T2}, (L_codeend-{NAME})/1024", "s_cbranch_scc1 L_nopf",
              f"s_lshl_b32 s{S_T2}, s{S_T2}, 10", f"s_sub_u32 s{S_T0}, s42, L_pc-{NAME}", f"s_subb_u32 s{S_T1}, s43, 0",
              f"s_add_u32 s{S_T0}, s{S_T0}, s{S_T2}", f"s_addc_u32 s{S_T1}, s{S_T1}, 0",
              f"v_mov_b32 v7, s{S_T1}", f"v_add_co_u32 v6, vcc, s{S_T0}, v1", "s_nop 1", "v_addc_co_u32 v7, vcc, 0, v7, vcc", "s_nop 0",
              "global_load_dwordx4 v[24:27], v[6:7], off", "L_nopf:")
        a(f"s_bfe_u32 s{S_PG}, s2, 0x20001", f"s_lshl_b32 s{S_PG}, s{S_PG}, 3", f"s_add_u32 s{S_PG}, s{S_PG}, s{S_GI}",
          f"s_and_b32 s{S_I}, s{S_WAVE}, 3", f"s_and_b32 s{S_PBI}, s{S_WAVE}, 1", f"s_lshr_b32 s{S_HQ}, s{S_I}, 1")
        a("v_lshrrev_b32 v8, 3, v0", "v_lshrrev_b32 v9, 4, v0", f"s_lshl_b32 s{S_T0}, s{S_PBI}, 2", f"v_or_b32 v9, s{S_T0}, v9",
          "v_and_b32 v10, 7, v0", "v_xor_b32 v9, v9, v10", "v_lshlrev_b32 v9, 4, v9", "v_mov_b32 v10, 0x480", "v_mad_u32_u24 v8, v8, v10, v9",
          f"s_lshl_b32 s{S_T0}, s{S_I}, 6", f"v_add_u32 v9, s{S_T0}, v0", "v_mul_u32_u24 v10, 0xab, v9", "v_lshrrev_b32 v10, 9, v10", "v_mul_u32_u24 v10, 12, v10",
          "v_lshlrev_b32 v9, 4, v9", "v_sub_u32 v9, v9, v10")
        a(f"s_and_b32 s{S_T4}, s{S_HG}, 2", f"s_lshl_b32 s{S_T4}, s{S_T4}, 1", f"s_add_u32 s{S_T4}, s{S_T4}, s{S_I}",
          f"s_lshl_b32 s{S_T5}, s{S_PG}, 3", f"s_add_u32 s{S_XB}, s{S_T5}, s{S_T4}", f"s_mul_i32 s{S_XB}, s{S_XB}, {8*1152}",
          f"s_mul_i32 s{S_XM}, s{S_T4}, 9216", f"s_add_u32 s{S_XM}, s{S_XM}, {L_X}", f"s_lshl_b32 s{S_T0}, s{S_I}, 10", f"s_add_u32 s{S_T0}, s{S_T0}, {L_W}",
          f"s_lshr_b32 s{S_T1}, s{S_HG}, 1", f"s_movk_i32 s{S_DI}, 3072", f"s_movk_i32 s{S_DS}, 2304",
          f"s_cmp_lt_u32 s{S_WAVE}, 4", "s_cselect_b64 vcc, -1, 0", f"s_cselect_b32 s{S_XB}, s{S_XB}, 0", f"s_cselect_b32 s{S_XM}, s{S_XM}, s{S_T0}",
          f"s_cselect_b32 s{S_T1}, s{S_HG}, s{S_T1}", f"s_cselect_b32 s{S_DI}, 1024, s{S_DI}", f"s_cselect_b32 s{S_DS}, 128, s{S_DS}",
          "v_cndmask_b32 v9, v9, v8, vcc")
        self.dma9_setup(S_T1)
        a("s_waitcnt lgkmcnt(0)", f"s_cmp_eq_u32 s{S_B}, 0", f"s_cselect_b64 s[{R_X}:{R_X+1}], s[16:17], s[26:27]",
          f"s_cselect_b64 s[20:21], s[20:21], s[30:31]", f"s_cselect_b64 s[22:23], s[22:23], s[32:33]",
          f"s_cselect_b64 s[{R_WQ}:{R_WQ+1}], s[18:19], s[28:29]", f"s_cselect_b64 s[{R_WO}:{R_WO+1}], s[24:25], s[34:35]",
          f"s_bitcmp0_b32 s{S_HG}, 0", f"s_cselect_b64 s[{R_W}:{R_W+1}], s[20:21], s[22:23]", f"s_mov_b32 s{R_X+2}, 2359296", f"s_movk_i32 s{R_W+2}, 20736",
          f"s_cmp_lt_u32 s{S_WAVE}, 4", f"s_cselect_b64 s[{R_W}:{R_W+1}], s[{R_X}:{R_X+1}], s[{R_W}:{R_W+1}]", f"s_cselect_b32 s{R_W+2}, s{R_X+2}, s{R_W+2}",
          f"s_mov_b32 s{R_W+3}, 0x20000", f"s_mov_b32 s{R_X+3}, 0x20000")
        self.stamp(1, 2)
        a(f"s_cmp_lt_u32 s{S_WAVE}, 4", "s_cbranch_scc1 L_r1", "s_setprio 1", f"s_cmp_eq_u32 s{S_WAVE}, 7", "s_cbranch_scc1 L_late", "L_r1:")
        self.dma9(R_W, 9)
        a(f"s_cmp_ge_u32 s{S_WAVE}, 4", "s_cbranch_scc1 L_late")

    def wq_prefetch(self, n, first):
        a = self.a
        a(f"s_mov_b32 s{R_WQ+2}, 663552", f"s_mov_b32 s{R_WQ+3}, 0x20000", "v_lshlrev_b32 v30, 7, v0", f"s_lshr_b32 s{S_T0}, s2, 3", f"s_mul_i32 s{S_T0}, s{S_T0}, 20736")
        if first:
            a(f"s_mul_i32 s{S_T1}, s{first}, 6912", f"s_add_u32 s{S_T0}, s{S_T0}, s{S_T1}")
        a("s_mov_b32 exec_hi, 0x3fffff")
        for k in range(n):
            a(f"buffer_load_dword v{108+k}, v30, s[{R_WQ}:{R_WQ+3}], s{S_T0} offen", f"s_add_u32 s{S_T0}, s{S_T0}, 6912")
        a("s_mov_b32 exec_hi, -1")

    def dma9_setup(self, sel):
        self.a(f"s_bitcmp1_b32 s{sel}, 0", f"s_cselect_b32 s{S_XI}, 5, 0",
               f"s_add_u32 s{S_XS}, s{S_XI}, s{S_GI}", f"s_cmp_ge_u32 s{S_XS}, 9", f"s_cselect_b32 s{S_T0}, 9, 0", f"s_sub_u32 s{S_XS}, s{S_XS}, s{S_T0}",
               f"s_mul_i32 s{S_XS}, s{S_XS}, s{S_DS}", f"s_mul_i32 s{S_XI}, s{S_XI}, s{S_DI}", f"s_mul_i32 s{S_LI}, s{S_DI}, 9", f"s_mul_i32 s{S_LS}, s{S_DS}, 9")

    def dma9(self, srd_, v):
        for i in range(9):
            self.a(f"s_add_u32 m0, s{S_XM}, s{S_XI}", f"s_add_u32 s{S_T3}, s{S_XB}, s{S_XS}",
                   f"buffer_load_dwordx4 v{v}, s[{srd_}:{srd_+3}], s{S_T3} offen lds")
            if i < 8:
                self.a(f"s_add_u32 s{S_XS}, s{S_XS}, s{S_DS}", f"s_cmp_eq_u32 s{S_XS}, s{S_LS}", f"s_cselect_b32 s{S_XS}, 0, s{S_XS}",
                       f"s_add_u32 s{S_XI}, s{S_XI}, s{S_DI}", f"s_cmp_eq_u32 s{S_XI}, s{S_LI}", f"s_cselect_b32 s{S_XI}, 0, s{S_XI}")

    def table_load(self):
        self.a(f"s_add_u32 s{S_T0}, s42, L_table-L_pc", f"s_addc_u32 s{S_T1}, s43, 0",
               f"v_mov_b32 v7, s{S_T1}", f"v_add_co_u32 v6, vcc, s{S_T0}, v1", "s_nop 1", "v_addc_co_u32 v7, vcc, 0, v7, vcc", "s_nop 0",
               "global_load_dwordx4 v[20:23], v[6:7], off")

    def wq_setup(self, d, part=3):
        a = self.a
        if part & 1:
            a(f"s_mov_b32 s{R_WQ+2}, 663552", f"s_mov_b32 s{R_WQ+3}, 0x20000", f"s_lshl_b32 s{S_T0}, s{S_I}, 6", f"s_mul_i32 s{S_T1}, s{S_HG}, 288", "v_mov_b32 v16, 0x480")
        for t in range(3 if part & 1 else 0):
            a(f"v_add_u32 v13, s{S_T0}, v0", "v_mul_u32_u24 v14, 0xe39, v13", "v_lshrrev_b32 v14, 16, v14",
              "v_mul_u32_u24 v15, 18, v14", "v_sub_u32 v13, v13, v15", "v_lshlrev_b32 v13, 4, v13",
              "v_bfe_u32 v15, v14, 1, 2", "v_and_b32 v17, 1, v14", "v_lshl_add_u32 v15, v17, 2, v15", "v_and_b32 v14, 24, v14", "v_add_u32 v14, v14, v15",
              "v_mad_u32_u24 v13, v14, v16, v13", f"v_add_u32 v{10+t}, s{S_T1}, v13")
            if t < 2:
                a(f"s_add_u32 s{S_T0}, s{S_T0}, 192")
        if not part & 2:
            return
        a(f"s_lshl_b32 s{S_M0A}, s{S_I}, 10", f"s_mul_i32 s{S_ROW}, s{S_GI}, {64*1152}")
        if d:
            a(f"s_add_u32 s{S_ROW}, s{S_ROW}, {32*d*1152}", f"s_cmp_ge_u32 s{S_ROW}, {576*1152}",
              f"s_cselect_b32 s{S_T0}, {576*1152}, 0", f"s_sub_u32 s{S_ROW}, s{S_ROW}, s{S_T0}")

    def wq_list(self, d):
        n = self.nlab = getattr(self, 'nlab', 0) + 1
        s0 = dslot(d)
        ld = lambda r: f"buffer_load_dwordx4 v{r}, s[{R_WQ}:{R_WQ+3}], s{S_ROW} offen lds"
        return [f"s_cbranch_vccz L_wq{n}",
                f"s_add_u32 m0, s{S_M0A}, {s0}", f"s_add_u32 s{S_T0}, s{S_ROW}, {32*1152}", ld(10),
                f"s_add_u32 m0, s{S_M0A}, {s0+3072}", "s_nop 0", ld(11),
                f"s_add_u32 m0, s{S_M0A}, {s0+6144}", f"s_cmp_ge_u32 s{S_T0}, {576*1152}", ld(12),
                f"s_cselect_b32 s{S_T1}, {576*1152}, 0", f"s_sub_u32 s{S_ROW}, s{S_T0}, s{S_T1}", f"L_wq{n}:"]

    def wq_dma(self, d):
        self.a(self.wq_list(d))

    def loader_flag(self):
        self.a(f"s_cmp_lt_u32 s{S_I}, 3", "s_cselect_b64 vcc, -1, 0")

    @property
    def GROUPS(self):
        if self.o['pre'] == 5:
            return [(3, 2), (5, 6), (7, 10), (9, 14), (11, 18), (13, 22), (15, 26), (17, 30)]
        if self.o['pre'] == 1:
            return [(3, 2), (5, 6), (7, 10), (9, 14), (11, 18), (13, 22), (15, 26), (17, 30)]
        if self.o['pre'] == 2:
            return [(2, 2), (3, 4), (5, 6), (7, 10), (9, 14), (11, 18), (13, 22), (15, 26), (17, 30)]
        return [(3, 2), (5, 6), (7, 10), (9, 14), (11, 18), (13, 22), (15, 26), (17, 30)]

    def early_front(self):
        a, o = self.a, self.o
        self.stamp(2, 2)
        if o['spf'] == 5:
            a(f"s_cmp_lg_u32 s{S_WAVE}, 3", "s_cbranch_scc1 L_nospf", "s_waitcnt vmcnt(6)")
            self.wq_prefetch(3, None)
            a("L_nospf:")
        self.table_load()
        self.wq_setup(o['l01'])
        self.loader_flag()
        if not o['d0l']:
            self.wq_dma(0)
        self.rest_srds()
        a("v_and_b32 v16, 31, v0", "v_lshrrev_b32 v13, 5, v0", "v_bfe_u32 v14, v0, 1, 3", "v_xor_b32 v13, v13, v14", "v_lshlrev_b32 v13, 4, v13",
          "v_and_b32 v14, 7, v0", "v_lshl_add_u32 v13, v14, 7, v13", "v_lshrrev_b32 v16, 3, v16", "v_mul_u32_u24 v16, 0x2400, v16",
          f"s_mul_i32 s{S_T0}, s{S_PBI}, {4*9216}", f"s_add_u32 s{S_T0}, s{S_T0}, {L_X}", f"v_add3_u32 v8, v16, v13, s{S_T0}",
          "v_xor_b32 v9, 32, v8", "v_xor_b32 v108, 64, v8", "v_xor_b32 v109, 0x60, v8")
        a("v_bfe_u32 v18, v0, 2, 2", "v_lshrrev_b32 v15, 5, v0", "v_lshlrev_b32 v15, 2, v15", "v_add_u32 v15, v15, v18", "v_mul_u32_u24 v15, 0x240, v15",
          f"s_mul_i32 s{S_T0}, s{S_HQ}, 144", "v_and_b32 v13, 1, v0", "v_lshl_add_u32 v15, v13, 4, v15", f"v_add_u32 v15, s{S_T0}, v15",
          "v_bfe_u32 v13, v0, 1, 1", "v_bfe_u32 v14, v0, 4, 1", "v_lshl_add_u32 v6, v13, 3, v15", "v_lshl_add_u32 v6, v14, 5, v6",
          "v_mul_u32_u24 v13, 72, v13", "v_add3_u32 v7, v13, v15, 48")
        if o['ks2']:
            a(f"s_mul_i32 s{S_T0}, s{S_HQ}, -288", f"s_add_u32 s{S_T0}, s{S_T0}, 144", f"v_mul_i32_i24 v13, s{S_T0}, v14", "v_add_u32 v7, v7, v13")
        elif o['z2']:
            a("v_lshl_add_u32 v7, v14, 20, v7")
        a(f"v_mov_b32 v{V_IDX}, 0xdddddddd", f"v_add_u32 v{V_AK}, {L_KV}, v1", f"v_lshlrev_b32 v{V_AR}, 2, v0", f"v_add_u32 v{V_AR}, {L_KV+2048}, v{V_AR}",
          "v_mov_b32 v110, 0", "v_mov_b32 v111, 0", f"v_mov_b32 v19, {L_KMAX}", f"s_mov_b32 s{S_STG}, 1")
        self.tail_scalars()
        if o['d0l']:
            a("s_waitcnt vmcnt(1)")
        else:
            a(f"s_cmp_eq_u32 s{S_WAVE}, 3", "s_cbranch_scc0 L_e3", f"s_waitcnt vmcnt({4 if o['spf'] == 5 else 1})", "L_e3:", "s_waitcnt vmcnt(4)")
        self.stamp(3, 2)
        a("s_barrier")
        PRE = o['pre']
        for d in range(o['l01'], PRE + 1):
            self.wq_dma(d)
        a(f"s_cmp_eq_u32 s{S_WAVE}, 3", "s_cbranch_scc0 L_e4", "s_waitcnt vmcnt(0)", "L_e4:", f"s_waitcnt vmcnt({3*(PRE-1)})", f"v_mov_b32 v{V_AV}, v20", "v_mov_b32 v21, 0x3f803f80")
        self.stamp(1)
        self.stamp(4, 2)
        a("s_barrier")
        self.stamp(5, 2)
        XF = 112
        T0, T1, TR, TR2 = 24, 40, 56, 128
        KX = 26
        PD = o['pd']
        FB = [72, 84, 96]
        state = dict(base=0)

        def rd(ks):
            x = []
            off = slot_addr(ks) - state['base']
            if off < 0 or off + 360 > 65535:
                d = slot_addr(ks) - state['base']
                x += [f"v_add_u32 v{r}, {d}, v{r}" if d > 0 else f"v_subrev_u32 v{r}, {-d}, v{r}" for r in (6, 7)]
                state['base'] = slot_addr(ks)
                off = 0
            f = FB[ks % (PD + 1)]
            return x, [f"ds_read_b64_tr_b16 {vr(f,2)}, v6 offset:{off}", f"ds_read_b64_tr_b16 {vr(f+2,2)}, v6 offset:{off+288}",
                       f"ds_read_b64_tr_b16 {vr(f+4,2)}, v6 offset:{off+72}", f"ds_read_b64_tr_b16 {vr(f+6,2)}, v6 offset:{off+360}",
                       f"ds_read_b64_tr_b16 {vr(f+8,2)}, v7 offset:{off}", f"ds_read_b64_tr_b16 {vr(f+10,2)}, v7 offset:{off+288}"]

        def mm(ks, first2):
            f = FB[ks % (PD + 1)]
            c = "0" if ks == 0 else None
            if o['ks2'] and ks >= KX:
                m2 = K16(TR2, f + 8, XF + 4 * ks, vr(TR, 16) if ks == KX else None)
            else:
                m2 = K16(TR, f + 8, XF + 4 * ks, "0" if first2 else None)
            return [K16(T0, f, XF + 4 * ks, c), K16(T1, f + 4, XF + 4 * ks, c), m2]

        def kloop(par):
            state['base'] = 0
            nt = lambda ks: 2 if (o['ks2'] and ks < KX and ks % 2 != par) else 3
            XA = [8, 9, 108, 109]
            q = []

            def issue(tag, ins):
                a(ins)
                q.append(tag)

            def need(*tags):
                last = max((i for i, t in enumerate(q) if t in tags), default=-1)
                if last >= 0:
                    left = len(q) - 1 - last
                    a(f"s_waitcnt lgkmcnt({min(left, 14)})")
                    del q[:last + 1]

            def xrd(i):
                issue(('x', i), f"ds_read_b128 {vr(XF+4*i,4)}, v{XA[i&3]} offset:{(i>>2)*1024}")
            xrd(0)
            for j, r in enumerate(rd(0)[1][:2*nt(0)]):
                issue(('w', 0, j >> 1), r)
            xrd(1)
            for j, r in enumerate(rd(1)[1][:2*nt(1)]):
                issue(('w', 1, j >> 1), r)
            nx = 2
            G = [k for _, k in self.GROUPS]
            ev = {k: ["s_barrier"] for k in G}
            prev = 1
            for last, k in self.GROUPS:
                if prev < PRE:
                    ev[k] = [f"s_waitcnt vmcnt({3*max(PRE-last, 0)})", "s_barrier"]
                prev = last
            for ks in range(36):
                m = mm(ks, ks == par)
                if ks in ev:
                    if ks == 6:
                        need(('x', 35))
                        assert nx == 36 and not any(t[0] == 'x' for t in q)
                    if len(ev[ks]) > 1 and o["stamps"]:
                        a(ev[ks][0])
                    if ks in (2, 6, 10, 14, 22, 30):
                        self.stamp(1 + (2, 6, 10, 14, 22, 30).index(ks), 3)
                    if ks == 30:
                        need('e')
                    a(ev[ks])
                    if ks == 6:
                        self.stamp(2)
                        self.stamp(6, 2)
                pre, n = rd(ks + 2) if ks + 2 < 36 else ([], [])
                fine = nx < 36 or ks == 35
                if not fine:
                    need(('x', ks), ('w', ks, nt(ks) - 1))
                for t in range(3):
                    if t < nt(ks):
                        if fine:
                            need(('x', ks), ('w', ks, t))
                        a(m[t])
                    if t == 0:
                        a(pre)
                    for k in range(o['xper']):
                        if nx < 36:
                            xrd(nx)
                            nx += 1
                    if t < nt(ks + 2):
                        for r in n[2*t:2*t+2]:
                            issue(('w', ks + 2, t), r)
                if o['ks2'] and ks == KX + 2:
                    issue('e', f"ds_write_b128 v13, {vr(TR+8,4)}")
                    issue('e', f"ds_write_b128 v13, {vr(TR+12,4)} offset:1024")
                if o['ks2'] and ks == 31:
                    issue('i', f"ds_read_b128 {vr(XF,4)}, v14")
                    issue('i', f"ds_read_b128 {vr(XF+4,4)}, v14 offset:1024")
            assert not [t for t in q if t != 'i'] and True
            need('i')
        if o['ks2']:
            a(f"s_mul_i32 s{S_T0}, s{S_WAVE}, 2048", f"s_add_u32 s{S_T0}, s{S_T0}, {L_T2X}", f"v_add_u32 v13, s{S_T0}, v1", "v_xor_b32 v14, 0x1000, v13",
              f"s_cmp_eq_u32 s{S_HQ}, 1", "s_cbranch_scc1 L_kodd")
            kloop(0)
            a("s_branch L_kdone", "L_kodd:")
            kloop(1)
            a("L_kdone:")
        else:
            kloop(0)
        self.stamp(3)
        self.stamp(3, 6)
        a("v_mov_b32 v7, v19", f"v_mov_b32 v{KR[0]+1}, 0x3f803f80", f"s_mov_b32 s{S_BAR}, {32//o['unp'] - 1}", "s_mov_b32 vcc_lo, 0", "s_mov_b32 vcc_hi, -1", "s_nop 2")
        for (dst, t) in ((QM[0], T0), (QM2[0], T1)):
            for j, r in enumerate((0, 2, 4, 6, 10, 12, 14)):
                a(f"v_cvt_pk_bf16_f32 v{dst+j}, v{t+r}, v{t+r+1}")
        for (dst, qr, t, t2, tmp) in ((QM[0], QR, T0, TR, 108), (QM2[0], QR2, T1, TR + 4, 107)):
            a(f"v_cvt_pk_bf16_f32 v{dst+7}, v{t2}, v{t2+1}", f"v_cvt_pk_bf16_f32 v{qr}, v{t+8}, v{t+9}", f"v_cvt_pk_bf16_f32 v{tmp}, v{t2+2}, v{t2+3}")
        a(f"v_cndmask_b32 v{QR}, v{QR}, v108, vcc", f"v_cndmask_b32 v{QR2}, v{QR2}, v107, vcc")
        a([K8Z(x, 110) for x in (O2[1], O[0])])
        self.stamp(1, 6)
        a("s_barrier")
        self.stamp(2, 6)
        a("ds_read_b32 v6, v7")
        self.main_prologue_loads()
        self.norm2((QM[0], QR, QR + 1, 108), (QM2[0], QR2, QR2 + 1, 107))
        a([K8Z(x, 110) for x in (O[1], O2[0])])
        a([f"v_mov_b32 v{r}, 0" for r in range(VV[1][1], VV[1][1] + 4)])
        a("s_setprio 1", "s_waitcnt lgkmcnt(0)")

    def late_front(self):
        a, o = self.a, self.o
        a.label("L_late")
        a("s_setprio 0")
        if o['spf'] == 3:
            a(f"s_cmp_lg_u32 s{S_WAVE}, 7", "s_cbranch_scc1 L_nospf")
            self.wq_prefetch(3, None)
            a("L_nospf:")
        if o['spf'] == 4:
            a(f"s_cmp_eq_u32 s{S_WAVE}, 7", "s_cbranch_scc1 L_nospf")
            self.wq_prefetch(1, S_I)
            a("L_nospf:")
        self.stamp(2, 2)
        self.rest_srds()
        if o['shard']:
            a("v_and_b32 v160, 7, v0", "v_lshlrev_b32 v160, 9, v160", f"s_cmp_lg_u32 s{S_WAVE}, 7", "s_cbranch_scc1 L_nov0", f"s_mov_b32 s{S_T0}, {WS_CNT}",
              f"buffer_load_dword v161, v160, s[{R_WS}:{R_WS+3}], s{S_T0} offen sc0 sc1", "L_nov0:")
        self.wq_setup(6, 1)
        a(f"s_xor_b32 s{S_T4}, s{S_T4}, 4", f"s_add_u32 s{S_XB}, s{S_T5}, s{S_T4}", f"s_mul_i32 s{S_XB}, s{S_XB}, {8*1152}",
          f"s_mul_i32 s{S_XM}, s{S_T4}, 9216", f"s_add_u32 s{S_XM}, s{S_XM}, {L_X}", f"s_movk_i32 s{S_DI}, 1024", f"s_movk_i32 s{S_DS}, 128")
        a("v_and_b32 v13, 15, v0", "v_lshrrev_b32 v16, 4, v0",
          "v_bfe_u32 v17, v0, 1, 3", "v_xor_b32 v17, v16, v17", "v_lshlrev_b32 v17, 4, v17",
          "v_and_b32 v18, 7, v0", "v_lshl_add_u32 v17, v18, 7, v17", "v_bfe_u32 v18, v0, 3, 1", "v_mul_u32_u24 v18, 0x2400, v18",
          f"s_lshr_b32 s{S_T0}, s{S_HG}, 1", f"s_lshl_b32 s{S_T0}, s{S_T0}, 1", f"s_add_u32 s{S_T0}, s{S_T0}, s{S_PBI}",
          f"s_mul_i32 s{S_T1}, s{S_T0}, {2*9216}", f"s_add_u32 s{S_T1}, s{S_T1}, {L_X}", f"v_add3_u32 v14, v17, v18, s{S_T1}", "v_xor_b32 v15, 64, v14",
          "v_bfe_u32 v17, v0, 2, 2", "v_lshl_add_u32 v17, v16, 3, v17",
          "v_mul_u32_u24 v17, 48, v17", "v_and_b32 v18, 3, v0", "v_lshlrev_b32 v18, 3, v18",
          f"s_cmp_eq_u32 s{S_HQ}, 0", "s_cselect_b64 vcc, -1, 0", "v_mov_b32 v19, 32", "v_cndmask_b32 v18, v19, v18, vcc", f"v_add_u32 v17, {L_W}, v17", "v_add_u32 v17, v17, v18")
        a("v_lshrrev_b32 v19, 5, v0", "v_lshlrev_b32 v19, 9, v19", "v_lshl_add_u32 v19, v13, 4, v19",
          "v_bfe_u32 v18, v0, 4, 1", "v_lshl_add_u32 v28, v18, 3, v19", "v_lshlrev_b32 v29, 2, v13",
          f"s_mul_i32 s{S_KVS}, s{S_PG}, {PB}", f"s_mov_b32 s{S_OEX}, s{S_T0}")
        self.dma9_setup(S_HG)
        self.dma9(R_X, 8)
        self.stamp(3, 2)
        self.table_load()
        if o['spf'] == 2:
            a(f"s_cmp_lg_u32 s{S_WAVE}, 7", "s_cbranch_scc1 L_nospf")
            self.wq_prefetch(3, None)
            a("L_nospf:")
        if o['l01']:
            self.wq_setup(0, 2)
            self.loader_flag()
            for d in range(o['l01']):
                self.wq_dma(d)
        a("s_setprio 1", f"s_waitcnt vmcnt({10 + 3 * o['l01']})")
        self.stamp(1)
        self.stamp(4, 2)
        a("s_barrier")
        a(f"s_bitcmp1_b32 s{S_HG}, 0", "s_cbranch_scc1 L_vproj")
        D = 32
        NB = o['nb']
        for isv in (0, 1):
            if isv:
                a.label("L_vproj")

            def rd(s):
                xb = 40 + 8 * (s % NB)
                return [f"ds_read_b128 {vr(xb,4)}, v{14+(s&1)} offset:{(s>>1)*1024}",
                        f"ds_read_b64_tr_b16 {vr(xb+4,2)}, v17 offset:{s*1536}", f"ds_read_b64_tr_b16 {vr(xb+6,2)}, v17 offset:{s*1536+192}"]
            for s in range(NB - 1):
                a(rd(s))
            for s in range(18):
                if s == o['sb']:
                    a("s_waitcnt vmcnt(0)", "s_barrier")
                if s == 17 and o['sb'] == 18 and not o['l01']:
                    a("s_waitcnt vmcnt(0)")
                if s + NB - 1 < 18:
                    a(rd(s + NB - 1))
                left = min(18 - 1 - s, NB - 1)
                xb = 40 + 8 * (s % NB)
                c = "0" if s == 0 else None
                a(f"s_waitcnt lgkmcnt({min(15,3*left)})", M16(D, xb, xb + 4, c) if isv else M16(D, xb + 4, xb, c))
            g = S_OEX
            if not isv:
                a(f"s_lshr_b32 s{S_T0}, s{g}, 1", f"s_lshl_b32 s{S_T0}, s{S_T0}, 10", f"s_lshl_b32 s{S_T1}, s{S_PBI}, 8", f"s_add_u32 s{S_T0}, s{S_T0}, s{S_T1}",
                  f"s_add_u32 s{S_T0}, s{S_T0}, s{S_KVS}",
                  f"s_lshl_b32 s{S_T1}, s{g}, 6", f"s_add_u32 s{S_T1}, s{S_T1}, s{S_KVS}", f"s_add_u32 s{S_T1}, s{S_T1}, 2048",
                  f"s_mov_b32 s{S_T2}, {hex(f2u(CSCALE))}")
                for r in range(4):
                    a(f"v_mul_f32 v{D+r}, s{S_T2}, v{D+r}")
                a(f"v_cvt_pk_bf16_f32 v{D}, v{D}, v{D+1}", f"v_cvt_pk_bf16_f32 v{D+1}, v{D+2}, v{D+3}",
                  f"s_lshl_b32 s{S_T3}, s{S_PG}, 2", f"s_add_u32 s{S_T3}, s{S_T3}, s{g}", f"s_lshl_b32 s{S_T3}, s{S_T3}, 2", f"s_add_u32 s{S_T3}, s{S_T3}, {WS_KN}",
                  f"v_dot2_f32_bf16 v36, v{D}, v{D}, 0",
                  f"s_cmp_eq_u32 s{S_HQ}, 0", "s_cbranch_scc0 L_krem",
                  f"buffer_store_dwordx2 {vr(D,2)}, v28, s[{R_WS}:{R_WS+3}], s{S_T0} offen sc1",
                  f"v_dot2_f32_bf16 v36, v{D+1}, v{D+1}, v36", "s_nop 2", "v_mov_b32 v37, v36", "s_nop 1",
                  "v_permlane16_swap_b32 v36, v37", "s_nop 1", "v_add_f32 v36, v36, v37", "s_nop 0", "v_mov_b32 v37, v36", "s_nop 1",
                  "v_permlane32_swap_b32 v36, v37", "s_nop 1", "v_add_f32 v36, v36, v37", "s_branch L_knorm",
                  "L_krem:", "s_mov_b64 exec, 0xffff",
                  f"buffer_store_dword v{D}, v29, s[{R_WS}:{R_WS+3}], s{S_T1} offen sc1", "s_mov_b64 exec, -1", f"s_add_u32 s{S_T3}, s{S_T3}, 512",
                  "L_knorm:", "s_nop 1")
                self.row_max16(36)
                a("v_mov_b32 v37, 0", "s_mov_b64 exec, 1", f"buffer_store_dword v36, v37, s[{R_WS}:{R_WS+3}], s{S_T3} offen sc1", "s_mov_b64 exec, -1")
                if o['l01']:
                    a("s_waitcnt vmcnt(2)")
                a("s_branch L_kvdone")
            else:
                a(f"s_mul_i32 s{S_T0}, s{g}, {VG}", f"s_add_u32 s{S_T0}, s{S_T0}, s{S_KVS}", f"s_add_u32 s{S_T0}, s{S_T0}, 2304",
                  "v_cmp_eq_u32 vcc, 2, v13", f"v_cmp_eq_u32 s[{S_EX}:{S_EX+1}], 3, v13", "v_mov_b32 v30, 0x3f803f80", "s_nop 0",
                  f"s_cmp_eq_u32 s{S_HQ}, 0",
                  f"v_cvt_pk_bf16_f32 v{D}, v{D}, v{D+1}", f"v_cvt_pk_bf16_f32 v{D+1}, v{D+2}, v{D+3}", "s_cbranch_scc0 L_vrem",
                  f"buffer_store_dwordx2 {vr(D,2)}, v21, s[{R_WS}:{R_WS+3}], s{S_T0} offen sc1", "s_branch L_vdone",
                  "L_vrem:",
                  f"v_cndmask_b32 v{D}, v{D}, v30, vcc", f"v_cndmask_b32 v{D+1}, v{D+1}, v30, vcc",
                  f"v_cndmask_b32 v{D}, v{D}, 0, s[{S_EX}:{S_EX+1}]", f"v_cndmask_b32 v{D+1}, v{D+1}, 0, s[{S_EX}:{S_EX+1}]",
                  "s_mov_b32 exec_lo, 0x000f000f", "s_mov_b32 exec_hi, 0x000f000f",
                  f"buffer_store_dwordx2 {vr(D,2)}, v22, s[{R_WS}:{R_WS+3}], s{S_T0} offen sc1", "s_mov_b64 exec, -1", "L_vdone:")
                if o['l01']:
                    a("s_waitcnt vmcnt(1)")
        a.label("L_kvdone")
        if True:
            a("s_getreg_b32 s29, hwreg(HW_REG_XCC_ID, 0, 4)", f"s_cmp_lg_u32 s{S_WAVE}, 4", "s_cbranch_scc1 L_noxid",
              f"s_lshl_b32 s{S_T0}, s{S_PG}, 2", f"s_add_u32 s{S_T0}, s{S_T0}, s{S_HG}", f"s_lshl_b32 s{S_T0}, s{S_T0}, 2", f"s_add_u32 s{S_T0}, s{S_T0}, {WS_XID}",
              "v_mov_b32 v38, s29", "v_mov_b32 v39, 0", "s_mov_b64 exec, 1", f"buffer_store_dword v38, v39, s[{R_WS}:{R_WS+3}], s{S_T0} offen sc1", "s_mov_b64 exec, -1", "L_noxid:")
        self.stamp(2)
        self.stamp(5, 2)
        a(f"v_mov_b32 v{V_AV}, v20")
        self.wq_setup(o['pre'] + 1, 2)
        self.loader_flag()
        a("v_mov_b32 v100, 1", "v_mov_b32 v101, 0")
        if o['sb'] == 18:
            a("s_barrier")
        nxt = first = o['pre'] + 1
        NG = len(self.GROUPS)
        passed = -1
        signalled = False
        for gi_, (last, step) in enumerate(self.GROUPS):
            lim = 5 if passed < 2 else 8 if passed < 6 else 16 if passed < 14 else 17
            tgt = min(last + o['win'], lim)
            while nxt <= tgt:
                self.wq_dma(nxt)
                nxt += 1
            assert nxt > last
            if step == 14:
                self.wo_job_addr(0)
                self.poison_addr()
            if step == 18:
                a(f"s_cmp_ge_u32 s{S_OEX}, {648-512}", "s_cselect_b32 s16, 0, 512", f"s_add_u32 s{S_OEX}, s{S_OEX}, s16")
                self.wo_job_addr(1)
                self.loader_flag()
            if gi_ == NG - 3:
                a(f"s_and_b32 s{S_T0}, s{S_GI}, 3", f"s_mul_i32 s{S_KVS}, s{S_T0}, {37*1024}", f"s_add_u32 s{S_KVS}, s{S_KVS}, s{S_M0A}",
                  "v_lshlrev_b32 v153, 3, v0", f"s_mov_b32 s{S_T4}, {WS_KN}", f"s_lshl_b32 s{S_T5}, s{S_B}, 7")
            sig = last >= first and not signalled
            if sig:
                a(f"s_cbranch_vccnz L_l{gi_}", "s_waitcnt vmcnt(0)", f"L_l{gi_}:")
                signalled = True
            if last >= first:
                a(f"s_waitcnt vmcnt({3*(nxt-1-last)})")
            passed = step
            if step == 10:
                a(f"v_mov_b32 v150, {L_FLAG}", "v_mov_b32 v152, 0", "v_mov_b32 v153, 0", "v_mov_b32 v154, 0", "v_mov_b32 v155, 0", "v_mov_b32 v151, 0", "ds_write_b128 v150, v[152:155]", "s_waitcnt lgkmcnt(0)")
            if gi_ == NG - 3 and o['tre']:
                a("s_cbranch_vccnz L_try1", f"s_mov_b32 s{S_T0}, {WS_CNT}", f"buffer_load_dword v152, v160, s[{R_WS}:{R_WS+3}], s{S_T0} offen sc0 sc1", "L_try1:")
            if gi_ == NG - 2:
                assert nxt == 18
                if o['shard']:
                    a("s_cbranch_vccnz L_try0")
                    if not o['tre']:
                        a(f"s_mov_b32 s{S_T0}, {WS_CNT}", f"buffer_load_dword v152, v160, s[{R_WS}:{R_WS+3}], s{S_T0} offen sc0 sc1")
                    a("s_waitcnt vmcnt(0)",
                      "v_cmp_ne_u32 s[16:17], v152, v161", "s_cmp_eq_u64 s[16:17], 0", "s_cselect_b32 s16, 1, 0", "v_mov_b32 v152, s16", "ds_write_b32 v150, v152", "s_waitcnt lgkmcnt(0)", "L_try0:")
                else:
                    a("s_cbranch_vccnz L_try0", f"buffer_load_dword v152, v151, s[{R_DBG}:{R_DBG+3}], s{S_T5} offen sc0 sc1", "s_waitcnt vmcnt(0)",
                      "v_lshrrev_b32 v152, 7, v152", "ds_write_b32 v150, v152", "s_waitcnt lgkmcnt(0)", "L_try0:")
            if step in (2, 6, 10, 14, 22):
                self.stamp(1 + (2, 6, 10, 14, 22).index(step), 3)
            a("s_barrier")
            if sig:
                self.kv_signal()
            if gi_ == NG - 2:
                break
        kn = [f"s_cmp_lg_u32 s{S_WAVE}, 7", None, f"buffer_load_dwordx2 v[154:155], v153, s[{R_WS}:{R_WS+3}], s{S_T4} offen sc1",
              f"buffer_load_dwordx2 v[156:157], v153, s[{R_WS}:{R_WS+3}], s{S_T4} offen offset:512 sc1"]
        a("ds_read_b32 v152, v150", "s_waitcnt lgkmcnt(0)", "v_cmp_eq_u32 vcc, 0, v152", "s_cbranch_vccnz L_notyet")
        self.stamp(4)
        a(kn[0], "s_cbranch_scc1 L_kna", kn[2:], "L_kna:")
        self.kv_dma(0, o['ka'])
        a(f"s_cmp_eq_u32 s{S_WAVE}, 7", "s_cbranch_scc1 L_knb", f"s_waitcnt vmcnt({o['ka']})", "L_knb:")
        self.stamp(6, 3)
        a("s_barrier")
        self.kv_dma(4 * o['ka'], o['kv1'] - o['ka'])
        a("s_branch L_first")
        a("L_notyet:", "s_waitcnt vmcnt(0)")
        self.stamp(6, 3)
        a("s_barrier")
        a(f"s_mov_b32 s{S_CNT}, {SPIN_L}", f"s_cmp_lg_u32 s{S_WAVE}, 7", "s_cbranch_scc1 L_relay", f"s_mov_b32 s{S_CNT}, {SPIN}")
        if o['shard']:
            a(f"s_mov_b32 s{S_T0}, {WS_CNT}", "L_poll1:", f"buffer_load_dword v152, v160, s[{R_WS}:{R_WS+3}], s{S_T0} offen sc0 sc1",
              f"s_cmp_gt_u32 s{S_CNT}, {SPIN - 4}", "s_cbranch_scc1 L_pf", f"s_cmp_lg_u32 s{S_CNT}, {SPIN - o['nslow']}", "s_cbranch_scc1 L_ps",
              "s_mov_b64 exec, 1", f"buffer_atomic_add v100, v101, s[{R_DBG}:{R_DBG+3}], s{S_T5} offen sc1", "s_mov_b64 exec, -1",
              "L_ps:", f"buffer_load_dwordx3 v[162:164], v151, s[{R_DBG}:{R_DBG+3}], s{S_T5} offen sc0 sc1", "s_waitcnt vmcnt(0)",
              "v_lshrrev_b32 v162, 7, v162", "v_or3_b32 v162, v162, v163, v164", "v_cmp_ne_u32 vcc, 0, v162", "s_cbranch_vccnz L_poll1d",
              "L_pf:", f"s_sub_u32 s{S_CNT}, s{S_CNT}, 1", "s_cbranch_scc1 L_poll1d", "s_waitcnt vmcnt(0)", "v_cmp_ne_u32 vcc, v152, v161", "s_cbranch_vccnz L_poll1")
        else:
            a("L_poll1:", f"buffer_load_dword v152, v151, s[{R_DBG}:{R_DBG+3}], s{S_T5} offen sc0 sc1", f"s_sub_u32 s{S_CNT}, s{S_CNT}, 1",
              "s_cbranch_scc1 L_poll1d", "s_waitcnt vmcnt(0)", "v_cmp_gt_u32 vcc, 0x80, v152", "s_cbranch_vccnz L_poll1")
        a("L_poll1d:", "v_mov_b32 v152, 1", "ds_write_b32 v150, v152", kn[2:], "s_branch L_flagok")
        a("L_relay:", "ds_read_b32 v152, v150", f"s_sub_u32 s{S_CNT}, s{S_CNT}, 1", "s_cbranch_scc1 L_flagok", "s_waitcnt lgkmcnt(0)",
          "v_cmp_eq_u32 vcc, 0, v152", "s_cbranch_vccnz L_relay", "L_flagok:")
        self.stamp(4)
        self.kv_dma(0, o['kv1'])
        a("L_first:")
        self.stamp(3)
        self.stamp(6, 2)
        a(f"s_cmp_lg_u32 s{S_WAVE}, 7", "s_cbranch_scc1 L_nokn", f"s_waitcnt vmcnt({o['kv1']})", "v_max_f32 v154, v154, v155", "v_max_f32 v156, v156, v157")
        self.row_max16(154)
        self.row_max16(156)
        a("s_nop 0")
        for k in range(4):
            a(f"v_readlane_b32 s{16+k}, v154, {16*k}", f"v_readlane_b32 s{20+k}, v156, {16*k}")
        a("s_nop 1", "s_max_u32 s16, s16, s17", "s_max_u32 s18, s18, s19", "s_max_u32 s20, s20, s21", "s_max_u32 s22, s22, s23",
          "s_max_u32 s16, s16, s18", "s_max_u32 s20, s20, s22", "v_mov_b32 v154, s16", "v_add_f32 v154, s20, v154", "v_sqrt_f32 v154, v154",
          f"v_mov_b32 v155, {L_KMAX}", "ds_write_b32 v155, v154", "L_nokn:")
        self.stamp(3, 6)
        a("s_waitcnt vmcnt(0) lgkmcnt(0)")
        self.stamp(1, 6)
        a("s_barrier")
        self.stamp(2, 6)
        self.kv_dma(4 * o['kv1'], 37 - o['kv1'])
        a("s_setprio 2", f"s_mov_b32 s{S_STG}, 0", "s_waitcnt vmcnt(0)")
        self.stamp(5)
        self.stamp(4, 6)
        a("s_barrier")
        self.stamp(5, 6)
        if o['shard']:
            a(f"s_cmp_lg_u32 s{S_WAVE}, 7", "s_cbranch_scc1 L_nosaw", "s_cmp_ge_u32 s2, 8", "s_cbranch_scc1 L_nosaw", "s_mov_b64 exec, 1",
              f"buffer_atomic_add v100, v101, s[{R_DBG}:{R_DBG+3}], s{S_T5} offen offset:8 sc1", "s_mov_b64 exec, -1", "L_nosaw:")
        self.wo_job_loads(0)
        a(f"s_cmp_lt_u32 s{S_OEX}, 512", "s_cbranch_scc1 L_nowo2")
        self.wo_job_loads(1)
        a("L_nowo2:", f"s_lshl_b32 s{S_T0}, s{S_PG}, 4", f"s_add_u32 s{S_T0}, s{S_T0}, {WS_XID}", "v_and_b32 v8, 3, v0", "v_lshlrev_b32 v8, 2, v8",
          f"buffer_load_dword v9, v8, s[{R_WS}:{R_WS+3}], s{S_T0} offen sc1")
        self.poison()
        a("s_waitcnt vmcnt(5)")
        self.wo_finish()
        a(f"v_mov_b32 v10, {L_FLAG+8}", "v_cmp_ne_u32 vcc, s29, v9", "s_cmp_eq_u64 vcc, 0", f"s_cselect_b32 s{S_SAME}, {o['xcc']}, 0", f"v_mov_b32 v11, s{S_SAME}",
          "ds_write_b32 v10, v11", "s_waitcnt lgkmcnt(0)")
        self.join_signal(12, "l")
        a("s_mov_b64 exec, -1")
        self.tail_scalars()
        a("v_mov_b32 v12, 1", f"s_mov_b32 s{S_CNT}, {SPIN}", f"s_cmp_lg_u32 s{S_WAVE}, 7", "s_cbranch_scc1 L_rel2", f"s_lshl_b32 s{S_T0}, s{S_B}, 7",
          "L_poll2:", f"buffer_load_dword v11, v15, s[{R_DBG}:{R_DBG+3}], s{S_T0} offen offset:4 sc0 sc1", f"s_sub_u32 s{S_CNT}, s{S_CNT}, 1",
          "s_cbranch_scc1 L_poll2d", "s_waitcnt vmcnt(0)", "v_cmp_gt_u32 vcc, 0x80, v11", "s_cbranch_vccz L_poll2d", "s_sleep 16", "s_branch L_poll2",
          "L_poll2d:", "ds_write_b32 v10, v12 offset:4", "s_branch L_rel2d",
          "L_rel2:", "ds_read_b32 v11, v10 offset:4", f"s_sub_u32 s{S_CNT}, s{S_CNT}, 1", "s_cbranch_scc1 L_rel2d", "s_waitcnt lgkmcnt(0)",
          "v_cmp_ne_u32 vcc, 0, v11", "s_cbranch_vccnz L_rel2d", "s_sleep 16", "s_branch L_rel2", "L_rel2d:")
        a(f"s_mul_i32 s{S_T0}, s{S_HG}, 9", f"s_lshl_b32 s{S_T1}, s{S_I}, 1", f"s_add_u32 s{S_T0}, s{S_T0}, s{S_T1}", f"s_mul_i32 s{S_T0}, s{S_T0}, {18*1024}", f"s_add_u32 s{S_T0}, s{S_T0}, {WS_WOT}")
        for n in range(36):
            a(f"buffer_load_dwordx4 {vr(112+4*n,4)}, v1, s[{R_WS}:{R_WS+3}], s{S_T0} offen offset:{(n&3)*1024} sc1")
            if n & 3 == 3:
                a(f"s_add_u32 s{S_T0}, s{S_T0}, 4096")
        self.tail_vaddr()
        a("s_waitcnt vmcnt(0) lgkmcnt(0)", "s_barrier")
        a(f"s_mul_i32 s{S_T0}, s{S_HG}, 9", f"s_add_u32 s{S_T0}, s{S_T0}, 8", f"s_mul_i32 s{S_T0}, s{S_T0}, {18*1024}", f"s_add_u32 s{S_T0}, s{S_T0}, {WS_WOT}",
          f"s_add_u32 s{S_T0}, s{S_T0}, s{S_M0A}")
        for k in range(4):
            a(f"s_add_u32 m0, s{S_M0A}, {L_W8 + 4096*k}", f"s_add_u32 s{S_T1}, s{S_T0}, {4096*k}", f"buffer_load_dwordx4 v1, s[{R_WS}:{R_WS+3}], s{S_T1} offen sc1 lds")
        a(f"s_and_b32 s{S_T2}, s{S_I}, 2", f"s_sub_u32 s{S_T2}, 16, s{S_T2}", f"s_lshl_b32 s{S_T2}, s{S_T2}, 10", f"s_add_u32 s{S_T1}, s{S_T0}, s{S_T2}",
          f"s_add_u32 s{S_T2}, s{S_T2}, s{S_M0A}", f"s_add_u32 m0, s{S_T2}, {L_W8}", "s_nop 0", f"buffer_load_dwordx4 v1, s[{R_WS}:{R_WS+3}], s{S_T1} offen sc1 lds",
          "s_waitcnt vmcnt(0)")
        self.tail_late()

    def kv_signal(self):
        a, o = self.a, self.o
        if o['shard']:
            a("s_cbranch_vccnz L_nosig", "s_setprio 3", f"v_add_u32 v161, {17 if o['badv0'] else 16}, v161",
              f"s_bfe_u32 s{S_T0}, s2, 0x20001", f"s_lshl_b32 s{S_T0}, s{S_T0}, 1", f"s_and_b32 s{S_T1}, s{S_GI}, 1", f"s_add_u32 s{S_T0}, s{S_T0}, s{S_T1}",
              f"s_lshl_b32 s{S_T0}, s{S_T0}, 9", f"s_add_u32 s{S_T0}, s{S_T0}, {WS_CNT}", "s_mov_b64 exec, 1",
              f"buffer_atomic_add v100, v101, s[{R_WS}:{R_WS+3}], s{S_T0} offen sc1", "s_mov_b64 exec, -1", "s_setprio 1", "L_nosig:")
        else:
            a("s_cbranch_vccnz L_nosig", "s_setprio 3", f"s_lshl_b32 s{S_T0}, s{S_B}, 7", "s_mov_b64 exec, 1",
              f"buffer_atomic_add v100, v101, s[{R_DBG}:{R_DBG+3}], s{S_T0} offen sc1", "s_mov_b64 exec, -1", "s_setprio 1", "L_nosig:")

    def join_signal(self, v, tag):
        self.a(f"v_mov_b32 v{v}, {L_FLAG+4}", f"v_mov_b32 v{v+1}, 1", f"v_mov_b32 v{v+3}, 0", f"s_lshl_b32 s{S_T0}, s{S_B}, 7", "s_mov_b64 exec, 1",
               "s_waitcnt vmcnt(0)", f"ds_add_rtn_u32 v{v+2}, v{v}, v{v+1}", "s_waitcnt lgkmcnt(0)", f"v_cmp_eq_u32 vcc, 3, v{v+2}", f"s_cbranch_vccz L_js{tag}",
               f"buffer_atomic_add v{v+1}, v{v+3}, s[{R_DBG}:{R_DBG+3}], s{S_T0} offen offset:4 sc1", f"L_js{tag}:")

    def wo_job_addr(self, rep):
        a = self.a
        if rep == 0:
            a(f"s_lshl_b32 s{S_OEX}, s{S_PG}, 2", f"s_add_u32 s{S_OEX}, s{S_OEX}, s{S_HG}", f"s_lshl_b32 s{S_OEX}, s{S_OEX}, 2", f"s_add_u32 s{S_OEX}, s{S_OEX}, s{S_I}")
        f = S_OEX
        AD = 208 + 8 * rep
        a(f"s_mul_i32 s16, s{f}, 3641", "s_lshr_b32 s16, s16, 16", "s_mul_i32 s19, s16, 18", f"s_sub_u32 s19, s{f}, s19",
          "s_mul_i32 s21, s16, 7282", "s_lshr_b32 s21, s21, 16", "s_mul_i32 s17, s21, 9", "s_sub_u32 s17, s16, s17")
        a("s_mul_i32 s22, s21, 288", "s_lshr_b32 s23, s17, 1", "s_lshl_b32 s23, s23, 6", "s_add_u32 s22, s22, s23", "s_and_b32 s23, s17, 1", "s_lshl_b32 s23, s23, 3",
          "s_add_u32 s22, s22, s23", "s_cmp_eq_u32 s17, 8", "s_cselect_b32 s23, 3, 4",
          "v_bfe_u32 v200, v0, 2, 2", "v_lshlrev_b32 v200, s23, v200", "v_and_b32 v201, 3, v0", "v_lshl_add_u32 v200, v201, 1, v200", "v_add_u32 v200, s22, v200",
          "s_cmp_ge_u32 s19, 16", f"s_cbranch_scc1 L_wok1_{rep}")
        cy = [(j & 3) + 8 * (j >> 2) for j in range(8)]
        a("s_lshr_b32 s23, s19, 2", "s_add_u32 s23, s23, s21", "s_and_b32 s23, s23, 3", f"s_mul_i32 s22, s23, {144*1152}",
          "s_and_b32 s23, s19, 1", f"s_mul_i32 s23, s23, {72*1152}", "s_add_u32 s22, s22, s23", "s_bfe_u32 s23, s19, 0x10001", f"s_mul_i32 s23, s23, {36*1152}", "s_add_u32 s22, s22, s23",
          "v_lshrrev_b32 v201, 5, v0", "v_bfe_u32 v202, v0, 4, 1",
          f"v_mul_u32_u24 v203, {4*1152}, v201", "v_add_u32 v203, v200, v203",
          f"v_mul_u32_u24 v204, {3*1152}, v201", f"v_sub_u32 v204, {16*1152}, v204", "v_mul_u32_u24 v204, v202, v204", f"v_add_u32 v{AD}, v203, v204")
        for j in range(1, 8):
            dj = 18 + cy[j-1] - cy[j]
            a(f"v_mul_u32_u24 v204, {dj*1152}, v202", f"v_add_u32 v204, {cy[j]*1152}, v204", f"v_add_u32 v{AD+j}, v203, v204")
        a(f"s_branch L_wold_{rep}", f"L_wok1_{rep}:", "s_and_b32 s22, s19, 1", f"s_mul_i32 s22, s22, {36*1152}",
          "v_lshrrev_b32 v201, 4, v0", "v_add_u32 v201, s21, v201", "v_and_b32 v201, 3, v201", f"v_mul_u32_u24 v201, {144*1152}, v201", "v_add_u32 v203, v200, v201")
        for j in range(8):
            hq, hh, e = j >> 2, (j >> 1) & 1, j & 1
            row = 72 * hq + 18 + ((16 + hh) if e else (11 + 4 * hh))
            a(f"v_add_u32 v{AD+j}, {row*1152}, v203")
        a(f"L_wold_{rep}:")
        a(f"s_mov_b32 s{30+rep}, s22")

    def wo_job_loads(self, rep):
        for j in range(8):
            self.a(f"buffer_load_ushort v{224+8*rep+j}, v{208+8*rep+j}, s[{R_WO}:{R_WO+3}], s{30+rep} offen")

    def wo_job_finish(self, rep):
        a = self.a
        DT = 224 + 8 * rep
        a(f"s_lshl_b32 s22, s{S_OEX}, 10", f"s_add_u32 s22, s22, {WS_WOT}")
        for j in range(4):
            a(f"v_lshl_or_b32 v{240+4*rep+j}, v{DT+1+2*j}, 16, v{DT+2*j}")
        a(f"buffer_store_dwordx4 {vr(240+4*rep,4)}, v1, s[{R_WS}:{R_WS+3}], s22 offen sc1")

    def wo_finish(self):
        a = self.a
        a(f"s_cmp_ge_u32 s{S_OEX}, 512", "s_cbranch_scc0 L_wo3")
        self.wo_job_finish(1)
        a(f"s_sub_u32 s{S_OEX}, s{S_OEX}, 512", "L_wo3:")
        self.wo_job_finish(0)

    def poison_addr(self):
        a = self.a
        a([f"v_mov_b32 v{192+j}, -1" for j in range(4)])
        a(f"s_lshl_b32 s32, s{S_PG}, 2", f"s_add_u32 s32, s32, s{S_HG}", f"s_mul_i32 s32, s32, {OEX_W}", f"s_add_u32 s32, s32, {WS_OEX}",
          f"s_lshl_b32 s33, s{S_I}, 12", "s_add_u32 s33, s33, s32", f"s_lshl_b32 s34, s{S_PBI}, 10", "s_add_u32 s34, s34, s32", "s_add_u32 s34, s34, 16384")

    def poison(self):
        a = self.a
        for k in range(4):
            a(f"buffer_store_dwordx4 v[192:195], v1, s[{R_WS}:{R_WS+3}], s33 offen offset:{k*1024} sc0 sc1")
        a(f"buffer_store_dwordx4 v[192:195], v1, s[{R_WS}:{R_WS+3}], s34 offen sc0 sc1")

    def attention(self):
        a, o = self.a, self.o
        UNP = o['unp']
        a(f"v_mul_f32 v7, v6, v{QR+1}", f"v_mul_f32 v22, v6, v{QR2+1}", f"v_mov_b32 v6, {hex(f2u(-1.0 if o['force_fb'] else TSAFE))}",
          "v_cmp_nle_f32 vcc, v7, v6", "v_cmp_nle_f32 s[42:43], v22, v6", "v_sub_f32 v7, 0, v7", "v_sub_f32 v22, 0, v22",
          f"v_cvt_pk_bf16_f32 v{QR+1}, v7, 0", f"v_cvt_pk_bf16_f32 v{QR2+1}, v22, 0", "s_or_b64 vcc, vcc, s[42:43]", "s_cbranch_vccnz L_fallback", "L_fbdone:")
        q = self.qk(S[0], 0, 0)
        f1 = [f"s_lshl_b32 s{S_T0}, s{S_HQ}, 12", f"s_lshl_b32 s{S_T1}, s{S_PBI}, 11", f"s_add_u32 s{S_T2}, s{S_T0}, s{S_T1}",
              f"s_lshl_b32 s{S_T0}, s{S_PBI}, 9", f"s_lshl_b32 s{S_T1}, s{S_HQ}, 7", f"s_add_u32 s{S_T3}, s{S_T0}, s{S_T1}",
              f"v_mov_b32 v{V_JN}, {L_FLAG+4}", f"s_mov_b32 s{S_CNT}, {32//UNP}", "v_bfe_u32 v6, v0, 4, 1", "v_lshrrev_b32 v7, 5, v0",
              "v_and_b32 v22, 15, v0", f"v_lshlrev_b32 v{V_OA}, 10, v6", f"v_lshl_add_u32 v{V_OA}, v7, 9, v{V_OA}", f"v_lshl_add_u32 v{V_OA}, v22, 4, v{V_OA}", f"v_add_u32 v{V_OA}, s{S_T2}, v{V_OA}",
              f"v_lshlrev_b32 v{V_OB}, 8, v6", f"v_lshl_add_u32 v{V_OB}, v7, 6, v{V_OB}", f"v_lshl_add_u32 v{V_OB}, v22, 2, v{V_OB}"]
        a("s_nop 0", q[0], f1, q[1], q[2], f"v_add_u32 v{V_OB}, s{S_T3}, v{V_OB}", "s_nop 9")
        self.stamp(6)
        self.stamp(6, 6)
        body = []
        units = [(kb, pr) for kb in range(2 * UNP) for pr in range(2)]
        for i, (kb, pr) in enumerate(units):
            cur, nxt = S[i % 2], S[(i + 1) % 2]
            q = self.qk(nxt, kb + pr, 1 - pr)
            e = EX(cur, 32)
            sm3p = SM(OS[2*(1-pr)+1], VV[(kb - 1 + pr) % 2][1], nxt + 24)
            sm = [SM(OS[2*pr], VV[kb % 2][0], cur), SM(OS[2*pr], VV[kb % 2][1], cur + 8), SM(OS[2*pr+1], VV[kb % 2][0], cur + 16)]
            if pr == 0:
                v0, v1 = self.ldV(kb + 1)
                x = [[v0], [v1], [], [], []]
            else:
                x = [[], [], self.ldKm(kb + 2), self.ldKr((kb + 3) // 2) if kb % 2 == 1 else [], ["s_waitcnt lgkmcnt(0)"]]
            body += e[0:2] + [sm3p] + x[0] + e[2:5] + [q[0]] + e[5:13] + [sm[0]] + x[1] + e[13:18] + [sm[1]] + x[2] + e[18:21] + [q[1]] + x[3] + e[21:24] + [q[2]] + e[24:27] + [sm[2]] + x[4] + e[27:32]
        reach = max(int(x.split("offset:")[1]) + {V_AK: 1024, V_AR: 2048 + 256, V_AV: 2304 + VG}[int(x.split(", v")[1].split()[0])] for x in body if x.startswith("ds_read"))
        assert reach <= 4096 * o['kv1'] and L_KV + 4096 * o['kv1'] <= dslot(17)
        assert L_W8 + 18432 <= L_KV + (32 - UNP) * PB
        body += [f"v_add_u32 v{V_AK}, {UNP*PB}, v{V_AK}", f"v_add_u32 v{V_AR}, {UNP*PB}, v{V_AR}", f"v_add_u32 v{V_AV}, {UNP*PB}, v{V_AV}"]
        if o['sh']:
            mf = [i for i, x in enumerate(body) if 'smfmac' in x and not body[i + 1].startswith(('ds_', 's_'))]
            body.insert(mf[-1] + 1, f"s_cmp_lg_u32 s{S_CNT}, s{S_BAR}")
            body.insert(mf[-2] + 1, f"s_sub_u32 s{S_CNT}, s{S_CNT}, 1")
            a(".p2align 6", "L_main:", body, "s_cbranch_scc1 L_main", f"s_cmp_eq_u32 s{S_CNT}, 1", "s_cbranch_scc1 L_last", "s_barrier", f"s_mov_b32 s{S_BAR}, 1", "s_branch L_main", "L_last:")
        else:
            a(".p2align 6", "L_main:", body, f"s_sub_u32 s{S_CNT}, s{S_CNT}, 1", f"s_cmp_lg_u32 s{S_CNT}, s{S_BAR}", "s_cbranch_scc1 L_nob", "s_barrier", "L_nob:",
              f"s_cmp_lg_u32 s{S_CNT}, 1", "s_cbranch_scc1 L_main")
        a("s_barrier", f"ds_read_b32 v23, v{V_JN} offset:4")
        DW = [192, 204]

        def publish(pr):
            x, y, d = OS[2*pr], OS[2*pr+1], DW[pr]
            vals = [x + j for j in range(9)] + [y + j for j in range(9)]
            c = [f"v_cvt_pk_bf16_f32 v{d+j}, v{vals[2*j]}, v{vals[2*j+1]}" for j in range(9)]
            a(f"v_rcp_f32 v6, v{x+9}", "s_nop 0", [f"v_mul_f32 v{r}, v{r}, v6" for r in vals[:9]], c[:3], f"v_rcp_f32 v7, v{y+9}", c[3])
            direct = pr == 1 or not o['hst']
            if direct:
                a("v_cmp_ne_u32 vcc, 0, v23", f"s_cbranch_vccnz L_pub1{pr}")
            for fl in (" sc0 sc1", "") if direct else (None,):
                st = lambda n, r, v, so, off: f"buffer_store_dword{n} {r}, v{v}, s[{R_WS}:{R_WS+3}], s{so} offen offset:{off}{fl}" if direct else []
                so = S_OA if pr else S_OW
                a(st('x4', vr(d, 4), V_OA, so, 0), [f"v_mul_f32 v{r}, v{r}, v7" for r in vals[9:]], c[4:8], st('x4', vr(d + 4, 4), V_OA, so, 256), c[8], st('', vr(d + 8), V_OB, S_OB, 1024 * pr))
                if fl:
                    a(f"s_branch L_pub2{pr}", f"L_pub1{pr}:")
            a(f"L_pub2{pr}:")
            if pr:
                a(self.peer_loads())
            else:
                a(f"v_add_u32 v201, {L_O}, v{V_OA}", f"v_add_u32 v202, {L_O + 65536}, v{V_OB}")
            a(f"ds_write_b128 v201, {vr(d, 4)} offset:{8192*pr}", f"ds_write_b128 v201, {vr(d + 4, 4)} offset:{8192*pr + 256}", f"ds_write_b32 v202, v{d + 8} offset:{1024*pr}")
        NV = 2 * UNP
        for j in range(2 * NV):
            pr, kb = j // NV, j % NV
            cur, nxt = S[j % 2], S[(j + 1) % 2]
            q = self.qk(nxt, (j + 1) % NV, (j + 1) // NV) if j + 1 < 2 * NV else [[], [], []]
            e = EX(cur, 32)
            sm3p = SM(OS[2*((j - 1) // NV % 2)+1], VV[(j - 1) % 2][1], nxt + 24)
            sm = [SM(OS[2*pr], VV[j % 2][0], cur), SM(OS[2*pr], VV[j % 2][1], cur + 8), SM(OS[2*pr+1], VV[j % 2][0], cur + 16)]
            v0, v1 = self.ldV((j + 1) % NV) if j + 1 < 2 * NV else ([], [])
            km = self.ldKm((j + 2) % NV) if j + 2 < 2 * NV else []
            kr = self.ldKr(((j + 3) // 2) % UNP) if j % 2 == 1 and j + 3 < 2 * NV else []
            a(e[0:2], sm3p, v0, e[2:5], q[0], e[5:13], sm[0], v1, e[13:18], sm[1], km, e[18:21], q[1], kr, e[21:24], q[2], e[24:27], sm[2], "s_waitcnt lgkmcnt(0)", e[27:32])
            if j == NV:
                publish(0)
            if j == o['nj']:
                a("s_barrier")
        a("s_nop 1", SM(O2[1], VV[1][1], S[1] + 24))
        self.stamp(7)
        a("s_setprio 3", "s_barrier")
        publish(1)
        self.tail_vaddr()
        a(f"v_add_u32 v21, {L_W8}, v1")
        self.stamp(1, 4)
        if o['own1']:
            a("s_waitcnt lgkmcnt(0)", "s_barrier")
        self.collect("e")
        q = []
        RO, RW, ACC = [56 + 8 * k for k in range(5)], [60 + 8 * k for k in range(5)], 100
        for n in range(18 + 4):
            if n >= 4:
                ks = n - 4
                last = max(i for i, t in enumerate(q) if t == ks)
                a(f"s_waitcnt lgkmcnt({min(len(q) - 1 - last, 14)})", M16(ACC, RW[ks % 5], RO[ks % 5], "0" if ks == 0 else None))
                del q[:last + 1]
            if n < 18:
                x = self.ofrag(RO[n % 5], 0, n) + [f"ds_read_b128 {vr(RW[n % 5], 4)}, v21 offset:{n*1024}"]
                a(x)
                q += [n] * len(x)
        a("s_nop 7", f"v_cvt_pk_bf16_f32 v6, v{ACC}, v{ACC+1}", f"v_cvt_pk_bf16_f32 v7, v{ACC+2}, v{ACC+3}",
          f"buffer_store_dwordx2 v[6:7], v23, s[{R_OUT}:{R_OUT+3}], s41 offen")
        self.finish()

    def peer_loads(self):
        return [f"buffer_load_dwordx4 {vr(24+4*k,4)}, v1, s[{R_WS}:{R_WS+3}], s{16+k} offen sc0 sc1" for k in range(7)]

    def ofrag(self, r, tp, ks):
        if ks < 16:
            return [f"ds_read_b128 {vr(r,4)}, v{8+tp} offset:{ks*4096}"]
        if ks == 16:
            return [f"ds_read2_b32 {vr(r,2)}, v{52+tp} offset0:0 offset1:16", f"ds_read2_b32 {vr(r+2,2)}, v{52+tp} offset0:32 offset1:48"]
        return [f"ds_read2_b32 {vr(r,2)}, v{16+tp} offset0:0 offset1:16", f"ds_read2_b32 {vr(r+2,2)}, v{16+tp} offset0:32 offset1:48"]

    def tail_vaddr(self):
        self.a(f"s_lshl_b32 s{S_T0}, s{S_I}, 10", f"s_add_u32 s{S_T0}, s{S_T0}, {L_O}", f"v_add_u32 v8, s{S_T0}, v1", "v_xor_b32 v9, 0x400, v8", "v_xor_b32 v10, 0x800, v8", "v_xor_b32 v11, 0xc00, v8",
               "v_lshrrev_b32 v6, 4, v0", "v_and_b32 v7, 15, v0", "v_mul_u32_u24 v22, 0x900, v7", "v_lshl_add_u32 v23, v6, 3, v22", "v_lshl_add_u32 v22, v6, 4, v22",
               "v_lshlrev_b32 v6, 11, v6", "v_lshl_add_u32 v6, v7, 2, v6", f"s_lshl_b32 s{S_T0}, s{S_I}, 8", f"s_add_u32 s{S_T0}, s{S_T0}, {L_O + 65536}",
               f"v_add_u32 v52, s{S_T0}, v6", "v_xor_b32 v53, 0x100, v52", "v_xor_b32 v54, 0x200, v52", "v_xor_b32 v55, 0x300, v52",
               [f"v_add_u32 v{16+k}, 0x400, v{52+k}" for k in range(4)])

    def collect(self, tag):
        a, PB_ = self.a, 24
        a(f"s_mov_b32 s{S_CNT}, {SPIN}", f"L_cl{tag}:", "s_waitcnt vmcnt(0)")
        self.stamp(3, 4)
        a(f"v_max3_u32 v6, v{PB_}, v{PB_+1}, v{PB_+2}", f"v_max3_u32 v7, v{PB_+3}, v{PB_+4}, v{PB_+5}")
        for j in range(6, 28, 4):
            a(f"v_max3_u32 v6, v6, v{PB_+j}, v{PB_+j+1}")
            if j + 3 < 28:
                a(f"v_max3_u32 v7, v7, v{PB_+j+2}, v{PB_+j+3}")
        a("v_max_u32 v7, v7, v6", "v_cmp_eq_u32 vcc, -1, v7", f"s_cbranch_vccz L_cld{tag}", f"s_sub_u32 s{S_CNT}, s{S_CNT}, 1", f"s_cbranch_scc1 L_cld{tag}", self.peer_loads(), f"s_branch L_cl{tag}", f"L_cld{tag}:")
        self.stamp(2, 4)
        for k in range(7):
            a(f"v_add_u32 v{6+(k&1)}, s{30+k}, v1", f"ds_write_b128 v{6+(k&1)}, {vr(PB_+4*k,4)}")
        a("s_waitcnt lgkmcnt(0)", "s_barrier")
        self.stamp(4, 4)
        self.stamp(4, 0)

    def tail_late(self):
        a, o = self.a, self.o
        WF, ACC = 112, 80
        RING = [56 + 4 * i for i in range(6)]
        if o['hst']:
            a(f"s_lshl_b32 s{S_T0}, s{S_I}, 11", f"s_add_u32 s{S_T1}, s{S_T0}, s{S_OW}", f"s_add_u32 s{S_T0}, s{S_T0}, {L_O}", f"v_add_u32 v56, s{S_T0}, v1",
              f"v_lshlrev_b32 v57, 2, v0", f"s_lshl_b32 s{S_T0}, s{S_I}, 8", f"s_add_u32 s{S_T2}, s{S_T0}, s{S_OB}", f"s_add_u32 s{S_T0}, s{S_T0}, {L_O + 65536}", f"v_add_u32 v58, s{S_T0}, v57",
              f"s_cmp_eq_u32 s{S_SAME}, 1")
        a("s_setprio 2", "s_barrier")
        if o['hst']:
            a("ds_read_b128 v[60:63], v56", "ds_read_b128 v[64:67], v56 offset:1024", "ds_read_b32 v68, v58", "s_cbranch_scc1 L_hs1")
            for fl in (" sc0 sc1", ""):
                a("s_waitcnt lgkmcnt(0)", f"buffer_store_dwordx4 v[60:63], v1, s[{R_WS}:{R_WS+3}], s{S_T1} offen{fl}", f"buffer_store_dwordx4 v[64:67], v1, s[{R_WS}:{R_WS+3}], s{S_T1} offen offset:1024{fl}",
                  f"buffer_store_dword v68, v57, s[{R_WS}:{R_WS+3}], s{S_T2} offen{fl}")
                if fl:
                    a("s_branch L_hs2", "L_hs1:")
            a("L_hs2:")
        a(self.peer_loads())
        self.collect("l")
        a("s_setprio 1")
        self.stamp(7)
        q = []

        def run(seq, n0, after):
            PF = 5

            def issue(j):
                x = self.ofrag(RING[(n0 + j) % 6], *seq[j])
                a(x)
                q.extend([n0 + j] * len(x))
            for j in range(PF):
                issue(j)
            for j, (tp, ks) in enumerate(seq):
                last = max(i for i, t in enumerate(q) if t == n0 + j)
                a(f"s_waitcnt lgkmcnt({min(len(q) - 1 - last, 14)})")
                del q[:last + 1]
                c = "0" if ks == 0 else None
                r = RING[(n0 + j) % 6]
                a(M16(ACC + 4 * tp, WF + 4 * ks, r, c), M16(ACC + 16 + 4 * tp, WF + 72 + 4 * ks, r, c))
                if j + PF < len(seq):
                    issue(j + PF)
                a(after.get(j, []))

        def outp(tp):
            r = 24 + 4 * tp
            return [f"v_cvt_pk_bf16_f32 v{r+k}, v{ACC+16*(k>>1)+4*tp+2*(k&1)}, v{ACC+16*(k>>1)+4*tp+2*(k&1)+1}" for k in range(4)] + \
                   [f"buffer_store_dwordx4 {vr(r,4)}, v22, s[{R_OUT}:{R_OUT+3}], s{37+tp} offen"]
        k0 = [0, 1, 4, 5, 8, 9, 12, 13, 16]
        k1 = [6, 7, 10, 11, 14, 15, 17]
        run([(tp, ks) for ks in k0 for tp in range(4)], 0, {})
        if o['own1']:
            a("s_barrier")
            run([(tp, ks) for ks in (2, 3) for tp in range(4)], 36, {})
        else:
            k1 = [2, 3] + k1
        a("s_setprio 3", "s_barrier")
        self.stamp(6, 4)
        n1 = len(k1)
        run([(tp, ks) for tp in range(4) for ks in k1], 44, {n1 * i + 2: outp(i - 1) for i in (1, 2, 3)})
        a("s_nop 6", outp(3), "s_branch L_fin")

    def tail_scalars(self):
        a, o = self.a, self.o
        a(f"s_mul_i32 s{S_OEXB}, s{S_PG}, {OEX_G}", f"s_add_u32 s{S_OEXB}, s{S_OEXB}, {WS_OEX}", f"s_mul_i32 s{S_OW}, s{S_HG}, {OEX_W}", f"s_add_u32 s{S_OW}, s{S_OW}, s{S_OEXB}",
          f"s_add_u32 s{S_OA}, s{S_OW}, 8192", f"s_add_u32 s{S_OB}, s{S_OW}, 16384",
          f"s_lshl_b32 s23, s{S_STG}, 13", f"s_lshl_b32 s24, s{S_STG}, 10")
        for k in range(7):
            a(f"s_add_u32 s{S_T0}, s{S_I}, {4*k}")
            if k == 6:
                a(f"s_min_u32 s{S_T0}, s{S_T0}, 26")
            a(f"s_mul_i32 s{S_T1}, s{S_T0}, 7282", f"s_lshr_b32 s{S_T1}, s{S_T1}, 16", f"s_mul_i32 s{S_T2}, s{S_T1}, 9", f"s_sub_u32 s{S_T2}, s{S_T0}, s{S_T2}",
              f"s_add_u32 s{S_T1}, s{S_T1}, 1",
              f"s_lshl_b32 s{S_T0}, s{S_T2}, 10", f"s_add_u32 s{S_T0}, s{S_T0}, s23", f"s_add_u32 s{S_T3}, s24, 16384",
              f"s_lshl_b32 s{30+k}, s{S_T1}, 14", f"s_add_u32 s{30+k}, s{30+k}, s{S_T0}", f"s_lshl_b32 s{16+k}, s{S_T1}, 11", f"s_add_u32 s{16+k}, s{16+k}, s24", f"s_add_u32 s{16+k}, s{16+k}, 65536",
              f"s_cmp_eq_u32 s{S_T2}, 8", f"s_cselect_b32 s{S_T0}, s{S_T3}, s{S_T0}", f"s_cselect_b32 s{30+k}, s{16+k}, s{30+k}", f"s_add_u32 s{30+k}, s{30+k}, {L_O}",
              f"s_add_u32 s{S_T1}, s{S_T1}, s{S_HG}", f"s_and_b32 s{S_T1}, s{S_T1}, 3", f"s_mul_i32 s{S_T1}, s{S_T1}, {OEX_W}", f"s_add_u32 s{S_T0}, s{S_T0}, s{S_T1}", f"s_add_u32 s{16+k}, s{S_T0}, s{S_OEXB}")
        a(f"s_mul_i32 s{S_T0}, s{S_PG}, {64*2304}", f"s_mul_i32 s{S_T1}, s{S_B}, 1152", f"s_add_u32 s{S_T0}, s{S_T0}, s{S_T1}", f"s_mul_i32 s{S_T1}, s{S_HG}, 288",
          f"s_add_u32 s{S_T0}, s{S_T0}, s{S_T1}", f"s_lshl_b32 s{S_T1}, s{S_I}, 6", f"s_add_u32 s{S_T1}, s{S_T1}, s{S_T0}")
        for tp in range(4):
            a(f"s_xor_b32 s{S_T2}, s{S_I}, {tp}", f"s_mul_i32 s{S_T2}, s{S_T2}, {16*2304}", f"s_add_u32 s{37+tp}, s{S_T2}, s{S_T1}")
            if tp == 0:
                a(f"s_add_u32 s41, s{S_T2}, s{S_T0}", "s_add_u32 s41, s41, 256")

    def fallback(self):
        a, o = self.a, self.o
        a.label("L_fallback")
        a("s_barrier", f"s_mov_b32 s{S_BAR}, {1 if o['sh'] else -1}")
        a(f"v_mov_b32 v{QR+1}, 0", f"v_mov_b32 v{QR2+1}, 0", f"v_mov_b32 v192, v{V_AK}", f"v_mov_b32 v193, v{V_AR}", [f"v_mov_b32 v{194+k}, 0xff800000" for k in range(4)],
          "v_mov_b32 v199, 0x3f803f80", f"s_mov_b32 s{S_CNT}, 32", "L_fbl:",
          "ds_read_b32 v198, v193", "ds_read_b128 v[200:203], v192", "ds_read_b128 v[204:207], v192 offset:1024",
          f"v_add_u32 v192, {PB}, v192", f"v_add_u32 v193, {PB}, v193", "s_waitcnt lgkmcnt(0)")
        for h in range(2):
            for pr in range(2):
                a(B2(208, 198, QRS[pr], h), "s_nop 15", "s_nop 1", K16(208, 200 + 4 * h, QMS[2*pr]), K16(224, 200 + 4 * h, QMS[2*pr+1]), "s_nop 11")
                for j in range(8):
                    a(f"v_max3_f32 v{194+2*pr}, v{194+2*pr}, v{208+2*j}, v{209+2*j}", f"v_max3_f32 v{195+2*pr}, v{195+2*pr}, v{224+2*j}, v{225+2*j}")
        a(f"s_sub_u32 s{S_CNT}, s{S_CNT}, 1", f"s_cmp_lg_u32 s{S_CNT}, 0", "s_cbranch_scc1 L_fbl")
        for pr in range(2):
            x, y = 194 + 2 * pr, 195 + 2 * pr
            a("s_nop 0", f"v_permlane32_swap_b32 v{x}, v{y}", "s_nop 1", f"v_max_f32 v{x}, v{x}, v{y}", f"v_sub_f32 v{x}, 0, v{x}",
              f"v_cvt_pk_bf16_f32 v{y}, v{x}, 0", f"v_lshlrev_b32 v{y}, 16, v{y}", f"v_sub_f32 v{y}, v{x}, v{y}", f"v_cvt_pk_bf16_f32 v{QRS[pr]+1}, v{x}, v{y}")
        a("s_branch L_fbdone")

    def finish(self):
        a, o = self.a, self.o
        a("L_fin:")
        if o['stamps'] or o['dbgspan'] or o['ampk']:
            a("s_waitcnt vmcnt(0)")
            self.stamp(5, o['set'] if o['set'] in (1, 4) else 0)
        if o['ampk']:
            a(f"s_cmp_eq_u32 s{S_STG}, {1 - o['amps']}", "s_cbranch_scc1 L_end", "s_waitcnt lgkmcnt(0)", f"s_sub_u32 s{S_T0}, s{S_ST+2*o['ampb']}, s{S_ST+2*o['ampa']}")
            if o['avg']:
                a(f"s_cmp_lg_u32 s{S_I}, 0", "s_cbranch_scc1 L_end", "s_mov_b64 exec, 1", "v_mov_b32 v8, 0", f"v_mov_b32 v9, s{S_T0}", "v_mov_b32 v10, 1",
                  f"buffer_atomic_add v9, v8, s[{R_DBG}:{R_DBG+3}], 0 offen offset:16 sc1", "s_waitcnt vmcnt(0)",
                  f"buffer_atomic_add v10, v8, s[{R_DBG}:{R_DBG+3}], 0 offen offset:144 sc0 sc1", "s_waitcnt vmcnt(0)", "v_cmp_eq_u32 vcc, 0xff, v10", "s_cbranch_vccz L_end",
                  f"buffer_load_dword v9, v8, s[{R_DBG}:{R_DBG+3}], 0 offen offset:16 sc0 sc1", "s_waitcnt vmcnt(0)", f"v_readfirstlane_b32 s{S_T0}, v9", "s_nop 3", f"s_mul_i32 s{S_T0}, s{S_T0}, {max(o['ampk'], 1)}", f"s_lshr_b32 s{S_T0}, s{S_T0}, {8 - min(o['ampk'], 0)}")
            else:
                a(f"s_mul_i32 s{S_T0}, s{S_T0}, {o['ampk']}" if o['ampk'] > 0 else f"s_lshr_b32 s{S_T0}, s{S_T0}, {-o['ampk']}")
            a("s_memrealtime s[18:19]", f"s_min_u32 s{S_T0}, s{S_T0}, 100000",
              "L_amp:", "s_memrealtime s[16:17]", "s_waitcnt lgkmcnt(0)", "s_sub_u32 s16, s16, s18", f"s_cmp_lt_u32 s16, s{S_T0}", "s_cbranch_scc1 L_amp")
        self.dump_stamps()
        a("L_end:", "s_endpgm")

    def build(self):
        self.start()
        self.early_front()
        self.attention()
        self.late_front()
        self.fallback()
        hdr = (open('concat_heads__grouped_kv_mqa__grouped_kv_mqa__prompt.s.ref').read().split("; Override launch geometry")[0] +
               f"; @launch grid=(256,1,1) block=(512,1,1) lds={LDS_BYTES}\n" + DOC +
               '.amdgcn_target "amdgcn-amd-amdhsa--gfx950"\n.text\n'
               f".globl {NAME}\n.p2align 8\n.type {NAME},@function\n{NAME}:\n")
        if self.o['of'] & 1:
            self.a.L = [x.replace(" sc0 sc1", " sc1") if "buffer_store" in x and f"s[{R_WS}:" in x else x for x in self.a.L]
        if self.o['of'] & 2:
            self.a.L = [x.replace(" sc0 sc1", " sc1") if "buffer_load" in x and f"s[{R_WS}:" in x else x for x in self.a.L]
        body = "".join((x + "\n") if x.endswith(":") or x.startswith(";") else ("    " + x + "\n") for x in self.a.L)
        t = table()
        tab = ".p2align 6\n.type L_table,@object\nL_table:\n" + "".join("    .long " + ", ".join(str(int(v)) for v in row) + "\n" for row in t)
        tab += f".fill (1024 - ((. - {NAME}) & 1023)) & 1023, 1, 0\nL_codeend:\n.size L_table, L_codeend-L_table\n"
        kd = f""".section .rodata,"a"
.p2align 6
.amdhsa_kernel {NAME}
  .amdhsa_next_free_vgpr 256
  .amdhsa_next_free_sgpr 102
  .amdhsa_accum_offset 256
  .amdhsa_group_segment_fixed_size 0
  .amdhsa_kernarg_size 104
  .amdhsa_user_sgpr_count 2
  .amdhsa_user_sgpr_kernarg_segment_ptr 1
  .amdhsa_system_sgpr_workgroup_id_x 1
.end_amdhsa_kernel
"""
        return hdr + body + tab + kd


if __name__ == "__main__":
    out = sys.argv[1]
    opt = {}
    for kv in sys.argv[2:]:
        k, v = kv.split("=")
        opt[k] = int(v)
    g = Gen(opt)
    open(out, "w").write(g.build())
```

```python
import sys, math, struct
import numpy as np

NAME = "concat_heads__grouped_kv_mqa__grouped_kv_mqa__prompt_kernel"

VG = 608
PB = 2048 + 256 + 4 * VG
KVB = 32 * PB
L_KV = 12288
L_HAND = 0
L_KMAX = 10240
L_FLAG = 10256
L_T2X = 81920
L_O = 12288
L_W8 = L_O + 73728
L_W = 62464
L_X = 90112
SLOT = 4608
LDS_BYTES = 163840
WS_KV = 0
WS_KN = KVB
WS_XID = WS_KN + 1024
WS_CNT = 0x26000
WS_WOT = 0x28000
WS_OEX = 0xD0000
WS_BR = 0x400000
WS_STAMP = 0x1000000
OEX_G = 73728
OEX_W = 18432
CSCALE = math.log2(math.e) / math.sqrt(18.0)
TSAFE = 40.0
SPIN = 500000
SPIN_L = 16 * SPIN


def f2u(x):
    return struct.unpack("<I", struct.pack("<f", x))[0]


def dslot(d):
    if d < 6:
        return d * 2 * SLOT
    if d < 17:
        return L_W + (d - 6) * 2 * SLOT
    return 5 * 2 * SLOT


def slot_addr(ks):
    return dslot(ks >> 1) + (ks & 1) * SLOT


G0 = [0, 1, 2, 3, 12, 13, 14, 15, 20]
G1 = [4, 5, 6, 7, 8, 9, 10, 11, 16]
POS_ONES, POS_ZERO = 22, 23


def vpos(h, row):
    if row in G0:
        return [list(range(0, 9)), [18, 19, 20, 21, 24, 25, 26, 27, 28]][h][G0.index(row)]
    if row in G1:
        return [list(range(9, 18)), list(range(29, 38))][h][G1.index(row)]
    if row in (17, 21):
        return POS_ONES
    return POS_ZERO


def table():
    t = np.zeros((64, 4), dtype=np.uint32)
    for l in range(64):
        t[l, 0] = L_KV + 2304 + vpos(l >> 5, l & 31) * 16
        n, g = l & 15, l >> 4
        t[l, 1] = vpos(g >> 1, n) * 16 + (g & 1) * 8
        p = {0: vpos(g >> 1, 16), 1: vpos(g >> 1, 20), 2: POS_ONES, 3: POS_ZERO}.get(n, POS_ZERO)
        t[l, 2] = p * 16 + (g & 1) * 8
    return t


def vr(a, n=1):
    return f"v[{a}:{a+n-1}]" if n > 1 else f"v{a}"


def sr(a, n=1):
    return f"s[{a}:{a+n-1}]" if n > 1 else f"s{a}"


S_WAVE = 3
R_X, R_WQ, R_W, R_WO, R_WS, R_OUT, R_DBG = 44, 48, 52, 56, 60, 64, 68
S_B, S_HG, S_GI, S_PG, S_I = 4, 5, 6, 7, 8
S_T0, S_T1, S_T2, S_T3, S_T4, S_T5 = 9, 10, 11, 12, 13, 14
S_CNT = 15
S_M0A, S_M0R, S_ROW = 72, 73, 74
S_BAR = 75
S_PBI, S_HQ = 76, 77
S_EX = 42
S_KVS = 80
S_OEX = 81
S_STG = 82
S_OEXB = 78
S_SAME, S_OA, S_OB, S_OW = 26, 27, 28, 25
V_OA, V_OB, V_JN = 144, 145, 146
S_VM = 0
S_XI, S_XB, S_XS, S_XM = 83, 100, 101, 79
S_DI, S_DS, S_LI, S_LS = 72, 73, 74, 75
S_ST = 84

V_IDX, V_AK, V_AR, V_AV = 2, 3, 4, 5
QM = [8, 12]
QR = 16
KR = [18, 20]
O = [24, 40]
KM = [56, 60]
VV = [[64, 68], [72, 76]]
S = [80, 112]
QM2 = [148, 152]
QR2 = 156
O2 = [160, 176]
QMS, QRS, OS = QM + QM2, [QR, QR2], O + O2


DOC = """;
"""


class A:
    def __init__(self):
        self.L = []

    def __call__(self, *xs):
        for x in xs:
            if isinstance(x, (list, tuple)):
                self(*x)
            else:
                self.L.append(x)

    def label(self, n):
        self.L.append(n + ":")


def K16(d, a, b, c=None):
    return f"v_mfma_f32_32x32x16_bf16 {vr(d,16)}, {vr(a,4)}, {vr(b,4)}, {c if c else vr(d,16)}"


def M16(d, a, b, c=None):
    return f"v_mfma_f32_16x16x32_bf16 {vr(d,4)}, {vr(a,4)}, {vr(b,4)}, {c if c else vr(d,4)}"


def B2(d, a, b, abid):
    return f"v_mfma_f32_32x32x4_2b_bf16 {vr(d,32)}, {vr(a,2)}, {vr(b,2)}, 0 cbsz:1 abid:{abid}"


def K8Z(d, z):
    return f"v_mfma_f32_32x32x8_bf16 {vr(d,16)}, {vr(z,2)}, {vr(z,2)}, 0"


def SM(d, a, b):
    return f"v_smfmac_f32_32x32x32_bf16 {vr(d,16)}, {vr(a,4)}, {vr(b,8)}, v{V_IDX}"


def EX(r, n):
    return [f"v_exp_f32 v{r+i}, v{r+i}" for i in range(n)]


def srd(a, dst, lo, hi, size):
    a(f"s_mov_b32 s{dst}, {lo}", f"s_mov_b32 s{dst+1}, {hi}", f"s_mov_b32 s{dst+2}, {size}", f"s_mov_b32 s{dst+3}, 0x20000")


class Gen:
    def __init__(self, opt):
        self.o = dict(unp=4, barit=1, stamps=False, force_fb=False, prefetch=True, prio=True, dbgspan=0, hst=1, sh=1, nj=9, own1=0, l01=0, sched=1, dbl=0, xe1=0, x1l=0, pw=0, ks2=0, binv=0, z2=1, vexec=0, ga=1, tp=1, x2j=31, amps=0, p1=2, p2=5, p3=7, lo0=0, lo1=0, ka=2, lnorm=1, xper=3, dly=0, d0l=1, pre=2, xe=0, sigb2=1, tre=1, badv0=0, shard=1, nslow=64, spf=0, avg=0, xcc=1, xp=0, outf=0, of=0, ampa=0, ampb=0, ampk=0, set=0, nb=5, kv1=6, pd=2, win=3, t1=7, t2=9, sb=18)
        self.o.update(opt)
        self.a = A()
        self.nst = 0

    def stamp(self, i, st=0):
        if i not in (0, 7) and st != self.o['set']:
            return
        if self.o['stamps'] or self.o['dbgspan'] or self.o['ampk']:
            cyc = self.o['stamps'] == 2 or self.o['ampk'] < 0
            self.a(f"{'s_memtime' if cyc else 's_memrealtime'} s[{S_ST+2*i}:{S_ST+2*i+1}]")

    def dump_stamps(self):
        if self.o['dbgspan']:
            a = self.a
            n = self.nst = self.nst + 1
            a("s_waitcnt lgkmcnt(0)", f"s_cmp_lg_u32 s{S_I}, 0", f"s_cbranch_scc1 L_nodump{n}", "s_mov_b64 exec, 1", "v_mov_b32 v8, 0", f"s_not_b32 s{S_T0}, s{S_ST}", f"v_mov_b32 v9, s{S_T0}",
              f"buffer_atomic_umax v9, v8, s[{R_DBG}:{R_DBG+3}], 0 offen offset:8 sc1")
            for k, i in enumerate((0, 1, 3, 6, 7, 5) if n == 2 else (1, 2, 4, 5, 6, 7)):
                a(f"v_mov_b32 v{10+k}, s{S_ST+2*i}", f"buffer_atomic_umax v{10+k}, v8, s[{R_DBG}:{R_DBG+3}], 0 offen offset:{(12 if n == 2 else 36)+4*k} sc1")
            a(f"L_nodump{n}:")
            return
        if not self.o['stamps']:
            return
        a = self.a
        a("s_waitcnt lgkmcnt(0)", f"s_lshl_b32 s{S_T0}, s2, 3", f"s_add_u32 s{S_T0}, s{S_T0}, s{S_WAVE}", f"s_lshl_b32 s{S_T0}, s{S_T0}, 6",
          f"s_mul_i32 s{S_T1}, s{S_B}, {WS_BR}", f"s_sub_u32 s{S_T0}, s{S_T0}, s{S_T1}", f"s_add_u32 s{S_T0}, s{S_T0}, {WS_STAMP}",
          f"s_mov_b32 s{R_WS+2}, 0x2000000", "v_mov_b32 v8, 0")
        for i in range(4):
            for k in range(4):
                a(f"v_mov_b32 v{12+k}, s{S_ST+4*i+k}")
            a(f"buffer_store_dwordx4 v[12:15], v8, s[{R_WS}:{R_WS+3}], s{S_T0} offen offset:{16*i}", "s_nop 1")

    def kv_dma(self, p0, n):
        a = self.a
        for k in range(n):
            a(f"s_add_u32 m0, s{S_M0A}, {L_KV + (p0 + 4*k)*1024}", f"s_add_u32 s{S_T0}, s{S_KVS}, 4096",
              f"buffer_load_dwordx4 v1, s[{R_WS}:{R_WS+3}], s{S_KVS} offen sc1 lds",
              f"s_cmp_ge_u32 s{S_T0}, {KVB}", f"s_cselect_b32 s{S_T1}, {KVB}, 0", f"s_sub_u32 s{S_KVS}, s{S_T0}, s{S_T1}")

    def row_max16(self, v):
        a = self.a
        for k in (8, 4, 2, 1):
            a("s_nop 1", f"v_max_f32_dpp v{v}, v{v}, v{v} row_ror:{k} row_mask:0xf bank_mask:0xf")

    def rest_srds(self):
        a = self.a
        a(f"s_mov_b32 s{R_WO+2}, 663552", f"s_mov_b32 s{R_WO+3}, 0x20000",
          f"s_mul_i32 s{S_T0}, s{S_B}, {WS_BR}", f"s_add_u32 s{R_WS}, s40, s{S_T0}", f"s_addc_u32 s{R_WS+1}, s41, 0",
          f"s_mov_b32 s{R_WS+2}, {WS_OEX + 32*OEX_G}", f"s_mov_b32 s{R_WS+3}, 0x20000")
        srd(a, R_OUT, "s36", "s37", 4718592)
        srd(a, R_DBG, "s38", "s39", 256)

    def norm2(self, x, y):
        a = self.a
        for j in range(4):
            for (qm, qr, dst, tmp) in (x, y):
                a(f"v_dot2_f32_bf16 v{dst}, v{qm+j}, v{qm+j}, {'0' if j == 0 else 'v%d' % dst}",
                  f"v_dot2_f32_bf16 v{tmp}, v{qm+4+j}, v{qm+4+j}, {'0' if j == 0 else 'v%d' % tmp}")
        a("s_nop 0", f"v_permlane32_swap_b32 v{x[2]}, v{x[3]}", "s_nop 0", f"v_permlane32_swap_b32 v{y[2]}, v{y[3]}",
          f"v_add_f32 v{x[2]}, v{x[2]}, v{x[3]}", f"v_add_f32 v{y[2]}, v{y[2]}, v{y[3]}",
          f"v_dot2_f32_bf16 v{x[2]}, v{x[1]}, v{x[1]}, v{x[2]}", f"v_dot2_f32_bf16 v{y[2]}, v{y[1]}, v{y[1]}, v{y[2]}", "s_nop 1",
          f"v_sqrt_f32 v{x[2]}, v{x[2]}", f"v_sqrt_f32 v{y[2]}, v{y[2]}")

    def norm1(self, qm, qr, dst, tmp):
        a = self.a
        for j in range(4):
            a(f"v_dot2_f32_bf16 v{dst}, v{qm+j}, v{qm+j}, {'0' if j == 0 else 'v%d' % dst}",
              f"v_dot2_f32_bf16 v{tmp}, v{qm+4+j}, v{qm+4+j}, {'0' if j == 0 else 'v%d' % tmp}")
        a("s_nop 2", f"v_permlane32_swap_b32 v{dst}, v{tmp}", "s_nop 0", f"v_add_f32 v{dst}, v{dst}, v{tmp}",
          f"v_dot2_f32_bf16 v{dst}, v{qr}, v{qr}, v{dst}", "s_nop 2", f"v_sqrt_f32 v{dst}, v{dst}")

    def init_main_regs(self):
        a = self.a
        a(f"v_mov_b32 v{KR[0]+1}, 0x3f803f80", f"v_mov_b32 v{KR[1]+1}, 0x3f803f80")
        for r in range(O[0], O[0] + 32):
            a(f"v_mov_b32 v{r}, 0")
        for r in range(S[1] + 24, S[1] + 32):
            a(f"v_mov_b32 v{r}, 0")
        if self.o['vexec']:
            self.init_v()
            self.loader_flag()
        else:
            a([f"v_mov_b32 v{r}, 0" for r in range(VV[1][1], VV[1][1] + 4)])

    def ldKm(self, kb):
        return [f"ds_read_b128 {vr(KM[kb%2],4)}, v{V_AK} offset:{(kb//2)*PB+(kb%2)*1024}"]

    def ldKr(self, p):
        return [f"ds_read_b32 v{KR[p%2]}, v{V_AR} offset:{p*PB}"]

    def ldV(self, kb):
        x = [f"ds_read_b128 {vr(VV[kb%2][i],4)}, v{V_AV} offset:{(kb//2)*PB+((kb%2)*2+i)*VG}" for i in range(2)]
        if self.o['vexec']:
            x = [f"s_mov_b64 exec, s[{S_VM}:{S_VM+1}]"] + x + ["s_mov_b64 exec, -1"]
        return x

    def init_v(self):
        a = self.a
        m = sum(1 << r for r in G0 + G1)
        a(f"s_mov_b32 s{S_VM}, {hex(m)}", f"s_mov_b32 s{S_VM+1}, {hex(m)}", "s_mov_b32 vcc_lo, 0x220000", "s_mov_b32 vcc_hi, 0x220000",
          f"v_mov_b32 v{VV[0][0]}, 0x3f803f80", f"v_cndmask_b32 v{VV[0][0]}, 0, v{VV[0][0]}, vcc")
        a([f"v_mov_b32 v{VV[0][0]+k}, v{VV[0][0]}" for k in range(1, 16)])

    def qk(self, dst, kb, pr):
        return [B2(dst, KR[(kb//2) % 2], QRS[pr], kb % 2), K16(dst, KM[kb % 2], QMS[2*pr]), K16(dst + 16, KM[kb % 2], QMS[2*pr+1])]

    def main_prologue_loads(self):
        self.a(self.ldKr(0), self.ldKm(0), self.ldKm(1), self.ldV(0))

    def start(self):
        a, o = self.a, self.o
        a("s_cmp_ge_u32 s2, 256", "s_cbranch_scc1 L_end")
        a("s_load_dwordx16 s[16:31], s[0:1], 0", "s_load_dwordx8 s[32:39], s[0:1], 64", "s_load_dwordx2 s[40:41], s[0:1], 96")
        self.stamp(0)
        a("s_getpc_b64 s[42:43]", "L_pc:")
        a("v_lshrrev_b32 v1, 6, v0", "v_and_b32 v0, 63, v0", f"v_readfirstlane_b32 s{S_WAVE}, v1", "v_lshlrev_b32 v1, 4, v0",
          f"s_lshr_b32 s{S_T2}, s2, 3", f"s_and_b32 s{S_B}, s2, 1", f"s_and_b32 s{S_HG}, s{S_T2}, 3", f"s_lshr_b32 s{S_GI}, s2, 5")
        if o['binv']:
            a(f"s_xor_b32 s{S_B}, s{S_B}, 1")
        if o['prefetch']:
            a(f"s_cmp_lg_u32 s{S_WAVE}, 7", "s_cbranch_scc1 L_nopf", f"s_cmp_ge_u32 s{S_T2}, (L_codeend-{NAME})/1024", "s_cbranch_scc1 L_nopf",
              f"s_lshl_b32 s{S_T2}, s{S_T2}, 10", f"s_sub_u32 s{S_T0}, s42, L_pc-{NAME}", f"s_subb_u32 s{S_T1}, s43, 0",
              f"s_add_u32 s{S_T0}, s{S_T0}, s{S_T2}", f"s_addc_u32 s{S_T1}, s{S_T1}, 0",
              f"v_mov_b32 v7, s{S_T1}", f"v_add_co_u32 v6, vcc, s{S_T0}, v1", "s_nop 1", "v_addc_co_u32 v7, vcc, 0, v7, vcc", "s_nop 0",
              "global_load_dwordx4 v[24:27], v[6:7], off", "L_nopf:")
        a(f"s_bfe_u32 s{S_PG}, s2, 0x20001", f"s_lshl_b32 s{S_PG}, s{S_PG}, 3", f"s_add_u32 s{S_PG}, s{S_PG}, s{S_GI}",
          f"s_and_b32 s{S_I}, s{S_WAVE}, 3", f"s_and_b32 s{S_PBI}, s{S_WAVE}, 1", f"s_lshr_b32 s{S_HQ}, s{S_I}, 1")
        a("v_lshrrev_b32 v8, 3, v0", "v_lshrrev_b32 v9, 4, v0", f"s_lshl_b32 s{S_T0}, s{S_PBI}, 2", f"v_or_b32 v9, s{S_T0}, v9",
          "v_and_b32 v10, 7, v0", "v_xor_b32 v9, v9, v10", "v_lshlrev_b32 v9, 4, v9", "v_mov_b32 v10, 0x480", "v_mad_u32_u24 v8, v8, v10, v9",
          f"s_lshl_b32 s{S_T0}, s{S_I}, 6", f"v_add_u32 v9, s{S_T0}, v0", "v_mul_u32_u24 v10, 0xab, v9", "v_lshrrev_b32 v10, 9, v10", "v_mul_u32_u24 v10, 12, v10",
          "v_lshlrev_b32 v9, 4, v9", "v_sub_u32 v9, v9, v10")
        a(f"s_and_b32 s{S_T4}, s{S_HG}, 2", f"s_lshl_b32 s{S_T4}, s{S_T4}, 1", f"s_add_u32 s{S_T4}, s{S_T4}, s{S_I}",
          f"s_lshl_b32 s{S_T5}, s{S_PG}, 3", f"s_add_u32 s{S_XB}, s{S_T5}, s{S_T4}", f"s_mul_i32 s{S_XB}, s{S_XB}, {8*1152}",
          f"s_mul_i32 s{S_XM}, s{S_T4}, 9216", f"s_add_u32 s{S_XM}, s{S_XM}, {L_X}", f"s_lshl_b32 s{S_T0}, s{S_I}, 10", f"s_add_u32 s{S_T0}, s{S_T0}, {L_W}",
          f"s_lshr_b32 s{S_T1}, s{S_HG}, 1", f"s_movk_i32 s{S_DI}, 3072", f"s_movk_i32 s{S_DS}, 2304",
          f"s_cmp_lt_u32 s{S_WAVE}, 4", "s_cselect_b64 vcc, -1, 0", f"s_cselect_b32 s{S_XB}, s{S_XB}, 0", f"s_cselect_b32 s{S_XM}, s{S_XM}, s{S_T0}",
          f"s_cselect_b32 s{S_T1}, s{S_HG}, s{S_T1}", f"s_cselect_b32 s{S_DI}, 1024, s{S_DI}", f"s_cselect_b32 s{S_DS}, 128, s{S_DS}",
          "v_cndmask_b32 v9, v9, v8, vcc")
        self.dma9_setup(S_T1)
        a("s_waitcnt lgkmcnt(0)", f"s_cmp_eq_u32 s{S_B}, 0", f"s_cselect_b64 s[{R_X}:{R_X+1}], s[16:17], s[26:27]",
          f"s_cselect_b64 s[20:21], s[20:21], s[30:31]", f"s_cselect_b64 s[22:23], s[22:23], s[32:33]",
          f"s_cselect_b64 s[{R_WQ}:{R_WQ+1}], s[18:19], s[28:29]", f"s_cselect_b64 s[{R_WO}:{R_WO+1}], s[24:25], s[34:35]",
          f"s_bitcmp0_b32 s{S_HG}, 0", f"s_cselect_b64 s[{R_W}:{R_W+1}], s[20:21], s[22:23]", f"s_mov_b32 s{R_X+2}, 2359296", f"s_movk_i32 s{R_W+2}, 20736",
          f"s_cmp_lt_u32 s{S_WAVE}, 4", f"s_cselect_b64 s[{R_W}:{R_W+1}], s[{R_X}:{R_X+1}], s[{R_W}:{R_W+1}]", f"s_cselect_b32 s{R_W+2}, s{R_X+2}, s{R_W+2}",
          f"s_mov_b32 s{R_W+3}, 0x20000", f"s_mov_b32 s{R_X+3}, 0x20000")
        self.stamp(1, 2)
        a(f"s_cmp_lt_u32 s{S_WAVE}, 4", "s_cbranch_scc1 L_r1", "s_setprio 1", f"s_cmp_eq_u32 s{S_WAVE}, 7", "s_cbranch_scc1 L_late", "L_r1:")
        self.dma9(R_W, 9)
        a(f"s_cmp_ge_u32 s{S_WAVE}, 4", "s_cbranch_scc1 L_late")

    def wq_prefetch(self, n, first):
        a = self.a
        a(f"s_mov_b32 s{R_WQ+2}, 663552", f"s_mov_b32 s{R_WQ+3}, 0x20000", "v_lshlrev_b32 v30, 7, v0", f"s_lshr_b32 s{S_T0}, s2, 3", f"s_mul_i32 s{S_T0}, s{S_T0}, 20736")
        if first:
            a(f"s_mul_i32 s{S_T1}, s{first}, 6912", f"s_add_u32 s{S_T0}, s{S_T0}, s{S_T1}")
        a("s_mov_b32 exec_hi, 0x3fffff")
        for k in range(n):
            a(f"buffer_load_dword v{108+k}, v30, s[{R_WQ}:{R_WQ+3}], s{S_T0} offen", f"s_add_u32 s{S_T0}, s{S_T0}, 6912")
        a("s_mov_b32 exec_hi, -1")

    def dma9_setup(self, sel):
        self.a(f"s_bitcmp1_b32 s{sel}, 0", f"s_cselect_b32 s{S_XI}, 5, 0",
               f"s_add_u32 s{S_XS}, s{S_XI}, s{S_GI}", f"s_cmp_ge_u32 s{S_XS}, 9", f"s_cselect_b32 s{S_T0}, 9, 0", f"s_sub_u32 s{S_XS}, s{S_XS}, s{S_T0}",
               f"s_mul_i32 s{S_XS}, s{S_XS}, s{S_DS}", f"s_mul_i32 s{S_XI}, s{S_XI}, s{S_DI}", f"s_mul_i32 s{S_LI}, s{S_DI}, 9", f"s_mul_i32 s{S_LS}, s{S_DS}, 9")

    def dma9(self, srd_, v):
        for i in range(9):
            self.a(f"s_add_u32 m0, s{S_XM}, s{S_XI}", f"s_add_u32 s{S_T3}, s{S_XB}, s{S_XS}",
                   f"buffer_load_dwordx4 v{v}, s[{srd_}:{srd_+3}], s{S_T3} offen lds")
            if i < 8:
                self.a(f"s_add_u32 s{S_XS}, s{S_XS}, s{S_DS}", f"s_cmp_eq_u32 s{S_XS}, s{S_LS}", f"s_cselect_b32 s{S_XS}, 0, s{S_XS}",
                       f"s_add_u32 s{S_XI}, s{S_XI}, s{S_DI}", f"s_cmp_eq_u32 s{S_XI}, s{S_LI}", f"s_cselect_b32 s{S_XI}, 0, s{S_XI}")

    def table_load(self):
        self.a(f"s_add_u32 s{S_T0}, s42, L_table-L_pc", f"s_addc_u32 s{S_T1}, s43, 0",
               f"v_mov_b32 v7, s{S_T1}", f"v_add_co_u32 v6, vcc, s{S_T0}, v1", "s_nop 1", "v_addc_co_u32 v7, vcc, 0, v7, vcc", "s_nop 0",
               "global_load_dwordx4 v[20:23], v[6:7], off")

    def wq_setup(self, d, part=3):
        a = self.a
        if part & 1:
            a(f"s_mov_b32 s{R_WQ+2}, 663552", f"s_mov_b32 s{R_WQ+3}, 0x20000", f"s_lshl_b32 s{S_T0}, s{S_I}, 6", f"s_mul_i32 s{S_T1}, s{S_HG}, 288", "v_mov_b32 v16, 0x480")
        for t in range(3 if part & 1 else 0):
            a(f"v_add_u32 v13, s{S_T0}, v0", "v_mul_u32_u24 v14, 0xe39, v13", "v_lshrrev_b32 v14, 16, v14",
              "v_mul_u32_u24 v15, 18, v14", "v_sub_u32 v13, v13, v15", "v_lshlrev_b32 v13, 4, v13",
              "v_bfe_u32 v15, v14, 1, 2", "v_and_b32 v17, 1, v14", "v_lshl_add_u32 v15, v17, 2, v15", "v_and_b32 v14, 24, v14", "v_add_u32 v14, v14, v15",
              "v_mad_u32_u24 v13, v14, v16, v13", f"v_add_u32 v{10+t}, s{S_T1}, v13")
            if t < 2:
                a(f"s_add_u32 s{S_T0}, s{S_T0}, 192")
        if not part & 2:
            return
        a(f"s_lshl_b32 s{S_M0A}, s{S_I}, 10", f"s_mul_i32 s{S_ROW}, s{S_GI}, {64*1152}")
        if d:
            a(f"s_add_u32 s{S_ROW}, s{S_ROW}, {32*d*1152}", f"s_cmp_ge_u32 s{S_ROW}, {576*1152}",
              f"s_cselect_b32 s{S_T0}, {576*1152}, 0", f"s_sub_u32 s{S_ROW}, s{S_ROW}, s{S_T0}")

    def wq_list(self, d):
        n = self.nlab = getattr(self, 'nlab', 0) + 1
        s0 = dslot(d)
        ld = lambda r: f"buffer_load_dwordx4 v{r}, s[{R_WQ}:{R_WQ+3}], s{S_ROW} offen lds"
        return [f"s_cbranch_vccz L_wq{n}",
                f"s_add_u32 m0, s{S_M0A}, {s0}", f"s_add_u32 s{S_T0}, s{S_ROW}, {32*1152}", ld(10),
                f"s_add_u32 m0, s{S_M0A}, {s0+3072}", "s_nop 0", ld(11),
                f"s_add_u32 m0, s{S_M0A}, {s0+6144}", f"s_cmp_ge_u32 s{S_T0}, {576*1152}", ld(12),
                f"s_cselect_b32 s{S_T1}, {576*1152}, 0", f"s_sub_u32 s{S_ROW}, s{S_T0}, s{S_T1}", f"L_wq{n}:"]

    def wq_dma(self, d):
        self.a(self.wq_list(d))

    def loader_flag(self):
        self.a(f"s_cmp_lt_u32 s{S_I}, 3", "s_cselect_b64 vcc, -1, 0")

    @property
    def GROUPS(self):
        if self.o['pre'] == 5:
            return [(3, 2), (5, 6), (7, 10), (9, 14), (11, 18), (13, 22), (15, 26), (17, 30)]
        if self.o['pre'] == 1:
            return [(3, 2), (5, 6), (7, 10), (9, 14), (11, 18), (13, 22), (15, 26), (17, 30)]
        if self.o['pre'] == 2:
            return [(2, 2), (3, 4), (5, 6), (7, 10), (9, 14), (11, 18), (13, 22), (15, 26), (17, 30)]
        return [(3, 2), (5, 6), (7, 10), (9, 14), (11, 18), (13, 22), (15, 26), (17, 30)]

    def early_front(self):
        a, o = self.a, self.o
        self.stamp(2, 2)
        if o['spf'] == 5:
            a(f"s_cmp_lg_u32 s{S_WAVE}, 3", "s_cbranch_scc1 L_nospf", "s_waitcnt vmcnt(6)")
            self.wq_prefetch(3, None)
            a("L_nospf:")
        self.table_load()
        self.wq_setup(o['l01'])
        self.loader_flag()
        if not o['d0l']:
            self.wq_dma(0)
        self.rest_srds()
        a("v_and_b32 v16, 31, v0", "v_lshrrev_b32 v13, 5, v0", "v_bfe_u32 v14, v0, 1, 3", "v_xor_b32 v13, v13, v14", "v_lshlrev_b32 v13, 4, v13",
          "v_and_b32 v14, 7, v0", "v_lshl_add_u32 v13, v14, 7, v13", "v_lshrrev_b32 v16, 3, v16", "v_mul_u32_u24 v16, 0x2400, v16",
          f"s_mul_i32 s{S_T0}, s{S_PBI}, {4*9216}", f"s_add_u32 s{S_T0}, s{S_T0}, {L_X}", f"v_add3_u32 v8, v16, v13, s{S_T0}",
          "v_xor_b32 v9, 32, v8", "v_xor_b32 v108, 64, v8", "v_xor_b32 v109, 0x60, v8")
        a("v_bfe_u32 v18, v0, 2, 2", "v_lshrrev_b32 v15, 5, v0", "v_lshlrev_b32 v15, 2, v15", "v_add_u32 v15, v15, v18", "v_mul_u32_u24 v15, 0x240, v15",
          f"s_mul_i32 s{S_T0}, s{S_HQ}, 144", "v_and_b32 v13, 1, v0", "v_lshl_add_u32 v15, v13, 4, v15", f"v_add_u32 v15, s{S_T0}, v15",
          "v_bfe_u32 v13, v0, 1, 1", "v_bfe_u32 v14, v0, 4, 1", "v_lshl_add_u32 v6, v13, 3, v15", "v_lshl_add_u32 v6, v14, 5, v6",
          "v_mul_u32_u24 v13, 72, v13", "v_add3_u32 v7, v13, v15, 48")
        if o['ks2']:
            a(f"s_mul_i32 s{S_T0}, s{S_HQ}, -288", f"s_add_u32 s{S_T0}, s{S_T0}, 144", f"v_mul_i32_i24 v13, s{S_T0}, v14", "v_add_u32 v7, v7, v13")
        elif o['z2']:
            a("v_lshl_add_u32 v7, v14, 20, v7")
        a(f"v_mov_b32 v{V_IDX}, 0xdddddddd", f"v_add_u32 v{V_AK}, {L_KV}, v1", f"v_lshlrev_b32 v{V_AR}, 2, v0", f"v_add_u32 v{V_AR}, {L_KV+2048}, v{V_AR}",
          "v_mov_b32 v110, 0", "v_mov_b32 v111, 0", f"v_mov_b32 v19, {L_KMAX}", f"s_mov_b32 s{S_STG}, 1")
        self.tail_scalars()
        if o['d0l']:
            a("s_waitcnt vmcnt(1)")
        else:
            a(f"s_cmp_eq_u32 s{S_WAVE}, 3", "s_cbranch_scc0 L_e3", f"s_waitcnt vmcnt({4 if o['spf'] == 5 else 1})", "L_e3:", "s_waitcnt vmcnt(4)")
        self.stamp(3, 2)
        a("s_barrier")
        PRE = o['pre']
        for d in range(o['l01'], PRE + 1):
            self.wq_dma(d)
        a(f"s_cmp_eq_u32 s{S_WAVE}, 3", "s_cbranch_scc0 L_e4", "s_waitcnt vmcnt(0)", "L_e4:", f"s_waitcnt vmcnt({3*(PRE-1)})", f"v_mov_b32 v{V_AV}, v20", "v_mov_b32 v21, 0x3f803f80")
        self.stamp(1)
        self.stamp(4, 2)
        a("s_barrier")
        self.stamp(5, 2)
        XF = 112
        T0, T1, TR, TR2 = 24, 40, 56, 128
        KX = 26
        PD = o['pd']
        FB = [72, 84, 96]
        state = dict(base=0)

        def rd(ks):
            x = []
            off = slot_addr(ks) - state['base']
            if off < 0 or off + 360 > 65535:
                d = slot_addr(ks) - state['base']
                x += [f"v_add_u32 v{r}, {d}, v{r}" if d > 0 else f"v_subrev_u32 v{r}, {-d}, v{r}" for r in (6, 7)]
                state['base'] = slot_addr(ks)
                off = 0
            f = FB[ks % (PD + 1)]
            return x, [f"ds_read_b64_tr_b16 {vr(f,2)}, v6 offset:{off}", f"ds_read_b64_tr_b16 {vr(f+2,2)}, v6 offset:{off+288}",
                       f"ds_read_b64_tr_b16 {vr(f+4,2)}, v6 offset:{off+72}", f"ds_read_b64_tr_b16 {vr(f+6,2)}, v6 offset:{off+360}",
                       f"ds_read_b64_tr_b16 {vr(f+8,2)}, v7 offset:{off}", f"ds_read_b64_tr_b16 {vr(f+10,2)}, v7 offset:{off+288}"]

        def mm(ks, first2):
            f = FB[ks % (PD + 1)]
            c = "0" if ks == 0 else None
            if o['ks2'] and ks >= KX:
                m2 = K16(TR2, f + 8, XF + 4 * ks, vr(TR, 16) if ks == KX else None)
            else:
                m2 = K16(TR, f + 8, XF + 4 * ks, "0" if first2 else None)
            return [K16(T0, f, XF + 4 * ks, c), K16(T1, f + 4, XF + 4 * ks, c), m2]

        def kloop(par):
            state['base'] = 0
            nt = lambda ks: 2 if (o['ks2'] and ks < KX and ks % 2 != par) else 3
            XA = [8, 9, 108, 109]
            q = []

            def issue(tag, ins):
                a(ins)
                q.append(tag)

            def need(*tags):
                last = max((i for i, t in enumerate(q) if t in tags), default=-1)
                if last >= 0:
                    left = len(q) - 1 - last
                    a(f"s_waitcnt lgkmcnt({min(left, 14)})")
                    del q[:last + 1]

            def xrd(i):
                issue(('x', i), f"ds_read_b128 {vr(XF+4*i,4)}, v{XA[i&3]} offset:{(i>>2)*1024}")
            xrd(0)
            for j, r in enumerate(rd(0)[1][:2*nt(0)]):
                issue(('w', 0, j >> 1), r)
            xrd(1)
            for j, r in enumerate(rd(1)[1][:2*nt(1)]):
                issue(('w', 1, j >> 1), r)
            nx = 2
            G = [k for _, k in self.GROUPS]
            ev = {k: ["s_barrier"] for k in G}
            prev = 1
            for last, k in self.GROUPS:
                if prev < PRE:
                    ev[k] = [f"s_waitcnt vmcnt({3*max(PRE-last, 0)})", "s_barrier"]
                prev = last
            for ks in range(36):
                m = mm(ks, ks == par)
                if ks in ev:
                    if ks == 6:
                        need(('x', 35))
                        assert nx == 36 and not any(t[0] == 'x' for t in q)
                    if len(ev[ks]) > 1 and o["stamps"]:
                        a(ev[ks][0])
                    if ks in (2, 6, 10, 14, 22, 30):
                        self.stamp(1 + (2, 6, 10, 14, 22, 30).index(ks), 3)
                    if ks == 30:
                        need('e')
                    a(ev[ks])
                    if ks == 6:
                        self.stamp(2)
                        self.stamp(6, 2)
                pre, n = rd(ks + 2) if ks + 2 < 36 else ([], [])
                fine = nx < 36 or ks == 35
                if not fine:
                    need(('x', ks), ('w', ks, nt(ks) - 1))
                for t in range(3):
                    if t < nt(ks):
                        if fine:
                            need(('x', ks), ('w', ks, t))
                        a(m[t])
                    if t == 0:
                        a(pre)
                    for k in range(o['xper']):
                        if nx < 36:
                            xrd(nx)
                            nx += 1
                    if t < nt(ks + 2):
                        for r in n[2*t:2*t+2]:
                            issue(('w', ks + 2, t), r)
                if o['ks2'] and ks == KX + 2:
                    issue('e', f"ds_write_b128 v13, {vr(TR+8,4)}")
                    issue('e', f"ds_write_b128 v13, {vr(TR+12,4)} offset:1024")
                if o['ks2'] and ks == 31:
                    issue('i', f"ds_read_b128 {vr(XF,4)}, v14")
                    issue('i', f"ds_read_b128 {vr(XF+4,4)}, v14 offset:1024")
            assert not [t for t in q if t != 'i'] and True
            need('i')
        if o['ks2']:
            a(f"s_mul_i32 s{S_T0}, s{S_WAVE}, 2048", f"s_add_u32 s{S_T0}, s{S_T0}, {L_T2X}", f"v_add_u32 v13, s{S_T0}, v1", "v_xor_b32 v14, 0x1000, v13",
              f"s_cmp_eq_u32 s{S_HQ}, 1", "s_cbranch_scc1 L_kodd")
            kloop(0)
            a("s_branch L_kdone", "L_kodd:")
            kloop(1)
            a("L_kdone:")
        else:
            kloop(0)
        self.stamp(3)
        self.stamp(3, 6)
        a("v_mov_b32 v7, v19", f"v_mov_b32 v{KR[0]+1}, 0x3f803f80", f"s_mov_b32 s{S_BAR}, {32//o['unp'] - 1}", "s_mov_b32 vcc_lo, 0", "s_mov_b32 vcc_hi, -1", "s_nop 2")
        for (dst, t) in ((QM[0], T0), (QM2[0], T1)):
            for j, r in enumerate((0, 2, 4, 6, 10, 12, 14)):
                a(f"v_cvt_pk_bf16_f32 v{dst+j}, v{t+r}, v{t+r+1}")
        for (dst, qr, t, t2, tmp) in ((QM[0], QR, T0, TR, 108), (QM2[0], QR2, T1, TR + 4, 107)):
            a(f"v_cvt_pk_bf16_f32 v{dst+7}, v{t2}, v{t2+1}", f"v_cvt_pk_bf16_f32 v{qr}, v{t+8}, v{t+9}", f"v_cvt_pk_bf16_f32 v{tmp}, v{t2+2}, v{t2+3}")
        a(f"v_cndmask_b32 v{QR}, v{QR}, v108, vcc", f"v_cndmask_b32 v{QR2}, v{QR2}, v107, vcc")
        a([K8Z(x, 110) for x in (O2[1], O[0])])
        self.stamp(1, 6)
        a("s_barrier")
        self.stamp(2, 6)
        a("ds_read_b32 v6, v7")
        self.main_prologue_loads()
        self.norm2((QM[0], QR, QR + 1, 108), (QM2[0], QR2, QR2 + 1, 107))
        a([K8Z(x, 110) for x in (O[1], O2[0])])
        a([f"v_mov_b32 v{r}, 0" for r in range(VV[1][1], VV[1][1] + 4)])
        a("s_setprio 1", "s_waitcnt lgkmcnt(0)")

    def late_front(self):
        a, o = self.a, self.o
        a.label("L_late")
        a("s_setprio 0")
        if o['spf'] == 3:
            a(f"s_cmp_lg_u32 s{S_WAVE}, 7", "s_cbranch_scc1 L_nospf")
            self.wq_prefetch(3, None)
            a("L_nospf:")
        if o['spf'] == 4:
            a(f"s_cmp_eq_u32 s{S_WAVE}, 7", "s_cbranch_scc1 L_nospf")
            self.wq_prefetch(1, S_I)
            a("L_nospf:")
        self.stamp(2, 2)
        self.rest_srds()
        if o['shard']:
            a("v_and_b32 v160, 7, v0", "v_lshlrev_b32 v160, 9, v160", f"s_cmp_lg_u32 s{S_WAVE}, 7", "s_cbranch_scc1 L_nov0", f"s_mov_b32 s{S_T0}, {WS_CNT}",
              f"buffer_load_dword v161, v160, s[{R_WS}:{R_WS+3}], s{S_T0} offen sc0 sc1", "L_nov0:")
        self.wq_setup(6, 1)
        a(f"s_xor_b32 s{S_T4}, s{S_T4}, 4", f"s_add_u32 s{S_XB}, s{S_T5}, s{S_T4}", f"s_mul_i32 s{S_XB}, s{S_XB}, {8*1152}",
          f"s_mul_i32 s{S_XM}, s{S_T4}, 9216", f"s_add_u32 s{S_XM}, s{S_XM}, {L_X}", f"s_movk_i32 s{S_DI}, 1024", f"s_movk_i32 s{S_DS}, 128")
        a("v_and_b32 v13, 15, v0", "v_lshrrev_b32 v16, 4, v0",
          "v_bfe_u32 v17, v0, 1, 3", "v_xor_b32 v17, v16, v17", "v_lshlrev_b32 v17, 4, v17",
          "v_and_b32 v18, 7, v0", "v_lshl_add_u32 v17, v18, 7, v17", "v_bfe_u32 v18, v0, 3, 1", "v_mul_u32_u24 v18, 0x2400, v18",
          f"s_lshr_b32 s{S_T0}, s{S_HG}, 1", f"s_lshl_b32 s{S_T0}, s{S_T0}, 1", f"s_add_u32 s{S_T0}, s{S_T0}, s{S_PBI}",
          f"s_mul_i32 s{S_T1}, s{S_T0}, {2*9216}", f"s_add_u32 s{S_T1}, s{S_T1}, {L_X}", f"v_add3_u32 v14, v17, v18, s{S_T1}", "v_xor_b32 v15, 64, v14",
          "v_bfe_u32 v17, v0, 2, 2", "v_lshl_add_u32 v17, v16, 3, v17",
          "v_mul_u32_u24 v17, 48, v17", "v_and_b32 v18, 3, v0", "v_lshlrev_b32 v18, 3, v18",
          f"s_cmp_eq_u32 s{S_HQ}, 0", "s_cselect_b64 vcc, -1, 0", "v_mov_b32 v19, 32", "v_cndmask_b32 v18, v19, v18, vcc", f"v_add_u32 v17, {L_W}, v17", "v_add_u32 v17, v17, v18")
        a("v_lshrrev_b32 v19, 5, v0", "v_lshlrev_b32 v19, 9, v19", "v_lshl_add_u32 v19, v13, 4, v19",
          "v_bfe_u32 v18, v0, 4, 1", "v_lshl_add_u32 v28, v18, 3, v19", "v_lshlrev_b32 v29, 2, v13",
          f"s_mul_i32 s{S_KVS}, s{S_PG}, {PB}", f"s_mov_b32 s{S_OEX}, s{S_T0}")
        self.dma9_setup(S_HG)
        self.dma9(R_X, 8)
        self.stamp(3, 2)
        self.table_load()
        if o['spf'] == 2:
            a(f"s_cmp_lg_u32 s{S_WAVE}, 7", "s_cbranch_scc1 L_nospf")
            self.wq_prefetch(3, None)
            a("L_nospf:")
        if o['l01']:
            self.wq_setup(0, 2)
            self.loader_flag()
            for d in range(o['l01']):
                self.wq_dma(d)
        a("s_setprio 1", f"s_waitcnt vmcnt({10 + 3 * o['l01']})")
        self.stamp(1)
        self.stamp(4, 2)
        a("s_barrier")
        a(f"s_bitcmp1_b32 s{S_HG}, 0", "s_cbranch_scc1 L_vproj")
        D = 32
        NB = o['nb']
        for isv in (0, 1):
            if isv:
                a.label("L_vproj")

            def rd(s):
                xb = 40 + 8 * (s % NB)
                return [f"ds_read_b128 {vr(xb,4)}, v{14+(s&1)} offset:{(s>>1)*1024}",
                        f"ds_read_b64_tr_b16 {vr(xb+4,2)}, v17 offset:{s*1536}", f"ds_read_b64_tr_b16 {vr(xb+6,2)}, v17 offset:{s*1536+192}"]
            for s in range(NB - 1):
                a(rd(s))
            for s in range(18):
                if s == o['sb']:
                    a("s_waitcnt vmcnt(0)", "s_barrier")
                if s == 17 and o['sb'] == 18 and not o['l01']:
                    a("s_waitcnt vmcnt(0)")
                if s + NB - 1 < 18:
                    a(rd(s + NB - 1))
                left = min(18 - 1 - s, NB - 1)
                xb = 40 + 8 * (s % NB)
                c = "0" if s == 0 else None
                a(f"s_waitcnt lgkmcnt({min(15,3*left)})", M16(D, xb, xb + 4, c) if isv else M16(D, xb + 4, xb, c))
            g = S_OEX
            if not isv:
                a(f"s_lshr_b32 s{S_T0}, s{g}, 1", f"s_lshl_b32 s{S_T0}, s{S_T0}, 10", f"s_lshl_b32 s{S_T1}, s{S_PBI}, 8", f"s_add_u32 s{S_T0}, s{S_T0}, s{S_T1}",
                  f"s_add_u32 s{S_T0}, s{S_T0}, s{S_KVS}",
                  f"s_lshl_b32 s{S_T1}, s{g}, 6", f"s_add_u32 s{S_T1}, s{S_T1}, s{S_KVS}", f"s_add_u32 s{S_T1}, s{S_T1}, 2048",
                  f"s_mov_b32 s{S_T2}, {hex(f2u(CSCALE))}")
                for r in range(4):
                    a(f"v_mul_f32 v{D+r}, s{S_T2}, v{D+r}")
                a(f"v_cvt_pk_bf16_f32 v{D}, v{D}, v{D+1}", f"v_cvt_pk_bf16_f32 v{D+1}, v{D+2}, v{D+3}",
                  f"s_lshl_b32 s{S_T3}, s{S_PG}, 2", f"s_add_u32 s{S_T3}, s{S_T3}, s{g}", f"s_lshl_b32 s{S_T3}, s{S_T3}, 2", f"s_add_u32 s{S_T3}, s{S_T3}, {WS_KN}",
                  f"v_dot2_f32_bf16 v36, v{D}, v{D}, 0",
                  f"s_cmp_eq_u32 s{S_HQ}, 0", "s_cbranch_scc0 L_krem",
                  f"buffer_store_dwordx2 {vr(D,2)}, v28, s[{R_WS}:{R_WS+3}], s{S_T0} offen sc1",
                  f"v_dot2_f32_bf16 v36, v{D+1}, v{D+1}, v36", "s_nop 2", "v_mov_b32 v37, v36", "s_nop 1",
                  "v_permlane16_swap_b32 v36, v37", "s_nop 1", "v_add_f32 v36, v36, v37", "s_nop 0", "v_mov_b32 v37, v36", "s_nop 1",
                  "v_permlane32_swap_b32 v36, v37", "s_nop 1", "v_add_f32 v36, v36, v37", "s_branch L_knorm",
                  "L_krem:", "s_mov_b64 exec, 0xffff",
                  f"buffer_store_dword v{D}, v29, s[{R_WS}:{R_WS+3}], s{S_T1} offen sc1", "s_mov_b64 exec, -1", f"s_add_u32 s{S_T3}, s{S_T3}, 512",
                  "L_knorm:", "s_nop 1")
                self.row_max16(36)
                a("v_mov_b32 v37, 0", "s_mov_b64 exec, 1", f"buffer_store_dword v36, v37, s[{R_WS}:{R_WS+3}], s{S_T3} offen sc1", "s_mov_b64 exec, -1")
                if o['l01']:
                    a("s_waitcnt vmcnt(2)")
                a("s_branch L_kvdone")
            else:
                a(f"s_mul_i32 s{S_T0}, s{g}, {VG}", f"s_add_u32 s{S_T0}, s{S_T0}, s{S_KVS}", f"s_add_u32 s{S_T0}, s{S_T0}, 2304",
                  "v_cmp_eq_u32 vcc, 2, v13", f"v_cmp_eq_u32 s[{S_EX}:{S_EX+1}], 3, v13", "v_mov_b32 v30, 0x3f803f80", "s_nop 0",
                  f"s_cmp_eq_u32 s{S_HQ}, 0",
                  f"v_cvt_pk_bf16_f32 v{D}, v{D}, v{D+1}", f"v_cvt_pk_bf16_f32 v{D+1}, v{D+2}, v{D+3}", "s_cbranch_scc0 L_vrem",
                  f"buffer_store_dwordx2 {vr(D,2)}, v21, s[{R_WS}:{R_WS+3}], s{S_T0} offen sc1", "s_branch L_vdone",
                  "L_vrem:",
                  f"v_cndmask_b32 v{D}, v{D}, v30, vcc", f"v_cndmask_b32 v{D+1}, v{D+1}, v30, vcc",
                  f"v_cndmask_b32 v{D}, v{D}, 0, s[{S_EX}:{S_EX+1}]", f"v_cndmask_b32 v{D+1}, v{D+1}, 0, s[{S_EX}:{S_EX+1}]",
                  "s_mov_b32 exec_lo, 0x000f000f", "s_mov_b32 exec_hi, 0x000f000f",
                  f"buffer_store_dwordx2 {vr(D,2)}, v22, s[{R_WS}:{R_WS+3}], s{S_T0} offen sc1", "s_mov_b64 exec, -1", "L_vdone:")
                if o['l01']:
                    a("s_waitcnt vmcnt(1)")
        a.label("L_kvdone")
        if True:
            a("s_getreg_b32 s29, hwreg(HW_REG_XCC_ID, 0, 4)", f"s_cmp_lg_u32 s{S_WAVE}, 4", "s_cbranch_scc1 L_noxid",
              f"s_lshl_b32 s{S_T0}, s{S_PG}, 2", f"s_add_u32 s{S_T0}, s{S_T0}, s{S_HG}", f"s_lshl_b32 s{S_T0}, s{S_T0}, 2", f"s_add_u32 s{S_T0}, s{S_T0}, {WS_XID}",
              "v_mov_b32 v38, s29", "v_mov_b32 v39, 0", "s_mov_b64 exec, 1", f"buffer_store_dword v38, v39, s[{R_WS}:{R_WS+3}], s{S_T0} offen sc1", "s_mov_b64 exec, -1", "L_noxid:")
        self.stamp(2)
        self.stamp(5, 2)
        a(f"v_mov_b32 v{V_AV}, v20")
        self.wq_setup(o['pre'] + 1, 2)
        self.loader_flag()
        a("v_mov_b32 v100, 1", "v_mov_b32 v101, 0")
        if o['sb'] == 18:
            a("s_barrier")
        nxt = first = o['pre'] + 1
        NG = len(self.GROUPS)
        passed = -1
        signalled = False
        for gi_, (last, step) in enumerate(self.GROUPS):
            lim = 5 if passed < 2 else 8 if passed < 6 else 16 if passed < 14 else 17
            tgt = min(last + o['win'], lim)
            while nxt <= tgt:
                self.wq_dma(nxt)
                nxt += 1
            assert nxt > last
            if step == 14:
                self.wo_job_addr(0)
                self.poison_addr()
            if step == 18:
                a(f"s_cmp_ge_u32 s{S_OEX}, {648-512}", "s_cselect_b32 s16, 0, 512", f"s_add_u32 s{S_OEX}, s{S_OEX}, s16")
                self.wo_job_addr(1)
                self.loader_flag()
            if gi_ == NG - 3:
                a(f"s_and_b32 s{S_T0}, s{S_GI}, 3", f"s_mul_i32 s{S_KVS}, s{S_T0}, {37*1024}", f"s_add_u32 s{S_KVS}, s{S_KVS}, s{S_M0A}",
                  "v_lshlrev_b32 v153, 3, v0", f"s_mov_b32 s{S_T4}, {WS_KN}", f"s_lshl_b32 s{S_T5}, s{S_B}, 7")
            sig = last >= first and not signalled
            if sig:
                a(f"s_cbranch_vccnz L_l{gi_}", "s_waitcnt vmcnt(0)", f"L_l{gi_}:")
                signalled = True
            if last >= first:
                a(f"s_waitcnt vmcnt({3*(nxt-1-last)})")
            passed = step
            if step == 10:
                a(f"v_mov_b32 v150, {L_FLAG}", "v_mov_b32 v152, 0", "v_mov_b32 v153, 0", "v_mov_b32 v154, 0", "v_mov_b32 v155, 0", "v_mov_b32 v151, 0", "ds_write_b128 v150, v[152:155]", "s_waitcnt lgkmcnt(0)")
            if gi_ == NG - 3 and o['tre']:
                a("s_cbranch_vccnz L_try1", f"s_mov_b32 s{S_T0}, {WS_CNT}", f"buffer_load_dword v152, v160, s[{R_WS}:{R_WS+3}], s{S_T0} offen sc0 sc1", "L_try1:")
            if gi_ == NG - 2:
                assert nxt == 18
                if o['shard']:
                    a("s_cbranch_vccnz L_try0")
                    if not o['tre']:
                        a(f"s_mov_b32 s{S_T0}, {WS_CNT}", f"buffer_load_dword v152, v160, s[{R_WS}:{R_WS+3}], s{S_T0} offen sc0 sc1")
                    a("s_waitcnt vmcnt(0)",
                      "v_cmp_ne_u32 s[16:17], v152, v161", "s_cmp_eq_u64 s[16:17], 0", "s_cselect_b32 s16, 1, 0", "v_mov_b32 v152, s16", "ds_write_b32 v150, v152", "s_waitcnt lgkmcnt(0)", "L_try0:")
                else:
                    a("s_cbranch_vccnz L_try0", f"buffer_load_dword v152, v151, s[{R_DBG}:{R_DBG+3}], s{S_T5} offen sc0 sc1", "s_waitcnt vmcnt(0)",
                      "v_lshrrev_b32 v152, 7, v152", "ds_write_b32 v150, v152", "s_waitcnt lgkmcnt(0)", "L_try0:")
            if step in (2, 6, 10, 14, 22):
                self.stamp(1 + (2, 6, 10, 14, 22).index(step), 3)
            a("s_barrier")
            if sig:
                self.kv_signal()
            if gi_ == NG - 2:
                break
        kn = [f"s_cmp_lg_u32 s{S_WAVE}, 7", None, f"buffer_load_dwordx2 v[154:155], v153, s[{R_WS}:{R_WS+3}], s{S_T4} offen sc1",
              f"buffer_load_dwordx2 v[156:157], v153, s[{R_WS}:{R_WS+3}], s{S_T4} offen offset:512 sc1"]
        a("ds_read_b32 v152, v150", "s_waitcnt lgkmcnt(0)", "v_cmp_eq_u32 vcc, 0, v152", "s_cbranch_vccnz L_notyet")
        self.stamp(4)
        a(kn[0], "s_cbranch_scc1 L_kna", kn[2:], "L_kna:")
        self.kv_dma(0, o['ka'])
        a(f"s_cmp_eq_u32 s{S_WAVE}, 7", "s_cbranch_scc1 L_knb", f"s_waitcnt vmcnt({o['ka']})", "L_knb:")
        self.stamp(6, 3)
        a("s_barrier")
        self.kv_dma(4 * o['ka'], o['kv1'] - o['ka'])
        a("s_branch L_first")
        a("L_notyet:", "s_waitcnt vmcnt(0)")
        self.stamp(6, 3)
        a("s_barrier")
        a(f"s_mov_b32 s{S_CNT}, {SPIN_L}", f"s_cmp_lg_u32 s{S_WAVE}, 7", "s_cbranch_scc1 L_relay", f"s_mov_b32 s{S_CNT}, {SPIN}")
        if o['shard']:
            a(f"s_mov_b32 s{S_T0}, {WS_CNT}", "L_poll1:", f"buffer_load_dword v152, v160, s[{R_WS}:{R_WS+3}], s{S_T0} offen sc0 sc1",
              f"s_cmp_gt_u32 s{S_CNT}, {SPIN - 4}", "s_cbranch_scc1 L_pf", f"s_cmp_lg_u32 s{S_CNT}, {SPIN - o['nslow']}", "s_cbranch_scc1 L_ps",
              "s_mov_b64 exec, 1", f"buffer_atomic_add v100, v101, s[{R_DBG}:{R_DBG+3}], s{S_T5} offen sc1", "s_mov_b64 exec, -1",
              "L_ps:", f"buffer_load_dwordx3 v[162:164], v151, s[{R_DBG}:{R_DBG+3}], s{S_T5} offen sc0 sc1", "s_waitcnt vmcnt(0)",
              "v_lshrrev_b32 v162, 7, v162", "v_or3_b32 v162, v162, v163, v164", "v_cmp_ne_u32 vcc, 0, v162", "s_cbranch_vccnz L_poll1d",
              "L_pf:", f"s_sub_u32 s{S_CNT}, s{S_CNT}, 1", "s_cbranch_scc1 L_poll1d", "s_waitcnt vmcnt(0)", "v_cmp_ne_u32 vcc, v152, v161", "s_cbranch_vccnz L_poll1")
        else:
            a("L_poll1:", f"buffer_load_dword v152, v151, s[{R_DBG}:{R_DBG+3}], s{S_T5} offen sc0 sc1", f"s_sub_u32 s{S_CNT}, s{S_CNT}, 1",
              "s_cbranch_scc1 L_poll1d", "s_waitcnt vmcnt(0)", "v_cmp_gt_u32 vcc, 0x80, v152", "s_cbranch_vccnz L_poll1")
        a("L_poll1d:", "v_mov_b32 v152, 1", "ds_write_b32 v150, v152", kn[2:], "s_branch L_flagok")
        a("L_relay:", "ds_read_b32 v152, v150", f"s_sub_u32 s{S_CNT}, s{S_CNT}, 1", "s_cbranch_scc1 L_flagok", "s_waitcnt lgkmcnt(0)",
          "v_cmp_eq_u32 vcc, 0, v152", "s_cbranch_vccnz L_relay", "L_flagok:")
        self.stamp(4)
        self.kv_dma(0, o['kv1'])
        a("L_first:")
        self.stamp(3)
        self.stamp(6, 2)
        a(f"s_cmp_lg_u32 s{S_WAVE}, 7", "s_cbranch_scc1 L_nokn", f"s_waitcnt vmcnt({o['kv1']})", "v_max_f32 v154, v154, v155", "v_max_f32 v156, v156, v157")
        self.row_max16(154)
        self.row_max16(156)
        a("s_nop 0")
        for k in range(4):
            a(f"v_readlane_b32 s{16+k}, v154, {16*k}", f"v_readlane_b32 s{20+k}, v156, {16*k}")
        a("s_nop 1", "s_max_u32 s16, s16, s17", "s_max_u32 s18, s18, s19", "s_max_u32 s20, s20, s21", "s_max_u32 s22, s22, s23",
          "s_max_u32 s16, s16, s18", "s_max_u32 s20, s20, s22", "v_mov_b32 v154, s16", "v_add_f32 v154, s20, v154", "v_sqrt_f32 v154, v154",
          f"v_mov_b32 v155, {L_KMAX}", "ds_write_b32 v155, v154", "L_nokn:")
        self.stamp(3, 6)
        a("s_waitcnt vmcnt(0) lgkmcnt(0)")
        self.stamp(1, 6)
        a("s_barrier")
        self.stamp(2, 6)
        self.kv_dma(4 * o['kv1'], 37 - o['kv1'])
        a("s_setprio 2", f"s_mov_b32 s{S_STG}, 0", "s_waitcnt vmcnt(0)")
        self.stamp(5)
        self.stamp(4, 6)
        a("s_barrier")
        self.stamp(5, 6)
        if o['shard']:
            a(f"s_cmp_lg_u32 s{S_WAVE}, 7", "s_cbranch_scc1 L_nosaw", "s_cmp_ge_u32 s2, 8", "s_cbranch_scc1 L_nosaw", "s_mov_b64 exec, 1",
              f"buffer_atomic_add v100, v101, s[{R_DBG}:{R_DBG+3}], s{S_T5} offen offset:8 sc1", "s_mov_b64 exec, -1", "L_nosaw:")
        self.wo_job_loads(0)
        a(f"s_cmp_lt_u32 s{S_OEX}, 512", "s_cbranch_scc1 L_nowo2")
        self.wo_job_loads(1)
        a("L_nowo2:", f"s_lshl_b32 s{S_T0}, s{S_PG}, 4", f"s_add_u32 s{S_T0}, s{S_T0}, {WS_XID}", "v_and_b32 v8, 3, v0", "v_lshlrev_b32 v8, 2, v8",
          f"buffer_load_dword v9, v8, s[{R_WS}:{R_WS+3}], s{S_T0} offen sc1")
        self.poison()
        a("s_waitcnt vmcnt(5)")
        self.wo_finish()
        a(f"v_mov_b32 v10, {L_FLAG+8}", "v_cmp_ne_u32 vcc, s29, v9", "s_cmp_eq_u64 vcc, 0", f"s_cselect_b32 s{S_SAME}, {o['xcc']}, 0", f"v_mov_b32 v11, s{S_SAME}",
          "ds_write_b32 v10, v11", "s_waitcnt lgkmcnt(0)")
        self.join_signal(12, "l")
        a("s_mov_b64 exec, -1")
        self.tail_scalars()
        a("v_mov_b32 v12, 1", f"s_mov_b32 s{S_CNT}, {SPIN}", f"s_cmp_lg_u32 s{S_WAVE}, 7", "s_cbranch_scc1 L_rel2", f"s_lshl_b32 s{S_T0}, s{S_B}, 7",
          "L_poll2:", f"buffer_load_dword v11, v15, s[{R_DBG}:{R_DBG+3}], s{S_T0} offen offset:4 sc0 sc1", f"s_sub_u32 s{S_CNT}, s{S_CNT}, 1",
          "s_cbranch_scc1 L_poll2d", "s_waitcnt vmcnt(0)", "v_cmp_gt_u32 vcc, 0x80, v11", "s_cbranch_vccz L_poll2d", "s_sleep 16", "s_branch L_poll2",
          "L_poll2d:", "ds_write_b32 v10, v12 offset:4", "s_branch L_rel2d",
          "L_rel2:", "ds_read_b32 v11, v10 offset:4", f"s_sub_u32 s{S_CNT}, s{S_CNT}, 1", "s_cbranch_scc1 L_rel2d", "s_waitcnt lgkmcnt(0)",
          "v_cmp_ne_u32 vcc, 0, v11", "s_cbranch_vccnz L_rel2d", "s_sleep 16", "s_branch L_rel2", "L_rel2d:")
        a(f"s_mul_i32 s{S_T0}, s{S_HG}, 9", f"s_lshl_b32 s{S_T1}, s{S_I}, 1", f"s_add_u32 s{S_T0}, s{S_T0}, s{S_T1}", f"s_mul_i32 s{S_T0}, s{S_T0}, {18*1024}", f"s_add_u32 s{S_T0}, s{S_T0}, {WS_WOT}")
        for n in range(36):
            a(f"buffer_load_dwordx4 {vr(112+4*n,4)}, v1, s[{R_WS}:{R_WS+3}], s{S_T0} offen offset:{(n&3)*1024} sc1")
            if n & 3 == 3:
                a(f"s_add_u32 s{S_T0}, s{S_T0}, 4096")
        self.tail_vaddr()
        a("s_waitcnt vmcnt(0) lgkmcnt(0)", "s_barrier")
        a(f"s_mul_i32 s{S_T0}, s{S_HG}, 9", f"s_add_u32 s{S_T0}, s{S_T0}, 8", f"s_mul_i32 s{S_T0}, s{S_T0}, {18*1024}", f"s_add_u32 s{S_T0}, s{S_T0}, {WS_WOT}",
          f"s_add_u32 s{S_T0}, s{S_T0}, s{S_M0A}")
        for k in range(4):
            a(f"s_add_u32 m0, s{S_M0A}, {L_W8 + 4096*k}", f"s_add_u32 s{S_T1}, s{S_T0}, {4096*k}", f"buffer_load_dwordx4 v1, s[{R_WS}:{R_WS+3}], s{S_T1} offen sc1 lds")
        a(f"s_and_b32 s{S_T2}, s{S_I}, 2", f"s_sub_u32 s{S_T2}, 16, s{S_T2}", f"s_lshl_b32 s{S_T2}, s{S_T2}, 10", f"s_add_u32 s{S_T1}, s{S_T0}, s{S_T2}",
          f"s_add_u32 s{S_T2}, s{S_T2}, s{S_M0A}", f"s_add_u32 m0, s{S_T2}, {L_W8}", "s_nop 0", f"buffer_load_dwordx4 v1, s[{R_WS}:{R_WS+3}], s{S_T1} offen sc1 lds",
          "s_waitcnt vmcnt(0)")
        self.tail_late()

    def kv_signal(self):
        a, o = self.a, self.o
        if o['shard']:
            a("s_cbranch_vccnz L_nosig", "s_setprio 3", f"v_add_u32 v161, {17 if o['badv0'] else 16}, v161",
              f"s_bfe_u32 s{S_T0}, s2, 0x20001", f"s_lshl_b32 s{S_T0}, s{S_T0}, 1", f"s_and_b32 s{S_T1}, s{S_GI}, 1", f"s_add_u32 s{S_T0}, s{S_T0}, s{S_T1}",
              f"s_lshl_b32 s{S_T0}, s{S_T0}, 9", f"s_add_u32 s{S_T0}, s{S_T0}, {WS_CNT}", "s_mov_b64 exec, 1",
              f"buffer_atomic_add v100, v101, s[{R_WS}:{R_WS+3}], s{S_T0} offen sc1", "s_mov_b64 exec, -1", "s_setprio 1", "L_nosig:")
        else:
            a("s_cbranch_vccnz L_nosig", "s_setprio 3", f"s_lshl_b32 s{S_T0}, s{S_B}, 7", "s_mov_b64 exec, 1",
              f"buffer_atomic_add v100, v101, s[{R_DBG}:{R_DBG+3}], s{S_T0} offen sc1", "s_mov_b64 exec, -1", "s_setprio 1", "L_nosig:")

    def join_signal(self, v, tag):
        self.a(f"v_mov_b32 v{v}, {L_FLAG+4}", f"v_mov_b32 v{v+1}, 1", f"v_mov_b32 v{v+3}, 0", f"s_lshl_b32 s{S_T0}, s{S_B}, 7", "s_mov_b64 exec, 1",
               "s_waitcnt vmcnt(0)", f"ds_add_rtn_u32 v{v+2}, v{v}, v{v+1}", "s_waitcnt lgkmcnt(0)", f"v_cmp_eq_u32 vcc, 3, v{v+2}", f"s_cbranch_vccz L_js{tag}",
               f"buffer_atomic_add v{v+1}, v{v+3}, s[{R_DBG}:{R_DBG+3}], s{S_T0} offen offset:4 sc1", f"L_js{tag}:")

    def wo_job_addr(self, rep):
        a = self.a
        if rep == 0:
            a(f"s_lshl_b32 s{S_OEX}, s{S_PG}, 2", f"s_add_u32 s{S_OEX}, s{S_OEX}, s{S_HG}", f"s_lshl_b32 s{S_OEX}, s{S_OEX}, 2", f"s_add_u32 s{S_OEX}, s{S_OEX}, s{S_I}")
        f = S_OEX
        AD = 208 + 8 * rep
        a(f"s_mul_i32 s16, s{f}, 3641", "s_lshr_b32 s16, s16, 16", "s_mul_i32 s19, s16, 18", f"s_sub_u32 s19, s{f}, s19",
          "s_mul_i32 s21, s16, 7282", "s_lshr_b32 s21, s21, 16", "s_mul_i32 s17, s21, 9", "s_sub_u32 s17, s16, s17")
        a("s_mul_i32 s22, s21, 288", "s_lshr_b32 s23, s17, 1", "s_lshl_b32 s23, s23, 6", "s_add_u32 s22, s22, s23", "s_and_b32 s23, s17, 1", "s_lshl_b32 s23, s23, 3",
          "s_add_u32 s22, s22, s23", "s_cmp_eq_u32 s17, 8", "s_cselect_b32 s23, 3, 4",
          "v_bfe_u32 v200, v0, 2, 2", "v_lshlrev_b32 v200, s23, v200", "v_and_b32 v201, 3, v0", "v_lshl_add_u32 v200, v201, 1, v200", "v_add_u32 v200, s22, v200",
          "s_cmp_ge_u32 s19, 16", f"s_cbranch_scc1 L_wok1_{rep}")
        cy = [(j & 3) + 8 * (j >> 2) for j in range(8)]
        a("s_lshr_b32 s23, s19, 2", "s_add_u32 s23, s23, s21", "s_and_b32 s23, s23, 3", f"s_mul_i32 s22, s23, {144*1152}",
          "s_and_b32 s23, s19, 1", f"s_mul_i32 s23, s23, {72*1152}", "s_add_u32 s22, s22, s23", "s_bfe_u32 s23, s19, 0x10001", f"s_mul_i32 s23, s23, {36*1152}", "s_add_u32 s22, s22, s23",
          "v_lshrrev_b32 v201, 5, v0", "v_bfe_u32 v202, v0, 4, 1",
          f"v_mul_u32_u24 v203, {4*1152}, v201", "v_add_u32 v203, v200, v203",
          f"v_mul_u32_u24 v204, {3*1152}, v201", f"v_sub_u32 v204, {16*1152}, v204", "v_mul_u32_u24 v204, v202, v204", f"v_add_u32 v{AD}, v203, v204")
        for j in range(1, 8):
            dj = 18 + cy[j-1] - cy[j]
            a(f"v_mul_u32_u24 v204, {dj*1152}, v202", f"v_add_u32 v204, {cy[j]*1152}, v204", f"v_add_u32 v{AD+j}, v203, v204")
        a(f"s_branch L_wold_{rep}", f"L_wok1_{rep}:", "s_and_b32 s22, s19, 1", f"s_mul_i32 s22, s22, {36*1152}",
          "v_lshrrev_b32 v201, 4, v0", "v_add_u32 v201, s21, v201", "v_and_b32 v201, 3, v201", f"v_mul_u32_u24 v201, {144*1152}, v201", "v_add_u32 v203, v200, v201")
        for j in range(8):
            hq, hh, e = j >> 2, (j >> 1) & 1, j & 1
            row = 72 * hq + 18 + ((16 + hh) if e else (11 + 4 * hh))
            a(f"v_add_u32 v{AD+j}, {row*1152}, v203")
        a(f"L_wold_{rep}:")
        a(f"s_mov_b32 s{30+rep}, s22")

    def wo_job_loads(self, rep):
        for j in range(8):
            self.a(f"buffer_load_ushort v{224+8*rep+j}, v{208+8*rep+j}, s[{R_WO}:{R_WO+3}], s{30+rep} offen")

    def wo_job_finish(self, rep):
        a = self.a
        DT = 224 + 8 * rep
        a(f"s_lshl_b32 s22, s{S_OEX}, 10", f"s_add_u32 s22, s22, {WS_WOT}")
        for j in range(4):
            a(f"v_lshl_or_b32 v{240+4*rep+j}, v{DT+1+2*j}, 16, v{DT+2*j}")
        a(f"buffer_store_dwordx4 {vr(240+4*rep,4)}, v1, s[{R_WS}:{R_WS+3}], s22 offen sc1")

    def wo_finish(self):
        a = self.a
        a(f"s_cmp_ge_u32 s{S_OEX}, 512", "s_cbranch_scc0 L_wo3")
        self.wo_job_finish(1)
        a(f"s_sub_u32 s{S_OEX}, s{S_OEX}, 512", "L_wo3:")
        self.wo_job_finish(0)

    def poison_addr(self):
        a = self.a
        a([f"v_mov_b32 v{192+j}, -1" for j in range(4)])
        a(f"s_lshl_b32 s32, s{S_PG}, 2", f"s_add_u32 s32, s32, s{S_HG}", f"s_mul_i32 s32, s32, {OEX_W}", f"s_add_u32 s32, s32, {WS_OEX}",
          f"s_lshl_b32 s33, s{S_I}, 12", "s_add_u32 s33, s33, s32", f"s_lshl_b32 s34, s{S_PBI}, 10", "s_add_u32 s34, s34, s32", "s_add_u32 s34, s34, 16384")

    def poison(self):
        a = self.a
        for k in range(4):
            a(f"buffer_store_dwordx4 v[192:195], v1, s[{R_WS}:{R_WS+3}], s33 offen offset:{k*1024} sc0 sc1")
        a(f"buffer_store_dwordx4 v[192:195], v1, s[{R_WS}:{R_WS+3}], s34 offen sc0 sc1")

    def attention(self):
        a, o = self.a, self.o
        UNP = o['unp']
        a(f"v_mul_f32 v7, v6, v{QR+1}", f"v_mul_f32 v22, v6, v{QR2+1}", f"v_mov_b32 v6, {hex(f2u(-1.0 if o['force_fb'] else TSAFE))}",
          "v_cmp_nle_f32 vcc, v7, v6", "v_cmp_nle_f32 s[42:43], v22, v6", "v_sub_f32 v7, 0, v7", "v_sub_f32 v22, 0, v22",
          f"v_cvt_pk_bf16_f32 v{QR+1}, v7, 0", f"v_cvt_pk_bf16_f32 v{QR2+1}, v22, 0", "s_or_b64 vcc, vcc, s[42:43]", "s_cbranch_vccnz L_fallback", "L_fbdone:")
        q = self.qk(S[0], 0, 0)
        f1 = [f"s_lshl_b32 s{S_T0}, s{S_HQ}, 12", f"s_lshl_b32 s{S_T1}, s{S_PBI}, 11", f"s_add_u32 s{S_T2}, s{S_T0}, s{S_T1}",
              f"s_lshl_b32 s{S_T0}, s{S_PBI}, 9", f"s_lshl_b32 s{S_T1}, s{S_HQ}, 7", f"s_add_u32 s{S_T3}, s{S_T0}, s{S_T1}",
              f"v_mov_b32 v{V_JN}, {L_FLAG+4}", f"s_mov_b32 s{S_CNT}, {32//UNP}", "v_bfe_u32 v6, v0, 4, 1", "v_lshrrev_b32 v7, 5, v0",
              "v_and_b32 v22, 15, v0", f"v_lshlrev_b32 v{V_OA}, 10, v6", f"v_lshl_add_u32 v{V_OA}, v7, 9, v{V_OA}", f"v_lshl_add_u32 v{V_OA}, v22, 4, v{V_OA}", f"v_add_u32 v{V_OA}, s{S_T2}, v{V_OA}",
              f"v_lshlrev_b32 v{V_OB}, 8, v6", f"v_lshl_add_u32 v{V_OB}, v7, 6, v{V_OB}", f"v_lshl_add_u32 v{V_OB}, v22, 2, v{V_OB}"]
        a("s_nop 0", q[0], f1, q[1], q[2], f"v_add_u32 v{V_OB}, s{S_T3}, v{V_OB}", "s_nop 9")
        self.stamp(6)
        self.stamp(6, 6)
        body = []
        units = [(kb, pr) for kb in range(2 * UNP) for pr in range(2)]
        for i, (kb, pr) in enumerate(units):
            cur, nxt = S[i % 2], S[(i + 1) % 2]
            q = self.qk(nxt, kb + pr, 1 - pr)
            e = EX(cur, 32)
            sm3p = SM(OS[2*(1-pr)+1], VV[(kb - 1 + pr) % 2][1], nxt + 24)
            sm = [SM(OS[2*pr], VV[kb % 2][0], cur), SM(OS[2*pr], VV[kb % 2][1], cur + 8), SM(OS[2*pr+1], VV[kb % 2][0], cur + 16)]
            if pr == 0:
                v0, v1 = self.ldV(kb + 1)
                x = [[v0], [v1], [], [], []]
            else:
                x = [[], [], self.ldKm(kb + 2), self.ldKr(kb // 2 + 1) if kb % 2 == 0 else [], ["s_waitcnt lgkmcnt(0)"]]
            body += e[0:2] + [sm3p] + x[0] + e[2:5] + [q[0]] + e[5:13] + [sm[0]] + x[1] + e[13:18] + [sm[1]] + x[2] + e[18:21] + [q[1]] + x[3] + e[21:24] + [q[2]] + e[24:27] + [sm[2]] + x[4] + e[27:32]
        reach = max(int(x.split("offset:")[1]) + {V_AK: 1024, V_AR: 2048 + 256, V_AV: 2304 + VG}[int(x.split(", v")[1].split()[0])] for x in body if x.startswith("ds_read"))
        assert reach <= 4096 * o['kv1'] and L_KV + 4096 * o['kv1'] <= dslot(17)
        assert L_W8 + 18432 <= L_KV + (32 - UNP) * PB
        body += [f"v_add_u32 v{V_AK}, {UNP*PB}, v{V_AK}", f"v_add_u32 v{V_AR}, {UNP*PB}, v{V_AR}", f"v_add_u32 v{V_AV}, {UNP*PB}, v{V_AV}"]
        if o['sh']:
            mf = [i for i, x in enumerate(body) if 'smfmac' in x and not body[i + 1].startswith(('ds_', 's_'))]
            body.insert(mf[-1] + 1, f"s_cmp_lg_u32 s{S_CNT}, s{S_BAR}")
            body.insert(mf[-2] + 1, f"s_sub_u32 s{S_CNT}, s{S_CNT}, 1")
            a(".p2align 6", "L_main:", body, "s_cbranch_scc1 L_main", f"s_cmp_eq_u32 s{S_CNT}, 1", "s_cbranch_scc1 L_last", "s_barrier", f"s_mov_b32 s{S_BAR}, 1", "s_branch L_main", "L_last:")
        else:
            a(".p2align 6", "L_main:", body, f"s_sub_u32 s{S_CNT}, s{S_CNT}, 1", f"s_cmp_lg_u32 s{S_CNT}, s{S_BAR}", "s_cbranch_scc1 L_nob", "s_barrier", "L_nob:",
              f"s_cmp_lg_u32 s{S_CNT}, 1", "s_cbranch_scc1 L_main")
        a("s_barrier", f"ds_read_b32 v23, v{V_JN} offset:4", self.ldKr(1))
        DW = [192, 204]

        def publish(pr):
            x, y, d = OS[2*pr], OS[2*pr+1], DW[pr]
            vals = [x + j for j in range(9)] + [y + j for j in range(9)]
            c = [f"v_cvt_pk_bf16_f32 v{d+j}, v{vals[2*j]}, v{vals[2*j+1]}" for j in range(9)]
            a(f"v_rcp_f32 v6, v{x+9}", "s_nop 0", [f"v_mul_f32 v{r}, v{r}, v6" for r in vals[:9]], c[:3], f"v_rcp_f32 v7, v{y+9}", c[3])
            direct = pr == 1 or not o['hst']
            if direct:
                a("v_cmp_ne_u32 vcc, 0, v23", f"s_cbranch_vccnz L_pub1{pr}")
            for fl in (" sc0 sc1", "") if direct else (None,):
                st = lambda n, r, v, so, off: f"buffer_store_dword{n} {r}, v{v}, s[{R_WS}:{R_WS+3}], s{so} offen offset:{off}{fl}" if direct else []
                so = S_OA if pr else S_OW
                a(st('x4', vr(d, 4), V_OA, so, 0), [f"v_mul_f32 v{r}, v{r}, v7" for r in vals[9:]], c[4:8], st('x4', vr(d + 4, 4), V_OA, so, 256), c[8], st('', vr(d + 8), V_OB, S_OB, 1024 * pr))
                if fl:
                    a(f"s_branch L_pub2{pr}", f"L_pub1{pr}:")
            a(f"L_pub2{pr}:")
            if pr:
                a(self.peer_loads())
            else:
                a(f"v_add_u32 v201, {L_O}, v{V_OA}", f"v_add_u32 v202, {L_O + 65536}, v{V_OB}")
            a(f"ds_write_b128 v201, {vr(d, 4)} offset:{8192*pr}", f"ds_write_b128 v201, {vr(d + 4, 4)} offset:{8192*pr + 256}", f"ds_write_b32 v202, v{d + 8} offset:{1024*pr}")
        NV = 2 * UNP
        for j in range(2 * NV):
            pr, kb = j // NV, j % NV
            cur, nxt = S[j % 2], S[(j + 1) % 2]
            q = self.qk(nxt, (j + 1) % NV, (j + 1) // NV) if j + 1 < 2 * NV else [[], [], []]
            e = EX(cur, 32)
            sm3p = SM(OS[2*((j - 1) // NV % 2)+1], VV[(j - 1) % 2][1], nxt + 24)
            sm = [SM(OS[2*pr], VV[j % 2][0], cur), SM(OS[2*pr], VV[j % 2][1], cur + 8), SM(OS[2*pr+1], VV[j % 2][0], cur + 16)]
            v0, v1 = self.ldV((j + 1) % NV) if j + 1 < 2 * NV else ([], [])
            km = self.ldKm((j + 2) % NV) if j + 2 < 2 * NV else []
            kr = self.ldKr(((j + 3) // 2) % UNP) if j % 2 == 1 and j + 3 < 2 * NV else []
            a(e[0:2], sm3p, v0, e[2:5], q[0], e[5:13], sm[0], v1, e[13:18], sm[1], km, e[18:21], q[1], kr, e[21:24], q[2], e[24:27], sm[2], "s_waitcnt lgkmcnt(0)", e[27:32])
            if j == NV:
                publish(0)
            if j == o['nj']:
                a("s_barrier")
        a("s_nop 1", SM(O2[1], VV[1][1], S[1] + 24))
        self.stamp(7)
        a("s_setprio 3", "s_barrier")
        publish(1)
        self.tail_vaddr()
        a(f"v_add_u32 v21, {L_W8}, v1")
        self.stamp(1, 4)
        if o['own1']:
            a("s_waitcnt lgkmcnt(0)", "s_barrier")
        self.collect("e")
        q = []
        RO, RW, ACC = [56 + 8 * k for k in range(5)], [60 + 8 * k for k in range(5)], 100
        for n in range(18 + 4):
            if n >= 4:
                ks = n - 4
                last = max(i for i, t in enumerate(q) if t == ks)
                a(f"s_waitcnt lgkmcnt({min(len(q) - 1 - last, 14)})", M16(ACC, RW[ks % 5], RO[ks % 5], "0" if ks == 0 else None))
                del q[:last + 1]
            if n < 18:
                x = self.ofrag(RO[n % 5], 0, n) + [f"ds_read_b128 {vr(RW[n % 5], 4)}, v21 offset:{n*1024}"]
                a(x)
                q += [n] * len(x)
        a("s_nop 7", f"v_cvt_pk_bf16_f32 v6, v{ACC}, v{ACC+1}", f"v_cvt_pk_bf16_f32 v7, v{ACC+2}, v{ACC+3}",
          f"buffer_store_dwordx2 v[6:7], v23, s[{R_OUT}:{R_OUT+3}], s41 offen")
        self.finish()

    def peer_loads(self):
        return [f"buffer_load_dwordx4 {vr(24+4*k,4)}, v1, s[{R_WS}:{R_WS+3}], s{16+k} offen sc0 sc1" for k in range(7)]

    def ofrag(self, r, tp, ks):
        if ks < 16:
            return [f"ds_read_b128 {vr(r,4)}, v{8+tp} offset:{ks*4096}"]
        if ks == 16:
            return [f"ds_read2_b32 {vr(r,2)}, v{52+tp} offset0:0 offset1:16", f"ds_read2_b32 {vr(r+2,2)}, v{52+tp} offset0:32 offset1:48"]
        return [f"ds_read2_b32 {vr(r,2)}, v{16+tp} offset0:0 offset1:16", f"ds_read2_b32 {vr(r+2,2)}, v{16+tp} offset0:32 offset1:48"]

    def tail_vaddr(self):
        self.a(f"s_lshl_b32 s{S_T0}, s{S_I}, 10", f"s_add_u32 s{S_T0}, s{S_T0}, {L_O}", f"v_add_u32 v8, s{S_T0}, v1", "v_xor_b32 v9, 0x400, v8", "v_xor_b32 v10, 0x800, v8", "v_xor_b32 v11, 0xc00, v8",
               "v_lshrrev_b32 v6, 4, v0", "v_and_b32 v7, 15, v0", "v_mul_u32_u24 v22, 0x900, v7", "v_lshl_add_u32 v23, v6, 3, v22", "v_lshl_add_u32 v22, v6, 4, v22",
               "v_lshlrev_b32 v6, 11, v6", "v_lshl_add_u32 v6, v7, 2, v6", f"s_lshl_b32 s{S_T0}, s{S_I}, 8", f"s_add_u32 s{S_T0}, s{S_T0}, {L_O + 65536}",
               f"v_add_u32 v52, s{S_T0}, v6", "v_xor_b32 v53, 0x100, v52", "v_xor_b32 v54, 0x200, v52", "v_xor_b32 v55, 0x300, v52",
               [f"v_add_u32 v{16+k}, 0x400, v{52+k}" for k in range(4)])

    def collect(self, tag):
        a, PB_ = self.a, 24
        a(f"s_mov_b32 s{S_CNT}, {SPIN}", f"L_cl{tag}:", "s_waitcnt vmcnt(0)")
        self.stamp(3, 4)
        a(f"v_max3_u32 v6, v{PB_}, v{PB_+1}, v{PB_+2}", f"v_max3_u32 v7, v{PB_+3}, v{PB_+4}, v{PB_+5}")
        for j in range(6, 28, 4):
            a(f"v_max3_u32 v6, v6, v{PB_+j}, v{PB_+j+1}")
            if j + 3 < 28:
                a(f"v_max3_u32 v7, v7, v{PB_+j+2}, v{PB_+j+3}")
        a("v_max_u32 v7, v7, v6", "v_cmp_eq_u32 vcc, -1, v7", f"s_cbranch_vccz L_cld{tag}", f"s_sub_u32 s{S_CNT}, s{S_CNT}, 1", f"s_cbranch_scc1 L_cld{tag}", self.peer_loads(), f"s_branch L_cl{tag}", f"L_cld{tag}:")
        self.stamp(2, 4)
        for k in range(7):
            a(f"v_add_u32 v{6+(k&1)}, s{30+k}, v1", f"ds_write_b128 v{6+(k&1)}, {vr(PB_+4*k,4)}")
        a("s_waitcnt lgkmcnt(0)", "s_barrier")
        self.stamp(4, 4)
        self.stamp(4, 0)

    def tail_late(self):
        a, o = self.a, self.o
        WF, ACC = 112, 80
        RING = [56 + 4 * i for i in range(6)]
        if o['hst']:
            a(f"s_lshl_b32 s{S_T0}, s{S_I}, 11", f"s_add_u32 s{S_T1}, s{S_T0}, s{S_OW}", f"s_add_u32 s{S_T0}, s{S_T0}, {L_O}", f"v_add_u32 v56, s{S_T0}, v1",
              f"v_lshlrev_b32 v57, 2, v0", f"s_lshl_b32 s{S_T0}, s{S_I}, 8", f"s_add_u32 s{S_T2}, s{S_T0}, s{S_OB}", f"s_add_u32 s{S_T0}, s{S_T0}, {L_O + 65536}", f"v_add_u32 v58, s{S_T0}, v57",
              f"s_cmp_eq_u32 s{S_SAME}, 1")
        a("s_setprio 2", "s_barrier")
        if o['hst']:
            a("ds_read_b128 v[60:63], v56", "ds_read_b128 v[64:67], v56 offset:1024", "ds_read_b32 v68, v58", "s_cbranch_scc1 L_hs1")
            for fl in (" sc0 sc1", ""):
                a("s_waitcnt lgkmcnt(0)", f"buffer_store_dwordx4 v[60:63], v1, s[{R_WS}:{R_WS+3}], s{S_T1} offen{fl}", f"buffer_store_dwordx4 v[64:67], v1, s[{R_WS}:{R_WS+3}], s{S_T1} offen offset:1024{fl}",
                  f"buffer_store_dword v68, v57, s[{R_WS}:{R_WS+3}], s{S_T2} offen{fl}")
                if fl:
                    a("s_branch L_hs2", "L_hs1:")
            a("L_hs2:")
        a(self.peer_loads())
        self.collect("l")
        a("s_setprio 1")
        self.stamp(7)
        q = []

        def run(seq, n0, after):
            PF = 5

            def issue(j):
                x = self.ofrag(RING[(n0 + j) % 6], *seq[j])
                a(x)
                q.extend([n0 + j] * len(x))
            for j in range(PF):
                issue(j)
            for j, (tp, ks) in enumerate(seq):
                last = max(i for i, t in enumerate(q) if t == n0 + j)
                a(f"s_waitcnt lgkmcnt({min(len(q) - 1 - last, 14)})")
                del q[:last + 1]
                c = "0" if ks == 0 else None
                r = RING[(n0 + j) % 6]
                a(M16(ACC + 4 * tp, WF + 4 * ks, r, c), M16(ACC + 16 + 4 * tp, WF + 72 + 4 * ks, r, c))
                if j + PF < len(seq):
                    issue(j + PF)
                a(after.get(j, []))

        def outp(tp):
            r = 24 + 4 * tp
            return [f"v_cvt_pk_bf16_f32 v{r+k}, v{ACC+16*(k>>1)+4*tp+2*(k&1)}, v{ACC+16*(k>>1)+4*tp+2*(k&1)+1}" for k in range(4)] + \
                   [f"buffer_store_dwordx4 {vr(r,4)}, v22, s[{R_OUT}:{R_OUT+3}], s{37+tp} offen"]
        k0 = [0, 1, 4, 5, 8, 9, 12, 13, 16]
        k1 = [6, 7, 10, 11, 14, 15, 17]
        run([(tp, ks) for ks in k0 for tp in range(4)], 0, {})
        if o['own1']:
            a("s_barrier")
            run([(tp, ks) for ks in (2, 3) for tp in range(4)], 36, {})
        else:
            k1 = [2, 3] + k1
        a("s_setprio 3", "s_barrier")
        self.stamp(6, 4)
        n1 = len(k1)
        run([(tp, ks) for tp in range(4) for ks in k1], 44, {n1 * i + 2: outp(i - 1) for i in (1, 2, 3)})
        a("s_nop 6", outp(3), "s_branch L_fin")

    def tail_scalars(self):
        a, o = self.a, self.o
        a(f"s_mul_i32 s{S_OEXB}, s{S_PG}, {OEX_G}", f"s_add_u32 s{S_OEXB}, s{S_OEXB}, {WS_OEX}", f"s_mul_i32 s{S_OW}, s{S_HG}, {OEX_W}", f"s_add_u32 s{S_OW}, s{S_OW}, s{S_OEXB}",
          f"s_add_u32 s{S_OA}, s{S_OW}, 8192", f"s_add_u32 s{S_OB}, s{S_OW}, 16384",
          f"s_lshl_b32 s23, s{S_STG}, 13", f"s_lshl_b32 s24, s{S_STG}, 10")
        for k in range(7):
            a(f"s_add_u32 s{S_T0}, s{S_I}, {4*k}")
            if k == 6:
                a(f"s_min_u32 s{S_T0}, s{S_T0}, 26")
            a(f"s_mul_i32 s{S_T1}, s{S_T0}, 7282", f"s_lshr_b32 s{S_T1}, s{S_T1}, 16", f"s_mul_i32 s{S_T2}, s{S_T1}, 9", f"s_sub_u32 s{S_T2}, s{S_T0}, s{S_T2}",
              f"s_add_u32 s{S_T1}, s{S_T1}, 1",
              f"s_lshl_b32 s{S_T0}, s{S_T2}, 10", f"s_add_u32 s{S_T0}, s{S_T0}, s23", f"s_add_u32 s{S_T3}, s24, 16384",
              f"s_lshl_b32 s{30+k}, s{S_T1}, 14", f"s_add_u32 s{30+k}, s{30+k}, s{S_T0}", f"s_lshl_b32 s{16+k}, s{S_T1}, 11", f"s_add_u32 s{16+k}, s{16+k}, s24", f"s_add_u32 s{16+k}, s{16+k}, 65536",
              f"s_cmp_eq_u32 s{S_T2}, 8", f"s_cselect_b32 s{S_T0}, s{S_T3}, s{S_T0}", f"s_cselect_b32 s{30+k}, s{16+k}, s{30+k}", f"s_add_u32 s{30+k}, s{30+k}, {L_O}",
              f"s_add_u32 s{S_T1}, s{S_T1}, s{S_HG}", f"s_and_b32 s{S_T1}, s{S_T1}, 3", f"s_mul_i32 s{S_T1}, s{S_T1}, {OEX_W}", f"s_add_u32 s{S_T0}, s{S_T0}, s{S_T1}", f"s_add_u32 s{16+k}, s{S_T0}, s{S_OEXB}")
        a(f"s_mul_i32 s{S_T0}, s{S_PG}, {64*2304}", f"s_mul_i32 s{S_T1}, s{S_B}, 1152", f"s_add_u32 s{S_T0}, s{S_T0}, s{S_T1}", f"s_mul_i32 s{S_T1}, s{S_HG}, 288",
          f"s_add_u32 s{S_T0}, s{S_T0}, s{S_T1}", f"s_lshl_b32 s{S_T1}, s{S_I}, 6", f"s_add_u32 s{S_T1}, s{S_T1}, s{S_T0}")
        for tp in range(4):
            a(f"s_xor_b32 s{S_T2}, s{S_I}, {tp}", f"s_mul_i32 s{S_T2}, s{S_T2}, {16*2304}", f"s_add_u32 s{37+tp}, s{S_T2}, s{S_T1}")
            if tp == 0:
                a(f"s_add_u32 s41, s{S_T2}, s{S_T0}", "s_add_u32 s41, s41, 256")

    def fallback(self):
        a, o = self.a, self.o
        a.label("L_fallback")
        a("s_barrier", f"s_mov_b32 s{S_BAR}, {1 if o['sh'] else -1}")
        a(f"v_mov_b32 v{QR+1}, 0", f"v_mov_b32 v{QR2+1}, 0", f"v_mov_b32 v192, v{V_AK}", f"v_mov_b32 v193, v{V_AR}", [f"v_mov_b32 v{194+k}, 0xff800000" for k in range(4)],
          "v_mov_b32 v199, 0x3f803f80", f"s_mov_b32 s{S_CNT}, 32", "L_fbl:",
          "ds_read_b32 v198, v193", "ds_read_b128 v[200:203], v192", "ds_read_b128 v[204:207], v192 offset:1024",
          f"v_add_u32 v192, {PB}, v192", f"v_add_u32 v193, {PB}, v193", "s_waitcnt lgkmcnt(0)")
        for h in range(2):
            for pr in range(2):
                a(B2(208, 198, QRS[pr], h), "s_nop 15", "s_nop 1", K16(208, 200 + 4 * h, QMS[2*pr]), K16(224, 200 + 4 * h, QMS[2*pr+1]), "s_nop 11")
                for j in range(8):
                    a(f"v_max3_f32 v{194+2*pr}, v{194+2*pr}, v{208+2*j}, v{209+2*j}", f"v_max3_f32 v{195+2*pr}, v{195+2*pr}, v{224+2*j}, v{225+2*j}")
        a(f"s_sub_u32 s{S_CNT}, s{S_CNT}, 1", f"s_cmp_lg_u32 s{S_CNT}, 0", "s_cbranch_scc1 L_fbl")
        for pr in range(2):
            x, y = 194 + 2 * pr, 195 + 2 * pr
            a("s_nop 0", f"v_permlane32_swap_b32 v{x}, v{y}", "s_nop 1", f"v_max_f32 v{x}, v{x}, v{y}", f"v_sub_f32 v{x}, 0, v{x}",
              f"v_cvt_pk_bf16_f32 v{y}, v{x}, 0", f"v_lshlrev_b32 v{y}, 16, v{y}", f"v_sub_f32 v{y}, v{x}, v{y}", f"v_cvt_pk_bf16_f32 v{QRS[pr]+1}, v{x}, v{y}")
        a("s_branch L_fbdone")

    def finish(self):
        a, o = self.a, self.o
        a("L_fin:")
        if o['stamps'] or o['dbgspan'] or o['ampk']:
            a("s_waitcnt vmcnt(0)")
            self.stamp(5, o['set'] if o['set'] in (1, 4) else 0)
        if o['ampk']:
            a(f"s_cmp_eq_u32 s{S_STG}, {1 - o['amps']}", "s_cbranch_scc1 L_end", "s_waitcnt lgkmcnt(0)", f"s_sub_u32 s{S_T0}, s{S_ST+2*o['ampb']}, s{S_ST+2*o['ampa']}")
            if o['avg']:
                a(f"s_cmp_lg_u32 s{S_I}, 0", "s_cbranch_scc1 L_end", "s_mov_b64 exec, 1", "v_mov_b32 v8, 0", f"v_mov_b32 v9, s{S_T0}", "v_mov_b32 v10, 1",
                  f"buffer_atomic_add v9, v8, s[{R_DBG}:{R_DBG+3}], 0 offen offset:16 sc1", "s_waitcnt vmcnt(0)",
                  f"buffer_atomic_add v10, v8, s[{R_DBG}:{R_DBG+3}], 0 offen offset:144 sc0 sc1", "s_waitcnt vmcnt(0)", "v_cmp_eq_u32 vcc, 0xff, v10", "s_cbranch_vccz L_end",
                  f"buffer_load_dword v9, v8, s[{R_DBG}:{R_DBG+3}], 0 offen offset:16 sc0 sc1", "s_waitcnt vmcnt(0)", f"v_readfirstlane_b32 s{S_T0}, v9", "s_nop 3", f"s_mul_i32 s{S_T0}, s{S_T0}, {max(o['ampk'], 1)}", f"s_lshr_b32 s{S_T0}, s{S_T0}, {8 - min(o['ampk'], 0)}")
            else:
                a(f"s_mul_i32 s{S_T0}, s{S_T0}, {o['ampk']}" if o['ampk'] > 0 else f"s_lshr_b32 s{S_T0}, s{S_T0}, {-o['ampk']}")
            a("s_memrealtime s[18:19]", f"s_min_u32 s{S_T0}, s{S_T0}, 100000",
              "L_amp:", "s_memrealtime s[16:17]", "s_waitcnt lgkmcnt(0)", "s_sub_u32 s16, s16, s18", f"s_cmp_lt_u32 s16, s{S_T0}", "s_cbranch_scc1 L_amp")
        self.dump_stamps()
        a("L_end:", "s_endpgm")

    def build(self):
        self.start()
        self.early_front()
        self.attention()
        self.late_front()
        self.fallback()
        hdr = (open('concat_heads__grouped_kv_mqa__grouped_kv_mqa__prompt.s.ref').read().split("; Override launch geometry")[0] +
               f"; @launch grid=(256,1,1) block=(512,1,1) lds={LDS_BYTES}\n" + DOC +
               '.amdgcn_target "amdgcn-amd-amdhsa--gfx950"\n.text\n'
               f".globl {NAME}\n.p2align 8\n.type {NAME},@function\n{NAME}:\n")
        if self.o['of'] & 1:
            self.a.L = [x.replace(" sc0 sc1", " sc1") if "buffer_store" in x and f"s[{R_WS}:" in x else x for x in self.a.L]
        if self.o['of'] & 2:
            self.a.L = [x.replace(" sc0 sc1", " sc1") if "buffer_load" in x and f"s[{R_WS}:" in x else x for x in self.a.L]
        body = "".join((x + "\n") if x.endswith(":") or x.startswith(";") else ("    " + x + "\n") for x in self.a.L)
        t = table()
        tab = ".p2align 6\n.type L_table,@object\nL_table:\n" + "".join("    .long " + ", ".join(str(int(v)) for v in row) + "\n" for row in t)
        tab += f".fill (1024 - ((. - {NAME}) & 1023)) & 1023, 1, 0\nL_codeend:\n.size L_table, L_codeend-L_table\n"
        kd = f""".section .rodata,"a"
.p2align 6
.amdhsa_kernel {NAME}
  .amdhsa_next_free_vgpr 256
  .amdhsa_next_free_sgpr 102
  .amdhsa_accum_offset 256
  .amdhsa_group_segment_fixed_size 0
  .amdhsa_kernarg_size 104
  .amdhsa_user_sgpr_count 2
  .amdhsa_user_sgpr_kernarg_segment_ptr 1
  .amdhsa_system_sgpr_workgroup_id_x 1
.end_amdhsa_kernel
"""
        return hdr + body + tab + kd


if __name__ == "__main__":
    out = sys.argv[1]
    opt = {}
    for kv in sys.argv[2:]:
        k, v = kv.split("=")
        opt[k] = int(v)
    g = Gen(opt)
    open(out, "w").write(g.build())
```

```python
import sys, math, struct
import numpy as np

NAME = "concat_heads__grouped_kv_mqa__grouped_kv_mqa__prompt_kernel"

VG = 608
PB = 2048 + 256 + 4 * VG
KVB = 32 * PB
L_KV = 12288
L_HAND = 0
L_KMAX = 10240
L_FLAG = 10256
L_T2X = 81920
L_O = 12288
L_W8 = L_O + 73728
L_W = 62464
L_X = 90112
SLOT = 4608
LDS_BYTES = 163840
WS_KV = 0
WS_KN = KVB
WS_XID = WS_KN + 1024
WS_CNT = 0x26000
WS_WOT = 0x28000
WS_OEX = 0xD0000
WS_BR = 0x400000
WS_STAMP = 0x1000000
OEX_G = 73728
OEX_W = 18432
CSCALE = math.log2(math.e) / math.sqrt(18.0)
TSAFE = 40.0
SPIN = 500000
SPIN_L = 16 * SPIN


def f2u(x):
    return struct.unpack("<I", struct.pack("<f", x))[0]


def dslot(d):
    if d < 6:
        return d * 2 * SLOT
    if d < 17:
        return L_W + (d - 6) * 2 * SLOT
    return 5 * 2 * SLOT


def slot_addr(ks):
    return dslot(ks >> 1) + (ks & 1) * SLOT


G0 = [0, 1, 2, 3, 12, 13, 14, 15, 20]
G1 = [4, 5, 6, 7, 8, 9, 10, 11, 16]
POS_ONES, POS_ZERO = 22, 23


def vpos(h, row):
    if row in G0:
        return [list(range(0, 9)), [18, 19, 20, 21, 24, 25, 26, 27, 28]][h][G0.index(row)]
    if row in G1:
        return [list(range(9, 18)), list(range(29, 38))][h][G1.index(row)]
    if row in (17, 21):
        return POS_ONES
    return POS_ZERO


def table():
    t = np.zeros((64, 4), dtype=np.uint32)
    for l in range(64):
        t[l, 0] = L_KV + 2304 + vpos(l >> 5, l & 31) * 16
        n, g = l & 15, l >> 4
        t[l, 1] = vpos(g >> 1, n) * 16 + (g & 1) * 8
        p = {0: vpos(g >> 1, 16), 1: vpos(g >> 1, 20), 2: POS_ONES, 3: POS_ZERO}.get(n, POS_ZERO)
        t[l, 2] = p * 16 + (g & 1) * 8
    return t


def vr(a, n=1):
    return f"v[{a}:{a+n-1}]" if n > 1 else f"v{a}"


def sr(a, n=1):
    return f"s[{a}:{a+n-1}]" if n > 1 else f"s{a}"


S_WAVE = 3
R_X, R_WQ, R_W, R_WO, R_WS, R_OUT, R_DBG = 44, 48, 52, 56, 60, 64, 68
S_B, S_HG, S_GI, S_PG, S_I = 4, 5, 6, 7, 8
S_T0, S_T1, S_T2, S_T3, S_T4, S_T5 = 9, 10, 11, 12, 13, 14
S_CNT = 15
S_M0A, S_M0R, S_ROW = 72, 73, 74
S_BAR = 75
S_PBI, S_HQ = 76, 77
S_EX = 42
S_KVS = 80
S_OEX = 81
S_STG = 82
S_OEXB = 78
S_SAME, S_OA, S_OB, S_OW = 26, 27, 28, 25
V_OA, V_OB, V_JN = 144, 145, 146
S_VM = 0
S_XI, S_XB, S_XS, S_XM = 83, 100, 101, 79
S_DI, S_DS, S_LI, S_LS = 72, 73, 74, 75
S_ST = 84

V_IDX, V_AK, V_AR, V_AV = 2, 3, 4, 5
QM = [8, 12]
QR = 16
KR = [18, 20]
O = [24, 40]
KM = [56, 60]
VV = [[64, 68], [72, 76]]
S = [80, 112]
QM2 = [148, 152]
QR2 = 156
O2 = [160, 176]
QMS, QRS, OS = QM + QM2, [QR, QR2], O + O2


DOC = """;
"""


class A:
    def __init__(self):
        self.L = []

    def __call__(self, *xs):
        for x in xs:
            if isinstance(x, (list, tuple)):
                self(*x)
            else:
                self.L.append(x)

    def label(self, n):
        self.L.append(n + ":")


def K16(d, a, b, c=None):
    return f"v_mfma_f32_32x32x16_bf16 {vr(d,16)}, {vr(a,4)}, {vr(b,4)}, {c if c else vr(d,16)}"


def M16(d, a, b, c=None):
    return f"v_mfma_f32_16x16x32_bf16 {vr(d,4)}, {vr(a,4)}, {vr(b,4)}, {c if c else vr(d,4)}"


def B2(d, a, b, abid):
    return f"v_mfma_f32_32x32x4_2b_bf16 {vr(d,32)}, {vr(a,2)}, {vr(b,2)}, 0 cbsz:1 abid:{abid}"


def K8Z(d, z):
    return f"v_mfma_f32_32x32x8_bf16 {vr(d,16)}, {vr(z,2)}, {vr(z,2)}, 0"


def SM(d, a, b):
    return f"v_smfmac_f32_32x32x32_bf16 {vr(d,16)}, {vr(a,4)}, {vr(b,8)}, v{V_IDX}"


def EX(r, n):
    return [f"v_exp_f32 v{r+i}, v{r+i}" for i in range(n)]


def srd(a, dst, lo, hi, size):
    a(f"s_mov_b32 s{dst}, {lo}", f"s_mov_b32 s{dst+1}, {hi}", f"s_mov_b32 s{dst+2}, {size}", f"s_mov_b32 s{dst+3}, 0x20000")


class Gen:
    def __init__(self, opt):
        self.o = dict(unp=4, barit=1, stamps=False, force_fb=False, prefetch=True, prio=True, dbgspan=0, hst=1, sh=1, nj=9, own1=0, l01=0, sched=1, dbl=0, xe1=0, x1l=0, pw=0, ks2=0, binv=0, z2=1, vexec=0, ga=1, tp=1, x2j=31, amps=0, p1=2, p2=5, p3=7, lo0=0, lo1=0, ka=2, lnorm=1, xper=3, dly=0, d0l=1, pre=3, xe=0, sigb2=1, tre=1, badv0=0, shard=1, nslow=64, spf=0, avg=0, xcc=1, xp=0, outf=0, of=0, ampa=0, ampb=0, ampk=0, set=0, nb=5, kv1=6, pd=2, win=3, t1=7, t2=9, sb=18)
        self.o.update(opt)
        self.a = A()
        self.nst = 0

    def stamp(self, i, st=0):
        if i not in (0, 7) and st != self.o['set']:
            return
        if self.o['stamps'] or self.o['dbgspan'] or self.o['ampk']:
            cyc = self.o['stamps'] == 2 or self.o['ampk'] < 0
            self.a(f"{'s_memtime' if cyc else 's_memrealtime'} s[{S_ST+2*i}:{S_ST+2*i+1}]")

    def dump_stamps(self):
        if self.o['dbgspan']:
            a = self.a
            n = self.nst = self.nst + 1
            a("s_waitcnt lgkmcnt(0)", f"s_cmp_lg_u32 s{S_I}, 0", f"s_cbranch_scc1 L_nodump{n}", "s_mov_b64 exec, 1", "v_mov_b32 v8, 0", f"s_not_b32 s{S_T0}, s{S_ST}", f"v_mov_b32 v9, s{S_T0}",
              f"buffer_atomic_umax v9, v8, s[{R_DBG}:{R_DBG+3}], 0 offen offset:8 sc1")
            for k, i in enumerate((0, 1, 3, 6, 7, 5) if n == 2 else (1, 2, 4, 5, 6, 7)):
                a(f"v_mov_b32 v{10+k}, s{S_ST+2*i}", f"buffer_atomic_umax v{10+k}, v8, s[{R_DBG}:{R_DBG+3}], 0 offen offset:{(12 if n == 2 else 36)+4*k} sc1")
            a(f"L_nodump{n}:")
            return
        if not self.o['stamps']:
            return
        a = self.a
        a("s_waitcnt lgkmcnt(0)", f"s_lshl_b32 s{S_T0}, s2, 3", f"s_add_u32 s{S_T0}, s{S_T0}, s{S_WAVE}", f"s_lshl_b32 s{S_T0}, s{S_T0}, 6",
          f"s_mul_i32 s{S_T1}, s{S_B}, {WS_BR}", f"s_sub_u32 s{S_T0}, s{S_T0}, s{S_T1}", f"s_add_u32 s{S_T0}, s{S_T0}, {WS_STAMP}",
          f"s_mov_b32 s{R_WS+2}, 0x2000000", "v_mov_b32 v8, 0")
        for i in range(4):
            for k in range(4):
                a(f"v_mov_b32 v{12+k}, s{S_ST+4*i+k}")
            a(f"buffer_store_dwordx4 v[12:15], v8, s[{R_WS}:{R_WS+3}], s{S_T0} offen offset:{16*i}", "s_nop 1")

    def kv_dma(self, p0, n):
        a = self.a
        for k in range(n):
            a(f"s_add_u32 m0, s{S_M0A}, {L_KV + (p0 + 4*k)*1024}", f"s_add_u32 s{S_T0}, s{S_KVS}, 4096",
              f"buffer_load_dwordx4 v1, s[{R_WS}:{R_WS+3}], s{S_KVS} offen sc1 lds",
              f"s_cmp_ge_u32 s{S_T0}, {KVB}", f"s_cselect_b32 s{S_T1}, {KVB}, 0", f"s_sub_u32 s{S_KVS}, s{S_T0}, s{S_T1}")

    def row_max16(self, v):
        a = self.a
        for k in (8, 4, 2, 1):
            a("s_nop 1", f"v_max_f32_dpp v{v}, v{v}, v{v} row_ror:{k} row_mask:0xf bank_mask:0xf")

    def rest_srds(self):
        a = self.a
        a(f"s_mov_b32 s{R_WO+2}, 663552", f"s_mov_b32 s{R_WO+3}, 0x20000",
          f"s_mul_i32 s{S_T0}, s{S_B}, {WS_BR}", f"s_add_u32 s{R_WS}, s40, s{S_T0}", f"s_addc_u32 s{R_WS+1}, s41, 0",
          f"s_mov_b32 s{R_WS+2}, {WS_OEX + 32*OEX_G}", f"s_mov_b32 s{R_WS+3}, 0x20000")
        srd(a, R_OUT, "s36", "s37", 4718592)
        srd(a, R_DBG, "s38", "s39", 256)

    def norm2(self, x, y):
        a = self.a
        for j in range(4):
            for (qm, qr, dst, tmp) in (x, y):
                a(f"v_dot2_f32_bf16 v{dst}, v{qm+j}, v{qm+j}, {'0' if j == 0 else 'v%d' % dst}",
                  f"v_dot2_f32_bf16 v{tmp}, v{qm+4+j}, v{qm+4+j}, {'0' if j == 0 else 'v%d' % tmp}")
        a("s_nop 0", f"v_permlane32_swap_b32 v{x[2]}, v{x[3]}", "s_nop 0", f"v_permlane32_swap_b32 v{y[2]}, v{y[3]}",
          f"v_add_f32 v{x[2]}, v{x[2]}, v{x[3]}", f"v_add_f32 v{y[2]}, v{y[2]}, v{y[3]}",
          f"v_dot2_f32_bf16 v{x[2]}, v{x[1]}, v{x[1]}, v{x[2]}", f"v_dot2_f32_bf16 v{y[2]}, v{y[1]}, v{y[1]}, v{y[2]}", "s_nop 1",
          f"v_sqrt_f32 v{x[2]}, v{x[2]}", f"v_sqrt_f32 v{y[2]}, v{y[2]}")

    def norm1(self, qm, qr, dst, tmp):
        a = self.a
        for j in range(4):
            a(f"v_dot2_f32_bf16 v{dst}, v{qm+j}, v{qm+j}, {'0' if j == 0 else 'v%d' % dst}",
              f"v_dot2_f32_bf16 v{tmp}, v{qm+4+j}, v{qm+4+j}, {'0' if j == 0 else 'v%d' % tmp}")
        a("s_nop 2", f"v_permlane32_swap_b32 v{dst}, v{tmp}", "s_nop 0", f"v_add_f32 v{dst}, v{dst}, v{tmp}",
          f"v_dot2_f32_bf16 v{dst}, v{qr}, v{qr}, v{dst}", "s_nop 2", f"v_sqrt_f32 v{dst}, v{dst}")

    def init_main_regs(self):
        a = self.a
        a(f"v_mov_b32 v{KR[0]+1}, 0x3f803f80", f"v_mov_b32 v{KR[1]+1}, 0x3f803f80")
        for r in range(O[0], O[0] + 32):
            a(f"v_mov_b32 v{r}, 0")
        for r in range(S[1] + 24, S[1] + 32):
            a(f"v_mov_b32 v{r}, 0")
        if self.o['vexec']:
            self.init_v()
            self.loader_flag()
        else:
            a([f"v_mov_b32 v{r}, 0" for r in range(VV[1][1], VV[1][1] + 4)])

    def ldKm(self, kb):
        return [f"ds_read_b128 {vr(KM[kb%2],4)}, v{V_AK} offset:{(kb//2)*PB+(kb%2)*1024}"]

    def ldKr(self, p):
        return [f"ds_read_b32 v{KR[p%2]}, v{V_AR} offset:{p*PB}"]

    def ldV(self, kb):
        x = [f"ds_read_b128 {vr(VV[kb%2][i],4)}, v{V_AV} offset:{(kb//2)*PB+((kb%2)*2+i)*VG}" for i in range(2)]
        if self.o['vexec']:
            x = [f"s_mov_b64 exec, s[{S_VM}:{S_VM+1}]"] + x + ["s_mov_b64 exec, -1"]
        return x

    def init_v(self):
        a = self.a
        m = sum(1 << r for r in G0 + G1)
        a(f"s_mov_b32 s{S_VM}, {hex(m)}", f"s_mov_b32 s{S_VM+1}, {hex(m)}", "s_mov_b32 vcc_lo, 0x220000", "s_mov_b32 vcc_hi, 0x220000",
          f"v_mov_b32 v{VV[0][0]}, 0x3f803f80", f"v_cndmask_b32 v{VV[0][0]}, 0, v{VV[0][0]}, vcc")
        a([f"v_mov_b32 v{VV[0][0]+k}, v{VV[0][0]}" for k in range(1, 16)])

    def qk(self, dst, kb, pr):
        return [B2(dst, KR[(kb//2) % 2], QRS[pr], kb % 2), K16(dst, KM[kb % 2], QMS[2*pr]), K16(dst + 16, KM[kb % 2], QMS[2*pr+1])]

    def main_prologue_loads(self):
        self.a(self.ldKr(0), self.ldKm(0), self.ldKm(1), self.ldV(0))

    def start(self):
        a, o = self.a, self.o
        a("s_cmp_ge_u32 s2, 256", "s_cbranch_scc1 L_end")
        a("s_load_dwordx16 s[16:31], s[0:1], 0", "s_load_dwordx8 s[32:39], s[0:1], 64", "s_load_dwordx2 s[40:41], s[0:1], 96")
        self.stamp(0)
        a("s_getpc_b64 s[42:43]", "L_pc:")
        a("v_lshrrev_b32 v1, 6, v0", "v_and_b32 v0, 63, v0", f"v_readfirstlane_b32 s{S_WAVE}, v1", "v_lshlrev_b32 v1, 4, v0",
          f"s_lshr_b32 s{S_T2}, s2, 3", f"s_and_b32 s{S_B}, s2, 1", f"s_and_b32 s{S_HG}, s{S_T2}, 3", f"s_lshr_b32 s{S_GI}, s2, 5")
        if o['binv']:
            a(f"s_xor_b32 s{S_B}, s{S_B}, 1")
        if o['prefetch']:
            a(f"s_cmp_lg_u32 s{S_WAVE}, 7", "s_cbranch_scc1 L_nopf", f"s_cmp_ge_u32 s{S_T2}, (L_codeend-{NAME})/1024", "s_cbranch_scc1 L_nopf",
              f"s_lshl_b32 s{S_T2}, s{S_T2}, 10", f"s_sub_u32 s{S_T0}, s42, L_pc-{NAME}", f"s_subb_u32 s{S_T1}, s43, 0",
              f"s_add_u32 s{S_T0}, s{S_T0}, s{S_T2}", f"s_addc_u32 s{S_T1}, s{S_T1}, 0",
              f"v_mov_b32 v7, s{S_T1}", f"v_add_co_u32 v6, vcc, s{S_T0}, v1", "s_nop 1", "v_addc_co_u32 v7, vcc, 0, v7, vcc", "s_nop 0",
              "global_load_dwordx4 v[24:27], v[6:7], off", "L_nopf:")
        a(f"s_bfe_u32 s{S_PG}, s2, 0x20001", f"s_lshl_b32 s{S_PG}, s{S_PG}, 3", f"s_add_u32 s{S_PG}, s{S_PG}, s{S_GI}",
          f"s_and_b32 s{S_I}, s{S_WAVE}, 3", f"s_and_b32 s{S_PBI}, s{S_WAVE}, 1", f"s_lshr_b32 s{S_HQ}, s{S_I}, 1")
        a("v_lshrrev_b32 v8, 3, v0", "v_lshrrev_b32 v9, 4, v0", f"s_lshl_b32 s{S_T0}, s{S_PBI}, 2", f"v_or_b32 v9, s{S_T0}, v9",
          "v_and_b32 v10, 7, v0", "v_xor_b32 v9, v9, v10", "v_lshlrev_b32 v9, 4, v9", "v_mov_b32 v10, 0x480", "v_mad_u32_u24 v8, v8, v10, v9",
          f"s_lshl_b32 s{S_T0}, s{S_I}, 6", f"v_add_u32 v9, s{S_T0}, v0", "v_mul_u32_u24 v10, 0xab, v9", "v_lshrrev_b32 v10, 9, v10", "v_mul_u32_u24 v10, 12, v10",
          "v_lshlrev_b32 v9, 4, v9", "v_sub_u32 v9, v9, v10")
        a(f"s_and_b32 s{S_T4}, s{S_HG}, 2", f"s_lshl_b32 s{S_T4}, s{S_T4}, 1", f"s_add_u32 s{S_T4}, s{S_T4}, s{S_I}",
          f"s_lshl_b32 s{S_T5}, s{S_PG}, 3", f"s_add_u32 s{S_XB}, s{S_T5}, s{S_T4}", f"s_mul_i32 s{S_XB}, s{S_XB}, {8*1152}",
          f"s_mul_i32 s{S_XM}, s{S_T4}, 9216", f"s_add_u32 s{S_XM}, s{S_XM}, {L_X}", f"s_lshl_b32 s{S_T0}, s{S_I}, 10", f"s_add_u32 s{S_T0}, s{S_T0}, {L_W}",
          f"s_lshr_b32 s{S_T1}, s{S_HG}, 1", f"s_movk_i32 s{S_DI}, 3072", f"s_movk_i32 s{S_DS}, 2304",
          f"s_cmp_lt_u32 s{S_WAVE}, 4", "s_cselect_b64 vcc, -1, 0", f"s_cselect_b32 s{S_XB}, s{S_XB}, 0", f"s_cselect_b32 s{S_XM}, s{S_XM}, s{S_T0}",
          f"s_cselect_b32 s{S_T1}, s{S_HG}, s{S_T1}", f"s_cselect_b32 s{S_DI}, 1024, s{S_DI}", f"s_cselect_b32 s{S_DS}, 128, s{S_DS}",
          "v_cndmask_b32 v9, v9, v8, vcc")
        self.dma9_setup(S_T1)
        a("s_waitcnt lgkmcnt(0)", f"s_cmp_eq_u32 s{S_B}, 0", f"s_cselect_b64 s[{R_X}:{R_X+1}], s[16:17], s[26:27]",
          f"s_cselect_b64 s[20:21], s[20:21], s[30:31]", f"s_cselect_b64 s[22:23], s[22:23], s[32:33]",
          f"s_cselect_b64 s[{R_WQ}:{R_WQ+1}], s[18:19], s[28:29]", f"s_cselect_b64 s[{R_WO}:{R_WO+1}], s[24:25], s[34:35]",
          f"s_bitcmp0_b32 s{S_HG}, 0", f"s_cselect_b64 s[{R_W}:{R_W+1}], s[20:21], s[22:23]", f"s_mov_b32 s{R_X+2}, 2359296", f"s_movk_i32 s{R_W+2}, 20736",
          f"s_cmp_lt_u32 s{S_WAVE}, 4", f"s_cselect_b64 s[{R_W}:{R_W+1}], s[{R_X}:{R_X+1}], s[{R_W}:{R_W+1}]", f"s_cselect_b32 s{R_W+2}, s{R_X+2}, s{R_W+2}",
          f"s_mov_b32 s{R_W+3}, 0x20000", f"s_mov_b32 s{R_X+3}, 0x20000")
        self.stamp(1, 2)
        a(f"s_cmp_lt_u32 s{S_WAVE}, 4", "s_cbranch_scc1 L_r1", "s_setprio 1", f"s_cmp_eq_u32 s{S_WAVE}, 7", "s_cbranch_scc1 L_late", "L_r1:")
        self.dma9(R_W, 9)
        a(f"s_cmp_ge_u32 s{S_WAVE}, 4", "s_cbranch_scc1 L_late")

    def wq_prefetch(self, n, first):
        a = self.a
        a(f"s_mov_b32 s{R_WQ+2}, 663552", f"s_mov_b32 s{R_WQ+3}, 0x20000", "v_lshlrev_b32 v30, 7, v0", f"s_lshr_b32 s{S_T0}, s2, 3", f"s_mul_i32 s{S_T0}, s{S_T0}, 20736")
        if first:
            a(f"s_mul_i32 s{S_T1}, s{first}, 6912", f"s_add_u32 s{S_T0}, s{S_T0}, s{S_T1}")
        a("s_mov_b32 exec_hi, 0x3fffff")
        for k in range(n):
            a(f"buffer_load_dword v{108+k}, v30, s[{R_WQ}:{R_WQ+3}], s{S_T0} offen", f"s_add_u32 s{S_T0}, s{S_T0}, 6912")
        a("s_mov_b32 exec_hi, -1")

    def dma9_setup(self, sel):
        self.a(f"s_bitcmp1_b32 s{sel}, 0", f"s_cselect_b32 s{S_XI}, 5, 0",
               f"s_add_u32 s{S_XS}, s{S_XI}, s{S_GI}", f"s_cmp_ge_u32 s{S_XS}, 9", f"s_cselect_b32 s{S_T0}, 9, 0", f"s_sub_u32 s{S_XS}, s{S_XS}, s{S_T0}",
               f"s_mul_i32 s{S_XS}, s{S_XS}, s{S_DS}", f"s_mul_i32 s{S_XI}, s{S_XI}, s{S_DI}", f"s_mul_i32 s{S_LI}, s{S_DI}, 9", f"s_mul_i32 s{S_LS}, s{S_DS}, 9")

    def dma9(self, srd_, v):
        for i in range(9):
            self.a(f"s_add_u32 m0, s{S_XM}, s{S_XI}", f"s_add_u32 s{S_T3}, s{S_XB}, s{S_XS}",
                   f"buffer_load_dwordx4 v{v}, s[{srd_}:{srd_+3}], s{S_T3} offen lds")
            if i < 8:
                self.a(f"s_add_u32 s{S_XS}, s{S_XS}, s{S_DS}", f"s_cmp_eq_u32 s{S_XS}, s{S_LS}", f"s_cselect_b32 s{S_XS}, 0, s{S_XS}",
                       f"s_add_u32 s{S_XI}, s{S_XI}, s{S_DI}", f"s_cmp_eq_u32 s{S_XI}, s{S_LI}", f"s_cselect_b32 s{S_XI}, 0, s{S_XI}")

    def table_load(self):
        self.a(f"s_add_u32 s{S_T0}, s42, L_table-L_pc", f"s_addc_u32 s{S_T1}, s43, 0",
               f"v_mov_b32 v7, s{S_T1}", f"v_add_co_u32 v6, vcc, s{S_T0}, v1", "s_nop 1", "v_addc_co_u32 v7, vcc, 0, v7, vcc", "s_nop 0",
               "global_load_dwordx4 v[20:23], v[6:7], off")

    def wq_setup(self, d, part=3):
        a = self.a
        if part & 1:
            a(f"s_mov_b32 s{R_WQ+2}, 663552", f"s_mov_b32 s{R_WQ+3}, 0x20000", f"s_lshl_b32 s{S_T0}, s{S_I}, 6", f"s_mul_i32 s{S_T1}, s{S_HG}, 288", "v_mov_b32 v16, 0x480")
        for t in range(3 if part & 1 else 0):
            a(f"v_add_u32 v13, s{S_T0}, v0", "v_mul_u32_u24 v14, 0xe39, v13", "v_lshrrev_b32 v14, 16, v14",
              "v_mul_u32_u24 v15, 18, v14", "v_sub_u32 v13, v13, v15", "v_lshlrev_b32 v13, 4, v13",
              "v_bfe_u32 v15, v14, 1, 2", "v_and_b32 v17, 1, v14", "v_lshl_add_u32 v15, v17, 2, v15", "v_and_b32 v14, 24, v14", "v_add_u32 v14, v14, v15",
              "v_mad_u32_u24 v13, v14, v16, v13", f"v_add_u32 v{10+t}, s{S_T1}, v13")
            if t < 2:
                a(f"s_add_u32 s{S_T0}, s{S_T0}, 192")
        if not part & 2:
            return
        a(f"s_lshl_b32 s{S_M0A}, s{S_I}, 10", f"s_mul_i32 s{S_ROW}, s{S_GI}, {64*1152}")
        if d:
            a(f"s_add_u32 s{S_ROW}, s{S_ROW}, {32*d*1152}", f"s_cmp_ge_u32 s{S_ROW}, {576*1152}",
              f"s_cselect_b32 s{S_T0}, {576*1152}, 0", f"s_sub_u32 s{S_ROW}, s{S_ROW}, s{S_T0}")

    def wq_list(self, d):
        n = self.nlab = getattr(self, 'nlab', 0) + 1
        s0 = dslot(d)
        ld = lambda r: f"buffer_load_dwordx4 v{r}, s[{R_WQ}:{R_WQ+3}], s{S_ROW} offen lds"
        return [f"s_cbranch_vccz L_wq{n}",
                f"s_add_u32 m0, s{S_M0A}, {s0}", f"s_add_u32 s{S_T0}, s{S_ROW}, {32*1152}", ld(10),
                f"s_add_u32 m0, s{S_M0A}, {s0+3072}", "s_nop 0", ld(11),
                f"s_add_u32 m0, s{S_M0A}, {s0+6144}", f"s_cmp_ge_u32 s{S_T0}, {576*1152}", ld(12),
                f"s_cselect_b32 s{S_T1}, {576*1152}, 0", f"s_sub_u32 s{S_ROW}, s{S_T0}, s{S_T1}", f"L_wq{n}:"]

    def wq_dma(self, d):
        self.a(self.wq_list(d))

    def loader_flag(self):
        self.a(f"s_cmp_lt_u32 s{S_I}, 3", "s_cselect_b64 vcc, -1, 0")

    @property
    def GROUPS(self):
        if self.o['pre'] == 5:
            return [(3, 2), (5, 6), (7, 10), (9, 14), (11, 18), (13, 22), (15, 26), (17, 30)]
        if self.o['pre'] == 1:
            return [(3, 2), (5, 6), (7, 10), (9, 14), (11, 18), (13, 22), (15, 26), (17, 30)]
        if self.o['pre'] == 2:
            return [(2, 2), (3, 4), (5, 6), (7, 10), (9, 14), (11, 18), (13, 22), (15, 26), (17, 30)]
        return [(3, 2), (5, 6), (7, 10), (9, 14), (11, 18), (13, 22), (15, 26), (17, 30)]

    def early_front(self):
        a, o = self.a, self.o
        self.stamp(2, 2)
        if o['spf'] == 5:
            a(f"s_cmp_lg_u32 s{S_WAVE}, 3", "s_cbranch_scc1 L_nospf", "s_waitcnt vmcnt(6)")
            self.wq_prefetch(3, None)
            a("L_nospf:")
        self.table_load()
        self.wq_setup(o['l01'])
        self.loader_flag()
        if not o['d0l']:
            self.wq_dma(0)
        self.rest_srds()
        a("v_and_b32 v16, 31, v0", "v_lshrrev_b32 v13, 5, v0", "v_bfe_u32 v14, v0, 1, 3", "v_xor_b32 v13, v13, v14", "v_lshlrev_b32 v13, 4, v13",
          "v_and_b32 v14, 7, v0", "v_lshl_add_u32 v13, v14, 7, v13", "v_lshrrev_b32 v16, 3, v16", "v_mul_u32_u24 v16, 0x2400, v16",
          f"s_mul_i32 s{S_T0}, s{S_PBI}, {4*9216}", f"s_add_u32 s{S_T0}, s{S_T0}, {L_X}", f"v_add3_u32 v8, v16, v13, s{S_T0}",
          "v_xor_b32 v9, 32, v8", "v_xor_b32 v108, 64, v8", "v_xor_b32 v109, 0x60, v8")
        a("v_bfe_u32 v18, v0, 2, 2", "v_lshrrev_b32 v15, 5, v0", "v_lshlrev_b32 v15, 2, v15", "v_add_u32 v15, v15, v18", "v_mul_u32_u24 v15, 0x240, v15",
          f"s_mul_i32 s{S_T0}, s{S_HQ}, 144", "v_and_b32 v13, 1, v0", "v_lshl_add_u32 v15, v13, 4, v15", f"v_add_u32 v15, s{S_T0}, v15",
          "v_bfe_u32 v13, v0, 1, 1", "v_bfe_u32 v14, v0, 4, 1", "v_lshl_add_u32 v6, v13, 3, v15", "v_lshl_add_u32 v6, v14, 5, v6",
          "v_mul_u32_u24 v13, 72, v13", "v_add3_u32 v7, v13, v15, 48")
        if o['ks2']:
            a(f"s_mul_i32 s{S_T0}, s{S_HQ}, -288", f"s_add_u32 s{S_T0}, s{S_T0}, 144", f"v_mul_i32_i24 v13, s{S_T0}, v14", "v_add_u32 v7, v7, v13")
        elif o['z2']:
            a("v_lshl_add_u32 v7, v14, 20, v7")
        a(f"v_mov_b32 v{V_IDX}, 0xdddddddd", f"v_add_u32 v{V_AK}, {L_KV}, v1", f"v_lshlrev_b32 v{V_AR}, 2, v0", f"v_add_u32 v{V_AR}, {L_KV+2048}, v{V_AR}",
          "v_mov_b32 v110, 0", "v_mov_b32 v111, 0", f"v_mov_b32 v19, {L_KMAX}", f"s_mov_b32 s{S_STG}, 1")
        self.tail_scalars()
        if o['d0l']:
            a("s_waitcnt vmcnt(1)")
        else:
            a(f"s_cmp_eq_u32 s{S_WAVE}, 3", "s_cbranch_scc0 L_e3", f"s_waitcnt vmcnt({4 if o['spf'] == 5 else 1})", "L_e3:", "s_waitcnt vmcnt(4)")
        self.stamp(3, 2)
        a("s_barrier")
        PRE = o['pre']
        for d in range(o['l01'], PRE + 1):
            self.wq_dma(d)
        a(f"s_cmp_eq_u32 s{S_WAVE}, 3", "s_cbranch_scc0 L_e4", "s_waitcnt vmcnt(0)", "L_e4:", f"s_waitcnt vmcnt({3*(PRE-1)})", f"v_mov_b32 v{V_AV}, v20", "v_mov_b32 v21, 0x3f803f80")
        self.stamp(1)
        self.stamp(4, 2)
        a("s_barrier")
        self.stamp(5, 2)
        XF = 112
        T0, T1, TR, TR2 = 24, 40, 56, 128
        KX = 26
        PD = o['pd']
        FB = [72, 84, 96]
        state = dict(base=0)

        def rd(ks):
            x = []
            off = slot_addr(ks) - state['base']
            if off < 0 or off + 360 > 65535:
                d = slot_addr(ks) - state['base']
                x += [f"v_add_u32 v{r}, {d}, v{r}" if d > 0 else f"v_subrev_u32 v{r}, {-d}, v{r}" for r in (6, 7)]
                state['base'] = slot_addr(ks)
                off = 0
            f = FB[ks % (PD + 1)]
            return x, [f"ds_read_b64_tr_b16 {vr(f,2)}, v6 offset:{off}", f"ds_read_b64_tr_b16 {vr(f+2,2)}, v6 offset:{off+288}",
                       f"ds_read_b64_tr_b16 {vr(f+4,2)}, v6 offset:{off+72}", f"ds_read_b64_tr_b16 {vr(f+6,2)}, v6 offset:{off+360}",
                       f"ds_read_b64_tr_b16 {vr(f+8,2)}, v7 offset:{off}", f"ds_read_b64_tr_b16 {vr(f+10,2)}, v7 offset:{off+288}"]

        def mm(ks, first2):
            f = FB[ks % (PD + 1)]
            c = "0" if ks == 0 else None
            if o['ks2'] and ks >= KX:
                m2 = K16(TR2, f + 8, XF + 4 * ks, vr(TR, 16) if ks == KX else None)
            else:
                m2 = K16(TR, f + 8, XF + 4 * ks, "0" if first2 else None)
            return [K16(T0, f, XF + 4 * ks, c), K16(T1, f + 4, XF + 4 * ks, c), m2]

        def kloop(par):
            state['base'] = 0
            nt = lambda ks: 2 if (o['ks2'] and ks < KX and ks % 2 != par) else 3
            XA = [8, 9, 108, 109]
            q = []

            def issue(tag, ins):
                a(ins)
                q.append(tag)

            def need(*tags):
                last = max((i for i, t in enumerate(q) if t in tags), default=-1)
                if last >= 0:
                    left = len(q) - 1 - last
                    a(f"s_waitcnt lgkmcnt({min(left, 14)})")
                    del q[:last + 1]

            def xrd(i):
                issue(('x', i), f"ds_read_b128 {vr(XF+4*i,4)}, v{XA[i&3]} offset:{(i>>2)*1024}")
            xrd(0)
            for j, r in enumerate(rd(0)[1][:2*nt(0)]):
                issue(('w', 0, j >> 1), r)
            xrd(1)
            for j, r in enumerate(rd(1)[1][:2*nt(1)]):
                issue(('w', 1, j >> 1), r)
            nx = 2
            G = [k for _, k in self.GROUPS]
            ev = {k: ["s_barrier"] for k in G}
            prev = 1
            for last, k in self.GROUPS:
                if prev < PRE:
                    ev[k] = [f"s_waitcnt vmcnt({3*max(PRE-last, 0)})", "s_barrier"]
                prev = last
            for ks in range(36):
                m = mm(ks, ks == par)
                if ks in ev:
                    if ks == 6:
                        need(('x', 35))
                        assert nx == 36 and not any(t[0] == 'x' for t in q)
                    if len(ev[ks]) > 1 and o["stamps"]:
                        a(ev[ks][0])
                    if ks in (2, 6, 10, 14, 22, 30):
                        self.stamp(1 + (2, 6, 10, 14, 22, 30).index(ks), 3)
                    if ks == 30:
                        need('e')
                    a(ev[ks])
                    if ks == 6:
                        self.stamp(2)
                        self.stamp(6, 2)
                pre, n = rd(ks + 2) if ks + 2 < 36 else ([], [])
                fine = nx < 36 or ks == 35
                if not fine:
                    need(('x', ks), ('w', ks, nt(ks) - 1))
                for t in range(3):
                    if t < nt(ks):
                        if fine:
                            need(('x', ks), ('w', ks, t))
                        a(m[t])
                    if t == 0:
                        a(pre)
                    for k in range(o['xper']):
                        if nx < 36:
                            xrd(nx)
                            nx += 1
                    if t < nt(ks + 2):
                        for r in n[2*t:2*t+2]:
                            issue(('w', ks + 2, t), r)
                if o['ks2'] and ks == KX + 2:
                    issue('e', f"ds_write_b128 v13, {vr(TR+8,4)}")
                    issue('e', f"ds_write_b128 v13, {vr(TR+12,4)} offset:1024")
                if o['ks2'] and ks == 31:
                    issue('i', f"ds_read_b128 {vr(XF,4)}, v14")
                    issue('i', f"ds_read_b128 {vr(XF+4,4)}, v14 offset:1024")
            assert not [t for t in q if t != 'i'] and True
            need('i')
        if o['ks2']:
            a(f"s_mul_i32 s{S_T0}, s{S_WAVE}, 2048", f"s_add_u32 s{S_T0}, s{S_T0}, {L_T2X}", f"v_add_u32 v13, s{S_T0}, v1", "v_xor_b32 v14, 0x1000, v13",
              f"s_cmp_eq_u32 s{S_HQ}, 1", "s_cbranch_scc1 L_kodd")
            kloop(0)
            a("s_branch L_kdone", "L_kodd:")
            kloop(1)
            a("L_kdone:")
        else:
            kloop(0)
        self.stamp(3)
        self.stamp(3, 6)
        a("v_mov_b32 v7, v19", f"v_mov_b32 v{KR[0]+1}, 0x3f803f80", f"s_mov_b32 s{S_BAR}, {32//o['unp'] - 1}", "s_mov_b32 vcc_lo, 0", "s_mov_b32 vcc_hi, -1", "s_nop 2")
        for (dst, t) in ((QM[0], T0), (QM2[0], T1)):
            for j, r in enumerate((0, 2, 4, 6, 10, 12, 14)):
                a(f"v_cvt_pk_bf16_f32 v{dst+j}, v{t+r}, v{t+r+1}")
        for (dst, qr, t, t2, tmp) in ((QM[0], QR, T0, TR, 108), (QM2[0], QR2, T1, TR + 4, 107)):
            a(f"v_cvt_pk_bf16_f32 v{dst+7}, v{t2}, v{t2+1}", f"v_cvt_pk_bf16_f32 v{qr}, v{t+8}, v{t+9}", f"v_cvt_pk_bf16_f32 v{tmp}, v{t2+2}, v{t2+3}")
        a(f"v_cndmask_b32 v{QR}, v{QR}, v108, vcc", f"v_cndmask_b32 v{QR2}, v{QR2}, v107, vcc")
        a([K8Z(x, 110) for x in (O2[1], O[0])])
        self.stamp(1, 6)
        a("s_barrier")
        self.stamp(2, 6)
        a("ds_read_b32 v6, v7")
        self.main_prologue_loads()
        self.norm2((QM[0], QR, QR + 1, 108), (QM2[0], QR2, QR2 + 1, 107))
        a([K8Z(x, 110) for x in (O[1], O2[0])])
        a([f"v_mov_b32 v{r}, 0" for r in range(VV[1][1], VV[1][1] + 4)])
        a("s_setprio 1", "s_waitcnt lgkmcnt(0)")

    def late_front(self):
        a, o = self.a, self.o
        a.label("L_late")
        a("s_setprio 0")
        if o['spf'] == 3:
            a(f"s_cmp_lg_u32 s{S_WAVE}, 7", "s_cbranch_scc1 L_nospf")
            self.wq_prefetch(3, None)
            a("L_nospf:")
        if o['spf'] == 4:
            a(f"s_cmp_eq_u32 s{S_WAVE}, 7", "s_cbranch_scc1 L_nospf")
            self.wq_prefetch(1, S_I)
            a("L_nospf:")
        self.stamp(2, 2)
        self.rest_srds()
        if o['shard']:
            a("v_and_b32 v160, 7, v0", "v_lshlrev_b32 v160, 9, v160", f"s_cmp_lg_u32 s{S_WAVE}, 7", "s_cbranch_scc1 L_nov0", f"s_mov_b32 s{S_T0}, {WS_CNT}",
              f"buffer_load_dword v161, v160, s[{R_WS}:{R_WS+3}], s{S_T0} offen sc0 sc1", "L_nov0:")
        self.wq_setup(6, 1)
        a(f"s_xor_b32 s{S_T4}, s{S_T4}, 4", f"s_add_u32 s{S_XB}, s{S_T5}, s{S_T4}", f"s_mul_i32 s{S_XB}, s{S_XB}, {8*1152}",
          f"s_mul_i32 s{S_XM}, s{S_T4}, 9216", f"s_add_u32 s{S_XM}, s{S_XM}, {L_X}", f"s_movk_i32 s{S_DI}, 1024", f"s_movk_i32 s{S_DS}, 128")
        a("v_and_b32 v13, 15, v0", "v_lshrrev_b32 v16, 4, v0",
          "v_bfe_u32 v17, v0, 1, 3", "v_xor_b32 v17, v16, v17", "v_lshlrev_b32 v17, 4, v17",
          "v_and_b32 v18, 7, v0", "v_lshl_add_u32 v17, v18, 7, v17", "v_bfe_u32 v18, v0, 3, 1", "v_mul_u32_u24 v18, 0x2400, v18",
          f"s_lshr_b32 s{S_T0}, s{S_HG}, 1", f"s_lshl_b32 s{S_T0}, s{S_T0}, 1", f"s_add_u32 s{S_T0}, s{S_T0}, s{S_PBI}",
          f"s_mul_i32 s{S_T1}, s{S_T0}, {2*9216}", f"s_add_u32 s{S_T1}, s{S_T1}, {L_X}", f"v_add3_u32 v14, v17, v18, s{S_T1}", "v_xor_b32 v15, 64, v14",
          "v_bfe_u32 v17, v0, 2, 2", "v_lshl_add_u32 v17, v16, 3, v17",
          "v_mul_u32_u24 v17, 48, v17", "v_and_b32 v18, 3, v0", "v_lshlrev_b32 v18, 3, v18",
          f"s_cmp_eq_u32 s{S_HQ}, 0", "s_cselect_b64 vcc, -1, 0", "v_mov_b32 v19, 32", "v_cndmask_b32 v18, v19, v18, vcc", f"v_add_u32 v17, {L_W}, v17", "v_add_u32 v17, v17, v18")
        a("v_lshrrev_b32 v19, 5, v0", "v_lshlrev_b32 v19, 9, v19", "v_lshl_add_u32 v19, v13, 4, v19",
          "v_bfe_u32 v18, v0, 4, 1", "v_lshl_add_u32 v28, v18, 3, v19", "v_lshlrev_b32 v29, 2, v13",
          f"s_mul_i32 s{S_KVS}, s{S_PG}, {PB}", f"s_mov_b32 s{S_OEX}, s{S_T0}")
        self.dma9_setup(S_HG)
        self.dma9(R_X, 8)
        self.stamp(3, 2)
        self.table_load()
        if o['spf'] == 2:
            a(f"s_cmp_lg_u32 s{S_WAVE}, 7", "s_cbranch_scc1 L_nospf")
            self.wq_prefetch(3, None)
            a("L_nospf:")
        if o['l01']:
            self.wq_setup(0, 2)
            self.loader_flag()
            for d in range(o['l01']):
                self.wq_dma(d)
        a("s_setprio 1", f"s_waitcnt vmcnt({10 + 3 * o['l01']})")
        self.stamp(1)
        self.stamp(4, 2)
        a("s_barrier")
        a(f"s_bitcmp1_b32 s{S_HG}, 0", "s_cbranch_scc1 L_vproj")
        D = 32
        NB = o['nb']
        for isv in (0, 1):
            if isv:
                a.label("L_vproj")

            def rd(s):
                xb = 40 + 8 * (s % NB)
                return [f"ds_read_b128 {vr(xb,4)}, v{14+(s&1)} offset:{(s>>1)*1024}",
                        f"ds_read_b64_tr_b16 {vr(xb+4,2)}, v17 offset:{s*1536}", f"ds_read_b64_tr_b16 {vr(xb+6,2)}, v17 offset:{s*1536+192}"]
            for s in range(NB - 1):
                a(rd(s))
            for s in range(18):
                if s == o['sb']:
                    a("s_waitcnt vmcnt(0)", "s_barrier")
                if s == 17 and o['sb'] == 18 and not o['l01']:
                    a("s_waitcnt vmcnt(0)")
                if s + NB - 1 < 18:
                    a(rd(s + NB - 1))
                left = min(18 - 1 - s, NB - 1)
                xb = 40 + 8 * (s % NB)
                c = "0" if s == 0 else None
                a(f"s_waitcnt lgkmcnt({min(15,3*left)})", M16(D, xb, xb + 4, c) if isv else M16(D, xb + 4, xb, c))
            g = S_OEX
            if not isv:
                a(f"s_lshr_b32 s{S_T0}, s{g}, 1", f"s_lshl_b32 s{S_T0}, s{S_T0}, 10", f"s_lshl_b32 s{S_T1}, s{S_PBI}, 8", f"s_add_u32 s{S_T0}, s{S_T0}, s{S_T1}",
                  f"s_add_u32 s{S_T0}, s{S_T0}, s{S_KVS}",
                  f"s_lshl_b32 s{S_T1}, s{g}, 6", f"s_add_u32 s{S_T1}, s{S_T1}, s{S_KVS}", f"s_add_u32 s{S_T1}, s{S_T1}, 2048",
                  f"s_mov_b32 s{S_T2}, {hex(f2u(CSCALE))}")
                for r in range(4):
                    a(f"v_mul_f32 v{D+r}, s{S_T2}, v{D+r}")
                a(f"v_cvt_pk_bf16_f32 v{D}, v{D}, v{D+1}", f"v_cvt_pk_bf16_f32 v{D+1}, v{D+2}, v{D+3}",
                  f"s_lshl_b32 s{S_T3}, s{S_PG}, 2", f"s_add_u32 s{S_T3}, s{S_T3}, s{g}", f"s_lshl_b32 s{S_T3}, s{S_T3}, 2", f"s_add_u32 s{S_T3}, s{S_T3}, {WS_KN}",
                  f"v_dot2_f32_bf16 v36, v{D}, v{D}, 0",
                  f"s_cmp_eq_u32 s{S_HQ}, 0", "s_cbranch_scc0 L_krem",
                  f"buffer_store_dwordx2 {vr(D,2)}, v28, s[{R_WS}:{R_WS+3}], s{S_T0} offen sc1",
                  f"v_dot2_f32_bf16 v36, v{D+1}, v{D+1}, v36", "s_nop 2", "v_mov_b32 v37, v36", "s_nop 1",
                  "v_permlane16_swap_b32 v36, v37", "s_nop 1", "v_add_f32 v36, v36, v37", "s_nop 0", "v_mov_b32 v37, v36", "s_nop 1",
                  "v_permlane32_swap_b32 v36, v37", "s_nop 1", "v_add_f32 v36, v36, v37", "s_branch L_knorm",
                  "L_krem:", "s_mov_b64 exec, 0xffff",
                  f"buffer_store_dword v{D}, v29, s[{R_WS}:{R_WS+3}], s{S_T1} offen sc1", "s_mov_b64 exec, -1", f"s_add_u32 s{S_T3}, s{S_T3}, 512",
                  "L_knorm:", "s_nop 1")
                self.row_max16(36)
                a("v_mov_b32 v37, 0", "s_mov_b64 exec, 1", f"buffer_store_dword v36, v37, s[{R_WS}:{R_WS+3}], s{S_T3} offen sc1", "s_mov_b64 exec, -1")
                if o['l01']:
                    a("s_waitcnt vmcnt(2)")
                a("s_branch L_kvdone")
            else:
                a(f"s_mul_i32 s{S_T0}, s{g}, {VG}", f"s_add_u32 s{S_T0}, s{S_T0}, s{S_KVS}", f"s_add_u32 s{S_T0}, s{S_T0}, 2304",
                  "v_cmp_eq_u32 vcc, 2, v13", f"v_cmp_eq_u32 s[{S_EX}:{S_EX+1}], 3, v13", "v_mov_b32 v30, 0x3f803f80", "s_nop 0",
                  f"s_cmp_eq_u32 s{S_HQ}, 0",
                  f"v_cvt_pk_bf16_f32 v{D}, v{D}, v{D+1}", f"v_cvt_pk_bf16_f32 v{D+1}, v{D+2}, v{D+3}", "s_cbranch_scc0 L_vrem",
                  f"buffer_store_dwordx2 {vr(D,2)}, v21, s[{R_WS}:{R_WS+3}], s{S_T0} offen sc1", "s_branch L_vdone",
                  "L_vrem:",
                  f"v_cndmask_b32 v{D}, v{D}, v30, vcc", f"v_cndmask_b32 v{D+1}, v{D+1}, v30, vcc",
                  f"v_cndmask_b32 v{D}, v{D}, 0, s[{S_EX}:{S_EX+1}]", f"v_cndmask_b32 v{D+1}, v{D+1}, 0, s[{S_EX}:{S_EX+1}]",
                  "s_mov_b32 exec_lo, 0x000f000f", "s_mov_b32 exec_hi, 0x000f000f",
                  f"buffer_store_dwordx2 {vr(D,2)}, v22, s[{R_WS}:{R_WS+3}], s{S_T0} offen sc1", "s_mov_b64 exec, -1", "L_vdone:")
                if o['l01']:
                    a("s_waitcnt vmcnt(1)")
        a.label("L_kvdone")
        if True:
            a("s_getreg_b32 s29, hwreg(HW_REG_XCC_ID, 0, 4)", f"s_cmp_lg_u32 s{S_WAVE}, 4", "s_cbranch_scc1 L_noxid",
              f"s_lshl_b32 s{S_T0}, s{S_PG}, 2", f"s_add_u32 s{S_T0}, s{S_T0}, s{S_HG}", f"s_lshl_b32 s{S_T0}, s{S_T0}, 2", f"s_add_u32 s{S_T0}, s{S_T0}, {WS_XID}",
              "v_mov_b32 v38, s29", "v_mov_b32 v39, 0", "s_mov_b64 exec, 1", f"buffer_store_dword v38, v39, s[{R_WS}:{R_WS+3}], s{S_T0} offen sc1", "s_mov_b64 exec, -1", "L_noxid:")
        self.stamp(2)
        self.stamp(5, 2)
        a(f"v_mov_b32 v{V_AV}, v20")
        self.wq_setup(o['pre'] + 1, 2)
        self.loader_flag()
        a("v_mov_b32 v100, 1", "v_mov_b32 v101, 0")
        if o['sb'] == 18:
            a("s_barrier")
        nxt = first = o['pre'] + 1
        NG = len(self.GROUPS)
        passed = -1
        signalled = False
        for gi_, (last, step) in enumerate(self.GROUPS):
            lim = 5 if passed < 2 else 8 if passed < 6 else 16 if passed < 14 else 17
            tgt = min(last + o['win'], lim)
            while nxt <= tgt:
                self.wq_dma(nxt)
                nxt += 1
            assert nxt > last
            if step == 14:
                self.wo_job_addr(0)
                self.poison_addr()
            if step == 18:
                a(f"s_cmp_ge_u32 s{S_OEX}, {648-512}", "s_cselect_b32 s16, 0, 512", f"s_add_u32 s{S_OEX}, s{S_OEX}, s16")
                self.wo_job_addr(1)
                self.loader_flag()
            if gi_ == NG - 3:
                a(f"s_and_b32 s{S_T0}, s{S_GI}, 3", f"s_mul_i32 s{S_KVS}, s{S_T0}, {37*1024}", f"s_add_u32 s{S_KVS}, s{S_KVS}, s{S_M0A}",
                  "v_lshlrev_b32 v153, 3, v0", f"s_mov_b32 s{S_T4}, {WS_KN}", f"s_lshl_b32 s{S_T5}, s{S_B}, 7")
            sig = last >= first and not signalled
            if sig:
                a(f"s_cbranch_vccnz L_l{gi_}", "s_waitcnt vmcnt(0)", f"L_l{gi_}:")
                signalled = True
            if last >= first:
                a(f"s_waitcnt vmcnt({3*(nxt-1-last)})")
            passed = step
            if step == 10:
                a(f"v_mov_b32 v150, {L_FLAG}", "v_mov_b32 v152, 0", "v_mov_b32 v153, 0", "v_mov_b32 v154, 0", "v_mov_b32 v155, 0", "v_mov_b32 v151, 0", "ds_write_b128 v150, v[152:155]", "s_waitcnt lgkmcnt(0)")
            if gi_ == NG - 3 and o['tre']:
                a("s_cbranch_vccnz L_try1", f"s_mov_b32 s{S_T0}, {WS_CNT}", f"buffer_load_dword v152, v160, s[{R_WS}:{R_WS+3}], s{S_T0} offen sc0 sc1", "L_try1:")
            if gi_ == NG - 2:
                assert nxt == 18
                if o['shard']:
                    a("s_cbranch_vccnz L_try0")
                    if not o['tre']:
                        a(f"s_mov_b32 s{S_T0}, {WS_CNT}", f"buffer_load_dword v152, v160, s[{R_WS}:{R_WS+3}], s{S_T0} offen sc0 sc1")
                    a("s_waitcnt vmcnt(0)",
                      "v_cmp_ne_u32 s[16:17], v152, v161", "s_cmp_eq_u64 s[16:17], 0", "s_cselect_b32 s16, 1, 0", "v_mov_b32 v152, s16", "ds_write_b32 v150, v152", "s_waitcnt lgkmcnt(0)", "L_try0:")
                else:
                    a("s_cbranch_vccnz L_try0", f"buffer_load_dword v152, v151, s[{R_DBG}:{R_DBG+3}], s{S_T5} offen sc0 sc1", "s_waitcnt vmcnt(0)",
                      "v_lshrrev_b32 v152, 7, v152", "ds_write_b32 v150, v152", "s_waitcnt lgkmcnt(0)", "L_try0:")
            if step in (2, 6, 10, 14, 22):
                self.stamp(1 + (2, 6, 10, 14, 22).index(step), 3)
            a("s_barrier")
            if sig:
                self.stamp(3, 9)
                self.kv_signal()
            if gi_ == NG - 2:
                break
        kn = [f"s_cmp_lg_u32 s{S_WAVE}, 7", None, f"buffer_load_dwordx2 v[154:155], v153, s[{R_WS}:{R_WS+3}], s{S_T4} offen sc1",
              f"buffer_load_dwordx2 v[156:157], v153, s[{R_WS}:{R_WS+3}], s{S_T4} offen offset:512 sc1"]
        a("ds_read_b32 v152, v150", "s_waitcnt lgkmcnt(0)", "v_cmp_eq_u32 vcc, 0, v152", "s_cbranch_vccnz L_notyet")
        self.stamp(4)
        self.stamp(4, 9)
        a(kn[0], "s_cbranch_scc1 L_kna", kn[2:], "L_kna:")
        self.kv_dma(0, o['ka'])
        a(f"s_cmp_eq_u32 s{S_WAVE}, 7", "s_cbranch_scc1 L_knb", f"s_waitcnt vmcnt({o['ka']})", "L_knb:")
        self.stamp(6, 3)
        a("s_barrier")
        self.kv_dma(4 * o['ka'], o['kv1'] - o['ka'])
        a("s_branch L_first")
        a("L_notyet:", "s_waitcnt vmcnt(0)")
        self.stamp(6, 3)
        a("s_barrier")
        a(f"s_mov_b32 s{S_CNT}, {SPIN_L}", f"s_cmp_lg_u32 s{S_WAVE}, 7", "s_cbranch_scc1 L_relay", f"s_mov_b32 s{S_CNT}, {SPIN}")
        if o['shard']:
            a(f"s_mov_b32 s{S_T0}, {WS_CNT}", "L_poll1:", f"buffer_load_dword v152, v160, s[{R_WS}:{R_WS+3}], s{S_T0} offen sc0 sc1",
              f"s_cmp_gt_u32 s{S_CNT}, {SPIN - 4}", "s_cbranch_scc1 L_pf", f"s_cmp_lg_u32 s{S_CNT}, {SPIN - o['nslow']}", "s_cbranch_scc1 L_ps",
              "s_mov_b64 exec, 1", f"buffer_atomic_add v100, v101, s[{R_DBG}:{R_DBG+3}], s{S_T5} offen sc1", "s_mov_b64 exec, -1",
              "L_ps:", f"buffer_load_dwordx3 v[162:164], v151, s[{R_DBG}:{R_DBG+3}], s{S_T5} offen sc0 sc1", "s_waitcnt vmcnt(0)",
              "v_lshrrev_b32 v162, 7, v162", "v_or3_b32 v162, v162, v163, v164", "v_cmp_ne_u32 vcc, 0, v162", "s_cbranch_vccnz L_poll1d",
              "L_pf:", f"s_sub_u32 s{S_CNT}, s{S_CNT}, 1", "s_cbranch_scc1 L_poll1d", "s_waitcnt vmcnt(0)", "v_cmp_ne_u32 vcc, v152, v161", "s_cbranch_vccnz L_poll1")
        else:
            a("L_poll1:", f"buffer_load_dword v152, v151, s[{R_DBG}:{R_DBG+3}], s{S_T5} offen sc0 sc1", f"s_sub_u32 s{S_CNT}, s{S_CNT}, 1",
              "s_cbranch_scc1 L_poll1d", "s_waitcnt vmcnt(0)", "v_cmp_gt_u32 vcc, 0x80, v152", "s_cbranch_vccnz L_poll1")
        a("L_poll1d:", "v_mov_b32 v152, 1", "ds_write_b32 v150, v152", kn[2:], "s_branch L_flagok")
        a("L_relay:", "ds_read_b32 v152, v150", f"s_sub_u32 s{S_CNT}, s{S_CNT}, 1", "s_cbranch_scc1 L_flagok", "s_waitcnt lgkmcnt(0)",
          "v_cmp_eq_u32 vcc, 0, v152", "s_cbranch_vccnz L_relay", "L_flagok:")
        self.stamp(4)
        self.stamp(4, 9)
        self.kv_dma(0, o['kv1'])
        a("L_first:")
        self.stamp(3)
        self.stamp(6, 2)
        a(f"s_cmp_lg_u32 s{S_WAVE}, 7", "s_cbranch_scc1 L_nokn", f"s_waitcnt vmcnt({o['kv1']})", "v_max_f32 v154, v154, v155", "v_max_f32 v156, v156, v157")
        self.row_max16(154)
        self.row_max16(156)
        a("s_nop 0")
        for k in range(4):
            a(f"v_readlane_b32 s{16+k}, v154, {16*k}", f"v_readlane_b32 s{20+k}, v156, {16*k}")
        a("s_nop 1", "s_max_u32 s16, s16, s17", "s_max_u32 s18, s18, s19", "s_max_u32 s20, s20, s21", "s_max_u32 s22, s22, s23",
          "s_max_u32 s16, s16, s18", "s_max_u32 s20, s20, s22", "v_mov_b32 v154, s16", "v_add_f32 v154, s20, v154", "v_sqrt_f32 v154, v154",
          f"v_mov_b32 v155, {L_KMAX}", "ds_write_b32 v155, v154", "L_nokn:")
        self.stamp(3, 6)
        a("s_waitcnt vmcnt(0) lgkmcnt(0)")
        self.stamp(1, 6)
        self.stamp(5, 9)
        a("s_barrier")
        self.stamp(2, 6)
        self.kv_dma(4 * o['kv1'], 37 - o['kv1'])
        a("s_setprio 2", f"s_mov_b32 s{S_STG}, 0", "s_waitcnt vmcnt(0)")
        self.stamp(5)
        self.stamp(4, 6)
        a("s_barrier")
        self.stamp(5, 6)
        if o['shard']:
            a(f"s_cmp_lg_u32 s{S_WAVE}, 7", "s_cbranch_scc1 L_nosaw", "s_cmp_ge_u32 s2, 8", "s_cbranch_scc1 L_nosaw", "s_mov_b64 exec, 1",
              f"buffer_atomic_add v100, v101, s[{R_DBG}:{R_DBG+3}], s{S_T5} offen offset:8 sc1", "s_mov_b64 exec, -1", "L_nosaw:")
        self.wo_job_loads(0)
        a(f"s_cmp_lt_u32 s{S_OEX}, 512", "s_cbranch_scc1 L_nowo2")
        self.wo_job_loads(1)
        a("L_nowo2:", f"s_lshl_b32 s{S_T0}, s{S_PG}, 4", f"s_add_u32 s{S_T0}, s{S_T0}, {WS_XID}", "v_and_b32 v8, 3, v0", "v_lshlrev_b32 v8, 2, v8",
          f"buffer_load_dword v9, v8, s[{R_WS}:{R_WS+3}], s{S_T0} offen sc1")
        self.poison()
        a("s_waitcnt vmcnt(5)")
        self.wo_finish()
        a(f"v_mov_b32 v10, {L_FLAG+8}", "v_cmp_ne_u32 vcc, s29, v9", "s_cmp_eq_u64 vcc, 0", f"s_cselect_b32 s{S_SAME}, {o['xcc']}, 0", f"v_mov_b32 v11, s{S_SAME}",
          "ds_write_b32 v10, v11", "s_waitcnt lgkmcnt(0)")
        self.join_signal(12, "l")
        a("s_mov_b64 exec, -1")
        self.tail_scalars()
        a("v_mov_b32 v12, 1", f"s_mov_b32 s{S_CNT}, {SPIN}", f"s_cmp_lg_u32 s{S_WAVE}, 7", "s_cbranch_scc1 L_rel2", f"s_lshl_b32 s{S_T0}, s{S_B}, 7",
          "L_poll2:", f"buffer_load_dword v11, v15, s[{R_DBG}:{R_DBG+3}], s{S_T0} offen offset:4 sc0 sc1", f"s_sub_u32 s{S_CNT}, s{S_CNT}, 1",
          "s_cbranch_scc1 L_poll2d", "s_waitcnt vmcnt(0)", "v_cmp_gt_u32 vcc, 0x80, v11", "s_cbranch_vccz L_poll2d", "s_sleep 16", "s_branch L_poll2",
          "L_poll2d:", "ds_write_b32 v10, v12 offset:4", "s_branch L_rel2d",
          "L_rel2:", "ds_read_b32 v11, v10 offset:4", f"s_sub_u32 s{S_CNT}, s{S_CNT}, 1", "s_cbranch_scc1 L_rel2d", "s_waitcnt lgkmcnt(0)",
          "v_cmp_ne_u32 vcc, 0, v11", "s_cbranch_vccnz L_rel2d", "s_sleep 16", "s_branch L_rel2", "L_rel2d:")
        a(f"s_mul_i32 s{S_T0}, s{S_HG}, 9", f"s_lshl_b32 s{S_T1}, s{S_I}, 1", f"s_add_u32 s{S_T0}, s{S_T0}, s{S_T1}", f"s_mul_i32 s{S_T0}, s{S_T0}, {18*1024}", f"s_add_u32 s{S_T0}, s{S_T0}, {WS_WOT}")
        for n in range(36):
            a(f"buffer_load_dwordx4 {vr(112+4*n,4)}, v1, s[{R_WS}:{R_WS+3}], s{S_T0} offen offset:{(n&3)*1024} sc1")
            if n & 3 == 3:
                a(f"s_add_u32 s{S_T0}, s{S_T0}, 4096")
        self.tail_vaddr()
        a("s_waitcnt vmcnt(0) lgkmcnt(0)", "s_barrier")
        a(f"s_mul_i32 s{S_T0}, s{S_HG}, 9", f"s_add_u32 s{S_T0}, s{S_T0}, 8", f"s_mul_i32 s{S_T0}, s{S_T0}, {18*1024}", f"s_add_u32 s{S_T0}, s{S_T0}, {WS_WOT}",
          f"s_add_u32 s{S_T0}, s{S_T0}, s{S_M0A}")
        for k in range(4):
            a(f"s_add_u32 m0, s{S_M0A}, {L_W8 + 4096*k}", f"s_add_u32 s{S_T1}, s{S_T0}, {4096*k}", f"buffer_load_dwordx4 v1, s[{R_WS}:{R_WS+3}], s{S_T1} offen sc1 lds")
        a(f"s_and_b32 s{S_T2}, s{S_I}, 2", f"s_sub_u32 s{S_T2}, 16, s{S_T2}", f"s_lshl_b32 s{S_T2}, s{S_T2}, 10", f"s_add_u32 s{S_T1}, s{S_T0}, s{S_T2}",
          f"s_add_u32 s{S_T2}, s{S_T2}, s{S_M0A}", f"s_add_u32 m0, s{S_T2}, {L_W8}", "s_nop 0", f"buffer_load_dwordx4 v1, s[{R_WS}:{R_WS+3}], s{S_T1} offen sc1 lds",
          "s_waitcnt vmcnt(0)")
        self.tail_late()

    def kv_signal(self):
        a, o = self.a, self.o
        if o['shard']:
            a("s_cbranch_vccnz L_nosig", "s_setprio 3", f"v_add_u32 v161, {17 if o['badv0'] else 16}, v161",
              f"s_bfe_u32 s{S_T0}, s2, 0x20001", f"s_lshl_b32 s{S_T0}, s{S_T0}, 1", f"s_and_b32 s{S_T1}, s{S_GI}, 1", f"s_add_u32 s{S_T0}, s{S_T0}, s{S_T1}",
              f"s_lshl_b32 s{S_T0}, s{S_T0}, 9", f"s_add_u32 s{S_T0}, s{S_T0}, {WS_CNT}", "s_mov_b64 exec, 1",
              f"buffer_atomic_add v100, v101, s[{R_WS}:{R_WS+3}], s{S_T0} offen sc1", "s_mov_b64 exec, -1", "s_setprio 1", "L_nosig:")
        else:
            a("s_cbranch_vccnz L_nosig", "s_setprio 3", f"s_lshl_b32 s{S_T0}, s{S_B}, 7", "s_mov_b64 exec, 1",
              f"buffer_atomic_add v100, v101, s[{R_DBG}:{R_DBG+3}], s{S_T0} offen sc1", "s_mov_b64 exec, -1", "s_setprio 1", "L_nosig:")

    def join_signal(self, v, tag):
        self.a(f"v_mov_b32 v{v}, {L_FLAG+4}", f"v_mov_b32 v{v+1}, 1", f"v_mov_b32 v{v+3}, 0", f"s_lshl_b32 s{S_T0}, s{S_B}, 7", "s_mov_b64 exec, 1",
               "s_waitcnt vmcnt(0)", f"ds_add_rtn_u32 v{v+2}, v{v}, v{v+1}", "s_waitcnt lgkmcnt(0)", f"v_cmp_eq_u32 vcc, 3, v{v+2}", f"s_cbranch_vccz L_js{tag}",
               f"buffer_atomic_add v{v+1}, v{v+3}, s[{R_DBG}:{R_DBG+3}], s{S_T0} offen offset:4 sc1", f"L_js{tag}:")

    def wo_job_addr(self, rep):
        a = self.a
        if rep == 0:
            a(f"s_lshl_b32 s{S_OEX}, s{S_PG}, 2", f"s_add_u32 s{S_OEX}, s{S_OEX}, s{S_HG}", f"s_lshl_b32 s{S_OEX}, s{S_OEX}, 2", f"s_add_u32 s{S_OEX}, s{S_OEX}, s{S_I}")
        f = S_OEX
        AD = 208 + 8 * rep
        a(f"s_mul_i32 s16, s{f}, 3641", "s_lshr_b32 s16, s16, 16", "s_mul_i32 s19, s16, 18", f"s_sub_u32 s19, s{f}, s19",
          "s_mul_i32 s21, s16, 7282", "s_lshr_b32 s21, s21, 16", "s_mul_i32 s17, s21, 9", "s_sub_u32 s17, s16, s17")
        a("s_mul_i32 s22, s21, 288", "s_lshr_b32 s23, s17, 1", "s_lshl_b32 s23, s23, 6", "s_add_u32 s22, s22, s23", "s_and_b32 s23, s17, 1", "s_lshl_b32 s23, s23, 3",
          "s_add_u32 s22, s22, s23", "s_cmp_eq_u32 s17, 8", "s_cselect_b32 s23, 3, 4",
          "v_bfe_u32 v200, v0, 2, 2", "v_lshlrev_b32 v200, s23, v200", "v_and_b32 v201, 3, v0", "v_lshl_add_u32 v200, v201, 1, v200", "v_add_u32 v200, s22, v200",
          "s_cmp_ge_u32 s19, 16", f"s_cbranch_scc1 L_wok1_{rep}")
        cy = [(j & 3) + 8 * (j >> 2) for j in range(8)]
        a("s_lshr_b32 s23, s19, 2", "s_add_u32 s23, s23, s21", "s_and_b32 s23, s23, 3", f"s_mul_i32 s22, s23, {144*1152}",
          "s_and_b32 s23, s19, 1", f"s_mul_i32 s23, s23, {72*1152}", "s_add_u32 s22, s22, s23", "s_bfe_u32 s23, s19, 0x10001", f"s_mul_i32 s23, s23, {36*1152}", "s_add_u32 s22, s22, s23",
          "v_lshrrev_b32 v201, 5, v0", "v_bfe_u32 v202, v0, 4, 1",
          f"v_mul_u32_u24 v203, {4*1152}, v201", "v_add_u32 v203, v200, v203",
          f"v_mul_u32_u24 v204, {3*1152}, v201", f"v_sub_u32 v204, {16*1152}, v204", "v_mul_u32_u24 v204, v202, v204", f"v_add_u32 v{AD}, v203, v204")
        for j in range(1, 8):
            dj = 18 + cy[j-1] - cy[j]
            a(f"v_mul_u32_u24 v204, {dj*1152}, v202", f"v_add_u32 v204, {cy[j]*1152}, v204", f"v_add_u32 v{AD+j}, v203, v204")
        a(f"s_branch L_wold_{rep}", f"L_wok1_{rep}:", "s_and_b32 s22, s19, 1", f"s_mul_i32 s22, s22, {36*1152}",
          "v_lshrrev_b32 v201, 4, v0", "v_add_u32 v201, s21, v201", "v_and_b32 v201, 3, v201", f"v_mul_u32_u24 v201, {144*1152}, v201", "v_add_u32 v203, v200, v201")
        for j in range(8):
            hq, hh, e = j >> 2, (j >> 1) & 1, j & 1
            row = 72 * hq + 18 + ((16 + hh) if e else (11 + 4 * hh))
            a(f"v_add_u32 v{AD+j}, {row*1152}, v203")
        a(f"L_wold_{rep}:")
        a(f"s_mov_b32 s{30+rep}, s22")

    def wo_job_loads(self, rep):
        for j in range(8):
            self.a(f"buffer_load_ushort v{224+8*rep+j}, v{208+8*rep+j}, s[{R_WO}:{R_WO+3}], s{30+rep} offen")

    def wo_job_finish(self, rep):
        a = self.a
        DT = 224 + 8 * rep
        a(f"s_lshl_b32 s22, s{S_OEX}, 10", f"s_add_u32 s22, s22, {WS_WOT}")
        for j in range(4):
            a(f"v_lshl_or_b32 v{240+4*rep+j}, v{DT+1+2*j}, 16, v{DT+2*j}")
        a(f"buffer_store_dwordx4 {vr(240+4*rep,4)}, v1, s[{R_WS}:{R_WS+3}], s22 offen sc1")

    def wo_finish(self):
        a = self.a
        a(f"s_cmp_ge_u32 s{S_OEX}, 512", "s_cbranch_scc0 L_wo3")
        self.wo_job_finish(1)
        a(f"s_sub_u32 s{S_OEX}, s{S_OEX}, 512", "L_wo3:")
        self.wo_job_finish(0)

    def poison_addr(self):
        a = self.a
        a([f"v_mov_b32 v{192+j}, -1" for j in range(4)])
        a(f"s_lshl_b32 s32, s{S_PG}, 2", f"s_add_u32 s32, s32, s{S_HG}", f"s_mul_i32 s32, s32, {OEX_W}", f"s_add_u32 s32, s32, {WS_OEX}",
          f"s_lshl_b32 s33, s{S_I}, 12", "s_add_u32 s33, s33, s32", f"s_lshl_b32 s34, s{S_PBI}, 10", "s_add_u32 s34, s34, s32", "s_add_u32 s34, s34, 16384")

    def poison(self):
        a = self.a
        for k in range(4):
            a(f"buffer_store_dwordx4 v[192:195], v1, s[{R_WS}:{R_WS+3}], s33 offen offset:{k*1024} sc0 sc1")
        a(f"buffer_store_dwordx4 v[192:195], v1, s[{R_WS}:{R_WS+3}], s34 offen sc0 sc1")

    def attention(self):
        a, o = self.a, self.o
        UNP = o['unp']
        a(f"v_mul_f32 v7, v6, v{QR+1}", f"v_mul_f32 v22, v6, v{QR2+1}", f"v_mov_b32 v6, {hex(f2u(-1.0 if o['force_fb'] else TSAFE))}",
          "v_cmp_nle_f32 vcc, v7, v6", "v_cmp_nle_f32 s[42:43], v22, v6", "v_sub_f32 v7, 0, v7", "v_sub_f32 v22, 0, v22",
          f"v_cvt_pk_bf16_f32 v{QR+1}, v7, 0", f"v_cvt_pk_bf16_f32 v{QR2+1}, v22, 0", "s_or_b64 vcc, vcc, s[42:43]", "s_cbranch_vccnz L_fallback", "L_fbdone:")
        q = self.qk(S[0], 0, 0)
        f1 = [f"s_lshl_b32 s{S_T0}, s{S_HQ}, 12", f"s_lshl_b32 s{S_T1}, s{S_PBI}, 11", f"s_add_u32 s{S_T2}, s{S_T0}, s{S_T1}",
              f"s_lshl_b32 s{S_T0}, s{S_PBI}, 9", f"s_lshl_b32 s{S_T1}, s{S_HQ}, 7", f"s_add_u32 s{S_T3}, s{S_T0}, s{S_T1}",
              f"v_mov_b32 v{V_JN}, {L_FLAG+4}", f"s_mov_b32 s{S_CNT}, {32//UNP}", "v_bfe_u32 v6, v0, 4, 1", "v_lshrrev_b32 v7, 5, v0",
              "v_and_b32 v22, 15, v0", f"v_lshlrev_b32 v{V_OA}, 10, v6", f"v_lshl_add_u32 v{V_OA}, v7, 9, v{V_OA}", f"v_lshl_add_u32 v{V_OA}, v22, 4, v{V_OA}", f"v_add_u32 v{V_OA}, s{S_T2}, v{V_OA}",
              f"v_lshlrev_b32 v{V_OB}, 8, v6", f"v_lshl_add_u32 v{V_OB}, v7, 6, v{V_OB}", f"v_lshl_add_u32 v{V_OB}, v22, 2, v{V_OB}"]
        a("s_nop 0", q[0], f1, q[1], q[2], f"v_add_u32 v{V_OB}, s{S_T3}, v{V_OB}", "s_nop 9")
        self.stamp(6)
        self.stamp(6, 6)
        body = []
        units = [(kb, pr) for kb in range(2 * UNP) for pr in range(2)]
        for i, (kb, pr) in enumerate(units):
            cur, nxt = S[i % 2], S[(i + 1) % 2]
            q = self.qk(nxt, kb + pr, 1 - pr)
            e = EX(cur, 32)
            sm3p = SM(OS[2*(1-pr)+1], VV[(kb - 1 + pr) % 2][1], nxt + 24)
            sm = [SM(OS[2*pr], VV[kb % 2][0], cur), SM(OS[2*pr], VV[kb % 2][1], cur + 8), SM(OS[2*pr+1], VV[kb % 2][0], cur + 16)]
            if pr == 0:
                v0, v1 = self.ldV(kb + 1)
                x = [[v0], [v1], [], [], []]
            else:
                x = [[], [], self.ldKm(kb + 2), self.ldKr(kb // 2 + 1) if kb % 2 == 0 else [], ["s_waitcnt lgkmcnt(0)"]]
            body += e[0:2] + [sm3p] + x[0] + e[2:5] + [q[0]] + e[5:13] + [sm[0]] + x[1] + e[13:18] + [sm[1]] + x[2] + e[18:21] + [q[1]] + x[3] + e[21:24] + [q[2]] + e[24:27] + [sm[2]] + x[4] + e[27:32]
        reach = max(int(x.split("offset:")[1]) + {V_AK: 1024, V_AR: 2048 + 256, V_AV: 2304 + VG}[int(x.split(", v")[1].split()[0])] for x in body if x.startswith("ds_read"))
        assert reach <= 4096 * o['kv1'] and L_KV + 4096 * o['kv1'] <= dslot(17)
        assert L_W8 + 18432 <= L_KV + (32 - UNP) * PB
        body += [f"v_add_u32 v{V_AK}, {UNP*PB}, v{V_AK}", f"v_add_u32 v{V_AR}, {UNP*PB}, v{V_AR}", f"v_add_u32 v{V_AV}, {UNP*PB}, v{V_AV}"]
        if o['sh']:
            mf = [i for i, x in enumerate(body) if 'smfmac' in x and not body[i + 1].startswith(('ds_', 's_'))]
            body.insert(mf[-1] + 1, f"s_cmp_lg_u32 s{S_CNT}, s{S_BAR}")
            body.insert(mf[-2] + 1, f"s_sub_u32 s{S_CNT}, s{S_CNT}, 1")
            a(".p2align 6", "L_main:", body, "s_cbranch_scc1 L_main", f"s_cmp_eq_u32 s{S_CNT}, 1", "s_cbranch_scc1 L_last", "s_barrier", f"s_mov_b32 s{S_BAR}, 1", "s_branch L_main", "L_last:")
        else:
            a(".p2align 6", "L_main:", body, f"s_sub_u32 s{S_CNT}, s{S_CNT}, 1", f"s_cmp_lg_u32 s{S_CNT}, s{S_BAR}", "s_cbranch_scc1 L_nob", "s_barrier", "L_nob:",
              f"s_cmp_lg_u32 s{S_CNT}, 1", "s_cbranch_scc1 L_main")
        a("s_barrier", f"ds_read_b32 v23, v{V_JN} offset:4", self.ldKr(1))
        DW = [192, 204]

        def publish(pr):
            x, y, d = OS[2*pr], OS[2*pr+1], DW[pr]
            vals = [x + j for j in range(9)] + [y + j for j in range(9)]
            c = [f"v_cvt_pk_bf16_f32 v{d+j}, v{vals[2*j]}, v{vals[2*j+1]}" for j in range(9)]
            a(f"v_rcp_f32 v6, v{x+9}", "s_nop 0", [f"v_mul_f32 v{r}, v{r}, v6" for r in vals[:9]], c[:3], f"v_rcp_f32 v7, v{y+9}", c[3])
            direct = pr == 1 or not o['hst']
            if direct:
                a("v_cmp_ne_u32 vcc, 0, v23", f"s_cbranch_vccnz L_pub1{pr}")
            for fl in (" sc0 sc1", "") if direct else (None,):
                st = lambda n, r, v, so, off: f"buffer_store_dword{n} {r}, v{v}, s[{R_WS}:{R_WS+3}], s{so} offen offset:{off}{fl}" if direct else []
                so = S_OA if pr else S_OW
                a(st('x4', vr(d, 4), V_OA, so, 0), [f"v_mul_f32 v{r}, v{r}, v7" for r in vals[9:]], c[4:8], st('x4', vr(d + 4, 4), V_OA, so, 256), c[8], st('', vr(d + 8), V_OB, S_OB, 1024 * pr))
                if fl:
                    a(f"s_branch L_pub2{pr}", f"L_pub1{pr}:")
            a(f"L_pub2{pr}:")
            if pr:
                a(self.peer_loads())
            else:
                a(f"v_add_u32 v201, {L_O}, v{V_OA}", f"v_add_u32 v202, {L_O + 65536}, v{V_OB}")
            a(f"ds_write_b128 v201, {vr(d, 4)} offset:{8192*pr}", f"ds_write_b128 v201, {vr(d + 4, 4)} offset:{8192*pr + 256}", f"ds_write_b32 v202, v{d + 8} offset:{1024*pr}")
        NV = 2 * UNP
        for j in range(2 * NV):
            pr, kb = j // NV, j % NV
            cur, nxt = S[j % 2], S[(j + 1) % 2]
            q = self.qk(nxt, (j + 1) % NV, (j + 1) // NV) if j + 1 < 2 * NV else [[], [], []]
            e = EX(cur, 32)
            sm3p = SM(OS[2*((j - 1) // NV % 2)+1], VV[(j - 1) % 2][1], nxt + 24)
            sm = [SM(OS[2*pr], VV[j % 2][0], cur), SM(OS[2*pr], VV[j % 2][1], cur + 8), SM(OS[2*pr+1], VV[j % 2][0], cur + 16)]
            v0, v1 = self.ldV((j + 1) % NV) if j + 1 < 2 * NV else ([], [])
            km = self.ldKm((j + 2) % NV) if j + 2 < 2 * NV else []
            kr = self.ldKr(((j + 3) // 2) % UNP) if j % 2 == 1 and j + 3 < 2 * NV else []
            a(e[0:2], sm3p, v0, e[2:5], q[0], e[5:13], sm[0], v1, e[13:18], sm[1], km, e[18:21], q[1], kr, e[21:24], q[2], e[24:27], sm[2], "s_waitcnt lgkmcnt(0)", e[27:32])
            if j == NV:
                publish(0)
            if j == o['nj']:
                a("s_barrier")
        a("s_nop 1", SM(O2[1], VV[1][1], S[1] + 24))
        self.stamp(7)
        a("s_setprio 3", "s_barrier")
        publish(1)
        self.tail_vaddr()
        a(f"v_add_u32 v21, {L_W8}, v1")
        self.stamp(1, 4)
        if o['own1']:
            a("s_waitcnt lgkmcnt(0)", "s_barrier")
        self.collect("e")
        q = []
        RO, RW, ACC = [56 + 8 * k for k in range(5)], [60 + 8 * k for k in range(5)], 100
        for n in range(18 + 4):
            if n >= 4:
                ks = n - 4
                last = max(i for i, t in enumerate(q) if t == ks)
                a(f"s_waitcnt lgkmcnt({min(len(q) - 1 - last, 14)})", M16(ACC, RW[ks % 5], RO[ks % 5], "0" if ks == 0 else None))
                del q[:last + 1]
            if n < 18:
                x = self.ofrag(RO[n % 5], 0, n) + [f"ds_read_b128 {vr(RW[n % 5], 4)}, v21 offset:{n*1024}"]
                a(x)
                q += [n] * len(x)
        a("s_nop 7", f"v_cvt_pk_bf16_f32 v6, v{ACC}, v{ACC+1}", f"v_cvt_pk_bf16_f32 v7, v{ACC+2}, v{ACC+3}",
          f"buffer_store_dwordx2 v[6:7], v23, s[{R_OUT}:{R_OUT+3}], s41 offen")
        self.finish()

    def peer_loads(self):
        return [f"buffer_load_dwordx4 {vr(24+4*k,4)}, v1, s[{R_WS}:{R_WS+3}], s{16+k} offen sc0 sc1" for k in range(7)]

    def ofrag(self, r, tp, ks):
        if ks < 16:
            return [f"ds_read_b128 {vr(r,4)}, v{8+tp} offset:{ks*4096}"]
        if ks == 16:
            return [f"ds_read2_b32 {vr(r,2)}, v{52+tp} offset0:0 offset1:16", f"ds_read2_b32 {vr(r+2,2)}, v{52+tp} offset0:32 offset1:48"]
        return [f"ds_read2_b32 {vr(r,2)}, v{16+tp} offset0:0 offset1:16", f"ds_read2_b32 {vr(r+2,2)}, v{16+tp} offset0:32 offset1:48"]

    def tail_vaddr(self):
        self.a(f"s_lshl_b32 s{S_T0}, s{S_I}, 10", f"s_add_u32 s{S_T0}, s{S_T0}, {L_O}", f"v_add_u32 v8, s{S_T0}, v1", "v_xor_b32 v9, 0x400, v8", "v_xor_b32 v10, 0x800, v8", "v_xor_b32 v11, 0xc00, v8",
               "v_lshrrev_b32 v6, 4, v0", "v_and_b32 v7, 15, v0", "v_mul_u32_u24 v22, 0x900, v7", "v_lshl_add_u32 v23, v6, 3, v22", "v_lshl_add_u32 v22, v6, 4, v22",
               "v_lshlrev_b32 v6, 11, v6", "v_lshl_add_u32 v6, v7, 2, v6", f"s_lshl_b32 s{S_T0}, s{S_I}, 8", f"s_add_u32 s{S_T0}, s{S_T0}, {L_O + 65536}",
               f"v_add_u32 v52, s{S_T0}, v6", "v_xor_b32 v53, 0x100, v52", "v_xor_b32 v54, 0x200, v52", "v_xor_b32 v55, 0x300, v52",
               [f"v_add_u32 v{16+k}, 0x400, v{52+k}" for k in range(4)])

    def collect(self, tag):
        a, PB_ = self.a, 24
        a(f"s_mov_b32 s{S_CNT}, {SPIN}", f"L_cl{tag}:", "s_waitcnt vmcnt(0)")
        self.stamp(3, 4)
        a(f"v_max3_u32 v6, v{PB_}, v{PB_+1}, v{PB_+2}", f"v_max3_u32 v7, v{PB_+3}, v{PB_+4}, v{PB_+5}")
        for j in range(6, 28, 4):
            a(f"v_max3_u32 v6, v6, v{PB_+j}, v{PB_+j+1}")
            if j + 3 < 28:
                a(f"v_max3_u32 v7, v7, v{PB_+j+2}, v{PB_+j+3}")
        a("v_max_u32 v7, v7, v6", "v_cmp_eq_u32 vcc, -1, v7", f"s_cbranch_vccz L_cld{tag}", f"s_sub_u32 s{S_CNT}, s{S_CNT}, 1", f"s_cbranch_scc1 L_cld{tag}", self.peer_loads(), f"s_branch L_cl{tag}", f"L_cld{tag}:")
        self.stamp(2, 4)
        for k in range(7):
            a(f"v_add_u32 v{6+(k&1)}, s{30+k}, v1", f"ds_write_b128 v{6+(k&1)}, {vr(PB_+4*k,4)}")
        a("s_waitcnt lgkmcnt(0)", "s_barrier")
        self.stamp(4, 4)
        self.stamp(4, 0)

    def tail_late(self):
        a, o = self.a, self.o
        WF, ACC = 112, 80
        RING = [56 + 4 * i for i in range(6)]
        if o['hst']:
            a(f"s_lshl_b32 s{S_T0}, s{S_I}, 11", f"s_add_u32 s{S_T1}, s{S_T0}, s{S_OW}", f"s_add_u32 s{S_T0}, s{S_T0}, {L_O}", f"v_add_u32 v56, s{S_T0}, v1",
              f"v_lshlrev_b32 v57, 2, v0", f"s_lshl_b32 s{S_T0}, s{S_I}, 8", f"s_add_u32 s{S_T2}, s{S_T0}, s{S_OB}", f"s_add_u32 s{S_T0}, s{S_T0}, {L_O + 65536}", f"v_add_u32 v58, s{S_T0}, v57",
              f"s_cmp_eq_u32 s{S_SAME}, 1")
        a("s_setprio 2", "s_barrier")
        if o['hst']:
            a("ds_read_b128 v[60:63], v56", "ds_read_b128 v[64:67], v56 offset:1024", "ds_read_b32 v68, v58", "s_cbranch_scc1 L_hs1")
            for fl in (" sc0 sc1", ""):
                a("s_waitcnt lgkmcnt(0)", f"buffer_store_dwordx4 v[60:63], v1, s[{R_WS}:{R_WS+3}], s{S_T1} offen{fl}", f"buffer_store_dwordx4 v[64:67], v1, s[{R_WS}:{R_WS+3}], s{S_T1} offen offset:1024{fl}",
                  f"buffer_store_dword v68, v57, s[{R_WS}:{R_WS+3}], s{S_T2} offen{fl}")
                if fl:
                    a("s_branch L_hs2", "L_hs1:")
            a("L_hs2:")
        a(self.peer_loads())
        self.collect("l")
        a("s_setprio 1")
        self.stamp(7)
        q = []

        def run(seq, n0, after):
            PF = 5

            def issue(j):
                x = self.ofrag(RING[(n0 + j) % 6], *seq[j])
                a(x)
                q.extend([n0 + j] * len(x))
            for j in range(PF):
                issue(j)
            for j, (tp, ks) in enumerate(seq):
                last = max(i for i, t in enumerate(q) if t == n0 + j)
                a(f"s_waitcnt lgkmcnt({min(len(q) - 1 - last, 14)})")
                del q[:last + 1]
                c = "0" if ks == 0 else None
                r = RING[(n0 + j) % 6]
                a(M16(ACC + 4 * tp, WF + 4 * ks, r, c), M16(ACC + 16 + 4 * tp, WF + 72 + 4 * ks, r, c))
                if j + PF < len(seq):
                    issue(j + PF)
                a(after.get(j, []))

        def outp(tp):
            r = 24 + 4 * tp
            return [f"v_cvt_pk_bf16_f32 v{r+k}, v{ACC+16*(k>>1)+4*tp+2*(k&1)}, v{ACC+16*(k>>1)+4*tp+2*(k&1)+1}" for k in range(4)] + \
                   [f"buffer_store_dwordx4 {vr(r,4)}, v22, s[{R_OUT}:{R_OUT+3}], s{37+tp} offen"]
        k0 = [0, 1, 4, 5, 8, 9, 12, 13, 16]
        k1 = [6, 7, 10, 11, 14, 15, 17]
        run([(tp, ks) for ks in k0 for tp in range(4)], 0, {})
        if o['own1']:
            a("s_barrier")
            run([(tp, ks) for ks in (2, 3) for tp in range(4)], 36, {})
        else:
            k1 = [2, 3] + k1
        a("s_setprio 3", "s_barrier")
        self.stamp(6, 4)
        n1 = len(k1)
        run([(tp, ks) for tp in range(4) for ks in k1], 44, {n1 * i + 2: outp(i - 1) for i in (1, 2, 3)})
        a("s_nop 6", outp(3), "s_branch L_fin")

    def tail_scalars(self):
        a, o = self.a, self.o
        a(f"s_mul_i32 s{S_OEXB}, s{S_PG}, {OEX_G}", f"s_add_u32 s{S_OEXB}, s{S_OEXB}, {WS_OEX}", f"s_mul_i32 s{S_OW}, s{S_HG}, {OEX_W}", f"s_add_u32 s{S_OW}, s{S_OW}, s{S_OEXB}",
          f"s_add_u32 s{S_OA}, s{S_OW}, 8192", f"s_add_u32 s{S_OB}, s{S_OW}, 16384",
          f"s_lshl_b32 s23, s{S_STG}, 13", f"s_lshl_b32 s24, s{S_STG}, 10")
        for k in range(7):
            a(f"s_add_u32 s{S_T0}, s{S_I}, {4*k}")
            if k == 6:
                a(f"s_min_u32 s{S_T0}, s{S_T0}, 26")
            a(f"s_mul_i32 s{S_T1}, s{S_T0}, 7282", f"s_lshr_b32 s{S_T1}, s{S_T1}, 16", f"s_mul_i32 s{S_T2}, s{S_T1}, 9", f"s_sub_u32 s{S_T2}, s{S_T0}, s{S_T2}",
              f"s_add_u32 s{S_T1}, s{S_T1}, 1",
              f"s_lshl_b32 s{S_T0}, s{S_T2}, 10", f"s_add_u32 s{S_T0}, s{S_T0}, s23", f"s_add_u32 s{S_T3}, s24, 16384",
              f"s_lshl_b32 s{30+k}, s{S_T1}, 14", f"s_add_u32 s{30+k}, s{30+k}, s{S_T0}", f"s_lshl_b32 s{16+k}, s{S_T1}, 11", f"s_add_u32 s{16+k}, s{16+k}, s24", f"s_add_u32 s{16+k}, s{16+k}, 65536",
              f"s_cmp_eq_u32 s{S_T2}, 8", f"s_cselect_b32 s{S_T0}, s{S_T3}, s{S_T0}", f"s_cselect_b32 s{30+k}, s{16+k}, s{30+k}", f"s_add_u32 s{30+k}, s{30+k}, {L_O}",
              f"s_add_u32 s{S_T1}, s{S_T1}, s{S_HG}", f"s_and_b32 s{S_T1}, s{S_T1}, 3", f"s_mul_i32 s{S_T1}, s{S_T1}, {OEX_W}", f"s_add_u32 s{S_T0}, s{S_T0}, s{S_T1}", f"s_add_u32 s{16+k}, s{S_T0}, s{S_OEXB}")
        a(f"s_mul_i32 s{S_T0}, s{S_PG}, {64*2304}", f"s_mul_i32 s{S_T1}, s{S_B}, 1152", f"s_add_u32 s{S_T0}, s{S_T0}, s{S_T1}", f"s_mul_i32 s{S_T1}, s{S_HG}, 288",
          f"s_add_u32 s{S_T0}, s{S_T0}, s{S_T1}", f"s_lshl_b32 s{S_T1}, s{S_I}, 6", f"s_add_u32 s{S_T1}, s{S_T1}, s{S_T0}")
        for tp in range(4):
            a(f"s_xor_b32 s{S_T2}, s{S_I}, {tp}", f"s_mul_i32 s{S_T2}, s{S_T2}, {16*2304}", f"s_add_u32 s{37+tp}, s{S_T2}, s{S_T1}")
            if tp == 0:
                a(f"s_add_u32 s41, s{S_T2}, s{S_T0}", "s_add_u32 s41, s41, 256")

    def fallback(self):
        a, o = self.a, self.o
        a.label("L_fallback")
        a("s_barrier", f"s_mov_b32 s{S_BAR}, {1 if o['sh'] else -1}")
        a(f"v_mov_b32 v{QR+1}, 0", f"v_mov_b32 v{QR2+1}, 0", f"v_mov_b32 v192, v{V_AK}", f"v_mov_b32 v193, v{V_AR}", [f"v_mov_b32 v{194+k}, 0xff800000" for k in range(4)],
          "v_mov_b32 v199, 0x3f803f80", f"s_mov_b32 s{S_CNT}, 32", "L_fbl:",
          "ds_read_b32 v198, v193", "ds_read_b128 v[200:203], v192", "ds_read_b128 v[204:207], v192 offset:1024",
          f"v_add_u32 v192, {PB}, v192", f"v_add_u32 v193, {PB}, v193", "s_waitcnt lgkmcnt(0)")
        for h in range(2):
            for pr in range(2):
                a(B2(208, 198, QRS[pr], h), "s_nop 15", "s_nop 1", K16(208, 200 + 4 * h, QMS[2*pr]), K16(224, 200 + 4 * h, QMS[2*pr+1]), "s_nop 11")
                for j in range(8):
                    a(f"v_max3_f32 v{194+2*pr}, v{194+2*pr}, v{208+2*j}, v{209+2*j}", f"v_max3_f32 v{195+2*pr}, v{195+2*pr}, v{224+2*j}, v{225+2*j}")
        a(f"s_sub_u32 s{S_CNT}, s{S_CNT}, 1", f"s_cmp_lg_u32 s{S_CNT}, 0", "s_cbranch_scc1 L_fbl")
        for pr in range(2):
            x, y = 194 + 2 * pr, 195 + 2 * pr
            a("s_nop 0", f"v_permlane32_swap_b32 v{x}, v{y}", "s_nop 1", f"v_max_f32 v{x}, v{x}, v{y}", f"v_sub_f32 v{x}, 0, v{x}",
              f"v_cvt_pk_bf16_f32 v{y}, v{x}, 0", f"v_lshlrev_b32 v{y}, 16, v{y}", f"v_sub_f32 v{y}, v{x}, v{y}", f"v_cvt_pk_bf16_f32 v{QRS[pr]+1}, v{x}, v{y}")
        a("s_branch L_fbdone")

    def finish(self):
        a, o = self.a, self.o
        a("L_fin:")
        if o['stamps'] or o['dbgspan'] or o['ampk']:
            a("s_waitcnt vmcnt(0)")
            self.stamp(5, o['set'] if o['set'] in (1, 4) else 0)
        if o['ampk']:
            a(f"s_cmp_eq_u32 s{S_STG}, {1 - o['amps']}", "s_cbranch_scc1 L_end", "s_waitcnt lgkmcnt(0)", f"s_sub_u32 s{S_T0}, s{S_ST+2*o['ampb']}, s{S_ST+2*o['ampa']}")
            if o['avg']:
                a(f"s_cmp_lg_u32 s{S_I}, 0", "s_cbranch_scc1 L_end", "s_mov_b64 exec, 1", "v_mov_b32 v8, 0", f"v_mov_b32 v9, s{S_T0}", "v_mov_b32 v10, 1",
                  f"buffer_atomic_add v9, v8, s[{R_DBG}:{R_DBG+3}], 0 offen offset:16 sc1", "s_waitcnt vmcnt(0)",
                  f"buffer_atomic_add v10, v8, s[{R_DBG}:{R_DBG+3}], 0 offen offset:144 sc0 sc1", "s_waitcnt vmcnt(0)", "v_cmp_eq_u32 vcc, 0xff, v10", "s_cbranch_vccz L_end",
                  f"buffer_load_dword v9, v8, s[{R_DBG}:{R_DBG+3}], 0 offen offset:16 sc0 sc1", "s_waitcnt vmcnt(0)", f"v_readfirstlane_b32 s{S_T0}, v9", "s_nop 3", f"s_mul_i32 s{S_T0}, s{S_T0}, {max(o['ampk'], 1)}", f"s_lshr_b32 s{S_T0}, s{S_T0}, {8 - min(o['ampk'], 0)}")
            else:
                a(f"s_mul_i32 s{S_T0}, s{S_T0}, {o['ampk']}" if o['ampk'] > 0 else f"s_lshr_b32 s{S_T0}, s{S_T0}, {-o['ampk']}")
            a("s_memrealtime s[18:19]", f"s_min_u32 s{S_T0}, s{S_T0}, 100000",
              "L_amp:", "s_memrealtime s[16:17]", "s_waitcnt lgkmcnt(0)", "s_sub_u32 s16, s16, s18", f"s_cmp_lt_u32 s16, s{S_T0}", "s_cbranch_scc1 L_amp")
        self.dump_stamps()
        a("L_end:", "s_endpgm")

    def build(self):
        self.start()
        self.early_front()
        self.attention()
        self.late_front()
        self.fallback()
        hdr = (open('concat_heads__grouped_kv_mqa__grouped_kv_mqa__prompt.s.ref').read().split("; Override launch geometry")[0] +
               f"; @launch grid=(256,1,1) block=(512,1,1) lds={LDS_BYTES}\n" + DOC +
               '.amdgcn_target "amdgcn-amd-amdhsa--gfx950"\n.text\n'
               f".globl {NAME}\n.p2align 8\n.type {NAME},@function\n{NAME}:\n")
        if self.o['of'] & 1:
            self.a.L = [x.replace(" sc0 sc1", " sc1") if "buffer_store" in x and f"s[{R_WS}:" in x else x for x in self.a.L]
        if self.o['of'] & 2:
            self.a.L = [x.replace(" sc0 sc1", " sc1") if "buffer_load" in x and f"s[{R_WS}:" in x else x for x in self.a.L]
        body = "".join((x + "\n") if x.endswith(":") or x.startswith(";") else ("    " + x + "\n") for x in self.a.L)
        t = table()
        tab = ".p2align 6\n.type L_table,@object\nL_table:\n" + "".join("    .long " + ", ".join(str(int(v)) for v in row) + "\n" for row in t)
        tab += f".fill (1024 - ((. - {NAME}) & 1023)) & 1023, 1, 0\nL_codeend:\n.size L_table, L_codeend-L_table\n"
        kd = f""".section .rodata,"a"
.p2align 6
.amdhsa_kernel {NAME}
  .amdhsa_next_free_vgpr 256
  .amdhsa_next_free_sgpr 102
  .amdhsa_accum_offset 256
  .amdhsa_group_segment_fixed_size 0
  .amdhsa_kernarg_size 104
  .amdhsa_user_sgpr_count 2
  .amdhsa_user_sgpr_kernarg_segment_ptr 1
  .amdhsa_system_sgpr_workgroup_id_x 1
.end_amdhsa_kernel
"""
        return hdr + body + tab + kd


if __name__ == "__main__":
    out = sys.argv[1]
    opt = {}
    for kv in sys.argv[2:]:
        k, v = kv.split("=")
        opt[k] = int(v)
    g = Gen(opt)
    open(out, "w").write(g.build())
```

```python
import sys, math, struct
import numpy as np

NAME = "concat_heads__grouped_kv_mqa__grouped_kv_mqa__prompt_kernel"

VG = 608
PB = 2048 + 256 + 4 * VG
KVB = 32 * PB
L_KV = 12288
L_HAND = 0
L_KMAX = 10240
L_FLAG = 10256
L_T2X = 81920
L_O = 12288
L_W8 = L_O + 73728
L_W = 62464
L_X = 90112
SLOT = 4608
LDS_BYTES = 163840
WS_KV = 0
WS_KN = KVB
WS_XID = WS_KN + 1024
WS_CNT = 0x26000
WS_WOT = 0x28000
WS_OEX = 0xD0000
WS_BR = 0x400000
WS_STAMP = 0x1000000
OEX_G = 73728
OEX_W = 18432
CSCALE = math.log2(math.e) / math.sqrt(18.0)
TSAFE = 40.0
SPIN = 500000
SPIN_L = 16 * SPIN


def f2u(x):
    return struct.unpack("<I", struct.pack("<f", x))[0]


def dslot(d):
    if d < 6:
        return d * 2 * SLOT
    if d < 17:
        return L_W + (d - 6) * 2 * SLOT
    return 5 * 2 * SLOT


def slot_addr(ks):
    return dslot(ks >> 1) + (ks & 1) * SLOT


G0 = [0, 1, 2, 3, 12, 13, 14, 15, 20]
G1 = [4, 5, 6, 7, 8, 9, 10, 11, 16]
POS_ONES, POS_ZERO = 22, 23


def vpos(h, row):
    if row in G0:
        return [list(range(0, 9)), [18, 19, 20, 21, 24, 25, 26, 27, 28]][h][G0.index(row)]
    if row in G1:
        return [list(range(9, 18)), list(range(29, 38))][h][G1.index(row)]
    if row in (17, 21):
        return POS_ONES
    return POS_ZERO


def table():
    t = np.zeros((64, 4), dtype=np.uint32)
    for l in range(64):
        t[l, 0] = L_KV + 2304 + vpos(l >> 5, l & 31) * 16
        n, g = l & 15, l >> 4
        t[l, 1] = vpos(g >> 1, n) * 16 + (g & 1) * 8
        p = {0: vpos(g >> 1, 16), 1: vpos(g >> 1, 20), 2: POS_ONES, 3: POS_ZERO}.get(n, POS_ZERO)
        t[l, 2] = p * 16 + (g & 1) * 8
    return t


def vr(a, n=1):
    return f"v[{a}:{a+n-1}]" if n > 1 else f"v{a}"


def sr(a, n=1):
    return f"s[{a}:{a+n-1}]" if n > 1 else f"s{a}"


S_WAVE = 3
R_X, R_WQ, R_W, R_WO, R_WS, R_OUT, R_DBG = 44, 48, 52, 56, 60, 64, 68
S_B, S_HG, S_GI, S_PG, S_I = 4, 5, 6, 7, 8
S_T0, S_T1, S_T2, S_T3, S_T4, S_T5 = 9, 10, 11, 12, 13, 14
S_CNT = 15
S_M0A, S_M0R, S_ROW = 72, 73, 74
S_BAR = 75
S_PBI, S_HQ = 76, 77
S_EX = 42
S_KVS = 80
S_OEX = 81
S_STG = 82
S_OEXB = 78
S_SAME, S_OA, S_OB, S_OW = 26, 27, 28, 25
V_OA, V_OB, V_JN = 144, 145, 146
S_VM = 0
S_XI, S_XB, S_XS, S_XM = 83, 100, 101, 79
S_DI, S_DS, S_LI, S_LS = 72, 73, 74, 75
S_ST = 84

V_IDX, V_AK, V_AR, V_AV = 2, 3, 4, 5
QM = [8, 12]
QR = 16
KR = [18, 20]
O = [24, 40]
KM = [56, 60]
VV = [[64, 68], [72, 76]]
S = [80, 112]
QM2 = [148, 152]
QR2 = 156
O2 = [160, 176]
QMS, QRS, OS = QM + QM2, [QR, QR2], O + O2


DOC = """;
"""


class A:
    def __init__(self):
        self.L = []

    def __call__(self, *xs):
        for x in xs:
            if isinstance(x, (list, tuple)):
                self(*x)
            else:
                self.L.append(x)

    def label(self, n):
        self.L.append(n + ":")


def K16(d, a, b, c=None):
    return f"v_mfma_f32_32x32x16_bf16 {vr(d,16)}, {vr(a,4)}, {vr(b,4)}, {c if c else vr(d,16)}"


def M16(d, a, b, c=None):
    return f"v_mfma_f32_16x16x32_bf16 {vr(d,4)}, {vr(a,4)}, {vr(b,4)}, {c if c else vr(d,4)}"


def B2(d, a, b, abid):
    return f"v_mfma_f32_32x32x4_2b_bf16 {vr(d,32)}, {vr(a,2)}, {vr(b,2)}, 0 cbsz:1 abid:{abid}"


def K8Z(d, z):
    return f"v_mfma_f32_32x32x8_bf16 {vr(d,16)}, {vr(z,2)}, {vr(z,2)}, 0"


def SM(d, a, b):
    return f"v_smfmac_f32_32x32x32_bf16 {vr(d,16)}, {vr(a,4)}, {vr(b,8)}, v{V_IDX}"


def EX(r, n):
    return [f"v_exp_f32 v{r+i}, v{r+i}" for i in range(n)]


def srd(a, dst, lo, hi, size):
    a(f"s_mov_b32 s{dst}, {lo}", f"s_mov_b32 s{dst+1}, {hi}", f"s_mov_b32 s{dst+2}, {size}", f"s_mov_b32 s{dst+3}, 0x20000")


class Gen:
    def __init__(self, opt):
        self.o = dict(unp=4, barit=1, stamps=False, force_fb=False, prefetch=True, prio=True, dbgspan=0, hst=1, sh=1, nj=9, own1=0, l01=0, sched=1, dbl=0, xe1=0, x1l=0, pw=0, ks2=0, binv=0, z2=1, vexec=0, ga=1, tp=1, x2j=31, amps=0, p1=2, p2=5, p3=7, lo0=0, lo1=0, ka=2, lnorm=1, xper=3, dly=0, d0l=1, pre=2, xe=0, sigb2=1, tre=1, badv0=0, shard=1, nslow=64, spf=0, avg=0, xcc=1, xp=0, outf=0, of=0, ampa=0, ampb=0, ampk=0, set=0, nb=5, kv1=7, pd=2, win=3, t1=7, t2=9, sb=18)
        self.o.update(opt)
        self.a = A()
        self.nst = 0

    def stamp(self, i, st=0):
        if i not in (0, 7) and st != self.o['set']:
            return
        if self.o['stamps'] or self.o['dbgspan'] or self.o['ampk']:
            cyc = self.o['stamps'] == 2 or self.o['ampk'] < 0
            self.a(f"{'s_memtime' if cyc else 's_memrealtime'} s[{S_ST+2*i}:{S_ST+2*i+1}]")

    def dump_stamps(self):
        if self.o['dbgspan']:
            a = self.a
            n = self.nst = self.nst + 1
            a("s_waitcnt lgkmcnt(0)", f"s_cmp_lg_u32 s{S_I}, 0", f"s_cbranch_scc1 L_nodump{n}", "s_mov_b64 exec, 1", "v_mov_b32 v8, 0", f"s_not_b32 s{S_T0}, s{S_ST}", f"v_mov_b32 v9, s{S_T0}",
              f"buffer_atomic_umax v9, v8, s[{R_DBG}:{R_DBG+3}], 0 offen offset:8 sc1")
            for k, i in enumerate((0, 1, 3, 6, 7, 5) if n == 2 else (1, 2, 4, 5, 6, 7)):
                a(f"v_mov_b32 v{10+k}, s{S_ST+2*i}", f"buffer_atomic_umax v{10+k}, v8, s[{R_DBG}:{R_DBG+3}], 0 offen offset:{(12 if n == 2 else 36)+4*k} sc1")
            a(f"L_nodump{n}:")
            return
        if not self.o['stamps']:
            return
        a = self.a
        a("s_waitcnt lgkmcnt(0)", f"s_lshl_b32 s{S_T0}, s2, 3", f"s_add_u32 s{S_T0}, s{S_T0}, s{S_WAVE}", f"s_lshl_b32 s{S_T0}, s{S_T0}, 6",
          f"s_mul_i32 s{S_T1}, s{S_B}, {WS_BR}", f"s_sub_u32 s{S_T0}, s{S_T0}, s{S_T1}", f"s_add_u32 s{S_T0}, s{S_T0}, {WS_STAMP}",
          f"s_mov_b32 s{R_WS+2}, 0x2000000", "v_mov_b32 v8, 0")
        for i in range(4):
            for k in range(4):
                a(f"v_mov_b32 v{12+k}, s{S_ST+4*i+k}")
            a(f"buffer_store_dwordx4 v[12:15], v8, s[{R_WS}:{R_WS+3}], s{S_T0} offen offset:{16*i}", "s_nop 1")

    def kv_dma(self, p0, n):
        a = self.a
        for k in range(n):
            a(f"s_add_u32 m0, s{S_M0A}, {L_KV + (p0 + 4*k)*1024}", f"s_add_u32 s{S_T0}, s{S_KVS}, 4096",
              f"buffer_load_dwordx4 v1, s[{R_WS}:{R_WS+3}], s{S_KVS} offen sc1 lds",
              f"s_cmp_ge_u32 s{S_T0}, {KVB}", f"s_cselect_b32 s{S_T1}, {KVB}, 0", f"s_sub_u32 s{S_KVS}, s{S_T0}, s{S_T1}")

    def row_max16(self, v):
        a = self.a
        for k in (8, 4, 2, 1):
            a("s_nop 1", f"v_max_f32_dpp v{v}, v{v}, v{v} row_ror:{k} row_mask:0xf bank_mask:0xf")

    def rest_srds(self):
        a = self.a
        a(f"s_mov_b32 s{R_WO+2}, 663552", f"s_mov_b32 s{R_WO+3}, 0x20000",
          f"s_mul_i32 s{S_T0}, s{S_B}, {WS_BR}", f"s_add_u32 s{R_WS}, s40, s{S_T0}", f"s_addc_u32 s{R_WS+1}, s41, 0",
          f"s_mov_b32 s{R_WS+2}, {WS_OEX + 32*OEX_G}", f"s_mov_b32 s{R_WS+3}, 0x20000")
        srd(a, R_OUT, "s36", "s37", 4718592)
        srd(a, R_DBG, "s38", "s39", 256)

    def norm2(self, x, y):
        a = self.a
        for j in range(4):
            for (qm, qr, dst, tmp) in (x, y):
                a(f"v_dot2_f32_bf16 v{dst}, v{qm+j}, v{qm+j}, {'0' if j == 0 else 'v%d' % dst}",
                  f"v_dot2_f32_bf16 v{tmp}, v{qm+4+j}, v{qm+4+j}, {'0' if j == 0 else 'v%d' % tmp}")
        a("s_nop 0", f"v_permlane32_swap_b32 v{x[2]}, v{x[3]}", "s_nop 0", f"v_permlane32_swap_b32 v{y[2]}, v{y[3]}",
          f"v_add_f32 v{x[2]}, v{x[2]}, v{x[3]}", f"v_add_f32 v{y[2]}, v{y[2]}, v{y[3]}",
          f"v_dot2_f32_bf16 v{x[2]}, v{x[1]}, v{x[1]}, v{x[2]}", f"v_dot2_f32_bf16 v{y[2]}, v{y[1]}, v{y[1]}, v{y[2]}", "s_nop 1",
          f"v_sqrt_f32 v{x[2]}, v{x[2]}", f"v_sqrt_f32 v{y[2]}, v{y[2]}")

    def norm1(self, qm, qr, dst, tmp):
        a = self.a
        for j in range(4):
            a(f"v_dot2_f32_bf16 v{dst}, v{qm+j}, v{qm+j}, {'0' if j == 0 else 'v%d' % dst}",
              f"v_dot2_f32_bf16 v{tmp}, v{qm+4+j}, v{qm+4+j}, {'0' if j == 0 else 'v%d' % tmp}")
        a("s_nop 2", f"v_permlane32_swap_b32 v{dst}, v{tmp}", "s_nop 0", f"v_add_f32 v{dst}, v{dst}, v{tmp}",
          f"v_dot2_f32_bf16 v{dst}, v{qr}, v{qr}, v{dst}", "s_nop 2", f"v_sqrt_f32 v{dst}, v{dst}")

    def init_main_regs(self):
        a = self.a
        a(f"v_mov_b32 v{KR[0]+1}, 0x3f803f80", f"v_mov_b32 v{KR[1]+1}, 0x3f803f80")
        for r in range(O[0], O[0] + 32):
            a(f"v_mov_b32 v{r}, 0")
        for r in range(S[1] + 24, S[1] + 32):
            a(f"v_mov_b32 v{r}, 0")
        if self.o['vexec']:
            self.init_v()
            self.loader_flag()
        else:
            a([f"v_mov_b32 v{r}, 0" for r in range(VV[1][1], VV[1][1] + 4)])

    def ldKm(self, kb):
        return [f"ds_read_b128 {vr(KM[kb%2],4)}, v{V_AK} offset:{(kb//2)*PB+(kb%2)*1024}"]

    def ldKr(self, p):
        return [f"ds_read_b32 v{KR[p%2]}, v{V_AR} offset:{p*PB}"]

    def ldV(self, kb):
        x = [f"ds_read_b128 {vr(VV[kb%2][i],4)}, v{V_AV} offset:{(kb//2)*PB+((kb%2)*2+i)*VG}" for i in range(2)]
        if self.o['vexec']:
            x = [f"s_mov_b64 exec, s[{S_VM}:{S_VM+1}]"] + x + ["s_mov_b64 exec, -1"]
        return x

    def init_v(self):
        a = self.a
        m = sum(1 << r for r in G0 + G1)
        a(f"s_mov_b32 s{S_VM}, {hex(m)}", f"s_mov_b32 s{S_VM+1}, {hex(m)}", "s_mov_b32 vcc_lo, 0x220000", "s_mov_b32 vcc_hi, 0x220000",
          f"v_mov_b32 v{VV[0][0]}, 0x3f803f80", f"v_cndmask_b32 v{VV[0][0]}, 0, v{VV[0][0]}, vcc")
        a([f"v_mov_b32 v{VV[0][0]+k}, v{VV[0][0]}" for k in range(1, 16)])

    def qk(self, dst, kb, pr):
        return [B2(dst, KR[(kb//2) % 2], QRS[pr], kb % 2), K16(dst, KM[kb % 2], QMS[2*pr]), K16(dst + 16, KM[kb % 2], QMS[2*pr+1])]

    def main_prologue_loads(self):
        self.a(self.ldKr(0), self.ldKm(0), self.ldKm(1), self.ldKr(1), self.ldV(0))

    def start(self):
        a, o = self.a, self.o
        a("s_cmp_ge_u32 s2, 256", "s_cbranch_scc1 L_end")
        a("s_load_dwordx16 s[16:31], s[0:1], 0", "s_load_dwordx8 s[32:39], s[0:1], 64", "s_load_dwordx2 s[40:41], s[0:1], 96")
        self.stamp(0)
        a("s_getpc_b64 s[42:43]", "L_pc:")
        a("v_lshrrev_b32 v1, 6, v0", "v_and_b32 v0, 63, v0", f"v_readfirstlane_b32 s{S_WAVE}, v1", "v_lshlrev_b32 v1, 4, v0",
          f"s_lshr_b32 s{S_T2}, s2, 3", f"s_and_b32 s{S_B}, s2, 1", f"s_and_b32 s{S_HG}, s{S_T2}, 3", f"s_lshr_b32 s{S_GI}, s2, 5")
        if o['binv']:
            a(f"s_xor_b32 s{S_B}, s{S_B}, 1")
        if o['prefetch']:
            a(f"s_cmp_lg_u32 s{S_WAVE}, 7", "s_cbranch_scc1 L_nopf", f"s_cmp_ge_u32 s{S_T2}, (L_codeend-{NAME})/1024", "s_cbranch_scc1 L_nopf",
              f"s_lshl_b32 s{S_T2}, s{S_T2}, 10", f"s_sub_u32 s{S_T0}, s42, L_pc-{NAME}", f"s_subb_u32 s{S_T1}, s43, 0",
              f"s_add_u32 s{S_T0}, s{S_T0}, s{S_T2}", f"s_addc_u32 s{S_T1}, s{S_T1}, 0",
              f"v_mov_b32 v7, s{S_T1}", f"v_add_co_u32 v6, vcc, s{S_T0}, v1", "s_nop 1", "v_addc_co_u32 v7, vcc, 0, v7, vcc", "s_nop 0",
              "global_load_dwordx4 v[24:27], v[6:7], off", "L_nopf:")
        a(f"s_bfe_u32 s{S_PG}, s2, 0x20001", f"s_lshl_b32 s{S_PG}, s{S_PG}, 3", f"s_add_u32 s{S_PG}, s{S_PG}, s{S_GI}",
          f"s_and_b32 s{S_I}, s{S_WAVE}, 3", f"s_and_b32 s{S_PBI}, s{S_WAVE}, 1", f"s_lshr_b32 s{S_HQ}, s{S_I}, 1")
        a("v_lshrrev_b32 v8, 3, v0", "v_lshrrev_b32 v9, 4, v0", f"s_lshl_b32 s{S_T0}, s{S_PBI}, 2", f"v_or_b32 v9, s{S_T0}, v9",
          "v_and_b32 v10, 7, v0", "v_xor_b32 v9, v9, v10", "v_lshlrev_b32 v9, 4, v9", "v_mov_b32 v10, 0x480", "v_mad_u32_u24 v8, v8, v10, v9",
          f"s_lshl_b32 s{S_T0}, s{S_I}, 6", f"v_add_u32 v9, s{S_T0}, v0", "v_mul_u32_u24 v10, 0xab, v9", "v_lshrrev_b32 v10, 9, v10", "v_mul_u32_u24 v10, 12, v10",
          "v_lshlrev_b32 v9, 4, v9", "v_sub_u32 v9, v9, v10")
        a(f"s_and_b32 s{S_T4}, s{S_HG}, 2", f"s_lshl_b32 s{S_T4}, s{S_T4}, 1", f"s_add_u32 s{S_T4}, s{S_T4}, s{S_I}",
          f"s_lshl_b32 s{S_T5}, s{S_PG}, 3", f"s_add_u32 s{S_XB}, s{S_T5}, s{S_T4}", f"s_mul_i32 s{S_XB}, s{S_XB}, {8*1152}",
          f"s_mul_i32 s{S_XM}, s{S_T4}, 9216", f"s_add_u32 s{S_XM}, s{S_XM}, {L_X}", f"s_lshl_b32 s{S_T0}, s{S_I}, 10", f"s_add_u32 s{S_T0}, s{S_T0}, {L_W}",
          f"s_lshr_b32 s{S_T1}, s{S_HG}, 1", f"s_movk_i32 s{S_DI}, 3072", f"s_movk_i32 s{S_DS}, 2304",
          f"s_cmp_lt_u32 s{S_WAVE}, 4", "s_cselect_b64 vcc, -1, 0", f"s_cselect_b32 s{S_XB}, s{S_XB}, 0", f"s_cselect_b32 s{S_XM}, s{S_XM}, s{S_T0}",
          f"s_cselect_b32 s{S_T1}, s{S_HG}, s{S_T1}", f"s_cselect_b32 s{S_DI}, 1024, s{S_DI}", f"s_cselect_b32 s{S_DS}, 128, s{S_DS}",
          "v_cndmask_b32 v9, v9, v8, vcc")
        self.dma9_setup(S_T1)
        a("s_waitcnt lgkmcnt(0)", f"s_cmp_eq_u32 s{S_B}, 0", f"s_cselect_b64 s[{R_X}:{R_X+1}], s[16:17], s[26:27]",
          f"s_cselect_b64 s[20:21], s[20:21], s[30:31]", f"s_cselect_b64 s[22:23], s[22:23], s[32:33]",
          f"s_cselect_b64 s[{R_WQ}:{R_WQ+1}], s[18:19], s[28:29]", f"s_cselect_b64 s[{R_WO}:{R_WO+1}], s[24:25], s[34:35]",
          f"s_bitcmp0_b32 s{S_HG}, 0", f"s_cselect_b64 s[{R_W}:{R_W+1}], s[20:21], s[22:23]", f"s_mov_b32 s{R_X+2}, 2359296", f"s_movk_i32 s{R_W+2}, 20736",
          f"s_cmp_lt_u32 s{S_WAVE}, 4", f"s_cselect_b64 s[{R_W}:{R_W+1}], s[{R_X}:{R_X+1}], s[{R_W}:{R_W+1}]", f"s_cselect_b32 s{R_W+2}, s{R_X+2}, s{R_W+2}",
          f"s_mov_b32 s{R_W+3}, 0x20000", f"s_mov_b32 s{R_X+3}, 0x20000")
        self.stamp(1, 2)
        a(f"s_cmp_lt_u32 s{S_WAVE}, 4", "s_cbranch_scc1 L_r1", "s_setprio 1", f"s_cmp_eq_u32 s{S_WAVE}, 7", "s_cbranch_scc1 L_late", "L_r1:")
        self.dma9(R_W, 9)
        a(f"s_cmp_ge_u32 s{S_WAVE}, 4", "s_cbranch_scc1 L_late")

    def wq_prefetch(self, n, first):
        a = self.a
        a(f"s_mov_b32 s{R_WQ+2}, 663552", f"s_mov_b32 s{R_WQ+3}, 0x20000", "v_lshlrev_b32 v30, 7, v0", f"s_lshr_b32 s{S_T0}, s2, 3", f"s_mul_i32 s{S_T0}, s{S_T0}, 20736")
        if first:
            a(f"s_mul_i32 s{S_T1}, s{first}, 6912", f"s_add_u32 s{S_T0}, s{S_T0}, s{S_T1}")
        a("s_mov_b32 exec_hi, 0x3fffff")
        for k in range(n):
            a(f"buffer_load_dword v{108+k}, v30, s[{R_WQ}:{R_WQ+3}], s{S_T0} offen", f"s_add_u32 s{S_T0}, s{S_T0}, 6912")
        a("s_mov_b32 exec_hi, -1")

    def dma9_setup(self, sel):
        self.a(f"s_bitcmp1_b32 s{sel}, 0", f"s_cselect_b32 s{S_XI}, 5, 0",
               f"s_add_u32 s{S_XS}, s{S_XI}, s{S_GI}", f"s_cmp_ge_u32 s{S_XS}, 9", f"s_cselect_b32 s{S_T0}, 9, 0", f"s_sub_u32 s{S_XS}, s{S_XS}, s{S_T0}",
               f"s_mul_i32 s{S_XS}, s{S_XS}, s{S_DS}", f"s_mul_i32 s{S_XI}, s{S_XI}, s{S_DI}", f"s_mul_i32 s{S_LI}, s{S_DI}, 9", f"s_mul_i32 s{S_LS}, s{S_DS}, 9")

    def dma9(self, srd_, v):
        for i in range(9):
            self.a(f"s_add_u32 m0, s{S_XM}, s{S_XI}", f"s_add_u32 s{S_T3}, s{S_XB}, s{S_XS}",
                   f"buffer_load_dwordx4 v{v}, s[{srd_}:{srd_+3}], s{S_T3} offen lds")
            if i < 8:
                self.a(f"s_add_u32 s{S_XS}, s{S_XS}, s{S_DS}", f"s_cmp_eq_u32 s{S_XS}, s{S_LS}", f"s_cselect_b32 s{S_XS}, 0, s{S_XS}",
                       f"s_add_u32 s{S_XI}, s{S_XI}, s{S_DI}", f"s_cmp_eq_u32 s{S_XI}, s{S_LI}", f"s_cselect_b32 s{S_XI}, 0, s{S_XI}")

    def table_load(self):
        self.a(f"s_add_u32 s{S_T0}, s42, L_table-L_pc", f"s_addc_u32 s{S_T1}, s43, 0",
               f"v_mov_b32 v7, s{S_T1}", f"v_add_co_u32 v6, vcc, s{S_T0}, v1", "s_nop 1", "v_addc_co_u32 v7, vcc, 0, v7, vcc", "s_nop 0",
               "global_load_dwordx4 v[20:23], v[6:7], off")

    def wq_setup(self, d, part=3):
        a = self.a
        if part & 1:
            a(f"s_mov_b32 s{R_WQ+2}, 663552", f"s_mov_b32 s{R_WQ+3}, 0x20000", f"s_lshl_b32 s{S_T0}, s{S_I}, 6", f"s_mul_i32 s{S_T1}, s{S_HG}, 288", "v_mov_b32 v16, 0x480")
        for t in range(3 if part & 1 else 0):
            a(f"v_add_u32 v13, s{S_T0}, v0", "v_mul_u32_u24 v14, 0xe39, v13", "v_lshrrev_b32 v14, 16, v14",
              "v_mul_u32_u24 v15, 18, v14", "v_sub_u32 v13, v13, v15", "v_lshlrev_b32 v13, 4, v13",
              "v_bfe_u32 v15, v14, 1, 2", "v_and_b32 v17, 1, v14", "v_lshl_add_u32 v15, v17, 2, v15", "v_and_b32 v14, 24, v14", "v_add_u32 v14, v14, v15",
              "v_mad_u32_u24 v13, v14, v16, v13", f"v_add_u32 v{10+t}, s{S_T1}, v13")
            if t < 2:
                a(f"s_add_u32 s{S_T0}, s{S_T0}, 192")
        if not part & 2:
            return
        a(f"s_lshl_b32 s{S_M0A}, s{S_I}, 10", f"s_mul_i32 s{S_ROW}, s{S_GI}, {64*1152}")
        if d:
            a(f"s_add_u32 s{S_ROW}, s{S_ROW}, {32*d*1152}", f"s_cmp_ge_u32 s{S_ROW}, {576*1152}",
              f"s_cselect_b32 s{S_T0}, {576*1152}, 0", f"s_sub_u32 s{S_ROW}, s{S_ROW}, s{S_T0}")

    def wq_list(self, d):
        n = self.nlab = getattr(self, 'nlab', 0) + 1
        s0 = dslot(d)
        ld = lambda r: f"buffer_load_dwordx4 v{r}, s[{R_WQ}:{R_WQ+3}], s{S_ROW} offen lds"
        return [f"s_cbranch_vccz L_wq{n}",
                f"s_add_u32 m0, s{S_M0A}, {s0}", f"s_add_u32 s{S_T0}, s{S_ROW}, {32*1152}", ld(10),
                f"s_add_u32 m0, s{S_M0A}, {s0+3072}", "s_nop 0", ld(11),
                f"s_add_u32 m0, s{S_M0A}, {s0+6144}", f"s_cmp_ge_u32 s{S_T0}, {576*1152}", ld(12),
                f"s_cselect_b32 s{S_T1}, {576*1152}, 0", f"s_sub_u32 s{S_ROW}, s{S_T0}, s{S_T1}", f"L_wq{n}:"]

    def wq_dma(self, d):
        self.a(self.wq_list(d))

    def loader_flag(self):
        self.a(f"s_cmp_lt_u32 s{S_I}, 3", "s_cselect_b64 vcc, -1, 0")

    @property
    def GROUPS(self):
        if self.o['pre'] == 5:
            return [(3, 2), (5, 6), (7, 10), (9, 14), (11, 18), (13, 22), (15, 26), (17, 30)]
        if self.o['pre'] == 1:
            return [(3, 2), (5, 6), (7, 10), (9, 14), (11, 18), (13, 22), (15, 26), (17, 30)]
        if self.o['pre'] == 2:
            return [(2, 2), (3, 4), (5, 6), (7, 10), (9, 14), (11, 18), (13, 22), (15, 26), (17, 30)]
        return [(3, 2), (5, 6), (7, 10), (9, 14), (11, 18), (13, 22), (15, 26), (17, 30)]

    def early_front(self):
        a, o = self.a, self.o
        self.stamp(2, 2)
        if o['spf'] == 5:
            a(f"s_cmp_lg_u32 s{S_WAVE}, 3", "s_cbranch_scc1 L_nospf", "s_waitcnt vmcnt(6)")
            self.wq_prefetch(3, None)
            a("L_nospf:")
        self.table_load()
        self.wq_setup(o['l01'])
        self.loader_flag()
        if not o['d0l']:
            self.wq_dma(0)
        self.rest_srds()
        a("v_and_b32 v16, 31, v0", "v_lshrrev_b32 v13, 5, v0", "v_bfe_u32 v14, v0, 1, 3", "v_xor_b32 v13, v13, v14", "v_lshlrev_b32 v13, 4, v13",
          "v_and_b32 v14, 7, v0", "v_lshl_add_u32 v13, v14, 7, v13", "v_lshrrev_b32 v16, 3, v16", "v_mul_u32_u24 v16, 0x2400, v16",
          f"s_mul_i32 s{S_T0}, s{S_PBI}, {4*9216}", f"s_add_u32 s{S_T0}, s{S_T0}, {L_X}", f"v_add3_u32 v8, v16, v13, s{S_T0}",
          "v_xor_b32 v9, 32, v8", "v_xor_b32 v108, 64, v8", "v_xor_b32 v109, 0x60, v8")
        a("v_bfe_u32 v18, v0, 2, 2", "v_lshrrev_b32 v15, 5, v0", "v_lshlrev_b32 v15, 2, v15", "v_add_u32 v15, v15, v18", "v_mul_u32_u24 v15, 0x240, v15",
          f"s_mul_i32 s{S_T0}, s{S_HQ}, 144", "v_and_b32 v13, 1, v0", "v_lshl_add_u32 v15, v13, 4, v15", f"v_add_u32 v15, s{S_T0}, v15",
          "v_bfe_u32 v13, v0, 1, 1", "v_bfe_u32 v14, v0, 4, 1", "v_lshl_add_u32 v6, v13, 3, v15", "v_lshl_add_u32 v6, v14, 5, v6",
          "v_mul_u32_u24 v13, 72, v13", "v_add3_u32 v7, v13, v15, 48")
        if o['ks2']:
            a(f"s_mul_i32 s{S_T0}, s{S_HQ}, -288", f"s_add_u32 s{S_T0}, s{S_T0}, 144", f"v_mul_i32_i24 v13, s{S_T0}, v14", "v_add_u32 v7, v7, v13")
        elif o['z2']:
            a("v_lshl_add_u32 v7, v14, 20, v7")
        a(f"v_mov_b32 v{V_IDX}, 0xdddddddd", f"v_add_u32 v{V_AK}, {L_KV}, v1", f"v_lshlrev_b32 v{V_AR}, 2, v0", f"v_add_u32 v{V_AR}, {L_KV+2048}, v{V_AR}",
          "v_mov_b32 v110, 0", "v_mov_b32 v111, 0", f"v_mov_b32 v19, {L_KMAX}", f"s_mov_b32 s{S_STG}, 1")
        self.tail_scalars()
        if o['d0l']:
            a("s_waitcnt vmcnt(1)")
        else:
            a(f"s_cmp_eq_u32 s{S_WAVE}, 3", "s_cbranch_scc0 L_e3", f"s_waitcnt vmcnt({4 if o['spf'] == 5 else 1})", "L_e3:", "s_waitcnt vmcnt(4)")
        self.stamp(3, 2)
        a("s_barrier")
        PRE = o['pre']
        for d in range(o['l01'], PRE + 1):
            self.wq_dma(d)
        a(f"s_cmp_eq_u32 s{S_WAVE}, 3", "s_cbranch_scc0 L_e4", "s_waitcnt vmcnt(0)", "L_e4:", f"s_waitcnt vmcnt({3*(PRE-1)})", f"v_mov_b32 v{V_AV}, v20", "v_mov_b32 v21, 0x3f803f80")
        self.stamp(1)
        self.stamp(4, 2)
        a("s_barrier")
        self.stamp(5, 2)
        XF = 112
        T0, T1, TR, TR2 = 24, 40, 56, 128
        KX = 26
        PD = o['pd']
        FB = [72, 84, 96]
        state = dict(base=0)

        def rd(ks):
            x = []
            off = slot_addr(ks) - state['base']
            if off < 0 or off + 360 > 65535:
                d = slot_addr(ks) - state['base']
                x += [f"v_add_u32 v{r}, {d}, v{r}" if d > 0 else f"v_subrev_u32 v{r}, {-d}, v{r}" for r in (6, 7)]
                state['base'] = slot_addr(ks)
                off = 0
            f = FB[ks % (PD + 1)]
            return x, [f"ds_read_b64_tr_b16 {vr(f,2)}, v6 offset:{off}", f"ds_read_b64_tr_b16 {vr(f+2,2)}, v6 offset:{off+288}",
                       f"ds_read_b64_tr_b16 {vr(f+4,2)}, v6 offset:{off+72}", f"ds_read_b64_tr_b16 {vr(f+6,2)}, v6 offset:{off+360}",
                       f"ds_read_b64_tr_b16 {vr(f+8,2)}, v7 offset:{off}", f"ds_read_b64_tr_b16 {vr(f+10,2)}, v7 offset:{off+288}"]

        def mm(ks, first2):
            f = FB[ks % (PD + 1)]
            c = "0" if ks == 0 else None
            if o['ks2'] and ks >= KX:
                m2 = K16(TR2, f + 8, XF + 4 * ks, vr(TR, 16) if ks == KX else None)
            else:
                m2 = K16(TR, f + 8, XF + 4 * ks, "0" if first2 else None)
            return [K16(T0, f, XF + 4 * ks, c), K16(T1, f + 4, XF + 4 * ks, c), m2]

        def kloop(par):
            state['base'] = 0
            nt = lambda ks: 2 if (o['ks2'] and ks < KX and ks % 2 != par) else 3
            XA = [8, 9, 108, 109]
            q = []

            def issue(tag, ins):
                a(ins)
                q.append(tag)

            def need(*tags):
                last = max((i for i, t in enumerate(q) if t in tags), default=-1)
                if last >= 0:
                    left = len(q) - 1 - last
                    a(f"s_waitcnt lgkmcnt({min(left, 14)})")
                    del q[:last + 1]

            def xrd(i):
                issue(('x', i), f"ds_read_b128 {vr(XF+4*i,4)}, v{XA[i&3]} offset:{(i>>2)*1024}")
            xrd(0)
            for j, r in enumerate(rd(0)[1][:2*nt(0)]):
                issue(('w', 0, j >> 1), r)
            xrd(1)
            for j, r in enumerate(rd(1)[1][:2*nt(1)]):
                issue(('w', 1, j >> 1), r)
            nx = 2
            G = [k for _, k in self.GROUPS]
            ev = {k: ["s_barrier"] for k in G}
            prev = 1
            for last, k in self.GROUPS:
                if prev < PRE:
                    ev[k] = [f"s_waitcnt vmcnt({3*max(PRE-last, 0)})", "s_barrier"]
                prev = last
            for ks in range(36):
                m = mm(ks, ks == par)
                if ks in ev:
                    if ks == 6:
                        need(('x', 35))
                        assert nx == 36 and not any(t[0] == 'x' for t in q)
                    if len(ev[ks]) > 1 and o["stamps"]:
                        a(ev[ks][0])
                    if ks in (2, 6, 10, 14, 22, 30):
                        self.stamp(1 + (2, 6, 10, 14, 22, 30).index(ks), 3)
                    if ks == 30:
                        need('e')
                    a(ev[ks])
                    if ks == 6:
                        self.stamp(2)
                        self.stamp(6, 2)
                pre, n = rd(ks + 2) if ks + 2 < 36 else ([], [])
                fine = nx < 36 or ks == 35
                if not fine:
                    need(('x', ks), ('w', ks, nt(ks) - 1))
                for t in range(3):
                    if t < nt(ks):
                        if fine:
                            need(('x', ks), ('w', ks, t))
                        a(m[t])
                    if t == 0:
                        a(pre)
                    for k in range(o['xper']):
                        if nx < 36:
                            xrd(nx)
                            nx += 1
                    if t < nt(ks + 2):
                        for r in n[2*t:2*t+2]:
                            issue(('w', ks + 2, t), r)
                if o['ks2'] and ks == KX + 2:
                    issue('e', f"ds_write_b128 v13, {vr(TR+8,4)}")
                    issue('e', f"ds_write_b128 v13, {vr(TR+12,4)} offset:1024")
                if o['ks2'] and ks == 31:
                    issue('i', f"ds_read_b128 {vr(XF,4)}, v14")
                    issue('i', f"ds_read_b128 {vr(XF+4,4)}, v14 offset:1024")
            assert not [t for t in q if t != 'i'] and True
            need('i')
        if o['ks2']:
            a(f"s_mul_i32 s{S_T0}, s{S_WAVE}, 2048", f"s_add_u32 s{S_T0}, s{S_T0}, {L_T2X}", f"v_add_u32 v13, s{S_T0}, v1", "v_xor_b32 v14, 0x1000, v13",
              f"s_cmp_eq_u32 s{S_HQ}, 1", "s_cbranch_scc1 L_kodd")
            kloop(0)
            a("s_branch L_kdone", "L_kodd:")
            kloop(1)
            a("L_kdone:")
        else:
            kloop(0)
        self.stamp(3)
        self.stamp(3, 6)
        a("v_mov_b32 v7, v19", f"v_mov_b32 v{KR[0]+1}, 0x3f803f80", f"s_mov_b32 s{S_BAR}, {32//o['unp'] - 1}", "s_mov_b32 vcc_lo, 0", "s_mov_b32 vcc_hi, -1", "s_nop 2")
        for (dst, t) in ((QM[0], T0), (QM2[0], T1)):
            for j, r in enumerate((0, 2, 4, 6, 10, 12, 14)):
                a(f"v_cvt_pk_bf16_f32 v{dst+j}, v{t+r}, v{t+r+1}")
        for (dst, qr, t, t2, tmp) in ((QM[0], QR, T0, TR, 108), (QM2[0], QR2, T1, TR + 4, 107)):
            a(f"v_cvt_pk_bf16_f32 v{dst+7}, v{t2}, v{t2+1}", f"v_cvt_pk_bf16_f32 v{qr}, v{t+8}, v{t+9}", f"v_cvt_pk_bf16_f32 v{tmp}, v{t2+2}, v{t2+3}")
        a(f"v_cndmask_b32 v{QR}, v{QR}, v108, vcc", f"v_cndmask_b32 v{QR2}, v{QR2}, v107, vcc")
        a([K8Z(x, 110) for x in (O2[1], O[0])])
        self.stamp(1, 6)
        a("s_barrier")
        self.stamp(2, 6)
        a("ds_read_b32 v6, v7")
        self.main_prologue_loads()
        self.norm2((QM[0], QR, QR + 1, 108), (QM2[0], QR2, QR2 + 1, 107))
        a([K8Z(x, 110) for x in (O[1], O2[0])])
        a([f"v_mov_b32 v{r}, 0" for r in range(VV[1][1], VV[1][1] + 4)])
        a("s_setprio 1", "s_waitcnt lgkmcnt(0)")

    def late_front(self):
        a, o = self.a, self.o
        a.label("L_late")
        a("s_setprio 0")
        if o['spf'] == 3:
            a(f"s_cmp_lg_u32 s{S_WAVE}, 7", "s_cbranch_scc1 L_nospf")
            self.wq_prefetch(3, None)
            a("L_nospf:")
        if o['spf'] == 4:
            a(f"s_cmp_eq_u32 s{S_WAVE}, 7", "s_cbranch_scc1 L_nospf")
            self.wq_prefetch(1, S_I)
            a("L_nospf:")
        self.stamp(2, 2)
        self.rest_srds()
        if o['shard']:
            a("v_and_b32 v160, 7, v0", "v_lshlrev_b32 v160, 9, v160", f"s_cmp_lg_u32 s{S_WAVE}, 7", "s_cbranch_scc1 L_nov0", f"s_mov_b32 s{S_T0}, {WS_CNT}",
              f"buffer_load_dword v161, v160, s[{R_WS}:{R_WS+3}], s{S_T0} offen sc0 sc1", "L_nov0:")
        self.wq_setup(6, 1)
        a(f"s_xor_b32 s{S_T4}, s{S_T4}, 4", f"s_add_u32 s{S_XB}, s{S_T5}, s{S_T4}", f"s_mul_i32 s{S_XB}, s{S_XB}, {8*1152}",
          f"s_mul_i32 s{S_XM}, s{S_T4}, 9216", f"s_add_u32 s{S_XM}, s{S_XM}, {L_X}", f"s_movk_i32 s{S_DI}, 1024", f"s_movk_i32 s{S_DS}, 128")
        a("v_and_b32 v13, 15, v0", "v_lshrrev_b32 v16, 4, v0",
          "v_bfe_u32 v17, v0, 1, 3", "v_xor_b32 v17, v16, v17", "v_lshlrev_b32 v17, 4, v17",
          "v_and_b32 v18, 7, v0", "v_lshl_add_u32 v17, v18, 7, v17", "v_bfe_u32 v18, v0, 3, 1", "v_mul_u32_u24 v18, 0x2400, v18",
          f"s_lshr_b32 s{S_T0}, s{S_HG}, 1", f"s_lshl_b32 s{S_T0}, s{S_T0}, 1", f"s_add_u32 s{S_T0}, s{S_T0}, s{S_PBI}",
          f"s_mul_i32 s{S_T1}, s{S_T0}, {2*9216}", f"s_add_u32 s{S_T1}, s{S_T1}, {L_X}", f"v_add3_u32 v14, v17, v18, s{S_T1}", "v_xor_b32 v15, 64, v14",
          "v_bfe_u32 v17, v0, 2, 2", "v_lshl_add_u32 v17, v16, 3, v17",
          "v_mul_u32_u24 v17, 48, v17", "v_and_b32 v18, 3, v0", "v_lshlrev_b32 v18, 3, v18",
          f"s_cmp_eq_u32 s{S_HQ}, 0", "s_cselect_b64 vcc, -1, 0", "v_mov_b32 v19, 32", "v_cndmask_b32 v18, v19, v18, vcc", f"v_add_u32 v17, {L_W}, v17", "v_add_u32 v17, v17, v18")
        a("v_lshrrev_b32 v19, 5, v0", "v_lshlrev_b32 v19, 9, v19", "v_lshl_add_u32 v19, v13, 4, v19",
          "v_bfe_u32 v18, v0, 4, 1", "v_lshl_add_u32 v28, v18, 3, v19", "v_lshlrev_b32 v29, 2, v13",
          f"s_mul_i32 s{S_KVS}, s{S_PG}, {PB}", f"s_mov_b32 s{S_OEX}, s{S_T0}")
        self.dma9_setup(S_HG)
        self.dma9(R_X, 8)
        self.stamp(3, 2)
        self.table_load()
        if o['spf'] == 2:
            a(f"s_cmp_lg_u32 s{S_WAVE}, 7", "s_cbranch_scc1 L_nospf")
            self.wq_prefetch(3, None)
            a("L_nospf:")
        if o['l01']:
            self.wq_setup(0, 2)
            self.loader_flag()
            for d in range(o['l01']):
                self.wq_dma(d)
        a("s_setprio 1", f"s_waitcnt vmcnt({10 + 3 * o['l01']})")
        self.stamp(1)
        self.stamp(4, 2)
        a("s_barrier")
        a(f"s_bitcmp1_b32 s{S_HG}, 0", "s_cbranch_scc1 L_vproj")
        D = 32
        NB = o['nb']
        for isv in (0, 1):
            if isv:
                a.label("L_vproj")

            def rd(s):
                xb = 40 + 8 * (s % NB)
                return [f"ds_read_b128 {vr(xb,4)}, v{14+(s&1)} offset:{(s>>1)*1024}",
                        f"ds_read_b64_tr_b16 {vr(xb+4,2)}, v17 offset:{s*1536}", f"ds_read_b64_tr_b16 {vr(xb+6,2)}, v17 offset:{s*1536+192}"]
            for s in range(NB - 1):
                a(rd(s))
            for s in range(18):
                if s == o['sb']:
                    a("s_waitcnt vmcnt(0)", "s_barrier")
                if s == 17 and o['sb'] == 18 and not o['l01']:
                    a("s_waitcnt vmcnt(0)")
                if s + NB - 1 < 18:
                    a(rd(s + NB - 1))
                left = min(18 - 1 - s, NB - 1)
                xb = 40 + 8 * (s % NB)
                c = "0" if s == 0 else None
                a(f"s_waitcnt lgkmcnt({min(15,3*left)})", M16(D, xb, xb + 4, c) if isv else M16(D, xb + 4, xb, c))
            g = S_OEX
            if not isv:
                a(f"s_lshr_b32 s{S_T0}, s{g}, 1", f"s_lshl_b32 s{S_T0}, s{S_T0}, 10", f"s_lshl_b32 s{S_T1}, s{S_PBI}, 8", f"s_add_u32 s{S_T0}, s{S_T0}, s{S_T1}",
                  f"s_add_u32 s{S_T0}, s{S_T0}, s{S_KVS}",
                  f"s_lshl_b32 s{S_T1}, s{g}, 6", f"s_add_u32 s{S_T1}, s{S_T1}, s{S_KVS}", f"s_add_u32 s{S_T1}, s{S_T1}, 2048",
                  f"s_mov_b32 s{S_T2}, {hex(f2u(CSCALE))}")
                for r in range(4):
                    a(f"v_mul_f32 v{D+r}, s{S_T2}, v{D+r}")
                a(f"v_cvt_pk_bf16_f32 v{D}, v{D}, v{D+1}", f"v_cvt_pk_bf16_f32 v{D+1}, v{D+2}, v{D+3}",
                  f"s_lshl_b32 s{S_T3}, s{S_PG}, 2", f"s_add_u32 s{S_T3}, s{S_T3}, s{g}", f"s_lshl_b32 s{S_T3}, s{S_T3}, 2", f"s_add_u32 s{S_T3}, s{S_T3}, {WS_KN}",
                  f"v_dot2_f32_bf16 v36, v{D}, v{D}, 0",
                  f"s_cmp_eq_u32 s{S_HQ}, 0", "s_cbranch_scc0 L_krem",
                  f"buffer_store_dwordx2 {vr(D,2)}, v28, s[{R_WS}:{R_WS+3}], s{S_T0} offen sc1",
                  f"v_dot2_f32_bf16 v36, v{D+1}, v{D+1}, v36", "s_nop 2", "v_mov_b32 v37, v36", "s_nop 1",
                  "v_permlane16_swap_b32 v36, v37", "s_nop 1", "v_add_f32 v36, v36, v37", "s_nop 0", "v_mov_b32 v37, v36", "s_nop 1",
                  "v_permlane32_swap_b32 v36, v37", "s_nop 1", "v_add_f32 v36, v36, v37", "s_branch L_knorm",
                  "L_krem:", "s_mov_b64 exec, 0xffff",
                  f"buffer_store_dword v{D}, v29, s[{R_WS}:{R_WS+3}], s{S_T1} offen sc1", "s_mov_b64 exec, -1", f"s_add_u32 s{S_T3}, s{S_T3}, 512",
                  "L_knorm:", "s_nop 1")
                self.row_max16(36)
                a("v_mov_b32 v37, 0", "s_mov_b64 exec, 1", f"buffer_store_dword v36, v37, s[{R_WS}:{R_WS+3}], s{S_T3} offen sc1", "s_mov_b64 exec, -1")
                if o['l01']:
                    a("s_waitcnt vmcnt(2)")
                a("s_branch L_kvdone")
            else:
                a(f"s_mul_i32 s{S_T0}, s{g}, {VG}", f"s_add_u32 s{S_T0}, s{S_T0}, s{S_KVS}", f"s_add_u32 s{S_T0}, s{S_T0}, 2304",
                  "v_cmp_eq_u32 vcc, 2, v13", f"v_cmp_eq_u32 s[{S_EX}:{S_EX+1}], 3, v13", "v_mov_b32 v30, 0x3f803f80", "s_nop 0",
                  f"s_cmp_eq_u32 s{S_HQ}, 0",
                  f"v_cvt_pk_bf16_f32 v{D}, v{D}, v{D+1}", f"v_cvt_pk_bf16_f32 v{D+1}, v{D+2}, v{D+3}", "s_cbranch_scc0 L_vrem",
                  f"buffer_store_dwordx2 {vr(D,2)}, v21, s[{R_WS}:{R_WS+3}], s{S_T0} offen sc1", "s_branch L_vdone",
                  "L_vrem:",
                  f"v_cndmask_b32 v{D}, v{D}, v30, vcc", f"v_cndmask_b32 v{D+1}, v{D+1}, v30, vcc",
                  f"v_cndmask_b32 v{D}, v{D}, 0, s[{S_EX}:{S_EX+1}]", f"v_cndmask_b32 v{D+1}, v{D+1}, 0, s[{S_EX}:{S_EX+1}]",
                  "s_mov_b32 exec_lo, 0x000f000f", "s_mov_b32 exec_hi, 0x000f000f",
                  f"buffer_store_dwordx2 {vr(D,2)}, v22, s[{R_WS}:{R_WS+3}], s{S_T0} offen sc1", "s_mov_b64 exec, -1", "L_vdone:")
                if o['l01']:
                    a("s_waitcnt vmcnt(1)")
        a.label("L_kvdone")
        if True:
            a("s_getreg_b32 s29, hwreg(HW_REG_XCC_ID, 0, 4)", f"s_cmp_lg_u32 s{S_WAVE}, 4", "s_cbranch_scc1 L_noxid",
              f"s_lshl_b32 s{S_T0}, s{S_PG}, 2", f"s_add_u32 s{S_T0}, s{S_T0}, s{S_HG}", f"s_lshl_b32 s{S_T0}, s{S_T0}, 2", f"s_add_u32 s{S_T0}, s{S_T0}, {WS_XID}",
              "v_mov_b32 v38, s29", "v_mov_b32 v39, 0", "s_mov_b64 exec, 1", f"buffer_store_dword v38, v39, s[{R_WS}:{R_WS+3}], s{S_T0} offen sc1", "s_mov_b64 exec, -1", "L_noxid:")
        self.stamp(2)
        self.stamp(5, 2)
        a(f"v_mov_b32 v{V_AV}, v20")
        self.wq_setup(o['pre'] + 1, 2)
        self.loader_flag()
        a("v_mov_b32 v100, 1", "v_mov_b32 v101, 0")
        if o['sb'] == 18:
            a("s_barrier")
        nxt = first = o['pre'] + 1
        NG = len(self.GROUPS)
        passed = -1
        signalled = False
        for gi_, (last, step) in enumerate(self.GROUPS):
            lim = 5 if passed < 2 else 8 if passed < 6 else 16 if passed < 14 else 17
            tgt = min(last + o['win'], lim)
            while nxt <= tgt:
                self.wq_dma(nxt)
                nxt += 1
            assert nxt > last
            if step == 14:
                self.wo_job_addr(0)
                self.poison_addr()
            if step == 18:
                a(f"s_cmp_ge_u32 s{S_OEX}, {648-512}", "s_cselect_b32 s16, 0, 512", f"s_add_u32 s{S_OEX}, s{S_OEX}, s16")
                self.wo_job_addr(1)
                self.loader_flag()
            if gi_ == NG - 3:
                a(f"s_and_b32 s{S_T0}, s{S_GI}, 3", f"s_mul_i32 s{S_KVS}, s{S_T0}, {37*1024}", f"s_add_u32 s{S_KVS}, s{S_KVS}, s{S_M0A}",
                  "v_lshlrev_b32 v153, 3, v0", f"s_mov_b32 s{S_T4}, {WS_KN}", f"s_lshl_b32 s{S_T5}, s{S_B}, 7")
            sig = last >= first and not signalled
            if sig:
                a(f"s_cbranch_vccnz L_l{gi_}", "s_waitcnt vmcnt(0)", f"L_l{gi_}:")
                signalled = True
            if last >= first:
                a(f"s_waitcnt vmcnt({3*(nxt-1-last)})")
            passed = step
            if step == 10:
                a(f"v_mov_b32 v150, {L_FLAG}", "v_mov_b32 v152, 0", "v_mov_b32 v153, 0", "v_mov_b32 v154, 0", "v_mov_b32 v155, 0", "v_mov_b32 v151, 0", "ds_write_b128 v150, v[152:155]", "s_waitcnt lgkmcnt(0)")
            if gi_ == NG - 3 and o['tre']:
                a("s_cbranch_vccnz L_try1", f"s_mov_b32 s{S_T0}, {WS_CNT}", f"buffer_load_dword v152, v160, s[{R_WS}:{R_WS+3}], s{S_T0} offen sc0 sc1", "L_try1:")
            if gi_ == NG - 2:
                assert nxt == 18
                if o['shard']:
                    a("s_cbranch_vccnz L_try0")
                    if not o['tre']:
                        a(f"s_mov_b32 s{S_T0}, {WS_CNT}", f"buffer_load_dword v152, v160, s[{R_WS}:{R_WS+3}], s{S_T0} offen sc0 sc1")
                    a("s_waitcnt vmcnt(0)",
                      "v_cmp_ne_u32 s[16:17], v152, v161", "s_cmp_eq_u64 s[16:17], 0", "s_cselect_b32 s16, 1, 0", "v_mov_b32 v152, s16", "ds_write_b32 v150, v152", "s_waitcnt lgkmcnt(0)", "L_try0:")
                else:
                    a("s_cbranch_vccnz L_try0", f"buffer_load_dword v152, v151, s[{R_DBG}:{R_DBG+3}], s{S_T5} offen sc0 sc1", "s_waitcnt vmcnt(0)",
                      "v_lshrrev_b32 v152, 7, v152", "ds_write_b32 v150, v152", "s_waitcnt lgkmcnt(0)", "L_try0:")
            if step in (2, 6, 10, 14, 22):
                self.stamp(1 + (2, 6, 10, 14, 22).index(step), 3)
            a("s_barrier")
            if sig:
                self.kv_signal()
            if gi_ == NG - 2:
                break
        kn = [f"s_cmp_lg_u32 s{S_WAVE}, 7", None, f"buffer_load_dwordx2 v[154:155], v153, s[{R_WS}:{R_WS+3}], s{S_T4} offen sc1",
              f"buffer_load_dwordx2 v[156:157], v153, s[{R_WS}:{R_WS+3}], s{S_T4} offen offset:512 sc1"]
        a("ds_read_b32 v152, v150", "s_waitcnt lgkmcnt(0)", "v_cmp_eq_u32 vcc, 0, v152", "s_cbranch_vccnz L_notyet")
        self.stamp(4)
        a(kn[0], "s_cbranch_scc1 L_kna", kn[2:], "L_kna:")
        self.kv_dma(0, o['ka'])
        a(f"s_cmp_eq_u32 s{S_WAVE}, 7", "s_cbranch_scc1 L_knb", f"s_waitcnt vmcnt({o['ka']})", "L_knb:")
        self.stamp(6, 3)
        a("s_barrier")
        self.kv_dma(4 * o['ka'], o['kv1'] - o['ka'])
        a("s_branch L_first")
        a("L_notyet:", "s_waitcnt vmcnt(0)")
        self.stamp(6, 3)
        a("s_barrier")
        a(f"s_mov_b32 s{S_CNT}, {SPIN_L}", f"s_cmp_lg_u32 s{S_WAVE}, 7", "s_cbranch_scc1 L_relay", f"s_mov_b32 s{S_CNT}, {SPIN}")
        if o['shard']:
            a(f"s_mov_b32 s{S_T0}, {WS_CNT}", "L_poll1:", f"buffer_load_dword v152, v160, s[{R_WS}:{R_WS+3}], s{S_T0} offen sc0 sc1",
              f"s_cmp_gt_u32 s{S_CNT}, {SPIN - 4}", "s_cbranch_scc1 L_pf", f"s_cmp_lg_u32 s{S_CNT}, {SPIN - o['nslow']}", "s_cbranch_scc1 L_ps",
              "s_mov_b64 exec, 1", f"buffer_atomic_add v100, v101, s[{R_DBG}:{R_DBG+3}], s{S_T5} offen sc1", "s_mov_b64 exec, -1",
              "L_ps:", f"buffer_load_dwordx3 v[162:164], v151, s[{R_DBG}:{R_DBG+3}], s{S_T5} offen sc0 sc1", "s_waitcnt vmcnt(0)",
              "v_lshrrev_b32 v162, 7, v162", "v_or3_b32 v162, v162, v163, v164", "v_cmp_ne_u32 vcc, 0, v162", "s_cbranch_vccnz L_poll1d",
              "L_pf:", f"s_sub_u32 s{S_CNT}, s{S_CNT}, 1", "s_cbranch_scc1 L_poll1d", "s_waitcnt vmcnt(0)", "v_cmp_ne_u32 vcc, v152, v161", "s_cbranch_vccnz L_poll1")
        else:
            a("L_poll1:", f"buffer_load_dword v152, v151, s[{R_DBG}:{R_DBG+3}], s{S_T5} offen sc0 sc1", f"s_sub_u32 s{S_CNT}, s{S_CNT}, 1",
              "s_cbranch_scc1 L_poll1d", "s_waitcnt vmcnt(0)", "v_cmp_gt_u32 vcc, 0x80, v152", "s_cbranch_vccnz L_poll1")
        a("L_poll1d:", "v_mov_b32 v152, 1", "ds_write_b32 v150, v152", kn[2:], "s_branch L_flagok")
        a("L_relay:", "ds_read_b32 v152, v150", f"s_sub_u32 s{S_CNT}, s{S_CNT}, 1", "s_cbranch_scc1 L_flagok", "s_waitcnt lgkmcnt(0)",
          "v_cmp_eq_u32 vcc, 0, v152", "s_cbranch_vccnz L_relay", "L_flagok:")
        self.stamp(4)
        self.kv_dma(0, o['kv1'])
        a("L_first:")
        self.stamp(3)
        self.stamp(6, 2)
        a(f"s_cmp_lg_u32 s{S_WAVE}, 7", "s_cbranch_scc1 L_nokn", f"s_waitcnt vmcnt({o['kv1']})", "v_max_f32 v154, v154, v155", "v_max_f32 v156, v156, v157")
        self.row_max16(154)
        self.row_max16(156)
        a("s_nop 0")
        for k in range(4):
            a(f"v_readlane_b32 s{16+k}, v154, {16*k}", f"v_readlane_b32 s{20+k}, v156, {16*k}")
        a("s_nop 1", "s_max_u32 s16, s16, s17", "s_max_u32 s18, s18, s19", "s_max_u32 s20, s20, s21", "s_max_u32 s22, s22, s23",
          "s_max_u32 s16, s16, s18", "s_max_u32 s20, s20, s22", "v_mov_b32 v154, s16", "v_add_f32 v154, s20, v154", "v_sqrt_f32 v154, v154",
          f"v_mov_b32 v155, {L_KMAX}", "ds_write_b32 v155, v154", "L_nokn:")
        self.stamp(3, 6)
        a("s_waitcnt vmcnt(0) lgkmcnt(0)")
        self.stamp(1, 6)
        a("s_barrier")
        self.stamp(2, 6)
        self.kv_dma(4 * o['kv1'], 37 - o['kv1'])
        a("s_setprio 2", f"s_mov_b32 s{S_STG}, 0", "s_waitcnt vmcnt(0)")
        self.stamp(5)
        self.stamp(4, 6)
        a("s_barrier")
        self.stamp(5, 6)
        if o['shard']:
            a(f"s_cmp_lg_u32 s{S_WAVE}, 7", "s_cbranch_scc1 L_nosaw", "s_cmp_ge_u32 s2, 8", "s_cbranch_scc1 L_nosaw", "s_mov_b64 exec, 1",
              f"buffer_atomic_add v100, v101, s[{R_DBG}:{R_DBG+3}], s{S_T5} offen offset:8 sc1", "s_mov_b64 exec, -1", "L_nosaw:")
        self.wo_job_loads(0)
        a(f"s_cmp_lt_u32 s{S_OEX}, 512", "s_cbranch_scc1 L_nowo2")
        self.wo_job_loads(1)
        a("L_nowo2:", f"s_lshl_b32 s{S_T0}, s{S_PG}, 4", f"s_add_u32 s{S_T0}, s{S_T0}, {WS_XID}", "v_and_b32 v8, 3, v0", "v_lshlrev_b32 v8, 2, v8",
          f"buffer_load_dword v9, v8, s[{R_WS}:{R_WS+3}], s{S_T0} offen sc1")
        self.poison()
        a("s_waitcnt vmcnt(5)")
        self.wo_finish()
        a(f"v_mov_b32 v10, {L_FLAG+8}", "v_cmp_ne_u32 vcc, s29, v9", "s_cmp_eq_u64 vcc, 0", f"s_cselect_b32 s{S_SAME}, {o['xcc']}, 0", f"v_mov_b32 v11, s{S_SAME}",
          "ds_write_b32 v10, v11", "s_waitcnt lgkmcnt(0)")
        self.join_signal(12, "l")
        a("s_mov_b64 exec, -1")
        self.tail_scalars()
        a("v_mov_b32 v12, 1", f"s_mov_b32 s{S_CNT}, {SPIN}", f"s_cmp_lg_u32 s{S_WAVE}, 7", "s_cbranch_scc1 L_rel2", f"s_lshl_b32 s{S_T0}, s{S_B}, 7",
          "L_poll2:", f"buffer_load_dword v11, v15, s[{R_DBG}:{R_DBG+3}], s{S_T0} offen offset:4 sc0 sc1", f"s_sub_u32 s{S_CNT}, s{S_CNT}, 1",
          "s_cbranch_scc1 L_poll2d", "s_waitcnt vmcnt(0)", "v_cmp_gt_u32 vcc, 0x80, v11", "s_cbranch_vccz L_poll2d", "s_sleep 16", "s_branch L_poll2",
          "L_poll2d:", "ds_write_b32 v10, v12 offset:4", "s_branch L_rel2d",
          "L_rel2:", "ds_read_b32 v11, v10 offset:4", f"s_sub_u32 s{S_CNT}, s{S_CNT}, 1", "s_cbranch_scc1 L_rel2d", "s_waitcnt lgkmcnt(0)",
          "v_cmp_ne_u32 vcc, 0, v11", "s_cbranch_vccnz L_rel2d", "s_sleep 16", "s_branch L_rel2", "L_rel2d:")
        a(f"s_mul_i32 s{S_T0}, s{S_HG}, 9", f"s_lshl_b32 s{S_T1}, s{S_I}, 1", f"s_add_u32 s{S_T0}, s{S_T0}, s{S_T1}", f"s_mul_i32 s{S_T0}, s{S_T0}, {18*1024}", f"s_add_u32 s{S_T0}, s{S_T0}, {WS_WOT}")
        for n in range(36):
            a(f"buffer_load_dwordx4 {vr(112+4*n,4)}, v1, s[{R_WS}:{R_WS+3}], s{S_T0} offen offset:{(n&3)*1024} sc1")
            if n & 3 == 3:
                a(f"s_add_u32 s{S_T0}, s{S_T0}, 4096")
        self.tail_vaddr()
        a("s_waitcnt vmcnt(0) lgkmcnt(0)", "s_barrier")
        a(f"s_mul_i32 s{S_T0}, s{S_HG}, 9", f"s_add_u32 s{S_T0}, s{S_T0}, 8", f"s_mul_i32 s{S_T0}, s{S_T0}, {18*1024}", f"s_add_u32 s{S_T0}, s{S_T0}, {WS_WOT}",
          f"s_add_u32 s{S_T0}, s{S_T0}, s{S_M0A}")
        for k in range(4):
            a(f"s_add_u32 m0, s{S_M0A}, {L_W8 + 4096*k}", f"s_add_u32 s{S_T1}, s{S_T0}, {4096*k}", f"buffer_load_dwordx4 v1, s[{R_WS}:{R_WS+3}], s{S_T1} offen sc1 lds")
        a(f"s_and_b32 s{S_T2}, s{S_I}, 2", f"s_sub_u32 s{S_T2}, 16, s{S_T2}", f"s_lshl_b32 s{S_T2}, s{S_T2}, 10", f"s_add_u32 s{S_T1}, s{S_T0}, s{S_T2}",
          f"s_add_u32 s{S_T2}, s{S_T2}, s{S_M0A}", f"s_add_u32 m0, s{S_T2}, {L_W8}", "s_nop 0", f"buffer_load_dwordx4 v1, s[{R_WS}:{R_WS+3}], s{S_T1} offen sc1 lds",
          "s_waitcnt vmcnt(0)")
        self.tail_late()

    def kv_signal(self):
        a, o = self.a, self.o
        if o['shard']:
            a("s_cbranch_vccnz L_nosig", "s_setprio 3", f"v_add_u32 v161, {17 if o['badv0'] else 16}, v161",
              f"s_bfe_u32 s{S_T0}, s2, 0x20001", f"s_lshl_b32 s{S_T0}, s{S_T0}, 1", f"s_and_b32 s{S_T1}, s{S_GI}, 1", f"s_add_u32 s{S_T0}, s{S_T0}, s{S_T1}",
              f"s_lshl_b32 s{S_T0}, s{S_T0}, 9", f"s_add_u32 s{S_T0}, s{S_T0}, {WS_CNT}", "s_mov_b64 exec, 1",
              f"buffer_atomic_add v100, v101, s[{R_WS}:{R_WS+3}], s{S_T0} offen sc1", "s_mov_b64 exec, -1", "s_setprio 1", "L_nosig:")
        else:
            a("s_cbranch_vccnz L_nosig", "s_setprio 3", f"s_lshl_b32 s{S_T0}, s{S_B}, 7", "s_mov_b64 exec, 1",
              f"buffer_atomic_add v100, v101, s[{R_DBG}:{R_DBG+3}], s{S_T0} offen sc1", "s_mov_b64 exec, -1", "s_setprio 1", "L_nosig:")

    def join_signal(self, v, tag):
        self.a(f"v_mov_b32 v{v}, {L_FLAG+4}", f"v_mov_b32 v{v+1}, 1", f"v_mov_b32 v{v+3}, 0", f"s_lshl_b32 s{S_T0}, s{S_B}, 7", "s_mov_b64 exec, 1",
               "s_waitcnt vmcnt(0)", f"ds_add_rtn_u32 v{v+2}, v{v}, v{v+1}", "s_waitcnt lgkmcnt(0)", f"v_cmp_eq_u32 vcc, 3, v{v+2}", f"s_cbranch_vccz L_js{tag}",
               f"buffer_atomic_add v{v+1}, v{v+3}, s[{R_DBG}:{R_DBG+3}], s{S_T0} offen offset:4 sc1", f"L_js{tag}:")

    def wo_job_addr(self, rep):
        a = self.a
        if rep == 0:
            a(f"s_lshl_b32 s{S_OEX}, s{S_PG}, 2", f"s_add_u32 s{S_OEX}, s{S_OEX}, s{S_HG}", f"s_lshl_b32 s{S_OEX}, s{S_OEX}, 2", f"s_add_u32 s{S_OEX}, s{S_OEX}, s{S_I}")
        f = S_OEX
        AD = 208 + 8 * rep
        a(f"s_mul_i32 s16, s{f}, 3641", "s_lshr_b32 s16, s16, 16", "s_mul_i32 s19, s16, 18", f"s_sub_u32 s19, s{f}, s19",
          "s_mul_i32 s21, s16, 7282", "s_lshr_b32 s21, s21, 16", "s_mul_i32 s17, s21, 9", "s_sub_u32 s17, s16, s17")
        a("s_mul_i32 s22, s21, 288", "s_lshr_b32 s23, s17, 1", "s_lshl_b32 s23, s23, 6", "s_add_u32 s22, s22, s23", "s_and_b32 s23, s17, 1", "s_lshl_b32 s23, s23, 3",
          "s_add_u32 s22, s22, s23", "s_cmp_eq_u32 s17, 8", "s_cselect_b32 s23, 3, 4",
          "v_bfe_u32 v200, v0, 2, 2", "v_lshlrev_b32 v200, s23, v200", "v_and_b32 v201, 3, v0", "v_lshl_add_u32 v200, v201, 1, v200", "v_add_u32 v200, s22, v200",
          "s_cmp_ge_u32 s19, 16", f"s_cbranch_scc1 L_wok1_{rep}")
        cy = [(j & 3) + 8 * (j >> 2) for j in range(8)]
        a("s_lshr_b32 s23, s19, 2", "s_add_u32 s23, s23, s21", "s_and_b32 s23, s23, 3", f"s_mul_i32 s22, s23, {144*1152}",
          "s_and_b32 s23, s19, 1", f"s_mul_i32 s23, s23, {72*1152}", "s_add_u32 s22, s22, s23", "s_bfe_u32 s23, s19, 0x10001", f"s_mul_i32 s23, s23, {36*1152}", "s_add_u32 s22, s22, s23",
          "v_lshrrev_b32 v201, 5, v0", "v_bfe_u32 v202, v0, 4, 1",
          f"v_mul_u32_u24 v203, {4*1152}, v201", "v_add_u32 v203, v200, v203",
          f"v_mul_u32_u24 v204, {3*1152}, v201", f"v_sub_u32 v204, {16*1152}, v204", "v_mul_u32_u24 v204, v202, v204", f"v_add_u32 v{AD}, v203, v204")
        for j in range(1, 8):
            dj = 18 + cy[j-1] - cy[j]
            a(f"v_mul_u32_u24 v204, {dj*1152}, v202", f"v_add_u32 v204, {cy[j]*1152}, v204", f"v_add_u32 v{AD+j}, v203, v204")
        a(f"s_branch L_wold_{rep}", f"L_wok1_{rep}:", "s_and_b32 s22, s19, 1", f"s_mul_i32 s22, s22, {36*1152}",
          "v_lshrrev_b32 v201, 4, v0", "v_add_u32 v201, s21, v201", "v_and_b32 v201, 3, v201", f"v_mul_u32_u24 v201, {144*1152}, v201", "v_add_u32 v203, v200, v201")
        for j in range(8):
            hq, hh, e = j >> 2, (j >> 1) & 1, j & 1
            row = 72 * hq + 18 + ((16 + hh) if e else (11 + 4 * hh))
            a(f"v_add_u32 v{AD+j}, {row*1152}, v203")
        a(f"L_wold_{rep}:")
        a(f"s_mov_b32 s{30+rep}, s22")

    def wo_job_loads(self, rep):
        for j in range(8):
            self.a(f"buffer_load_ushort v{224+8*rep+j}, v{208+8*rep+j}, s[{R_WO}:{R_WO+3}], s{30+rep} offen")

    def wo_job_finish(self, rep):
        a = self.a
        DT = 224 + 8 * rep
        a(f"s_lshl_b32 s22, s{S_OEX}, 10", f"s_add_u32 s22, s22, {WS_WOT}")
        for j in range(4):
            a(f"v_lshl_or_b32 v{240+4*rep+j}, v{DT+1+2*j}, 16, v{DT+2*j}")
        a(f"buffer_store_dwordx4 {vr(240+4*rep,4)}, v1, s[{R_WS}:{R_WS+3}], s22 offen sc1")

    def wo_finish(self):
        a = self.a
        a(f"s_cmp_ge_u32 s{S_OEX}, 512", "s_cbranch_scc0 L_wo3")
        self.wo_job_finish(1)
        a(f"s_sub_u32 s{S_OEX}, s{S_OEX}, 512", "L_wo3:")
        self.wo_job_finish(0)

    def poison_addr(self):
        a = self.a
        a([f"v_mov_b32 v{192+j}, -1" for j in range(4)])
        a(f"s_lshl_b32 s32, s{S_PG}, 2", f"s_add_u32 s32, s32, s{S_HG}", f"s_mul_i32 s32, s32, {OEX_W}", f"s_add_u32 s32, s32, {WS_OEX}",
          f"s_lshl_b32 s33, s{S_I}, 12", "s_add_u32 s33, s33, s32", f"s_lshl_b32 s34, s{S_PBI}, 10", "s_add_u32 s34, s34, s32", "s_add_u32 s34, s34, 16384")

    def poison(self):
        a = self.a
        for k in range(4):
            a(f"buffer_store_dwordx4 v[192:195], v1, s[{R_WS}:{R_WS+3}], s33 offen offset:{k*1024} sc0 sc1")
        a(f"buffer_store_dwordx4 v[192:195], v1, s[{R_WS}:{R_WS+3}], s34 offen sc0 sc1")

    def attention(self):
        a, o = self.a, self.o
        UNP = o['unp']
        a(f"v_mul_f32 v7, v6, v{QR+1}", f"v_mul_f32 v22, v6, v{QR2+1}", f"v_mov_b32 v6, {hex(f2u(-1.0 if o['force_fb'] else TSAFE))}",
          "v_cmp_nle_f32 vcc, v7, v6", "v_cmp_nle_f32 s[42:43], v22, v6", "v_sub_f32 v7, 0, v7", "v_sub_f32 v22, 0, v22",
          f"v_cvt_pk_bf16_f32 v{QR+1}, v7, 0", f"v_cvt_pk_bf16_f32 v{QR2+1}, v22, 0", "s_or_b64 vcc, vcc, s[42:43]", "s_cbranch_vccnz L_fallback", "L_fbdone:")
        q = self.qk(S[0], 0, 0)
        f1 = [f"s_lshl_b32 s{S_T0}, s{S_HQ}, 12", f"s_lshl_b32 s{S_T1}, s{S_PBI}, 11", f"s_add_u32 s{S_T2}, s{S_T0}, s{S_T1}",
              f"s_lshl_b32 s{S_T0}, s{S_PBI}, 9", f"s_lshl_b32 s{S_T1}, s{S_HQ}, 7", f"s_add_u32 s{S_T3}, s{S_T0}, s{S_T1}",
              f"v_mov_b32 v{V_JN}, {L_FLAG+4}", f"s_mov_b32 s{S_CNT}, {32//UNP}", "v_bfe_u32 v6, v0, 4, 1", "v_lshrrev_b32 v7, 5, v0",
              "v_and_b32 v22, 15, v0", f"v_lshlrev_b32 v{V_OA}, 10, v6", f"v_lshl_add_u32 v{V_OA}, v7, 9, v{V_OA}", f"v_lshl_add_u32 v{V_OA}, v22, 4, v{V_OA}", f"v_add_u32 v{V_OA}, s{S_T2}, v{V_OA}",
              f"v_lshlrev_b32 v{V_OB}, 8, v6", f"v_lshl_add_u32 v{V_OB}, v7, 6, v{V_OB}", f"v_lshl_add_u32 v{V_OB}, v22, 2, v{V_OB}"]
        a("s_nop 0", q[0], f1, q[1], q[2], f"v_add_u32 v{V_OB}, s{S_T3}, v{V_OB}", "s_nop 9")
        self.stamp(6)
        self.stamp(6, 6)
        body = []
        units = [(kb, pr) for kb in range(2 * UNP) for pr in range(2)]
        for i, (kb, pr) in enumerate(units):
            cur, nxt = S[i % 2], S[(i + 1) % 2]
            q = self.qk(nxt, kb + pr, 1 - pr)
            e = EX(cur, 32)
            sm3p = SM(OS[2*(1-pr)+1], VV[(kb - 1 + pr) % 2][1], nxt + 24)
            sm = [SM(OS[2*pr], VV[kb % 2][0], cur), SM(OS[2*pr], VV[kb % 2][1], cur + 8), SM(OS[2*pr+1], VV[kb % 2][0], cur + 16)]
            if pr == 0:
                v0, v1 = self.ldV(kb + 1)
                x = [[v0], [v1], [], [], []]
            else:
                x = [[], [], self.ldKm(kb + 2), self.ldKr((kb + 3) // 2) if kb % 2 == 1 else [], ["s_waitcnt lgkmcnt(0)"]]
            body += e[0:2] + [sm3p] + x[0] + e[2:5] + [q[0]] + e[5:13] + [sm[0]] + x[1] + e[13:18] + [sm[1]] + x[2] + e[18:21] + [q[1]] + x[3] + e[21:24] + [q[2]] + e[24:27] + [sm[2]] + x[4] + e[27:32]
        reach = max(int(x.split("offset:")[1]) + {V_AK: 1024, V_AR: 2048 + 256, V_AV: 2304 + VG}[int(x.split(", v")[1].split()[0])] for x in body if x.startswith("ds_read"))
        assert reach <= 4096 * o['kv1'] and L_KV + 4096 * o['kv1'] <= dslot(17)
        assert L_W8 + 18432 <= L_KV + (32 - UNP) * PB
        body += [f"v_add_u32 v{V_AK}, {UNP*PB}, v{V_AK}", f"v_add_u32 v{V_AR}, {UNP*PB}, v{V_AR}", f"v_add_u32 v{V_AV}, {UNP*PB}, v{V_AV}"]
        if o['sh']:
            mf = [i for i, x in enumerate(body) if 'smfmac' in x and not body[i + 1].startswith(('ds_', 's_'))]
            body.insert(mf[-1] + 1, f"s_cmp_lg_u32 s{S_CNT}, s{S_BAR}")
            body.insert(mf[-2] + 1, f"s_sub_u32 s{S_CNT}, s{S_CNT}, 1")
            a(".p2align 6", "L_main:", body, "s_cbranch_scc1 L_main", f"s_cmp_eq_u32 s{S_CNT}, 1", "s_cbranch_scc1 L_last", "s_barrier", f"s_mov_b32 s{S_BAR}, 1", "s_branch L_main", "L_last:")
        else:
            a(".p2align 6", "L_main:", body, f"s_sub_u32 s{S_CNT}, s{S_CNT}, 1", f"s_cmp_lg_u32 s{S_CNT}, s{S_BAR}", "s_cbranch_scc1 L_nob", "s_barrier", "L_nob:",
              f"s_cmp_lg_u32 s{S_CNT}, 1", "s_cbranch_scc1 L_main")
        a("s_barrier", f"ds_read_b32 v23, v{V_JN} offset:4")
        DW = [192, 204]

        def publish(pr):
            x, y, d = OS[2*pr], OS[2*pr+1], DW[pr]
            vals = [x + j for j in range(9)] + [y + j for j in range(9)]
            c = [f"v_cvt_pk_bf16_f32 v{d+j}, v{vals[2*j]}, v{vals[2*j+1]}" for j in range(9)]
            a(f"v_rcp_f32 v6, v{x+9}", "s_nop 0", [f"v_mul_f32 v{r}, v{r}, v6" for r in vals[:9]], c[:3], f"v_rcp_f32 v7, v{y+9}", c[3])
            direct = pr == 1 or not o['hst']
            if direct:
                a("v_cmp_ne_u32 vcc, 0, v23", f"s_cbranch_vccnz L_pub1{pr}")
            for fl in (" sc0 sc1", "") if direct else (None,):
                st = lambda n, r, v, so, off: f"buffer_store_dword{n} {r}, v{v}, s[{R_WS}:{R_WS+3}], s{so} offen offset:{off}{fl}" if direct else []
                so = S_OA if pr else S_OW
                a(st('x4', vr(d, 4), V_OA, so, 0), [f"v_mul_f32 v{r}, v{r}, v7" for r in vals[9:]], c[4:8], st('x4', vr(d + 4, 4), V_OA, so, 256), c[8], st('', vr(d + 8), V_OB, S_OB, 1024 * pr))
                if fl:
                    a(f"s_branch L_pub2{pr}", f"L_pub1{pr}:")
            a(f"L_pub2{pr}:")
            if pr:
                a(self.peer_loads())
            else:
                a(f"v_add_u32 v201, {L_O}, v{V_OA}", f"v_add_u32 v202, {L_O + 65536}, v{V_OB}")
            a(f"ds_write_b128 v201, {vr(d, 4)} offset:{8192*pr}", f"ds_write_b128 v201, {vr(d + 4, 4)} offset:{8192*pr + 256}", f"ds_write_b32 v202, v{d + 8} offset:{1024*pr}")
        NV = 2 * UNP
        for j in range(2 * NV):
            pr, kb = j // NV, j % NV
            cur, nxt = S[j % 2], S[(j + 1) % 2]
            q = self.qk(nxt, (j + 1) % NV, (j + 1) // NV) if j + 1 < 2 * NV else [[], [], []]
            e = EX(cur, 32)
            sm3p = SM(OS[2*((j - 1) // NV % 2)+1], VV[(j - 1) % 2][1], nxt + 24)
            sm = [SM(OS[2*pr], VV[j % 2][0], cur), SM(OS[2*pr], VV[j % 2][1], cur + 8), SM(OS[2*pr+1], VV[j % 2][0], cur + 16)]
            v0, v1 = self.ldV((j + 1) % NV) if j + 1 < 2 * NV else ([], [])
            km = self.ldKm((j + 2) % NV) if j + 2 < 2 * NV else []
            kr = self.ldKr(((j + 3) // 2) % UNP) if j % 2 == 1 and j + 3 < 2 * NV else []
            a(e[0:2], sm3p, v0, e[2:5], q[0], e[5:13], sm[0], v1, e[13:18], sm[1], km, e[18:21], q[1], kr, e[21:24], q[2], e[24:27], sm[2], "s_waitcnt lgkmcnt(0)", e[27:32])
            if j == NV:
                publish(0)
            if j == o['nj']:
                a("s_barrier")
        a("s_nop 1", SM(O2[1], VV[1][1], S[1] + 24))
        self.stamp(7)
        a("s_setprio 3", "s_barrier")
        publish(1)
        self.tail_vaddr()
        a(f"v_add_u32 v21, {L_W8}, v1")
        self.stamp(1, 4)
        if o['own1']:
            a("s_waitcnt lgkmcnt(0)", "s_barrier")
        self.collect("e")
        q = []
        RO, RW, ACC = [56 + 8 * k for k in range(5)], [60 + 8 * k for k in range(5)], 100
        for n in range(18 + 4):
            if n >= 4:
                ks = n - 4
                last = max(i for i, t in enumerate(q) if t == ks)
                a(f"s_waitcnt lgkmcnt({min(len(q) - 1 - last, 14)})", M16(ACC, RW[ks % 5], RO[ks % 5], "0" if ks == 0 else None))
                del q[:last + 1]
            if n < 18:
                x = self.ofrag(RO[n % 5], 0, n) + [f"ds_read_b128 {vr(RW[n % 5], 4)}, v21 offset:{n*1024}"]
                a(x)
                q += [n] * len(x)
        a("s_nop 7", f"v_cvt_pk_bf16_f32 v6, v{ACC}, v{ACC+1}", f"v_cvt_pk_bf16_f32 v7, v{ACC+2}, v{ACC+3}",
          f"buffer_store_dwordx2 v[6:7], v23, s[{R_OUT}:{R_OUT+3}], s41 offen")
        self.finish()

    def peer_loads(self):
        return [f"buffer_load_dwordx4 {vr(24+4*k,4)}, v1, s[{R_WS}:{R_WS+3}], s{16+k} offen sc0 sc1" for k in range(7)]

    def ofrag(self, r, tp, ks):
        if ks < 16:
            return [f"ds_read_b128 {vr(r,4)}, v{8+tp} offset:{ks*4096}"]
        if ks == 16:
            return [f"ds_read2_b32 {vr(r,2)}, v{52+tp} offset0:0 offset1:16", f"ds_read2_b32 {vr(r+2,2)}, v{52+tp} offset0:32 offset1:48"]
        return [f"ds_read2_b32 {vr(r,2)}, v{16+tp} offset0:0 offset1:16", f"ds_read2_b32 {vr(r+2,2)}, v{16+tp} offset0:32 offset1:48"]

    def tail_vaddr(self):
        self.a(f"s_lshl_b32 s{S_T0}, s{S_I}, 10", f"s_add_u32 s{S_T0}, s{S_T0}, {L_O}", f"v_add_u32 v8, s{S_T0}, v1", "v_xor_b32 v9, 0x400, v8", "v_xor_b32 v10, 0x800, v8", "v_xor_b32 v11, 0xc00, v8",
               "v_lshrrev_b32 v6, 4, v0", "v_and_b32 v7, 15, v0", "v_mul_u32_u24 v22, 0x900, v7", "v_lshl_add_u32 v23, v6, 3, v22", "v_lshl_add_u32 v22, v6, 4, v22",
               "v_lshlrev_b32 v6, 11, v6", "v_lshl_add_u32 v6, v7, 2, v6", f"s_lshl_b32 s{S_T0}, s{S_I}, 8", f"s_add_u32 s{S_T0}, s{S_T0}, {L_O + 65536}",
               f"v_add_u32 v52, s{S_T0}, v6", "v_xor_b32 v53, 0x100, v52", "v_xor_b32 v54, 0x200, v52", "v_xor_b32 v55, 0x300, v52",
               [f"v_add_u32 v{16+k}, 0x400, v{52+k}" for k in range(4)])

    def collect(self, tag):
        a, PB_ = self.a, 24
        a(f"s_mov_b32 s{S_CNT}, {SPIN}", f"L_cl{tag}:", "s_waitcnt vmcnt(0)")
        self.stamp(3, 4)
        a(f"v_max3_u32 v6, v{PB_}, v{PB_+1}, v{PB_+2}", f"v_max3_u32 v7, v{PB_+3}, v{PB_+4}, v{PB_+5}")
        for j in range(6, 28, 4):
            a(f"v_max3_u32 v6, v6, v{PB_+j}, v{PB_+j+1}")
            if j + 3 < 28:
                a(f"v_max3_u32 v7, v7, v{PB_+j+2}, v{PB_+j+3}")
        a("v_max_u32 v7, v7, v6", "v_cmp_eq_u32 vcc, -1, v7", f"s_cbranch_vccz L_cld{tag}", f"s_sub_u32 s{S_CNT}, s{S_CNT}, 1", f"s_cbranch_scc1 L_cld{tag}", self.peer_loads(), f"s_branch L_cl{tag}", f"L_cld{tag}:")
        self.stamp(2, 4)
        for k in range(7):
            a(f"v_add_u32 v{6+(k&1)}, s{30+k}, v1", f"ds_write_b128 v{6+(k&1)}, {vr(PB_+4*k,4)}")
        a("s_waitcnt lgkmcnt(0)", "s_barrier")
        self.stamp(4, 4)
        self.stamp(4, 0)

    def tail_late(self):
        a, o = self.a, self.o
        WF, ACC = 112, 80
        RING = [56 + 4 * i for i in range(6)]
        if o['hst']:
            a(f"s_lshl_b32 s{S_T0}, s{S_I}, 11", f"s_add_u32 s{S_T1}, s{S_T0}, s{S_OW}", f"s_add_u32 s{S_T0}, s{S_T0}, {L_O}", f"v_add_u32 v56, s{S_T0}, v1",
              f"v_lshlrev_b32 v57, 2, v0", f"s_lshl_b32 s{S_T0}, s{S_I}, 8", f"s_add_u32 s{S_T2}, s{S_T0}, s{S_OB}", f"s_add_u32 s{S_T0}, s{S_T0}, {L_O + 65536}", f"v_add_u32 v58, s{S_T0}, v57",
              f"s_cmp_eq_u32 s{S_SAME}, 1")
        a("s_setprio 2", "s_barrier")
        if o['hst']:
            a("ds_read_b128 v[60:63], v56", "ds_read_b128 v[64:67], v56 offset:1024", "ds_read_b32 v68, v58", "s_cbranch_scc1 L_hs1")
            for fl in (" sc0 sc1", ""):
                a("s_waitcnt lgkmcnt(0)", f"buffer_store_dwordx4 v[60:63], v1, s[{R_WS}:{R_WS+3}], s{S_T1} offen{fl}", f"buffer_store_dwordx4 v[64:67], v1, s[{R_WS}:{R_WS+3}], s{S_T1} offen offset:1024{fl}",
                  f"buffer_store_dword v68, v57, s[{R_WS}:{R_WS+3}], s{S_T2} offen{fl}")
                if fl:
                    a("s_branch L_hs2", "L_hs1:")
            a("L_hs2:")
        a(self.peer_loads())
        self.collect("l")
        a("s_setprio 1")
        self.stamp(7)
        q = []

        def run(seq, n0, after):
            PF = 5

            def issue(j):
                x = self.ofrag(RING[(n0 + j) % 6], *seq[j])
                a(x)
                q.extend([n0 + j] * len(x))
            for j in range(PF):
                issue(j)
            for j, (tp, ks) in enumerate(seq):
                last = max(i for i, t in enumerate(q) if t == n0 + j)
                a(f"s_waitcnt lgkmcnt({min(len(q) - 1 - last, 14)})")
                del q[:last + 1]
                c = "0" if ks == 0 else None
                r = RING[(n0 + j) % 6]
                a(M16(ACC + 4 * tp, WF + 4 * ks, r, c), M16(ACC + 16 + 4 * tp, WF + 72 + 4 * ks, r, c))
                if j + PF < len(seq):
                    issue(j + PF)
                a(after.get(j, []))

        def outp(tp):
            r = 24 + 4 * tp
            return [f"v_cvt_pk_bf16_f32 v{r+k}, v{ACC+16*(k>>1)+4*tp+2*(k&1)}, v{ACC+16*(k>>1)+4*tp+2*(k&1)+1}" for k in range(4)] + \
                   [f"buffer_store_dwordx4 {vr(r,4)}, v22, s[{R_OUT}:{R_OUT+3}], s{37+tp} offen"]
        k0 = [0, 1, 4, 5, 8, 9, 12, 13, 16]
        k1 = [6, 7, 10, 11, 14, 15, 17]
        run([(tp, ks) for ks in k0 for tp in range(4)], 0, {})
        if o['own1']:
            a("s_barrier")
            run([(tp, ks) for ks in (2, 3) for tp in range(4)], 36, {})
        else:
            k1 = [2, 3] + k1
        a("s_setprio 3", "s_barrier")
        self.stamp(6, 4)
        n1 = len(k1)
        run([(tp, ks) for tp in range(4) for ks in k1], 44, {n1 * i + 2: outp(i - 1) for i in (1, 2, 3)})
        a("s_nop 6", outp(3), "s_branch L_fin")

    def tail_scalars(self):
        a, o = self.a, self.o
        a(f"s_mul_i32 s{S_OEXB}, s{S_PG}, {OEX_G}", f"s_add_u32 s{S_OEXB}, s{S_OEXB}, {WS_OEX}", f"s_mul_i32 s{S_OW}, s{S_HG}, {OEX_W}", f"s_add_u32 s{S_OW}, s{S_OW}, s{S_OEXB}",
          f"s_add_u32 s{S_OA}, s{S_OW}, 8192", f"s_add_u32 s{S_OB}, s{S_OW}, 16384",
          f"s_lshl_b32 s23, s{S_STG}, 13", f"s_lshl_b32 s24, s{S_STG}, 10")
        for k in range(7):
            a(f"s_add_u32 s{S_T0}, s{S_I}, {4*k}")
            if k == 6:
                a(f"s_min_u32 s{S_T0}, s{S_T0}, 26")
            a(f"s_mul_i32 s{S_T1}, s{S_T0}, 7282", f"s_lshr_b32 s{S_T1}, s{S_T1}, 16", f"s_mul_i32 s{S_T2}, s{S_T1}, 9", f"s_sub_u32 s{S_T2}, s{S_T0}, s{S_T2}",
              f"s_add_u32 s{S_T1}, s{S_T1}, 1",
              f"s_lshl_b32 s{S_T0}, s{S_T2}, 10", f"s_add_u32 s{S_T0}, s{S_T0}, s23", f"s_add_u32 s{S_T3}, s24, 16384",
              f"s_lshl_b32 s{30+k}, s{S_T1}, 14", f"s_add_u32 s{30+k}, s{30+k}, s{S_T0}", f"s_lshl_b32 s{16+k}, s{S_T1}, 11", f"s_add_u32 s{16+k}, s{16+k}, s24", f"s_add_u32 s{16+k}, s{16+k}, 65536",
              f"s_cmp_eq_u32 s{S_T2}, 8", f"s_cselect_b32 s{S_T0}, s{S_T3}, s{S_T0}", f"s_cselect_b32 s{30+k}, s{16+k}, s{30+k}", f"s_add_u32 s{30+k}, s{30+k}, {L_O}",
              f"s_add_u32 s{S_T1}, s{S_T1}, s{S_HG}", f"s_and_b32 s{S_T1}, s{S_T1}, 3", f"s_mul_i32 s{S_T1}, s{S_T1}, {OEX_W}", f"s_add_u32 s{S_T0}, s{S_T0}, s{S_T1}", f"s_add_u32 s{16+k}, s{S_T0}, s{S_OEXB}")
        a(f"s_mul_i32 s{S_T0}, s{S_PG}, {64*2304}", f"s_mul_i32 s{S_T1}, s{S_B}, 1152", f"s_add_u32 s{S_T0}, s{S_T0}, s{S_T1}", f"s_mul_i32 s{S_T1}, s{S_HG}, 288",
          f"s_add_u32 s{S_T0}, s{S_T0}, s{S_T1}", f"s_lshl_b32 s{S_T1}, s{S_I}, 6", f"s_add_u32 s{S_T1}, s{S_T1}, s{S_T0}")
        for tp in range(4):
            a(f"s_xor_b32 s{S_T2}, s{S_I}, {tp}", f"s_mul_i32 s{S_T2}, s{S_T2}, {16*2304}", f"s_add_u32 s{37+tp}, s{S_T2}, s{S_T1}")
            if tp == 0:
                a(f"s_add_u32 s41, s{S_T2}, s{S_T0}", "s_add_u32 s41, s41, 256")

    def fallback(self):
        a, o = self.a, self.o
        a.label("L_fallback")
        a("s_barrier", f"s_mov_b32 s{S_BAR}, {1 if o['sh'] else -1}")
        a(f"v_mov_b32 v{QR+1}, 0", f"v_mov_b32 v{QR2+1}, 0", f"v_mov_b32 v192, v{V_AK}", f"v_mov_b32 v193, v{V_AR}", [f"v_mov_b32 v{194+k}, 0xff800000" for k in range(4)],
          "v_mov_b32 v199, 0x3f803f80", f"s_mov_b32 s{S_CNT}, 32", "L_fbl:",
          "ds_read_b32 v198, v193", "ds_read_b128 v[200:203], v192", "ds_read_b128 v[204:207], v192 offset:1024",
          f"v_add_u32 v192, {PB}, v192", f"v_add_u32 v193, {PB}, v193", "s_waitcnt lgkmcnt(0)")
        for h in range(2):
            for pr in range(2):
                a(B2(208, 198, QRS[pr], h), "s_nop 15", "s_nop 1", K16(208, 200 + 4 * h, QMS[2*pr]), K16(224, 200 + 4 * h, QMS[2*pr+1]), "s_nop 11")
                for j in range(8):
                    a(f"v_max3_f32 v{194+2*pr}, v{194+2*pr}, v{208+2*j}, v{209+2*j}", f"v_max3_f32 v{195+2*pr}, v{195+2*pr}, v{224+2*j}, v{225+2*j}")
        a(f"s_sub_u32 s{S_CNT}, s{S_CNT}, 1", f"s_cmp_lg_u32 s{S_CNT}, 0", "s_cbranch_scc1 L_fbl")
        for pr in range(2):
            x, y = 194 + 2 * pr, 195 + 2 * pr
            a("s_nop 0", f"v_permlane32_swap_b32 v{x}, v{y}", "s_nop 1", f"v_max_f32 v{x}, v{x}, v{y}", f"v_sub_f32 v{x}, 0, v{x}",
              f"v_cvt_pk_bf16_f32 v{y}, v{x}, 0", f"v_lshlrev_b32 v{y}, 16, v{y}", f"v_sub_f32 v{y}, v{x}, v{y}", f"v_cvt_pk_bf16_f32 v{QRS[pr]+1}, v{x}, v{y}")
        a("s_branch L_fbdone")

    def finish(self):
        a, o = self.a, self.o
        a("L_fin:")
        if o['stamps'] or o['dbgspan'] or o['ampk']:
            a("s_waitcnt vmcnt(0)")
            self.stamp(5, o['set'] if o['set'] in (1, 4) else 0)
        if o['ampk']:
            a(f"s_cmp_eq_u32 s{S_STG}, {1 - o['amps']}", "s_cbranch_scc1 L_end", "s_waitcnt lgkmcnt(0)", f"s_sub_u32 s{S_T0}, s{S_ST+2*o['ampb']}, s{S_ST+2*o['ampa']}")
            if o['avg']:
                a(f"s_cmp_lg_u32 s{S_I}, 0", "s_cbranch_scc1 L_end", "s_mov_b64 exec, 1", "v_mov_b32 v8, 0", f"v_mov_b32 v9, s{S_T0}", "v_mov_b32 v10, 1",
                  f"buffer_atomic_add v9, v8, s[{R_DBG}:{R_DBG+3}], 0 offen offset:16 sc1", "s_waitcnt vmcnt(0)",
                  f"buffer_atomic_add v10, v8, s[{R_DBG}:{R_DBG+3}], 0 offen offset:144 sc0 sc1", "s_waitcnt vmcnt(0)", "v_cmp_eq_u32 vcc, 0xff, v10", "s_cbranch_vccz L_end",
                  f"buffer_load_dword v9, v8, s[{R_DBG}:{R_DBG+3}], 0 offen offset:16 sc0 sc1", "s_waitcnt vmcnt(0)", f"v_readfirstlane_b32 s{S_T0}, v9", "s_nop 3", f"s_mul_i32 s{S_T0}, s{S_T0}, {max(o['ampk'], 1)}", f"s_lshr_b32 s{S_T0}, s{S_T0}, {8 - min(o['ampk'], 0)}")
            else:
                a(f"s_mul_i32 s{S_T0}, s{S_T0}, {o['ampk']}" if o['ampk'] > 0 else f"s_lshr_b32 s{S_T0}, s{S_T0}, {-o['ampk']}")
            a("s_memrealtime s[18:19]", f"s_min_u32 s{S_T0}, s{S_T0}, 100000",
              "L_amp:", "s_memrealtime s[16:17]", "s_waitcnt lgkmcnt(0)", "s_sub_u32 s16, s16, s18", f"s_cmp_lt_u32 s16, s{S_T0}", "s_cbranch_scc1 L_amp")
        self.dump_stamps()
        a("L_end:", "s_endpgm")

    def build(self):
        self.start()
        self.early_front()
        self.attention()
        self.late_front()
        self.fallback()
        hdr = (open('concat_heads__grouped_kv_mqa__grouped_kv_mqa__prompt.s.ref').read().split("; Override launch geometry")[0] +
               f"; @launch grid=(256,1,1) block=(512,1,1) lds={LDS_BYTES}\n" + DOC +
               '.amdgcn_target "amdgcn-amd-amdhsa--gfx950"\n.text\n'
               f".globl {NAME}\n.p2align 8\n.type {NAME},@function\n{NAME}:\n")
        if self.o['of'] & 1:
            self.a.L = [x.replace(" sc0 sc1", " sc1") if "buffer_store" in x and f"s[{R_WS}:" in x else x for x in self.a.L]
        if self.o['of'] & 2:
            self.a.L = [x.replace(" sc0 sc1", " sc1") if "buffer_load" in x and f"s[{R_WS}:" in x else x for x in self.a.L]
        body = "".join((x + "\n") if x.endswith(":") or x.startswith(";") else ("    " + x + "\n") for x in self.a.L)
        t = table()
        tab = ".p2align 6\n.type L_table,@object\nL_table:\n" + "".join("    .long " + ", ".join(str(int(v)) for v in row) + "\n" for row in t)
        tab += f".fill (1024 - ((. - {NAME}) & 1023)) & 1023, 1, 0\nL_codeend:\n.size L_table, L_codeend-L_table\n"
        kd = f""".section .rodata,"a"
.p2align 6
.amdhsa_kernel {NAME}
  .amdhsa_next_free_vgpr 256
  .amdhsa_next_free_sgpr 102
  .amdhsa_accum_offset 256
  .amdhsa_group_segment_fixed_size 0
  .amdhsa_kernarg_size 104
  .amdhsa_user_sgpr_count 2
  .amdhsa_user_sgpr_kernarg_segment_ptr 1
  .amdhsa_system_sgpr_workgroup_id_x 1
.end_amdhsa_kernel
"""
        return hdr + body + tab + kd


if __name__ == "__main__":
    out = sys.argv[1]
    opt = {}
    for kv in sys.argv[2:]:
        k, v = kv.split("=")
        opt[k] = int(v)
    g = Gen(opt)
    open(out, "w").write(g.build())
```

```python
import sys, math, struct
import numpy as np

NAME = "concat_heads__grouped_kv_mqa__grouped_kv_mqa__prompt_kernel"

VG = 608
PB = 2048 + 256 + 4 * VG
KVB = 32 * PB
L_KV = 12288
L_HAND = 0
L_KMAX = 10240
L_FLAG = 10256
L_T2X = 81920
L_O = 12288
L_W8 = L_O + 73728
L_W = 62464
L_X = 90112
SLOT = 4608
LDS_BYTES = 163840
WS_KV = 0
WS_KN = KVB
WS_XID = WS_KN + 1024
WS_CNT = 0x26000
WS_WOT = 0x28000
WS_OEX = 0xD0000
WS_BR = 0x400000
WS_STAMP = 0x1000000
OEX_G = 73728
OEX_W = 18432
CSCALE = math.log2(math.e) / math.sqrt(18.0)
TSAFE = 40.0
SPIN = 500000
SPIN_L = 16 * SPIN


def f2u(x):
    return struct.unpack("<I", struct.pack("<f", x))[0]


def dslot(d):
    if d < 6:
        return d * 2 * SLOT
    if d < 17:
        return L_W + (d - 6) * 2 * SLOT
    return 5 * 2 * SLOT


def slot_addr(ks):
    return dslot(ks >> 1) + (ks & 1) * SLOT


G0 = [0, 1, 2, 3, 12, 13, 14, 15, 20]
G1 = [4, 5, 6, 7, 8, 9, 10, 11, 16]
POS_ONES, POS_ZERO = 22, 23


def vpos(h, row):
    if row in G0:
        return [list(range(0, 9)), [18, 19, 20, 21, 24, 25, 26, 27, 28]][h][G0.index(row)]
    if row in G1:
        return [list(range(9, 18)), list(range(29, 38))][h][G1.index(row)]
    if row in (17, 21):
        return POS_ONES
    return POS_ZERO


def table():
    t = np.zeros((64, 4), dtype=np.uint32)
    for l in range(64):
        t[l, 0] = L_KV + 2304 + vpos(l >> 5, l & 31) * 16
        n, g = l & 15, l >> 4
        t[l, 1] = vpos(g >> 1, n) * 16 + (g & 1) * 8
        p = {0: vpos(g >> 1, 16), 1: vpos(g >> 1, 20), 2: POS_ONES, 3: POS_ZERO}.get(n, POS_ZERO)
        t[l, 2] = p * 16 + (g & 1) * 8
    return t


def vr(a, n=1):
    return f"v[{a}:{a+n-1}]" if n > 1 else f"v{a}"


def sr(a, n=1):
    return f"s[{a}:{a+n-1}]" if n > 1 else f"s{a}"


S_WAVE = 3
R_X, R_WQ, R_W, R_WO, R_WS, R_OUT, R_DBG = 44, 48, 52, 56, 60, 64, 68
S_B, S_HG, S_GI, S_PG, S_I = 4, 5, 6, 7, 8
S_T0, S_T1, S_T2, S_T3, S_T4, S_T5 = 9, 10, 11, 12, 13, 14
S_CNT = 15
S_M0A, S_M0R, S_ROW = 72, 73, 74
S_BAR = 75
S_PBI, S_HQ = 76, 77
S_EX = 42
S_KVS = 80
S_OEX = 81
S_STG = 82
S_OEXB = 78
S_SAME, S_OA, S_OB, S_OW = 26, 27, 28, 25
V_OA, V_OB, V_JN = 144, 145, 146
S_VM = 0
S_XI, S_XB, S_XS, S_XM = 83, 100, 101, 79
S_DI, S_DS, S_LI, S_LS = 72, 73, 74, 75
S_ST = 84

V_IDX, V_AK, V_AR, V_AV = 2, 3, 4, 5
QM = [8, 12]
QR = 16
KR = [18, 20]
O = [24, 40]
KM = [56, 60]
VV = [[64, 68], [72, 76]]
S = [80, 112]
QM2 = [148, 152]
QR2 = 156
O2 = [160, 176]
QMS, QRS, OS = QM + QM2, [QR, QR2], O + O2


DOC = """;
"""


class A:
    def __init__(self):
        self.L = []

    def __call__(self, *xs):
        for x in xs:
            if isinstance(x, (list, tuple)):
                self(*x)
            else:
                self.L.append(x)

    def label(self, n):
        self.L.append(n + ":")


def K16(d, a, b, c=None):
    return f"v_mfma_f32_32x32x16_bf16 {vr(d,16)}, {vr(a,4)}, {vr(b,4)}, {c if c else vr(d,16)}"


def M16(d, a, b, c=None):
    return f"v_mfma_f32_16x16x32_bf16 {vr(d,4)}, {vr(a,4)}, {vr(b,4)}, {c if c else vr(d,4)}"


def B2(d, a, b, abid):
    return f"v_mfma_f32_32x32x4_2b_bf16 {vr(d,32)}, {vr(a,2)}, {vr(b,2)}, 0 cbsz:1 abid:{abid}"


def K8Z(d, z):
    return f"v_mfma_f32_32x32x8_bf16 {vr(d,16)}, {vr(z,2)}, {vr(z,2)}, 0"


def SM(d, a, b):
    return f"v_smfmac_f32_32x32x32_bf16 {vr(d,16)}, {vr(a,4)}, {vr(b,8)}, v{V_IDX}"


def EX(r, n):
    return [f"v_exp_f32 v{r+i}, v{r+i}" for i in range(n)]


def srd(a, dst, lo, hi, size):
    a(f"s_mov_b32 s{dst}, {lo}", f"s_mov_b32 s{dst+1}, {hi}", f"s_mov_b32 s{dst+2}, {size}", f"s_mov_b32 s{dst+3}, 0x20000")


class Gen:
    def __init__(self, opt):
        self.o = dict(unp=4, barit=1, stamps=False, force_fb=False, prefetch=True, prio=True, dbgspan=0, tw=0, to=0, hst=1, sh=1, nj=9, own1=0, l01=0, sched=1, dbl=0, xe1=0, x1l=0, pw=0, ks2=0, binv=0, z2=1, vexec=0, ga=1, tp=1, x2j=31, amps=0, p1=2, p2=5, p3=7, lo0=0, lo1=0, ka=2, lnorm=1, xper=3, dly=0, d0l=1, pre=3, xe=0, sigb2=1, tre=1, badv0=0, shard=1, nslow=64, spf=0, avg=0, xcc=1, xp=0, outf=0, of=0, ampa=0, ampb=0, ampk=0, set=0, nb=5, kv1=6, pd=2, win=3, t1=7, t2=9, sb=18)
        self.o.update(opt)
        self.a = A()
        self.nst = 0

    def stamp(self, i, st=0):
        if i not in (0, 7) and st != self.o['set']:
            return
        if self.o['stamps'] or self.o['dbgspan'] or self.o['ampk']:
            cyc = self.o['stamps'] == 2 or self.o['ampk'] < 0
            self.a(f"{'s_memtime' if cyc else 's_memrealtime'} s[{S_ST+2*i}:{S_ST+2*i+1}]")

    def dump_stamps(self):
        if self.o['dbgspan']:
            a = self.a
            n = self.nst = self.nst + 1
            a("s_waitcnt lgkmcnt(0)", f"s_cmp_lg_u32 s{S_I}, 0", f"s_cbranch_scc1 L_nodump{n}", "s_mov_b64 exec, 1", "v_mov_b32 v8, 0", f"s_not_b32 s{S_T0}, s{S_ST}", f"v_mov_b32 v9, s{S_T0}",
              f"buffer_atomic_umax v9, v8, s[{R_DBG}:{R_DBG+3}], 0 offen offset:8 sc1")
            for k, i in enumerate((0, 1, 3, 6, 7, 5) if n == 2 else (1, 2, 4, 5, 6, 7)):
                a(f"v_mov_b32 v{10+k}, s{S_ST+2*i}", f"buffer_atomic_umax v{10+k}, v8, s[{R_DBG}:{R_DBG+3}], 0 offen offset:{(12 if n == 2 else 36)+4*k} sc1")
            a(f"L_nodump{n}:")
            return
        if not self.o['stamps']:
            return
        a = self.a
        a("s_waitcnt lgkmcnt(0)", f"s_lshl_b32 s{S_T0}, s2, 3", f"s_add_u32 s{S_T0}, s{S_T0}, s{S_WAVE}", f"s_lshl_b32 s{S_T0}, s{S_T0}, 6",
          f"s_mul_i32 s{S_T1}, s{S_B}, {WS_BR}", f"s_sub_u32 s{S_T0}, s{S_T0}, s{S_T1}", f"s_add_u32 s{S_T0}, s{S_T0}, {WS_STAMP}",
          f"s_mov_b32 s{R_WS+2}, 0x2000000", "v_mov_b32 v8, 0")
        for i in range(4):
            for k in range(4):
                a(f"v_mov_b32 v{12+k}, s{S_ST+4*i+k}")
            a(f"buffer_store_dwordx4 v[12:15], v8, s[{R_WS}:{R_WS+3}], s{S_T0} offen offset:{16*i}", "s_nop 1")

    def kv_dma(self, p0, n):
        a = self.a
        for k in range(n):
            a(f"s_add_u32 m0, s{S_M0A}, {L_KV + (p0 + 4*k)*1024}", f"s_add_u32 s{S_T0}, s{S_KVS}, 4096",
              f"buffer_load_dwordx4 v1, s[{R_WS}:{R_WS+3}], s{S_KVS} offen sc1 lds",
              f"s_cmp_ge_u32 s{S_T0}, {KVB}", f"s_cselect_b32 s{S_T1}, {KVB}, 0", f"s_sub_u32 s{S_KVS}, s{S_T0}, s{S_T1}")

    def row_max16(self, v):
        a = self.a
        for k in (8, 4, 2, 1):
            a("s_nop 1", f"v_max_f32_dpp v{v}, v{v}, v{v} row_ror:{k} row_mask:0xf bank_mask:0xf")

    def rest_srds(self):
        a = self.a
        a(f"s_mov_b32 s{R_WO+2}, 663552", f"s_mov_b32 s{R_WO+3}, 0x20000",
          f"s_mul_i32 s{S_T0}, s{S_B}, {WS_BR}", f"s_add_u32 s{R_WS}, s40, s{S_T0}", f"s_addc_u32 s{R_WS+1}, s41, 0",
          f"s_mov_b32 s{R_WS+2}, {WS_OEX + 32*OEX_G}", f"s_mov_b32 s{R_WS+3}, 0x20000")
        srd(a, R_OUT, "s36", "s37", 4718592)
        srd(a, R_DBG, "s38", "s39", 256)

    def norm2(self, x, y):
        a = self.a
        for j in range(4):
            for (qm, qr, dst, tmp) in (x, y):
                a(f"v_dot2_f32_bf16 v{dst}, v{qm+j}, v{qm+j}, {'0' if j == 0 else 'v%d' % dst}",
                  f"v_dot2_f32_bf16 v{tmp}, v{qm+4+j}, v{qm+4+j}, {'0' if j == 0 else 'v%d' % tmp}")
        a("s_nop 0", f"v_permlane32_swap_b32 v{x[2]}, v{x[3]}", "s_nop 0", f"v_permlane32_swap_b32 v{y[2]}, v{y[3]}",
          f"v_add_f32 v{x[2]}, v{x[2]}, v{x[3]}", f"v_add_f32 v{y[2]}, v{y[2]}, v{y[3]}",
          f"v_dot2_f32_bf16 v{x[2]}, v{x[1]}, v{x[1]}, v{x[2]}", f"v_dot2_f32_bf16 v{y[2]}, v{y[1]}, v{y[1]}, v{y[2]}", "s_nop 1",
          f"v_sqrt_f32 v{x[2]}, v{x[2]}", f"v_sqrt_f32 v{y[2]}, v{y[2]}")

    def norm1(self, qm, qr, dst, tmp):
        a = self.a
        for j in range(4):
            a(f"v_dot2_f32_bf16 v{dst}, v{qm+j}, v{qm+j}, {'0' if j == 0 else 'v%d' % dst}",
              f"v_dot2_f32_bf16 v{tmp}, v{qm+4+j}, v{qm+4+j}, {'0' if j == 0 else 'v%d' % tmp}")
        a("s_nop 2", f"v_permlane32_swap_b32 v{dst}, v{tmp}", "s_nop 0", f"v_add_f32 v{dst}, v{dst}, v{tmp}",
          f"v_dot2_f32_bf16 v{dst}, v{qr}, v{qr}, v{dst}", "s_nop 2", f"v_sqrt_f32 v{dst}, v{dst}")

    def init_main_regs(self):
        a = self.a
        a(f"v_mov_b32 v{KR[0]+1}, 0x3f803f80", f"v_mov_b32 v{KR[1]+1}, 0x3f803f80")
        for r in range(O[0], O[0] + 32):
            a(f"v_mov_b32 v{r}, 0")
        for r in range(S[1] + 24, S[1] + 32):
            a(f"v_mov_b32 v{r}, 0")
        if self.o['vexec']:
            self.init_v()
            self.loader_flag()
        else:
            a([f"v_mov_b32 v{r}, 0" for r in range(VV[1][1], VV[1][1] + 4)])

    def ldKm(self, kb):
        return [f"ds_read_b128 {vr(KM[kb%2],4)}, v{V_AK} offset:{(kb//2)*PB+(kb%2)*1024}"]

    def ldKr(self, p):
        return [f"ds_read_b32 v{KR[p%2]}, v{V_AR} offset:{p*PB}"]

    def ldV(self, kb):
        x = [f"ds_read_b128 {vr(VV[kb%2][i],4)}, v{V_AV} offset:{(kb//2)*PB+((kb%2)*2+i)*VG}" for i in range(2)]
        if self.o['vexec']:
            x = [f"s_mov_b64 exec, s[{S_VM}:{S_VM+1}]"] + x + ["s_mov_b64 exec, -1"]
        return x

    def init_v(self):
        a = self.a
        m = sum(1 << r for r in G0 + G1)
        a(f"s_mov_b32 s{S_VM}, {hex(m)}", f"s_mov_b32 s{S_VM+1}, {hex(m)}", "s_mov_b32 vcc_lo, 0x220000", "s_mov_b32 vcc_hi, 0x220000",
          f"v_mov_b32 v{VV[0][0]}, 0x3f803f80", f"v_cndmask_b32 v{VV[0][0]}, 0, v{VV[0][0]}, vcc")
        a([f"v_mov_b32 v{VV[0][0]+k}, v{VV[0][0]}" for k in range(1, 16)])

    def qk(self, dst, kb, pr):
        return [B2(dst, KR[(kb//2) % 2], QRS[pr], kb % 2), K16(dst, KM[kb % 2], QMS[2*pr]), K16(dst + 16, KM[kb % 2], QMS[2*pr+1])]

    def main_prologue_loads(self):
        self.a(self.ldKr(0), self.ldKm(0), self.ldKm(1), self.ldV(0))

    def start(self):
        a, o = self.a, self.o
        a("s_cmp_ge_u32 s2, 256", "s_cbranch_scc1 L_end")
        a("s_load_dwordx16 s[16:31], s[0:1], 0", "s_load_dwordx8 s[32:39], s[0:1], 64", "s_load_dwordx2 s[40:41], s[0:1], 96")
        self.stamp(0)
        a("s_getpc_b64 s[42:43]", "L_pc:")
        a("v_lshrrev_b32 v1, 6, v0", "v_and_b32 v0, 63, v0", f"v_readfirstlane_b32 s{S_WAVE}, v1", "v_lshlrev_b32 v1, 4, v0",
          f"s_lshr_b32 s{S_T2}, s2, 3", f"s_and_b32 s{S_B}, s2, 1", f"s_and_b32 s{S_HG}, s{S_T2}, 3", f"s_lshr_b32 s{S_GI}, s2, 5")
        if o['binv']:
            a(f"s_xor_b32 s{S_B}, s{S_B}, 1")
        if o['prefetch']:
            a(f"s_cmp_lg_u32 s{S_WAVE}, 7", "s_cbranch_scc1 L_nopf", f"s_cmp_ge_u32 s{S_T2}, (L_codeend-{NAME})/1024", "s_cbranch_scc1 L_nopf",
              f"s_lshl_b32 s{S_T2}, s{S_T2}, 10", f"s_sub_u32 s{S_T0}, s42, L_pc-{NAME}", f"s_subb_u32 s{S_T1}, s43, 0",
              f"s_add_u32 s{S_T0}, s{S_T0}, s{S_T2}", f"s_addc_u32 s{S_T1}, s{S_T1}, 0",
              f"v_mov_b32 v7, s{S_T1}", f"v_add_co_u32 v6, vcc, s{S_T0}, v1", "s_nop 1", "v_addc_co_u32 v7, vcc, 0, v7, vcc", "s_nop 0",
              "global_load_dwordx4 v[24:27], v[6:7], off", "L_nopf:")
        a(f"s_bfe_u32 s{S_PG}, s2, 0x20001", f"s_lshl_b32 s{S_PG}, s{S_PG}, 3", f"s_add_u32 s{S_PG}, s{S_PG}, s{S_GI}",
          f"s_and_b32 s{S_I}, s{S_WAVE}, 3", f"s_and_b32 s{S_PBI}, s{S_WAVE}, 1", f"s_lshr_b32 s{S_HQ}, s{S_I}, 1")
        a("v_lshrrev_b32 v8, 3, v0", "v_lshrrev_b32 v9, 4, v0", f"s_lshl_b32 s{S_T0}, s{S_PBI}, 2", f"v_or_b32 v9, s{S_T0}, v9",
          "v_and_b32 v10, 7, v0", "v_xor_b32 v9, v9, v10", "v_lshlrev_b32 v9, 4, v9", "v_mov_b32 v10, 0x480", "v_mad_u32_u24 v8, v8, v10, v9",
          f"s_lshl_b32 s{S_T0}, s{S_I}, 6", f"v_add_u32 v9, s{S_T0}, v0", "v_mul_u32_u24 v10, 0xab, v9", "v_lshrrev_b32 v10, 9, v10", "v_mul_u32_u24 v10, 12, v10",
          "v_lshlrev_b32 v9, 4, v9", "v_sub_u32 v9, v9, v10")
        a(f"s_and_b32 s{S_T4}, s{S_HG}, 2", f"s_lshl_b32 s{S_T4}, s{S_T4}, 1", f"s_add_u32 s{S_T4}, s{S_T4}, s{S_I}",
          f"s_lshl_b32 s{S_T5}, s{S_PG}, 3", f"s_add_u32 s{S_XB}, s{S_T5}, s{S_T4}", f"s_mul_i32 s{S_XB}, s{S_XB}, {8*1152}",
          f"s_mul_i32 s{S_XM}, s{S_T4}, 9216", f"s_add_u32 s{S_XM}, s{S_XM}, {L_X}", f"s_lshl_b32 s{S_T0}, s{S_I}, 10", f"s_add_u32 s{S_T0}, s{S_T0}, {L_W}",
          f"s_lshr_b32 s{S_T1}, s{S_HG}, 1", f"s_movk_i32 s{S_DI}, 3072", f"s_movk_i32 s{S_DS}, 2304",
          f"s_cmp_lt_u32 s{S_WAVE}, 4", "s_cselect_b64 vcc, -1, 0", f"s_cselect_b32 s{S_XB}, s{S_XB}, 0", f"s_cselect_b32 s{S_XM}, s{S_XM}, s{S_T0}",
          f"s_cselect_b32 s{S_T1}, s{S_HG}, s{S_T1}", f"s_cselect_b32 s{S_DI}, 1024, s{S_DI}", f"s_cselect_b32 s{S_DS}, 128, s{S_DS}",
          "v_cndmask_b32 v9, v9, v8, vcc")
        self.dma9_setup(S_T1)
        a("s_waitcnt lgkmcnt(0)", f"s_cmp_eq_u32 s{S_B}, 0", f"s_cselect_b64 s[{R_X}:{R_X+1}], s[16:17], s[26:27]",
          f"s_cselect_b64 s[20:21], s[20:21], s[30:31]", f"s_cselect_b64 s[22:23], s[22:23], s[32:33]",
          f"s_cselect_b64 s[{R_WQ}:{R_WQ+1}], s[18:19], s[28:29]", f"s_cselect_b64 s[{R_WO}:{R_WO+1}], s[24:25], s[34:35]",
          f"s_bitcmp0_b32 s{S_HG}, 0", f"s_cselect_b64 s[{R_W}:{R_W+1}], s[20:21], s[22:23]", f"s_mov_b32 s{R_X+2}, 2359296", f"s_movk_i32 s{R_W+2}, 20736",
          f"s_cmp_lt_u32 s{S_WAVE}, 4", f"s_cselect_b64 s[{R_W}:{R_W+1}], s[{R_X}:{R_X+1}], s[{R_W}:{R_W+1}]", f"s_cselect_b32 s{R_W+2}, s{R_X+2}, s{R_W+2}",
          f"s_mov_b32 s{R_W+3}, 0x20000", f"s_mov_b32 s{R_X+3}, 0x20000")
        self.stamp(1, 2)
        a(f"s_cmp_lt_u32 s{S_WAVE}, 4", "s_cbranch_scc1 L_r1", "s_setprio 1", f"s_cmp_eq_u32 s{S_WAVE}, 7", "s_cbranch_scc1 L_late", "L_r1:")
        self.dma9(R_W, 9)
        a(f"s_cmp_ge_u32 s{S_WAVE}, 4", "s_cbranch_scc1 L_late")

    def wq_prefetch(self, n, first):
        a = self.a
        a(f"s_mov_b32 s{R_WQ+2}, 663552", f"s_mov_b32 s{R_WQ+3}, 0x20000", "v_lshlrev_b32 v30, 7, v0", f"s_lshr_b32 s{S_T0}, s2, 3", f"s_mul_i32 s{S_T0}, s{S_T0}, 20736")
        if first:
            a(f"s_mul_i32 s{S_T1}, s{first}, 6912", f"s_add_u32 s{S_T0}, s{S_T0}, s{S_T1}")
        a("s_mov_b32 exec_hi, 0x3fffff")
        for k in range(n):
            a(f"buffer_load_dword v{108+k}, v30, s[{R_WQ}:{R_WQ+3}], s{S_T0} offen", f"s_add_u32 s{S_T0}, s{S_T0}, 6912")
        a("s_mov_b32 exec_hi, -1")

    def dma9_setup(self, sel):
        self.a(f"s_bitcmp1_b32 s{sel}, 0", f"s_cselect_b32 s{S_XI}, 5, 0",
               f"s_add_u32 s{S_XS}, s{S_XI}, s{S_GI}", f"s_cmp_ge_u32 s{S_XS}, 9", f"s_cselect_b32 s{S_T0}, 9, 0", f"s_sub_u32 s{S_XS}, s{S_XS}, s{S_T0}",
               f"s_mul_i32 s{S_XS}, s{S_XS}, s{S_DS}", f"s_mul_i32 s{S_XI}, s{S_XI}, s{S_DI}", f"s_mul_i32 s{S_LI}, s{S_DI}, 9", f"s_mul_i32 s{S_LS}, s{S_DS}, 9")

    def dma9(self, srd_, v):
        for i in range(9):
            self.a(f"s_add_u32 m0, s{S_XM}, s{S_XI}", f"s_add_u32 s{S_T3}, s{S_XB}, s{S_XS}",
                   f"buffer_load_dwordx4 v{v}, s[{srd_}:{srd_+3}], s{S_T3} offen lds")
            if i < 8:
                self.a(f"s_add_u32 s{S_XS}, s{S_XS}, s{S_DS}", f"s_cmp_eq_u32 s{S_XS}, s{S_LS}", f"s_cselect_b32 s{S_XS}, 0, s{S_XS}",
                       f"s_add_u32 s{S_XI}, s{S_XI}, s{S_DI}", f"s_cmp_eq_u32 s{S_XI}, s{S_LI}", f"s_cselect_b32 s{S_XI}, 0, s{S_XI}")

    def table_load(self):
        self.a(f"s_add_u32 s{S_T0}, s42, L_table-L_pc", f"s_addc_u32 s{S_T1}, s43, 0",
               f"v_mov_b32 v7, s{S_T1}", f"v_add_co_u32 v6, vcc, s{S_T0}, v1", "s_nop 1", "v_addc_co_u32 v7, vcc, 0, v7, vcc", "s_nop 0",
               "global_load_dwordx4 v[20:23], v[6:7], off")

    def wq_setup(self, d, part=3):
        a = self.a
        if part & 1:
            a(f"s_mov_b32 s{R_WQ+2}, 663552", f"s_mov_b32 s{R_WQ+3}, 0x20000", f"s_lshl_b32 s{S_T0}, s{S_I}, 6", f"s_mul_i32 s{S_T1}, s{S_HG}, 288", "v_mov_b32 v16, 0x480")
        for t in range(3 if part & 1 else 0):
            a(f"v_add_u32 v13, s{S_T0}, v0", "v_mul_u32_u24 v14, 0xe39, v13", "v_lshrrev_b32 v14, 16, v14",
              "v_mul_u32_u24 v15, 18, v14", "v_sub_u32 v13, v13, v15", "v_lshlrev_b32 v13, 4, v13",
              "v_bfe_u32 v15, v14, 1, 2", "v_and_b32 v17, 1, v14", "v_lshl_add_u32 v15, v17, 2, v15", "v_and_b32 v14, 24, v14", "v_add_u32 v14, v14, v15",
              "v_mad_u32_u24 v13, v14, v16, v13", f"v_add_u32 v{10+t}, s{S_T1}, v13")
            if t < 2:
                a(f"s_add_u32 s{S_T0}, s{S_T0}, 192")
        if not part & 2:
            return
        a(f"s_lshl_b32 s{S_M0A}, s{S_I}, 10", f"s_mul_i32 s{S_ROW}, s{S_GI}, {64*1152}")
        if d:
            a(f"s_add_u32 s{S_ROW}, s{S_ROW}, {32*d*1152}", f"s_cmp_ge_u32 s{S_ROW}, {576*1152}",
              f"s_cselect_b32 s{S_T0}, {576*1152}, 0", f"s_sub_u32 s{S_ROW}, s{S_ROW}, s{S_T0}")

    def wq_list(self, d):
        n = self.nlab = getattr(self, 'nlab', 0) + 1
        s0 = dslot(d)
        ld = lambda r: f"buffer_load_dwordx4 v{r}, s[{R_WQ}:{R_WQ+3}], s{S_ROW} offen lds"
        return [f"s_cbranch_vccz L_wq{n}",
                f"s_add_u32 m0, s{S_M0A}, {s0}", f"s_add_u32 s{S_T0}, s{S_ROW}, {32*1152}", ld(10),
                f"s_add_u32 m0, s{S_M0A}, {s0+3072}", "s_nop 0", ld(11),
                f"s_add_u32 m0, s{S_M0A}, {s0+6144}", f"s_cmp_ge_u32 s{S_T0}, {576*1152}", ld(12),
                f"s_cselect_b32 s{S_T1}, {576*1152}, 0", f"s_sub_u32 s{S_ROW}, s{S_T0}, s{S_T1}", f"L_wq{n}:"]

    def wq_dma(self, d):
        self.a(self.wq_list(d))

    def loader_flag(self):
        self.a(f"s_cmp_lt_u32 s{S_I}, 3", "s_cselect_b64 vcc, -1, 0")

    @property
    def GROUPS(self):
        if self.o['pre'] == 5:
            return [(3, 2), (5, 6), (7, 10), (9, 14), (11, 18), (13, 22), (15, 26), (17, 30)]
        if self.o['pre'] == 1:
            return [(3, 2), (5, 6), (7, 10), (9, 14), (11, 18), (13, 22), (15, 26), (17, 30)]
        if self.o['pre'] == 2:
            return [(2, 2), (3, 4), (5, 6), (7, 10), (9, 14), (11, 18), (13, 22), (15, 26), (17, 30)]
        return [(3, 2), (5, 6), (7, 10), (9, 14), (11, 18), (13, 22), (15, 26), (17, 30)]

    def early_front(self):
        a, o = self.a, self.o
        self.stamp(2, 2)
        if o['spf'] == 5:
            a(f"s_cmp_lg_u32 s{S_WAVE}, 3", "s_cbranch_scc1 L_nospf", "s_waitcnt vmcnt(6)")
            self.wq_prefetch(3, None)
            a("L_nospf:")
        self.table_load()
        self.wq_setup(o['l01'])
        self.loader_flag()
        if not o['d0l']:
            self.wq_dma(0)
        self.rest_srds()
        a("v_and_b32 v16, 31, v0", "v_lshrrev_b32 v13, 5, v0", "v_bfe_u32 v14, v0, 1, 3", "v_xor_b32 v13, v13, v14", "v_lshlrev_b32 v13, 4, v13",
          "v_and_b32 v14, 7, v0", "v_lshl_add_u32 v13, v14, 7, v13", "v_lshrrev_b32 v16, 3, v16", "v_mul_u32_u24 v16, 0x2400, v16",
          f"s_mul_i32 s{S_T0}, s{S_PBI}, {4*9216}", f"s_add_u32 s{S_T0}, s{S_T0}, {L_X}", f"v_add3_u32 v8, v16, v13, s{S_T0}",
          "v_xor_b32 v9, 32, v8", "v_xor_b32 v108, 64, v8", "v_xor_b32 v109, 0x60, v8")
        a("v_bfe_u32 v18, v0, 2, 2", "v_lshrrev_b32 v15, 5, v0", "v_lshlrev_b32 v15, 2, v15", "v_add_u32 v15, v15, v18", "v_mul_u32_u24 v15, 0x240, v15",
          f"s_mul_i32 s{S_T0}, s{S_HQ}, 144", "v_and_b32 v13, 1, v0", "v_lshl_add_u32 v15, v13, 4, v15", f"v_add_u32 v15, s{S_T0}, v15",
          "v_bfe_u32 v13, v0, 1, 1", "v_bfe_u32 v14, v0, 4, 1", "v_lshl_add_u32 v6, v13, 3, v15", "v_lshl_add_u32 v6, v14, 5, v6",
          "v_mul_u32_u24 v13, 72, v13", "v_add3_u32 v7, v13, v15, 48")
        if o['ks2']:
            a(f"s_mul_i32 s{S_T0}, s{S_HQ}, -288", f"s_add_u32 s{S_T0}, s{S_T0}, 144", f"v_mul_i32_i24 v13, s{S_T0}, v14", "v_add_u32 v7, v7, v13")
        elif o['z2']:
            a("v_lshl_add_u32 v7, v14, 20, v7")
        a(f"v_mov_b32 v{V_IDX}, 0xdddddddd", f"v_add_u32 v{V_AK}, {L_KV}, v1", f"v_lshlrev_b32 v{V_AR}, 2, v0", f"v_add_u32 v{V_AR}, {L_KV+2048}, v{V_AR}",
          "v_mov_b32 v110, 0", "v_mov_b32 v111, 0", f"v_mov_b32 v19, {L_KMAX}", f"s_mov_b32 s{S_STG}, 1")
        self.tail_scalars()
        if o['d0l']:
            a("s_waitcnt vmcnt(1)")
        else:
            a(f"s_cmp_eq_u32 s{S_WAVE}, 3", "s_cbranch_scc0 L_e3", f"s_waitcnt vmcnt({4 if o['spf'] == 5 else 1})", "L_e3:", "s_waitcnt vmcnt(4)")
        self.stamp(3, 2)
        a("s_barrier")
        PRE = o['pre']
        for d in range(o['l01'], PRE + 1):
            self.wq_dma(d)
        a(f"s_cmp_eq_u32 s{S_WAVE}, 3", "s_cbranch_scc0 L_e4", "s_waitcnt vmcnt(0)", "L_e4:", f"s_waitcnt vmcnt({3*(PRE-1)})", f"v_mov_b32 v{V_AV}, v20", "v_mov_b32 v21, 0x3f803f80")
        self.stamp(1)
        self.stamp(4, 2)
        a("s_barrier")
        self.stamp(5, 2)
        XF = 112
        T0, T1, TR, TR2 = 24, 40, 56, 128
        KX = 26
        PD = o['pd']
        FB = [72, 84, 96]
        state = dict(base=0)

        def rd(ks):
            x = []
            off = slot_addr(ks) - state['base']
            if off < 0 or off + 360 > 65535:
                d = slot_addr(ks) - state['base']
                x += [f"v_add_u32 v{r}, {d}, v{r}" if d > 0 else f"v_subrev_u32 v{r}, {-d}, v{r}" for r in (6, 7)]
                state['base'] = slot_addr(ks)
                off = 0
            f = FB[ks % (PD + 1)]
            return x, [f"ds_read_b64_tr_b16 {vr(f,2)}, v6 offset:{off}", f"ds_read_b64_tr_b16 {vr(f+2,2)}, v6 offset:{off+288}",
                       f"ds_read_b64_tr_b16 {vr(f+4,2)}, v6 offset:{off+72}", f"ds_read_b64_tr_b16 {vr(f+6,2)}, v6 offset:{off+360}",
                       f"ds_read_b64_tr_b16 {vr(f+8,2)}, v7 offset:{off}", f"ds_read_b64_tr_b16 {vr(f+10,2)}, v7 offset:{off+288}"]

        def mm(ks, first2):
            f = FB[ks % (PD + 1)]
            c = "0" if ks == 0 else None
            if o['ks2'] and ks >= KX:
                m2 = K16(TR2, f + 8, XF + 4 * ks, vr(TR, 16) if ks == KX else None)
            else:
                m2 = K16(TR, f + 8, XF + 4 * ks, "0" if first2 else None)
            return [K16(T0, f, XF + 4 * ks, c), K16(T1, f + 4, XF + 4 * ks, c), m2]

        def kloop(par):
            state['base'] = 0
            nt = lambda ks: 2 if (o['ks2'] and ks < KX and ks % 2 != par) else 3
            XA = [8, 9, 108, 109]
            q = []

            def issue(tag, ins):
                a(ins)
                q.append(tag)

            def need(*tags):
                last = max((i for i, t in enumerate(q) if t in tags), default=-1)
                if last >= 0:
                    left = len(q) - 1 - last
                    a(f"s_waitcnt lgkmcnt({min(left, 14)})")
                    del q[:last + 1]

            def xrd(i):
                issue(('x', i), f"ds_read_b128 {vr(XF+4*i,4)}, v{XA[i&3]} offset:{(i>>2)*1024}")
            xrd(0)
            for j, r in enumerate(rd(0)[1][:2*nt(0)]):
                issue(('w', 0, j >> 1), r)
            xrd(1)
            for j, r in enumerate(rd(1)[1][:2*nt(1)]):
                issue(('w', 1, j >> 1), r)
            nx = 2
            G = [k for _, k in self.GROUPS]
            ev = {k: ["s_barrier"] for k in G}
            prev = 1
            for last, k in self.GROUPS:
                if prev < PRE:
                    ev[k] = [f"s_waitcnt vmcnt({3*max(PRE-last, 0)})", "s_barrier"]
                prev = last
            for ks in range(36):
                m = mm(ks, ks == par)
                if ks in ev:
                    if ks == 6:
                        need(('x', 35))
                        assert nx == 36 and not any(t[0] == 'x' for t in q)
                    if len(ev[ks]) > 1 and o["stamps"]:
                        a(ev[ks][0])
                    if ks in (2, 6, 10, 14, 22, 30):
                        self.stamp(1 + (2, 6, 10, 14, 22, 30).index(ks), 3)
                    if ks == 30:
                        need('e')
                    a(ev[ks])
                    if ks == 6:
                        self.stamp(2)
                        self.stamp(6, 2)
                pre, n = rd(ks + 2) if ks + 2 < 36 else ([], [])
                fine = nx < 36 or ks == 35
                if not fine:
                    need(('x', ks), ('w', ks, nt(ks) - 1))
                for t in range(3):
                    if t < nt(ks):
                        if fine:
                            need(('x', ks), ('w', ks, t))
                        a(m[t])
                    if t == 0:
                        a(pre)
                    for k in range(o['xper']):
                        if nx < 36:
                            xrd(nx)
                            nx += 1
                    if t < nt(ks + 2):
                        for r in n[2*t:2*t+2]:
                            issue(('w', ks + 2, t), r)
                if o['ks2'] and ks == KX + 2:
                    issue('e', f"ds_write_b128 v13, {vr(TR+8,4)}")
                    issue('e', f"ds_write_b128 v13, {vr(TR+12,4)} offset:1024")
                if o['ks2'] and ks == 31:
                    issue('i', f"ds_read_b128 {vr(XF,4)}, v14")
                    issue('i', f"ds_read_b128 {vr(XF+4,4)}, v14 offset:1024")
            assert not [t for t in q if t != 'i'] and True
            need('i')
        if o['ks2']:
            a(f"s_mul_i32 s{S_T0}, s{S_WAVE}, 2048", f"s_add_u32 s{S_T0}, s{S_T0}, {L_T2X}", f"v_add_u32 v13, s{S_T0}, v1", "v_xor_b32 v14, 0x1000, v13",
              f"s_cmp_eq_u32 s{S_HQ}, 1", "s_cbranch_scc1 L_kodd")
            kloop(0)
            a("s_branch L_kdone", "L_kodd:")
            kloop(1)
            a("L_kdone:")
        else:
            kloop(0)
        self.stamp(3)
        self.stamp(3, 6)
        a("v_mov_b32 v7, v19", f"v_mov_b32 v{KR[0]+1}, 0x3f803f80", f"s_mov_b32 s{S_BAR}, {32//o['unp'] - 1}", "s_mov_b32 vcc_lo, 0", "s_mov_b32 vcc_hi, -1", "s_nop 2")
        for (dst, t) in ((QM[0], T0), (QM2[0], T1)):
            for j, r in enumerate((0, 2, 4, 6, 10, 12, 14)):
                a(f"v_cvt_pk_bf16_f32 v{dst+j}, v{t+r}, v{t+r+1}")
        for (dst, qr, t, t2, tmp) in ((QM[0], QR, T0, TR, 108), (QM2[0], QR2, T1, TR + 4, 107)):
            a(f"v_cvt_pk_bf16_f32 v{dst+7}, v{t2}, v{t2+1}", f"v_cvt_pk_bf16_f32 v{qr}, v{t+8}, v{t+9}", f"v_cvt_pk_bf16_f32 v{tmp}, v{t2+2}, v{t2+3}")
        a(f"v_cndmask_b32 v{QR}, v{QR}, v108, vcc", f"v_cndmask_b32 v{QR2}, v{QR2}, v107, vcc")
        a([K8Z(x, 110) for x in (O2[1], O[0])])
        self.stamp(1, 6)
        a("s_barrier")
        self.stamp(2, 6)
        a("ds_read_b32 v6, v7")
        self.main_prologue_loads()
        self.norm2((QM[0], QR, QR + 1, 108), (QM2[0], QR2, QR2 + 1, 107))
        a([K8Z(x, 110) for x in (O[1], O2[0])])
        a([f"v_mov_b32 v{r}, 0" for r in range(VV[1][1], VV[1][1] + 4)])
        a("s_setprio 1", "s_waitcnt lgkmcnt(0)")

    def late_front(self):
        a, o = self.a, self.o
        a.label("L_late")
        a("s_setprio 0")
        if o['spf'] == 3:
            a(f"s_cmp_lg_u32 s{S_WAVE}, 7", "s_cbranch_scc1 L_nospf")
            self.wq_prefetch(3, None)
            a("L_nospf:")
        if o['spf'] == 4:
            a(f"s_cmp_eq_u32 s{S_WAVE}, 7", "s_cbranch_scc1 L_nospf")
            self.wq_prefetch(1, S_I)
            a("L_nospf:")
        self.stamp(2, 2)
        self.rest_srds()
        if o['shard']:
            a("v_and_b32 v160, 7, v0", "v_lshlrev_b32 v160, 9, v160", f"s_cmp_lg_u32 s{S_WAVE}, 7", "s_cbranch_scc1 L_nov0", f"s_mov_b32 s{S_T0}, {WS_CNT}",
              f"buffer_load_dword v161, v160, s[{R_WS}:{R_WS+3}], s{S_T0} offen sc0 sc1")
            if o['tw']:
                a(f"s_mov_b32 s{R_WQ+2}, 663552", f"s_mov_b32 s{R_WQ+3}, 0x20000", f"s_mul_i32 s{S_T0}, s{S_GI}, {64*1152}", "s_mov_b64 exec, 1",
                  f"buffer_load_dword v165, v160, s[{R_WQ}:{R_WQ+3}], s{S_T0} offen", "s_mov_b64 exec, -1")
            a("L_nov0:")
        self.wq_setup(6, 1)
        a(f"s_xor_b32 s{S_T4}, s{S_T4}, 4", f"s_add_u32 s{S_XB}, s{S_T5}, s{S_T4}", f"s_mul_i32 s{S_XB}, s{S_XB}, {8*1152}",
          f"s_mul_i32 s{S_XM}, s{S_T4}, 9216", f"s_add_u32 s{S_XM}, s{S_XM}, {L_X}", f"s_movk_i32 s{S_DI}, 1024", f"s_movk_i32 s{S_DS}, 128")
        a("v_and_b32 v13, 15, v0", "v_lshrrev_b32 v16, 4, v0",
          "v_bfe_u32 v17, v0, 1, 3", "v_xor_b32 v17, v16, v17", "v_lshlrev_b32 v17, 4, v17",
          "v_and_b32 v18, 7, v0", "v_lshl_add_u32 v17, v18, 7, v17", "v_bfe_u32 v18, v0, 3, 1", "v_mul_u32_u24 v18, 0x2400, v18",
          f"s_lshr_b32 s{S_T0}, s{S_HG}, 1", f"s_lshl_b32 s{S_T0}, s{S_T0}, 1", f"s_add_u32 s{S_T0}, s{S_T0}, s{S_PBI}",
          f"s_mul_i32 s{S_T1}, s{S_T0}, {2*9216}", f"s_add_u32 s{S_T1}, s{S_T1}, {L_X}", f"v_add3_u32 v14, v17, v18, s{S_T1}", "v_xor_b32 v15, 64, v14",
          "v_bfe_u32 v17, v0, 2, 2", "v_lshl_add_u32 v17, v16, 3, v17",
          "v_mul_u32_u24 v17, 48, v17", "v_and_b32 v18, 3, v0", "v_lshlrev_b32 v18, 3, v18",
          f"s_cmp_eq_u32 s{S_HQ}, 0", "s_cselect_b64 vcc, -1, 0", "v_mov_b32 v19, 32", "v_cndmask_b32 v18, v19, v18, vcc", f"v_add_u32 v17, {L_W}, v17", "v_add_u32 v17, v17, v18")
        a("v_lshrrev_b32 v19, 5, v0", "v_lshlrev_b32 v19, 9, v19", "v_lshl_add_u32 v19, v13, 4, v19",
          "v_bfe_u32 v18, v0, 4, 1", "v_lshl_add_u32 v28, v18, 3, v19", "v_lshlrev_b32 v29, 2, v13",
          f"s_mul_i32 s{S_KVS}, s{S_PG}, {PB}", f"s_mov_b32 s{S_OEX}, s{S_T0}")
        self.dma9_setup(S_HG)
        self.dma9(R_X, 8)
        self.stamp(3, 2)
        self.table_load()
        if o['spf'] == 2:
            a(f"s_cmp_lg_u32 s{S_WAVE}, 7", "s_cbranch_scc1 L_nospf")
            self.wq_prefetch(3, None)
            a("L_nospf:")
        if o['l01']:
            self.wq_setup(0, 2)
            self.loader_flag()
            for d in range(o['l01']):
                self.wq_dma(d)
        a("s_setprio 1", f"s_waitcnt vmcnt({10 + 3 * o['l01']})")
        self.stamp(1)
        self.stamp(4, 2)
        a("s_barrier")
        a(f"s_bitcmp1_b32 s{S_HG}, 0", "s_cbranch_scc1 L_vproj")
        D = 32
        NB = o['nb']
        for isv in (0, 1):
            if isv:
                a.label("L_vproj")

            def rd(s):
                xb = 40 + 8 * (s % NB)
                return [f"ds_read_b128 {vr(xb,4)}, v{14+(s&1)} offset:{(s>>1)*1024}",
                        f"ds_read_b64_tr_b16 {vr(xb+4,2)}, v17 offset:{s*1536}", f"ds_read_b64_tr_b16 {vr(xb+6,2)}, v17 offset:{s*1536+192}"]
            for s in range(NB - 1):
                a(rd(s))
            for s in range(18):
                if s == o['sb']:
                    a("s_waitcnt vmcnt(0)", "s_barrier")
                if s == 17 and o['sb'] == 18:
                    if o['l01']:
                        a(f"s_cmp_eq_u32 s{S_WAVE}, 7", f"s_cbranch_scc0 L_x{isv}", "s_waitcnt vmcnt(0)", f"L_x{isv}:")
                    a(f"s_waitcnt vmcnt({3 * o['l01']})")
                if s + NB - 1 < 18:
                    a(rd(s + NB - 1))
                left = min(18 - 1 - s, NB - 1)
                xb = 40 + 8 * (s % NB)
                c = "0" if s == 0 else None
                a(f"s_waitcnt lgkmcnt({min(15,3*left)})", M16(D, xb, xb + 4, c) if isv else M16(D, xb + 4, xb, c))
            g = S_OEX
            if not isv:
                a(f"s_lshr_b32 s{S_T0}, s{g}, 1", f"s_lshl_b32 s{S_T0}, s{S_T0}, 10", f"s_lshl_b32 s{S_T1}, s{S_PBI}, 8", f"s_add_u32 s{S_T0}, s{S_T0}, s{S_T1}",
                  f"s_add_u32 s{S_T0}, s{S_T0}, s{S_KVS}",
                  f"s_lshl_b32 s{S_T1}, s{g}, 6", f"s_add_u32 s{S_T1}, s{S_T1}, s{S_KVS}", f"s_add_u32 s{S_T1}, s{S_T1}, 2048",
                  f"s_mov_b32 s{S_T2}, {hex(f2u(CSCALE))}")
                for r in range(4):
                    a(f"v_mul_f32 v{D+r}, s{S_T2}, v{D+r}")
                a(f"v_cvt_pk_bf16_f32 v{D}, v{D}, v{D+1}", f"v_cvt_pk_bf16_f32 v{D+1}, v{D+2}, v{D+3}",
                  f"s_lshl_b32 s{S_T3}, s{S_PG}, 2", f"s_add_u32 s{S_T3}, s{S_T3}, s{g}", f"s_lshl_b32 s{S_T3}, s{S_T3}, 2", f"s_add_u32 s{S_T3}, s{S_T3}, {WS_KN}",
                  f"v_dot2_f32_bf16 v36, v{D}, v{D}, 0",
                  f"s_cmp_eq_u32 s{S_HQ}, 0", "s_cbranch_scc0 L_krem",
                  f"buffer_store_dwordx2 {vr(D,2)}, v28, s[{R_WS}:{R_WS+3}], s{S_T0} offen sc1",
                  f"v_dot2_f32_bf16 v36, v{D+1}, v{D+1}, v36", "s_nop 2", "v_mov_b32 v37, v36", "s_nop 1",
                  "v_permlane16_swap_b32 v36, v37", "s_nop 1", "v_add_f32 v36, v36, v37", "s_nop 0", "v_mov_b32 v37, v36", "s_nop 1",
                  "v_permlane32_swap_b32 v36, v37", "s_nop 1", "v_add_f32 v36, v36, v37", "s_branch L_knorm",
                  "L_krem:", "s_mov_b64 exec, 0xffff",
                  f"buffer_store_dword v{D}, v29, s[{R_WS}:{R_WS+3}], s{S_T1} offen sc1", "s_mov_b64 exec, -1", f"s_add_u32 s{S_T3}, s{S_T3}, 512",
                  "L_knorm:", "s_nop 1")
                self.row_max16(36)
                a("v_mov_b32 v37, 0", "s_mov_b64 exec, 1", f"buffer_store_dword v36, v37, s[{R_WS}:{R_WS+3}], s{S_T3} offen sc1", "s_mov_b64 exec, -1")
                if o['l01']:
                    a("s_waitcnt vmcnt(2)")
                a("s_branch L_kvdone")
            else:
                a(f"s_mul_i32 s{S_T0}, s{g}, {VG}", f"s_add_u32 s{S_T0}, s{S_T0}, s{S_KVS}", f"s_add_u32 s{S_T0}, s{S_T0}, 2304",
                  "v_cmp_eq_u32 vcc, 2, v13", f"v_cmp_eq_u32 s[{S_EX}:{S_EX+1}], 3, v13", "v_mov_b32 v30, 0x3f803f80", "s_nop 0",
                  f"s_cmp_eq_u32 s{S_HQ}, 0",
                  f"v_cvt_pk_bf16_f32 v{D}, v{D}, v{D+1}", f"v_cvt_pk_bf16_f32 v{D+1}, v{D+2}, v{D+3}", "s_cbranch_scc0 L_vrem",
                  f"buffer_store_dwordx2 {vr(D,2)}, v21, s[{R_WS}:{R_WS+3}], s{S_T0} offen sc1", "s_branch L_vdone",
                  "L_vrem:",
                  f"v_cndmask_b32 v{D}, v{D}, v30, vcc", f"v_cndmask_b32 v{D+1}, v{D+1}, v30, vcc",
                  f"v_cndmask_b32 v{D}, v{D}, 0, s[{S_EX}:{S_EX+1}]", f"v_cndmask_b32 v{D+1}, v{D+1}, 0, s[{S_EX}:{S_EX+1}]",
                  "s_mov_b32 exec_lo, 0x000f000f", "s_mov_b32 exec_hi, 0x000f000f",
                  f"buffer_store_dwordx2 {vr(D,2)}, v22, s[{R_WS}:{R_WS+3}], s{S_T0} offen sc1", "s_mov_b64 exec, -1", "L_vdone:")
                if o['l01']:
                    a("s_waitcnt vmcnt(1)")
        a.label("L_kvdone")
        if True:
            a("s_getreg_b32 s29, hwreg(HW_REG_XCC_ID, 0, 4)", f"s_cmp_lg_u32 s{S_WAVE}, 4", "s_cbranch_scc1 L_noxid",
              f"s_lshl_b32 s{S_T0}, s{S_PG}, 2", f"s_add_u32 s{S_T0}, s{S_T0}, s{S_HG}", f"s_lshl_b32 s{S_T0}, s{S_T0}, 2", f"s_add_u32 s{S_T0}, s{S_T0}, {WS_XID}",
              "v_mov_b32 v38, s29", "v_mov_b32 v39, 0", "s_mov_b64 exec, 1", f"buffer_store_dword v38, v39, s[{R_WS}:{R_WS+3}], s{S_T0} offen sc1", "s_mov_b64 exec, -1", "L_noxid:")
        self.stamp(2)
        self.stamp(5, 2)
        a(f"v_mov_b32 v{V_AV}, v20")
        self.wq_setup(o['pre'] + 1, 2)
        self.loader_flag()
        a("v_mov_b32 v100, 1", "v_mov_b32 v101, 0")
        if o['sb'] == 18:
            a("s_barrier")
        nxt = first = o['pre'] + 1
        NG = len(self.GROUPS)
        passed = -1
        signalled = False
        for gi_, (last, step) in enumerate(self.GROUPS):
            lim = 5 if passed < 2 else 8 if passed < 6 else 16 if passed < 14 else 17
            tgt = min(last + o['win'], lim)
            while nxt <= tgt:
                self.wq_dma(nxt)
                nxt += 1
            assert nxt > last
            if step == 14:
                self.wo_job_addr(0)
                self.poison_addr()
            if step == 18:
                a(f"s_cmp_ge_u32 s{S_OEX}, {648-512}", "s_cselect_b32 s16, 0, 512", f"s_add_u32 s{S_OEX}, s{S_OEX}, s16")
                self.wo_job_addr(1)
                self.loader_flag()
            if gi_ == NG - 3:
                a(f"s_and_b32 s{S_T0}, s{S_GI}, 3", f"s_mul_i32 s{S_KVS}, s{S_T0}, {37*1024}", f"s_add_u32 s{S_KVS}, s{S_KVS}, s{S_M0A}",
                  "v_lshlrev_b32 v153, 3, v0", f"s_mov_b32 s{S_T4}, {WS_KN}", f"s_lshl_b32 s{S_T5}, s{S_B}, 7")
            sig = last >= first and not signalled
            if sig:
                a(f"s_cbranch_vccnz L_l{gi_}", "s_waitcnt vmcnt(0)", f"L_l{gi_}:")
                signalled = True
            if last >= first:
                a(f"s_waitcnt vmcnt({3*(nxt-1-last)})")
            passed = step
            if step == 10:
                a(f"v_mov_b32 v150, {L_FLAG}", "v_mov_b32 v152, 0", "v_mov_b32 v153, 0", "v_mov_b32 v154, 0", "v_mov_b32 v155, 0", "v_mov_b32 v151, 0", "ds_write_b128 v150, v[152:155]", "s_waitcnt lgkmcnt(0)")
            if gi_ == NG - 3 and o['tre']:
                a("s_cbranch_vccnz L_try1", f"s_mov_b32 s{S_T0}, {WS_CNT}", f"buffer_load_dword v152, v160, s[{R_WS}:{R_WS+3}], s{S_T0} offen sc0 sc1", "L_try1:")
            if gi_ == NG - 2:
                assert nxt == 18
                if o['shard']:
                    a("s_cbranch_vccnz L_try0")
                    if not o['tre']:
                        a(f"s_mov_b32 s{S_T0}, {WS_CNT}", f"buffer_load_dword v152, v160, s[{R_WS}:{R_WS+3}], s{S_T0} offen sc0 sc1")
                    a("s_waitcnt vmcnt(0)",
                      "v_cmp_ne_u32 s[16:17], v152, v161", "s_cmp_eq_u64 s[16:17], 0", "s_cselect_b32 s16, 1, 0", "v_mov_b32 v152, s16", "ds_write_b32 v150, v152", "s_waitcnt lgkmcnt(0)", "L_try0:")
                else:
                    a("s_cbranch_vccnz L_try0", f"buffer_load_dword v152, v151, s[{R_DBG}:{R_DBG+3}], s{S_T5} offen sc0 sc1", "s_waitcnt vmcnt(0)",
                      "v_lshrrev_b32 v152, 7, v152", "ds_write_b32 v150, v152", "s_waitcnt lgkmcnt(0)", "L_try0:")
            if step in (2, 6, 10, 14, 22):
                self.stamp(1 + (2, 6, 10, 14, 22).index(step), 3)
            a("s_barrier")
            if sig:
                self.stamp(3, 9)
                self.kv_signal()
            if gi_ == NG - 2:
                break
        kn = [f"s_cmp_lg_u32 s{S_WAVE}, 7", None, f"buffer_load_dwordx2 v[154:155], v153, s[{R_WS}:{R_WS+3}], s{S_T4} offen sc1",
              f"buffer_load_dwordx2 v[156:157], v153, s[{R_WS}:{R_WS+3}], s{S_T4} offen offset:512 sc1"]
        a("ds_read_b32 v152, v150", "s_waitcnt lgkmcnt(0)", "v_cmp_eq_u32 vcc, 0, v152", "s_cbranch_vccnz L_notyet")
        self.stamp(4)
        self.stamp(4, 9)
        a(kn[0], "s_cbranch_scc1 L_kna", kn[2:], "L_kna:")
        self.kv_dma(0, o['ka'])
        a(f"s_cmp_eq_u32 s{S_WAVE}, 7", "s_cbranch_scc1 L_knb", f"s_waitcnt vmcnt({o['ka']})", "L_knb:")
        self.stamp(6, 3)
        a("s_barrier")
        self.kv_dma(4 * o['ka'], o['kv1'] - o['ka'])
        a("s_branch L_first")
        a("L_notyet:", "s_waitcnt vmcnt(0)")
        self.stamp(6, 3)
        a("s_barrier")
        a(f"s_mov_b32 s{S_CNT}, {SPIN_L}", f"s_cmp_lg_u32 s{S_WAVE}, 7", "s_cbranch_scc1 L_relay", f"s_mov_b32 s{S_CNT}, {SPIN}")
        if o['shard']:
            a(f"s_mov_b32 s{S_T0}, {WS_CNT}", "L_poll1:", f"buffer_load_dword v152, v160, s[{R_WS}:{R_WS+3}], s{S_T0} offen sc0 sc1",
              f"s_cmp_gt_u32 s{S_CNT}, {SPIN - 4}", "s_cbranch_scc1 L_pf", f"s_cmp_lg_u32 s{S_CNT}, {SPIN - o['nslow']}", "s_cbranch_scc1 L_ps",
              "s_mov_b64 exec, 1", f"buffer_atomic_add v100, v101, s[{R_DBG}:{R_DBG+3}], s{S_T5} offen sc1", "s_mov_b64 exec, -1",
              "L_ps:", f"buffer_load_dwordx3 v[162:164], v151, s[{R_DBG}:{R_DBG+3}], s{S_T5} offen sc0 sc1", "s_waitcnt vmcnt(0)",
              "v_lshrrev_b32 v162, 7, v162", "v_or3_b32 v162, v162, v163, v164", "v_cmp_ne_u32 vcc, 0, v162", "s_cbranch_vccnz L_poll1d",
              "L_pf:", f"s_sub_u32 s{S_CNT}, s{S_CNT}, 1", "s_cbranch_scc1 L_poll1d", "s_waitcnt vmcnt(0)", "v_cmp_ne_u32 vcc, v152, v161", "s_cbranch_vccnz L_poll1")
        else:
            a("L_poll1:", f"buffer_load_dword v152, v151, s[{R_DBG}:{R_DBG+3}], s{S_T5} offen sc0 sc1", f"s_sub_u32 s{S_CNT}, s{S_CNT}, 1",
              "s_cbranch_scc1 L_poll1d", "s_waitcnt vmcnt(0)", "v_cmp_gt_u32 vcc, 0x80, v152", "s_cbranch_vccnz L_poll1")
        a("L_poll1d:", "v_mov_b32 v152, 1", "ds_write_b32 v150, v152", kn[2:], "s_branch L_flagok")
        a("L_relay:", "ds_read_b32 v152, v150", f"s_sub_u32 s{S_CNT}, s{S_CNT}, 1", "s_cbranch_scc1 L_flagok", "s_waitcnt lgkmcnt(0)",
          "v_cmp_eq_u32 vcc, 0, v152", "s_cbranch_vccnz L_relay", "L_flagok:")
        self.stamp(4)
        self.stamp(4, 9)
        self.kv_dma(0, o['kv1'])
        a("L_first:")
        self.stamp(3)
        self.stamp(6, 2)
        a(f"s_cmp_lg_u32 s{S_WAVE}, 7", "s_cbranch_scc1 L_nokn", f"s_waitcnt vmcnt({o['kv1']})", "v_max_f32 v154, v154, v155", "v_max_f32 v156, v156, v157")
        self.row_max16(154)
        self.row_max16(156)
        a("s_nop 0")
        for k in range(4):
            a(f"v_readlane_b32 s{16+k}, v154, {16*k}", f"v_readlane_b32 s{20+k}, v156, {16*k}")
        a("s_nop 1", "s_max_u32 s16, s16, s17", "s_max_u32 s18, s18, s19", "s_max_u32 s20, s20, s21", "s_max_u32 s22, s22, s23",
          "s_max_u32 s16, s16, s18", "s_max_u32 s20, s20, s22", "v_mov_b32 v154, s16", "v_add_f32 v154, s20, v154", "v_sqrt_f32 v154, v154",
          f"v_mov_b32 v155, {L_KMAX}", "ds_write_b32 v155, v154", "L_nokn:")
        self.stamp(3, 6)
        a("s_waitcnt vmcnt(0) lgkmcnt(0)")
        self.stamp(1, 6)
        self.stamp(5, 9)
        a("s_barrier")
        self.stamp(2, 6)
        self.kv_dma(4 * o['kv1'], 37 - o['kv1'])
        a("s_setprio 2", f"s_mov_b32 s{S_STG}, 0", "s_waitcnt vmcnt(0)")
        self.stamp(5)
        self.stamp(4, 6)
        a("s_barrier")
        self.stamp(5, 6)
        if o['shard']:
            a(f"s_cmp_lg_u32 s{S_WAVE}, 7", "s_cbranch_scc1 L_nosaw", "s_cmp_ge_u32 s2, 8", "s_cbranch_scc1 L_nosaw", "s_mov_b64 exec, 1",
              f"buffer_atomic_add v100, v101, s[{R_DBG}:{R_DBG+3}], s{S_T5} offen offset:8 sc1", "s_mov_b64 exec, -1", "L_nosaw:")
        self.wo_job_loads(0)
        a(f"s_cmp_lt_u32 s{S_OEX}, 512", "s_cbranch_scc1 L_nowo2")
        self.wo_job_loads(1)
        a("L_nowo2:", f"s_lshl_b32 s{S_T0}, s{S_PG}, 4", f"s_add_u32 s{S_T0}, s{S_T0}, {WS_XID}", "v_and_b32 v8, 3, v0", "v_lshlrev_b32 v8, 2, v8",
          f"buffer_load_dword v9, v8, s[{R_WS}:{R_WS+3}], s{S_T0} offen sc1")
        self.poison()
        a("s_waitcnt vmcnt(5)")
        self.wo_finish()
        a(f"v_mov_b32 v10, {L_FLAG+8}", "v_cmp_ne_u32 vcc, s29, v9", "s_cmp_eq_u64 vcc, 0", f"s_cselect_b32 s{S_SAME}, {o['xcc']}, 0", f"v_mov_b32 v11, s{S_SAME}",
          "ds_write_b32 v10, v11", "s_waitcnt lgkmcnt(0)")
        self.join_signal(12, "l")
        a("s_mov_b64 exec, -1")
        self.tail_scalars()
        a("v_mov_b32 v12, 1", f"s_mov_b32 s{S_CNT}, {SPIN}", f"s_cmp_lg_u32 s{S_WAVE}, 7", "s_cbranch_scc1 L_rel2", f"s_lshl_b32 s{S_T0}, s{S_B}, 7",
          "L_poll2:", f"buffer_load_dword v11, v15, s[{R_DBG}:{R_DBG+3}], s{S_T0} offen offset:4 sc0 sc1", f"s_sub_u32 s{S_CNT}, s{S_CNT}, 1",
          "s_cbranch_scc1 L_poll2d", "s_waitcnt vmcnt(0)", "v_cmp_gt_u32 vcc, 0x80, v11", "s_cbranch_vccz L_poll2d", "s_sleep 16", "s_branch L_poll2",
          "L_poll2d:", "ds_write_b32 v10, v12 offset:4", "s_branch L_rel2d",
          "L_rel2:", "ds_read_b32 v11, v10 offset:4", f"s_sub_u32 s{S_CNT}, s{S_CNT}, 1", "s_cbranch_scc1 L_rel2d", "s_waitcnt lgkmcnt(0)",
          "v_cmp_ne_u32 vcc, 0, v11", "s_cbranch_vccnz L_rel2d", "s_sleep 16", "s_branch L_rel2", "L_rel2d:")
        a(f"s_mul_i32 s{S_T0}, s{S_HG}, 9", f"s_lshl_b32 s{S_T1}, s{S_I}, 1", f"s_add_u32 s{S_T0}, s{S_T0}, s{S_T1}", f"s_mul_i32 s{S_T0}, s{S_T0}, {18*1024}", f"s_add_u32 s{S_T0}, s{S_T0}, {WS_WOT}")
        for n in range(36):
            a(f"buffer_load_dwordx4 {vr(112+4*n,4)}, v1, s[{R_WS}:{R_WS+3}], s{S_T0} offen offset:{(n&3)*1024} sc1")
            if n & 3 == 3:
                a(f"s_add_u32 s{S_T0}, s{S_T0}, 4096")
        self.tail_vaddr()
        if o['to']:
            a("s_mov_b64 exec, 1", f"buffer_load_dword v6, v22, s[{R_OUT}:{R_OUT+3}], s37 offen", "s_mov_b64 exec, -1")
        a("s_waitcnt vmcnt(0) lgkmcnt(0)", "s_barrier")
        a(f"s_mul_i32 s{S_T0}, s{S_HG}, 9", f"s_add_u32 s{S_T0}, s{S_T0}, 8", f"s_mul_i32 s{S_T0}, s{S_T0}, {18*1024}", f"s_add_u32 s{S_T0}, s{S_T0}, {WS_WOT}",
          f"s_add_u32 s{S_T0}, s{S_T0}, s{S_M0A}")
        for k in range(4):
            a(f"s_add_u32 m0, s{S_M0A}, {L_W8 + 4096*k}", f"s_add_u32 s{S_T1}, s{S_T0}, {4096*k}", f"buffer_load_dwordx4 v1, s[{R_WS}:{R_WS+3}], s{S_T1} offen sc1 lds")
        a(f"s_and_b32 s{S_T2}, s{S_I}, 2", f"s_sub_u32 s{S_T2}, 16, s{S_T2}", f"s_lshl_b32 s{S_T2}, s{S_T2}, 10", f"s_add_u32 s{S_T1}, s{S_T0}, s{S_T2}",
          f"s_add_u32 s{S_T2}, s{S_T2}, s{S_M0A}", f"s_add_u32 m0, s{S_T2}, {L_W8}", "s_nop 0", f"buffer_load_dwordx4 v1, s[{R_WS}:{R_WS+3}], s{S_T1} offen sc1 lds",
          "s_waitcnt vmcnt(0)")
        self.tail_late()

    def kv_signal(self):
        a, o = self.a, self.o
        if o['shard']:
            a("s_cbranch_vccnz L_nosig", "s_setprio 3", f"v_add_u32 v161, {17 if o['badv0'] else 16}, v161",
              f"s_bfe_u32 s{S_T0}, s2, 0x20001", f"s_lshl_b32 s{S_T0}, s{S_T0}, 1", f"s_and_b32 s{S_T1}, s{S_GI}, 1", f"s_add_u32 s{S_T0}, s{S_T0}, s{S_T1}",
              f"s_lshl_b32 s{S_T0}, s{S_T0}, 9", f"s_add_u32 s{S_T0}, s{S_T0}, {WS_CNT}", "s_mov_b64 exec, 1",
              f"buffer_atomic_add v100, v101, s[{R_WS}:{R_WS+3}], s{S_T0} offen sc1", "s_mov_b64 exec, -1", "s_setprio 1", "L_nosig:")
        else:
            a("s_cbranch_vccnz L_nosig", "s_setprio 3", f"s_lshl_b32 s{S_T0}, s{S_B}, 7", "s_mov_b64 exec, 1",
              f"buffer_atomic_add v100, v101, s[{R_DBG}:{R_DBG+3}], s{S_T0} offen sc1", "s_mov_b64 exec, -1", "s_setprio 1", "L_nosig:")

    def join_signal(self, v, tag):
        self.a(f"v_mov_b32 v{v}, {L_FLAG+4}", f"v_mov_b32 v{v+1}, 1", f"v_mov_b32 v{v+3}, 0", f"s_lshl_b32 s{S_T0}, s{S_B}, 7", "s_mov_b64 exec, 1",
               "s_waitcnt vmcnt(0)", f"ds_add_rtn_u32 v{v+2}, v{v}, v{v+1}", "s_waitcnt lgkmcnt(0)", f"v_cmp_eq_u32 vcc, 3, v{v+2}", f"s_cbranch_vccz L_js{tag}",
               f"buffer_atomic_add v{v+1}, v{v+3}, s[{R_DBG}:{R_DBG+3}], s{S_T0} offen offset:4 sc1", f"L_js{tag}:")

    def wo_job_addr(self, rep):
        a = self.a
        if rep == 0:
            a(f"s_lshl_b32 s{S_OEX}, s{S_PG}, 2", f"s_add_u32 s{S_OEX}, s{S_OEX}, s{S_HG}", f"s_lshl_b32 s{S_OEX}, s{S_OEX}, 2", f"s_add_u32 s{S_OEX}, s{S_OEX}, s{S_I}")
        f = S_OEX
        AD = 208 + 8 * rep
        a(f"s_mul_i32 s16, s{f}, 3641", "s_lshr_b32 s16, s16, 16", "s_mul_i32 s19, s16, 18", f"s_sub_u32 s19, s{f}, s19",
          "s_mul_i32 s21, s16, 7282", "s_lshr_b32 s21, s21, 16", "s_mul_i32 s17, s21, 9", "s_sub_u32 s17, s16, s17")
        a("s_mul_i32 s22, s21, 288", "s_lshr_b32 s23, s17, 1", "s_lshl_b32 s23, s23, 6", "s_add_u32 s22, s22, s23", "s_and_b32 s23, s17, 1", "s_lshl_b32 s23, s23, 3",
          "s_add_u32 s22, s22, s23", "s_cmp_eq_u32 s17, 8", "s_cselect_b32 s23, 3, 4",
          "v_bfe_u32 v200, v0, 2, 2", "v_lshlrev_b32 v200, s23, v200", "v_and_b32 v201, 3, v0", "v_lshl_add_u32 v200, v201, 1, v200", "v_add_u32 v200, s22, v200",
          "s_cmp_ge_u32 s19, 16", f"s_cbranch_scc1 L_wok1_{rep}")
        cy = [(j & 3) + 8 * (j >> 2) for j in range(8)]
        a("s_lshr_b32 s23, s19, 2", "s_add_u32 s23, s23, s21", "s_and_b32 s23, s23, 3", f"s_mul_i32 s22, s23, {144*1152}",
          "s_and_b32 s23, s19, 1", f"s_mul_i32 s23, s23, {72*1152}", "s_add_u32 s22, s22, s23", "s_bfe_u32 s23, s19, 0x10001", f"s_mul_i32 s23, s23, {36*1152}", "s_add_u32 s22, s22, s23",
          "v_lshrrev_b32 v201, 5, v0", "v_bfe_u32 v202, v0, 4, 1",
          f"v_mul_u32_u24 v203, {4*1152}, v201", "v_add_u32 v203, v200, v203",
          f"v_mul_u32_u24 v204, {3*1152}, v201", f"v_sub_u32 v204, {16*1152}, v204", "v_mul_u32_u24 v204, v202, v204", f"v_add_u32 v{AD}, v203, v204")
        for j in range(1, 8):
            dj = 18 + cy[j-1] - cy[j]
            a(f"v_mul_u32_u24 v204, {dj*1152}, v202", f"v_add_u32 v204, {cy[j]*1152}, v204", f"v_add_u32 v{AD+j}, v203, v204")
        a(f"s_branch L_wold_{rep}", f"L_wok1_{rep}:", "s_and_b32 s22, s19, 1", f"s_mul_i32 s22, s22, {36*1152}",
          "v_lshrrev_b32 v201, 4, v0", "v_add_u32 v201, s21, v201", "v_and_b32 v201, 3, v201", f"v_mul_u32_u24 v201, {144*1152}, v201", "v_add_u32 v203, v200, v201")
        for j in range(8):
            hq, hh, e = j >> 2, (j >> 1) & 1, j & 1
            row = 72 * hq + 18 + ((16 + hh) if e else (11 + 4 * hh))
            a(f"v_add_u32 v{AD+j}, {row*1152}, v203")
        a(f"L_wold_{rep}:")
        a(f"s_mov_b32 s{30+rep}, s22")

    def wo_job_loads(self, rep):
        for j in range(8):
            self.a(f"buffer_load_ushort v{224+8*rep+j}, v{208+8*rep+j}, s[{R_WO}:{R_WO+3}], s{30+rep} offen")

    def wo_job_finish(self, rep):
        a = self.a
        DT = 224 + 8 * rep
        a(f"s_lshl_b32 s22, s{S_OEX}, 10", f"s_add_u32 s22, s22, {WS_WOT}")
        for j in range(4):
            a(f"v_lshl_or_b32 v{240+4*rep+j}, v{DT+1+2*j}, 16, v{DT+2*j}")
        a(f"buffer_store_dwordx4 {vr(240+4*rep,4)}, v1, s[{R_WS}:{R_WS+3}], s22 offen sc1")

    def wo_finish(self):
        a = self.a
        a(f"s_cmp_ge_u32 s{S_OEX}, 512", "s_cbranch_scc0 L_wo3")
        self.wo_job_finish(1)
        a(f"s_sub_u32 s{S_OEX}, s{S_OEX}, 512", "L_wo3:")
        self.wo_job_finish(0)

    def poison_addr(self):
        a = self.a
        a([f"v_mov_b32 v{192+j}, -1" for j in range(4)])
        a(f"s_lshl_b32 s32, s{S_PG}, 2", f"s_add_u32 s32, s32, s{S_HG}", f"s_mul_i32 s32, s32, {OEX_W}", f"s_add_u32 s32, s32, {WS_OEX}",
          f"s_lshl_b32 s33, s{S_I}, 12", "s_add_u32 s33, s33, s32", f"s_lshl_b32 s34, s{S_PBI}, 10", "s_add_u32 s34, s34, s32", "s_add_u32 s34, s34, 16384")

    def poison(self):
        a = self.a
        for k in range(4):
            a(f"buffer_store_dwordx4 v[192:195], v1, s[{R_WS}:{R_WS+3}], s33 offen offset:{k*1024} sc0 sc1")
        a(f"buffer_store_dwordx4 v[192:195], v1, s[{R_WS}:{R_WS+3}], s34 offen sc0 sc1")

    def attention(self):
        a, o = self.a, self.o
        UNP = o['unp']
        a(f"v_mul_f32 v7, v6, v{QR+1}", f"v_mul_f32 v22, v6, v{QR2+1}", f"v_mov_b32 v6, {hex(f2u(-1.0 if o['force_fb'] else TSAFE))}",
          "v_cmp_nle_f32 vcc, v7, v6", "v_cmp_nle_f32 s[42:43], v22, v6", "v_sub_f32 v7, 0, v7", "v_sub_f32 v22, 0, v22",
          f"v_cvt_pk_bf16_f32 v{QR+1}, v7, 0", f"v_cvt_pk_bf16_f32 v{QR2+1}, v22, 0", "s_or_b64 vcc, vcc, s[42:43]", "s_cbranch_vccnz L_fallback", "L_fbdone:")
        q = self.qk(S[0], 0, 0)
        f1 = [f"s_lshl_b32 s{S_T0}, s{S_HQ}, 12", f"s_lshl_b32 s{S_T1}, s{S_PBI}, 11", f"s_add_u32 s{S_T2}, s{S_T0}, s{S_T1}",
              f"s_lshl_b32 s{S_T0}, s{S_PBI}, 9", f"s_lshl_b32 s{S_T1}, s{S_HQ}, 7", f"s_add_u32 s{S_T3}, s{S_T0}, s{S_T1}",
              f"v_mov_b32 v{V_JN}, {L_FLAG+4}", f"s_mov_b32 s{S_CNT}, {32//UNP}", "v_bfe_u32 v6, v0, 4, 1", "v_lshrrev_b32 v7, 5, v0",
              "v_and_b32 v22, 15, v0", f"v_lshlrev_b32 v{V_OA}, 10, v6", f"v_lshl_add_u32 v{V_OA}, v7, 9, v{V_OA}", f"v_lshl_add_u32 v{V_OA}, v22, 4, v{V_OA}", f"v_add_u32 v{V_OA}, s{S_T2}, v{V_OA}",
              f"v_lshlrev_b32 v{V_OB}, 8, v6", f"v_lshl_add_u32 v{V_OB}, v7, 6, v{V_OB}", f"v_lshl_add_u32 v{V_OB}, v22, 2, v{V_OB}"]
        a("s_nop 0", q[0], f1, q[1], q[2], f"v_add_u32 v{V_OB}, s{S_T3}, v{V_OB}", "s_nop 9")
        self.stamp(6)
        self.stamp(6, 6)
        body = []
        units = [(kb, pr) for kb in range(2 * UNP) for pr in range(2)]
        for i, (kb, pr) in enumerate(units):
            cur, nxt = S[i % 2], S[(i + 1) % 2]
            q = self.qk(nxt, kb + pr, 1 - pr)
            e = EX(cur, 32)
            sm3p = SM(OS[2*(1-pr)+1], VV[(kb - 1 + pr) % 2][1], nxt + 24)
            sm = [SM(OS[2*pr], VV[kb % 2][0], cur), SM(OS[2*pr], VV[kb % 2][1], cur + 8), SM(OS[2*pr+1], VV[kb % 2][0], cur + 16)]
            if pr == 0:
                v0, v1 = self.ldV(kb + 1)
                x = [[v0], [v1], [], [], []]
            else:
                x = [[], [], self.ldKm(kb + 2), self.ldKr(kb // 2 + 1) if kb % 2 == 0 else [], ["s_waitcnt lgkmcnt(0)"]]
            body += e[0:2] + [sm3p] + x[0] + e[2:5] + [q[0]] + e[5:13] + [sm[0]] + x[1] + e[13:18] + [sm[1]] + x[2] + e[18:21] + [q[1]] + x[3] + e[21:24] + [q[2]] + e[24:27] + [sm[2]] + x[4] + e[27:32]
        reach = max(int(x.split("offset:")[1]) + {V_AK: 1024, V_AR: 2048 + 256, V_AV: 2304 + VG}[int(x.split(", v")[1].split()[0])] for x in body if x.startswith("ds_read"))
        assert reach <= 4096 * o['kv1'] and L_KV + 4096 * o['kv1'] <= dslot(17)
        assert L_W8 + 18432 <= L_KV + (32 - UNP) * PB
        body += [f"v_add_u32 v{V_AK}, {UNP*PB}, v{V_AK}", f"v_add_u32 v{V_AR}, {UNP*PB}, v{V_AR}", f"v_add_u32 v{V_AV}, {UNP*PB}, v{V_AV}"]
        if o['sh']:
            mf = [i for i, x in enumerate(body) if 'smfmac' in x and not body[i + 1].startswith(('ds_', 's_'))]
            body.insert(mf[-1] + 1, f"s_cmp_lg_u32 s{S_CNT}, s{S_BAR}")
            body.insert(mf[-2] + 1, f"s_sub_u32 s{S_CNT}, s{S_CNT}, 1")
            a(".p2align 6", "L_main:", body, "s_cbranch_scc1 L_main", f"s_cmp_eq_u32 s{S_CNT}, 1", "s_cbranch_scc1 L_last", "s_barrier", f"s_mov_b32 s{S_BAR}, 1", "s_branch L_main", "L_last:")
        else:
            a(".p2align 6", "L_main:", body, f"s_sub_u32 s{S_CNT}, s{S_CNT}, 1", f"s_cmp_lg_u32 s{S_CNT}, s{S_BAR}", "s_cbranch_scc1 L_nob", "s_barrier", "L_nob:",
              f"s_cmp_lg_u32 s{S_CNT}, 1", "s_cbranch_scc1 L_main")
        a("s_barrier", f"ds_read_b32 v23, v{V_JN} offset:4", self.ldKr(1))
        DW = [192, 204]

        def publish(pr):
            x, y, d = OS[2*pr], OS[2*pr+1], DW[pr]
            vals = [x + j for j in range(9)] + [y + j for j in range(9)]
            c = [f"v_cvt_pk_bf16_f32 v{d+j}, v{vals[2*j]}, v{vals[2*j+1]}" for j in range(9)]
            a(f"v_rcp_f32 v6, v{x+9}", "s_nop 0", [f"v_mul_f32 v{r}, v{r}, v6" for r in vals[:9]], c[:3], f"v_rcp_f32 v7, v{y+9}", c[3])
            direct = pr == 1 or not o['hst']
            if direct:
                a("v_cmp_ne_u32 vcc, 0, v23", f"s_cbranch_vccnz L_pub1{pr}")
            for fl in (" sc0 sc1", "") if direct else (None,):
                st = lambda n, r, v, so, off: f"buffer_store_dword{n} {r}, v{v}, s[{R_WS}:{R_WS+3}], s{so} offen offset:{off}{fl}" if direct else []
                so = S_OA if pr else S_OW
                a(st('x4', vr(d, 4), V_OA, so, 0), [f"v_mul_f32 v{r}, v{r}, v7" for r in vals[9:]], c[4:8], st('x4', vr(d + 4, 4), V_OA, so, 256), c[8], st('', vr(d + 8), V_OB, S_OB, 1024 * pr))
                if fl:
                    a(f"s_branch L_pub2{pr}", f"L_pub1{pr}:")
            a(f"L_pub2{pr}:")
            if pr:
                a(self.peer_loads())
            else:
                a(f"v_add_u32 v201, {L_O}, v{V_OA}", f"v_add_u32 v202, {L_O + 65536}, v{V_OB}")
            a(f"ds_write_b128 v201, {vr(d, 4)} offset:{8192*pr}", f"ds_write_b128 v201, {vr(d + 4, 4)} offset:{8192*pr + 256}", f"ds_write_b32 v202, v{d + 8} offset:{1024*pr}")
        NV = 2 * UNP
        for j in range(2 * NV):
            pr, kb = j // NV, j % NV
            cur, nxt = S[j % 2], S[(j + 1) % 2]
            q = self.qk(nxt, (j + 1) % NV, (j + 1) // NV) if j + 1 < 2 * NV else [[], [], []]
            e = EX(cur, 32)
            sm3p = SM(OS[2*((j - 1) // NV % 2)+1], VV[(j - 1) % 2][1], nxt + 24)
            sm = [SM(OS[2*pr], VV[j % 2][0], cur), SM(OS[2*pr], VV[j % 2][1], cur + 8), SM(OS[2*pr+1], VV[j % 2][0], cur + 16)]
            v0, v1 = self.ldV((j + 1) % NV) if j + 1 < 2 * NV else ([], [])
            km = self.ldKm((j + 2) % NV) if j + 2 < 2 * NV else []
            kr = self.ldKr(((j + 3) // 2) % UNP) if j % 2 == 1 and j + 3 < 2 * NV else []
            a(e[0:2], sm3p, v0, e[2:5], q[0], e[5:13], sm[0], v1, e[13:18], sm[1], km, e[18:21], q[1], kr, e[21:24], q[2], e[24:27], sm[2], "s_waitcnt lgkmcnt(0)", e[27:32])
            if j == NV:
                publish(0)
            if j == o['nj']:
                a("s_barrier")
        a("s_nop 1", SM(O2[1], VV[1][1], S[1] + 24))
        self.stamp(7)
        a("s_setprio 3", "s_barrier")
        publish(1)
        self.tail_vaddr()
        a(f"v_add_u32 v21, {L_W8}, v1")
        self.stamp(1, 4)
        if o['own1']:
            a("s_waitcnt lgkmcnt(0)", "s_barrier")
        self.collect("e")
        q = []
        RO, RW, ACC = [56 + 8 * k for k in range(5)], [60 + 8 * k for k in range(5)], 100
        for n in range(18 + 4):
            if n >= 4:
                ks = n - 4
                last = max(i for i, t in enumerate(q) if t == ks)
                a(f"s_waitcnt lgkmcnt({min(len(q) - 1 - last, 14)})", M16(ACC, RW[ks % 5], RO[ks % 5], "0" if ks == 0 else None))
                del q[:last + 1]
            if n < 18:
                x = self.ofrag(RO[n % 5], 0, n) + [f"ds_read_b128 {vr(RW[n % 5], 4)}, v21 offset:{n*1024}"]
                a(x)
                q += [n] * len(x)
        a("s_nop 7", f"v_cvt_pk_bf16_f32 v6, v{ACC}, v{ACC+1}", f"v_cvt_pk_bf16_f32 v7, v{ACC+2}, v{ACC+3}",
          f"buffer_store_dwordx2 v[6:7], v23, s[{R_OUT}:{R_OUT+3}], s41 offen")
        self.finish()

    def peer_loads(self):
        return [f"buffer_load_dwordx4 {vr(24+4*k,4)}, v1, s[{R_WS}:{R_WS+3}], s{16+k} offen sc0 sc1" for k in range(7)]

    def ofrag(self, r, tp, ks):
        if ks < 16:
            return [f"ds_read_b128 {vr(r,4)}, v{8+tp} offset:{ks*4096}"]
        if ks == 16:
            return [f"ds_read2_b32 {vr(r,2)}, v{52+tp} offset0:0 offset1:16", f"ds_read2_b32 {vr(r+2,2)}, v{52+tp} offset0:32 offset1:48"]
        return [f"ds_read2_b32 {vr(r,2)}, v{16+tp} offset0:0 offset1:16", f"ds_read2_b32 {vr(r+2,2)}, v{16+tp} offset0:32 offset1:48"]

    def tail_vaddr(self):
        self.a(f"s_lshl_b32 s{S_T0}, s{S_I}, 10", f"s_add_u32 s{S_T0}, s{S_T0}, {L_O}", f"v_add_u32 v8, s{S_T0}, v1", "v_xor_b32 v9, 0x400, v8", "v_xor_b32 v10, 0x800, v8", "v_xor_b32 v11, 0xc00, v8",
               "v_lshrrev_b32 v6, 4, v0", "v_and_b32 v7, 15, v0", "v_mul_u32_u24 v22, 0x900, v7", "v_lshl_add_u32 v23, v6, 3, v22", "v_lshl_add_u32 v22, v6, 4, v22",
               "v_lshlrev_b32 v6, 11, v6", "v_lshl_add_u32 v6, v7, 2, v6", f"s_lshl_b32 s{S_T0}, s{S_I}, 8", f"s_add_u32 s{S_T0}, s{S_T0}, {L_O + 65536}",
               f"v_add_u32 v52, s{S_T0}, v6", "v_xor_b32 v53, 0x100, v52", "v_xor_b32 v54, 0x200, v52", "v_xor_b32 v55, 0x300, v52",
               [f"v_add_u32 v{16+k}, 0x400, v{52+k}" for k in range(4)])

    def collect(self, tag):
        a, PB_ = self.a, 24
        a(f"s_mov_b32 s{S_CNT}, {SPIN}", f"L_cl{tag}:", "s_waitcnt vmcnt(0)")
        self.stamp(3, 4)
        a(f"v_max3_u32 v6, v{PB_}, v{PB_+1}, v{PB_+2}", f"v_max3_u32 v7, v{PB_+3}, v{PB_+4}, v{PB_+5}")
        for j in range(6, 28, 4):
            a(f"v_max3_u32 v6, v6, v{PB_+j}, v{PB_+j+1}")
            if j + 3 < 28:
                a(f"v_max3_u32 v7, v7, v{PB_+j+2}, v{PB_+j+3}")
        a("v_max_u32 v7, v7, v6", "v_cmp_eq_u32 vcc, -1, v7", f"s_cbranch_vccz L_cld{tag}", f"s_sub_u32 s{S_CNT}, s{S_CNT}, 1", f"s_cbranch_scc1 L_cld{tag}", self.peer_loads(), f"s_branch L_cl{tag}", f"L_cld{tag}:")
        self.stamp(2, 4)
        for k in range(7):
            a(f"v_add_u32 v{6+(k&1)}, s{30+k}, v1", f"ds_write_b128 v{6+(k&1)}, {vr(PB_+4*k,4)}")
        a("s_waitcnt lgkmcnt(0)", "s_barrier")
        self.stamp(4, 4)
        self.stamp(4, 0)

    def tail_late(self):
        a, o = self.a, self.o
        WF, ACC = 112, 80
        RING = [56 + 4 * i for i in range(6)]
        if o['hst']:
            a(f"s_lshl_b32 s{S_T0}, s{S_I}, 11", f"s_add_u32 s{S_T1}, s{S_T0}, s{S_OW}", f"s_add_u32 s{S_T0}, s{S_T0}, {L_O}", f"v_add_u32 v56, s{S_T0}, v1",
              f"v_lshlrev_b32 v57, 2, v0", f"s_lshl_b32 s{S_T0}, s{S_I}, 8", f"s_add_u32 s{S_T2}, s{S_T0}, s{S_OB}", f"s_add_u32 s{S_T0}, s{S_T0}, {L_O + 65536}", f"v_add_u32 v58, s{S_T0}, v57",
              f"s_cmp_eq_u32 s{S_SAME}, 1")
        a("s_setprio 2", "s_barrier")
        if o['hst']:
            a("ds_read_b128 v[60:63], v56", "ds_read_b128 v[64:67], v56 offset:1024", "ds_read_b32 v68, v58", "s_cbranch_scc1 L_hs1")
            for fl in (" sc0 sc1", ""):
                a("s_waitcnt lgkmcnt(0)", f"buffer_store_dwordx4 v[60:63], v1, s[{R_WS}:{R_WS+3}], s{S_T1} offen{fl}", f"buffer_store_dwordx4 v[64:67], v1, s[{R_WS}:{R_WS+3}], s{S_T1} offen offset:1024{fl}",
                  f"buffer_store_dword v68, v57, s[{R_WS}:{R_WS+3}], s{S_T2} offen{fl}")
                if fl:
                    a("s_branch L_hs2", "L_hs1:")
            a("L_hs2:")
        a(self.peer_loads())
        self.collect("l")
        a("s_setprio 1")
        self.stamp(7)
        q = []

        def run(seq, n0, after):
            PF = 5

            def issue(j):
                x = self.ofrag(RING[(n0 + j) % 6], *seq[j])
                a(x)
                q.extend([n0 + j] * len(x))
            for j in range(PF):
                issue(j)
            for j, (tp, ks) in enumerate(seq):
                last = max(i for i, t in enumerate(q) if t == n0 + j)
                a(f"s_waitcnt lgkmcnt({min(len(q) - 1 - last, 14)})")
                del q[:last + 1]
                c = "0" if ks == 0 else None
                r = RING[(n0 + j) % 6]
                a(M16(ACC + 4 * tp, WF + 4 * ks, r, c), M16(ACC + 16 + 4 * tp, WF + 72 + 4 * ks, r, c))
                if j + PF < len(seq):
                    issue(j + PF)
                a(after.get(j, []))

        def outp(tp):
            r = 24 + 4 * tp
            return [f"v_cvt_pk_bf16_f32 v{r+k}, v{ACC+16*(k>>1)+4*tp+2*(k&1)}, v{ACC+16*(k>>1)+4*tp+2*(k&1)+1}" for k in range(4)] + \
                   [f"buffer_store_dwordx4 {vr(r,4)}, v22, s[{R_OUT}:{R_OUT+3}], s{37+tp} offen"]
        k0 = [0, 1, 4, 5, 8, 9, 12, 13, 16]
        k1 = [6, 7, 10, 11, 14, 15, 17]
        run([(tp, ks) for ks in k0 for tp in range(4)], 0, {})
        if o['own1']:
            a("s_barrier")
            run([(tp, ks) for ks in (2, 3) for tp in range(4)], 36, {})
        else:
            k1 = [2, 3] + k1
        a("s_setprio 3", "s_barrier")
        self.stamp(6, 4)
        n1 = len(k1)
        run([(tp, ks) for tp in range(4) for ks in k1], 44, {n1 * i + 2: outp(i - 1) for i in (1, 2, 3)})
        a("s_nop 6", outp(3), "s_branch L_fin")

    def tail_scalars(self):
        a, o = self.a, self.o
        a(f"s_mul_i32 s{S_OEXB}, s{S_PG}, {OEX_G}", f"s_add_u32 s{S_OEXB}, s{S_OEXB}, {WS_OEX}", f"s_mul_i32 s{S_OW}, s{S_HG}, {OEX_W}", f"s_add_u32 s{S_OW}, s{S_OW}, s{S_OEXB}",
          f"s_add_u32 s{S_OA}, s{S_OW}, 8192", f"s_add_u32 s{S_OB}, s{S_OW}, 16384",
          f"s_lshl_b32 s23, s{S_STG}, 13", f"s_lshl_b32 s24, s{S_STG}, 10")
        for k in range(7):
            a(f"s_add_u32 s{S_T0}, s{S_I}, {4*k}")
            if k == 6:
                a(f"s_min_u32 s{S_T0}, s{S_T0}, 26")
            a(f"s_mul_i32 s{S_T1}, s{S_T0}, 7282", f"s_lshr_b32 s{S_T1}, s{S_T1}, 16", f"s_mul_i32 s{S_T2}, s{S_T1}, 9", f"s_sub_u32 s{S_T2}, s{S_T0}, s{S_T2}",
              f"s_add_u32 s{S_T1}, s{S_T1}, 1",
              f"s_lshl_b32 s{S_T0}, s{S_T2}, 10", f"s_add_u32 s{S_T0}, s{S_T0}, s23", f"s_add_u32 s{S_T3}, s24, 16384",
              f"s_lshl_b32 s{30+k}, s{S_T1}, 14", f"s_add_u32 s{30+k}, s{30+k}, s{S_T0}", f"s_lshl_b32 s{16+k}, s{S_T1}, 11", f"s_add_u32 s{16+k}, s{16+k}, s24", f"s_add_u32 s{16+k}, s{16+k}, 65536",
              f"s_cmp_eq_u32 s{S_T2}, 8", f"s_cselect_b32 s{S_T0}, s{S_T3}, s{S_T0}", f"s_cselect_b32 s{30+k}, s{16+k}, s{30+k}", f"s_add_u32 s{30+k}, s{30+k}, {L_O}",
              f"s_add_u32 s{S_T1}, s{S_T1}, s{S_HG}", f"s_and_b32 s{S_T1}, s{S_T1}, 3", f"s_mul_i32 s{S_T1}, s{S_T1}, {OEX_W}", f"s_add_u32 s{S_T0}, s{S_T0}, s{S_T1}", f"s_add_u32 s{16+k}, s{S_T0}, s{S_OEXB}")
        a(f"s_mul_i32 s{S_T0}, s{S_PG}, {64*2304}", f"s_mul_i32 s{S_T1}, s{S_B}, 1152", f"s_add_u32 s{S_T0}, s{S_T0}, s{S_T1}", f"s_mul_i32 s{S_T1}, s{S_HG}, 288",
          f"s_add_u32 s{S_T0}, s{S_T0}, s{S_T1}", f"s_lshl_b32 s{S_T1}, s{S_I}, 6", f"s_add_u32 s{S_T1}, s{S_T1}, s{S_T0}")
        for tp in range(4):
            a(f"s_xor_b32 s{S_T2}, s{S_I}, {tp}", f"s_mul_i32 s{S_T2}, s{S_T2}, {16*2304}", f"s_add_u32 s{37+tp}, s{S_T2}, s{S_T1}")
            if tp == 0:
                a(f"s_add_u32 s41, s{S_T2}, s{S_T0}", "s_add_u32 s41, s41, 256")

    def fallback(self):
        a, o = self.a, self.o
        a.label("L_fallback")
        a("s_barrier", f"s_mov_b32 s{S_BAR}, {1 if o['sh'] else -1}")
        a(f"v_mov_b32 v{QR+1}, 0", f"v_mov_b32 v{QR2+1}, 0", f"v_mov_b32 v192, v{V_AK}", f"v_mov_b32 v193, v{V_AR}", [f"v_mov_b32 v{194+k}, 0xff800000" for k in range(4)],
          "v_mov_b32 v199, 0x3f803f80", f"s_mov_b32 s{S_CNT}, 32", "L_fbl:",
          "ds_read_b32 v198, v193", "ds_read_b128 v[200:203], v192", "ds_read_b128 v[204:207], v192 offset:1024",
          f"v_add_u32 v192, {PB}, v192", f"v_add_u32 v193, {PB}, v193", "s_waitcnt lgkmcnt(0)")
        for h in range(2):
            for pr in range(2):
                a(B2(208, 198, QRS[pr], h), "s_nop 15", "s_nop 1", K16(208, 200 + 4 * h, QMS[2*pr]), K16(224, 200 + 4 * h, QMS[2*pr+1]), "s_nop 11")
                for j in range(8):
                    a(f"v_max3_f32 v{194+2*pr}, v{194+2*pr}, v{208+2*j}, v{209+2*j}", f"v_max3_f32 v{195+2*pr}, v{195+2*pr}, v{224+2*j}, v{225+2*j}")
        a(f"s_sub_u32 s{S_CNT}, s{S_CNT}, 1", f"s_cmp_lg_u32 s{S_CNT}, 0", "s_cbranch_scc1 L_fbl")
        for pr in range(2):
            x, y = 194 + 2 * pr, 195 + 2 * pr
            a("s_nop 0", f"v_permlane32_swap_b32 v{x}, v{y}", "s_nop 1", f"v_max_f32 v{x}, v{x}, v{y}", f"v_sub_f32 v{x}, 0, v{x}",
              f"v_cvt_pk_bf16_f32 v{y}, v{x}, 0", f"v_lshlrev_b32 v{y}, 16, v{y}", f"v_sub_f32 v{y}, v{x}, v{y}", f"v_cvt_pk_bf16_f32 v{QRS[pr]+1}, v{x}, v{y}")
        a("s_branch L_fbdone")

    def finish(self):
        a, o = self.a, self.o
        a("L_fin:")
        if o['stamps'] or o['dbgspan'] or o['ampk']:
            a("s_waitcnt vmcnt(0)")
            self.stamp(5, o['set'] if o['set'] in (1, 4) else 0)
        if o['ampk']:
            a(f"s_cmp_eq_u32 s{S_STG}, {1 - o['amps']}", "s_cbranch_scc1 L_end", "s_waitcnt lgkmcnt(0)", f"s_sub_u32 s{S_T0}, s{S_ST+2*o['ampb']}, s{S_ST+2*o['ampa']}")
            if o['avg']:
                a(f"s_cmp_lg_u32 s{S_I}, 0", "s_cbranch_scc1 L_end", "s_mov_b64 exec, 1", "v_mov_b32 v8, 0", f"v_mov_b32 v9, s{S_T0}", "v_mov_b32 v10, 1",
                  f"buffer_atomic_add v9, v8, s[{R_DBG}:{R_DBG+3}], 0 offen offset:16 sc1", "s_waitcnt vmcnt(0)",
                  f"buffer_atomic_add v10, v8, s[{R_DBG}:{R_DBG+3}], 0 offen offset:144 sc0 sc1", "s_waitcnt vmcnt(0)", "v_cmp_eq_u32 vcc, 0xff, v10", "s_cbranch_vccz L_end",
                  f"buffer_load_dword v9, v8, s[{R_DBG}:{R_DBG+3}], 0 offen offset:16 sc0 sc1", "s_waitcnt vmcnt(0)", f"v_readfirstlane_b32 s{S_T0}, v9", "s_nop 3", f"s_mul_i32 s{S_T0}, s{S_T0}, {max(o['ampk'], 1)}", f"s_lshr_b32 s{S_T0}, s{S_T0}, {8 - min(o['ampk'], 0)}")
            else:
                a(f"s_mul_i32 s{S_T0}, s{S_T0}, {o['ampk']}" if o['ampk'] > 0 else f"s_lshr_b32 s{S_T0}, s{S_T0}, {-o['ampk']}")
            a("s_memrealtime s[18:19]", f"s_min_u32 s{S_T0}, s{S_T0}, 100000",
              "L_amp:", "s_memrealtime s[16:17]", "s_waitcnt lgkmcnt(0)", "s_sub_u32 s16, s16, s18", f"s_cmp_lt_u32 s16, s{S_T0}", "s_cbranch_scc1 L_amp")
        self.dump_stamps()
        a("L_end:", "s_endpgm")

    def build(self):
        self.start()
        self.early_front()
        self.attention()
        self.late_front()
        self.fallback()
        hdr = (open('concat_heads__grouped_kv_mqa__grouped_kv_mqa__prompt.s.ref').read().split("; Override launch geometry")[0] +
               f"; @launch grid=(256,1,1) block=(512,1,1) lds={LDS_BYTES}\n" + DOC +
               '.amdgcn_target "amdgcn-amd-amdhsa--gfx950"\n.text\n'
               f".globl {NAME}\n.p2align 8\n.type {NAME},@function\n{NAME}:\n")
        if self.o['of'] & 1:
            self.a.L = [x.replace(" sc0 sc1", " sc1") if "buffer_store" in x and f"s[{R_WS}:" in x else x for x in self.a.L]
        if self.o['of'] & 2:
            self.a.L = [x.replace(" sc0 sc1", " sc1") if "buffer_load" in x and f"s[{R_WS}:" in x else x for x in self.a.L]
        body = "".join((x + "\n") if x.endswith(":") or x.startswith(";") else ("    " + x + "\n") for x in self.a.L)
        t = table()
        tab = ".p2align 6\n.type L_table,@object\nL_table:\n" + "".join("    .long " + ", ".join(str(int(v)) for v in row) + "\n" for row in t)
        tab += f".fill (1024 - ((. - {NAME}) & 1023)) & 1023, 1, 0\nL_codeend:\n.size L_table, L_codeend-L_table\n"
        kd = f""".section .rodata,"a"
.p2align 6
.amdhsa_kernel {NAME}
  .amdhsa_next_free_vgpr 256
  .amdhsa_next_free_sgpr 102
  .amdhsa_accum_offset 256
  .amdhsa_group_segment_fixed_size 0
  .amdhsa_kernarg_size 104
  .amdhsa_user_sgpr_count 2
  .amdhsa_user_sgpr_kernarg_segment_ptr 1
  .amdhsa_system_sgpr_workgroup_id_x 1
.end_amdhsa_kernel
"""
        return hdr + body + tab + kd


if __name__ == "__main__":
    out = sys.argv[1]
    opt = {}
    for kv in sys.argv[2:]:
        k, v = kv.split("=")
        opt[k] = int(v)
    g = Gen(opt)
    open(out, "w").write(g.build())
```

```python
import sys, math, struct
import numpy as np

NAME = "concat_heads__grouped_kv_mqa__grouped_kv_mqa__prompt_kernel"

VG = 608
PB = 2048 + 256 + 4 * VG
KVB = 32 * PB
L_KV = 12288
L_HAND = 0
L_KMAX = 10240
L_FLAG = 10256
L_T2X = 81920
L_O = 12288
L_W8 = L_O + 73728
L_W = 62464
L_X = 90112
SLOT = 4608
LDS_BYTES = 163840
WS_KV = 0
WS_KN = KVB
WS_XID = WS_KN + 1024
WS_CNT = 0x26000
WS_WOT = 0x28000
WS_OEX = 0xD0000
WS_BR = 0x400000
WS_STAMP = 0x1000000
OEX_G = 73728
OEX_W = 18432
CSCALE = math.log2(math.e) / math.sqrt(18.0)
TSAFE = 40.0
SPIN = 500000
SPIN_L = 16 * SPIN


def f2u(x):
    return struct.unpack("<I", struct.pack("<f", x))[0]


def dslot(d):
    if d < 6:
        return d * 2 * SLOT
    if d < 17:
        return L_W + (d - 6) * 2 * SLOT
    return 5 * 2 * SLOT


def slot_addr(ks):
    return dslot(ks >> 1) + (ks & 1) * SLOT


G0 = [0, 1, 2, 3, 12, 13, 14, 15, 20]
G1 = [4, 5, 6, 7, 8, 9, 10, 11, 16]
POS_ONES, POS_ZERO = 22, 23


def vpos(h, row):
    if row in G0:
        return [list(range(0, 9)), [18, 19, 20, 21, 24, 25, 26, 27, 28]][h][G0.index(row)]
    if row in G1:
        return [list(range(9, 18)), list(range(29, 38))][h][G1.index(row)]
    if row in (17, 21):
        return POS_ONES
    return POS_ZERO


def table():
    t = np.zeros((64, 4), dtype=np.uint32)
    for l in range(64):
        t[l, 0] = L_KV + 2304 + vpos(l >> 5, l & 31) * 16
        n, g = l & 15, l >> 4
        t[l, 1] = vpos(g >> 1, n) * 16 + (g & 1) * 8
        p = {0: vpos(g >> 1, 16), 1: vpos(g >> 1, 20), 2: POS_ONES, 3: POS_ZERO}.get(n, POS_ZERO)
        t[l, 2] = p * 16 + (g & 1) * 8
    return t


def vr(a, n=1):
    return f"v[{a}:{a+n-1}]" if n > 1 else f"v{a}"


def sr(a, n=1):
    return f"s[{a}:{a+n-1}]" if n > 1 else f"s{a}"


S_WAVE = 3
R_X, R_WQ, R_W, R_WO, R_WS, R_OUT, R_DBG = 44, 48, 52, 56, 60, 64, 68
S_B, S_HG, S_GI, S_PG, S_I = 4, 5, 6, 7, 8
S_T0, S_T1, S_T2, S_T3, S_T4, S_T5 = 9, 10, 11, 12, 13, 14
S_CNT = 15
S_M0A, S_M0R, S_ROW = 72, 73, 74
S_BAR = 75
S_PBI, S_HQ = 76, 77
S_EX = 42
S_KVS = 80
S_OEX = 81
S_STG = 82
S_OEXB = 78
S_SAME, S_OA, S_OB, S_OW = 26, 27, 28, 25
V_OA, V_OB, V_JN = 144, 145, 146
S_VM = 0
S_XI, S_XB, S_XS, S_XM = 83, 100, 101, 79
S_DI, S_DS, S_LI, S_LS = 72, 73, 74, 75
S_ST = 84

V_IDX, V_AK, V_AR, V_AV = 2, 3, 4, 5
QM = [8, 12]
QR = 16
KR = [18, 20]
O = [24, 40]
KM = [56, 60]
VV = [[64, 68], [72, 76]]
S = [80, 112]
QM2 = [148, 152]
QR2 = 156
O2 = [160, 176]
QMS, QRS, OS = QM + QM2, [QR, QR2], O + O2


DOC = """;
"""


class A:
    def __init__(self):
        self.L = []

    def __call__(self, *xs):
        for x in xs:
            if isinstance(x, (list, tuple)):
                self(*x)
            else:
                self.L.append(x)

    def label(self, n):
        self.L.append(n + ":")


def K16(d, a, b, c=None):
    return f"v_mfma_f32_32x32x16_bf16 {vr(d,16)}, {vr(a,4)}, {vr(b,4)}, {c if c else vr(d,16)}"


def M16(d, a, b, c=None):
    return f"v_mfma_f32_16x16x32_bf16 {vr(d,4)}, {vr(a,4)}, {vr(b,4)}, {c if c else vr(d,4)}"


def B2(d, a, b, abid):
    return f"v_mfma_f32_32x32x4_2b_bf16 {vr(d,32)}, {vr(a,2)}, {vr(b,2)}, 0 cbsz:1 abid:{abid}"


def K8Z(d, z):
    return f"v_mfma_f32_32x32x8_bf16 {vr(d,16)}, {vr(z,2)}, {vr(z,2)}, 0"


def SM(d, a, b):
    return f"v_smfmac_f32_32x32x32_bf16 {vr(d,16)}, {vr(a,4)}, {vr(b,8)}, v{V_IDX}"


def EX(r, n):
    return [f"v_exp_f32 v{r+i}, v{r+i}" for i in range(n)]


def srd(a, dst, lo, hi, size):
    a(f"s_mov_b32 s{dst}, {lo}", f"s_mov_b32 s{dst+1}, {hi}", f"s_mov_b32 s{dst+2}, {size}", f"s_mov_b32 s{dst+3}, 0x20000")


class Gen:
    def __init__(self, opt):
        self.o = dict(unp=4, barit=1, stamps=False, force_fb=False, prefetch=True, prio=True, dbgspan=0, hp=0, sg=6, tz=0, m16=1, xb=2, h8=1, u7=0, tw=0, to=0, hst=1, sh=1, nj=9, own1=0, sp=1, l01=0, sched=1, dbl=0, xe1=0, x1l=0, pw=0, ks2=0, binv=0, z2=1, vexec=0, ga=1, tp=1, x2j=31, amps=0, p1=2, p2=5, p3=7, lo0=0, lo1=0, ka=4, lnorm=1, xper=3, dly=0, d0l=1, pre=3, xe=0, sigb2=1, tre=1, badv0=0, shard=1, nslow=64, spf=0, avg=0, xcc=1, xp=0, outf=0, of=0, ampa=0, ampb=0, ampk=0, set=0, nb=5, kv1=6, pd=2, win=4, t1=7, t2=9, sb=18)
        self.o.update(opt)
        self.a = A()
        self.nst = 0

    def stamp(self, i, st=0):
        if i not in (0, 7) and st != self.o['set']:
            return
        if self.o['stamps'] or self.o['dbgspan'] or self.o['ampk']:
            cyc = self.o['stamps'] == 2 or self.o['ampk'] < 0
            self.a(f"{'s_memtime' if cyc else 's_memrealtime'} s[{S_ST+2*i}:{S_ST+2*i+1}]")

    def dump_stamps(self):
        if self.o['dbgspan']:
            a = self.a
            n = self.nst = self.nst + 1
            a("s_waitcnt lgkmcnt(0)", f"s_cmp_lg_u32 s{S_I}, 0", f"s_cbranch_scc1 L_nodump{n}", "s_mov_b64 exec, 1", "v_mov_b32 v8, 0", f"s_not_b32 s{S_T0}, s{S_ST}", f"v_mov_b32 v9, s{S_T0}",
              f"buffer_atomic_umax v9, v8, s[{R_DBG}:{R_DBG+3}], 0 offen offset:8 sc1")
            for k, i in enumerate((0, 1, 3, 6, 7, 5) if n == 2 else (1, 2, 4, 5, 6, 7)):
                a(f"v_mov_b32 v{10+k}, s{S_ST+2*i}", f"buffer_atomic_umax v{10+k}, v8, s[{R_DBG}:{R_DBG+3}], 0 offen offset:{(12 if n == 2 else 36)+4*k} sc1")
            a(f"L_nodump{n}:")
            return
        if not self.o['stamps']:
            return
        a = self.a
        a("s_waitcnt lgkmcnt(0)", f"s_lshl_b32 s{S_T0}, s2, 3", f"s_add_u32 s{S_T0}, s{S_T0}, s{S_WAVE}", f"s_lshl_b32 s{S_T0}, s{S_T0}, 6",
          f"s_mul_i32 s{S_T1}, s{S_B}, {WS_BR}", f"s_sub_u32 s{S_T0}, s{S_T0}, s{S_T1}", f"s_add_u32 s{S_T0}, s{S_T0}, {WS_STAMP}",
          f"s_mov_b32 s{R_WS+2}, 0x2000000", "v_mov_b32 v8, 0")
        for i in range(4):
            for k in range(4):
                a(f"v_mov_b32 v{12+k}, s{S_ST+4*i+k}")
            a(f"buffer_store_dwordx4 v[12:15], v8, s[{R_WS}:{R_WS+3}], s{S_T0} offen offset:{16*i}", "s_nop 1")

    def kv_dma(self, p0, n):
        a = self.a
        for k in range(n):
            a(f"s_add_u32 m0, s{S_M0A}, {L_KV + (p0 + 4*k)*1024}", f"s_add_u32 s{S_T0}, s{S_KVS}, 4096",
              f"buffer_load_dwordx4 v1, s[{R_WS}:{R_WS+3}], s{S_KVS} offen sc1 lds",
              f"s_cmp_ge_u32 s{S_T0}, {KVB}", f"s_cselect_b32 s{S_T1}, {KVB}, 0", f"s_sub_u32 s{S_KVS}, s{S_T0}, s{S_T1}")

    def row_max16(self, v):
        a = self.a
        for k in (8, 4, 2, 1):
            a("s_nop 1", f"v_max_f32_dpp v{v}, v{v}, v{v} row_ror:{k} row_mask:0xf bank_mask:0xf")

    def rest_srds(self):
        a = self.a
        a(f"s_mov_b32 s{R_WO+2}, 663552", f"s_mov_b32 s{R_WO+3}, 0x20000",
          f"s_mul_i32 s{S_T0}, s{S_B}, {WS_BR}", f"s_add_u32 s{R_WS}, s40, s{S_T0}", f"s_addc_u32 s{R_WS+1}, s41, 0",
          f"s_mov_b32 s{R_WS+2}, {WS_OEX + 32*OEX_G}", f"s_mov_b32 s{R_WS+3}, 0x20000")
        srd(a, R_OUT, "s36", "s37", 4718592)
        srd(a, R_DBG, "s38", "s39", 256)

    def norm2(self, x, y):
        a = self.a
        for j in range(4):
            for (qm, qr, dst, tmp) in (x, y):
                a(f"v_dot2_f32_bf16 v{dst}, v{qm+j}, v{qm+j}, {'0' if j == 0 else 'v%d' % dst}",
                  f"v_dot2_f32_bf16 v{tmp}, v{qm+4+j}, v{qm+4+j}, {'0' if j == 0 else 'v%d' % tmp}")
        a("s_nop 0", f"v_permlane32_swap_b32 v{x[2]}, v{x[3]}", "s_nop 0", f"v_permlane32_swap_b32 v{y[2]}, v{y[3]}",
          f"v_add_f32 v{x[2]}, v{x[2]}, v{x[3]}", f"v_add_f32 v{y[2]}, v{y[2]}, v{y[3]}",
          f"v_dot2_f32_bf16 v{x[2]}, v{x[1]}, v{x[1]}, v{x[2]}", f"v_dot2_f32_bf16 v{y[2]}, v{y[1]}, v{y[1]}, v{y[2]}", "s_nop 1",
          f"v_sqrt_f32 v{x[2]}, v{x[2]}", f"v_sqrt_f32 v{y[2]}, v{y[2]}")

    def norm1(self, qm, qr, dst, tmp):
        a = self.a
        for j in range(4):
            a(f"v_dot2_f32_bf16 v{dst}, v{qm+j}, v{qm+j}, {'0' if j == 0 else 'v%d' % dst}",
              f"v_dot2_f32_bf16 v{tmp}, v{qm+4+j}, v{qm+4+j}, {'0' if j == 0 else 'v%d' % tmp}")
        a("s_nop 2", f"v_permlane32_swap_b32 v{dst}, v{tmp}", "s_nop 0", f"v_add_f32 v{dst}, v{dst}, v{tmp}",
          f"v_dot2_f32_bf16 v{dst}, v{qr}, v{qr}, v{dst}", "s_nop 2", f"v_sqrt_f32 v{dst}, v{dst}")

    def init_main_regs(self):
        a = self.a
        a(f"v_mov_b32 v{KR[0]+1}, 0x3f803f80", f"v_mov_b32 v{KR[1]+1}, 0x3f803f80")
        for r in range(O[0], O[0] + 32):
            a(f"v_mov_b32 v{r}, 0")
        for r in range(S[1] + 24, S[1] + 32):
            a(f"v_mov_b32 v{r}, 0")
        if self.o['vexec']:
            self.init_v()
            self.loader_flag()
        else:
            a([f"v_mov_b32 v{r}, 0" for r in range(VV[1][1], VV[1][1] + 4)])

    def ldKm(self, kb):
        return [f"ds_read_b128 {vr(KM[kb%2],4)}, v{V_AK} offset:{(kb//2)*PB+(kb%2)*1024}"]

    def ldKr(self, p):
        return [f"ds_read_b32 v{KR[p%2]}, v{V_AR} offset:{p*PB}"]

    def ldV(self, kb):
        x = [f"ds_read_b128 {vr(VV[kb%2][i],4)}, v{V_AV} offset:{(kb//2)*PB+((kb%2)*2+i)*VG}" for i in range(2)]
        if self.o['vexec']:
            x = [f"s_mov_b64 exec, s[{S_VM}:{S_VM+1}]"] + x + ["s_mov_b64 exec, -1"]
        return x

    def init_v(self):
        a = self.a
        m = sum(1 << r for r in G0 + G1)
        a(f"s_mov_b32 s{S_VM}, {hex(m)}", f"s_mov_b32 s{S_VM+1}, {hex(m)}", "s_mov_b32 vcc_lo, 0x220000", "s_mov_b32 vcc_hi, 0x220000",
          f"v_mov_b32 v{VV[0][0]}, 0x3f803f80", f"v_cndmask_b32 v{VV[0][0]}, 0, v{VV[0][0]}, vcc")
        a([f"v_mov_b32 v{VV[0][0]+k}, v{VV[0][0]}" for k in range(1, 16)])

    def qk(self, dst, kb, pr):
        return [B2(dst, KR[(kb//2) % 2], QRS[pr], kb % 2), K16(dst, KM[kb % 2], QMS[2*pr]), K16(dst + 16, KM[kb % 2], QMS[2*pr+1])]

    def main_prologue_loads(self):
        self.a(self.ldKr(0), self.ldKm(0), self.ldKm(1), self.ldV(0))

    def start(self):
        a, o = self.a, self.o
        a("s_cmp_ge_u32 s2, 256", "s_cbranch_scc1 L_end")
        a("s_load_dwordx16 s[16:31], s[0:1], 0", "s_load_dwordx8 s[32:39], s[0:1], 64", "s_load_dwordx2 s[40:41], s[0:1], 96")
        self.stamp(0)
        a("s_getpc_b64 s[42:43]", "L_pc:")
        a("v_lshrrev_b32 v1, 6, v0", "v_and_b32 v0, 63, v0", f"v_readfirstlane_b32 s{S_WAVE}, v1", "v_lshlrev_b32 v1, 4, v0",
          f"s_lshr_b32 s{S_T2}, s2, 3", f"s_and_b32 s{S_B}, s2, 1", f"s_and_b32 s{S_HG}, s{S_T2}, 3", f"s_lshr_b32 s{S_GI}, s2, 5")
        if o['binv']:
            a(f"s_xor_b32 s{S_B}, s{S_B}, 1")
        if o['prefetch']:
            a(f"s_cmp_lg_u32 s{S_WAVE}, 7", "s_cbranch_scc1 L_nopf", f"s_cmp_ge_u32 s{S_T2}, (L_codeend-{NAME})/1024", "s_cbranch_scc1 L_nopf",
              f"s_lshl_b32 s{S_T2}, s{S_T2}, 10", f"s_sub_u32 s{S_T0}, s42, L_pc-{NAME}", f"s_subb_u32 s{S_T1}, s43, 0",
              f"s_add_u32 s{S_T0}, s{S_T0}, s{S_T2}", f"s_addc_u32 s{S_T1}, s{S_T1}, 0",
              f"v_mov_b32 v7, s{S_T1}", f"v_add_co_u32 v6, vcc, s{S_T0}, v1", "s_nop 1", "v_addc_co_u32 v7, vcc, 0, v7, vcc", "s_nop 0",
              "global_load_dwordx4 v[24:27], v[6:7], off", "L_nopf:")
        a(f"s_bfe_u32 s{S_PG}, s2, 0x20001", f"s_lshl_b32 s{S_PG}, s{S_PG}, 3", f"s_add_u32 s{S_PG}, s{S_PG}, s{S_GI}",
          f"s_and_b32 s{S_I}, s{S_WAVE}, 3", f"s_and_b32 s{S_PBI}, s{S_WAVE}, 1", f"s_lshr_b32 s{S_HQ}, s{S_I}, 1")
        a("v_lshrrev_b32 v8, 3, v0", "v_lshrrev_b32 v9, 4, v0", f"s_lshl_b32 s{S_T0}, s{S_PBI}, 2", f"v_or_b32 v9, s{S_T0}, v9",
          "v_and_b32 v10, 7, v0", "v_xor_b32 v9, v9, v10", "v_lshlrev_b32 v9, 4, v9", "v_mov_b32 v10, 0x480", "v_mad_u32_u24 v8, v8, v10, v9",
          f"s_lshl_b32 s{S_T0}, s{S_I}, 6", f"v_add_u32 v9, s{S_T0}, v0", "v_mul_u32_u24 v10, 0xab, v9", "v_lshrrev_b32 v10, 9, v10", "v_mul_u32_u24 v10, 12, v10",
          "v_lshlrev_b32 v9, 4, v9", "v_sub_u32 v9, v9, v10")
        a(f"s_and_b32 s{S_T4}, s{S_HG}, 2", f"s_lshl_b32 s{S_T4}, s{S_T4}, 1", f"s_add_u32 s{S_T4}, s{S_T4}, s{S_I}",
          f"s_lshl_b32 s{S_T5}, s{S_PG}, 3", f"s_add_u32 s{S_XB}, s{S_T5}, s{S_T4}", f"s_mul_i32 s{S_XB}, s{S_XB}, {8*1152}",
          f"s_mul_i32 s{S_XM}, s{S_T4}, 9216", f"s_add_u32 s{S_XM}, s{S_XM}, {L_X}", f"s_lshl_b32 s{S_T0}, s{S_I}, 10", f"s_add_u32 s{S_T0}, s{S_T0}, {L_W}",
          f"s_lshr_b32 s{S_T1}, s{S_HG}, 1", f"s_movk_i32 s{S_DI}, 3072", f"s_movk_i32 s{S_DS}, 2304",
          f"s_cmp_lt_u32 s{S_WAVE}, 4", "s_cselect_b64 vcc, -1, 0", f"s_cselect_b32 s{S_XB}, s{S_XB}, 0", f"s_cselect_b32 s{S_XM}, s{S_XM}, s{S_T0}",
          f"s_cselect_b32 s{S_T1}, s{S_HG}, s{S_T1}", f"s_cselect_b32 s{S_DI}, 1024, s{S_DI}", f"s_cselect_b32 s{S_DS}, 128, s{S_DS}",
          "v_cndmask_b32 v9, v9, v8, vcc")
        self.dma9_setup(S_T1)
        a("s_waitcnt lgkmcnt(0)", f"s_cmp_eq_u32 s{S_B}, 0", f"s_cselect_b64 s[{R_X}:{R_X+1}], s[16:17], s[26:27]",
          f"s_cselect_b64 s[20:21], s[20:21], s[30:31]", f"s_cselect_b64 s[22:23], s[22:23], s[32:33]",
          f"s_cselect_b64 s[{R_WQ}:{R_WQ+1}], s[18:19], s[28:29]", f"s_cselect_b64 s[{R_WO}:{R_WO+1}], s[24:25], s[34:35]",
          f"s_bitcmp0_b32 s{S_HG}, 0", f"s_cselect_b64 s[{R_W}:{R_W+1}], s[20:21], s[22:23]", f"s_mov_b32 s{R_X+2}, 2359296", f"s_movk_i32 s{R_W+2}, 20736",
          f"s_cmp_lt_u32 s{S_WAVE}, 4", f"s_cselect_b64 s[{R_W}:{R_W+1}], s[{R_X}:{R_X+1}], s[{R_W}:{R_W+1}]", f"s_cselect_b32 s{R_W+2}, s{R_X+2}, s{R_W+2}",
          f"s_mov_b32 s{R_W+3}, 0x20000", f"s_mov_b32 s{R_X+3}, 0x20000")
        self.stamp(1, 2)
        a(f"s_cmp_lt_u32 s{S_WAVE}, 4", "s_cbranch_scc1 L_r1", "s_setprio 1", f"s_cmp_eq_u32 s{S_WAVE}, 7", "s_cbranch_scc1 L_late", "L_r1:")
        self.dma9(R_W, 9)
        a(f"s_cmp_ge_u32 s{S_WAVE}, 4", "s_cbranch_scc1 L_late")

    def wq_prefetch(self, n, first):
        a = self.a
        a(f"s_mov_b32 s{R_WQ+2}, 663552", f"s_mov_b32 s{R_WQ+3}, 0x20000", "v_lshlrev_b32 v30, 7, v0", f"s_lshr_b32 s{S_T0}, s2, 3", f"s_mul_i32 s{S_T0}, s{S_T0}, 20736")
        if first:
            a(f"s_mul_i32 s{S_T1}, s{first}, 6912", f"s_add_u32 s{S_T0}, s{S_T0}, s{S_T1}")
        a("s_mov_b32 exec_hi, 0x3fffff")
        for k in range(n):
            a(f"buffer_load_dword v{108+k}, v30, s[{R_WQ}:{R_WQ+3}], s{S_T0} offen", f"s_add_u32 s{S_T0}, s{S_T0}, 6912")
        a("s_mov_b32 exec_hi, -1")

    def dma9_setup(self, sel):
        self.a(f"s_bitcmp1_b32 s{sel}, 0", f"s_cselect_b32 s{S_XI}, 5, 0",
               f"s_add_u32 s{S_XS}, s{S_XI}, s{S_GI}", f"s_cmp_ge_u32 s{S_XS}, 9", f"s_cselect_b32 s{S_T0}, 9, 0", f"s_sub_u32 s{S_XS}, s{S_XS}, s{S_T0}",
               f"s_mul_i32 s{S_XS}, s{S_XS}, s{S_DS}", f"s_mul_i32 s{S_XI}, s{S_XI}, s{S_DI}", f"s_mul_i32 s{S_LI}, s{S_DI}, 9", f"s_mul_i32 s{S_LS}, s{S_DS}, 9")

    def dma9(self, srd_, v):
        for i in range(9):
            self.a(f"s_add_u32 m0, s{S_XM}, s{S_XI}", f"s_add_u32 s{S_T3}, s{S_XB}, s{S_XS}",
                   f"buffer_load_dwordx4 v{v}, s[{srd_}:{srd_+3}], s{S_T3} offen lds")
            if i < 8:
                self.a(f"s_add_u32 s{S_XS}, s{S_XS}, s{S_DS}", f"s_cmp_eq_u32 s{S_XS}, s{S_LS}", f"s_cselect_b32 s{S_XS}, 0, s{S_XS}",
                       f"s_add_u32 s{S_XI}, s{S_XI}, s{S_DI}", f"s_cmp_eq_u32 s{S_XI}, s{S_LI}", f"s_cselect_b32 s{S_XI}, 0, s{S_XI}")

    def table_load(self):
        self.a(f"s_add_u32 s{S_T0}, s42, L_table-L_pc", f"s_addc_u32 s{S_T1}, s43, 0",
               f"v_mov_b32 v7, s{S_T1}", f"v_add_co_u32 v6, vcc, s{S_T0}, v1", "s_nop 1", "v_addc_co_u32 v7, vcc, 0, v7, vcc", "s_nop 0",
               "global_load_dwordx4 v[20:23], v[6:7], off")

    def wq_setup(self, d, part=3):
        a = self.a
        if part & 1:
            a(f"s_mov_b32 s{R_WQ+2}, 663552", f"s_mov_b32 s{R_WQ+3}, 0x20000", f"s_lshl_b32 s{S_T0}, s{S_I}, 6", f"s_mul_i32 s{S_T1}, s{S_HG}, 288", "v_mov_b32 v16, 0x480")
        for t in range(3 if part & 1 else 0):
            a(f"v_add_u32 v13, s{S_T0}, v0", "v_mul_u32_u24 v14, 0xe39, v13", "v_lshrrev_b32 v14, 16, v14",
              "v_mul_u32_u24 v15, 18, v14", "v_sub_u32 v13, v13, v15", "v_lshlrev_b32 v13, 4, v13",
              ["v_bfe_u32 v15, v14, 3, 1", "v_bfe_u32 v17, v14, 2, 1", "v_and_b32 v14, 19, v14", "v_lshl_add_u32 v14, v15, 2, v14", "v_lshl_add_u32 v14, v17, 3, v14"] if self.o['m16'] else
              ["v_bfe_u32 v15, v14, 1, 2", "v_and_b32 v17, 1, v14", "v_lshl_add_u32 v15, v17, 2, v15", "v_and_b32 v14, 24, v14", "v_add_u32 v14, v14, v15"],
              "v_mad_u32_u24 v13, v14, v16, v13", f"v_add_u32 v{10+t}, s{S_T1}, v13")
            if t < 2:
                a(f"s_add_u32 s{S_T0}, s{S_T0}, 192")
        if not part & 2:
            return
        a(f"s_lshl_b32 s{S_M0A}, s{S_I}, 10", f"s_mul_i32 s{S_ROW}, s{S_GI}, {64*1152}")
        if d:
            a(f"s_add_u32 s{S_ROW}, s{S_ROW}, {32*d*1152}", f"s_cmp_ge_u32 s{S_ROW}, {576*1152}",
              f"s_cselect_b32 s{S_T0}, {576*1152}, 0", f"s_sub_u32 s{S_ROW}, s{S_ROW}, s{S_T0}")

    def wq_list(self, d):
        n = self.nlab = getattr(self, 'nlab', 0) + 1
        s0 = dslot(d)
        ld = lambda r: f"buffer_load_dwordx4 v{r}, s[{R_WQ}:{R_WQ+3}], s{S_ROW} offen lds"
        return [f"s_cbranch_vccz L_wq{n}",
                f"s_add_u32 m0, s{S_M0A}, {s0}", f"s_add_u32 s{S_T0}, s{S_ROW}, {32*1152}", ld(10),
                f"s_add_u32 m0, s{S_M0A}, {s0+3072}", "s_nop 0", ld(11),
                f"s_add_u32 m0, s{S_M0A}, {s0+6144}", f"s_cmp_ge_u32 s{S_T0}, {576*1152}", ld(12),
                f"s_cselect_b32 s{S_T1}, {576*1152}, 0", f"s_sub_u32 s{S_ROW}, s{S_T0}, s{S_T1}", f"L_wq{n}:"]

    def wq_dma(self, d):
        self.a(self.wq_list(d))

    def loader_flag(self):
        self.a(f"s_cmp_lt_u32 s{S_I}, 3", "s_cselect_b64 vcc, -1, 0")

    @property
    def GROUPS(self):
        if self.o['pre'] == 5:
            return [(3, 2), (5, 6), (7, 10), (9, 14), (11, 18), (13, 22), (15, 26), (17, 30)]
        if self.o['pre'] == 1:
            return [(3, 2), (5, 6), (7, 10), (9, 14), (11, 18), (13, 22), (15, 26), (17, 30)]
        if self.o['pre'] == 2:
            return [(2, 2), (3, 4), (5, 6), (7, 10), (9, 14), (11, 18), (13, 22), (15, 26), (17, 30)]
        return [(3, 2), (5, 6), (7, 10), (9, 14), (11, 18), (13, 22), (15, 26), (17, 30)]

    def early_front(self):
        a, o = self.a, self.o
        self.stamp(2, 2)
        if o['spf'] == 5:
            a(f"s_cmp_lg_u32 s{S_WAVE}, 3", "s_cbranch_scc1 L_nospf", "s_waitcnt vmcnt(6)")
            self.wq_prefetch(3, None)
            a("L_nospf:")
        self.table_load()
        self.wq_setup(o['l01'])
        self.loader_flag()
        if not o['d0l']:
            self.wq_dma(0)
        self.rest_srds()
        if o['m16']:
            a("v_lshrrev_b32 v16, 4, v0", "v_bfe_u32 v14, v0, 1, 3", "v_xor_b32 v13, v16, v14", "v_lshlrev_b32 v13, 4, v13",
              "v_and_b32 v14, 7, v0", "v_lshl_add_u32 v13, v14, 7, v13", "v_bfe_u32 v14, v0, 3, 1", "v_mul_u32_u24 v14, 0x2400, v14",
              f"s_mul_i32 s{S_T0}, s{S_PBI}, {4*9216}", f"s_add_u32 s{S_T0}, s{S_T0}, {L_X}", f"v_add3_u32 v8, v14, v13, s{S_T0}", "v_xor_b32 v9, 64, v8",
              "v_bfe_u32 v15, v0, 2, 3", "v_lshrrev_b32 v14, 5, v0", "v_lshl_add_u32 v15, v14, 4, v15", "v_mul_u32_u24 v15, 0x120, v15",
              f"s_mul_i32 s{S_T0}, s{S_HQ}, 144", f"v_add_u32 v15, s{S_T0}, v15", "v_and_b32 v13, 3, v0", "v_lshl_add_u32 v6, v13, 3, v15",
              "v_and_b32 v13, 1, v0", "v_mul_u32_u24 v13, 72, v13", "v_bfe_u32 v14, v0, 1, 1", "v_lshl_add_u32 v13, v14, 4, v13", "v_add3_u32 v7, v13, v15, 48")
        else:
            a("v_and_b32 v16, 31, v0", "v_lshrrev_b32 v13, 5, v0", "v_bfe_u32 v14, v0, 1, 3", "v_xor_b32 v13, v13, v14", "v_lshlrev_b32 v13, 4, v13",
              "v_and_b32 v14, 7, v0", "v_lshl_add_u32 v13, v14, 7, v13", "v_lshrrev_b32 v16, 3, v16", "v_mul_u32_u24 v16, 0x2400, v16",
              f"s_mul_i32 s{S_T0}, s{S_PBI}, {4*9216}", f"s_add_u32 s{S_T0}, s{S_T0}, {L_X}", f"v_add3_u32 v8, v16, v13, s{S_T0}",
              "v_xor_b32 v9, 32, v8", "v_xor_b32 v108, 64, v8", "v_xor_b32 v109, 0x60, v8")
            a("v_bfe_u32 v18, v0, 2, 2", "v_lshrrev_b32 v15, 5, v0", "v_lshlrev_b32 v15, 2, v15", "v_add_u32 v15, v15, v18", "v_mul_u32_u24 v15, 0x240, v15",
              f"s_mul_i32 s{S_T0}, s{S_HQ}, 144", "v_and_b32 v13, 1, v0", "v_lshl_add_u32 v15, v13, 4, v15", f"v_add_u32 v15, s{S_T0}, v15",
              "v_bfe_u32 v13, v0, 1, 1", "v_bfe_u32 v14, v0, 4, 1", "v_lshl_add_u32 v6, v13, 3, v15", "v_lshl_add_u32 v6, v14, 5, v6",
              "v_mul_u32_u24 v13, 72, v13", "v_add3_u32 v7, v13, v15, 48")
            if o['ks2']:
                a(f"s_mul_i32 s{S_T0}, s{S_HQ}, -288", f"s_add_u32 s{S_T0}, s{S_T0}, 144", f"v_mul_i32_i24 v13, s{S_T0}, v14", "v_add_u32 v7, v7, v13")
            elif o['z2']:
                a("v_lshl_add_u32 v7, v14, 20, v7")
        a(f"v_mov_b32 v{V_IDX}, 0xdddddddd", f"v_add_u32 v{V_AK}, {L_KV}, v1", f"v_lshlrev_b32 v{V_AR}, 2, v0", f"v_add_u32 v{V_AR}, {L_KV+2048}, v{V_AR}",
          "v_mov_b32 v110, 0", "v_mov_b32 v111, 0", f"v_mov_b32 v19, {L_KMAX}", f"s_mov_b32 s{S_STG}, 1")
        self.tail_scalars()
        if o['d0l']:
            a("s_waitcnt vmcnt(1)")
        else:
            a(f"s_cmp_eq_u32 s{S_WAVE}, 3", "s_cbranch_scc0 L_e3", f"s_waitcnt vmcnt({4 if o['spf'] == 5 else 1})", "L_e3:", "s_waitcnt vmcnt(4)")
        self.stamp(3, 2)
        a("s_barrier")
        PRE = o['pre']
        for d in range(o['l01'], PRE + 1):
            self.wq_dma(d)
        a(f"s_cmp_eq_u32 s{S_WAVE}, 3", "s_cbranch_scc0 L_e4", "s_waitcnt vmcnt(0)", "L_e4:", f"s_waitcnt vmcnt({3*(PRE-1)})", f"v_mov_b32 v{V_AV}, v20", "v_mov_b32 v21, 0x3f803f80")
        self.stamp(1)
        self.stamp(4, 2)
        a("s_barrier")
        self.stamp(5, 2)
        XF = 112
        T0, T1, TR, TR2 = 24, 40, 56, 128
        KX = 26
        PD = o['pd']
        FB = [72, 84, 96]
        state = dict(base=0)

        def rd(ks):
            x = []
            off = slot_addr(ks) - state['base']
            if off < 0 or off + 360 > 65535:
                d = slot_addr(ks) - state['base']
                x += [f"v_add_u32 v{r}, {d}, v{r}" if d > 0 else f"v_subrev_u32 v{r}, {-d}, v{r}" for r in (6, 7)]
                state['base'] = slot_addr(ks)
                off = 0
            f = FB[ks % (PD + 1)]
            return x, [f"ds_read_b64_tr_b16 {vr(f,2)}, v6 offset:{off}", f"ds_read_b64_tr_b16 {vr(f+2,2)}, v6 offset:{off+288}",
                       f"ds_read_b64_tr_b16 {vr(f+4,2)}, v6 offset:{off+72}", f"ds_read_b64_tr_b16 {vr(f+6,2)}, v6 offset:{off+360}",
                       f"ds_read_b64_tr_b16 {vr(f+8,2)}, v7 offset:{off}", f"ds_read_b64_tr_b16 {vr(f+10,2)}, v7 offset:{off+288}"]

        def mm(ks, first2):
            f = FB[ks % (PD + 1)]
            c = "0" if ks == 0 else None
            if o['ks2'] and ks >= KX:
                m2 = K16(TR2, f + 8, XF + 4 * ks, vr(TR, 16) if ks == KX else None)
            else:
                m2 = K16(TR, f + 8, XF + 4 * ks, "0" if first2 else None)
            return [K16(T0, f, XF + 4 * ks, c), K16(T1, f + 4, XF + 4 * ks, c), m2]

        def kloop(par):
            state['base'] = 0
            nt = lambda ks: 2 if (o['ks2'] and ks < KX and ks % 2 != par) else 3
            XA = [8, 9, 108, 109]
            q = []

            def issue(tag, ins):
                a(ins)
                q.append(tag)

            def need(*tags):
                last = max((i for i, t in enumerate(q) if t in tags), default=-1)
                if last >= 0:
                    left = len(q) - 1 - last
                    a(f"s_waitcnt lgkmcnt({min(left, 14)})")
                    del q[:last + 1]

            def xrd(i):
                issue(('x', i), f"ds_read_b128 {vr(XF+4*i,4)}, v{XA[i&3]} offset:{(i>>2)*1024}")
            xrd(0)
            for j, r in enumerate(rd(0)[1][:2*nt(0)]):
                issue(('w', 0, j >> 1), r)
            xrd(1)
            for j, r in enumerate(rd(1)[1][:2*nt(1)]):
                issue(('w', 1, j >> 1), r)
            nx = 2
            G = [k for _, k in self.GROUPS]
            ev = {k: ["s_barrier"] for k in G}
            prev = 1
            for last, k in self.GROUPS:
                if prev < PRE:
                    ev[k] = [f"s_waitcnt vmcnt({3*max(PRE-last, 0)})", "s_barrier"]
                prev = last
            for ks in range(36):
                m = mm(ks, ks == par)
                if ks in ev:
                    if ks == 6:
                        need(('x', 35))
                        assert nx == 36 and not any(t[0] == 'x' for t in q)
                    if len(ev[ks]) > 1 and o["stamps"]:
                        a(ev[ks][0])
                    if ks in (2, 6, 10, 14, 22, 30):
                        self.stamp(1 + (2, 6, 10, 14, 22, 30).index(ks), 3)
                    if ks == 30:
                        need('e')
                    a(ev[ks])
                    if ks == 6:
                        self.stamp(2)
                        self.stamp(6, 2)
                pre, n = rd(ks + 2) if ks + 2 < 36 else ([], [])
                fine = nx < 36 or ks == 35
                if not fine:
                    need(('x', ks), ('w', ks, nt(ks) - 1))
                for t in range(3):
                    if t < nt(ks):
                        if fine:
                            need(('x', ks), ('w', ks, t))
                        a(m[t])
                    if t == 0:
                        a(pre)
                    for k in range(o['xper']):
                        if nx < 36:
                            xrd(nx)
                            nx += 1
                    if t < nt(ks + 2):
                        for r in n[2*t:2*t+2]:
                            issue(('w', ks + 2, t), r)
                if o['ks2'] and ks == KX + 2:
                    issue('e', f"ds_write_b128 v13, {vr(TR+8,4)}")
                    issue('e', f"ds_write_b128 v13, {vr(TR+12,4)} offset:1024")
                if o['ks2'] and ks == 31:
                    issue('i', f"ds_read_b128 {vr(XF,4)}, v14")
                    issue('i', f"ds_read_b128 {vr(XF+4,4)}, v14 offset:1024")
            assert not [t for t in q if t != 'i'] and True
            need('i')
        def kloop16():
            q = []
            FB16 = [64, 84]
            base = [0]

            def issue(tag, ins):
                a(ins)
                q.append(tag)

            def need(*tags):
                last = max((i for i, t in enumerate(q) if t in tags), default=-1)
                if last >= 0:
                    a(f"s_waitcnt lgkmcnt({min(len(q) - 1 - last, 14)})")
                    del q[:last + 1]

            def xrd(i):
                b, t = i >> 1, i & 1
                issue(('x', i), f"ds_read_b128 {vr(XF+4*i,4)}, v{8+(b&1)} offset:{(b>>1)*1024 + t*18432}")

            def rd16(d):
                pre = []
                off = dslot(d) - base[0]
                if off < 0 or off + 2408 > 65535:
                    pre = [f"v_add_u32 v{r}, {off}, v{r}" if off > 0 else f"v_subrev_u32 v{r}, {-off}, v{r}" for r in (6, 7)]
                    base[0], off = dslot(d), 0
                f = FB16[d & 1]
                return pre, [f"ds_read_b64_tr_b16 {vr(f+4*j+2*tt,2)}, v{7 if j == 2 else 6} offset:{off + (0, 32, 0, 72, 104)[j] + 2304*tt}" for j in range(5) for tt in range(2)]
            xrd(0)
            xrd(1)
            for k, r in enumerate(rd16(0)[1]):
                issue(('w', 0, k >> 1), r)
            nx = 2
            ev = {k // 2: ["s_barrier"] for _, k in self.GROUPS}
            prev = 1
            for last, k in self.GROUPS:
                if prev < PRE:
                    ev[k // 2] = [f"s_waitcnt vmcnt({3*max(PRE-last, 0)})", "s_barrier"]
                prev = last
            for b in range(18):
                if b in ev:
                    if b == 3:
                        need(('x', 35))
                        assert nx == 36
                    a(ev[b])
                    if b == 3:
                        self.stamp(2)
                pre, n = rd16(b + 1) if b + 1 < 18 else ([], [])
                a(pre)
                for j in range(5):
                    need(('x', 2 * b), ('x', 2 * b + 1), ('w', b, j))
                    for t in range(2):
                        a(M16(24 + 8 * j + 4 * t, FB16[b & 1] + 4 * j, XF + 4 * (2 * b + t), "0" if b == 0 else None))
                        if n:
                            issue(('w', b + 1, j), n[2 * j + t])
                        for k in range(o['xb']):
                            if nx < 36:
                                xrd(nx)
                                nx += 1
        if o['m16']:
            kloop16()
        elif o['ks2']:
            a(f"s_mul_i32 s{S_T0}, s{S_WAVE}, 2048", f"s_add_u32 s{S_T0}, s{S_T0}, {L_T2X}", f"v_add_u32 v13, s{S_T0}, v1", "v_xor_b32 v14, 0x1000, v13",
              f"s_cmp_eq_u32 s{S_HQ}, 1", "s_cbranch_scc1 L_kodd")
            kloop(0)
            a("s_branch L_kdone", "L_kodd:")
            kloop(1)
            a("L_kdone:")
        else:
            kloop(0)
        self.stamp(3)
        self.stamp(3, 6)
        a("v_mov_b32 v7, v19", f"v_mov_b32 v{KR[0]+1}, 0x3f803f80", f"s_mov_b32 s{S_BAR}, {3 if o['u7'] else 32//o['unp'] - 1}", "s_mov_b32 vcc_lo, 0", "s_mov_b32 vcc_hi, -1", "s_nop 2")
        if o['m16']:
            A_, B_, C_, D_ = QMS
            dests = [((A_, A_ + 2), (A_ + 1, A_ + 3)), ((QR, B_ + 1), (B_, B_ + 2)), ((B_ + 3, D_ + 3), (108, 107)), ((C_, C_ + 2), (C_ + 1, C_ + 3)), ((QR2, D_ + 1), (D_, D_ + 2))]
            pend = []
            for j in range(5):
                for c in range(2):
                    x, y = dests[j][c]
                    a(f"v_cvt_pk_bf16_f32 v{x}, v{24+8*j+2*c}, v{25+8*j+2*c}", f"v_cvt_pk_bf16_f32 v{y}, v{28+8*j+2*c}, v{29+8*j+2*c}", pend)
                    pend = [f"v_permlane16_swap_b32 v{x}, v{y}"]
            a("s_nop 0", pend)
        else:
            for (dst, t) in ((QM[0], T0), (QM2[0], T1)):
                for j, r in enumerate((0, 2, 4, 6, 10, 12, 14)):
                    a(f"v_cvt_pk_bf16_f32 v{dst+j}, v{t+r}, v{t+r+1}")
            for (dst, qr, t, t2, tmp) in ((QM[0], QR, T0, TR, 108), (QM2[0], QR2, T1, TR + 4, 107)):
                a(f"v_cvt_pk_bf16_f32 v{dst+7}, v{t2}, v{t2+1}", f"v_cvt_pk_bf16_f32 v{qr}, v{t+8}, v{t+9}", f"v_cvt_pk_bf16_f32 v{tmp}, v{t2+2}, v{t2+3}")
        a(f"v_cndmask_b32 v{QR}, v{QR}, v108, vcc", f"v_cndmask_b32 v{QR2}, v{QR2}, v107, vcc")
        a([K8Z(x, 110) for x in (O2[1], O[0])])
        self.stamp(1, 6)
        a("s_barrier")
        self.stamp(2, 6)
        a("ds_read_b32 v6, v7")
        self.main_prologue_loads()
        self.norm2((QM[0], QR, QR + 1, 108), (QM2[0], QR2, QR2 + 1, 107))
        a([K8Z(x, 110) for x in (O[1], O2[0])])
        a([f"v_mov_b32 v{r}, 0" for r in range(VV[1][1], VV[1][1] + 4)])
        a("s_setprio 1", "s_waitcnt lgkmcnt(0)")

    def late_front(self):
        a, o = self.a, self.o
        a.label("L_late")
        a("s_setprio 0")
        if o['spf'] == 3:
            a(f"s_cmp_lg_u32 s{S_WAVE}, 7", "s_cbranch_scc1 L_nospf")
            self.wq_prefetch(3, None)
            a("L_nospf:")
        if o['spf'] == 4:
            a(f"s_cmp_eq_u32 s{S_WAVE}, 7", "s_cbranch_scc1 L_nospf")
            self.wq_prefetch(1, S_I)
            a("L_nospf:")
        self.stamp(2, 2)
        self.rest_srds()
        if o['shard']:
            a("v_and_b32 v160, 7, v0", "v_lshlrev_b32 v160, 9, v160", f"s_cmp_lg_u32 s{S_WAVE}, 7", "s_cbranch_scc1 L_nov0", f"s_mov_b32 s{S_T0}, {WS_CNT}",
              f"buffer_load_dword v161, v160, s[{R_WS}:{R_WS+3}], s{S_T0} offen sc0 sc1")
            if o['tw']:
                a(f"s_mov_b32 s{R_WQ+2}, 663552", f"s_mov_b32 s{R_WQ+3}, 0x20000", f"s_mul_i32 s{S_T0}, s{S_GI}, {64*1152}", "s_mov_b64 exec, 1",
                  f"buffer_load_dword v165, v160, s[{R_WQ}:{R_WQ+3}], s{S_T0} offen", "s_mov_b64 exec, -1")
            a("L_nov0:")
        self.wq_setup(6, 1)
        a(f"s_xor_b32 s{S_T4}, s{S_T4}, 4", f"s_add_u32 s{S_XB}, s{S_T5}, s{S_T4}", f"s_mul_i32 s{S_XB}, s{S_XB}, {8*1152}",
          f"s_mul_i32 s{S_XM}, s{S_T4}, 9216", f"s_add_u32 s{S_XM}, s{S_XM}, {L_X}", f"s_movk_i32 s{S_DI}, 1024", f"s_movk_i32 s{S_DS}, 128")
        a("v_and_b32 v13, 15, v0", "v_lshrrev_b32 v16, 4, v0",
          "v_bfe_u32 v17, v0, 1, 3", "v_xor_b32 v17, v16, v17", "v_lshlrev_b32 v17, 4, v17",
          "v_and_b32 v18, 7, v0", "v_lshl_add_u32 v17, v18, 7, v17", "v_bfe_u32 v18, v0, 3, 1", "v_mul_u32_u24 v18, 0x2400, v18",
          f"s_lshr_b32 s{S_T0}, s{S_HG}, 1", f"s_lshl_b32 s{S_T0}, s{S_T0}, 1", f"s_add_u32 s{S_T0}, s{S_T0}, s{S_PBI}",
          f"s_mul_i32 s{S_T1}, s{S_T0}, {2*9216}", f"s_add_u32 s{S_T1}, s{S_T1}, {L_X}", f"v_add3_u32 v14, v17, v18, s{S_T1}", "v_xor_b32 v15, 64, v14",
          "v_bfe_u32 v17, v0, 2, 2", "v_lshl_add_u32 v17, v16, 3, v17",
          "v_mul_u32_u24 v17, 48, v17", "v_and_b32 v18, 3, v0", "v_lshlrev_b32 v18, 3, v18",
          f"s_cmp_eq_u32 s{S_HQ}, 0", "s_cselect_b64 vcc, -1, 0", "v_mov_b32 v19, 32", "v_cndmask_b32 v18, v19, v18, vcc", f"v_add_u32 v17, {L_W}, v17", "v_add_u32 v17, v17, v18")
        a("v_lshrrev_b32 v19, 5, v0", "v_lshlrev_b32 v19, 9, v19", "v_lshl_add_u32 v19, v13, 4, v19",
          "v_bfe_u32 v18, v0, 4, 1", "v_lshl_add_u32 v28, v18, 3, v19", "v_lshlrev_b32 v29, 2, v13",
          f"s_mul_i32 s{S_KVS}, s{S_PG}, {PB}", f"s_mov_b32 s{S_OEX}, s{S_T0}")
        self.dma9_setup(S_HG)
        self.dma9(R_X, 8)
        self.stamp(3, 2)
        self.table_load()
        if o['spf'] == 2:
            a(f"s_cmp_lg_u32 s{S_WAVE}, 7", "s_cbranch_scc1 L_nospf")
            self.wq_prefetch(3, None)
            a("L_nospf:")
        if o['l01']:
            self.wq_setup(0, 2)
            self.loader_flag()
            for d in range(o['l01']):
                self.wq_dma(d)
        a("s_setprio 1", f"s_waitcnt vmcnt({10 + 3 * o['l01']})")
        self.stamp(1)
        self.stamp(4, 2)
        a("s_barrier")
        a(f"s_bitcmp1_b32 s{S_HG}, 0", "s_cbranch_scc1 L_vproj")
        D = 32
        NB = o['nb']
        for isv in (0, 1):
            if isv:
                a.label("L_vproj")

            def rd(s):
                xb = 40 + 8 * (s % NB)
                return [f"ds_read_b128 {vr(xb,4)}, v{14+(s&1)} offset:{(s>>1)*1024}",
                        f"ds_read_b64_tr_b16 {vr(xb+4,2)}, v17 offset:{s*1536}", f"ds_read_b64_tr_b16 {vr(xb+6,2)}, v17 offset:{s*1536+192}"]
            for s in range(NB - 1):
                a(rd(s))
            for s in range(18):
                if s == o['sb']:
                    a("s_waitcnt vmcnt(0)", "s_barrier")
                if s == 17 and o['sb'] == 18:
                    if o['l01']:
                        a(f"s_cmp_eq_u32 s{S_WAVE}, 7", f"s_cbranch_scc0 L_x{isv}", "s_waitcnt vmcnt(0)", f"L_x{isv}:")
                    a(f"s_waitcnt vmcnt({3 * o['l01']})")
                if s + NB - 1 < 18:
                    a(rd(s + NB - 1))
                left = min(18 - 1 - s, NB - 1)
                xb = 40 + 8 * (s % NB)
                c = "0" if s == 0 else None
                a(f"s_waitcnt lgkmcnt({min(15,3*left)})", M16(D, xb, xb + 4, c) if isv else M16(D, xb + 4, xb, c))
            g = S_OEX
            if not isv:
                a(f"s_lshr_b32 s{S_T0}, s{g}, 1", f"s_lshl_b32 s{S_T0}, s{S_T0}, 10", f"s_lshl_b32 s{S_T1}, s{S_PBI}, 8", f"s_add_u32 s{S_T0}, s{S_T0}, s{S_T1}",
                  f"s_add_u32 s{S_T0}, s{S_T0}, s{S_KVS}",
                  f"s_lshl_b32 s{S_T1}, s{g}, 6", f"s_add_u32 s{S_T1}, s{S_T1}, s{S_KVS}", f"s_add_u32 s{S_T1}, s{S_T1}, 2048",
                  f"s_mov_b32 s{S_T2}, {hex(f2u(CSCALE))}")
                for r in range(4):
                    a(f"v_mul_f32 v{D+r}, s{S_T2}, v{D+r}")
                a(f"v_cvt_pk_bf16_f32 v{D}, v{D}, v{D+1}", f"v_cvt_pk_bf16_f32 v{D+1}, v{D+2}, v{D+3}",
                  f"s_lshl_b32 s{S_T3}, s{S_PG}, 2", f"s_add_u32 s{S_T3}, s{S_T3}, s{g}", f"s_lshl_b32 s{S_T3}, s{S_T3}, 2", f"s_add_u32 s{S_T3}, s{S_T3}, {WS_KN}",
                  f"v_dot2_f32_bf16 v36, v{D}, v{D}, 0",
                  f"s_cmp_eq_u32 s{S_HQ}, 0", "s_cbranch_scc0 L_krem",
                  f"buffer_store_dwordx2 {vr(D,2)}, v28, s[{R_WS}:{R_WS+3}], s{S_T0} offen sc1",
                  f"v_dot2_f32_bf16 v36, v{D+1}, v{D+1}, v36", "s_nop 2", "v_mov_b32 v37, v36", "s_nop 1",
                  "v_permlane16_swap_b32 v36, v37", "s_nop 1", "v_add_f32 v36, v36, v37", "s_nop 0", "v_mov_b32 v37, v36", "s_nop 1",
                  "v_permlane32_swap_b32 v36, v37", "s_nop 1", "v_add_f32 v36, v36, v37", "s_branch L_knorm",
                  "L_krem:", "s_mov_b64 exec, 0xffff",
                  f"buffer_store_dword v{D}, v29, s[{R_WS}:{R_WS+3}], s{S_T1} offen sc1", "s_mov_b64 exec, -1", f"s_add_u32 s{S_T3}, s{S_T3}, 512",
                  "L_knorm:", "s_nop 1")
                self.row_max16(36)
                a("v_mov_b32 v37, 0", "s_mov_b64 exec, 1", f"buffer_store_dword v36, v37, s[{R_WS}:{R_WS+3}], s{S_T3} offen sc1", "s_mov_b64 exec, -1")
                if o['l01']:
                    a("s_waitcnt vmcnt(2)")
                a("s_branch L_kvdone")
            else:
                a(f"s_mul_i32 s{S_T0}, s{g}, {VG}", f"s_add_u32 s{S_T0}, s{S_T0}, s{S_KVS}", f"s_add_u32 s{S_T0}, s{S_T0}, 2304",
                  "v_cmp_eq_u32 vcc, 2, v13", f"v_cmp_eq_u32 s[{S_EX}:{S_EX+1}], 3, v13", "v_mov_b32 v30, 0x3f803f80", "s_nop 0",
                  f"s_cmp_eq_u32 s{S_HQ}, 0",
                  f"v_cvt_pk_bf16_f32 v{D}, v{D}, v{D+1}", f"v_cvt_pk_bf16_f32 v{D+1}, v{D+2}, v{D+3}", "s_cbranch_scc0 L_vrem",
                  f"buffer_store_dwordx2 {vr(D,2)}, v21, s[{R_WS}:{R_WS+3}], s{S_T0} offen sc1", "s_branch L_vdone",
                  "L_vrem:",
                  f"v_cndmask_b32 v{D}, v{D}, v30, vcc", f"v_cndmask_b32 v{D+1}, v{D+1}, v30, vcc",
                  f"v_cndmask_b32 v{D}, v{D}, 0, s[{S_EX}:{S_EX+1}]", f"v_cndmask_b32 v{D+1}, v{D+1}, 0, s[{S_EX}:{S_EX+1}]",
                  "s_mov_b32 exec_lo, 0x000f000f", "s_mov_b32 exec_hi, 0x000f000f",
                  f"buffer_store_dwordx2 {vr(D,2)}, v22, s[{R_WS}:{R_WS+3}], s{S_T0} offen sc1", "s_mov_b64 exec, -1", "L_vdone:")
                if o['l01']:
                    a("s_waitcnt vmcnt(1)")
        a.label("L_kvdone")
        if True:
            a("s_getreg_b32 s29, hwreg(HW_REG_XCC_ID, 0, 4)", f"s_cmp_lg_u32 s{S_WAVE}, 4", "s_cbranch_scc1 L_noxid",
              f"s_lshl_b32 s{S_T0}, s{S_PG}, 2", f"s_add_u32 s{S_T0}, s{S_T0}, s{S_HG}", f"s_lshl_b32 s{S_T0}, s{S_T0}, 2", f"s_add_u32 s{S_T0}, s{S_T0}, {WS_XID}",
              "v_mov_b32 v38, s29", "v_mov_b32 v39, 0", "s_mov_b64 exec, 1", f"buffer_store_dword v38, v39, s[{R_WS}:{R_WS+3}], s{S_T0} offen sc1", "s_mov_b64 exec, -1", "L_noxid:")
        self.stamp(2)
        self.stamp(5, 2)
        a(f"v_mov_b32 v{V_AV}, v20")
        self.wq_setup(o['pre'] + 1, 2)
        self.loader_flag()
        a("v_mov_b32 v100, 1", "v_mov_b32 v101, 0")
        if o['sb'] == 18:
            a("s_barrier")
        nxt = first = o['pre'] + 1
        NG = len(self.GROUPS)
        passed = -1
        signalled = False
        for gi_, (last, step) in enumerate(self.GROUPS):
            lim = 5 if passed < 2 else 8 if passed < 6 else 16 if passed < 14 else 17
            tgt = min(last + o['win'], lim)
            while nxt <= tgt:
                self.wq_dma(nxt)
                nxt += 1
            assert nxt > last
            if step == 14:
                self.wo_job_addr(0)
                self.poison_addr()
            if step == 18:
                a(f"s_cmp_ge_u32 s{S_OEX}, {648-512}", "s_cselect_b32 s16, 0, 512", f"s_add_u32 s{S_OEX}, s{S_OEX}, s16")
                self.wo_job_addr(1)
                self.loader_flag()
            if gi_ == NG - 3:
                a(f"s_and_b32 s{S_T0}, s{S_GI}, 3", f"s_mul_i32 s{S_KVS}, s{S_T0}, {37*1024}", f"s_add_u32 s{S_KVS}, s{S_KVS}, s{S_M0A}",
                  "v_lshlrev_b32 v153, 3, v0", f"s_mov_b32 s{S_T4}, {WS_KN}", f"s_lshl_b32 s{S_T5}, s{S_B}, 7")
            sig = (last >= first or step >= o['sg']) and not signalled
            if sig and last < first:
                a(f"s_cbranch_vccnz L_l{gi_}", "s_waitcnt vmcnt(0)", f"L_l{gi_}:", f"s_waitcnt vmcnt({3*(nxt-first)})")
                signalled = True
            elif sig:
                a(f"s_cbranch_vccnz L_l{gi_}", "s_waitcnt vmcnt(0)", f"L_l{gi_}:")
                signalled = True
            if last >= first:
                a(f"s_waitcnt vmcnt({3*(nxt-1-last)})")
            passed = step
            if step == 10:
                a(f"v_mov_b32 v150, {L_FLAG}", "v_mov_b32 v152, 0", "v_mov_b32 v153, 0", "v_mov_b32 v154, 0", "v_mov_b32 v155, 0", "v_mov_b32 v151, 0", "ds_write_b128 v150, v[152:155]", "s_waitcnt lgkmcnt(0)")
            if gi_ == NG - 3 and o['tre']:
                a("s_cbranch_vccnz L_try1", f"s_mov_b32 s{S_T0}, {WS_CNT}", f"buffer_load_dword v152, v160, s[{R_WS}:{R_WS+3}], s{S_T0} offen sc0 sc1", "L_try1:")
            if gi_ == NG - 2:
                assert nxt == 18
                if o['shard']:
                    a("s_cbranch_vccnz L_try0")
                    if not o['tre']:
                        a(f"s_mov_b32 s{S_T0}, {WS_CNT}", f"buffer_load_dword v152, v160, s[{R_WS}:{R_WS+3}], s{S_T0} offen sc0 sc1")
                    a("s_waitcnt vmcnt(0)",
                      "v_cmp_ne_u32 s[16:17], v152, v161", "s_cmp_eq_u64 s[16:17], 0", "s_cselect_b32 s16, 1, 0", "v_mov_b32 v152, s16", "ds_write_b32 v150, v152", "s_waitcnt lgkmcnt(0)", "L_try0:")
                else:
                    a("s_cbranch_vccnz L_try0", f"buffer_load_dword v152, v151, s[{R_DBG}:{R_DBG+3}], s{S_T5} offen sc0 sc1", "s_waitcnt vmcnt(0)",
                      "v_lshrrev_b32 v152, 7, v152", "ds_write_b32 v150, v152", "s_waitcnt lgkmcnt(0)", "L_try0:")
            if step in (2, 6, 10, 14, 22):
                self.stamp(1 + (2, 6, 10, 14, 22).index(step), 3)
            a("s_barrier")
            if sig:
                self.stamp(3, 9)
                self.kv_signal()
            if gi_ == NG - 2:
                break
        kn = [f"s_cmp_lg_u32 s{S_WAVE}, 7", None, f"buffer_load_dwordx2 v[154:155], v153, s[{R_WS}:{R_WS+3}], s{S_T4} offen sc1",
              f"buffer_load_dwordx2 v[156:157], v153, s[{R_WS}:{R_WS+3}], s{S_T4} offen offset:512 sc1"]
        a("ds_read_b32 v152, v150", "s_waitcnt lgkmcnt(0)", "v_cmp_eq_u32 vcc, 0, v152", "s_cbranch_vccnz L_notyet")
        self.stamp(4)
        self.stamp(4, 9)
        a(kn[0], "s_cbranch_scc1 L_kna", kn[2:], "L_kna:")
        self.kv_dma(0, o['ka'])
        a(f"s_cmp_eq_u32 s{S_WAVE}, 7", "s_cbranch_scc1 L_knb", f"s_waitcnt vmcnt({o['ka']})", "L_knb:")
        self.stamp(6, 3)
        a("s_barrier")
        self.kv_dma(4 * o['ka'], o['kv1'] - o['ka'])
        a("s_branch L_first")
        a("L_notyet:", "s_waitcnt vmcnt(0)")
        self.stamp(6, 3)
        a("s_barrier")
        a(f"s_mov_b32 s{S_CNT}, {SPIN_L}", f"s_cmp_lg_u32 s{S_WAVE}, 7", "s_cbranch_scc1 L_relay", f"s_mov_b32 s{S_CNT}, {SPIN}")
        if o['shard']:
            a(f"s_mov_b32 s{S_T0}, {WS_CNT}", "L_poll1:", f"buffer_load_dword v152, v160, s[{R_WS}:{R_WS+3}], s{S_T0} offen sc0 sc1",
              f"s_cmp_gt_u32 s{S_CNT}, {SPIN - 4}", "s_cbranch_scc1 L_pf", f"s_cmp_lg_u32 s{S_CNT}, {SPIN - o['nslow']}", "s_cbranch_scc1 L_ps",
              "s_mov_b64 exec, 1", f"buffer_atomic_add v100, v101, s[{R_DBG}:{R_DBG+3}], s{S_T5} offen sc1", "s_mov_b64 exec, -1",
              "L_ps:", f"buffer_load_dwordx3 v[162:164], v151, s[{R_DBG}:{R_DBG+3}], s{S_T5} offen sc0 sc1", "s_waitcnt vmcnt(0)",
              "v_lshrrev_b32 v162, 7, v162", "v_or3_b32 v162, v162, v163, v164", "v_cmp_ne_u32 vcc, 0, v162", "s_cbranch_vccnz L_poll1d",
              "L_pf:", f"s_sub_u32 s{S_CNT}, s{S_CNT}, 1", "s_cbranch_scc1 L_poll1d", "s_waitcnt vmcnt(0)", "v_cmp_ne_u32 vcc, v152, v161", "s_cbranch_vccnz L_poll1")
        else:
            a("L_poll1:", f"buffer_load_dword v152, v151, s[{R_DBG}:{R_DBG+3}], s{S_T5} offen sc0 sc1", f"s_sub_u32 s{S_CNT}, s{S_CNT}, 1",
              "s_cbranch_scc1 L_poll1d", "s_waitcnt vmcnt(0)", "v_cmp_gt_u32 vcc, 0x80, v152", "s_cbranch_vccnz L_poll1")
        a("L_poll1d:", "v_mov_b32 v152, 1", "ds_write_b32 v150, v152", kn[2:], "s_branch L_flagok")
        a("L_relay:", "ds_read_b32 v152, v150", f"s_sub_u32 s{S_CNT}, s{S_CNT}, 1", "s_cbranch_scc1 L_flagok", "s_waitcnt lgkmcnt(0)",
          "v_cmp_eq_u32 vcc, 0, v152", "s_cbranch_vccnz L_relay", "L_flagok:")
        self.stamp(4)
        self.stamp(4, 9)
        self.kv_dma(0, o['kv1'])
        a("L_first:")
        self.stamp(3)
        self.stamp(6, 2)
        a(f"s_cmp_lg_u32 s{S_WAVE}, 7", "s_cbranch_scc1 L_nokn", f"s_waitcnt vmcnt({o['kv1']})", "v_max_f32 v154, v154, v155", "v_max_f32 v156, v156, v157")
        self.row_max16(154)
        self.row_max16(156)
        a("s_nop 0")
        for k in range(4):
            a(f"v_readlane_b32 s{16+k}, v154, {16*k}", f"v_readlane_b32 s{20+k}, v156, {16*k}")
        a("s_nop 1", "s_max_u32 s16, s16, s17", "s_max_u32 s18, s18, s19", "s_max_u32 s20, s20, s21", "s_max_u32 s22, s22, s23",
          "s_max_u32 s16, s16, s18", "s_max_u32 s20, s20, s22", "v_mov_b32 v154, s16", "v_add_f32 v154, s20, v154", "v_sqrt_f32 v154, v154",
          f"v_mov_b32 v155, {L_KMAX}", "ds_write_b32 v155, v154", "L_nokn:")
        self.stamp(3, 6)
        a("s_waitcnt vmcnt(0) lgkmcnt(0)")
        self.stamp(1, 6)
        self.stamp(5, 9)
        a("s_barrier")
        self.stamp(2, 6)
        self.kv_dma(4 * o['kv1'], 37 - o['kv1'])
        a("s_setprio 2", f"s_mov_b32 s{S_STG}, 0", "s_waitcnt vmcnt(0)")
        self.stamp(5)
        self.stamp(4, 6)
        a("s_barrier")
        self.stamp(5, 6)
        if o['shard']:
            a(f"s_cmp_lg_u32 s{S_WAVE}, 7", "s_cbranch_scc1 L_nosaw", "s_cmp_ge_u32 s2, 8", "s_cbranch_scc1 L_nosaw", "s_mov_b64 exec, 1",
              f"buffer_atomic_add v100, v101, s[{R_DBG}:{R_DBG+3}], s{S_T5} offen offset:8 sc1", "s_mov_b64 exec, -1", "L_nosaw:")
        self.wo_job_loads(0)
        a(f"s_cmp_lt_u32 s{S_OEX}, 512", "s_cbranch_scc1 L_nowo2")
        self.wo_job_loads(1)
        a("L_nowo2:", f"s_lshl_b32 s{S_T0}, s{S_PG}, 4", f"s_add_u32 s{S_T0}, s{S_T0}, {WS_XID}", "v_and_b32 v8, 3, v0", "v_lshlrev_b32 v8, 2, v8",
          f"buffer_load_dword v9, v8, s[{R_WS}:{R_WS+3}], s{S_T0} offen sc1")
        self.poison()
        a("s_waitcnt vmcnt(5)")
        self.wo_finish()
        a(f"v_mov_b32 v10, {L_FLAG+8}", "v_cmp_ne_u32 vcc, s29, v9", "s_cmp_eq_u64 vcc, 0", f"s_cselect_b32 s{S_SAME}, {o['xcc']}, 0", f"v_mov_b32 v11, s{S_SAME}",
          "ds_write_b32 v10, v11", "s_waitcnt lgkmcnt(0)")
        self.join_signal(12, "l")
        a("s_mov_b64 exec, -1", f"s_setprio {o['hp']}")
        self.tail_scalars()
        a("v_mov_b32 v12, 1", f"s_mov_b32 s{S_CNT}, {SPIN}", f"s_cmp_lg_u32 s{S_WAVE}, 7", "s_cbranch_scc1 L_rel2", f"s_lshl_b32 s{S_T0}, s{S_B}, 7",
          "L_poll2:", f"buffer_load_dword v11, v15, s[{R_DBG}:{R_DBG+3}], s{S_T0} offen offset:4 sc0 sc1", f"s_sub_u32 s{S_CNT}, s{S_CNT}, 1",
          "s_cbranch_scc1 L_poll2d", "s_waitcnt vmcnt(0)", "v_cmp_gt_u32 vcc, 0x80, v11", "s_cbranch_vccz L_poll2d", "s_sleep 16", "s_branch L_poll2",
          "L_poll2d:", "ds_write_b32 v10, v12 offset:4", "s_branch L_rel2d",
          "L_rel2:", "ds_read_b32 v11, v10 offset:4", f"s_sub_u32 s{S_CNT}, s{S_CNT}, 1", "s_cbranch_scc1 L_rel2d", "s_waitcnt lgkmcnt(0)",
          "v_cmp_ne_u32 vcc, 0, v11", "s_cbranch_vccnz L_rel2d", "s_sleep 16", "s_branch L_rel2", "L_rel2d:")
        a(f"s_mul_i32 s{S_T0}, s{S_HG}, 9", f"s_lshl_b32 s{S_T1}, s{S_I}, 1", f"s_add_u32 s{S_T0}, s{S_T0}, s{S_T1}", f"s_mul_i32 s{S_T0}, s{S_T0}, {18*1024}", f"s_add_u32 s{S_T0}, s{S_T0}, {WS_WOT}")
        for n in range(36):
            a(f"buffer_load_dwordx4 {vr(112+4*n,4)}, v1, s[{R_WS}:{R_WS+3}], s{S_T0} offen offset:{(n&3)*1024} sc1")
            if n & 3 == 3:
                a(f"s_add_u32 s{S_T0}, s{S_T0}, 4096")
        self.tail_vaddr()
        if o['to']:
            a("s_mov_b64 exec, 1", f"buffer_load_dword v6, v22, s[{R_OUT}:{R_OUT+3}], s37 offen", "s_mov_b64 exec, -1")
        a("s_waitcnt vmcnt(0) lgkmcnt(0)", "s_barrier")
        a(f"s_mul_i32 s{S_T0}, s{S_HG}, 9", f"s_add_u32 s{S_T0}, s{S_T0}, 8", f"s_mul_i32 s{S_T0}, s{S_T0}, {18*1024}", f"s_add_u32 s{S_T0}, s{S_T0}, {WS_WOT}",
          f"s_add_u32 s{S_T0}, s{S_T0}, s{S_M0A}")
        for k in range(4):
            a(f"s_add_u32 m0, s{S_M0A}, {L_W8 + 4096*k}", f"s_add_u32 s{S_T1}, s{S_T0}, {4096*k}", f"buffer_load_dwordx4 v1, s[{R_WS}:{R_WS+3}], s{S_T1} offen sc1 lds")
        a(f"s_and_b32 s{S_T2}, s{S_I}, 2", f"s_sub_u32 s{S_T2}, 16, s{S_T2}", f"s_lshl_b32 s{S_T2}, s{S_T2}, 10", f"s_add_u32 s{S_T1}, s{S_T0}, s{S_T2}",
          f"s_add_u32 s{S_T2}, s{S_T2}, s{S_M0A}", f"s_add_u32 m0, s{S_T2}, {L_W8}", "s_nop 0", f"buffer_load_dwordx4 v1, s[{R_WS}:{R_WS+3}], s{S_T1} offen sc1 lds",
          "s_waitcnt vmcnt(0)")
        self.tail_late()

    def kv_signal(self):
        a, o = self.a, self.o
        if o['shard']:
            a("s_cbranch_vccnz L_nosig", "s_setprio 3", f"v_add_u32 v161, {17 if o['badv0'] else 16}, v161",
              f"s_bfe_u32 s{S_T0}, s2, 0x20001", f"s_lshl_b32 s{S_T0}, s{S_T0}, 1", f"s_and_b32 s{S_T1}, s{S_GI}, 1", f"s_add_u32 s{S_T0}, s{S_T0}, s{S_T1}",
              f"s_lshl_b32 s{S_T0}, s{S_T0}, 9", f"s_add_u32 s{S_T0}, s{S_T0}, {WS_CNT}", "s_mov_b64 exec, 1",
              f"buffer_atomic_add v100, v101, s[{R_WS}:{R_WS+3}], s{S_T0} offen sc1", "s_mov_b64 exec, -1", "s_setprio 1", "L_nosig:")
        else:
            a("s_cbranch_vccnz L_nosig", "s_setprio 3", f"s_lshl_b32 s{S_T0}, s{S_B}, 7", "s_mov_b64 exec, 1",
              f"buffer_atomic_add v100, v101, s[{R_DBG}:{R_DBG+3}], s{S_T0} offen sc1", "s_mov_b64 exec, -1", "s_setprio 1", "L_nosig:")

    def join_signal(self, v, tag):
        self.a(f"v_mov_b32 v{v}, {L_FLAG+4}", f"v_mov_b32 v{v+1}, 1", f"v_mov_b32 v{v+3}, 0", f"s_lshl_b32 s{S_T0}, s{S_B}, 7", "s_mov_b64 exec, 1",
               "s_waitcnt vmcnt(0)", f"ds_add_rtn_u32 v{v+2}, v{v}, v{v+1}", "s_waitcnt lgkmcnt(0)", f"v_cmp_eq_u32 vcc, 3, v{v+2}", f"s_cbranch_vccz L_js{tag}",
               f"buffer_atomic_add v{v+1}, v{v+3}, s[{R_DBG}:{R_DBG+3}], s{S_T0} offen offset:4 sc1", f"L_js{tag}:")

    def wo_job_addr(self, rep):
        a = self.a
        if rep == 0:
            a(f"s_lshl_b32 s{S_OEX}, s{S_PG}, 2", f"s_add_u32 s{S_OEX}, s{S_OEX}, s{S_HG}", f"s_lshl_b32 s{S_OEX}, s{S_OEX}, 2", f"s_add_u32 s{S_OEX}, s{S_OEX}, s{S_I}")
        f = S_OEX
        AD = 208 + 8 * rep
        a(f"s_mul_i32 s16, s{f}, 3641", "s_lshr_b32 s16, s16, 16", "s_mul_i32 s19, s16, 18", f"s_sub_u32 s19, s{f}, s19",
          "s_mul_i32 s21, s16, 7282", "s_lshr_b32 s21, s21, 16", "s_mul_i32 s17, s21, 9", "s_sub_u32 s17, s16, s17")
        a("s_mul_i32 s22, s21, 288", "s_lshr_b32 s23, s17, 1", "s_lshl_b32 s23, s23, 6", "s_add_u32 s22, s22, s23", "s_and_b32 s23, s17, 1", "s_lshl_b32 s23, s23, 3",
          "s_add_u32 s22, s22, s23", "s_cmp_eq_u32 s17, 8", "s_cselect_b32 s23, 3, 4",
          "v_bfe_u32 v200, v0, 2, 2", "v_lshlrev_b32 v200, s23, v200", "v_and_b32 v201, 3, v0", "v_lshl_add_u32 v200, v201, 1, v200", "v_add_u32 v200, s22, v200",
          "s_cmp_ge_u32 s19, 16", f"s_cbranch_scc1 L_wok1_{rep}")
        cy = [(j & 3) + 8 * (j >> 2) for j in range(8)]
        a("s_lshr_b32 s23, s19, 2", "s_add_u32 s23, s23, s21", "s_and_b32 s23, s23, 3", f"s_mul_i32 s22, s23, {144*1152}",
          "s_and_b32 s23, s19, 1", f"s_mul_i32 s23, s23, {72*1152}", "s_add_u32 s22, s22, s23", "s_bfe_u32 s23, s19, 0x10001", f"s_mul_i32 s23, s23, {36*1152}", "s_add_u32 s22, s22, s23",
          "v_lshrrev_b32 v201, 5, v0", "v_bfe_u32 v202, v0, 4, 1",
          f"v_mul_u32_u24 v203, {4*1152}, v201", "v_add_u32 v203, v200, v203",
          f"v_mul_u32_u24 v204, {3*1152}, v201", f"v_sub_u32 v204, {16*1152}, v204", "v_mul_u32_u24 v204, v202, v204", f"v_add_u32 v{AD}, v203, v204")
        for j in range(1, 8):
            dj = 18 + cy[j-1] - cy[j]
            a(f"v_mul_u32_u24 v204, {dj*1152}, v202", f"v_add_u32 v204, {cy[j]*1152}, v204", f"v_add_u32 v{AD+j}, v203, v204")
        a(f"s_branch L_wold_{rep}", f"L_wok1_{rep}:", "s_and_b32 s22, s19, 1", f"s_mul_i32 s22, s22, {36*1152}",
          "v_lshrrev_b32 v201, 4, v0", "v_add_u32 v201, s21, v201", "v_and_b32 v201, 3, v201", f"v_mul_u32_u24 v201, {144*1152}, v201", "v_add_u32 v203, v200, v201")
        for j in range(8):
            hq, hh, e = j >> 2, (j >> 1) & 1, j & 1
            row = 72 * hq + 18 + ((16 + hh) if e else (11 + 4 * hh))
            a(f"v_add_u32 v{AD+j}, {row*1152}, v203")
        a(f"L_wold_{rep}:")
        a(f"s_mov_b32 s{30+rep}, s22")

    def wo_job_loads(self, rep):
        for j in range(8):
            self.a(f"buffer_load_ushort v{224+8*rep+j}, v{208+8*rep+j}, s[{R_WO}:{R_WO+3}], s{30+rep} offen")

    def wo_job_finish(self, rep):
        a = self.a
        DT = 224 + 8 * rep
        a(f"s_lshl_b32 s22, s{S_OEX}, 10", f"s_add_u32 s22, s22, {WS_WOT}")
        for j in range(4):
            a(f"v_lshl_or_b32 v{240+4*rep+j}, v{DT+1+2*j}, 16, v{DT+2*j}")
        a(f"buffer_store_dwordx4 {vr(240+4*rep,4)}, v1, s[{R_WS}:{R_WS+3}], s22 offen sc1")

    def wo_finish(self):
        a = self.a
        a(f"s_cmp_ge_u32 s{S_OEX}, 512", "s_cbranch_scc0 L_wo3")
        self.wo_job_finish(1)
        a(f"s_sub_u32 s{S_OEX}, s{S_OEX}, 512", "L_wo3:")
        self.wo_job_finish(0)

    def poison_addr(self):
        a = self.a
        a([f"v_mov_b32 v{192+j}, -1" for j in range(4)])
        a(f"s_lshl_b32 s32, s{S_PG}, 2", f"s_add_u32 s32, s32, s{S_HG}", f"s_mul_i32 s32, s32, {OEX_W}", f"s_add_u32 s32, s32, {WS_OEX}",
          f"s_lshl_b32 s33, s{S_I}, 12", "s_add_u32 s33, s33, s32", f"s_lshl_b32 s34, s{S_PBI}, 10", "s_add_u32 s34, s34, s32", "s_add_u32 s34, s34, 16384")

    def poison(self):
        a = self.a
        for k in range(4):
            a(f"buffer_store_dwordx4 v[192:195], v1, s[{R_WS}:{R_WS+3}], s33 offen offset:{k*1024} sc0 sc1")
        a(f"buffer_store_dwordx4 v[192:195], v1, s[{R_WS}:{R_WS+3}], s34 offen sc0 sc1")

    def attention(self):
        a, o = self.a, self.o
        UNP = o['unp']
        a(f"v_mul_f32 v7, v6, v{QR+1}", f"v_mul_f32 v22, v6, v{QR2+1}", f"v_mov_b32 v6, {hex(f2u(-1.0 if o['force_fb'] else TSAFE))}",
          "v_cmp_nle_f32 vcc, v7, v6", "v_cmp_nle_f32 s[42:43], v22, v6", "v_sub_f32 v7, 0, v7", "v_sub_f32 v22, 0, v22",
          f"v_cvt_pk_bf16_f32 v{QR+1}, v7, 0", f"v_cvt_pk_bf16_f32 v{QR2+1}, v22, 0", "s_or_b64 vcc, vcc, s[42:43]", "s_cbranch_vccnz L_fallback", "L_fbdone:")
        q = self.qk(S[0], 0, 0)
        f1 = [f"s_lshl_b32 s{S_T0}, s{S_HQ}, 12", f"s_lshl_b32 s{S_T1}, s{S_PBI}, 11", f"s_add_u32 s{S_T2}, s{S_T0}, s{S_T1}",
              f"s_lshl_b32 s{S_T0}, s{S_PBI}, 9", f"s_lshl_b32 s{S_T1}, s{S_HQ}, 7", f"s_add_u32 s{S_T3}, s{S_T0}, s{S_T1}",
              f"v_mov_b32 v{V_JN}, {L_FLAG+4}", f"s_mov_b32 s{S_CNT}, {3 if o['u7'] else 32//UNP}", "v_bfe_u32 v6, v0, 4, 1", "v_lshrrev_b32 v7, 5, v0",
              "v_and_b32 v22, 15, v0", f"v_lshlrev_b32 v{V_OA}, 10, v6", f"v_lshl_add_u32 v{V_OA}, v7, 9, v{V_OA}", f"v_lshl_add_u32 v{V_OA}, v22, 4, v{V_OA}", f"v_add_u32 v{V_OA}, s{S_T2}, v{V_OA}",
              f"v_lshlrev_b32 v{V_OB}, 8, v6", f"v_lshl_add_u32 v{V_OB}, v7, 6, v{V_OB}", f"v_lshl_add_u32 v{V_OB}, v22, 2, v{V_OB}"]
        a("s_nop 0", q[0], f1, q[1], q[2], f"v_add_u32 v{V_OB}, s{S_T3}, v{V_OB}", "s_nop 9")
        self.stamp(6)
        self.stamp(6, 6)
        body = []
        LB = 7 if o['u7'] else UNP
        units = [(kb, pr) for kb in range(2 * LB) for pr in range(2)]
        for i, (kb, pr) in enumerate(units):
            cur, nxt = S[i % 2], S[(i + 1) % 2]
            q = self.qk(nxt, kb + pr, 1 - pr)
            e = EX(cur, 32)
            sm3p = SM(OS[2*(1-pr)+1], VV[(kb - 1 + pr) % 2][1], nxt + 24)
            sm = [SM(OS[2*pr], VV[kb % 2][0], cur), SM(OS[2*pr], VV[kb % 2][1], cur + 8), SM(OS[2*pr+1], VV[kb % 2][0], cur + 16)]
            if pr == 0:
                v0, v1 = self.ldV(kb + 1)
                x = [[v0], [v1], [], [], []]
            else:
                x = [[], [], self.ldKm(kb + 2), self.ldKr(kb // 2 + 1) if kb % 2 == 0 else [], ["s_waitcnt lgkmcnt(0)"]]
            if o['u7'] and i == 4 * UNP - 1:
                x[0], x[1] = [f"s_cmp_lg_u32 s{S_CNT}, s{S_BAR}"], ["s_cbranch_scc0 L_b7", "L_b7d:"]
            body += e[0:2] + [sm3p] + x[0] + e[2:5] + [q[0]] + e[5:13] + [sm[0]] + x[1] + e[13:18] + [sm[1]] + x[2] + e[18:21] + [q[1]] + x[3] + e[21:24] + [q[2]] + e[24:27] + [sm[2]] + x[4] + e[27:32]
            if i == 4 * UNP - 1:
                first = list(body)
        reach = max(int(x.split("offset:")[1]) + {V_AK: 1024, V_AR: 2048 + 256, V_AV: 2304 + VG}[int(x.split(", v")[1].split()[0])] for x in first if x.startswith("ds_read"))
        assert reach <= 4096 * o['kv1'] and L_KV + 4096 * o['kv1'] <= dslot(17)
        assert L_W8 + 18432 <= L_KV + (32 - UNP) * PB
        body += [f"v_add_u32 v{V_AK}, {LB*PB}, v{V_AK}", f"v_add_u32 v{V_AR}, {LB*PB}, v{V_AR}", f"v_add_u32 v{V_AV}, {LB*PB}, v{V_AV}"]
        if o['u7']:
            mf = [i for i, x in enumerate(body) if 'smfmac' in x and not body[i + 1].startswith(('ds_', 's_'))]
            body.insert(mf[-1] + 1, f"s_sub_u32 s{S_CNT}, s{S_CNT}, 1")
            a(".p2align 6", "L_main:", body, "s_cbranch_scc0 L_main")
            self.late_stub = ["L_b7:", "s_barrier", "s_branch L_b7d"]
        elif o['sh']:
            mf = [i for i, x in enumerate(body) if 'smfmac' in x and not body[i + 1].startswith(('ds_', 's_'))]
            body.insert(mf[-1] + 1, f"s_cmp_lg_u32 s{S_CNT}, s{S_BAR}")
            body.insert(mf[-2] + 1, f"s_sub_u32 s{S_CNT}, s{S_CNT}, 1")
            a(".p2align 6", "L_main:", body, "s_cbranch_scc1 L_main", f"s_cmp_eq_u32 s{S_CNT}, 1", "s_cbranch_scc1 L_last", "s_barrier", f"s_mov_b32 s{S_BAR}, 1", "s_branch L_main", "L_last:")
        else:
            a(".p2align 6", "L_main:", body, f"s_sub_u32 s{S_CNT}, s{S_CNT}, 1", f"s_cmp_lg_u32 s{S_CNT}, s{S_BAR}", "s_cbranch_scc1 L_nob", "s_barrier", "L_nob:",
              f"s_cmp_lg_u32 s{S_CNT}, 1", "s_cbranch_scc1 L_main")
        a("s_barrier", f"ds_read_b32 v23, v{V_JN} offset:4", self.ldKr(1))
        DW = [192, 204]

        def publish(pr):
            x, y, d = OS[2*pr], OS[2*pr+1], DW[pr]
            vals = [x + j for j in range(9)] + [y + j for j in range(9)]
            c = [f"v_cvt_pk_bf16_f32 v{d+j}, v{vals[2*j]}, v{vals[2*j+1]}" for j in range(9)]
            a(f"v_rcp_f32 v6, v{x+9}", "s_nop 0", [f"v_mul_f32 v{r}, v{r}, v6" for r in vals[:9]], c[:3], f"v_rcp_f32 v7, v{y+9}", c[3])
            direct = pr == 1 or not o['hst']
            if direct:
                a("v_cmp_ne_u32 vcc, 0, v23", f"s_cbranch_vccnz L_pub1{pr}")
            for fl in (" sc0 sc1", "") if direct else (None,):
                st = lambda n, r, v, so, off: f"buffer_store_dword{n} {r}, v{v}, s[{R_WS}:{R_WS+3}], s{so} offen offset:{off}{fl}" if direct else []
                so = S_OA if pr else S_OW
                a(st('x4', vr(d, 4), V_OA, so, 0), [f"v_mul_f32 v{r}, v{r}, v7" for r in vals[9:]], c[4:8], st('x4', vr(d + 4, 4), V_OA, so, 256), c[8], st('', vr(d + 8), V_OB, S_OB, 1024 * pr))
                if fl:
                    a(f"s_branch L_pub2{pr}", f"L_pub1{pr}:")
            a(f"L_pub2{pr}:")
            if pr:
                a(self.peer_loads())
            else:
                a(f"v_add_u32 v201, {L_O}, v{V_OA}", f"v_add_u32 v202, {L_O + 65536}, v{V_OB}")
            a(f"ds_write_b128 v201, {vr(d, 4)} offset:{8192*pr}", f"ds_write_b128 v201, {vr(d + 4, 4)} offset:{8192*pr + 256}", f"ds_write_b32 v202, v{d + 8} offset:{1024*pr}")
        NV = 2 * UNP
        for j in range(2 * NV):
            pr, kb = j // NV, j % NV
            cur, nxt = S[j % 2], S[(j + 1) % 2]
            q = self.qk(nxt, (j + 1) % NV, (j + 1) // NV) if j + 1 < 2 * NV else [[], [], []]
            e = EX(cur, 32)
            sm3p = SM(OS[2*((j - 1) // NV % 2)+1], VV[(j - 1) % 2][1], nxt + 24)
            sm = [SM(OS[2*pr], VV[j % 2][0], cur), SM(OS[2*pr], VV[j % 2][1], cur + 8), SM(OS[2*pr+1], VV[j % 2][0], cur + 16)]
            v0, v1 = self.ldV((j + 1) % NV) if j + 1 < 2 * NV else ([], [])
            km = self.ldKm((j + 2) % NV) if j + 2 < 2 * NV else []
            kr = self.ldKr(((j + 3) // 2) % UNP) if j % 2 == 1 and j + 3 < 2 * NV else []
            a(e[0:2], sm3p, v0, e[2:5], q[0], e[5:13], sm[0], v1, e[13:18], sm[1], km, e[18:21], q[1], kr, e[21:24], q[2], e[24:27], sm[2], "s_waitcnt lgkmcnt(0)", e[27:32])
            if j == NV:
                publish(0)
            if j == o['nj']:
                a("s_barrier")
        a("s_nop 1", SM(O2[1], VV[1][1], S[1] + 24))
        self.stamp(7)
        a("s_setprio 3", "s_barrier")
        publish(1)
        self.tail_vaddr()
        a(f"v_add_u32 v21, {L_W8}, v1")
        self.stamp(1, 4)
        if o['own1'] == 1:
            a("s_waitcnt lgkmcnt(0)", "s_barrier")
        if o['own1'] == 2:
            a("v_mov_b32 v6, 1", "s_waitcnt lgkmcnt(0)", "s_mov_b64 exec, 1", f"ds_add_u32 v{V_JN}, v6", "s_mov_b64 exec, -1")
        self.collect("e")
        if not o['h8']:
            a("; ---- ninth column tile for 16 positions ----")
            q = []
            RO, RW, ACC = [56 + 8 * k for k in range(5)], [60 + 8 * k for k in range(5)], 100
            for n in range(18 + 4):
                if n >= 4:
                    ks = n - 4
                    last = max(i for i, t in enumerate(q) if t == ks)
                    a(f"s_waitcnt lgkmcnt({min(len(q) - 1 - last, 14)})", M16(ACC, RW[ks % 5], RO[ks % 5], "0" if ks == 0 else None))
                    del q[:last + 1]
                if n < 18:
                    x = self.ofrag(RO[n % 5], 0, n) + [f"ds_read_b128 {vr(RW[n % 5], 4)}, v21 offset:{n*1024}"]
                    a(x)
                    q += [n] * len(x)
            a("s_nop 7", f"v_cvt_pk_bf16_f32 v6, v{ACC}, v{ACC+1}", f"v_cvt_pk_bf16_f32 v7, v{ACC+2}, v{ACC+3}",
              f"buffer_store_dwordx2 v[6:7], v23, s[{R_OUT}:{R_OUT+3}], s41 offen")
        self.finish()

    def peer_loads(self):
        return [f"buffer_load_dwordx4 {vr(24+4*k,4)}, v1, s[{R_WS}:{R_WS+3}], s{16+k} offen sc0 sc1" for k in range(7)]

    def ofrag(self, r, tp, ks):
        if ks < 16:
            return [f"ds_read_b128 {vr(r,4)}, v{8+tp} offset:{ks*4096}"]
        if ks == 16:
            return [f"ds_read2_b32 {vr(r,2)}, v{52+tp} offset0:0 offset1:16", f"ds_read2_b32 {vr(r+2,2)}, v{52+tp} offset0:32 offset1:48"]
        return [f"ds_read2_b32 {vr(r,2)}, v{16+tp} offset0:0 offset1:16", f"ds_read2_b32 {vr(r+2,2)}, v{16+tp} offset0:32 offset1:48"]

    def tail_vaddr(self):
        self.a(f"s_lshl_b32 s{S_T0}, s{S_I}, 10", f"s_add_u32 s{S_T0}, s{S_T0}, {L_O}", f"v_add_u32 v8, s{S_T0}, v1", "v_xor_b32 v9, 0x400, v8", "v_xor_b32 v10, 0x800, v8", "v_xor_b32 v11, 0xc00, v8",
               "v_lshrrev_b32 v6, 4, v0", "v_and_b32 v7, 15, v0", "v_mul_u32_u24 v22, 0x900, v7", "v_lshl_add_u32 v23, v6, 3, v22", "v_lshl_add_u32 v22, v6, 4, v22",
               "v_lshlrev_b32 v6, 11, v6", "v_lshl_add_u32 v6, v7, 2, v6", f"s_lshl_b32 s{S_T0}, s{S_I}, 8", f"s_add_u32 s{S_T0}, s{S_T0}, {L_O + 65536}",
               f"v_add_u32 v52, s{S_T0}, v6", "v_xor_b32 v53, 0x100, v52", "v_xor_b32 v54, 0x200, v52", "v_xor_b32 v55, 0x300, v52",
               [f"v_add_u32 v{16+k}, 0x400, v{52+k}" for k in range(4)])

    def collect(self, tag):
        a, PB_ = self.a, 24
        AD = [216 + k for k in range(7)] if tag == 'e' else [2, 3, 4, 5, 12, 13, 14]
        a([f"v_add_u32 v{AD[k]}, s{30+k}, v1" for k in range(7)])
        a(f"s_mov_b32 s{S_CNT}, {SPIN}", f"L_cl{tag}:", "s_waitcnt vmcnt(0)")
        self.stamp(3, 4)
        a(f"v_max3_u32 v6, v{PB_}, v{PB_+1}, v{PB_+2}", f"v_max3_u32 v7, v{PB_+3}, v{PB_+4}, v{PB_+5}")
        for j in range(6, 28, 4):
            a(f"v_max3_u32 v6, v6, v{PB_+j}, v{PB_+j+1}")
            if j + 3 < 28:
                a(f"v_max3_u32 v7, v7, v{PB_+j+2}, v{PB_+j+3}")
        a("v_max_u32 v7, v7, v6", "v_cmp_eq_u32 vcc, -1, v7", f"s_cbranch_vccz L_cld{tag}", f"s_sub_u32 s{S_CNT}, s{S_CNT}, 1", f"s_cbranch_scc1 L_cld{tag}", self.peer_loads(), f"s_branch L_cl{tag}", f"L_cld{tag}:")
        self.stamp(2, 4)
        a([f"ds_write_b128 v{AD[k]}, {vr(PB_+4*k,4)}" for k in range(7)])
        a("s_waitcnt lgkmcnt(0)", "s_barrier")
        self.stamp(4, 4)
        self.stamp(4, 0)

    def tail_late(self):
        a, o = self.a, self.o
        WF, ACC = 112, 80
        RING = [56 + 4 * i for i in range(6)]
        R8, A8 = [24 + 4 * i for i in range(6)], 48
        if o['hst']:
            a(f"s_lshl_b32 s{S_T0}, s{S_I}, 11", f"s_add_u32 s{S_T1}, s{S_T0}, s{S_OW}", f"s_add_u32 s{S_T0}, s{S_T0}, {L_O}", f"v_add_u32 v56, s{S_T0}, v1",
              f"v_lshlrev_b32 v57, 2, v0", f"s_lshl_b32 s{S_T0}, s{S_I}, 8", f"s_add_u32 s{S_T2}, s{S_T0}, s{S_OB}", f"s_add_u32 s{S_T0}, s{S_T0}, {L_O + 65536}", f"v_add_u32 v58, s{S_T0}, v57",
              f"s_cmp_eq_u32 s{S_SAME}, 1")
        a("s_setprio 2", "s_barrier")
        if o['hst']:
            a("ds_read_b128 v[60:63], v56", "ds_read_b128 v[64:67], v56 offset:1024", "ds_read_b32 v68, v58", "s_cbranch_scc1 L_hs1")
            for fl in (" sc0 sc1", ""):
                a("s_waitcnt lgkmcnt(0)", f"buffer_store_dwordx4 v[60:63], v1, s[{R_WS}:{R_WS+3}], s{S_T1} offen{fl}", f"buffer_store_dwordx4 v[64:67], v1, s[{R_WS}:{R_WS+3}], s{S_T1} offen offset:1024{fl}",
                  f"buffer_store_dword v68, v57, s[{R_WS}:{R_WS+3}], s{S_T2} offen{fl}")
                if fl:
                    a("s_branch L_hs2", "L_hs1:")
            a("L_hs2:")
        a(self.peer_loads())
        self.collect("l")
        a("s_setprio 1", f"v_add_u32 v21, {L_W8}, v1", f"v_mov_b32 v20, {L_FLAG+4}")
        self.stamp(7)
        q = []

        def run(seq, n0, after):
            PF = 5

            def reads(j):
                x = self.ofrag(RING[(n0 + j) % 6], *seq[j])
                if o['h8'] and seq[j][0] == 0:
                    x = x + [f"ds_read_b128 {vr(R8[(n0 + j) % 6], 4)}, v21 offset:{seq[j][1]*1024}"]
                return x

            def emit(x, j):
                a(x)
                q.append(n0 + j)

            def need(j):
                last = max(i for i, t in enumerate(q) if t == n0 + j)
                a(f"s_waitcnt lgkmcnt({min(len(q) - 1 - last, 14)})")
                del q[:last + 1]
            for j in range(PF):
                for x in reads(j):
                    emit(x, j)
            need(0)
            for j, (tp, ks) in enumerate(seq):
                c = "0" if ks == 0 else None
                r = RING[(n0 + j) % 6]
                ms = [M16(ACC + 4 * tp, WF + 4 * ks, r, c), M16(ACC + 16 + 4 * tp, WF + 72 + 4 * ks, r, c)]
                if o['h8'] and tp == 0:
                    ms.append(M16(A8, R8[(n0 + j) % 6], r, c))
                rd = reads(j + PF) if j + PF < len(seq) else []
                for i, m in enumerate(ms):
                    a(m)
                    if o['sp'] and i + 1 < len(ms) and rd:
                        emit(rd.pop(0), j + PF)
                for x in rd:
                    emit(x, j + PF)
                a(after.get(j, []))
                if j + 1 < len(seq):
                    need(j + 1)

        def outp(tp):
            r = 12 if tp & 1 else 4
            x = [f"v_cvt_pk_bf16_f32 v{r+k}, v{ACC+16*(k>>1)+4*tp+2*(k&1)}, v{ACC+16*(k>>1)+4*tp+2*(k&1)+1}" for k in range(4)] + \
                [f"buffer_store_dwordx4 {vr(r,4)}, v22, s[{R_OUT}:{R_OUT+3}], s{37+tp} offen"]
            if o['h8'] and tp == 0:
                x += [f"v_cvt_pk_bf16_f32 v2, v{A8}, v{A8+1}", f"v_cvt_pk_bf16_f32 v3, v{A8+2}, v{A8+3}", f"buffer_store_dwordx2 v[2:3], v23, s[{R_OUT}:{R_OUT+3}], s41 offen"]
            return x
        k0 = [0, 1, 4, 5, 8, 9, 12, 13, 16]
        k1 = [6, 7, 10, 11, 14, 15, 17]
        run([(tp, ks) for ks in k0 for tp in range(4)], 0, {})
        if o['own1']:
            if o['own1'] == 1:
                a("s_barrier")
            else:
                a(f"s_mov_b32 s{S_CNT}, {SPIN_L}", "L_own:", "ds_read_b32 v6, v20", f"s_sub_u32 s{S_CNT}, s{S_CNT}, 1", "s_cbranch_scc1 L_ownd", "s_waitcnt lgkmcnt(0)",
                  "v_cmp_gt_u32 vcc, 8, v6", "s_cbranch_vccnz L_own", "L_ownd:")
            run([(tp, ks) for ks in (2, 3) for tp in range(4)], 36, {})
        else:
            k1 = [2, 3] + k1
        a("s_setprio 3", "s_barrier")
        self.stamp(6, 4)
        n1 = len(k1)
        run([(tp, ks) for tp in range(4) for ks in k1], 44, {n1 * i + 2: outp(i - 1) for i in (1, 2, 3)})
        a("s_nop 6", outp(3), "s_branch L_fin")

    def tail_scalars(self):
        a, o = self.a, self.o
        a(f"s_mul_i32 s{S_OEXB}, s{S_PG}, {OEX_G}", f"s_add_u32 s{S_OEXB}, s{S_OEXB}, {WS_OEX}", f"s_mul_i32 s{S_OW}, s{S_HG}, {OEX_W}", f"s_add_u32 s{S_OW}, s{S_OW}, s{S_OEXB}",
          f"s_add_u32 s{S_OA}, s{S_OW}, 8192", f"s_add_u32 s{S_OB}, s{S_OW}, 16384",
          f"s_lshl_b32 s23, s{S_STG}, 13", f"s_lshl_b32 s24, s{S_STG}, 10")
        for k in range(7):
            a(f"s_add_u32 s{S_T0}, s{S_I}, {4*k}")
            if k == 6:
                a(f"s_min_u32 s{S_T0}, s{S_T0}, 26")
            a(f"s_mul_i32 s{S_T1}, s{S_T0}, 7282", f"s_lshr_b32 s{S_T1}, s{S_T1}, 16", f"s_mul_i32 s{S_T2}, s{S_T1}, 9", f"s_sub_u32 s{S_T2}, s{S_T0}, s{S_T2}",
              f"s_add_u32 s{S_T1}, s{S_T1}, 1",
              f"s_lshl_b32 s{S_T0}, s{S_T2}, 10", f"s_add_u32 s{S_T0}, s{S_T0}, s23", f"s_add_u32 s{S_T3}, s24, 16384",
              f"s_lshl_b32 s{30+k}, s{S_T1}, 14", f"s_add_u32 s{30+k}, s{30+k}, s{S_T0}", f"s_lshl_b32 s{16+k}, s{S_T1}, 11", f"s_add_u32 s{16+k}, s{16+k}, s24", f"s_add_u32 s{16+k}, s{16+k}, 65536",
              f"s_cmp_eq_u32 s{S_T2}, 8", f"s_cselect_b32 s{S_T0}, s{S_T3}, s{S_T0}", f"s_cselect_b32 s{30+k}, s{16+k}, s{30+k}", f"s_add_u32 s{30+k}, s{30+k}, {L_O}",
              f"s_add_u32 s{S_T1}, s{S_T1}, s{S_HG}", f"s_and_b32 s{S_T1}, s{S_T1}, 3", f"s_mul_i32 s{S_T1}, s{S_T1}, {OEX_W}", f"s_add_u32 s{S_T0}, s{S_T0}, s{S_T1}", f"s_add_u32 s{16+k}, s{S_T0}, s{S_OEXB}")
        a(f"s_mul_i32 s{S_T0}, s{S_PG}, {64*2304}", f"s_mul_i32 s{S_T1}, s{S_B}, 1152", f"s_add_u32 s{S_T0}, s{S_T0}, s{S_T1}", f"s_mul_i32 s{S_T1}, s{S_HG}, 288",
          f"s_add_u32 s{S_T0}, s{S_T0}, s{S_T1}", f"s_lshl_b32 s{S_T1}, s{S_I}, 6", f"s_add_u32 s{S_T1}, s{S_T1}, s{S_T0}")
        for tp in range(4):
            a(f"s_xor_b32 s{S_T2}, s{S_I}, {tp}", f"s_mul_i32 s{S_T2}, s{S_T2}, {16*2304}", f"s_add_u32 s{37+tp}, s{S_T2}, s{S_T1}")
            if tp == 0:
                a(f"s_add_u32 s41, s{S_T2}, s{S_T0}", "s_add_u32 s41, s41, 256")

    def fallback(self):
        a, o = self.a, self.o
        a.label("L_fallback")
        a("s_barrier", f"s_mov_b32 s{S_BAR}, {1 if o['sh'] and not o['u7'] else -1}")
        a(f"v_mov_b32 v{QR+1}, 0", f"v_mov_b32 v{QR2+1}, 0", f"v_mov_b32 v192, v{V_AK}", f"v_mov_b32 v193, v{V_AR}", [f"v_mov_b32 v{194+k}, 0xff800000" for k in range(4)],
          "v_mov_b32 v199, 0x3f803f80", f"s_mov_b32 s{S_CNT}, 32", "L_fbl:",
          "ds_read_b32 v198, v193", "ds_read_b128 v[200:203], v192", "ds_read_b128 v[204:207], v192 offset:1024",
          f"v_add_u32 v192, {PB}, v192", f"v_add_u32 v193, {PB}, v193", "s_waitcnt lgkmcnt(0)")
        for h in range(2):
            for pr in range(2):
                a(B2(208, 198, QRS[pr], h), "s_nop 15", "s_nop 1", K16(208, 200 + 4 * h, QMS[2*pr]), K16(224, 200 + 4 * h, QMS[2*pr+1]), "s_nop 11")
                for j in range(8):
                    a(f"v_max3_f32 v{194+2*pr}, v{194+2*pr}, v{208+2*j}, v{209+2*j}", f"v_max3_f32 v{195+2*pr}, v{195+2*pr}, v{224+2*j}, v{225+2*j}")
        a(f"s_sub_u32 s{S_CNT}, s{S_CNT}, 1", f"s_cmp_lg_u32 s{S_CNT}, 0", "s_cbranch_scc1 L_fbl")
        for pr in range(2):
            x, y = 194 + 2 * pr, 195 + 2 * pr
            a("s_nop 0", f"v_permlane32_swap_b32 v{x}, v{y}", "s_nop 1", f"v_max_f32 v{x}, v{x}, v{y}", f"v_sub_f32 v{x}, 0, v{x}",
              f"v_cvt_pk_bf16_f32 v{y}, v{x}, 0", f"v_lshlrev_b32 v{y}, 16, v{y}", f"v_sub_f32 v{y}, v{x}, v{y}", f"v_cvt_pk_bf16_f32 v{QRS[pr]+1}, v{x}, v{y}")
        a("s_branch L_fbdone")

    def finish(self):
        a, o = self.a, self.o
        a("L_fin:")
        if o['stamps'] or o['dbgspan'] or o['ampk']:
            a("s_waitcnt vmcnt(0)")
            self.stamp(5, o['set'] if o['set'] in (1, 4) else 0)
        if o['ampk']:
            a(f"s_cmp_eq_u32 s{S_STG}, {1 - o['amps']}", "s_cbranch_scc1 L_end", "s_waitcnt lgkmcnt(0)", f"s_sub_u32 s{S_T0}, s{S_ST+2*o['ampb']}, s{S_ST+2*o['ampa']}")
            if o['avg']:
                a(f"s_cmp_lg_u32 s{S_I}, 0", "s_cbranch_scc1 L_end", "s_mov_b64 exec, 1", "v_mov_b32 v8, 0", f"v_mov_b32 v9, s{S_T0}", "v_mov_b32 v10, 1",
                  f"buffer_atomic_add v9, v8, s[{R_DBG}:{R_DBG+3}], 0 offen offset:16 sc1", "s_waitcnt vmcnt(0)",
                  f"buffer_atomic_add v10, v8, s[{R_DBG}:{R_DBG+3}], 0 offen offset:144 sc0 sc1", "s_waitcnt vmcnt(0)", "v_cmp_eq_u32 vcc, 0xff, v10", "s_cbranch_vccz L_end",
                  f"buffer_load_dword v9, v8, s[{R_DBG}:{R_DBG+3}], 0 offen offset:16 sc0 sc1", "s_waitcnt vmcnt(0)", f"v_readfirstlane_b32 s{S_T0}, v9", "s_nop 3", f"s_mul_i32 s{S_T0}, s{S_T0}, {max(o['ampk'], 1)}", f"s_lshr_b32 s{S_T0}, s{S_T0}, {8 - min(o['ampk'], 0)}")
            else:
                a(f"s_mul_i32 s{S_T0}, s{S_T0}, {o['ampk']}" if o['ampk'] > 0 else f"s_lshr_b32 s{S_T0}, s{S_T0}, {-o['ampk']}")
            a("s_memrealtime s[18:19]", f"s_min_u32 s{S_T0}, s{S_T0}, 100000",
              "L_amp:", "s_memrealtime s[16:17]", "s_waitcnt lgkmcnt(0)", "s_sub_u32 s16, s16, s18", f"s_cmp_lt_u32 s16, s{S_T0}", "s_cbranch_scc1 L_amp")
        self.dump_stamps()
        a("L_end:", "s_endpgm")

    def build(self):
        self.start()
        self.early_front()
        self.attention()
        self.late_front()
        self.a(getattr(self, 'late_stub', []))
        self.fallback()
        hdr = (open('concat_heads__grouped_kv_mqa__grouped_kv_mqa__prompt.s.ref').read().split("; Override launch geometry")[0] +
               f"; @launch grid=(256,1,1) block=(512,1,1) lds={LDS_BYTES}\n" + DOC +
               '.amdgcn_target "amdgcn-amd-amdhsa--gfx950"\n.text\n'
               f".globl {NAME}\n.p2align 8\n.type {NAME},@function\n{NAME}:\n")
        if self.o['of'] & 1:
            self.a.L = [x.replace(" sc0 sc1", " sc1") if "buffer_store" in x and f"s[{R_WS}:" in x else x for x in self.a.L]
        if self.o['of'] & 2:
            self.a.L = [x.replace(" sc0 sc1", " sc1") if "buffer_load" in x and f"s[{R_WS}:" in x else x for x in self.a.L]
        body = "".join((x + "\n") if x.endswith(":") or x.startswith(";") else ("    " + x + "\n") for x in self.a.L)
        t = table()
        tab = ".p2align 6\n.type L_table,@object\nL_table:\n" + "".join("    .long " + ", ".join(str(int(v)) for v in row) + "\n" for row in t)
        tab += f".fill (1024 - ((. - {NAME}) & 1023)) & 1023, 1, 0\nL_codeend:\n.size L_table, L_codeend-L_table\n"
        kd = f""".section .rodata,"a"
.p2align 6
.amdhsa_kernel {NAME}
  .amdhsa_next_free_vgpr 256
  .amdhsa_next_free_sgpr 102
  .amdhsa_accum_offset 256
  .amdhsa_group_segment_fixed_size 0
  .amdhsa_kernarg_size 104
  .amdhsa_user_sgpr_count 2
  .amdhsa_user_sgpr_kernarg_segment_ptr 1
  .amdhsa_system_sgpr_workgroup_id_x 1
.end_amdhsa_kernel
"""
        return hdr + body + tab + kd


if __name__ == "__main__":
    out = sys.argv[1]
    opt = {}
    for kv in sys.argv[2:]:
        k, v = kv.split("=")
        opt[k] = int(v)
    g = Gen(opt)
    open(out, "w").write(g.build())
```
